```python
import torch

def _softmax(x, axis=-1):
    return torch.softmax(x, dim=axis)
def _gelu(x):
    return torch.nn.functional.gelu(x, approximate="tanh")
def _silu(x):
    return torch.nn.functional.silu(x)
def _sigmoid(x):
    return torch.sigmoid(x)
def _layernorm(x, axis=-1, eps=1e-5):
    m = x.mean(dim=axis, keepdim=True)
    v = x.var(dim=axis, keepdim=True, unbiased=False)
    return (x - m) / torch.sqrt(v + eps)
def _scatter_add(tgt, idx, src, axis=0):
    return tgt.clone().index_add_(axis, idx, src)
def _segment_sum(src, seg, n):
    out = torch.zeros((n,) + src.shape[1:], dtype=src.dtype)
    return out.index_add_(0, seg, src)
def _pad(x, pw):
    flat = tuple(v for pair in reversed(pw) for v in pair)
    return torch.nn.functional.pad(x, flat)

kernel_name = 'interleave_layers__mha_block_cached__glu_gated_reglu__decode'

def setup_inputs():

    _w = (lambda a: (lambda t: t.to(torch.bfloat16) if t.is_floating_point() else t)(torch.as_tensor(a)))
    def _A_setup():
        B, Sq, D = 4, 1, 448
        H, Sk, Dh = 16, 4096, 256
        return {
            "x": _w((lambda *s: torch.randn(*s, dtype=torch.bfloat16) * 0.05)(B, Sq, D)),
            "k_cache": _w((lambda *s: torch.randn(*s, dtype=torch.bfloat16) * 0.8)(B, H, Sk, Dh)),
            "v_cache": _w((lambda *s: torch.randn(*s, dtype=torch.bfloat16) * 0.8)(B, H, Sk, Dh)),
            "wq": _w((lambda *s: torch.randn(*s, dtype=torch.bfloat16) * 0.8)(D, H * Dh) * (D ** -0.5)),
            "wo": _w((lambda *s: torch.randn(*s, dtype=torch.bfloat16) * 0.8)(H * Dh, D) * ((H * Dh) ** -0.5)),
        }
    _A_in = _A_setup()

    def _B_setup():
        B, S, D, F = 4, 1, 448, 1792
        return {
            "x": _w((lambda *s: torch.randn(*s, dtype=torch.bfloat16) * 0.05)(B, S, D)),
            "W_gate": _w((lambda *s: torch.randn(*s, dtype=torch.bfloat16) * 0.2)(D, F) * (2.0 / D) ** 0.5),
            "W_up": _w((lambda *s: torch.randn(*s, dtype=torch.bfloat16) * 0.2)(D, F) * (2.0 / D) ** 0.5),
            "W_down": _w((lambda *s: torch.randn(*s, dtype=torch.bfloat16) * 0.2)(F, D) * (1.0 / F) ** 0.5),
        }
    _B_in = _B_setup()

    return {
        "A_x": _A_in["x"],
        "A_k_cache": _A_in["k_cache"],
        "A_v_cache": _A_in["v_cache"],
        "A_wq": _A_in["wq"],
        "A_wo": _A_in["wo"],
        "B_x": _B_in["x"],
        "B_W_gate": _B_in["W_gate"],
        "B_W_up": _B_in["W_up"],
        "B_W_down": _B_in["W_down"],
    }

def reference(A_x, A_k_cache, A_v_cache, A_wq, A_wo, B_x, B_W_gate, B_W_up, B_W_down):
    def _A_ref(x, k_cache, v_cache, wq, wo):
        B, Sq, D = x.shape
        H, Dh = 16, 256
        q = (lambda x, *d: x.permute(*d))((x @ wq).reshape(B, Sq, H, Dh), 0, 2, 1, 3)
        scores = torch.einsum("bhqd,bhkd->bhqk", q, k_cache) * (Dh ** -0.5)
        p = _softmax(scores, axis=-1)
        o = torch.einsum("bhqk,bhkd->bhqd", p, v_cache)
        return (lambda x, *d: x.permute(*d))(o, 0, 2, 1, 3).reshape(B, Sq, H * Dh) @ wo

    def _B_ref(x, W_gate, W_up, W_down):
        gate = torch.einsum("bsd,df->bsf", x, W_gate)
        up = torch.einsum("bsd,df->bsf", x, W_up)
        gate = gate * (lambda x, dt: x.to(dt))(gate > 0, gate.dtype)
        h = gate * up
        return torch.einsum("bsf,fd->bsd", h, W_down)

    x = A_x
    x = x + _A_ref(_layernorm(x, axis=-1), A_k_cache, A_v_cache, A_wq, A_wo)
    x = x + _B_ref(_layernorm(x, axis=-1), B_W_gate, B_W_up, B_W_down)
    x = x + _A_ref(_layernorm(x, axis=-1), A_k_cache, A_v_cache, A_wq, A_wo)
    x = x + _B_ref(_layernorm(x, axis=-1), B_W_gate, B_W_up, B_W_down)
    return x
```

```python
import re

REG_RE = re.compile(r'\b([vas])\[(\d+):(\d+)\]|\b([vas])(\d+)\b|\b(vcc|exec|m0)\b')
TRANS = ('v_exp_f32', 'v_log_f32', 'v_rcp_f32', 'v_rsq_f32', 'v_sqrt_f32')

def regs_of(tok):
    out = []
    for m in REG_RE.finditer(tok):
        if m.group(1):
            out += [(m.group(1), i) for i in range(int(m.group(2)), int(m.group(3)) + 1)]
        elif m.group(4):
            out.append((m.group(4), int(m.group(5))))
        else:
            out.append((m.group(6), 0))
    return out

class Ins:
    __slots__ = ('text', 'op', 'cls', 'w', 'r', 'dpp', 'trans', 'perm', 'rl', 'wide', 'lds', 'ws', 'mf_ab', 'mf_c', 'label', 'target', 'dot', 'sdata')
    def __init__(self, text):
        self.text = text
        t = text.split(';')[0].strip()
        self.label = None; self.target = None
        self.w = set(); self.r = set(); self.dpp = False; self.trans = False; self.perm = False; self.rl = False
        self.wide = False; self.lds = False; self.ws = 1; self.mf_ab = set(); self.mf_c = set(); self.dot = False; self.sdata = set()
        if not t or t.startswith('.'):
            self.op = ''; self.cls = 'none'; self.ws = 0; return
        if t.endswith(':'):
            self.op = ''; self.cls = 'label'; self.label = t[:-1]; self.ws = 0; return
        parts = t.split(None, 1)
        op = parts[0]; self.op = op
        rest = parts[1] if len(parts) > 1 else ''
        ops = []; depth = 0; cur = ''
        for ch in rest:
            if ch == '[': depth += 1
            if ch == ']': depth -= 1
            if ch == ',' and depth == 0: ops.append(cur.strip()); cur = ''
            else: cur += ch
        if cur.strip(): ops.append(cur.strip())
        mods = ''
        if ops:
            sp = ops[-1].split(None, 1)
            if len(sp) > 1: ops[-1] = sp[0]; mods = sp[1]
        R = [set(regs_of(o)) for o in ops]
        if op.startswith('v_mfma') or op.startswith('v_smfmac'):
            self.cls = 'mfma'; self.w = R[0]
            if op.startswith('v_smfmac'):
                self.mf_ab = R[1] | R[2] | R[3]; self.mf_c = R[0]
            else:
                self.mf_ab = R[1] | R[2]; self.mf_c = R[3]
            self.r = self.mf_ab | self.mf_c
        elif op.startswith('v_'):
            self.cls = 'valu'
            self.dpp = ('_dpp' in op) or ('quad_perm' in mods) or ('row_' in mods)
            self.trans = op.replace('_e32', '').replace('_e64', '') in TRANS
            self.dot = op.startswith('v_dot')
            if op.startswith('v_permlane'):
                self.perm = True; self.w = R[0] | R[1]; self.r = R[0] | R[1]
            elif op == 'v_nop':
                pass
            else:
                self.w = R[0]
                for x in R[1:]: self.r |= x
                if 'fmac' in op or 'dot2c' in op or op.startswith('v_writelane'): self.r |= R[0]
                if op.startswith('v_readlane') or op.startswith('v_readfirstlane'): self.rl = True
                if op.startswith('v_cndmask') and len(ops) == 3: self.r.add(('vcc', 0))
                assert not op.startswith('v_cmpx'), text
        elif op.startswith('buffer_') or op.startswith('global_'):
            self.cls = 'vmem'
            self.lds = bool(re.search(r'\blds\b', mods))
            isload = '_load' in op
            if isload and not self.lds:
                self.w = R[0]
                for x in R[1:]: self.r |= x
                if 'd16' in op: self.r |= R[0]
            else:
                for x in R: self.r |= x
                if self.lds: self.r.add(('m0', 0))
                if not isload and ('x3' in op or 'x4' in op):
                    self.wide = True
                    self.sdata = R[0] if op.startswith('buffer_') else R[1]
        elif op.startswith('ds_'):
            self.cls = 'ds'
            if op.startswith('ds_read') or '_rtn' in op or 'permute' in op:
                self.w = R[0]
                for x in R[1:]: self.r |= x
            else:
                for x in R: self.r |= x
        elif op.startswith('s_'):
            self.cls = 'salu'
            if op == 's_nop': self.ws = int(ops[0], 0) + 1
            elif op.startswith('s_cbranch') or op == 's_branch': self.target = ops[0]
            elif op == 's_call_b64': self.target = ops[1]; self.w = R[0]
            elif op == 's_setpc_b64': self.r = R[0]
            elif op.startswith('s_cmp') or op.startswith('s_bitcmp') or op in ('s_waitcnt', 's_barrier', 's_endpgm', 's_sleep', 's_setprio'):
                for x in R: self.r |= x
            else:
                if R: self.w = R[0]
                for x in R[1:]: self.r |= x
                if 'saveexec' in op: self.w = self.w | {('exec', 0)}
        else:
            raise ValueError(text)

def isv(s): return {x for x in s if x[0] in 'va'}
def iss(s): return {x for x in s if x[0] in ('s', 'vcc')}

MF_RAW = 9
def need(p, c):
    n = 0
    if p.cls == 'valu':
        wv = isv(p.w); wsg = iss(p.w)
        if wv:
            if c.cls == 'valu':
                if c.dpp and (wv & c.r): n = max(n, 2)
                if c.perm and (wv & c.r): n = max(n, 2)
                if c.rl and (wv & c.r): n = max(n, 1)
                if p.trans and (wv & c.r): n = max(n, 1)
                if p.dot and (wv & (c.r | c.w)): n = max(n, 3)
            if c.cls == 'mfma' and (wv & c.r): n = max(n, 3 if p.dot else 2)
            if p.dot and c.cls in ('vmem', 'ds') and (wv & c.r): n = max(n, 3)
            if p.trans and c.cls in ('vmem', 'ds') and (wv & c.r): n = max(n, 1)
        if wsg:
            if c.cls == 'valu' and (wsg & c.r): n = max(n, 4 if (c.rl or c.op.startswith('v_writelane')) else 2)
            if c.cls == 'vmem' and (wsg & c.r): n = max(n, 5)
    elif p.cls == 'mfma':
        if c.cls == 'mfma':
            if p.w & c.mf_ab: n = max(n, MF_RAW)
            if p.w & c.mf_c:
                if not (p.w == c.mf_c and p.op == c.op): n = max(n, 7)
        elif c.cls in ('valu', 'vmem', 'ds'):
            if p.w & (c.r | c.w): n = max(n, MF_RAW)
            if c.cls == 'valu' and (p.mf_c & c.w): n = max(n, 3)
    elif p.cls == 'salu':
        if ('m0', 0) in p.w and c.lds: n = max(n, 1)
    elif p.cls == 'vmem':
        if p.wide and (p.sdata & c.w): n = max(n, 2)
    return n

WIN = 12
def required(hist, c):
    d = 0; req = 0
    for p in reversed(hist):
        if d >= WIN: break
        if p.ws:
            k = need(p, c) - d
            if k > req: req = k
            d += p.ws
    return req

class Asm:
    def __init__(self):
        self.L = []
    def __call__(self, s):
        for line in s.split('\n'):
            line = line.strip()
            if line: self.L.append(line)
    def label(self, n): self.L.append(n + ':')
    def finish(self):
        ins = [Ins(t) for t in self.L]
        out = []
        for c in ins:
            if c.ws:
                k = required(out[-40:], c)
                if k > 0: out.append(Ins(f's_nop {k-1}'))
            out.append(c)
            if c.op in ('s_branch', 's_endpgm', 's_setpc_b64'):
                out.append(Ins('; ---')); out[-1].ws = 100; out[-1].cls = 'none'
        changed = True
        while changed:
            changed = False
            pos = {c.label: i for i, c in enumerate(out) if c.label}
            for i, c in enumerate(out):
                if c.target:
                    hist = out[max(0, i - 40):i + 1]
                    j = pos[c.target]
                    extra = 0; h = list(hist); d = 0
                    while j < len(out) and d < WIN:
                        x = out[j]
                        if x.ws:
                            extra = max(extra, required(h, x)); h.append(x); d += x.ws
                            if x.op in ('s_branch', 's_endpgm', 's_setpc_b64'): break
                        j += 1
                    if extra > 0:
                        out.insert(i, Ins(f's_nop {extra-1}')); changed = True; break
        return '\n'.join(('' if (c.label or c.cls == 'none') else '  ') + c.text for c in out) + '\n'
```

```python
import sys, struct, json
from asmlib import Asm
NAME = "interleave_layers__mha_block_cached__glu_gated_reglu__decode"

QOFF = 0x0; YOFF = 0x10000; ZOFF = 0x50000; POFF = 0x90000; DOFF = 0x400000
PB = 13824; PIB = 16 * PB
OOB = 0x40000000
RS = 2048
CS = 0.09016844005556021
def f2u(x): return struct.unpack('<I', struct.pack('<f', x))[0]

K_SRD = 's[8:11]'; V_SRD = 's[12:15]'; WS = 's[16:19]'; W1 = 's[20:23]'; W2 = 's[24:27]'; W3 = 's[28:31]'
DBG = 's[84:85]'
NCHAIN = 48
FULL = 'row_mask:0xf bank_mask:0xf'

def vr(b, n=1): return f'v{b}' if n == 1 else f'v[{b}:{b+n-1}]'
def ar(b, n=1): return f'a{b}' if n == 1 else f'a[{b}:{b+n-1}]'
def rr(b, n=1): return vr(b, n) if b < 256 else ar(b - 256, n)

class Gen:
    def __init__(self, diag=False, PF=65, depth=8, poll='block', thr=1, wpf=True):
        self.a = Asm(); self.diag = diag; self.PF = PF; self.depth = depth; self.poll = poll; self.thr = thr; self.wpf = wpf
        self.uid = 0
    def lab(self, p='L'):
        self.uid += 1; return f'{p}_{self.uid}'

    def bits(self, dst, lane, tmp, mp):
        a = self.a; first = True
        for lb, n, ab in mp:
            if first:
                a(f'v_bfe_u32 {dst}, {lane}, {lb}, {n}')
                if ab: a(f'v_lshlrev_b32 {dst}, {ab}, {dst}')
                first = False
            else:
                a(f'v_bfe_u32 {tmp}, {lane}, {lb}, {n}')
                a(f'v_lshl_add_u32 {dst}, {tmp}, {ab}, {dst}')
    def srd(self, base, lo, size):
        a = self.a
        a(f's_mov_b64 s[{base}:{base+1}], s[{lo}:{lo+1}]')
        a(f's_mov_b32 s{base+2}, 0x{size:x}'); a(f's_mov_b32 s{base+3}, 0x20000')
    def timeout(self):
        self.a('s_sub_u32 s52, s52, 1'); self.a('s_cbranch_scc1 L_bail')
    def wait_counter(self, va=20, vd=21, pre=False):
        a = self.a; l = self.lab('L_cnt'); d = self.lab('L_cntd'); c = self.lab('L_cntc')
        if pre: a(f's_branch {c}')
        else: a(f'v_mov_b32 v{va}, 0')
        a.label(l)
        self.timeout()
        a(f'global_load_dword v{vd}, v{va}, {DBG} sc1'); a('s_waitcnt vmcnt(0)')
        a.label(c)
        a(f'v_cmp_gt_u32 vcc, {NCHAIN}, v{vd}'); a(f's_cbranch_vccnz {l}')
    def stamp(self, idx, sidx=None, t0=20):
        if not self.diag: return
        a = self.a
        a('s_waitcnt lgkmcnt(0)'); a('s_memrealtime s[62:63]'); a('s_waitcnt lgkmcnt(0)')
        a(f'v_mov_b32 v{t0}, s62')
        if sidx: a(f's_lshl_b32 s60, {sidx}, 2'); a('s_add_u32 s60, s60, s61')
        else: a('s_mov_b32 s60, s61')
        a(f'v_mov_b32 v{t0+1}, 0')
        a('s_mov_b64 exec, 1')
        a(f'buffer_store_dword v{t0}, v{t0+1}, {WS}, s60 offen offset:{idx*4}')
        a('s_mov_b64 exec, -1')
    def maxtree(self, regs, t):
        a = self.a; regs = list(regs)
        a(f'v_max3_u32 v{t}, v{regs[0]}, v{regs[1]}, v{regs[2 if len(regs) > 2 else 1]}')
        regs = regs[3:]
        while regs:
            x = regs[:2]; regs = regs[2:]
            a(f'v_max3_u32 v{t}, v{t}, v{x[0]}, v{x[-1]}')
        a(f'v_cmp_eq_u32 vcc, -1, v{t}')

    def build(self):
        a = self.a
        a('s_cmp_ge_u32 s2, 256'); a('s_cbranch_scc1 L_end')
        a('s_load_dwordx16 s[64:79], s[0:1], 0')
        a('s_load_dwordx8 s[80:87], s[0:1], 64')
        a('v_lshrrev_b32 v1, 6, v0'); a('v_and_b32 v0, 63, v0')
        a('v_readfirstlane_b32 s3, v1')
        a('s_mov_b32 s52, 400000')
        if self.diag:
            a('s_lshl_b32 s61, s2, 2'); a('s_add_u32 s61, s61, s3'); a('s_lshl_b32 s61, s61, 8'); a(f's_add_u32 s61, s61, 0x{DOFF:x}')
        a('s_cmp_ge_u32 s2, 48'); a('s_cbranch_scc1 L_stream')
        self.chain_common()
        self.roleW(); self.roleO(); self.roleQ(); self.roleF()
        a.label('L_stream')
        self.stream()
        a.label('L_bail')
        a('s_mov_b64 exec, 1')
        a('v_mov_b32 v0, 64'); a('v_mov_b32 v1, 1')
        a(f'global_atomic_add v0, v1, {DBG} sc1')
        a('v_mov_b32 v0, 68'); a('v_mov_b32 v1, s2')
        a(f'global_store_dword v0, v1, {DBG} sc1')
        a.label('L_end')
        body = a.finish()
        hdr = open('cdna_kernels/' + NAME + '.s.ref').read().split('\n')
        top = [l for l in hdr if l.startswith(';') and '@launch' not in l]
        s = '\n'.join(top) + '\n; @launch grid=(256,1,1) block=(256,1,1) lds=163840\n'
        s += f'.amdgcn_target "amdgcn-amd-amdhsa--gfx950"\n.text\n.globl {NAME}_kernel\n.p2align 8\n.type {NAME}_kernel,@function\n{NAME}_kernel:\n'
        s += body
        s += f'''s_endpgm
.section .rodata,"a"
.p2align 6
.amdhsa_kernel {NAME}_kernel
  .amdhsa_next_free_vgpr 512
  .amdhsa_next_free_sgpr 102
  .amdhsa_accum_offset 256
  .amdhsa_group_segment_fixed_size 0
  .amdhsa_kernarg_size 96
  .amdhsa_user_sgpr_count 2
  .amdhsa_user_sgpr_kernarg_segment_ptr 1
  .amdhsa_system_sgpr_workgroup_id_x 1
.end_amdhsa_kernel
'''
        return s

    CA = [0, 4096]; Q1L = 8192; MA = [10240, 10272]; CO = [10304, 10308]; TB = 10496; WLDS = 37 * 1024
    vK, vV, vDs, vL16, vQo, vIQ, vIP = 1, 2, 3, 4, 5, 6, 7
    vM = 8; vT = 12; vBias = 15; vMC = 16; vL = 17; vQ = 24; vAcc = 32; vH = 48
    def kreg(self, s, u):
        return 64 + 96 * s + 16 * u if u < 6 else 256 + 128 * s + 16 * (u - 6)
    def vreg0(self, s, P, t):
        return 256 + 128 * s + 64 + 8 * (4 * P + t)
    def tile(self, n):
        if n < 40:
            u, t = n // 4, n % 4
            return 0, u // 2, t * 128 + (u & 1) * 512
        m = n - 40; g = m // 8; k = m % 8
        if g < 4: P, t = k // 4, k % 4
        else: t, P = k // 2, k % 2
        return 1, g, t * 128 + P * 1024
    def ldsslot(self, s, n):
        if n <= 72: return (n - 56) + 17 * s
        return 34 + (n - 73)
    def load(self, s, n, wait=True, skip=False):
        a = self.a
        kv, g, imm = self.tile(n)
        if n == 0 and not self.prologue:
            for j in range(5): a(f's_add_u32 s{40+j}, s{40+j}, 0x2000000')
        l = None
        if skip:
            l = self.lab('L_sk'); a('s_cmp_eq_u32 s49, 4'); a(f's_cbranch_scc1 {l}')
        va = f'v{self.vV if kv else self.vK}'; srd = V_SRD if kv else K_SRD
        dst = None
        if n < 40: dst = self.kreg(s, n // 4) + 4 * (n % 4)
        elif n < 56:
            m = n - 40; dst = self.vreg0(s, (m % 8) // 4, m % 4) + 4 * (m // 8)
        elif n >= 76: dst = self.vH + 4 * (n - 76)
        if dst is None:
            a(f's_add_u32 m0, s45, {self.ldsslot(s, n) * 1024 - imm}')
        if wait and len(self.vmq) >= self.depth:
            a(f's_waitcnt vmcnt({self.depth - 1})'); self.vmq = self.vmq[-(self.depth - 1):]
        if dst is None:
            a(f'buffer_load_dwordx4 {va}, {srd}, s{40+g} offen offset:{imm} nt lds')
        else:
            a(f'buffer_load_dwordx4 {rr(dst, 4)}, {va}, {srd}, s{40+g} offen offset:{imm} nt')
        self.vmq.append((s, n))
        if l: a.label(l)
    def need_vm(self, tag):
        if tag in self.vmq:
            k = len(self.vmq) - 1 - self.vmq.index(tag)
            self.a(f's_waitcnt vmcnt({k})'); self.vmq = self.vmq[len(self.vmq) - k:] if k else []
    def ds(self, text, tag=None):
        self.a(text); self.lq.append(tag)
    def need_lds(self, tag):
        if tag in self.lq:
            i = len(self.lq) - 1 - self.lq[::-1].index(tag)
            k = len(self.lq) - 1 - i
            k = min(k, 15)
            self.a(f's_waitcnt lgkmcnt({k})'); self.lq = self.lq[len(self.lq) - k:] if k else []
    def qload(self):
        a = self.a
        a(f'buffer_load_dwordx4 {vr(self.vQ, 4)}, v{self.vQo}, {WS}, s46 offen sc1')
        a(f'buffer_load_dwordx4 {vr(self.vQ + 4, 4)}, v{self.vQo}, {WS}, s46 offen offset:256 sc1')
    def zero_acc(self):
        return [f'v_mov_b64 {vr(self.vAcc + 2 * i, 2)}, 0' for i in range(8)]

    def stream(self):
        a = self.a
        self.vmq = []; self.lq = []; self.prologue = True
        a('s_sub_u32 s2, s2, 48'); a('s_and_b32 s36, s2, 15'); a('s_lshr_b32 s37, s2, 4')
        a('s_lshl_b32 s38, s37, 2'); a('s_add_u32 s38, s38, s3'); a('s_lshl_b32 s38, s38, 13')
        a('s_lshl_b32 s40, s36, 21'); a('s_add_u32 s40, s40, s38')
        self.bits(f'v{self.vK}', 'v0', 'v18', [(0, 1, 4), (4, 2, 5), (2, 1, 10), (1, 1, 11), (3, 1, 12)])
        if self.wpf:
            a('s_lshl_b32 s39, s37, 2'); a('s_add_u32 s39, s39, s3')
            self.bits('v20', 'v0', 'v18', [(0, 5, 4), (5, 1, 13)])
            a('s_lshl_b32 s41, s36, 9'); a('s_lshl_b32 s42, s39, 14'); a('s_add_u32 s41, s41, s42')
            a('v_lshlrev_b32 v21, 4, v0')
            a('s_waitcnt lgkmcnt(0)')
            self.srd(20, 70, 448 * 8192)
            def pf(va, srd, so):
                if len(self.vmq) >= self.depth:
                    a(f's_waitcnt vmcnt({self.depth - 1})'); self.vmq = self.vmq[-(self.depth - 1):]
                a(f'buffer_load_dwordx4 v[160:163], {va}, {srd}, {so} offen'); self.vmq.append('pf')
            for i in range(5):
                pf('v20', W1, 's41')
                if i < 4: a(f's_add_u32 s41, s41, {104 * 8192}')
            self.srd(24, 72, 4096 * 896)
            a('s_mul_i32 s41, s36, 229376'); a('s_lshl_b32 s42, s39, 10'); a('s_add_u32 s41, s41, s42')
            for i in range(5):
                if i == 4: a('s_cmp_lt_u32 s39, 16'); a(f's_cselect_b32 s41, s41, 0x{OOB:x}')
                pf('v21', W2, 's41')
                if i < 4: a(f's_add_u32 s41, s41, {52 * 1024}')
            self.srd(28, 76, 448 * 3584); self.srd(88, 78, 448 * 3584); self.srd(92, 80, 1792 * 896)
            a('v_lshrrev_b32 v18, 4, v0'); a('v_mul_u32_u24 v18, 3584, v18'); a('v_and_b32 v19, 15, v0'); a('v_lshl_add_u32 v22, v19, 4, v18')
            a('s_mul_i32 s41, s39, 14336'); a('s_lshl_b32 s43, s36, 8'); a('s_add_u32 s41, s41, s43')
            a('s_cmp_lt_u32 s36, 14'); a(f's_cselect_b32 s41, s41, 0x{OOB:x}')
            for i in range(3):
                pf('v22', W3, 's41'); pf('v22', 's[88:91]', 's41')
                if i < 2: a(f's_add_u32 s41, s41, {52 * 14336}')
            a('s_mul_i32 s41, s36, 114688'); a('s_add_u32 s41, s41, s42')
            for i in range(3):
                if i == 2: a('s_cmp_lt_u32 s39, 8'); a(f's_cselect_b32 s41, s41, 0x{OOB:x}')
                pf('v21', 's[92:95]', 's41')
                if i < 2: a(f's_add_u32 s41, s41, {52 * 1024}')
        a('s_waitcnt lgkmcnt(0)')
        self.srd(8, 66, 0x8000000)
        N0 = 8
        for n in range(N0): self.load(0, n)
        self.prologue = False
        for j in range(1, 5): a(f's_add_u32 s{40+j}, s40, {j * 52 * 8192}')
        a('s_cmp_eq_u32 s37, 12'); a(f's_cselect_b32 s38, 0x{OOB:x}, 0'); a(f's_cselect_b32 s50, 0xff800000, 0')
        a('s_add_u32 s44, s44, s38')
        self.srd(12, 68, 0x8000000); self.srd(16, 86, 0x20000000)
        self.stamp(0)
        self.bits(f'v{self.vV}', 'v0', 'v18', [(0, 3, 4), (5, 1, 9), (4, 1, 11), (3, 1, 12)])
        a(f's_mul_i32 s45, s3, {self.WLDS}'); a(f's_add_u32 s45, s45, {self.TB}')
        a(f'v_lshlrev_b32 v{self.vL16}, 4, v0'); a(f'v_add_u32 v{self.vDs}, s45, v{self.vL16}')
        self.bits(f'v{self.vQo}', 'v0', 'v18', [(0, 2, 4), (4, 2, 6)])
        a('v_and_b32 v18, 2, v0'); a('v_cmp_eq_u32 vcc, 2, v18')
        a(f'v_mov_b32 v{self.vIQ}, 0x44444444'); a('v_mov_b32 v18, 0xeeeeeeee'); a(f'v_cndmask_b32 v{self.vIQ}, v{self.vIQ}, v18, vcc')
        a('v_and_b32 v18, 3, v0'); a('s_mov_b32 s38, 0x55555555'); a(f'v_mul_lo_u32 v{self.vIP}, v18, s38')
        a('v_and_b32 v18, 4, v0'); a('v_cmp_eq_u32 vcc, 4, v18')
        a('v_mov_b32 v18, 0xffff'); a('v_mov_b32 v19, 0xffff0000')
        M = self.vM
        a(f'v_cndmask_b32 v{M}, v18, 0, vcc'); a(f'v_cndmask_b32 v{M+1}, 0, v18, vcc')
        a(f'v_cndmask_b32 v{M+2}, v19, 0, vcc'); a(f'v_cndmask_b32 v{M+3}, 0, v19, vcc')
        a('v_cmp_gt_u32 vcc, 32, v0'); a('v_mov_b32 v18, s50'); a('v_mov_b32 v19, 0xff800000')
        a(f'v_cndmask_b32 v{self.vBias}, v19, v18, vcc'); a(f'v_mov_b32 v{self.vT+2}, 0')
        a('s_lshl_b32 s46, s3, 4'); a('s_add_u32 s46, s46, s36'); a('s_lshl_b32 s46, s46, 9')
        a(f's_mul_i32 s47, s36, {PB}'); a('s_lshl_b32 s38, s37, 10'); a('s_add_u32 s47, s47, s38'); a(f's_add_u32 s47, s47, 0x{POFF:x}')
        a('s_mul_i32 s38, s37, 1016'); a('s_sub_u32 s48, 13312, s38')
        a('s_mov_b32 s49, 0'); a(f's_mov_b32 s51, 0x{f2u(CS):x}')
        a(f's_mov_b32 s53, {self.Q1L}'); a('s_lshl_b32 s54, s3, 10'); a('s_lshl_b32 s55, s3, 3')
        a('s_lshl_b32 s56, s36, 9'); a(f's_add_u32 s56, s56, 0x{QOFF + 3 * 8192:x}')
        a('v_mov_b32 v18, 0'); a('v_mov_b32 v19, 0')
        a(f'ds_write_b64 v18, v[18:19] offset:{self.CO[0]}')
        entry_vmq = list(self.vmq)
        for s in range(2):
            a.label(f'L_A{s}')
            assert [(x[0] ^ s, x[1]) for x in self.vmq] == entry_vmq, (self.vmq, entry_vmq)
            self.lq = []
            for n in range(N0, 73):
                self.load(s, n)
                if s == 0 and n == self.PF - 8:
                    a('v_mov_b32 v22, 0'); a(f'global_load_dword v23, v22, {DBG} sc1'); self.vmq.append('cnt')
                if n == self.PF:
                    if s == 0:
                        self.stamp(22, 's49')
                        self.need_vm('cnt'); self.wait_counter(22, 23, pre=True)
                    self.qload(); self.vmq += ['q0', 'q1']
            self.need_vm('q1')
            self.stamp(1, 's49')
            a.label(f'L_X{s}')
            self.maxtree(range(self.vQ, self.vQ + 8), 18)
            a(f's_cbranch_vccz L_Xok{s}')
            a.label(f'L_Xpoll{s}')
            self.timeout()
            self.qload(); a('s_waitcnt vmcnt(0)')
            a(f's_branch L_X{s}')
            a.label(f'L_Xok{s}')
            self.stamp(6, 's49')
            if s == 0:
                a('s_cmp_eq_u32 s49, 0'); a('s_cbranch_scc1 L_first')
            save = list(self.vmq)
            self.ppass(1, s)
            self.stamp(11, 's49')
            if s == 0:
                a('s_cmp_eq_u32 s49, 4'); a('s_cbranch_scc1 L_end')
                after = list(self.vmq)
            a.label(f'L_P1{s}')
            self.ppass(0, s)
            self.stamp(16, 's49')
            for z in self.zero_acc(): a(z)
            a('s_add_u32 s49, s49, 1'); a(f's_add_u32 s47, s47, {PIB}'); a('s_add_u32 s53, s53, 512')
            a('s_add_u32 s56, s56, 8192'); a('s_mov_b32 s46, s56')
            if s == 0: first_save, first_after = save, after
        a('s_cmp_eq_u32 s49, 4'); a('s_cbranch_scc1 L_Xpoll0')
        a('s_branch L_A0')
        a.label('L_first')
        self.vmq = first_save
        a('s_lshl_b32 s38, s3, 9'); a(f'v_add_u32 v18, s38, v{self.vQo}')
        a(f'ds_write_b128 v18, {vr(self.vQ, 4)} offset:{self.Q1L}')
        a(f'ds_write_b128 v18, {vr(self.vQ + 4, 4)} offset:{self.Q1L + 256}')
        for n in range(73, 77): self.load(0, n)
        assert self.vmq == first_after, (self.vmq, first_after)
        a('s_waitcnt lgkmcnt(0)'); a('s_barrier')
        a('s_branch L_P10')

    def ppass(self, p2, s):
        a = self.a
        ds_ = (1 - s) if p2 else s
        fs = 1 - s
        cu0 = 0 if p2 else 2
        T = self.vT; Q = self.vQ; AC = self.vAcc; M = self.vM
        skip = (p2 and s == 0)
        def cdst(pi): return self.kreg(fs, cu0 + pi // 2) + 8 * (pi % 2)
        def copy(n):
            if n >= 72: pi, half = (n - 72) // 2, (n - 72) % 2
            else: pi, half = 2 + (n - 56) % 8, (n - 56) // 8
            if not p2: self.need_vm((s, n))
            self.ds(f'ds_read_b128 {rr(cdst(pi) + 4 * half, 4)}, v{self.vDs} offset:{self.ldsslot(ds_, n) * 1024}', ('c', n))
        def bop(U, P, t):
            if U == 0: return self.vreg0(ds_, P, t), []
            if U == 1: return cdst(2 + 4 * P + t), [('c', 56 + 4 * P + t), ('c', 64 + 4 * P + t)]
            if t < 2: return cdst(t), [('c', 72 + 2 * t), ('c', 73 + 2 * t)]
            return self.vH + 8 * (t - 2), []
        if not p2:
            a(f'v_add_u32 v18, s53, v{self.vQo}')
            self.ds(f'ds_read_b128 {vr(Q, 4)}, v18', 'q'); self.ds(f'ds_read_b128 {vr(Q + 4, 4)}, v18 offset:256', 'q')
            for z in self.zero_acc(): a(z)
            self.load(s, 77)
            self.need_lds('q')
        def post_a(u):
            ac = AC + 4 * (u % 4); t = 18 + 2 * (u % 2)
            a(f'v_add_f32 v{t+1}, v{ac+1}, v{ac+3}'); a(f'v_add_f32 v{t}, v{ac}, v{ac+2}')
        def post_b(u):
            t = 18 + 2 * (u % 2)
            a(f'v_add_f32_dpp v{T + u // 4}, v{t+1}, v{t} quad_perm:[1,1,3,3] row_mask:0x{1 << (u % 4):x} bank_mask:0xf')
        if p2: cplan = {0: [72, 73, 74, 75], 1: [56, 64, 57, 65], 2: [58, 66, 59, 67], 3: [60, 68], 4: [61, 69], 5: [62, 70], 6: [63, 71]}
        else: cplan = {0: [56, 57], 1: [58, 59], 2: [60, 61], 3: [62, 63], 4: [64, 65], 5: [66, 67], 6: [68, 69]}
        for u in range(10):
            ac = AC + 4 * (u % 4); k = self.kreg(ds_, u)
            a(f'v_smfmac_f32_16x16x64_bf16 {vr(ac, 4)}, {vr(Q, 4)}, {rr(k, 8)}, v{self.vIQ}')
            if u >= 3: post_a(u - 3)
            a(f'v_smfmac_f32_16x16x64_bf16 {vr(ac, 4)}, {vr(Q + 4, 4)}, {rr(k + 8, 8)}, v{self.vIQ}')
            if u >= 3: post_b(u - 3)
            for n in cplan.get(u, []): copy(n)
            if p2 and u == 4: self.need_lds(('c', 75)); self.load(s, 73, skip=skip)
            if p2 and u == 9: self.load(s, 74, skip=skip)
            if not p2 and u == 5: self.load(s, 78)
            if not p2 and u == 9: self.load(s, 79); copy(70); copy(71)
        zf = [f'v_mov_b32 v{AC + r}, 0' for r in list(range(8, 16)) + list(range(8))]
        def Z(n=2):
            for _ in range(n):
                if zf: a(zf.pop(0))
        post_a(7); Z(1); post_b(7); Z(3); post_a(8); Z(1); post_b(8); Z(2); post_a(9); Z(1); post_b(9)
        m = self.vMC; t = 18
        a(f'v_sub_f32 v{T+2}, v{T+2}, v{T+1}'); a(f'v_sub_f32 v{T+1}, v{T+1}, v{T}')
        a(f'v_add_f32 v{T+2}, v{self.vBias}, v{T+2}')
        a(f'v_max3_f32 v{m}, v{T}, v{T+1}, v{T+2}'); Z()
        a(f'v_max_f32_dpp v{m}, v{m}, v{m} quad_perm:[2,3,0,1] {FULL}'); Z()
        a(f'v_max_f32_dpp v{m}, v{m}, v{m} row_ror:4 {FULL}'); Z()
        a(f'v_max_f32_dpp v{t}, v{m}, v{m} row_ror:8 {FULL}')
        a(f'v_max_f32_dpp v{m}, v{m}, v{m} row_ror:8 {FULL}'); Z()
        a(f'v_permlane16_swap_b32 v{m}, v{t}'); a(f'v_max_f32 v{t+1}, v{m}, v{t}'); a(f'v_max_f32 v{m}, v{m}, v{t}'); Z(8)
        a(f'v_permlane32_swap_b32 v{m}, v{t+1}'); a(f'v_max_f32 v{m}, v{m}, v{t+1}')
        a(f'v_mul_f32 v{m}, s51, v{m}')
        order = [0, 2, 1] if p2 else [0, 1, 2]
        for k in order: a(f'v_fma_f32 v{T+k}, v{T+k}, s51, -v{m}')
        for k in order: a(f'v_exp_f32 v{T+k}, v{T+k}')
        L = self.vL
        def pack(k):
            o = [f'v_mov_b32_dpp v18, v{T+k} quad_perm:[0,0,0,0] {FULL}',
                 f'v_mov_b32_dpp v19, v{T+k} quad_perm:[2,2,2,2] {FULL}',
                 f'v_cvt_pk_bf16_f32 v{20+k}, v18, v19']
            if k == 2: o += [f'v_mov_b32_dpp v0, v22 row_shl:4 {FULL}', 'v_permlane32_swap_b32 v22, v0']
            return o
        def aprep(k, P, A):
            pp = 20 + k
            if P == 0:
                return [f'v_and_b32 v{A}, v{pp}, v{M}', f'v_and_b32 v{A+2}, v{pp}, v{M+2}',
                        f'v_and_b32_dpp v{A+1}, v{pp}, v{M+1} row_shr:4 {FULL} bound_ctrl:0',
                        f'v_and_b32_dpp v{A+3}, v{pp}, v{M+3} row_shr:4 {FULL} bound_ctrl:0']
            return [f'v_and_b32 v{A+1}, v{pp}, v{M+1}', f'v_and_b32 v{A+3}, v{pp}, v{M+3}',
                    f'v_and_b32_dpp v{A}, v{pp}, v{M} row_shl:4 {FULL} bound_ctrl:0',
                    f'v_and_b32_dpp v{A+2}, v{pp}, v{M+2} row_shl:4 {FULL} bound_ctrl:0']
        if p2: sets = [(0, 0), (2, 0), (0, 1), (1, 0), (1, 1)]
        else: sets = [(0, 0), (0, 1), (1, 0), (1, 1), (2, 0)]
        lred = [f'v_add_f32 v{L}, v{T}, v{T+1}',
                f'v_add_f32 v{L}, v{T+2}, v{L}',
                f'v_add_f32_dpp v{L}, v{L}, v{L} quad_perm:[2,3,0,1] {FULL}',
                f'v_add_f32_dpp v{L}, v{L}, v{L} row_ror:4 {FULL}',
                f'v_add_f32_dpp v{L}, v{L}, v{L} row_ror:8 {FULL}',
                f'v_mov_b32 v23, v{L}', f'v_permlane16_swap_b32 v{L}, v23', f'v_add_f32 v{L}, v{L}, v23',
                f'v_mov_b32 v23, v{L}', f'v_permlane32_swap_b32 v{L}, v23', f'v_add_f32 v{L}, v{L}, v23']
        def prep(i):
            k, P = sets[i]
            return (pack(k) if P == 0 else []) + aprep(k, P, Q + 4 * (i % 2))
        for x in prep(0): a(x)
        CA = self.CA[p2]; MA = self.MA[p2]; CO = self.CO[p2]
        def merge(t0):
            o = []
            for r in range(4): o.append(f'v_permlane32_swap_b32 v{AC + 4*t0 + r}, v{AC + 4*t0 + 4 + r}')
            for r in range(4):
                if t0 == 0: o.append(f'v_add_f32_dpp v{AC + r}, v{AC + 4 + r}, v{AC + r} row_ror:8 row_mask:0xf bank_mask:0x3')
                else: o.append(f'v_add_f32_dpp v{AC + r}, v{AC + 8 + r}, v{AC + 12 + r} row_ror:8 row_mask:0xf bank_mask:0xc')
            return o
        for i, (k, P) in enumerate(sets):
            fill = prep(i + 1) if i + 1 < len(sets) else []
            last = (i == len(sets) - 1)
            if last:
                fill = lred + [f'v_add_u32 v18, s54, v{self.vL16}', 'v_mov_b32 v19, s55', 'v_mov_b32 v20, 1', 'v_mov_b32 v21, 0', 'v_mov_b32 v22, s48']
                lred = []
            for t in range(4):
                b, tags = bop(k, P, t)
                if not p2 and k == 2:
                    if t == 0:
                        self.load(1 - s, 1); copy(72); copy(73)
                        for x in fill: a(x)
                        fill = []
                        self.load(1 - s, 2); self.load(1 - s, 3); copy(74); copy(75)
                    if t == 2:
                        self.load(1 - s, 4)
                        for x in merge(0): a(x)
                        self.load(1 - s, 5); self.need_vm((s, 77))
                    if t == 3:
                        self.load(1 - s, 6); self.need_vm((s, 79))
                for tg in tags: self.need_lds(tg)
                a(f'v_smfmac_f32_16x16x64_bf16 {vr(AC + 4 * t, 4)}, {vr(Q + 4 * (i % 2), 4)}, {rr(b, 8)}, v{self.vIP}')
                n = (len(fill) + (3 - t)) // (4 - t)
                got = fill[:n]; fill = fill[n:]
                if len(got) < 2 and lred: got.append(lred.pop(0))
                for x in got: a(x)
            if p2 and i == 0: self.load(s, 75, skip=skip)
            if p2 and i == 2: self.load(s, 76, skip=skip)
            if not p2 and i == 1: self.load(1 - s, 0)
        if not p2: self.load(1 - s, 7, wait=False)
        else:
            for x in merge(0): a(x)
        for x in merge(2): a(x)
        Zr = self.kreg(fs, 2)
        a(f'ds_write_b128 v18, {vr(AC, 4)} offset:{CA}')
        a('s_mov_b64 exec, 1')
        a(f'ds_write_b64 v19, {vr(self.vMC, 2)} offset:{MA}')
        a(f'ds_add_rtn_u32 v20, v21, v20 offset:{CO}')
        a('s_mov_b64 exec, -1')
        a(f'ds_read_b128 {vr(Q, 4)}, v21 offset:{MA}'); a(f'ds_read_b128 {vr(Q + 4, 4)}, v21 offset:{MA + 16}')
        for w in range(4): a(f'ds_read_b128 {vr(Zr + 4 * w, 4)}, v{self.vL16} offset:{CA + 1024 * w}')
        if p2: a(f's_add_u32 s38, s47, {3 * PIB}')
        else: a('s_mov_b32 s38, s47')
        a('s_waitcnt lgkmcnt(6)')
        a('v_readfirstlane_b32 s39, v20'); a('s_and_b32 s39, s39, 3'); a('s_cmp_eq_u32 s39, 3')
        l = self.lab('L_nl'); a(f's_cbranch_scc0 {l}')
        a('s_waitcnt lgkmcnt(4)')
        a(f'v_max3_f32 v{m}, v{Q}, v{Q+2}, v{Q+4}'); a(f'v_max_f32 v{m}, v{m}, v{Q+6}')
        for w in range(4): a(f'v_sub_f32 v{Q+2*w}, v{Q+2*w}, v{m}')
        for w in range(4): a(f'v_exp_f32 v{Q+2*w}, v{Q+2*w}')
        a(f'v_mul_f32 v{L}, v{Q}, v{Q+1}')
        for w in range(1, 4): a(f'v_fmac_f32 v{L}, v{Q+2*w}, v{Q+2*w+1}')
        a(f'v_min_u32 v{m}, -2, v{m}'); a(f'v_min_u32 v{L}, -2, v{L}')
        a('s_mov_b64 exec, 1')
        a(f'buffer_store_dwordx2 {vr(m, 2)}, v22, {WS}, s38 offen sc1')
        a('s_mov_b64 exec, -1')
        a('s_waitcnt lgkmcnt(0)')
        for w in range(4):
            for hf in range(2):
                if w == 0: a(f'v_pk_mul_f32 {vr(AC + 2*hf, 2)}, {vr(Zr + 2*hf, 2)}, {vr(Q, 2)} op_sel_hi:[1,0]')
                else: a(f'v_pk_fma_f32 {vr(AC + 2*hf, 2)}, {vr(Zr + 4*w + 2*hf, 2)}, {vr(Q + 2*w, 2)}, {vr(AC + 2*hf, 2)} op_sel_hi:[1,0,1]')
        for r in range(4): a(f'v_min_u32 v{AC + r}, -2, v{AC + r}')
        a(f'buffer_store_dwordx4 {vr(AC, 4)}, v{self.vL16}, {WS}, s38 offen sc1')
        a.label(l)
        a('s_waitcnt lgkmcnt(0)'); self.lq = []

    RING0 = 8192
    def chain_common(self):
        a = self.a
        a('v_lshlrev_b32 v1, 4, v0')
        for r in range(8, 12): a(f'v_mov_b32 v{r}, -1')
        a('s_lshl_b32 s38, s2, 2'); a('s_add_u32 s38, s38, s3'); a('s_mul_i32 s38, s38, 12288')
        a('s_waitcnt lgkmcnt(0)')
        self.srd(16, 86, 0x20000000)
        for i in range(12):
            if i and i % 4 == 0: a('s_add_u32 s38, s38, 4096')
            a(f'buffer_store_dwordx4 v[8:11], v1, {WS}, s38 offen offset:{(i % 4) * 1024} sc1')
        self.stamp(0)
        self.bits('v2', 'v0', 'v6', [(0, 1, 4), (4, 2, 5)])
        a('v_and_b32 v6, 1, v0'); a('v_cmp_eq_u32 vcc, 1, v6')
        a('v_mov_b32 v3, 0x44444444'); a('v_mov_b32 v6, 0xeeeeeeee'); a('v_cndmask_b32 v3, v3, v6, vcc')
        self.bits('v4', 'v0', 'v6', [(1, 1, 0), (3, 1, 2), (2, 1, 3)])
        a('v_and_b32 v5, 15, v0')
        a('s_lshl_b32 s98, s3, 15'); a(f's_add_u32 s98, s98, {self.RING0}')
        self.bits('v9', 'v0', 'v6', [(0, 5, 3), (5, 1, 10)]); a('v_add_u32 v9, s98, v9')
        a(f'v_mov_b32 v10, 0x{OOB:x}'); a('s_movk_i32 s99, 1024')
        a(f's_mov_b32 s57, 0x{OOB:x}'); a('s_mov_b32 s49, -1')
        a('s_cmp_lt_u32 s2, 16'); a('s_cbranch_scc1 L_roleO')
        a('s_cmp_lt_u32 s2, 32'); a('s_cbranch_scc1 L_roleQ')
        a('s_cmp_lt_u32 s2, 46'); a('s_cbranch_scc1 L_roleF')
    def announce(self):
        a = self.a
        self.stamp(20, None, 28)
        a('s_waitcnt vmcnt(0)'); a('s_barrier')
        l = self.lab('L_an')
        a('s_cmp_lg_u32 s3, 0'); a(f's_cbranch_scc1 {l}')
        a('s_mov_b64 exec, 1'); a('v_mov_b32 v6, 0'); a('v_mov_b32 v7, 1')
        a(f'global_atomic_add v6, v7, {DBG} sc1')
        a('s_mov_b64 exec, -1')
        a.label(l)
        self.stamp(21, None, 28)
        if self.diag: a('s_waitcnt vmcnt(0)')
    def dma_sub(self, name, srds, voff, tab, adv, pol):
        a = self.a
        a.label(name)
        for e in range(8):
            a(f'buffer_load_dwordx4 {voff}, {srds[e]}, s{tab + e} offen {pol} lds')
            if e < 7: a('s_add_u32 m0, m0, s99')
        a(f'v_add_u32 {voff}, 0x{adv:x}, {voff}')
        a('s_setpc_b64 s[96:97]')
    def pieces(self, plist, extra=1):
        a = self.a; n = len(plist)
        def issue(i):
            a(f's_add_u32 m0, s98, {(i % 4) * 8192}'); a(f's_call_b64 s[96:97], {plist[i][0]}')
        for i in range(min(4, n)): issue(i)
        for i in range(n):
            young = min(n, i + 4) - i - 1
            a(f's_waitcnt vmcnt({8 * young})')
            for d, imm in plist[i][1]:
                a(f'ds_read_b64_tr_b16 {rr(d, 2)}, v9 offset:{(i % 4) * 8192 + imm}')
            if i + 4 < n:
                a('s_waitcnt lgkmcnt(0)'); issue(i + 4)
        a('s_waitcnt lgkmcnt(0)')
    def table(self, tab, offs):
        for e, o in enumerate(offs): self.a(f's_mov_b32 s{tab + e}, 0x{o:x}')
    def typeB(self, voff, rowbase_s, tab):
        a = self.a
        a(f'v_add_u32 v6, {rowbase_s}, v4'); a('v_mul_u32_u24 v6, 896, v6')
        a('s_mul_i32 s38, s3, 224'); a(f'v_add3_u32 {voff}, v6, v2, s38')
        self.table(tab, [(16 * (e & 1) + 2 * ((e >> 1) & 1)) * 896 + 128 * (e >> 2) for e in range(8)])
    def typeB_reads(self, breg, ks, half):
        return [(breg(jj, ks) + 2 * (e1 + 2 * half), (2 * e1 + 4 * (jj >> 2)) * 1024 + (jj & 3) * 256) for jj in range(7) for e1 in range(2)]
    def rowout_offs(self, d0, d1):
        a = self.a
        a('s_lshl_b32 s38, s3, 9'); a(f'v_lshl_add_u32 {d0}, v0, 2, s38')
        a('v_cmp_gt_u32 vcc, 48, v0'); a(f'v_cndmask_b32 {d1}, v10, {d0}, vcc')
    def gather_offs(self):
        a = self.a
        a('v_and_b32 v6, 31, v0'); a('v_lshrrev_b32 v7, 5, v0'); a('s_lshl_b32 s38, s3, 9')
        a('v_lshl_add_u32 v13, v6, 4, s38'); a('v_lshl_add_u32 v14, v7, 3, v13'); a('v_lshl_add_u32 v13, v7, 11, v13')
        a('v_cmp_gt_u32 vcc, 28, v6')
        a('v_lshlrev_b32 v6, 3, v6'); a('v_lshl_add_u32 v6, v7, 2, v6')
        a('s_mul_i32 s38, s3, 224'); a('s_lshl_b32 s39, s3, 5'); a(f's_add_u32 s39, s39, {896 - 224}')
        a('v_add_u32 v15, s38, v6'); a('v_add_u32 v6, s39, v6')
        a('v_cndmask_b32 v13, v10, v13, vcc'); a('v_cndmask_b32 v14, v10, v14, vcc')
        a('v_cndmask_b32 v12, v10, v15, vcc'); a('v_cndmask_b32 v15, v6, v15, vcc')
    def resid_poll(self, soff):
        a = self.a; l = self.lab('L_rp')
        a.label(l)
        self.timeout()
        a(f'buffer_load_dwordx2 v[16:17], v14, {WS}, {soff} offen sc1'); a('s_waitcnt vmcnt(0)')
        a('v_max_u32 v6, v16, v17'); a('v_cmp_eq_u32 vcc, -1, v6'); a(f's_cbranch_vccnz {l}')
    def preset(self, G, n):
        if self.poll == 'block': return
        for i in range(0, n, 2): self.a(f'v_mov_b64 {vr(G + i, 2)}, -1')
    def nbpoll(self, loads):
        a = self.a; l = self.lab('L_nb')
        regs = [r + i for r, n, t in loads for i in range(n)]
        if self.poll == 'nb':
            a.label(l)
            self.timeout()
            for r, n, t in loads: a(t)
            a(f's_waitcnt vmcnt({len(loads) * self.thr})')
            self.maxtree(regs, 6)
            a(f's_cbranch_vccnz {l}')
        else:
            d = self.lab('L_nbd')
            a.label(l)
            for i, (r, n, t) in enumerate(loads):
                if n == 4: a(f'v_max3_u32 v{6 + i % 2}, v{r}, v{r+1}, v{r+2}'); a(f'v_max_u32 v{6 + i % 2}, v{6 + i % 2}, v{r+3}')
                else: a(f'v_max_u32 v{6 + i % 2}, v{r}, v{r+1}')
                a(f'v_cmp_eq_u32 s[{64 + 2*i}:{65 + 2*i}], -1, v{6 + i % 2}')
            a('s_or_b64 s[80:81], s[64:65], s[66:67]')
            for i in range(2, len(loads)): a(f's_or_b64 s[80:81], s[80:81], s[{64 + 2*i}:{65 + 2*i}]')
            a(f's_cbranch_scc0 {d}')
            self.timeout()
            for i, (r, n, t) in enumerate(loads):
                sk = self.lab('L_nbs')
                a(f's_mov_b64 exec, s[{64 + 2*i}:{65 + 2*i}]'); a(f's_cbranch_execz {sk}'); a(t); a.label(sk)
            a('s_mov_b64 exec, -1')
            a(f's_waitcnt vmcnt({len(loads) * self.thr})')
            a(f's_branch {l}')
            a.label(d)
    def gather_sum(self, nl, sb, G):
        a = self.a; l = self.lab('L_g'); d = self.lab('L_gd')
        blk = self.poll == 'block'
        loads = [(G + 4 * i, 4, f'buffer_load_dwordx4 {vr(G + 4 * i, 4)}, v13, {WS}, s{sb + i} offen sc1') for i in range(nl)]
        if blk:
            a.label(l)
            self.timeout()
            for x in loads: a(x[2])
        else: self.nbpoll(loads)
        for i in range(1, nl):
            if blk: a(f's_waitcnt vmcnt({nl - 1 - i})')
            src = vr(G, 2) if i == 1 else 'v[20:21]'; src2 = vr(G + 2, 2) if i == 1 else 'v[22:23]'
            a(f'v_pk_add_f32 v[20:21], {src}, {vr(G + 4 * i, 2)}'); a(f'v_pk_add_f32 v[22:23], {src2}, {vr(G + 4 * i + 2, 2)}')
        a('v_permlane32_swap_b32 v20, v22'); a('v_permlane32_swap_b32 v21, v23')
        a('v_pk_add_f32 v[20:21], v[20:21], v[16:17]')
        a('v_pk_add_f32 v[20:21], v[20:21], v[22:23]')
        if blk: a('v_cmp_u_f32 vcc, v20, v21')
        a('v_cvt_pk_bf16_f32 v18, v20, v21')
        if blk:
            a(f's_cbranch_vccz {d}')
            self.maxtree(range(G, G + 4 * nl), 6)
            a(f's_cbranch_vccnz {l}')
            a.label(d)
    def xrow_store(self, soff):
        a = self.a
        a('v_lshlrev_b32 v20, 16, v18'); a('v_and_b32 v21, 0xffff0000, v18')
        a(f'buffer_store_dwordx2 v[20:21], v14, {WS}, {soff} offen sc1')
    def stats_ops(self, X):
        o = []
        for i in range(4):
            o += [f'v_lshlrev_b32 v26, 16, v{X+i}', f'v_and_b32 v27, 0xffff0000, v{X+i}']
            if i == 0: o += ['v_add_f32 v28, v26, v27', 'v_mul_f32 v30, v26, v26', 'v_fmac_f32 v30, v27, v27']
            else: o += ['v_add_f32 v28, v28, v26', 'v_fmac_f32 v30, v26, v26', 'v_add_f32 v28, v28, v27', 'v_fmac_f32 v30, v27, v27']
        o += [f'v_mov_b32 v26, 0x{f2u(1/448):x}', f'v_mov_b32 v27, 0x{f2u(1e-5):x}', 'v_permlane16_swap_b32 v28, v30', 'v_add_f32 v28, v28, v30']
        for c in ('quad_perm:[1,0,3,2]', 'quad_perm:[2,3,0,1]', 'row_ror:4'):
            o += [None, f'v_add_f32_dpp v28, v28, v28 {c} {FULL}']
        o += [None, f'v_add_f32_dpp v29, v28, v28 row_ror:8 {FULL}', f'v_add_f32_dpp v28, v28, v28 row_ror:8 {FULL}', None,
              'v_permlane32_swap_b32 v28, v29', 'v_add_f32 v28, v28, v29', None,
              'v_readlane_b32 s58, v28, 0', 'v_readlane_b32 s59, v28, 16', None,
              'v_mul_f32 v24, s58, v26', 'v_fmac_f32 v27, s59, v26',
              'v_fma_f32 v27, -v24, v24, v27', 'v_rsq_f32 v25, v27']
        return o
    def gemv(self, ntile, nks, breg, acc, A, fill=(), nother=0):
        a = self.a; fill = list(fill)
        for ks in range(nks):
            a(f's_waitcnt lgkmcnt({min(15, nks - 1 - ks + nother)})')
            for jj in range(ntile):
                a(f'v_smfmac_f32_16x16x64_bf16 {vr(acc + 4 * jj, 4)}, {vr(A + 4 * ks, 4)}, {rr(breg(jj, ks), 8)}, v3')
                for _ in range(2):
                    if fill:
                        x = fill.pop(0)
                        if x: a(x)
        for x in fill:
            if x: a(x)
    def zero(self, base, n):
        for i in range(0, n, 2): self.a(f'v_mov_b64 {vr(base + i, 2)}, 0')
    def rowsel(self, dst, acc, tiles_masks):
        for jj, rm in tiles_masks:
            self.a(f'v_add_f32_dpp v{dst}, v{acc + 4*jj}, v{acc + 4*jj + 1} quad_perm:[0,1,2,3] row_mask:0x{rm:x} bank_mask:0xf')
    def rowout(self, acc, v0_, v1_, soff):
        a = self.a
        for jj in range(4):
            self.rowsel(20, acc, [(jj, 1 << jj)])
            if jj < 3: self.rowsel(21, acc, [(4 + jj, 1 << jj)])
        a('v_min_u32 v20, -2, v20'); a('v_min_u32 v21, -2, v21')
        a(f'buffer_store_dword v20, {v0_}, {WS}, {soff} offen sc1')
        a(f'buffer_store_dword v21, {v1_}, {WS}, {soff} offen offset:256 sc1')
    def next_it(self, top, n=8):
        a = self.a
        a('s_add_u32 s49, s49, 1'); a(f's_cmp_ge_u32 s49, {n}'); a('s_cbranch_scc1 L_end')
        a('s_cmp_lg_u32 s49, 0'); a(f's_cbranch_scc1 {top}')
        a('s_mov_b32 s57, 0')
        self.stamp(22, None, 28)
        self.wait_counter()
        self.stamp(1, None, 28)
        a(f's_branch {top}')
    def calc_ib(self):
        a = self.a
        a('s_bfe_u32 s50, s49, 0x20001'); a('s_and_b32 s38, s49, 1'); a('s_lshl_b32 s38, s38, 2'); a('s_add_u32 s50, s50, s38')
    def colsum(self, ntile, nks, breg, acc):
        a = self.a
        for r in range(4): a(f'v_mov_b32 v{20 + r}, 0x3f803f80')
        self.zero(acc, 4 * ntile)
        for ks in range(nks):
            for jj in range(ntile):
                a(f'v_smfmac_f32_16x16x64_bf16 {vr(acc + 4 * jj, 4)}, v[20:23], {rr(breg(jj, ks), 8)}, v3')

    def roleO(self):
        a = self.a
        self.dma_sub('L_dmaO', [W1] * 8, 'v19', 88, 32 * 896, 'nt')
        a.label('L_roleO')
        self.srd(20, 72, 4096 * 896)
        a('s_lshl_b32 s39, s2, 8')
        self.typeB('v19', 's39', 88)
        self.announce()
        breg = lambda jj, ks: 256 + (jj * 4 + ks) * 8
        pl = [('L_dmaO', self.typeB_reads(breg, i // 2, i % 2)) for i in range(8)]
        self.pieces(pl)
        self.rowout_offs('v12', 'v13')
        a('s_lshl_b32 s40, s2, 11'); a(f's_add_u32 s40, s40, 0x{YOFF:x}')
        a(f's_mul_i32 s41, s2, {PB}'); a(f's_add_u32 s41, s41, 0x{POFF:x}')
        self.bits('v14', 'v0', 'v6', [(0, 4, 4), (4, 2, 10)])
        a('s_lshl_b32 s38, s3, 8'); a('v_add_u32 v14, s38, v14')
        a('v_cmp_gt_u32 vcc, 16, v0'); a('v_lshrrev_b32 v6, 4, v0'); a('v_bfe_u32 v7, v0, 2, 2'); a('v_cndmask_b32 v15, v10, v14, vcc')
        a('v_add_u32 v6, v6, v7'); a('v_and_b32 v6, 3, v6')
        a('v_and_b32 v7, 3, v0'); a('v_lshl_add_u32 v6, v7, 2, v6')
        a('v_cmp_gt_u32 s[42:43], 13, v6'); a('v_min_u32 v6, 12, v6'); a('v_lshlrev_b32 v16, 3, v6'); a('v_add_u32 v16, 13312, v16')
        self.bits('v17', 'v0', 'v6', [(4, 2, 1), (0, 3, 4), (3, 1, 8)])
        a('s_lshr_b32 s38, s3, 1'); a('s_lshl_b32 s38, s38, 7'); a('s_and_b32 s39, s3, 1'); a('s_lshl_b32 s39, s39, 3'); a('s_add_u32 s38, s38, s39')
        a('v_add_u32 v17, s38, v17')
        P = 32; ML = 48; ACC = 64; A = 96
        a.label('L_Otop')
        self.calc_ib()
        a(f's_mul_i32 s44, s50, {PIB}'); a('s_add_u32 s44, s44, s41'); a('s_add_u32 s44, s44, s57')
        a('s_add_u32 s45, s44, 4096'); a('s_add_u32 s46, s44, 8192'); a('s_add_u32 s47, s44, 12288')
        a('s_lshl_b32 s48, s50, 15'); a('s_add_u32 s48, s48, s40'); a('s_add_u32 s48, s48, s57')
        self.zero(ACC, 28)
        blk = self.poll == 'block'
        loads = [(ML, 2, f'buffer_load_dwordx2 {vr(ML, 2)}, v16, {WS}, s44 offen sc1')]
        loads += [(P + 4*n, 4, f'buffer_load_dwordx4 {vr(P + 4*n, 4)}, {"v15" if n == 3 else "v14"}, {WS}, s{44+n} offen sc1') for n in range(4)]
        if blk:
            a.label('L_Oheavy')
            self.timeout()
            for x in loads: a(x[2])
            a('s_waitcnt vmcnt(4)')
        else:
            a('s_waitcnt vmcnt(0)'); self.preset(P, 18)
            self.nbpoll(loads)
        a(f'v_max_f32_dpp v20, v{ML}, v{ML} quad_perm:[1,0,3,2] {FULL}')
        for c in ('quad_perm:[2,3,0,1]', 'row_ror:4', 'row_ror:8'): a(f'v_max_f32_dpp v20, v20, v20 {c} {FULL}')
        a(f'v_sub_f32 v20, v{ML}, v20'); a('v_exp_f32 v20, v20'); a('v_cndmask_b32 v20, 0, v20, s[42:43]')
        a(f'v_mul_f32 v21, v20, v{ML+1}')
        lred = [f'v_add_f32_dpp v21, v21, v21 {c} {FULL}' for c in ('quad_perm:[1,0,3,2]', 'quad_perm:[2,3,0,1]', 'row_ror:4', 'row_ror:8')]
        for n in range(4):
            if blk: a(f's_waitcnt vmcnt({3 - n})')
            for r in range(4):
                a(f'v_{"mul" if n == 0 else "fmac"}_f32_dpp v{24 + r}, v20, v{P + 4*n + r} row_newbcast:{n} {FULL}')
            a(lred[n])
        a('v_permlane16_swap_b32 v24, v25'); a('v_permlane16_swap_b32 v26, v27'); a('v_rcp_f32 v21, v21')
        a('v_add_f32 v24, v24, v25'); a('v_add_f32 v26, v26, v27')
        a('v_permlane32_swap_b32 v24, v26'); a('v_add_f32 v24, v24, v26'); a('v_mul_f32 v24, v24, v21')
        if blk: a('v_cmp_u_f32 vcc, v24, v24')
        a('v_cvt_pk_bf16_f32 v24, v24, v24')
        if blk:
            a('s_cbranch_vccz L_Ook')
            self.maxtree(list(range(P, P + 16)) + [ML, ML + 1], 6)
            a('s_cbranch_vccnz L_Oheavy')
            a.label('L_Ook')
        a('ds_write_b16 v17, v24'); a('s_waitcnt lgkmcnt(0)'); a('s_barrier')
        for ks in range(4): a(f'ds_read_b128 {vr(A + 4*ks, 4)}, v2 offset:{128 * ks}')
        self.stamp(3, 's49', 28)
        self.gemv(7, 4, breg, ACC, A, fill=['v_xor_b32 v17, 0x400, v17', 'v_xor_b32 v2, 0x400, v2'])
        self.rowout(ACC, 'v12', 'v13', 's48')
        self.stamp(12, 's49', 28)
        self.next_it('L_Otop')

    def roleQ(self):
        a = self.a
        self.dma_sub('L_dmaQ', [W1] * 8, 'v19', 88, 64 * 8192, 'nt')
        a.label('L_roleQ')
        self.srd(20, 70, 448 * 8192); self.srd(24, 64, 3584)
        a('s_sub_u32 s2, s2, 16')
        a('s_lshl_b32 s38, s2, 9'); a('s_lshl_b32 s39, s3, 7'); a('s_add_u32 s38, s38, s39')
        a('v_lshl_add_u32 v19, v4, 13, s38'); a('v_add_u32 v19, v19, v2')
        self.table(88, [(16 * (e & 1) + 2 * ((e >> 1) & 1) + 32 * (e >> 2)) * 8192 for e in range(8)])
        self.announce()
        breg = lambda jj, ks: 256 + (jj * 7 + ks) * 8
        pl = [('L_dmaQ', [(breg(jj, ks) + 2 * rp, rp * 2048 + jj * 256) for jj in range(4) for rp in range(4)]) for ks in range(7)]
        self.gather_offs()
        for b in range(4): a(f'buffer_load_dword v{56 + b}, v12, {W2}, 0 offen offset:{b * 896}')
        self.pieces(pl)
        self.bits('v32', 'v0', 'v6', [(0, 1, 1), (2, 1, 2), (4, 1, 3), (3, 1, 4), (1, 1, 5), (5, 1, 6)])
        a('s_lshl_b32 s38, s3, 7'); a('v_add_u32 v32, s38, v32')
        a('s_lshl_b32 s40, s2, 9')
        a('s_cmp_eq_u32 s2, 0'); a(f's_cselect_b32 s41, 0x{ZOFF + 15 * RS:x}, s57')
        G = 64; ACC = 40; A = 96; X = 124; CSUM = 36
        self.colsum(4, 7, breg, ACC)
        self.rowsel(CSUM, ACC, [(jj, 1 << jj) for jj in range(4)])
        a.label('L_Qtop')
        self.zero(ACC, 16)
        a('s_and_b32 s50, s49, 7')
        a('s_lshl_b32 s44, s50, 13'); a('s_add_u32 s44, s44, s40'); a('s_add_u32 s44, s44, s57')
        a('s_lshl_b32 s38, s50, 15'); a('s_add_u32 s38, s38, s57'); a('s_add_u32 s45, s38, s41')
        a('s_cmp_ge_u32 s50, 4'); a('s_cbranch_scc1 L_Qg')
        a('v_mov_b32 v18, v56'); a('v_mov_b32 v56, v57'); a('v_mov_b32 v57, v58'); a('v_mov_b32 v58, v59')
        a('s_branch L_Qx')
        a.label('L_Qg')
        for i in range(8): a(f's_add_u32 s{88+i}, s38, 0x{ZOFF - 4 * 0x8000 + 2 * RS * i:x}')
        a('s_waitcnt vmcnt(0)'); self.preset(G, 28)
        self.resid_poll('s95')
        self.gather_sum(7, 88, G)
        a.label('L_Qx')
        a('ds_write_b32 v15, v18'); a('s_waitcnt lgkmcnt(0)'); a('s_barrier')
        for ks in range(7): a(f'ds_read_b128 {vr(A + 4*ks, 4)}, v2 offset:{128 * ks}')
        a(f'ds_read_b128 {vr(X, 4)}, v1')
        self.xrow_store('s45')
        self.stamp(3, 's49', 28)
        fill = ['v_xor_b32 v15, 0x400, v15', 'v_xor_b32 v2, 0x400, v2', 'v_xor_b32 v1, 0x400, v1', None, None, 's_waitcnt lgkmcnt(0)'] + self.stats_ops(X)
        self.gemv(4, 7, breg, ACC, A, fill=fill, nother=1)
        a(f'v_mul_f32 v21, v24, v{CSUM}')
        self.rowsel(20, ACC, [(jj, 1 << jj) for jj in range(4)])
        a('v_sub_f32 v20, v20, v21'); a('v_mul_f32 v20, v20, v25')
        a('v_cvt_pk_bf16_f32 v20, v20, v20'); a('v_min_u32 v20, -2, v20')
        a(f'buffer_store_short v20, v32, {WS}, s44 offen sc1')
        self.stamp(12, 's49', 28)
        self.next_it('L_Qtop')

    def roleF(self):
        a = self.a
        self.dma_sub('L_dmaG', [W1] * 4 + [W2] * 4, 'v19', 88, 64 * 3584, '')
        self.dma_sub('L_dmaD', [W3] * 8, 'v33', 4, 32 * 896, 'nt')
        a.label('L_roleF')
        self.srd(20, 76, 448 * 3584); self.srd(24, 78, 448 * 3584); self.srd(28, 80, 1792 * 896)
        a('s_sub_u32 s2, s2, 32')
        a('v_bfe_u32 v6, v0, 5, 1'); a('v_lshl_add_u32 v6, v6, 1, v4'); a('v_mul_u32_u24 v6, 3584, v6')
        a('s_lshl_b32 s38, s2, 8'); a('s_lshl_b32 s39, s3, 6'); a('s_add_u32 s38, s38, s39')
        a('v_and_b32 v7, 63, v2'); a('v_add3_u32 v19, v6, v7, s38')
        self.table(88, [(16 * (e & 1) + 32 * ((e >> 1) & 1)) * 3584 for e in range(8)])
        a('s_lshl_b32 s39, s2, 7')
        self.typeB('v33', 's39', 4)
        self.announce()
        breg = lambda jj, ks: 256 + (jj * 7 + ks) * 8
        def dreg(jj, ks):
            i = jj * 2 + ks
            return 256 + 224 + 8 * i if i < 4 else 176 + 8 * (i - 4)
        pl = [('L_dmaG', [(breg(jj, ks) + 2 * rp, (2 * (rp >> 1) + 4 * (jj >> 1)) * 1024 + ((jj & 1) + 2 * (rp & 1)) * 256) for jj in range(4) for rp in range(4)]) for ks in range(7)]
        pl += [('L_dmaD', self.typeB_reads(dreg, i // 2, i % 2)) for i in range(4)]
        self.pieces(pl)
        self.gather_offs()
        self.rowout_offs('v32', 'v33')
        a('v_and_b32 v6, 31, v0'); a('s_lshl_b32 s38, s3, 6'); a('s_add_u32 s38, s38, 2048'); a('v_lshl_add_u32 v35, v6, 1, s38')
        a('s_lshl_b32 s40, s2, 11'); a(f's_add_u32 s40, s40, 0x{ZOFF:x}')
        a('s_cmp_eq_u32 s2, 0'); a(f's_cselect_b32 s41, 0x{ZOFF + 14 * RS:x}, s57')
        G = 64; ACC = 40; A = 96; X = 124; CSUM = 36; ACD = 128
        self.colsum(4, 7, breg, ACC)
        self.rowsel(CSUM, ACC, [(0, 5), (1, 10)]); self.rowsel(CSUM + 1, ACC, [(2, 5), (3, 10)])
        a.label('L_Ftop')
        self.calc_ib()
        self.zero(ACC, 16); self.zero(ACD, 28)
        a('s_lshl_b32 s38, s50, 15'); a('s_add_u32 s38, s38, s57')
        for i in range(8): a(f's_add_u32 s{88+i}, s38, 0x{YOFF + 2 * RS * i:x}')
        a(f's_add_u32 s47, s38, 0x{ZOFF + 15 * RS:x}')
        a('s_add_u32 s44, s38, s40'); a('s_add_u32 s45, s38, s41')
        a('s_waitcnt vmcnt(0)'); self.preset(G, 32)
        self.resid_poll('s47')
        self.gather_sum(8, 88, G)
        a('ds_write_b32 v15, v18'); a('s_waitcnt lgkmcnt(0)'); a('s_barrier')
        for ks in range(7): a(f'ds_read_b128 {vr(A + 4*ks, 4)}, v2 offset:{128 * ks}')
        a(f'ds_read_b128 {vr(X, 4)}, v1')
        self.xrow_store('s45')
        self.stamp(3, 's49', 28)
        fill = [None] * 5 + ['s_waitcnt lgkmcnt(0)'] + self.stats_ops(X)
        self.gemv(4, 7, breg, ACC, A, fill=fill, nother=1)
        a(f'v_mul_f32 v22, v24, v{CSUM}'); a(f'v_mul_f32 v23, v24, v{CSUM+1}'); a('v_mul_f32 v25, v25, v25')
        for jj in (0, 2, 1, 3): self.rowsel(20 + jj // 2, ACC, [(jj, 10 if jj & 1 else 5)])
        a('v_sub_f32 v20, v20, v22'); a('v_sub_f32 v21, v21, v23')
        a('v_max_f32 v20, 0, v20'); a('v_mul_f32 v21, v21, v25'); a('v_mul_f32 v20, v20, v21')
        a('v_cvt_pk_bf16_f32 v20, v20, v20')
        a('ds_write_b16 v35, v20'); a('s_waitcnt lgkmcnt(0)'); a('s_barrier')
        for ks in range(2): a(f'ds_read_b128 {vr(A + 4*ks, 4)}, v2 offset:{2048 + 128 * ks}')
        self.gemv(7, 2, dreg, ACD, A)
        self.rowout(ACD, 'v32', 'v33', 's44')
        self.stamp(12, 's49', 28)
        self.next_it('L_Ftop')

    def roleW(self):
        a = self.a
        self.srd(20, 82, 3584)
        self.announce()
        a('s_sub_u32 s2, s2, 46'); a('s_lshl_b32 s2, s2, 2'); a('s_add_u32 s2, s2, s3')
        a('v_lshrrev_b32 v6, 4, v0'); a('s_lshl_b32 s38, s2, 8')
        a('v_lshl_add_u32 v7, v5, 4, s38'); a('v_lshl_add_u32 v13, v6, 11, v7')
        a('v_and_b32 v7, 511, v7'); a('v_cmp_gt_u32 vcc, 448, v7')
        a('s_lshr_b32 s38, s2, 1'); a('s_mul_i32 s38, s38, 224')
        a('v_lshrrev_b32 v15, 1, v7'); a('v_lshl_add_u32 v15, v6, 1, v15'); a('v_add_u32 v15, s38, v15')
        a('v_cndmask_b32 v13, v10, v13, vcc'); a('v_cndmask_b32 v15, v10, v15, vcc')
        a('v_cmp_gt_u32 vcc, 48, v0'); a('s_nop 1'); a('v_cndmask_b32 v14, v10, v13, vcc')
        G = 32
        a.label('L_Wtop')
        a('s_and_b32 s50, s49, 3'); a('s_lshl_b32 s38, s50, 15'); a('s_add_u32 s38, s38, s57')
        for n in range(4): a(f's_add_u32 s{44+n}, s38, 0x{ZOFF + 4 * 0x8000 + 4 * RS * n:x}')
        a('s_mul_i32 s48, s50, 896'); a('s_add_u32 s48, s48, s57')
        blk = self.poll == 'block'
        loads = [(G + 4*n, 4, f'buffer_load_dwordx4 {vr(G + 4*n, 4)}, {"v14" if n == 3 else "v13"}, {WS}, s{44+n} offen sc1') for n in range(4)]
        if blk:
            a.label('L_Wpoll')
            self.timeout()
            for x in loads: a(x[2])
        else:
            a('s_waitcnt vmcnt(0)'); self.preset(G, 16)
            self.nbpoll(loads)
        for n in range(1, 4):
            if blk: a(f's_waitcnt vmcnt({3 - n})')
            a(f'v_pk_add_f32 v[24:25], {vr(G, 2) if n == 1 else "v[24:25]"}, {vr(G + 4*n, 2)}')
            a(f'v_pk_add_f32 v[26:27], {vr(G + 2, 2) if n == 1 else "v[26:27]"}, {vr(G + 4*n + 2, 2)}')
        a('v_permlane16_swap_b32 v24, v25'); a('v_permlane16_swap_b32 v26, v27')
        a('v_add_f32 v24, v24, v25'); a('v_add_f32 v26, v26, v27')
        a('v_permlane32_swap_b32 v24, v26'); a('v_add_f32 v24, v24, v26')
        if blk: a('v_cmp_u_f32 vcc, v24, v24')
        a('v_cvt_pk_bf16_f32 v24, v24, v24')
        if blk:
            a('s_cbranch_vccz L_Wok')
            self.maxtree(range(G, G + 16), 6)
            a('s_cbranch_vccnz L_Wpoll')
            a.label('L_Wok')
        a(f'buffer_store_short v24, v15, {W1}, s48 offen')
        self.stamp(12, 's49', 28)
        self.next_it('L_Wtop', 4)

if __name__ == '__main__':
    kw = json.loads(sys.argv[2]) if len(sys.argv) > 2 else {}
    open(sys.argv[1], 'w').write(Gen(**kw).build())
```

```python
import sys, struct, json
from asmlib import Asm
NAME = "interleave_layers__mha_block_cached__glu_gated_reglu__decode"

QOFF = 0x0; YOFF = 0x10000; ZOFF = 0x30000; XAOFF = 0x50000; XBOFF = 0x54000; POFF = 0x80000; DOFF = 0x400000
PB = 16384; PIB = 16 * PB; MLO = 14336
OOB = 0x40000000
NC = 14; NW = 56
CS = 0.09016844005556021
def f2u(x): return struct.unpack('<I', struct.pack('<f', x))[0]

K_SRD = 's[8:11]'; V_SRD = 's[12:15]'; WS = 's[16:19]'; W1 = 's[20:23]'; W2 = 's[24:27]'; W3 = 's[28:31]'
DBG = 's[84:85]'
NCHAIN = 32
K4 = 's[88:91]'; V4 = 's[92:95]'
FULL = 'row_mask:0xf bank_mask:0xf'

def vr(b, n=1): return f'v{b}' if n == 1 else f'v[{b}:{b+n-1}]'
def ar(b, n=1): return f'a{b}' if n == 1 else f'a[{b}:{b+n-1}]'
def rr(b, n=1): return vr(b, n) if b < 256 else ar(b - 256, n)

class Gen:
    def __init__(self, diag=False, PF=65, depth=8, hpf=True, hpol='nt', cpf=False, rows=(12, 7), hq=(2, 4)):
        self.a = Asm(); self.diag = diag; self.PF = PF; self.depth = depth; self.hpf = hpf; self.hpol = hpol; self.cpf = cpf; self.rows = rows; self.hq = hq
        self.uid = 0
    def lab(self, p='L'):
        self.uid += 1; return f'{p}_{self.uid}'

    def bits(self, dst, lane, tmp, mp):
        a = self.a; first = True
        for lb, n, ab in mp:
            if first:
                a(f'v_bfe_u32 {dst}, {lane}, {lb}, {n}')
                if ab: a(f'v_lshlrev_b32 {dst}, {ab}, {dst}')
                first = False
            else:
                a(f'v_bfe_u32 {tmp}, {lane}, {lb}, {n}')
                a(f'v_lshl_add_u32 {dst}, {tmp}, {ab}, {dst}')
    def srd(self, base, lo, size):
        a = self.a
        a(f's_mov_b64 s[{base}:{base+1}], s[{lo}:{lo+1}]')
        a(f's_mov_b32 s{base+2}, 0x{size:x}'); a(f's_mov_b32 s{base+3}, 0x20000')
    def timeout(self):
        self.a('s_sub_u32 s52, s52, 1'); self.a('s_cbranch_scc1 L_bail')
    def wait_counter(self, va=20, vd=21, vt=22, pre=False):
        a = self.a; l = self.lab('L_cnt'); d = self.lab('L_cntd'); c = self.lab('L_cntc')
        if pre: a(f's_branch {c}')
        else: a(f'v_mov_b32 v{va}, 0')
        a.label(l)
        self.timeout()
        a(f'global_load_dword v{vd}, v{va}, {DBG} sc1'); a('s_waitcnt vmcnt(0)')
        a.label(c)
        a(f'v_and_b32 v{vt}, 63, v{vd}'); a(f'v_cmp_gt_u32 vcc, {NCHAIN}, v{vt}'); a(f's_cbranch_vccnz {l}')
    def stamp(self, idx, sidx=None, t0=20):
        if not self.diag: return
        a = self.a
        a('s_waitcnt lgkmcnt(0)'); a('s_memrealtime s[62:63]'); a('s_waitcnt lgkmcnt(0)')
        a(f'v_mov_b32 v{t0}, s62')
        if sidx: a(f's_lshl_b32 s60, {sidx}, 2'); a('s_add_u32 s60, s60, s61')
        else: a('s_mov_b32 s60, s61')
        a(f'v_mov_b32 v{t0+1}, 0')
        a('s_mov_b64 exec, 1')
        a(f'buffer_store_dword v{t0}, v{t0+1}, {WS}, s60 offen offset:{idx*4}')
        a('s_mov_b64 exec, -1')
    def maxtree(self, regs, t):
        a = self.a; regs = list(regs)
        a(f'v_max3_u32 v{t}, v{regs[0]}, v{regs[1]}, v{regs[2 if len(regs) > 2 else 1]}')
        regs = regs[3:]
        while regs:
            x = regs[:2]; regs = regs[2:]
            a(f'v_max3_u32 v{t}, v{t}, v{x[0]}, v{x[-1]}')
        a(f'v_cmp_eq_u32 vcc, -1, v{t}')

    def build(self):
        a = self.a
        a('s_cmp_ge_u32 s2, 256'); a('s_cbranch_scc1 L_end')
        a('s_load_dwordx16 s[64:79], s[0:1], 0')
        a('s_load_dwordx8 s[80:87], s[0:1], 64')
        a('v_lshrrev_b32 v1, 6, v0'); a('v_and_b32 v0, 63, v0')
        a('v_readfirstlane_b32 s3, v1')
        a('s_mov_b32 s52, 400000')
        if self.diag:
            a('s_lshl_b32 s61, s2, 2'); a('s_add_u32 s61, s61, s3'); a('s_lshl_b32 s61, s61, 8'); a(f's_add_u32 s61, s61, 0x{DOFF:x}')
        a('s_and_b32 s36, s2, 7'); a('s_lshr_b32 s2, s2, 3')
        if self.cpf:
            a('s_getpc_b64 s[38:39]'); a.label('L_pc')
            a('s_lshl_b32 s37, s2, 2'); a('s_add_u32 s37, s37, s3'); a('s_lshl_b32 s37, s37, 10')
            a('s_cmp_ge_u32 s37, L_end-L_pc'); a('s_cbranch_scc1 L_nopf')
            a('v_lshl_add_u32 v2, v0, 4, s37'); a('v_min_u32 v2, L_end-L_pc-16, v2')
            a('global_load_dwordx4 v[60:63], v2, s[38:39]')
            a.label('L_nopf')
        a('s_cmp_eq_u32 s36, 0'); a('s_cbranch_scc1 L_chain')
        self.stream()
        a.label('L_chain')
        self.chain_common()
        self.roleW(); self.roleOQ(); self.roleF()
        a.label('L_bail')
        a('s_mov_b64 exec, 1')
        a('v_mov_b32 v0, 64'); a('v_mov_b32 v1, 1')
        a(f'global_atomic_add v0, v1, {DBG} sc1')
        a('v_mov_b32 v0, 68'); a('v_mov_b32 v1, s2')
        a(f'global_store_dword v0, v1, {DBG} sc1')
        a.label('L_end')
        body = a.finish()
        hdr = open('cdna_kernels/' + NAME + '.s.ref').read().split('\n')
        top = [l for l in hdr if l.startswith(';') and '@launch' not in l]
        s = '\n'.join(top) + '\n; @launch grid=(256,1,1) block=(256,1,1) lds=163840\n'
        s += f'.amdgcn_target "amdgcn-amd-amdhsa--gfx950"\n.text\n.globl {NAME}_kernel\n.p2align 8\n.type {NAME}_kernel,@function\n{NAME}_kernel:\n'
        s += body
        s += f'''s_endpgm
.section .rodata,"a"
.p2align 6
.amdhsa_kernel {NAME}_kernel
  .amdhsa_next_free_vgpr 512
  .amdhsa_next_free_sgpr 102
  .amdhsa_accum_offset 256
  .amdhsa_group_segment_fixed_size 0
  .amdhsa_kernarg_size 96
  .amdhsa_user_sgpr_count 2
  .amdhsa_user_sgpr_kernarg_segment_ptr 1
  .amdhsa_system_sgpr_workgroup_id_x 1
.end_amdhsa_kernel
'''
        return s

    CA = [0, 4096]; Q1L = 8192; MA = [10240, 10272]; CO = [10304, 10308]; TB = 10496; WLDS = 37 * 1024
    vK, vV, vDs, vL16, vQo, vIQ, vIP = 1, 2, 3, 4, 5, 6, 7
    vM = 8; vT = 12; vBias = 15; vMC = 16; vL = 17; vQ = 24; vAcc = 32; vH = 48
    def kreg(self, s, u):
        return 64 + 96 * s + 16 * u if u < 6 else 256 + 128 * s + 16 * (u - 6)
    def vreg0(self, s, P, t):
        return 256 + 128 * s + 64 + 8 * (4 * P + t)
    def tile(self, n):
        if n < 40:
            u, t = n // 4, n % 4
            return 0, u // 2, t * 128 + (u & 1) * 512
        m = n - 40; g = m // 8; k = m % 8
        if g < 4: P, t = k // 4, k % 4
        else: t, P = k // 2, k % 2
        return 1, g, t * 128 + P * 1024
    def ldsslot(self, s, n):
        if n <= 72: return (n - 56) + 17 * s
        return 34 + (n - 73)
    def load(self, s, n, wait=True, skip=False):
        a = self.a
        kv, g, imm = self.tile(n)
        if n == 0 and not self.prologue:
            for j in range(5): a(f's_add_u32 s{40+j}, s{40+j}, 0x2000000')
            a('s_add_u32 s90, s90, 0x2000000'); a('s_mov_b32 s94, s90')
        l = None
        if skip:
            l = self.lab('L_sk'); a('s_cmp_eq_u32 s49, 4'); a(f's_cbranch_scc1 {l}')
        va = f'v{self.vV if kv else self.vK}'; srd = V_SRD if kv else K_SRD
        if g == 4: srd = V4 if kv else K4
        dst = None
        if n < 40: dst = self.kreg(s, n // 4) + 4 * (n % 4)
        elif n < 56:
            m = n - 40; dst = self.vreg0(s, (m % 8) // 4, m % 4) + 4 * (m // 8)
        elif n >= 76: dst = self.vH + 4 * (n - 76)
        if dst is None:
            a(f's_add_u32 m0, s45, {self.ldsslot(s, n) * 1024 - imm}')
        if wait and len(self.vmq) >= self.depth:
            a(f's_waitcnt vmcnt({self.depth - 1})'); self.vmq = self.vmq[-(self.depth - 1):]
        if dst is None:
            a(f'buffer_load_dwordx4 {va}, {srd}, s{40+g} offen offset:{imm} nt lds')
        else:
            a(f'buffer_load_dwordx4 {rr(dst, 4)}, {va}, {srd}, s{40+g} offen offset:{imm} nt')
        self.vmq.append((s, n))
        if l: a.label(l)
    def need_vm(self, tag):
        if tag in self.vmq:
            k = len(self.vmq) - 1 - self.vmq.index(tag)
            self.a(f's_waitcnt vmcnt({k})'); self.vmq = self.vmq[len(self.vmq) - k:] if k else []
    def ds(self, text, tag=None):
        self.a(text); self.lq.append(tag)
    def need_lds(self, tag):
        if tag in self.lq:
            i = len(self.lq) - 1 - self.lq[::-1].index(tag)
            k = len(self.lq) - 1 - i
            k = min(k, 15)
            self.a(f's_waitcnt lgkmcnt({k})'); self.lq = self.lq[len(self.lq) - k:] if k else []
    def qload(self):
        a = self.a
        a(f'buffer_load_dwordx4 {vr(self.vQ, 4)}, v{self.vQo}, {WS}, s46 offen sc1')
        a(f'buffer_load_dwordx4 {vr(self.vQ + 4, 4)}, v{self.vQo}, {WS}, s46 offen offset:256 sc1')
    def zero_acc(self):
        return [f'v_mov_b64 {vr(self.vAcc + 2 * i, 2)}, 0' for i in range(8)]

    def stream(self):
        a = self.a
        self.vmq = []; self.lq = []; self.prologue = True
        RE, RL = self.rows
        assert 24 * RE + 32 * RL == 512 and max(RE, RL) <= 16
        a('s_sub_u32 s36, s36, 1'); a('s_lshl_b32 s36, s36, 5'); a('s_add_u32 s2, s36, s2')
        a('s_mul_i32 s36, s2, 10923'); a('s_lshr_b32 s36, s36, 16'); a('s_mul_i32 s37, s36, 6'); a('s_sub_u32 s37, s2, s37')
        a('s_sub_u32 s38, s2, 96'); a('s_and_b32 s39, s38, 7'); a('s_add_u32 s39, s39, 6'); a('s_lshr_b32 s38, s38, 3')
        a('s_cmp_lt_u32 s2, 96'); a('s_cselect_b32 s36, s36, s38'); a('s_cselect_b32 s37, s37, s39')
        a(f's_cselect_b32 s50, {RE}, {RL}'); a(f's_cselect_b32 s51, 0, {24 * (RE - RL)}')
        a('s_lshl_b32 s39, s37, 2'); a('s_add_u32 s39, s39, s3'); a('s_lshl_b32 s38, s39, 13')
        a('s_lshl_b32 s44, s36, 21'); a('s_add_u32 s40, s44, s38')
        self.bits(f'v{self.vK}', 'v0', 'v18', [(0, 1, 4), (4, 2, 5), (2, 1, 10), (1, 1, 11), (3, 1, 12)])
        a(f's_lshl_b32 s47, s36, 14'); a('s_lshl_b32 s38, s37, 10'); a('s_add_u32 s47, s47, s38'); a(f's_add_u32 s47, s47, 0x{POFF:x}')
        a('s_mul_i32 s38, s37, 896'); a(f's_sub_u32 s48, {MLO}, s38')
        a(f'v_lshlrev_b32 v{self.vL16}, 4, v0'); a('v_lshl_add_u32 v18, v0, 18, s48')
        a('v_mov_b64 v[20:21], -1'); a('v_mov_b64 v[22:23], -1')
        a('s_lshl_b32 s41, s3, 19'); a('s_add_u32 s41, s41, s47'); a(f's_add_u32 s42, s41, {PIB}')
        a('s_waitcnt lgkmcnt(0)')
        self.srd(16, 86, 0x20000000)
        a(f'buffer_store_dwordx4 v[20:23], v{self.vL16}, {WS}, s41 offen sc1')
        a(f'buffer_store_dwordx4 v[20:23], v{self.vL16}, {WS}, s42 offen sc1')
        a('s_mov_b64 exec, 3')
        a(f'buffer_store_dwordx2 v[20:21], v18, {WS}, s41 offen sc1')
        a('s_mov_b64 exec, -1')
        self.srd(8, 66, 0x8000000)
        N0 = 8
        for n in range(min(N0, self.depth)): self.load(0, n)
        for j in range(1, 4): a(f's_add_u32 s{40+j}, s40, {j * NW * 8192}')
        a('s_mul_i32 s38, s39, s50'); a('s_add_u32 s38, s38, s51'); a('s_lshl_b32 s38, s38, 9')
        a(f's_add_u32 s44, s44, {4 * NW * 8192}'); a('s_add_u32 s44, s44, s38')
        self.srd(88, 66, 0); self.srd(92, 68, 0)
        a('s_lshl_b32 s38, s50, 9'); a('s_add_u32 s90, s44, s38'); a('s_mov_b32 s94, s90')
        self.srd(12, 68, 0x8000000)
        self.stamp(0)
        self.bits(f'v{self.vV}', 'v0', 'v18', [(0, 3, 4), (5, 1, 9), (4, 1, 11), (3, 1, 12)])
        a(f's_mul_i32 s45, s3, {self.WLDS}'); a(f's_add_u32 s45, s45, {self.TB}')
        a(f'v_add_u32 v{self.vDs}, s45, v{self.vL16}')
        self.bits(f'v{self.vQo}', 'v0', 'v18', [(0, 2, 4), (4, 2, 6)])
        a('v_and_b32 v18, 2, v0'); a('v_cmp_eq_u32 vcc, 2, v18')
        a(f'v_mov_b32 v{self.vIQ}, 0x44444444'); a('v_mov_b32 v18, 0xeeeeeeee'); a(f'v_cndmask_b32 v{self.vIQ}, v{self.vIQ}, v18, vcc')
        a('v_and_b32 v18, 3, v0'); a('s_mov_b32 s38, 0x55555555'); a(f'v_mul_lo_u32 v{self.vIP}, v18, s38')
        a('v_and_b32 v18, 4, v0'); a('v_cmp_eq_u32 vcc, 4, v18')
        a('v_mov_b32 v18, 0xffff'); a('v_mov_b32 v19, 0xffff0000')
        M = self.vM
        a(f'v_cndmask_b32 v{M}, v18, 0, vcc'); a(f'v_cndmask_b32 v{M+1}, 0, v18, vcc')
        a(f'v_cndmask_b32 v{M+2}, v19, 0, vcc'); a(f'v_cndmask_b32 v{M+3}, 0, v19, vcc')
        self.bits('v18', 'v0', 'v19', [(4, 1, 0), (2, 1, 1), (1, 1, 2), (3, 1, 3), (5, 1, 4)])
        a('v_cmp_gt_u32 vcc, s50, v18'); a('v_mov_b32 v19, 0xff800000'); a(f'v_mov_b32 v{self.vT+2}, 0')
        a(f'v_cndmask_b32 v{self.vBias}, v19, 0, vcc')
        a('s_lshl_b32 s46, s3, 4'); a('s_add_u32 s46, s46, s36'); a('s_lshl_b32 s46, s46, 9')
        a('s_mov_b32 s49, 0'); a(f's_mov_b32 s51, 0x{f2u(CS):x}')
        a(f's_mov_b32 s53, {self.Q1L}'); a('s_lshl_b32 s54, s3, 10'); a('s_lshl_b32 s55, s3, 3')
        a('s_lshl_b32 s56, s36, 9'); a(f's_add_u32 s56, s56, 0x{QOFF + 3 * 8192:x}')
        a('v_mov_b32 v18, 0'); a('v_mov_b32 v19, 0')
        a(f'ds_write_b64 v18, v[18:19] offset:{self.CO[0]}')
        for n in range(self.depth, N0): self.load(0, n, wait=(n < N0 - 1))
        self.prologue = False
        entry_vmq = list(self.vmq)
        for s in range(2):
            a.label(f'L_A{s}')
            assert [(x[0] ^ s, x[1]) for x in self.vmq] == entry_vmq, (self.vmq, entry_vmq)
            self.lq = []
            for n in range(N0, 73):
                self.load(s, n)
                if s == 0 and n == 24:
                    a('s_cmp_lg_u32 s49, 0'); a('s_cbranch_scc1 L_armed')
                    a('s_barrier')
                    a('s_cmp_lg_u32 s3, 0'); a('s_cbranch_scc1 L_armed')
                    a('s_mov_b64 exec, 1'); a('v_mov_b32 v22, 0'); a('v_mov_b32 v23, 1')
                    a(f'global_atomic_add v22, v23, {DBG} offset:128 sc1')
                    a('s_mov_b64 exec, -1')
                    a.label('L_armed')
                if s == 0 and n == self.PF - 8:
                    a('v_mov_b32 v22, 0'); a(f'global_load_dword v23, v22, {DBG} sc1'); self.vmq.append('cnt')
                if n == self.PF:
                    if s == 0:
                        self.stamp(22, 's49')
                        self.need_vm('cnt'); self.wait_counter(22, 23, 21, pre=True)
                    self.qload(); self.vmq += ['q0', 'q1']
            self.need_vm('q1')
            self.stamp(1, 's49')
            a.label(f'L_X{s}')
            self.maxtree(range(self.vQ, self.vQ + 8), 18)
            a(f's_cbranch_vccz L_Xok{s}')
            a.label(f'L_Xpoll{s}')
            self.timeout()
            self.qload(); a('s_waitcnt vmcnt(0)')
            a(f's_branch L_X{s}')
            a.label(f'L_Xok{s}')
            self.stamp(6, 's49')
            if s == 0:
                a('s_cmp_eq_u32 s49, 0'); a('s_cbranch_scc1 L_first')
            save = list(self.vmq)
            self.ppass(1, s)
            self.stamp(11, 's49')
            if s == 0:
                a('s_cmp_eq_u32 s49, 4'); a('s_cbranch_scc1 L_end')
                after = list(self.vmq)
            a.label(f'L_P1{s}')
            self.ppass(0, s)
            self.stamp(16, 's49')
            for z in self.zero_acc(): a(z)
            a('s_add_u32 s49, s49, 1'); a(f's_add_u32 s47, s47, {PIB}'); a('s_add_u32 s53, s53, 512')
            a('s_add_u32 s56, s56, 8192'); a('s_mov_b32 s46, s56')
            if s == 0: first_save, first_after = save, after
        a('s_cmp_eq_u32 s49, 4'); a('s_cbranch_scc1 L_Xpoll0')
        a('s_branch L_A0')
        a.label('L_first')
        self.vmq = first_save
        a('s_lshl_b32 s38, s3, 9'); a(f'v_add_u32 v18, s38, v{self.vQo}')
        a(f'ds_write_b128 v18, {vr(self.vQ, 4)} offset:{self.Q1L}')
        a(f'ds_write_b128 v18, {vr(self.vQ + 4, 4)} offset:{self.Q1L + 256}')
        for n in range(73, 77): self.load(0, n)
        assert self.vmq == first_after, (self.vmq, first_after)
        a('s_waitcnt lgkmcnt(0)'); a('s_barrier')
        a('s_branch L_P10')

    def ppass(self, p2, s):
        a = self.a
        ds_ = (1 - s) if p2 else s
        fs = 1 - s
        cu0 = 0 if p2 else 2
        T = self.vT; Q = self.vQ; AC = self.vAcc; M = self.vM
        skip = (p2 and s == 0)
        def cdst(pi): return self.kreg(fs, cu0 + pi // 2) + 8 * (pi % 2)
        def copy(n):
            if n >= 72: pi, half = (n - 72) // 2, (n - 72) % 2
            else: pi, half = 2 + (n - 56) % 8, (n - 56) // 8
            if not p2: self.need_vm((s, n))
            self.ds(f'ds_read_b128 {rr(cdst(pi) + 4 * half, 4)}, v{self.vDs} offset:{self.ldsslot(ds_, n) * 1024}', ('c', n))
        def bop(U, P, t):
            if U == 0: return self.vreg0(ds_, P, t), []
            if U == 1: return cdst(2 + 4 * P + t), [('c', 56 + 4 * P + t), ('c', 64 + 4 * P + t)]
            if t < 2: return cdst(t), [('c', 72 + 2 * t), ('c', 73 + 2 * t)]
            return self.vH + 8 * (t - 2), []
        if not p2:
            a(f'v_add_u32 v18, s53, v{self.vQo}')
            self.ds(f'ds_read_b128 {vr(Q, 4)}, v18', 'q'); self.ds(f'ds_read_b128 {vr(Q + 4, 4)}, v18 offset:256', 'q')
            for z in self.zero_acc(): a(z)
            self.load(s, 77)
            self.need_lds('q')
        def post_a(u):
            ac = AC + 4 * (u % 4); t = 18 + 2 * (u % 2)
            a(f'v_add_f32 v{t+1}, v{ac+1}, v{ac+3}'); a(f'v_add_f32 v{t}, v{ac}, v{ac+2}')
        def post_b(u):
            t = 18 + 2 * (u % 2)
            a(f'v_add_f32_dpp v{T + u // 4}, v{t+1}, v{t} quad_perm:[1,1,3,3] row_mask:0x{1 << (u % 4):x} bank_mask:0xf')
        if p2: cplan = {0: [72, 73, 74, 75], 1: [56, 64, 57, 65], 2: [58, 66, 59, 67], 3: [60, 68], 4: [61, 69], 5: [62, 70], 6: [63, 71]}
        else: cplan = {0: [56, 57], 1: [58, 59], 2: [60, 61], 3: [62, 63], 4: [64, 65], 5: [66, 67], 6: [68, 69]}
        for u in range(10):
            ac = AC + 4 * (u % 4); k = self.kreg(ds_, u)
            a(f'v_smfmac_f32_16x16x64_bf16 {vr(ac, 4)}, {vr(Q, 4)}, {rr(k, 8)}, v{self.vIQ}')
            if u >= 3: post_a(u - 3)
            a(f'v_smfmac_f32_16x16x64_bf16 {vr(ac, 4)}, {vr(Q + 4, 4)}, {rr(k + 8, 8)}, v{self.vIQ}')
            if u >= 3: post_b(u - 3)
            for n in cplan.get(u, []): copy(n)
            if p2 and u == 4: self.need_lds(('c', 75)); self.load(s, 73, skip=skip)
            if p2 and u == 9: self.load(s, 74, skip=skip)
            if not p2 and u == 5: self.load(s, 78)
            if not p2 and u == 9: self.load(s, 79); copy(70); copy(71)
        zf = [f'v_mov_b32 v{AC + r}, 0' for r in list(range(8, 16)) + list(range(8))]
        def Z(n=2):
            for _ in range(n):
                if zf: a(zf.pop(0))
        post_a(7); Z(1); post_b(7); Z(3); post_a(8); Z(1); post_b(8); Z(2); post_a(9); Z(1); post_b(9)
        m = self.vMC; t = 18
        a(f'v_sub_f32 v{T+2}, v{T+2}, v{T+1}'); a(f'v_sub_f32 v{T+1}, v{T+1}, v{T}')
        a(f'v_add_f32 v{T+2}, v{self.vBias}, v{T+2}')
        a(f'v_max3_f32 v{m}, v{T}, v{T+1}, v{T+2}'); Z()
        a(f'v_max_f32_dpp v{m}, v{m}, v{m} quad_perm:[2,3,0,1] {FULL}'); Z()
        a(f'v_max_f32_dpp v{m}, v{m}, v{m} row_ror:4 {FULL}'); Z()
        a(f'v_max_f32_dpp v{t}, v{m}, v{m} row_ror:8 {FULL}')
        a(f'v_max_f32_dpp v{m}, v{m}, v{m} row_ror:8 {FULL}'); Z()
        a(f'v_permlane16_swap_b32 v{m}, v{t}'); a(f'v_max_f32 v{t+1}, v{m}, v{t}'); a(f'v_max_f32 v{m}, v{m}, v{t}'); Z(8)
        a(f'v_permlane32_swap_b32 v{m}, v{t+1}'); a(f'v_max_f32 v{m}, v{m}, v{t+1}')
        a(f'v_mul_f32 v{m}, s51, v{m}')
        order = [0, 2, 1] if p2 else [0, 1, 2]
        for k in order: a(f'v_fma_f32 v{T+k}, v{T+k}, s51, -v{m}')
        for k in order: a(f'v_exp_f32 v{T+k}, v{T+k}')
        L = self.vL
        def pack(k):
            o = [f'v_mov_b32_dpp v18, v{T+k} quad_perm:[0,0,0,0] {FULL}',
                 f'v_mov_b32_dpp v19, v{T+k} quad_perm:[2,2,2,2] {FULL}',
                 f'v_cvt_pk_bf16_f32 v{20+k}, v18, v19']
            if k == 2: o += [f'v_mov_b32_dpp v0, v22 row_shl:4 {FULL}', 'v_permlane32_swap_b32 v22, v0']
            return o
        def aprep(k, P, A):
            pp = 20 + k
            if P == 0:
                return [f'v_and_b32 v{A}, v{pp}, v{M}', f'v_and_b32 v{A+2}, v{pp}, v{M+2}',
                        f'v_and_b32_dpp v{A+1}, v{pp}, v{M+1} row_shr:4 {FULL} bound_ctrl:0',
                        f'v_and_b32_dpp v{A+3}, v{pp}, v{M+3} row_shr:4 {FULL} bound_ctrl:0']
            return [f'v_and_b32 v{A+1}, v{pp}, v{M+1}', f'v_and_b32 v{A+3}, v{pp}, v{M+3}',
                    f'v_and_b32_dpp v{A}, v{pp}, v{M} row_shl:4 {FULL} bound_ctrl:0',
                    f'v_and_b32_dpp v{A+2}, v{pp}, v{M+2} row_shl:4 {FULL} bound_ctrl:0']
        if p2: sets = [(0, 0), (2, 0), (0, 1), (1, 0), (1, 1)]
        else: sets = [(0, 0), (0, 1), (1, 0), (1, 1), (2, 0)]
        lred = [f'v_add_f32 v{L}, v{T}, v{T+1}',
                f'v_add_f32 v{L}, v{T+2}, v{L}',
                f'v_add_f32_dpp v{L}, v{L}, v{L} quad_perm:[2,3,0,1] {FULL}',
                f'v_add_f32_dpp v{L}, v{L}, v{L} row_ror:4 {FULL}',
                f'v_add_f32_dpp v{L}, v{L}, v{L} row_ror:8 {FULL}',
                f'v_mov_b32 v23, v{L}', f'v_permlane16_swap_b32 v{L}, v23', f'v_add_f32 v{L}, v{L}, v23',
                f'v_mov_b32 v23, v{L}', f'v_permlane32_swap_b32 v{L}, v23', f'v_add_f32 v{L}, v{L}, v23']
        def prep(i):
            k, P = sets[i]
            return (pack(k) if P == 0 else []) + aprep(k, P, Q + 4 * (i % 2))
        for x in prep(0): a(x)
        CA = self.CA[p2]; MA = self.MA[p2]; CO = self.CO[p2]
        def merge(t0):
            o = []
            for r in range(4): o.append(f'v_permlane32_swap_b32 v{AC + 4*t0 + r}, v{AC + 4*t0 + 4 + r}')
            for r in range(4):
                if t0 == 0: o.append(f'v_add_f32_dpp v{AC + r}, v{AC + 4 + r}, v{AC + r} row_ror:8 row_mask:0xf bank_mask:0x3')
                else: o.append(f'v_add_f32_dpp v{AC + r}, v{AC + 8 + r}, v{AC + 12 + r} row_ror:8 row_mask:0xf bank_mask:0xc')
            return o
        for i, (k, P) in enumerate(sets):
            fill = prep(i + 1) if i + 1 < len(sets) else []
            last = (i == len(sets) - 1)
            if last:
                fill = lred + [f'v_add_u32 v18, s54, v{self.vL16}', 'v_mov_b32 v19, s55', 'v_mov_b32 v20, 1', 'v_mov_b32 v21, 0', 'v_mov_b32 v22, s48']
                lred = []
            for t in range(4):
                b, tags = bop(k, P, t)
                if not p2 and k == 2:
                    if t == 0:
                        self.load(1 - s, 1); copy(72); copy(73)
                        for x in fill: a(x)
                        fill = []
                        self.load(1 - s, 2); self.load(1 - s, 3); copy(74); copy(75)
                    if t == 2:
                        self.load(1 - s, 4)
                        for x in merge(0): a(x)
                        self.load(1 - s, 5); self.need_vm((s, 77))
                    if t == 3:
                        self.load(1 - s, 6); self.need_vm((s, 79))
                for tg in tags: self.need_lds(tg)
                a(f'v_smfmac_f32_16x16x64_bf16 {vr(AC + 4 * t, 4)}, {vr(Q + 4 * (i % 2), 4)}, {rr(b, 8)}, v{self.vIP}')
                n = (len(fill) + (3 - t)) // (4 - t)
                got = fill[:n]; fill = fill[n:]
                if len(got) < 2 and lred: got.append(lred.pop(0))
                for x in got: a(x)
            if p2 and i == 0: self.load(s, 75, skip=skip)
            if p2 and i == 2: self.load(s, 76, skip=skip)
            if not p2 and i == 1: self.load(1 - s, 0)
        if not p2: self.load(1 - s, 7, wait=False)
        else:
            for x in merge(0): a(x)
        for x in merge(2): a(x)
        Zr = self.kreg(fs, 2)
        a(f'ds_write_b128 v18, {vr(AC, 4)} offset:{CA}')
        a('s_mov_b64 exec, 1')
        a(f'ds_write_b64 v19, {vr(self.vMC, 2)} offset:{MA}')
        a(f'ds_add_rtn_u32 v20, v21, v20 offset:{CO}')
        a('s_mov_b64 exec, -1')
        a(f'ds_read_b128 {vr(Q, 4)}, v21 offset:{MA}'); a(f'ds_read_b128 {vr(Q + 4, 4)}, v21 offset:{MA + 16}')
        for w in range(4): a(f'ds_read_b128 {vr(Zr + 4 * w, 4)}, v{self.vL16} offset:{CA + 1024 * w}')
        if p2: a(f's_add_u32 s38, s47, {3 * PIB}')
        else: a('s_mov_b32 s38, s47')
        a('s_waitcnt lgkmcnt(6)')
        a('v_readfirstlane_b32 s39, v20'); a('s_and_b32 s39, s39, 3'); a('s_cmp_eq_u32 s39, 3')
        l = self.lab('L_nl'); a(f's_cbranch_scc0 {l}')
        a('s_waitcnt lgkmcnt(4)')
        a(f'v_max3_f32 v{m}, v{Q}, v{Q+2}, v{Q+4}'); a(f'v_max_f32 v{m}, v{m}, v{Q+6}')
        for w in range(4): a(f'v_sub_f32 v{Q+2*w}, v{Q+2*w}, v{m}')
        for w in range(4): a(f'v_exp_f32 v{Q+2*w}, v{Q+2*w}')
        a(f'v_mul_f32 v{L}, v{Q}, v{Q+1}')
        for w in range(1, 4): a(f'v_fmac_f32 v{L}, v{Q+2*w}, v{Q+2*w+1}')
        a(f'v_min_u32 v{m}, -2, v{m}'); a(f'v_min_u32 v{L}, -2, v{L}')
        a('s_mov_b64 exec, 1')
        a(f'buffer_store_dwordx2 {vr(m, 2)}, v22, {WS}, s38 offen sc1')
        a('s_mov_b64 exec, -1')
        a('s_waitcnt lgkmcnt(0)')
        for w in range(4):
            for hf in range(2):
                if w == 0: a(f'v_pk_mul_f32 {vr(AC + 2*hf, 2)}, {vr(Zr + 2*hf, 2)}, {vr(Q, 2)} op_sel_hi:[1,0]')
                else: a(f'v_pk_fma_f32 {vr(AC + 2*hf, 2)}, {vr(Zr + 4*w + 2*hf, 2)}, {vr(Q + 2*w, 2)}, {vr(AC + 2*hf, 2)} op_sel_hi:[1,0,1]')
        for r in range(4): a(f'v_min_u32 v{AC + r}, -2, v{AC + r}')
        a(f'buffer_store_dwordx4 {vr(AC, 4)}, v{self.vL16}, {WS}, s38 offen sc1')
        a.label(l)
        a('s_waitcnt lgkmcnt(0)'); self.lq = []

    RING0 = 8192
    vGO2, vTR, vOOB, vDO, vX0O, vGO, vXR, vXW, vRES = 8, 9, 10, 11, 12, 13, 14, 15, 16
    vAC, vCS, vQS, vRO, vPO, vPO2, vMLO, vOW, vDQ, vX0 = 32, 36, 38, 39, 40, 41, 42, 43, 44, 45
    def vm(self, text, tag=None):
        self.a(text); self.cq.append(tag)
    def vmwait(self, tag):
        if tag in self.cq:
            i = len(self.cq) - 1 - self.cq[::-1].index(tag)
            k = len(self.cq) - 1 - i
            assert k <= 63
            self.a(f's_waitcnt vmcnt({k})'); self.cq = self.cq[i + 1:]
    def chain_common(self):
        a = self.a
        a('v_lshlrev_b32 v1, 4, v0')
        for r in range(20, 24): a(f'v_mov_b32 v{r}, -1')
        a('s_lshl_b32 s38, s2, 2'); a('s_add_u32 s38, s38, s3'); a('s_mul_i32 s38, s38, 3072'); a(f's_add_u32 s38, s38, 0x{YOFF:x}')
        self.bits('v2', 'v0', 'v6', [(0, 1, 4), (4, 2, 5)])
        self.bits('v4', 'v0', 'v6', [(1, 1, 0), (3, 1, 2), (2, 1, 3)])
        a('s_lshl_b32 s98, s3, 13'); a(f's_add_u32 s98, s98, {self.RING0}'); a('s_movk_i32 s99, 1024')
        a('s_mul_i32 s32, s3, 7168'); a(f's_add_u32 s32, s32, {self.RING0}')
        a('s_waitcnt lgkmcnt(0)')
        self.srd(16, 86, 0x20000000)
        for i in range(3): a(f'buffer_store_dwordx4 v[20:23], v1, {WS}, s38 offen offset:{i * 1024} sc1')
        self.stamp(0, None, 28)
        a('s_cmp_lt_u32 s2, 16'); a('s_cbranch_scc1 L_roleOQ')
        if self.hq:
            self.srd(20, 70, 448 * 8192)
            self.bits('v6', 'v0', 'v7', [(0, 5, 4), (5, 1, 13)])
            a('s_sub_u32 s38, s2, 16'); a('s_lshl_b32 s38, s38, 9'); a('s_lshl_b32 s39, s3, 14'); a('s_add_u32 s38, s38, s39')
            a(f's_add_u32 s38, s38, {self.hq[0] * 64 * 8192}')
            for i in range(8 * (self.hq[1] - self.hq[0])):
                a(f'buffer_load_dwordx4 v[64:67], v6, {W1}, s38 offen {self.hpol}'); a('s_add_u32 s38, s38, 65536')
        a('s_cmp_lt_u32 s2, 30'); a('s_cbranch_scc1 L_roleF')
    def consts(self):
        a = self.a
        a('v_and_b32 v6, 1, v0'); a('v_cmp_eq_u32 vcc, 1, v6')
        a('v_mov_b32 v3, 0x44444444'); a('v_mov_b32 v6, 0xeeeeeeee'); a('v_cndmask_b32 v3, v3, v6, vcc')
        self.bits('v9', 'v0', 'v6', [(0, 5, 3), (5, 1, 10)])
        a('v_mul_u32_u24 v5, 6144, v6'); a('s_mul_i32 s38, s3, 1792'); a('v_add3_u32 v5, v5, v9, s38')
        a(f's_mov_b32 s57, 0x{OOB:x}'); a(f's_mov_b32 s56, 0x{OOB:x}'); a('s_mov_b32 s49, -1')
    def announce(self, tag):
        a = self.a
        a('s_getreg_b32 s38, hwreg(HW_REG_XCC_ID)'); a('s_and_b32 s38, s38, 15'); a('s_mul_i32 s39, s38, s38')
        a('s_lshl_b32 s38, s38, 6'); a('s_lshl_b32 s39, s39, 16'); a('s_add_u32 s38, s38, s39'); a('s_add_u32 s38, s38, 1')
        a('s_lshl_b32 s55, s38, 5')
        self.vmwait(tag); a('s_barrier')
        l = self.lab('L_an')
        a('s_cmp_lg_u32 s3, 0'); a(f's_cbranch_scc1 {l}')
        a('s_mov_b64 exec, 1'); a('v_mov_b32 v6, 0'); a('v_mov_b32 v7, s38')
        a(f'global_atomic_add v6, v7, {DBG} sc1')
        a('s_mov_b64 exec, -1')
        a.label(l)
        self.stamp(21, None, 28)
    def ready(self, streams=False):
        a = self.a
        self.stamp(22, None, 28)
        self.wait_counter()
        a('v_readfirstlane_b32 s38, v21'); a('s_cmp_eq_u32 s38, s55')
        a(f's_cselect_b32 s57, 0, 0x{OOB:x}'); a(f's_cselect_b32 s56, 0x{OOB:x}, 0')
        if streams:
            l = self.lab('L_cs')
            a.label(l)
            self.timeout()
            a(f'global_load_dword v21, v20, {DBG} offset:128 sc1'); a('s_waitcnt vmcnt(0)')
            a(f'v_cmp_gt_u32 vcc, {16 * NC}, v21'); a(f's_cbranch_vccnz {l}')
        self.stamp(1, None, 28)
    def lstore(self, op, data, voff, sp, ss):
        self.a(f'buffer_store_{op} {data}, {voff}, {WS}, {sp} offen')
        self.a(f'buffer_store_{op} {data}, {voff}, {WS}, {ss} offen sc1')
    def dma_sub(self, name, srd, voff, tab, adv):
        a = self.a
        a.label(name)
        for e in range(8):
            a(f'buffer_load_dwordx4 {voff}, {srd}, s{tab + e} offen nt lds')
            if e < 7: a('s_add_u32 m0, m0, s99')
        a(f'v_add_u32 {voff}, 0x{adv:x}, {voff}')
        a('s_setpc_b64 s[96:97]')
    def dma_subB(self, name, srd, voff):
        a = self.a
        a.label(name)
        for cb in range(7):
            a(f'buffer_load_dwordx4 {voff}, {srd}, 0 offen offset:{128 * cb} nt lds')
            if cb < 6: a('s_add_u32 m0, m0, 896')
        a(f'v_add_u32 {voff}, 0x{32 * 896:x}, {voff}')
        a('s_setpc_b64 s[96:97]')
    def issue(self, p):
        self.a(f's_add_u32 m0, {"s32" if p["B"] else "s98"}, {p["slot"] * 32768}'); self.a(f's_call_b64 s[96:97], {p["sub"]}')
        self.cq += [id(p)] * (7 if p['B'] else 8)
    def readout(self, p, sel=None):
        self.a(f'v_add_u32 v6, {self.RING0 + p["slot"] * 32768}, {"v5" if p["B"] else "v9"}')
        for d, imm in p['rd']:
            if sel is None or sel(d): self.a(f'ds_read_b64_tr_b16 {rr(d, 2)}, v6 offset:{imm}')
    def consume(self, p, nxt=None):
        self.vmwait(id(p)); self.a('s_waitcnt lgkmcnt(0)'); self.a('s_barrier')
        if nxt:
            assert nxt['slot'] == self.lastslot, (nxt['slot'], self.lastslot)
            self.issue(nxt)
        self.readout(p); self.lastslot = p['slot']
    def table(self, tab, rs):
        for e in range(8): self.a(f's_mov_b32 s{tab + e}, 0x{(16 * (e & 1) + 2 * ((e >> 1) & 1) + 32 * (e >> 2)) * rs:x}')
    def typeB(self, voff, rowbase_s):
        a = self.a
        a('s_and_b32 s38, s3, 1'); a('s_lshl_b32 s38, s38, 4'); a(f's_add_u32 s38, s38, {rowbase_s}'); a('s_and_b32 s39, s3, 2'); a('s_add_u32 s38, s38, s39')
        a(f'v_add_u32 v6, s38, v4'); a(f'v_mad_u32_u24 {voff}, v6, s99, v2'); a(f'v_lshlrev_b32 v6, 7, v6'); a(f'v_sub_u32 {voff}, {voff}, v6')
    def typeB_reads(self, breg, ks, half):
        return [(breg(jj, ks) + 2 * (e1 + 2 * half), 2 * e1 * 7168 + jj * 256) for jj in range(7) for e1 in range(2)]
    def x0off(self):
        a = self.a
        a(f'v_mov_b32 v10, 0x{OOB:x}')
        self.bits('v6', 'v0', 'v7', [(0, 4, 3), (4, 1, 2), (5, 1, 7)])
        a('s_mul_i32 s38, s3, 224'); a('s_lshl_b32 s39, s3, 5'); a(f's_add_u32 s39, s39, {896 - 224}')
        a('v_cmp_gt_u32 vcc, 224, v6')
        a('v_add_u32 v15, s38, v6'); a('v_add_u32 v6, s39, v6')
        a('v_cndmask_b32 v12, v10, v15, vcc'); a('v_cndmask_b32 v15, v6, v15, vcc')
        a('s_lshl_b32 s38, s3, 9'); a('v_lshl_add_u32 v14, v0, 3, s38'); a('v_cndmask_b32 v14, v10, v14, vcc')
    def gather_offs(self):
        a = self.a
        self.bits('v13', 'v0', 'v6', [(0, 4, 4), (4, 2, 12)])
        a('s_lshl_b32 s38, s3, 8'); a('v_add_u32 v13, s38, v13'); a(f'v_lshl_add_u32 v{self.vRO}, v0, 2, s38')
        a('v_cmp_gt_u32 vcc, 48, v0'); a('v_mov_b32 v18, 0'); a('v_mov_b32 v19, 0'); a('v_cndmask_b32 v8, v10, v13, vcc')
        a('v_and_b32 v6, 8, v0'); a('v_cmp_eq_u32 vcc, 8, v6'); a('v_mov_b32 v6, 0x3c00'); a('v_mov_b32 v7, 0x3c000000')
        a('v_cndmask_b32 v6, v6, v7, vcc'); a('v_and_b32 v7, 7, v0')
        for r, key in enumerate((0, 1, 4, 5)):
            a(f'v_cmp_eq_u32 vcc, {key}, v7'); a('s_nop 1'); a(f'v_cndmask_b32 v{self.vAC + r}, 0, v6, vcc')
    def resid_poll(self, soff):
        a = self.a; l = self.lab('L_rp')
        a.label(l)
        self.timeout()
        a(f'buffer_load_dwordx2 v[16:17], v14, {WS}, {soff} offen sc1'); a('s_waitcnt vmcnt(0)')
        a('v_max_u32 v6, v16, v17'); a('v_cmp_eq_u32 vcc, -1, v6'); a(f's_cbranch_vccnz {l}')
    def gather_sum(self, soff, G, full):
        a = self.a; l = self.lab('L_g'); d = self.lab('L_gd')
        a.label(l)
        self.timeout()
        for i in range(4): a(f'buffer_load_dwordx4 {vr(G + 4 * i, 4)}, {"v13" if full or i < 2 else "v8"}, {WS}, {soff} offen offset:{1024 * i} sc1')
        for i in range(4):
            a(f's_waitcnt vmcnt({3 - i})')
            a(f'v_mfma_f32_16x16x32_f16 v[20:23], {vr(self.vAC, 4)}, {vr(G + 4 * i, 4)}, {"v[16:19]" if i == 0 else "v[20:23]"}')
        a('v_cmp_u_f32 vcc, v20, v21')
        a('v_cvt_pk_bf16_f32 v24, v20, v21')
        a(f's_cbranch_vccz {d}')
        self.maxtree(range(G, G + 16), 6)
        a(f's_cbranch_vccnz {l}')
        a.label(d)
    def xrow_ops(self, sp, ss):
        return ['v_lshlrev_b32 v20, 16, v24', 'v_and_b32 v21, 0xffff0000, v24',
                f'buffer_store_dwordx2 v[20:21], v14, {WS}, {sp} offen', f'buffer_store_dwordx2 v[20:21], v14, {WS}, {ss} offen sc1']
    def stats_ops(self, X):
        o = []
        for i in range(4):
            o += [f'v_lshlrev_b32 v26, 16, v{X+i}', f'v_and_b32 v27, 0xffff0000, v{X+i}']
            if i == 0: o += ['v_add_f32 v28, v26, v27', 'v_mul_f32 v30, v26, v26', 'v_fmac_f32 v30, v27, v27']
            else: o += ['v_add_f32 v28, v28, v26', 'v_fmac_f32 v30, v26, v26', 'v_add_f32 v28, v28, v27', 'v_fmac_f32 v30, v27, v27']
        o += [f'v_mov_b32 v26, 0x{f2u(1/448):x}', f'v_mov_b32 v27, 0x{f2u(1e-5):x}', 'v_permlane16_swap_b32 v28, v30', 'v_add_f32 v28, v28, v30']
        for c in ('quad_perm:[1,0,3,2]', 'quad_perm:[2,3,0,1]', 'row_ror:4'):
            o += [None, f'v_add_f32_dpp v28, v28, v28 {c} {FULL}']
        o += [None, f'v_add_f32_dpp v29, v28, v28 row_ror:8 {FULL}', f'v_add_f32_dpp v28, v28, v28 row_ror:8 {FULL}', None,
              'v_permlane32_swap_b32 v28, v29', 'v_add_f32 v28, v28, v29', None,
              'v_readlane_b32 s58, v28, 0', 'v_readlane_b32 s59, v28, 16', None,
              'v_mul_f32 v24, s58, v26', 'v_fmac_f32 v27, s59, v26',
              'v_fma_f32 v27, -v24, v24, v27', 'v_rsq_f32 v25, v27']
        return o
    def gemv(self, ntile, nks, breg, acc, A, fill=(), nother=0):
        a = self.a; fill = list(fill)
        for ks in range(nks):
            a(f's_waitcnt lgkmcnt({min(15, nks - 1 - ks + nother)})')
            for jj in range(ntile):
                a(f'v_smfmac_f32_16x16x64_bf16 {vr(acc + 4 * jj, 4)}, {vr(A + 4 * ks, 4)}, {rr(breg(jj, ks), 8)}, v3')
                for _ in range(2):
                    if fill:
                        x = fill.pop(0)
                        if x: a(x)
        for x in fill:
            if x: a(x)
    def zero(self, base, n):
        for i in range(0, n, 2): self.a(f'v_mov_b64 {vr(base + i, 2)}, 0')
    def rowsel(self, dst, acc, tiles_masks):
        for jj, rm in tiles_masks:
            self.a(f'v_add_f32_dpp v{dst}, v{acc + 4*jj}, v{acc + 4*jj + 1} quad_perm:[0,1,2,3] row_mask:0x{rm:x} bank_mask:0xf')
    def rowout(self, acc, sp, ss):
        a = self.a
        for jj in range(4): self.rowsel(20, acc, [(jj, 1 << jj)])
        for jj in range(3): self.rowsel(21, acc, [(4 + jj, 1 << jj)])
        a('v_cvt_pk_f16_f32 v20, v20, v21'); a('v_min_u32 v20, -2, v20')
        self.lstore('dword', 'v20', f'v{self.vRO}', sp, ss)
    def calc_ib(self):
        a = self.a
        a('s_bfe_u32 s50, s49, 0x20001'); a('s_and_b32 s38, s49, 1'); a('s_lshl_b32 s38, s38, 2'); a('s_add_u32 s50, s50, s38')
    def colsum(self, ntile, nks, breg, acc):
        a = self.a
        for r in range(4): a(f'v_mov_b32 v{20 + r}, 0x3f803f80')
        self.zero(acc, 4 * ntile)
        for ks in range(nks):
            for jj in range(ntile):
                a(f'v_smfmac_f32_16x16x64_bf16 {vr(acc + 4 * jj, 4)}, v[20:23], {rr(breg(jj, ks), 8)}, v3')
    def pinit(self, ib0):
        a = self.a
        for r in range(20, 24): a(f'v_mov_b32 v{r}, -1')
        a(f's_add_u32 s38, s3, {ib0}'); a('s_lshl_b32 s38, s38, 18'); a('s_add_u32 s38, s38, s41')
        a('v_lshlrev_b32 v6, 4, v0')
        for i in range(16):
            if i and i % 4 == 0: a('s_add_u32 s38, s38, 4096')
            self.vm(f'buffer_store_dwordx4 v[20:23], v6, {WS}, s38 offen offset:{(i % 4) * 1024} sc1', 'pinit')

    def roleOQ(self):
        a = self.a
        TOG = ['v_xor_b32 v15, 0x400, v15', 'v_xor_b32 v2, 0x400, v2', 'v_xor_b32 v1, 0x400, v1', f'v_xor_b32 v{self.vOW}, 0x400, v{self.vOW}']
        def qreg(jj, ks): return 96 + (ks * 4 + jj) * 8
        def oreg(jj, ks):
            if ks == 3 and jj < 4: return 288 + 8 * jj
            i = jj * 3 + ks if ks < 3 else 21 + jj - 4
            return 320 + 8 * i
        inwin = lambda d: 288 <= d < 320
        X0 = 4
        self.dma_sub('L_dmaQ', W1, f'v{self.vDQ}', 88, 64 * 8192)
        self.dma_subB('L_dmaO', W2, f'v{self.vDO}')
        P = 76; ML = 92; ACC = 48; A = 76
        a.label('L_Osub')
        self.calc_ib()
        a('s_lshl_b32 s44, s50, 18'); a('s_add_u32 s44, s44, s41')
        a('s_add_u32 s45, s44, 4096'); a('s_add_u32 s46, s44, 8192'); a('s_add_u32 s47, s44, 12288')
        a('s_lshl_b32 s48, s50, 14'); a('s_add_u32 s48, s48, s40'); a('s_add_u32 s51, s48, s56'); a('s_add_u32 s48, s48, s57')
        self.zero(ACC, 28)
        a('s_cmp_lt_i32 s49, 0'); a('s_cbranch_scc1 L_Ook')
        a.label('L_Oheavy')
        self.timeout()
        a(f'buffer_load_dwordx2 {vr(ML, 2)}, v{self.vMLO}, {WS}, s44 offen sc1')
        for n in range(4): a(f'buffer_load_dwordx4 {vr(P + 4*n, 4)}, v{self.vPO2 if n == 3 else self.vPO}, {WS}, s{44+n} offen sc1')
        a('s_waitcnt vmcnt(4)')
        a(f'v_max_f32_dpp v20, v{ML}, v{ML} quad_perm:[1,0,3,2] {FULL}')
        for c in ('quad_perm:[2,3,0,1]', 'row_ror:4', 'row_ror:8'): a(f'v_max_f32_dpp v20, v20, v20 {c} {FULL}')
        a(f'v_sub_f32 v20, v{ML}, v20'); a('v_exp_f32 v20, v20'); a('v_cndmask_b32 v20, 0, v20, s[42:43]')
        a(f'v_mul_f32 v21, v20, v{ML+1}')
        lred = [f'v_add_f32_dpp v21, v21, v21 {c} {FULL}' for c in ('quad_perm:[1,0,3,2]', 'quad_perm:[2,3,0,1]', 'row_ror:4', 'row_ror:8')]
        for n in range(4):
            a(f's_waitcnt vmcnt({3 - n})')
            for r in range(4):
                a(f'v_{"mul" if n == 0 else "fmac"}_f32_dpp v{24 + r}, v20, v{P + 4*n + r} row_newbcast:{n} {FULL}')
            a(lred[n])
        a('v_permlane16_swap_b32 v24, v25'); a('v_permlane16_swap_b32 v26, v27'); a('v_rcp_f32 v21, v21')
        a('v_add_f32 v24, v24, v25'); a('v_add_f32 v26, v26, v27')
        a('v_permlane32_swap_b32 v24, v26'); a('v_add_f32 v24, v24, v26'); a('v_mul_f32 v24, v24, v21')
        a('v_cmp_u_f32 vcc, v24, v24')
        a('v_cvt_pk_bf16_f32 v24, v24, v24')
        a('s_cbranch_vccz L_Ook')
        self.maxtree(list(range(P, P + 16)) + [ML, ML + 1], 6)
        a('s_cbranch_vccnz L_Oheavy')
        a.label('L_Ook')
        a(f'ds_write_b16 v{self.vOW}, v24'); a('s_waitcnt lgkmcnt(0)'); a('s_barrier')
        for ks in range(4): a(f'ds_read_b128 {vr(A + 4*ks, 4)}, v2 offset:{128 * ks}')
        self.stamp(3, 's49', 28)
        self.gemv(7, 4, oreg, ACC, A, fill=TOG + ['v_mov_b32 v21, 0'])
        self.rowout(ACC, 's48', 's51')
        self.stamp(12, 's49', 28)
        a('s_add_u32 s49, s49, 1')
        a('s_setpc_b64 s[34:35]')
        G = 64; ACC = 48; A = 64; X = 92
        a.label('L_Qsub')
        self.zero(ACC, 16)
        a('s_lshl_b32 s44, s53, 13'); a('s_add_u32 s44, s44, s54')
        a('s_lshl_b32 s38, s53, 11'); a(f's_add_u32 s47, s38, 0x{XAOFF - 4 * 2048:x}')
        a('s_add_u32 s45, s38, s33'); a('s_add_u32 s46, s45, s56'); a('s_add_u32 s45, s45, s57')
        a('s_lshl_b32 s48, s53, 14'); a(f's_add_u32 s48, s48, 0x{ZOFF - 4 * 16384:x}')
        a('s_cmp_lt_u32 s53, 4'); a('s_cbranch_scc1 L_Qx')
        self.resid_poll('s47')
        self.gather_sum('s48', G, False)
        a.label('L_Qx')
        a('ds_write_b32 v15, v24'); a('s_waitcnt lgkmcnt(0)'); a('s_barrier')
        for ks in range(7): a(f'ds_read_b128 {vr(A + 4*ks, 4)}, v2 offset:{128 * ks}')
        a(f'ds_read_b128 {vr(X, 4)}, v1')
        for x in self.xrow_ops('s45', 's46'): a(x)
        self.stamp(24, 's53', 28)
        fill = TOG + [None, 's_waitcnt lgkmcnt(0)'] + self.stats_ops(X)
        self.gemv(4, 7, qreg, ACC, A, fill=fill, nother=1)
        a(f'v_mul_f32 v21, v24, v{self.vCS}')
        self.rowsel(20, ACC, [(jj, 1 << jj) for jj in range(4)])
        a('v_sub_f32 v20, v20, v21'); a('v_mul_f32 v20, v20, v25')
        a('v_cvt_pk_bf16_f32 v20, v20, v20'); a('v_min_u32 v20, -2, v20')
        a(f'buffer_store_short v20, v{self.vQS}, {WS}, s44 offen sc1')
        self.stamp(33, 's53', 28)
        a('s_add_u32 s53, s53, 1')
        a('s_setpc_b64 s[34:35]')
        a.label('L_roleOQ')
        self.cq = ['init']
        self.bits('v6', 'v0', 'v7', [(0, 5, 4), (5, 1, 13)])
        a('s_lshl_b32 s38, s2, 9'); a('s_lshl_b32 s39, s3, 14'); a('s_add_u32 s39, s39, s38')
        self.vm(f'buffer_store_dwordx4 v[20:23], v6, {WS}, s39 offen sc1', 'init')
        self.srd(20, 70, 448 * 8192)
        a('s_lshl_b32 s39, s3, 7'); a('s_add_u32 s38, s38, s39')
        a(f'v_lshl_add_u32 v{self.vDQ}, v4, 13, s38'); a(f'v_add_u32 v{self.vDQ}, v{self.vDQ}, v2')
        self.table(88, 8192)
        pq = [dict(sub='L_dmaQ', B=0, slot=ks % 4, rd=[(qreg(jj, ks) + 2 * rp, rp * 2048 + jj * 256) for jj in range(4) for rp in range(4)]) for ks in range(7)]
        po = [dict(sub='L_dmaO', B=1, slot=(3, 0, 1)[i % 3], rd=self.typeB_reads(oreg, i // 2, i % 2)) for i in range(8)]
        self.issue(pq[0])
        self.srd(28, 64, 3584)
        XL = 48
        a(f'v_mov_b32 v10, 0x{OOB:x}')
        a('v_cmp_gt_u32 vcc, 56, v0'); a('v_bfe_u32 v7, v0, 2, 2'); a('v_mul_u32_u24 v7, 896, v7'); a('v_cndmask_b32 v6, v10, v1, vcc')
        for b in range(4): self.vm(f'buffer_load_dwordx4 {vr(XL + 4 * b, 4)}, v6, {W3}, 0 offen offset:{b * 896}', 'xl')
        a('v_add_u32 v7, v7, v2')
        a('s_mov_b32 s38, 0x3f803f80'); a('s_mov_b32 s39, s38')
        for r in range(0, 28, 2): a(f'v_mov_b64 {vr(A + r, 2)}, s[38:39]')
        a('s_mov_b32 exec_lo, 0x33333333'); a('s_mov_b32 exec_hi, 0x33333333')
        for ks in range(7): self.vm(f'buffer_load_dwordx4 {vr(A + 4 * ks, 4)}, v7, {W3}, 0 offen offset:{128 * ks}', 'xa')
        a('s_mov_b64 exec, -1')
        self.issue(pq[1])
        self.srd(24, 72, 4096 * 896)
        a('s_lshl_b32 s39, s2, 8')
        self.typeB(f'v{self.vDO}', 's39')
        self.consts(); a('s_lshl_b32 s38, s3, 13'); a('v_add_u32 v9, s38, v9')
        self.announce('init')
        self.issue(pq[2])
        self.vmwait('xl')
        for b in range(4):
            for x in self.stats_ops(XL + 4 * b):
                if x: a(x)
            a(f'v_mov_b32_dpp v92, v24 quad_perm:[0,1,2,3] row_mask:0x{1 << b:x} bank_mask:0xf')
            a(f'v_mov_b32_dpp v93, v25 quad_perm:[0,1,2,3] row_mask:0x{1 << b:x} bank_mask:0xf')
        self.issue(pq[3])
        self.zero(ACC, 16)
        self.bits('v94', 'v0', 'v6', [(0, 1, 1), (2, 1, 2), (3, 1, 4), (1, 1, 5), (4, 2, 13)])
        a('s_lshl_b32 s38, s3, 7'); a('s_lshl_b32 s44, s2, 9'); a('s_add_u32 s44, s38, s44')
        nxt = {1: pq[4], 2: pq[5], 3: pq[6], 4: po[0], 5: po[1]}
        def q1mm(ks):
            for jj in range(4): a(f'v_smfmac_f32_16x16x64_bf16 {vr(ACC + 4 * jj, 4)}, {vr(A + 4 * ks, 4)}, {rr(qreg(jj, ks), 8)}, v3')
        for i in range(7):
            self.consume(pq[i], nxt.get(i))
            if i: q1mm(i - 1)
        a('s_waitcnt lgkmcnt(0)')
        q1mm(6)
        self.stamp(20, None, 28)
        for jj in range(4):
            a(f'v_add_f32 v{20 + jj}, v{ACC + 4*jj}, v{ACC + 4*jj + 1}'); a(f'v_add_f32 v{24 + jj}, v{ACC + 4*jj + 2}, v{ACC + 4*jj + 3}')
        for jj in range(4): a(f'v_fma_f32 v{20 + jj}, -v92, v{24 + jj}, v{20 + jj}')
        for jj in range(4): a(f'v_mul_f32 v{20 + jj}, v{20 + jj}, v93')
        for jj in range(4): a(f'v_cvt_pk_bf16_f32 v{20 + jj}, v{20 + jj}, v{20 + jj}')
        for jj in range(4): a(f'v_min_u32 v{20 + jj}, -2, v{20 + jj}')
        for jj in range(4): self.vm(f'buffer_store_short v{20 + jj}, v94, {WS}, s44 offen offset:{(jj & 1) * 8 + (jj >> 1) * 64} sc1')
        for jj in range(4): a(f'v_mov_b32_dpp v{self.vCS}, v{24 + jj} quad_perm:[0,1,2,3] row_mask:0x{1 << jj:x} bank_mask:0xf')
        self.stamp(35, None, 28)
        self.issue(po[2])
        a(f's_lshl_b32 s41, s2, 14'); a(f's_add_u32 s41, s41, 0x{POFF:x}')
        self.x0off(); self.gather_offs()
        a('s_lshl_b32 s40, s2, 10'); a(f's_add_u32 s40, s40, 0x{YOFF:x}')
        PO, PO2, MO, OW = self.vPO, self.vPO2, self.vMLO, self.vOW
        self.bits(f'v{PO}', 'v0', 'v6', [(0, 4, 4), (4, 2, 10)])
        a('s_lshl_b32 s38, s3, 8'); a(f'v_add_u32 v{PO}, s38, v{PO}')
        a('v_cmp_gt_u32 vcc, 32, v0'); a('v_lshrrev_b32 v6, 4, v0'); a('v_bfe_u32 v7, v0, 2, 2'); a(f'v_cndmask_b32 v{PO2}, v10, v{PO}, vcc')
        a('v_add_u32 v6, v6, v7'); a('v_and_b32 v6, 3, v6')
        a('v_and_b32 v7, 3, v0'); a('v_lshl_add_u32 v6, v7, 2, v6')
        a(f'v_cmp_gt_u32 s[42:43], {NC}, v6'); a(f'v_min_u32 v6, {NC - 1}, v6'); a(f'v_lshlrev_b32 v{MO}, 7, v6'); a(f'v_add_u32 v{MO}, {MLO}, v{MO}')
        self.bits(f'v{OW}', 'v0', 'v6', [(4, 2, 1), (0, 3, 4), (3, 1, 8)])
        a('s_lshr_b32 s38, s3, 1'); a('s_lshl_b32 s38, s38, 7'); a('s_and_b32 s39, s3, 1'); a('s_lshl_b32 s39, s39, 3'); a('s_add_u32 s38, s38, s39')
        a(f'v_add_u32 v{OW}, s38, v{OW}')
        self.bits(f'v{self.vQS}', 'v0', 'v6', [(0, 1, 1), (2, 1, 2), (4, 1, 3), (3, 1, 4), (1, 1, 5), (5, 1, 6)])
        a('s_lshl_b32 s38, s3, 7'); a(f'v_add_u32 v{self.vQS}, s38, v{self.vQS}')
        a('s_cmp_eq_u32 s2, 0'); a(f's_cselect_b32 s33, 0x{XBOFF - 4 * 2048:x}, s57')
        a('s_mov_b32 s53, 3'); a(f's_mov_b32 s54, 0x{OOB:x}')
        for i in range(8):
            self.consume(po[i], po[i + 2] if 1 <= i < 6 else None)
            if i == 1: a('s_call_b64 s[34:35], L_Osub')
            if i == 2: a('s_call_b64 s[34:35], L_Qsub'); a('s_lshl_b32 s54, s2, 9')
        self.ready(True)
        a.label('L_OQloop')
        a('s_call_b64 s[34:35], L_Osub')
        self.readout(pq[6])
        a('s_call_b64 s[34:35], L_Qsub')
        self.readout(po[6], inwin); self.readout(po[7], inwin)
        a('s_call_b64 s[34:35], L_Osub')
        a('s_cmp_lt_u32 s49, 8'); a('s_cbranch_scc1 L_OQloop')
        a('s_endpgm')

    def roleF(self):
        a = self.a
        self.dma_sub('L_dmaG', W1, 'v44', 88, 64 * 3584)
        self.dma_subB('L_dmaD', W3, 'v11')
        breg = lambda jj, ks: 256 + (jj * 7 + ks) * 8
        def dreg(jj, ks):
            i = jj * 2 + ks
            return 256 + 224 + 8 * i if i < 4 else 176 + 8 * (i - 4)
        G = 64; ACC = 48; A = 96; X = 124; CSUM = self.vCS; ACD = 128; X0 = 160
        a.label('L_Fsub')
        self.calc_ib()
        self.zero(ACC, 16); self.zero(ACD, 28)
        a('s_lshl_b32 s38, s50, 14'); a(f's_add_u32 s48, s38, 0x{YOFF:x}')
        a('s_add_u32 s44, s38, s40'); a('s_add_u32 s51, s44, s56'); a('s_add_u32 s44, s44, s57')
        a('s_lshl_b32 s38, s50, 11'); a(f's_add_u32 s47, s38, 0x{XBOFF - 4 * 2048:x}')
        a('s_add_u32 s45, s38, s41'); a('s_add_u32 s46, s45, s56'); a('s_add_u32 s45, s45, s57')
        a('s_cmp_lt_i32 s49, 0'); a('s_cbranch_scc1 L_Fx')
        a('s_bitcmp1_b32 s49, 0'); a('s_cbranch_scc1 L_Fr')
        a(f'v_lshlrev_b32 v16, 16, v{X0}'); a(f'v_and_b32 v17, 0xffff0000, v{X0}')
        for i in range(3): a(f'v_mov_b32 v{X0 + i}, v{X0 + i + 1}')
        a('s_branch L_Fg')
        a.label('L_Fr')
        self.resid_poll('s47')
        a.label('L_Fg')
        self.gather_sum('s48', G, True)
        a.label('L_Fx')
        a('ds_write_b32 v15, v24'); a('s_waitcnt lgkmcnt(0)'); a('s_barrier')
        for ks in range(7): a(f'ds_read_b128 {vr(A + 4*ks, 4)}, v2 offset:{128 * ks}')
        a(f'ds_read_b128 {vr(X, 4)}, v1')
        for x in self.xrow_ops('s45', 's46'): a(x)
        self.stamp(3, 's49', 28)
        fill = [None] * 5 + ['s_waitcnt lgkmcnt(0)'] + self.stats_ops(X)
        self.gemv(4, 7, breg, ACC, A, fill=fill, nother=1)
        a(f'v_mul_f32 v22, v24, v{CSUM}'); a(f'v_mul_f32 v23, v24, v{CSUM+1}'); a('v_mul_f32 v25, v25, v25')
        for jj in (0, 2, 1, 3): self.rowsel(20 + jj // 2, ACC, [(jj, 10 if jj & 1 else 5)])
        a('v_sub_f32 v20, v20, v22'); a('v_sub_f32 v21, v21, v23')
        a('v_max_f32 v20, 0, v20'); a('v_mul_f32 v21, v21, v25'); a('v_mul_f32 v20, v20, v21')
        a('v_cvt_pk_bf16_f32 v20, v20, v20')
        a('ds_write_b16 v40, v20'); a('s_waitcnt lgkmcnt(0)'); a('s_barrier')
        for ks in range(2): a(f'ds_read_b128 {vr(A + 4*ks, 4)}, v2 offset:{2048 + 128 * ks}')
        a('v_mov_b32 v21, 0')
        self.gemv(7, 2, dreg, ACD, A)
        self.rowout(ACD, 's44', 's51')
        self.stamp(12, 's49', 28)
        a('s_add_u32 s49, s49, 1')
        a('s_cmp_eq_u32 s49, 0'); a('s_cbranch_scc1 L_Fret')
        a('s_cmp_lt_u32 s49, 8'); a('s_cbranch_scc1 L_Fsub')
        a('s_endpgm')
        a.label('L_roleF')
        self.cq = ['init'] + ['hq'] * (8 * (self.hq[1] - self.hq[0]) if self.hq else 0)
        a('s_cmp_lt_u32 s3, 2'); a('s_cselect_b64 s[20:21], s[76:77], s[78:79]'); a(f's_mov_b32 s22, 0x{448 * 3584:x}'); a('s_mov_b32 s23, 0x20000')
        a('s_sub_u32 s2, s2, 16')
        a('v_mul_u32_u24 v6, 3584, v4')
        a('s_lshl_b32 s38, s2, 8'); a('s_and_b32 s39, s3, 1'); a('s_lshl_b32 s39, s39, 7'); a('s_add_u32 s38, s38, s39')
        a('v_add3_u32 v44, v6, v2, s38')
        self.table(88, 3584)
        pl = [dict(sub='L_dmaG', B=0, rd=[(breg(jj, ks) + 2 * rp, (jj >> 1) * 16384 + rp * 2048 + (jj & 1) * 256) for jj in range(4) for rp in range(4)]) for ks in range(7)]
        pl += [dict(sub='L_dmaD', B=1, rd=self.typeB_reads(dreg, i // 2, i % 2)) for i in range(4)]
        for i, p in enumerate(pl): p['slot'] = i % 4
        if self.hq: self.announce('init')
        for i in range(2): self.issue(pl[i])
        self.srd(28, 80, 1792 * 896); self.srd(68, 64, 3584)
        a('s_lshl_b32 s39, s2, 7')
        self.typeB('v11', 's39')
        self.consts()
        a('s_lshr_b32 s38, s3, 1'); a('s_lshl_b32 s38, s38, 13'); a('s_and_b32 s39, s3, 1'); a('s_lshl_b32 s39, s39, 9'); a('s_add_u32 s38, s38, s39'); a('v_add_u32 v9, s38, v9')
        self.x0off(); self.gather_offs()
        for b in range(4): self.vm(f'buffer_load_dword v{X0 + b}, v12, s[68:71], 0 offen offset:{b * 896}', 'x0')
        a('v_and_b32 v6, 31, v0'); a('s_lshl_b32 s38, s3, 6'); a('s_add_u32 s38, s38, 2048'); a('v_lshl_add_u32 v40, v6, 1, s38')
        a('s_lshl_b32 s40, s2, 10'); a(f's_add_u32 s40, s40, 0x{ZOFF:x}')
        a('s_cmp_eq_u32 s2, 0'); a(f's_cselect_b32 s41, 0x{XAOFF:x}, s57')
        if not self.hq: self.announce('init')
        self.issue(pl[2])
        a('s_branch L_Fsub')
        a.label('L_Fret')
        self.issue(pl[3])
        for i in range(11):
            self.consume(pl[i], pl[i + 3] if 1 <= i < 8 else None)
            if i == 7:
                self.stamp(20, None, 28)
                self.colsum(4, 7, breg, ACC)
                self.rowsel(CSUM, ACC, [(0, 5), (1, 10)]); self.rowsel(CSUM + 1, ACC, [(2, 5), (3, 10)])
        self.ready()
        a('s_branch L_Fsub')

    def roleW(self):
        a = self.a
        self.cq = ['init'] + ['hq'] * (8 * (self.hq[1] - self.hq[0]) if self.hq else 0)
        self.consts()
        self.announce('init')
        a('s_sub_u32 s2, s2, 30')
        if self.hpf: self.helper()
        a('s_cmp_lg_u32 s2, 0'); a('s_cbranch_scc1 L_end')
        self.srd(20, 82, 3584)
        self.x0off(); self.gather_offs()
        self.ready()
        G = 64
        a('s_mov_b32 s49, 0'); a(f's_mov_b32 s47, 0x{XAOFF + 4 * 2048:x}'); a(f's_mov_b32 s48, 0x{ZOFF + 4 * 16384:x}'); a('s_mov_b32 s44, 0')
        a.label('L_Wtop')
        self.resid_poll('s47')
        self.gather_sum('s48', G, False)
        a(f'buffer_store_dword v24, v12, {W1}, s44 offen')
        self.stamp(12, 's49', 28)
        a('s_add_u32 s49, s49, 1'); a('s_add_u32 s47, s47, 2048'); a('s_add_u32 s48, s48, 16384'); a('s_add_u32 s44, s44, 896')
        a('s_cmp_lt_u32 s49, 4'); a('s_cbranch_scc1 L_Wtop')
        a('s_endpgm')
    def helper(self):
        a = self.a
        hq, ho = self.hpf if isinstance(self.hpf, (list, tuple)) else (48, 48)
        a('s_lshl_b32 s38, s2, 2'); a('s_add_u32 s38, s38, s3')
        self.srd(20, 70, 448 * 8192); self.srd(24, 72, 4096 * 896)
        a('s_lshl_b32 s40, s38, 10'); a(f's_add_u32 s40, s40, {(448 - hq) * 8192}')
        l = self.lab('L_hq'); a(f's_mov_b32 s41, {hq}')
        if hq:
            a.label(l)
            a('s_waitcnt vmcnt(11)'); a(f'buffer_load_dwordx4 v[64:67], v1, {W1}, s40 offen {self.hpol}')
            a('s_add_u32 s40, s40, 8192'); a('s_sub_u32 s41, s41, 1'); a('s_cmp_lg_u32 s41, 0'); a(f's_cbranch_scc1 {l}')
        if ho:
            a('s_mul_i32 s40, s38, 458752'); a(f's_add_u32 s40, s40, {229376 - ho * 1024}'); a('s_add_u32 s42, s40, 229376')
            l = self.lab('L_ho'); a(f's_mov_b32 s41, {ho}')
            a.label(l)
            a('s_waitcnt vmcnt(10)'); a(f'buffer_load_dwordx4 v[64:67], v1, {W2}, s40 offen {self.hpol}')
            a(f'buffer_load_dwordx4 v[64:67], v1, {W2}, s42 offen {self.hpol}')
            a('s_add_u32 s40, s40, 1024'); a('s_add_u32 s42, s42, 1024'); a('s_sub_u32 s41, s41, 1'); a('s_cmp_lg_u32 s41, 0'); a(f's_cbranch_scc1 {l}')
        a('s_waitcnt vmcnt(0)')
        self.stamp(20, None, 28)

if __name__ == '__main__':
    kw = json.loads(sys.argv[2]) if len(sys.argv) > 2 else {}
    open(sys.argv[1], 'w').write(Gen(**kw).build())
```

```python
import sys, struct, json
from asmlib import Asm
NAME = "interleave_layers__mha_block_cached__glu_gated_reglu__decode"

QOFF = 0x0; YOFF = 0x10000; ZOFF = 0x30000; XAOFF = 0x50000; XBOFF = 0x54000; POFF = 0x80000; DOFF = 0x400000
PB = 16384; PIB = 16 * PB; MLO = 14336
OOB = 0x40000000
NC = 14; NW = 56
CS = 0.09016844005556021
def f2u(x): return struct.unpack('<I', struct.pack('<f', x))[0]

K_SRD = 's[8:11]'; V_SRD = 's[12:15]'; WS = 's[16:19]'; W1 = 's[20:23]'; W2 = 's[24:27]'; W3 = 's[28:31]'
DBG = 's[84:85]'
NCHAIN = 32
K4 = 's[88:91]'; V4 = 's[92:95]'
FULL = 'row_mask:0xf bank_mask:0xf'

def vr(b, n=1): return f'v{b}' if n == 1 else f'v[{b}:{b+n-1}]'
def ar(b, n=1): return f'a{b}' if n == 1 else f'a[{b}:{b+n-1}]'
def rr(b, n=1): return vr(b, n) if b < 256 else ar(b - 256, n)

class Gen:
    def __init__(self, diag=False, PF=65, depth=8, hpf=True, hpol='nt', cpf=False, rows=(12, 7), hq=(2, 4), fake=0, CL=12):
        self.a = Asm(); self.diag = diag; self.PF = PF; self.depth = depth; self.hpf = hpf; self.hpol = hpol; self.cpf = cpf; self.rows = rows; self.hq = hq; self.fake = fake; self.CL = CL
        self.uid = 0
    def lab(self, p='L'):
        self.uid += 1; return f'{p}_{self.uid}'

    def bits(self, dst, lane, tmp, mp):
        a = self.a; first = True
        for lb, n, ab in mp:
            if first:
                a(f'v_bfe_u32 {dst}, {lane}, {lb}, {n}')
                if ab: a(f'v_lshlrev_b32 {dst}, {ab}, {dst}')
                first = False
            else:
                a(f'v_bfe_u32 {tmp}, {lane}, {lb}, {n}')
                a(f'v_lshl_add_u32 {dst}, {tmp}, {ab}, {dst}')
    def srd(self, base, lo, size):
        a = self.a
        a(f's_mov_b64 s[{base}:{base+1}], s[{lo}:{lo+1}]')
        a(f's_mov_b32 s{base+2}, 0x{size:x}'); a(f's_mov_b32 s{base+3}, 0x20000')
    def timeout(self):
        self.a('s_sub_u32 s52, s52, 1'); self.a('s_cbranch_scc1 L_bail')
    FLAG = 4096
    def mask_addr(self, va, vt):
        self.bits(f'v{va}', 'v0', f'v{vt}', [(0, 2, 3), (2, 1, 7)])
    def mask_load(self, va, vd):
        return f'global_load_dwordx2 v[{vd}:{vd+1}], v{va}, {DBG} sc1'
    def wait_masks(self, va, vd, pre=False):
        a = self.a; l = self.lab('L_cnt'); c = self.lab('L_cntc')
        if pre: a(f's_branch {c}')
        a.label(l)
        self.timeout()
        a(self.mask_load(va, vd)); a('s_waitcnt vmcnt(0)')
        a.label(c)
        a(f'v_cmp_ne_u32 vcc, -1, v{vd}'); a(f's_cbranch_vccnz {l}')
    def claim(self, va, vd, vr_, wide=False):
        a = self.a; l = self.lab('L_cl')
        a('s_cmp_lg_u32 s3, 0'); a(f's_cbranch_scc1 {l}')
        a('s_lshl_b32 s38, 1, s101')
        if wide: a('s_getreg_b32 s39, hwreg(HW_REG_XCC_ID, 0, 4)')
        a('s_mov_b64 exec, 1'); a(f'v_mov_b32 v{va}, s100'); a(f'v_mov_b32 v{vd}, s38')
        if wide:
            a(f'v_mov_b32 v{vd+1}, s39')
            a(f'global_atomic_or_x2 v[{vr_}:{vr_+1}], v{va}, v[{vd}:{vd+1}], {DBG} sc0 sc1')
        else: a(f'global_atomic_or v{vr_}, v{va}, v{vd}, {DBG} sc0 sc1')
        a('s_mov_b64 exec, -1')
        a.label(l)
    def resolve(self, vr_, t):
        a = self.a; l = self.lab('L_rs'); w = self.lab('L_rw')
        assert t % 2 == 0
        a('s_cmp_lg_u32 s3, 0'); a(f's_cbranch_scc1 {l}')
        a(f'v_readfirstlane_b32 s38, v{vr_}'); a('s_bitcmp1_b32 s38, s101'); a('s_movk_i32 s38, 0x100'); a(f's_cbranch_scc0 {w}')
        self.mask_addr(t + 2, t + 3); a(self.mask_load(t + 2, t)); a('s_waitcnt vmcnt(0)')
        a(f'v_cmp_ne_u32 vcc, -1, v{t}'); a('s_cbranch_vccz L_bail')
        a('s_getreg_b32 s39, hwreg(HW_REG_XCC_ID, 0, 3)'); a('s_ff1_i32_b32 s38, vcc_lo')
        a('s_bitcmp1_b32 vcc_lo, s39'); a('s_cselect_b32 s38, s39, s38')
        a('s_nop 3'); a(f'v_readlane_b32 s39, v{t}, s38'); a('s_ff0_i32_b32 s39, s39')
        a('s_lshl_b32 s38, s38, 5'); a('s_add_u32 s38, s38, s39'); a('s_bitset1_b32 s38, 9')
        a.label(w)
        a(f'v_mov_b32 v{t}, 0'); a(f'v_mov_b32 v{t+1}, s38'); a(f'ds_write_b32 v{t}, v{t+1} offset:{self.FLAG}')
        a.label(l)
    def check(self, t):
        a = self.a; l = self.lab('L_ck')
        a(f'v_mov_b32 v{t}, 0')
        a.label(l)
        self.timeout()
        a(f'ds_read_b32 v{t+1}, v{t} offset:{self.FLAG}'); a('s_waitcnt lgkmcnt(0)')
        a(f'v_readfirstlane_b32 s38, v{t+1}'); a('s_cmp_eq_u32 s38, 0'); a(f's_cbranch_scc1 {l}')
        a('s_cmp_lg_u32 s38, 0x100'); a('s_cbranch_scc1 L_redo')
    def stamp(self, idx, sidx=None, t0=20):
        if not self.diag: return
        a = self.a
        a('s_waitcnt lgkmcnt(0)'); a('s_memrealtime s[62:63]'); a('s_waitcnt lgkmcnt(0)')
        a(f'v_mov_b32 v{t0}, s62')
        if sidx: a(f's_lshl_b32 s60, {sidx}, 2'); a('s_add_u32 s60, s60, s61')
        else: a('s_mov_b32 s60, s61')
        a(f'v_mov_b32 v{t0+1}, 0')
        a('s_mov_b64 exec, 1')
        a(f'buffer_store_dword v{t0}, v{t0+1}, {WS}, s60 offen offset:{idx*4}')
        a('s_mov_b64 exec, -1')
    def maxtree(self, regs, t):
        a = self.a; regs = list(regs)
        a(f'v_max3_u32 v{t}, v{regs[0]}, v{regs[1]}, v{regs[2 if len(regs) > 2 else 1]}')
        regs = regs[3:]
        while regs:
            x = regs[:2]; regs = regs[2:]
            a(f'v_max3_u32 v{t}, v{t}, v{x[0]}, v{x[-1]}')
        a(f'v_cmp_eq_u32 vcc, -1, v{t}')

    def build(self):
        a = self.a
        a('s_cmp_ge_u32 s2, 256'); a('s_cbranch_scc1 L_end')
        a('s_load_dwordx16 s[64:79], s[0:1], 0')
        a('s_load_dwordx8 s[80:87], s[0:1], 64')
        a('s_getreg_b32 s36, hwreg(HW_REG_XCC_ID, 0, 3)')
        a('s_getreg_b32 s38, hwreg(HW_REG_HW_ID, 8, 3)'); a('s_getreg_b32 s37, hwreg(HW_REG_HW_ID, 13, 2)')
        a('v_lshrrev_b32 v1, 6, v0'); a('v_and_b32 v0, 63, v0')
        a('v_readfirstlane_b32 s3, v1')
        a('s_mov_b32 s52, 400000')
        if self.fake == 1: a('s_and_b32 s38, s38, 6')
        if self.fake == 2: a('s_and_b32 s36, s36, 5')
        if self.fake == 3: a('s_and_b32 s36, s2, 7'); a('s_lshr_b32 s38, s2, 4'); a('s_mov_b32 s37, 0')
        if self.fake == 4: a('s_mov_b32 s36, 0'); a('s_mov_b32 s38, 0'); a('s_mov_b32 s37, 0')
        a('s_lshl3_add_u32 s2, s37, s38')
        a.label('L_role')
        a('s_mov_b32 s101, s2'); a('s_lshr_b32 s100, s36, 2'); a('s_lshl_b32 s100, s100, 7'); a('s_and_b32 s38, s36, 3'); a('s_lshl3_add_u32 s100, s38, s100')
        if self.diag:
            a('s_lshl3_add_u32 s61, s2, s36'); a('s_lshl2_add_u32 s61, s61, s3'); a('s_lshl_b32 s61, s61, 8'); a(f's_add_u32 s61, s61, 0x{DOFF:x}')
        if self.cpf:
            a('s_getpc_b64 s[38:39]'); a.label('L_pc')
            a('s_lshl_b32 s37, s2, 2'); a('s_add_u32 s37, s37, s3'); a('s_lshl_b32 s37, s37, 10')
            a('s_cmp_ge_u32 s37, L_end-L_pc'); a('s_cbranch_scc1 L_nopf')
            a('v_lshl_add_u32 v2, v0, 4, s37'); a('v_min_u32 v2, L_end-L_pc-16, v2')
            a('global_load_dwordx4 v[60:63], v2, s[38:39]')
            a.label('L_nopf')
        a('s_cmp_eq_u32 s36, 0'); a('s_cbranch_scc1 L_chain')
        self.stream()
        a.label('L_chain')
        self.chain_common()
        self.roleW(); self.roleOQ(); self.roleF()
        a.label('L_redo')
        a('s_waitcnt vmcnt(0) lgkmcnt(0)'); a('s_barrier')
        a('s_load_dwordx16 s[64:79], s[0:1], 0')
        a('s_load_dwordx8 s[80:87], s[0:1], 64')
        a('s_bfe_u32 s36, s38, 0x30005'); a('s_and_b32 s2, s38, 31')
        a('s_branch L_role')
        a.label('L_bail')
        a('s_mov_b64 exec, 1')
        a('v_mov_b32 v0, 64'); a('v_mov_b32 v1, 1')
        a(f'global_atomic_add v0, v1, {DBG} sc1')
        a('v_mov_b32 v0, 68'); a('v_mov_b32 v1, s2')
        a(f'global_store_dword v0, v1, {DBG} sc1')
        a.label('L_end')
        body = a.finish()
        hdr = open('cdna_kernels/' + NAME + '.s.ref').read().split('\n')
        top = [l for l in hdr if l.startswith(';') and '@launch' not in l]
        s = '\n'.join(top) + '\n; @launch grid=(256,1,1) block=(256,1,1) lds=163840\n'
        s += f'.amdgcn_target "amdgcn-amd-amdhsa--gfx950"\n.text\n.globl {NAME}_kernel\n.p2align 8\n.type {NAME}_kernel,@function\n{NAME}_kernel:\n'
        s += body
        s += f'''s_endpgm
.section .rodata,"a"
.p2align 6
.amdhsa_kernel {NAME}_kernel
  .amdhsa_next_free_vgpr 512
  .amdhsa_next_free_sgpr 102
  .amdhsa_accum_offset 256
  .amdhsa_group_segment_fixed_size 0
  .amdhsa_kernarg_size 96
  .amdhsa_user_sgpr_count 2
  .amdhsa_user_sgpr_kernarg_segment_ptr 1
  .amdhsa_system_sgpr_workgroup_id_x 1
.end_amdhsa_kernel
'''
        return s

    CA = [0, 4096]; Q1L = 8192; MA = [10240, 10272]; CO = [10304, 10308]; TB = 10496; WLDS = 37 * 1024
    vK, vV, vDs, vL16, vQo, vIQ, vIP = 1, 2, 3, 4, 5, 6, 7
    vM = 8; vT = 12; vBias = 15; vMC = 16; vL = 17; vQ = 24; vAcc = 32; vH = 48
    def kreg(self, s, u):
        return 64 + 96 * s + 16 * u if u < 6 else 256 + 128 * s + 16 * (u - 6)
    def vreg0(self, s, P, t):
        return 256 + 128 * s + 64 + 8 * (4 * P + t)
    def tile(self, n):
        if n < 40:
            u, t = n // 4, n % 4
            return 0, u // 2, t * 128 + (u & 1) * 512
        m = n - 40; g = m // 8; k = m % 8
        if g < 4: P, t = k // 4, k % 4
        else: t, P = k // 2, k % 2
        return 1, g, t * 128 + P * 1024
    def ldsslot(self, s, n):
        if n <= 72: return (n - 56) + 17 * s
        return 34 + (n - 73)
    def load(self, s, n, wait=True, skip=False):
        a = self.a
        kv, g, imm = self.tile(n)
        if n == 0 and not self.prologue:
            for j in range(5): a(f's_add_u32 s{40+j}, s{40+j}, 0x2000000')
            a('s_add_u32 s90, s90, 0x2000000'); a('s_mov_b32 s94, s90')
        l = None
        if skip:
            l = self.lab('L_sk'); a('s_cmp_eq_u32 s49, 4'); a(f's_cbranch_scc1 {l}')
        va = f'v{self.vV if kv else self.vK}'; srd = V_SRD if kv else K_SRD
        if g == 4: srd = V4 if kv else K4
        dst = None
        if n < 40: dst = self.kreg(s, n // 4) + 4 * (n % 4)
        elif n < 56:
            m = n - 40; dst = self.vreg0(s, (m % 8) // 4, m % 4) + 4 * (m // 8)
        elif n >= 76: dst = self.vH + 4 * (n - 76)
        if dst is None:
            a(f's_add_u32 m0, s45, {self.ldsslot(s, n) * 1024 - imm}')
        if wait and len(self.vmq) >= self.depth:
            a(f's_waitcnt vmcnt({self.depth - 1})'); self.vmq = self.vmq[-(self.depth - 1):]
        if dst is None:
            a(f'buffer_load_dwordx4 {va}, {srd}, s{40+g} offen offset:{imm} nt lds')
        else:
            a(f'buffer_load_dwordx4 {rr(dst, 4)}, {va}, {srd}, s{40+g} offen offset:{imm} nt')
        self.vmq.append((s, n))
        if l: a.label(l)
    def need_vm(self, tag):
        if tag in self.vmq:
            k = len(self.vmq) - 1 - self.vmq.index(tag)
            self.a(f's_waitcnt vmcnt({k})'); self.vmq = self.vmq[len(self.vmq) - k:] if k else []
    def ds(self, text, tag=None):
        self.a(text); self.lq.append(tag)
    def need_lds(self, tag):
        if tag in self.lq:
            i = len(self.lq) - 1 - self.lq[::-1].index(tag)
            k = len(self.lq) - 1 - i
            k = min(k, 15)
            self.a(f's_waitcnt lgkmcnt({k})'); self.lq = self.lq[len(self.lq) - k:] if k else []
    def qload(self):
        a = self.a
        a(f'buffer_load_dwordx4 {vr(self.vQ, 4)}, v{self.vQo}, {WS}, s46 offen sc1')
        a(f'buffer_load_dwordx4 {vr(self.vQ + 4, 4)}, v{self.vQo}, {WS}, s46 offen offset:256 sc1')
    def zero_acc(self):
        return [f'v_mov_b64 {vr(self.vAcc + 2 * i, 2)}, 0' for i in range(8)]

    def stream(self):
        a = self.a
        self.vmq = []; self.lq = []; self.prologue = True
        RE, RL = self.rows
        assert 24 * RE + 32 * RL == 512 and max(RE, RL) <= 16
        a('s_sub_u32 s36, s36, 1'); a('s_lshl_b32 s36, s36, 5'); a('s_add_u32 s2, s36, s2')
        a('s_mul_i32 s36, s2, 10923'); a('s_lshr_b32 s36, s36, 16'); a('s_mul_i32 s37, s36, 6'); a('s_sub_u32 s37, s2, s37')
        a('s_sub_u32 s38, s2, 96'); a('s_and_b32 s39, s38, 7'); a('s_add_u32 s39, s39, 6'); a('s_lshr_b32 s38, s38, 3')
        a('s_cmp_lt_u32 s2, 96'); a('s_cselect_b32 s36, s36, s38'); a('s_cselect_b32 s37, s37, s39')
        a(f's_cselect_b32 s50, {RE}, {RL}'); a(f's_cselect_b32 s51, 0, {24 * (RE - RL)}')
        a('s_lshl_b32 s39, s37, 2'); a('s_add_u32 s39, s39, s3'); a('s_lshl_b32 s38, s39, 13')
        a('s_lshl_b32 s44, s36, 21'); a('s_add_u32 s40, s44, s38')
        self.bits(f'v{self.vK}', 'v0', 'v18', [(0, 1, 4), (4, 2, 5), (2, 1, 10), (1, 1, 11), (3, 1, 12)])
        a(f's_lshl_b32 s47, s36, 14'); a('s_lshl_b32 s38, s37, 10'); a('s_add_u32 s47, s47, s38'); a(f's_add_u32 s47, s47, 0x{POFF:x}')
        a('s_mul_i32 s38, s37, 896'); a(f's_sub_u32 s48, {MLO}, s38')
        a(f'v_lshlrev_b32 v{self.vL16}, 4, v0'); a('v_lshl_add_u32 v18, v0, 18, s48')
        a('v_mov_b64 v[20:21], -1'); a('v_mov_b64 v[22:23], -1')
        a('s_lshl_b32 s41, s3, 19'); a('s_add_u32 s41, s41, s47'); a(f's_add_u32 s42, s41, {PIB}')
        a('s_waitcnt lgkmcnt(0)')
        self.srd(16, 86, 0x20000000)
        a(f'buffer_store_dwordx4 v[20:23], v{self.vL16}, {WS}, s41 offen sc1')
        a(f'buffer_store_dwordx4 v[20:23], v{self.vL16}, {WS}, s42 offen sc1')
        a('s_mov_b64 exec, 3')
        a(f'buffer_store_dwordx2 v[20:21], v18, {WS}, s41 offen sc1')
        a('s_mov_b64 exec, -1')
        self.srd(8, 66, 0x8000000)
        N0 = 8
        for n in range(min(N0, self.depth)): self.load(0, n)
        for j in range(1, 4): a(f's_add_u32 s{40+j}, s40, {j * NW * 8192}')
        a('s_mul_i32 s38, s39, s50'); a('s_add_u32 s38, s38, s51'); a('s_lshl_b32 s38, s38, 9')
        a(f's_add_u32 s44, s44, {4 * NW * 8192}'); a('s_add_u32 s44, s44, s38')
        self.srd(88, 66, 0); self.srd(92, 68, 0)
        a('s_lshl_b32 s38, s50, 9'); a('s_add_u32 s90, s44, s38'); a('s_mov_b32 s94, s90')
        self.srd(12, 68, 0x8000000)
        self.stamp(0)
        self.bits(f'v{self.vV}', 'v0', 'v18', [(0, 3, 4), (5, 1, 9), (4, 1, 11), (3, 1, 12)])
        a(f's_mul_i32 s45, s3, {self.WLDS}'); a(f's_add_u32 s45, s45, {self.TB}')
        a(f'v_add_u32 v{self.vDs}, s45, v{self.vL16}')
        self.bits(f'v{self.vQo}', 'v0', 'v18', [(0, 2, 4), (4, 2, 6)])
        a('v_and_b32 v18, 2, v0'); a('v_cmp_eq_u32 vcc, 2, v18')
        a(f'v_mov_b32 v{self.vIQ}, 0x44444444'); a('v_mov_b32 v18, 0xeeeeeeee'); a(f'v_cndmask_b32 v{self.vIQ}, v{self.vIQ}, v18, vcc')
        a('v_and_b32 v18, 3, v0'); a('s_mov_b32 s38, 0x55555555'); a(f'v_mul_lo_u32 v{self.vIP}, v18, s38')
        a('v_and_b32 v18, 4, v0'); a('v_cmp_eq_u32 vcc, 4, v18')
        a('v_mov_b32 v18, 0xffff'); a('v_mov_b32 v19, 0xffff0000')
        M = self.vM
        a(f'v_cndmask_b32 v{M}, v18, 0, vcc'); a(f'v_cndmask_b32 v{M+1}, 0, v18, vcc')
        a(f'v_cndmask_b32 v{M+2}, v19, 0, vcc'); a(f'v_cndmask_b32 v{M+3}, 0, v19, vcc')
        self.bits('v18', 'v0', 'v19', [(4, 1, 0), (2, 1, 1), (1, 1, 2), (3, 1, 3), (5, 1, 4)])
        a('v_cmp_gt_u32 vcc, s50, v18'); a('v_mov_b32 v19, 0xff800000'); a(f'v_mov_b32 v{self.vT+2}, 0')
        a(f'v_cndmask_b32 v{self.vBias}, v19, 0, vcc')
        a('s_lshl_b32 s46, s3, 4'); a('s_add_u32 s46, s46, s36'); a('s_lshl_b32 s46, s46, 9')
        a('s_mov_b32 s49, 0'); a(f's_mov_b32 s51, 0x{f2u(CS):x}')
        a(f's_mov_b32 s53, {self.Q1L}'); a('s_lshl_b32 s54, s3, 10'); a('s_lshl_b32 s55, s3, 3')
        a('s_lshl_b32 s56, s36, 9'); a(f's_add_u32 s56, s56, 0x{QOFF + 3 * 8192:x}')
        a('v_mov_b32 v18, 0'); a('v_mov_b32 v19, 0')
        a(f'ds_write_b64 v18, v[18:19] offset:{self.CO[0]}'); a(f'ds_write_b32 v18, v18 offset:{self.FLAG}')
        for n in range(self.depth, N0): self.load(0, n, wait=(n < N0 - 1))
        self.prologue = False
        entry_vmq = list(self.vmq)
        for s in range(2):
            a.label(f'L_A{s}')
            assert [(x[0] ^ s, x[1]) for x in self.vmq] == entry_vmq, (self.vmq, entry_vmq)
            self.lq = []
            for n in range(N0, 73):
                self.load(s, n)
                if s == 0 and n in (self.CL, self.CL + 12, self.CL + 20):
                    l = self.lab('L_it0')
                    a('s_cmp_lg_u32 s49, 0'); a(f's_cbranch_scc1 {l}')
                    if n == self.CL:
                        a('s_waitcnt lgkmcnt(0)'); a('s_barrier')
                        self.claim(22, 23, 24)
                        self.stamp(30)
                    elif n == self.CL + 12: self.resolve(24, 20); self.stamp(31)
                    else: self.check(20)
                    a.label(l)
                if s == 0 and n == self.PF - 8:
                    self.mask_addr(21, 22); a(self.mask_load(21, 22)); self.vmq.append('cnt')
                if n == self.PF:
                    if s == 0:
                        self.need_vm('cnt'); self.wait_masks(21, 22, pre=True)
                        self.stamp(22, 's49')
                    self.qload(); self.vmq += ['q0', 'q1']
            self.need_vm('q1')
            self.stamp(1, 's49')
            a.label(f'L_X{s}')
            self.maxtree(range(self.vQ, self.vQ + 8), 18)
            a(f's_cbranch_vccz L_Xok{s}')
            a.label(f'L_Xpoll{s}')
            self.timeout()
            self.qload(); a('s_waitcnt vmcnt(0)')
            a(f's_branch L_X{s}')
            a.label(f'L_Xok{s}')
            self.stamp(6, 's49')
            if s == 0:
                a('s_cmp_eq_u32 s49, 0'); a('s_cbranch_scc1 L_first')
            save = list(self.vmq)
            self.ppass(1, s)
            self.stamp(11, 's49')
            if s == 0:
                a('s_cmp_eq_u32 s49, 4'); a('s_cbranch_scc1 L_end')
                after = list(self.vmq)
            a.label(f'L_P1{s}')
            self.ppass(0, s)
            self.stamp(16, 's49')
            for z in self.zero_acc(): a(z)
            a('s_add_u32 s49, s49, 1'); a(f's_add_u32 s47, s47, {PIB}'); a('s_add_u32 s53, s53, 512')
            a('s_add_u32 s56, s56, 8192'); a('s_mov_b32 s46, s56')
            if s == 0: first_save, first_after = save, after
        a('s_cmp_eq_u32 s49, 4'); a('s_cbranch_scc1 L_Xpoll0')
        a('s_branch L_A0')
        a.label('L_first')
        self.vmq = first_save
        a('s_lshl_b32 s38, s3, 9'); a(f'v_add_u32 v18, s38, v{self.vQo}')
        a(f'ds_write_b128 v18, {vr(self.vQ, 4)} offset:{self.Q1L}')
        a(f'ds_write_b128 v18, {vr(self.vQ + 4, 4)} offset:{self.Q1L + 256}')
        for n in range(73, 77): self.load(0, n)
        assert self.vmq == first_after, (self.vmq, first_after)
        a('s_waitcnt lgkmcnt(0)'); a('s_barrier')
        a('s_branch L_P10')

    def ppass(self, p2, s):
        a = self.a
        ds_ = (1 - s) if p2 else s
        fs = 1 - s
        cu0 = 0 if p2 else 2
        T = self.vT; Q = self.vQ; AC = self.vAcc; M = self.vM
        skip = (p2 and s == 0)
        def cdst(pi): return self.kreg(fs, cu0 + pi // 2) + 8 * (pi % 2)
        def copy(n):
            if n >= 72: pi, half = (n - 72) // 2, (n - 72) % 2
            else: pi, half = 2 + (n - 56) % 8, (n - 56) // 8
            if not p2: self.need_vm((s, n))
            self.ds(f'ds_read_b128 {rr(cdst(pi) + 4 * half, 4)}, v{self.vDs} offset:{self.ldsslot(ds_, n) * 1024}', ('c', n))
        def bop(U, P, t):
            if U == 0: return self.vreg0(ds_, P, t), []
            if U == 1: return cdst(2 + 4 * P + t), [('c', 56 + 4 * P + t), ('c', 64 + 4 * P + t)]
            if t < 2: return cdst(t), [('c', 72 + 2 * t), ('c', 73 + 2 * t)]
            return self.vH + 8 * (t - 2), []
        if not p2:
            a(f'v_add_u32 v18, s53, v{self.vQo}')
            self.ds(f'ds_read_b128 {vr(Q, 4)}, v18', 'q'); self.ds(f'ds_read_b128 {vr(Q + 4, 4)}, v18 offset:256', 'q')
            for z in self.zero_acc(): a(z)
            self.load(s, 77)
            self.need_lds('q')
        def post_a(u):
            ac = AC + 4 * (u % 4); t = 18 + 2 * (u % 2)
            a(f'v_add_f32 v{t+1}, v{ac+1}, v{ac+3}'); a(f'v_add_f32 v{t}, v{ac}, v{ac+2}')
        def post_b(u):
            t = 18 + 2 * (u % 2)
            a(f'v_add_f32_dpp v{T + u // 4}, v{t+1}, v{t} quad_perm:[1,1,3,3] row_mask:0x{1 << (u % 4):x} bank_mask:0xf')
        if p2: cplan = {0: [72, 73, 74, 75], 1: [56, 64, 57, 65], 2: [58, 66, 59, 67], 3: [60, 68], 4: [61, 69], 5: [62, 70], 6: [63, 71]}
        else: cplan = {0: [56, 57], 1: [58, 59], 2: [60, 61], 3: [62, 63], 4: [64, 65], 5: [66, 67], 6: [68, 69]}
        for u in range(10):
            ac = AC + 4 * (u % 4); k = self.kreg(ds_, u)
            a(f'v_smfmac_f32_16x16x64_bf16 {vr(ac, 4)}, {vr(Q, 4)}, {rr(k, 8)}, v{self.vIQ}')
            if u >= 3: post_a(u - 3)
            a(f'v_smfmac_f32_16x16x64_bf16 {vr(ac, 4)}, {vr(Q + 4, 4)}, {rr(k + 8, 8)}, v{self.vIQ}')
            if u >= 3: post_b(u - 3)
            for n in cplan.get(u, []): copy(n)
            if p2 and u == 4: self.need_lds(('c', 75)); self.load(s, 73, skip=skip)
            if p2 and u == 9: self.load(s, 74, skip=skip)
            if not p2 and u == 5: self.load(s, 78)
            if not p2 and u == 9: self.load(s, 79); copy(70); copy(71)
        zf = [f'v_mov_b32 v{AC + r}, 0' for r in list(range(8, 16)) + list(range(8))]
        def Z(n=2):
            for _ in range(n):
                if zf: a(zf.pop(0))
        post_a(7); Z(1); post_b(7); Z(3); post_a(8); Z(1); post_b(8); Z(2); post_a(9); Z(1); post_b(9)
        m = self.vMC; t = 18
        a(f'v_sub_f32 v{T+2}, v{T+2}, v{T+1}'); a(f'v_sub_f32 v{T+1}, v{T+1}, v{T}')
        a(f'v_add_f32 v{T+2}, v{self.vBias}, v{T+2}')
        a(f'v_max3_f32 v{m}, v{T}, v{T+1}, v{T+2}'); Z()
        a(f'v_max_f32_dpp v{m}, v{m}, v{m} quad_perm:[2,3,0,1] {FULL}'); Z()
        a(f'v_max_f32_dpp v{m}, v{m}, v{m} row_ror:4 {FULL}'); Z()
        a(f'v_max_f32_dpp v{t}, v{m}, v{m} row_ror:8 {FULL}')
        a(f'v_max_f32_dpp v{m}, v{m}, v{m} row_ror:8 {FULL}'); Z()
        a(f'v_permlane16_swap_b32 v{m}, v{t}'); a(f'v_max_f32 v{t+1}, v{m}, v{t}'); a(f'v_max_f32 v{m}, v{m}, v{t}'); Z(8)
        a(f'v_permlane32_swap_b32 v{m}, v{t+1}'); a(f'v_max_f32 v{m}, v{m}, v{t+1}')
        a(f'v_mul_f32 v{m}, s51, v{m}')
        order = [0, 2, 1] if p2 else [0, 1, 2]
        for k in order: a(f'v_fma_f32 v{T+k}, v{T+k}, s51, -v{m}')
        for k in order: a(f'v_exp_f32 v{T+k}, v{T+k}')
        L = self.vL
        def pack(k):
            o = [f'v_mov_b32_dpp v18, v{T+k} quad_perm:[0,0,0,0] {FULL}',
                 f'v_mov_b32_dpp v19, v{T+k} quad_perm:[2,2,2,2] {FULL}',
                 f'v_cvt_pk_bf16_f32 v{20+k}, v18, v19']
            if k == 2: o += [f'v_mov_b32_dpp v0, v22 row_shl:4 {FULL}', 'v_permlane32_swap_b32 v22, v0']
            return o
        def aprep(k, P, A):
            pp = 20 + k
            if P == 0:
                return [f'v_and_b32 v{A}, v{pp}, v{M}', f'v_and_b32 v{A+2}, v{pp}, v{M+2}',
                        f'v_and_b32_dpp v{A+1}, v{pp}, v{M+1} row_shr:4 {FULL} bound_ctrl:0',
                        f'v_and_b32_dpp v{A+3}, v{pp}, v{M+3} row_shr:4 {FULL} bound_ctrl:0']
            return [f'v_and_b32 v{A+1}, v{pp}, v{M+1}', f'v_and_b32 v{A+3}, v{pp}, v{M+3}',
                    f'v_and_b32_dpp v{A}, v{pp}, v{M} row_shl:4 {FULL} bound_ctrl:0',
                    f'v_and_b32_dpp v{A+2}, v{pp}, v{M+2} row_shl:4 {FULL} bound_ctrl:0']
        if p2: sets = [(0, 0), (2, 0), (0, 1), (1, 0), (1, 1)]
        else: sets = [(0, 0), (0, 1), (1, 0), (1, 1), (2, 0)]
        lred = [f'v_add_f32 v{L}, v{T}, v{T+1}',
                f'v_add_f32 v{L}, v{T+2}, v{L}',
                f'v_add_f32_dpp v{L}, v{L}, v{L} quad_perm:[2,3,0,1] {FULL}',
                f'v_add_f32_dpp v{L}, v{L}, v{L} row_ror:4 {FULL}',
                f'v_add_f32_dpp v{L}, v{L}, v{L} row_ror:8 {FULL}',
                f'v_mov_b32 v23, v{L}', f'v_permlane16_swap_b32 v{L}, v23', f'v_add_f32 v{L}, v{L}, v23',
                f'v_mov_b32 v23, v{L}', f'v_permlane32_swap_b32 v{L}, v23', f'v_add_f32 v{L}, v{L}, v23']
        def prep(i):
            k, P = sets[i]
            return (pack(k) if P == 0 else []) + aprep(k, P, Q + 4 * (i % 2))
        for x in prep(0): a(x)
        CA = self.CA[p2]; MA = self.MA[p2]; CO = self.CO[p2]
        def merge(t0):
            o = []
            for r in range(4): o.append(f'v_permlane32_swap_b32 v{AC + 4*t0 + r}, v{AC + 4*t0 + 4 + r}')
            for r in range(4):
                if t0 == 0: o.append(f'v_add_f32_dpp v{AC + r}, v{AC + 4 + r}, v{AC + r} row_ror:8 row_mask:0xf bank_mask:0x3')
                else: o.append(f'v_add_f32_dpp v{AC + r}, v{AC + 8 + r}, v{AC + 12 + r} row_ror:8 row_mask:0xf bank_mask:0xc')
            return o
        for i, (k, P) in enumerate(sets):
            fill = prep(i + 1) if i + 1 < len(sets) else []
            last = (i == len(sets) - 1)
            if last:
                fill = lred + [f'v_add_u32 v18, s54, v{self.vL16}', 'v_mov_b32 v19, s55', 'v_mov_b32 v20, 1', 'v_mov_b32 v21, 0', 'v_mov_b32 v22, s48']
                lred = []
            for t in range(4):
                b, tags = bop(k, P, t)
                if not p2 and k == 2:
                    if t == 0:
                        self.load(1 - s, 1); copy(72); copy(73)
                        for x in fill: a(x)
                        fill = []
                        self.load(1 - s, 2); self.load(1 - s, 3); copy(74); copy(75)
                    if t == 2:
                        self.load(1 - s, 4)
                        for x in merge(0): a(x)
                        self.load(1 - s, 5); self.need_vm((s, 77))
                    if t == 3:
                        self.load(1 - s, 6); self.need_vm((s, 79))
                for tg in tags: self.need_lds(tg)
                a(f'v_smfmac_f32_16x16x64_bf16 {vr(AC + 4 * t, 4)}, {vr(Q + 4 * (i % 2), 4)}, {rr(b, 8)}, v{self.vIP}')
                n = (len(fill) + (3 - t)) // (4 - t)
                got = fill[:n]; fill = fill[n:]
                if len(got) < 2 and lred: got.append(lred.pop(0))
                for x in got: a(x)
            if p2 and i == 0: self.load(s, 75, skip=skip)
            if p2 and i == 2: self.load(s, 76, skip=skip)
            if not p2 and i == 1: self.load(1 - s, 0)
        if not p2: self.load(1 - s, 7, wait=False)
        else:
            for x in merge(0): a(x)
        for x in merge(2): a(x)
        Zr = self.kreg(fs, 2)
        a(f'ds_write_b128 v18, {vr(AC, 4)} offset:{CA}')
        a('s_mov_b64 exec, 1')
        a(f'ds_write_b64 v19, {vr(self.vMC, 2)} offset:{MA}')
        a(f'ds_add_rtn_u32 v20, v21, v20 offset:{CO}')
        a('s_mov_b64 exec, -1')
        a(f'ds_read_b128 {vr(Q, 4)}, v21 offset:{MA}'); a(f'ds_read_b128 {vr(Q + 4, 4)}, v21 offset:{MA + 16}')
        for w in range(4): a(f'ds_read_b128 {vr(Zr + 4 * w, 4)}, v{self.vL16} offset:{CA + 1024 * w}')
        if p2: a(f's_add_u32 s38, s47, {3 * PIB}')
        else: a('s_mov_b32 s38, s47')
        a('s_waitcnt lgkmcnt(6)')
        a('v_readfirstlane_b32 s39, v20'); a('s_and_b32 s39, s39, 3'); a('s_cmp_eq_u32 s39, 3')
        l = self.lab('L_nl'); a(f's_cbranch_scc0 {l}')
        a('s_waitcnt lgkmcnt(4)')
        a(f'v_max3_f32 v{m}, v{Q}, v{Q+2}, v{Q+4}'); a(f'v_max_f32 v{m}, v{m}, v{Q+6}')
        for w in range(4): a(f'v_sub_f32 v{Q+2*w}, v{Q+2*w}, v{m}')
        for w in range(4): a(f'v_exp_f32 v{Q+2*w}, v{Q+2*w}')
        a(f'v_mul_f32 v{L}, v{Q}, v{Q+1}')
        for w in range(1, 4): a(f'v_fmac_f32 v{L}, v{Q+2*w}, v{Q+2*w+1}')
        a(f'v_min_u32 v{m}, -2, v{m}'); a(f'v_min_u32 v{L}, -2, v{L}')
        a('s_mov_b64 exec, 1')
        a(f'buffer_store_dwordx2 {vr(m, 2)}, v22, {WS}, s38 offen sc1')
        a('s_mov_b64 exec, -1')
        a('s_waitcnt lgkmcnt(0)')
        for w in range(4):
            for hf in range(2):
                if w == 0: a(f'v_pk_mul_f32 {vr(AC + 2*hf, 2)}, {vr(Zr + 2*hf, 2)}, {vr(Q, 2)} op_sel_hi:[1,0]')
                else: a(f'v_pk_fma_f32 {vr(AC + 2*hf, 2)}, {vr(Zr + 4*w + 2*hf, 2)}, {vr(Q + 2*w, 2)}, {vr(AC + 2*hf, 2)} op_sel_hi:[1,0,1]')
        for r in range(4): a(f'v_min_u32 v{AC + r}, -2, v{AC + r}')
        a(f'buffer_store_dwordx4 {vr(AC, 4)}, v{self.vL16}, {WS}, s38 offen sc1')
        a.label(l)
        a('s_waitcnt lgkmcnt(0)'); self.lq = []

    RING0 = 8192
    vGO2, vTR, vOOB, vDO, vX0O, vGO, vXR, vXW, vRES = 8, 9, 10, 11, 12, 13, 14, 15, 16
    vAC, vCS, vQS, vRO, vPO, vPO2, vMLO, vOW, vDQ, vX0 = 32, 36, 38, 39, 40, 41, 42, 43, 44, 45
    def vm(self, text, tag=None):
        self.a(text); self.cq.append(tag)
    def vmwait(self, tag):
        if tag in self.cq:
            i = len(self.cq) - 1 - self.cq[::-1].index(tag)
            k = len(self.cq) - 1 - i
            assert k <= 63
            self.a(f's_waitcnt vmcnt({k})'); self.cq = self.cq[i + 1:]
    def chain_common(self):
        a = self.a
        a('v_lshlrev_b32 v1, 4, v0')
        for r in range(20, 24): a(f'v_mov_b32 v{r}, -1')
        a('s_lshl_b32 s38, s2, 2'); a('s_add_u32 s38, s38, s3'); a('s_mul_i32 s38, s38, 3072'); a(f's_add_u32 s38, s38, 0x{YOFF:x}')
        self.bits('v2', 'v0', 'v6', [(0, 1, 4), (4, 2, 5)])
        self.bits('v4', 'v0', 'v6', [(1, 1, 0), (3, 1, 2), (2, 1, 3)])
        a('s_lshl_b32 s98, s3, 13'); a(f's_add_u32 s98, s98, {self.RING0}'); a('s_movk_i32 s99, 1024')
        a('s_mul_i32 s32, s3, 7168'); a(f's_add_u32 s32, s32, {self.RING0}')
        a('v_mov_b32 v6, 0'); a(f'ds_write_b32 v6, v6 offset:{self.FLAG}')
        a('s_waitcnt lgkmcnt(0)')
        self.srd(16, 86, 0x20000000)
        for i in range(3): a(f'buffer_store_dwordx4 v[20:23], v1, {WS}, s38 offen offset:{i * 1024} sc1')
        self.stamp(0, None, 28)
        a('s_cmp_lt_u32 s2, 16'); a('s_cbranch_scc1 L_roleOQ')
        if self.hq:
            self.srd(20, 70, 448 * 8192)
            self.bits('v6', 'v0', 'v7', [(0, 5, 4), (5, 1, 13)])
            a('s_sub_u32 s38, s2, 16'); a('s_lshl_b32 s38, s38, 9'); a('s_lshl_b32 s39, s3, 14'); a('s_add_u32 s38, s38, s39')
            a(f's_add_u32 s38, s38, {self.hq[0] * 64 * 8192}')
            for i in range(8 * (self.hq[1] - self.hq[0])):
                a(f'buffer_load_dwordx4 v[64:67], v6, {W1}, s38 offen {self.hpol}'); a('s_add_u32 s38, s38, 65536')
        a('s_cmp_lt_u32 s2, 30'); a('s_cbranch_scc1 L_roleF')
    def consts(self):
        a = self.a
        a('v_and_b32 v6, 1, v0'); a('v_cmp_eq_u32 vcc, 1, v6')
        a('v_mov_b32 v3, 0x44444444'); a('v_mov_b32 v6, 0xeeeeeeee'); a('v_cndmask_b32 v3, v3, v6, vcc')
        self.bits('v9', 'v0', 'v6', [(0, 5, 3), (5, 1, 10)])
        a('v_mul_u32_u24 v5, 6144, v6'); a('s_mul_i32 s38, s3, 1792'); a('v_add3_u32 v5, v5, v9, s38')
        a(f's_mov_b32 s57, 0x{OOB:x}'); a(f's_mov_b32 s56, 0x{OOB:x}'); a('s_mov_b32 s49, -1')
    vCL = 46
    def announce(self, tag):
        a = self.a
        self.vmwait(tag); a('s_waitcnt lgkmcnt(0)'); a('s_barrier')
        self.claim(6, 28, self.vCL, wide=True)
        self.stamp(21, None, 28)
    def ready(self, polled=False):
        a = self.a
        self.stamp(22, None, 28)
        if not polled:
            self.mask_addr(22, 23); self.wait_masks(22, 20)
            a('v_readfirstlane_b32 s55, v21')
        a('s_cmp_eq_u32 s55, 0')
        a(f's_cselect_b32 s57, 0, 0x{OOB:x}'); a(f's_cselect_b32 s56, 0x{OOB:x}, 0')
        self.stamp(1, None, 28)
    def lstore(self, op, data, voff, sp, ss):
        self.a(f'buffer_store_{op} {data}, {voff}, {WS}, {sp} offen')
        self.a(f'buffer_store_{op} {data}, {voff}, {WS}, {ss} offen sc1')
    def dma_sub(self, name, srd, voff, tab, adv):
        a = self.a
        a.label(name)
        for e in range(8):
            a(f'buffer_load_dwordx4 {voff}, {srd}, s{tab + e} offen nt lds')
            if e < 7: a('s_add_u32 m0, m0, s99')
        a(f'v_add_u32 {voff}, 0x{adv:x}, {voff}')
        a('s_setpc_b64 s[96:97]')
    def dma_subB(self, name, srd, voff):
        a = self.a
        a.label(name)
        for cb in range(7):
            a(f'buffer_load_dwordx4 {voff}, {srd}, 0 offen offset:{128 * cb} nt lds')
            if cb < 6: a('s_add_u32 m0, m0, 896')
        a(f'v_add_u32 {voff}, 0x{32 * 896:x}, {voff}')
        a('s_setpc_b64 s[96:97]')
    def issue(self, p):
        self.a(f's_add_u32 m0, {"s32" if p["B"] else "s98"}, {p["slot"] * 32768}'); self.a(f's_call_b64 s[96:97], {p["sub"]}')
        self.cq += [id(p)] * (7 if p['B'] else 8)
    def readout(self, p, sel=None):
        self.a(f'v_add_u32 v6, {self.RING0 + p["slot"] * 32768}, {"v5" if p["B"] else "v9"}')
        for d, imm in p['rd']:
            if sel is None or sel(d): self.a(f'ds_read_b64_tr_b16 {rr(d, 2)}, v6 offset:{imm}')
    def consume(self, p, nxt=None, hook=None):
        self.vmwait(id(p))
        if hook: hook()
        self.a('s_waitcnt lgkmcnt(0)'); self.a('s_barrier')
        if nxt:
            assert nxt['slot'] == self.lastslot, (nxt['slot'], self.lastslot)
            self.issue(nxt)
        self.readout(p); self.lastslot = p['slot']
    def table(self, tab, rs):
        for e in range(8): self.a(f's_mov_b32 s{tab + e}, 0x{(16 * (e & 1) + 2 * ((e >> 1) & 1) + 32 * (e >> 2)) * rs:x}')
    def typeB(self, voff, rowbase_s):
        a = self.a
        a('s_and_b32 s38, s3, 1'); a('s_lshl_b32 s38, s38, 4'); a(f's_add_u32 s38, s38, {rowbase_s}'); a('s_and_b32 s39, s3, 2'); a('s_add_u32 s38, s38, s39')
        a(f'v_add_u32 v6, s38, v4'); a(f'v_mad_u32_u24 {voff}, v6, s99, v2'); a(f'v_lshlrev_b32 v6, 7, v6'); a(f'v_sub_u32 {voff}, {voff}, v6')
    def typeB_reads(self, breg, ks, half):
        return [(breg(jj, ks) + 2 * (e1 + 2 * half), 2 * e1 * 7168 + jj * 256) for jj in range(7) for e1 in range(2)]
    def x0off(self):
        a = self.a
        a(f'v_mov_b32 v10, 0x{OOB:x}')
        self.bits('v6', 'v0', 'v7', [(0, 4, 3), (4, 1, 2), (5, 1, 7)])
        a('s_mul_i32 s38, s3, 224'); a('s_lshl_b32 s39, s3, 5'); a(f's_add_u32 s39, s39, {896 - 224}')
        a('v_cmp_gt_u32 vcc, 224, v6')
        a('v_add_u32 v15, s38, v6'); a('v_add_u32 v6, s39, v6')
        a('v_cndmask_b32 v12, v10, v15, vcc'); a('v_cndmask_b32 v15, v6, v15, vcc')
        a('s_lshl_b32 s38, s3, 9'); a('v_lshl_add_u32 v14, v0, 3, s38'); a('v_cndmask_b32 v14, v10, v14, vcc')
    def gather_offs(self):
        a = self.a
        self.bits('v13', 'v0', 'v6', [(0, 4, 4), (4, 2, 12)])
        a('s_lshl_b32 s38, s3, 8'); a('v_add_u32 v13, s38, v13'); a(f'v_lshl_add_u32 v{self.vRO}, v0, 2, s38')
        a('v_cmp_gt_u32 vcc, 48, v0'); a('v_mov_b32 v18, 0'); a('v_mov_b32 v19, 0'); a('v_cndmask_b32 v8, v10, v13, vcc')
        a('v_and_b32 v6, 8, v0'); a('v_cmp_eq_u32 vcc, 8, v6'); a('v_mov_b32 v6, 0x3c00'); a('v_mov_b32 v7, 0x3c000000')
        a('v_cndmask_b32 v6, v6, v7, vcc'); a('v_and_b32 v7, 7, v0')
        for r, key in enumerate((0, 1, 4, 5)):
            a(f'v_cmp_eq_u32 vcc, {key}, v7'); a('s_nop 1'); a(f'v_cndmask_b32 v{self.vAC + r}, 0, v6, vcc')
    def resid_poll(self, soff):
        a = self.a; l = self.lab('L_rp')
        a.label(l)
        self.timeout()
        a(f'buffer_load_dwordx2 v[16:17], v14, {WS}, {soff} offen sc1'); a('s_waitcnt vmcnt(0)')
        a('v_max_u32 v6, v16, v17'); a('v_cmp_eq_u32 vcc, -1, v6'); a(f's_cbranch_vccnz {l}')
    def gather_sum(self, soff, G, full):
        a = self.a; l = self.lab('L_g'); d = self.lab('L_gd')
        a.label(l)
        self.timeout()
        for i in range(4): a(f'buffer_load_dwordx4 {vr(G + 4 * i, 4)}, {"v13" if full or i < 2 else "v8"}, {WS}, {soff} offen offset:{1024 * i} sc1')
        for i in range(4):
            a(f's_waitcnt vmcnt({3 - i})')
            a(f'v_mfma_f32_16x16x32_f16 v[20:23], {vr(self.vAC, 4)}, {vr(G + 4 * i, 4)}, {"v[16:19]" if i == 0 else "v[20:23]"}')
        a('v_cmp_u_f32 vcc, v20, v21')
        a('v_cvt_pk_bf16_f32 v24, v20, v21')
        a(f's_cbranch_vccz {d}')
        self.maxtree(range(G, G + 16), 6)
        a(f's_cbranch_vccnz {l}')
        a.label(d)
    def xrow_ops(self, sp, ss):
        return ['v_lshlrev_b32 v20, 16, v24', 'v_and_b32 v21, 0xffff0000, v24',
                f'buffer_store_dwordx2 v[20:21], v14, {WS}, {sp} offen', f'buffer_store_dwordx2 v[20:21], v14, {WS}, {ss} offen sc1']
    def stats_ops(self, X):
        o = []
        for i in range(4):
            o += [f'v_lshlrev_b32 v26, 16, v{X+i}', f'v_and_b32 v27, 0xffff0000, v{X+i}']
            if i == 0: o += ['v_add_f32 v28, v26, v27', 'v_mul_f32 v30, v26, v26', 'v_fmac_f32 v30, v27, v27']
            else: o += ['v_add_f32 v28, v28, v26', 'v_fmac_f32 v30, v26, v26', 'v_add_f32 v28, v28, v27', 'v_fmac_f32 v30, v27, v27']
        o += [f'v_mov_b32 v26, 0x{f2u(1/448):x}', f'v_mov_b32 v27, 0x{f2u(1e-5):x}', 'v_permlane16_swap_b32 v28, v30', 'v_add_f32 v28, v28, v30']
        for c in ('quad_perm:[1,0,3,2]', 'quad_perm:[2,3,0,1]', 'row_ror:4'):
            o += [None, f'v_add_f32_dpp v28, v28, v28 {c} {FULL}']
        o += [None, f'v_add_f32_dpp v29, v28, v28 row_ror:8 {FULL}', f'v_add_f32_dpp v28, v28, v28 row_ror:8 {FULL}', None,
              'v_permlane32_swap_b32 v28, v29', 'v_add_f32 v28, v28, v29', None,
              'v_readlane_b32 s58, v28, 0', 'v_readlane_b32 s59, v28, 16', None,
              'v_mul_f32 v24, s58, v26', 'v_fmac_f32 v27, s59, v26',
              'v_fma_f32 v27, -v24, v24, v27', 'v_rsq_f32 v25, v27']
        return o
    def gemv(self, ntile, nks, breg, acc, A, fill=(), nother=0):
        a = self.a; fill = list(fill)
        for ks in range(nks):
            a(f's_waitcnt lgkmcnt({min(15, nks - 1 - ks + nother)})')
            for jj in range(ntile):
                a(f'v_smfmac_f32_16x16x64_bf16 {vr(acc + 4 * jj, 4)}, {vr(A + 4 * ks, 4)}, {rr(breg(jj, ks), 8)}, v3')
                for _ in range(2):
                    if fill:
                        x = fill.pop(0)
                        if x: a(x)
        for x in fill:
            if x: a(x)
    def zero(self, base, n):
        for i in range(0, n, 2): self.a(f'v_mov_b64 {vr(base + i, 2)}, 0')
    def rowsel(self, dst, acc, tiles_masks):
        for jj, rm in tiles_masks:
            self.a(f'v_add_f32_dpp v{dst}, v{acc + 4*jj}, v{acc + 4*jj + 1} quad_perm:[0,1,2,3] row_mask:0x{rm:x} bank_mask:0xf')
    def rowout(self, acc, sp, ss):
        a = self.a
        for jj in range(4): self.rowsel(20, acc, [(jj, 1 << jj)])
        for jj in range(3): self.rowsel(21, acc, [(4 + jj, 1 << jj)])
        a('v_cvt_pk_f16_f32 v20, v20, v21'); a('v_min_u32 v20, -2, v20')
        self.lstore('dword', 'v20', f'v{self.vRO}', sp, ss)
    def calc_ib(self):
        a = self.a
        a('s_bfe_u32 s50, s49, 0x20001'); a('s_and_b32 s38, s49, 1'); a('s_lshl_b32 s38, s38, 2'); a('s_add_u32 s50, s50, s38')
    def colsum(self, ntile, nks, breg, acc):
        a = self.a
        for r in range(4): a(f'v_mov_b32 v{20 + r}, 0x3f803f80')
        self.zero(acc, 4 * ntile)
        for ks in range(nks):
            for jj in range(ntile):
                a(f'v_smfmac_f32_16x16x64_bf16 {vr(acc + 4 * jj, 4)}, v[20:23], {rr(breg(jj, ks), 8)}, v3')
    def pinit(self, ib0):
        a = self.a
        for r in range(20, 24): a(f'v_mov_b32 v{r}, -1')
        a(f's_add_u32 s38, s3, {ib0}'); a('s_lshl_b32 s38, s38, 18'); a('s_add_u32 s38, s38, s41')
        a('v_lshlrev_b32 v6, 4, v0')
        for i in range(16):
            if i and i % 4 == 0: a('s_add_u32 s38, s38, 4096')
            self.vm(f'buffer_store_dwordx4 v[20:23], v6, {WS}, s38 offen offset:{(i % 4) * 1024} sc1', 'pinit')

    def roleOQ(self):
        a = self.a
        TOG = ['v_xor_b32 v15, 0x400, v15', 'v_xor_b32 v2, 0x400, v2', 'v_xor_b32 v1, 0x400, v1', f'v_xor_b32 v{self.vOW}, 0x400, v{self.vOW}']
        def qreg(jj, ks): return 96 + (ks * 4 + jj) * 8
        def oreg(jj, ks):
            if ks == 3 and jj < 4: return 288 + 8 * jj
            i = jj * 3 + ks if ks < 3 else 21 + jj - 4
            return 320 + 8 * i
        inwin = lambda d: 288 <= d < 320
        X0 = 4
        self.dma_sub('L_dmaQ', W1, f'v{self.vDQ}', 88, 64 * 8192)
        self.dma_subB('L_dmaO', W2, f'v{self.vDO}')
        P = 76; ML = 92; ACC = 48; A = 76
        a.label('L_Osub')
        self.calc_ib()
        a('s_lshl_b32 s44, s50, 18'); a('s_add_u32 s44, s44, s41')
        a('s_add_u32 s45, s44, 4096'); a('s_add_u32 s46, s44, 8192'); a('s_add_u32 s47, s44, 12288')
        a('s_lshl_b32 s48, s50, 14'); a('s_add_u32 s48, s48, s40'); a('s_add_u32 s51, s48, s56'); a('s_add_u32 s48, s48, s57')
        self.zero(ACC, 28)
        a('s_cmp_lt_i32 s49, 0'); a('s_cbranch_scc1 L_Ook')
        a.label('L_Oheavy')
        self.timeout()
        a(f'buffer_load_dwordx2 {vr(ML, 2)}, v{self.vMLO}, {WS}, s44 offen sc1')
        for n in range(4): a(f'buffer_load_dwordx4 {vr(P + 4*n, 4)}, v{self.vPO2 if n == 3 else self.vPO}, {WS}, s{44+n} offen sc1')
        a('s_waitcnt vmcnt(4)')
        a(f'v_max_f32_dpp v20, v{ML}, v{ML} quad_perm:[1,0,3,2] {FULL}')
        for c in ('quad_perm:[2,3,0,1]', 'row_ror:4', 'row_ror:8'): a(f'v_max_f32_dpp v20, v20, v20 {c} {FULL}')
        a(f'v_sub_f32 v20, v{ML}, v20'); a('v_exp_f32 v20, v20'); a('v_cndmask_b32 v20, 0, v20, s[42:43]')
        a(f'v_mul_f32 v21, v20, v{ML+1}')
        lred = [f'v_add_f32_dpp v21, v21, v21 {c} {FULL}' for c in ('quad_perm:[1,0,3,2]', 'quad_perm:[2,3,0,1]', 'row_ror:4', 'row_ror:8')]
        for n in range(4):
            a(f's_waitcnt vmcnt({3 - n})')
            for r in range(4):
                a(f'v_{"mul" if n == 0 else "fmac"}_f32_dpp v{24 + r}, v20, v{P + 4*n + r} row_newbcast:{n} {FULL}')
            a(lred[n])
        a('v_permlane16_swap_b32 v24, v25'); a('v_permlane16_swap_b32 v26, v27'); a('v_rcp_f32 v21, v21')
        a('v_add_f32 v24, v24, v25'); a('v_add_f32 v26, v26, v27')
        a('v_permlane32_swap_b32 v24, v26'); a('v_add_f32 v24, v24, v26'); a('v_mul_f32 v24, v24, v21')
        a('v_cmp_u_f32 vcc, v24, v24')
        a('v_cvt_pk_bf16_f32 v24, v24, v24')
        a('s_cbranch_vccz L_Ook')
        self.maxtree(list(range(P, P + 16)) + [ML, ML + 1], 6)
        a('s_cbranch_vccnz L_Oheavy')
        a.label('L_Ook')
        a(f'ds_write_b16 v{self.vOW}, v24'); a('s_waitcnt lgkmcnt(0)'); a('s_barrier')
        for ks in range(4): a(f'ds_read_b128 {vr(A + 4*ks, 4)}, v2 offset:{128 * ks}')
        self.stamp(3, 's49', 28)
        self.gemv(7, 4, oreg, ACC, A, fill=TOG + ['v_mov_b32 v21, 0'])
        self.rowout(ACC, 's48', 's51')
        self.stamp(12, 's49', 28)
        a('s_add_u32 s49, s49, 1')
        a('s_setpc_b64 s[34:35]')
        G = 64; ACC = 48; A = 64; X = 92
        a.label('L_Qsub')
        self.zero(ACC, 16)
        a('s_lshl_b32 s44, s53, 13'); a('s_add_u32 s44, s44, s54')
        a('s_lshl_b32 s38, s53, 11'); a(f's_add_u32 s47, s38, 0x{XAOFF - 4 * 2048:x}')
        a('s_add_u32 s45, s38, s33'); a('s_add_u32 s46, s45, s56'); a('s_add_u32 s45, s45, s57')
        a('s_lshl_b32 s48, s53, 14'); a(f's_add_u32 s48, s48, 0x{ZOFF - 4 * 16384:x}')
        a('s_cmp_lt_u32 s53, 4'); a('s_cbranch_scc1 L_Qx')
        self.resid_poll('s47')
        self.gather_sum('s48', G, False)
        a.label('L_Qx')
        a('ds_write_b32 v15, v24'); a('s_waitcnt lgkmcnt(0)'); a('s_barrier')
        for ks in range(7): a(f'ds_read_b128 {vr(A + 4*ks, 4)}, v2 offset:{128 * ks}')
        a(f'ds_read_b128 {vr(X, 4)}, v1')
        for x in self.xrow_ops('s45', 's46'): a(x)
        self.stamp(24, 's53', 28)
        fill = TOG + [None, 's_waitcnt lgkmcnt(0)'] + self.stats_ops(X)
        self.gemv(4, 7, qreg, ACC, A, fill=fill, nother=1)
        a(f'v_mul_f32 v21, v24, v{self.vCS}')
        self.rowsel(20, ACC, [(jj, 1 << jj) for jj in range(4)])
        a('v_sub_f32 v20, v20, v21'); a('v_mul_f32 v20, v20, v25')
        a('v_cvt_pk_bf16_f32 v20, v20, v20'); a('v_min_u32 v20, -2, v20')
        a(f'buffer_store_short v20, v{self.vQS}, {WS}, s44 offen sc1')
        self.stamp(33, 's53', 28)
        a('s_add_u32 s53, s53, 1')
        a('s_setpc_b64 s[34:35]')
        a.label('L_roleOQ')
        self.cq = ['init']
        self.bits('v6', 'v0', 'v7', [(0, 5, 4), (5, 1, 13)])
        a('s_lshl_b32 s38, s2, 9'); a('s_lshl_b32 s39, s3, 14'); a('s_add_u32 s39, s39, s38')
        self.vm(f'buffer_store_dwordx4 v[20:23], v6, {WS}, s39 offen sc1', 'init')
        self.srd(20, 70, 448 * 8192)
        a('s_lshl_b32 s39, s3, 7'); a('s_add_u32 s38, s38, s39')
        a(f'v_lshl_add_u32 v{self.vDQ}, v4, 13, s38'); a(f'v_add_u32 v{self.vDQ}, v{self.vDQ}, v2')
        self.table(88, 8192)
        pq = [dict(sub='L_dmaQ', B=0, slot=ks % 4, rd=[(qreg(jj, ks) + 2 * rp, rp * 2048 + jj * 256) for jj in range(4) for rp in range(4)]) for ks in range(7)]
        po = [dict(sub='L_dmaO', B=1, slot=(3, 0, 1)[i % 3], rd=self.typeB_reads(oreg, i // 2, i % 2)) for i in range(8)]
        self.issue(pq[0])
        self.srd(28, 64, 3584)
        XL = 48
        a(f'v_mov_b32 v10, 0x{OOB:x}')
        a('v_cmp_gt_u32 vcc, 56, v0'); a('v_bfe_u32 v7, v0, 2, 2'); a('v_mul_u32_u24 v7, 896, v7'); a('v_cndmask_b32 v6, v10, v1, vcc')
        for b in range(4): self.vm(f'buffer_load_dwordx4 {vr(XL + 4 * b, 4)}, v6, {W3}, 0 offen offset:{b * 896}', 'xl')
        a('v_add_u32 v7, v7, v2')
        a('s_mov_b32 s38, 0x3f803f80'); a('s_mov_b32 s39, s38')
        for r in range(0, 28, 2): a(f'v_mov_b64 {vr(A + r, 2)}, s[38:39]')
        a('s_mov_b32 exec_lo, 0x33333333'); a('s_mov_b32 exec_hi, 0x33333333')
        for ks in range(7): self.vm(f'buffer_load_dwordx4 {vr(A + 4 * ks, 4)}, v7, {W3}, 0 offen offset:{128 * ks}', 'xa')
        a('s_mov_b64 exec, -1')
        self.issue(pq[1])
        self.srd(24, 72, 4096 * 896)
        a('s_lshl_b32 s39, s2, 8')
        self.typeB(f'v{self.vDO}', 's39')
        self.consts(); a('s_lshl_b32 s38, s3, 13'); a('v_add_u32 v9, s38, v9')
        self.announce('init')
        self.issue(pq[2])
        self.vmwait('xl')
        for b in range(4):
            for x in self.stats_ops(XL + 4 * b):
                if x: a(x)
            a(f'v_mov_b32_dpp v92, v24 quad_perm:[0,1,2,3] row_mask:0x{1 << b:x} bank_mask:0xf')
            a(f'v_mov_b32_dpp v93, v25 quad_perm:[0,1,2,3] row_mask:0x{1 << b:x} bank_mask:0xf')
        self.issue(pq[3])
        self.zero(ACC, 16)
        self.bits('v94', 'v0', 'v6', [(0, 1, 1), (2, 1, 2), (3, 1, 4), (1, 1, 5), (4, 2, 13)])
        a('s_lshl_b32 s38, s3, 7'); a('s_lshl_b32 s44, s2, 9'); a('s_add_u32 s44, s38, s44')
        nxt = {1: pq[4], 2: pq[5], 3: pq[6], 4: po[0], 5: po[1]}
        def q1mm(ks):
            for jj in range(4): a(f'v_smfmac_f32_16x16x64_bf16 {vr(ACC + 4 * jj, 4)}, {vr(A + 4 * ks, 4)}, {rr(qreg(jj, ks), 8)}, v3')
        hooks = {2: lambda: self.resolve(self.vCL, 28), 3: lambda: self.check(28)}
        for i in range(7):
            self.consume(pq[i], nxt.get(i), hooks.get(i))
            if i == 4: self.mask_addr(30, 31); self.vm(self.mask_load(30, 28), 'cnt')
            if i: q1mm(i - 1)
        a('s_waitcnt lgkmcnt(0)')
        q1mm(6)
        self.vmwait('cnt'); self.wait_masks(30, 28, pre=True)
        a('v_readfirstlane_b32 s55, v29')
        self.stamp(20, None, 28)
        for jj in range(4):
            a(f'v_add_f32 v{20 + jj}, v{ACC + 4*jj}, v{ACC + 4*jj + 1}'); a(f'v_add_f32 v{24 + jj}, v{ACC + 4*jj + 2}, v{ACC + 4*jj + 3}')
        for jj in range(4): a(f'v_fma_f32 v{20 + jj}, -v92, v{24 + jj}, v{20 + jj}')
        for jj in range(4): a(f'v_mul_f32 v{20 + jj}, v{20 + jj}, v93')
        for jj in range(4): a(f'v_cvt_pk_bf16_f32 v{20 + jj}, v{20 + jj}, v{20 + jj}')
        for jj in range(4): a(f'v_min_u32 v{20 + jj}, -2, v{20 + jj}')
        for jj in range(4): self.vm(f'buffer_store_short v{20 + jj}, v94, {WS}, s44 offen offset:{(jj & 1) * 8 + (jj >> 1) * 64} sc1')
        for jj in range(4): a(f'v_mov_b32_dpp v{self.vCS}, v{24 + jj} quad_perm:[0,1,2,3] row_mask:0x{1 << jj:x} bank_mask:0xf')
        self.stamp(35, None, 28)
        self.issue(po[2])
        a(f's_lshl_b32 s41, s2, 14'); a(f's_add_u32 s41, s41, 0x{POFF:x}')
        self.x0off(); self.gather_offs()
        a('s_lshl_b32 s40, s2, 10'); a(f's_add_u32 s40, s40, 0x{YOFF:x}')
        PO, PO2, MO, OW = self.vPO, self.vPO2, self.vMLO, self.vOW
        self.bits(f'v{PO}', 'v0', 'v6', [(0, 4, 4), (4, 2, 10)])
        a('s_lshl_b32 s38, s3, 8'); a(f'v_add_u32 v{PO}, s38, v{PO}')
        a('v_cmp_gt_u32 vcc, 32, v0'); a('v_lshrrev_b32 v6, 4, v0'); a('v_bfe_u32 v7, v0, 2, 2'); a(f'v_cndmask_b32 v{PO2}, v10, v{PO}, vcc')
        a('v_add_u32 v6, v6, v7'); a('v_and_b32 v6, 3, v6')
        a('v_and_b32 v7, 3, v0'); a('v_lshl_add_u32 v6, v7, 2, v6')
        a(f'v_cmp_gt_u32 s[42:43], {NC}, v6'); a(f'v_min_u32 v6, {NC - 1}, v6'); a(f'v_lshlrev_b32 v{MO}, 7, v6'); a(f'v_add_u32 v{MO}, {MLO}, v{MO}')
        self.bits(f'v{OW}', 'v0', 'v6', [(4, 2, 1), (0, 3, 4), (3, 1, 8)])
        a('s_lshr_b32 s38, s3, 1'); a('s_lshl_b32 s38, s38, 7'); a('s_and_b32 s39, s3, 1'); a('s_lshl_b32 s39, s39, 3'); a('s_add_u32 s38, s38, s39')
        a(f'v_add_u32 v{OW}, s38, v{OW}')
        self.bits(f'v{self.vQS}', 'v0', 'v6', [(0, 1, 1), (2, 1, 2), (4, 1, 3), (3, 1, 4), (1, 1, 5), (5, 1, 6)])
        a('s_lshl_b32 s38, s3, 7'); a(f'v_add_u32 v{self.vQS}, s38, v{self.vQS}')
        a('s_cmp_eq_u32 s2, 0'); a(f's_cselect_b32 s33, 0x{XBOFF - 4 * 2048:x}, s57')
        a('s_mov_b32 s53, 3'); a(f's_mov_b32 s54, 0x{OOB:x}')
        for i in range(8):
            self.consume(po[i], po[i + 2] if 1 <= i < 6 else None)
            if i == 1: a('s_call_b64 s[34:35], L_Osub')
            if i == 2: a('s_call_b64 s[34:35], L_Qsub'); a('s_lshl_b32 s54, s2, 9')
        self.ready(True)
        a.label('L_OQloop')
        a('s_call_b64 s[34:35], L_Osub')
        self.readout(pq[6])
        a('s_call_b64 s[34:35], L_Qsub')
        self.readout(po[6], inwin); self.readout(po[7], inwin)
        a('s_call_b64 s[34:35], L_Osub')
        a('s_cmp_lt_u32 s49, 8'); a('s_cbranch_scc1 L_OQloop')
        a('s_endpgm')

    def roleF(self):
        a = self.a
        self.dma_sub('L_dmaG', W1, 'v44', 88, 64 * 3584)
        self.dma_subB('L_dmaD', W3, 'v11')
        breg = lambda jj, ks: 256 + (jj * 7 + ks) * 8
        def dreg(jj, ks):
            i = jj * 2 + ks
            return 256 + 224 + 8 * i if i < 4 else 176 + 8 * (i - 4)
        G = 64; ACC = 48; A = 96; X = 124; CSUM = self.vCS; ACD = 128; X0 = 160
        a.label('L_Fsub')
        self.calc_ib()
        self.zero(ACC, 16); self.zero(ACD, 28)
        a('s_lshl_b32 s38, s50, 14'); a(f's_add_u32 s48, s38, 0x{YOFF:x}')
        a('s_add_u32 s44, s38, s40'); a('s_add_u32 s51, s44, s56'); a('s_add_u32 s44, s44, s57')
        a('s_lshl_b32 s38, s50, 11'); a(f's_add_u32 s47, s38, 0x{XBOFF - 4 * 2048:x}')
        a('s_add_u32 s45, s38, s41'); a('s_add_u32 s46, s45, s56'); a('s_add_u32 s45, s45, s57')
        a('s_cmp_lt_i32 s49, 0'); a('s_cbranch_scc1 L_Fx')
        a('s_bitcmp1_b32 s49, 0'); a('s_cbranch_scc1 L_Fr')
        a(f'v_lshlrev_b32 v16, 16, v{X0}'); a(f'v_and_b32 v17, 0xffff0000, v{X0}')
        for i in range(3): a(f'v_mov_b32 v{X0 + i}, v{X0 + i + 1}')
        a('s_branch L_Fg')
        a.label('L_Fr')
        self.resid_poll('s47')
        a.label('L_Fg')
        self.gather_sum('s48', G, True)
        a.label('L_Fx')
        a('ds_write_b32 v15, v24'); a('s_waitcnt lgkmcnt(0)'); a('s_barrier')
        for ks in range(7): a(f'ds_read_b128 {vr(A + 4*ks, 4)}, v2 offset:{128 * ks}')
        a(f'ds_read_b128 {vr(X, 4)}, v1')
        for x in self.xrow_ops('s45', 's46'): a(x)
        self.stamp(3, 's49', 28)
        fill = [None] * 5 + ['s_waitcnt lgkmcnt(0)'] + self.stats_ops(X)
        self.gemv(4, 7, breg, ACC, A, fill=fill, nother=1)
        a(f'v_mul_f32 v22, v24, v{CSUM}'); a(f'v_mul_f32 v23, v24, v{CSUM+1}'); a('v_mul_f32 v25, v25, v25')
        for jj in (0, 2, 1, 3): self.rowsel(20 + jj // 2, ACC, [(jj, 10 if jj & 1 else 5)])
        a('v_sub_f32 v20, v20, v22'); a('v_sub_f32 v21, v21, v23')
        a('v_max_f32 v20, 0, v20'); a('v_mul_f32 v21, v21, v25'); a('v_mul_f32 v20, v20, v21')
        a('v_cvt_pk_bf16_f32 v20, v20, v20')
        a('ds_write_b16 v40, v20'); a('s_waitcnt lgkmcnt(0)'); a('s_barrier')
        for ks in range(2): a(f'ds_read_b128 {vr(A + 4*ks, 4)}, v2 offset:{2048 + 128 * ks}')
        a('v_mov_b32 v21, 0')
        self.gemv(7, 2, dreg, ACD, A)
        self.rowout(ACD, 's44', 's51')
        self.stamp(12, 's49', 28)
        a('s_add_u32 s49, s49, 1')
        a('s_cmp_eq_u32 s49, 0'); a('s_cbranch_scc1 L_Fret')
        a('s_cmp_lt_u32 s49, 8'); a('s_cbranch_scc1 L_Fsub')
        a('s_endpgm')
        a.label('L_roleF')
        self.cq = ['init'] + ['hq'] * (8 * (self.hq[1] - self.hq[0]) if self.hq else 0)
        a('s_cmp_lt_u32 s3, 2'); a('s_cselect_b64 s[20:21], s[76:77], s[78:79]'); a(f's_mov_b32 s22, 0x{448 * 3584:x}'); a('s_mov_b32 s23, 0x20000')
        a('s_sub_u32 s2, s2, 16')
        a('v_mul_u32_u24 v6, 3584, v4')
        a('s_lshl_b32 s38, s2, 8'); a('s_and_b32 s39, s3, 1'); a('s_lshl_b32 s39, s39, 7'); a('s_add_u32 s38, s38, s39')
        a('v_add3_u32 v44, v6, v2, s38')
        self.table(88, 3584)
        pl = [dict(sub='L_dmaG', B=0, rd=[(breg(jj, ks) + 2 * rp, (jj >> 1) * 16384 + rp * 2048 + (jj & 1) * 256) for jj in range(4) for rp in range(4)]) for ks in range(7)]
        pl += [dict(sub='L_dmaD', B=1, rd=self.typeB_reads(dreg, i // 2, i % 2)) for i in range(4)]
        for i, p in enumerate(pl): p['slot'] = i % 4
        if self.hq: self.announce('init')
        for i in range(2): self.issue(pl[i])
        self.srd(28, 80, 1792 * 896); self.srd(68, 64, 3584)
        a('s_lshl_b32 s39, s2, 7')
        self.typeB('v11', 's39')
        self.consts()
        a('s_lshr_b32 s38, s3, 1'); a('s_lshl_b32 s38, s38, 13'); a('s_and_b32 s39, s3, 1'); a('s_lshl_b32 s39, s39, 9'); a('s_add_u32 s38, s38, s39'); a('v_add_u32 v9, s38, v9')
        self.x0off(); self.gather_offs()
        for b in range(4): self.vm(f'buffer_load_dword v{X0 + b}, v12, s[68:71], 0 offen offset:{b * 896}', 'x0')
        a('v_and_b32 v6, 31, v0'); a('s_lshl_b32 s38, s3, 6'); a('s_add_u32 s38, s38, 2048'); a('v_lshl_add_u32 v40, v6, 1, s38')
        a('s_lshl_b32 s40, s2, 10'); a(f's_add_u32 s40, s40, 0x{ZOFF:x}')
        a('s_cmp_eq_u32 s2, 0'); a(f's_cselect_b32 s41, 0x{XAOFF:x}, s57')
        if not self.hq: self.announce('init')
        self.issue(pl[2])
        a('s_branch L_Fsub')
        a.label('L_Fret')
        self.issue(pl[3])
        hooks = {2: lambda: self.resolve(self.vCL, 28), 3: lambda: self.check(28)}
        for i in range(11):
            self.consume(pl[i], pl[i + 3] if 1 <= i < 8 else None, hooks.get(i))
            if i == 7:
                self.stamp(20, None, 28)
                self.colsum(4, 7, breg, ACC)
                self.rowsel(CSUM, ACC, [(0, 5), (1, 10)]); self.rowsel(CSUM + 1, ACC, [(2, 5), (3, 10)])
        self.ready()
        a('s_branch L_Fsub')

    def roleW(self):
        a = self.a
        self.cq = ['init'] + ['hq'] * (8 * (self.hq[1] - self.hq[0]) if self.hq else 0)
        self.consts()
        self.announce('init')
        a('s_waitcnt vmcnt(0)'); self.resolve(self.vCL, 28); self.check(28)
        a('s_sub_u32 s2, s2, 30')
        if self.hpf: self.helper()
        a('s_cmp_lg_u32 s2, 0'); a('s_cbranch_scc1 L_end')
        self.srd(20, 82, 3584)
        self.x0off(); self.gather_offs()
        self.ready()
        G = 64
        a('s_mov_b32 s49, 0'); a(f's_mov_b32 s47, 0x{XAOFF + 4 * 2048:x}'); a(f's_mov_b32 s48, 0x{ZOFF + 4 * 16384:x}'); a('s_mov_b32 s44, 0')
        a.label('L_Wtop')
        self.resid_poll('s47')
        self.gather_sum('s48', G, False)
        a(f'buffer_store_dword v24, v12, {W1}, s44 offen')
        self.stamp(12, 's49', 28)
        a('s_add_u32 s49, s49, 1'); a('s_add_u32 s47, s47, 2048'); a('s_add_u32 s48, s48, 16384'); a('s_add_u32 s44, s44, 896')
        a('s_cmp_lt_u32 s49, 4'); a('s_cbranch_scc1 L_Wtop')
        a('s_endpgm')
    def helper(self):
        a = self.a
        hq, ho = self.hpf if isinstance(self.hpf, (list, tuple)) else (48, 48)
        a('s_lshl_b32 s38, s2, 2'); a('s_add_u32 s38, s38, s3')
        self.srd(20, 70, 448 * 8192); self.srd(24, 72, 4096 * 896)
        a('s_lshl_b32 s40, s38, 10'); a(f's_add_u32 s40, s40, {(448 - hq) * 8192}')
        l = self.lab('L_hq'); a(f's_mov_b32 s41, {hq}')
        if hq:
            a.label(l)
            a('s_waitcnt vmcnt(11)'); a(f'buffer_load_dwordx4 v[64:67], v1, {W1}, s40 offen {self.hpol}')
            a('s_add_u32 s40, s40, 8192'); a('s_sub_u32 s41, s41, 1'); a('s_cmp_lg_u32 s41, 0'); a(f's_cbranch_scc1 {l}')
        if ho:
            a('s_mul_i32 s40, s38, 458752'); a(f's_add_u32 s40, s40, {229376 - ho * 1024}'); a('s_add_u32 s42, s40, 229376')
            l = self.lab('L_ho'); a(f's_mov_b32 s41, {ho}')
            a.label(l)
            a('s_waitcnt vmcnt(10)'); a(f'buffer_load_dwordx4 v[64:67], v1, {W2}, s40 offen {self.hpol}')
            a(f'buffer_load_dwordx4 v[64:67], v1, {W2}, s42 offen {self.hpol}')
            a('s_add_u32 s40, s40, 1024'); a('s_add_u32 s42, s42, 1024'); a('s_sub_u32 s41, s41, 1'); a('s_cmp_lg_u32 s41, 0'); a(f's_cbranch_scc1 {l}')
        a('s_waitcnt vmcnt(0)')
        self.stamp(20, None, 28)

if __name__ == '__main__':
    kw = json.loads(sys.argv[2]) if len(sys.argv) > 2 else {}
    open(sys.argv[1], 'w').write(Gen(**kw).build())
```

```python
import sys, struct, json
from asmlib import Asm
NAME = "interleave_layers__mha_block_cached__glu_gated_reglu__decode"

QOFF = 0x0; YOFF = 0x10000; ZOFF = 0x30000; XAOFF = 0x50000; XBOFF = 0x54000; POFF = 0x80000; DOFF = 0x400000
PB = 16384; PIB = 16 * PB; MLO = 14336
OOB = 0x40000000
NC = 14; NW = 56
CS = 0.09016844005556021
def f2u(x): return struct.unpack('<I', struct.pack('<f', x))[0]

K_SRD = 's[8:11]'; V_SRD = 's[12:15]'; WS = 's[16:19]'; W1 = 's[20:23]'; W2 = 's[24:27]'; W3 = 's[28:31]'
DBG = 's[84:85]'
NCHAIN = 32
K4 = 's[88:91]'; V4 = 's[92:95]'
FULL = 'row_mask:0xf bank_mask:0xf'

def vr(b, n=1): return f'v{b}' if n == 1 else f'v[{b}:{b+n-1}]'
def ar(b, n=1): return f'a{b}' if n == 1 else f'a[{b}:{b+n-1}]'
def rr(b, n=1): return vr(b, n) if b < 256 else ar(b - 256, n)

class Gen:
    def __init__(self, diag=False, PF=65, depth=8, hpf=True, hpol='nt', cpf=False, rows=(16, 10, 7), hq=(1, 5), fake=0, CL=12, PF2=None, reord=2, lightO=0, split=True, tlb=0, fx=2, thr=None, wtlb=0):
        self.a = Asm(); self.diag = diag; self.PF = PF; self.depth = depth; self.hpf = hpf; self.hpol = hpol; self.cpf = cpf; self.rows = rows; self.hq = hq; self.fake = fake; self.CL = CL; self.PF2 = PF2; self.reord = reord; self.lightO = lightO; self.split = split; self.tlb = tlb; self.fx = fx; self.thr = thr; self.wtlb = wtlb
        self.uid = 0
    def lab(self, p='L'):
        self.uid += 1; return f'{p}_{self.uid}'

    def bits(self, dst, lane, tmp, mp):
        a = self.a; first = True
        for lb, n, ab in mp:
            if first:
                a(f'v_bfe_u32 {dst}, {lane}, {lb}, {n}')
                if ab: a(f'v_lshlrev_b32 {dst}, {ab}, {dst}')
                first = False
            else:
                a(f'v_bfe_u32 {tmp}, {lane}, {lb}, {n}')
                a(f'v_lshl_add_u32 {dst}, {tmp}, {ab}, {dst}')
    def srd(self, base, lo, size):
        a = self.a
        a(f's_mov_b64 s[{base}:{base+1}], s[{lo}:{lo+1}]')
        a(f's_mov_b32 s{base+2}, 0x{size:x}'); a(f's_mov_b32 s{base+3}, 0x20000')
    def timeout(self):
        self.a('s_sub_u32 s52, s52, 1'); self.a('s_cbranch_scc1 L_bail')
    FLAG = 4096; CNTA = 16; CNTB = 144
    def wait_counter(self, va, vd, vt, off, n, pre=False):
        a = self.a; l = self.lab('L_cnt'); c = self.lab('L_cntc')
        if pre: a(f's_branch {c}')
        else: a(f'v_mov_b32 v{va}, 0')
        a.label(l)
        self.timeout()
        a(f'global_load_dword v{vd}, v{va}, {DBG} offset:{off} sc1'); a('s_waitcnt vmcnt(0)')
        a.label(c)
        a(f'v_and_b32 v{vt}, 0xff, v{vd}'); a(f'v_cmp_gt_u32 vcc, {n}, v{vt}'); a(f's_cbranch_vccnz {l}')
    def claim(self, va, vd, vr_):
        a = self.a; l = self.lab('L_cl')
        a('s_lshl_b32 s38, 1, s101'); a(f'v_mov_b32 v{va}, s100'); a(f'v_mov_b32 v{vd}, s38')
        a('s_or_b32 s38, s3, s7')
        a('s_waitcnt lgkmcnt(0)')
        a(f's_cbranch_scc1 {l}')
        a('s_mov_b64 exec, 1')
        a(f'global_atomic_or v{vr_}, v{va}, v{vd}, {DBG} sc0 sc1')
        a('s_mov_b64 exec, -1')
        a.label(l)
    def confirm(self, vr_, t):
        a = self.a; l = self.lab('L_rs'); w = self.lab('L_rw')
        a(f'v_mov_b32 v{t}, 0')
        a('s_cmp_lg_u32 s3, 0'); a(f's_cbranch_scc1 {l}')
        a('s_movk_i32 s38, 0x100'); a('s_cmp_lg_u32 s7, 0'); a(f's_cbranch_scc1 {w}')
        a(f'v_readfirstlane_b32 s39, v{vr_}'); a('s_bitcmp1_b32 s39, s101'); a(f's_cbranch_scc0 {w}')
        a('s_call_b64 s[96:97], L_lost')
        a.label(w)
        a(f'v_mov_b32 v{t+1}, s38'); a(f'ds_write_b32 v{t}, v{t+1} offset:{self.FLAG}'); a('s_waitcnt lgkmcnt(0)')
        a.label(l)
        a('s_barrier')
        a(f'ds_read_b32 v{t+1}, v{t} offset:{self.FLAG}'); a('s_waitcnt lgkmcnt(0)')
        a(f'v_readfirstlane_b32 s38, v{t+1}'); a('s_cmp_lg_u32 s38, 0x100'); a('s_cbranch_scc1 L_redo')
    def signal(self, va, vd, off, val):
        a = self.a; l = self.lab('L_sg')
        a('s_cmp_lg_u32 s3, 0'); a(f's_cbranch_scc1 {l}')
        a('s_mov_b64 exec, 1'); a(f'v_mov_b32 v{va}, 0'); a(f'v_mov_b32 v{vd}, {val}')
        a(f'global_atomic_add v{va}, v{vd}, {DBG} offset:{off} sc1')
        a('s_mov_b64 exec, -1')
        a.label(l)
    def rare_paths(self):
        a = self.a
        a.label('L_odd')
        a('s_waitcnt lgkmcnt(0)'); a('v_mov_b32 v1, 0')
        a('s_cmp_lg_u32 s3, 0'); a('s_cbranch_scc1 L_odd2')
        a('s_and_b32 s38, s36, 3'); a('s_lshl_b32 s38, s38, 6'); a('s_lshr_b32 s39, s36, 2'); a('s_lshl3_add_u32 s38, s39, s38')
        a('v_mov_b32 v2, s38'); a('s_lshl_b32 s39, s37, 3'); a('s_movk_i32 s41, 24')
        a.label('L_odd1')
        a(f'global_load_dword v3, v2, {DBG} sc1'); a('s_waitcnt vmcnt(0)')
        a('v_readfirstlane_b32 s38, v3'); a('s_lshr_b32 s38, s38, s39'); a('s_and_b32 s38, s38, 0xff'); a('s_bcnt1_i32_b32 s40, s38')
        a('s_cmp_ge_u32 s40, 7'); a('s_cselect_b32 s41, 0, s41'); a('s_sub_u32 s41, s41, 1'); a('s_cbranch_scc0 L_odd1')
        a('s_ff0_i32_b32 s38, s38'); a('v_mov_b32 v2, s38'); a(f'ds_write_b32 v1, v2 offset:{self.FLAG + 4}'); a('s_waitcnt lgkmcnt(0)')
        a.label('L_odd2')
        a('s_barrier')
        a(f'ds_read_b32 v2, v1 offset:{self.FLAG + 4}'); a('s_waitcnt lgkmcnt(0)')
        a('v_readfirstlane_b32 s38, v2'); a('s_branch L_even')
        a.label('L_lost')
        a('s_waitcnt vmcnt(0)')
        self.bits('v62', 'v0', 'v63', [(0, 2, 6), (2, 1, 3)])
        a.label('L_lost1')
        a(f'global_load_dword v60, v62, {DBG} sc1'); a('s_waitcnt vmcnt(0)')
        a('v_cmp_ne_u32 vcc, -1, v60'); a('s_movk_i32 s38, 0x300'); a('s_cbranch_vccz L_lost2')
        a('s_getreg_b32 s39, hwreg(HW_REG_XCC_ID, 0, 3)'); a('s_ff1_i32_b32 s38, vcc_lo')
        a('s_bitcmp1_b32 vcc_lo, s39'); a('s_cselect_b32 s38, s39, s38')
        a('s_nop 3'); a('v_readlane_b32 s39, v60, s38'); a('v_readlane_b32 s40, v62, s38'); a('s_ff0_i32_b32 s39, s39')
        a('s_lshl_b32 s41, 1, s39'); a('v_mov_b32 v61, s41'); a('v_mov_b32 v63, s40')
        a('s_mov_b64 exec, 1'); a(f'global_atomic_or v60, v63, v61, {DBG} sc0 sc1'); a('s_mov_b64 exec, -1'); a('s_waitcnt vmcnt(0)')
        a('v_readfirstlane_b32 s40, v60'); a('s_bitcmp1_b32 s40, s39'); a('s_cbranch_scc1 L_lost1')
        a('s_lshl_b32 s38, s38, 5'); a('s_add_u32 s38, s38, s39'); a('s_bitset1_b32 s38, 9')
        a.label('L_lost2')
        a('s_setpc_b64 s[96:97]')
        a.label('L_redo')
        a('s_bitcmp1_b32 s38, 8'); a('s_cbranch_scc1 L_bail')
        a('s_waitcnt vmcnt(0) lgkmcnt(0)'); a('s_barrier')
        a('s_load_dwordx16 s[64:79], s[0:1], 0')
        a('s_load_dwordx8 s[80:87], s[0:1], 64')
        a('s_bfe_u32 s36, s38, 0x30005'); a('s_and_b32 s2, s38, 31'); a('s_mov_b32 s7, 1')
        a('s_branch L_role')
    def stamp(self, idx, sidx=None, t0=20):
        if not self.diag: return
        a = self.a
        a('s_waitcnt lgkmcnt(0)'); a('s_memrealtime s[62:63]'); a('s_waitcnt lgkmcnt(0)')
        a(f'v_mov_b32 v{t0}, s62')
        if sidx: a(f's_lshl_b32 s60, {sidx}, 2'); a('s_add_u32 s60, s60, s61')
        else: a('s_mov_b32 s60, s61')
        a(f'v_mov_b32 v{t0+1}, 0')
        a('s_mov_b64 exec, 1')
        a(f'buffer_store_dword v{t0}, v{t0+1}, {WS}, s60 offen offset:{idx*4}')
        a('s_mov_b64 exec, -1')
    def maxtree(self, regs, t):
        a = self.a; regs = list(regs)
        a(f'v_max3_u32 v{t}, v{regs[0]}, v{regs[1]}, v{regs[2 if len(regs) > 2 else 1]}')
        regs = regs[3:]
        while regs:
            x = regs[:2]; regs = regs[2:]
            a(f'v_max3_u32 v{t}, v{t}, v{x[0]}, v{x[-1]}')
        a(f'v_cmp_eq_u32 vcc, -1, v{t}')

    def build(self):
        a = self.a
        a('s_cmp_ge_u32 s2, 256'); a('s_cbranch_scc1 L_end')
        a('s_load_dwordx16 s[64:79], s[0:1], 0')
        a('s_load_dwordx8 s[80:87], s[0:1], 64')
        a('s_getreg_b32 s36, hwreg(HW_REG_XCC_ID, 0, 3)')
        a('s_getreg_b32 s38, hwreg(HW_REG_HW_ID, 8, 4)'); a('s_getreg_b32 s37, hwreg(HW_REG_HW_ID, 13, 2)')
        a('v_lshrrev_b32 v1, 6, v0'); a('v_and_b32 v0, 63, v0')
        a('v_readfirstlane_b32 s3, v1')
        a('s_mov_b32 s52, 400000'); a('s_mov_b32 s7, 0')
        if self.fake == 1: a('s_and_b32 s38, s38, 6')
        if self.fake == 2: a('s_and_b32 s36, s36, 5')
        if self.fake == 3: a('s_and_b32 s36, s2, 7'); a('s_lshr_b32 s38, s2, 5'); a('s_mov_b32 s37, 0')
        if self.fake == 4: a('s_mov_b32 s36, 0'); a('s_mov_b32 s38, 0'); a('s_mov_b32 s37, 0')
        if self.fake == 5:
            a('s_bitcmp0_b32 s37, 0'); a('s_cselect_b32 s39, 8, 0'); a('s_cmp_eq_u32 s38, 3'); a('s_cselect_b32 s38, s39, s38')
        a('s_bitcmp0_b32 s37, 0'); a('s_cselect_b32 s39, 8, 0'); a('s_cmp_eq_u32 s38, s39'); a('s_cbranch_scc1 L_odd')
        a.label('L_even')
        a('s_and_b32 s38, s38, 7'); a('s_lshl3_add_u32 s2, s37, s38')
        a.label('L_role')
        a('s_mov_b32 s101, s2'); a('s_and_b32 s100, s36, 3'); a('s_lshl_b32 s100, s100, 6'); a('s_lshr_b32 s38, s36, 2'); a('s_lshl3_add_u32 s100, s38, s100')
        if self.diag:
            a('s_lshl3_add_u32 s61, s2, s36'); a('s_lshl2_add_u32 s61, s61, s3'); a('s_lshl_b32 s61, s61, 8'); a(f's_add_u32 s61, s61, 0x{DOFF:x}')
        if self.cpf:
            a('s_getpc_b64 s[38:39]'); a.label('L_pc')
            a('s_lshl_b32 s37, s2, 2'); a('s_add_u32 s37, s37, s3'); a('s_lshl_b32 s37, s37, 10')
            a('s_cmp_ge_u32 s37, L_end-L_pc'); a('s_cbranch_scc1 L_nopf')
            a('v_lshl_add_u32 v2, v0, 4, s37'); a('v_min_u32 v2, L_end-L_pc-16, v2')
            a('global_load_dwordx4 v[60:63], v2, s[38:39]')
            a.label('L_nopf')
        a('s_cmp_eq_u32 s36, 0'); a('s_cbranch_scc1 L_chain')
        self.stream()
        a.label('L_chain')
        self.chain_common()
        self.roleW(); self.roleOQ(); self.roleF()
        self.rare_paths()
        a.label('L_bail')
        a('s_mov_b64 exec, 1')
        a('v_mov_b32 v0, 32'); a('v_mov_b32 v1, 1')
        a(f'global_atomic_add v0, v1, {DBG} sc1')
        a('v_mov_b32 v0, 36'); a('v_mov_b32 v1, s2')
        a(f'global_store_dword v0, v1, {DBG} sc1')
        a.label('L_end')
        body = a.finish()
        hdr = open('cdna_kernels/' + NAME + '.s.ref').read().split('\n')
        top = [l for l in hdr if l.startswith(';') and '@launch' not in l]
        s = '\n'.join(top) + '\n; @launch grid=(256,1,1) block=(256,1,1) lds=163840\n'
        s += f'.amdgcn_target "amdgcn-amd-amdhsa--gfx950"\n.text\n.globl {NAME}_kernel\n.p2align 8\n.type {NAME}_kernel,@function\n{NAME}_kernel:\n'
        s += body
        s += f'''s_endpgm
.section .rodata,"a"
.p2align 6
.amdhsa_kernel {NAME}_kernel
  .amdhsa_next_free_vgpr 512
  .amdhsa_next_free_sgpr 102
  .amdhsa_accum_offset 256
  .amdhsa_group_segment_fixed_size 0
  .amdhsa_kernarg_size 96
  .amdhsa_user_sgpr_count 2
  .amdhsa_user_sgpr_kernarg_segment_ptr 1
  .amdhsa_system_sgpr_workgroup_id_x 1
.end_amdhsa_kernel
'''
        return s

    CA = [0, 4096]; Q1L = 8192; MA = [10240, 10272]; CO = [10304, 10308]; TB = 10496; WLDS = 37 * 1024
    vK, vV, vDs, vL16, vQo, vIQ, vIP = 1, 2, 3, 4, 5, 6, 7
    vM = 8; vT = 12; vBias = 15; vMC = 16; vL = 17; vQ = 24; vAcc = 32; vH = 48
    def kreg(self, s, u):
        return 64 + 96 * s + 16 * u if u < 6 else 256 + 128 * s + 16 * (u - 6)
    def vreg0(self, s, P, t):
        return 256 + 128 * s + 64 + 8 * (4 * P + t)
    def tile(self, n):
        if n < 40:
            u, t = n // 4, n % 4
            return 0, u // 2, t * 128 + (u & 1) * 512
        m = n - 40; g = m // 8; k = m % 8
        if g < 4: P, t = k // 4, k % 4
        else: t, P = k // 2, k % 2
        return 1, g, t * 128 + P * 1024
    def ldsslot(self, s, n):
        if n <= 72: return (n - 56) + 17 * s
        return 34 + (n - 73)
    def load(self, s, n, wait=True, skip=False):
        a = self.a
        kv, g, imm = self.tile(n)
        if n == 0 and not self.prologue:
            for j in range(5): a(f's_add_u32 s{40+j}, s{40+j}, 0x2000000')
            a('s_add_u32 s90, s90, 0x2000000'); a('s_mov_b32 s94, s90')
        l = None
        if skip:
            l = self.lab('L_sk'); a('s_cmp_eq_u32 s49, 4'); a(f's_cbranch_scc1 {l}')
        va = f'v{self.vV if kv else self.vK}'; srd = V_SRD if kv else K_SRD
        if g == 4: srd = V4 if kv else K4
        dst = None
        if n < 40: dst = self.kreg(s, n // 4) + 4 * (n % 4)
        elif n < 56:
            m = n - 40; dst = self.vreg0(s, (m % 8) // 4, m % 4) + 4 * (m // 8)
        elif n >= 76: dst = self.vH + 4 * (n - 76)
        if dst is None:
            a(f's_add_u32 m0, s45, {self.ldsslot(s, n) * 1024 - imm}')
        if wait and len(self.vmq) >= self.depth:
            a(f's_waitcnt vmcnt({self.depth - 1})'); self.vmq = self.vmq[-(self.depth - 1):]
        if dst is None:
            a(f'buffer_load_dwordx4 {va}, {srd}, s{40+g} offen offset:{imm} nt lds')
        else:
            a(f'buffer_load_dwordx4 {rr(dst, 4)}, {va}, {srd}, s{40+g} offen offset:{imm} nt')
        self.vmq.append((s, n))
        if l: a.label(l)
    def need_vm(self, tag):
        if tag in self.vmq:
            k = len(self.vmq) - 1 - self.vmq.index(tag)
            self.a(f's_waitcnt vmcnt({k})'); self.vmq = self.vmq[len(self.vmq) - k:] if k else []
    def ds(self, text, tag=None):
        self.a(text); self.lq.append(tag)
    def need_lds(self, tag):
        if tag in self.lq:
            i = len(self.lq) - 1 - self.lq[::-1].index(tag)
            k = len(self.lq) - 1 - i
            k = min(k, 15)
            self.a(f's_waitcnt lgkmcnt({k})'); self.lq = self.lq[len(self.lq) - k:] if k else []
    def qload(self):
        a = self.a
        a(f'buffer_load_dwordx4 {vr(self.vQ, 4)}, v{self.vQo}, {WS}, s46 offen sc1')
        a(f'buffer_load_dwordx4 {vr(self.vQ + 4, 4)}, v{self.vQo}, {WS}, s46 offen offset:256 sc1')
    def zero_acc(self):
        return [f'v_mov_b64 {vr(self.vAcc + 2 * i, 2)}, 0' for i in range(8)]

    def stream(self):
        a = self.a
        self.vmq = []; self.lq = []; self.prologue = True
        assert self.CL > self.depth
        if self.thr: a(f's_cmp_eq_u32 s36, {self.fx}'); a(f's_cselect_b32 s99, {self.thr[1]}, 0')
        if len(self.rows) == 2:
            RE, RL = self.rows
            assert 24 * RE + 32 * RL == 512 and max(RE, RL) <= 16
            a('s_sub_u32 s36, s36, 1'); a('s_lshl_b32 s36, s36, 5'); a('s_add_u32 s2, s36, s2')
            a('s_mul_i32 s36, s2, 10923'); a('s_lshr_b32 s36, s36, 16'); a('s_mul_i32 s37, s36, 6'); a('s_sub_u32 s37, s2, s37')
            a('s_sub_u32 s38, s2, 96'); a('s_and_b32 s39, s38, 7'); a('s_add_u32 s39, s39, 6'); a('s_lshr_b32 s38, s38, 3')
            a('s_cmp_lt_u32 s2, 96'); a('s_cselect_b32 s36, s36, s38'); a('s_cselect_b32 s37, s37, s39')
            a(f's_cselect_b32 s50, {RE}, {RL}'); a(f's_cselect_b32 s51, 0, {24 * (RE - RL)}')
        else:
            R2, RE, RL = self.rows
            assert R2 + 2 * RE + 4 * RL == 64 and max(self.rows) <= 16
            a('s_lshr_b32 s38, s36, 1'); a('s_and_b32 s39, s36, 3'); a(f's_mov_b32 s51, {8 * R2 + 16 * RE - 24 * RL}')
            a('s_cmp_lt_u32 s36, 4'); a('s_cselect_b32 s38, s38, s39'); a('s_cselect_b32 s39, 2, 3'); a('s_cselect_b32 s37, 2, 6')
            a(f's_cselect_b32 s50, {RE}, {RL}'); a(f's_cselect_b32 s51, {8 * (R2 - RE)}, s51')
            a('s_cmp_eq_u32 s36, 2'); a('s_cselect_b32 s38, 0, s38'); a('s_cselect_b32 s39, 1, s39'); a('s_cselect_b32 s37, 0, s37')
            a(f's_cselect_b32 s50, {R2}, s50'); a('s_cselect_b32 s51, 0, s51')
            a('s_lshl_b32 s38, s38, 5'); a('s_add_u32 s2, s38, s2'); a('s_lshr_b32 s36, s2, s39')
            a('s_lshl_b32 s38, s36, s39'); a('s_sub_u32 s38, s2, s38'); a('s_add_u32 s37, s37, s38')
        a('s_lshl_b32 s39, s37, 2'); a('s_add_u32 s39, s39, s3'); a('s_lshl_b32 s38, s39, 13')
        a('s_lshl_b32 s44, s36, 21'); a('s_add_u32 s40, s44, s38')
        self.bits(f'v{self.vK}', 'v0', 'v18', [(0, 1, 4), (4, 2, 5), (2, 1, 10), (1, 1, 11), (3, 1, 12)])
        a(f's_lshl_b32 s47, s36, 14'); a('s_lshl_b32 s38, s37, 10'); a('s_add_u32 s47, s47, s38'); a(f's_add_u32 s47, s47, 0x{POFF:x}')
        a('s_mul_i32 s38, s37, 896'); a(f's_sub_u32 s48, {MLO}, s38')
        a(f'v_lshlrev_b32 v{self.vL16}, 4, v0')
        self.claim(22, 23, 24)
        self.srd(8, 66, 0x8000000)
        N0 = 8
        for n in range(min(N0, self.depth)): self.load(0, n)
        for j in range(1, 4): a(f's_add_u32 s{40+j}, s40, {j * NW * 8192}')
        a('s_mul_i32 s38, s39, s50'); a('s_add_u32 s38, s38, s51'); a('s_lshl_b32 s38, s38, 9')
        a(f's_add_u32 s44, s44, {4 * NW * 8192}'); a('s_add_u32 s44, s44, s38')
        self.srd(88, 66, 0); self.srd(92, 68, 0)
        a('s_lshl_b32 s38, s50, 9'); a('s_add_u32 s90, s44, s38'); a('s_mov_b32 s94, s90')
        self.srd(12, 68, 0x8000000); self.srd(16, 86, 0x20000000)
        if self.tlb: a('s_load_dword s34, s[68:69], s40')
        self.stamp(0)
        self.bits(f'v{self.vV}', 'v0', 'v18', [(0, 3, 4), (5, 1, 9), (4, 1, 11), (3, 1, 12)])
        a(f's_mul_i32 s45, s3, {self.WLDS}'); a(f's_add_u32 s45, s45, {self.TB}')
        a(f'v_add_u32 v{self.vDs}, s45, v{self.vL16}')
        self.bits(f'v{self.vQo}', 'v0', 'v18', [(0, 2, 4), (4, 2, 6)])
        a('v_and_b32 v18, 2, v0'); a('v_cmp_eq_u32 vcc, 2, v18')
        a(f'v_mov_b32 v{self.vIQ}, 0x44444444'); a('v_mov_b32 v18, 0xeeeeeeee'); a(f'v_cndmask_b32 v{self.vIQ}, v{self.vIQ}, v18, vcc')
        a('v_and_b32 v18, 3, v0'); a('s_mov_b32 s38, 0x55555555'); a(f'v_mul_lo_u32 v{self.vIP}, v18, s38')
        a('v_and_b32 v18, 4, v0'); a('v_cmp_eq_u32 vcc, 4, v18')
        a('v_mov_b32 v18, 0xffff'); a('v_mov_b32 v19, 0xffff0000')
        M = self.vM
        a(f'v_cndmask_b32 v{M}, v18, 0, vcc'); a(f'v_cndmask_b32 v{M+1}, 0, v18, vcc')
        a(f'v_cndmask_b32 v{M+2}, v19, 0, vcc'); a(f'v_cndmask_b32 v{M+3}, 0, v19, vcc')
        self.bits('v18', 'v0', 'v19', [(4, 1, 0), (2, 1, 1), (1, 1, 2), (3, 1, 3), (5, 1, 4)])
        a('v_cmp_gt_u32 vcc, s50, v18'); a('v_mov_b32 v19, 0xff800000'); a(f'v_mov_b32 v{self.vT+2}, 0')
        a(f'v_cndmask_b32 v{self.vBias}, v19, 0, vcc')
        a('s_lshl_b32 s46, s3, 4'); a('s_add_u32 s46, s46, s36'); a('s_lshl_b32 s46, s46, 9')
        a('s_mov_b32 s49, 0'); a(f's_mov_b32 s51, 0x{f2u(CS):x}')
        a(f's_mov_b32 s53, {self.Q1L}'); a('s_lshl_b32 s54, s3, 10'); a('s_lshl_b32 s55, s3, 3')
        a('s_lshl_b32 s56, s36, 9'); a(f's_add_u32 s56, s56, 0x{QOFF + 3 * 8192:x}')
        a('v_mov_b32 v18, 0'); a('v_mov_b32 v19, 0')
        a(f'ds_write_b64 v18, v[18:19] offset:{self.CO[0]}')
        for n in range(self.depth, N0): self.load(0, n, wait=(n < N0 - 1))
        self.prologue = False
        entry_vmq = list(self.vmq)
        for s in range(2):
            a.label(f'L_A{s}')
            assert [(x[0] ^ s, x[1]) for x in self.vmq] == entry_vmq, (self.vmq, entry_vmq)
            self.lq = []
            def setflag():
                if self.thr: a('s_cmp_lt_u32 s49, s99'); a('s_cselect_b64 vcc, -1, 0')
            setflag()
            for n in range(N0, 73):
                if self.thr and n < self.thr[2 + s]:
                    l = self.lab('L_th'); a(f's_cbranch_vccz {l}'); a(f's_waitcnt vmcnt({self.thr[0] - 1})'); a.label(l)
                self.load(s, n)
                if self.tlb and n == self.tlb:
                    a('s_add_u32 s38, s40, 0x2000000'); a('s_and_b32 s38, s38, 0x7ffffff')
                    a('s_load_dword s34, s[66:67], s38'); a('s_load_dword s35, s[68:69], s38')
                if s == 0 and n in (self.CL, self.CL + self.depth + 4):
                    l = self.lab('L_it0')
                    a('s_cmp_lg_u32 s49, 0'); a(f's_cbranch_scc1 {l}')
                    if n == self.CL:
                        self.confirm(24, 20)
                        a('v_lshl_add_u32 v18, v0, 18, s48'); a('v_mov_b64 v[20:21], -1'); a('v_mov_b64 v[22:23], -1')
                        a('s_lshl_b32 s38, s3, 19'); a('s_add_u32 s38, s38, s47'); a(f's_add_u32 s39, s38, {PIB}')
                        a(f'buffer_store_dwordx4 v[20:23], v{self.vL16}, {WS}, s38 offen sc1')
                        a(f'buffer_store_dwordx4 v[20:23], v{self.vL16}, {WS}, s39 offen sc1')
                        a('s_mov_b64 exec, 3')
                        a(f'buffer_store_dwordx2 v[20:21], v18, {WS}, s38 offen sc1')
                        a('s_mov_b64 exec, -1')
                        self.stamp(30, None, 24)
                    else:
                        a('s_barrier'); self.signal(22, 23, self.CNTB, 1); self.stamp(31)
                    a.label(l)
                if s == 0 and n == self.PF - 8:
                    a('v_mov_b32 v22, 0'); a(f'global_load_dword v23, v22, {DBG} offset:{self.CNTA} sc1'); self.vmq.append('cnt')
                if n == self.PF:
                    if s == 0:
                        self.stamp(22, 's49')
                        self.need_vm('cnt'); self.wait_counter(22, 23, 21, self.CNTA, NCHAIN, pre=True); setflag()
                    self.qload(); self.vmq += ['q0', 'q1']
            self.need_vm('q1')
            self.stamp(1, 's49')
            a.label(f'L_X{s}')
            self.maxtree(range(self.vQ, self.vQ + 8), 18)
            a(f's_cbranch_vccz L_Xok{s}')
            a.label(f'L_Xpoll{s}')
            self.timeout()
            self.qload(); a('s_waitcnt vmcnt(0)')
            a(f's_branch L_X{s}')
            a.label(f'L_Xok{s}')
            self.stamp(6, 's49')
            if s == 0:
                a('s_cmp_eq_u32 s49, 0'); a('s_cbranch_scc1 L_first')
            save = list(self.vmq)
            self.ppass(1, s)
            self.stamp(11, 's49')
            if s == 0:
                a('s_cmp_eq_u32 s49, 4'); a('s_cbranch_scc1 L_end')
                after = list(self.vmq)
            a.label(f'L_P1{s}')
            self.ppass(0, s)
            self.stamp(16, 's49')
            for z in self.zero_acc(): a(z)
            a('s_add_u32 s49, s49, 1'); a(f's_add_u32 s47, s47, {PIB}'); a('s_add_u32 s53, s53, 512')
            a('s_add_u32 s56, s56, 8192'); a('s_mov_b32 s46, s56')
            if s == 0: first_save, first_after = save, after
        a('s_cmp_eq_u32 s49, 4'); a('s_cbranch_scc1 L_Xpoll0')
        a('s_branch L_A0')
        a.label('L_first')
        self.vmq = first_save
        a('s_lshl_b32 s38, s3, 9'); a(f'v_add_u32 v18, s38, v{self.vQo}')
        a(f'ds_write_b128 v18, {vr(self.vQ, 4)} offset:{self.Q1L}')
        a(f'ds_write_b128 v18, {vr(self.vQ + 4, 4)} offset:{self.Q1L + 256}')
        for n in range(73, 77): self.load(0, n)
        assert self.vmq == first_after, (self.vmq, first_after)
        a('s_waitcnt lgkmcnt(0)'); a('s_barrier')
        a('s_branch L_P10')

    def ppass(self, p2, s):
        a = self.a
        ds_ = (1 - s) if p2 else s
        fs = 1 - s
        cu0 = 0 if p2 else 2
        T = self.vT; Q = self.vQ; AC = self.vAcc; M = self.vM
        skip = (p2 and s == 0)
        def cdst(pi): return self.kreg(fs, cu0 + pi // 2) + 8 * (pi % 2)
        def copy(n):
            if n >= 72: pi, half = (n - 72) // 2, (n - 72) % 2
            else: pi, half = 2 + (n - 56) % 8, (n - 56) // 8
            if not p2: self.need_vm((s, n))
            self.ds(f'ds_read_b128 {rr(cdst(pi) + 4 * half, 4)}, v{self.vDs} offset:{self.ldsslot(ds_, n) * 1024}', ('c', n))
        def bop(U, P, t):
            if U == 0: return self.vreg0(ds_, P, t), []
            if U == 1: return cdst(2 + 4 * P + t), [('c', 56 + 4 * P + t), ('c', 64 + 4 * P + t)]
            if t < 2: return cdst(t), [('c', 72 + 2 * t), ('c', 73 + 2 * t)]
            return self.vH + 8 * (t - 2), []
        if not p2:
            a(f'v_add_u32 v18, s53, v{self.vQo}')
            self.ds(f'ds_read_b128 {vr(Q, 4)}, v18', 'q'); self.ds(f'ds_read_b128 {vr(Q + 4, 4)}, v18 offset:256', 'q')
            for z in self.zero_acc(): a(z)
            self.load(s, 77)
            self.need_lds('q')
        def post_a(u):
            ac = AC + 4 * (u % 4); t = 18 + 2 * (u % 2)
            a(f'v_add_f32 v{t+1}, v{ac+1}, v{ac+3}'); a(f'v_add_f32 v{t}, v{ac}, v{ac+2}')
        def post_b(u):
            t = 18 + 2 * (u % 2)
            a(f'v_add_f32_dpp v{T + u // 4}, v{t+1}, v{t} quad_perm:[1,1,3,3] row_mask:0x{1 << (u % 4):x} bank_mask:0xf')
        if p2: cplan = {0: [72, 73, 74, 75], 1: [56, 64, 57, 65], 2: [58, 66, 59, 67], 3: [60, 68], 4: [61, 69], 5: [62, 70], 6: [63, 71]}
        else: cplan = {0: [56, 57], 1: [58, 59], 2: [60, 61], 3: [62, 63], 4: [64, 65], 5: [66, 67], 6: [68, 69]}
        for u in range(10):
            ac = AC + 4 * (u % 4); k = self.kreg(ds_, u)
            a(f'v_smfmac_f32_16x16x64_bf16 {vr(ac, 4)}, {vr(Q, 4)}, {rr(k, 8)}, v{self.vIQ}')
            if u >= 3: post_a(u - 3)
            a(f'v_smfmac_f32_16x16x64_bf16 {vr(ac, 4)}, {vr(Q + 4, 4)}, {rr(k + 8, 8)}, v{self.vIQ}')
            if u >= 3: post_b(u - 3)
            for n in cplan.get(u, []): copy(n)
            if p2 and u == 4: self.need_lds(('c', 75)); self.load(s, 73, skip=skip)
            if p2 and u == 9: self.load(s, 74, skip=skip)
            if not p2 and u == 5: self.load(s, 78)
            if not p2 and u == 9: self.load(s, 79); copy(70); copy(71)
        zf = [f'v_mov_b32 v{AC + r}, 0' for r in list(range(8, 16)) + list(range(8))]
        def Z(n=2):
            for _ in range(n):
                if zf: a(zf.pop(0))
        post_a(7); Z(1); post_b(7); Z(3); post_a(8); Z(1); post_b(8); Z(2); post_a(9); Z(1); post_b(9)
        m = self.vMC; t = 18
        a(f'v_sub_f32 v{T+2}, v{T+2}, v{T+1}'); a(f'v_sub_f32 v{T+1}, v{T+1}, v{T}')
        a(f'v_add_f32 v{T+2}, v{self.vBias}, v{T+2}')
        a(f'v_max3_f32 v{m}, v{T}, v{T+1}, v{T+2}'); Z()
        a(f'v_max_f32_dpp v{m}, v{m}, v{m} quad_perm:[2,3,0,1] {FULL}'); Z()
        a(f'v_max_f32_dpp v{m}, v{m}, v{m} row_ror:4 {FULL}'); Z()
        a(f'v_max_f32_dpp v{t}, v{m}, v{m} row_ror:8 {FULL}')
        a(f'v_max_f32_dpp v{m}, v{m}, v{m} row_ror:8 {FULL}'); Z()
        a(f'v_permlane16_swap_b32 v{m}, v{t}'); a(f'v_max_f32 v{t+1}, v{m}, v{t}'); a(f'v_max_f32 v{m}, v{m}, v{t}'); Z(8)
        a(f'v_permlane32_swap_b32 v{m}, v{t+1}'); a(f'v_max_f32 v{m}, v{m}, v{t+1}')
        a(f'v_mul_f32 v{m}, s51, v{m}')
        order = [0, 2, 1] if p2 else [0, 1, 2]
        for k in order: a(f'v_fma_f32 v{T+k}, v{T+k}, s51, -v{m}')
        for k in order: a(f'v_exp_f32 v{T+k}, v{T+k}')
        L = self.vL
        def pack(k):
            o = [f'v_mov_b32_dpp v18, v{T+k} quad_perm:[0,0,0,0] {FULL}',
                 f'v_mov_b32_dpp v19, v{T+k} quad_perm:[2,2,2,2] {FULL}',
                 f'v_cvt_pk_bf16_f32 v{20+k}, v18, v19']
            if k == 2: o += [f'v_mov_b32_dpp v0, v22 row_shl:4 {FULL}', 'v_permlane32_swap_b32 v22, v0']
            return o
        def aprep(k, P, A):
            pp = 20 + k
            if P == 0:
                return [f'v_and_b32 v{A}, v{pp}, v{M}', f'v_and_b32 v{A+2}, v{pp}, v{M+2}',
                        f'v_and_b32_dpp v{A+1}, v{pp}, v{M+1} row_shr:4 {FULL} bound_ctrl:0',
                        f'v_and_b32_dpp v{A+3}, v{pp}, v{M+3} row_shr:4 {FULL} bound_ctrl:0']
            return [f'v_and_b32 v{A+1}, v{pp}, v{M+1}', f'v_and_b32 v{A+3}, v{pp}, v{M+3}',
                    f'v_and_b32_dpp v{A}, v{pp}, v{M} row_shl:4 {FULL} bound_ctrl:0',
                    f'v_and_b32_dpp v{A+2}, v{pp}, v{M+2} row_shl:4 {FULL} bound_ctrl:0']
        if p2: sets = [(0, 0), (2, 0), (0, 1), (1, 0), (1, 1)]
        else: sets = [(0, 0), (0, 1), (1, 0), (1, 1), (2, 0)]
        lred = [f'v_add_f32 v{L}, v{T}, v{T+1}',
                f'v_add_f32 v{L}, v{T+2}, v{L}',
                f'v_add_f32_dpp v{L}, v{L}, v{L} quad_perm:[2,3,0,1] {FULL}',
                f'v_add_f32_dpp v{L}, v{L}, v{L} row_ror:4 {FULL}',
                f'v_add_f32_dpp v{L}, v{L}, v{L} row_ror:8 {FULL}',
                f'v_mov_b32 v23, v{L}', f'v_permlane16_swap_b32 v{L}, v23', f'v_add_f32 v{L}, v{L}, v23',
                f'v_mov_b32 v23, v{L}', f'v_permlane32_swap_b32 v{L}, v23', f'v_add_f32 v{L}, v{L}, v23']
        def prep(i):
            k, P = sets[i]
            return (pack(k) if P == 0 else []) + aprep(k, P, Q + 4 * (i % 2))
        for x in prep(0): a(x)
        CA = self.CA[p2]; MA = self.MA[p2]; CO = self.CO[p2]
        def merge(t0):
            o = []
            for r in range(4): o.append(f'v_permlane32_swap_b32 v{AC + 4*t0 + r}, v{AC + 4*t0 + 4 + r}')
            for r in range(4):
                if t0 == 0: o.append(f'v_add_f32_dpp v{AC + r}, v{AC + 4 + r}, v{AC + r} row_ror:8 row_mask:0xf bank_mask:0x3')
                else: o.append(f'v_add_f32_dpp v{AC + r}, v{AC + 8 + r}, v{AC + 12 + r} row_ror:8 row_mask:0xf bank_mask:0xc')
            return o
        for i, (k, P) in enumerate(sets):
            fill = prep(i + 1) if i + 1 < len(sets) else []
            last = (i == len(sets) - 1)
            if last:
                fill = lred + [f'v_add_u32 v18, s54, v{self.vL16}', 'v_mov_b32 v19, s55', 'v_mov_b32 v20, 1', 'v_mov_b32 v21, 0', 'v_mov_b32 v22, s48']
                lred = []
            for t in range(4):
                b, tags = bop(k, P, t)
                if not p2 and k == 2:
                    if t == 0:
                        self.load(1 - s, 1); copy(72); copy(73)
                        for x in fill: a(x)
                        fill = []
                        self.load(1 - s, 2); self.load(1 - s, 3); copy(74); copy(75)
                    if t == 2:
                        self.load(1 - s, 4)
                        for x in merge(0): a(x)
                        self.load(1 - s, 5); self.need_vm((s, 77))
                    if t == 3:
                        self.load(1 - s, 6); self.need_vm((s, 79))
                for tg in tags: self.need_lds(tg)
                a(f'v_smfmac_f32_16x16x64_bf16 {vr(AC + 4 * t, 4)}, {vr(Q + 4 * (i % 2), 4)}, {rr(b, 8)}, v{self.vIP}')
                n = (len(fill) + (3 - t)) // (4 - t)
                got = fill[:n]; fill = fill[n:]
                if len(got) < 2 and lred: got.append(lred.pop(0))
                for x in got: a(x)
            if p2 and i == 0: self.load(s, 75, skip=skip)
            if p2 and i == 2: self.load(s, 76, skip=skip)
            if not p2 and i == 1: self.load(1 - s, 0)
        if not p2: self.load(1 - s, 7, wait=False)
        else:
            for x in merge(0): a(x)
        for x in merge(2): a(x)
        Zr = self.kreg(fs, 2)
        a(f'ds_write_b128 v18, {vr(AC, 4)} offset:{CA}')
        a('s_mov_b64 exec, 1')
        a(f'ds_write_b64 v19, {vr(self.vMC, 2)} offset:{MA}')
        a(f'ds_add_rtn_u32 v20, v21, v20 offset:{CO}')
        a('s_mov_b64 exec, -1')
        a(f'ds_read_b128 {vr(Q, 4)}, v21 offset:{MA}'); a(f'ds_read_b128 {vr(Q + 4, 4)}, v21 offset:{MA + 16}')
        for w in range(4): a(f'ds_read_b128 {vr(Zr + 4 * w, 4)}, v{self.vL16} offset:{CA + 1024 * w}')
        if p2: a(f's_add_u32 s38, s47, {3 * PIB}')
        else: a('s_mov_b32 s38, s47')
        a('s_waitcnt lgkmcnt(6)')
        a('v_readfirstlane_b32 s39, v20'); a('s_and_b32 s39, s39, 3'); a('s_cmp_eq_u32 s39, 3')
        l = self.lab('L_nl'); a(f's_cbranch_scc0 {l}')
        a('s_waitcnt lgkmcnt(4)')
        a(f'v_max3_f32 v{m}, v{Q}, v{Q+2}, v{Q+4}'); a(f'v_max_f32 v{m}, v{m}, v{Q+6}')
        for w in range(4): a(f'v_sub_f32 v{Q+2*w}, v{Q+2*w}, v{m}')
        for w in range(4): a(f'v_exp_f32 v{Q+2*w}, v{Q+2*w}')
        a(f'v_mul_f32 v{L}, v{Q}, v{Q+1}')
        for w in range(1, 4): a(f'v_fmac_f32 v{L}, v{Q+2*w}, v{Q+2*w+1}')
        a(f'v_min_u32 v{m}, -2, v{m}'); a(f'v_min_u32 v{L}, -2, v{L}')
        a('s_mov_b64 exec, 1')
        a(f'buffer_store_dwordx2 {vr(m, 2)}, v22, {WS}, s38 offen sc1')
        a('s_mov_b64 exec, -1')
        a('s_waitcnt lgkmcnt(0)')
        for w in range(4):
            for hf in range(2):
                if w == 0: a(f'v_pk_mul_f32 {vr(AC + 2*hf, 2)}, {vr(Zr + 2*hf, 2)}, {vr(Q, 2)} op_sel_hi:[1,0]')
                else: a(f'v_pk_fma_f32 {vr(AC + 2*hf, 2)}, {vr(Zr + 4*w + 2*hf, 2)}, {vr(Q + 2*w, 2)}, {vr(AC + 2*hf, 2)} op_sel_hi:[1,0,1]')
        for r in range(4): a(f'v_min_u32 v{AC + r}, -2, v{AC + r}')
        a(f'buffer_store_dwordx4 {vr(AC, 4)}, v{self.vL16}, {WS}, s38 offen sc1')
        a.label(l)
        a('s_waitcnt lgkmcnt(0)'); self.lq = []

    RING0 = 8192
    vGO2, vTR, vOOB, vDO, vX0O, vGO, vXR, vXW, vRES = 8, 9, 10, 11, 12, 13, 14, 15, 16
    vAC, vCS, vQS, vRO, vPO, vPO2, vMLO, vOW, vDQ, vX0 = 32, 36, 38, 39, 40, 41, 42, 43, 44, 45
    def vm(self, text, tag=None):
        self.a(text); self.cq.append(tag)
    def vmwait(self, tag):
        if tag in self.cq:
            i = len(self.cq) - 1 - self.cq[::-1].index(tag)
            k = len(self.cq) - 1 - i
            assert k <= 63
            self.a(f's_waitcnt vmcnt({k})'); self.cq = self.cq[i + 1:]
    def arm(self, q=False):
        a = self.a
        self.vmwait('init'); self.confirm(self.vCL, 28)
        for r in range(20, 24): a(f'v_mov_b32 v{r}, -1')
        a('s_lshl2_add_u32 s38, s101, s3'); a('s_mul_i32 s38, s38, 3072'); a(f's_add_u32 s38, s38, 0x{YOFF:x}')
        for i in range(3): self.vm(f'buffer_store_dwordx4 v[20:23], v1, {WS}, s38 offen offset:{i * 1024} sc1', 'arm')
        if q:
            self.bits('v28', 'v0', 'v29', [(0, 5, 4), (5, 1, 13)])
            a('s_lshl_b32 s38, s101, 9'); a('s_lshl_b32 s39, s3, 14'); a('s_add_u32 s39, s39, s38')
            self.vm(f'buffer_store_dwordx4 v[20:23], v28, {WS}, s39 offen sc1', 'arm')
    def announce(self, bar=True):
        a = self.a
        if bar: self.vmwait('arm'); a('s_barrier')
        assert 'arm' not in self.cq
        a('s_getreg_b32 s38, hwreg(HW_REG_XCC_ID, 0, 4)'); a('s_lshl_b32 s38, s38, 8'); a('s_add_u32 s38, s38, 1')
        self.signal(28, 29, self.CNTA, 's38')
        self.stamp(21, None, 30)
    def chain_common(self):
        a = self.a
        a('v_lshlrev_b32 v1, 4, v0')
        self.bits('v2', 'v0', 'v6', [(0, 1, 4), (4, 2, 5)])
        self.bits('v4', 'v0', 'v6', [(1, 1, 0), (3, 1, 2), (2, 1, 3)])
        a('s_lshl_b32 s98, s3, 13'); a(f's_add_u32 s98, s98, {self.RING0}'); a('s_movk_i32 s99, 1024')
        a('s_mul_i32 s32, s3, 7168'); a(f's_add_u32 s32, s32, {self.RING0}')
        self.claim(28, 29, self.vCL)
        self.srd(16, 86, 0x20000000)
        self.stamp(0, None, 30)
        a('s_cmp_lt_u32 s2, 16'); a('s_cbranch_scc1 L_roleOQ')
        self.cq = ['init']
        if self.wtlb:
            lo = 30 if self.wtlb == 1 else 16; nw = 4 * (32 - lo)
            a(f's_cmp_lt_u32 s2, {lo}'); a('s_cbranch_scc1 L_notlb')
            a('v_lshlrev_b32 v6, 12, v0'); a(f's_sub_u32 s33, s2, {lo}'); a('s_lshl2_add_u32 s33, s33, s3'); a('s_lshl_b32 s33, s33, 18')
            for lo_, size in ((70, 448 * 8192), (76, 448 * 3584), (78, 448 * 3584), (72, 4096 * 896), (80, 1792 * 896)):
                self.srd(20, lo_, size)
                for i in range(-(-size // (nw << 18))):
                    if i: a(f's_add_u32 s39, s33, {i * nw << 18}')
                    a(f'buffer_load_dword v64, v6, {W1}, {"s39" if i else "s33"} offen nt')
            a.label('L_notlb')
        if self.hq:
            self.srd(20, 70, 448 * 8192)
            self.bits('v6', 'v0', 'v7', [(0, 5, 4), (5, 1, 13)])
            a('s_sub_u32 s33, s2, 16'); a('s_lshl_b32 s33, s33, 9'); a('s_lshl_b32 s39, s3, 14'); a('s_add_u32 s33, s33, s39')
            a(f's_add_u32 s33, s33, {self.hq[0] * 64 * 8192}')
            for i in range(8 * (self.hq[1] - self.hq[0])):
                self.vm(f'buffer_load_dwordx4 v[64:67], v6, {W1}, s33 offen {self.hpol}', 'hq'); a('s_add_u32 s33, s33, 65536')
                if i == 9: self.arm()
                if i == 23: self.announce()
        self.cq0 = list(self.cq)
        a('s_cmp_lt_u32 s2, 30'); a('s_cbranch_scc1 L_roleF')
    def consts(self):
        a = self.a
        a('v_and_b32 v6, 1, v0'); a('v_cmp_eq_u32 vcc, 1, v6')
        a('v_mov_b32 v3, 0x44444444'); a('v_mov_b32 v6, 0xeeeeeeee'); a('v_cndmask_b32 v3, v3, v6, vcc')
        self.bits('v9', 'v0', 'v6', [(0, 5, 3), (5, 1, 10)])
        a('v_mul_u32_u24 v5, 6144, v6'); a('s_mul_i32 s38, s3, 1792'); a('v_add3_u32 v5, v5, v9, s38')
        a(f's_mov_b32 s57, 0x{OOB:x}'); a(f's_mov_b32 s56, 0x{OOB:x}'); a('s_mov_b32 s49, -1')
    vCL = 46
    def preready(self, streams=False):
        self.vm(f'global_load_dword v46, v18, {DBG} offset:{self.CNTA} sc1', 'cnt')
        if streams: self.vm(f'global_load_dword v47, v18, {DBG} offset:{self.CNTB} sc1', 'cnt')
    def ready(self, streams=False):
        a = self.a
        self.stamp(22, None, 28)
        self.vmwait('cnt')
        self.wait_counter(18, 46, 22, self.CNTA, NCHAIN, pre=True)
        a('v_readfirstlane_b32 s38, v46'); a(f's_cmp_eq_u32 s38, {NCHAIN}')
        a(f's_cselect_b32 s57, 0, 0x{OOB:x}'); a(f's_cselect_b32 s56, 0x{OOB:x}, 0')
        if streams: self.wait_counter(18, 47, 22, self.CNTB, 16 * NC, pre=True)
        self.stamp(1, None, 28)
    def lstore(self, op, data, voff, sp, ss):
        self.a(f'buffer_store_{op} {data}, {voff}, {WS}, {sp} offen')
        self.a(f'buffer_store_{op} {data}, {voff}, {WS}, {ss} offen sc1')
    def dma_sub(self, name, srd, voff, tab, adv):
        a = self.a
        a.label(name)
        for e in range(8):
            a(f'buffer_load_dwordx4 {voff}, {srd}, s{tab + e} offen nt lds')
            if e < 7: a('s_add_u32 m0, m0, s99')
        a(f'v_add_u32 {voff}, 0x{adv:x}, {voff}')
        a('s_setpc_b64 s[96:97]')
    def dma_subB(self, name, srd, voff):
        a = self.a
        a.label(name)
        for cb in range(7):
            a(f'buffer_load_dwordx4 {voff}, {srd}, 0 offen offset:{128 * cb} nt lds')
            if cb < 6: a('s_add_u32 m0, m0, 896')
        a(f'v_add_u32 {voff}, 0x{32 * 896:x}, {voff}')
        a('s_setpc_b64 s[96:97]')
    def issue(self, p):
        self.a(f's_add_u32 m0, {"s32" if p["B"] else "s98"}, {p["slot"] * 32768}'); self.a(f's_call_b64 s[96:97], {p["sub"]}')
        self.cq += [id(p)] * (7 if p['B'] else 8)
    def readout(self, p, sel=None):
        self.a(f'v_add_u32 v6, {self.RING0 + p["slot"] * 32768}, {"v5" if p["B"] else "v9"}')
        for d, imm in p['rd']:
            if sel is None or sel(d): self.a(f'ds_read_b64_tr_b16 {rr(d, 2)}, v6 offset:{imm}')
    def consume(self, p, nxt=None, hook=None):
        self.vmwait(id(p))
        self.a('s_waitcnt lgkmcnt(0)'); self.a('s_barrier')
        if hook: hook()
        if nxt:
            assert nxt['slot'] == self.lastslot, (nxt['slot'], self.lastslot)
            self.issue(nxt)
        self.readout(p); self.lastslot = p['slot']
    def table(self, tab, rs):
        for e in range(8): self.a(f's_mov_b32 s{tab + e}, 0x{(16 * (e & 1) + 2 * ((e >> 1) & 1) + 32 * (e >> 2)) * rs:x}')
    def typeB(self, voff, rowbase_s):
        a = self.a
        a('s_and_b32 s38, s3, 1'); a('s_lshl_b32 s38, s38, 4'); a(f's_add_u32 s38, s38, {rowbase_s}'); a('s_and_b32 s39, s3, 2'); a('s_add_u32 s38, s38, s39')
        a(f'v_add_u32 v6, s38, v4'); a(f'v_mad_u32_u24 {voff}, v6, s99, v2'); a(f'v_lshlrev_b32 v6, 7, v6'); a(f'v_sub_u32 {voff}, {voff}, v6')
    def typeB_reads(self, breg, ks, half):
        return [(breg(jj, ks) + 2 * (e1 + 2 * half), 2 * e1 * 7168 + jj * 256) for jj in range(7) for e1 in range(2)]
    def x0off(self):
        a = self.a
        a(f'v_mov_b32 v10, 0x{OOB:x}')
        self.bits('v6', 'v0', 'v7', [(0, 4, 3), (4, 1, 2), (5, 1, 7)])
        a('s_mul_i32 s38, s3, 224'); a('s_lshl_b32 s39, s3, 5'); a(f's_add_u32 s39, s39, {896 - 224}')
        a('v_cmp_gt_u32 vcc, 224, v6')
        a('v_add_u32 v15, s38, v6'); a('v_add_u32 v6, s39, v6')
        a('v_cndmask_b32 v12, v10, v15, vcc'); a('v_cndmask_b32 v15, v6, v15, vcc')
        a('s_lshl_b32 s38, s3, 9'); a('v_lshl_add_u32 v14, v0, 3, s38'); a('v_cndmask_b32 v14, v10, v14, vcc')
    def gather_offs(self):
        a = self.a
        self.bits('v13', 'v0', 'v6', [(0, 4, 4), (4, 2, 12)])
        a('s_lshl_b32 s38, s3, 8'); a('v_add_u32 v13, s38, v13'); a(f'v_lshl_add_u32 v{self.vRO}, v0, 2, s38')
        a('v_cmp_gt_u32 vcc, 48, v0'); a('v_mov_b32 v18, 0'); a('v_mov_b32 v19, 0'); a('v_cndmask_b32 v8, v10, v13, vcc')
        a('v_and_b32 v6, 8, v0'); a('v_cmp_eq_u32 vcc, 8, v6'); a('v_mov_b32 v6, 0x3c00'); a('v_mov_b32 v7, 0x3c000000')
        a('v_cndmask_b32 v6, v6, v7, vcc'); a('v_and_b32 v7, 7, v0')
        for r, key in enumerate((0, 1, 4, 5)):
            a(f'v_cmp_eq_u32 vcc, {key}, v7'); a('s_nop 1'); a(f'v_cndmask_b32 v{self.vAC + r}, 0, v6, vcc')
    def resid_poll(self, soff):
        a = self.a; l = self.lab('L_rp')
        a.label(l)
        self.timeout()
        a(f'buffer_load_dwordx2 v[16:17], v14, {WS}, {soff} offen sc1'); a('s_waitcnt vmcnt(0)')
        a('v_max_u32 v6, v16, v17'); a('v_cmp_eq_u32 vcc, -1, v6'); a(f's_cbranch_vccnz {l}')
    def gather_sum(self, soff, G, full):
        a = self.a; l = self.lab('L_g'); d = self.lab('L_gd')
        a.label(l)
        self.timeout()
        for i in range(4): a(f'buffer_load_dwordx4 {vr(G + 4 * i, 4)}, {"v13" if full or i < 2 else "v8"}, {WS}, {soff} offen offset:{1024 * i} sc1')
        for i in range(4):
            a(f's_waitcnt vmcnt({3 - i})')
            a(f'v_mfma_f32_16x16x32_f16 v[20:23], {vr(self.vAC, 4)}, {vr(G + 4 * i, 4)}, {"v[16:19]" if i == 0 else "v[20:23]"}')
        a('v_cmp_u_f32 vcc, v20, v21')
        a('v_cvt_pk_bf16_f32 v24, v20, v21')
        a(f's_cbranch_vccz {d}')
        self.maxtree(range(G, G + 16), 6)
        a(f's_cbranch_vccnz {l}')
        a.label(d)
    def xrow_ops(self, sp, ss):
        return ['v_lshlrev_b32 v20, 16, v24', 'v_and_b32 v21, 0xffff0000, v24',
                f'buffer_store_dwordx2 v[20:21], v14, {WS}, {sp} offen', f'buffer_store_dwordx2 v[20:21], v14, {WS}, {ss} offen sc1']
    def stats_ops(self, X):
        o = []
        for i in range(4):
            o += [f'v_lshlrev_b32 v26, 16, v{X+i}', f'v_and_b32 v27, 0xffff0000, v{X+i}']
            if i == 0: o += ['v_add_f32 v28, v26, v27', 'v_mul_f32 v30, v26, v26', 'v_fmac_f32 v30, v27, v27']
            else: o += ['v_add_f32 v28, v28, v26', 'v_fmac_f32 v30, v26, v26', 'v_add_f32 v28, v28, v27', 'v_fmac_f32 v30, v27, v27']
        o += [f'v_mov_b32 v26, 0x{f2u(1/448):x}', f'v_mov_b32 v27, 0x{f2u(1e-5):x}', 'v_permlane16_swap_b32 v28, v30', 'v_add_f32 v28, v28, v30']
        for c in ('quad_perm:[1,0,3,2]', 'quad_perm:[2,3,0,1]', 'row_ror:4'):
            o += [None, f'v_add_f32_dpp v28, v28, v28 {c} {FULL}']
        o += [None, f'v_add_f32_dpp v29, v28, v28 row_ror:8 {FULL}', f'v_add_f32_dpp v28, v28, v28 row_ror:8 {FULL}', None,
              'v_permlane32_swap_b32 v28, v29', 'v_add_f32 v28, v28, v29', None,
              'v_readlane_b32 s58, v28, 0', 'v_readlane_b32 s59, v28, 16', None,
              'v_mul_f32 v24, s58, v26', 'v_fmac_f32 v27, s59, v26',
              'v_fma_f32 v27, -v24, v24, v27', 'v_rsq_f32 v25, v27']
        return o
    def gemv(self, ntile, nks, breg, acc, A, fill=(), nother=0):
        a = self.a; fill = list(fill)
        for ks in range(nks):
            a(f's_waitcnt lgkmcnt({min(15, nks - 1 - ks + nother)})')
            for jj in range(ntile):
                a(f'v_smfmac_f32_16x16x64_bf16 {vr(acc + 4 * jj, 4)}, {vr(A + 4 * ks, 4)}, {rr(breg(jj, ks), 8)}, v3')
                for _ in range(2):
                    if fill:
                        x = fill.pop(0)
                        if x: a(x)
        for x in fill:
            if x: a(x)
    def zero(self, base, n):
        for i in range(0, n, 2): self.a(f'v_mov_b64 {vr(base + i, 2)}, 0')
    def rowsel(self, dst, acc, tiles_masks):
        for jj, rm in tiles_masks:
            self.a(f'v_add_f32_dpp v{dst}, v{acc + 4*jj}, v{acc + 4*jj + 1} quad_perm:[0,1,2,3] row_mask:0x{rm:x} bank_mask:0xf')
    def rowout(self, acc, sp, ss):
        a = self.a
        for jj in range(4): self.rowsel(20, acc, [(jj, 1 << jj)])
        for jj in range(3): self.rowsel(21, acc, [(4 + jj, 1 << jj)])
        a('v_cvt_pk_f16_f32 v20, v20, v21'); a('v_min_u32 v20, -2, v20')
        self.lstore('dword', 'v20', f'v{self.vRO}', sp, ss)
    def calc_ib(self):
        a = self.a
        a('s_lshl_b32 s38, s49, 2'); a(f's_lshr_b32 s50, {"0x76352410" if self.reord else "0x73625140"}, s38'); a('s_and_b32 s50, s50, 7')
    def colsum(self, ntile, nks, breg, acc):
        a = self.a
        for r in range(4): a(f'v_mov_b32 v{20 + r}, 0x3f803f80')
        self.zero(acc, 4 * ntile)
        for ks in range(nks):
            for jj in range(ntile):
                a(f'v_smfmac_f32_16x16x64_bf16 {vr(acc + 4 * jj, 4)}, v[20:23], {rr(breg(jj, ks), 8)}, v3')
    def pinit(self, ib0):
        a = self.a
        for r in range(20, 24): a(f'v_mov_b32 v{r}, -1')
        a(f's_add_u32 s38, s3, {ib0}'); a('s_lshl_b32 s38, s38, 18'); a('s_add_u32 s38, s38, s41')
        a('v_lshlrev_b32 v6, 4, v0')
        for i in range(16):
            if i and i % 4 == 0: a('s_add_u32 s38, s38, 4096')
            self.vm(f'buffer_store_dwordx4 v[20:23], v6, {WS}, s38 offen offset:{(i % 4) * 1024} sc1', 'pinit')

    def roleOQ(self):
        a = self.a
        TOG = ['v_xor_b32 v15, 0x400, v15', 'v_xor_b32 v2, 0x400, v2', 'v_xor_b32 v1, 0x400, v1', f'v_xor_b32 v{self.vOW}, 0x400, v{self.vOW}']
        def qreg(jj, ks): return 96 + (ks * 4 + jj) * 8
        def oreg(jj, ks):
            if ks == 3 and jj < 4: return 288 + 8 * jj
            i = jj * 3 + ks if ks < 3 else 21 + jj - 4
            return 320 + 8 * i
        inwin = lambda d: 288 <= d < 320
        X0 = 4
        self.dma_sub('L_dmaQ', W1, f'v{self.vDQ}', 88, 64 * 8192)
        self.dma_subB('L_dmaO', W2, f'v{self.vDO}')
        P = 76; ML = 92; ACC = 48; A = 76
        a.label('L_Osub')
        self.calc_ib()
        a('s_lshl_b32 s44, s50, 18'); a('s_add_u32 s44, s44, s41')
        a('s_add_u32 s45, s44, 4096'); a('s_add_u32 s46, s44, 8192'); a('s_add_u32 s47, s44, 12288')
        a('s_lshl_b32 s48, s50, 14'); a('s_add_u32 s48, s48, s40'); a('s_add_u32 s51, s48, s56'); a('s_add_u32 s48, s48, s57')
        self.zero(ACC, 28)
        a('s_cmp_lt_i32 s49, 0'); a('s_cbranch_scc1 L_Ook')
        a.label('L_Oheavy')
        self.timeout()
        a(f'buffer_load_dwordx2 {vr(ML, 2)}, v{self.vMLO}, {WS}, s44 offen sc1')
        for n in range(4): a(f'buffer_load_dwordx4 {vr(P + 4*n, 4)}, v{self.vPO2 if n == 3 else self.vPO}, {WS}, s{44+n} offen sc1')
        a('s_waitcnt vmcnt(4)')
        a(f'v_max_f32_dpp v20, v{ML}, v{ML} quad_perm:[1,0,3,2] {FULL}')
        for c in ('quad_perm:[2,3,0,1]', 'row_ror:4', 'row_ror:8'): a(f'v_max_f32_dpp v20, v20, v20 {c} {FULL}')
        a(f'v_sub_f32 v20, v{ML}, v20'); a('v_exp_f32 v20, v20'); a('v_cndmask_b32 v20, 0, v20, s[42:43]')
        a(f'v_mul_f32 v21, v20, v{ML+1}')
        lred = [f'v_add_f32_dpp v21, v21, v21 {c} {FULL}' for c in ('quad_perm:[1,0,3,2]', 'quad_perm:[2,3,0,1]', 'row_ror:4', 'row_ror:8')]
        for n in range(4):
            a(f's_waitcnt vmcnt({3 - n})')
            for r in range(4):
                a(f'v_{"mul" if n == 0 else "fmac"}_f32_dpp v{24 + r}, v20, v{P + 4*n + r} row_newbcast:{n} {FULL}')
            a(lred[n])
        a('v_permlane16_swap_b32 v24, v25'); a('v_permlane16_swap_b32 v26, v27'); a('v_rcp_f32 v21, v21')
        a('v_add_f32 v24, v24, v25'); a('v_add_f32 v26, v26, v27')
        a('v_permlane32_swap_b32 v24, v26'); a('v_add_f32 v24, v24, v26'); a('v_mul_f32 v24, v24, v21')
        a('v_cmp_u_f32 vcc, v24, v24')
        a('v_cvt_pk_bf16_f32 v24, v24, v24')
        a('s_cbranch_vccz L_Ook0')
        self.maxtree(list(range(P, P + 16)) + [ML, ML + 1], 6)
        a('s_cbranch_vccnz L_Oheavy')
        a.label('L_Ook0')
        if self.split:
            a('s_cmp_lg_u32 s49, 0'); a('s_cbranch_scc1 L_Ook')
            a('s_setpc_b64 s[34:35]')
        a.label('L_Ook')
        a(f'ds_write_b16 v{self.vOW}, v24'); a('s_waitcnt lgkmcnt(0)'); a('s_barrier')
        for ks in range(4): a(f'ds_read_b128 {vr(A + 4*ks, 4)}, v2 offset:{128 * ks}')
        self.stamp(3, 's49', 28)
        self.gemv(7, 4, oreg, ACC, A, fill=TOG + ['v_mov_b32 v21, 0'])
        self.rowout(ACC, 's48', 's51')
        self.stamp(12, 's49', 28)
        a('s_add_u32 s49, s49, 1')
        a('s_setpc_b64 s[34:35]')
        G = 64; ACC = 48; A = 64; X = 92
        a.label('L_Qsub')
        self.zero(ACC, 16)
        a('s_lshl_b32 s44, s53, 13'); a('s_add_u32 s44, s44, s54')
        a('s_lshl_b32 s38, s53, 11'); a(f's_add_u32 s47, s38, 0x{XAOFF - 4 * 2048:x}')
        a('s_add_u32 s45, s38, s33'); a('s_add_u32 s46, s45, s56'); a('s_add_u32 s45, s45, s57')
        a('s_lshl_b32 s48, s53, 14'); a(f's_add_u32 s48, s48, 0x{ZOFF - 4 * 16384:x}')
        a('s_cmp_lt_u32 s53, 4'); a('s_cbranch_scc1 L_Qx')
        self.resid_poll('s47')
        self.gather_sum('s48', G, False)
        a.label('L_Qx')
        a('ds_write_b32 v15, v24'); a('s_waitcnt lgkmcnt(0)'); a('s_barrier')
        for ks in range(7): a(f'ds_read_b128 {vr(A + 4*ks, 4)}, v2 offset:{128 * ks}')
        a(f'ds_read_b128 {vr(X, 4)}, v1')
        for x in self.xrow_ops('s45', 's46'): a(x)
        self.stamp(24, 's53', 28)
        fill = TOG + [None, 's_waitcnt lgkmcnt(0)'] + self.stats_ops(X)
        self.gemv(4, 7, qreg, ACC, A, fill=fill, nother=1)
        a(f'v_mul_f32 v21, v24, v{self.vCS}')
        self.rowsel(20, ACC, [(jj, 1 << jj) for jj in range(4)])
        a('v_sub_f32 v20, v20, v21'); a('v_mul_f32 v20, v20, v25')
        a('v_cvt_pk_bf16_f32 v20, v20, v20'); a('v_min_u32 v20, -2, v20')
        a(f'buffer_store_short v20, v{self.vQS}, {WS}, s44 offen sc1')
        self.stamp(33, 's53', 28)
        a('s_add_u32 s53, s53, 1')
        a('s_setpc_b64 s[34:35]')
        a.label('L_roleOQ')
        self.cq = ['init']
        a('s_lshl_b32 s38, s2, 9')
        self.srd(20, 70, 448 * 8192)
        a('s_lshl_b32 s39, s3, 7'); a('s_add_u32 s38, s38, s39')
        a(f'v_lshl_add_u32 v{self.vDQ}, v4, 13, s38'); a(f'v_add_u32 v{self.vDQ}, v{self.vDQ}, v2')
        self.table(88, 8192)
        pq = [dict(sub='L_dmaQ', B=0, slot=ks % 4, rd=[(qreg(jj, ks) + 2 * rp, rp * 2048 + jj * 256) for jj in range(4) for rp in range(4)]) for ks in range(7)]
        po = [dict(sub='L_dmaO', B=1, slot=(3, 0, 1)[i % 3], rd=self.typeB_reads(oreg, i // 2, i % 2)) for i in range(8)]
        self.issue(pq[0])
        self.srd(28, 64, 3584)
        XL = 48
        a(f'v_mov_b32 v10, 0x{OOB:x}')
        a('v_cmp_gt_u32 vcc, 56, v0'); a('v_bfe_u32 v7, v0, 2, 2'); a('v_mul_u32_u24 v7, 896, v7'); a('v_cndmask_b32 v6, v10, v1, vcc')
        for b in range(4): self.vm(f'buffer_load_dwordx4 {vr(XL + 4 * b, 4)}, v6, {W3}, 0 offen offset:{b * 896}', 'xl')
        a('v_add_u32 v7, v7, v2')
        a('s_mov_b32 s38, 0x3f803f80'); a('s_mov_b32 s39, s38')
        for r in range(0, 28, 2): a(f'v_mov_b64 {vr(A + r, 2)}, s[38:39]')
        a('s_mov_b32 exec_lo, 0x33333333'); a('s_mov_b32 exec_hi, 0x33333333')
        for ks in range(7): self.vm(f'buffer_load_dwordx4 {vr(A + 4 * ks, 4)}, v7, {W3}, 0 offen offset:{128 * ks}', 'xa')
        a('s_mov_b64 exec, -1')
        self.issue(pq[1])
        self.srd(24, 72, 4096 * 896)
        a('s_lshl_b32 s39, s2, 8')
        self.typeB(f'v{self.vDO}', 's39')
        self.consts(); a('s_lshl_b32 s38, s3, 13'); a('v_add_u32 v9, s38, v9')
        self.arm(True)
        self.issue(pq[2])
        self.vmwait('xl')
        for b in range(4):
            for x in self.stats_ops(XL + 4 * b):
                if x: a(x)
            a(f'v_mov_b32_dpp v92, v24 quad_perm:[0,1,2,3] row_mask:0x{1 << b:x} bank_mask:0xf')
            a(f'v_mov_b32_dpp v93, v25 quad_perm:[0,1,2,3] row_mask:0x{1 << b:x} bank_mask:0xf')
        self.issue(pq[3])
        self.zero(ACC, 16)
        self.bits('v94', 'v0', 'v6', [(0, 1, 1), (2, 1, 2), (3, 1, 4), (1, 1, 5), (4, 2, 13)])
        a('s_lshl_b32 s38, s3, 7'); a('s_lshl_b32 s44, s2, 9'); a('s_add_u32 s44, s38, s44')
        nxt = {1: pq[4], 2: pq[5], 3: pq[6], 4: po[0]}
        def q1mm(ks):
            for jj in range(4): a(f'v_smfmac_f32_16x16x64_bf16 {vr(ACC + 4 * jj, 4)}, {vr(A + 4 * ks, 4)}, {rr(qreg(jj, ks), 8)}, v3')
        hooks = {2: lambda: self.announce(False)}
        for i in range(7):
            self.consume(pq[i], nxt.get(i), hooks.get(i))
            self.stamp(41 + i, None, 26)
            if i: q1mm(i - 1)
        a('s_waitcnt lgkmcnt(0)')
        q1mm(6)
        self.stamp(20, None, 28)
        for jj in range(4):
            a(f'v_add_f32 v{20 + jj}, v{ACC + 4*jj}, v{ACC + 4*jj + 1}'); a(f'v_add_f32 v{24 + jj}, v{ACC + 4*jj + 2}, v{ACC + 4*jj + 3}')
        for jj in range(4): a(f'v_fma_f32 v{20 + jj}, -v92, v{24 + jj}, v{20 + jj}')
        for jj in range(4): a(f'v_mul_f32 v{20 + jj}, v{20 + jj}, v93')
        for jj in range(4): a(f'v_cvt_pk_bf16_f32 v{20 + jj}, v{20 + jj}, v{20 + jj}')
        for jj in range(4): a(f'v_min_u32 v{20 + jj}, -2, v{20 + jj}')
        for jj in range(4): self.vm(f'buffer_store_short v{20 + jj}, v94, {WS}, s44 offen offset:{(jj & 1) * 8 + (jj >> 1) * 64} sc1')
        for jj in range(4): a(f'v_mov_b32_dpp v{self.vCS}, v{24 + jj} quad_perm:[0,1,2,3] row_mask:0x{1 << jj:x} bank_mask:0xf')
        self.stamp(35, None, 28)
        self.issue(po[1]); self.issue(po[2])
        a(f's_lshl_b32 s41, s2, 14'); a(f's_add_u32 s41, s41, 0x{POFF:x}')
        self.x0off(); self.gather_offs()
        a('s_lshl_b32 s40, s2, 10'); a(f's_add_u32 s40, s40, 0x{YOFF:x}')
        PO, PO2, MO, OW = self.vPO, self.vPO2, self.vMLO, self.vOW
        self.bits(f'v{PO}', 'v0', 'v6', [(0, 4, 4), (4, 2, 10)])
        a('s_lshl_b32 s38, s3, 8'); a(f'v_add_u32 v{PO}, s38, v{PO}')
        a('v_cmp_gt_u32 vcc, 32, v0'); a('v_lshrrev_b32 v6, 4, v0'); a('v_bfe_u32 v7, v0, 2, 2'); a(f'v_cndmask_b32 v{PO2}, v10, v{PO}, vcc')
        a('v_add_u32 v6, v6, v7'); a('v_and_b32 v6, 3, v6')
        a('v_and_b32 v7, 3, v0'); a('v_lshl_add_u32 v6, v7, 2, v6')
        a(f'v_cmp_gt_u32 s[42:43], {NC}, v6'); a(f'v_min_u32 v6, {NC - 1}, v6'); a(f'v_lshlrev_b32 v{MO}, 7, v6'); a(f'v_add_u32 v{MO}, {MLO}, v{MO}')
        self.bits(f'v{OW}', 'v0', 'v6', [(4, 2, 1), (0, 3, 4), (3, 1, 8)])
        a('s_lshr_b32 s38, s3, 1'); a('s_lshl_b32 s38, s38, 7'); a('s_and_b32 s39, s3, 1'); a('s_lshl_b32 s39, s39, 3'); a('s_add_u32 s38, s38, s39')
        a(f'v_add_u32 v{OW}, s38, v{OW}')
        self.bits(f'v{self.vQS}', 'v0', 'v6', [(0, 1, 1), (2, 1, 2), (4, 1, 3), (3, 1, 4), (1, 1, 5), (5, 1, 6)])
        a('s_lshl_b32 s38, s3, 7'); a(f'v_add_u32 v{self.vQS}, s38, v{self.vQS}')
        a('s_cmp_eq_u32 s2, 0'); a(f's_cselect_b32 s33, 0x{XBOFF - 4 * 2048:x}, s57')
        a('s_mov_b32 s53, 3'); a(f's_mov_b32 s54, 0x{OOB:x}')
        for i in range(8):
            self.consume(po[i], po[i + 2] if 1 <= i < 6 else None, (lambda: self.preready(True)) if i == (4 if self.split else 5) else None)
            self.stamp(48 + i, None, 28)
            if i == 1: a('s_call_b64 s[34:35], L_Osub')
            if i == 2: a('s_call_b64 s[34:35], L_Qsub'); a('s_lshl_b32 s54, s2, 9')
            if i == 5 and self.split:
                self.ready(True); a('s_call_b64 s[34:35], L_Osub'); self.cq = []
        if not self.split: self.ready(True)
        else:
            assert self.reord == 2
            self.stamp(1, None, 28)
            a('s_call_b64 s[34:35], L_Ook'); a('s_branch L_OQin')
        if self.reord == 2:
            a.label('L_OQloop')
            a('s_call_b64 s[34:35], L_Osub')
            a('s_cmp_ge_u32 s49, 8'); a('s_cbranch_scc1 L_end')
            a.label('L_OQin')
            self.readout(pq[6])
            a('s_call_b64 s[34:35], L_Qsub')
            self.readout(po[6], inwin); self.readout(po[7], inwin)
            a('s_cmp_eq_u32 s49, 1'); a('s_cbranch_scc1 L_OQloop')
            a('s_call_b64 s[34:35], L_Osub')
            a('s_branch L_OQloop')
            return
        if self.reord:
            a('s_branch L_OQin')
            a.label('L_OQloop')
            self.readout(pq[6])
            a('s_call_b64 s[34:35], L_Qsub')
            self.readout(po[6], inwin); self.readout(po[7], inwin)
            a('s_call_b64 s[34:35], L_Osub')
            a('s_cmp_ge_u32 s49, 8'); a('s_cbranch_scc1 L_end')
            a.label('L_OQin')
            a('s_call_b64 s[34:35], L_Osub')
            a('s_branch L_OQloop')
            return
        a.label('L_OQloop')
        a('s_call_b64 s[34:35], L_Osub')
        self.readout(pq[6])
        a('s_call_b64 s[34:35], L_Qsub')
        self.readout(po[6], inwin); self.readout(po[7], inwin)
        a('s_call_b64 s[34:35], L_Osub')
        a('s_cmp_lt_u32 s49, 8'); a('s_cbranch_scc1 L_OQloop')
        a('s_endpgm')

    def roleF(self):
        a = self.a
        self.dma_sub('L_dmaG', W1, 'v44', 88, 64 * 3584)
        self.dma_subB('L_dmaD', W3, 'v11')
        breg = lambda jj, ks: 256 + (jj * 7 + ks) * 8
        def dreg(jj, ks):
            i = jj * 2 + ks
            return 256 + 224 + 8 * i if i < 4 else 176 + 8 * (i - 4)
        G = 64; ACC = 48; A = 96; X = 124; CSUM = self.vCS; ACD = 128; X0 = 160
        a.label('L_Fsub')
        self.calc_ib()
        self.zero(ACC, 16); self.zero(ACD, 28)
        a('s_lshl_b32 s38, s50, 14'); a(f's_add_u32 s48, s38, 0x{YOFF:x}')
        a('s_add_u32 s44, s38, s40'); a('s_add_u32 s51, s44, s56'); a('s_add_u32 s44, s44, s57')
        a('s_lshl_b32 s38, s50, 11'); a(f's_add_u32 s47, s38, 0x{XBOFF - 4 * 2048:x}')
        a('s_add_u32 s45, s38, s41'); a('s_add_u32 s46, s45, s56'); a('s_add_u32 s45, s45, s57')
        a('s_cmp_lt_i32 s49, 0'); a('s_cbranch_scc1 L_Fx')
        a('s_bitcmp1_b32 s50, 2'); a('s_cbranch_scc1 L_Fr')
        a(f'v_lshlrev_b32 v16, 16, v{X0}'); a(f'v_and_b32 v17, 0xffff0000, v{X0}')
        for i in range(3): a(f'v_mov_b32 v{X0 + i}, v{X0 + i + 1}')
        a('s_branch L_Fg')
        a.label('L_Fr')
        self.resid_poll('s47')
        a.label('L_Fg')
        self.gather_sum('s48', G, True)
        a.label('L_Fx')
        a('ds_write_b32 v15, v24'); a('s_waitcnt lgkmcnt(0)'); a('s_barrier')
        for ks in range(7): a(f'ds_read_b128 {vr(A + 4*ks, 4)}, v2 offset:{128 * ks}')
        a(f'ds_read_b128 {vr(X, 4)}, v1')
        for x in self.xrow_ops('s45', 's46'): a(x)
        self.stamp(3, 's49', 28)
        fill = [None] * 5 + ['s_waitcnt lgkmcnt(0)'] + self.stats_ops(X)
        self.gemv(4, 7, breg, ACC, A, fill=fill, nother=1)
        a(f'v_mul_f32 v22, v24, v{CSUM}'); a(f'v_mul_f32 v23, v24, v{CSUM+1}'); a('v_mul_f32 v25, v25, v25')
        for jj in (0, 2, 1, 3): self.rowsel(20 + jj // 2, ACC, [(jj, 10 if jj & 1 else 5)])
        a('v_sub_f32 v20, v20, v22'); a('v_sub_f32 v21, v21, v23')
        a('v_max_f32 v20, 0, v20'); a('v_mul_f32 v21, v21, v25'); a('v_mul_f32 v20, v20, v21')
        a('v_cvt_pk_bf16_f32 v20, v20, v20')
        a('ds_write_b16 v40, v20'); a('s_waitcnt lgkmcnt(0)'); a('s_barrier')
        for ks in range(2): a(f'ds_read_b128 {vr(A + 4*ks, 4)}, v2 offset:{2048 + 128 * ks}')
        a('v_mov_b32 v21, 0')
        self.gemv(7, 2, dreg, ACD, A)
        self.rowout(ACD, 's44', 's51')
        self.stamp(12, 's49', 28)
        a('s_add_u32 s49, s49, 1')
        a('s_cmp_eq_u32 s49, 0'); a('s_cbranch_scc1 L_Fret')
        a('s_cmp_lt_u32 s49, 8'); a('s_cbranch_scc1 L_Fsub')
        a('s_endpgm')
        a.label('L_roleF')
        self.cq = list(self.cq0); done = 8 * (self.hq[1] - self.hq[0]) if self.hq else 0
        a('s_cmp_lt_u32 s3, 2'); a('s_cselect_b64 s[20:21], s[76:77], s[78:79]'); a(f's_mov_b32 s22, 0x{448 * 3584:x}'); a('s_mov_b32 s23, 0x20000')
        a('s_sub_u32 s2, s2, 16')
        a('v_mul_u32_u24 v6, 3584, v4')
        a('s_lshl_b32 s38, s2, 8'); a('s_and_b32 s39, s3, 1'); a('s_lshl_b32 s39, s39, 7'); a('s_add_u32 s38, s38, s39')
        a('v_add3_u32 v44, v6, v2, s38')
        self.table(88, 3584)
        pl = [dict(sub='L_dmaG', B=0, rd=[(breg(jj, ks) + 2 * rp, (jj >> 1) * 16384 + rp * 2048 + (jj & 1) * 256) for jj in range(4) for rp in range(4)]) for ks in range(7)]
        pl += [dict(sub='L_dmaD', B=1, rd=self.typeB_reads(dreg, i // 2, i % 2)) for i in range(4)]
        for i, p in enumerate(pl): p['slot'] = i % 4
        for i in range(2): self.issue(pl[i])
        self.srd(28, 80, 1792 * 896); self.srd(68, 64, 3584)
        a('s_lshl_b32 s39, s2, 7')
        self.typeB('v11', 's39')
        self.consts()
        a('s_lshr_b32 s38, s3, 1'); a('s_lshl_b32 s38, s38, 13'); a('s_and_b32 s39, s3, 1'); a('s_lshl_b32 s39, s39, 9'); a('s_add_u32 s38, s38, s39'); a('v_add_u32 v9, s38, v9')
        self.x0off(); self.gather_offs()
        for b in range(4): self.vm(f'buffer_load_dword v{X0 + b}, v12, s[68:71], 0 offen offset:{b * 896}', 'x0')
        a('v_and_b32 v6, 31, v0'); a('s_lshl_b32 s38, s3, 6'); a('s_add_u32 s38, s38, 2048'); a('v_lshl_add_u32 v40, v6, 1, s38')
        a('s_lshl_b32 s40, s2, 10'); a(f's_add_u32 s40, s40, 0x{ZOFF:x}')
        a('s_cmp_eq_u32 s2, 0'); a(f's_cselect_b32 s41, 0x{XAOFF:x}, s57')
        if done < 10: self.arm()
        elif done < 24: self.announce()
        self.issue(pl[2])
        a('s_branch L_Fsub')
        a.label('L_Fret')
        self.issue(pl[3])
        hooks = {2: lambda: self.announce(False)} if done < 10 else {}
        hooks[7] = self.preready
        for i in range(11):
            self.consume(pl[i], pl[i + 3] if 1 <= i < 8 else None, hooks.get(i))
            self.stamp(41 + i, None, 26)
            if i == 7:
                self.stamp(20, None, 28)
                self.colsum(4, 7, breg, ACC)
                self.rowsel(CSUM, ACC, [(0, 5), (1, 10)]); self.rowsel(CSUM + 1, ACC, [(2, 5), (3, 10)])
        self.ready()
        a('s_branch L_Fsub')

    def roleW(self):
        a = self.a
        self.cq = list(self.cq0); done = 8 * (self.hq[1] - self.hq[0]) if self.hq else 0
        self.consts()
        if done < 10: self.arm()
        if done < 24: self.announce()
        a('s_sub_u32 s2, s2, 30')
        if self.hpf: self.helper()
        a('s_cmp_lg_u32 s2, 0'); a('s_cbranch_scc1 L_end')
        self.srd(20, 82, 3584)
        self.x0off(); self.gather_offs()
        self.preready(); self.ready()
        G = 64
        a('s_mov_b32 s49, 0'); a(f's_mov_b32 s47, 0x{XAOFF + 4 * 2048:x}'); a(f's_mov_b32 s48, 0x{ZOFF + 4 * 16384:x}'); a('s_mov_b32 s44, 0')
        a.label('L_Wtop')
        self.resid_poll('s47')
        self.gather_sum('s48', G, False)
        a(f'buffer_store_dword v24, v12, {W1}, s44 offen')
        self.stamp(12, 's49', 28)
        a('s_add_u32 s49, s49, 1'); a('s_add_u32 s47, s47, 2048'); a('s_add_u32 s48, s48, 16384'); a('s_add_u32 s44, s44, 896')
        a('s_cmp_lt_u32 s49, 4'); a('s_cbranch_scc1 L_Wtop')
        a('s_endpgm')
    def helper(self):
        a = self.a
        hq, ho = self.hpf if isinstance(self.hpf, (list, tuple)) else (48, 48)
        a('s_lshl_b32 s38, s2, 2'); a('s_add_u32 s38, s38, s3')
        self.srd(20, 70, 448 * 8192); self.srd(24, 72, 4096 * 896)
        a('s_lshl_b32 s40, s38, 10'); a(f's_add_u32 s40, s40, {(448 - hq) * 8192}')
        l = self.lab('L_hq'); a(f's_mov_b32 s41, {hq}')
        if hq:
            a.label(l)
            a('s_waitcnt vmcnt(11)'); a(f'buffer_load_dwordx4 v[64:67], v1, {W1}, s40 offen {self.hpol}')
            a('s_add_u32 s40, s40, 8192'); a('s_sub_u32 s41, s41, 1'); a('s_cmp_lg_u32 s41, 0'); a(f's_cbranch_scc1 {l}')
        if ho:
            a('s_mul_i32 s40, s38, 458752'); a(f's_add_u32 s40, s40, {229376 - ho * 1024}'); a('s_add_u32 s42, s40, 229376')
            l = self.lab('L_ho'); a(f's_mov_b32 s41, {ho}')
            a.label(l)
            a('s_waitcnt vmcnt(10)'); a(f'buffer_load_dwordx4 v[64:67], v1, {W2}, s40 offen {self.hpol}')
            a(f'buffer_load_dwordx4 v[64:67], v1, {W2}, s42 offen {self.hpol}')
            a('s_add_u32 s40, s40, 1024'); a('s_add_u32 s42, s42, 1024'); a('s_sub_u32 s41, s41, 1'); a('s_cmp_lg_u32 s41, 0'); a(f's_cbranch_scc1 {l}')
        a('s_waitcnt vmcnt(0)')
        self.stamp(20, None, 28)

if __name__ == '__main__':
    kw = json.loads(sys.argv[2]) if len(sys.argv) > 2 else {}
    open(sys.argv[1], 'w').write(Gen(**kw).build())
```

```python
import sys, struct, json
from asmlib import Asm
NAME = "interleave_layers__mha_block_cached__glu_gated_reglu__decode"

QOFF = 0x0; YOFF = 0x10000; ZOFF = 0x30000; XAOFF = 0x50000; XBOFF = 0x54000; POFF = 0x80000; DOFF = 0x400000
PB = 16384; PIB = 16 * PB; MLO = 14336
OOB = 0x40000000
NC = 14; NW = 56
CS = 0.09016844005556021
def f2u(x): return struct.unpack('<I', struct.pack('<f', x))[0]

K_SRD = 's[8:11]'; V_SRD = 's[12:15]'; WS = 's[16:19]'; W1 = 's[20:23]'; W2 = 's[24:27]'; W3 = 's[28:31]'
DBG = 's[84:85]'
NCHAIN = 32
K4 = 's[88:91]'; V4 = 's[92:95]'
FULL = 'row_mask:0xf bank_mask:0xf'

def vr(b, n=1): return f'v{b}' if n == 1 else f'v[{b}:{b+n-1}]'
def ar(b, n=1): return f'a{b}' if n == 1 else f'a[{b}:{b+n-1}]'
def rr(b, n=1): return vr(b, n) if b < 256 else ar(b - 256, n)

class Gen:
    def __init__(self, diag=False, PF=65, depth=8, hpf=True, hpol='nt', cpf=False, rows=(16, 10, 7), hq=(1, 5), fake=0, CL=12, PF2=None, reord=2, lightO=0, split=True, tlb=0, fx=2, thr=None, wtlb=0, probe=None, kpol='nt', vpol='nt'):
        self.pmul = 10 if not probe or len(probe) < 3 else probe[2]; probe = probe and probe[:2]; self.probe = probe; self.role = 'X'; self.kpol = kpol; self.vpol = vpol
        self.a = Asm(); self.diag = diag; self.PF = PF; self.depth = depth; self.hpf = hpf; self.hpol = hpol; self.cpf = cpf; self.rows = rows; self.hq = hq; self.fake = fake; self.CL = CL; self.PF2 = PF2; self.reord = reord; self.lightO = lightO; self.split = split; self.tlb = tlb; self.fx = fx; self.thr = thr; self.wtlb = wtlb
        self.uid = 0
    def lab(self, p='L'):
        self.uid += 1; return f'{p}_{self.uid}'

    def bits(self, dst, lane, tmp, mp):
        a = self.a; first = True
        for lb, n, ab in mp:
            if first:
                a(f'v_bfe_u32 {dst}, {lane}, {lb}, {n}')
                if ab: a(f'v_lshlrev_b32 {dst}, {ab}, {dst}')
                first = False
            else:
                a(f'v_bfe_u32 {tmp}, {lane}, {lb}, {n}')
                a(f'v_lshl_add_u32 {dst}, {tmp}, {ab}, {dst}')
    def srd(self, base, lo, size):
        a = self.a
        a(f's_mov_b64 s[{base}:{base+1}], s[{lo}:{lo+1}]')
        a(f's_mov_b32 s{base+2}, 0x{size:x}'); a(f's_mov_b32 s{base+3}, 0x20000')
    def timeout(self):
        self.a('s_sub_u32 s52, s52, 1'); self.a('s_cbranch_scc1 L_bail')
    FLAG = 4096; CNTA = 16; CNTB = 144
    def wait_counter(self, va, vd, vt, off, n, pre=False):
        a = self.a; l = self.lab('L_cnt'); c = self.lab('L_cntc')
        if pre: a(f's_branch {c}')
        else: a(f'v_mov_b32 v{va}, 0')
        a.label(l)
        self.timeout()
        a(f'global_load_dword v{vd}, v{va}, {DBG} offset:{off} sc1'); a('s_waitcnt vmcnt(0)')
        a.label(c)
        a(f'v_and_b32 v{vt}, 0xff, v{vd}'); a(f'v_cmp_gt_u32 vcc, {n}, v{vt}'); a(f's_cbranch_vccnz {l}')
    def claim(self, va, vd, vr_):
        a = self.a; l = self.lab('L_cl')
        a('s_lshl_b32 s38, 1, s101'); a(f'v_mov_b32 v{va}, s100'); a(f'v_mov_b32 v{vd}, s38')
        a('s_or_b32 s38, s3, s7')
        a('s_waitcnt lgkmcnt(0)')
        a(f's_cbranch_scc1 {l}')
        a('s_mov_b64 exec, 1')
        a(f'global_atomic_or v{vr_}, v{va}, v{vd}, {DBG} sc0 sc1')
        a('s_mov_b64 exec, -1')
        a.label(l)
    def confirm(self, vr_, t):
        a = self.a; l = self.lab('L_rs'); w = self.lab('L_rw')
        a(f'v_mov_b32 v{t}, 0')
        a('s_cmp_lg_u32 s3, 0'); a(f's_cbranch_scc1 {l}')
        a('s_movk_i32 s38, 0x100'); a('s_cmp_lg_u32 s7, 0'); a(f's_cbranch_scc1 {w}')
        a(f'v_readfirstlane_b32 s39, v{vr_}'); a('s_bitcmp1_b32 s39, s101'); a(f's_cbranch_scc0 {w}')
        a('s_call_b64 s[96:97], L_lost')
        a.label(w)
        a(f'v_mov_b32 v{t+1}, s38'); a(f'ds_write_b32 v{t}, v{t+1} offset:{self.FLAG}'); a('s_waitcnt lgkmcnt(0)')
        a.label(l)
        a('s_barrier')
        a(f'ds_read_b32 v{t+1}, v{t} offset:{self.FLAG}'); a('s_waitcnt lgkmcnt(0)')
        a(f'v_readfirstlane_b32 s38, v{t+1}'); a('s_cmp_lg_u32 s38, 0x100'); a('s_cbranch_scc1 L_redo')
    def signal(self, va, vd, off, val):
        a = self.a; l = self.lab('L_sg')
        a('s_cmp_lg_u32 s3, 0'); a(f's_cbranch_scc1 {l}')
        a('s_mov_b64 exec, 1'); a(f'v_mov_b32 v{va}, 0'); a(f'v_mov_b32 v{vd}, {val}')
        a(f'global_atomic_add v{va}, v{vd}, {DBG} offset:{off} sc1')
        a('s_mov_b64 exec, -1')
        a.label(l)
    def rare_paths(self):
        a = self.a
        a.label('L_odd')
        a('s_waitcnt lgkmcnt(0)'); a('v_mov_b32 v1, 0')
        a('s_cmp_lg_u32 s3, 0'); a('s_cbranch_scc1 L_odd2')
        a('s_and_b32 s38, s36, 3'); a('s_lshl_b32 s38, s38, 6'); a('s_lshr_b32 s39, s36, 2'); a('s_lshl3_add_u32 s38, s39, s38')
        a('v_mov_b32 v2, s38'); a('s_lshl_b32 s39, s37, 3'); a('s_movk_i32 s41, 24')
        a.label('L_odd1')
        a(f'global_load_dword v3, v2, {DBG} sc1'); a('s_waitcnt vmcnt(0)')
        a('v_readfirstlane_b32 s38, v3'); a('s_lshr_b32 s38, s38, s39'); a('s_and_b32 s38, s38, 0xff'); a('s_bcnt1_i32_b32 s40, s38')
        a('s_cmp_ge_u32 s40, 7'); a('s_cselect_b32 s41, 0, s41'); a('s_sub_u32 s41, s41, 1'); a('s_cbranch_scc0 L_odd1')
        a('s_ff0_i32_b32 s38, s38'); a('v_mov_b32 v2, s38'); a(f'ds_write_b32 v1, v2 offset:{self.FLAG + 4}'); a('s_waitcnt lgkmcnt(0)')
        a.label('L_odd2')
        a('s_barrier')
        a(f'ds_read_b32 v2, v1 offset:{self.FLAG + 4}'); a('s_waitcnt lgkmcnt(0)')
        a('v_readfirstlane_b32 s38, v2'); a('s_branch L_even')
        a.label('L_lost')
        a('s_waitcnt vmcnt(0)')
        self.bits('v62', 'v0', 'v63', [(0, 2, 6), (2, 1, 3)])
        a.label('L_lost1')
        a(f'global_load_dword v60, v62, {DBG} sc1'); a('s_waitcnt vmcnt(0)')
        a('v_cmp_ne_u32 vcc, -1, v60'); a('s_movk_i32 s38, 0x300'); a('s_cbranch_vccz L_lost2')
        a('s_getreg_b32 s39, hwreg(HW_REG_XCC_ID, 0, 3)'); a('s_ff1_i32_b32 s38, vcc_lo')
        a('s_bitcmp1_b32 vcc_lo, s39'); a('s_cselect_b32 s38, s39, s38')
        a('s_nop 3'); a('v_readlane_b32 s39, v60, s38'); a('v_readlane_b32 s40, v62, s38'); a('s_ff0_i32_b32 s39, s39')
        a('s_lshl_b32 s41, 1, s39'); a('v_mov_b32 v61, s41'); a('v_mov_b32 v63, s40')
        a('s_mov_b64 exec, 1'); a(f'global_atomic_or v60, v63, v61, {DBG} sc0 sc1'); a('s_mov_b64 exec, -1'); a('s_waitcnt vmcnt(0)')
        a('v_readfirstlane_b32 s40, v60'); a('s_bitcmp1_b32 s40, s39'); a('s_cbranch_scc1 L_lost1')
        a('s_lshl_b32 s38, s38, 5'); a('s_add_u32 s38, s38, s39'); a('s_bitset1_b32 s38, 9')
        a.label('L_lost2')
        a('s_setpc_b64 s[96:97]')
        a.label('L_redo')
        a('s_bitcmp1_b32 s38, 8'); a('s_cbranch_scc1 L_bail')
        a('s_waitcnt vmcnt(0) lgkmcnt(0)'); a('s_barrier')
        a('s_load_dwordx16 s[64:79], s[0:1], 0')
        a('s_load_dwordx8 s[80:87], s[0:1], 64')
        a('s_bfe_u32 s36, s38, 0x30005'); a('s_and_b32 s2, s38, 31'); a('s_mov_b32 s7, 1')
        a('s_branch L_role')
    def stamp(self, idx, sidx=None, t0=20):
        if self.probe and not self.diag:
            role, want = self.probe
            if role != self.role or (sidx is None and idx != want) or (sidx and not (0 <= want - idx < 9)): return
            a = self.a
            a('s_waitcnt lgkmcnt(0)'); a('s_memrealtime s[62:63]'); a('s_waitcnt lgkmcnt(0)')
            if sidx: a(f's_cmp_eq_u32 {sidx}, {want - idx}'); a('s_cselect_b32 s61, s62, s61')
            else: a('s_mov_b32 s61, s62')
            return
        if not self.diag: return
        a = self.a
        a('s_waitcnt lgkmcnt(0)'); a('s_memrealtime s[62:63]'); a('s_waitcnt lgkmcnt(0)')
        a(f'v_mov_b32 v{t0}, s62')
        if sidx: a(f's_lshl_b32 s60, {sidx}, 2'); a('s_add_u32 s60, s60, s61')
        else: a('s_mov_b32 s60, s61')
        a(f'v_mov_b32 v{t0+1}, 0')
        a('s_mov_b64 exec, 1')
        a(f'buffer_store_dword v{t0}, v{t0+1}, {WS}, s60 offen offset:{idx*4}')
        a('s_mov_b64 exec, -1')
    def maxtree(self, regs, t):
        a = self.a; regs = list(regs)
        a(f'v_max3_u32 v{t}, v{regs[0]}, v{regs[1]}, v{regs[2 if len(regs) > 2 else 1]}')
        regs = regs[3:]
        while regs:
            x = regs[:2]; regs = regs[2:]
            a(f'v_max3_u32 v{t}, v{t}, v{x[0]}, v{x[-1]}')
        a(f'v_cmp_eq_u32 vcc, -1, v{t}')

    def build(self):
        a = self.a
        a('s_cmp_ge_u32 s2, 256'); a('s_cbranch_scc1 L_end2')
        if self.probe: a('s_memrealtime s[62:63]'); a('s_waitcnt lgkmcnt(0)'); a('s_mov_b32 s60, s62'); a('s_mov_b32 s61, s62')
        a('s_load_dwordx16 s[64:79], s[0:1], 0')
        a('s_load_dwordx8 s[80:87], s[0:1], 64')
        a('s_getreg_b32 s36, hwreg(HW_REG_XCC_ID, 0, 3)')
        a('s_getreg_b32 s38, hwreg(HW_REG_HW_ID, 8, 4)'); a('s_getreg_b32 s37, hwreg(HW_REG_HW_ID, 13, 2)')
        a('v_lshrrev_b32 v1, 6, v0'); a('v_and_b32 v0, 63, v0')
        a('v_readfirstlane_b32 s3, v1')
        a('s_mov_b32 s52, 400000'); a('s_mov_b32 s7, 0')
        if self.fake == 1: a('s_and_b32 s38, s38, 6')
        if self.fake == 2: a('s_and_b32 s36, s36, 5')
        if self.fake == 3: a('s_and_b32 s36, s2, 7'); a('s_lshr_b32 s38, s2, 5'); a('s_mov_b32 s37, 0')
        if self.fake == 4: a('s_mov_b32 s36, 0'); a('s_mov_b32 s38, 0'); a('s_mov_b32 s37, 0')
        if self.fake == 5:
            a('s_bitcmp0_b32 s37, 0'); a('s_cselect_b32 s39, 8, 0'); a('s_cmp_eq_u32 s38, 3'); a('s_cselect_b32 s38, s39, s38')
        a('s_bitcmp0_b32 s37, 0'); a('s_cselect_b32 s39, 8, 0'); a('s_cmp_eq_u32 s38, s39'); a('s_cbranch_scc1 L_odd')
        a.label('L_even')
        a('s_and_b32 s38, s38, 7'); a('s_lshl3_add_u32 s2, s37, s38')
        a.label('L_role')
        a('s_mov_b32 s101, s2'); a('s_and_b32 s100, s36, 3'); a('s_lshl_b32 s100, s100, 6'); a('s_lshr_b32 s38, s36, 2'); a('s_lshl3_add_u32 s100, s38, s100')
        if self.diag:
            a('s_lshl3_add_u32 s61, s2, s36'); a('s_lshl2_add_u32 s61, s61, s3'); a('s_lshl_b32 s61, s61, 8'); a(f's_add_u32 s61, s61, 0x{DOFF:x}')
        if self.cpf:
            a('s_getpc_b64 s[38:39]'); a.label('L_pc')
            a('s_lshl_b32 s37, s2, 2'); a('s_add_u32 s37, s37, s3'); a('s_lshl_b32 s37, s37, 10')
            a('s_cmp_ge_u32 s37, L_end-L_pc'); a('s_cbranch_scc1 L_nopf')
            a('v_lshl_add_u32 v2, v0, 4, s37'); a('v_min_u32 v2, L_end-L_pc-16, v2')
            a('global_load_dwordx4 v[60:63], v2, s[38:39]')
            a.label('L_nopf')
        a('s_cmp_eq_u32 s36, 0'); a('s_cbranch_scc1 L_chain')
        self.role = 'S'; self.stream()
        a.label('L_chain'); self.role = 'C'
        self.chain_common()
        self.role = 'W'; self.roleW(); self.role = 'O'; self.roleOQ(); self.role = 'F'; self.roleF()
        self.rare_paths()
        a.label('L_bail')
        a('s_mov_b64 exec, 1')
        a('v_mov_b32 v0, 32'); a('v_mov_b32 v1, 1')
        a(f'global_atomic_add v0, v1, {DBG} sc1')
        a('v_mov_b32 v0, 36'); a('v_mov_b32 v1, s2')
        a(f'global_store_dword v0, v1, {DBG} sc1')
        a.label('L_end')
        if self.probe:
            a('s_cmp_eq_u32 s60, s61'); a('s_cbranch_scc1 L_end2')
            a('s_sub_u32 s61, s61, s60'); a(f's_mul_i32 s61, s61, {self.pmul}'); a('s_add_u32 s61, s61, 7000'); a('s_add_u32 s61, s61, s60')
            a.label('L_pspin')
            a('s_memrealtime s[62:63]'); a('s_waitcnt lgkmcnt(0)'); a('s_sub_u32 s62, s62, s61'); a('s_cmp_lt_i32 s62, 0'); a('s_cbranch_scc1 L_pspin')
        a.label('L_end2')
        body = a.finish()
        hdr = open('cdna_kernels/' + NAME + '.s.ref').read().split('\n')
        top = [l for l in hdr if l.startswith(';') and '@launch' not in l]
        s = '\n'.join(top) + '\n; @launch grid=(256,1,1) block=(256,1,1) lds=163840\n'
        s += f'.amdgcn_target "amdgcn-amd-amdhsa--gfx950"\n.text\n.globl {NAME}_kernel\n.p2align 8\n.type {NAME}_kernel,@function\n{NAME}_kernel:\n'
        s += body
        s += f'''s_endpgm
.section .rodata,"a"
.p2align 6
.amdhsa_kernel {NAME}_kernel
  .amdhsa_next_free_vgpr 512
  .amdhsa_next_free_sgpr 102
  .amdhsa_accum_offset 256
  .amdhsa_group_segment_fixed_size 0
  .amdhsa_kernarg_size 96
  .amdhsa_user_sgpr_count 2
  .amdhsa_user_sgpr_kernarg_segment_ptr 1
  .amdhsa_system_sgpr_workgroup_id_x 1
.end_amdhsa_kernel
'''
        return s

    CA = [0, 4096]; Q1L = 8192; MA = [10240, 10272]; CO = [10304, 10308]; TB = 10496; WLDS = 37 * 1024
    vK, vV, vDs, vL16, vQo, vIQ, vIP = 1, 2, 3, 4, 5, 6, 7
    vM = 8; vT = 12; vBias = 15; vMC = 16; vL = 17; vQ = 24; vAcc = 32; vH = 48
    def kreg(self, s, u):
        return 64 + 96 * s + 16 * u if u < 6 else 256 + 128 * s + 16 * (u - 6)
    def vreg0(self, s, P, t):
        return 256 + 128 * s + 64 + 8 * (4 * P + t)
    def tile(self, n):
        if n < 40:
            u, t = n // 4, n % 4
            return 0, u // 2, t * 128 + (u & 1) * 512
        m = n - 40; g = m // 8; k = m % 8
        if g < 4: P, t = k // 4, k % 4
        else: t, P = k // 2, k % 2
        return 1, g, t * 128 + P * 1024
    def ldsslot(self, s, n):
        if n <= 72: return (n - 56) + 17 * s
        return 34 + (n - 73)
    def load(self, s, n, wait=True, skip=False):
        a = self.a
        kv, g, imm = self.tile(n)
        if n == 0 and not self.prologue:
            for j in range(5): a(f's_add_u32 s{40+j}, s{40+j}, 0x2000000')
            a('s_add_u32 s90, s90, 0x2000000'); a('s_mov_b32 s94, s90')
        l = None
        if skip:
            l = self.lab('L_sk'); a('s_cmp_eq_u32 s49, 4'); a(f's_cbranch_scc1 {l}')
        va = f'v{self.vV if kv else self.vK}'; srd = V_SRD if kv else K_SRD
        if g == 4: srd = V4 if kv else K4
        dst = None
        if n < 40: dst = self.kreg(s, n // 4) + 4 * (n % 4)
        elif n < 56:
            m = n - 40; dst = self.vreg0(s, (m % 8) // 4, m % 4) + 4 * (m // 8)
        elif n >= 76: dst = self.vH + 4 * (n - 76)
        if dst is None:
            a(f's_add_u32 m0, s45, {self.ldsslot(s, n) * 1024 - imm}')
        if wait and len(self.vmq) >= self.depth:
            a(f's_waitcnt vmcnt({self.depth - 1})'); self.vmq = self.vmq[-(self.depth - 1):]
        if dst is None:
            a(f'buffer_load_dwordx4 {va}, {srd}, s{40+g} offen offset:{imm} {self.vpol if kv else self.kpol} lds')
        else:
            a(f'buffer_load_dwordx4 {rr(dst, 4)}, {va}, {srd}, s{40+g} offen offset:{imm} {self.vpol if kv else self.kpol}')
        self.vmq.append((s, n))
        if l: a.label(l)
    def need_vm(self, tag):
        if tag in self.vmq:
            k = len(self.vmq) - 1 - self.vmq.index(tag)
            self.a(f's_waitcnt vmcnt({k})'); self.vmq = self.vmq[len(self.vmq) - k:] if k else []
    def ds(self, text, tag=None):
        self.a(text); self.lq.append(tag)
    def need_lds(self, tag):
        if tag in self.lq:
            i = len(self.lq) - 1 - self.lq[::-1].index(tag)
            k = len(self.lq) - 1 - i
            k = min(k, 15)
            self.a(f's_waitcnt lgkmcnt({k})'); self.lq = self.lq[len(self.lq) - k:] if k else []
    def qload(self):
        a = self.a
        a(f'buffer_load_dwordx4 {vr(self.vQ, 4)}, v{self.vQo}, {WS}, s46 offen sc1')
        a(f'buffer_load_dwordx4 {vr(self.vQ + 4, 4)}, v{self.vQo}, {WS}, s46 offen offset:256 sc1')
    def zero_acc(self):
        return [f'v_mov_b64 {vr(self.vAcc + 2 * i, 2)}, 0' for i in range(8)]

    def stream(self):
        a = self.a
        self.vmq = []; self.lq = []; self.prologue = True
        assert self.CL > self.depth
        if self.thr: a(f's_cmp_eq_u32 s36, {self.fx}'); a(f's_cselect_b32 s99, {self.thr[1]}, 0')
        if len(self.rows) == 2:
            RE, RL = self.rows
            assert 24 * RE + 32 * RL == 512 and max(RE, RL) <= 16
            a('s_sub_u32 s36, s36, 1'); a('s_lshl_b32 s36, s36, 5'); a('s_add_u32 s2, s36, s2')
            a('s_mul_i32 s36, s2, 10923'); a('s_lshr_b32 s36, s36, 16'); a('s_mul_i32 s37, s36, 6'); a('s_sub_u32 s37, s2, s37')
            a('s_sub_u32 s38, s2, 96'); a('s_and_b32 s39, s38, 7'); a('s_add_u32 s39, s39, 6'); a('s_lshr_b32 s38, s38, 3')
            a('s_cmp_lt_u32 s2, 96'); a('s_cselect_b32 s36, s36, s38'); a('s_cselect_b32 s37, s37, s39')
            a(f's_cselect_b32 s50, {RE}, {RL}'); a(f's_cselect_b32 s51, 0, {24 * (RE - RL)}')
        else:
            R2, RE, RL = self.rows
            assert R2 + 2 * RE + 4 * RL == 64 and max(self.rows) <= 16
            a('s_lshr_b32 s38, s36, 1'); a('s_and_b32 s39, s36, 3'); a(f's_mov_b32 s51, {8 * R2 + 16 * RE - 24 * RL}')
            a('s_cmp_lt_u32 s36, 4'); a('s_cselect_b32 s38, s38, s39'); a('s_cselect_b32 s39, 2, 3'); a('s_cselect_b32 s37, 2, 6')
            a(f's_cselect_b32 s50, {RE}, {RL}'); a(f's_cselect_b32 s51, {8 * (R2 - RE)}, s51')
            a('s_cmp_eq_u32 s36, 2'); a('s_cselect_b32 s38, 0, s38'); a('s_cselect_b32 s39, 1, s39'); a('s_cselect_b32 s37, 0, s37')
            a(f's_cselect_b32 s50, {R2}, s50'); a('s_cselect_b32 s51, 0, s51')
            a('s_lshl_b32 s38, s38, 5'); a('s_add_u32 s2, s38, s2'); a('s_lshr_b32 s36, s2, s39')
            a('s_lshl_b32 s38, s36, s39'); a('s_sub_u32 s38, s2, s38'); a('s_add_u32 s37, s37, s38')
        a('s_lshl_b32 s39, s37, 2'); a('s_add_u32 s39, s39, s3'); a('s_lshl_b32 s38, s39, 13')
        a('s_lshl_b32 s44, s36, 21'); a('s_add_u32 s40, s44, s38')
        self.bits(f'v{self.vK}', 'v0', 'v18', [(0, 1, 4), (4, 2, 5), (2, 1, 10), (1, 1, 11), (3, 1, 12)])
        a(f's_lshl_b32 s47, s36, 14'); a('s_lshl_b32 s38, s37, 10'); a('s_add_u32 s47, s47, s38'); a(f's_add_u32 s47, s47, 0x{POFF:x}')
        a('s_mul_i32 s38, s37, 896'); a(f's_sub_u32 s48, {MLO}, s38')
        a(f'v_lshlrev_b32 v{self.vL16}, 4, v0')
        self.claim(22, 23, 24)
        self.srd(8, 66, 0x8000000)
        N0 = 8
        for n in range(min(N0, self.depth)): self.load(0, n)
        for j in range(1, 4): a(f's_add_u32 s{40+j}, s40, {j * NW * 8192}')
        a('s_mul_i32 s38, s39, s50'); a('s_add_u32 s38, s38, s51'); a('s_lshl_b32 s38, s38, 9')
        a(f's_add_u32 s44, s44, {4 * NW * 8192}'); a('s_add_u32 s44, s44, s38')
        self.srd(88, 66, 0); self.srd(92, 68, 0)
        a('s_lshl_b32 s38, s50, 9'); a('s_add_u32 s90, s44, s38'); a('s_mov_b32 s94, s90')
        self.srd(12, 68, 0x8000000); self.srd(16, 86, 0x20000000)
        if self.tlb: a('s_load_dword s34, s[68:69], s40')
        self.stamp(0)
        self.bits(f'v{self.vV}', 'v0', 'v18', [(0, 3, 4), (5, 1, 9), (4, 1, 11), (3, 1, 12)])
        a(f's_mul_i32 s45, s3, {self.WLDS}'); a(f's_add_u32 s45, s45, {self.TB}')
        a(f'v_add_u32 v{self.vDs}, s45, v{self.vL16}')
        self.bits(f'v{self.vQo}', 'v0', 'v18', [(0, 2, 4), (4, 2, 6)])
        a('v_and_b32 v18, 2, v0'); a('v_cmp_eq_u32 vcc, 2, v18')
        a(f'v_mov_b32 v{self.vIQ}, 0x44444444'); a('v_mov_b32 v18, 0xeeeeeeee'); a(f'v_cndmask_b32 v{self.vIQ}, v{self.vIQ}, v18, vcc')
        a('v_and_b32 v18, 3, v0'); a('s_mov_b32 s38, 0x55555555'); a(f'v_mul_lo_u32 v{self.vIP}, v18, s38')
        a('v_and_b32 v18, 4, v0'); a('v_cmp_eq_u32 vcc, 4, v18')
        a('v_mov_b32 v18, 0xffff'); a('v_mov_b32 v19, 0xffff0000')
        M = self.vM
        a(f'v_cndmask_b32 v{M}, v18, 0, vcc'); a(f'v_cndmask_b32 v{M+1}, 0, v18, vcc')
        a(f'v_cndmask_b32 v{M+2}, v19, 0, vcc'); a(f'v_cndmask_b32 v{M+3}, 0, v19, vcc')
        self.bits('v18', 'v0', 'v19', [(4, 1, 0), (2, 1, 1), (1, 1, 2), (3, 1, 3), (5, 1, 4)])
        a('v_cmp_gt_u32 vcc, s50, v18'); a('v_mov_b32 v19, 0xff800000'); a(f'v_mov_b32 v{self.vT+2}, 0')
        a(f'v_cndmask_b32 v{self.vBias}, v19, 0, vcc')
        a('s_lshl_b32 s46, s3, 4'); a('s_add_u32 s46, s46, s36'); a('s_lshl_b32 s46, s46, 9')
        a('s_mov_b32 s49, 0'); a(f's_mov_b32 s51, 0x{f2u(CS):x}')
        a(f's_mov_b32 s53, {self.Q1L}'); a('s_lshl_b32 s54, s3, 10'); a('s_lshl_b32 s55, s3, 3')
        a('s_lshl_b32 s56, s36, 9'); a(f's_add_u32 s56, s56, 0x{QOFF + 3 * 8192:x}')
        a('v_mov_b32 v18, 0'); a('v_mov_b32 v19, 0')
        a(f'ds_write_b64 v18, v[18:19] offset:{self.CO[0]}')
        for n in range(self.depth, N0): self.load(0, n, wait=(n < N0 - 1))
        self.prologue = False
        entry_vmq = list(self.vmq)
        for s in range(2):
            a.label(f'L_A{s}')
            assert [(x[0] ^ s, x[1]) for x in self.vmq] == entry_vmq, (self.vmq, entry_vmq)
            self.lq = []
            def setflag():
                if self.thr: a('s_cmp_lt_u32 s49, s99'); a('s_cselect_b64 vcc, -1, 0')
            setflag()
            for n in range(N0, 73):
                if self.thr and n < self.thr[2 + s]:
                    l = self.lab('L_th'); a(f's_cbranch_vccz {l}'); a(f's_waitcnt vmcnt({self.thr[0] - 1})'); a.label(l)
                self.load(s, n)
                if self.tlb and n == self.tlb:
                    a('s_add_u32 s38, s40, 0x2000000'); a('s_and_b32 s38, s38, 0x7ffffff')
                    a('s_load_dword s34, s[66:67], s38'); a('s_load_dword s35, s[68:69], s38')
                if s == 0 and n in (self.CL, self.CL + self.depth + 4):
                    l = self.lab('L_it0')
                    a('s_cmp_lg_u32 s49, 0'); a(f's_cbranch_scc1 {l}')
                    if n == self.CL:
                        self.confirm(24, 20)
                        a('v_lshl_add_u32 v18, v0, 18, s48'); a('v_mov_b64 v[20:21], -1'); a('v_mov_b64 v[22:23], -1')
                        a('s_lshl_b32 s38, s3, 19'); a('s_add_u32 s38, s38, s47'); a(f's_add_u32 s39, s38, {PIB}')
                        a(f'buffer_store_dwordx4 v[20:23], v{self.vL16}, {WS}, s38 offen sc1')
                        a(f'buffer_store_dwordx4 v[20:23], v{self.vL16}, {WS}, s39 offen sc1')
                        a('s_mov_b64 exec, 3')
                        a(f'buffer_store_dwordx2 v[20:21], v18, {WS}, s38 offen sc1')
                        a('s_mov_b64 exec, -1')
                        self.stamp(30, None, 24)
                    else:
                        a('s_barrier'); self.signal(22, 23, self.CNTB, 1); self.stamp(31)
                    a.label(l)
                if s == 0 and n == self.PF - 8:
                    a('v_mov_b32 v22, 0'); a(f'global_load_dword v23, v22, {DBG} offset:{self.CNTA} sc1'); self.vmq.append('cnt')
                if n == self.PF:
                    if s == 0:
                        self.stamp(22, 's49')
                        self.need_vm('cnt'); self.wait_counter(22, 23, 21, self.CNTA, NCHAIN, pre=True); setflag()
                    self.qload(); self.vmq += ['q0', 'q1']
            self.need_vm('q1')
            self.stamp(1, 's49')
            a.label(f'L_X{s}')
            self.maxtree(range(self.vQ, self.vQ + 8), 18)
            a(f's_cbranch_vccz L_Xok{s}')
            a.label(f'L_Xpoll{s}')
            self.timeout()
            self.qload(); a('s_waitcnt vmcnt(0)')
            a(f's_branch L_X{s}')
            a.label(f'L_Xok{s}')
            self.stamp(6, 's49')
            if s == 0:
                a('s_cmp_eq_u32 s49, 0'); a('s_cbranch_scc1 L_first')
            save = list(self.vmq)
            self.ppass(1, s)
            self.stamp(11, 's49')
            if s == 0:
                a('s_cmp_eq_u32 s49, 4'); a('s_cbranch_scc1 L_end')
                after = list(self.vmq)
            a.label(f'L_P1{s}')
            self.ppass(0, s)
            self.stamp(16, 's49')
            for z in self.zero_acc(): a(z)
            a('s_add_u32 s49, s49, 1'); a(f's_add_u32 s47, s47, {PIB}'); a('s_add_u32 s53, s53, 512')
            a('s_add_u32 s56, s56, 8192'); a('s_mov_b32 s46, s56')
            if s == 0: first_save, first_after = save, after
        a('s_cmp_eq_u32 s49, 4'); a('s_cbranch_scc1 L_Xpoll0')
        a('s_branch L_A0')
        a.label('L_first')
        self.vmq = first_save
        a('s_lshl_b32 s38, s3, 9'); a(f'v_add_u32 v18, s38, v{self.vQo}')
        a(f'ds_write_b128 v18, {vr(self.vQ, 4)} offset:{self.Q1L}')
        a(f'ds_write_b128 v18, {vr(self.vQ + 4, 4)} offset:{self.Q1L + 256}')
        for n in range(73, 77): self.load(0, n)
        assert self.vmq == first_after, (self.vmq, first_after)
        a('s_waitcnt lgkmcnt(0)'); a('s_barrier')
        a('s_branch L_P10')

    def ppass(self, p2, s):
        a = self.a
        ds_ = (1 - s) if p2 else s
        fs = 1 - s
        cu0 = 0 if p2 else 2
        T = self.vT; Q = self.vQ; AC = self.vAcc; M = self.vM
        skip = (p2 and s == 0)
        def cdst(pi): return self.kreg(fs, cu0 + pi // 2) + 8 * (pi % 2)
        def copy(n):
            if n >= 72: pi, half = (n - 72) // 2, (n - 72) % 2
            else: pi, half = 2 + (n - 56) % 8, (n - 56) // 8
            if not p2: self.need_vm((s, n))
            self.ds(f'ds_read_b128 {rr(cdst(pi) + 4 * half, 4)}, v{self.vDs} offset:{self.ldsslot(ds_, n) * 1024}', ('c', n))
        def bop(U, P, t):
            if U == 0: return self.vreg0(ds_, P, t), []
            if U == 1: return cdst(2 + 4 * P + t), [('c', 56 + 4 * P + t), ('c', 64 + 4 * P + t)]
            if t < 2: return cdst(t), [('c', 72 + 2 * t), ('c', 73 + 2 * t)]
            return self.vH + 8 * (t - 2), []
        if not p2:
            a(f'v_add_u32 v18, s53, v{self.vQo}')
            self.ds(f'ds_read_b128 {vr(Q, 4)}, v18', 'q'); self.ds(f'ds_read_b128 {vr(Q + 4, 4)}, v18 offset:256', 'q')
            for z in self.zero_acc(): a(z)
            self.load(s, 77)
            self.need_lds('q')
        def post_a(u):
            ac = AC + 4 * (u % 4); t = 18 + 2 * (u % 2)
            a(f'v_add_f32 v{t+1}, v{ac+1}, v{ac+3}'); a(f'v_add_f32 v{t}, v{ac}, v{ac+2}')
        def post_b(u):
            t = 18 + 2 * (u % 2)
            a(f'v_add_f32_dpp v{T + u // 4}, v{t+1}, v{t} quad_perm:[1,1,3,3] row_mask:0x{1 << (u % 4):x} bank_mask:0xf')
        if p2: cplan = {0: [72, 73, 74, 75], 1: [56, 64, 57, 65], 2: [58, 66, 59, 67], 3: [60, 68], 4: [61, 69], 5: [62, 70], 6: [63, 71]}
        else: cplan = {0: [56, 57], 1: [58, 59], 2: [60, 61], 3: [62, 63], 4: [64, 65], 5: [66, 67], 6: [68, 69]}
        for u in range(10):
            ac = AC + 4 * (u % 4); k = self.kreg(ds_, u)
            a(f'v_smfmac_f32_16x16x64_bf16 {vr(ac, 4)}, {vr(Q, 4)}, {rr(k, 8)}, v{self.vIQ}')
            if u >= 3: post_a(u - 3)
            a(f'v_smfmac_f32_16x16x64_bf16 {vr(ac, 4)}, {vr(Q + 4, 4)}, {rr(k + 8, 8)}, v{self.vIQ}')
            if u >= 3: post_b(u - 3)
            for n in cplan.get(u, []): copy(n)
            if p2 and u == 4: self.need_lds(('c', 75)); self.load(s, 73, skip=skip)
            if p2 and u == 9: self.load(s, 74, skip=skip)
            if not p2 and u == 5: self.load(s, 78)
            if not p2 and u == 9: self.load(s, 79); copy(70); copy(71)
        zf = [f'v_mov_b32 v{AC + r}, 0' for r in list(range(8, 16)) + list(range(8))]
        def Z(n=2):
            for _ in range(n):
                if zf: a(zf.pop(0))
        post_a(7); Z(1); post_b(7); Z(3); post_a(8); Z(1); post_b(8); Z(2); post_a(9); Z(1); post_b(9)
        m = self.vMC; t = 18
        a(f'v_sub_f32 v{T+2}, v{T+2}, v{T+1}'); a(f'v_sub_f32 v{T+1}, v{T+1}, v{T}')
        a(f'v_add_f32 v{T+2}, v{self.vBias}, v{T+2}')
        a(f'v_max3_f32 v{m}, v{T}, v{T+1}, v{T+2}'); Z()
        a(f'v_max_f32_dpp v{m}, v{m}, v{m} quad_perm:[2,3,0,1] {FULL}'); Z()
        a(f'v_max_f32_dpp v{m}, v{m}, v{m} row_ror:4 {FULL}'); Z()
        a(f'v_max_f32_dpp v{t}, v{m}, v{m} row_ror:8 {FULL}')
        a(f'v_max_f32_dpp v{m}, v{m}, v{m} row_ror:8 {FULL}'); Z()
        a(f'v_permlane16_swap_b32 v{m}, v{t}'); a(f'v_max_f32 v{t+1}, v{m}, v{t}'); a(f'v_max_f32 v{m}, v{m}, v{t}'); Z(8)
        a(f'v_permlane32_swap_b32 v{m}, v{t+1}'); a(f'v_max_f32 v{m}, v{m}, v{t+1}')
        a(f'v_mul_f32 v{m}, s51, v{m}')
        order = [0, 2, 1] if p2 else [0, 1, 2]
        for k in order: a(f'v_fma_f32 v{T+k}, v{T+k}, s51, -v{m}')
        for k in order: a(f'v_exp_f32 v{T+k}, v{T+k}')
        L = self.vL
        def pack(k):
            o = [f'v_mov_b32_dpp v18, v{T+k} quad_perm:[0,0,0,0] {FULL}',
                 f'v_mov_b32_dpp v19, v{T+k} quad_perm:[2,2,2,2] {FULL}',
                 f'v_cvt_pk_bf16_f32 v{20+k}, v18, v19']
            if k == 2: o += [f'v_mov_b32_dpp v0, v22 row_shl:4 {FULL}', 'v_permlane32_swap_b32 v22, v0']
            return o
        def aprep(k, P, A):
            pp = 20 + k
            if P == 0:
                return [f'v_and_b32 v{A}, v{pp}, v{M}', f'v_and_b32 v{A+2}, v{pp}, v{M+2}',
                        f'v_and_b32_dpp v{A+1}, v{pp}, v{M+1} row_shr:4 {FULL} bound_ctrl:0',
                        f'v_and_b32_dpp v{A+3}, v{pp}, v{M+3} row_shr:4 {FULL} bound_ctrl:0']
            return [f'v_and_b32 v{A+1}, v{pp}, v{M+1}', f'v_and_b32 v{A+3}, v{pp}, v{M+3}',
                    f'v_and_b32_dpp v{A}, v{pp}, v{M} row_shl:4 {FULL} bound_ctrl:0',
                    f'v_and_b32_dpp v{A+2}, v{pp}, v{M+2} row_shl:4 {FULL} bound_ctrl:0']
        if p2: sets = [(0, 0), (2, 0), (0, 1), (1, 0), (1, 1)]
        else: sets = [(0, 0), (0, 1), (1, 0), (1, 1), (2, 0)]
        lred = [f'v_add_f32 v{L}, v{T}, v{T+1}',
                f'v_add_f32 v{L}, v{T+2}, v{L}',
                f'v_add_f32_dpp v{L}, v{L}, v{L} quad_perm:[2,3,0,1] {FULL}',
                f'v_add_f32_dpp v{L}, v{L}, v{L} row_ror:4 {FULL}',
                f'v_add_f32_dpp v{L}, v{L}, v{L} row_ror:8 {FULL}',
                f'v_mov_b32 v23, v{L}', f'v_permlane16_swap_b32 v{L}, v23', f'v_add_f32 v{L}, v{L}, v23',
                f'v_mov_b32 v23, v{L}', f'v_permlane32_swap_b32 v{L}, v23', f'v_add_f32 v{L}, v{L}, v23']
        def prep(i):
            k, P = sets[i]
            return (pack(k) if P == 0 else []) + aprep(k, P, Q + 4 * (i % 2))
        for x in prep(0): a(x)
        CA = self.CA[p2]; MA = self.MA[p2]; CO = self.CO[p2]
        def merge(t0):
            o = []
            for r in range(4): o.append(f'v_permlane32_swap_b32 v{AC + 4*t0 + r}, v{AC + 4*t0 + 4 + r}')
            for r in range(4):
                if t0 == 0: o.append(f'v_add_f32_dpp v{AC + r}, v{AC + 4 + r}, v{AC + r} row_ror:8 row_mask:0xf bank_mask:0x3')
                else: o.append(f'v_add_f32_dpp v{AC + r}, v{AC + 8 + r}, v{AC + 12 + r} row_ror:8 row_mask:0xf bank_mask:0xc')
            return o
        for i, (k, P) in enumerate(sets):
            fill = prep(i + 1) if i + 1 < len(sets) else []
            last = (i == len(sets) - 1)
            if last:
                fill = lred + [f'v_add_u32 v18, s54, v{self.vL16}', 'v_mov_b32 v19, s55', 'v_mov_b32 v20, 1', 'v_mov_b32 v21, 0', 'v_mov_b32 v22, s48']
                lred = []
            for t in range(4):
                b, tags = bop(k, P, t)
                if not p2 and k == 2:
                    if t == 0:
                        self.load(1 - s, 1); copy(72); copy(73)
                        for x in fill: a(x)
                        fill = []
                        self.load(1 - s, 2); self.load(1 - s, 3); copy(74); copy(75)
                    if t == 2:
                        self.load(1 - s, 4)
                        for x in merge(0): a(x)
                        self.load(1 - s, 5); self.need_vm((s, 77))
                    if t == 3:
                        self.load(1 - s, 6); self.need_vm((s, 79))
                for tg in tags: self.need_lds(tg)
                a(f'v_smfmac_f32_16x16x64_bf16 {vr(AC + 4 * t, 4)}, {vr(Q + 4 * (i % 2), 4)}, {rr(b, 8)}, v{self.vIP}')
                n = (len(fill) + (3 - t)) // (4 - t)
                got = fill[:n]; fill = fill[n:]
                if len(got) < 2 and lred: got.append(lred.pop(0))
                for x in got: a(x)
            if p2 and i == 0: self.load(s, 75, skip=skip)
            if p2 and i == 2: self.load(s, 76, skip=skip)
            if not p2 and i == 1: self.load(1 - s, 0)
        if not p2: self.load(1 - s, 7, wait=False)
        else:
            for x in merge(0): a(x)
        for x in merge(2): a(x)
        Zr = self.kreg(fs, 2)
        a(f'ds_write_b128 v18, {vr(AC, 4)} offset:{CA}')
        a('s_mov_b64 exec, 1')
        a(f'ds_write_b64 v19, {vr(self.vMC, 2)} offset:{MA}')
        a(f'ds_add_rtn_u32 v20, v21, v20 offset:{CO}')
        a('s_mov_b64 exec, -1')
        a(f'ds_read_b128 {vr(Q, 4)}, v21 offset:{MA}'); a(f'ds_read_b128 {vr(Q + 4, 4)}, v21 offset:{MA + 16}')
        for w in range(4): a(f'ds_read_b128 {vr(Zr + 4 * w, 4)}, v{self.vL16} offset:{CA + 1024 * w}')
        if p2: a(f's_add_u32 s38, s47, {3 * PIB}')
        else: a('s_mov_b32 s38, s47')
        a('s_waitcnt lgkmcnt(6)')
        a('v_readfirstlane_b32 s39, v20'); a('s_and_b32 s39, s39, 3'); a('s_cmp_eq_u32 s39, 3')
        l = self.lab('L_nl'); a(f's_cbranch_scc0 {l}')
        a('s_waitcnt lgkmcnt(4)')
        a(f'v_max3_f32 v{m}, v{Q}, v{Q+2}, v{Q+4}'); a(f'v_max_f32 v{m}, v{m}, v{Q+6}')
        for w in range(4): a(f'v_sub_f32 v{Q+2*w}, v{Q+2*w}, v{m}')
        for w in range(4): a(f'v_exp_f32 v{Q+2*w}, v{Q+2*w}')
        a(f'v_mul_f32 v{L}, v{Q}, v{Q+1}')
        for w in range(1, 4): a(f'v_fmac_f32 v{L}, v{Q+2*w}, v{Q+2*w+1}')
        a(f'v_min_u32 v{m}, -2, v{m}'); a(f'v_min_u32 v{L}, -2, v{L}')
        a('s_mov_b64 exec, 1')
        a(f'buffer_store_dwordx2 {vr(m, 2)}, v22, {WS}, s38 offen sc1')
        a('s_mov_b64 exec, -1')
        a('s_waitcnt lgkmcnt(0)')
        for w in range(4):
            for hf in range(2):
                if w == 0: a(f'v_pk_mul_f32 {vr(AC + 2*hf, 2)}, {vr(Zr + 2*hf, 2)}, {vr(Q, 2)} op_sel_hi:[1,0]')
                else: a(f'v_pk_fma_f32 {vr(AC + 2*hf, 2)}, {vr(Zr + 4*w + 2*hf, 2)}, {vr(Q + 2*w, 2)}, {vr(AC + 2*hf, 2)} op_sel_hi:[1,0,1]')
        for r in range(4): a(f'v_min_u32 v{AC + r}, -2, v{AC + r}')
        a(f'buffer_store_dwordx4 {vr(AC, 4)}, v{self.vL16}, {WS}, s38 offen sc1')
        a.label(l)
        a('s_waitcnt lgkmcnt(0)'); self.lq = []

    RING0 = 8192
    vGO2, vTR, vOOB, vDO, vX0O, vGO, vXR, vXW, vRES = 8, 9, 10, 11, 12, 13, 14, 15, 16
    vAC, vCS, vQS, vRO, vPO, vPO2, vMLO, vOW, vDQ, vX0 = 32, 36, 38, 39, 40, 41, 42, 43, 44, 45
    def vm(self, text, tag=None):
        self.a(text); self.cq.append(tag)
    def vmwait(self, tag):
        if tag in self.cq:
            i = len(self.cq) - 1 - self.cq[::-1].index(tag)
            k = len(self.cq) - 1 - i
            assert k <= 63
            self.a(f's_waitcnt vmcnt({k})'); self.cq = self.cq[i + 1:]
    def arm(self, q=False):
        a = self.a
        self.vmwait('init'); self.confirm(self.vCL, 28)
        for r in range(20, 24): a(f'v_mov_b32 v{r}, -1')
        a('s_lshl2_add_u32 s38, s101, s3'); a('s_mul_i32 s38, s38, 3072'); a(f's_add_u32 s38, s38, 0x{YOFF:x}')
        for i in range(3): self.vm(f'buffer_store_dwordx4 v[20:23], v1, {WS}, s38 offen offset:{i * 1024} sc1', 'arm')
        if q:
            self.bits('v28', 'v0', 'v29', [(0, 5, 4), (5, 1, 13)])
            a('s_lshl_b32 s38, s101, 9'); a('s_lshl_b32 s39, s3, 14'); a('s_add_u32 s39, s39, s38')
            self.vm(f'buffer_store_dwordx4 v[20:23], v28, {WS}, s39 offen sc1', 'arm')
    def announce(self, bar=True):
        a = self.a
        if bar: self.vmwait('arm'); a('s_barrier')
        assert 'arm' not in self.cq
        a('s_getreg_b32 s38, hwreg(HW_REG_XCC_ID, 0, 4)'); a('s_lshl_b32 s38, s38, 8'); a('s_add_u32 s38, s38, 1')
        self.signal(28, 29, self.CNTA, 's38')
        self.stamp(21, None, 30)
    def chain_common(self):
        a = self.a
        a('v_lshlrev_b32 v1, 4, v0')
        self.bits('v2', 'v0', 'v6', [(0, 1, 4), (4, 2, 5)])
        self.bits('v4', 'v0', 'v6', [(1, 1, 0), (3, 1, 2), (2, 1, 3)])
        a('s_lshl_b32 s98, s3, 13'); a(f's_add_u32 s98, s98, {self.RING0}'); a('s_movk_i32 s99, 1024')
        a('s_mul_i32 s32, s3, 7168'); a(f's_add_u32 s32, s32, {self.RING0}')
        self.claim(28, 29, self.vCL)
        self.srd(16, 86, 0x20000000)
        self.stamp(0, None, 30)
        a('s_cmp_lt_u32 s2, 16'); a('s_cbranch_scc1 L_roleOQ')
        self.cq = ['init']
        if self.wtlb:
            lo = 30 if self.wtlb == 1 else 16; nw = 4 * (32 - lo)
            a(f's_cmp_lt_u32 s2, {lo}'); a('s_cbranch_scc1 L_notlb')
            a('v_lshlrev_b32 v6, 12, v0'); a(f's_sub_u32 s33, s2, {lo}'); a('s_lshl2_add_u32 s33, s33, s3'); a('s_lshl_b32 s33, s33, 18')
            for lo_, size in ((70, 448 * 8192), (76, 448 * 3584), (78, 448 * 3584), (72, 4096 * 896), (80, 1792 * 896)):
                self.srd(20, lo_, size)
                for i in range(-(-size // (nw << 18))):
                    if i: a(f's_add_u32 s39, s33, {i * nw << 18}')
                    a(f'buffer_load_dword v64, v6, {W1}, {"s39" if i else "s33"} offen nt')
            a.label('L_notlb')
        if self.hq:
            self.srd(20, 70, 448 * 8192)
            self.bits('v6', 'v0', 'v7', [(0, 5, 4), (5, 1, 13)])
            a('s_sub_u32 s33, s2, 16'); a('s_lshl_b32 s33, s33, 9'); a('s_lshl_b32 s39, s3, 14'); a('s_add_u32 s33, s33, s39')
            a(f's_add_u32 s33, s33, {self.hq[0] * 64 * 8192}')
            for i in range(8 * (self.hq[1] - self.hq[0])):
                self.vm(f'buffer_load_dwordx4 v[64:67], v6, {W1}, s33 offen {self.hpol}', 'hq'); a('s_add_u32 s33, s33, 65536')
                if i == 9: self.arm()
                if i == 23: self.announce()
        self.cq0 = list(self.cq)
        a('s_cmp_lt_u32 s2, 30'); a('s_cbranch_scc1 L_roleF')
    def consts(self):
        a = self.a
        a('v_and_b32 v6, 1, v0'); a('v_cmp_eq_u32 vcc, 1, v6')
        a('v_mov_b32 v3, 0x44444444'); a('v_mov_b32 v6, 0xeeeeeeee'); a('v_cndmask_b32 v3, v3, v6, vcc')
        self.bits('v9', 'v0', 'v6', [(0, 5, 3), (5, 1, 10)])
        a('v_mul_u32_u24 v5, 6144, v6'); a('s_mul_i32 s38, s3, 1792'); a('v_add3_u32 v5, v5, v9, s38')
        a(f's_mov_b32 s57, 0x{OOB:x}'); a(f's_mov_b32 s56, 0x{OOB:x}'); a('s_mov_b32 s49, -1')
    vCL = 46
    def preready(self, streams=False):
        self.vm(f'global_load_dword v46, v18, {DBG} offset:{self.CNTA} sc1', 'cnt')
        if streams: self.vm(f'global_load_dword v47, v18, {DBG} offset:{self.CNTB} sc1', 'cnt')
    def ready(self, streams=False):
        a = self.a
        self.stamp(22, None, 28)
        self.vmwait('cnt')
        self.wait_counter(18, 46, 22, self.CNTA, NCHAIN, pre=True)
        a('v_readfirstlane_b32 s38, v46'); a(f's_cmp_eq_u32 s38, {NCHAIN}')
        a(f's_cselect_b32 s57, 0, 0x{OOB:x}'); a(f's_cselect_b32 s56, 0x{OOB:x}, 0')
        if streams: self.wait_counter(18, 47, 22, self.CNTB, 16 * NC, pre=True)
        self.stamp(1, None, 28)
    def lstore(self, op, data, voff, sp, ss):
        self.a(f'buffer_store_{op} {data}, {voff}, {WS}, {sp} offen')
        self.a(f'buffer_store_{op} {data}, {voff}, {WS}, {ss} offen sc1')
    def dma_sub(self, name, srd, voff, tab, adv):
        a = self.a
        a.label(name)
        for e in range(8):
            a(f'buffer_load_dwordx4 {voff}, {srd}, s{tab + e} offen nt lds')
            if e < 7: a('s_add_u32 m0, m0, s99')
        a(f'v_add_u32 {voff}, 0x{adv:x}, {voff}')
        a('s_setpc_b64 s[96:97]')
    def dma_subB(self, name, srd, voff):
        a = self.a
        a.label(name)
        for cb in range(7):
            a(f'buffer_load_dwordx4 {voff}, {srd}, 0 offen offset:{128 * cb} nt lds')
            if cb < 6: a('s_add_u32 m0, m0, 896')
        a(f'v_add_u32 {voff}, 0x{32 * 896:x}, {voff}')
        a('s_setpc_b64 s[96:97]')
    def issue(self, p):
        self.a(f's_add_u32 m0, {"s32" if p["B"] else "s98"}, {p["slot"] * 32768}'); self.a(f's_call_b64 s[96:97], {p["sub"]}')
        self.cq += [id(p)] * (7 if p['B'] else 8)
    def readout(self, p, sel=None):
        self.a(f'v_add_u32 v6, {self.RING0 + p["slot"] * 32768}, {"v5" if p["B"] else "v9"}')
        for d, imm in p['rd']:
            if sel is None or sel(d): self.a(f'ds_read_b64_tr_b16 {rr(d, 2)}, v6 offset:{imm}')
    def consume(self, p, nxt=None, hook=None):
        self.vmwait(id(p))
        self.a('s_waitcnt lgkmcnt(0)'); self.a('s_barrier')
        if hook: hook()
        if nxt:
            assert nxt['slot'] == self.lastslot, (nxt['slot'], self.lastslot)
            self.issue(nxt)
        self.readout(p); self.lastslot = p['slot']
    def table(self, tab, rs):
        for e in range(8): self.a(f's_mov_b32 s{tab + e}, 0x{(16 * (e & 1) + 2 * ((e >> 1) & 1) + 32 * (e >> 2)) * rs:x}')
    def typeB(self, voff, rowbase_s):
        a = self.a
        a('s_and_b32 s38, s3, 1'); a('s_lshl_b32 s38, s38, 4'); a(f's_add_u32 s38, s38, {rowbase_s}'); a('s_and_b32 s39, s3, 2'); a('s_add_u32 s38, s38, s39')
        a(f'v_add_u32 v6, s38, v4'); a(f'v_mad_u32_u24 {voff}, v6, s99, v2'); a(f'v_lshlrev_b32 v6, 7, v6'); a(f'v_sub_u32 {voff}, {voff}, v6')
    def typeB_reads(self, breg, ks, half):
        return [(breg(jj, ks) + 2 * (e1 + 2 * half), 2 * e1 * 7168 + jj * 256) for jj in range(7) for e1 in range(2)]
    def x0off(self):
        a = self.a
        a(f'v_mov_b32 v10, 0x{OOB:x}')
        self.bits('v6', 'v0', 'v7', [(0, 4, 3), (4, 1, 2), (5, 1, 7)])
        a('s_mul_i32 s38, s3, 224'); a('s_lshl_b32 s39, s3, 5'); a(f's_add_u32 s39, s39, {896 - 224}')
        a('v_cmp_gt_u32 vcc, 224, v6')
        a('v_add_u32 v15, s38, v6'); a('v_add_u32 v6, s39, v6')
        a('v_cndmask_b32 v12, v10, v15, vcc'); a('v_cndmask_b32 v15, v6, v15, vcc')
        a('s_lshl_b32 s38, s3, 9'); a('v_lshl_add_u32 v14, v0, 3, s38'); a('v_cndmask_b32 v14, v10, v14, vcc')
    def gather_offs(self):
        a = self.a
        self.bits('v13', 'v0', 'v6', [(0, 4, 4), (4, 2, 12)])
        a('s_lshl_b32 s38, s3, 8'); a('v_add_u32 v13, s38, v13'); a(f'v_lshl_add_u32 v{self.vRO}, v0, 2, s38')
        a('v_cmp_gt_u32 vcc, 48, v0'); a('v_mov_b32 v18, 0'); a('v_mov_b32 v19, 0'); a('v_cndmask_b32 v8, v10, v13, vcc')
        a('v_and_b32 v6, 8, v0'); a('v_cmp_eq_u32 vcc, 8, v6'); a('v_mov_b32 v6, 0x3c00'); a('v_mov_b32 v7, 0x3c000000')
        a('v_cndmask_b32 v6, v6, v7, vcc'); a('v_and_b32 v7, 7, v0')
        for r, key in enumerate((0, 1, 4, 5)):
            a(f'v_cmp_eq_u32 vcc, {key}, v7'); a('s_nop 1'); a(f'v_cndmask_b32 v{self.vAC + r}, 0, v6, vcc')
    def resid_poll(self, soff):
        a = self.a; l = self.lab('L_rp')
        a.label(l)
        self.timeout()
        a(f'buffer_load_dwordx2 v[16:17], v14, {WS}, {soff} offen sc1'); a('s_waitcnt vmcnt(0)')
        a('v_max_u32 v6, v16, v17'); a('v_cmp_eq_u32 vcc, -1, v6'); a(f's_cbranch_vccnz {l}')
    def gather_sum(self, soff, G, full):
        a = self.a; l = self.lab('L_g'); d = self.lab('L_gd')
        a.label(l)
        self.timeout()
        for i in range(4): a(f'buffer_load_dwordx4 {vr(G + 4 * i, 4)}, {"v13" if full or i < 2 else "v8"}, {WS}, {soff} offen offset:{1024 * i} sc1')
        for i in range(4):
            a(f's_waitcnt vmcnt({3 - i})')
            a(f'v_mfma_f32_16x16x32_f16 v[20:23], {vr(self.vAC, 4)}, {vr(G + 4 * i, 4)}, {"v[16:19]" if i == 0 else "v[20:23]"}')
        a('v_cmp_u_f32 vcc, v20, v21')
        a('v_cvt_pk_bf16_f32 v24, v20, v21')
        a(f's_cbranch_vccz {d}')
        self.maxtree(range(G, G + 16), 6)
        a(f's_cbranch_vccnz {l}')
        a.label(d)
    def xrow_ops(self, sp, ss):
        return ['v_lshlrev_b32 v20, 16, v24', 'v_and_b32 v21, 0xffff0000, v24',
                f'buffer_store_dwordx2 v[20:21], v14, {WS}, {sp} offen', f'buffer_store_dwordx2 v[20:21], v14, {WS}, {ss} offen sc1']
    def stats_ops(self, X):
        o = []
        for i in range(4):
            o += [f'v_lshlrev_b32 v26, 16, v{X+i}', f'v_and_b32 v27, 0xffff0000, v{X+i}']
            if i == 0: o += ['v_add_f32 v28, v26, v27', 'v_mul_f32 v30, v26, v26', 'v_fmac_f32 v30, v27, v27']
            else: o += ['v_add_f32 v28, v28, v26', 'v_fmac_f32 v30, v26, v26', 'v_add_f32 v28, v28, v27', 'v_fmac_f32 v30, v27, v27']
        o += [f'v_mov_b32 v26, 0x{f2u(1/448):x}', f'v_mov_b32 v27, 0x{f2u(1e-5):x}', 'v_permlane16_swap_b32 v28, v30', 'v_add_f32 v28, v28, v30']
        for c in ('quad_perm:[1,0,3,2]', 'quad_perm:[2,3,0,1]', 'row_ror:4'):
            o += [None, f'v_add_f32_dpp v28, v28, v28 {c} {FULL}']
        o += [None, f'v_add_f32_dpp v29, v28, v28 row_ror:8 {FULL}', f'v_add_f32_dpp v28, v28, v28 row_ror:8 {FULL}', None,
              'v_permlane32_swap_b32 v28, v29', 'v_add_f32 v28, v28, v29', None,
              'v_readlane_b32 s58, v28, 0', 'v_readlane_b32 s59, v28, 16', None,
              'v_mul_f32 v24, s58, v26', 'v_fmac_f32 v27, s59, v26',
              'v_fma_f32 v27, -v24, v24, v27', 'v_rsq_f32 v25, v27']
        return o
    def gemv(self, ntile, nks, breg, acc, A, fill=(), nother=0):
        a = self.a; fill = list(fill)
        for ks in range(nks):
            a(f's_waitcnt lgkmcnt({min(15, nks - 1 - ks + nother)})')
            for jj in range(ntile):
                a(f'v_smfmac_f32_16x16x64_bf16 {vr(acc + 4 * jj, 4)}, {vr(A + 4 * ks, 4)}, {rr(breg(jj, ks), 8)}, v3')
                for _ in range(2):
                    if fill:
                        x = fill.pop(0)
                        if x: a(x)
        for x in fill:
            if x: a(x)
    def zero(self, base, n):
        for i in range(0, n, 2): self.a(f'v_mov_b64 {vr(base + i, 2)}, 0')
    def rowsel(self, dst, acc, tiles_masks):
        for jj, rm in tiles_masks:
            self.a(f'v_add_f32_dpp v{dst}, v{acc + 4*jj}, v{acc + 4*jj + 1} quad_perm:[0,1,2,3] row_mask:0x{rm:x} bank_mask:0xf')
    def rowout(self, acc, sp, ss):
        a = self.a
        for jj in range(4): self.rowsel(20, acc, [(jj, 1 << jj)])
        for jj in range(3): self.rowsel(21, acc, [(4 + jj, 1 << jj)])
        a('v_cvt_pk_f16_f32 v20, v20, v21'); a('v_min_u32 v20, -2, v20')
        self.lstore('dword', 'v20', f'v{self.vRO}', sp, ss)
    def calc_ib(self):
        a = self.a
        a('s_lshl_b32 s38, s49, 2'); a(f's_lshr_b32 s50, {"0x76352410" if self.reord else "0x73625140"}, s38'); a('s_and_b32 s50, s50, 7')
    def colsum(self, ntile, nks, breg, acc):
        a = self.a
        for r in range(4): a(f'v_mov_b32 v{20 + r}, 0x3f803f80')
        self.zero(acc, 4 * ntile)
        for ks in range(nks):
            for jj in range(ntile):
                a(f'v_smfmac_f32_16x16x64_bf16 {vr(acc + 4 * jj, 4)}, v[20:23], {rr(breg(jj, ks), 8)}, v3')
    def pinit(self, ib0):
        a = self.a
        for r in range(20, 24): a(f'v_mov_b32 v{r}, -1')
        a(f's_add_u32 s38, s3, {ib0}'); a('s_lshl_b32 s38, s38, 18'); a('s_add_u32 s38, s38, s41')
        a('v_lshlrev_b32 v6, 4, v0')
        for i in range(16):
            if i and i % 4 == 0: a('s_add_u32 s38, s38, 4096')
            self.vm(f'buffer_store_dwordx4 v[20:23], v6, {WS}, s38 offen offset:{(i % 4) * 1024} sc1', 'pinit')

    def roleOQ(self):
        a = self.a
        TOG = ['v_xor_b32 v15, 0x400, v15', 'v_xor_b32 v2, 0x400, v2', 'v_xor_b32 v1, 0x400, v1', f'v_xor_b32 v{self.vOW}, 0x400, v{self.vOW}']
        def qreg(jj, ks): return 96 + (ks * 4 + jj) * 8
        def oreg(jj, ks):
            if ks == 3 and jj < 4: return 288 + 8 * jj
            i = jj * 3 + ks if ks < 3 else 21 + jj - 4
            return 320 + 8 * i
        inwin = lambda d: 288 <= d < 320
        X0 = 4
        self.dma_sub('L_dmaQ', W1, f'v{self.vDQ}', 88, 64 * 8192)
        self.dma_subB('L_dmaO', W2, f'v{self.vDO}')
        P = 76; ML = 92; ACC = 48; A = 76
        a.label('L_Osub')
        self.calc_ib()
        a('s_lshl_b32 s44, s50, 18'); a('s_add_u32 s44, s44, s41')
        a('s_add_u32 s45, s44, 4096'); a('s_add_u32 s46, s44, 8192'); a('s_add_u32 s47, s44, 12288')
        a('s_lshl_b32 s48, s50, 14'); a('s_add_u32 s48, s48, s40'); a('s_add_u32 s51, s48, s56'); a('s_add_u32 s48, s48, s57')
        self.zero(ACC, 28)
        a('s_cmp_lt_i32 s49, 0'); a('s_cbranch_scc1 L_Ook')
        a.label('L_Oheavy')
        self.timeout()
        a(f'buffer_load_dwordx2 {vr(ML, 2)}, v{self.vMLO}, {WS}, s44 offen sc1')
        for n in range(4): a(f'buffer_load_dwordx4 {vr(P + 4*n, 4)}, v{self.vPO2 if n == 3 else self.vPO}, {WS}, s{44+n} offen sc1')
        a('s_waitcnt vmcnt(4)')
        a(f'v_max_f32_dpp v20, v{ML}, v{ML} quad_perm:[1,0,3,2] {FULL}')
        for c in ('quad_perm:[2,3,0,1]', 'row_ror:4', 'row_ror:8'): a(f'v_max_f32_dpp v20, v20, v20 {c} {FULL}')
        a(f'v_sub_f32 v20, v{ML}, v20'); a('v_exp_f32 v20, v20'); a('v_cndmask_b32 v20, 0, v20, s[42:43]')
        a(f'v_mul_f32 v21, v20, v{ML+1}')
        lred = [f'v_add_f32_dpp v21, v21, v21 {c} {FULL}' for c in ('quad_perm:[1,0,3,2]', 'quad_perm:[2,3,0,1]', 'row_ror:4', 'row_ror:8')]
        for n in range(4):
            a(f's_waitcnt vmcnt({3 - n})')
            for r in range(4):
                a(f'v_{"mul" if n == 0 else "fmac"}_f32_dpp v{24 + r}, v20, v{P + 4*n + r} row_newbcast:{n} {FULL}')
            a(lred[n])
        a('v_permlane16_swap_b32 v24, v25'); a('v_permlane16_swap_b32 v26, v27'); a('v_rcp_f32 v21, v21')
        a('v_add_f32 v24, v24, v25'); a('v_add_f32 v26, v26, v27')
        a('v_permlane32_swap_b32 v24, v26'); a('v_add_f32 v24, v24, v26'); a('v_mul_f32 v24, v24, v21')
        a('v_cmp_u_f32 vcc, v24, v24')
        a('v_cvt_pk_bf16_f32 v24, v24, v24')
        a('s_cbranch_vccz L_Ook0')
        self.maxtree(list(range(P, P + 16)) + [ML, ML + 1], 6)
        a('s_cbranch_vccnz L_Oheavy')
        a.label('L_Ook0')
        if self.split:
            a('s_cmp_lg_u32 s49, 0'); a('s_cbranch_scc1 L_Ook')
            a('s_setpc_b64 s[34:35]')
        a.label('L_Ook')
        a(f'ds_write_b16 v{self.vOW}, v24'); a('s_waitcnt lgkmcnt(0)'); a('s_barrier')
        for ks in range(4): a(f'ds_read_b128 {vr(A + 4*ks, 4)}, v2 offset:{128 * ks}')
        self.stamp(3, 's49', 28)
        self.gemv(7, 4, oreg, ACC, A, fill=TOG + ['v_mov_b32 v21, 0'])
        self.rowout(ACC, 's48', 's51')
        self.stamp(12, 's49', 28)
        a('s_add_u32 s49, s49, 1')
        a('s_setpc_b64 s[34:35]')
        G = 64; ACC = 48; A = 64; X = 92
        a.label('L_Qsub')
        self.zero(ACC, 16)
        a('s_lshl_b32 s44, s53, 13'); a('s_add_u32 s44, s44, s54')
        a('s_lshl_b32 s38, s53, 11'); a(f's_add_u32 s47, s38, 0x{XAOFF - 4 * 2048:x}')
        a('s_add_u32 s45, s38, s33'); a('s_add_u32 s46, s45, s56'); a('s_add_u32 s45, s45, s57')
        a('s_lshl_b32 s48, s53, 14'); a(f's_add_u32 s48, s48, 0x{ZOFF - 4 * 16384:x}')
        a('s_cmp_lt_u32 s53, 4'); a('s_cbranch_scc1 L_Qx')
        self.resid_poll('s47')
        self.gather_sum('s48', G, False)
        a.label('L_Qx')
        a('ds_write_b32 v15, v24'); a('s_waitcnt lgkmcnt(0)'); a('s_barrier')
        for ks in range(7): a(f'ds_read_b128 {vr(A + 4*ks, 4)}, v2 offset:{128 * ks}')
        a(f'ds_read_b128 {vr(X, 4)}, v1')
        for x in self.xrow_ops('s45', 's46'): a(x)
        self.stamp(24, 's53', 28)
        fill = TOG + [None, 's_waitcnt lgkmcnt(0)'] + self.stats_ops(X)
        self.gemv(4, 7, qreg, ACC, A, fill=fill, nother=1)
        a(f'v_mul_f32 v21, v24, v{self.vCS}')
        self.rowsel(20, ACC, [(jj, 1 << jj) for jj in range(4)])
        a('v_sub_f32 v20, v20, v21'); a('v_mul_f32 v20, v20, v25')
        a('v_cvt_pk_bf16_f32 v20, v20, v20'); a('v_min_u32 v20, -2, v20')
        a(f'buffer_store_short v20, v{self.vQS}, {WS}, s44 offen sc1')
        self.stamp(33, 's53', 28)
        a('s_add_u32 s53, s53, 1')
        a('s_setpc_b64 s[34:35]')
        a.label('L_roleOQ')
        self.cq = ['init']
        a('s_lshl_b32 s38, s2, 9')
        self.srd(20, 70, 448 * 8192)
        a('s_lshl_b32 s39, s3, 7'); a('s_add_u32 s38, s38, s39')
        a(f'v_lshl_add_u32 v{self.vDQ}, v4, 13, s38'); a(f'v_add_u32 v{self.vDQ}, v{self.vDQ}, v2')
        self.table(88, 8192)
        pq = [dict(sub='L_dmaQ', B=0, slot=ks % 4, rd=[(qreg(jj, ks) + 2 * rp, rp * 2048 + jj * 256) for jj in range(4) for rp in range(4)]) for ks in range(7)]
        po = [dict(sub='L_dmaO', B=1, slot=(3, 0, 1)[i % 3], rd=self.typeB_reads(oreg, i // 2, i % 2)) for i in range(8)]
        self.issue(pq[0])
        self.srd(28, 64, 3584)
        XL = 48
        a(f'v_mov_b32 v10, 0x{OOB:x}')
        a('v_cmp_gt_u32 vcc, 56, v0'); a('v_bfe_u32 v7, v0, 2, 2'); a('v_mul_u32_u24 v7, 896, v7'); a('v_cndmask_b32 v6, v10, v1, vcc')
        for b in range(4): self.vm(f'buffer_load_dwordx4 {vr(XL + 4 * b, 4)}, v6, {W3}, 0 offen offset:{b * 896}', 'xl')
        a('v_add_u32 v7, v7, v2')
        a('s_mov_b32 s38, 0x3f803f80'); a('s_mov_b32 s39, s38')
        for r in range(0, 28, 2): a(f'v_mov_b64 {vr(A + r, 2)}, s[38:39]')
        a('s_mov_b32 exec_lo, 0x33333333'); a('s_mov_b32 exec_hi, 0x33333333')
        for ks in range(7): self.vm(f'buffer_load_dwordx4 {vr(A + 4 * ks, 4)}, v7, {W3}, 0 offen offset:{128 * ks}', 'xa')
        a('s_mov_b64 exec, -1')
        self.issue(pq[1])
        self.srd(24, 72, 4096 * 896)
        a('s_lshl_b32 s39, s2, 8')
        self.typeB(f'v{self.vDO}', 's39')
        self.consts(); a('s_lshl_b32 s38, s3, 13'); a('v_add_u32 v9, s38, v9')
        self.arm(True)
        self.issue(pq[2])
        self.vmwait('xl')
        for b in range(4):
            for x in self.stats_ops(XL + 4 * b):
                if x: a(x)
            a(f'v_mov_b32_dpp v92, v24 quad_perm:[0,1,2,3] row_mask:0x{1 << b:x} bank_mask:0xf')
            a(f'v_mov_b32_dpp v93, v25 quad_perm:[0,1,2,3] row_mask:0x{1 << b:x} bank_mask:0xf')
        self.issue(pq[3])
        self.zero(ACC, 16)
        self.bits('v94', 'v0', 'v6', [(0, 1, 1), (2, 1, 2), (3, 1, 4), (1, 1, 5), (4, 2, 13)])
        a('s_lshl_b32 s38, s3, 7'); a('s_lshl_b32 s44, s2, 9'); a('s_add_u32 s44, s38, s44')
        nxt = {1: pq[4], 2: pq[5], 3: pq[6], 4: po[0]}
        def q1mm(ks):
            for jj in range(4): a(f'v_smfmac_f32_16x16x64_bf16 {vr(ACC + 4 * jj, 4)}, {vr(A + 4 * ks, 4)}, {rr(qreg(jj, ks), 8)}, v3')
        hooks = {2: lambda: self.announce(False)}
        for i in range(7):
            self.consume(pq[i], nxt.get(i), hooks.get(i))
            self.stamp(41 + i, None, 26)
            if i: q1mm(i - 1)
        a('s_waitcnt lgkmcnt(0)')
        q1mm(6)
        self.stamp(20, None, 28)
        for jj in range(4):
            a(f'v_add_f32 v{20 + jj}, v{ACC + 4*jj}, v{ACC + 4*jj + 1}'); a(f'v_add_f32 v{24 + jj}, v{ACC + 4*jj + 2}, v{ACC + 4*jj + 3}')
        for jj in range(4): a(f'v_fma_f32 v{20 + jj}, -v92, v{24 + jj}, v{20 + jj}')
        for jj in range(4): a(f'v_mul_f32 v{20 + jj}, v{20 + jj}, v93')
        for jj in range(4): a(f'v_cvt_pk_bf16_f32 v{20 + jj}, v{20 + jj}, v{20 + jj}')
        for jj in range(4): a(f'v_min_u32 v{20 + jj}, -2, v{20 + jj}')
        for jj in range(4): self.vm(f'buffer_store_short v{20 + jj}, v94, {WS}, s44 offen offset:{(jj & 1) * 8 + (jj >> 1) * 64} sc1')
        for jj in range(4): a(f'v_mov_b32_dpp v{self.vCS}, v{24 + jj} quad_perm:[0,1,2,3] row_mask:0x{1 << jj:x} bank_mask:0xf')
        self.stamp(35, None, 28)
        self.issue(po[1]); self.issue(po[2])
        a(f's_lshl_b32 s41, s2, 14'); a(f's_add_u32 s41, s41, 0x{POFF:x}')
        self.x0off(); self.gather_offs()
        a('s_lshl_b32 s40, s2, 10'); a(f's_add_u32 s40, s40, 0x{YOFF:x}')
        PO, PO2, MO, OW = self.vPO, self.vPO2, self.vMLO, self.vOW
        self.bits(f'v{PO}', 'v0', 'v6', [(0, 4, 4), (4, 2, 10)])
        a('s_lshl_b32 s38, s3, 8'); a(f'v_add_u32 v{PO}, s38, v{PO}')
        a('v_cmp_gt_u32 vcc, 32, v0'); a('v_lshrrev_b32 v6, 4, v0'); a('v_bfe_u32 v7, v0, 2, 2'); a(f'v_cndmask_b32 v{PO2}, v10, v{PO}, vcc')
        a('v_add_u32 v6, v6, v7'); a('v_and_b32 v6, 3, v6')
        a('v_and_b32 v7, 3, v0'); a('v_lshl_add_u32 v6, v7, 2, v6')
        a(f'v_cmp_gt_u32 s[42:43], {NC}, v6'); a(f'v_min_u32 v6, {NC - 1}, v6'); a(f'v_lshlrev_b32 v{MO}, 7, v6'); a(f'v_add_u32 v{MO}, {MLO}, v{MO}')
        self.bits(f'v{OW}', 'v0', 'v6', [(4, 2, 1), (0, 3, 4), (3, 1, 8)])
        a('s_lshr_b32 s38, s3, 1'); a('s_lshl_b32 s38, s38, 7'); a('s_and_b32 s39, s3, 1'); a('s_lshl_b32 s39, s39, 3'); a('s_add_u32 s38, s38, s39')
        a(f'v_add_u32 v{OW}, s38, v{OW}')
        self.bits(f'v{self.vQS}', 'v0', 'v6', [(0, 1, 1), (2, 1, 2), (4, 1, 3), (3, 1, 4), (1, 1, 5), (5, 1, 6)])
        a('s_lshl_b32 s38, s3, 7'); a(f'v_add_u32 v{self.vQS}, s38, v{self.vQS}')
        a('s_cmp_eq_u32 s2, 0'); a(f's_cselect_b32 s33, 0x{XBOFF - 4 * 2048:x}, s57')
        a('s_mov_b32 s53, 3'); a(f's_mov_b32 s54, 0x{OOB:x}')
        for i in range(8):
            self.consume(po[i], po[i + 2] if 1 <= i < 6 else None, (lambda: self.preready(True)) if i == (4 if self.split else 5) else None)
            self.stamp(48 + i, None, 28)
            if i == 1: a('s_call_b64 s[34:35], L_Osub')
            if i == 2: a('s_call_b64 s[34:35], L_Qsub'); a('s_lshl_b32 s54, s2, 9')
            if i == 5 and self.split:
                self.ready(True); a('s_call_b64 s[34:35], L_Osub'); self.cq = []
        if not self.split: self.ready(True)
        else:
            assert self.reord == 2
            self.stamp(1, None, 28)
            a('s_call_b64 s[34:35], L_Ook'); a('s_branch L_OQin')
        if self.reord == 2:
            a.label('L_OQloop')
            a('s_call_b64 s[34:35], L_Osub')
            a('s_cmp_ge_u32 s49, 8'); a('s_cbranch_scc1 L_end')
            a.label('L_OQin')
            self.readout(pq[6])
            a('s_call_b64 s[34:35], L_Qsub')
            self.readout(po[6], inwin); self.readout(po[7], inwin)
            a('s_cmp_eq_u32 s49, 1'); a('s_cbranch_scc1 L_OQloop')
            a('s_call_b64 s[34:35], L_Osub')
            a('s_branch L_OQloop')
            return
        if self.reord:
            a('s_branch L_OQin')
            a.label('L_OQloop')
            self.readout(pq[6])
            a('s_call_b64 s[34:35], L_Qsub')
            self.readout(po[6], inwin); self.readout(po[7], inwin)
            a('s_call_b64 s[34:35], L_Osub')
            a('s_cmp_ge_u32 s49, 8'); a('s_cbranch_scc1 L_end')
            a.label('L_OQin')
            a('s_call_b64 s[34:35], L_Osub')
            a('s_branch L_OQloop')
            return
        a.label('L_OQloop')
        a('s_call_b64 s[34:35], L_Osub')
        self.readout(pq[6])
        a('s_call_b64 s[34:35], L_Qsub')
        self.readout(po[6], inwin); self.readout(po[7], inwin)
        a('s_call_b64 s[34:35], L_Osub')
        a('s_cmp_lt_u32 s49, 8'); a('s_cbranch_scc1 L_OQloop')
        a('s_branch L_end')

    def roleF(self):
        a = self.a
        self.dma_sub('L_dmaG', W1, 'v44', 88, 64 * 3584)
        self.dma_subB('L_dmaD', W3, 'v11')
        breg = lambda jj, ks: 256 + (jj * 7 + ks) * 8
        def dreg(jj, ks):
            i = jj * 2 + ks
            return 256 + 224 + 8 * i if i < 4 else 176 + 8 * (i - 4)
        G = 64; ACC = 48; A = 96; X = 124; CSUM = self.vCS; ACD = 128; X0 = 160
        a.label('L_Fsub')
        self.calc_ib()
        self.zero(ACC, 16); self.zero(ACD, 28)
        a('s_lshl_b32 s38, s50, 14'); a(f's_add_u32 s48, s38, 0x{YOFF:x}')
        a('s_add_u32 s44, s38, s40'); a('s_add_u32 s51, s44, s56'); a('s_add_u32 s44, s44, s57')
        a('s_lshl_b32 s38, s50, 11'); a(f's_add_u32 s47, s38, 0x{XBOFF - 4 * 2048:x}')
        a('s_add_u32 s45, s38, s41'); a('s_add_u32 s46, s45, s56'); a('s_add_u32 s45, s45, s57')
        a('s_cmp_lt_i32 s49, 0'); a('s_cbranch_scc1 L_Fx')
        a('s_bitcmp1_b32 s50, 2'); a('s_cbranch_scc1 L_Fr')
        a(f'v_lshlrev_b32 v16, 16, v{X0}'); a(f'v_and_b32 v17, 0xffff0000, v{X0}')
        for i in range(3): a(f'v_mov_b32 v{X0 + i}, v{X0 + i + 1}')
        a('s_branch L_Fg')
        a.label('L_Fr')
        self.resid_poll('s47')
        a.label('L_Fg')
        self.gather_sum('s48', G, True)
        a.label('L_Fx')
        a('ds_write_b32 v15, v24'); a('s_waitcnt lgkmcnt(0)'); a('s_barrier')
        for ks in range(7): a(f'ds_read_b128 {vr(A + 4*ks, 4)}, v2 offset:{128 * ks}')
        a(f'ds_read_b128 {vr(X, 4)}, v1')
        for x in self.xrow_ops('s45', 's46'): a(x)
        self.stamp(3, 's49', 28)
        fill = [None] * 5 + ['s_waitcnt lgkmcnt(0)'] + self.stats_ops(X)
        self.gemv(4, 7, breg, ACC, A, fill=fill, nother=1)
        a(f'v_mul_f32 v22, v24, v{CSUM}'); a(f'v_mul_f32 v23, v24, v{CSUM+1}'); a('v_mul_f32 v25, v25, v25')
        for jj in (0, 2, 1, 3): self.rowsel(20 + jj // 2, ACC, [(jj, 10 if jj & 1 else 5)])
        a('v_sub_f32 v20, v20, v22'); a('v_sub_f32 v21, v21, v23')
        a('v_max_f32 v20, 0, v20'); a('v_mul_f32 v21, v21, v25'); a('v_mul_f32 v20, v20, v21')
        a('v_cvt_pk_bf16_f32 v20, v20, v20')
        a('ds_write_b16 v40, v20'); a('s_waitcnt lgkmcnt(0)'); a('s_barrier')
        for ks in range(2): a(f'ds_read_b128 {vr(A + 4*ks, 4)}, v2 offset:{2048 + 128 * ks}')
        a('v_mov_b32 v21, 0')
        self.gemv(7, 2, dreg, ACD, A)
        self.rowout(ACD, 's44', 's51')
        self.stamp(12, 's49', 28)
        a('s_add_u32 s49, s49, 1')
        a('s_cmp_eq_u32 s49, 0'); a('s_cbranch_scc1 L_Fret')
        a('s_cmp_lt_u32 s49, 8'); a('s_cbranch_scc1 L_Fsub')
        a('s_branch L_end')
        a.label('L_roleF')
        self.cq = list(self.cq0); done = 8 * (self.hq[1] - self.hq[0]) if self.hq else 0
        a('s_cmp_lt_u32 s3, 2'); a('s_cselect_b64 s[20:21], s[76:77], s[78:79]'); a(f's_mov_b32 s22, 0x{448 * 3584:x}'); a('s_mov_b32 s23, 0x20000')
        a('s_sub_u32 s2, s2, 16')
        a('v_mul_u32_u24 v6, 3584, v4')
        a('s_lshl_b32 s38, s2, 8'); a('s_and_b32 s39, s3, 1'); a('s_lshl_b32 s39, s39, 7'); a('s_add_u32 s38, s38, s39')
        a('v_add3_u32 v44, v6, v2, s38')
        self.table(88, 3584)
        pl = [dict(sub='L_dmaG', B=0, rd=[(breg(jj, ks) + 2 * rp, (jj >> 1) * 16384 + rp * 2048 + (jj & 1) * 256) for jj in range(4) for rp in range(4)]) for ks in range(7)]
        pl += [dict(sub='L_dmaD', B=1, rd=self.typeB_reads(dreg, i // 2, i % 2)) for i in range(4)]
        for i, p in enumerate(pl): p['slot'] = i % 4
        for i in range(2): self.issue(pl[i])
        self.srd(28, 80, 1792 * 896); self.srd(68, 64, 3584)
        a('s_lshl_b32 s39, s2, 7')
        self.typeB('v11', 's39')
        self.consts()
        a('s_lshr_b32 s38, s3, 1'); a('s_lshl_b32 s38, s38, 13'); a('s_and_b32 s39, s3, 1'); a('s_lshl_b32 s39, s39, 9'); a('s_add_u32 s38, s38, s39'); a('v_add_u32 v9, s38, v9')
        self.x0off(); self.gather_offs()
        for b in range(4): self.vm(f'buffer_load_dword v{X0 + b}, v12, s[68:71], 0 offen offset:{b * 896}', 'x0')
        a('v_and_b32 v6, 31, v0'); a('s_lshl_b32 s38, s3, 6'); a('s_add_u32 s38, s38, 2048'); a('v_lshl_add_u32 v40, v6, 1, s38')
        a('s_lshl_b32 s40, s2, 10'); a(f's_add_u32 s40, s40, 0x{ZOFF:x}')
        a('s_cmp_eq_u32 s2, 0'); a(f's_cselect_b32 s41, 0x{XAOFF:x}, s57')
        if done < 10: self.arm()
        elif done < 24: self.announce()
        self.issue(pl[2])
        a('s_branch L_Fsub')
        a.label('L_Fret')
        self.issue(pl[3])
        hooks = {2: lambda: self.announce(False)} if done < 10 else {}
        hooks[7] = self.preready
        for i in range(11):
            self.consume(pl[i], pl[i + 3] if 1 <= i < 8 else None, hooks.get(i))
            self.stamp(41 + i, None, 26)
            if i == 7:
                self.stamp(20, None, 28)
                self.colsum(4, 7, breg, ACC)
                self.rowsel(CSUM, ACC, [(0, 5), (1, 10)]); self.rowsel(CSUM + 1, ACC, [(2, 5), (3, 10)])
        self.ready()
        a('s_branch L_Fsub')

    def roleW(self):
        a = self.a
        self.cq = list(self.cq0); done = 8 * (self.hq[1] - self.hq[0]) if self.hq else 0
        self.consts()
        if done < 10: self.arm()
        if done < 24: self.announce()
        a('s_sub_u32 s2, s2, 30')
        if self.hpf: self.helper()
        a('s_cmp_lg_u32 s2, 0'); a('s_cbranch_scc1 L_end')
        self.srd(20, 82, 3584)
        self.x0off(); self.gather_offs()
        self.preready(); self.ready()
        G = 64
        a('s_mov_b32 s49, 0'); a(f's_mov_b32 s47, 0x{XAOFF + 4 * 2048:x}'); a(f's_mov_b32 s48, 0x{ZOFF + 4 * 16384:x}'); a('s_mov_b32 s44, 0')
        a.label('L_Wtop')
        self.resid_poll('s47')
        self.gather_sum('s48', G, False)
        a(f'buffer_store_dword v24, v12, {W1}, s44 offen')
        self.stamp(12, 's49', 28)
        a('s_add_u32 s49, s49, 1'); a('s_add_u32 s47, s47, 2048'); a('s_add_u32 s48, s48, 16384'); a('s_add_u32 s44, s44, 896')
        a('s_cmp_lt_u32 s49, 4'); a('s_cbranch_scc1 L_Wtop')
        a('s_branch L_end')
    def helper(self):
        a = self.a
        hq, ho = self.hpf if isinstance(self.hpf, (list, tuple)) else (48, 48)
        a('s_lshl_b32 s38, s2, 2'); a('s_add_u32 s38, s38, s3')
        self.srd(20, 70, 448 * 8192); self.srd(24, 72, 4096 * 896)
        a('s_lshl_b32 s40, s38, 10'); a(f's_add_u32 s40, s40, {(448 - hq) * 8192}')
        l = self.lab('L_hq'); a(f's_mov_b32 s41, {hq}')
        if hq:
            a.label(l)
            a('s_waitcnt vmcnt(11)'); a(f'buffer_load_dwordx4 v[64:67], v1, {W1}, s40 offen {self.hpol}')
            a('s_add_u32 s40, s40, 8192'); a('s_sub_u32 s41, s41, 1'); a('s_cmp_lg_u32 s41, 0'); a(f's_cbranch_scc1 {l}')
        if ho:
            a('s_mul_i32 s40, s38, 458752'); a(f's_add_u32 s40, s40, {229376 - ho * 1024}'); a('s_add_u32 s42, s40, 229376')
            l = self.lab('L_ho'); a(f's_mov_b32 s41, {ho}')
            a.label(l)
            a('s_waitcnt vmcnt(10)'); a(f'buffer_load_dwordx4 v[64:67], v1, {W2}, s40 offen {self.hpol}')
            a(f'buffer_load_dwordx4 v[64:67], v1, {W2}, s42 offen {self.hpol}')
            a('s_add_u32 s40, s40, 1024'); a('s_add_u32 s42, s42, 1024'); a('s_sub_u32 s41, s41, 1'); a('s_cmp_lg_u32 s41, 0'); a(f's_cbranch_scc1 {l}')
        a('s_waitcnt vmcnt(0)')
        self.stamp(20, None, 28)

if __name__ == '__main__':
    kw = json.loads(sys.argv[2]) if len(sys.argv) > 2 else {}
    open(sys.argv[1], 'w').write(Gen(**kw).build())
```

```python
import sys, struct, json
from asmlib import Asm
NAME = "interleave_layers__mha_block_cached__glu_gated_reglu__decode"

QOFF = 0x0; YOFF = 0x10000; ZOFF = 0x30000; XAOFF = 0x50000; XBOFF = 0x54000; POFF = 0x800000; DOFF = 0x400000
PB = 32768; PIB = 0x100000; PP2 = 0x80000; MLO = 16384 + 6144
OOB = 0x40000000
NC = 14; NW = 56
CS = 0.09016844005556021
def f2u(x): return struct.unpack('<I', struct.pack('<f', x))[0]

K_SRD = 's[8:11]'; V_SRD = 's[12:15]'; WS = 's[16:19]'; W1 = 's[20:23]'; W2 = 's[24:27]'; W3 = 's[28:31]'
DBG = 's[84:85]'
NCHAIN = 32
K4 = 's[88:91]'; V4 = 's[92:95]'
FULL = 'row_mask:0xf bank_mask:0xf'

def vr(b, n=1): return f'v{b}' if n == 1 else f'v[{b}:{b+n-1}]'
def ar(b, n=1): return f'a{b}' if n == 1 else f'a[{b}:{b+n-1}]'
def rr(b, n=1): return vr(b, n) if b < 256 else ar(b - 256, n)

class Gen:
    def __init__(self, diag=False, PF=65, depth=8, hpf=False, hpol='nt', cpf=False, rows=(16, 10, 7), hq=(1, 5), fake=0, CL=12, PF2=None, reord=2, lightO=0, split=True, tlb=0, fx=2, thr=None, wtlb=0, probe=None, kpol='nt', vpol='nt', par=None, nQ=48, nE=60, early=False, sub=None, qE=None, ring4=0, up4=False, ho=None, pos=None, home=4, hforce=None):
        self.hforce = hforce
        self.home = home
        self.pos = pos
        self.ring4 = ring4; self.up4 = up4; self.ho = ho
        self.sub = sub; self.qE = qE
        self.par = par; self.nQ = nQ; self.nE = nE; self.early = early
        self.pmul = 10 if not probe or len(probe) < 3 else probe[2]; probe = probe and probe[:2]; self.probe = probe; self.role = 'X'; self.kpol = kpol; self.vpol = vpol
        self.a = Asm(); self.diag = diag; self.PF = PF; self.depth = depth; self.hpf = hpf; self.hpol = hpol; self.cpf = cpf; self.rows = rows; self.hq = hq; self.fake = fake; self.CL = CL; self.PF2 = PF2; self.reord = reord; self.lightO = lightO; self.split = split; self.tlb = tlb; self.fx = fx; self.thr = thr; self.wtlb = wtlb
        self.uid = 0
    def lab(self, p='L'):
        self.uid += 1; return f'{p}_{self.uid}'

    def bits(self, dst, lane, tmp, mp):
        a = self.a; first = True
        for lb, n, ab in mp:
            if first:
                a(f'v_bfe_u32 {dst}, {lane}, {lb}, {n}')
                if ab: a(f'v_lshlrev_b32 {dst}, {ab}, {dst}')
                first = False
            else:
                a(f'v_bfe_u32 {tmp}, {lane}, {lb}, {n}')
                a(f'v_lshl_add_u32 {dst}, {tmp}, {ab}, {dst}')
    def srd(self, base, lo, size):
        a = self.a
        a(f's_mov_b64 s[{base}:{base+1}], s[{lo}:{lo+1}]')
        a(f's_mov_b32 s{base+2}, 0x{size:x}'); a(f's_mov_b32 s{base+3}, 0x20000')
    def timeout(self):
        self.a('s_sub_u32 s52, s52, 1'); self.a('s_cbranch_scc1 L_bail')
    FLAG = 4096; CNTA = 16; CNTB = 144
    def wait_counter(self, va, vd, vt, off, n, pre=False):
        a = self.a; l = self.lab('L_cnt'); c = self.lab('L_cntc')
        if pre: a(f's_branch {c}')
        else: a(f'v_mov_b32 v{va}, 0')
        a.label(l)
        self.timeout()
        a(f'global_load_dword v{vd}, v{va}, {DBG} offset:{off} sc1'); a('s_waitcnt vmcnt(0)')
        a.label(c)
        a(f'v_and_b32 v{vt}, 0xff, v{vd}'); a(f'v_cmp_gt_u32 vcc, {n}, v{vt}'); a(f's_cbranch_vccnz {l}')
    def claim(self, va, vd, vr_):
        a = self.a; l = self.lab('L_cl')
        a('s_lshl_b32 s38, 1, s101'); a(f'v_mov_b32 v{va}, s100'); a(f'v_mov_b32 v{vd}, s38')
        a('s_or_b32 s38, s3, s7')
        a('s_waitcnt lgkmcnt(0)')
        a(f's_cbranch_scc1 {l}')
        a('s_mov_b64 exec, 1')
        a(f'global_atomic_or v{vr_}, v{va}, v{vd}, {DBG} sc0 sc1')
        a('s_mov_b64 exec, -1')
        a.label(l)
    def confirm(self, vr_, t):
        a = self.a; l = self.lab('L_rs'); w = self.lab('L_rw')
        a(f'v_mov_b32 v{t}, 0')
        a('s_cmp_lg_u32 s3, 0'); a(f's_cbranch_scc1 {l}')
        a('s_movk_i32 s38, 0x100'); a('s_cmp_lg_u32 s7, 0'); a(f's_cbranch_scc1 {w}')
        a(f'v_readfirstlane_b32 s39, v{vr_}'); a('s_bitcmp1_b32 s39, s101'); a(f's_cbranch_scc0 {w}')
        a('s_call_b64 s[96:97], L_lost')
        a.label(w)
        a(f'v_mov_b32 v{t+1}, s38'); a(f'ds_write_b32 v{t}, v{t+1} offset:{self.FLAG}'); a('s_waitcnt lgkmcnt(0)')
        a.label(l)
        a('s_barrier')
        a(f'ds_read_b32 v{t+1}, v{t} offset:{self.FLAG}'); a('s_waitcnt lgkmcnt(0)')
        a(f'v_readfirstlane_b32 s38, v{t+1}'); a('s_cmp_lg_u32 s38, 0x100'); a('s_cbranch_scc1 L_redo')
    def signal(self, va, vd, off, val):
        a = self.a; l = self.lab('L_sg')
        a('s_cmp_lg_u32 s3, 0'); a(f's_cbranch_scc1 {l}')
        a('s_mov_b64 exec, 1'); a(f'v_mov_b32 v{va}, 0'); a(f'v_mov_b32 v{vd}, {val}')
        a(f'global_atomic_add v{va}, v{vd}, {DBG} offset:{off} sc1')
        a('s_mov_b64 exec, -1')
        a.label(l)
    def rare_paths(self):
        a = self.a
        a.label('L_odd')
        a('s_waitcnt lgkmcnt(0)'); a('v_mov_b32 v1, 0')
        a('s_cmp_lg_u32 s3, 0'); a('s_cbranch_scc1 L_odd2')
        a('s_and_b32 s38, s36, 3'); a('s_lshl_b32 s38, s38, 6'); a('s_lshr_b32 s39, s36, 2'); a('s_lshl3_add_u32 s38, s39, s38')
        a('v_mov_b32 v2, s38'); a('s_lshl_b32 s39, s37, 3'); a('s_movk_i32 s41, 24')
        a.label('L_odd1')
        a(f'global_load_dword v3, v2, {DBG} sc1'); a('s_waitcnt vmcnt(0)')
        a('v_readfirstlane_b32 s38, v3'); a('s_lshr_b32 s38, s38, s39'); a('s_and_b32 s38, s38, 0xff'); a('s_bcnt1_i32_b32 s40, s38')
        a('s_cmp_ge_u32 s40, 7'); a('s_cselect_b32 s41, 0, s41'); a('s_sub_u32 s41, s41, 1'); a('s_cbranch_scc0 L_odd1')
        a('s_ff0_i32_b32 s38, s38'); a('v_mov_b32 v2, s38'); a(f'ds_write_b32 v1, v2 offset:{self.FLAG + 4}'); a('s_waitcnt lgkmcnt(0)')
        a.label('L_odd2')
        a('s_barrier')
        a(f'ds_read_b32 v2, v1 offset:{self.FLAG + 4}'); a('s_waitcnt lgkmcnt(0)')
        a('v_readfirstlane_b32 s38, v2'); a('s_branch L_even')
        a.label('L_lost')
        a('s_waitcnt vmcnt(0)')
        self.bits('v62', 'v0', 'v63', [(0, 2, 6), (2, 1, 3)])
        a.label('L_lost1')
        a(f'global_load_dword v60, v62, {DBG} sc1'); a('s_waitcnt vmcnt(0)')
        a('v_cmp_ne_u32 vcc, -1, v60'); a('s_movk_i32 s38, 0x300'); a('s_cbranch_vccz L_lost2')
        a('s_getreg_b32 s39, hwreg(HW_REG_XCC_ID, 0, 3)'); a('s_ff1_i32_b32 s38, vcc_lo')
        a('s_bitcmp1_b32 vcc_lo, s39'); a('s_cselect_b32 s38, s39, s38')
        a('s_nop 3'); a('v_readlane_b32 s39, v60, s38'); a('v_readlane_b32 s40, v62, s38'); a('s_ff0_i32_b32 s39, s39')
        a('s_lshl_b32 s41, 1, s39'); a('v_mov_b32 v61, s41'); a('v_mov_b32 v63, s40')
        a('s_mov_b64 exec, 1'); a(f'global_atomic_or v60, v63, v61, {DBG} sc0 sc1'); a('s_mov_b64 exec, -1'); a('s_waitcnt vmcnt(0)')
        a('v_readfirstlane_b32 s40, v60'); a('s_bitcmp1_b32 s40, s39'); a('s_cbranch_scc1 L_lost1')
        a('s_lshl_b32 s38, s38, 5'); a('s_add_u32 s38, s38, s39'); a('s_bitset1_b32 s38, 9')
        a.label('L_lost2')
        a('s_setpc_b64 s[96:97]')
        a.label('L_redo')
        a('s_bitcmp1_b32 s38, 8'); a('s_cbranch_scc1 L_bail')
        a('s_waitcnt vmcnt(0) lgkmcnt(0)'); a('s_barrier')
        a('s_load_dwordx16 s[64:79], s[0:1], 0')
        a('s_load_dwordx8 s[80:87], s[0:1], 64')
        a('s_bfe_u32 s36, s38, 0x30005'); a('s_and_b32 s2, s38, 31'); a('s_mov_b32 s7, 1')
        a('s_branch L_role')
    def stamp(self, idx, sidx=None, t0=20):
        if self.probe and not self.diag:
            role, want = self.probe
            if role != self.role or (sidx is None and idx != want) or (sidx and not (0 <= want - idx < 9)): return
            a = self.a
            a('s_waitcnt lgkmcnt(0)'); a('s_memrealtime s[62:63]'); a('s_waitcnt lgkmcnt(0)')
            if sidx: a(f's_cmp_eq_u32 {sidx}, {want - idx}'); a('s_cselect_b32 s61, s62, s61')
            else: a('s_mov_b32 s61, s62')
            return
        if not self.diag: return
        a = self.a
        a('s_waitcnt lgkmcnt(0)'); a('s_memrealtime s[62:63]'); a('s_waitcnt lgkmcnt(0)')
        a(f'v_mov_b32 v{t0}, s62')
        if sidx: a(f's_lshl_b32 s60, {sidx}, 2'); a('s_add_u32 s60, s60, s61')
        else: a('s_mov_b32 s60, s61')
        a(f'v_mov_b32 v{t0+1}, 0')
        a('s_mov_b64 exec, 1')
        a(f'buffer_store_dword v{t0}, v{t0+1}, {WS}, s60 offen offset:{idx*4}')
        a('s_mov_b64 exec, -1')
    def maxtree(self, regs, t):
        a = self.a; regs = list(regs)
        a(f'v_max3_u32 v{t}, v{regs[0]}, v{regs[1]}, v{regs[2 if len(regs) > 2 else 1]}')
        regs = regs[3:]
        while regs:
            x = regs[:2]; regs = regs[2:]
            a(f'v_max3_u32 v{t}, v{t}, v{x[0]}, v{x[-1]}')
        a(f'v_cmp_eq_u32 vcc, -1, v{t}')

    def build(self):
        a = self.a
        a('s_cmp_ge_u32 s2, 256'); a('s_cbranch_scc1 L_end2')
        if self.probe: a('s_memrealtime s[62:63]'); a('s_waitcnt lgkmcnt(0)'); a('s_mov_b32 s60, s62'); a('s_mov_b32 s61, s62')
        a('s_load_dwordx16 s[64:79], s[0:1], 0')
        a('s_load_dwordx8 s[80:87], s[0:1], 64')
        a('s_getreg_b32 s36, hwreg(HW_REG_XCC_ID, 0, 3)')
        a('s_getreg_b32 s38, hwreg(HW_REG_HW_ID, 8, 4)'); a('s_getreg_b32 s37, hwreg(HW_REG_HW_ID, 13, 2)')
        a('v_lshrrev_b32 v1, 6, v0'); a('v_and_b32 v0, 63, v0')
        a('v_readfirstlane_b32 s3, v1')
        a('s_mov_b32 s52, 400000'); a('s_mov_b32 s7, 0')
        if self.fake == 1: a('s_and_b32 s38, s38, 6')
        if self.fake == 2: a('s_and_b32 s36, s36, 5')
        if self.fake == 3: a('s_and_b32 s36, s2, 7'); a('s_lshr_b32 s38, s2, 5'); a('s_mov_b32 s37, 0')
        if self.fake == 4: a('s_mov_b32 s36, 0'); a('s_mov_b32 s38, 0'); a('s_mov_b32 s37, 0')
        if self.fake == 5:
            a('s_bitcmp0_b32 s37, 0'); a('s_cselect_b32 s39, 8, 0'); a('s_cmp_eq_u32 s38, 3'); a('s_cselect_b32 s38, s39, s38')
        a('s_bitcmp0_b32 s37, 0'); a('s_cselect_b32 s39, 8, 0'); a('s_cmp_eq_u32 s38, s39'); a('s_cbranch_scc1 L_odd')
        a.label('L_even')
        a('s_and_b32 s38, s38, 7'); a('s_lshl3_add_u32 s2, s37, s38')
        a.label('L_role')
        a('s_mov_b32 s101, s2'); a('s_and_b32 s100, s36, 3'); a('s_lshl_b32 s100, s100, 6'); a('s_lshr_b32 s38, s36, 2'); a('s_lshl3_add_u32 s100, s38, s100')
        if self.diag:
            a('s_lshl3_add_u32 s61, s2, s36'); a('s_lshl2_add_u32 s61, s61, s3'); a('s_lshl_b32 s61, s61, 8'); a(f's_add_u32 s61, s61, 0x{DOFF:x}')
        if self.cpf:
            a('s_getpc_b64 s[38:39]'); a.label('L_pc')
            a('s_lshl_b32 s37, s2, 2'); a('s_add_u32 s37, s37, s3'); a('s_lshl_b32 s37, s37, 10')
            a('s_cmp_ge_u32 s37, L_end-L_pc'); a('s_cbranch_scc1 L_nopf')
            a('v_lshl_add_u32 v2, v0, 4, s37'); a('v_min_u32 v2, L_end-L_pc-16, v2')
            a('global_load_dwordx4 v[60:63], v2, s[38:39]')
            a.label('L_nopf')
        a('s_cmp_eq_u32 s36, 0'); a('s_cbranch_scc1 L_chain')
        self.role = 'S'; self.stream()
        a.label('L_chain'); self.role = 'C'
        self.chain_common()
        self.role = 'W'; self.roleW(); self.role = 'O'; self.roleOQ(); self.role = 'F'; self.roleF()
        self.rare_paths()
        a.label('L_bail')
        a('s_mov_b64 exec, 1')
        a('v_mov_b32 v0, 32'); a('v_mov_b32 v1, 1')
        a(f'global_atomic_add v0, v1, {DBG} sc1')
        a('v_mov_b32 v0, 36'); a('v_mov_b32 v1, s2')
        a(f'global_store_dword v0, v1, {DBG} sc1')
        a.label('L_end')
        if self.probe:
            a('s_cmp_eq_u32 s60, s61'); a('s_cbranch_scc1 L_end2')
            a('s_sub_u32 s61, s61, s60'); a(f's_mul_i32 s61, s61, {self.pmul}'); a('s_add_u32 s61, s61, 7000'); a('s_add_u32 s61, s61, s60')
            a.label('L_pspin')
            a('s_memrealtime s[62:63]'); a('s_waitcnt lgkmcnt(0)'); a('s_sub_u32 s62, s62, s61'); a('s_cmp_lt_i32 s62, 0'); a('s_cbranch_scc1 L_pspin')
        a.label('L_end2')
        body = a.finish()
        hdr = open('cdna_kernels/' + NAME + '.s.ref').read().split('\n')
        top = [l for l in hdr if l.startswith(';') and '@launch' not in l]
        s = '\n'.join(top) + '\n; @launch grid=(256,1,1) block=(256,1,1) lds=163840\n'
        s += f'.amdgcn_target "amdgcn-amd-amdhsa--gfx950"\n.text\n.globl {NAME}_kernel\n.p2align 8\n.type {NAME}_kernel,@function\n{NAME}_kernel:\n'
        s += body
        s += f'''s_endpgm
.section .rodata,"a"
.p2align 6
.amdhsa_kernel {NAME}_kernel
  .amdhsa_next_free_vgpr 512
  .amdhsa_next_free_sgpr 102
  .amdhsa_accum_offset 256
  .amdhsa_group_segment_fixed_size 0
  .amdhsa_kernarg_size 96
  .amdhsa_user_sgpr_count 2
  .amdhsa_user_sgpr_kernarg_segment_ptr 1
  .amdhsa_system_sgpr_workgroup_id_x 1
.end_amdhsa_kernel
'''
        return s

    CA = [0, 4096]; Q1L = 8192; MA = [10240, 10272]; CO = [10304, 10308]; MA1 = [10240, 10336]; ST = 10496; TB = 11520; WLDS = 37 * 1024
    vK, vV, vDs, vL16, vQo, vIQ, vIP = 1, 2, 3, 4, 5, 6, 7
    vM = 8; vT = 12; vBias = 15; vMC = 16; vL = 17; vQ = 24; vAcc = 32; vH = 48
    def kreg(self, s, u):
        return 64 + 96 * s + 16 * u if u < 6 else 256 + 128 * s + 16 * (u - 6)
    def vreg0(self, s, P, t):
        return 256 + 128 * s + 64 + 8 * (4 * P + t)
    def tile(self, n):
        if n < 40:
            u, t = n // 4, n % 4
            return 0, u // 2, t * 128 + (u & 1) * 512
        m = n - 40; g = m // 8; k = m % 8
        if g < 4: P, t = k // 4, k % 4
        else: t, P = k // 2, k % 2
        return 1, g, t * 128 + P * 1024
    def ldsslot(self, s, n):
        if n <= 72: return (n - 56) + 17 * s
        return 34 + (n - 73)
    def load(self, s, n, wait=True, skip=None):
        a = self.a
        kv, g, imm = self.tile(n)
        if n == 0 and not self.prologue:
            for j in range(5): a(f's_add_u32 s{40+j}, s{40+j}, 0x2000000')
            if self.sub is not None and s == 0:
                for j in range(5): a(f's_xor_b32 s{40+j}, s{40+j}, 0x4000')
                a('s_lshl_b32 s90, s50, 9'); a('s_add_u32 s90, s90, s44')
            else: a('s_add_u32 s90, s90, 0x2000000')
            a('s_mov_b32 s94, s90')
        l = None
        if skip is not None:
            l = self.lab('L_sk'); a(f's_cmp_eq_u32 s49, {skip}'); a(f's_cbranch_scc1 {l}')
        va = f'v{self.vV if kv else self.vK}'; srd = V_SRD if kv else K_SRD
        if g == 4: srd = V4 if kv else K4
        dst = None
        if n < 40: dst = self.kreg(s, n // 4) + 4 * (n % 4)
        elif n < 56:
            m = n - 40; dst = self.vreg0(s, (m % 8) // 4, m % 4) + 4 * (m // 8)
        elif n >= 76: dst = self.vH + 4 * (n - 76)
        if dst is None:
            a(f's_add_u32 m0, s45, {self.ldsslot(s, n) * 1024 - imm}')
        if wait and len(self.vmq) >= self.depth:
            a(f's_waitcnt vmcnt({self.depth - 1})'); self.vmq = self.vmq[-(self.depth - 1):]
        if dst is None:
            a(f'buffer_load_dwordx4 {va}, {srd}, s{40+g} offen offset:{imm} {self.vpol if kv else self.kpol} lds')
        else:
            a(f'buffer_load_dwordx4 {rr(dst, 4)}, {va}, {srd}, s{40+g} offen offset:{imm} {self.vpol if kv else self.kpol}')
        self.vmq.append((s, n))
        if l: a.label(l)
    def need_vm(self, tag):
        if tag in self.vmq:
            k = len(self.vmq) - 1 - self.vmq.index(tag)
            self.a(f's_waitcnt vmcnt({k})'); self.vmq = self.vmq[len(self.vmq) - k:] if k else []
    def ds(self, text, tag=None):
        self.a(text); self.lq.append(tag)
    def need_lds(self, tag):
        if tag in self.lq:
            i = len(self.lq) - 1 - self.lq[::-1].index(tag)
            k = len(self.lq) - 1 - i
            k = min(k, 15)
            self.a(f's_waitcnt lgkmcnt({k})'); self.lq = self.lq[len(self.lq) - k:] if k else []
    def qload(self):
        a = self.a
        a(f'buffer_load_dwordx4 {vr(self.vQ, 4)}, v{self.vQo}, {WS}, s46 offen sc1')
        a(f'buffer_load_dwordx4 {vr(self.vQ + 4, 4)}, v{self.vQo}, {WS}, s46 offen offset:256 sc1')
    def zero_acc(self):
        return [f'v_mov_b64 {vr(self.vAcc + 2 * i, 2)}, 0' for i in range(8)]

    def stream(self):
        a = self.a
        self.vmq = []; self.lq = []; self.prologue = True
        assert self.CL > self.depth
        if self.thr: a(f's_cmp_eq_u32 s36, {self.fx}'); a(f's_cselect_b32 s99, {self.thr[1]}, 0')
        if len(self.rows) == 2:
            RE, RL = self.rows
            assert 24 * RE + 32 * RL == 512 and max(RE, RL) <= 16
            a('s_sub_u32 s36, s36, 1'); a('s_lshl_b32 s36, s36, 5'); a('s_add_u32 s2, s36, s2')
            a('s_mul_i32 s36, s2, 10923'); a('s_lshr_b32 s36, s36, 16'); a('s_mul_i32 s37, s36, 6'); a('s_sub_u32 s37, s2, s37')
            a('s_sub_u32 s38, s2, 96'); a('s_and_b32 s39, s38, 7'); a('s_add_u32 s39, s39, 6'); a('s_lshr_b32 s38, s38, 3')
            a('s_cmp_lt_u32 s2, 96'); a('s_cselect_b32 s36, s36, s38'); a('s_cselect_b32 s37, s37, s39')
            a(f's_cselect_b32 s50, {RE}, {RL}'); a(f's_cselect_b32 s51, 0, {24 * (RE - RL)}')
        else:
            if self.sub is not None: self.sub_map()
            else:
                R2, RE, RL = self.rows
                assert R2 + 2 * RE + 4 * RL == 64 and max(self.rows) <= 16
                a('s_lshr_b32 s38, s36, 1'); a('s_and_b32 s39, s36, 3'); a(f's_mov_b32 s51, {8 * R2 + 16 * RE - 24 * RL}')
                a('s_cmp_lt_u32 s36, 4'); a('s_cselect_b32 s38, s38, s39'); a('s_cselect_b32 s39, 2, 3'); a('s_cselect_b32 s37, 2, 6')
                a(f's_cselect_b32 s50, {RE}, {RL}'); a(f's_cselect_b32 s51, {8 * (R2 - RE)}, s51')
                a('s_cmp_eq_u32 s36, 2'); a('s_cselect_b32 s38, 0, s38'); a('s_cselect_b32 s39, 1, s39'); a('s_cselect_b32 s37, 0, s37')
                a(f's_cselect_b32 s50, {R2}, s50'); a('s_cselect_b32 s51, 0, s51')
                a('s_lshl_b32 s38, s38, 5'); a('s_add_u32 s2, s38, s2'); a('s_lshr_b32 s36, s2, s39')
                a('s_lshl_b32 s38, s36, s39'); a('s_sub_u32 s38, s2, s38'); a('s_add_u32 s37, s37, s38')
        a('s_lshl_b32 s39, s37, 2'); a('s_add_u32 s39, s39, s3'); a('s_lshl_b32 s38, s39, 13')
        a('s_lshl_b32 s44, s36, 21'); a('s_add_u32 s40, s44, s38')
        if self.sub is not None:
            a(f's_xor_b32 s38, s36, {self.par}'); a('s_and_b32 s38, s38, 1'); a('s_lshl_b32 s38, s38, 13'); a('s_add_u32 s44, s44, s38')
            if self.sub: a('s_bitset1_b32 s44, 14')
            a('s_lshl_b32 s38, s32, 11'); a('s_and_b32 s38, s38, 0x2000'); a('s_xor_b32 s40, s44, s38')
            a('s_lshl_b32 s38, s32, 14'); a('s_and_b32 s38, s38, 0x4000'); a('s_xor_b32 s40, s40, s38')
            a('s_lshl_b32 s38, s33, 15'); a('s_add_u32 s40, s40, s38')
        elif self.par is not None:
            a(f's_xor_b32 s38, s36, {self.par}'); a('s_and_b32 s38, s38, 1'); a('s_lshl_b32 s38, s38, 13'); a('s_add_u32 s44, s44, s38')
            a('s_xor_b32 s40, s44, 0x2000'); a('s_sub_u32 s38, s39, 24')
            a('s_cmp_lt_u32 s39, 24'); a('s_cselect_b32 s40, s44, s40'); a('s_cselect_b32 s38, s39, s38'); a('s_cselect_b32 s33, 24, 32'); a('s_lshl_b32 s33, s33, 14')
            a('s_lshl_b32 s38, s38, 14'); a('s_add_u32 s40, s40, s38')
        self.bits(f'v{self.vK}', 'v0', 'v18', [(0, 1, 4), (4, 2, 5), (2, 1, 10), (1, 1, 11), (3, 1, 12)])
        a(f's_lshl_b32 s47, s36, 15'); a('s_lshl_b32 s38, s37, 10'); a('s_and_b32 s48, s38, 0x2000'); a('s_add_u32 s38, s38, s48')
        a('s_add_u32 s47, s47, s38'); a(f's_add_u32 s47, s47, 0x{POFF:x}')
        a('s_lshl_b32 s48, s37, 7'); a('s_sub_u32 s48, s48, s38'); a(f's_add_u32 s48, s48, {MLO}')
        a(f'v_lshlrev_b32 v{self.vL16}, 4, v0')
        self.claim(22, 23, 24)
        self.srd(8, 66, 0x8000000)
        N0 = 8
        for n in range(min(N0, self.depth)): self.load(0, n)
        for j in range(1, 4):
            if self.sub is not None: a(f's_add_u32 s{40+j}, s{39+j}, 0x80000'); a(f's_xor_b32 s{40+j}, s{40+j}, 0x4000')
            elif self.par is None: a(f's_add_u32 s{40+j}, s40, {j * NW * 8192}')
            else: a(f's_add_u32 s{40+j}, s{39+j}, s33')
        a('s_mul_i32 s38, s39, s50'); a('s_add_u32 s38, s38, s51')
        if self.sub is not None:
            assert all(16 % r == 0 for r in self.rows)
            a('s_bfe_u32 s33, s38, 0x30004'); a('s_lshl_b32 s33, s33, 15'); a('s_add_u32 s44, s44, s33')
            a('s_lshr_b32 s33, s38, 7'); a('s_lshl_b32 s33, s33, 19'); a('s_add_u32 s44, s44, s33')
            a('s_lshr_b32 s33, s33, 5'); a('s_and_b32 s33, s33, 0x4000'); a('s_xor_b32 s44, s44, s33')
            a('s_and_b32 s38, s38, 15'); a(f's_sub_u32 s44, s44, {4 * NW * 8192 - 8 * 32768}')
        elif self.par is not None:
            assert all(16 % r == 0 for r in self.rows)
            a('s_andn2_b32 s33, s38, 15'); a('s_add_u32 s38, s38, s33'); a(f's_sub_u32 s44, s44, {4 * NW * 8192 - 96 * 16384}')
        a('s_lshl_b32 s38, s38, 9')
        a(f's_add_u32 s44, s44, {4 * NW * 8192}'); a('s_add_u32 s44, s44, s38')
        self.srd(88, 66, 0); self.srd(92, 68, 0)
        a('s_lshl_b32 s38, s50, 9'); a('s_add_u32 s90, s44, s38'); a('s_mov_b32 s94, s90')
        self.srd(12, 68, 0x8000000); self.srd(16, 86, 0x20000000)
        if self.tlb: a('s_load_dword s34, s[68:69], s40')
        self.stamp(0)
        self.bits(f'v{self.vV}', 'v0', 'v18', [(0, 3, 4), (5, 1, 9), (4, 1, 11), (3, 1, 12)])
        a(f's_mul_i32 s45, s3, {self.WLDS}'); a(f's_add_u32 s45, s45, {self.TB}')
        a(f'v_add_u32 v{self.vDs}, s45, v{self.vL16}')
        self.bits(f'v{self.vQo}', 'v0', 'v18', [(0, 2, 4), (4, 2, 6)])
        a('v_and_b32 v18, 2, v0'); a('v_cmp_eq_u32 vcc, 2, v18')
        a(f'v_mov_b32 v{self.vIQ}, 0x44444444'); a('v_mov_b32 v18, 0xeeeeeeee'); a(f'v_cndmask_b32 v{self.vIQ}, v{self.vIQ}, v18, vcc')
        a('v_and_b32 v18, 3, v0'); a('s_mov_b32 s38, 0x55555555'); a(f'v_mul_lo_u32 v{self.vIP}, v18, s38')
        a('v_and_b32 v18, 4, v0'); a('v_cmp_eq_u32 vcc, 4, v18')
        a('v_mov_b32 v18, 0xffff'); a('v_mov_b32 v19, 0xffff0000')
        M = self.vM
        a(f'v_cndmask_b32 v{M}, v18, 0, vcc'); a(f'v_cndmask_b32 v{M+1}, 0, v18, vcc')
        a(f'v_cndmask_b32 v{M+2}, v19, 0, vcc'); a(f'v_cndmask_b32 v{M+3}, 0, v19, vcc')
        self.bits('v18', 'v0', 'v19', [(4, 1, 0), (2, 1, 1), (1, 1, 2), (3, 1, 3), (5, 1, 4)])
        a('v_cmp_gt_u32 vcc, s50, v18'); a('v_mov_b32 v19, 0xff800000'); a(f'v_mov_b32 v{self.vT+2}, 0')
        a(f'v_cndmask_b32 v{self.vBias}, v19, 0, vcc')
        a('s_lshl_b32 s46, s3, 4'); a('s_add_u32 s46, s46, s36'); a('s_lshl_b32 s46, s46, 9')
        a('s_mov_b32 s49, 0'); a(f's_mov_b32 s51, 0x{f2u(CS):x}')
        a(f's_mov_b32 s53, {self.Q1L}'); a('s_lshl_b32 s54, s3, 10'); a('s_lshl_b32 s55, s3, 3')
        a('s_lshl_b32 s56, s36, 9'); a(f's_add_u32 s56, s56, 0x{QOFF + 3 * 8192:x}')
        a('v_mov_b32 v18, 0'); a('v_mov_b32 v19, 0')
        a(f'ds_write_b64 v18, v[18:19] offset:{self.CO[0]}')
        for n in range(self.depth, N0): self.load(0, n, wait=(n < N0 - 1))
        self.prologue = False
        entry_vmq = list(self.vmq)
        nQ, nE = self.nQ, self.nE
        a('s_lshl_b32 s57, s3, 8'); a(f's_add_u32 s57, s57, {self.ST}'); a('s_mov_b32 s58, 0')
        early = {}
        for s in range(2):
            a.label(f'L_A{s}')
            assert [(x[0] ^ s, x[1]) for x in self.vmq] == entry_vmq, (self.vmq, entry_vmq)
            self.lq = []
            n = N0
            while n < 73:
                if n == nQ:
                    if s == 0:
                        a('s_cmp_eq_u32 s49, 0'); a('s_cbranch_scc1 L_st0'); st_in = list(self.vmq)
                    a.label(f'L_QK{s}')
                    n = self.qk1(s, n)
                    if s == 0:
                        a('s_cmp_eq_u32 s49, 0'); a('s_cbranch_scc1 L_PV0')
                        a.label('L_st0r'); st_out = list(self.vmq); st_n = n
                    for z in self.zero_acc(): a(z)
                    if self.early and not self.qE: self.qload(); self.vmq += ['q0', 'q1']
                    continue
                if self.early and n == self.qE: self.qload(); self.vmq += ['q0', 'q1']
                if n == nE and self.early:
                    self.need_vm('q1')
                    if s == 0: a('s_cmp_eq_u32 s49, 0'); a('s_cbranch_scc1 L_noE')
                    self.maxtree(range(self.vQ, self.vQ + 8), 18)
                    a(f's_cbranch_vccz L_E{s}')
                    if s == 0: a.label('L_noE')
                    early[s] = list(self.vmq)
                self.load(s, n)
                if s == 0 and n in (self.CL, self.CL + self.depth + 4):
                    l = self.lab('L_it0')
                    a('s_cmp_lg_u32 s49, 0'); a(f's_cbranch_scc1 {l}')
                    if n == self.CL:
                        self.confirm(24, 20)
                        a('v_lshl_add_u32 v18, v0, 19, s48'); a('v_mov_b64 v[20:21], -1'); a('v_mov_b64 v[22:23], -1')
                        a('s_lshl_b32 s38, s3, 20'); a('s_add_u32 s38, s38, s47')
                        a.label('L_arm')
                        a(f's_add_u32 s39, s38, {PP2}')
                        a(f'buffer_store_dwordx4 v[20:23], v{self.vL16}, {WS}, s38 offen sc1')
                        a(f'buffer_store_dwordx4 v[20:23], v{self.vL16}, {WS}, s39 offen sc1')
                        a('s_mov_b64 exec, 3')
                        a(f'buffer_store_dwordx2 v[20:21], v18, {WS}, s38 offen sc1')
                        a('s_mov_b64 exec, -1')
                        if self.home:
                            a(f's_add_u32 s39, s47, {3 * PIB + 0x2000}'); a('s_cmp_eq_u32 s38, s47'); a('s_mov_b32 s38, s39'); a('s_cbranch_scc1 L_arm')
                        self.stamp(30, None, 24)
                    else:
                        a('s_barrier'); self.signal(22, 23, self.CNTB, 1); self.stamp(31)
                    a.label(l)
                if s == 0 and n == max(self.PF - 8, nE):
                    a('v_mov_b32 v22, 0'); a(f'global_load_dword v23, v22, {DBG} offset:{self.CNTA} sc1'); self.vmq.append('cnt')
                if n == self.PF:
                    if s == 0:
                        self.stamp(22, 's49')
                        self.need_vm('cnt'); self.wait_counter(22, 23, 21, self.CNTA, NCHAIN, pre=True)
                    self.qload(); self.vmq += ['q0', 'q1']
                n += 1
            if self.pos:
                a('s_add_u32 s59, s40, 0x2000000'); a(f's_add_u32 s32, s59, {self.pos[0] * NW * 8192}'); a(f'v_lshlrev_b32 v19, 3, v{self.vL16}')
            self.need_vm('q1')
            self.stamp(1, 's49')
            a.label(f'L_X{s}')
            self.maxtree(range(self.vQ, self.vQ + 8), 18)
            a(f's_cbranch_vccz L_Xok{s}')
            a.label(f'L_Xpoll{s}')
            self.timeout()
            self.qload()
            if self.pos:
                a('s_cmp_lt_u32 s59, s32'); a(f's_cbranch_scc0 L_Xw{s}')
                a(f's_mov_b32 m0, {self.TB + 4 * self.WLDS}')
                for i in range(self.pos[2]):
                    a(f'buffer_load_dword v19, {K_SRD}, s59 offen {self.pos[1]} lds'); a(f's_add_u32 s59, s59, {NW * 8192}')
                a(f's_waitcnt vmcnt({self.pos[2]})'); a(f's_branch L_X{s}')
                a.label(f'L_Xw{s}')
            a('s_waitcnt vmcnt(0)')
            a(f's_branch L_X{s}')
            a.label(f'L_Xok{s}')
            self.stamp(6, 's49')
            if s == 0:
                a('s_cmp_eq_u32 s49, 0'); a('s_cbranch_scc1 L_first')
                if self.early: a('s_cmp_eq_u32 s58, 4'); a('s_cbranch_scc1 L_E0b')
            save = list(self.vmq)
            self.pass2(s, {('u', 4): [73], ('u', 9): [74], ('i', 0): [75], ('i', 2): [76]})
            self.stamp(11, 's49')
            if s == 0:
                a('s_cmp_eq_u32 s49, 4'); a('s_cbranch_scc1 L_end')
                after = list(self.vmq)
            a.label(f'L_PV{s}')
            self.pv1(s, 77, False)
            self.stamp(16, 's49')
            a('s_add_u32 s49, s49, 1'); a(f's_add_u32 s47, s47, {PIB}'); a('s_add_u32 s53, s53, 512')
            a('s_add_u32 s56, s56, 8192'); a('s_mov_b32 s46, s56')
            if s == 0: first_save, first_after = save, after
        a('s_cmp_lg_u32 s49, 4'); a('s_cbranch_scc1 L_A0')
        for z in self.zero_acc(): a(z)
        if self.pos: a('s_mov_b32 s32, 0')
        a('s_branch L_Xpoll0')
        a.label('L_first')
        self.vmq = first_save
        a('s_lshl_b32 s38, s3, 9'); a(f'v_add_u32 v18, s38, v{self.vQo}')
        a(f'ds_write_b128 v18, {vr(self.vQ, 4)} offset:{self.Q1L}')
        a(f'ds_write_b128 v18, {vr(self.vQ + 4, 4)} offset:{self.Q1L + 256}')
        for n in range(73, 77): self.load(0, n)
        assert self.vmq == first_after, (self.vmq, first_after)
        a('s_waitcnt lgkmcnt(0)'); a('s_barrier')
        a('s_branch L_QK0')
        a.label('L_st0')
        self.vmq = st_in
        for n in range(nQ, st_n): self.load(0, n)
        assert self.vmq == st_out, (self.vmq, st_out)
        a('s_branch L_st0r')
        for s in early:
            a.label(f'L_E{s}')
            self.vmq = early[s]; self.lq = []
            self.stamp(1, 's49'); self.stamp(6, 's49'); self.stamp(32, 's49')
            if s == 0:
                a('s_mov_b32 s58, 4'); a.label('L_E0b')
            pts = [('u', 1), ('u', 5), ('u', 9), ('x', 0), ('i', 0), ('i', 2), ('i', 4)]
            assert nE + len(pts) <= 73
            self.pass2(s, {p: [nE + i] for i, p in enumerate(pts)})
            self.stamp(11, 's49')
            if s == 0: a('s_cmp_eq_u32 s49, 4'); a('s_cbranch_scc1 L_end')
            self.pv1(s, nE + len(pts), True)

    def sub_map(self):
        a = self.a
        R2, RE, RL = self.rows
        assert R2 + 2 * RE + 4 * RL == 64 and max(self.rows) <= 16
        a('s_mov_b32 s32, s36')
        a('s_bfe_u32 s38, s36, 0x10001'); a('s_and_b32 s37, s36, 1'); a('s_lshl2_add_u32 s37, s37, 6'); a(f's_mov_b32 s51, {8 * R2 + 16 * RE - 24 * RL}')
        a('s_cmp_lt_u32 s36, 4'); a('s_cselect_b32 s37, 2, s37')
        a(f's_cselect_b32 s50, {RE}, {RL}'); a(f's_cselect_b32 s51, {8 * (R2 - RE)}, s51')
        a('s_cmp_eq_u32 s36, 2'); a('s_cselect_b32 s38, 0, s38'); a('s_cselect_b32 s39, 1, 2'); a('s_cselect_b32 s37, 0, s37')
        a(f's_cselect_b32 s50, {R2}, s50'); a('s_cselect_b32 s51, 0, s51')
        a('s_lshl_b32 s38, s38, 5'); a('s_add_u32 s2, s38, s2'); a('s_lshr_b32 s36, s2, s39')
        a('s_lshl_b32 s38, s36, s39'); a('s_sub_u32 s38, s2, s38'); a('s_add_u32 s37, s37, s38')
        a('s_lshl2_add_u32 s33, s38, s3')
    def qk_part(self, ds_, hook, zero=True):
        a = self.a; T = self.vT; Q = self.vQ; AC = self.vAcc
        def post_a(u):
            ac = AC + 4 * (u % 4); t = 18 + 2 * (u % 2)
            a(f'v_add_f32 v{t+1}, v{ac+1}, v{ac+3}'); a(f'v_add_f32 v{t}, v{ac}, v{ac+2}')
        def post_b(u):
            t = 18 + 2 * (u % 2)
            a(f'v_add_f32_dpp v{T + u // 4}, v{t+1}, v{t} quad_perm:[1,1,3,3] row_mask:0x{1 << (u % 4):x} bank_mask:0xf')
        for u in range(10):
            ac = AC + 4 * (u % 4); k = self.kreg(ds_, u)
            a(f'v_smfmac_f32_16x16x64_bf16 {vr(ac, 4)}, {vr(Q, 4)}, {rr(k, 8)}, v{self.vIQ}')
            if u >= 3: post_a(u - 3)
            a(f'v_smfmac_f32_16x16x64_bf16 {vr(ac, 4)}, {vr(Q + 4, 4)}, {rr(k + 8, 8)}, v{self.vIQ}')
            if u >= 3: post_b(u - 3)
            hook(('u', u))
        zf = [f'v_mov_b32 v{AC + r}, 0' for r in list(range(8, 16)) + list(range(8))] if zero else []
        def Z(n=2):
            for _ in range(n):
                if zf: a(zf.pop(0))
        post_a(7); Z(1); post_b(7); Z(3); post_a(8); Z(1); post_b(8); Z(2); post_a(9); Z(1); post_b(9)
        m = self.vMC; t = 18
        a(f'v_sub_f32 v{T+2}, v{T+2}, v{T+1}'); a(f'v_sub_f32 v{T+1}, v{T+1}, v{T}')
        a(f'v_add_f32 v{T+2}, v{self.vBias}, v{T+2}')
        a(f'v_max3_f32 v{m}, v{T}, v{T+1}, v{T+2}'); Z()
        a(f'v_max_f32_dpp v{m}, v{m}, v{m} quad_perm:[2,3,0,1] {FULL}'); Z()
        a(f'v_max_f32_dpp v{m}, v{m}, v{m} row_ror:4 {FULL}'); Z()
        a(f'v_max_f32_dpp v{t}, v{m}, v{m} row_ror:8 {FULL}')
        a(f'v_max_f32_dpp v{m}, v{m}, v{m} row_ror:8 {FULL}'); Z()
        a(f'v_permlane16_swap_b32 v{m}, v{t}'); a(f'v_max_f32 v{t+1}, v{m}, v{t}'); a(f'v_max_f32 v{m}, v{m}, v{t}'); Z(8)
        a(f'v_permlane32_swap_b32 v{m}, v{t+1}'); a(f'v_max_f32 v{m}, v{m}, v{t+1}')
        a(f'v_mul_f32 v{m}, s51, v{m}')
        for k in (0, 2, 1): a(f'v_fma_f32 v{T+k}, v{T+k}, s51, -v{m}')
        for k in (0, 2, 1): a(f'v_exp_f32 v{T+k}, v{T+k}')
        hook(('x', 0))
    def pack(self, k):
        T = self.vT
        o = [f'v_mov_b32_dpp v18, v{T+k} quad_perm:[0,0,0,0] {FULL}',
             f'v_mov_b32_dpp v19, v{T+k} quad_perm:[2,2,2,2] {FULL}',
             f'v_cvt_pk_bf16_f32 v{20+k}, v18, v19']
        if k == 2: o += [f'v_mov_b32_dpp v0, v22 row_shl:4 {FULL}', 'v_permlane32_swap_b32 v22, v0']
        return o
    def aprep(self, k, P, A):
        pp = 20 + k; M = self.vM
        if P == 0:
            return [f'v_and_b32 v{A}, v{pp}, v{M}', f'v_and_b32 v{A+2}, v{pp}, v{M+2}',
                    f'v_and_b32_dpp v{A+1}, v{pp}, v{M+1} row_shr:4 {FULL} bound_ctrl:0',
                    f'v_and_b32_dpp v{A+3}, v{pp}, v{M+3} row_shr:4 {FULL} bound_ctrl:0']
        return [f'v_and_b32 v{A+1}, v{pp}, v{M+1}', f'v_and_b32 v{A+3}, v{pp}, v{M+3}',
                f'v_and_b32_dpp v{A}, v{pp}, v{M} row_shl:4 {FULL} bound_ctrl:0',
                f'v_and_b32_dpp v{A+2}, v{pp}, v{M+2} row_shl:4 {FULL} bound_ctrl:0']
    def lred(self):
        L = self.vL; T = self.vT
        return [f'v_add_f32 v{L}, v{T}, v{T+1}',
                f'v_add_f32 v{L}, v{T+2}, v{L}',
                f'v_add_f32_dpp v{L}, v{L}, v{L} quad_perm:[2,3,0,1] {FULL}',
                f'v_add_f32_dpp v{L}, v{L}, v{L} row_ror:4 {FULL}',
                f'v_add_f32_dpp v{L}, v{L}, v{L} row_ror:8 {FULL}',
                f'v_mov_b32 v23, v{L}', f'v_permlane16_swap_b32 v{L}, v23', f'v_add_f32 v{L}, v{L}, v23',
                f'v_mov_b32 v23, v{L}', f'v_permlane32_swap_b32 v{L}, v23', f'v_add_f32 v{L}, v{L}, v23']
    def merge(self, t0):
        AC = self.vAcc; o = []
        for r in range(4): o.append(f'v_permlane32_swap_b32 v{AC + 4*t0 + r}, v{AC + 4*t0 + 4 + r}')
        for r in range(4):
            if t0 == 0: o.append(f'v_add_f32_dpp v{AC + r}, v{AC + 4 + r}, v{AC + r} row_ror:8 row_mask:0xf bank_mask:0x3')
            else: o.append(f'v_add_f32_dpp v{AC + r}, v{AC + 8 + r}, v{AC + 12 + r} row_ror:8 row_mask:0xf bank_mask:0xc')
        return o
    def staddr(self):
        return [f'v_lshrrev_b32 v18, 6, v{self.vL16}', 'v_lshl_add_u32 v18, v18, 4, s57']
    def qk1(self, s, n0):
        a = self.a; Q = self.vQ
        a(f'v_add_u32 v18, s53, v{self.vQo}')
        self.ds(f'ds_read_b128 {vr(Q, 4)}, v18', 'q'); self.ds(f'ds_read_b128 {vr(Q + 4, 4)}, v18 offset:256', 'q')
        for z in self.zero_acc(): a(z)
        LP = {('u', 1): n0, ('u', 6): n0 + 1, ('x', 0): n0 + 2}
        sk = 0 if s == 0 else None
        self.need_vm((s, 39)); self.need_lds('q')
        self.qk_part(s, lambda p: self.load(s, LP[p], skip=sk) if p in LP else None, zero=False)
        pk = self.pack(0) + self.pack(2) + self.pack(1); lr = self.lred()
        while pk or lr:
            if lr: a(lr.pop(0))
            if pk: a(pk.pop(0))
        for x in self.staddr(): a(x)
        a('v_mov_b32 v19, s55')
        a('ds_write_b96 v18, v[20:22]')
        a('s_mov_b64 exec, 1')
        a(f'ds_write_b64 v19, {vr(self.vMC, 2)} offset:{self.MA1[s]}')
        a('s_mov_b64 exec, -1')
        self.load(s, n0 + 3, skip=sk)
        return n0 + 4
    def cdst(self, fs, cu0, pi): return self.kreg(fs, cu0 + pi // 2) + 8 * (pi % 2)
    def copy(self, ds_, fs, cu0, n):
        if n >= 72: pi, half = (n - 72) // 2, (n - 72) % 2
        else: pi, half = 2 + (n - 56) % 8, (n - 56) // 8
        self.ds(f'ds_read_b128 {rr(self.cdst(fs, cu0, pi) + 4 * half, 4)}, v{self.vDs} offset:{self.ldsslot(ds_, n) * 1024}', ('c', n))
    def bop(self, ds_, fs, cu0, U, P, t):
        if U == 0: return self.vreg0(ds_, P, t), []
        if U == 1: return self.cdst(fs, cu0, 2 + 4 * P + t), [('c', 56 + 4 * P + t), ('c', 64 + 4 * P + t)]
        if t < 2: return self.cdst(fs, cu0, t), [('c', 72 + 2 * t), ('c', 73 + 2 * t)]
        return self.vH + 8 * (t - 2), []
    def pass2(self, s, LP):
        a = self.a; ds_ = 1 - s; Q = self.vQ; AC = self.vAcc
        cplan = {0: [72, 73, 74, 75], 1: [56, 64, 57, 65], 2: [58, 66, 59, 67], 3: [60, 68], 4: [61, 69], 5: [62, 70], 6: [63, 71]}
        def hook(p):
            if p[0] == 'u':
                for n in cplan.get(p[1], []): self.copy(ds_, ds_, 0, n)
            for n in LP.get(p, []):
                if n == 73: self.need_lds(('c', 75))
                self.load(s, n, skip=4 if s == 0 else None)
        self.qk_part(ds_, hook)
        sets = [(0, 0), (2, 0), (0, 1), (1, 0), (1, 1)]
        lred = self.lred()
        def prep(i):
            k, P = sets[i]
            return (self.pack(k) if P == 0 else []) + self.aprep(k, P, Q + 4 * (i % 2))
        for x in prep(0): a(x)
        for i, (k, P) in enumerate(sets):
            fill = prep(i + 1) if i + 1 < len(sets) else []
            if i == len(sets) - 1:
                fill = lred + self.epi_pre(); lred = []
            for t in range(4):
                b, tags = self.bop(ds_, ds_, 0, k, P, t)
                for tg in tags: self.need_lds(tg)
                a(f'v_smfmac_f32_16x16x64_bf16 {vr(AC + 4 * t, 4)}, {vr(Q + 4 * (i % 2), 4)}, {rr(b, 8)}, v{self.vIP}')
                n = (len(fill) + (3 - t)) // (4 - t)
                got = fill[:n]; fill = fill[n:]
                if len(got) < 2 and lred: got.append(lred.pop(0))
                for x in got: a(x)
            hook(('i', i))
        for x in self.merge(0) + self.merge(2): a(x)
        self.epilogue(1, s)
    def epi_pre(self):
        return [f'v_add_u32 v18, s54, v{self.vL16}', 'v_mov_b32 v19, s55', 'v_mov_b32 v20, 1', 'v_mov_b32 v21, 0', 'v_mov_b32 v22, s48']
    def pv1(self, s, n0, early):
        a = self.a; fs = 1 - s; Q = self.vQ; AC = self.vAcc
        nxt = [(s, n) for n in range(n0, 80)] + [(fs, 0)]
        todo = [56, 64, 57, 65, 58, 66, 59, 67, 60, 68, 61, 69, 62, 70, 63, 71]
        def copies(force=None):
            for n in list(todo):
                landed = (s, n) not in self.vmq and (s, n) not in nxt
                if landed or (force and n in force):
                    self.need_vm((s, n)); self.copy(s, fs, 2, n); todo.remove(n)
        def ld(k=1):
            for _ in range(k):
                if nxt: self.load(*nxt.pop(0)); copies()
        def until(n):
            while nxt and ((s, n) in self.vmq or (s, n) in nxt): ld()
        for x in self.staddr(): a(x)
        self.ds('ds_read_b96 v[20:22], v18', 'p')
        for z in self.zero_acc(): a(z)
        copies(); ld()
        self.need_lds('p')
        sets = [(0, 0), (0, 1), (1, 0), (1, 1), (2, 0)]
        prep = lambda i: self.aprep(*sets[i], Q + 4 * (i % 2))
        for x in prep(0): a(x)
        for i, (k, P) in enumerate(sets):
            last = (i == len(sets) - 1)
            if last:
                while nxt: ld()
                if early:
                    a(f's_branch L_J{s}'); return
                a.label(f'L_J{s}')
                self.vmq = ([(s, n) for n in range(80)] + [(fs, 0)])[-self.depth:]; self.lq = []
            else:
                hi = (51 if k == 0 else 67) + 4 * P
                until(hi)
                if k: copies(force=[56 + 4 * P + t + 8 * h for t in range(4) for h in range(2)])
                else: self.need_vm((s, hi))
            fill = self.epi_pre() if last else prep(i + 1)
            for t in range(4):
                b, tags = self.bop(s, fs, 2, k, P, t)
                if last:
                    cp = lambda n: (self.need_vm((s, n)), self.copy(s, fs, 2, n))
                    if t == 0:
                        self.load(fs, 1); cp(72); cp(73)
                        for x in fill: a(x)
                        fill = []
                        self.load(fs, 2); self.load(fs, 3); cp(74); cp(75)
                    if t == 2:
                        self.load(fs, 4)
                        for x in self.merge(0): a(x)
                        self.load(fs, 5); self.need_vm((s, 77))
                    if t == 3:
                        self.load(fs, 6); self.need_vm((s, 79))
                for tg in tags: self.need_lds(tg)
                a(f'v_smfmac_f32_16x16x64_bf16 {vr(AC + 4 * t, 4)}, {vr(Q + 4 * (i % 2), 4)}, {rr(b, 8)}, v{self.vIP}')
                n = (len(fill) + (3 - t)) // (4 - t)
                got = fill[:n]; fill = fill[n:]
                for x in got: a(x)
            if not last: ld()
        self.load(fs, 7, wait=False)
        for x in self.merge(2): a(x)
        self.epilogue(0, s)
    def epilogue(self, p2, s):
        a = self.a; Q = self.vQ; AC = self.vAcc; m = self.vMC; L = self.vL
        CA = self.CA[p2]; MA = self.MA[1] if p2 else self.MA1[s]; CO = self.CO[p2]
        Zr = self.kreg(1 - s, 2)
        a(f'ds_write_b128 v18, {vr(AC, 4)} offset:{CA}')
        a('s_mov_b64 exec, 1')
        if p2: a(f'ds_write_b64 v19, {vr(self.vMC, 2)} offset:{MA}')
        a(f'ds_add_rtn_u32 v20, v21, v20 offset:{CO}')
        a('s_mov_b64 exec, -1')
        a(f'ds_read_b128 {vr(Q, 4)}, v21 offset:{MA}'); a(f'ds_read_b128 {vr(Q + 4, 4)}, v21 offset:{MA + 16}')
        for w in range(4): a(f'ds_read_b128 {vr(Zr + 4 * w, 4)}, v{self.vL16} offset:{CA + 1024 * w}')
        if p2: a(f's_sub_u32 s38, s47, {PIB - PP2}')
        else: a('s_mov_b32 s38, s47')
        dual = self.home and p2 != s
        if dual: a('s_add_u32 s33, s38, 0x2000'); a(f's_cmp_eq_u32 s49, {3 + p2}'); a(f's_cselect_b32 s33, s33, 0x{OOB:x}')
        a('s_waitcnt lgkmcnt(6)')
        a('v_readfirstlane_b32 s39, v20'); a('s_and_b32 s39, s39, 3'); a('s_cmp_eq_u32 s39, 3')
        l = self.lab('L_nl'); a(f's_cbranch_scc0 {l}')
        a('s_waitcnt lgkmcnt(4)')
        a(f'v_max3_f32 v{m}, v{Q}, v{Q+2}, v{Q+4}'); a(f'v_max_f32 v{m}, v{m}, v{Q+6}')
        for w in range(4): a(f'v_sub_f32 v{Q+2*w}, v{Q+2*w}, v{m}')
        for w in range(4): a(f'v_exp_f32 v{Q+2*w}, v{Q+2*w}')
        a(f'v_mul_f32 v{L}, v{Q}, v{Q+1}')
        for w in range(1, 4): a(f'v_fmac_f32 v{L}, v{Q+2*w}, v{Q+2*w+1}')
        a(f'v_min_u32 v{m}, -2, v{m}'); a(f'v_min_u32 v{L}, -2, v{L}')
        a('s_mov_b64 exec, 1')
        a(f'buffer_store_dwordx2 {vr(m, 2)}, v22, {WS}, s38 offen sc1')
        if dual: a(f'buffer_store_dwordx2 {vr(m, 2)}, v22, {WS}, s33 offen sc1')
        a('s_mov_b64 exec, -1')
        a('s_waitcnt lgkmcnt(0)')
        for w in range(4):
            for hf in range(2):
                if w == 0: a(f'v_pk_mul_f32 {vr(AC + 2*hf, 2)}, {vr(Zr + 2*hf, 2)}, {vr(Q, 2)} op_sel_hi:[1,0]')
                else: a(f'v_pk_fma_f32 {vr(AC + 2*hf, 2)}, {vr(Zr + 4*w + 2*hf, 2)}, {vr(Q + 2*w, 2)}, {vr(AC + 2*hf, 2)} op_sel_hi:[1,0,1]')
        for r in range(4): a(f'v_min_u32 v{AC + r}, -2, v{AC + r}')
        a(f'buffer_store_dwordx4 {vr(AC, 4)}, v{self.vL16}, {WS}, s38 offen sc1')
        if dual: a(f'buffer_store_dwordx4 {vr(AC, 4)}, v{self.vL16}, {WS}, s33 offen sc1')
        a.label(l)
        a('s_waitcnt lgkmcnt(0)'); self.lq = []

    RING0 = 8192
    vGO2, vTR, vOOB, vDO, vX0O, vGO, vXR, vXW, vRES = 8, 9, 10, 11, 12, 13, 14, 15, 16
    vAC, vCS, vQS, vRO, vPO, vPO2, vMLO, vOW, vDQ, vX0 = 32, 36, 38, 39, 40, 41, 42, 43, 44, 45
    def vm(self, text, tag=None):
        self.a(text); self.cq.append(tag)
    def vmwait(self, tag):
        if tag in self.cq:
            i = len(self.cq) - 1 - self.cq[::-1].index(tag)
            k = len(self.cq) - 1 - i
            assert k <= 63
            self.a(f's_waitcnt vmcnt({k})'); self.cq = self.cq[i + 1:]
    def arm(self, q=False):
        a = self.a
        self.vmwait('init'); self.confirm(self.vCL, 28)
        for r in range(20, 24): a(f'v_mov_b32 v{r}, -1')
        a('s_lshl2_add_u32 s38, s101, s3'); a('s_mul_i32 s38, s38, 3072'); a(f's_add_u32 s38, s38, 0x{YOFF:x}')
        for i in range(3): self.vm(f'buffer_store_dwordx4 v[20:23], v1, {WS}, s38 offen offset:{i * 1024} sc1', 'arm')
        if q:
            self.bits('v28', 'v0', 'v29', [(0, 5, 4), (5, 1, 13)])
            a('s_lshl_b32 s38, s101, 9'); a('s_lshl_b32 s39, s3, 14'); a('s_add_u32 s39, s39, s38')
            self.vm(f'buffer_store_dwordx4 v[20:23], v28, {WS}, s39 offen sc1', 'arm')
    def announce(self, bar=True):
        a = self.a
        if bar: self.vmwait('arm'); a('s_barrier')
        assert 'arm' not in self.cq
        a('s_getreg_b32 s38, hwreg(HW_REG_XCC_ID, 0, 4)'); a('s_lshl_b32 s38, s38, 8'); a('s_add_u32 s38, s38, 1')
        self.signal(28, 29, self.CNTA, 's38')
        self.stamp(21, None, 30)
    def chain_common(self):
        a = self.a
        a('v_lshlrev_b32 v1, 4, v0')
        self.bits('v2', 'v0', 'v6', [(0, 1, 4), (4, 2, 5)])
        self.bits('v4', 'v0', 'v6', [(1, 1, 0), (3, 1, 2), (2, 1, 3)])
        a('s_lshl_b32 s98, s3, 13'); a(f's_add_u32 s98, s98, {self.RING0}'); a('s_movk_i32 s99, 1024')
        a('s_mul_i32 s32, s3, 7168'); a(f's_add_u32 s32, s32, {self.RING0}')
        self.claim(28, 29, self.vCL)
        self.srd(16, 86, 0x20000000)
        self.stamp(0, None, 30)
        a('s_cmp_lt_u32 s2, 16'); a('s_cbranch_scc1 L_roleOQ')
        self.cq = ['init']
        if self.wtlb:
            lo = 30 if self.wtlb == 1 else 16; nw = 4 * (32 - lo)
            a(f's_cmp_lt_u32 s2, {lo}'); a('s_cbranch_scc1 L_notlb')
            a('v_lshlrev_b32 v6, 12, v0'); a(f's_sub_u32 s33, s2, {lo}'); a('s_lshl2_add_u32 s33, s33, s3'); a('s_lshl_b32 s33, s33, 18')
            for lo_, size in ((70, 448 * 8192), (76, 448 * 3584), (78, 448 * 3584), (72, 4096 * 896), (80, 1792 * 896)):
                self.srd(20, lo_, size)
                for i in range(-(-size // (nw << 18))):
                    if i: a(f's_add_u32 s39, s33, {i * nw << 18}')
                    a(f'buffer_load_dword v64, v6, {W1}, {"s39" if i else "s33"} offen nt')
            a.label('L_notlb')
        if self.hq:
            self.srd(20, 70, 448 * 8192)
            self.bits('v6', 'v0', 'v7', [(0, 5, 4), (5, 1, 13)])
            a('s_sub_u32 s33, s2, 16'); a('s_lshl_b32 s33, s33, 9'); a('s_lshl_b32 s39, s3, 14'); a('s_add_u32 s33, s33, s39')
            a(f's_add_u32 s33, s33, {self.hq[0] * 64 * 8192}')
            for i in range(8 * (self.hq[1] - self.hq[0])):
                self.vm(f'buffer_load_dwordx4 v[64:67], v6, {W1}, s33 offen {self.hpol}', 'hq'); a('s_add_u32 s33, s33, 65536')
                if i == 9: self.arm()
                if i == 23: self.announce()
        self.cq0 = list(self.cq)
        a('s_cmp_lt_u32 s2, 30'); a('s_cbranch_scc1 L_roleF')
    def consts(self):
        a = self.a
        a('v_and_b32 v6, 1, v0'); a('v_cmp_eq_u32 vcc, 1, v6')
        a('v_mov_b32 v3, 0x44444444'); a('v_mov_b32 v6, 0xeeeeeeee'); a('v_cndmask_b32 v3, v3, v6, vcc')
        self.bits('v9', 'v0', 'v6', [(0, 5, 3), (5, 1, 10)])
        a('v_mul_u32_u24 v5, 6144, v6'); a('s_mul_i32 s38, s3, 1792'); a('v_add3_u32 v5, v5, v9, s38')
        a(f's_mov_b32 s57, 0x{OOB:x}'); a(f's_mov_b32 s56, 0x{OOB:x}'); a('s_mov_b32 s49, -1')
    vCL = 46
    def preready(self, streams=False):
        self.vm(f'global_load_dword v46, v18, {DBG} offset:{self.CNTA} sc1', 'cnt')
        if streams: self.vm(f'global_load_dword v47, v18, {DBG} offset:{self.CNTB} sc1', 'cnt')
    def ready(self, streams=False):
        a = self.a
        self.stamp(22, None, 28)
        self.vmwait('cnt')
        self.wait_counter(18, 46, 22, self.CNTA, NCHAIN, pre=True)
        a('v_readfirstlane_b32 s38, v46'); a(f's_cmp_eq_u32 s38, {NCHAIN}')
        a(f's_cselect_b32 s57, 0, 0x{OOB:x}'); a(f's_cselect_b32 s56, 0x{OOB:x}, 0')
        if streams: self.wait_counter(18, 47, 22, self.CNTB, 16 * NC, pre=True)
        self.stamp(1, None, 28)
    def lstore(self, op, data, voff, sp, ss):
        self.a(f'buffer_store_{op} {data}, {voff}, {WS}, {sp} offen')
        self.a(f'buffer_store_{op} {data}, {voff}, {WS}, {ss} offen sc1')
    def dma_sub(self, name, srd, voff, tab, adv):
        a = self.a
        a.label(name)
        for e in range(8):
            a(f'buffer_load_dwordx4 {voff}, {srd}, s{tab + e} offen nt lds')
            if e < 7: a('s_add_u32 m0, m0, s99')
        a(f'v_add_u32 {voff}, 0x{adv:x}, {voff}')
        a('s_setpc_b64 s[96:97]')
    def dma_subB(self, name, srd, voff):
        a = self.a
        a.label(name)
        for cb in range(7):
            a(f'buffer_load_dwordx4 {voff}, {srd}, 0 offen offset:{128 * cb} nt lds')
            if cb < 6: a('s_add_u32 m0, m0, 896')
        a(f'v_add_u32 {voff}, 0x{32 * 896:x}, {voff}')
        a('s_setpc_b64 s[96:97]')
    def poff(self, p): return p['off'] if 'off' in p else p['slot'] * 32768
    def issue(self, p):
        self.a(f's_add_u32 m0, {"s32" if p["B"] else "s98"}, {self.poff(p)}'); self.a(f's_call_b64 s[96:97], {p["sub"]}')
        self.cq += [id(p)] * (7 if p['B'] else 8)
    def readout(self, p, sel=None):
        self.a(f'v_add_u32 v6, {self.RING0 + self.poff(p)}, {"v5" if p["B"] else "v9"}')
        for d, imm in p['rd']:
            if sel is None or sel(d): self.a(f'ds_read_b64_tr_b16 {rr(d, 2)}, v6 offset:{imm}')
    def consume(self, p, nxt=None, hook=None):
        self.vmwait(id(p))
        self.a('s_waitcnt lgkmcnt(0)'); self.a('s_barrier')
        if hook: hook()
        for x in (nxt if isinstance(nxt, list) else [nxt] if nxt else []):
            if 'off' not in x: assert x['slot'] == self.lastslot, (x['slot'], self.lastslot)
            self.issue(x)
        self.readout(p); self.lastslot = p.get('slot')
    def table(self, tab, rs):
        for e in range(8): self.a(f's_mov_b32 s{tab + e}, 0x{(16 * (e & 1) + 2 * ((e >> 1) & 1) + 32 * (e >> 2)) * rs:x}')
    def typeB(self, voff, rowbase_s):
        a = self.a
        a('s_and_b32 s38, s3, 1'); a('s_lshl_b32 s38, s38, 4'); a(f's_add_u32 s38, s38, {rowbase_s}'); a('s_and_b32 s39, s3, 2'); a('s_add_u32 s38, s38, s39')
        a(f'v_add_u32 v6, s38, v4'); a(f'v_mad_u32_u24 {voff}, v6, s99, v2'); a(f'v_lshlrev_b32 v6, 7, v6'); a(f'v_sub_u32 {voff}, {voff}, v6')
    def typeB_reads(self, breg, ks, half):
        return [(breg(jj, ks) + 2 * (e1 + 2 * half), 2 * e1 * 7168 + jj * 256) for jj in range(7) for e1 in range(2)]
    def x0off(self):
        a = self.a
        a(f'v_mov_b32 v10, 0x{OOB:x}')
        self.bits('v6', 'v0', 'v7', [(0, 4, 3), (4, 1, 2), (5, 1, 7)])
        a('s_mul_i32 s38, s3, 224'); a('s_lshl_b32 s39, s3, 5'); a(f's_add_u32 s39, s39, {896 - 224}')
        a('v_cmp_gt_u32 vcc, 224, v6')
        a('v_add_u32 v15, s38, v6'); a('v_add_u32 v6, s39, v6')
        a('v_cndmask_b32 v12, v10, v15, vcc'); a('v_cndmask_b32 v15, v6, v15, vcc')
        a('s_lshl_b32 s38, s3, 9'); a('v_lshl_add_u32 v14, v0, 3, s38'); a('v_cndmask_b32 v14, v10, v14, vcc')
    def gather_offs(self):
        a = self.a
        self.bits('v13', 'v0', 'v6', [(0, 4, 4), (4, 2, 12)])
        a('s_lshl_b32 s38, s3, 8'); a('v_add_u32 v13, s38, v13'); a(f'v_lshl_add_u32 v{self.vRO}, v0, 2, s38')
        a('v_cmp_gt_u32 vcc, 48, v0'); a('v_mov_b32 v18, 0'); a('v_mov_b32 v19, 0'); a('v_cndmask_b32 v8, v10, v13, vcc')
        a('v_and_b32 v6, 8, v0'); a('v_cmp_eq_u32 vcc, 8, v6'); a('v_mov_b32 v6, 0x3c00'); a('v_mov_b32 v7, 0x3c000000')
        a('v_cndmask_b32 v6, v6, v7, vcc'); a('v_and_b32 v7, 7, v0')
        for r, key in enumerate((0, 1, 4, 5)):
            a(f'v_cmp_eq_u32 vcc, {key}, v7'); a('s_nop 1'); a(f'v_cndmask_b32 v{self.vAC + r}, 0, v6, vcc')
    def resid_poll(self, soff):
        a = self.a; l = self.lab('L_rp')
        a.label(l)
        self.timeout()
        a(f'buffer_load_dwordx2 v[16:17], v14, {WS}, {soff} offen sc1'); a('s_waitcnt vmcnt(0)')
        a('v_max_u32 v6, v16, v17'); a('v_cmp_eq_u32 vcc, -1, v6'); a(f's_cbranch_vccnz {l}')
    def gather_sum(self, soff, G, full):
        a = self.a; l = self.lab('L_g'); d = self.lab('L_gd')
        a.label(l)
        self.timeout()
        for i in range(4): a(f'buffer_load_dwordx4 {vr(G + 4 * i, 4)}, {"v13" if full or i < 2 else "v8"}, {WS}, {soff} offen offset:{1024 * i} sc1')
        for i in range(4):
            a(f's_waitcnt vmcnt({3 - i})')
            a(f'v_mfma_f32_16x16x32_f16 v[20:23], {vr(self.vAC, 4)}, {vr(G + 4 * i, 4)}, {"v[16:19]" if i == 0 else "v[20:23]"}')
        a('v_cmp_u_f32 vcc, v20, v21')
        a('v_cvt_pk_bf16_f32 v24, v20, v21')
        a(f's_cbranch_vccz {d}')
        self.maxtree(range(G, G + 16), 6)
        a(f's_cbranch_vccnz {l}')
        a.label(d)
    def xrow_ops(self, sp, ss):
        return ['v_lshlrev_b32 v20, 16, v24', 'v_and_b32 v21, 0xffff0000, v24',
                f'buffer_store_dwordx2 v[20:21], v14, {WS}, {sp} offen', f'buffer_store_dwordx2 v[20:21], v14, {WS}, {ss} offen sc1']
    def stats_ops(self, X):
        o = []
        for i in range(4):
            o += [f'v_lshlrev_b32 v26, 16, v{X+i}', f'v_and_b32 v27, 0xffff0000, v{X+i}']
            if i == 0: o += ['v_add_f32 v28, v26, v27', 'v_mul_f32 v30, v26, v26', 'v_fmac_f32 v30, v27, v27']
            else: o += ['v_add_f32 v28, v28, v26', 'v_fmac_f32 v30, v26, v26', 'v_add_f32 v28, v28, v27', 'v_fmac_f32 v30, v27, v27']
        o += [f'v_mov_b32 v26, 0x{f2u(1/448):x}', f'v_mov_b32 v27, 0x{f2u(1e-5):x}', 'v_permlane16_swap_b32 v28, v30', 'v_add_f32 v28, v28, v30']
        for c in ('quad_perm:[1,0,3,2]', 'quad_perm:[2,3,0,1]', 'row_ror:4'):
            o += [None, f'v_add_f32_dpp v28, v28, v28 {c} {FULL}']
        o += [None, f'v_add_f32_dpp v29, v28, v28 row_ror:8 {FULL}', f'v_add_f32_dpp v28, v28, v28 row_ror:8 {FULL}', None,
              'v_permlane32_swap_b32 v28, v29', 'v_add_f32 v28, v28, v29', None,
              'v_readlane_b32 s58, v28, 0', 'v_readlane_b32 s59, v28, 16', None,
              'v_mul_f32 v24, s58, v26', 'v_fmac_f32 v27, s59, v26',
              'v_fma_f32 v27, -v24, v24, v27', 'v_rsq_f32 v25, v27']
        return o
    def gemv(self, ntile, nks, breg, acc, A, fill=(), nother=0):
        a = self.a; fill = list(fill)
        for ks in range(nks):
            a(f's_waitcnt lgkmcnt({min(15, nks - 1 - ks + nother)})')
            for jj in range(ntile):
                a(f'v_smfmac_f32_16x16x64_bf16 {vr(acc + 4 * jj, 4)}, {vr(A + 4 * ks, 4)}, {rr(breg(jj, ks), 8)}, v3')
                for _ in range(2):
                    if fill:
                        x = fill.pop(0)
                        if x: a(x)
        for x in fill:
            if x: a(x)
    def zero(self, base, n):
        for i in range(0, n, 2): self.a(f'v_mov_b64 {vr(base + i, 2)}, 0')
    def rowsel(self, dst, acc, tiles_masks):
        for jj, rm in tiles_masks:
            self.a(f'v_add_f32_dpp v{dst}, v{acc + 4*jj}, v{acc + 4*jj + 1} quad_perm:[0,1,2,3] row_mask:0x{rm:x} bank_mask:0xf')
    def rowout(self, acc, sp, ss):
        a = self.a
        for jj in range(4): self.rowsel(20, acc, [(jj, 1 << jj)])
        for jj in range(3): self.rowsel(21, acc, [(4 + jj, 1 << jj)])
        a('v_cvt_pk_f16_f32 v20, v20, v21'); a('v_min_u32 v20, -2, v20')
        self.lstore('dword', 'v20', f'v{self.vRO}', sp, ss)
    def calc_ib(self):
        a = self.a
        a('s_lshl_b32 s38, s49, 2'); a(f's_lshr_b32 s50, {"0x76352410" if self.reord else "0x73625140"}, s38'); a('s_and_b32 s50, s50, 7')
    def colsum(self, ntile, nks, breg, acc):
        a = self.a
        for r in range(4): a(f'v_mov_b32 v{20 + r}, 0x3f803f80')
        self.zero(acc, 4 * ntile)
        for ks in range(nks):
            for jj in range(ntile):
                a(f'v_smfmac_f32_16x16x64_bf16 {vr(acc + 4 * jj, 4)}, v[20:23], {rr(breg(jj, ks), 8)}, v3')
    def pinit(self, ib0):
        a = self.a
        for r in range(20, 24): a(f'v_mov_b32 v{r}, -1')
        a(f's_add_u32 s38, s3, {ib0}'); a('s_lshl_b32 s38, s38, 18'); a('s_add_u32 s38, s38, s41')
        a('v_lshlrev_b32 v6, 4, v0')
        for i in range(16):
            if i and i % 4 == 0: a('s_add_u32 s38, s38, 4096')
            self.vm(f'buffer_store_dwordx4 v[20:23], v6, {WS}, s38 offen offset:{(i % 4) * 1024} sc1', 'pinit')

    def roleOQ(self):
        a = self.a
        TOG = ['v_xor_b32 v15, 0x400, v15', 'v_xor_b32 v2, 0x400, v2', 'v_xor_b32 v1, 0x400, v1', f'v_xor_b32 v{self.vOW}, 0x400, v{self.vOW}']
        def qreg(jj, ks): return 96 + (ks * 4 + jj) * 8
        def oreg(jj, ks):
            if ks == 3 and jj < 4: return 288 + 8 * jj
            i = jj * 3 + ks if ks < 3 else 21 + jj - 4
            return 320 + 8 * i
        inwin = lambda d: 288 <= d < 320
        X0 = 4
        self.dma_sub('L_dmaQ', W1, f'v{self.vDQ}', 88, 64 * 8192)
        self.dma_subB('L_dmaO', W2, f'v{self.vDO}')
        P = 76; ML = 92; ACC = 48; A = 76
        a.label('L_Osub')
        self.calc_ib()
        a('s_and_b32 s38, s50, 3'); a('s_lshl_b32 s44, s38, 20'); a('s_add_u32 s44, s44, s41')
        a('s_cmp_eq_u32 s38, 3'); a('s_cselect_b32 s38, s55, 0'); a('s_add_u32 s44, s44, s38')
        a('s_lshr_b32 s38, s50, 2'); a('s_lshl_b32 s38, s38, 19'); a('s_add_u32 s44, s44, s38')
        a('s_add_u32 s45, s44, 4096'); a('s_add_u32 s46, s44, 16384'); a('s_add_u32 s47, s44, 20480')
        a('s_lshl_b32 s48, s50, 14'); a('s_add_u32 s48, s48, s40'); a('s_add_u32 s51, s48, s56'); a('s_add_u32 s48, s48, s57')
        self.zero(ACC, 28)
        a('s_cmp_lt_i32 s49, 0'); a('s_cbranch_scc1 L_Ook')
        a.label('L_Oheavy')
        self.timeout()
        a(f'buffer_load_dwordx2 {vr(ML, 2)}, v{self.vMLO}, {WS}, s44 offen sc1')
        for n in range(4): a(f'buffer_load_dwordx4 {vr(P + 4*n, 4)}, v{self.vPO2 if n == 3 else self.vPO}, {WS}, s{44+n} offen sc1')
        a('s_waitcnt vmcnt(4)')
        a(f'v_max_f32_dpp v20, v{ML}, v{ML} quad_perm:[1,0,3,2] {FULL}')
        for c in ('quad_perm:[2,3,0,1]', 'row_ror:4', 'row_ror:8'): a(f'v_max_f32_dpp v20, v20, v20 {c} {FULL}')
        a(f'v_sub_f32 v20, v{ML}, v20'); a('v_exp_f32 v20, v20'); a('v_cndmask_b32 v20, 0, v20, s[42:43]')
        a(f'v_mul_f32 v21, v20, v{ML+1}')
        lred = [f'v_add_f32_dpp v21, v21, v21 {c} {FULL}' for c in ('quad_perm:[1,0,3,2]', 'quad_perm:[2,3,0,1]', 'row_ror:4', 'row_ror:8')]
        for n in range(4):
            a(f's_waitcnt vmcnt({3 - n})')
            for r in range(4):
                a(f'v_{"mul" if n == 0 else "fmac"}_f32_dpp v{24 + r}, v20, v{P + 4*n + r} row_newbcast:{n} {FULL}')
            a(lred[n])
        a('v_permlane16_swap_b32 v24, v25'); a('v_permlane16_swap_b32 v26, v27'); a('v_rcp_f32 v21, v21')
        a('v_add_f32 v24, v24, v25'); a('v_add_f32 v26, v26, v27')
        a('v_permlane32_swap_b32 v24, v26'); a('v_add_f32 v24, v24, v26'); a('v_mul_f32 v24, v24, v21')
        a('v_cmp_u_f32 vcc, v24, v24')
        a('v_cvt_pk_bf16_f32 v24, v24, v24')
        a('s_cbranch_vccz L_Ook0')
        self.maxtree(list(range(P, P + 16)) + [ML, ML + 1], 6)
        a('s_cbranch_vccnz L_Oheavy')
        a.label('L_Ook0')
        if self.split:
            a('s_cmp_lg_u32 s49, 0'); a('s_cbranch_scc1 L_Ook')
            a('s_setpc_b64 s[34:35]')
        a.label('L_Ook')
        a(f'ds_write_b16 v{self.vOW}, v24'); a('s_waitcnt lgkmcnt(0)'); a('s_barrier')
        for ks in range(4): a(f'ds_read_b128 {vr(A + 4*ks, 4)}, v2 offset:{128 * ks}')
        self.stamp(3, 's49', 28)
        self.gemv(7, 4, oreg, ACC, A, fill=TOG + ['v_mov_b32 v21, 0'])
        self.rowout(ACC, 's48', 's51')
        self.stamp(12, 's49', 28)
        a('s_add_u32 s49, s49, 1')
        a('s_setpc_b64 s[34:35]')
        G = 64; ACC = 48; A = 64; X = 92
        a.label('L_Qsub')
        self.zero(ACC, 16)
        a('s_lshl_b32 s44, s53, 13'); a('s_add_u32 s44, s44, s54')
        a('s_lshl_b32 s38, s53, 11'); a(f's_add_u32 s47, s38, 0x{XAOFF - 4 * 2048:x}')
        a('s_add_u32 s45, s38, s33'); a('s_add_u32 s46, s45, s56'); a('s_add_u32 s45, s45, s57')
        a('s_lshl_b32 s48, s53, 14'); a(f's_add_u32 s48, s48, 0x{ZOFF - 4 * 16384:x}')
        a('s_cmp_lt_u32 s53, 4'); a('s_cbranch_scc1 L_Qx')
        self.resid_poll('s47')
        self.gather_sum('s48', G, False)
        a.label('L_Qx')
        a('ds_write_b32 v15, v24'); a('s_waitcnt lgkmcnt(0)'); a('s_barrier')
        for ks in range(7): a(f'ds_read_b128 {vr(A + 4*ks, 4)}, v2 offset:{128 * ks}')
        a(f'ds_read_b128 {vr(X, 4)}, v1')
        for x in self.xrow_ops('s45', 's46'): a(x)
        self.stamp(24, 's53', 28)
        fill = TOG + [None, 's_waitcnt lgkmcnt(0)'] + self.stats_ops(X)
        self.gemv(4, 7, qreg, ACC, A, fill=fill, nother=1)
        a(f'v_mul_f32 v21, v24, v{self.vCS}')
        self.rowsel(20, ACC, [(jj, 1 << jj) for jj in range(4)])
        a('v_sub_f32 v20, v20, v21'); a('v_mul_f32 v20, v20, v25')
        a('v_cvt_pk_bf16_f32 v20, v20, v20'); a('v_min_u32 v20, -2, v20')
        a(f'buffer_store_short v20, v{self.vQS}, {WS}, s44 offen sc1')
        self.stamp(33, 's53', 28)
        a('s_add_u32 s53, s53, 1')
        a('s_setpc_b64 s[34:35]')
        a.label('L_roleOQ')
        self.cq = ['init']
        a('s_lshl_b32 s38, s2, 9')
        self.srd(20, 70, 448 * 8192)
        a('s_lshl_b32 s39, s3, 7'); a('s_add_u32 s38, s38, s39')
        a(f'v_lshl_add_u32 v{self.vDQ}, v4, 13, s38'); a(f'v_add_u32 v{self.vDQ}, v{self.vDQ}, v2')
        self.table(88, 8192)
        R4 = self.ring4
        pq = [dict(sub='L_dmaQ', B=0, slot=(ks + 2 * R4) % 4, rd=[(qreg(jj, ks) + 2 * rp, rp * 2048 + jj * 256) for jj in range(4) for rp in range(4)]) for ks in range(7)]
        po = [dict(sub='L_dmaO', B=1, slot=(3, 0, 1)[i % 3], rd=self.typeB_reads(oreg, i // 2, i % 2)) for i in range(8)]
        if R4:
            for i, p in enumerate(po): p['off'] = 32768 + 28672 * (i % 4)
        self.issue(pq[0])
        self.srd(28, 64, 3584)
        XL = 48
        a(f'v_mov_b32 v10, 0x{OOB:x}')
        a('v_cmp_gt_u32 vcc, 56, v0'); a('v_bfe_u32 v7, v0, 2, 2'); a('v_mul_u32_u24 v7, 896, v7'); a('v_cndmask_b32 v6, v10, v1, vcc')
        for b in range(4): self.vm(f'buffer_load_dwordx4 {vr(XL + 4 * b, 4)}, v6, {W3}, 0 offen offset:{b * 896}', 'xl')
        a('v_add_u32 v7, v7, v2')
        a('s_mov_b32 s38, 0x3f803f80'); a('s_mov_b32 s39, s38')
        for r in range(0, 28, 2): a(f'v_mov_b64 {vr(A + r, 2)}, s[38:39]')
        a('s_mov_b32 exec_lo, 0x33333333'); a('s_mov_b32 exec_hi, 0x33333333')
        for ks in range(7): self.vm(f'buffer_load_dwordx4 {vr(A + 4 * ks, 4)}, v7, {W3}, 0 offen offset:{128 * ks}', 'xa')
        a('s_mov_b64 exec, -1')
        self.issue(pq[1])
        self.stamp(56, None, 30)
        self.srd(24, 72, 4096 * 896)
        a('s_lshl_b32 s39, s2, 8')
        self.typeB(f'v{self.vDO}', 's39')
        self.consts(); a('s_lshl_b32 s38, s3, 13'); a('v_add_u32 v9, s38, v9')
        if self.up4: self.issue(pq[2]); self.issue(pq[3])
        self.stamp(57, None, 30)
        self.arm(True)
        self.stamp(58, None, 30)
        if not self.up4: self.issue(pq[2])
        self.vmwait('xl')
        self.stamp(59, None, 30)
        for b in range(4):
            for x in self.stats_ops(XL + 4 * b):
                if x: a(x)
            a(f'v_mov_b32_dpp v92, v24 quad_perm:[0,1,2,3] row_mask:0x{1 << b:x} bank_mask:0xf')
            a(f'v_mov_b32_dpp v93, v25 quad_perm:[0,1,2,3] row_mask:0x{1 << b:x} bank_mask:0xf')
        if not self.up4: self.issue(pq[3])
        self.zero(ACC, 16)
        self.bits('v94', 'v0', 'v6', [(0, 1, 1), (2, 1, 2), (3, 1, 4), (1, 1, 5), (4, 2, 13)])
        a('s_lshl_b32 s38, s3, 7'); a('s_lshl_b32 s44, s2, 9'); a('s_add_u32 s44, s38, s44')
        self.stamp(60, None, 30)
        nxt = {1: pq[4], 2: pq[5], 3: pq[6], 4: po[0]}
        if R4 == 1: nxt[5] = po[1]; nxt[6] = [po[2], po[3]]
        def q1mm(ks):
            for jj in range(4): a(f'v_smfmac_f32_16x16x64_bf16 {vr(ACC + 4 * jj, 4)}, {vr(A + 4 * ks, 4)}, {rr(qreg(jj, ks), 8)}, v3')
        hooks = {(3 if self.up4 else 2): lambda: self.announce(False)}
        for i in range(7):
            if i == 3: self.vmwait('arm')
            self.consume(pq[i], nxt.get(i), hooks.get(i))
            self.stamp(41 + i, None, 26)
            if i: q1mm(i - 1)
        a('s_waitcnt lgkmcnt(0)')
        q1mm(6)
        self.stamp(20, None, 28)
        for jj in range(4):
            a(f'v_add_f32 v{20 + jj}, v{ACC + 4*jj}, v{ACC + 4*jj + 1}'); a(f'v_add_f32 v{24 + jj}, v{ACC + 4*jj + 2}, v{ACC + 4*jj + 3}')
        for jj in range(4): a(f'v_fma_f32 v{20 + jj}, -v92, v{24 + jj}, v{20 + jj}')
        for jj in range(4): a(f'v_mul_f32 v{20 + jj}, v{20 + jj}, v93')
        for jj in range(4): a(f'v_cvt_pk_bf16_f32 v{20 + jj}, v{20 + jj}, v{20 + jj}')
        for jj in range(4): a(f'v_min_u32 v{20 + jj}, -2, v{20 + jj}')
        for jj in range(4): self.vm(f'buffer_store_short v{20 + jj}, v94, {WS}, s44 offen offset:{(jj & 1) * 8 + (jj >> 1) * 64} sc1')
        for jj in range(4): a(f'v_mov_b32_dpp v{self.vCS}, v{24 + jj} quad_perm:[0,1,2,3] row_mask:0x{1 << jj:x} bank_mask:0xf')
        self.stamp(35, None, 28)
        if R4 != 1: self.issue(po[1]); self.issue(po[2])
        if R4 == 3: self.issue(po[3])
        a('s_mov_b32 s55, 0'); a(f's_lshl_b32 s41, s2, 15'); a(f's_add_u32 s41, s41, 0x{POFF:x}')
        self.x0off(); self.gather_offs()
        a('s_lshl_b32 s40, s2, 10'); a(f's_add_u32 s40, s40, 0x{YOFF:x}')
        PO, PO2, MO, OW = self.vPO, self.vPO2, self.vMLO, self.vOW
        self.bits(f'v{PO}', 'v0', 'v6', [(0, 4, 4), (4, 2, 10)])
        a('s_lshl_b32 s38, s3, 8'); a(f'v_add_u32 v{PO}, s38, v{PO}')
        a('v_cmp_gt_u32 vcc, 32, v0'); a('v_lshrrev_b32 v6, 4, v0'); a('v_bfe_u32 v7, v0, 2, 2'); a(f'v_cndmask_b32 v{PO2}, v10, v{PO}, vcc')
        a('v_add_u32 v6, v6, v7'); a('v_and_b32 v6, 3, v6')
        a('v_and_b32 v7, 3, v0'); a('v_lshl_add_u32 v6, v7, 2, v6')
        a(f'v_cmp_gt_u32 s[42:43], {NC}, v6'); a(f'v_min_u32 v6, {NC - 1}, v6'); a(f'v_lshlrev_b32 v{MO}, 7, v6'); a(f'v_add_u32 v{MO}, {MLO}, v{MO}')
        self.bits(f'v{OW}', 'v0', 'v6', [(4, 2, 1), (0, 3, 4), (3, 1, 8)])
        a('s_lshr_b32 s38, s3, 1'); a('s_lshl_b32 s38, s38, 7'); a('s_and_b32 s39, s3, 1'); a('s_lshl_b32 s39, s39, 3'); a('s_add_u32 s38, s38, s39')
        a(f'v_add_u32 v{OW}, s38, v{OW}')
        self.bits(f'v{self.vQS}', 'v0', 'v6', [(0, 1, 1), (2, 1, 2), (4, 1, 3), (3, 1, 4), (1, 1, 5), (5, 1, 6)])
        a('s_lshl_b32 s38, s3, 7'); a(f'v_add_u32 v{self.vQS}, s38, v{self.vQS}')
        a('s_cmp_eq_u32 s2, 0'); a(f's_cselect_b32 s33, 0x{XBOFF - 4 * 2048:x}, s57')
        a('s_mov_b32 s53, 3'); a(f's_mov_b32 s54, 0x{OOB:x}')
        for i in range(8):
            self.consume(po[i], (po[i + 3] if 1 <= i < 5 else None) if R4 else po[i + 2] if 1 <= i < 6 else None, (lambda: self.preready(True)) if i == (4 if self.split else 5) else None)
            self.stamp(48 + i, None, 28)
            if i == 1: a('s_call_b64 s[34:35], L_Osub')
            if i == 2: a('s_call_b64 s[34:35], L_Qsub'); a('s_lshl_b32 s54, s2, 9')
            if i == 5 and self.split:
                self.ready(True); a('s_call_b64 s[34:35], L_Osub'); self.cq = []
        if not self.split: self.ready(True)
        else:
            assert self.reord == 2
            self.stamp(1, None, 28)
            a('s_call_b64 s[34:35], L_Ook'); a('s_branch L_OQin')
        if self.reord == 2:
            a.label('L_OQloop')
            a('s_call_b64 s[34:35], L_Osub')
            a('s_cmp_ge_u32 s49, 8'); a('s_cbranch_scc1 L_end')
            a.label('L_OQin')
            self.readout(pq[6])
            a('s_call_b64 s[34:35], L_Qsub')
            self.readout(po[6], inwin); self.readout(po[7], inwin)
            a('s_cmp_eq_u32 s49, 1'); a('s_cbranch_scc1 L_OQloop')
            a('s_call_b64 s[34:35], L_Osub')
            if self.home:
                a('s_cmp_lg_u32 s49, 3'); a('s_cbranch_scc1 L_OQloop')
                a(f's_add_u32 s44, s41, {3 * PIB}'); a('s_mov_b32 s4, -1'); a('s_mov_b32 s5, -1'); a(f's_mov_b32 s6, {2 * self.home}')
                a('s_waitcnt vmcnt(0)')
                a.label('L_hm')
                a('s_waitcnt lgkmcnt(0)'); a('s_memtime s[58:59]'); a('s_waitcnt lgkmcnt(0)')
                a(f'buffer_load_dwordx4 {vr(P, 4)}, v{self.vPO}, {WS}, s44 offen sc1'); a('s_waitcnt vmcnt(0)')
                a('s_memtime s[38:39]'); a('s_waitcnt lgkmcnt(0)')
                a('s_sub_u32 s38, s38, s58'); a('s_min_u32 s38, s38, s4'); a('s_mov_b32 s4, s5'); a('s_mov_b32 s5, s38')
                a('s_add_u32 s44, s44, 0x2000'); a('s_and_b32 s38, s6, 3'); a('s_cmp_eq_u32 s38, 1'); a(f's_cselect_b32 s38, {0x8000 - 4096}, 0'); a('s_sub_u32 s44, s44, s38')
                a('s_sub_u32 s6, s6, 1'); a('s_cmp_lg_u32 s6, 0'); a('s_cbranch_scc1 L_hm')
                a('s_cmp_gt_u32 s4, s5'); a('s_cselect_b32 s55, 0x2000, 0')
                if self.hforce is not None: a(f's_mov_b32 s55, {self.hforce}')
                if self.diag:
                    a('s_lshl_b32 s38, s4, 16'); a('s_add_u32 s38, s38, s5'); a('v_mov_b32 v28, s38'); a('v_mov_b32 v29, 0')
                    a(f'buffer_store_dword v28, v29, {WS}, s61 offen offset:{62 * 4}')
            a('s_branch L_OQloop')
            return
        if self.reord:
            a('s_branch L_OQin')
            a.label('L_OQloop')
            self.readout(pq[6])
            a('s_call_b64 s[34:35], L_Qsub')
            self.readout(po[6], inwin); self.readout(po[7], inwin)
            a('s_call_b64 s[34:35], L_Osub')
            a('s_cmp_ge_u32 s49, 8'); a('s_cbranch_scc1 L_end')
            a.label('L_OQin')
            a('s_call_b64 s[34:35], L_Osub')
            a('s_branch L_OQloop')
            return
        a.label('L_OQloop')
        a('s_call_b64 s[34:35], L_Osub')
        self.readout(pq[6])
        a('s_call_b64 s[34:35], L_Qsub')
        self.readout(po[6], inwin); self.readout(po[7], inwin)
        a('s_call_b64 s[34:35], L_Osub')
        a('s_cmp_lt_u32 s49, 8'); a('s_cbranch_scc1 L_OQloop')
        a('s_branch L_end')

    def roleF(self):
        a = self.a
        self.dma_sub('L_dmaG', W1, 'v44', 88, 64 * 3584)
        self.dma_subB('L_dmaD', W3, 'v11')
        breg = lambda jj, ks: 256 + (jj * 7 + ks) * 8
        def dreg(jj, ks):
            i = jj * 2 + ks
            return 256 + 224 + 8 * i if i < 4 else 176 + 8 * (i - 4)
        G = 64; ACC = 48; A = 96; X = 124; CSUM = self.vCS; ACD = 128; X0 = 160
        a.label('L_Fsub')
        self.calc_ib()
        self.zero(ACC, 16); self.zero(ACD, 28)
        a('s_lshl_b32 s38, s50, 14'); a(f's_add_u32 s48, s38, 0x{YOFF:x}')
        a('s_add_u32 s44, s38, s40'); a('s_add_u32 s51, s44, s56'); a('s_add_u32 s44, s44, s57')
        a('s_lshl_b32 s38, s50, 11'); a(f's_add_u32 s47, s38, 0x{XBOFF - 4 * 2048:x}')
        a('s_add_u32 s45, s38, s41'); a('s_add_u32 s46, s45, s56'); a('s_add_u32 s45, s45, s57')
        a('s_cmp_lt_i32 s49, 0'); a('s_cbranch_scc1 L_Fx')
        a('s_bitcmp1_b32 s50, 2'); a('s_cbranch_scc1 L_Fr')
        a(f'v_lshlrev_b32 v16, 16, v{X0}'); a(f'v_and_b32 v17, 0xffff0000, v{X0}')
        for i in range(3): a(f'v_mov_b32 v{X0 + i}, v{X0 + i + 1}')
        a('s_branch L_Fg')
        a.label('L_Fr')
        self.resid_poll('s47')
        a.label('L_Fg')
        self.gather_sum('s48', G, True)
        a.label('L_Fx')
        a('ds_write_b32 v15, v24'); a('s_waitcnt lgkmcnt(0)'); a('s_barrier')
        for ks in range(7): a(f'ds_read_b128 {vr(A + 4*ks, 4)}, v2 offset:{128 * ks}')
        a(f'ds_read_b128 {vr(X, 4)}, v1')
        for x in self.xrow_ops('s45', 's46'): a(x)
        self.stamp(3, 's49', 28)
        fill = [None] * 5 + ['s_waitcnt lgkmcnt(0)'] + self.stats_ops(X)
        self.gemv(4, 7, breg, ACC, A, fill=fill, nother=1)
        a(f'v_mul_f32 v22, v24, v{CSUM}'); a(f'v_mul_f32 v23, v24, v{CSUM+1}'); a('v_mul_f32 v25, v25, v25')
        for jj in (0, 2, 1, 3): self.rowsel(20 + jj // 2, ACC, [(jj, 10 if jj & 1 else 5)])
        a('v_sub_f32 v20, v20, v22'); a('v_sub_f32 v21, v21, v23')
        a('v_max_f32 v20, 0, v20'); a('v_mul_f32 v21, v21, v25'); a('v_mul_f32 v20, v20, v21')
        a('v_cvt_pk_bf16_f32 v20, v20, v20')
        a('ds_write_b16 v40, v20'); a('s_waitcnt lgkmcnt(0)'); a('s_barrier')
        for ks in range(2): a(f'ds_read_b128 {vr(A + 4*ks, 4)}, v2 offset:{2048 + 128 * ks}')
        a('v_mov_b32 v21, 0')
        self.gemv(7, 2, dreg, ACD, A)
        self.rowout(ACD, 's44', 's51')
        self.stamp(12, 's49', 28)
        a('s_add_u32 s49, s49, 1')
        a('s_cmp_eq_u32 s49, 0'); a('s_cbranch_scc1 L_Fret')
        a('s_cmp_lt_u32 s49, 8'); a('s_cbranch_scc1 L_Fsub')
        a('s_branch L_end')
        a.label('L_roleF')
        self.cq = list(self.cq0); done = 8 * (self.hq[1] - self.hq[0]) if self.hq else 0
        a('s_cmp_lt_u32 s3, 2'); a('s_cselect_b64 s[20:21], s[76:77], s[78:79]'); a(f's_mov_b32 s22, 0x{448 * 3584:x}'); a('s_mov_b32 s23, 0x20000')
        a('s_sub_u32 s2, s2, 16')
        a('v_mul_u32_u24 v6, 3584, v4')
        a('s_lshl_b32 s38, s2, 8'); a('s_and_b32 s39, s3, 1'); a('s_lshl_b32 s39, s39, 7'); a('s_add_u32 s38, s38, s39')
        a('v_add3_u32 v44, v6, v2, s38')
        self.table(88, 3584)
        pl = [dict(sub='L_dmaG', B=0, rd=[(breg(jj, ks) + 2 * rp, (jj >> 1) * 16384 + rp * 2048 + (jj & 1) * 256) for jj in range(4) for rp in range(4)]) for ks in range(7)]
        pl += [dict(sub='L_dmaD', B=1, rd=self.typeB_reads(dreg, i // 2, i % 2)) for i in range(4)]
        for i, p in enumerate(pl): p['slot'] = i % 4
        self.stamp(56, None, 30)
        for i in range(2): self.issue(pl[i])
        self.stamp(57, None, 30)
        self.srd(28, 80, 1792 * 896); self.srd(68, 64, 3584)
        a('s_lshl_b32 s39, s2, 7')
        self.typeB('v11', 's39')
        self.consts()
        a('s_lshr_b32 s38, s3, 1'); a('s_lshl_b32 s38, s38, 13'); a('s_and_b32 s39, s3, 1'); a('s_lshl_b32 s39, s39, 9'); a('s_add_u32 s38, s38, s39'); a('v_add_u32 v9, s38, v9')
        self.x0off(); self.gather_offs()
        for b in range(4): self.vm(f'buffer_load_dword v{X0 + b}, v12, s[68:71], 0 offen offset:{b * 896}', 'x0')
        a('v_and_b32 v6, 31, v0'); a('s_lshl_b32 s38, s3, 6'); a('s_add_u32 s38, s38, 2048'); a('v_lshl_add_u32 v40, v6, 1, s38')
        a('s_lshl_b32 s40, s2, 10'); a(f's_add_u32 s40, s40, 0x{ZOFF:x}')
        a('s_cmp_eq_u32 s2, 0'); a(f's_cselect_b32 s41, 0x{XAOFF:x}, s57')
        if done < 10: self.arm()
        elif done < 24: self.announce()
        self.stamp(58, None, 30)
        self.issue(pl[2])
        a('s_branch L_Fsub')
        a.label('L_Fret')
        self.issue(pl[3])
        self.stamp(59, None, 30)
        hooks = {2: lambda: self.announce(False)} if done < 10 else {}
        hooks[7] = self.preready
        for i in range(11):
            self.consume(pl[i], pl[i + 3] if 1 <= i < 8 else None, hooks.get(i))
            if self.ho and i == self.ho[2]: self.wo_pf('s2')
            self.stamp(41 + i, None, 26)
            if i == 7:
                self.stamp(20, None, 28)
                self.colsum(4, 7, breg, ACC)
                self.rowsel(CSUM, ACC, [(0, 5), (1, 10)]); self.rowsel(CSUM + 1, ACC, [(2, 5), (3, 10)])
        self.ready()
        a('s_branch L_Fsub')

    def wo_pf(self, head, add=0):
        a = self.a; p0, p1 = self.ho[:2]
        self.srd(24, 72, 4096 * 896)
        nb = (p1 - p0) * 28672; per = nb // 4
        a(f's_mul_i32 s38, {head}, 229376'); a(f's_mul_i32 s39, s3, {per}'); a('s_add_u32 s38, s38, s39'); a(f's_add_u32 s38, s38, {p0 * 28672 + add * 229376}')
        a('v_min_u32 v6, 55, v0'); a('v_lshlrev_b32 v6, 7, v6')
        for i in range(p1 - p0):
            self.vm(f'buffer_load_dword v45, v6, {W2}, s38 offen {self.hpol}', 'ho'); a('s_add_u32 s38, s38, 7168')
    def roleW(self):
        a = self.a
        self.cq = list(self.cq0); done = 8 * (self.hq[1] - self.hq[0]) if self.hq else 0
        self.consts()
        if done < 10: self.arm()
        if done < 24: self.announce()
        a('s_sub_u32 s2, s2, 30')
        if self.hpf: self.helper()
        if self.ho: self.wo_pf('s2', 14)
        a('s_cmp_lg_u32 s2, 0'); a('s_cbranch_scc1 L_end')
        self.srd(20, 82, 3584)
        self.x0off(); self.gather_offs()
        self.preready(); self.ready()
        G = 64
        a('s_mov_b32 s49, 0'); a(f's_mov_b32 s47, 0x{XAOFF + 4 * 2048:x}'); a(f's_mov_b32 s48, 0x{ZOFF + 4 * 16384:x}'); a('s_mov_b32 s44, 0')
        a.label('L_Wtop')
        self.resid_poll('s47')
        self.gather_sum('s48', G, False)
        a(f'buffer_store_dword v24, v12, {W1}, s44 offen')
        self.stamp(12, 's49', 28)
        a('s_add_u32 s49, s49, 1'); a('s_add_u32 s47, s47, 2048'); a('s_add_u32 s48, s48, 16384'); a('s_add_u32 s44, s44, 896')
        a('s_cmp_lt_u32 s49, 4'); a('s_cbranch_scc1 L_Wtop')
        a('s_branch L_end')
    def helper(self):
        a = self.a
        hq, ho = self.hpf if isinstance(self.hpf, (list, tuple)) else (48, 48)
        a('s_lshl_b32 s38, s2, 2'); a('s_add_u32 s38, s38, s3')
        self.srd(20, 70, 448 * 8192); self.srd(24, 72, 4096 * 896)
        a('s_lshl_b32 s40, s38, 10'); a(f's_add_u32 s40, s40, {(448 - hq) * 8192}')
        l = self.lab('L_hq'); a(f's_mov_b32 s41, {hq}')
        if hq:
            a.label(l)
            a('s_waitcnt vmcnt(11)'); a(f'buffer_load_dwordx4 v[64:67], v1, {W1}, s40 offen {self.hpol}')
            a('s_add_u32 s40, s40, 8192'); a('s_sub_u32 s41, s41, 1'); a('s_cmp_lg_u32 s41, 0'); a(f's_cbranch_scc1 {l}')
        if ho:
            a('s_mul_i32 s40, s38, 458752'); a(f's_add_u32 s40, s40, {229376 - ho * 1024}'); a('s_add_u32 s42, s40, 229376')
            l = self.lab('L_ho'); a(f's_mov_b32 s41, {ho}')
            a.label(l)
            a('s_waitcnt vmcnt(10)'); a(f'buffer_load_dwordx4 v[64:67], v1, {W2}, s40 offen {self.hpol}')
            a(f'buffer_load_dwordx4 v[64:67], v1, {W2}, s42 offen {self.hpol}')
            a('s_add_u32 s40, s40, 1024'); a('s_add_u32 s42, s42, 1024'); a('s_sub_u32 s41, s41, 1'); a('s_cmp_lg_u32 s41, 0'); a(f's_cbranch_scc1 {l}')
        a('s_waitcnt vmcnt(0)')
        self.stamp(20, None, 28)

if __name__ == '__main__':
    kw = json.loads(sys.argv[2]) if len(sys.argv) > 2 else {}
    open(sys.argv[1], 'w').write(Gen(**kw).build())
```

```python
import sys, struct, json
from asmlib import Asm
NAME = "interleave_layers__mha_block_cached__glu_gated_reglu__decode"

QOFF = 0x0; YOFF = 0x10000; ZOFF = 0x30000; XAOFF = 0x50000; XBOFF = 0x54000; POFF = 0x800000; DOFF = 0x400000
PB = 32768; PIB = 0x100000; PP2 = 0x80000; MLO = 16384 + 6144
OOB = 0x40000000
NC = 14; NW = 56
CS = 0.09016844005556021
def f2u(x): return struct.unpack('<I', struct.pack('<f', x))[0]

K_SRD = 's[8:11]'; V_SRD = 's[12:15]'; WS = 's[16:19]'; W1 = 's[20:23]'; W2 = 's[24:27]'; W3 = 's[28:31]'
DBG = 's[84:85]'
NCHAIN = 32
K4 = 's[88:91]'; V4 = 's[92:95]'
FULL = 'row_mask:0xf bank_mask:0xf'

def vr(b, n=1): return f'v{b}' if n == 1 else f'v[{b}:{b+n-1}]'
def ar(b, n=1): return f'a{b}' if n == 1 else f'a[{b}:{b+n-1}]'
def rr(b, n=1): return vr(b, n) if b < 256 else ar(b - 256, n)

class Gen:
    def __init__(self, diag=False, PF=65, depth=8, hpf=False, hpol='nt', cpf=False, rows=(16, 10, 7), hq=(1, 5), fake=0, CL=12, PF2=None, reord=2, lightO=0, split=True, tlb=0, fx=2, thr=None, wtlb=0, probe=None, kpol='nt', vpol='nt', par=None, nQ=48, nE=60, early=False, sub=None, qE=None, ring4=0, up4=False, ho=None, pos=None, home=4, hforce=None, lv=None, lvx=None, th=None, cps=None, rs=None, gs=14, kvonly=True, ed=False, mid=None, fast=None, boost=None, fld=(2, 2), nQ1=None, cpon=None, odd=None, slow=None):
        self.slow = slow
        self.odd = odd
        self.cpon = cpon
        self.nQ1 = nQ1 or nQ
        self.fast = fast; self.boost = boost; self.fld = fld; self.xst = 0
        if boost: lv = [depth, boost[1]]
        self.kvonly = kvonly; self.ed = ed; self.mid = mid
        self.lv = lv; self.lvx = lvx; self.th = th; self.cps = cps or []; self.rs = rs; self.dyn = False; self.gs = gs
        self.hforce = hforce
        self.home = home
        self.pos = pos
        self.ring4 = ring4; self.up4 = up4; self.ho = ho
        self.sub = sub; self.qE = qE
        self.par = par; self.nQ = nQ; self.nE = nE; self.early = early
        self.pmul = 10 if not probe or len(probe) < 3 else probe[2]; probe = probe and probe[:2]; self.probe = probe; self.role = 'X'; self.kpol = kpol; self.vpol = vpol
        self.a = Asm(); self.diag = diag; self.PF = PF; self.depth = depth; self.hpf = hpf; self.hpol = hpol; self.cpf = cpf; self.rows = rows; self.hq = hq; self.fake = fake; self.CL = CL; self.PF2 = PF2; self.reord = reord; self.lightO = lightO; self.split = split; self.tlb = tlb; self.fx = fx; self.thr = thr; self.wtlb = wtlb
        self.uid = 0
    def lab(self, p='L'):
        self.uid += 1; return f'{p}_{self.uid}'

    def bits(self, dst, lane, tmp, mp):
        a = self.a; first = True
        for lb, n, ab in mp:
            if first:
                a(f'v_bfe_u32 {dst}, {lane}, {lb}, {n}')
                if ab: a(f'v_lshlrev_b32 {dst}, {ab}, {dst}')
                first = False
            else:
                a(f'v_bfe_u32 {tmp}, {lane}, {lb}, {n}')
                a(f'v_lshl_add_u32 {dst}, {tmp}, {ab}, {dst}')
    def srd(self, base, lo, size):
        a = self.a
        a(f's_mov_b64 s[{base}:{base+1}], s[{lo}:{lo+1}]')
        a(f's_mov_b32 s{base+2}, 0x{size:x}'); a(f's_mov_b32 s{base+3}, 0x20000')
    def timeout(self):
        self.a('s_sub_u32 s52, s52, 1'); self.a('s_cbranch_scc1 L_bail')
    FLAG = 4096; CNTA = 16; CNTB = 144
    def wait_counter(self, va, vd, vt, off, n, pre=False):
        a = self.a; l = self.lab('L_cnt'); c = self.lab('L_cntc')
        if pre: a(f's_branch {c}')
        else: a(f'v_mov_b32 v{va}, 0')
        a.label(l)
        self.timeout()
        a(f'global_load_dword v{vd}, v{va}, {DBG} offset:{off} sc1'); a('s_waitcnt vmcnt(0)')
        a.label(c)
        a(f'v_and_b32 v{vt}, 0xff, v{vd}'); a(f'v_cmp_gt_u32 vcc, {n}, v{vt}'); a(f's_cbranch_vccnz {l}')
    def claim(self, va, vd, vr_):
        a = self.a; l = self.lab('L_cl')
        a('s_lshl_b32 s38, 1, s101'); a(f'v_mov_b32 v{va}, s100'); a(f'v_mov_b32 v{vd}, s38')
        a('s_or_b32 s38, s3, s7')
        a('s_waitcnt lgkmcnt(0)')
        a(f's_cbranch_scc1 {l}')
        a('s_mov_b64 exec, 1')
        a(f'global_atomic_or v{vr_}, v{va}, v{vd}, {DBG} sc0 sc1')
        a('s_mov_b64 exec, -1')
        a.label(l)
    def confirm(self, vr_, t):
        a = self.a; l = self.lab('L_rs'); w = self.lab('L_rw')
        a(f'v_mov_b32 v{t}, 0')
        a('s_cmp_lg_u32 s3, 0'); a(f's_cbranch_scc1 {l}')
        a('s_movk_i32 s38, 0x100'); a('s_cmp_lg_u32 s7, 0'); a(f's_cbranch_scc1 {w}')
        a(f'v_readfirstlane_b32 s39, v{vr_}'); a('s_bitcmp1_b32 s39, s101'); a(f's_cbranch_scc0 {w}')
        a('s_call_b64 s[96:97], L_lost')
        a.label(w)
        a(f'v_mov_b32 v{t+1}, s38'); a(f'ds_write_b32 v{t}, v{t+1} offset:{self.FLAG}'); a('s_waitcnt lgkmcnt(0)')
        a.label(l)
        a('s_barrier')
        a(f'ds_read_b32 v{t+1}, v{t} offset:{self.FLAG}'); a('s_waitcnt lgkmcnt(0)')
        a(f'v_readfirstlane_b32 s38, v{t+1}'); a('s_cmp_lg_u32 s38, 0x100'); a('s_cbranch_scc1 L_redo')
    def signal(self, va, vd, off, val):
        a = self.a; l = self.lab('L_sg')
        a('s_cmp_lg_u32 s3, 0'); a(f's_cbranch_scc1 {l}')
        a('s_mov_b64 exec, 1'); a(f'v_mov_b32 v{va}, 0'); a(f'v_mov_b32 v{vd}, {val}')
        a(f'global_atomic_add v{va}, v{vd}, {DBG} offset:{off} sc1')
        a('s_mov_b64 exec, -1')
        a.label(l)
    def rare_paths(self):
        a = self.a
        a.label('L_odd')
        a('s_waitcnt lgkmcnt(0)'); a('v_mov_b32 v1, 0')
        a('s_cmp_lg_u32 s3, 0'); a('s_cbranch_scc1 L_odd2')
        a('s_and_b32 s38, s36, 3'); a('s_lshl_b32 s38, s38, 6'); a('s_lshr_b32 s39, s36, 2'); a('s_lshl3_add_u32 s38, s39, s38')
        a('v_mov_b32 v2, s38'); a('s_lshl_b32 s39, s37, 3'); a('s_movk_i32 s41, 24')
        a.label('L_odd1')
        a(f'global_load_dword v3, v2, {DBG} sc1'); a('s_waitcnt vmcnt(0)')
        a('v_readfirstlane_b32 s38, v3'); a('s_lshr_b32 s38, s38, s39'); a('s_and_b32 s38, s38, 0xff'); a('s_bcnt1_i32_b32 s40, s38')
        a('s_cmp_ge_u32 s40, 7'); a('s_cselect_b32 s41, 0, s41'); a('s_sub_u32 s41, s41, 1'); a('s_cbranch_scc0 L_odd1')
        a('s_ff0_i32_b32 s38, s38'); a('v_mov_b32 v2, s38'); a(f'ds_write_b32 v1, v2 offset:{self.FLAG + 4}'); a('s_waitcnt lgkmcnt(0)')
        a.label('L_odd2')
        a('s_barrier')
        a(f'ds_read_b32 v2, v1 offset:{self.FLAG + 4}'); a('s_waitcnt lgkmcnt(0)')
        a('v_readfirstlane_b32 s38, v2'); a('s_mov_b32 s6, 1'); a('s_branch L_even')
        a.label('L_lost')
        a('s_waitcnt vmcnt(0)')
        self.bits('v62', 'v0', 'v63', [(0, 2, 6), (2, 1, 3)])
        a.label('L_lost1')
        a(f'global_load_dword v60, v62, {DBG} sc1'); a('s_waitcnt vmcnt(0)')
        a('v_cmp_ne_u32 vcc, -1, v60'); a('s_movk_i32 s38, 0x300'); a('s_cbranch_vccz L_lost2')
        a('s_getreg_b32 s39, hwreg(HW_REG_XCC_ID, 0, 3)'); a('s_ff1_i32_b32 s38, vcc_lo')
        a('s_bitcmp1_b32 vcc_lo, s39'); a('s_cselect_b32 s38, s39, s38')
        a('s_nop 3'); a('v_readlane_b32 s39, v60, s38'); a('v_readlane_b32 s40, v62, s38'); a('s_ff0_i32_b32 s39, s39')
        a('s_lshl_b32 s41, 1, s39'); a('v_mov_b32 v61, s41'); a('v_mov_b32 v63, s40')
        a('s_mov_b64 exec, 1'); a(f'global_atomic_or v60, v63, v61, {DBG} sc0 sc1'); a('s_mov_b64 exec, -1'); a('s_waitcnt vmcnt(0)')
        a('v_readfirstlane_b32 s40, v60'); a('s_bitcmp1_b32 s40, s39'); a('s_cbranch_scc1 L_lost1')
        a('s_lshl_b32 s38, s38, 5'); a('s_add_u32 s38, s38, s39'); a('s_bitset1_b32 s38, 9')
        a.label('L_lost2')
        a('s_setpc_b64 s[96:97]')
        a.label('L_redo')
        a('s_bitcmp1_b32 s38, 8'); a('s_cbranch_scc1 L_bail')
        a('s_waitcnt vmcnt(0) lgkmcnt(0)'); a('s_barrier')
        a('s_load_dwordx16 s[64:79], s[0:1], 0')
        a('s_load_dwordx8 s[80:87], s[0:1], 64')
        a('s_bfe_u32 s36, s38, 0x30005'); a('s_and_b32 s2, s38, 31'); a('s_mov_b32 s7, 1')
        a('s_branch L_role')
    def stamp(self, idx, sidx=None, t0=20, src='s62'):
        if self.probe and not self.diag:
            role, want = self.probe
            if role != self.role or (sidx is None and idx != want) or (sidx and not (0 <= want - idx < 9)): return
            a = self.a
            a('s_waitcnt lgkmcnt(0)'); a('s_memrealtime s[62:63]'); a('s_waitcnt lgkmcnt(0)')
            if sidx: a(f's_cmp_eq_u32 {sidx}, {want - idx}'); a('s_cselect_b32 s61, s62, s61')
            else: a('s_mov_b32 s61, s62')
            return
        if not self.diag: return
        a = self.a
        a('s_waitcnt lgkmcnt(0)'); a('s_memrealtime s[62:63]'); a('s_waitcnt lgkmcnt(0)')
        a(f'v_mov_b32 v{t0}, {src}')
        if sidx: a(f's_lshl_b32 s60, {sidx}, 2'); a('s_add_u32 s60, s60, s61')
        else: a('s_mov_b32 s60, s61')
        a(f'v_mov_b32 v{t0+1}, 0')
        a('s_mov_b64 exec, 1')
        a(f'buffer_store_dword v{t0}, v{t0+1}, {WS}, s60 offen offset:{idx*4}')
        a('s_mov_b64 exec, -1')
    def maxtree(self, regs, t):
        a = self.a; regs = list(regs)
        a(f'v_max3_u32 v{t}, v{regs[0]}, v{regs[1]}, v{regs[2 if len(regs) > 2 else 1]}')
        regs = regs[3:]
        while regs:
            x = regs[:2]; regs = regs[2:]
            a(f'v_max3_u32 v{t}, v{t}, v{x[0]}, v{x[-1]}')
        a(f'v_cmp_eq_u32 vcc, -1, v{t}')

    def build(self):
        a = self.a
        a('s_cmp_ge_u32 s2, 256'); a('s_cbranch_scc1 L_end2')
        if self.probe: a('s_memrealtime s[62:63]'); a('s_waitcnt lgkmcnt(0)'); a('s_mov_b32 s60, s62'); a('s_mov_b32 s61, s62')
        a('s_load_dwordx16 s[64:79], s[0:1], 0')
        a('s_load_dwordx8 s[80:87], s[0:1], 64')
        a('s_getreg_b32 s36, hwreg(HW_REG_XCC_ID, 0, 3)')
        a('s_getreg_b32 s38, hwreg(HW_REG_HW_ID, 8, 4)'); a('s_getreg_b32 s37, hwreg(HW_REG_HW_ID, 13, 2)')
        a('v_lshrrev_b32 v1, 6, v0'); a('v_and_b32 v0, 63, v0')
        a('v_readfirstlane_b32 s3, v1')
        a('s_mov_b32 s52, 400000'); a('s_mov_b64 s[6:7], 0')
        if self.fake == 1: a('s_and_b32 s38, s38, 6')
        if self.fake == 2: a('s_and_b32 s36, s36, 5')
        if self.fake == 3: a('s_and_b32 s36, s2, 7'); a('s_lshr_b32 s38, s2, 5'); a('s_mov_b32 s37, 0')
        if self.fake == 4: a('s_mov_b32 s36, 0'); a('s_mov_b32 s38, 0'); a('s_mov_b32 s37, 0')
        if self.fake == 5:
            a('s_bitcmp0_b32 s37, 0'); a('s_cselect_b32 s39, 8, 0'); a('s_cmp_eq_u32 s38, 3'); a('s_cselect_b32 s38, s39, s38')
        a('s_bitcmp0_b32 s37, 0'); a('s_cselect_b32 s39, 8, 0'); a('s_cmp_eq_u32 s38, s39'); a('s_cbranch_scc1 L_odd')
        a.label('L_even')
        a('s_and_b32 s38, s38, 7'); a('s_lshl3_add_u32 s2, s37, s38')
        a.label('L_role')
        a('s_mov_b32 s101, s2'); a('s_and_b32 s100, s36, 3'); a('s_lshl_b32 s100, s100, 6'); a('s_lshr_b32 s38, s36, 2'); a('s_lshl3_add_u32 s100, s38, s100')
        if self.diag:
            a('s_lshl3_add_u32 s61, s2, s36'); a('s_lshl2_add_u32 s61, s61, s3'); a('s_lshl_b32 s61, s61, 8'); a(f's_add_u32 s61, s61, 0x{DOFF:x}')
        if self.cpf:
            a('s_getpc_b64 s[38:39]'); a.label('L_pc')
            a('s_lshl_b32 s37, s2, 2'); a('s_add_u32 s37, s37, s3'); a('s_lshl_b32 s37, s37, 10')
            a('s_cmp_ge_u32 s37, L_end-L_pc'); a('s_cbranch_scc1 L_nopf')
            a('v_lshl_add_u32 v2, v0, 4, s37'); a('v_min_u32 v2, L_end-L_pc-16, v2')
            a('global_load_dwordx4 v[60:63], v2, s[38:39]')
            a.label('L_nopf')
        a('s_cmp_eq_u32 s36, 0'); a('s_cbranch_scc1 L_chain')
        self.role = 'S'; self.stream()
        a.label('L_chain'); self.role = 'C'
        self.chain_common()
        self.role = 'W'; self.roleW(); self.role = 'O'; self.roleOQ(); self.role = 'F'; self.roleF()
        self.rare_paths()
        a.label('L_bail')
        a('s_mov_b64 exec, 1')
        a('v_mov_b32 v0, 32'); a('v_mov_b32 v1, 1')
        a(f'global_atomic_add v0, v1, {DBG} sc1')
        a('v_mov_b32 v0, 36'); a('v_mov_b32 v1, s2')
        a(f'global_store_dword v0, v1, {DBG} sc1')
        a.label('L_end')
        if self.probe:
            a('s_cmp_eq_u32 s60, s61'); a('s_cbranch_scc1 L_end2')
            a('s_sub_u32 s61, s61, s60'); a(f's_mul_i32 s61, s61, {self.pmul}'); a('s_add_u32 s61, s61, 7000'); a('s_add_u32 s61, s61, s60')
            a.label('L_pspin')
            a('s_memrealtime s[62:63]'); a('s_waitcnt lgkmcnt(0)'); a('s_sub_u32 s62, s62, s61'); a('s_cmp_lt_i32 s62, 0'); a('s_cbranch_scc1 L_pspin')
        a.label('L_end2')
        body = a.finish()
        hdr = open('cdna_kernels/' + NAME + '.s.ref').read().split('\n')
        top = [l for l in hdr if l.startswith(';') and '@launch' not in l]
        s = '\n'.join(top) + '\n; @launch grid=(256,1,1) block=(256,1,1) lds=163840\n'
        s += f'.amdgcn_target "amdgcn-amd-amdhsa--gfx950"\n.text\n.globl {NAME}_kernel\n.p2align 8\n.type {NAME}_kernel,@function\n{NAME}_kernel:\n'
        s += body
        s += f'''s_endpgm
.section .rodata,"a"
.p2align 6
.amdhsa_kernel {NAME}_kernel
  .amdhsa_next_free_vgpr 512
  .amdhsa_next_free_sgpr 102
  .amdhsa_accum_offset 256
  .amdhsa_group_segment_fixed_size 0
  .amdhsa_kernarg_size 96
  .amdhsa_user_sgpr_count 2
  .amdhsa_user_sgpr_kernarg_segment_ptr 1
  .amdhsa_system_sgpr_workgroup_id_x 1
.end_amdhsa_kernel
'''
        return s

    CA = [0, 4096]; Q1L = 8192; MA = [10240, 10272]; CO = [10304, 10308]; MA1 = [10240, 10336]; ST = 10496; TB = 11520; WLDS = 37 * 1024
    vK, vV, vDs, vL16, vQo, vIQ, vIP = 1, 2, 3, 4, 5, 6, 7
    vM = 8; vT = 12; vBias = 15; vMC = 16; vL = 17; vQ = 24; vAcc = 32; vH = 48
    def kreg(self, s, u):
        return 64 + 96 * s + 16 * u if u < 6 else 256 + 128 * s + 16 * (u - 6)
    def vreg0(self, s, P, t):
        return 256 + 128 * s + 64 + 8 * (4 * P + t)
    def tile(self, n):
        if n < 40:
            u, t = n // 4, n % 4
            return 0, u // 2, t * 128 + (u & 1) * 512
        m = n - 40; g = m // 8; k = m % 8
        if g < 4: P, t = k // 4, k % 4
        else: t, P = k // 2, k % 2
        return 1, g, t * 128 + P * 1024
    def ldsslot(self, s, n):
        if n <= 72: return (n - 56) + 17 * s
        return 34 + (n - 73)
    def load(self, s, n, wait=True, skip=None):
        a = self.a
        kv, g, imm = self.tile(n)
        if n == 0 and not self.prologue:
            for j in range(5): a(f's_add_u32 s{40+j}, s{40+j}, 0x2000000')
            if self.sub is not None and s == 0:
                for j in range(5): a(f's_xor_b32 s{40+j}, s{40+j}, 0x4000')
                a('s_lshl_b32 s90, s50, 9'); a('s_add_u32 s90, s90, s44')
            else: a('s_add_u32 s90, s90, 0x2000000')
            a('s_mov_b32 s94, s90')
        l = None
        if skip is not None:
            l = self.lab('L_sk'); a(f's_cmp_eq_u32 s49, {skip}'); a(f's_cbranch_scc1 {l}')
        va = f'v{self.vV if kv else self.vK}'; srd = V_SRD if kv else K_SRD
        if g == 4: srd = V4 if kv else K4
        dst = None
        if n < 40: dst = self.kreg(s, n // 4) + 4 * (n % 4)
        elif n < 56:
            m = n - 40; dst = self.vreg0(s, (m % 8) // 4, m % 4) + 4 * (m // 8)
        elif n >= 76: dst = (self.kreg(1 - s, 1) if self.fast else self.vH) + 4 * (n - 76)
        if dst is None:
            a(f's_add_u32 m0, s45, {self.ldsslot(s, n) * 1024 - imm}')
        depth = self.lv[-1] if self.dyn else self.depth
        def allow(d):
            if not self.kvonly: return d - 1 if len(self.vmq) >= d else None
            pos = [i for i, x in enumerate(reversed(self.vmq)) if x[0] != 'cp']
            return pos[d - 1] if len(pos) >= d else None
        if wait and self.dyn:
            lows = [allow(d) for d in self.lv[:-1] if allow(d) is not None]
            labs = [self.lab('L_lv') for _ in lows]
            for i in reversed(range(len(lows))):
                a(f's_cmp_gt_u32 s59, {i}'); a(f's_cbranch_scc1 {labs[i]}')
            for i, k in enumerate(lows):
                a(f's_waitcnt vmcnt({k})'); a.label(labs[i])
        if wait and allow(depth) is not None:
            k = allow(depth)
            a(f's_waitcnt vmcnt({k})'); self.vmq = self.vmq[-k:]
        if dst is None:
            a(f'buffer_load_dwordx4 {va}, {srd}, s{40+g} offen offset:{imm} {self.vpol if kv else self.kpol} lds')
        else:
            a(f'buffer_load_dwordx4 {rr(dst, 4)}, {va}, {srd}, s{40+g} offen offset:{imm} {self.vpol if kv else self.kpol}')
        self.vmq.append((s, n))
        if l: a.label(l)
    def need_vm(self, tag):
        if tag in self.vmq:
            k = len(self.vmq) - 1 - self.vmq.index(tag)
            if self.xst:
                l = self.lab('L_xs'); self.a('s_cmp_lg_u32 s58, 0'); self.a(f's_cbranch_scc1 {l}')
                self.a(f's_waitcnt vmcnt({k})'); self.a.label(l); self.a(f's_waitcnt vmcnt({k + self.xst})')
            else: self.a(f's_waitcnt vmcnt({k})')
            self.vmq = self.vmq[len(self.vmq) - k:] if k else []
    def ds(self, text, tag=None):
        self.a(text); self.lq.append(tag)
    def need_lds(self, tag):
        if tag in self.lq:
            i = len(self.lq) - 1 - self.lq[::-1].index(tag)
            k = len(self.lq) - 1 - i
            k = min(k, 15)
            self.a(f's_waitcnt lgkmcnt({k})'); self.lq = self.lq[len(self.lq) - k:] if k else []
    def qload(self):
        a = self.a
        a(f'buffer_load_dwordx4 {vr(self.vQ, 4)}, v{self.vQo}, {WS}, s46 offen sc1')
        a(f'buffer_load_dwordx4 {vr(self.vQ + 4, 4)}, v{self.vQo}, {WS}, s46 offen offset:256 sc1')
    def zero_acc(self):
        return [f'v_mov_b64 {vr(self.vAcc + 2 * i, 2)}, 0' for i in range(8)]

    def stream(self):
        a = self.a
        self.vmq = []; self.lq = []; self.prologue = True
        assert self.CL > self.depth
        if self.thr: a(f's_cmp_eq_u32 s36, {self.fx}'); a(f's_cselect_b32 s99, {self.thr[1]}, 0')
        if len(self.rows) == 2:
            RE, RL = self.rows
            assert 24 * RE + 32 * RL == 512 and max(RE, RL) <= 16
            a('s_sub_u32 s36, s36, 1'); a('s_lshl_b32 s36, s36, 5'); a('s_add_u32 s2, s36, s2')
            a('s_mul_i32 s36, s2, 10923'); a('s_lshr_b32 s36, s36, 16'); a('s_mul_i32 s37, s36, 6'); a('s_sub_u32 s37, s2, s37')
            a('s_sub_u32 s38, s2, 96'); a('s_and_b32 s39, s38, 7'); a('s_add_u32 s39, s39, 6'); a('s_lshr_b32 s38, s38, 3')
            a('s_cmp_lt_u32 s2, 96'); a('s_cselect_b32 s36, s36, s38'); a('s_cselect_b32 s37, s37, s39')
            a(f's_cselect_b32 s50, {RE}, {RL}'); a(f's_cselect_b32 s51, 0, {24 * (RE - RL)}')
        else:
            if self.sub is not None: self.sub_map()
            else:
                R2, RE, RL = self.rows
                assert R2 + 2 * RE + 4 * RL == 64 and max(self.rows) <= 16
                a('s_lshr_b32 s38, s36, 1'); a('s_and_b32 s39, s36, 3'); a(f's_mov_b32 s51, {8 * R2 + 16 * RE - 24 * RL}')
                a('s_cmp_lt_u32 s36, 4'); a('s_cselect_b32 s38, s38, s39'); a('s_cselect_b32 s39, 2, 3'); a('s_cselect_b32 s37, 2, 6')
                a(f's_cselect_b32 s50, {RE}, {RL}'); a(f's_cselect_b32 s51, {8 * (R2 - RE)}, s51')
                a('s_cmp_eq_u32 s36, 2'); a('s_cselect_b32 s38, 0, s38'); a('s_cselect_b32 s39, 1, s39'); a('s_cselect_b32 s37, 0, s37')
                a(f's_cselect_b32 s50, {R2}, s50'); a('s_cselect_b32 s51, 0, s51')
                a('s_lshl_b32 s38, s38, 5'); a('s_add_u32 s2, s38, s2'); a('s_lshr_b32 s36, s2, s39')
                a('s_lshl_b32 s38, s36, s39'); a('s_sub_u32 s38, s2, s38'); a('s_add_u32 s37, s37, s38')
        a('s_lshl_b32 s39, s37, 2'); a('s_add_u32 s39, s39, s3'); a('s_lshl_b32 s38, s39, 13')
        a('s_lshl_b32 s44, s36, 21'); a('s_add_u32 s40, s44, s38')
        if self.sub is not None:
            a(f's_xor_b32 s38, s36, {self.par}'); a('s_and_b32 s38, s38, 1'); a('s_lshl_b32 s38, s38, 13'); a('s_add_u32 s44, s44, s38')
            if self.sub: a('s_bitset1_b32 s44, 14')
            a('s_lshl_b32 s38, s32, 11'); a('s_and_b32 s38, s38, 0x2000'); a('s_xor_b32 s40, s44, s38')
            a('s_lshl_b32 s38, s32, 14'); a('s_and_b32 s38, s38, 0x4000'); a('s_xor_b32 s40, s40, s38')
            a('s_lshl_b32 s38, s33, 15'); a('s_add_u32 s40, s40, s38')
        elif self.par is not None:
            a(f's_xor_b32 s38, s36, {self.par}'); a('s_and_b32 s38, s38, 1'); a('s_lshl_b32 s38, s38, 13'); a('s_add_u32 s44, s44, s38')
            a('s_xor_b32 s40, s44, 0x2000'); a('s_sub_u32 s38, s39, 24')
            a('s_cmp_lt_u32 s39, 24'); a('s_cselect_b32 s40, s44, s40'); a('s_cselect_b32 s38, s39, s38'); a('s_cselect_b32 s33, 24, 32'); a('s_lshl_b32 s33, s33, 14')
            a('s_lshl_b32 s38, s38, 14'); a('s_add_u32 s40, s40, s38')
        self.bits(f'v{self.vK}', 'v0', 'v18', [(0, 1, 4), (4, 2, 5), (2, 1, 10), (1, 1, 11), (3, 1, 12)])
        a(f's_lshl_b32 s47, s36, 15'); a('s_lshl_b32 s38, s37, 10'); a('s_and_b32 s48, s38, 0x2000'); a('s_add_u32 s38, s38, s48')
        a('s_add_u32 s47, s47, s38'); a(f's_add_u32 s47, s47, 0x{POFF:x}')
        a('s_lshl_b32 s48, s37, 7'); a('s_sub_u32 s48, s48, s38'); a(f's_add_u32 s48, s48, {MLO}')
        a(f'v_lshlrev_b32 v{self.vL16}, 4, v0')
        self.claim(22, 23, 24)
        self.srd(8, 66, 0x8000000)
        N0 = 8
        for n in range(min(N0, self.depth)): self.load(0, n)
        for j in range(1, 4):
            if self.sub is not None: a(f's_add_u32 s{40+j}, s{39+j}, 0x80000'); a(f's_xor_b32 s{40+j}, s{40+j}, 0x4000')
            elif self.par is None: a(f's_add_u32 s{40+j}, s40, {j * NW * 8192}')
            else: a(f's_add_u32 s{40+j}, s{39+j}, s33')
        a('s_mul_i32 s38, s39, s50'); a('s_add_u32 s38, s38, s51')
        if self.sub is not None:
            assert all(16 % r == 0 for r in self.rows)
            a('s_bfe_u32 s33, s38, 0x30004'); a('s_lshl_b32 s33, s33, 15'); a('s_add_u32 s44, s44, s33')
            a('s_lshr_b32 s33, s38, 7'); a('s_lshl_b32 s33, s33, 19'); a('s_add_u32 s44, s44, s33')
            a('s_lshr_b32 s33, s33, 5'); a('s_and_b32 s33, s33, 0x4000'); a('s_xor_b32 s44, s44, s33')
            a('s_and_b32 s38, s38, 15'); a(f's_sub_u32 s44, s44, {4 * NW * 8192 - 8 * 32768}')
        elif self.par is not None:
            assert all(16 % r == 0 for r in self.rows)
            a('s_andn2_b32 s33, s38, 15'); a('s_add_u32 s38, s38, s33'); a(f's_sub_u32 s44, s44, {4 * NW * 8192 - 96 * 16384}')
        a('s_lshl_b32 s38, s38, 9')
        a(f's_add_u32 s44, s44, {4 * NW * 8192}'); a('s_add_u32 s44, s44, s38')
        self.srd(88, 66, 0); self.srd(92, 68, 0)
        a('s_lshl_b32 s38, s50, 9'); a('s_add_u32 s90, s44, s38'); a('s_mov_b32 s94, s90')
        self.srd(12, 68, 0x8000000); self.srd(16, 86, 0x20000000)
        if self.tlb: a('s_load_dword s34, s[68:69], s40')
        self.stamp(0)
        self.bits(f'v{self.vV}', 'v0', 'v18', [(0, 3, 4), (5, 1, 9), (4, 1, 11), (3, 1, 12)])
        a(f's_mul_i32 s45, s3, {self.WLDS}'); a(f's_add_u32 s45, s45, {self.TB}')
        a(f'v_add_u32 v{self.vDs}, s45, v{self.vL16}')
        self.bits(f'v{self.vQo}', 'v0', 'v18', [(0, 2, 4), (4, 2, 6)])
        a('v_and_b32 v18, 2, v0'); a('v_cmp_eq_u32 vcc, 2, v18')
        a(f'v_mov_b32 v{self.vIQ}, 0x44444444'); a('v_mov_b32 v18, 0xeeeeeeee'); a(f'v_cndmask_b32 v{self.vIQ}, v{self.vIQ}, v18, vcc')
        a('v_and_b32 v18, 3, v0'); a('s_mov_b32 s38, 0x55555555'); a(f'v_mul_lo_u32 v{self.vIP}, v18, s38')
        a('v_and_b32 v18, 4, v0'); a('v_cmp_eq_u32 vcc, 4, v18')
        a('v_mov_b32 v18, 0xffff'); a('v_mov_b32 v19, 0xffff0000')
        M = self.vM
        a(f'v_cndmask_b32 v{M}, v18, 0, vcc'); a(f'v_cndmask_b32 v{M+1}, 0, v18, vcc')
        a(f'v_cndmask_b32 v{M+2}, v19, 0, vcc'); a(f'v_cndmask_b32 v{M+3}, 0, v19, vcc')
        self.bits('v18', 'v0', 'v19', [(4, 1, 0), (2, 1, 1), (1, 1, 2), (3, 1, 3), (5, 1, 4)])
        a('v_cmp_gt_u32 vcc, s50, v18'); a('v_mov_b32 v19, 0xff800000'); a(f'v_mov_b32 v{self.vT+2}, 0')
        a(f'v_cndmask_b32 v{self.vBias}, v19, 0, vcc')
        a('s_lshl_b32 s46, s3, 4'); a('s_add_u32 s46, s46, s36'); a('s_lshl_b32 s46, s46, 9')
        a('s_mov_b32 s49, 0'); a(f's_mov_b32 s51, 0x{f2u(CS):x}')
        a(f's_mov_b32 s53, {self.Q1L}'); a('s_lshl_b32 s54, s3, 10'); a('s_lshl_b32 s55, s3, 3')
        a('s_lshl_b32 s56, s36, 9'); a(f's_add_u32 s56, s56, 0x{QOFF + 3 * 8192:x}')
        a('v_mov_b32 v18, 0'); a('v_mov_b32 v19, 0')
        a(f'ds_write_b64 v18, v[18:19] offset:{self.CO[0]}')
        for n in range(self.depth, N0): self.load(0, n, wait=(n < N0 - 1))
        self.prologue = False
        if self.lv:
            mid = self.lv.index(self.depth) if self.mid is None else self.mid
            a(f's_mov_b32 s59, {mid}')
            if self.cps:
                if self.gs == 14: a('s_and_b32 s24, s101, 15'); a('s_lshl2_add_u32 s24, s24, s3')
                elif self.gs == 28: a('s_and_b32 s24, s101, 7'); a('s_lshl2_add_u32 s24, s24, s3')
                else: a('s_lshl2_add_u32 s24, s101, s3')
                a('s_lshl_b32 s24, s24, 8'); a('s_add_u32 s24, s24, 0x60000')
                a(f's_mov_b32 s20, 0x{OOB:x}'); a(f's_mov_b32 s21, {-self.th[mid - 1]}'); a('s_mov_b32 s22, 0')
            if self.slow:
                a('s_getreg_b32 s38, hwreg(HW_REG_XCC_ID, 0, 3)'); a(f's_bitcmp1_b32 {self.slow[3]}, s38'); a(f's_cselect_b32 s59, {self.slow[0]}, s59')
            if self.odd:
                a('s_or_b32 s38, s6, s7'); a(f's_cselect_b32 s59, {len(self.lv) - 1}, s59')
                if self.cps: a(f's_cselect_b32 s21, {-self.th[-1]}, s21')
            if self.lvx == 1: a('s_and_b32 s59, s101, 1'); a(f's_mul_i32 s59, s59, {len(self.lv) - 1}')
            if self.lvx == 2: a('s_and_b32 s59, s3, 1'); a(f's_mul_i32 s59, s59, {len(self.lv) - 1}')
        if self.fast:
            N0 = sum(self.fld); self.vmq = self.vmq[:N0]
        entry_vmq = list(self.vmq)
        nQ, nE = self.nQ, self.nE
        a('s_lshl_b32 s57, s3, 8'); a(f's_add_u32 s57, s57, {self.ST}'); a('s_mov_b32 s58, 0')
        early = {}
        if self.fast: a('s_branch L_A8')
        for s in range(2):
            a.label(f'L_A{s}')
            assert [(x[0] ^ s, x[1]) for x in self.vmq] == entry_vmq, (self.vmq, entry_vmq)
            self.lq = []
            n = N0; self.dyn = bool(self.lv) and not self.boost
            while n < 73:
                if self.fast and s == 0 and n == 8:
                    assert self.vmq == [(0, i) for i in range(8)], self.vmq
                    a.label('L_A8')
                if self.slow and (s, n) == tuple(self.slow[1:3]): a(f's_mov_b32 s59, {mid}')
                if self.boost and s == 1 and n >= self.boost[0] and not self.dyn:
                    a('s_cmp_eq_u32 s49, 3'); a('s_cselect_b32 s59, 1, 0'); self.dyn = True
                for i, (c0, c1) in enumerate(self.cps):
                    r = 16 + i % 2
                    if n == c1:
                        self.need_vm(('cp', i))
                        a(f'v_readfirstlane_b32 s38, v{r}'); a(f's_sub_u32 s38, s38, s{25 + i % 2}'); a('s_mov_b32 s59, 0')
                        for t in self.th: a(f's_cmp_ge_i32 s38, {t}'); a('s_addc_u32 s59, s59, 0')
                        if self.diag and self.ed and i < 6:
                            a('s_lshl_b32 s60, s49, 2'); a('s_add_u32 s60, s60, s61'); a(f'v_mov_b32 v{r}, s38')
                            a('s_mov_b64 exec, 1'); a(f'buffer_store_dword v{r}, off, {WS}, s60 offset:{(40 + 4 * i) * 4}'); a('s_mov_b64 exec, -1')
                for i, (c0, c1) in enumerate(self.cps):
                    r = 16 + i % 2
                    if n == c0:
                        assert not (c0 <= nQ + 3 and c1 > nQ) and c1 < 73
                        a(f'v_mov_b32 v{r}, 1'); a(f's_mov_b32 s{25 + i % 2}, s21'); a('s_add_u32 s21, s21, s22')
                        a('s_mov_b64 exec, 1'); a(f'buffer_atomic_add v{r}, off, {WS}, s20 sc0 sc1'); a('s_mov_b64 exec, -1')
                        self.vmq.append(('cp', i))
                if n == (self.nQ1 if s else nQ):
                    if s == 0:
                        a('s_cmp_eq_u32 s49, 0'); a('s_cbranch_scc1 L_st0'); st_in = list(self.vmq)
                    self.need_vm((s, 39))
                    a.label(f'L_QK{s}')
                    n = self.qk1(s, n)
                    if s == 0:
                        a('s_cmp_eq_u32 s49, 0'); a('s_cbranch_scc1 L_PV0')
                        a.label('L_st0r'); st_out = list(self.vmq); st_n = n
                    for z in self.zero_acc(): a(z)
                    if self.early and not self.qE: self.qload(); self.vmq += ['q0', 'q1']
                    continue
                if self.early and n == self.qE: self.qload(); self.vmq += ['q0', 'q1']
                if n == nE and self.early:
                    self.need_vm('q1')
                    if s == 0: a('s_cmp_eq_u32 s49, 0'); a('s_cbranch_scc1 L_noE')
                    self.maxtree(range(self.vQ, self.vQ + 8), 18)
                    a(f's_cbranch_vccz L_E{s}')
                    if s == 0: a.label('L_noE')
                    early[s] = list(self.vmq)
                self.load(s, n)
                if s == 0 and n in (self.CL, self.CL + self.depth + 4):
                    l = self.lab('L_it0')
                    a('s_cmp_lg_u32 s49, 0'); a(f's_cbranch_scc1 {l}')
                    if self.lv: a(f's_waitcnt vmcnt({self.depth})')
                    if n == self.CL:
                        self.confirm(24, 20)
                        a('v_lshl_add_u32 v18, v0, 19, s48'); a('v_mov_b64 v[20:21], -1'); a('v_mov_b64 v[22:23], -1')
                        a('s_lshl_b32 s38, s3, 20'); a('s_add_u32 s38, s38, s47')
                        a.label('L_arm')
                        a(f's_add_u32 s39, s38, {PP2}')
                        a(f'buffer_store_dwordx4 v[20:23], v{self.vL16}, {WS}, s38 offen sc1')
                        a(f'buffer_store_dwordx4 v[20:23], v{self.vL16}, {WS}, s39 offen sc1')
                        a('s_mov_b64 exec, 3')
                        a(f'buffer_store_dwordx2 v[20:21], v18, {WS}, s38 offen sc1')
                        a('s_mov_b64 exec, -1')
                        if self.home:
                            a(f's_add_u32 s39, s47, {3 * PIB + 0x2000}'); a('s_cmp_eq_u32 s38, s47'); a('s_mov_b32 s38, s39'); a('s_cbranch_scc1 L_arm')
                        self.stamp(30, None, 24)
                    else:
                        a('s_barrier'); self.signal(22, 23, self.CNTB, 1); self.stamp(31)
                    a.label(l)
                if s == 0 and n == max(self.PF - 8, nE):
                    a('v_mov_b32 v22, 0'); a(f'global_load_dword v23, v22, {DBG} offset:{self.CNTA} sc1'); self.vmq.append('cnt')
                if n == self.PF:
                    if s == 0:
                        self.stamp(22, 's49')
                        assert 'cnt' in self.vmq
                        self.need_vm('cnt'); self.wait_counter(22, 23, 21, self.CNTA, NCHAIN, pre=True)
                        if self.cps and not self.cpon:
                            a('s_mov_b32 s20, s24'); a(f's_mov_b32 s22, {self.gs}'); a('s_cmp_eq_u32 s49, 0'); a('s_cselect_b32 s21, -1, s21')
                    self.qload(); self.vmq += ['q0', 'q1']
                n += 1
            if self.pos:
                a('s_add_u32 s59, s40, 0x2000000'); a(f's_add_u32 s32, s59, {self.pos[0] * NW * 8192}'); a(f'v_lshlrev_b32 v19, 3, v{self.vL16}')
            self.dyn = False
            self.need_vm('q1')
            self.stamp(1, 's49')
            a.label(f'L_X{s}')
            self.maxtree(range(self.vQ, self.vQ + 8), 18)
            a(f's_cbranch_vccz L_Xok{s}')
            a.label(f'L_Xpoll{s}')
            if self.rs is not None: a(f's_mov_b32 s59, {self.rs}')
            self.timeout()
            self.qload()
            if self.pos:
                a('s_cmp_lt_u32 s59, s32'); a(f's_cbranch_scc0 L_Xw{s}')
                a(f's_mov_b32 m0, {self.TB + 4 * self.WLDS}')
                for i in range(self.pos[2]):
                    a(f'buffer_load_dword v19, {K_SRD}, s59 offen {self.pos[1]} lds'); a(f's_add_u32 s59, s59, {NW * 8192}')
                a(f's_waitcnt vmcnt({self.pos[2]})'); a(f's_branch L_X{s}')
                a.label(f'L_Xw{s}')
            a('s_waitcnt vmcnt(0)')
            a(f's_branch L_X{s}')
            a.label(f'L_Xok{s}')
            self.stamp(6, 's49')
            if s == 0:
                a('s_cmp_eq_u32 s49, 0'); a('s_cbranch_scc1 L_first')
                if self.early: a('s_cmp_eq_u32 s58, 4'); a('s_cbranch_scc1 L_E0b')
            save = list(self.vmq)
            if self.fast:
                self.pass2(s, {('u', u): ns for u, ns in self.fast})
                if self.diag: a('s_memrealtime s[4:5]')
                if s == 0:
                    a('s_cmp_eq_u32 s49, 4'); a('s_cbranch_scc1 L_fin')
                    after = list(self.vmq)
                a.label(f'L_PV{s}')
                self.pv1f(s)
                if self.diag: self.stamp(11, 's49', src='s4')
            else:
                self.pass2(s, {('u', 4): [73], ('u', 9): [74], ('i', 0): [75], ('i', 2): [76]})
                self.stamp(11, 's49')
                if s == 0:
                    a('s_cmp_eq_u32 s49, 4'); a('s_cbranch_scc1 L_end')
                    after = list(self.vmq)
                a.label(f'L_PV{s}')
                self.pv1(s, 77, False)
                self.stamp(16, 's49')
            a('s_add_u32 s49, s49, 1'); a(f's_add_u32 s47, s47, {PIB}'); a('s_add_u32 s53, s53, 512')
            a('s_add_u32 s56, s56, 8192'); a('s_mov_b32 s46, s56')
            if self.odd and (self.odd & 1) != s and self.odd != self.cpon:
                a(f's_cmp_eq_u32 s49, {self.odd}'); a(f's_cselect_b32 s59, {mid}, s59')
                if self.cps: assert self.odd < self.cpon; a(f's_cselect_b32 s21, {-self.th[mid - 1]}, s21')
            if self.cps and self.cpon and (self.cpon & 1) != s:
                a(f's_cmp_eq_u32 s49, {self.cpon}'); a('s_cselect_b32 s20, s24, s20'); a(f's_cselect_b32 s22, {self.gs}, s22'); a('s_cselect_b32 s21, -1, s21')
            if s == 0: first_save, first_after = save, after
        a('s_cmp_lg_u32 s49, 4'); a('s_cbranch_scc1 L_A0')
        for z in self.zero_acc(): a(z)
        if self.pos: a('s_mov_b32 s32, 0')
        a('s_branch L_Xpoll0')
        a.label('L_first')
        self.vmq = first_save
        a('s_lshl_b32 s38, s3, 9'); a(f'v_add_u32 v18, s38, v{self.vQo}')
        a(f'ds_write_b128 v18, {vr(self.vQ, 4)} offset:{self.Q1L}')
        a(f'ds_write_b128 v18, {vr(self.vQ + 4, 4)} offset:{self.Q1L + 256}')
        for n in range(73, 80 if self.fast else 77): self.load(0, n, wait=not self.fast)
        assert self.vmq == first_after, (self.vmq, first_after)
        a('s_waitcnt lgkmcnt(0)'); a('s_barrier')
        a('s_branch L_QK0')
        if self.fast:
            a.label('L_fin'); self.stamp(11, 's49'); a('s_branch L_end')
        a.label('L_st0')
        self.vmq = st_in; self.dyn = bool(self.lv) and not self.boost; self.need_vm((0, 39))
        for n in range(nQ, st_n): self.load(0, n)
        self.dyn = False
        assert self.vmq == st_out, (self.vmq, st_out)
        a('s_branch L_st0r')
        for s in early:
            a.label(f'L_E{s}')
            self.vmq = early[s]; self.lq = []
            self.stamp(1, 's49'); self.stamp(6, 's49'); self.stamp(32, 's49')
            if s == 0:
                a('s_mov_b32 s58, 4'); a.label('L_E0b')
            pts = [('u', 1), ('u', 5), ('u', 9), ('x', 0), ('i', 0), ('i', 2), ('i', 4)]
            assert nE + len(pts) <= 73
            self.pass2(s, {p: [nE + i] for i, p in enumerate(pts)})
            self.stamp(11, 's49')
            if s == 0: a('s_cmp_eq_u32 s49, 4'); a('s_cbranch_scc1 L_end')
            self.pv1(s, nE + len(pts), True)

    def sub_map(self):
        a = self.a
        R2, RE, RL = self.rows
        assert R2 + 2 * RE + 4 * RL == 64 and max(self.rows) <= 16
        a('s_mov_b32 s32, s36')
        a('s_bfe_u32 s38, s36, 0x10001'); a('s_and_b32 s37, s36, 1'); a('s_lshl2_add_u32 s37, s37, 6'); a(f's_mov_b32 s51, {8 * R2 + 16 * RE - 24 * RL}')
        a('s_cmp_lt_u32 s36, 4'); a('s_cselect_b32 s37, 2, s37')
        a(f's_cselect_b32 s50, {RE}, {RL}'); a(f's_cselect_b32 s51, {8 * (R2 - RE)}, s51')
        a('s_cmp_eq_u32 s36, 2'); a('s_cselect_b32 s38, 0, s38'); a('s_cselect_b32 s39, 1, 2'); a('s_cselect_b32 s37, 0, s37')
        a(f's_cselect_b32 s50, {R2}, s50'); a('s_cselect_b32 s51, 0, s51')
        a('s_lshl_b32 s38, s38, 5'); a('s_add_u32 s2, s38, s2'); a('s_lshr_b32 s36, s2, s39')
        a('s_lshl_b32 s38, s36, s39'); a('s_sub_u32 s38, s2, s38'); a('s_add_u32 s37, s37, s38')
        a('s_lshl2_add_u32 s33, s38, s3')
    def qk_part(self, ds_, hook, zero=True):
        a = self.a; T = self.vT; Q = self.vQ; AC = self.vAcc
        def post_a(u):
            ac = AC + 4 * (u % 4); t = 18 + 2 * (u % 2)
            a(f'v_add_f32 v{t+1}, v{ac+1}, v{ac+3}'); a(f'v_add_f32 v{t}, v{ac}, v{ac+2}')
        def post_b(u):
            t = 18 + 2 * (u % 2)
            a(f'v_add_f32_dpp v{T + u // 4}, v{t+1}, v{t} quad_perm:[1,1,3,3] row_mask:0x{1 << (u % 4):x} bank_mask:0xf')
        for u in range(10):
            ac = AC + 4 * (u % 4); k = self.kreg(ds_, u)
            a(f'v_smfmac_f32_16x16x64_bf16 {vr(ac, 4)}, {vr(Q, 4)}, {rr(k, 8)}, v{self.vIQ}')
            if u >= 3: post_a(u - 3)
            a(f'v_smfmac_f32_16x16x64_bf16 {vr(ac, 4)}, {vr(Q + 4, 4)}, {rr(k + 8, 8)}, v{self.vIQ}')
            if u >= 3: post_b(u - 3)
            hook(('u', u))
        zf = [f'v_mov_b32 v{AC + r}, 0' for r in list(range(8, 16)) + list(range(8))] if zero else []
        def Z(n=2):
            for _ in range(n):
                if zf: a(zf.pop(0))
        post_a(7); Z(1); post_b(7); Z(3); post_a(8); Z(1); post_b(8); Z(2); post_a(9); Z(1); post_b(9)
        m = self.vMC; t = 18
        a(f'v_sub_f32 v{T+2}, v{T+2}, v{T+1}'); a(f'v_sub_f32 v{T+1}, v{T+1}, v{T}')
        a(f'v_add_f32 v{T+2}, v{self.vBias}, v{T+2}')
        a(f'v_max3_f32 v{m}, v{T}, v{T+1}, v{T+2}'); Z()
        a(f'v_max_f32_dpp v{m}, v{m}, v{m} quad_perm:[2,3,0,1] {FULL}'); Z()
        a(f'v_max_f32_dpp v{m}, v{m}, v{m} row_ror:4 {FULL}'); Z()
        a(f'v_max_f32_dpp v{t}, v{m}, v{m} row_ror:8 {FULL}')
        a(f'v_max_f32_dpp v{m}, v{m}, v{m} row_ror:8 {FULL}'); Z()
        a(f'v_permlane16_swap_b32 v{m}, v{t}'); a(f'v_max_f32 v{t+1}, v{m}, v{t}'); a(f'v_max_f32 v{m}, v{m}, v{t}'); Z(8)
        a(f'v_permlane32_swap_b32 v{m}, v{t+1}'); a(f'v_max_f32 v{m}, v{m}, v{t+1}')
        a(f'v_mul_f32 v{m}, s51, v{m}')
        for k in (0, 2, 1): a(f'v_fma_f32 v{T+k}, v{T+k}, s51, -v{m}')
        for k in (0, 2, 1): a(f'v_exp_f32 v{T+k}, v{T+k}')
        hook(('x', 0))
    def pack(self, k):
        T = self.vT
        o = [f'v_mov_b32_dpp v18, v{T+k} quad_perm:[0,0,0,0] {FULL}',
             f'v_mov_b32_dpp v19, v{T+k} quad_perm:[2,2,2,2] {FULL}',
             f'v_cvt_pk_bf16_f32 v{20+k}, v18, v19']
        if k == 2: o += [f'v_mov_b32_dpp v0, v22 row_shl:4 {FULL}', 'v_permlane32_swap_b32 v22, v0']
        return o
    def aprep(self, k, P, A):
        pp = 20 + k; M = self.vM
        if P == 0:
            return [f'v_and_b32 v{A}, v{pp}, v{M}', f'v_and_b32 v{A+2}, v{pp}, v{M+2}',
                    f'v_and_b32_dpp v{A+1}, v{pp}, v{M+1} row_shr:4 {FULL} bound_ctrl:0',
                    f'v_and_b32_dpp v{A+3}, v{pp}, v{M+3} row_shr:4 {FULL} bound_ctrl:0']
        return [f'v_and_b32 v{A+1}, v{pp}, v{M+1}', f'v_and_b32 v{A+3}, v{pp}, v{M+3}',
                f'v_and_b32_dpp v{A}, v{pp}, v{M} row_shl:4 {FULL} bound_ctrl:0',
                f'v_and_b32_dpp v{A+2}, v{pp}, v{M+2} row_shl:4 {FULL} bound_ctrl:0']
    def lred(self):
        L = self.vL; T = self.vT
        return [f'v_add_f32 v{L}, v{T}, v{T+1}',
                f'v_add_f32 v{L}, v{T+2}, v{L}',
                f'v_add_f32_dpp v{L}, v{L}, v{L} quad_perm:[2,3,0,1] {FULL}',
                f'v_add_f32_dpp v{L}, v{L}, v{L} row_ror:4 {FULL}',
                f'v_add_f32_dpp v{L}, v{L}, v{L} row_ror:8 {FULL}',
                f'v_mov_b32 v23, v{L}', f'v_permlane16_swap_b32 v{L}, v23', f'v_add_f32 v{L}, v{L}, v23',
                f'v_mov_b32 v23, v{L}', f'v_permlane32_swap_b32 v{L}, v23', f'v_add_f32 v{L}, v{L}, v23']
    def merge(self, t0):
        AC = self.vAcc; o = []
        for r in range(4): o.append(f'v_permlane32_swap_b32 v{AC + 4*t0 + r}, v{AC + 4*t0 + 4 + r}')
        for r in range(4):
            if t0 == 0: o.append(f'v_add_f32_dpp v{AC + r}, v{AC + 4 + r}, v{AC + r} row_ror:8 row_mask:0xf bank_mask:0x3')
            else: o.append(f'v_add_f32_dpp v{AC + r}, v{AC + 8 + r}, v{AC + 12 + r} row_ror:8 row_mask:0xf bank_mask:0xc')
        return o
    def staddr(self):
        return [f'v_lshrrev_b32 v18, 6, v{self.vL16}', 'v_lshl_add_u32 v18, v18, 4, s57']
    def qk1(self, s, n0):
        a = self.a; Q = self.vQ
        a(f'v_add_u32 v18, s53, v{self.vQo}')
        self.ds(f'ds_read_b128 {vr(Q, 4)}, v18', 'q'); self.ds(f'ds_read_b128 {vr(Q + 4, 4)}, v18 offset:256', 'q')
        for z in self.zero_acc(): a(z)
        LP = {('u', 1): n0, ('u', 6): n0 + 1, ('x', 0): n0 + 2}
        sk = 0 if s == 0 else None
        self.need_vm((s, 39)); self.need_lds('q')
        self.qk_part(s, lambda p: self.load(s, LP[p], skip=sk) if p in LP else None, zero=False)
        pk = self.pack(0) + self.pack(2) + self.pack(1); lr = self.lred()
        while pk or lr:
            if lr: a(lr.pop(0))
            if pk: a(pk.pop(0))
        for x in self.staddr(): a(x)
        a('v_mov_b32 v19, s55')
        a('ds_write_b96 v18, v[20:22]')
        a('s_mov_b64 exec, 1')
        a(f'ds_write_b64 v19, {vr(self.vMC, 2)} offset:{self.MA1[s]}')
        a('s_mov_b64 exec, -1')
        self.load(s, n0 + 3, skip=sk)
        return n0 + 4
    def cdst(self, fs, cu0, pi):
        if self.fast and cu0 == 0 and pi >= 2: pi += 2
        return self.kreg(fs, cu0 + pi // 2) + 8 * (pi % 2)
    def copy(self, ds_, fs, cu0, n):
        if n >= 72: pi, half = (n - 72) // 2, (n - 72) % 2
        else: pi, half = 2 + (n - 56) % 8, (n - 56) // 8
        self.ds(f'ds_read_b128 {rr(self.cdst(fs, cu0, pi) + 4 * half, 4)}, v{self.vDs} offset:{self.ldsslot(ds_, n) * 1024}', ('c', n))
    def bop(self, ds_, fs, cu0, U, P, t):
        if U == 0: return self.vreg0(ds_, P, t), []
        if U == 1: return self.cdst(fs, cu0, 2 + 4 * P + t), [('c', 56 + 4 * P + t), ('c', 64 + 4 * P + t)]
        if t < 2: return self.cdst(fs, cu0, t), [('c', 72 + 2 * t), ('c', 73 + 2 * t)]
        if self.fast and cu0: return self.kreg(fs, 1) + 8 * (t - 2), []
        return self.vH + 8 * (t - 2), []
    def pass2(self, s, LP):
        a = self.a; ds_ = 1 - s; Q = self.vQ; AC = self.vAcc
        cplan = {0: [72, 73, 74, 75], 1: [56, 64, 57, 65], 2: [58, 66, 59, 67], 3: [60, 68], 4: [61, 69], 5: [62, 70], 6: [63, 71]}
        if self.fast: cplan = {0: [72, 73, 74, 75], 2: [56, 64, 57, 65], 3: [58, 66, 59, 67], 4: [60, 68], 5: [61, 69], 6: [62, 70], 7: [63, 71]}
        def hook(p):
            if self.fast and p in LP:
                if 73 in LP[p]: self.need_lds(('c', 75))
                l = self.lab('L_sk')
                if s == 0: a('s_cmp_eq_u32 s49, 4'); a(f's_cbranch_scc1 {l}')
                for n in LP[p]: self.load(s, n, wait=False)
                if s == 0: a.label(l)
            if p[0] == 'u':
                for n in cplan.get(p[1], []): self.copy(ds_, ds_, 0, n)
            if self.fast: return
            for n in LP.get(p, []):
                if n == 73: self.need_lds(('c', 75))
                self.load(s, n, skip=4 if s == 0 else None)
        self.qk_part(ds_, hook)
        sets = [(0, 0), (2, 0), (0, 1), (1, 0), (1, 1)]
        lred = self.lred()
        def prep(i):
            k, P = sets[i]
            return (self.pack(k) if P == 0 else []) + self.aprep(k, P, Q + 4 * (i % 2))
        for x in prep(0): a(x)
        for i, (k, P) in enumerate(sets):
            fill = prep(i + 1) if i + 1 < len(sets) else []
            if i == len(sets) - 1:
                fill = lred + self.epi_pre(); lred = []
            for t in range(4):
                b, tags = self.bop(ds_, ds_, 0, k, P, t)
                for tg in tags: self.need_lds(tg)
                a(f'v_smfmac_f32_16x16x64_bf16 {vr(AC + 4 * t, 4)}, {vr(Q + 4 * (i % 2), 4)}, {rr(b, 8)}, v{self.vIP}')
                n = (len(fill) + (3 - t)) // (4 - t)
                got = fill[:n]; fill = fill[n:]
                if len(got) < 2 and lred: got.append(lred.pop(0))
                for x in got: a(x)
            hook(('i', i))
        for x in self.merge(0) + self.merge(2): a(x)
        self.epilogue(1, s)
    def epi_pre(self):
        return [f'v_add_u32 v18, s54, v{self.vL16}', 'v_mov_b32 v19, s55', 'v_mov_b32 v20, 1', 'v_mov_b32 v21, 0', 'v_mov_b32 v22, s48']
    def pv1(self, s, n0, early):
        a = self.a; fs = 1 - s; Q = self.vQ; AC = self.vAcc
        nxt = [(s, n) for n in range(n0, 80)] + [(fs, 0)]
        todo = [56, 64, 57, 65, 58, 66, 59, 67, 60, 68, 61, 69, 62, 70, 63, 71]
        def copies(force=None):
            for n in list(todo):
                landed = (s, n) not in self.vmq and (s, n) not in nxt
                if landed or (force and n in force):
                    self.need_vm((s, n)); self.copy(s, fs, 2, n); todo.remove(n)
        def ld(k=1):
            for _ in range(k):
                if nxt: self.load(*nxt.pop(0)); copies()
        def until(n):
            while nxt and ((s, n) in self.vmq or (s, n) in nxt): ld()
        for x in self.staddr(): a(x)
        self.ds('ds_read_b96 v[20:22], v18', 'p')
        for z in self.zero_acc(): a(z)
        copies(); ld()
        self.need_lds('p')
        sets = [(0, 0), (0, 1), (1, 0), (1, 1), (2, 0)]
        prep = lambda i: self.aprep(*sets[i], Q + 4 * (i % 2))
        for x in prep(0): a(x)
        for i, (k, P) in enumerate(sets):
            last = (i == len(sets) - 1)
            if last:
                while nxt: ld()
                if early:
                    a(f's_branch L_J{s}'); return
                a.label(f'L_J{s}')
                self.vmq = ([(s, n) for n in range(80)] + [(fs, 0)])[-self.depth:]; self.lq = []
            else:
                hi = (51 if k == 0 else 67) + 4 * P
                until(hi)
                if k: copies(force=[56 + 4 * P + t + 8 * h for t in range(4) for h in range(2)])
                else: self.need_vm((s, hi))
            fill = self.epi_pre() if last else prep(i + 1)
            for t in range(4):
                b, tags = self.bop(s, fs, 2, k, P, t)
                if last:
                    cp = lambda n: (self.need_vm((s, n)), self.copy(s, fs, 2, n))
                    if t == 0:
                        self.load(fs, 1); cp(72); cp(73)
                        for x in fill: a(x)
                        fill = []
                        self.load(fs, 2); self.load(fs, 3); cp(74); cp(75)
                    if t == 2:
                        self.load(fs, 4)
                        for x in self.merge(0): a(x)
                        self.load(fs, 5); self.need_vm((s, 77))
                    if t == 3:
                        self.load(fs, 6); self.need_vm((s, 79))
                for tg in tags: self.need_lds(tg)
                a(f'v_smfmac_f32_16x16x64_bf16 {vr(AC + 4 * t, 4)}, {vr(Q + 4 * (i % 2), 4)}, {rr(b, 8)}, v{self.vIP}')
                n = (len(fill) + (3 - t)) // (4 - t)
                got = fill[:n]; fill = fill[n:]
                for x in got: a(x)
            if not last: ld()
        self.load(fs, 7, wait=False)
        for x in self.merge(2): a(x)
        self.epilogue(0, s)
    def pv1f(self, s):
        a = self.a; fs = 1 - s; Q = self.vQ; AC = self.vAcc
        self.xst = 4 if (self.home and s == 0) else 2
        for x in self.staddr(): a(x)
        self.ds('ds_read_b96 v[20:22], v18', 'p')
        for n in range(self.fld[0]): self.load(fs, n, wait=False)
        for z in self.zero_acc(): a(z)
        self.need_vm((s, 71))
        for n in [56, 64, 57, 65, 58, 66, 59, 67]: self.copy(s, fs, 2, n)
        self.need_lds('p')
        sets = [(0, 0), (0, 1), (1, 0), (1, 1), (2, 0)]
        prep = lambda i: self.aprep(*sets[i], Q + 4 * (i % 2))
        for x in prep(0): a(x)
        for i, (k, P) in enumerate(sets):
            last = (i == len(sets) - 1)
            fill = self.epi_pre() if last else prep(i + 1)
            if i == 1:
                for n in [60, 68, 61, 69, 62, 70, 63, 71]: self.copy(s, fs, 2, n)
            if i == 2:
                for n in range(self.fld[0], sum(self.fld)): self.load(fs, n, wait=False)
            for t in range(4):
                b, tags = self.bop(s, fs, 2, k, P, t)
                if last:
                    if t == 0:
                        self.need_vm((s, 73)); self.copy(s, fs, 2, 72); self.copy(s, fs, 2, 73)
                        self.need_vm((s, 75)); self.copy(s, fs, 2, 74); self.copy(s, fs, 2, 75)
                        for x in fill: a(x)
                        fill = []
                    if t == 2: self.need_vm((s, 77))
                    if t == 3: self.need_vm((s, 79))
                for tg in tags: self.need_lds(tg)
                a(f'v_smfmac_f32_16x16x64_bf16 {vr(AC + 4 * t, 4)}, {vr(Q + 4 * (i % 2), 4)}, {rr(b, 8)}, v{self.vIP}')
                n = (len(fill) + (3 - t)) // (4 - t)
                got = fill[:n]; fill = fill[n:]
                for x in got: a(x)
        self.xst = 0
        for x in self.merge(0) + self.merge(2): a(x)
        self.epilogue(0, s)
        self.stamp(16, 's49')
        for i in range(8): a(f'v_mov_b64 {vr(self.vH + 2 * i, 2)}, {vr(self.kreg(fs, 1) + 2 * i, 2)}')
    def epilogue(self, p2, s):
        a = self.a; Q = self.vQ; AC = self.vAcc; m = self.vMC; L = self.vL
        CA = self.CA[p2]; MA = self.MA[1] if p2 else self.MA1[s]; CO = self.CO[p2]
        Zr = self.kreg(1 - s, 2)
        a(f'ds_write_b128 v18, {vr(AC, 4)} offset:{CA}')
        a('s_mov_b64 exec, 1')
        if p2: a(f'ds_write_b64 v19, {vr(self.vMC, 2)} offset:{MA}')
        a(f'ds_add_rtn_u32 v20, v21, v20 offset:{CO}')
        a('s_mov_b64 exec, -1')
        a(f'ds_read_b128 {vr(Q, 4)}, v21 offset:{MA}'); a(f'ds_read_b128 {vr(Q + 4, 4)}, v21 offset:{MA + 16}')
        for w in range(4): a(f'ds_read_b128 {vr(Zr + 4 * w, 4)}, v{self.vL16} offset:{CA + 1024 * w}')
        if p2: a(f's_sub_u32 s38, s47, {PIB - PP2}')
        else: a('s_mov_b32 s38, s47')
        dual = self.home and p2 != s
        if dual: a('s_add_u32 s33, s38, 0x2000'); a(f's_cmp_eq_u32 s49, {3 + p2}'); a(f's_cselect_b32 s33, s33, 0x{OOB:x}')
        a('s_waitcnt lgkmcnt(6)')
        a('v_readfirstlane_b32 s39, v20'); a('s_and_b32 s39, s39, 3'); a('s_cmp_eq_u32 s39, 3')
        if self.fast and p2: a('s_cselect_b32 s58, 1, 0')
        l = self.lab('L_nl'); a(f's_cbranch_scc0 {l}')
        a('s_waitcnt lgkmcnt(4)')
        a(f'v_max3_f32 v{m}, v{Q}, v{Q+2}, v{Q+4}'); a(f'v_max_f32 v{m}, v{m}, v{Q+6}')
        for w in range(4): a(f'v_sub_f32 v{Q+2*w}, v{Q+2*w}, v{m}')
        for w in range(4): a(f'v_exp_f32 v{Q+2*w}, v{Q+2*w}')
        a(f'v_mul_f32 v{L}, v{Q}, v{Q+1}')
        for w in range(1, 4): a(f'v_fmac_f32 v{L}, v{Q+2*w}, v{Q+2*w+1}')
        a(f'v_min_u32 v{m}, -2, v{m}'); a(f'v_min_u32 v{L}, -2, v{L}')
        a('s_mov_b64 exec, 1')
        a(f'buffer_store_dwordx2 {vr(m, 2)}, v22, {WS}, s38 offen sc1')
        if dual: a(f'buffer_store_dwordx2 {vr(m, 2)}, v22, {WS}, s33 offen sc1')
        a('s_mov_b64 exec, -1')
        a('s_waitcnt lgkmcnt(0)')
        for w in range(4):
            for hf in range(2):
                if w == 0: a(f'v_pk_mul_f32 {vr(AC + 2*hf, 2)}, {vr(Zr + 2*hf, 2)}, {vr(Q, 2)} op_sel_hi:[1,0]')
                else: a(f'v_pk_fma_f32 {vr(AC + 2*hf, 2)}, {vr(Zr + 4*w + 2*hf, 2)}, {vr(Q + 2*w, 2)}, {vr(AC + 2*hf, 2)} op_sel_hi:[1,0,1]')
        for r in range(4): a(f'v_min_u32 v{AC + r}, -2, v{AC + r}')
        a(f'buffer_store_dwordx4 {vr(AC, 4)}, v{self.vL16}, {WS}, s38 offen sc1')
        if dual: a(f'buffer_store_dwordx4 {vr(AC, 4)}, v{self.vL16}, {WS}, s33 offen sc1')
        a.label(l)
        a('s_waitcnt lgkmcnt(0)'); self.lq = []

    RING0 = 8192
    vGO2, vTR, vOOB, vDO, vX0O, vGO, vXR, vXW, vRES = 8, 9, 10, 11, 12, 13, 14, 15, 16
    vAC, vCS, vQS, vRO, vPO, vPO2, vMLO, vOW, vDQ, vX0 = 32, 36, 38, 39, 40, 41, 42, 43, 44, 45
    def vm(self, text, tag=None):
        self.a(text); self.cq.append(tag)
    def vmwait(self, tag):
        if tag in self.cq:
            i = len(self.cq) - 1 - self.cq[::-1].index(tag)
            k = len(self.cq) - 1 - i
            assert k <= 63
            self.a(f's_waitcnt vmcnt({k})'); self.cq = self.cq[i + 1:]
    def arm(self, q=False):
        a = self.a
        self.vmwait('init'); self.confirm(self.vCL, 28)
        for r in range(20, 24): a(f'v_mov_b32 v{r}, -1')
        a('s_lshl2_add_u32 s38, s101, s3'); a('s_mul_i32 s38, s38, 3072'); a(f's_add_u32 s38, s38, 0x{YOFF:x}')
        for i in range(3): self.vm(f'buffer_store_dwordx4 v[20:23], v1, {WS}, s38 offen offset:{i * 1024} sc1', 'arm')
        if q:
            self.bits('v28', 'v0', 'v29', [(0, 5, 4), (5, 1, 13)])
            a('s_lshl_b32 s38, s101, 9'); a('s_lshl_b32 s39, s3, 14'); a('s_add_u32 s39, s39, s38')
            self.vm(f'buffer_store_dwordx4 v[20:23], v28, {WS}, s39 offen sc1', 'arm')
    def announce(self, bar=True):
        a = self.a
        if bar: self.vmwait('arm'); a('s_barrier')
        assert 'arm' not in self.cq
        a('s_getreg_b32 s38, hwreg(HW_REG_XCC_ID, 0, 4)'); a('s_lshl_b32 s38, s38, 8'); a('s_add_u32 s38, s38, 1')
        self.signal(28, 29, self.CNTA, 's38')
        self.stamp(21, None, 30)
    def chain_common(self):
        a = self.a
        a('v_lshlrev_b32 v1, 4, v0')
        self.bits('v2', 'v0', 'v6', [(0, 1, 4), (4, 2, 5)])
        self.bits('v4', 'v0', 'v6', [(1, 1, 0), (3, 1, 2), (2, 1, 3)])
        a('s_lshl_b32 s98, s3, 13'); a(f's_add_u32 s98, s98, {self.RING0}'); a('s_movk_i32 s99, 1024')
        a('s_mul_i32 s32, s3, 7168'); a(f's_add_u32 s32, s32, {self.RING0}')
        self.claim(28, 29, self.vCL)
        self.srd(16, 86, 0x20000000)
        self.stamp(0, None, 30)
        a('s_cmp_lt_u32 s2, 16'); a('s_cbranch_scc1 L_roleOQ')
        self.cq = ['init']
        if self.wtlb:
            lo = 30 if self.wtlb == 1 else 16; nw = 4 * (32 - lo)
            a(f's_cmp_lt_u32 s2, {lo}'); a('s_cbranch_scc1 L_notlb')
            a('v_lshlrev_b32 v6, 12, v0'); a(f's_sub_u32 s33, s2, {lo}'); a('s_lshl2_add_u32 s33, s33, s3'); a('s_lshl_b32 s33, s33, 18')
            for lo_, size in ((70, 448 * 8192), (76, 448 * 3584), (78, 448 * 3584), (72, 4096 * 896), (80, 1792 * 896)):
                self.srd(20, lo_, size)
                for i in range(-(-size // (nw << 18))):
                    if i: a(f's_add_u32 s39, s33, {i * nw << 18}')
                    a(f'buffer_load_dword v64, v6, {W1}, {"s39" if i else "s33"} offen nt')
            a.label('L_notlb')
        if self.hq:
            self.srd(20, 70, 448 * 8192)
            self.bits('v6', 'v0', 'v7', [(0, 5, 4), (5, 1, 13)])
            a('s_sub_u32 s33, s2, 16'); a('s_lshl_b32 s33, s33, 9'); a('s_lshl_b32 s39, s3, 14'); a('s_add_u32 s33, s33, s39')
            a(f's_add_u32 s33, s33, {self.hq[0] * 64 * 8192}')
            for i in range(8 * (self.hq[1] - self.hq[0])):
                self.vm(f'buffer_load_dwordx4 v[64:67], v6, {W1}, s33 offen {self.hpol}', 'hq'); a('s_add_u32 s33, s33, 65536')
                if i == 0: self.stamp(61, None, 30)
                if i == 8: self.stamp(63, None, 30)
                if i == 9: self.arm()
                if i == 23: self.announce()
        self.cq0 = list(self.cq)
        a('s_cmp_lt_u32 s2, 30'); a('s_cbranch_scc1 L_roleF')
    def consts(self):
        a = self.a
        a('v_and_b32 v6, 1, v0'); a('v_cmp_eq_u32 vcc, 1, v6')
        a('v_mov_b32 v3, 0x44444444'); a('v_mov_b32 v6, 0xeeeeeeee'); a('v_cndmask_b32 v3, v3, v6, vcc')
        self.bits('v9', 'v0', 'v6', [(0, 5, 3), (5, 1, 10)])
        a('v_mul_u32_u24 v5, 6144, v6'); a('s_mul_i32 s38, s3, 1792'); a('v_add3_u32 v5, v5, v9, s38')
        a(f's_mov_b32 s57, 0x{OOB:x}'); a(f's_mov_b32 s56, 0x{OOB:x}'); a('s_mov_b32 s49, -1')
    vCL = 46
    def preready(self, streams=False):
        self.vm(f'global_load_dword v46, v18, {DBG} offset:{self.CNTA} sc1', 'cnt')
        if streams: self.vm(f'global_load_dword v47, v18, {DBG} offset:{self.CNTB} sc1', 'cnt')
    def ready(self, streams=False):
        a = self.a
        self.stamp(22, None, 28)
        self.vmwait('cnt')
        self.wait_counter(18, 46, 22, self.CNTA, NCHAIN, pre=True)
        a('v_readfirstlane_b32 s38, v46'); a(f's_cmp_eq_u32 s38, {NCHAIN}')
        a(f's_cselect_b32 s57, 0, 0x{OOB:x}'); a(f's_cselect_b32 s56, 0x{OOB:x}, 0')
        if streams: self.wait_counter(18, 47, 22, self.CNTB, 16 * NC, pre=True)
        self.stamp(1, None, 28)
    def lstore(self, op, data, voff, sp, ss):
        self.a(f'buffer_store_{op} {data}, {voff}, {WS}, {sp} offen')
        self.a(f'buffer_store_{op} {data}, {voff}, {WS}, {ss} offen sc1')
    def dma_sub(self, name, srd, voff, tab, adv):
        a = self.a
        a.label(name)
        for e in range(8):
            a(f'buffer_load_dwordx4 {voff}, {srd}, s{tab + e} offen nt lds')
            if e < 7: a('s_add_u32 m0, m0, s99')
        a(f'v_add_u32 {voff}, 0x{adv:x}, {voff}')
        a('s_setpc_b64 s[96:97]')
    def dma_subB(self, name, srd, voff):
        a = self.a
        a.label(name)
        for cb in range(7):
            a(f'buffer_load_dwordx4 {voff}, {srd}, 0 offen offset:{128 * cb} nt lds')
            if cb < 6: a('s_add_u32 m0, m0, 896')
        a(f'v_add_u32 {voff}, 0x{32 * 896:x}, {voff}')
        a('s_setpc_b64 s[96:97]')
    def poff(self, p): return p['off'] if 'off' in p else p['slot'] * 32768
    def issue(self, p):
        self.a(f's_add_u32 m0, {"s32" if p["B"] else "s98"}, {self.poff(p)}'); self.a(f's_call_b64 s[96:97], {p["sub"]}')
        self.cq += [id(p)] * (7 if p['B'] else 8)
    def readout(self, p, sel=None):
        self.a(f'v_add_u32 v6, {self.RING0 + self.poff(p)}, {"v5" if p["B"] else "v9"}')
        for d, imm in p['rd']:
            if sel is None or sel(d): self.a(f'ds_read_b64_tr_b16 {rr(d, 2)}, v6 offset:{imm}')
    def consume(self, p, nxt=None, hook=None):
        self.vmwait(id(p))
        self.a('s_waitcnt lgkmcnt(0)'); self.a('s_barrier')
        if hook: hook()
        for x in (nxt if isinstance(nxt, list) else [nxt] if nxt else []):
            if 'off' not in x: assert x['slot'] == self.lastslot, (x['slot'], self.lastslot)
            self.issue(x)
        self.readout(p); self.lastslot = p.get('slot')
    def table(self, tab, rs):
        for e in range(8): self.a(f's_mov_b32 s{tab + e}, 0x{(16 * (e & 1) + 2 * ((e >> 1) & 1) + 32 * (e >> 2)) * rs:x}')
    def typeB(self, voff, rowbase_s):
        a = self.a
        a('s_and_b32 s38, s3, 1'); a('s_lshl_b32 s38, s38, 4'); a(f's_add_u32 s38, s38, {rowbase_s}'); a('s_and_b32 s39, s3, 2'); a('s_add_u32 s38, s38, s39')
        a(f'v_add_u32 v6, s38, v4'); a(f'v_mad_u32_u24 {voff}, v6, s99, v2'); a(f'v_lshlrev_b32 v6, 7, v6'); a(f'v_sub_u32 {voff}, {voff}, v6')
    def typeB_reads(self, breg, ks, half):
        return [(breg(jj, ks) + 2 * (e1 + 2 * half), 2 * e1 * 7168 + jj * 256) for jj in range(7) for e1 in range(2)]
    def x0off(self):
        a = self.a
        a(f'v_mov_b32 v10, 0x{OOB:x}')
        self.bits('v6', 'v0', 'v7', [(0, 4, 3), (4, 1, 2), (5, 1, 7)])
        a('s_mul_i32 s38, s3, 224'); a('s_lshl_b32 s39, s3, 5'); a(f's_add_u32 s39, s39, {896 - 224}')
        a('v_cmp_gt_u32 vcc, 224, v6')
        a('v_add_u32 v15, s38, v6'); a('v_add_u32 v6, s39, v6')
        a('v_cndmask_b32 v12, v10, v15, vcc'); a('v_cndmask_b32 v15, v6, v15, vcc')
        a('s_lshl_b32 s38, s3, 9'); a('v_lshl_add_u32 v14, v0, 3, s38'); a('v_cndmask_b32 v14, v10, v14, vcc')
    def gather_offs(self):
        a = self.a
        self.bits('v13', 'v0', 'v6', [(0, 4, 4), (4, 2, 12)])
        a('s_lshl_b32 s38, s3, 8'); a('v_add_u32 v13, s38, v13'); a(f'v_lshl_add_u32 v{self.vRO}, v0, 2, s38')
        a('v_cmp_gt_u32 vcc, 48, v0'); a('v_mov_b32 v18, 0'); a('v_mov_b32 v19, 0'); a('v_cndmask_b32 v8, v10, v13, vcc')
        a('v_and_b32 v6, 8, v0'); a('v_cmp_eq_u32 vcc, 8, v6'); a('v_mov_b32 v6, 0x3c00'); a('v_mov_b32 v7, 0x3c000000')
        a('v_cndmask_b32 v6, v6, v7, vcc'); a('v_and_b32 v7, 7, v0')
        for r, key in enumerate((0, 1, 4, 5)):
            a(f'v_cmp_eq_u32 vcc, {key}, v7'); a('s_nop 1'); a(f'v_cndmask_b32 v{self.vAC + r}, 0, v6, vcc')
    def resid_poll(self, soff):
        a = self.a; l = self.lab('L_rp')
        a.label(l)
        self.timeout()
        a(f'buffer_load_dwordx2 v[16:17], v14, {WS}, {soff} offen sc1'); a('s_waitcnt vmcnt(0)')
        a('v_max_u32 v6, v16, v17'); a('v_cmp_eq_u32 vcc, -1, v6'); a(f's_cbranch_vccnz {l}')
    def gather_sum(self, soff, G, full):
        a = self.a; l = self.lab('L_g'); d = self.lab('L_gd')
        a.label(l)
        self.timeout()
        for i in range(4): a(f'buffer_load_dwordx4 {vr(G + 4 * i, 4)}, {"v13" if full or i < 2 else "v8"}, {WS}, {soff} offen offset:{1024 * i} sc1')
        for i in range(4):
            a(f's_waitcnt vmcnt({3 - i})')
            a(f'v_mfma_f32_16x16x32_f16 v[20:23], {vr(self.vAC, 4)}, {vr(G + 4 * i, 4)}, {"v[16:19]" if i == 0 else "v[20:23]"}')
        a('v_cmp_u_f32 vcc, v20, v21')
        a('v_cvt_pk_bf16_f32 v24, v20, v21')
        a(f's_cbranch_vccz {d}')
        self.maxtree(range(G, G + 16), 6)
        a(f's_cbranch_vccnz {l}')
        a.label(d)
    def xrow_ops(self, sp, ss):
        return ['v_lshlrev_b32 v20, 16, v24', 'v_and_b32 v21, 0xffff0000, v24',
                f'buffer_store_dwordx2 v[20:21], v14, {WS}, {sp} offen', f'buffer_store_dwordx2 v[20:21], v14, {WS}, {ss} offen sc1']
    def stats_ops(self, X):
        o = []
        for i in range(4):
            o += [f'v_lshlrev_b32 v26, 16, v{X+i}', f'v_and_b32 v27, 0xffff0000, v{X+i}']
            if i == 0: o += ['v_add_f32 v28, v26, v27', 'v_mul_f32 v30, v26, v26', 'v_fmac_f32 v30, v27, v27']
            else: o += ['v_add_f32 v28, v28, v26', 'v_fmac_f32 v30, v26, v26', 'v_add_f32 v28, v28, v27', 'v_fmac_f32 v30, v27, v27']
        o += [f'v_mov_b32 v26, 0x{f2u(1/448):x}', f'v_mov_b32 v27, 0x{f2u(1e-5):x}', 'v_permlane16_swap_b32 v28, v30', 'v_add_f32 v28, v28, v30']
        for c in ('quad_perm:[1,0,3,2]', 'quad_perm:[2,3,0,1]', 'row_ror:4'):
            o += [None, f'v_add_f32_dpp v28, v28, v28 {c} {FULL}']
        o += [None, f'v_add_f32_dpp v29, v28, v28 row_ror:8 {FULL}', f'v_add_f32_dpp v28, v28, v28 row_ror:8 {FULL}', None,
              'v_permlane32_swap_b32 v28, v29', 'v_add_f32 v28, v28, v29', None,
              'v_readlane_b32 s58, v28, 0', 'v_readlane_b32 s59, v28, 16', None,
              'v_mul_f32 v24, s58, v26', 'v_fmac_f32 v27, s59, v26',
              'v_fma_f32 v27, -v24, v24, v27', 'v_rsq_f32 v25, v27']
        return o
    def gemv(self, ntile, nks, breg, acc, A, fill=(), nother=0):
        a = self.a; fill = list(fill)
        for ks in range(nks):
            a(f's_waitcnt lgkmcnt({min(15, nks - 1 - ks + nother)})')
            for jj in range(ntile):
                a(f'v_smfmac_f32_16x16x64_bf16 {vr(acc + 4 * jj, 4)}, {vr(A + 4 * ks, 4)}, {rr(breg(jj, ks), 8)}, v3')
                for _ in range(2):
                    if fill:
                        x = fill.pop(0)
                        if x: a(x)
        for x in fill:
            if x: a(x)
    def zero(self, base, n):
        for i in range(0, n, 2): self.a(f'v_mov_b64 {vr(base + i, 2)}, 0')
    def rowsel(self, dst, acc, tiles_masks):
        for jj, rm in tiles_masks:
            self.a(f'v_add_f32_dpp v{dst}, v{acc + 4*jj}, v{acc + 4*jj + 1} quad_perm:[0,1,2,3] row_mask:0x{rm:x} bank_mask:0xf')
    def rowout(self, acc, sp, ss):
        a = self.a
        for jj in range(4): self.rowsel(20, acc, [(jj, 1 << jj)])
        for jj in range(3): self.rowsel(21, acc, [(4 + jj, 1 << jj)])
        a('v_cvt_pk_f16_f32 v20, v20, v21'); a('v_min_u32 v20, -2, v20')
        self.lstore('dword', 'v20', f'v{self.vRO}', sp, ss)
    def calc_ib(self):
        a = self.a
        a('s_lshl_b32 s38, s49, 2'); a(f's_lshr_b32 s50, {"0x76352410" if self.reord else "0x73625140"}, s38'); a('s_and_b32 s50, s50, 7')
    def colsum(self, ntile, nks, breg, acc):
        a = self.a
        for r in range(4): a(f'v_mov_b32 v{20 + r}, 0x3f803f80')
        self.zero(acc, 4 * ntile)
        for ks in range(nks):
            for jj in range(ntile):
                a(f'v_smfmac_f32_16x16x64_bf16 {vr(acc + 4 * jj, 4)}, v[20:23], {rr(breg(jj, ks), 8)}, v3')
    def pinit(self, ib0):
        a = self.a
        for r in range(20, 24): a(f'v_mov_b32 v{r}, -1')
        a(f's_add_u32 s38, s3, {ib0}'); a('s_lshl_b32 s38, s38, 18'); a('s_add_u32 s38, s38, s41')
        a('v_lshlrev_b32 v6, 4, v0')
        for i in range(16):
            if i and i % 4 == 0: a('s_add_u32 s38, s38, 4096')
            self.vm(f'buffer_store_dwordx4 v[20:23], v6, {WS}, s38 offen offset:{(i % 4) * 1024} sc1', 'pinit')

    def roleOQ(self):
        a = self.a
        TOG = ['v_xor_b32 v15, 0x400, v15', 'v_xor_b32 v2, 0x400, v2', 'v_xor_b32 v1, 0x400, v1', f'v_xor_b32 v{self.vOW}, 0x400, v{self.vOW}']
        def qreg(jj, ks): return 96 + (ks * 4 + jj) * 8
        def oreg(jj, ks):
            if ks == 3 and jj < 4: return 288 + 8 * jj
            i = jj * 3 + ks if ks < 3 else 21 + jj - 4
            return 320 + 8 * i
        inwin = lambda d: 288 <= d < 320
        X0 = 4
        self.dma_sub('L_dmaQ', W1, f'v{self.vDQ}', 88, 64 * 8192)
        self.dma_subB('L_dmaO', W2, f'v{self.vDO}')
        P = 76; ML = 92; ACC = 48; A = 76
        a.label('L_Osub')
        self.calc_ib()
        a('s_and_b32 s38, s50, 3'); a('s_lshl_b32 s44, s38, 20'); a('s_add_u32 s44, s44, s41')
        a('s_cmp_eq_u32 s38, 3'); a('s_cselect_b32 s38, s55, 0'); a('s_add_u32 s44, s44, s38')
        a('s_lshr_b32 s38, s50, 2'); a('s_lshl_b32 s38, s38, 19'); a('s_add_u32 s44, s44, s38')
        a('s_add_u32 s45, s44, 4096'); a('s_add_u32 s46, s44, 16384'); a('s_add_u32 s47, s44, 20480')
        a('s_lshl_b32 s48, s50, 14'); a('s_add_u32 s48, s48, s40'); a('s_add_u32 s51, s48, s56'); a('s_add_u32 s48, s48, s57')
        self.zero(ACC, 28)
        a('s_cmp_lt_i32 s49, 0'); a('s_cbranch_scc1 L_Ook')
        a.label('L_Oheavy')
        self.timeout()
        a(f'buffer_load_dwordx2 {vr(ML, 2)}, v{self.vMLO}, {WS}, s44 offen sc1')
        for n in range(4): a(f'buffer_load_dwordx4 {vr(P + 4*n, 4)}, v{self.vPO2 if n == 3 else self.vPO}, {WS}, s{44+n} offen sc1')
        a('s_waitcnt vmcnt(4)')
        a(f'v_max_f32_dpp v20, v{ML}, v{ML} quad_perm:[1,0,3,2] {FULL}')
        for c in ('quad_perm:[2,3,0,1]', 'row_ror:4', 'row_ror:8'): a(f'v_max_f32_dpp v20, v20, v20 {c} {FULL}')
        a(f'v_sub_f32 v20, v{ML}, v20'); a('v_exp_f32 v20, v20'); a('v_cndmask_b32 v20, 0, v20, s[42:43]')
        a(f'v_mul_f32 v21, v20, v{ML+1}')
        lred = [f'v_add_f32_dpp v21, v21, v21 {c} {FULL}' for c in ('quad_perm:[1,0,3,2]', 'quad_perm:[2,3,0,1]', 'row_ror:4', 'row_ror:8')]
        for n in range(4):
            a(f's_waitcnt vmcnt({3 - n})')
            for r in range(4):
                a(f'v_{"mul" if n == 0 else "fmac"}_f32_dpp v{24 + r}, v20, v{P + 4*n + r} row_newbcast:{n} {FULL}')
            a(lred[n])
        a('v_permlane16_swap_b32 v24, v25'); a('v_permlane16_swap_b32 v26, v27'); a('v_rcp_f32 v21, v21')
        a('v_add_f32 v24, v24, v25'); a('v_add_f32 v26, v26, v27')
        a('v_permlane32_swap_b32 v24, v26'); a('v_add_f32 v24, v24, v26'); a('v_mul_f32 v24, v24, v21')
        a('v_cmp_u_f32 vcc, v24, v24')
        a('v_cvt_pk_bf16_f32 v24, v24, v24')
        a('s_cbranch_vccz L_Ook0')
        self.maxtree(list(range(P, P + 16)) + [ML, ML + 1], 6)
        a('s_cbranch_vccnz L_Oheavy')
        a.label('L_Ook0')
        if self.split:
            a('s_cmp_lg_u32 s49, 0'); a('s_cbranch_scc1 L_Ook')
            a('s_setpc_b64 s[34:35]')
        a.label('L_Ook')
        a(f'ds_write_b16 v{self.vOW}, v24'); a('s_waitcnt lgkmcnt(0)'); a('s_barrier')
        for ks in range(4): a(f'ds_read_b128 {vr(A + 4*ks, 4)}, v2 offset:{128 * ks}')
        self.stamp(3, 's49', 28)
        self.gemv(7, 4, oreg, ACC, A, fill=TOG + ['v_mov_b32 v21, 0'])
        self.rowout(ACC, 's48', 's51')
        self.stamp(12, 's49', 28)
        a('s_add_u32 s49, s49, 1')
        a('s_setpc_b64 s[34:35]')
        G = 64; ACC = 48; A = 64; X = 92
        a.label('L_Qsub')
        self.zero(ACC, 16)
        a('s_lshl_b32 s44, s53, 13'); a('s_add_u32 s44, s44, s54')
        a('s_lshl_b32 s38, s53, 11'); a(f's_add_u32 s47, s38, 0x{XAOFF - 4 * 2048:x}')
        a('s_add_u32 s45, s38, s33'); a('s_add_u32 s46, s45, s56'); a('s_add_u32 s45, s45, s57')
        a('s_lshl_b32 s48, s53, 14'); a(f's_add_u32 s48, s48, 0x{ZOFF - 4 * 16384:x}')
        a('s_cmp_lt_u32 s53, 4'); a('s_cbranch_scc1 L_Qx')
        self.resid_poll('s47')
        self.gather_sum('s48', G, False)
        a.label('L_Qx')
        a('ds_write_b32 v15, v24'); a('s_waitcnt lgkmcnt(0)'); a('s_barrier')
        for ks in range(7): a(f'ds_read_b128 {vr(A + 4*ks, 4)}, v2 offset:{128 * ks}')
        a(f'ds_read_b128 {vr(X, 4)}, v1')
        for x in self.xrow_ops('s45', 's46'): a(x)
        self.stamp(24, 's53', 28)
        fill = TOG + [None, 's_waitcnt lgkmcnt(0)'] + self.stats_ops(X)
        self.gemv(4, 7, qreg, ACC, A, fill=fill, nother=1)
        a(f'v_mul_f32 v21, v24, v{self.vCS}')
        self.rowsel(20, ACC, [(jj, 1 << jj) for jj in range(4)])
        a('v_sub_f32 v20, v20, v21'); a('v_mul_f32 v20, v20, v25')
        a('v_cvt_pk_bf16_f32 v20, v20, v20'); a('v_min_u32 v20, -2, v20')
        a(f'buffer_store_short v20, v{self.vQS}, {WS}, s44 offen sc1')
        self.stamp(33, 's53', 28)
        a('s_add_u32 s53, s53, 1')
        a('s_setpc_b64 s[34:35]')
        a.label('L_roleOQ')
        self.stamp(61, None, 30)
        self.cq = ['init']
        a('s_lshl_b32 s38, s2, 9')
        self.srd(20, 70, 448 * 8192)
        a('s_lshl_b32 s39, s3, 7'); a('s_add_u32 s38, s38, s39')
        a(f'v_lshl_add_u32 v{self.vDQ}, v4, 13, s38'); a(f'v_add_u32 v{self.vDQ}, v{self.vDQ}, v2')
        self.table(88, 8192)
        R4 = self.ring4
        pq = [dict(sub='L_dmaQ', B=0, slot=(ks + 2 * R4) % 4, rd=[(qreg(jj, ks) + 2 * rp, rp * 2048 + jj * 256) for jj in range(4) for rp in range(4)]) for ks in range(7)]
        po = [dict(sub='L_dmaO', B=1, slot=(3, 0, 1)[i % 3], rd=self.typeB_reads(oreg, i // 2, i % 2)) for i in range(8)]
        if R4:
            for i, p in enumerate(po): p['off'] = 32768 + 28672 * (i % 4)
        self.issue(pq[0])
        self.stamp(63, None, 30)
        self.srd(28, 64, 3584)
        XL = 48
        a(f'v_mov_b32 v10, 0x{OOB:x}')
        a('v_cmp_gt_u32 vcc, 56, v0'); a('v_bfe_u32 v7, v0, 2, 2'); a('v_mul_u32_u24 v7, 896, v7'); a('v_cndmask_b32 v6, v10, v1, vcc')
        for b in range(4): self.vm(f'buffer_load_dwordx4 {vr(XL + 4 * b, 4)}, v6, {W3}, 0 offen offset:{b * 896}', 'xl')
        a('v_add_u32 v7, v7, v2')
        a('s_mov_b32 s38, 0x3f803f80'); a('s_mov_b32 s39, s38')
        for r in range(0, 28, 2): a(f'v_mov_b64 {vr(A + r, 2)}, s[38:39]')
        a('s_mov_b32 exec_lo, 0x33333333'); a('s_mov_b32 exec_hi, 0x33333333')
        for ks in range(7): self.vm(f'buffer_load_dwordx4 {vr(A + 4 * ks, 4)}, v7, {W3}, 0 offen offset:{128 * ks}', 'xa')
        a('s_mov_b64 exec, -1')
        self.issue(pq[1])
        self.stamp(56, None, 30)
        self.srd(24, 72, 4096 * 896)
        a('s_lshl_b32 s39, s2, 8')
        self.typeB(f'v{self.vDO}', 's39')
        self.consts(); a('s_lshl_b32 s38, s3, 13'); a('v_add_u32 v9, s38, v9')
        if self.up4: self.issue(pq[2]); self.issue(pq[3])
        self.stamp(57, None, 30)
        self.arm(True)
        self.stamp(58, None, 30)
        if not self.up4: self.issue(pq[2])
        self.vmwait('xl')
        self.stamp(59, None, 30)
        for b in range(4):
            for x in self.stats_ops(XL + 4 * b):
                if x: a(x)
            a(f'v_mov_b32_dpp v92, v24 quad_perm:[0,1,2,3] row_mask:0x{1 << b:x} bank_mask:0xf')
            a(f'v_mov_b32_dpp v93, v25 quad_perm:[0,1,2,3] row_mask:0x{1 << b:x} bank_mask:0xf')
        if not self.up4: self.issue(pq[3])
        self.zero(ACC, 16)
        self.bits('v94', 'v0', 'v6', [(0, 1, 1), (2, 1, 2), (3, 1, 4), (1, 1, 5), (4, 2, 13)])
        a('s_lshl_b32 s38, s3, 7'); a('s_lshl_b32 s44, s2, 9'); a('s_add_u32 s44, s38, s44')
        self.stamp(60, None, 30)
        nxt = {1: pq[4], 2: pq[5], 3: pq[6], 4: po[0]}
        if R4 == 1: nxt[5] = po[1]; nxt[6] = [po[2], po[3]]
        def q1mm(ks):
            for jj in range(4): a(f'v_smfmac_f32_16x16x64_bf16 {vr(ACC + 4 * jj, 4)}, {vr(A + 4 * ks, 4)}, {rr(qreg(jj, ks), 8)}, v3')
        hooks = {(3 if self.up4 else 2): lambda: self.announce(False)}
        for i in range(7):
            if i == 3: self.vmwait('arm')
            self.consume(pq[i], nxt.get(i), hooks.get(i))
            self.stamp(41 + i, None, 26)
            if i: q1mm(i - 1)
        a('s_waitcnt lgkmcnt(0)')
        q1mm(6)
        self.stamp(20, None, 28)
        for jj in range(4):
            a(f'v_add_f32 v{20 + jj}, v{ACC + 4*jj}, v{ACC + 4*jj + 1}'); a(f'v_add_f32 v{24 + jj}, v{ACC + 4*jj + 2}, v{ACC + 4*jj + 3}')
        for jj in range(4): a(f'v_fma_f32 v{20 + jj}, -v92, v{24 + jj}, v{20 + jj}')
        for jj in range(4): a(f'v_mul_f32 v{20 + jj}, v{20 + jj}, v93')
        for jj in range(4): a(f'v_cvt_pk_bf16_f32 v{20 + jj}, v{20 + jj}, v{20 + jj}')
        for jj in range(4): a(f'v_min_u32 v{20 + jj}, -2, v{20 + jj}')
        for jj in range(4): self.vm(f'buffer_store_short v{20 + jj}, v94, {WS}, s44 offen offset:{(jj & 1) * 8 + (jj >> 1) * 64} sc1')
        for jj in range(4): a(f'v_mov_b32_dpp v{self.vCS}, v{24 + jj} quad_perm:[0,1,2,3] row_mask:0x{1 << jj:x} bank_mask:0xf')
        self.stamp(35, None, 28)
        if R4 != 1: self.issue(po[1]); self.issue(po[2])
        if R4 == 3: self.issue(po[3])
        a('s_mov_b32 s55, 0'); a(f's_lshl_b32 s41, s2, 15'); a(f's_add_u32 s41, s41, 0x{POFF:x}')
        self.x0off(); self.gather_offs()
        a('s_lshl_b32 s40, s2, 10'); a(f's_add_u32 s40, s40, 0x{YOFF:x}')
        PO, PO2, MO, OW = self.vPO, self.vPO2, self.vMLO, self.vOW
        self.bits(f'v{PO}', 'v0', 'v6', [(0, 4, 4), (4, 2, 10)])
        a('s_lshl_b32 s38, s3, 8'); a(f'v_add_u32 v{PO}, s38, v{PO}')
        a('v_cmp_gt_u32 vcc, 32, v0'); a('v_lshrrev_b32 v6, 4, v0'); a('v_bfe_u32 v7, v0, 2, 2'); a(f'v_cndmask_b32 v{PO2}, v10, v{PO}, vcc')
        a('v_add_u32 v6, v6, v7'); a('v_and_b32 v6, 3, v6')
        a('v_and_b32 v7, 3, v0'); a('v_lshl_add_u32 v6, v7, 2, v6')
        a(f'v_cmp_gt_u32 s[42:43], {NC}, v6'); a(f'v_min_u32 v6, {NC - 1}, v6'); a(f'v_lshlrev_b32 v{MO}, 7, v6'); a(f'v_add_u32 v{MO}, {MLO}, v{MO}')
        self.bits(f'v{OW}', 'v0', 'v6', [(4, 2, 1), (0, 3, 4), (3, 1, 8)])
        a('s_lshr_b32 s38, s3, 1'); a('s_lshl_b32 s38, s38, 7'); a('s_and_b32 s39, s3, 1'); a('s_lshl_b32 s39, s39, 3'); a('s_add_u32 s38, s38, s39')
        a(f'v_add_u32 v{OW}, s38, v{OW}')
        self.bits(f'v{self.vQS}', 'v0', 'v6', [(0, 1, 1), (2, 1, 2), (4, 1, 3), (3, 1, 4), (1, 1, 5), (5, 1, 6)])
        a('s_lshl_b32 s38, s3, 7'); a(f'v_add_u32 v{self.vQS}, s38, v{self.vQS}')
        a('s_cmp_eq_u32 s2, 0'); a(f's_cselect_b32 s33, 0x{XBOFF - 4 * 2048:x}, s57')
        a('s_mov_b32 s53, 3'); a(f's_mov_b32 s54, 0x{OOB:x}')
        for i in range(8):
            self.consume(po[i], (po[i + 3] if 1 <= i < 5 else None) if R4 else po[i + 2] if 1 <= i < 6 else None, (lambda: self.preready(True)) if i == (4 if self.split else 5) else None)
            self.stamp(48 + i, None, 28)
            if i == 1: a('s_call_b64 s[34:35], L_Osub')
            if i == 2: a('s_call_b64 s[34:35], L_Qsub'); a('s_lshl_b32 s54, s2, 9')
            if i == 5 and self.split:
                self.ready(True); a('s_call_b64 s[34:35], L_Osub'); self.cq = []
        if not self.split: self.ready(True)
        else:
            assert self.reord == 2
            self.stamp(1, None, 28)
            a('s_call_b64 s[34:35], L_Ook'); a('s_branch L_OQin')
        if self.reord == 2:
            a.label('L_OQloop')
            a('s_call_b64 s[34:35], L_Osub')
            a('s_cmp_ge_u32 s49, 8'); a('s_cbranch_scc1 L_end')
            a.label('L_OQin')
            self.readout(pq[6])
            a('s_call_b64 s[34:35], L_Qsub')
            self.readout(po[6], inwin); self.readout(po[7], inwin)
            a('s_cmp_eq_u32 s49, 1'); a('s_cbranch_scc1 L_OQloop')
            a('s_call_b64 s[34:35], L_Osub')
            if self.home:
                a('s_cmp_lg_u32 s49, 3'); a('s_cbranch_scc1 L_OQloop')
                a(f's_add_u32 s44, s41, {3 * PIB}'); a('s_mov_b32 s4, -1'); a('s_mov_b32 s5, -1'); a(f's_mov_b32 s6, {2 * self.home}')
                a('s_waitcnt vmcnt(0)')
                a.label('L_hm')
                a('s_waitcnt lgkmcnt(0)'); a('s_memtime s[58:59]'); a('s_waitcnt lgkmcnt(0)')
                a(f'buffer_load_dwordx4 {vr(P, 4)}, v{self.vPO}, {WS}, s44 offen sc1'); a('s_waitcnt vmcnt(0)')
                a('s_memtime s[38:39]'); a('s_waitcnt lgkmcnt(0)')
                a('s_sub_u32 s38, s38, s58'); a('s_min_u32 s38, s38, s4'); a('s_mov_b32 s4, s5'); a('s_mov_b32 s5, s38')
                a('s_add_u32 s44, s44, 0x2000'); a('s_and_b32 s38, s6, 3'); a('s_cmp_eq_u32 s38, 1'); a(f's_cselect_b32 s38, {0x8000 - 4096}, 0'); a('s_sub_u32 s44, s44, s38')
                a('s_sub_u32 s6, s6, 1'); a('s_cmp_lg_u32 s6, 0'); a('s_cbranch_scc1 L_hm')
                a('s_cmp_gt_u32 s4, s5'); a('s_cselect_b32 s55, 0x2000, 0')
                if self.hforce is not None: a(f's_mov_b32 s55, {self.hforce}')
                if self.diag:
                    a('s_lshl_b32 s38, s4, 16'); a('s_add_u32 s38, s38, s5'); a('v_mov_b32 v28, s38'); a('v_mov_b32 v29, 0')
                    a(f'buffer_store_dword v28, v29, {WS}, s61 offen offset:{62 * 4}')
            a('s_branch L_OQloop')
            return
        if self.reord:
            a('s_branch L_OQin')
            a.label('L_OQloop')
            self.readout(pq[6])
            a('s_call_b64 s[34:35], L_Qsub')
            self.readout(po[6], inwin); self.readout(po[7], inwin)
            a('s_call_b64 s[34:35], L_Osub')
            a('s_cmp_ge_u32 s49, 8'); a('s_cbranch_scc1 L_end')
            a.label('L_OQin')
            a('s_call_b64 s[34:35], L_Osub')
            a('s_branch L_OQloop')
            return
        a.label('L_OQloop')
        a('s_call_b64 s[34:35], L_Osub')
        self.readout(pq[6])
        a('s_call_b64 s[34:35], L_Qsub')
        self.readout(po[6], inwin); self.readout(po[7], inwin)
        a('s_call_b64 s[34:35], L_Osub')
        a('s_cmp_lt_u32 s49, 8'); a('s_cbranch_scc1 L_OQloop')
        a('s_branch L_end')

    def roleF(self):
        a = self.a
        self.dma_sub('L_dmaG', W1, 'v44', 88, 64 * 3584)
        self.dma_subB('L_dmaD', W3, 'v11')
        breg = lambda jj, ks: 256 + (jj * 7 + ks) * 8
        def dreg(jj, ks):
            i = jj * 2 + ks
            return 256 + 224 + 8 * i if i < 4 else 176 + 8 * (i - 4)
        G = 64; ACC = 48; A = 96; X = 124; CSUM = self.vCS; ACD = 128; X0 = 160
        a.label('L_Fsub')
        self.calc_ib()
        self.zero(ACC, 16); self.zero(ACD, 28)
        a('s_lshl_b32 s38, s50, 14'); a(f's_add_u32 s48, s38, 0x{YOFF:x}')
        a('s_add_u32 s44, s38, s40'); a('s_add_u32 s51, s44, s56'); a('s_add_u32 s44, s44, s57')
        a('s_lshl_b32 s38, s50, 11'); a(f's_add_u32 s47, s38, 0x{XBOFF - 4 * 2048:x}')
        a('s_add_u32 s45, s38, s41'); a('s_add_u32 s46, s45, s56'); a('s_add_u32 s45, s45, s57')
        a('s_cmp_lt_i32 s49, 0'); a('s_cbranch_scc1 L_Fx')
        a('s_bitcmp1_b32 s50, 2'); a('s_cbranch_scc1 L_Fr')
        a(f'v_lshlrev_b32 v16, 16, v{X0}'); a(f'v_and_b32 v17, 0xffff0000, v{X0}')
        for i in range(3): a(f'v_mov_b32 v{X0 + i}, v{X0 + i + 1}')
        a('s_branch L_Fg')
        a.label('L_Fr')
        self.resid_poll('s47')
        a.label('L_Fg')
        self.gather_sum('s48', G, True)
        a.label('L_Fx')
        a('ds_write_b32 v15, v24'); a('s_waitcnt lgkmcnt(0)'); a('s_barrier')
        for ks in range(7): a(f'ds_read_b128 {vr(A + 4*ks, 4)}, v2 offset:{128 * ks}')
        a(f'ds_read_b128 {vr(X, 4)}, v1')
        for x in self.xrow_ops('s45', 's46'): a(x)
        self.stamp(3, 's49', 28)
        fill = [None] * 5 + ['s_waitcnt lgkmcnt(0)'] + self.stats_ops(X)
        self.gemv(4, 7, breg, ACC, A, fill=fill, nother=1)
        a(f'v_mul_f32 v22, v24, v{CSUM}'); a(f'v_mul_f32 v23, v24, v{CSUM+1}'); a('v_mul_f32 v25, v25, v25')
        for jj in (0, 2, 1, 3): self.rowsel(20 + jj // 2, ACC, [(jj, 10 if jj & 1 else 5)])
        a('v_sub_f32 v20, v20, v22'); a('v_sub_f32 v21, v21, v23')
        a('v_max_f32 v20, 0, v20'); a('v_mul_f32 v21, v21, v25'); a('v_mul_f32 v20, v20, v21')
        a('v_cvt_pk_bf16_f32 v20, v20, v20')
        a('ds_write_b16 v40, v20'); a('s_waitcnt lgkmcnt(0)'); a('s_barrier')
        for ks in range(2): a(f'ds_read_b128 {vr(A + 4*ks, 4)}, v2 offset:{2048 + 128 * ks}')
        a('v_mov_b32 v21, 0')
        self.gemv(7, 2, dreg, ACD, A)
        self.rowout(ACD, 's44', 's51')
        self.stamp(12, 's49', 28)
        a('s_add_u32 s49, s49, 1')
        a('s_cmp_eq_u32 s49, 0'); a('s_cbranch_scc1 L_Fret')
        a('s_cmp_lt_u32 s49, 8'); a('s_cbranch_scc1 L_Fsub')
        a('s_branch L_end')
        a.label('L_roleF')
        self.cq = list(self.cq0); done = 8 * (self.hq[1] - self.hq[0]) if self.hq else 0
        a('s_cmp_lt_u32 s3, 2'); a('s_cselect_b64 s[20:21], s[76:77], s[78:79]'); a(f's_mov_b32 s22, 0x{448 * 3584:x}'); a('s_mov_b32 s23, 0x20000')
        a('s_sub_u32 s2, s2, 16')
        a('v_mul_u32_u24 v6, 3584, v4')
        a('s_lshl_b32 s38, s2, 8'); a('s_and_b32 s39, s3, 1'); a('s_lshl_b32 s39, s39, 7'); a('s_add_u32 s38, s38, s39')
        a('v_add3_u32 v44, v6, v2, s38')
        self.table(88, 3584)
        pl = [dict(sub='L_dmaG', B=0, rd=[(breg(jj, ks) + 2 * rp, (jj >> 1) * 16384 + rp * 2048 + (jj & 1) * 256) for jj in range(4) for rp in range(4)]) for ks in range(7)]
        pl += [dict(sub='L_dmaD', B=1, rd=self.typeB_reads(dreg, i // 2, i % 2)) for i in range(4)]
        for i, p in enumerate(pl): p['slot'] = i % 4
        self.stamp(56, None, 30)
        for i in range(2): self.issue(pl[i])
        self.stamp(57, None, 30)
        self.srd(28, 80, 1792 * 896); self.srd(68, 64, 3584)
        a('s_lshl_b32 s39, s2, 7')
        self.typeB('v11', 's39')
        self.consts()
        a('s_lshr_b32 s38, s3, 1'); a('s_lshl_b32 s38, s38, 13'); a('s_and_b32 s39, s3, 1'); a('s_lshl_b32 s39, s39, 9'); a('s_add_u32 s38, s38, s39'); a('v_add_u32 v9, s38, v9')
        self.x0off(); self.gather_offs()
        for b in range(4): self.vm(f'buffer_load_dword v{X0 + b}, v12, s[68:71], 0 offen offset:{b * 896}', 'x0')
        a('v_and_b32 v6, 31, v0'); a('s_lshl_b32 s38, s3, 6'); a('s_add_u32 s38, s38, 2048'); a('v_lshl_add_u32 v40, v6, 1, s38')
        a('s_lshl_b32 s40, s2, 10'); a(f's_add_u32 s40, s40, 0x{ZOFF:x}')
        a('s_cmp_eq_u32 s2, 0'); a(f's_cselect_b32 s41, 0x{XAOFF:x}, s57')
        if done < 10: self.arm()
        elif done < 24: self.announce()
        self.stamp(58, None, 30)
        self.issue(pl[2])
        a('s_branch L_Fsub')
        a.label('L_Fret')
        self.issue(pl[3])
        self.stamp(59, None, 30)
        hooks = {2: lambda: self.announce(False)} if done < 10 else {}
        hooks[7] = self.preready
        for i in range(11):
            self.consume(pl[i], pl[i + 3] if 1 <= i < 8 else None, hooks.get(i))
            if self.ho and i == self.ho[2]: self.wo_pf('s2')
            self.stamp(41 + i, None, 26)
            if i == 7:
                self.stamp(20, None, 28)
                self.colsum(4, 7, breg, ACC)
                self.rowsel(CSUM, ACC, [(0, 5), (1, 10)]); self.rowsel(CSUM + 1, ACC, [(2, 5), (3, 10)])
        self.ready()
        a('s_branch L_Fsub')

    def wo_pf(self, head, add=0):
        a = self.a; p0, p1 = self.ho[:2]
        self.srd(24, 72, 4096 * 896)
        nb = (p1 - p0) * 28672; per = nb // 4
        a(f's_mul_i32 s38, {head}, 229376'); a(f's_mul_i32 s39, s3, {per}'); a('s_add_u32 s38, s38, s39'); a(f's_add_u32 s38, s38, {p0 * 28672 + add * 229376}')
        a('v_min_u32 v6, 55, v0'); a('v_lshlrev_b32 v6, 7, v6')
        for i in range(p1 - p0):
            self.vm(f'buffer_load_dword v45, v6, {W2}, s38 offen {self.hpol}', 'ho'); a('s_add_u32 s38, s38, 7168')
    def roleW(self):
        a = self.a
        self.cq = list(self.cq0); done = 8 * (self.hq[1] - self.hq[0]) if self.hq else 0
        self.consts()
        if done < 10: self.arm()
        if done < 24: self.announce()
        a('s_sub_u32 s2, s2, 30')
        if self.hpf: self.helper()
        if self.ho: self.wo_pf('s2', 14)
        a('s_cmp_lg_u32 s2, 0'); a('s_cbranch_scc1 L_end')
        self.srd(20, 82, 3584)
        self.x0off(); self.gather_offs()
        self.preready(); self.ready()
        G = 64
        a('s_mov_b32 s49, 0'); a(f's_mov_b32 s47, 0x{XAOFF + 4 * 2048:x}'); a(f's_mov_b32 s48, 0x{ZOFF + 4 * 16384:x}'); a('s_mov_b32 s44, 0')
        a.label('L_Wtop')
        self.resid_poll('s47')
        self.gather_sum('s48', G, False)
        a(f'buffer_store_dword v24, v12, {W1}, s44 offen')
        self.stamp(12, 's49', 28)
        a('s_add_u32 s49, s49, 1'); a('s_add_u32 s47, s47, 2048'); a('s_add_u32 s48, s48, 16384'); a('s_add_u32 s44, s44, 896')
        a('s_cmp_lt_u32 s49, 4'); a('s_cbranch_scc1 L_Wtop')
        a('s_branch L_end')
    def helper(self):
        a = self.a
        hq, ho = self.hpf if isinstance(self.hpf, (list, tuple)) else (48, 48)
        a('s_lshl_b32 s38, s2, 2'); a('s_add_u32 s38, s38, s3')
        self.srd(20, 70, 448 * 8192); self.srd(24, 72, 4096 * 896)
        a('s_lshl_b32 s40, s38, 10'); a(f's_add_u32 s40, s40, {(448 - hq) * 8192}')
        l = self.lab('L_hq'); a(f's_mov_b32 s41, {hq}')
        if hq:
            a.label(l)
            a('s_waitcnt vmcnt(11)'); a(f'buffer_load_dwordx4 v[64:67], v1, {W1}, s40 offen {self.hpol}')
            a('s_add_u32 s40, s40, 8192'); a('s_sub_u32 s41, s41, 1'); a('s_cmp_lg_u32 s41, 0'); a(f's_cbranch_scc1 {l}')
        if ho:
            a('s_mul_i32 s40, s38, 458752'); a(f's_add_u32 s40, s40, {229376 - ho * 1024}'); a('s_add_u32 s42, s40, 229376')
            l = self.lab('L_ho'); a(f's_mov_b32 s41, {ho}')
            a.label(l)
            a('s_waitcnt vmcnt(10)'); a(f'buffer_load_dwordx4 v[64:67], v1, {W2}, s40 offen {self.hpol}')
            a(f'buffer_load_dwordx4 v[64:67], v1, {W2}, s42 offen {self.hpol}')
            a('s_add_u32 s40, s40, 1024'); a('s_add_u32 s42, s42, 1024'); a('s_sub_u32 s41, s41, 1'); a('s_cmp_lg_u32 s41, 0'); a(f's_cbranch_scc1 {l}')
        a('s_waitcnt vmcnt(0)')
        self.stamp(20, None, 28)

if __name__ == '__main__':
    kw = json.loads(sys.argv[2]) if len(sys.argv) > 2 else {}
    open(sys.argv[1], 'w').write(Gen(**kw).build())
```

```python
import sys, struct, json
from asmlib import Asm
NAME = "interleave_layers__mha_block_cached__glu_gated_reglu__decode"

QOFF = 0x0; YOFF = 0x10000; ZOFF = 0x50000; XAOFF = 0x90000; XBOFF = 0x98000; HOFF = 0x9c000; COFF = 0x9a000 - 0x2000 + 0x8000; POFF = 0x800000; DOFF = 0x400000
PB = 32768; PIB = 0x100000; PP2 = 0x80000; MLO = 16384 + 6144
OOB = 0x40000000
NC = 14; NW = 56
CS = 0.09016844005556021
def f2u(x): return struct.unpack('<I', struct.pack('<f', x))[0]

K_SRD = 's[8:11]'; V_SRD = 's[12:15]'; WS = 's[16:19]'; W1 = 's[20:23]'; W2 = 's[24:27]'; W3 = 's[28:31]'
DBG = 's[84:85]'
NCHAIN = 32
K4 = 's[88:91]'; V4 = 's[92:95]'
FULL = 'row_mask:0xf bank_mask:0xf'

def vr(b, n=1): return f'v{b}' if n == 1 else f'v[{b}:{b+n-1}]'
def ar(b, n=1): return f'a{b}' if n == 1 else f'a[{b}:{b+n-1}]'
def rr(b, n=1): return vr(b, n) if b < 256 else ar(b - 256, n)

class Gen:
    def __init__(self, diag=False, PF=65, depth=8, hpf=False, hpol='nt', cpf=False, rows=(16, 10, 7), hq=None, fake=0, CL=12, PF2=None, reord=1, lightO=0, split=True, tlb=0, fx=2, thr=None, wtlb=0, probe=None, kpol='nt', vpol='nt', par=None, nQ=48, nE=60, early=False, sub=None, qE=None, ring4=0, up4=False, ho=None, pos=None, home=0, hforce=None, lv=None, lvx=None, th=None, cps=None, rs=None, gs=14, kvonly=True, ed=False, mid=None, fast=((2, (73, 74, 75)), (3, (76, 77)), (4, (78, 79))), boost=None, fld=(2, 2), nQ1=None, cpon=None, odd=None, slow=None, xsl=0, loc=1, spf=None, mres=1, dual=1, hs=4, ean=1, SG=24, pw=12, flex=None, KF=52, TK=41, qmask=0x96, fw=(), fb=None, bst=None, fine=(), cla=0, arl=None, wsw=0, noarm=0, PFA=None, xpf=None, oarm=0, xpol='', fx2=None,
                 p2l=((('u', 2), (73, 74, 75)), (('u', 3), (76, 77)), (('u', 4), (78, 79)), (('u', 9), (0,)), (('x', 0), (1,)), (('i', 0), (2,)), (('i', 2), (3,)), (('i', 4), (4,)), (('m', 0), (5,))),
                 p1l={'a': (6, 7), '1': (8, 9), '2': (10,), '3': (11, 12), '4': (13,), 'm': (14, 15)}):
        self.fine = list(fine); self.cla = cla; self.arl = arl; self.wsw = wsw; self.noarm = noarm; self.PFA = PFA; self.fx2 = fx2; self.xpf = xpf; self.xpol = xpol; self.oarm = oarm; self.fb = fb; self.bst = bst; self.fw = fw; self.flex = flex; self.KF = KF; self.TK = TK; self.qmask = qmask
        if flex:
            rest = list(range(48, 80)); rest[KF - 40:KF - 40] = range(32, 40)
            self.ORD = list(range(24, 32)) + list(range(40, 48)) + list(range(24)) + rest
            assert sum(n for n, r in flex) == NW and sum(n * r for n, r in flex) == 512 and nQ >= KF + 8
        self.SG = SG; self.pw = pw; self.p2l = p2l; self.p1l = p1l
        self.dual = dual; self.hs = hs; self.ean = ean
        self.loc = loc; self.spf = spf or []; self.mres = mres
        self.xsl = xsl
        self.slow = slow
        self.odd = odd
        self.cpon = cpon
        self.nQ1 = nQ1 or nQ
        self.fast = fast; self.boost = boost; self.fld = fld; self.xst = 0
        if boost: lv = [depth, boost[1]]
        self.kvonly = kvonly; self.ed = ed; self.mid = mid
        self.lv = lv; self.lvx = lvx; self.th = th; self.cps = cps or []; self.rs = rs; self.dyn = False; self.gs = gs
        self.hforce = hforce
        self.home = home
        self.pos = pos
        self.ring4 = ring4; self.up4 = up4; self.ho = ho
        self.sub = sub; self.qE = qE
        self.par = par; self.nQ = nQ; self.nE = nE; self.early = early
        self.pmul = 10 if not probe or len(probe) < 3 else probe[2]; probe = probe and probe[:2]; self.probe = probe; self.role = 'X'; self.kpol = kpol; self.vpol = vpol
        self.a = Asm(); self.diag = diag; self.PF = PF; self.depth = depth; self.hpf = hpf; self.hpol = hpol; self.cpf = cpf; self.rows = rows; self.hq = hq; self.fake = fake; self.CL = CL; self.PF2 = PF2; self.reord = reord; self.lightO = lightO; self.split = split; self.tlb = tlb; self.fx = fx; self.thr = thr; self.wtlb = wtlb
        self.uid = 0
    def lab(self, p='L'):
        self.uid += 1; return f'{p}_{self.uid}'

    def bits(self, dst, lane, tmp, mp):
        a = self.a; first = True
        for lb, n, ab in mp:
            if first:
                a(f'v_bfe_u32 {dst}, {lane}, {lb}, {n}')
                if ab: a(f'v_lshlrev_b32 {dst}, {ab}, {dst}')
                first = False
            else:
                a(f'v_bfe_u32 {tmp}, {lane}, {lb}, {n}')
                a(f'v_lshl_add_u32 {dst}, {tmp}, {ab}, {dst}')
    def srd(self, base, lo, size):
        a = self.a
        a(f's_mov_b64 s[{base}:{base+1}], s[{lo}:{lo+1}]')
        a(f's_mov_b32 s{base+2}, 0x{size:x}'); a(f's_mov_b32 s{base+3}, 0x20000')
    def timeout(self):
        self.a('s_sub_u32 s52, s52, 1'); self.a('s_cbranch_scc1 L_bail')
        if self.xsl and self.role != 'S': self.a(f's_sleep {self.xsl}')
    FLAG = 4096; CNTA = 16; CNTB = 144
    def wait_counter(self, va, vd, vt, off, n, pre=False):
        a = self.a; l = self.lab('L_cnt'); c = self.lab('L_cntc')
        if pre: a(f's_branch {c}')
        else: a(f'v_mov_b32 v{va}, 0')
        a.label(l)
        self.timeout()
        a(f'global_load_dword v{vd}, v{va}, {DBG} offset:{off} sc1'); a('s_waitcnt vmcnt(0)')
        a.label(c)
        a(f'v_and_b32 v{vt}, 0xff, v{vd}'); a(f'v_cmp_gt_u32 vcc, {n}, v{vt}'); a(f's_cbranch_vccnz {l}')
    def claim(self, va, vd, vr_):
        a = self.a; l = self.lab('L_cl')
        a('s_lshl_b32 s38, 1, s101'); a(f'v_mov_b32 v{va}, s100'); a(f'v_mov_b32 v{vd}, s38')
        a('s_or_b32 s38, s3, s7')
        a('s_waitcnt lgkmcnt(0)')
        a(f's_cbranch_scc1 {l}')
        a('s_mov_b64 exec, 1')
        a(f'global_atomic_or v{vr_}, v{va}, v{vd}, {DBG} sc0 sc1')
        a('s_mov_b64 exec, -1')
        a.label(l)
    def confirm(self, vr_, t):
        a = self.a; l = self.lab('L_rs'); w = self.lab('L_rw')
        a(f'v_mov_b32 v{t}, 0')
        a('s_cmp_lg_u32 s3, 0'); a(f's_cbranch_scc1 {l}')
        a('s_movk_i32 s38, 0x100'); a('s_cmp_lg_u32 s7, 0'); a(f's_cbranch_scc1 {w}')
        a(f'v_readfirstlane_b32 s39, v{vr_}'); a('s_bitcmp1_b32 s39, s101'); a(f's_cbranch_scc0 {w}')
        a('s_call_b64 s[96:97], L_lost')
        a.label(w)
        a(f'v_mov_b32 v{t+1}, s38'); a(f'ds_write_b32 v{t}, v{t+1} offset:{self.FLAG}'); a('s_waitcnt lgkmcnt(0)')
        a.label(l)
        a('s_barrier')
        a(f'ds_read_b32 v{t+1}, v{t} offset:{self.FLAG}'); a('s_waitcnt lgkmcnt(0)')
        a(f'v_readfirstlane_b32 s38, v{t+1}'); a('s_cmp_lg_u32 s38, 0x100'); a('s_cbranch_scc1 L_redo')
    def signal(self, va, vd, off, val):
        a = self.a; l = self.lab('L_sg')
        a('s_cmp_lg_u32 s3, 0'); a(f's_cbranch_scc1 {l}')
        a('s_mov_b64 exec, 1'); a(f'v_mov_b32 v{va}, 0'); a(f'v_mov_b32 v{vd}, {val}')
        a(f'global_atomic_add v{va}, v{vd}, {DBG} offset:{off} sc1')
        a('s_mov_b64 exec, -1')
        a.label(l)
    def rare_paths(self):
        a = self.a
        a.label('L_odd')
        a('s_waitcnt lgkmcnt(0)'); a('v_mov_b32 v1, 0')
        a('s_cmp_lg_u32 s3, 0'); a('s_cbranch_scc1 L_odd2')
        a('s_and_b32 s38, s36, 3'); a('s_lshl_b32 s38, s38, 6'); a('s_lshr_b32 s39, s36, 2'); a('s_lshl3_add_u32 s38, s39, s38')
        a('v_mov_b32 v2, s38'); a('s_lshl_b32 s39, s37, 3'); a('s_movk_i32 s41, 24')
        a.label('L_odd1')
        a(f'global_load_dword v3, v2, {DBG} sc1'); a('s_waitcnt vmcnt(0)')
        a('v_readfirstlane_b32 s38, v3'); a('s_lshr_b32 s38, s38, s39'); a('s_and_b32 s38, s38, 0xff'); a('s_bcnt1_i32_b32 s40, s38')
        a('s_cmp_ge_u32 s40, 7'); a('s_cselect_b32 s41, 0, s41'); a('s_sub_u32 s41, s41, 1'); a('s_cbranch_scc0 L_odd1')
        a('s_ff0_i32_b32 s38, s38'); a('v_mov_b32 v2, s38'); a(f'ds_write_b32 v1, v2 offset:{self.FLAG + 4}'); a('s_waitcnt lgkmcnt(0)')
        a.label('L_odd2')
        a('s_barrier')
        a(f'ds_read_b32 v2, v1 offset:{self.FLAG + 4}'); a('s_waitcnt lgkmcnt(0)')
        a('v_readfirstlane_b32 s38, v2'); a('s_mov_b32 s6, 1'); a('s_branch L_even')
        a.label('L_lost')
        a('s_waitcnt vmcnt(0)')
        self.bits('v62', 'v0', 'v63', [(0, 2, 6), (2, 1, 3)])
        a.label('L_lost1')
        a(f'global_load_dword v60, v62, {DBG} sc1'); a('s_waitcnt vmcnt(0)')
        a('v_cmp_ne_u32 vcc, -1, v60'); a('s_movk_i32 s38, 0x300'); a('s_cbranch_vccz L_lost2')
        a('s_getreg_b32 s39, hwreg(HW_REG_XCC_ID, 0, 3)'); a('s_ff1_i32_b32 s38, vcc_lo')
        a('s_bitcmp1_b32 vcc_lo, s39'); a('s_cselect_b32 s38, s39, s38')
        a('s_nop 3'); a('v_readlane_b32 s39, v60, s38'); a('v_readlane_b32 s40, v62, s38'); a('s_ff0_i32_b32 s39, s39')
        a('s_lshl_b32 s41, 1, s39'); a('v_mov_b32 v61, s41'); a('v_mov_b32 v63, s40')
        a('s_mov_b64 exec, 1'); a(f'global_atomic_or v60, v63, v61, {DBG} sc0 sc1'); a('s_mov_b64 exec, -1'); a('s_waitcnt vmcnt(0)')
        a('v_readfirstlane_b32 s40, v60'); a('s_bitcmp1_b32 s40, s39'); a('s_cbranch_scc1 L_lost1')
        a('s_lshl_b32 s38, s38, 5'); a('s_add_u32 s38, s38, s39'); a('s_bitset1_b32 s38, 9')
        a.label('L_lost2')
        a('s_setpc_b64 s[96:97]')
        a.label('L_redo')
        a('s_bitcmp1_b32 s38, 8'); a('s_cbranch_scc1 L_bail')
        a('s_waitcnt vmcnt(0) lgkmcnt(0)'); a('s_barrier')
        a('s_load_dwordx16 s[64:79], s[0:1], 0')
        a('s_load_dwordx8 s[80:87], s[0:1], 64')
        a('s_bfe_u32 s36, s38, 0x30005'); a('s_and_b32 s2, s38, 31'); a('s_mov_b32 s7, 1')
        a('s_branch L_role')
    def stamp(self, idx, sidx=None, t0=20, src='s62'):
        if self.probe and not self.diag:
            role, want = self.probe
            if role != self.role or (sidx is None and idx != want) or (sidx and not (0 <= want - idx < 9)): return
            a = self.a
            a('s_waitcnt lgkmcnt(0)'); a('s_memrealtime s[62:63]'); a('s_waitcnt lgkmcnt(0)')
            if sidx: a(f's_cmp_eq_u32 {sidx}, {want - idx}'); a('s_cselect_b32 s61, s62, s61')
            else: a('s_mov_b32 s61, s62')
            return
        if not self.diag: return
        a = self.a
        a('s_waitcnt lgkmcnt(0)'); a('s_memrealtime s[62:63]'); a('s_waitcnt lgkmcnt(0)')
        a(f'v_mov_b32 v{t0}, {src}')
        if sidx: a(f's_lshl_b32 s60, {sidx}, 2'); a('s_add_u32 s60, s60, s61')
        else: a('s_mov_b32 s60, s61')
        a(f'v_mov_b32 v{t0+1}, 0')
        a('s_mov_b64 exec, 1')
        a(f'buffer_store_dword v{t0}, v{t0+1}, {WS}, s60 offen offset:{idx*4}')
        a('s_mov_b64 exec, -1')
    def diagbase(self):
        a = self.a
        a('s_and_b32 s60, s61, 31'); a('s_lshr_b32 s61, s61, 5'); a('s_lshl3_add_u32 s61, s60, s61')
        a('s_lshl2_add_u32 s61, s61, s3'); a('s_lshl_b32 s61, s61, 8'); a(f's_add_u32 s61, s61, 0x{DOFF:x}')
    def maxtree(self, regs, t):
        a = self.a; regs = list(regs)
        a(f'v_max3_u32 v{t}, v{regs[0]}, v{regs[1]}, v{regs[2 if len(regs) > 2 else 1]}')
        regs = regs[3:]
        while regs:
            x = regs[:2]; regs = regs[2:]
            a(f'v_max3_u32 v{t}, v{t}, v{x[0]}, v{x[-1]}')
        a(f'v_cmp_eq_u32 vcc, -1, v{t}')

    def build(self):
        a = self.a
        if self.diag: a('s_memrealtime s[34:35]')
        a('s_cmp_ge_u32 s2, 256'); a('s_cbranch_scc1 L_end2')
        if self.probe: a('s_memrealtime s[62:63]'); a('s_waitcnt lgkmcnt(0)'); a('s_mov_b32 s60, s62'); a('s_mov_b32 s61, s62')
        a('s_load_dwordx16 s[64:79], s[0:1], 0')
        a('s_load_dwordx8 s[80:87], s[0:1], 64')
        a('s_getreg_b32 s36, hwreg(HW_REG_XCC_ID, 0, 3)')
        a('s_getreg_b32 s38, hwreg(HW_REG_HW_ID, 8, 4)'); a('s_getreg_b32 s37, hwreg(HW_REG_HW_ID, 13, 2)')
        a('v_lshrrev_b32 v1, 6, v0'); a('v_and_b32 v0, 63, v0')
        a('v_readfirstlane_b32 s3, v1')
        a('s_mov_b32 s52, 400000'); a('s_mov_b64 s[6:7], 0')
        if self.fake == 1: a('s_and_b32 s38, s38, 6')
        if self.fake == 2: a('s_and_b32 s36, s36, 5')
        if self.fake == 3: a('s_and_b32 s36, s2, 7'); a('s_lshr_b32 s38, s2, 5'); a('s_mov_b32 s37, 0')
        if self.fake == 4: a('s_mov_b32 s36, 0'); a('s_mov_b32 s38, 0'); a('s_mov_b32 s37, 0')
        if self.fake == 5:
            a('s_bitcmp0_b32 s37, 0'); a('s_cselect_b32 s39, 8, 0'); a('s_cmp_eq_u32 s38, 3'); a('s_cselect_b32 s38, s39, s38')
        a('s_bitcmp0_b32 s37, 0'); a('s_cselect_b32 s39, 8, 0'); a('s_cmp_eq_u32 s38, s39'); a('s_cbranch_scc1 L_odd')
        a.label('L_even')
        a('s_and_b32 s38, s38, 7'); a('s_lshl3_add_u32 s2, s37, s38')
        if self.fake == 6: a('s_cmp_lg_u32 s38, 7'); a('s_cselect_b32 s39, 5, 0'); a('s_xor_b32 s36, s36, s39')
        if self.fake == 7: a('s_cmp_eq_u32 s2, 10'); a('s_cselect_b32 s39, 1, 0'); a('s_xor_b32 s36, s36, s39')
        if self.fake == 8: a('s_cmp_eq_u32 s2, 7'); a('s_cselect_b32 s39, 4, 0'); a('s_xor_b32 s36, s36, s39')
        a.label('L_role')
        a('s_mov_b32 s101, s2'); a('s_and_b32 s100, s36, 3'); a('s_lshl_b32 s100, s100, 6'); a('s_lshr_b32 s38, s36, 2'); a('s_lshl3_add_u32 s100, s38, s100')
        if self.cpf:
            a('s_getpc_b64 s[38:39]'); a.label('L_pc')
            a('s_lshl_b32 s37, s2, 2'); a('s_add_u32 s37, s37, s3'); a('s_lshl_b32 s37, s37, 10')
            a('s_cmp_ge_u32 s37, L_end-L_pc'); a('s_cbranch_scc1 L_nopf')
            a('v_lshl_add_u32 v2, v0, 4, s37'); a('v_min_u32 v2, L_end-L_pc-16, v2')
            a('global_load_dwordx4 v[60:63], v2, s[38:39]')
            a.label('L_nopf')
        a('s_getreg_b32 s38, hwreg(HW_REG_XCC_ID, 0, 4)'); a('s_cmp_eq_u32 s38, s36'); a('s_cselect_b32 s5, 1, 0x101')
        a('s_lshr_b32 s38, s2, 4'); a('s_lshl1_add_u32 s36, s36, s38'); a('s_and_b32 s37, s2, 7'); a('s_bfe_u32 s38, s2, 0x10003')
        a('s_cmp_eq_u32 s37, 7'); a('s_cbranch_scc1 L_chain')
        self.role = 'S'; self.stream()
        a.label('L_chain'); self.role = 'C'
        self.chain_common()
        self.role = 'W'; self.roleW(); self.role = 'O'; self.roleOQ(); self.role = 'F'; self.roleF()
        self.rare_paths()
        a.label('L_bail')
        a('s_mov_b64 exec, 1')
        a('v_mov_b32 v0, 32'); a('v_mov_b32 v1, 1')
        a(f'global_atomic_add v0, v1, {DBG} sc1')
        a('v_mov_b32 v0, 36'); a('v_mov_b32 v1, s2')
        a(f'global_store_dword v0, v1, {DBG} sc1')
        a.label('L_end')
        if self.probe:
            a('s_cmp_eq_u32 s60, s61'); a('s_cbranch_scc1 L_end2')
            a('s_sub_u32 s61, s61, s60'); a(f's_mul_i32 s61, s61, {self.pmul}'); a('s_add_u32 s61, s61, 7000'); a('s_add_u32 s61, s61, s60')
            a.label('L_pspin')
            a('s_memrealtime s[62:63]'); a('s_waitcnt lgkmcnt(0)'); a('s_sub_u32 s62, s62, s61'); a('s_cmp_lt_i32 s62, 0'); a('s_cbranch_scc1 L_pspin')
        a.label('L_end2')
        body = a.finish()
        hdr = open('cdna_kernels/' + NAME + '.s.ref').read().split('\n')
        top = [l for l in hdr if l.startswith(';') and '@launch' not in l]
        s = '\n'.join(top) + '\n; @launch grid=(256,1,1) block=(256,1,1) lds=163840\n'
        s += f'.amdgcn_target "amdgcn-amd-amdhsa--gfx950"\n.text\n.globl {NAME}_kernel\n.p2align 8\n.type {NAME}_kernel,@function\n{NAME}_kernel:\n'
        s += body
        s += f'''s_endpgm
.section .rodata,"a"
.p2align 6
.amdhsa_kernel {NAME}_kernel
  .amdhsa_next_free_vgpr 512
  .amdhsa_next_free_sgpr 102
  .amdhsa_accum_offset 256
  .amdhsa_group_segment_fixed_size 0
  .amdhsa_kernarg_size 96
  .amdhsa_user_sgpr_count 2
  .amdhsa_user_sgpr_kernarg_segment_ptr 1
  .amdhsa_system_sgpr_workgroup_id_x 1
.end_amdhsa_kernel
'''
        return s

    CA = [0, 4096]; Q1L = 8192; MA = [10240, 10272]; CO = [10304, 10308]; MA1 = [10240, 10336]; ST = 10496; TB = 11520; WLDS = 37 * 1024
    vK, vV, vDs, vL16, vQo, vIQ, vIP = 1, 2, 3, 4, 5, 6, 7
    vM = 8; vT = 12; vBias = 15; vMC = 16; vL = 17; vQ = 24; vAcc = 32; vH = 48
    def kreg(self, s, u):
        return 64 + 96 * s + 16 * u if u < 6 else 256 + 128 * s + 16 * (u - 6)
    def vreg0(self, s, P, t):
        return 256 + 128 * s + 64 + 8 * (4 * P + t)
    def tile(self, n):
        if n < 40:
            u, t = n // 4, n % 4
            return 0, u // 2, t * 128 + (u & 1) * 512
        m = n - 40; g = m // 8; k = m % 8
        if g < 4: P, t = k // 4, k % 4
        else: t, P = k // 2, k % 2
        return 1, g, t * 128 + P * 1024
    def ldsslot(self, s, n):
        if n <= 72: return (n - 56) + 17 * s
        return 34 + (n - 73)
    ORD = list(range(24, 40)) + list(range(24)) + list(range(40, 80))
    def load(self, s, p, wait=True):
        a = self.a; n = self.ORD[p]
        kv, g, imm = self.tile(n)
        if p == 0 and not self.prologue:
            for j in range(4 if self.flex or self.fx2 else 5): a(f's_add_u32 s{40+j}, s{40+j}, 0x2000000')
            if self.fx2: a('s_mov_b32 s44, s24'); a('s_lshl_b32 s90, s25, 9'); a('s_add_u32 s90, s90, s44'); a('s_min_u32 s90, s90, s10'); a('s_mov_b32 s94, s90')
            elif not self.flex: a('s_add_u32 s90, s90, 0x2000000'); a('s_min_u32 s90, s90, s10'); a('s_mov_b32 s94, s90')
        va = f'v{self.vV if kv else self.vK}'; srd = V_SRD if kv else K_SRD
        if g == 4: srd = V4 if kv else K4
        dst = None
        if n < 40: dst = self.kreg(s, n // 4) + 4 * (n % 4)
        elif n < 56:
            m = n - 40; dst = self.vreg0(s, (m % 8) // 4, m % 4) + 4 * (m // 8)
        elif n >= 76: dst = self.kreg(1 - s, 1) + 4 * (n - 76)
        if dst is None:
            a(f's_add_u32 m0, s45, {self.ldsslot(s, n) * 1024 - imm}')
        depth = self.lv[-1] if self.dyn else self.depth
        if wait is not True and wait: depth = wait
        def allow(d):
            pos = [i for i, x in enumerate(reversed(self.vmq)) if x[0] != 'cp' and not (self.flex and x[0] in (0, 1) and self.KF <= x[1] < self.KF + 8 and (x[1] - self.KF) % 8 not in self.fw)]
            return pos[d - 1] if len(pos) >= d else None
        if wait is True and self.dyn:
            lows = [allow(d) for d in self.lv[:-1] if allow(d) is not None]
            labs = [self.lab('L_lv') for _ in lows]
            for i in reversed(range(len(lows))):
                a(f's_cmp_gt_u32 s59, {i}'); a(f's_cbranch_scc1 {labs[i]}')
            for i, k in enumerate(lows):
                a(f's_waitcnt vmcnt({k})'); a.label(labs[i])
        if wait and allow(depth) is not None:
            k = allow(depth)
            a(f's_waitcnt vmcnt({k})'); self.vmq = self.vmq[-k:]
        if dst is None:
            a(f'buffer_load_dwordx4 {va}, {srd}, s{40+g} offen offset:{imm} {self.vpol if kv else self.kpol} lds')
        else:
            a(f'buffer_load_dwordx4 {rr(dst, 4)}, {va}, {srd}, s{40+g} offen offset:{imm} {self.vpol if kv else self.kpol}')
        self.vmq.append((s, p))
    def need_vm(self, tag):
        if tag in self.vmq:
            k = len(self.vmq) - 1 - self.vmq.index(tag)
            if self.xst:
                l = self.lab('L_xs'); self.a('s_cmp_lg_u32 s58, 0'); self.a(f's_cbranch_scc1 {l}')
                self.a(f's_waitcnt vmcnt({k})'); self.a.label(l); self.a(f's_waitcnt vmcnt({k + self.xst})')
            else: self.a(f's_waitcnt vmcnt({k})')
            self.vmq = self.vmq[len(self.vmq) - k:] if k else []
    def ds(self, text, tag=None):
        self.a(text); self.lq.append(tag)
    def need_lds(self, tag):
        if tag in self.lq:
            i = len(self.lq) - 1 - self.lq[::-1].index(tag)
            k = len(self.lq) - 1 - i
            k = min(k, 15)
            self.a(f's_waitcnt lgkmcnt({k})'); self.lq = self.lq[len(self.lq) - k:] if k else []
    def qload(self):
        a = self.a
        a(f'buffer_load_dwordx4 {vr(self.vQ, 4)}, v{self.vQo}, {WS}, s46 offen sc1')
        a(f'buffer_load_dwordx4 {vr(self.vQ + 4, 4)}, v{self.vQo}, {WS}, s46 offen offset:256 sc1')
    def wpf(self, n):
        a = self.a
        for nn, mat, k in self.spf:
            if nn != n: continue
            a('s_lshl2_add_u32 s32, s37, s3')
            for lo, size, rs, lpr, hs, rows in {'q': [(70, 448 * 8192, 8192, 4, 512, 448)], 'o': [(72, 4096 * 896, 128, 1, 229376, 1792)],
                          'g': [(76, 448 * 3584, 3584, 2, 256, 448), (78, 448 * 3584, 3584, 2, 256, 448)], 'd': [(80, 1792 * 896, 128, 1, 114688, 896)]}[mat]:
                assert 56 * k <= rows and k * lpr <= 64
                self.srd(28, lo, size)
                a(f's_mul_i32 s38, s36, {hs}'); a(f's_mul_i32 s33, s32, {k * rs}'); a('s_add_u32 s38, s38, s33'); a(f's_add_u32 s38, s38, {(rows - 56 * k) * rs}')
                if mat == 'g': a('s_cmp_lt_u32 s36, 14'); a(f's_cselect_b32 s38, s38, 0x{OOB:x}')
                if lpr == 1: a('v_lshlrev_b32 v18, 7, v0')
                else:
                    a(f'v_lshrrev_b32 v18, {lpr // 2}, v0'); a(f'v_mul_u32_u24 v18, {rs}, v18'); a(f'v_and_b32 v19, {lpr - 1}, v0'); a('v_lshl_add_u32 v18, v19, 7, v18')
                L = k * lpr
                a(f's_mov_b32 exec_lo, 0x{(1 << min(L, 32)) - 1:x}'); a(f's_mov_b32 exec_hi, 0x{(1 << max(L - 32, 0)) - 1:x}')
                a(f'buffer_load_dword v17, v18, s[28:31], s38 offen')
                a('s_mov_b64 exec, -1')
    def zero_acc(self):
        return [f'v_mov_b64 {vr(self.vAcc + 2 * i, 2)}, 0' for i in range(8)]

    def stream(self):
        a = self.a
        self.vmq = []; self.lq = []; self.prologue = True
        a('s_mul_i32 s38, s38, 7'); a('s_add_u32 s37, s37, s38')
        if self.diag: a('s_mul_i32 s61, s36, 14'); a('s_add_u32 s61, s61, s37'); a('s_add_u32 s61, s61, 32'); self.diagbase()
        a('s_lshl_b32 s39, s37, 2'); a('s_add_u32 s39, s39, s3'); a('s_lshl_b32 s38, s39, 13')
        a('s_lshl_b32 s44, s36, 21'); a('s_add_u32 s40, s44, s38'); a(f's_add_u32 s43, s40, {3 * NW * 8192}')
        self.bits(f'v{self.vK}', 'v0', 'v18', [(0, 1, 4), (4, 2, 5), (2, 1, 10), (1, 1, 11), (3, 1, 12)])
        if not self.cla: self.claim(22, 23, 24)
        else: a('s_waitcnt lgkmcnt(0)')
        self.wpf(-1)
        self.srd(8, 66, 0x8000000)
        if self.diag: a('s_memrealtime s[98:99]')
        for p in range(8): self.load(0, p, wait=False)
        if self.cla: self.claim(22, 23, 24); assert self.CL >= 15
        self.wpf(7)
        a(f's_lshl_b32 s47, s36, 15'); a('s_lshl_b32 s38, s37, 10'); a('s_and_b32 s48, s38, 0x2000'); a('s_add_u32 s38, s38, s48')
        a('s_add_u32 s47, s47, s38'); a(f's_add_u32 s47, s47, 0x{POFF:x}')
        a('s_lshl_b32 s48, s37, 7'); a('s_sub_u32 s48, s48, s38'); a(f's_add_u32 s48, s48, {MLO}')
        a(f'v_lshlrev_b32 v{self.vL16}, 4, v0')
        for j in range(1, 3): a(f's_add_u32 s{40+j}, s40, {j * NW * 8192}')
        self.srd(88, 66, 0); self.srd(92, 68, 0)
        if self.flex:
            a(f's_add_u32 s21, s44, {4 * NW * 8192}'); a('s_lshl_b32 s20, s36, 7'); a(f's_add_u32 s20, s20, 0x{HOFF:x}')
        else:
            if self.fx2:
                assert sum(n for n, r in self.fx2) == NW and sum(n * r for n, r in self.fx2) == 512 and self.PFA
                a(f's_add_u32 s21, s44, {4 * NW * 8192 + 0x2000000}'); a('s_lshl_b32 s20, s36, 7'); a(f's_add_u32 s20, s20, 0x{HOFF:x}')
            a('s_mul_i32 s38, s39, 9'); a('s_min_u32 s51, s37, 8'); a('s_add_u32 s38, s38, s51')
            a('s_cmp_lt_u32 s37, 8'); a('s_cselect_b32 s22, s3, 0'); a('s_cmp_eq_u32 s22, 3'); a('s_cselect_b32 s22, 10, 9'); a('s_mov_b32 s23, s22')
            a('s_lshl_b32 s38, s38, 9')
            a(f's_add_u32 s44, s44, {4 * NW * 8192}'); a('s_add_u32 s44, s44, s38')
            a('s_lshl_b32 s38, s22, 9'); a('s_add_u32 s90, s44, s38'); a('s_mov_b32 s94, s90')
        self.srd(12, 68, 0x8000000); self.srd(16, 86, 0x20000000)
        if self.wsw:
            a('s_lshl_b32 s38, s3, 20'); a('s_add_u32 s38, s38, s47'); a(f'buffer_load_dword v17, off, {WS}, s38 sc1')
        self.stamp(0); self.stamp(32, src='s34'); self.stamp(33, src='s98')
        self.bits(f'v{self.vV}', 'v0', 'v18', [(0, 3, 4), (5, 1, 9), (4, 1, 11), (3, 1, 12)])
        a(f's_mul_i32 s45, s3, {self.WLDS}'); a(f's_add_u32 s45, s45, {self.TB}')
        a(f'v_add_u32 v{self.vDs}, s45, v{self.vL16}')
        self.bits(f'v{self.vQo}', 'v0', 'v18', [(0, 2, 4), (4, 2, 6)])
        a('v_and_b32 v18, 2, v0'); a('v_cmp_eq_u32 vcc, 2, v18')
        a(f'v_mov_b32 v{self.vIQ}, 0x44444444'); a('v_mov_b32 v18, 0xeeeeeeee'); a(f'v_cndmask_b32 v{self.vIQ}, v{self.vIQ}, v18, vcc')
        a('v_and_b32 v18, 3, v0'); a('s_mov_b32 s38, 0x55555555'); a(f'v_mul_lo_u32 v{self.vIP}, v18, s38')
        a('v_and_b32 v18, 4, v0'); a('v_cmp_eq_u32 vcc, 4, v18')
        a('v_mov_b32 v18, 0xffff'); a('v_mov_b32 v19, 0xffff0000')
        M = self.vM
        a(f'v_cndmask_b32 v{M}, v18, 0, vcc'); a(f'v_cndmask_b32 v{M+1}, 0, v18, vcc')
        a(f'v_cndmask_b32 v{M+2}, v19, 0, vcc'); a(f'v_cndmask_b32 v{M+3}, 0, v19, vcc')
        self.bits(f'v{self.vBias}', 'v0', 'v19', [(4, 1, 0), (2, 1, 1), (1, 1, 2), (3, 1, 3), (5, 1, 4)])
        a('s_lshl_b32 s46, s3, 4'); a('s_add_u32 s46, s46, s36'); a('s_lshl_b32 s46, s46, 9')
        a('s_mov_b32 s49, 0'); a(f's_mov_b32 s51, 0x{f2u(CS):x}')
        a(f's_mov_b32 s53, {self.Q1L}'); a('s_lshl_b32 s54, s3, 10'); a('s_lshl_b32 s55, s3, 3')
        a('s_lshl_b32 s56, s36, 9'); a(f's_add_u32 s56, s56, 0x{QOFF + 3 * 8192:x}')
        a('v_mov_b32 v18, 0'); a('v_mov_b32 v19, 0')
        a(f'ds_write_b64 v18, v[18:19] offset:{self.CO[0]}')
        a('s_lshl_b32 s57, s3, 8'); a(f's_add_u32 s57, s57, {self.ST}'); a('s_mov_b32 s58, 0'); a('s_lshl_b32 s4, s5, 23'); a('s_and_b32 s4, s4, 0x80000000')
        if self.lv:
            mid = self.lv.index(self.depth) if self.mid is None else self.mid
            a(f's_mov_b32 s59, {mid if not self.slow else self.slow[0]}')
            if self.cps:
                a('s_lshl2_add_u32 s24, s37, s3'); a('s_lshl_b32 s24, s24, 7'); a(f's_add_u32 s24, s24, 0x{COFF:x}')
                lo = (mid if not self.slow else self.slow[0]) - 1
                a(f's_mov_b32 s20, 0x{OOB:x}'); a(f's_mov_b32 s21, {-self.th[lo] if lo >= 0 else 100}'); a('s_mov_b32 s22, 0')
            if self.odd:
                a('s_or_b32 s38, s6, s7'); a(f's_cselect_b32 s59, {mid}, s59')
                if self.cps: a(f's_cselect_b32 s21, {-self.th[-1]}, s21')
        assert not self.cps
        if self.bst: a('s_mov_b32 s26, s59')
        LP = {tuple(k): v for k, v in self.p2l}
        N1 = sum(1 for v in LP.values() for x in v if x < 40); N0 = N1 + sum(len(v) for v in self.p1l.values())
        assert N0 <= 16
        for p in range(8, N0):
            self.load(0, p, wait=self.pw)
            if p == self.CL: self.armS()
            self.wpf(p)
        self.prologue = False
        entry_vmq = [(0, i) for i in range(N0)]; self.vmq = list(entry_vmq)
        nQ = self.nQ
        for s in range(2):
            a.label(f'L_A{s}')
            assert [(x[0] ^ s, x[1]) for x in self.vmq] == entry_vmq, (self.vmq, entry_vmq)
            self.lq = []
            n = N0; self.dyn = bool(self.lv)
            while n < 73:
                if self.slow and not self.fb and (s, n) == tuple(self.slow[1:3]): a(f's_max_u32 s59, s59, {mid}')
                if self.bst and n == self.bst[1]: a('s_mov_b32 s59, s26')
                if s == 0 and n in self.fine:
                    a('s_mul_i32 s99, s49, 5'); self.stamp(44 + self.fine.index(n), 's99', 18)
                for i, (c0, c1) in enumerate(self.cps):
                    r = 16 + i % 2
                    if n == c1:
                        self.need_vm(('cp', i))
                        a(f'v_readfirstlane_b32 s38, v{r}'); a(f's_sub_u32 s38, s38, s{25 + i % 2}'); a('s_mov_b32 s59, 0')
                        for t in self.th: a(f's_cmp_ge_i32 s38, {t}'); a('s_addc_u32 s59, s59, 0')
                for i, (c0, c1) in enumerate(self.cps):
                    r = 16 + i % 2
                    if n == c0:
                        assert not (c0 <= nQ + 3 and c1 > nQ) and c1 < 73
                        a(f'v_mov_b32 v{r}, 1'); a(f's_mov_b32 s{25 + i % 2}, s21'); a('s_add_u32 s21, s21, s22')
                        a('s_mov_b64 exec, 1'); a(f'buffer_atomic_add v{r}, off, {WS}, s20 sc0 sc1'); a('s_mov_b64 exec, -1')
                        self.vmq.append(('cp', i))
                if self.flex and n == self.KF:
                    self.need_vm(('cp', 0))
                    R = f's{22 + s}'
                    a('v_readfirstlane_b32 s38, v16'); a('s_add_u32 s38, s38, 1')
                    a(f's_mov_b32 {R}, {self.flex[0][1]}'); a(f's_mul_i32 s44, s38, {R}')
                    b = 0
                    for (n0, r0), (n1, r1) in zip(self.flex, self.flex[1:]):
                        b += n0
                        a(f's_sub_i32 s39, s38, {b}'); a('s_max_i32 s33, s39, 0'); a(f's_mul_i32 s33, s33, {r0 - r1}'); a('s_sub_u32 s44, s44, s33')
                        a('s_cmp_ge_i32 s39, 0'); a(f's_cselect_b32 {R}, {r1}, {R}')
                    a('s_lshl_b32 s44, s44, 9'); a('s_add_u32 s44, s44, s21'); a('s_add_u32 s21, s21, 0x2000000')
                    a(f's_lshl_b32 s90, {R}, 9'); a('s_add_u32 s90, s90, s44'); a('s_min_u32 s90, s90, s10'); a('s_mov_b32 s94, s90')
                    self.stamp(40, 's49', 18, 's38')
                if n == nQ:
                    self.need_vm((s, self.KF + 7 if self.flex else 39))
                    if s == 0:
                        a('s_cmp_eq_u32 s49, 0'); a('s_cbranch_scc1 L_st0'); st_in = list(self.vmq)
                    self.qk1(s, {('u', 1): [(s, n)], ('u', 6): [(s, n + 1)], ('x', 0): [(s, n + 2)], ('e', 0): [(s, n + 3)]}, True)
                    n += 4
                    if s == 0: a.label('L_st0r'); st_out = list(self.vmq)
                    for z in self.zero_acc(): a(z)
                    continue
                self.load(s, n)
                if s == 0 and (n == self.CL or any(x[0] == n for x in self.spf)):
                    l = self.lab('L_it0')
                    a('s_cmp_lg_u32 s49, 0'); a(f's_cbranch_scc1 {l}')
                    if n == self.CL: self.armS()
                    self.wpf(n)
                    a.label(l)
                CK = self.TK if self.flex else (self.PFA or self.PF)
                if s == 0 and n == CK - 8:
                    assert n >= nQ + 4 or (CK < nQ and n > self.CL)
                    l = self.lab('L_it0'); a('s_cmp_lg_u32 s49, 0'); a(f's_cbranch_scc1 {l}')
                    a('v_mov_b32 v22, 0'); a(f'global_load_dword v23, v22, {DBG} offset:{self.CNTA} sc1'); a.label(l)
                if s == 0 and n == CK:
                    self.stamp(22, 's49')
                    l = self.lab('L_it0'); a('s_cmp_lg_u32 s49, 0'); a(f's_cbranch_scc1 {l}')
                    a('s_waitcnt vmcnt(8)'); self.wait_counter(22, 23, 21, self.CNTA, NCHAIN, pre=True)
                    a('v_readfirstlane_b32 s27, v23'); a('s_add_u32 s27, s27, s5'); a.label(l)
                if (self.flex and n == self.TK) or (self.fx2 and n == self.PFA):
                    a('v_mov_b32 v16, 1')
                    a('s_mov_b64 exec, 1'); a(f'buffer_atomic_add v16, off, {WS}, s20 sc0 sc1'); a('s_mov_b64 exec, -1')
                    a('s_add_u32 s20, s20, 2048')
                    self.vmq.append(('cp', 0))
                if n == self.PFA:
                    assert n >= nQ + 4 and n < self.PF
                    self.qload(); self.vmq += [('cp', 'qa'), ('cp', 'qb')]
                if n == self.PF:
                    assert n >= nQ + 4
                    self.qload(); self.vmq += [('cp', 'q0'), ('cp', 'q1')]
                n += 1
            self.dyn = False
            if self.fb: a(f's_mov_b32 s59, {self.fb[1]}')
            if self.PFA:
                self.need_vm(('cp', 'qb')); keep = list(self.vmq)
                if self.fx2: a('v_readfirstlane_b32 s35, v16')
                self.stamp(1, 's49')
                self.maxtree(range(self.vQ, self.vQ + 8), 18)
                a(f's_cbranch_vccz L_Xok{s}')
            def ahead(what):
                for g in what:
                    if g == 'v': a(f'buffer_load_dword v19, {V4}, s44 offen {self.xpol} lds')
                    else:
                        a(f's_add_u32 s38, s{40 + g}, 0x2000000')
                        if g == 4: a('s_mov_b32 exec_hi, 0xff')
                        a(f'buffer_load_dword v19, {K_SRD}, s38 offen {self.xpol} lds')
                        if g == 4: a('s_mov_b32 exec_hi, -1')
                    self.vmq.append(('cp', 'x'))
            if self.xpf:
                assert self.PFA and not self.flex
                a(f'v_lshlrev_b32 v19, 3, v{self.vL16}'); a(f's_mov_b32 m0, {self.TB + 4 * self.WLDS}')
                ahead(self.xpf[0])
            self.need_vm(('cp', 'q1'))
            for x in (self.xpf or [])[1:]:
                self.maxtree(range(self.vQ, self.vQ + 8), 18)
                a(f's_cbranch_vccz L_Xok{s}')
                self.qload(); ahead(x); a(f's_waitcnt vmcnt({len(x)})')
            if self.PFA: self.vmq = keep
            else: self.stamp(1, 's49')
            a.label(f'L_X{s}')
            self.maxtree(range(self.vQ, self.vQ + 8), 18)
            a(f's_cbranch_vccz L_Xok{s}')
            a.label(f'L_Xpoll{s}')
            if self.fb: a(f's_mov_b32 s59, {self.fb[0]}')
            self.timeout()
            self.qload()
            a('s_waitcnt vmcnt(0)')
            a(f's_branch L_X{s}')
            a.label(f'L_Xok{s}')
            self.stamp(6, 's49')
            if s == 0: a('s_cmp_eq_u32 s49, 0'); a('s_cbranch_scc1 L_first')
            save = list(self.vmq)
            self.pass2(s, LP)
            if self.diag: a('s_memrealtime s[28:29]')
            if s == 0:
                a('s_cmp_eq_u32 s49, 4'); a('s_cbranch_scc1 L_fin')
                after = list(self.vmq)
            a.label(f'L_PV{s}')
            self.pv1f(s)
            if self.diag: self.stamp(11, 's49', src='s28')
            a('s_add_u32 s49, s49, 1'); a(f's_add_u32 s47, s47, {PIB}'); a('s_add_u32 s53, s53, 512')
            a('s_add_u32 s56, s56, 8192'); a('s_mov_b32 s46, s56')
            if self.odd and (self.odd & 1) != s and not self.fb:
                a(f's_cmp_eq_u32 s49, {self.odd}'); a(f's_cselect_b32 s59, {mid}, s59')
            if self.cps and (self.cpon & 1) != s:
                a(f's_cmp_eq_u32 s49, {self.cpon}'); a('s_cselect_b32 s20, s24, s20'); a(f's_cselect_b32 s22, 16, s22'); a('s_cselect_b32 s21, -1, s21')
                a(f's_cselect_b32 s59, {mid}, s59')
            if s == 0: first_save, first_after = save, after
        a('s_cmp_lg_u32 s49, 4'); a('s_cbranch_scc1 L_A0')
        a('s_mov_b32 s94, 0')
        for z in self.zero_acc(): a(z)
        a('s_branch L_Xpoll0')
        a.label('L_first')
        self.vmq = first_save; self.lq = []
        a('s_lshl_b32 s38, s3, 9'); a(f'v_add_u32 v18, s38, v{self.vQo}')
        a(f'ds_write_b128 v18, {vr(self.vQ, 4)} offset:{self.Q1L}')
        a(f'ds_write_b128 v18, {vr(self.vQ + 4, 4)} offset:{self.Q1L + 256}')
        for n in range(73, 80): self.load(0, n, wait=False)
        self.share()
        self.need_vm(('cp', 'q1'))
        a('s_waitcnt lgkmcnt(0)'); a('s_barrier')
        pts = [('u', 1), ('u', 4), ('u', 7), ('x', 0), ('e', 0)]; FL = {}
        for i in range(N1): FL.setdefault(pts[i * len(pts) // N1], []).append((1, i))
        self.qk1(0, FL, False)
        assert self.vmq == first_after, (self.vmq, first_after)
        a('s_branch L_PV0')
        a.label('L_fin'); self.stamp(11, 's49'); a('s_branch L_end')
        a.label('L_st0')
        self.vmq = st_in; self.dyn = bool(self.lv)
        for n in range(nQ, nQ + 4): self.load(0, n)
        self.dyn = False
        assert self.vmq == st_out, (self.vmq, st_out)
        a('s_branch L_st0r')
    def share(self):
        a = self.a; F = self.fx2
        if not F: return
        a('s_add_u32 s35, s35, 1'); a(f's_mov_b32 s25, {F[0][1]}'); a('s_mul_i32 s24, s35, s25')
        b = 0
        for (n0, r0), (n1, r1) in zip(F, F[1:]):
            b += n0
            a(f's_sub_i32 s39, s35, {b}'); a('s_max_i32 s33, s39, 0'); a(f's_mul_i32 s33, s33, {r0 - r1}'); a('s_sub_u32 s24, s24, s33')
            a('s_cmp_ge_i32 s39, 0'); a(f's_cselect_b32 s25, {r1}, s25')
        a('s_lshl_b32 s24, s24, 9'); a('s_add_u32 s24, s24, s21'); a('s_add_u32 s21, s21, 0x2000000')
    def armS(self):
        a = self.a
        a('s_waitcnt vmcnt(8)')
        self.confirm(24, 20)
        if not self.oarm:
            a('v_lshl_add_u32 v18, v0, 19, s48'); a('v_mov_b64 v[20:21], -1'); a('v_mov_b64 v[22:23], -1')
            a('s_lshl_b32 s38, s3, 20'); a('s_add_u32 s38, s38, s47'); a(f's_add_u32 s39, s38, {PP2}')
            a(f'buffer_store_dwordx4 v[20:23], v{self.vL16}, {WS}, s39 offen sc1')
            a('s_mov_b64 exec, 3')
            a(f'buffer_store_dwordx2 v[20:21], v18, {WS}, s38 offen sc1')
            a('s_cmp_lg_u32 s3, 0'); a('s_cselect_b64 exec, -1, 0')
            a(f'buffer_store_dwordx4 v[20:23], v{self.vL16}, {WS}, s38 offen sc1')
            a('s_mov_b64 exec, -1')
        self.stamp(30, None, 24)
    def qk_part(self, ds_, hook, zero=True):
        a = self.a; T = self.vT; Q = self.vQ; AC = self.vAcc
        def post_a(u):
            ac = AC + 4 * (u % 4); t = 18 + 2 * (u % 2)
            a(f'v_add_f32 v{t+1}, v{ac+1}, v{ac+3}'); a(f'v_add_f32 v{t}, v{ac}, v{ac+2}')
        def post_b(u):
            t = 18 + 2 * (u % 2)
            a(f'v_add_f32_dpp v{T + u // 4}, v{t+1}, v{t} quad_perm:[1,1,3,3] row_mask:0x{1 << (u % 4):x} bank_mask:0xf')
        for u in range(10):
            ac = AC + 4 * (u % 4); k = self.kreg(ds_, u)
            a(f'v_smfmac_f32_16x16x64_bf16 {vr(ac, 4)}, {vr(Q, 4)}, {rr(k, 8)}, v{self.vIQ}')
            if u >= 3: post_a(u - 3)
            a(f'v_smfmac_f32_16x16x64_bf16 {vr(ac, 4)}, {vr(Q + 4, 4)}, {rr(k + 8, 8)}, v{self.vIQ}')
            if u >= 3: post_b(u - 3)
            hook(('u', u))
        zf = [f'v_mov_b32 v{AC + r}, 0' for r in list(range(8, 16)) + list(range(8))] if zero else []
        def Z(n=2):
            for _ in range(n):
                if zf: a(zf.pop(0))
        a(f'v_cmp_gt_u32 vcc, s{22 + ds_}, v{self.vBias}'); a('v_mov_b32 v23, 0xff800000')
        post_a(7); Z(1); post_b(7); Z(3); post_a(8); Z(1); post_b(8); Z(2); post_a(9); Z(1); post_b(9)
        m = self.vMC; t = 18
        a(f'v_sub_f32 v{T+2}, v{T+2}, v{T+1}'); a(f'v_sub_f32 v{T+1}, v{T+1}, v{T}')
        a(f'v_cndmask_b32 v{T+2}, v23, v{T+2}, vcc')
        a(f'v_max3_f32 v{m}, v{T}, v{T+1}, v{T+2}'); Z()
        a(f'v_max_f32_dpp v{m}, v{m}, v{m} quad_perm:[2,3,0,1] {FULL}'); Z()
        a(f'v_max_f32_dpp v{m}, v{m}, v{m} row_ror:4 {FULL}'); Z()
        a(f'v_max_f32_dpp v{t}, v{m}, v{m} row_ror:8 {FULL}')
        a(f'v_max_f32_dpp v{m}, v{m}, v{m} row_ror:8 {FULL}'); Z()
        a(f'v_permlane16_swap_b32 v{m}, v{t}'); a(f'v_max_f32 v{t+1}, v{m}, v{t}'); a(f'v_max_f32 v{m}, v{m}, v{t}'); Z(8)
        a(f'v_permlane32_swap_b32 v{m}, v{t+1}'); a(f'v_max_f32 v{m}, v{m}, v{t+1}')
        a(f'v_mul_f32 v{m}, s51, v{m}')
        for k in (0, 2, 1): a(f'v_fma_f32 v{T+k}, v{T+k}, s51, -v{m}')
        for k in (0, 2, 1): a(f'v_exp_f32 v{T+k}, v{T+k}')
        hook(('x', 0))
    def pack(self, k):
        T = self.vT
        o = [f'v_mov_b32_dpp v18, v{T+k} quad_perm:[0,0,0,0] {FULL}',
             f'v_mov_b32_dpp v19, v{T+k} quad_perm:[2,2,2,2] {FULL}',
             f'v_cvt_pk_bf16_f32 v{20+k}, v18, v19']
        if k == 2: o += [f'v_mov_b32_dpp v0, v22 row_shl:4 {FULL}', 'v_permlane32_swap_b32 v22, v0']
        return o
    def aprep(self, k, P, A):
        pp = 20 + k; M = self.vM
        if P == 0:
            return [f'v_and_b32 v{A}, v{pp}, v{M}', f'v_and_b32 v{A+2}, v{pp}, v{M+2}',
                    f'v_and_b32_dpp v{A+1}, v{pp}, v{M+1} row_shr:4 {FULL} bound_ctrl:0',
                    f'v_and_b32_dpp v{A+3}, v{pp}, v{M+3} row_shr:4 {FULL} bound_ctrl:0']
        return [f'v_and_b32 v{A+1}, v{pp}, v{M+1}', f'v_and_b32 v{A+3}, v{pp}, v{M+3}',
                f'v_and_b32_dpp v{A}, v{pp}, v{M} row_shl:4 {FULL} bound_ctrl:0',
                f'v_and_b32_dpp v{A+2}, v{pp}, v{M+2} row_shl:4 {FULL} bound_ctrl:0']
    def lred(self):
        L = self.vL; T = self.vT
        return [f'v_add_f32 v{L}, v{T}, v{T+1}',
                f'v_add_f32 v{L}, v{T+2}, v{L}',
                f'v_add_f32_dpp v{L}, v{L}, v{L} quad_perm:[2,3,0,1] {FULL}',
                f'v_add_f32_dpp v{L}, v{L}, v{L} row_ror:4 {FULL}',
                f'v_add_f32_dpp v{L}, v{L}, v{L} row_ror:8 {FULL}',
                f'v_mov_b32 v23, v{L}', f'v_permlane16_swap_b32 v{L}, v23', f'v_add_f32 v{L}, v{L}, v23',
                f'v_mov_b32 v23, v{L}', f'v_permlane32_swap_b32 v{L}, v23', f'v_add_f32 v{L}, v{L}, v23']
    def merge(self, t0):
        AC = self.vAcc; o = []
        for r in range(4): o.append(f'v_permlane32_swap_b32 v{AC + 4*t0 + r}, v{AC + 4*t0 + 4 + r}')
        for r in range(4):
            if t0 == 0: o.append(f'v_add_f32_dpp v{AC + r}, v{AC + 4 + r}, v{AC + r} row_ror:8 row_mask:0xf bank_mask:0x3')
            else: o.append(f'v_add_f32_dpp v{AC + r}, v{AC + 8 + r}, v{AC + 12 + r} row_ror:8 row_mask:0xf bank_mask:0xc')
        return o
    def staddr(self):
        return [f'v_lshrrev_b32 v18, 6, v{self.vL16}', 'v_lshl_add_u32 v18, v18, 4, s57']
    def qk1(self, s, LP, wait):
        a = self.a; Q = self.vQ
        def hook(p):
            for x in LP.get(p, []): self.load(*x, wait=wait)
        a(f'v_add_u32 v18, s53, v{self.vQo}')
        self.ds(f'ds_read_b128 {vr(Q, 4)}, v18', 'q'); self.ds(f'ds_read_b128 {vr(Q + 4, 4)}, v18 offset:256', 'q')
        for z in self.zero_acc(): a(z)
        self.need_lds('q')
        self.qk_part(s, hook, zero=False)
        pk = self.pack(0) + self.pack(2) + self.pack(1); lr = self.lred()
        while pk or lr:
            if lr: a(lr.pop(0))
            if pk: a(pk.pop(0))
        for x in self.staddr(): a(x)
        a('v_mov_b32 v19, s55')
        a('ds_write_b96 v18, v[20:22]')
        a('s_mov_b64 exec, 1')
        a(f'ds_write_b64 v19, {vr(self.vMC, 2)} offset:{self.MA1[s]}')
        a('s_mov_b64 exec, -1')
        hook(('e', 0))
    def cdst(self, fs, cu0, pi):
        if pi >= 2: pi += 2
        return self.kreg(fs, pi // 2) + 8 * (pi % 2)
    def copy(self, ds_, fs, cu0, n):
        if n >= 72: pi, half = (n - 72) // 2, (n - 72) % 2
        else: pi, half = 2 + (n - 56) % 8, (n - 56) // 8
        self.ds(f'ds_read_b128 {rr(self.cdst(fs, cu0, pi) + 4 * half, 4)}, v{self.vDs} offset:{self.ldsslot(ds_, n) * 1024}', ('c', n))
    def bop(self, ds_, fs, cu0, U, P, t):
        if U == 0: return self.vreg0(ds_, P, t), []
        if U == 1: return self.cdst(fs, cu0, 2 + 4 * P + t), [('c', 56 + 4 * P + t), ('c', 64 + 4 * P + t)]
        if t < 2: return self.cdst(fs, cu0, t), [('c', 72 + 2 * t), ('c', 73 + 2 * t)]
        if cu0: return self.kreg(fs, 1) + 8 * (t - 2), []
        return self.vH + 8 * (t - 2), []
    def pass2(self, s, LP):
        a = self.a; ds_ = 1 - s; Q = self.vQ; AC = self.vAcc
        cplan = {0: [72, 73, 74, 75], 2: [56, 64, 57, 65], 3: [58, 66, 59, 67], 4: [60, 68], 5: [61, 69], 6: [62, 70], 7: [63, 71]}
        def hook(p):
            for n in LP.get(p, []):
                if n == 73: self.need_lds(('c', 75))
                if n < 40: assert p[0] != 'u' or p[1] > self.ORD[n] // 4
                self.load(s if n >= 40 else ds_, n, wait=False)
            if p == ('u', 6): self.share()
            if p[0] == 'u':
                for n in cplan.get(p[1], []): self.copy(ds_, ds_, 0, n)
        self.qk_part(ds_, hook)
        sets = [(0, 0), (2, 0), (0, 1), (1, 0), (1, 1)]
        lred = self.lred()
        def prep(i):
            k, P = sets[i]
            return (self.pack(k) if P == 0 else []) + self.aprep(k, P, Q + 4 * (i % 2))
        self.need_vm(('cp', 'q1'))
        for x in prep(0): a(x)
        for i, (k, P) in enumerate(sets):
            fill = prep(i + 1) if i + 1 < len(sets) else []
            if i == len(sets) - 1:
                fill = lred + self.epi_pre(); lred = []
            for t in range(4):
                b, tags = self.bop(ds_, ds_, 0, k, P, t)
                for tg in tags: self.need_lds(tg)
                a(f'v_smfmac_f32_16x16x64_bf16 {vr(AC + 4 * t, 4)}, {vr(Q + 4 * (i % 2), 4)}, {rr(b, 8)}, v{self.vIP}')
                n = (len(fill) + (3 - t)) // (4 - t)
                got = fill[:n]; fill = fill[n:]
                if len(got) < 2 and lred: got.append(lred.pop(0))
                for x in got: a(x)
            hook(('i', i))
        for x in self.merge(0) + self.merge(2): a(x)
        hook(('m', 0))
        self.epilogue(1, s)
    def epi_pre(self):
        return [f'v_add_u32 v18, s54, v{self.vL16}', 'v_mov_b32 v19, s55', 'v_mov_b32 v20, 1', 'v_mov_b32 v21, 0', 'v_mov_b32 v22, s48']
    def pv1f(self, s):
        a = self.a; fs = 1 - s; Q = self.vQ; AC = self.vAcc
        self.xst = 2
        if self.fx2: a(f's_mov_b32 s{22 + fs}, s25'); self.stamp(40, 's49', 18, 's35')
        def hook(p):
            for n in self.p1l.get(p, []): self.load(fs, n, wait=False)
        for x in self.staddr(): a(x)
        self.ds('ds_read_b96 v[20:22], v18', 'p')
        hook('a')
        for z in self.zero_acc(): a(z)
        self.need_vm((s, 71))
        for n in [56, 64, 57, 65, 58, 66, 59, 67]: self.copy(s, fs, 2, n)
        self.need_lds('p')
        sets = [(0, 0), (0, 1), (1, 0), (1, 1), (2, 0)]
        prep = lambda i: self.aprep(*sets[i], Q + 4 * (i % 2))
        for x in prep(0): a(x)
        for i, (k, P) in enumerate(sets):
            last = (i == len(sets) - 1)
            fill = self.epi_pre() if last else prep(i + 1)
            if i == 1:
                for n in [60, 68, 61, 69, 62, 70, 63, 71]: self.copy(s, fs, 2, n)
            hook(str(i))
            for t in range(4):
                b, tags = self.bop(s, fs, 2, k, P, t)
                if last:
                    if t == 0:
                        self.need_vm((s, 73)); self.copy(s, fs, 2, 72); self.copy(s, fs, 2, 73)
                        self.need_vm((s, 75)); self.copy(s, fs, 2, 74); self.copy(s, fs, 2, 75)
                        for x in fill: a(x)
                        fill = []
                    if t == 2: self.need_vm((s, 77))
                    if t == 3: self.need_vm((s, 79))
                for tg in tags: self.need_lds(tg)
                a(f'v_smfmac_f32_16x16x64_bf16 {vr(AC + 4 * t, 4)}, {vr(Q + 4 * (i % 2), 4)}, {rr(b, 8)}, v{self.vIP}')
                n = (len(fill) + (3 - t)) // (4 - t)
                got = fill[:n]; fill = fill[n:]
                for x in got: a(x)
        self.xst = 0
        for x in self.merge(0) + self.merge(2): a(x)
        hook('m')
        self.epilogue(0, s)
        self.stamp(16, 's49')
        for i in range(8): a(f'v_mov_b64 {vr(self.vH + 2 * i, 2)}, {vr(self.kreg(fs, 1) + 2 * i, 2)}')
    def epilogue(self, p2, s):
        a = self.a; Q = self.vQ; AC = self.vAcc; m = self.vMC; L = self.vL
        CA = self.CA[p2]; MA = self.MA[1] if p2 else self.MA1[s]; CO = self.CO[p2]
        Zr = self.kreg(1 - s, 2)
        a(f'ds_write_b128 v18, {vr(AC, 4)} offset:{CA}')
        a('s_mov_b64 exec, 1')
        if p2: a(f'ds_write_b64 v19, {vr(self.vMC, 2)} offset:{MA}')
        a(f'ds_add_rtn_u32 v20, v21, v20 offset:{CO}')
        a('s_mov_b64 exec, -1')
        a(f'ds_read_b128 {vr(Q, 4)}, v21 offset:{MA}'); a(f'ds_read_b128 {vr(Q + 4, 4)}, v21 offset:{MA + 16}')
        for w in range(4): a(f'ds_read_b128 {vr(Zr + 4 * w, 4)}, v{self.vL16} offset:{CA + 1024 * w}')
        if p2: a(f's_sub_u32 s38, s47, {PIB - PP2}')
        else: a('s_mov_b32 s38, s47')
        dual = self.home and p2 != s
        if dual: a('s_add_u32 s33, s38, 0x2000'); a(f's_cmp_eq_u32 s49, {3 + p2}'); a(f's_cselect_b32 s33, s33, 0x{OOB:x}')
        a('s_waitcnt lgkmcnt(6)')
        a('v_readfirstlane_b32 s39, v20'); a('s_and_b32 s39, s39, 3'); a('s_cmp_eq_u32 s39, 3')
        if p2: a('s_cselect_b32 s58, 1, 0')
        elif self.bst: a('s_mov_b32 s26, s59'); a(f's_cselect_b32 s59, {self.bst[0]}, {"s59" if len(self.bst) < 3 else self.bst[2]}')
        l = self.lab('L_nl'); a(f's_cbranch_scc0 {l}')
        a('s_waitcnt lgkmcnt(4)')
        a(f'v_max3_f32 v{m}, v{Q}, v{Q+2}, v{Q+4}'); a(f'v_max_f32 v{m}, v{m}, v{Q+6}')
        for w in range(4): a(f'v_sub_f32 v{Q+2*w}, v{Q+2*w}, v{m}')
        for w in range(4): a(f'v_exp_f32 v{Q+2*w}, v{Q+2*w}')
        a(f'v_mul_f32 v{L}, v{Q}, v{Q+1}')
        for w in range(1, 4): a(f'v_fmac_f32 v{L}, v{Q+2*w}, v{Q+2*w+1}')
        a(f'v_min_u32 v{m}, -2, v{m}'); a(f'v_and_b32 v{L}, -2, v{L}')
        def st(text, pre=None):
            assert self.loc
            x = self.lab('L_ls'); y = self.lab('L_ls')
            a(f's_cbranch_scc1 {x}')
            if pre: a(pre)
            a(text + ' sc1'); a(f's_branch {y}'); a.label(x); a(text); a.label(y)
        a(f's_cmp_eq_u32 s27, {NCHAIN + 1}')
        a('s_mov_b64 exec, 1')
        st(f'buffer_store_dwordx2 {vr(m, 2)}, v22, {WS}, s38 offen', f'v_or_b32 v{L}, s4, v{L}')
        if dual: a(f'buffer_store_dwordx2 {vr(m, 2)}, v22, {WS}, s33 offen sc1')
        a('s_mov_b64 exec, -1')
        a('s_waitcnt lgkmcnt(0)')
        for w in range(4):
            for hf in range(2):
                if w == 0: a(f'v_pk_mul_f32 {vr(AC + 2*hf, 2)}, {vr(Zr + 2*hf, 2)}, {vr(Q, 2)} op_sel_hi:[1,0]')
                else: a(f'v_pk_fma_f32 {vr(AC + 2*hf, 2)}, {vr(Zr + 4*w + 2*hf, 2)}, {vr(Q + 2*w, 2)}, {vr(AC + 2*hf, 2)} op_sel_hi:[1,0,1]')
        for r in range(4): a(f'v_min_u32 v{AC + r}, -2, v{AC + r}')
        st(f'buffer_store_dwordx4 {vr(AC, 4)}, v{self.vL16}, {WS}, s38 offen')
        if dual: a(f'buffer_store_dwordx4 {vr(AC, 4)}, v{self.vL16}, {WS}, s33 offen sc1')
        a.label(l)
        a('s_waitcnt lgkmcnt(0)'); self.lq = []

    RING0 = 8192
    vGO2, vTR, vOOB, vDO, vX0O, vGO, vXR, vXW, vRES = 8, 9, 10, 11, 12, 13, 14, 15, 16
    vAC, vCS, vQS, vRO, vPO, vPO2, vMLO, vOW, vDQ, vX0 = 32, 36, 38, 39, 40, 41, 42, 43, 44, 45
    def vm(self, text, tag=None):
        self.a(text); self.cq.append(tag)
    def vmwait(self, tag):
        if tag in self.cq:
            i = len(self.cq) - 1 - self.cq[::-1].index(tag)
            k = len(self.cq) - 1 - i
            assert k <= 63
            self.a(f's_waitcnt vmcnt({k})'); self.cq = self.cq[i + 1:]
    def arm(self, q=False):
        a = self.a
        self.vmwait('init'); self.confirm(self.vCL, 28)
        for r in range(20, 24): a(f'v_mov_b32 v{r}, -1')
        a('s_lshl2_add_u32 s38, s8, s3'); a('s_mul_i32 s38, s38, 4608'); a(f's_add_u32 s38, s38, 0x{YOFF:x}')
        for i in range(5): self.vm(f'buffer_store_dwordx4 v[20:23], v1, {WS}, s38 offen offset:{min(i * 1024, 3584)} sc1', 'arm')
        if q:
            self.bits('v28', 'v0', 'v29', [(0, 5, 4), (5, 1, 13)])
            a('s_lshl_b32 s38, s8, 9'); a('s_lshl_b32 s39, s3, 14'); a('s_add_u32 s39, s39, s38')
            self.vm(f'buffer_store_dwordx4 v[20:23], v28, {WS}, s39 offen sc1', 'arm')
        else:
            self.pquad('s38'); a('s_lshl_b32 s39, s8, 15'); a('s_add_u32 s38, s38, s39'); a(f's_add_u32 s38, s38, 0x{POFF - 16 * PB:x}')
            for i in range(4): self.vm(f'buffer_store_dwordx4 v[20:23], v1, {WS}, s38 offen offset:{i * 1024} sc1', 'arm')
    def pquad(self, d):
        self.a(f's_and_b32 {d}, s3, 2'); self.a(f's_add_u32 {d}, {d}, s3'); self.a(f's_lshl_b32 {d}, {d}, 12')
    def announce(self, bar=True):
        a = self.a
        if bar: self.vmwait('arm'); a('s_barrier')
        assert 'arm' not in self.cq
        self.signal(28, 29, self.CNTA, 's9')
        self.stamp(21, None, 30)
    def chain_common(self):
        a = self.a
        a('s_lshl4_add_u32 s2, s38, s36'); a('s_mov_b32 s8, s2'); a('s_mov_b32 s9, s5'); a('s_mov_b32 s10, 0')
        if self.diag: a('s_mov_b32 s61, s2'); self.diagbase()
        a('v_lshlrev_b32 v1, 4, v0')
        self.bits('v2', 'v0', 'v6', [(0, 1, 4), (4, 2, 5)])
        self.bits('v4', 'v0', 'v6', [(1, 1, 0), (3, 1, 2), (2, 1, 3)])
        a('s_lshl_b32 s98, s3, 13'); a(f's_add_u32 s98, s98, {self.RING0}'); a('s_movk_i32 s99, 1024')
        a('s_mul_i32 s32, s3, 7168'); a(f's_add_u32 s32, s32, {self.RING0}')
        self.claim(28, 29, self.vCL)
        self.srd(16, 86, 0x20000000)
        self.stamp(0, None, 30)
        a('s_cmp_lt_u32 s2, 16'); a('s_cbranch_scc1 L_roleOQ')
        self.cq = ['init']
        if self.wtlb:
            lo = 30 if self.wtlb == 1 else 16; nw = 4 * (32 - lo)
            a(f's_cmp_lt_u32 s2, {lo}'); a('s_cbranch_scc1 L_notlb')
            a('v_lshlrev_b32 v6, 12, v0'); a(f's_sub_u32 s33, s2, {lo}'); a('s_lshl2_add_u32 s33, s33, s3'); a('s_lshl_b32 s33, s33, 18')
            for lo_, size in ((70, 448 * 8192), (76, 448 * 3584), (78, 448 * 3584), (72, 4096 * 896), (80, 1792 * 896)):
                self.srd(20, lo_, size)
                for i in range(-(-size // (nw << 18))):
                    if i: a(f's_add_u32 s39, s33, {i * nw << 18}')
                    a(f'buffer_load_dword v64, v6, {W1}, {"s39" if i else "s33"} offen nt')
            a.label('L_notlb')
        if self.hq:
            self.srd(20, 70, 448 * 8192)
            self.bits('v6', 'v0', 'v7', [(0, 5, 4), (5, 1, 13)])
            a('s_sub_u32 s33, s2, 16'); a('s_lshl_b32 s33, s33, 9'); a('s_lshl_b32 s39, s3, 14'); a('s_add_u32 s33, s33, s39')
            a(f's_add_u32 s33, s33, {self.hq[0] * 64 * 8192}')
            for i in range(8 * (self.hq[1] - self.hq[0])):
                self.vm(f'buffer_load_dwordx4 v[64:67], v6, {W1}, s33 offen {self.hpol}', 'hq'); a('s_add_u32 s33, s33, 65536')
                if i == 0: self.stamp(61, None, 30)
                if i == 8: self.stamp(63, None, 30)
                if i == 9: self.arm()
                if i == 23: self.announce()
        self.cq0 = list(self.cq)
        a('s_cmp_lt_u32 s2, 30'); a('s_cbranch_scc1 L_roleF')
    def consts(self):
        a = self.a
        a('v_and_b32 v6, 1, v0'); a('v_cmp_eq_u32 vcc, 1, v6')
        a('v_mov_b32 v3, 0x44444444'); a('v_mov_b32 v6, 0xeeeeeeee'); a('v_cndmask_b32 v3, v3, v6, vcc')
        self.bits('v9', 'v0', 'v6', [(0, 5, 3), (5, 1, 10)])
        a('v_mul_u32_u24 v5, 6144, v6'); a('s_mul_i32 s38, s3, 1792'); a('v_add3_u32 v5, v5, v9, s38')
        a(f's_mov_b32 s57, 0x{OOB:x}'); a(f's_mov_b32 s56, 0x{OOB:x}'); a('s_mov_b32 s49, -1')
    vCL = 46
    def preready(self, streams=False):
        self.vm(f'global_load_dwordx2 v[46:47], v18, {DBG} offset:{self.CNTA} sc1', 'cnt')
    def ready(self, streams=False):
        a = self.a
        self.stamp(22, None, 28)
        self.vmwait('cnt')
        self.wait_counter(18, 46, 22, self.CNTA, NCHAIN, pre=True)
        a('s_mov_b32 s56, 0')
        if self.dual: a('s_movk_i32 s57, 0x2000')
        if self.dual and self.role != 'W':
            a('v_readfirstlane_b32 s38, v47'); a('s_getreg_b32 s10, hwreg(HW_REG_XCC_ID, 2, 1)'); a('s_xor_b32 s10, s10, s38'); a('s_and_b32 s10, s10, 1'); a('s_lshl_b32 s10, s10, 13')
            if self.diag:
                a('v_mov_b32 v28, s10'); a('v_mov_b32 v29, 0')
                a(f'buffer_store_dword v28, v29, {WS}, s61 offen offset:{62 * 4}')
        self.stamp(1, None, 28)
    def near(self):
        if not self.dual: return
        a = self.a; l = self.lab('L_nr')
        assert self.hs <= 12
        a('s_mul_i32 s38, s3, 1536'); a(f's_add_u32 s11, s38, 0x{XBOFF:x}')
        a('s_mov_b32 s4, -1'); a('s_mov_b32 s5, -1'); a(f's_mov_b32 s6, {2 * self.hs}')
        a('s_waitcnt vmcnt(0)')
        a.label(l)
        a('s_waitcnt lgkmcnt(0)'); a('s_memtime s[58:59]'); a('s_waitcnt lgkmcnt(0)')
        a(f'buffer_load_dword v28, off, {WS}, s11 sc1'); a('s_waitcnt vmcnt(0)')
        a('s_memtime s[38:39]'); a('s_waitcnt lgkmcnt(0)')
        a('s_sub_u32 s38, s38, s58'); a('s_min_u32 s38, s38, s4'); a('s_mov_b32 s4, s5'); a('s_mov_b32 s5, s38')
        a('s_xor_b32 s11, s11, 0x2000'); a('s_and_b32 s38, s6, 1'); a('s_lshl_b32 s38, s38, 7'); a('s_add_u32 s11, s11, s38')
        a('s_sub_u32 s6, s6, 1'); a('s_cmp_lg_u32 s6, 0'); a(f's_cbranch_scc1 {l}')
        a('s_cmp_gt_u32 s4, s5'); a('s_cselect_b32 s10, 0x2000, 0')
        if self.hforce is not None: a(f's_xor_b32 s10, s10, {self.hforce}')
        a('s_getreg_b32 s38, hwreg(HW_REG_XCC_ID, 2, 1)'); a('s_lshr_b32 s39, s10, 13'); a('s_xor_b32 s38, s38, s39')
        a('v_mov_b32 v28, s38'); a('v_mov_b32 v29, 0')
        a('s_cmp_eq_u32 s3, 0'); a('s_cselect_b64 exec, 1, 0')
        a(f'global_store_dword v29, v28, {DBG} offset:{self.CNTA + 4} sc1'); a('s_mov_b64 exec, -1')
        if self.diag:
            self.stamp(20, None, 28)
            a('s_lshl_b32 s38, s4, 16'); a('s_add_u32 s38, s38, s5'); a('v_mov_b32 v28, s38'); a('v_mov_b32 v29, 0')
            a(f'buffer_store_dword v28, v29, {WS}, s61 offen offset:{62 * 4}')
    def lstore(self, op, data, voff, sp, ss):
        self.a(f'buffer_store_{op} {data}, {voff}, {WS}, {ss} offen sc1')
        if self.dual: self.a(f'buffer_store_{op} {data}, {voff}, {WS}, {sp} offen sc1')
    def dma_sub(self, name, srd, voff, tab, adv):
        a = self.a
        a.label(name)
        for e in range(8):
            a(f'buffer_load_dwordx4 {voff}, {srd}, s{tab + e} offen nt lds')
            if e < 7: a('s_add_u32 m0, m0, s99')
        a(f'v_add_u32 {voff}, 0x{adv:x}, {voff}')
        a('s_setpc_b64 s[96:97]')
    def dma_subB(self, name, srd, voff):
        a = self.a
        a.label(name)
        for cb in range(7):
            a(f'buffer_load_dwordx4 {voff}, {srd}, 0 offen offset:{128 * cb} nt lds')
            if cb < 6: a('s_add_u32 m0, m0, 896')
        a(f'v_add_u32 {voff}, 0x{32 * 896:x}, {voff}')
        a('s_setpc_b64 s[96:97]')
    def poff(self, p): return p['off'] if 'off' in p else p['slot'] * 32768
    def issue(self, p):
        self.a(f's_add_u32 m0, {"s32" if p["B"] else "s98"}, {self.poff(p)}'); self.a(f's_call_b64 s[96:97], {p["sub"]}')
        self.cq += [id(p)] * (7 if p['B'] else 8)
    def readout(self, p, sel=None):
        self.a(f'v_add_u32 v6, {self.RING0 + self.poff(p)}, {"v5" if p["B"] else "v9"}')
        for d, imm in p['rd']:
            if sel is None or sel(d): self.a(f'ds_read_b64_tr_b16 {rr(d, 2)}, v6 offset:{imm}')
    def consume(self, p, nxt=None, hook=None):
        self.vmwait(id(p))
        self.a('s_waitcnt lgkmcnt(0)'); self.a('s_barrier')
        if hook: hook()
        for x in (nxt if isinstance(nxt, list) else [nxt] if nxt else []):
            if 'off' not in x: assert x['slot'] == self.lastslot, (x['slot'], self.lastslot)
            self.issue(x)
        self.readout(p); self.lastslot = p.get('slot')
    def table(self, tab, rs):
        for e in range(8): self.a(f's_mov_b32 s{tab + e}, 0x{(16 * (e & 1) + 2 * ((e >> 1) & 1) + 32 * (e >> 2)) * rs:x}')
    def typeB(self, voff, rowbase_s):
        a = self.a
        a('s_and_b32 s38, s3, 1'); a('s_lshl_b32 s38, s38, 4'); a(f's_add_u32 s38, s38, {rowbase_s}'); a('s_and_b32 s39, s3, 2'); a('s_add_u32 s38, s38, s39')
        a(f'v_add_u32 v6, s38, v4'); a(f'v_mad_u32_u24 {voff}, v6, s99, v2'); a(f'v_lshlrev_b32 v6, 7, v6'); a(f'v_sub_u32 {voff}, {voff}, v6')
    def typeB_reads(self, breg, ks, half):
        return [(breg(jj, ks) + 2 * (e1 + 2 * half), 2 * e1 * 7168 + jj * 256) for jj in range(7) for e1 in range(2)]
    def x0off(self):
        a = self.a
        a(f'v_mov_b32 v10, 0x{OOB:x}')
        self.bits('v6', 'v0', 'v7', [(0, 4, 3), (4, 1, 2), (5, 1, 7)])
        a('s_mul_i32 s38, s3, 224'); a('s_lshl_b32 s39, s3, 5'); a(f's_add_u32 s39, s39, {896 - 224}')
        a('v_cmp_gt_u32 vcc, 224, v6')
        a('v_add_u32 v15, s38, v6'); a('v_add_u32 v6, s39, v6')
        a('v_cndmask_b32 v12, v10, v15, vcc'); a('v_cndmask_b32 v15, v6, v15, vcc')
        a('s_lshl_b32 s38, s3, 9'); a('v_lshl_add_u32 v14, v0, 3, s38'); a('v_cndmask_b32 v14, v10, v14, vcc')
    def gather_offs(self):
        a = self.a
        self.bits('v13', 'v0', 'v6', [(0, 4, 4), (4, 1, 12), (5, 1, 14)])
        a('s_lshl_b32 s38, s3, 8'); a('v_add_u32 v13, s38, v13'); a(f'v_lshl_add_u32 v{self.vRO}, v0, 2, s38')
        a('v_cmp_gt_u32 vcc, 48, v0'); a('v_mov_b32 v18, 0'); a('v_mov_b32 v19, 0'); a('v_cndmask_b32 v8, v10, v13, vcc')
        a('v_and_b32 v6, 8, v0'); a('v_cmp_eq_u32 vcc, 8, v6'); a('v_mov_b32 v6, 0x3c00'); a('v_mov_b32 v7, 0x3c000000')
        a('v_cndmask_b32 v6, v6, v7, vcc'); a('v_and_b32 v7, 7, v0')
        for r, key in enumerate((0, 1, 4, 5)):
            a(f'v_cmp_eq_u32 vcc, {key}, v7'); a('s_nop 1'); a(f'v_cndmask_b32 v{self.vAC + r}, 0, v6, vcc')
    def resid_poll(self, soff):
        a = self.a; l = self.lab('L_rp')
        a.label(l)
        self.timeout()
        a(f'buffer_load_dwordx2 v[16:17], v14, {WS}, {soff} offen sc1'); a('s_waitcnt vmcnt(0)')
        a('v_max_u32 v6, v16, v17'); a('v_cmp_eq_u32 vcc, -1, v6'); a(f's_cbranch_vccnz {l}')
    def gather_sum(self, soff, G, full, res=None):
        a = self.a; l = self.lab('L_g'); d = self.lab('L_gd')
        a.label(l)
        self.timeout()
        if res: a(f'buffer_load_dwordx2 v[16:17], v14, {WS}, {res} offen sc1')
        for i in range(4): a(f'buffer_load_dwordx4 {vr(G + 4 * i, 4)}, {"v13" if full or i < 2 else "v8"}, {WS}, {soff} offen offset:{1024 * i} sc1')
        for i in range(4):
            a(f's_waitcnt vmcnt({3 - i})')
            a(f'v_mfma_f32_16x16x32_f16 v[20:23], {vr(self.vAC, 4)}, {vr(G + 4 * i, 4)}, {"v[16:19]" if i == 0 else "v[20:23]"}')
        a('v_cmp_u_f32 vcc, v20, v21')
        a('v_cvt_pk_bf16_f32 v24, v20, v21')
        a(f's_cbranch_vccz {d}')
        self.maxtree(list(range(G, G + 16)) + ([16, 17] if res else []), 6)
        a(f's_cbranch_vccnz {l}')
        a.label(d)
    def xrow_ops(self, sp, ss):
        return ['v_lshlrev_b32 v20, 16, v24', 'v_and_b32 v21, 0xffff0000, v24',
                f'buffer_store_dwordx2 v[20:21], v14, {WS}, {ss} offen sc1'] + ([f'buffer_store_dwordx2 v[20:21], v14, {WS}, {sp} offen sc1'] if self.dual else [])
    def stats_ops(self, X):
        o = []
        for i in range(4):
            o += [f'v_lshlrev_b32 v26, 16, v{X+i}', f'v_and_b32 v27, 0xffff0000, v{X+i}']
            if i == 0: o += ['v_add_f32 v28, v26, v27', 'v_mul_f32 v30, v26, v26', 'v_fmac_f32 v30, v27, v27']
            else: o += ['v_add_f32 v28, v28, v26', 'v_fmac_f32 v30, v26, v26', 'v_add_f32 v28, v28, v27', 'v_fmac_f32 v30, v27, v27']
        o += [f'v_mov_b32 v26, 0x{f2u(1/448):x}', f'v_mov_b32 v27, 0x{f2u(1e-5):x}', 'v_permlane16_swap_b32 v28, v30', 'v_add_f32 v28, v28, v30']
        for c in ('quad_perm:[1,0,3,2]', 'quad_perm:[2,3,0,1]', 'row_ror:4'):
            o += [None, f'v_add_f32_dpp v28, v28, v28 {c} {FULL}']
        o += [None, f'v_add_f32_dpp v29, v28, v28 row_ror:8 {FULL}', f'v_add_f32_dpp v28, v28, v28 row_ror:8 {FULL}', None,
              'v_permlane32_swap_b32 v28, v29', 'v_add_f32 v28, v28, v29', None,
              'v_readlane_b32 s58, v28, 0', 'v_readlane_b32 s59, v28, 16', None,
              'v_mul_f32 v24, s58, v26', 'v_fmac_f32 v27, s59, v26',
              'v_fma_f32 v27, -v24, v24, v27', 'v_rsq_f32 v25, v27']
        return o
    def gemv(self, ntile, nks, breg, acc, A, fill=(), nother=0):
        a = self.a; fill = list(fill)
        for ks in range(nks):
            a(f's_waitcnt lgkmcnt({min(15, nks - 1 - ks + nother)})')
            for jj in range(ntile):
                a(f'v_smfmac_f32_16x16x64_bf16 {vr(acc + 4 * jj, 4)}, {vr(A + 4 * ks, 4)}, {rr(breg(jj, ks), 8)}, v3')
                for _ in range(2):
                    if fill:
                        x = fill.pop(0)
                        if x: a(x)
        for x in fill:
            if x: a(x)
    def zero(self, base, n):
        for i in range(0, n, 2): self.a(f'v_mov_b64 {vr(base + i, 2)}, 0')
    def rowsel(self, dst, acc, tiles_masks):
        for jj, rm in tiles_masks:
            self.a(f'v_add_f32_dpp v{dst}, v{acc + 4*jj}, v{acc + 4*jj + 1} quad_perm:[0,1,2,3] row_mask:0x{rm:x} bank_mask:0xf')
    def rowout(self, acc, sp, ss):
        a = self.a
        for jj in range(4): self.rowsel(20, acc, [(jj, 1 << jj)])
        for jj in range(3): self.rowsel(21, acc, [(4 + jj, 1 << jj)])
        a('v_cvt_pk_f16_f32 v20, v20, v21'); a('v_min_u32 v20, -2, v20')
        self.lstore('dword', 'v20', f'v{self.vRO}', sp, ss)
    def calc_ib(self):
        a = self.a
        a('s_lshl_b32 s38, s49, 2'); a(f's_lshr_b32 s50, {"0x76352410" if self.reord else "0x73625140"}, s38'); a('s_and_b32 s50, s50, 7')
    def colsum(self, ntile, nks, breg, acc):
        a = self.a
        for r in range(4): a(f'v_mov_b32 v{20 + r}, 0x3f803f80')
        self.zero(acc, 4 * ntile)
        for ks in range(nks):
            for jj in range(ntile):
                a(f'v_smfmac_f32_16x16x64_bf16 {vr(acc + 4 * jj, 4)}, v[20:23], {rr(breg(jj, ks), 8)}, v3')
    def pinit(self, ib0):
        a = self.a
        for r in range(20, 24): a(f'v_mov_b32 v{r}, -1')
        a(f's_add_u32 s38, s3, {ib0}'); a('s_lshl_b32 s38, s38, 18'); a('s_add_u32 s38, s38, s41')
        a('v_lshlrev_b32 v6, 4, v0')
        for i in range(16):
            if i and i % 4 == 0: a('s_add_u32 s38, s38, 4096')
            self.vm(f'buffer_store_dwordx4 v[20:23], v6, {WS}, s38 offen offset:{(i % 4) * 1024} sc1', 'pinit')

    def roleOQ(self):
        a = self.a
        TOG = ['v_xor_b32 v15, 0x400, v15', 'v_xor_b32 v2, 0x400, v2', 'v_xor_b32 v1, 0x400, v1', f'v_xor_b32 v{self.vOW}, 0x400, v{self.vOW}']
        def qreg(jj, ks): return 96 + (ks * 4 + jj) * 8
        def oreg(jj, ks):
            if ks == 3 and jj < 4: return 288 + 8 * jj
            i = jj * 3 + ks if ks < 3 else 21 + jj - 4
            return 320 + 8 * i
        inwin = lambda d: 288 <= d < 320
        X0 = 4
        self.dma_sub('L_dmaQ', W1, f'v{self.vDQ}', 88, 64 * 8192)
        self.dma_subB('L_dmaO', W2, f'v{self.vDO}')
        P = 76; ML = 92; ACC = 48; A = 76
        a.label('L_Osub')
        self.calc_ib()
        a('s_and_b32 s38, s50, 3'); a('s_lshl_b32 s44, s38, 20'); a('s_add_u32 s44, s44, s41')
        a('s_cmp_eq_u32 s38, 3'); a('s_cselect_b32 s38, s55, 0'); a('s_add_u32 s44, s44, s38')
        a('s_lshr_b32 s38, s50, 2'); a('s_lshl_b32 s38, s38, 19'); a('s_add_u32 s44, s44, s38')
        a('s_add_u32 s45, s44, 4096'); a('s_add_u32 s46, s44, 16384'); a('s_add_u32 s47, s44, 20480')
        a('s_lshl_b32 s48, s50, 15'); a('s_add_u32 s48, s48, s40'); a('s_add_u32 s51, s48, s56'); a('s_add_u32 s48, s48, s57')
        self.zero(ACC, 28)
        a('s_cmp_lt_i32 s49, 0'); a('s_cbranch_scc1 L_Ook')
        a.label('L_Oheavy')
        self.timeout()
        a(f'buffer_load_dwordx2 {vr(ML, 2)}, v{self.vMLO}, {WS}, s44 offen sc1')
        for n in range(4): a(f'buffer_load_dwordx4 {vr(P + 4*n, 4)}, v{self.vPO2 if n == 3 else self.vPO}, {WS}, s{44+n} offen sc1')
        a('s_waitcnt vmcnt(4)')
        a(f'v_max_f32_dpp v20, v{ML}, v{ML} quad_perm:[1,0,3,2] {FULL}')
        for c in ('quad_perm:[2,3,0,1]', 'row_ror:4', 'row_ror:8'): a(f'v_max_f32_dpp v20, v20, v20 {c} {FULL}')
        a(f'v_sub_f32 v20, v{ML}, v20'); a('v_exp_f32 v20, v20'); a('v_cndmask_b32 v20, 0, v20, s[42:43]')
        a(f'v_mul_f32 v21, v20, abs(v{ML+1})')
        lred = [f'v_add_f32_dpp v21, v21, v21 {c} {FULL}' for c in ('quad_perm:[1,0,3,2]', 'quad_perm:[2,3,0,1]', 'row_ror:4', 'row_ror:8')]
        for n in range(4):
            a(f's_waitcnt vmcnt({3 - n})')
            for r in range(4):
                a(f'v_{"mul" if n == 0 else "fmac"}_f32_dpp v{24 + r}, v20, v{P + 4*n + r} row_newbcast:{n} {FULL}')
            a(lred[n])
        a('v_permlane16_swap_b32 v24, v25'); a('v_permlane16_swap_b32 v26, v27'); a('v_rcp_f32 v21, v21')
        a('v_add_f32 v24, v24, v25'); a('v_add_f32 v26, v26, v27')
        a('v_permlane32_swap_b32 v24, v26'); a('v_add_f32 v24, v24, v26'); a('v_mul_f32 v24, v24, v21')
        a('v_cmp_u_f32 vcc, v24, v24')
        a('v_cvt_pk_bf16_f32 v24, v24, v24')
        a('s_cbranch_vccz L_Ook0')
        self.maxtree(list(range(P, P + 16)) + [ML, ML + 1], 6)
        a('s_cbranch_vccnz L_Oheavy')
        a.label('L_Ook0')
        if self.split:
            a('s_cmp_lg_u32 s49, 0'); a('s_cbranch_scc1 L_Ook')
            a('s_setpc_b64 s[34:35]')
        a.label('L_Ook')
        a(f'ds_write_b16 v{self.vOW}, v24'); a('s_waitcnt lgkmcnt(0)'); a('s_barrier')
        for ks in range(4): a(f'ds_read_b128 {vr(A + 4*ks, 4)}, v2 offset:{128 * ks}')
        self.stamp(3, 's49', 28)
        self.gemv(7, 4, oreg, ACC, A, fill=TOG + ['v_mov_b32 v21, 0'])
        self.rowout(ACC, 's48', 's51')
        self.stamp(12, 's49', 28)
        a('s_add_u32 s49, s49, 1')
        a('s_setpc_b64 s[34:35]')
        G = 64; ACC = 48; A = 64; X = 92
        a.label('L_Qsub')
        self.zero(ACC, 16)
        a('s_lshl_b32 s44, s53, 13'); a('s_add_u32 s44, s44, s54')
        a('s_lshl_b32 s38, s53, 11'); a(f's_add_u32 s47, s38, 0x{XAOFF - 4 * 2048:x}'); a('s_add_u32 s47, s47, s10')
        a('s_add_u32 s45, s38, s33'); a('s_add_u32 s46, s45, s56'); a('s_add_u32 s45, s45, s57')
        a('s_lshl_b32 s48, s53, 15'); a(f's_add_u32 s48, s48, 0x{ZOFF - 4 * 32768:x}'); a('s_add_u32 s48, s48, s10')
        a('s_cmp_lt_u32 s53, 4'); a('s_cbranch_scc1 L_Qx')
        if not self.mres: self.resid_poll('s47')
        self.gather_sum('s48', G, False, 's47' if self.mres else None)
        a.label('L_Qx')
        a('ds_write_b32 v15, v24'); a('s_waitcnt lgkmcnt(0)'); a('s_barrier')
        for ks in range(7): a(f'ds_read_b128 {vr(A + 4*ks, 4)}, v2 offset:{128 * ks}')
        a(f'ds_read_b128 {vr(X, 4)}, v1')
        for x in self.xrow_ops('s45', 's46'): a(x)
        self.stamp(24, 's53', 28)
        fill = TOG + [None, 's_waitcnt lgkmcnt(0)'] + self.stats_ops(X)
        self.gemv(4, 7, qreg, ACC, A, fill=fill, nother=1)
        a(f'v_mul_f32 v21, v24, v{self.vCS}'); a('s_cmp_eq_u32 s9, 1')
        self.rowsel(20, ACC, [(jj, 1 << jj) for jj in range(4)])
        a('v_sub_f32 v20, v20, v21'); a('v_mul_f32 v20, v20, v25')
        a('v_cvt_pk_bf16_f32 v20, v20, v20'); a('v_min_u32 v20, -2, v20')
        if self.loc:
            a('s_cbranch_scc1 L_Qloc')
            a(f'buffer_store_short v20, v{self.vQS}, {WS}, s44 offen sc1'); a('s_branch L_Qst')
            a.label('L_Qloc'); a(f'buffer_store_short v20, v{self.vQS}, {WS}, s44 offen'); a.label('L_Qst')
        else: a(f'buffer_store_short v20, v{self.vQS}, {WS}, s44 offen sc1')
        self.stamp(33, 's53', 28)
        if self.oarm: a('s_lshl_b32 s38, s53, 20'); a('s_add_u32 s38, s38, s11'); a(f's_add_u32 s39, s38, {PP2}')
        a('s_add_u32 s53, s53, 1')
        if self.oarm:
            a('s_cmp_eq_u32 s53, 8'); a('s_cbranch_scc1 L_Qret')
            a('v_mov_b64 v[24:25], -1'); a('v_mov_b64 v[26:27], -1'); a('v_lshlrev_b32 v6, 4, v0')
            for i in range(8): a(f'buffer_store_dwordx4 v[24:27], v6, {WS}, s{38 + i // 4} offen offset:{i % 4 * 1024} sc1')
            a.label('L_Qret')
        a('s_setpc_b64 s[34:35]')
        a.label('L_roleOQ')
        self.stamp(61, None, 30)
        self.cq = ['init']
        a('s_lshl_b32 s38, s2, 9')
        self.srd(20, 70, 448 * 8192)
        a('s_lshl_b32 s39, s3, 7'); a('s_add_u32 s38, s38, s39')
        a(f'v_lshl_add_u32 v{self.vDQ}, v4, 13, s38'); a(f'v_add_u32 v{self.vDQ}, v{self.vDQ}, v2')
        self.table(88, 8192)
        R4 = self.ring4
        pq = [dict(sub='L_dmaQ', B=0, slot=(ks + 2 * R4) % 4, rd=[(qreg(jj, ks) + 2 * rp, rp * 2048 + jj * 256) for jj in range(4) for rp in range(4)]) for ks in range(7)]
        po = [dict(sub='L_dmaO', B=1, slot=(3, 0, 1)[i % 3], rd=self.typeB_reads(oreg, i // 2, i % 2)) for i in range(8)]
        if R4:
            for i, p in enumerate(po): p['off'] = 32768 + 28672 * (i % 4)
        self.issue(pq[0])
        self.stamp(63, None, 30)
        self.srd(28, 64, 3584)
        XL = 48
        a(f'v_mov_b32 v10, 0x{OOB:x}')
        a('v_cmp_gt_u32 vcc, 56, v0'); a('v_bfe_u32 v7, v0, 2, 2'); a('v_mul_u32_u24 v7, 896, v7'); a('v_cndmask_b32 v6, v10, v1, vcc')
        for b in range(4): self.vm(f'buffer_load_dwordx4 {vr(XL + 4 * b, 4)}, v6, {W3}, 0 offen offset:{b * 896}', 'xl')
        a('v_add_u32 v7, v7, v2')
        a('s_mov_b32 s38, 0x3f803f80'); a('s_mov_b32 s39, s38')
        for r in range(0, 28, 2): a(f'v_mov_b64 {vr(A + r, 2)}, s[38:39]')
        a('s_mov_b32 exec_lo, 0x33333333'); a('s_mov_b32 exec_hi, 0x33333333')
        for ks in range(7): self.vm(f'buffer_load_dwordx4 {vr(A + 4 * ks, 4)}, v7, {W3}, 0 offen offset:{128 * ks}', 'xa')
        a('s_mov_b64 exec, -1')
        if not self.ean: self.issue(pq[1])
        self.stamp(56, None, 30)
        self.srd(24, 72, 4096 * 896)
        a('s_lshl_b32 s39, s2, 8')
        self.typeB(f'v{self.vDO}', 's39')
        self.consts(); a('s_lshl_b32 s38, s3, 13'); a('v_add_u32 v9, s38, v9')
        if self.up4: self.issue(pq[2]); self.issue(pq[3])
        self.stamp(57, None, 30)
        self.arm(True)
        self.stamp(58, None, 30)
        if not self.up4: self.issue(pq[1 if self.ean else 2])
        self.vmwait('xl')
        self.stamp(59, None, 30)
        for b in range(4):
            for x in self.stats_ops(XL + 4 * b):
                if x: a(x)
            a(f'v_mov_b32_dpp v92, v24 quad_perm:[0,1,2,3] row_mask:0x{1 << b:x} bank_mask:0xf')
            a(f'v_mov_b32_dpp v93, v25 quad_perm:[0,1,2,3] row_mask:0x{1 << b:x} bank_mask:0xf')
        if self.ean: self.announce(); self.issue(pq[2])
        if not self.up4: self.issue(pq[3])
        self.zero(ACC, 16)
        self.bits('v94', 'v0', 'v6', [(0, 1, 1), (2, 1, 2), (3, 1, 4), (1, 1, 5), (4, 2, 13)])
        a('s_lshl_b32 s38, s3, 7'); a('s_lshl_b32 s44, s2, 9'); a('s_add_u32 s44, s38, s44')
        self.stamp(60, None, 30)
        nxt = {1: pq[4], 2: pq[5], 3: pq[6], 4: po[0]}
        if R4 == 1: nxt[5] = po[1]; nxt[6] = [po[2], po[3]]
        def q1mm(ks):
            for jj in range(4): a(f'v_smfmac_f32_16x16x64_bf16 {vr(ACC + 4 * jj, 4)}, {vr(A + 4 * ks, 4)}, {rr(qreg(jj, ks), 8)}, v3')
        hooks = {} if self.ean else {(3 if self.up4 else 2): lambda: self.announce(False)}
        for i in range(7):
            if i == 3: self.vmwait('arm')
            self.consume(pq[i], nxt.get(i), hooks.get(i))
            self.stamp(41 + i, None, 26)
            if i: q1mm(i - 1)
        a('s_waitcnt lgkmcnt(0)')
        q1mm(6)
        self.stamp(20, None, 28)
        for jj in range(4):
            a(f'v_add_f32 v{20 + jj}, v{ACC + 4*jj}, v{ACC + 4*jj + 1}'); a(f'v_add_f32 v{24 + jj}, v{ACC + 4*jj + 2}, v{ACC + 4*jj + 3}')
        for jj in range(4): a(f'v_fma_f32 v{20 + jj}, -v92, v{24 + jj}, v{20 + jj}')
        for jj in range(4): a(f'v_mul_f32 v{20 + jj}, v{20 + jj}, v93')
        for jj in range(4): a(f'v_cvt_pk_bf16_f32 v{20 + jj}, v{20 + jj}, v{20 + jj}')
        for jj in range(4): a(f'v_min_u32 v{20 + jj}, -2, v{20 + jj}')
        for jj in range(4): self.vm(f'buffer_store_short v{20 + jj}, v94, {WS}, s44 offen offset:{(jj & 1) * 8 + (jj >> 1) * 64} sc1')
        for jj in range(4): a(f'v_mov_b32_dpp v{self.vCS}, v{24 + jj} quad_perm:[0,1,2,3] row_mask:0x{1 << jj:x} bank_mask:0xf')
        self.stamp(35, None, 28)
        if R4 != 1: self.issue(po[1]); self.issue(po[2])
        if R4 == 3: self.issue(po[3])
        a('s_mov_b32 s55, 0'); a(f's_lshl_b32 s41, s2, 15'); a(f's_add_u32 s41, s41, 0x{POFF:x}')
        if self.oarm: self.pquad('s11'); a('s_add_u32 s11, s11, s41'); a(f's_sub_u32 s11, s11, {3 * PIB - PP2}')
        self.x0off(); self.gather_offs()
        a('s_lshl_b32 s40, s2, 10'); a('s_and_b32 s38, s40, 0x2000'); a('s_add_u32 s40, s40, s38'); a(f's_add_u32 s40, s40, 0x{YOFF:x}')
        PO, PO2, MO, OW = self.vPO, self.vPO2, self.vMLO, self.vOW
        self.bits(f'v{PO}', 'v0', 'v6', [(0, 4, 4), (4, 2, 10)])
        a('s_lshl_b32 s38, s3, 8'); a(f'v_add_u32 v{PO}, s38, v{PO}')
        a('v_cmp_gt_u32 vcc, 32, v0'); a('v_lshrrev_b32 v6, 4, v0'); a('v_bfe_u32 v7, v0, 2, 2'); a(f'v_cndmask_b32 v{PO2}, v10, v{PO}, vcc')
        a('v_add_u32 v6, v6, v7'); a('v_and_b32 v6, 3, v6')
        a('v_and_b32 v7, 3, v0'); a('v_lshl_add_u32 v6, v7, 2, v6')
        a(f'v_cmp_gt_u32 s[42:43], {NC}, v6'); a(f'v_min_u32 v6, {NC - 1}, v6'); a(f'v_lshlrev_b32 v{MO}, 7, v6'); a(f'v_add_u32 v{MO}, {MLO}, v{MO}')
        self.bits(f'v{OW}', 'v0', 'v6', [(4, 2, 1), (0, 3, 4), (3, 1, 8)])
        a('s_lshr_b32 s38, s3, 1'); a('s_lshl_b32 s38, s38, 7'); a('s_and_b32 s39, s3, 1'); a('s_lshl_b32 s39, s39, 3'); a('s_add_u32 s38, s38, s39')
        a(f'v_add_u32 v{OW}, s38, v{OW}')
        self.bits(f'v{self.vQS}', 'v0', 'v6', [(0, 1, 1), (2, 1, 2), (4, 1, 3), (3, 1, 4), (1, 1, 5), (5, 1, 6)])
        a('s_lshl_b32 s38, s3, 7'); a(f'v_add_u32 v{self.vQS}, s38, v{self.vQS}')
        a('s_cmp_eq_u32 s2, 0'); a(f's_cselect_b32 s33, 0x{XBOFF - 4 * 2048:x}, s57')
        a('s_mov_b32 s53, 3'); a(f's_mov_b32 s54, 0x{OOB:x}')
        for i in range(8):
            self.consume(po[i], (po[i + 3] if 1 <= i < 5 else None) if R4 else po[i + 2] if 1 <= i < 6 else None, (lambda: self.preready(True)) if i == (4 if self.split else 5) else None)
            self.stamp(48 + i, None, 28)
            if i == 1: a('s_call_b64 s[34:35], L_Osub')
            if i == 2: a('s_call_b64 s[34:35], L_Qsub'); a('s_lshl_b32 s54, s2, 9')
            if i == 5 and self.split:
                self.ready(True); a('s_call_b64 s[34:35], L_Osub'); self.cq = []
                a(f'v_cmp_gt_i32 vcc, 0, v{ML+1}'); a('s_cmp_lg_u64 vcc, 0'); a('s_addc_u32 s9, s9, 0')
        assert self.split and self.reord
        self.stamp(1, None, 28)
        a('s_call_b64 s[34:35], L_Ook')
        a.label('L_OQloop')
        a(f's_movk_i32 s38, 0x{self.qmask:x}'); a('s_bitcmp1_b32 s38, s49'); a('s_cbranch_scc0 L_OQin')
        self.readout(pq[6])
        a('s_call_b64 s[34:35], L_Qsub')
        self.readout(po[6], inwin); self.readout(po[7], inwin)
        a.label('L_OQin')
        a('s_call_b64 s[34:35], L_Osub')
        a('s_cmp_lt_u32 s49, 8'); a('s_cbranch_scc1 L_OQloop')
        a('s_branch L_end')

    def roleF(self):
        a = self.a
        self.dma_sub('L_dmaG', W1, 'v44', 88, 64 * 3584)
        self.dma_subB('L_dmaD', W3, 'v11')
        breg = lambda jj, ks: 256 + (jj * 7 + ks) * 8
        def dreg(jj, ks):
            i = jj * 2 + ks
            return 256 + 224 + 8 * i if i < 4 else 176 + 8 * (i - 4)
        G = 64; ACC = 48; A = 96; X = 124; CSUM = self.vCS; ACD = 128; X0 = 160
        a.label('L_Fsub')
        self.calc_ib()
        self.zero(ACC, 16); self.zero(ACD, 28)
        a('s_lshl_b32 s38, s50, 15'); a(f's_add_u32 s48, s38, 0x{YOFF:x}'); a('s_add_u32 s48, s48, s10')
        a('s_add_u32 s44, s38, s40'); a('s_add_u32 s51, s44, s56'); a('s_add_u32 s44, s44, s57')
        a('s_lshl_b32 s38, s50, 11'); a(f's_add_u32 s47, s38, 0x{XBOFF - 4 * 2048:x}'); a('s_add_u32 s47, s47, s10')
        a('s_and_b32 s39, s38, 0x2000'); a('s_add_u32 s38, s38, s39')
        a('s_add_u32 s45, s38, s41'); a('s_add_u32 s46, s45, s56'); a('s_add_u32 s45, s45, s57')
        a('s_cmp_lt_i32 s49, 0'); a('s_cbranch_scc1 L_Fx')
        a('s_bitcmp1_b32 s50, 2'); a('s_cbranch_scc1 L_Fr')
        a(f'v_lshlrev_b32 v16, 16, v{X0}'); a(f'v_and_b32 v17, 0xffff0000, v{X0}')
        for i in range(3): a(f'v_mov_b32 v{X0 + i}, v{X0 + i + 1}')
        a('s_branch L_Fg')
        a.label('L_Fr')
        self.resid_poll('s47')
        a.label('L_Fg')
        self.gather_sum('s48', G, True)
        a.label('L_Fx')
        a('ds_write_b32 v15, v24'); a('s_waitcnt lgkmcnt(0)'); a('s_barrier')
        for ks in range(7): a(f'ds_read_b128 {vr(A + 4*ks, 4)}, v2 offset:{128 * ks}')
        a(f'ds_read_b128 {vr(X, 4)}, v1')
        for x in self.xrow_ops('s45', 's46'): a(x)
        self.stamp(3, 's49', 28)
        fill = [None] * 5 + ['s_waitcnt lgkmcnt(0)'] + self.stats_ops(X)
        self.gemv(4, 7, breg, ACC, A, fill=fill, nother=1)
        a(f'v_mul_f32 v22, v24, v{CSUM}'); a(f'v_mul_f32 v23, v24, v{CSUM+1}'); a('v_mul_f32 v25, v25, v25')
        for jj in (0, 2, 1, 3): self.rowsel(20 + jj // 2, ACC, [(jj, 10 if jj & 1 else 5)])
        a('v_sub_f32 v20, v20, v22'); a('v_sub_f32 v21, v21, v23')
        a('v_max_f32 v20, 0, v20'); a('v_mul_f32 v21, v21, v25'); a('v_mul_f32 v20, v20, v21')
        a('v_cvt_pk_bf16_f32 v20, v20, v20')
        a('ds_write_b16 v40, v20'); a('s_waitcnt lgkmcnt(0)'); a('s_barrier')
        for ks in range(2): a(f'ds_read_b128 {vr(A + 4*ks, 4)}, v2 offset:{2048 + 128 * ks}')
        a('v_mov_b32 v21, 0')
        self.gemv(7, 2, dreg, ACD, A)
        self.rowout(ACD, 's44', 's51')
        self.stamp(12, 's49', 28)
        a('s_add_u32 s49, s49, 1')
        a('s_cmp_eq_u32 s49, 0'); a('s_cbranch_scc1 L_Fret')
        a('s_cmp_lt_u32 s49, 8'); a('s_cbranch_scc1 L_Fsub')
        a('s_branch L_end')
        a.label('L_roleF')
        self.cq = list(self.cq0); done = 8 * (self.hq[1] - self.hq[0]) if self.hq else 0
        a('s_cmp_lt_u32 s3, 2'); a('s_cselect_b64 s[20:21], s[76:77], s[78:79]'); a(f's_mov_b32 s22, 0x{448 * 3584:x}'); a('s_mov_b32 s23, 0x20000')
        a('s_sub_u32 s2, s2, 16')
        a('v_mul_u32_u24 v6, 3584, v4')
        a('s_lshl_b32 s38, s2, 8'); a('s_and_b32 s39, s3, 1'); a('s_lshl_b32 s39, s39, 7'); a('s_add_u32 s38, s38, s39')
        a('v_add3_u32 v44, v6, v2, s38')
        self.table(88, 3584)
        pl = [dict(sub='L_dmaG', B=0, rd=[(breg(jj, ks) + 2 * rp, (jj >> 1) * 16384 + rp * 2048 + (jj & 1) * 256) for jj in range(4) for rp in range(4)]) for ks in range(7)]
        pl += [dict(sub='L_dmaD', B=1, rd=self.typeB_reads(dreg, i // 2, i % 2)) for i in range(4)]
        for i, p in enumerate(pl): p['slot'] = i % 4
        self.stamp(56, None, 30)
        for i in range(1 if self.ean else 2): self.issue(pl[i])
        self.stamp(57, None, 30)
        self.srd(28, 80, 1792 * 896); self.srd(68, 64, 3584)
        a('s_lshl_b32 s39, s2, 7')
        self.typeB('v11', 's39')
        self.consts()
        a('s_lshr_b32 s38, s3, 1'); a('s_lshl_b32 s38, s38, 13'); a('s_and_b32 s39, s3, 1'); a('s_lshl_b32 s39, s39, 9'); a('s_add_u32 s38, s38, s39'); a('v_add_u32 v9, s38, v9')
        self.x0off(); self.gather_offs()
        for b in range(4): self.vm(f'buffer_load_dword v{X0 + b}, v12, s[68:71], 0 offen offset:{b * 896}', 'x0')
        a('v_and_b32 v6, 31, v0'); a('s_lshl_b32 s38, s3, 6'); a('s_add_u32 s38, s38, 2048'); a('v_lshl_add_u32 v40, v6, 1, s38')
        a('s_lshl_b32 s40, s2, 10'); a('s_and_b32 s38, s40, 0x2000'); a('s_add_u32 s40, s40, s38'); a(f's_add_u32 s40, s40, 0x{ZOFF:x}')
        a('s_cmp_eq_u32 s2, 0'); a(f's_cselect_b32 s41, 0x{XAOFF:x}, s57')
        if done < 10: self.arm()
        elif done < 24: self.announce()
        if self.ean:
            assert not done
            self.issue(pl[1]); self.announce()
        self.stamp(58, None, 30)
        self.issue(pl[2])
        a('s_branch L_Fsub')
        a.label('L_Fret')
        self.issue(pl[3])
        self.stamp(59, None, 30)
        hooks = {2: lambda: self.announce(False)} if done < 10 and not self.ean else {}
        hooks[7] = self.preready
        for i in range(11):
            self.consume(pl[i], pl[i + 3] if 1 <= i < 8 else None, hooks.get(i))
            if self.ho and i == self.ho[2]: self.wo_pf('s2')
            self.stamp(41 + i, None, 26)
            if i == 7:
                self.stamp(20, None, 28)
                self.colsum(4, 7, breg, ACC)
                self.rowsel(CSUM, ACC, [(0, 5), (1, 10)]); self.rowsel(CSUM + 1, ACC, [(2, 5), (3, 10)])
        self.ready()
        a('s_branch L_Fsub')

    def wo_pf(self, head, add=0):
        a = self.a; p0, p1 = self.ho[:2]
        self.srd(24, 72, 4096 * 896)
        nb = (p1 - p0) * 28672; per = nb // 4
        a(f's_mul_i32 s38, {head}, 229376'); a(f's_mul_i32 s39, s3, {per}'); a('s_add_u32 s38, s38, s39'); a(f's_add_u32 s38, s38, {p0 * 28672 + add * 229376}')
        a('v_min_u32 v6, 55, v0'); a('v_lshlrev_b32 v6, 7, v6')
        for i in range(p1 - p0):
            self.vm(f'buffer_load_dword v45, v6, {W2}, s38 offen {self.hpol}', 'ho'); a('s_add_u32 s38, s38, 7168')
    def roleW(self):
        a = self.a
        self.cq = list(self.cq0); done = 8 * (self.hq[1] - self.hq[0]) if self.hq else 0
        self.consts()
        if done < 10: self.arm()
        if done < 24: self.announce()
        a('s_sub_u32 s2, s2, 30')
        if self.hpf: self.helper()
        if self.ho: self.wo_pf('s2', 14)
        a('s_cmp_lg_u32 s2, 0'); a('s_cbranch_scc1 L_end')
        self.near()
        self.srd(20, 82, 3584)
        self.x0off(); self.gather_offs()
        self.preready(); self.ready()
        G = 64
        a('s_mov_b32 s49, 0'); a(f's_add_u32 s47, s10, 0x{XAOFF + 16384:x}'); a(f's_add_u32 s48, s10, 0x{ZOFF + 4 * 32768:x}'); a('s_mov_b32 s44, 0')
        a.label('L_Wtop')
        if not self.mres: self.resid_poll('s47')
        self.gather_sum('s48', G, False, 's47' if self.mres else None)
        a(f'buffer_store_dword v24, v12, {W1}, s44 offen')
        self.stamp(12, 's49', 28)
        a('s_add_u32 s49, s49, 1'); a('s_add_u32 s47, s47, 2048'); a('s_add_u32 s48, s48, 32768'); a('s_add_u32 s44, s44, 896')
        a('s_cmp_lt_u32 s49, 4'); a('s_cbranch_scc1 L_Wtop')
        a('s_branch L_end')
    def helper(self):
        a = self.a
        hq, ho = self.hpf if isinstance(self.hpf, (list, tuple)) else (48, 48)
        a('s_lshl_b32 s38, s2, 2'); a('s_add_u32 s38, s38, s3')
        self.srd(20, 70, 448 * 8192); self.srd(24, 72, 4096 * 896)
        a('s_lshl_b32 s40, s38, 10'); a(f's_add_u32 s40, s40, {(448 - hq) * 8192}')
        l = self.lab('L_hq'); a(f's_mov_b32 s41, {hq}')
        if hq:
            a.label(l)
            a('s_waitcnt vmcnt(11)'); a(f'buffer_load_dwordx4 v[64:67], v1, {W1}, s40 offen {self.hpol}')
            a('s_add_u32 s40, s40, 8192'); a('s_sub_u32 s41, s41, 1'); a('s_cmp_lg_u32 s41, 0'); a(f's_cbranch_scc1 {l}')
        if ho:
            a('s_mul_i32 s40, s38, 458752'); a(f's_add_u32 s40, s40, {229376 - ho * 1024}'); a('s_add_u32 s42, s40, 229376')
            l = self.lab('L_ho'); a(f's_mov_b32 s41, {ho}')
            a.label(l)
            a('s_waitcnt vmcnt(10)'); a(f'buffer_load_dwordx4 v[64:67], v1, {W2}, s40 offen {self.hpol}')
            a(f'buffer_load_dwordx4 v[64:67], v1, {W2}, s42 offen {self.hpol}')
            a('s_add_u32 s40, s40, 1024'); a('s_add_u32 s42, s42, 1024'); a('s_sub_u32 s41, s41, 1'); a('s_cmp_lg_u32 s41, 0'); a(f's_cbranch_scc1 {l}')
        a('s_waitcnt vmcnt(0)')
        self.stamp(20, None, 28)

if __name__ == '__main__':
    kw = json.loads(sys.argv[2]) if len(sys.argv) > 2 else {}
    open(sys.argv[1], 'w').write(Gen(**kw).build())
```

```python
import sys, struct, json
from asmlib import Asm
NAME = "interleave_layers__mha_block_cached__glu_gated_reglu__decode"

QOFF = 0x0; YOFF = 0x10000; ZOFF = 0x50000; XAOFF = 0x90000; XBOFF = 0x98000; HOFF = 0x9c000; COFF = 0x9a000 - 0x2000 + 0x8000; POFF = 0x800000; DOFF = 0x400000
PB = 32768; PIB = 0x100000; PP2 = 0x80000; MLO = 16384 + 6144
OOB = 0x40000000
NC = 14; NW = 56
CS = 0.09016844005556021
def f2u(x): return struct.unpack('<I', struct.pack('<f', x))[0]

K_SRD = 's[8:11]'; V_SRD = 's[12:15]'; WS = 's[16:19]'; W1 = 's[20:23]'; W2 = 's[24:27]'; W3 = 's[28:31]'
DBG = 's[84:85]'
NCHAIN = 32
K4 = 's[88:91]'; V4 = 's[92:95]'
FULL = 'row_mask:0xf bank_mask:0xf'

def vr(b, n=1): return f'v{b}' if n == 1 else f'v[{b}:{b+n-1}]'
def ar(b, n=1): return f'a{b}' if n == 1 else f'a[{b}:{b+n-1}]'
def rr(b, n=1): return vr(b, n) if b < 256 else ar(b - 256, n)

class Gen:
    def __init__(self, diag=False, PF=65, depth=8, hpf=False, hpol='nt', cpf=False, rows=(16, 10, 7), hq=None, fake=0, CL=12, PF2=None, reord=1, lightO=0, split=True, tlb=0, fx=2, thr=None, wtlb=0, probe=None, kpol='nt', vpol='nt', par=None, nQ=48, nE=60, early=False, sub=None, qE=None, ring4=0, up4=False, ho=None, pos=None, home=0, hforce=None, lv=None, lvx=None, th=None, cps=None, rs=None, gs=14, kvonly=True, ed=False, mid=None, fast=((2, (73, 74, 75)), (3, (76, 77)), (4, (78, 79))), boost=None, fld=(2, 2), nQ1=None, cpon=None, odd=None, slow=None, xsl=0, loc=1, spf=None, mres=1, dual=1, hs=4, ean=1, SG=24, pw=12, flex=None, KF=52, TK=41, qmask=0x96, fw=(), fb=None, bst=None, fine=(), cla=0, arl=None, wsw=0, noarm=0, PFA=None, xpf=None, oarm=0, xpol='', fx2=None, p0=8,
                 p2l=((('u', 2), (73, 74, 75)), (('u', 3), (76, 77)), (('u', 4), (78, 79)), (('u', 9), (0,)), (('x', 0), (1,)), (('i', 0), (2,)), (('i', 2), (3,)), (('i', 4), (4,)), (('m', 0), (5,))),
                 p1l={'a': (6, 7), '1': (8, 9), '2': (10,), '3': (11, 12), '4': (13,), 'm': (14, 15)}):
        self.fine = list(fine); self.cla = cla; self.arl = arl; self.wsw = wsw; self.noarm = noarm; self.PFA = PFA; self.p0 = p0; self.fx2 = fx2; self.xpf = xpf; self.xpol = xpol; self.oarm = oarm; self.fb = fb; self.bst = bst; self.fw = fw; self.flex = flex; self.KF = KF; self.TK = TK; self.qmask = qmask
        if flex:
            rest = list(range(48, 80)); rest[KF - 40:KF - 40] = range(32, 40)
            self.ORD = list(range(24, 32)) + list(range(40, 48)) + list(range(24)) + rest
            assert sum(n for n, r in flex) == NW and sum(n * r for n, r in flex) == 512 and nQ >= KF + 8
        self.SG = SG; self.pw = pw; self.p2l = p2l; self.p1l = p1l
        self.dual = dual; self.hs = hs; self.ean = ean
        self.loc = loc; self.spf = spf or []; self.mres = mres
        self.xsl = xsl
        self.slow = slow
        self.odd = odd
        self.cpon = cpon
        self.nQ1 = nQ1 or nQ
        self.fast = fast; self.boost = boost; self.fld = fld; self.xst = 0
        if boost: lv = [depth, boost[1]]
        self.kvonly = kvonly; self.ed = ed; self.mid = mid
        self.lv = lv; self.lvx = lvx; self.th = th; self.cps = cps or []; self.rs = rs; self.dyn = False; self.gs = gs
        self.hforce = hforce
        self.home = home
        self.pos = pos
        self.ring4 = ring4; self.up4 = up4; self.ho = ho
        self.sub = sub; self.qE = qE
        self.par = par; self.nQ = nQ; self.nE = nE; self.early = early
        self.pmul = 10 if not probe or len(probe) < 3 else probe[2]; probe = probe and probe[:2]; self.probe = probe; self.role = 'X'; self.kpol = kpol; self.vpol = vpol
        self.a = Asm(); self.diag = diag; self.PF = PF; self.depth = depth; self.hpf = hpf; self.hpol = hpol; self.cpf = cpf; self.rows = rows; self.hq = hq; self.fake = fake; self.CL = CL; self.PF2 = PF2; self.reord = reord; self.lightO = lightO; self.split = split; self.tlb = tlb; self.fx = fx; self.thr = thr; self.wtlb = wtlb
        self.uid = 0
    def lab(self, p='L'):
        self.uid += 1; return f'{p}_{self.uid}'

    def bits(self, dst, lane, tmp, mp):
        a = self.a; first = True
        for lb, n, ab in mp:
            if first:
                a(f'v_bfe_u32 {dst}, {lane}, {lb}, {n}')
                if ab: a(f'v_lshlrev_b32 {dst}, {ab}, {dst}')
                first = False
            else:
                a(f'v_bfe_u32 {tmp}, {lane}, {lb}, {n}')
                a(f'v_lshl_add_u32 {dst}, {tmp}, {ab}, {dst}')
    def srd(self, base, lo, size):
        a = self.a
        a(f's_mov_b64 s[{base}:{base+1}], s[{lo}:{lo+1}]')
        a(f's_mov_b32 s{base+2}, 0x{size:x}'); a(f's_mov_b32 s{base+3}, 0x20000')
    def timeout(self):
        self.a('s_sub_u32 s52, s52, 1'); self.a('s_cbranch_scc1 L_bail')
        if self.xsl and self.role != 'S': self.a(f's_sleep {self.xsl}')
    FLAG = 4096; CNTA = 16; CNTB = 144
    def wait_counter(self, va, vd, vt, off, n, pre=False):
        a = self.a; l = self.lab('L_cnt'); c = self.lab('L_cntc')
        if pre: a(f's_branch {c}')
        else: a(f'v_mov_b32 v{va}, 0')
        a.label(l)
        self.timeout()
        a(f'global_load_dword v{vd}, v{va}, {DBG} offset:{off} sc1'); a('s_waitcnt vmcnt(0)')
        a.label(c)
        a(f'v_and_b32 v{vt}, 0xff, v{vd}'); a(f'v_cmp_gt_u32 vcc, {n}, v{vt}'); a(f's_cbranch_vccnz {l}')
    def claim(self, va, vd, vr_):
        a = self.a; l = self.lab('L_cl')
        a('s_lshl_b32 s38, 1, s101'); a(f'v_mov_b32 v{va}, s100'); a(f'v_mov_b32 v{vd}, s38')
        a('s_or_b32 s38, s3, s7')
        a('s_waitcnt lgkmcnt(0)')
        a(f's_cbranch_scc1 {l}')
        a('s_mov_b64 exec, 1')
        a(f'global_atomic_or v{vr_}, v{va}, v{vd}, {DBG} sc0 sc1')
        a('s_mov_b64 exec, -1')
        a.label(l)
    def confirm(self, vr_, t):
        a = self.a; l = self.lab('L_rs'); w = self.lab('L_rw')
        a(f'v_mov_b32 v{t}, 0')
        a('s_cmp_lg_u32 s3, 0'); a(f's_cbranch_scc1 {l}')
        a('s_movk_i32 s38, 0x100'); a('s_cmp_lg_u32 s7, 0'); a(f's_cbranch_scc1 {w}')
        a(f'v_readfirstlane_b32 s39, v{vr_}'); a('s_bitcmp1_b32 s39, s101'); a(f's_cbranch_scc0 {w}')
        a('s_call_b64 s[96:97], L_lost')
        a.label(w)
        a(f'v_mov_b32 v{t+1}, s38'); a(f'ds_write_b32 v{t}, v{t+1} offset:{self.FLAG}'); a('s_waitcnt lgkmcnt(0)')
        a.label(l)
        a('s_barrier')
        a(f'ds_read_b32 v{t+1}, v{t} offset:{self.FLAG}'); a('s_waitcnt lgkmcnt(0)')
        a(f'v_readfirstlane_b32 s38, v{t+1}'); a('s_cmp_lg_u32 s38, 0x100'); a('s_cbranch_scc1 L_redo')
    def signal(self, va, vd, off, val):
        a = self.a; l = self.lab('L_sg')
        a('s_cmp_lg_u32 s3, 0'); a(f's_cbranch_scc1 {l}')
        a('s_mov_b64 exec, 1'); a(f'v_mov_b32 v{va}, 0'); a(f'v_mov_b32 v{vd}, {val}')
        a(f'global_atomic_add v{va}, v{vd}, {DBG} offset:{off} sc1')
        a('s_mov_b64 exec, -1')
        a.label(l)
    def rare_paths(self):
        a = self.a
        a.label('L_odd')
        a('s_waitcnt lgkmcnt(0)'); a('v_mov_b32 v1, 0')
        a('s_cmp_lg_u32 s3, 0'); a('s_cbranch_scc1 L_odd2')
        a('s_and_b32 s38, s36, 3'); a('s_lshl_b32 s38, s38, 6'); a('s_lshr_b32 s39, s36, 2'); a('s_lshl3_add_u32 s38, s39, s38')
        a('v_mov_b32 v2, s38'); a('s_lshl_b32 s39, s37, 3'); a('s_movk_i32 s41, 24')
        a.label('L_odd1')
        a(f'global_load_dword v3, v2, {DBG} sc1'); a('s_waitcnt vmcnt(0)')
        a('v_readfirstlane_b32 s38, v3'); a('s_lshr_b32 s38, s38, s39'); a('s_and_b32 s38, s38, 0xff'); a('s_bcnt1_i32_b32 s40, s38')
        a('s_cmp_ge_u32 s40, 7'); a('s_cselect_b32 s41, 0, s41'); a('s_sub_u32 s41, s41, 1'); a('s_cbranch_scc0 L_odd1')
        a('s_ff0_i32_b32 s38, s38'); a('v_mov_b32 v2, s38'); a(f'ds_write_b32 v1, v2 offset:{self.FLAG + 4}'); a('s_waitcnt lgkmcnt(0)')
        a.label('L_odd2')
        a('s_barrier')
        a(f'ds_read_b32 v2, v1 offset:{self.FLAG + 4}'); a('s_waitcnt lgkmcnt(0)')
        a('v_readfirstlane_b32 s38, v2'); a('s_mov_b32 s6, 1'); a('s_branch L_even')
        a.label('L_lost')
        a('s_waitcnt vmcnt(0)')
        self.bits('v62', 'v0', 'v63', [(0, 2, 6), (2, 1, 3)])
        a.label('L_lost1')
        a(f'global_load_dword v60, v62, {DBG} sc1'); a('s_waitcnt vmcnt(0)')
        a('v_cmp_ne_u32 vcc, -1, v60'); a('s_movk_i32 s38, 0x300'); a('s_cbranch_vccz L_lost2')
        a('s_getreg_b32 s39, hwreg(HW_REG_XCC_ID, 0, 3)'); a('s_ff1_i32_b32 s38, vcc_lo')
        a('s_bitcmp1_b32 vcc_lo, s39'); a('s_cselect_b32 s38, s39, s38')
        a('s_nop 3'); a('v_readlane_b32 s39, v60, s38'); a('v_readlane_b32 s40, v62, s38'); a('s_ff0_i32_b32 s39, s39')
        a('s_lshl_b32 s41, 1, s39'); a('v_mov_b32 v61, s41'); a('v_mov_b32 v63, s40')
        a('s_mov_b64 exec, 1'); a(f'global_atomic_or v60, v63, v61, {DBG} sc0 sc1'); a('s_mov_b64 exec, -1'); a('s_waitcnt vmcnt(0)')
        a('v_readfirstlane_b32 s40, v60'); a('s_bitcmp1_b32 s40, s39'); a('s_cbranch_scc1 L_lost1')
        a('s_lshl_b32 s38, s38, 5'); a('s_add_u32 s38, s38, s39'); a('s_bitset1_b32 s38, 9')
        a.label('L_lost2')
        a('s_setpc_b64 s[96:97]')
        a.label('L_redo')
        a('s_bitcmp1_b32 s38, 8'); a('s_cbranch_scc1 L_bail')
        a('s_waitcnt vmcnt(0) lgkmcnt(0)'); a('s_barrier')
        a('s_load_dwordx16 s[64:79], s[0:1], 0')
        a('s_load_dwordx8 s[80:87], s[0:1], 64')
        a('s_bfe_u32 s36, s38, 0x30005'); a('s_and_b32 s2, s38, 31'); a('s_mov_b32 s7, 1')
        a('s_branch L_role')
    def stamp(self, idx, sidx=None, t0=20, src='s62'):
        if self.probe and not self.diag:
            role, want = self.probe
            if role != self.role or (sidx is None and idx != want) or (sidx and not (0 <= want - idx < 9)): return
            a = self.a
            a('s_waitcnt lgkmcnt(0)'); a('s_memrealtime s[62:63]'); a('s_waitcnt lgkmcnt(0)')
            if sidx: a(f's_cmp_eq_u32 {sidx}, {want - idx}'); a('s_cselect_b32 s61, s62, s61')
            else: a('s_mov_b32 s61, s62')
            return
        if not self.diag: return
        a = self.a
        a('s_waitcnt lgkmcnt(0)'); a('s_memrealtime s[62:63]'); a('s_waitcnt lgkmcnt(0)')
        a(f'v_mov_b32 v{t0}, {src}')
        if sidx: a(f's_lshl_b32 s60, {sidx}, 2'); a('s_add_u32 s60, s60, s61')
        else: a('s_mov_b32 s60, s61')
        a(f'v_mov_b32 v{t0+1}, 0')
        a('s_mov_b64 exec, 1')
        a(f'buffer_store_dword v{t0}, v{t0+1}, {WS}, s60 offen offset:{idx*4}')
        a('s_mov_b64 exec, -1')
    def diagbase(self):
        a = self.a
        a('s_and_b32 s60, s61, 31'); a('s_lshr_b32 s61, s61, 5'); a('s_lshl3_add_u32 s61, s60, s61')
        a('s_lshl2_add_u32 s61, s61, s3'); a('s_lshl_b32 s61, s61, 8'); a(f's_add_u32 s61, s61, 0x{DOFF:x}')
    def maxtree(self, regs, t):
        a = self.a; regs = list(regs)
        a(f'v_max3_u32 v{t}, v{regs[0]}, v{regs[1]}, v{regs[2 if len(regs) > 2 else 1]}')
        regs = regs[3:]
        while regs:
            x = regs[:2]; regs = regs[2:]
            a(f'v_max3_u32 v{t}, v{t}, v{x[0]}, v{x[-1]}')
        a(f'v_cmp_eq_u32 vcc, -1, v{t}')

    def build(self):
        a = self.a
        if self.diag: a('s_memrealtime s[34:35]')
        a('s_cmp_ge_u32 s2, 256'); a('s_cbranch_scc1 L_end2')
        if self.probe: a('s_memrealtime s[62:63]'); a('s_waitcnt lgkmcnt(0)'); a('s_mov_b32 s60, s62'); a('s_mov_b32 s61, s62')
        a('s_load_dwordx16 s[64:79], s[0:1], 0')
        a('s_load_dwordx8 s[80:87], s[0:1], 64')
        a('s_getreg_b32 s36, hwreg(HW_REG_XCC_ID, 0, 3)')
        a('s_getreg_b32 s38, hwreg(HW_REG_HW_ID, 8, 4)'); a('s_getreg_b32 s37, hwreg(HW_REG_HW_ID, 13, 2)')
        a('v_lshrrev_b32 v1, 6, v0'); a('v_and_b32 v0, 63, v0')
        a('v_readfirstlane_b32 s3, v1')
        a('s_mov_b32 s52, 400000'); a('s_mov_b64 s[6:7], 0')
        if self.fake == 1: a('s_and_b32 s38, s38, 6')
        if self.fake == 2: a('s_and_b32 s36, s36, 5')
        if self.fake == 3: a('s_and_b32 s36, s2, 7'); a('s_lshr_b32 s38, s2, 5'); a('s_mov_b32 s37, 0')
        if self.fake == 4: a('s_mov_b32 s36, 0'); a('s_mov_b32 s38, 0'); a('s_mov_b32 s37, 0')
        if self.fake == 5:
            a('s_bitcmp0_b32 s37, 0'); a('s_cselect_b32 s39, 8, 0'); a('s_cmp_eq_u32 s38, 3'); a('s_cselect_b32 s38, s39, s38')
        a('s_bitcmp0_b32 s37, 0'); a('s_cselect_b32 s39, 8, 0'); a('s_cmp_eq_u32 s38, s39'); a('s_cbranch_scc1 L_odd')
        a.label('L_even')
        a('s_and_b32 s38, s38, 7'); a('s_lshl3_add_u32 s2, s37, s38')
        if self.fake == 6: a('s_cmp_lg_u32 s38, 7'); a('s_cselect_b32 s39, 5, 0'); a('s_xor_b32 s36, s36, s39')
        if self.fake == 7: a('s_cmp_eq_u32 s2, 10'); a('s_cselect_b32 s39, 1, 0'); a('s_xor_b32 s36, s36, s39')
        if self.fake == 8: a('s_cmp_eq_u32 s2, 7'); a('s_cselect_b32 s39, 4, 0'); a('s_xor_b32 s36, s36, s39')
        a.label('L_role')
        a('s_mov_b32 s101, s2'); a('s_and_b32 s100, s36, 3'); a('s_lshl_b32 s100, s100, 6'); a('s_lshr_b32 s38, s36, 2'); a('s_lshl3_add_u32 s100, s38, s100')
        if self.cpf:
            a('s_getpc_b64 s[38:39]'); a.label('L_pc')
            a('s_lshl_b32 s37, s2, 2'); a('s_add_u32 s37, s37, s3'); a('s_lshl_b32 s37, s37, 10')
            a('s_cmp_ge_u32 s37, L_end-L_pc'); a('s_cbranch_scc1 L_nopf')
            a('v_lshl_add_u32 v2, v0, 4, s37'); a('v_min_u32 v2, L_end-L_pc-16, v2')
            a('global_load_dwordx4 v[60:63], v2, s[38:39]')
            a.label('L_nopf')
        a('s_getreg_b32 s38, hwreg(HW_REG_XCC_ID, 0, 4)'); a('s_cmp_eq_u32 s38, s36'); a('s_cselect_b32 s5, 1, 0x101')
        a('s_lshr_b32 s38, s2, 4'); a('s_lshl1_add_u32 s36, s36, s38'); a('s_and_b32 s37, s2, 7'); a('s_bfe_u32 s38, s2, 0x10003')
        a('s_cmp_eq_u32 s37, 7'); a('s_cbranch_scc1 L_chain')
        self.role = 'S'; self.stream()
        a.label('L_chain'); self.role = 'C'
        self.chain_common()
        self.role = 'W'; self.roleW(); self.role = 'O'; self.roleOQ(); self.role = 'F'; self.roleF()
        self.rare_paths()
        a.label('L_bail')
        a('s_mov_b64 exec, 1')
        a('v_mov_b32 v0, 32'); a('v_mov_b32 v1, 1')
        a(f'global_atomic_add v0, v1, {DBG} sc1')
        a('v_mov_b32 v0, 36'); a('v_mov_b32 v1, s2')
        a(f'global_store_dword v0, v1, {DBG} sc1')
        a.label('L_end')
        if self.probe:
            a('s_cmp_eq_u32 s60, s61'); a('s_cbranch_scc1 L_end2')
            a('s_sub_u32 s61, s61, s60'); a(f's_mul_i32 s61, s61, {self.pmul}'); a('s_add_u32 s61, s61, 7000'); a('s_add_u32 s61, s61, s60')
            a.label('L_pspin')
            a('s_memrealtime s[62:63]'); a('s_waitcnt lgkmcnt(0)'); a('s_sub_u32 s62, s62, s61'); a('s_cmp_lt_i32 s62, 0'); a('s_cbranch_scc1 L_pspin')
        a.label('L_end2')
        body = a.finish()
        hdr = open('cdna_kernels/' + NAME + '.s.ref').read().split('\n')
        top = [l for l in hdr if l.startswith(';') and '@launch' not in l]
        s = '\n'.join(top) + '\n; @launch grid=(256,1,1) block=(256,1,1) lds=163840\n'
        s += f'.amdgcn_target "amdgcn-amd-amdhsa--gfx950"\n.text\n.globl {NAME}_kernel\n.p2align 8\n.type {NAME}_kernel,@function\n{NAME}_kernel:\n'
        s += body
        s += f'''s_endpgm
.section .rodata,"a"
.p2align 6
.amdhsa_kernel {NAME}_kernel
  .amdhsa_next_free_vgpr 512
  .amdhsa_next_free_sgpr 102
  .amdhsa_accum_offset 256
  .amdhsa_group_segment_fixed_size 0
  .amdhsa_kernarg_size 96
  .amdhsa_user_sgpr_count 2
  .amdhsa_user_sgpr_kernarg_segment_ptr 1
  .amdhsa_system_sgpr_workgroup_id_x 1
.end_amdhsa_kernel
'''
        return s

    CA = [0, 4096]; Q1L = 8192; MA = [10240, 10272]; CO = [10304, 10308]; MA1 = [10240, 10336]; ST = 10496; TB = 11520; WLDS = 37 * 1024
    vK, vV, vDs, vL16, vQo, vIQ, vIP = 1, 2, 3, 4, 5, 6, 7
    vM = 8; vT = 12; vBias = 15; vMC = 16; vL = 17; vQ = 24; vAcc = 32; vH = 48
    def kreg(self, s, u):
        return 64 + 96 * s + 16 * u if u < 6 else 256 + 128 * s + 16 * (u - 6)
    def vreg0(self, s, P, t):
        return 256 + 128 * s + 64 + 8 * (4 * P + t)
    def tile(self, n):
        if n < 40:
            u, t = n // 4, n % 4
            return 0, u // 2, t * 128 + (u & 1) * 512
        m = n - 40; g = m // 8; k = m % 8
        if g < 4: P, t = k // 4, k % 4
        else: t, P = k // 2, k % 2
        return 1, g, t * 128 + P * 1024
    def ldsslot(self, s, n):
        if n <= 72: return (n - 56) + 17 * s
        return 34 + (n - 73)
    ORD = list(range(24, 40)) + list(range(24)) + list(range(40, 80))
    def load(self, s, p, wait=True):
        a = self.a; n = self.ORD[p]
        kv, g, imm = self.tile(n)
        if p == 0 and not self.prologue:
            for j in range(4 if self.flex or self.fx2 else 5): a(f's_add_u32 s{40+j}, s{40+j}, 0x2000000')
            if self.fx2: a('s_mov_b32 s44, s24'); a('s_lshl_b32 s90, s25, 9'); a('s_add_u32 s90, s90, s44'); a('s_min_u32 s90, s90, s10'); a('s_mov_b32 s94, s90')
            elif not self.flex: a('s_add_u32 s90, s90, 0x2000000'); a('s_min_u32 s90, s90, s10'); a('s_mov_b32 s94, s90')
        va = f'v{self.vV if kv else self.vK}'; srd = V_SRD if kv else K_SRD
        if g == 4: srd = V4 if kv else K4
        dst = None
        if n < 40: dst = self.kreg(s, n // 4) + 4 * (n % 4)
        elif n < 56:
            m = n - 40; dst = self.vreg0(s, (m % 8) // 4, m % 4) + 4 * (m // 8)
        elif n >= 76: dst = self.kreg(1 - s, 1) + 4 * (n - 76)
        if dst is None:
            a(f's_add_u32 m0, s45, {self.ldsslot(s, n) * 1024 - imm}')
        depth = self.lv[-1] if self.dyn else self.depth
        if wait is not True and wait: depth = wait
        def allow(d):
            pos = [i for i, x in enumerate(reversed(self.vmq)) if x[0] != 'cp' and not (self.flex and x[0] in (0, 1) and self.KF <= x[1] < self.KF + 8 and (x[1] - self.KF) % 8 not in self.fw)]
            return pos[d - 1] if len(pos) >= d else None
        if wait is True and self.dyn:
            lows = [allow(d) for d in self.lv[:-1] if allow(d) is not None]
            labs = [self.lab('L_lv') for _ in lows]
            for i in reversed(range(len(lows))):
                a(f's_cmp_gt_u32 s59, {i}'); a(f's_cbranch_scc1 {labs[i]}')
            for i, k in enumerate(lows):
                a(f's_waitcnt vmcnt({k})'); a.label(labs[i])
        if wait and allow(depth) is not None:
            k = allow(depth)
            a(f's_waitcnt vmcnt({k})'); self.vmq = self.vmq[-k:]
        if dst is None:
            a(f'buffer_load_dwordx4 {va}, {srd}, s{40+g} offen offset:{imm} {self.vpol if kv else self.kpol} lds')
        else:
            a(f'buffer_load_dwordx4 {rr(dst, 4)}, {va}, {srd}, s{40+g} offen offset:{imm} {self.vpol if kv else self.kpol}')
        self.vmq.append((s, p))
    def need_vm(self, tag):
        if tag in self.vmq:
            k = len(self.vmq) - 1 - self.vmq.index(tag)
            if self.xst:
                l = self.lab('L_xs'); self.a('s_cmp_lg_u32 s58, 0'); self.a(f's_cbranch_scc1 {l}')
                self.a(f's_waitcnt vmcnt({k})'); self.a.label(l); self.a(f's_waitcnt vmcnt({k + self.xst})')
            else: self.a(f's_waitcnt vmcnt({k})')
            self.vmq = self.vmq[len(self.vmq) - k:] if k else []
    def ds(self, text, tag=None):
        self.a(text); self.lq.append(tag)
    def need_lds(self, tag):
        if tag in self.lq:
            i = len(self.lq) - 1 - self.lq[::-1].index(tag)
            k = len(self.lq) - 1 - i
            k = min(k, 15)
            self.a(f's_waitcnt lgkmcnt({k})'); self.lq = self.lq[len(self.lq) - k:] if k else []
    def qload(self):
        a = self.a
        a(f'buffer_load_dwordx4 {vr(self.vQ, 4)}, v{self.vQo}, {WS}, s46 offen sc1')
        a(f'buffer_load_dwordx4 {vr(self.vQ + 4, 4)}, v{self.vQo}, {WS}, s46 offen offset:256 sc1')
    def wpf(self, n):
        a = self.a
        for nn, mat, k in self.spf:
            if nn != n: continue
            a('s_lshl2_add_u32 s32, s37, s3')
            for lo, size, rs, lpr, hs, rows in {'q': [(70, 448 * 8192, 8192, 4, 512, 448)], 'o': [(72, 4096 * 896, 128, 1, 229376, 1792)],
                          'g': [(76, 448 * 3584, 3584, 2, 256, 448), (78, 448 * 3584, 3584, 2, 256, 448)], 'd': [(80, 1792 * 896, 128, 1, 114688, 896)]}[mat]:
                assert 56 * k <= rows and k * lpr <= 64
                self.srd(28, lo, size)
                a(f's_mul_i32 s38, s36, {hs}'); a(f's_mul_i32 s33, s32, {k * rs}'); a('s_add_u32 s38, s38, s33'); a(f's_add_u32 s38, s38, {(rows - 56 * k) * rs}')
                if mat == 'g': a('s_cmp_lt_u32 s36, 14'); a(f's_cselect_b32 s38, s38, 0x{OOB:x}')
                if lpr == 1: a('v_lshlrev_b32 v18, 7, v0')
                else:
                    a(f'v_lshrrev_b32 v18, {lpr // 2}, v0'); a(f'v_mul_u32_u24 v18, {rs}, v18'); a(f'v_and_b32 v19, {lpr - 1}, v0'); a('v_lshl_add_u32 v18, v19, 7, v18')
                L = k * lpr
                a(f's_mov_b32 exec_lo, 0x{(1 << min(L, 32)) - 1:x}'); a(f's_mov_b32 exec_hi, 0x{(1 << max(L - 32, 0)) - 1:x}')
                a(f'buffer_load_dword v17, v18, s[28:31], s38 offen')
                a('s_mov_b64 exec, -1')
    def zero_acc(self):
        return [f'v_mov_b64 {vr(self.vAcc + 2 * i, 2)}, 0' for i in range(8)]

    def stream(self):
        a = self.a
        self.vmq = []; self.lq = []; self.prologue = True
        a('s_mul_i32 s38, s38, 7'); a('s_add_u32 s37, s37, s38')
        if self.diag: a('s_mul_i32 s61, s36, 14'); a('s_add_u32 s61, s61, s37'); a('s_add_u32 s61, s61, 32'); self.diagbase()
        a('s_lshl_b32 s39, s37, 2'); a('s_add_u32 s39, s39, s3'); a('s_lshl_b32 s38, s39, 13')
        a('s_lshl_b32 s44, s36, 21'); a('s_add_u32 s40, s44, s38'); a(f's_add_u32 s43, s40, {3 * NW * 8192}')
        self.bits(f'v{self.vK}', 'v0', 'v18', [(0, 1, 4), (4, 2, 5), (2, 1, 10), (1, 1, 11), (3, 1, 12)])
        if not self.cla: self.claim(22, 23, 24)
        else: a('s_waitcnt lgkmcnt(0)')
        self.wpf(-1)
        self.srd(8, 66, 0x8000000)
        if self.diag: a('s_memrealtime s[98:99]')
        for p in range(self.p0): self.load(0, p, wait=False)
        if self.tlb:
            a('s_lshl_b32 s38, s3, 25'); a('s_add_u32 s38, s38, s44')
            a('s_load_dword s96, s[66:67], s38'); a('s_load_dword s97, s[68:69], s38')
            if self.tlb > 1: a('s_add_u32 s38, s38, 0x1fff00'); a('s_load_dword s96, s[66:67], s38'); a('s_load_dword s97, s[68:69], s38')
        if self.cla: self.claim(22, 23, 24); assert self.CL >= 15
        self.wpf(7)
        a(f's_lshl_b32 s47, s36, 15'); a('s_lshl_b32 s38, s37, 10'); a('s_and_b32 s48, s38, 0x2000'); a('s_add_u32 s38, s38, s48')
        a('s_add_u32 s47, s47, s38'); a(f's_add_u32 s47, s47, 0x{POFF:x}')
        a('s_lshl_b32 s48, s37, 7'); a('s_sub_u32 s48, s48, s38'); a(f's_add_u32 s48, s48, {MLO}')
        a(f'v_lshlrev_b32 v{self.vL16}, 4, v0')
        for j in range(1, 3): a(f's_add_u32 s{40+j}, s40, {j * NW * 8192}')
        self.srd(88, 66, 0); self.srd(92, 68, 0)
        if self.flex:
            a(f's_add_u32 s21, s44, {4 * NW * 8192}'); a('s_lshl_b32 s20, s36, 7'); a(f's_add_u32 s20, s20, 0x{HOFF:x}')
        else:
            if self.fx2:
                assert sum(n for n, r in self.fx2) == NW and sum(n * r for n, r in self.fx2) == 512 and self.PFA
                a(f's_add_u32 s21, s44, {4 * NW * 8192 + 0x2000000}'); a('s_lshl_b32 s20, s36, 7'); a(f's_add_u32 s20, s20, 0x{HOFF:x}')
            a('s_mul_i32 s38, s39, 9'); a('s_min_u32 s51, s37, 8'); a('s_add_u32 s38, s38, s51')
            a('s_cmp_lt_u32 s37, 8'); a('s_cselect_b32 s22, s3, 0'); a('s_cmp_eq_u32 s22, 3'); a('s_cselect_b32 s22, 10, 9'); a('s_mov_b32 s23, s22')
            a('s_lshl_b32 s38, s38, 9')
            a(f's_add_u32 s44, s44, {4 * NW * 8192}'); a('s_add_u32 s44, s44, s38')
            a('s_lshl_b32 s38, s22, 9'); a('s_add_u32 s90, s44, s38'); a('s_mov_b32 s94, s90')
        self.srd(12, 68, 0x8000000); self.srd(16, 86, 0x20000000)
        if self.wsw:
            a('s_lshl_b32 s38, s3, 20'); a('s_add_u32 s38, s38, s47'); a(f'buffer_load_dword v17, off, {WS}, s38 sc1')
        self.stamp(0); self.stamp(32, src='s34'); self.stamp(33, src='s98')
        self.bits(f'v{self.vV}', 'v0', 'v18', [(0, 3, 4), (5, 1, 9), (4, 1, 11), (3, 1, 12)])
        a(f's_mul_i32 s45, s3, {self.WLDS}'); a(f's_add_u32 s45, s45, {self.TB}')
        a(f'v_add_u32 v{self.vDs}, s45, v{self.vL16}')
        self.bits(f'v{self.vQo}', 'v0', 'v18', [(0, 2, 4), (4, 2, 6)])
        a('v_and_b32 v18, 2, v0'); a('v_cmp_eq_u32 vcc, 2, v18')
        a(f'v_mov_b32 v{self.vIQ}, 0x44444444'); a('v_mov_b32 v18, 0xeeeeeeee'); a(f'v_cndmask_b32 v{self.vIQ}, v{self.vIQ}, v18, vcc')
        a('v_and_b32 v18, 3, v0'); a('s_mov_b32 s38, 0x55555555'); a(f'v_mul_lo_u32 v{self.vIP}, v18, s38')
        a('v_and_b32 v18, 4, v0'); a('v_cmp_eq_u32 vcc, 4, v18')
        a('v_mov_b32 v18, 0xffff'); a('v_mov_b32 v19, 0xffff0000')
        M = self.vM
        a(f'v_cndmask_b32 v{M}, v18, 0, vcc'); a(f'v_cndmask_b32 v{M+1}, 0, v18, vcc')
        a(f'v_cndmask_b32 v{M+2}, v19, 0, vcc'); a(f'v_cndmask_b32 v{M+3}, 0, v19, vcc')
        self.bits(f'v{self.vBias}', 'v0', 'v19', [(4, 1, 0), (2, 1, 1), (1, 1, 2), (3, 1, 3), (5, 1, 4)])
        a('s_lshl_b32 s46, s3, 4'); a('s_add_u32 s46, s46, s36'); a('s_lshl_b32 s46, s46, 9')
        a('s_mov_b32 s49, 0'); a(f's_mov_b32 s51, 0x{f2u(CS):x}')
        a(f's_mov_b32 s53, {self.Q1L}'); a('s_lshl_b32 s54, s3, 10'); a('s_lshl_b32 s55, s3, 3')
        a('s_lshl_b32 s56, s36, 9'); a(f's_add_u32 s56, s56, 0x{QOFF + 3 * 8192:x}')
        a('v_mov_b32 v18, 0'); a('v_mov_b32 v19, 0')
        a(f'ds_write_b64 v18, v[18:19] offset:{self.CO[0]}')
        a('s_lshl_b32 s57, s3, 8'); a(f's_add_u32 s57, s57, {self.ST}'); a('s_mov_b32 s58, 0'); a('s_lshl_b32 s4, s5, 23'); a('s_and_b32 s4, s4, 0x80000000')
        if self.lv:
            mid = self.lv.index(self.depth) if self.mid is None else self.mid
            a(f's_mov_b32 s59, {mid if not self.slow else self.slow[0]}')
            if self.slow and len(self.slow) > 3: a('s_cmp_ge_u32 s36, 8'); a(f's_cselect_b32 s59, {self.slow[3]}, s59')
            if self.cps:
                a('s_lshl2_add_u32 s24, s37, s3'); a('s_lshl_b32 s24, s24, 7'); a(f's_add_u32 s24, s24, 0x{COFF:x}')
                lo = (mid if not self.slow else self.slow[0]) - 1
                a(f's_mov_b32 s20, 0x{OOB:x}'); a(f's_mov_b32 s21, {-self.th[lo] if lo >= 0 else 100}'); a('s_mov_b32 s22, 0')
            if self.odd:
                a('s_or_b32 s38, s6, s7'); a(f's_cselect_b32 s59, {mid}, s59')
                if self.cps: a(f's_cselect_b32 s21, {-self.th[-1]}, s21')
        assert not self.cps
        if self.bst: a('s_mov_b32 s26, s59')
        LP = {tuple(k): v for k, v in self.p2l}
        N1 = sum(1 for v in LP.values() for x in v if x < 40); N0 = N1 + sum(len(v) for v in self.p1l.values())
        assert N0 <= 16
        for p in range(self.p0, N0):
            self.load(0, p, wait=self.pw[min(p - self.p0, len(self.pw) - 1)] if isinstance(self.pw, list) else self.pw)
            if p == self.CL: self.armS()
            self.wpf(p)
        self.prologue = False
        entry_vmq = [(0, i) for i in range(N0)]; self.vmq = list(entry_vmq)
        nQ = self.nQ
        for s in range(2):
            a.label(f'L_A{s}')
            assert [(x[0] ^ s, x[1]) for x in self.vmq] == entry_vmq, (self.vmq, entry_vmq)
            self.lq = []
            n = N0; self.dyn = bool(self.lv)
            while n < 73:
                if self.slow and not self.fb and (s, n) == tuple(self.slow[1:3]): a(f's_max_u32 s59, s59, {mid}')
                if self.bst and n == self.bst[1]: a('s_mov_b32 s59, s26')
                if s == 0 and n in self.fine:
                    a('s_mul_i32 s99, s49, 5'); self.stamp(44 + self.fine.index(n), 's99', 18)
                for i, (c0, c1) in enumerate(self.cps):
                    r = 16 + i % 2
                    if n == c1:
                        self.need_vm(('cp', i))
                        a(f'v_readfirstlane_b32 s38, v{r}'); a(f's_sub_u32 s38, s38, s{25 + i % 2}'); a('s_mov_b32 s59, 0')
                        for t in self.th: a(f's_cmp_ge_i32 s38, {t}'); a('s_addc_u32 s59, s59, 0')
                for i, (c0, c1) in enumerate(self.cps):
                    r = 16 + i % 2
                    if n == c0:
                        assert not (c0 <= nQ + 3 and c1 > nQ) and c1 < 73
                        a(f'v_mov_b32 v{r}, 1'); a(f's_mov_b32 s{25 + i % 2}, s21'); a('s_add_u32 s21, s21, s22')
                        a('s_mov_b64 exec, 1'); a(f'buffer_atomic_add v{r}, off, {WS}, s20 sc0 sc1'); a('s_mov_b64 exec, -1')
                        self.vmq.append(('cp', i))
                if self.flex and n == self.KF:
                    self.need_vm(('cp', 0))
                    R = f's{22 + s}'
                    a('v_readfirstlane_b32 s38, v16'); a('s_add_u32 s38, s38, 1')
                    a(f's_mov_b32 {R}, {self.flex[0][1]}'); a(f's_mul_i32 s44, s38, {R}')
                    b = 0
                    for (n0, r0), (n1, r1) in zip(self.flex, self.flex[1:]):
                        b += n0
                        a(f's_sub_i32 s39, s38, {b}'); a('s_max_i32 s33, s39, 0'); a(f's_mul_i32 s33, s33, {r0 - r1}'); a('s_sub_u32 s44, s44, s33')
                        a('s_cmp_ge_i32 s39, 0'); a(f's_cselect_b32 {R}, {r1}, {R}')
                    a('s_lshl_b32 s44, s44, 9'); a('s_add_u32 s44, s44, s21'); a('s_add_u32 s21, s21, 0x2000000')
                    a(f's_lshl_b32 s90, {R}, 9'); a('s_add_u32 s90, s90, s44'); a('s_min_u32 s90, s90, s10'); a('s_mov_b32 s94, s90')
                    self.stamp(40, 's49', 18, 's38')
                if n == nQ:
                    self.need_vm((s, self.KF + 7 if self.flex else 39))
                    if s == 0:
                        a('s_cmp_eq_u32 s49, 0'); a('s_cbranch_scc1 L_st0'); st_in = list(self.vmq)
                    self.qk1(s, {('u', 1): [(s, n)], ('u', 6): [(s, n + 1)], ('x', 0): [(s, n + 2)], ('e', 0): [(s, n + 3)]}, True)
                    n += 4
                    if s == 0: a.label('L_st0r'); st_out = list(self.vmq)
                    for z in self.zero_acc(): a(z)
                    continue
                self.load(s, n)
                if s == 0 and (n == self.CL or any(x[0] == n for x in self.spf)):
                    l = self.lab('L_it0')
                    a('s_cmp_lg_u32 s49, 0'); a(f's_cbranch_scc1 {l}')
                    if n == self.CL: self.armS()
                    self.wpf(n)
                    a.label(l)
                CK = self.TK if self.flex else (self.PFA or self.PF)
                if s == 0 and n == CK - 8:
                    assert n >= nQ + 4 or (CK < nQ and n > self.CL)
                    l = self.lab('L_it0'); a('s_cmp_lg_u32 s49, 0'); a(f's_cbranch_scc1 {l}')
                    a('v_mov_b32 v22, 0'); a(f'global_load_dword v23, v22, {DBG} offset:{self.CNTA} sc1'); a.label(l)
                if s == 0 and n == CK:
                    self.stamp(22, 's49')
                    l = self.lab('L_it0'); a('s_cmp_lg_u32 s49, 0'); a(f's_cbranch_scc1 {l}')
                    a('s_waitcnt vmcnt(8)'); self.wait_counter(22, 23, 21, self.CNTA, NCHAIN, pre=True)
                    a('v_readfirstlane_b32 s27, v23'); a('s_add_u32 s27, s27, s5'); a.label(l)
                if (self.flex and n == self.TK) or (self.fx2 and n == self.PFA):
                    a('v_mov_b32 v16, 1')
                    a('s_mov_b64 exec, 1'); a(f'buffer_atomic_add v16, off, {WS}, s20 sc0 sc1'); a('s_mov_b64 exec, -1')
                    a('s_add_u32 s20, s20, 2048')
                    self.vmq.append(('cp', 0))
                if n == self.PFA:
                    assert n >= nQ + 4 and n < self.PF
                    self.qload(); self.vmq += [('cp', 'qa'), ('cp', 'qb')]
                if n == self.PF:
                    assert n >= nQ + 4
                    self.qload(); self.vmq += [('cp', 'q0'), ('cp', 'q1')]
                n += 1
            self.dyn = False
            if self.fb: a(f's_mov_b32 s59, {self.fb[1]}')
            if self.PFA:
                self.need_vm(('cp', 'qb')); keep = list(self.vmq)
                if self.fx2: a('v_readfirstlane_b32 s35, v16')
                self.stamp(1, 's49')
                self.maxtree(range(self.vQ, self.vQ + 8), 18)
                a(f's_cbranch_vccz L_Xok{s}')
            def ahead(what):
                for g in what:
                    if g == 'v': a(f'buffer_load_dword v19, {V4}, s44 offen {self.xpol} lds')
                    else:
                        a(f's_add_u32 s38, s{40 + g}, 0x2000000')
                        if g == 4: a('s_mov_b32 exec_hi, 0xff')
                        a(f'buffer_load_dword v19, {K_SRD}, s38 offen {self.xpol} lds')
                        if g == 4: a('s_mov_b32 exec_hi, -1')
                    self.vmq.append(('cp', 'x'))
            if self.xpf:
                assert self.PFA and not self.flex
                a(f'v_lshlrev_b32 v19, 3, v{self.vL16}'); a(f's_mov_b32 m0, {self.TB + 4 * self.WLDS}')
                ahead(self.xpf[0])
            self.need_vm(('cp', 'q1'))
            for x in (self.xpf or [])[1:]:
                self.maxtree(range(self.vQ, self.vQ + 8), 18)
                a(f's_cbranch_vccz L_Xok{s}')
                self.qload(); ahead(x); a(f's_waitcnt vmcnt({len(x)})')
            if self.PFA: self.vmq = keep
            else: self.stamp(1, 's49')
            a.label(f'L_X{s}')
            self.maxtree(range(self.vQ, self.vQ + 8), 18)
            a(f's_cbranch_vccz L_Xok{s}')
            a.label(f'L_Xpoll{s}')
            if self.fb: a(f's_mov_b32 s59, {self.fb[0]}')
            self.timeout()
            self.qload()
            a('s_waitcnt vmcnt(0)')
            a(f's_branch L_X{s}')
            a.label(f'L_Xok{s}')
            self.stamp(6, 's49')
            if s == 0: a('s_cmp_eq_u32 s49, 0'); a('s_cbranch_scc1 L_first')
            save = list(self.vmq)
            self.pass2(s, LP)
            if self.diag: a('s_memrealtime s[28:29]')
            if s == 0:
                a('s_cmp_eq_u32 s49, 4'); a('s_cbranch_scc1 L_fin')
                after = list(self.vmq)
            a.label(f'L_PV{s}')
            self.pv1f(s)
            if self.diag: self.stamp(11, 's49', src='s28')
            a('s_add_u32 s49, s49, 1'); a(f's_add_u32 s47, s47, {PIB}'); a('s_add_u32 s53, s53, 512')
            a('s_add_u32 s56, s56, 8192'); a('s_mov_b32 s46, s56')
            if self.odd and (self.odd & 1) != s and not self.fb:
                a(f's_cmp_eq_u32 s49, {self.odd}'); a(f's_cselect_b32 s59, {mid}, s59')
            if self.cps and (self.cpon & 1) != s:
                a(f's_cmp_eq_u32 s49, {self.cpon}'); a('s_cselect_b32 s20, s24, s20'); a(f's_cselect_b32 s22, 16, s22'); a('s_cselect_b32 s21, -1, s21')
                a(f's_cselect_b32 s59, {mid}, s59')
            if s == 0: first_save, first_after = save, after
        a('s_cmp_lg_u32 s49, 4'); a('s_cbranch_scc1 L_A0')
        a('s_mov_b32 s94, 0')
        for z in self.zero_acc(): a(z)
        a('s_branch L_Xpoll0')
        a.label('L_first')
        self.vmq = first_save; self.lq = []
        a('s_lshl_b32 s38, s3, 9'); a(f'v_add_u32 v18, s38, v{self.vQo}')
        a(f'ds_write_b128 v18, {vr(self.vQ, 4)} offset:{self.Q1L}')
        a(f'ds_write_b128 v18, {vr(self.vQ + 4, 4)} offset:{self.Q1L + 256}')
        for n in range(73, 80): self.load(0, n, wait=False)
        self.share()
        self.need_vm(('cp', 'q1'))
        a('s_waitcnt lgkmcnt(0)'); a('s_barrier')
        pts = [('u', 1), ('u', 4), ('u', 7), ('x', 0), ('e', 0)]; FL = {}
        for i in range(N1): FL.setdefault(pts[i * len(pts) // N1], []).append((1, i))
        self.qk1(0, FL, False)
        assert self.vmq == first_after, (self.vmq, first_after)
        a('s_branch L_PV0')
        a.label('L_fin'); self.stamp(11, 's49'); a('s_branch L_end')
        a.label('L_st0')
        self.vmq = st_in; self.dyn = bool(self.lv)
        for n in range(nQ, nQ + 4): self.load(0, n)
        self.dyn = False
        assert self.vmq == st_out, (self.vmq, st_out)
        a('s_branch L_st0r')
    def share(self):
        a = self.a; F = self.fx2
        if not F: return
        a('s_add_u32 s35, s35, 1'); a(f's_mov_b32 s25, {F[0][1]}'); a('s_mul_i32 s24, s35, s25')
        b = 0
        for (n0, r0), (n1, r1) in zip(F, F[1:]):
            b += n0
            a(f's_sub_i32 s39, s35, {b}'); a('s_max_i32 s33, s39, 0'); a(f's_mul_i32 s33, s33, {r0 - r1}'); a('s_sub_u32 s24, s24, s33')
            a('s_cmp_ge_i32 s39, 0'); a(f's_cselect_b32 s25, {r1}, s25')
        a('s_lshl_b32 s24, s24, 9'); a('s_add_u32 s24, s24, s21'); a('s_add_u32 s21, s21, 0x2000000')
    def armS(self):
        a = self.a
        a('s_waitcnt vmcnt(8)')
        self.confirm(24, 20)
        if not self.oarm:
            a('v_lshl_add_u32 v18, v0, 19, s48'); a('v_mov_b64 v[20:21], -1'); a('v_mov_b64 v[22:23], -1')
            a('s_lshl_b32 s38, s3, 20'); a('s_add_u32 s38, s38, s47'); a(f's_add_u32 s39, s38, {PP2}')
            a(f'buffer_store_dwordx4 v[20:23], v{self.vL16}, {WS}, s39 offen sc1')
            a('s_mov_b64 exec, 3')
            a(f'buffer_store_dwordx2 v[20:21], v18, {WS}, s38 offen sc1')
            a('s_cmp_lg_u32 s3, 0'); a('s_cselect_b64 exec, -1, 0')
            a(f'buffer_store_dwordx4 v[20:23], v{self.vL16}, {WS}, s38 offen sc1')
            a('s_mov_b64 exec, -1')
        self.stamp(30, None, 24)
    def qk_part(self, ds_, hook, zero=True):
        a = self.a; T = self.vT; Q = self.vQ; AC = self.vAcc
        def post_a(u):
            ac = AC + 4 * (u % 4); t = 18 + 2 * (u % 2)
            a(f'v_add_f32 v{t+1}, v{ac+1}, v{ac+3}'); a(f'v_add_f32 v{t}, v{ac}, v{ac+2}')
        def post_b(u):
            t = 18 + 2 * (u % 2)
            a(f'v_add_f32_dpp v{T + u // 4}, v{t+1}, v{t} quad_perm:[1,1,3,3] row_mask:0x{1 << (u % 4):x} bank_mask:0xf')
        for u in range(10):
            ac = AC + 4 * (u % 4); k = self.kreg(ds_, u)
            a(f'v_smfmac_f32_16x16x64_bf16 {vr(ac, 4)}, {vr(Q, 4)}, {rr(k, 8)}, v{self.vIQ}')
            if u >= 3: post_a(u - 3)
            a(f'v_smfmac_f32_16x16x64_bf16 {vr(ac, 4)}, {vr(Q + 4, 4)}, {rr(k + 8, 8)}, v{self.vIQ}')
            if u >= 3: post_b(u - 3)
            hook(('u', u))
        zf = [f'v_mov_b32 v{AC + r}, 0' for r in list(range(8, 16)) + list(range(8))] if zero else []
        def Z(n=2):
            for _ in range(n):
                if zf: a(zf.pop(0))
        a(f'v_cmp_gt_u32 vcc, s{22 + ds_}, v{self.vBias}'); a('v_mov_b32 v23, 0xff800000')
        post_a(7); Z(1); post_b(7); Z(3); post_a(8); Z(1); post_b(8); Z(2); post_a(9); Z(1); post_b(9)
        m = self.vMC; t = 18
        a(f'v_sub_f32 v{T+2}, v{T+2}, v{T+1}'); a(f'v_sub_f32 v{T+1}, v{T+1}, v{T}')
        a(f'v_cndmask_b32 v{T+2}, v23, v{T+2}, vcc')
        a(f'v_max3_f32 v{m}, v{T}, v{T+1}, v{T+2}'); Z()
        a(f'v_max_f32_dpp v{m}, v{m}, v{m} quad_perm:[2,3,0,1] {FULL}'); Z()
        a(f'v_max_f32_dpp v{m}, v{m}, v{m} row_ror:4 {FULL}'); Z()
        a(f'v_max_f32_dpp v{t}, v{m}, v{m} row_ror:8 {FULL}')
        a(f'v_max_f32_dpp v{m}, v{m}, v{m} row_ror:8 {FULL}'); Z()
        a(f'v_permlane16_swap_b32 v{m}, v{t}'); a(f'v_max_f32 v{t+1}, v{m}, v{t}'); a(f'v_max_f32 v{m}, v{m}, v{t}'); Z(8)
        a(f'v_permlane32_swap_b32 v{m}, v{t+1}'); a(f'v_max_f32 v{m}, v{m}, v{t+1}')
        a(f'v_mul_f32 v{m}, s51, v{m}')
        for k in (0, 2, 1): a(f'v_fma_f32 v{T+k}, v{T+k}, s51, -v{m}')
        for k in (0, 2, 1): a(f'v_exp_f32 v{T+k}, v{T+k}')
        hook(('x', 0))
    def pack(self, k):
        T = self.vT
        o = [f'v_mov_b32_dpp v18, v{T+k} quad_perm:[0,0,0,0] {FULL}',
             f'v_mov_b32_dpp v19, v{T+k} quad_perm:[2,2,2,2] {FULL}',
             f'v_cvt_pk_bf16_f32 v{20+k}, v18, v19']
        if k == 2: o += [f'v_mov_b32_dpp v0, v22 row_shl:4 {FULL}', 'v_permlane32_swap_b32 v22, v0']
        return o
    def aprep(self, k, P, A):
        pp = 20 + k; M = self.vM
        if P == 0:
            return [f'v_and_b32 v{A}, v{pp}, v{M}', f'v_and_b32 v{A+2}, v{pp}, v{M+2}',
                    f'v_and_b32_dpp v{A+1}, v{pp}, v{M+1} row_shr:4 {FULL} bound_ctrl:0',
                    f'v_and_b32_dpp v{A+3}, v{pp}, v{M+3} row_shr:4 {FULL} bound_ctrl:0']
        return [f'v_and_b32 v{A+1}, v{pp}, v{M+1}', f'v_and_b32 v{A+3}, v{pp}, v{M+3}',
                f'v_and_b32_dpp v{A}, v{pp}, v{M} row_shl:4 {FULL} bound_ctrl:0',
                f'v_and_b32_dpp v{A+2}, v{pp}, v{M+2} row_shl:4 {FULL} bound_ctrl:0']
    def lred(self):
        L = self.vL; T = self.vT
        return [f'v_add_f32 v{L}, v{T}, v{T+1}',
                f'v_add_f32 v{L}, v{T+2}, v{L}',
                f'v_add_f32_dpp v{L}, v{L}, v{L} quad_perm:[2,3,0,1] {FULL}',
                f'v_add_f32_dpp v{L}, v{L}, v{L} row_ror:4 {FULL}',
                f'v_add_f32_dpp v{L}, v{L}, v{L} row_ror:8 {FULL}',
                f'v_mov_b32 v23, v{L}', f'v_permlane16_swap_b32 v{L}, v23', f'v_add_f32 v{L}, v{L}, v23',
                f'v_mov_b32 v23, v{L}', f'v_permlane32_swap_b32 v{L}, v23', f'v_add_f32 v{L}, v{L}, v23']
    def merge(self, t0):
        AC = self.vAcc; o = []
        for r in range(4): o.append(f'v_permlane32_swap_b32 v{AC + 4*t0 + r}, v{AC + 4*t0 + 4 + r}')
        for r in range(4):
            if t0 == 0: o.append(f'v_add_f32_dpp v{AC + r}, v{AC + 4 + r}, v{AC + r} row_ror:8 row_mask:0xf bank_mask:0x3')
            else: o.append(f'v_add_f32_dpp v{AC + r}, v{AC + 8 + r}, v{AC + 12 + r} row_ror:8 row_mask:0xf bank_mask:0xc')
        return o
    def staddr(self):
        return [f'v_lshrrev_b32 v18, 6, v{self.vL16}', 'v_lshl_add_u32 v18, v18, 4, s57']
    def qk1(self, s, LP, wait):
        a = self.a; Q = self.vQ
        def hook(p):
            for x in LP.get(p, []): self.load(*x, wait=wait)
        a(f'v_add_u32 v18, s53, v{self.vQo}')
        self.ds(f'ds_read_b128 {vr(Q, 4)}, v18', 'q'); self.ds(f'ds_read_b128 {vr(Q + 4, 4)}, v18 offset:256', 'q')
        for z in self.zero_acc(): a(z)
        self.need_lds('q')
        self.qk_part(s, hook, zero=False)
        pk = self.pack(0) + self.pack(2) + self.pack(1); lr = self.lred()
        while pk or lr:
            if lr: a(lr.pop(0))
            if pk: a(pk.pop(0))
        for x in self.staddr(): a(x)
        a('v_mov_b32 v19, s55')
        a('ds_write_b96 v18, v[20:22]')
        a('s_mov_b64 exec, 1')
        a(f'ds_write_b64 v19, {vr(self.vMC, 2)} offset:{self.MA1[s]}')
        a('s_mov_b64 exec, -1')
        hook(('e', 0))
    def cdst(self, fs, cu0, pi):
        if pi >= 2: pi += 2
        return self.kreg(fs, pi // 2) + 8 * (pi % 2)
    def copy(self, ds_, fs, cu0, n):
        if n >= 72: pi, half = (n - 72) // 2, (n - 72) % 2
        else: pi, half = 2 + (n - 56) % 8, (n - 56) // 8
        self.ds(f'ds_read_b128 {rr(self.cdst(fs, cu0, pi) + 4 * half, 4)}, v{self.vDs} offset:{self.ldsslot(ds_, n) * 1024}', ('c', n))
    def bop(self, ds_, fs, cu0, U, P, t):
        if U == 0: return self.vreg0(ds_, P, t), []
        if U == 1: return self.cdst(fs, cu0, 2 + 4 * P + t), [('c', 56 + 4 * P + t), ('c', 64 + 4 * P + t)]
        if t < 2: return self.cdst(fs, cu0, t), [('c', 72 + 2 * t), ('c', 73 + 2 * t)]
        if cu0: return self.kreg(fs, 1) + 8 * (t - 2), []
        return self.vH + 8 * (t - 2), []
    def pass2(self, s, LP):
        a = self.a; ds_ = 1 - s; Q = self.vQ; AC = self.vAcc
        cplan = {0: [72, 73, 74, 75], 2: [56, 64, 57, 65], 3: [58, 66, 59, 67], 4: [60, 68], 5: [61, 69], 6: [62, 70], 7: [63, 71]}
        def hook(p):
            for n in LP.get(p, []):
                if n == 73: self.need_lds(('c', 75))
                if n < 40: assert p[0] != 'u' or p[1] > self.ORD[n] // 4
                self.load(s if n >= 40 else ds_, n, wait=False)
            if p == ('u', 6): self.share()
            if p[0] == 'u':
                for n in cplan.get(p[1], []): self.copy(ds_, ds_, 0, n)
        self.qk_part(ds_, hook)
        sets = [(0, 0), (2, 0), (0, 1), (1, 0), (1, 1)]
        lred = self.lred()
        def prep(i):
            k, P = sets[i]
            return (self.pack(k) if P == 0 else []) + self.aprep(k, P, Q + 4 * (i % 2))
        self.need_vm(('cp', 'q1'))
        for x in prep(0): a(x)
        for i, (k, P) in enumerate(sets):
            fill = prep(i + 1) if i + 1 < len(sets) else []
            if i == len(sets) - 1:
                fill = lred + self.epi_pre(); lred = []
            for t in range(4):
                b, tags = self.bop(ds_, ds_, 0, k, P, t)
                for tg in tags: self.need_lds(tg)
                a(f'v_smfmac_f32_16x16x64_bf16 {vr(AC + 4 * t, 4)}, {vr(Q + 4 * (i % 2), 4)}, {rr(b, 8)}, v{self.vIP}')
                n = (len(fill) + (3 - t)) // (4 - t)
                got = fill[:n]; fill = fill[n:]
                if len(got) < 2 and lred: got.append(lred.pop(0))
                for x in got: a(x)
            hook(('i', i))
        for x in self.merge(0) + self.merge(2): a(x)
        hook(('m', 0))
        self.epilogue(1, s)
    def epi_pre(self):
        return [f'v_add_u32 v18, s54, v{self.vL16}', 'v_mov_b32 v19, s55', 'v_mov_b32 v20, 1', 'v_mov_b32 v21, 0', 'v_mov_b32 v22, s48']
    def pv1f(self, s):
        a = self.a; fs = 1 - s; Q = self.vQ; AC = self.vAcc
        self.xst = 2
        if self.fx2: a(f's_mov_b32 s{22 + fs}, s25'); self.stamp(40, 's49', 18, 's35')
        def hook(p):
            for n in self.p1l.get(p, []): self.load(fs, n, wait=False)
        for x in self.staddr(): a(x)
        self.ds('ds_read_b96 v[20:22], v18', 'p')
        hook('a')
        for z in self.zero_acc(): a(z)
        self.need_vm((s, 71))
        for n in [56, 64, 57, 65, 58, 66, 59, 67]: self.copy(s, fs, 2, n)
        self.need_lds('p')
        sets = [(0, 0), (0, 1), (1, 0), (1, 1), (2, 0)]
        prep = lambda i: self.aprep(*sets[i], Q + 4 * (i % 2))
        for x in prep(0): a(x)
        for i, (k, P) in enumerate(sets):
            last = (i == len(sets) - 1)
            fill = self.epi_pre() if last else prep(i + 1)
            if i == 1:
                for n in [60, 68, 61, 69, 62, 70, 63, 71]: self.copy(s, fs, 2, n)
            hook(str(i))
            for t in range(4):
                b, tags = self.bop(s, fs, 2, k, P, t)
                if last:
                    if t == 0:
                        self.need_vm((s, 73)); self.copy(s, fs, 2, 72); self.copy(s, fs, 2, 73)
                        self.need_vm((s, 75)); self.copy(s, fs, 2, 74); self.copy(s, fs, 2, 75)
                        for x in fill: a(x)
                        fill = []
                    if t == 2: self.need_vm((s, 77))
                    if t == 3: self.need_vm((s, 79))
                for tg in tags: self.need_lds(tg)
                a(f'v_smfmac_f32_16x16x64_bf16 {vr(AC + 4 * t, 4)}, {vr(Q + 4 * (i % 2), 4)}, {rr(b, 8)}, v{self.vIP}')
                n = (len(fill) + (3 - t)) // (4 - t)
                got = fill[:n]; fill = fill[n:]
                for x in got: a(x)
        self.xst = 0
        for x in self.merge(0) + self.merge(2): a(x)
        hook('m')
        self.epilogue(0, s)
        self.stamp(16, 's49')
        for i in range(8): a(f'v_mov_b64 {vr(self.vH + 2 * i, 2)}, {vr(self.kreg(fs, 1) + 2 * i, 2)}')
    def epilogue(self, p2, s):
        a = self.a; Q = self.vQ; AC = self.vAcc; m = self.vMC; L = self.vL
        CA = self.CA[p2]; MA = self.MA[1] if p2 else self.MA1[s]; CO = self.CO[p2]
        Zr = self.kreg(1 - s, 2)
        a(f'ds_write_b128 v18, {vr(AC, 4)} offset:{CA}')
        a('s_mov_b64 exec, 1')
        if p2: a(f'ds_write_b64 v19, {vr(self.vMC, 2)} offset:{MA}')
        a(f'ds_add_rtn_u32 v20, v21, v20 offset:{CO}')
        a('s_mov_b64 exec, -1')
        a(f'ds_read_b128 {vr(Q, 4)}, v21 offset:{MA}'); a(f'ds_read_b128 {vr(Q + 4, 4)}, v21 offset:{MA + 16}')
        for w in range(4): a(f'ds_read_b128 {vr(Zr + 4 * w, 4)}, v{self.vL16} offset:{CA + 1024 * w}')
        if p2: a(f's_sub_u32 s38, s47, {PIB - PP2}')
        else: a('s_mov_b32 s38, s47')
        dual = self.home and p2 != s
        if dual: a('s_add_u32 s33, s38, 0x2000'); a(f's_cmp_eq_u32 s49, {3 + p2}'); a(f's_cselect_b32 s33, s33, 0x{OOB:x}')
        a('s_waitcnt lgkmcnt(6)')
        a('v_readfirstlane_b32 s39, v20'); a('s_and_b32 s39, s39, 3'); a('s_cmp_eq_u32 s39, 3')
        if p2: a('s_cselect_b32 s58, 1, 0')
        elif self.bst: a('s_mov_b32 s26, s59'); a(f's_cselect_b32 s59, {self.bst[0]}, {"s59" if len(self.bst) < 3 else self.bst[2]}')
        l = self.lab('L_nl'); a(f's_cbranch_scc0 {l}')
        a('s_waitcnt lgkmcnt(4)')
        a(f'v_max3_f32 v{m}, v{Q}, v{Q+2}, v{Q+4}'); a(f'v_max_f32 v{m}, v{m}, v{Q+6}')
        for w in range(4): a(f'v_sub_f32 v{Q+2*w}, v{Q+2*w}, v{m}')
        for w in range(4): a(f'v_exp_f32 v{Q+2*w}, v{Q+2*w}')
        a(f'v_mul_f32 v{L}, v{Q}, v{Q+1}')
        for w in range(1, 4): a(f'v_fmac_f32 v{L}, v{Q+2*w}, v{Q+2*w+1}')
        a(f'v_min_u32 v{m}, -2, v{m}'); a(f'v_and_b32 v{L}, -2, v{L}')
        def st(text, pre=None):
            assert self.loc
            x = self.lab('L_ls'); y = self.lab('L_ls')
            a(f's_cbranch_scc1 {x}')
            if pre: a(pre)
            a(text + ' sc1'); a(f's_branch {y}'); a.label(x); a(text); a.label(y)
        a(f's_cmp_eq_u32 s27, {NCHAIN + 1}')
        a('s_mov_b64 exec, 1')
        st(f'buffer_store_dwordx2 {vr(m, 2)}, v22, {WS}, s38 offen', f'v_or_b32 v{L}, s4, v{L}')
        if dual: a(f'buffer_store_dwordx2 {vr(m, 2)}, v22, {WS}, s33 offen sc1')
        a('s_mov_b64 exec, -1')
        a('s_waitcnt lgkmcnt(0)')
        for w in range(4):
            for hf in range(2):
                if w == 0: a(f'v_pk_mul_f32 {vr(AC + 2*hf, 2)}, {vr(Zr + 2*hf, 2)}, {vr(Q, 2)} op_sel_hi:[1,0]')
                else: a(f'v_pk_fma_f32 {vr(AC + 2*hf, 2)}, {vr(Zr + 4*w + 2*hf, 2)}, {vr(Q + 2*w, 2)}, {vr(AC + 2*hf, 2)} op_sel_hi:[1,0,1]')
        for r in range(4): a(f'v_min_u32 v{AC + r}, -2, v{AC + r}')
        st(f'buffer_store_dwordx4 {vr(AC, 4)}, v{self.vL16}, {WS}, s38 offen')
        if dual: a(f'buffer_store_dwordx4 {vr(AC, 4)}, v{self.vL16}, {WS}, s33 offen sc1')
        a.label(l)
        a('s_waitcnt lgkmcnt(0)'); self.lq = []

    RING0 = 8192
    vGO2, vTR, vOOB, vDO, vX0O, vGO, vXR, vXW, vRES = 8, 9, 10, 11, 12, 13, 14, 15, 16
    vAC, vCS, vQS, vRO, vPO, vPO2, vMLO, vOW, vDQ, vX0 = 32, 36, 38, 39, 40, 41, 42, 43, 44, 45
    def vm(self, text, tag=None):
        self.a(text); self.cq.append(tag)
    def vmwait(self, tag):
        if tag in self.cq:
            i = len(self.cq) - 1 - self.cq[::-1].index(tag)
            k = len(self.cq) - 1 - i
            assert k <= 63
            self.a(f's_waitcnt vmcnt({k})'); self.cq = self.cq[i + 1:]
    def arm(self, q=False):
        a = self.a
        self.vmwait('init'); self.confirm(self.vCL, 28)
        for r in range(20, 24): a(f'v_mov_b32 v{r}, -1')
        a('s_lshl2_add_u32 s38, s8, s3'); a('s_mul_i32 s38, s38, 4608'); a(f's_add_u32 s38, s38, 0x{YOFF:x}')
        for i in range(5): self.vm(f'buffer_store_dwordx4 v[20:23], v1, {WS}, s38 offen offset:{min(i * 1024, 3584)} sc1', 'arm')
        if q:
            self.bits('v28', 'v0', 'v29', [(0, 5, 4), (5, 1, 13)])
            a('s_lshl_b32 s38, s8, 9'); a('s_lshl_b32 s39, s3, 14'); a('s_add_u32 s39, s39, s38')
            self.vm(f'buffer_store_dwordx4 v[20:23], v28, {WS}, s39 offen sc1', 'arm')
        else:
            self.pquad('s38'); a('s_lshl_b32 s39, s8, 15'); a('s_add_u32 s38, s38, s39'); a(f's_add_u32 s38, s38, 0x{POFF - 16 * PB:x}')
            for i in range(4): self.vm(f'buffer_store_dwordx4 v[20:23], v1, {WS}, s38 offen offset:{i * 1024} sc1', 'arm')
    def pquad(self, d):
        self.a(f's_and_b32 {d}, s3, 2'); self.a(f's_add_u32 {d}, {d}, s3'); self.a(f's_lshl_b32 {d}, {d}, 12')
    def announce(self, bar=True):
        a = self.a
        if bar: self.vmwait('arm'); a('s_barrier')
        assert 'arm' not in self.cq
        self.signal(28, 29, self.CNTA, 's9')
        self.stamp(21, None, 30)
    def chain_common(self):
        a = self.a
        a('s_lshl4_add_u32 s2, s38, s36'); a('s_mov_b32 s8, s2'); a('s_mov_b32 s9, s5'); a('s_mov_b32 s10, 0')
        if self.diag: a('s_mov_b32 s61, s2'); self.diagbase()
        a('v_lshlrev_b32 v1, 4, v0')
        self.bits('v2', 'v0', 'v6', [(0, 1, 4), (4, 2, 5)])
        self.bits('v4', 'v0', 'v6', [(1, 1, 0), (3, 1, 2), (2, 1, 3)])
        a('s_lshl_b32 s98, s3, 13'); a(f's_add_u32 s98, s98, {self.RING0}'); a('s_movk_i32 s99, 1024')
        a('s_mul_i32 s32, s3, 7168'); a(f's_add_u32 s32, s32, {self.RING0}')
        self.claim(28, 29, self.vCL)
        self.srd(16, 86, 0x20000000)
        self.stamp(0, None, 30)
        a('s_cmp_lt_u32 s2, 16'); a('s_cbranch_scc1 L_roleOQ')
        self.cq = ['init']
        if self.wtlb:
            lo = 30 if self.wtlb == 1 else 16; nw = 4 * (32 - lo)
            a(f's_cmp_lt_u32 s2, {lo}'); a('s_cbranch_scc1 L_notlb')
            a('v_lshlrev_b32 v6, 12, v0'); a(f's_sub_u32 s33, s2, {lo}'); a('s_lshl2_add_u32 s33, s33, s3'); a('s_lshl_b32 s33, s33, 18')
            for lo_, size in ((70, 448 * 8192), (76, 448 * 3584), (78, 448 * 3584), (72, 4096 * 896), (80, 1792 * 896)):
                self.srd(20, lo_, size)
                for i in range(-(-size // (nw << 18))):
                    if i: a(f's_add_u32 s39, s33, {i * nw << 18}')
                    a(f'buffer_load_dword v64, v6, {W1}, {"s39" if i else "s33"} offen nt')
            a.label('L_notlb')
        if self.hq:
            self.srd(20, 70, 448 * 8192)
            self.bits('v6', 'v0', 'v7', [(0, 5, 4), (5, 1, 13)])
            a('s_sub_u32 s33, s2, 16'); a('s_lshl_b32 s33, s33, 9'); a('s_lshl_b32 s39, s3, 14'); a('s_add_u32 s33, s33, s39')
            a(f's_add_u32 s33, s33, {self.hq[0] * 64 * 8192}')
            for i in range(8 * (self.hq[1] - self.hq[0])):
                self.vm(f'buffer_load_dwordx4 v[64:67], v6, {W1}, s33 offen {self.hpol}', 'hq'); a('s_add_u32 s33, s33, 65536')
                if i == 0: self.stamp(61, None, 30)
                if i == 8: self.stamp(63, None, 30)
                if i == 9: self.arm()
                if i == 23: self.announce()
        self.cq0 = list(self.cq)
        a('s_cmp_lt_u32 s2, 30'); a('s_cbranch_scc1 L_roleF')
    def consts(self):
        a = self.a
        a('v_and_b32 v6, 1, v0'); a('v_cmp_eq_u32 vcc, 1, v6')
        a('v_mov_b32 v3, 0x44444444'); a('v_mov_b32 v6, 0xeeeeeeee'); a('v_cndmask_b32 v3, v3, v6, vcc')
        self.bits('v9', 'v0', 'v6', [(0, 5, 3), (5, 1, 10)])
        a('v_mul_u32_u24 v5, 6144, v6'); a('s_mul_i32 s38, s3, 1792'); a('v_add3_u32 v5, v5, v9, s38')
        a(f's_mov_b32 s57, 0x{OOB:x}'); a(f's_mov_b32 s56, 0x{OOB:x}'); a('s_mov_b32 s49, -1')
    vCL = 46
    def preready(self, streams=False):
        self.vm(f'global_load_dwordx2 v[46:47], v18, {DBG} offset:{self.CNTA} sc1', 'cnt')
    def ready(self, streams=False):
        a = self.a
        self.stamp(22, None, 28)
        self.vmwait('cnt')
        self.wait_counter(18, 46, 22, self.CNTA, NCHAIN, pre=True)
        a('s_mov_b32 s56, 0')
        if self.dual: a('s_movk_i32 s57, 0x2000')
        if self.dual and self.role != 'W':
            a('v_readfirstlane_b32 s38, v47'); a('s_getreg_b32 s10, hwreg(HW_REG_XCC_ID, 2, 1)'); a('s_xor_b32 s10, s10, s38'); a('s_and_b32 s10, s10, 1'); a('s_lshl_b32 s10, s10, 13')
            if self.diag:
                a('v_mov_b32 v28, s10'); a('v_mov_b32 v29, 0')
                a(f'buffer_store_dword v28, v29, {WS}, s61 offen offset:{62 * 4}')
        self.stamp(1, None, 28)
    def near(self):
        if not self.dual: return
        a = self.a; l = self.lab('L_nr')
        assert self.hs <= 12
        a('s_mul_i32 s38, s3, 1536'); a(f's_add_u32 s11, s38, 0x{XBOFF:x}')
        a('s_mov_b32 s4, -1'); a('s_mov_b32 s5, -1'); a(f's_mov_b32 s6, {2 * self.hs}')
        a('s_waitcnt vmcnt(0)')
        a.label(l)
        a('s_waitcnt lgkmcnt(0)'); a('s_memtime s[58:59]'); a('s_waitcnt lgkmcnt(0)')
        a(f'buffer_load_dword v28, off, {WS}, s11 sc1'); a('s_waitcnt vmcnt(0)')
        a('s_memtime s[38:39]'); a('s_waitcnt lgkmcnt(0)')
        a('s_sub_u32 s38, s38, s58'); a('s_min_u32 s38, s38, s4'); a('s_mov_b32 s4, s5'); a('s_mov_b32 s5, s38')
        a('s_xor_b32 s11, s11, 0x2000'); a('s_and_b32 s38, s6, 1'); a('s_lshl_b32 s38, s38, 7'); a('s_add_u32 s11, s11, s38')
        a('s_sub_u32 s6, s6, 1'); a('s_cmp_lg_u32 s6, 0'); a(f's_cbranch_scc1 {l}')
        a('s_cmp_gt_u32 s4, s5'); a('s_cselect_b32 s10, 0x2000, 0')
        if self.hforce is not None: a(f's_xor_b32 s10, s10, {self.hforce}')
        a('s_getreg_b32 s38, hwreg(HW_REG_XCC_ID, 2, 1)'); a('s_lshr_b32 s39, s10, 13'); a('s_xor_b32 s38, s38, s39')
        a('v_mov_b32 v28, s38'); a('v_mov_b32 v29, 0')
        a('s_cmp_eq_u32 s3, 0'); a('s_cselect_b64 exec, 1, 0')
        a(f'global_store_dword v29, v28, {DBG} offset:{self.CNTA + 4} sc1'); a('s_mov_b64 exec, -1')
        if self.diag:
            self.stamp(20, None, 28)
            a('s_lshl_b32 s38, s4, 16'); a('s_add_u32 s38, s38, s5'); a('v_mov_b32 v28, s38'); a('v_mov_b32 v29, 0')
            a(f'buffer_store_dword v28, v29, {WS}, s61 offen offset:{62 * 4}')
    def lstore(self, op, data, voff, sp, ss):
        self.a(f'buffer_store_{op} {data}, {voff}, {WS}, {ss} offen sc1')
        if self.dual: self.a(f'buffer_store_{op} {data}, {voff}, {WS}, {sp} offen sc1')
    def dma_sub(self, name, srd, voff, tab, adv):
        a = self.a
        a.label(name)
        for e in range(8):
            a(f'buffer_load_dwordx4 {voff}, {srd}, s{tab + e} offen nt lds')
            if e < 7: a('s_add_u32 m0, m0, s99')
        a(f'v_add_u32 {voff}, 0x{adv:x}, {voff}')
        a('s_setpc_b64 s[96:97]')
    def dma_subB(self, name, srd, voff):
        a = self.a
        a.label(name)
        for cb in range(7):
            a(f'buffer_load_dwordx4 {voff}, {srd}, 0 offen offset:{128 * cb} nt lds')
            if cb < 6: a('s_add_u32 m0, m0, 896')
        a(f'v_add_u32 {voff}, 0x{32 * 896:x}, {voff}')
        a('s_setpc_b64 s[96:97]')
    def poff(self, p): return p['off'] if 'off' in p else p['slot'] * 32768
    def issue(self, p):
        self.a(f's_add_u32 m0, {"s32" if p["B"] else "s98"}, {self.poff(p)}'); self.a(f's_call_b64 s[96:97], {p["sub"]}')
        self.cq += [id(p)] * (7 if p['B'] else 8)
    def readout(self, p, sel=None):
        self.a(f'v_add_u32 v6, {self.RING0 + self.poff(p)}, {"v5" if p["B"] else "v9"}')
        for d, imm in p['rd']:
            if sel is None or sel(d): self.a(f'ds_read_b64_tr_b16 {rr(d, 2)}, v6 offset:{imm}')
    def consume(self, p, nxt=None, hook=None):
        self.vmwait(id(p))
        self.a('s_waitcnt lgkmcnt(0)'); self.a('s_barrier')
        if hook: hook()
        for x in (nxt if isinstance(nxt, list) else [nxt] if nxt else []):
            if 'off' not in x: assert x['slot'] == self.lastslot, (x['slot'], self.lastslot)
            self.issue(x)
        self.readout(p); self.lastslot = p.get('slot')
    def table(self, tab, rs):
        for e in range(8): self.a(f's_mov_b32 s{tab + e}, 0x{(16 * (e & 1) + 2 * ((e >> 1) & 1) + 32 * (e >> 2)) * rs:x}')
    def typeB(self, voff, rowbase_s):
        a = self.a
        a('s_and_b32 s38, s3, 1'); a('s_lshl_b32 s38, s38, 4'); a(f's_add_u32 s38, s38, {rowbase_s}'); a('s_and_b32 s39, s3, 2'); a('s_add_u32 s38, s38, s39')
        a(f'v_add_u32 v6, s38, v4'); a(f'v_mad_u32_u24 {voff}, v6, s99, v2'); a(f'v_lshlrev_b32 v6, 7, v6'); a(f'v_sub_u32 {voff}, {voff}, v6')
    def typeB_reads(self, breg, ks, half):
        return [(breg(jj, ks) + 2 * (e1 + 2 * half), 2 * e1 * 7168 + jj * 256) for jj in range(7) for e1 in range(2)]
    def x0off(self):
        a = self.a
        a(f'v_mov_b32 v10, 0x{OOB:x}')
        self.bits('v6', 'v0', 'v7', [(0, 4, 3), (4, 1, 2), (5, 1, 7)])
        a('s_mul_i32 s38, s3, 224'); a('s_lshl_b32 s39, s3, 5'); a(f's_add_u32 s39, s39, {896 - 224}')
        a('v_cmp_gt_u32 vcc, 224, v6')
        a('v_add_u32 v15, s38, v6'); a('v_add_u32 v6, s39, v6')
        a('v_cndmask_b32 v12, v10, v15, vcc'); a('v_cndmask_b32 v15, v6, v15, vcc')
        a('s_lshl_b32 s38, s3, 9'); a('v_lshl_add_u32 v14, v0, 3, s38'); a('v_cndmask_b32 v14, v10, v14, vcc')
    def gather_offs(self):
        a = self.a
        self.bits('v13', 'v0', 'v6', [(0, 4, 4), (4, 1, 12), (5, 1, 14)])
        a('s_lshl_b32 s38, s3, 8'); a('v_add_u32 v13, s38, v13'); a(f'v_lshl_add_u32 v{self.vRO}, v0, 2, s38')
        a('v_cmp_gt_u32 vcc, 48, v0'); a('v_mov_b32 v18, 0'); a('v_mov_b32 v19, 0'); a('v_cndmask_b32 v8, v10, v13, vcc')
        a('v_and_b32 v6, 8, v0'); a('v_cmp_eq_u32 vcc, 8, v6'); a('v_mov_b32 v6, 0x3c00'); a('v_mov_b32 v7, 0x3c000000')
        a('v_cndmask_b32 v6, v6, v7, vcc'); a('v_and_b32 v7, 7, v0')
        for r, key in enumerate((0, 1, 4, 5)):
            a(f'v_cmp_eq_u32 vcc, {key}, v7'); a('s_nop 1'); a(f'v_cndmask_b32 v{self.vAC + r}, 0, v6, vcc')
    def resid_poll(self, soff):
        a = self.a; l = self.lab('L_rp')
        a.label(l)
        self.timeout()
        a(f'buffer_load_dwordx2 v[16:17], v14, {WS}, {soff} offen sc1'); a('s_waitcnt vmcnt(0)')
        a('v_max_u32 v6, v16, v17'); a('v_cmp_eq_u32 vcc, -1, v6'); a(f's_cbranch_vccnz {l}')
    def gather_sum(self, soff, G, full, res=None):
        a = self.a; l = self.lab('L_g'); d = self.lab('L_gd')
        a.label(l)
        self.timeout()
        if res: a(f'buffer_load_dwordx2 v[16:17], v14, {WS}, {res} offen sc1')
        for i in range(4): a(f'buffer_load_dwordx4 {vr(G + 4 * i, 4)}, {"v13" if full or i < 2 else "v8"}, {WS}, {soff} offen offset:{1024 * i} sc1')
        for i in range(4):
            a(f's_waitcnt vmcnt({3 - i})')
            a(f'v_mfma_f32_16x16x32_f16 v[20:23], {vr(self.vAC, 4)}, {vr(G + 4 * i, 4)}, {"v[16:19]" if i == 0 else "v[20:23]"}')
        a('v_cmp_u_f32 vcc, v20, v21')
        a('v_cvt_pk_bf16_f32 v24, v20, v21')
        a(f's_cbranch_vccz {d}')
        self.maxtree(list(range(G, G + 16)) + ([16, 17] if res else []), 6)
        a(f's_cbranch_vccnz {l}')
        a.label(d)
    def xrow_ops(self, sp, ss):
        return ['v_lshlrev_b32 v20, 16, v24', 'v_and_b32 v21, 0xffff0000, v24',
                f'buffer_store_dwordx2 v[20:21], v14, {WS}, {ss} offen sc1'] + ([f'buffer_store_dwordx2 v[20:21], v14, {WS}, {sp} offen sc1'] if self.dual else [])
    def stats_ops(self, X):
        o = []
        for i in range(4):
            o += [f'v_lshlrev_b32 v26, 16, v{X+i}', f'v_and_b32 v27, 0xffff0000, v{X+i}']
            if i == 0: o += ['v_add_f32 v28, v26, v27', 'v_mul_f32 v30, v26, v26', 'v_fmac_f32 v30, v27, v27']
            else: o += ['v_add_f32 v28, v28, v26', 'v_fmac_f32 v30, v26, v26', 'v_add_f32 v28, v28, v27', 'v_fmac_f32 v30, v27, v27']
        o += [f'v_mov_b32 v26, 0x{f2u(1/448):x}', f'v_mov_b32 v27, 0x{f2u(1e-5):x}', 'v_permlane16_swap_b32 v28, v30', 'v_add_f32 v28, v28, v30']
        for c in ('quad_perm:[1,0,3,2]', 'quad_perm:[2,3,0,1]', 'row_ror:4'):
            o += [None, f'v_add_f32_dpp v28, v28, v28 {c} {FULL}']
        o += [None, f'v_add_f32_dpp v29, v28, v28 row_ror:8 {FULL}', f'v_add_f32_dpp v28, v28, v28 row_ror:8 {FULL}', None,
              'v_permlane32_swap_b32 v28, v29', 'v_add_f32 v28, v28, v29', None,
              'v_readlane_b32 s58, v28, 0', 'v_readlane_b32 s59, v28, 16', None,
              'v_mul_f32 v24, s58, v26', 'v_fmac_f32 v27, s59, v26',
              'v_fma_f32 v27, -v24, v24, v27', 'v_rsq_f32 v25, v27']
        return o
    def gemv(self, ntile, nks, breg, acc, A, fill=(), nother=0):
        a = self.a; fill = list(fill)
        for ks in range(nks):
            a(f's_waitcnt lgkmcnt({min(15, nks - 1 - ks + nother)})')
            for jj in range(ntile):
                a(f'v_smfmac_f32_16x16x64_bf16 {vr(acc + 4 * jj, 4)}, {vr(A + 4 * ks, 4)}, {rr(breg(jj, ks), 8)}, v3')
                for _ in range(2):
                    if fill:
                        x = fill.pop(0)
                        if x: a(x)
        for x in fill:
            if x: a(x)
    def zero(self, base, n):
        for i in range(0, n, 2): self.a(f'v_mov_b64 {vr(base + i, 2)}, 0')
    def rowsel(self, dst, acc, tiles_masks):
        for jj, rm in tiles_masks:
            self.a(f'v_add_f32_dpp v{dst}, v{acc + 4*jj}, v{acc + 4*jj + 1} quad_perm:[0,1,2,3] row_mask:0x{rm:x} bank_mask:0xf')
    def rowout(self, acc, sp, ss):
        a = self.a
        for jj in range(4): self.rowsel(20, acc, [(jj, 1 << jj)])
        for jj in range(3): self.rowsel(21, acc, [(4 + jj, 1 << jj)])
        a('v_cvt_pk_f16_f32 v20, v20, v21'); a('v_min_u32 v20, -2, v20')
        self.lstore('dword', 'v20', f'v{self.vRO}', sp, ss)
    def calc_ib(self):
        a = self.a
        a('s_lshl_b32 s38, s49, 2'); a(f's_lshr_b32 s50, {"0x76352410" if self.reord else "0x73625140"}, s38'); a('s_and_b32 s50, s50, 7')
    def colsum(self, ntile, nks, breg, acc):
        a = self.a
        for r in range(4): a(f'v_mov_b32 v{20 + r}, 0x3f803f80')
        self.zero(acc, 4 * ntile)
        for ks in range(nks):
            for jj in range(ntile):
                a(f'v_smfmac_f32_16x16x64_bf16 {vr(acc + 4 * jj, 4)}, v[20:23], {rr(breg(jj, ks), 8)}, v3')
    def pinit(self, ib0):
        a = self.a
        for r in range(20, 24): a(f'v_mov_b32 v{r}, -1')
        a(f's_add_u32 s38, s3, {ib0}'); a('s_lshl_b32 s38, s38, 18'); a('s_add_u32 s38, s38, s41')
        a('v_lshlrev_b32 v6, 4, v0')
        for i in range(16):
            if i and i % 4 == 0: a('s_add_u32 s38, s38, 4096')
            self.vm(f'buffer_store_dwordx4 v[20:23], v6, {WS}, s38 offen offset:{(i % 4) * 1024} sc1', 'pinit')

    def roleOQ(self):
        a = self.a
        TOG = ['v_xor_b32 v15, 0x400, v15', 'v_xor_b32 v2, 0x400, v2', 'v_xor_b32 v1, 0x400, v1', f'v_xor_b32 v{self.vOW}, 0x400, v{self.vOW}']
        def qreg(jj, ks): return 96 + (ks * 4 + jj) * 8
        def oreg(jj, ks):
            if ks == 3 and jj < 4: return 288 + 8 * jj
            i = jj * 3 + ks if ks < 3 else 21 + jj - 4
            return 320 + 8 * i
        inwin = lambda d: 288 <= d < 320
        X0 = 4
        self.dma_sub('L_dmaQ', W1, f'v{self.vDQ}', 88, 64 * 8192)
        self.dma_subB('L_dmaO', W2, f'v{self.vDO}')
        P = 76; ML = 92; ACC = 48; A = 76
        a.label('L_Osub')
        self.calc_ib()
        a('s_and_b32 s38, s50, 3'); a('s_lshl_b32 s44, s38, 20'); a('s_add_u32 s44, s44, s41')
        a('s_cmp_eq_u32 s38, 3'); a('s_cselect_b32 s38, s55, 0'); a('s_add_u32 s44, s44, s38')
        a('s_lshr_b32 s38, s50, 2'); a('s_lshl_b32 s38, s38, 19'); a('s_add_u32 s44, s44, s38')
        a('s_add_u32 s45, s44, 4096'); a('s_add_u32 s46, s44, 16384'); a('s_add_u32 s47, s44, 20480')
        a('s_lshl_b32 s48, s50, 15'); a('s_add_u32 s48, s48, s40'); a('s_add_u32 s51, s48, s56'); a('s_add_u32 s48, s48, s57')
        self.zero(ACC, 28)
        a('s_cmp_lt_i32 s49, 0'); a('s_cbranch_scc1 L_Ook')
        a.label('L_Oheavy')
        self.timeout()
        a(f'buffer_load_dwordx2 {vr(ML, 2)}, v{self.vMLO}, {WS}, s44 offen sc1')
        for n in range(4): a(f'buffer_load_dwordx4 {vr(P + 4*n, 4)}, v{self.vPO2 if n == 3 else self.vPO}, {WS}, s{44+n} offen sc1')
        a('s_waitcnt vmcnt(4)')
        a(f'v_max_f32_dpp v20, v{ML}, v{ML} quad_perm:[1,0,3,2] {FULL}')
        for c in ('quad_perm:[2,3,0,1]', 'row_ror:4', 'row_ror:8'): a(f'v_max_f32_dpp v20, v20, v20 {c} {FULL}')
        a(f'v_sub_f32 v20, v{ML}, v20'); a('v_exp_f32 v20, v20'); a('v_cndmask_b32 v20, 0, v20, s[42:43]')
        a(f'v_mul_f32 v21, v20, abs(v{ML+1})')
        lred = [f'v_add_f32_dpp v21, v21, v21 {c} {FULL}' for c in ('quad_perm:[1,0,3,2]', 'quad_perm:[2,3,0,1]', 'row_ror:4', 'row_ror:8')]
        for n in range(4):
            a(f's_waitcnt vmcnt({3 - n})')
            for r in range(4):
                a(f'v_{"mul" if n == 0 else "fmac"}_f32_dpp v{24 + r}, v20, v{P + 4*n + r} row_newbcast:{n} {FULL}')
            a(lred[n])
        a('v_permlane16_swap_b32 v24, v25'); a('v_permlane16_swap_b32 v26, v27'); a('v_rcp_f32 v21, v21')
        a('v_add_f32 v24, v24, v25'); a('v_add_f32 v26, v26, v27')
        a('v_permlane32_swap_b32 v24, v26'); a('v_add_f32 v24, v24, v26'); a('v_mul_f32 v24, v24, v21')
        a('v_cmp_u_f32 vcc, v24, v24')
        a('v_cvt_pk_bf16_f32 v24, v24, v24')
        a('s_cbranch_vccz L_Ook0')
        self.maxtree(list(range(P, P + 16)) + [ML, ML + 1], 6)
        a('s_cbranch_vccnz L_Oheavy')
        a.label('L_Ook0')
        if self.split:
            a('s_cmp_lg_u32 s49, 0'); a('s_cbranch_scc1 L_Ook')
            a('s_setpc_b64 s[34:35]')
        a.label('L_Ook')
        a(f'ds_write_b16 v{self.vOW}, v24'); a('s_waitcnt lgkmcnt(0)'); a('s_barrier')
        for ks in range(4): a(f'ds_read_b128 {vr(A + 4*ks, 4)}, v2 offset:{128 * ks}')
        self.stamp(3, 's49', 28)
        self.gemv(7, 4, oreg, ACC, A, fill=TOG + ['v_mov_b32 v21, 0'])
        self.rowout(ACC, 's48', 's51')
        self.stamp(12, 's49', 28)
        a('s_add_u32 s49, s49, 1')
        a('s_setpc_b64 s[34:35]')
        G = 64; ACC = 48; A = 64; X = 92
        a.label('L_Qsub')
        self.zero(ACC, 16)
        a('s_lshl_b32 s44, s53, 13'); a('s_add_u32 s44, s44, s54')
        a('s_lshl_b32 s38, s53, 11'); a(f's_add_u32 s47, s38, 0x{XAOFF - 4 * 2048:x}'); a('s_add_u32 s47, s47, s10')
        a('s_add_u32 s45, s38, s33'); a('s_add_u32 s46, s45, s56'); a('s_add_u32 s45, s45, s57')
        a('s_lshl_b32 s48, s53, 15'); a(f's_add_u32 s48, s48, 0x{ZOFF - 4 * 32768:x}'); a('s_add_u32 s48, s48, s10')
        a('s_cmp_lt_u32 s53, 4'); a('s_cbranch_scc1 L_Qx')
        if not self.mres: self.resid_poll('s47')
        self.gather_sum('s48', G, False, 's47' if self.mres else None)
        a.label('L_Qx')
        a('ds_write_b32 v15, v24'); a('s_waitcnt lgkmcnt(0)'); a('s_barrier')
        for ks in range(7): a(f'ds_read_b128 {vr(A + 4*ks, 4)}, v2 offset:{128 * ks}')
        a(f'ds_read_b128 {vr(X, 4)}, v1')
        for x in self.xrow_ops('s45', 's46'): a(x)
        self.stamp(24, 's53', 28)
        fill = TOG + [None, 's_waitcnt lgkmcnt(0)'] + self.stats_ops(X)
        self.gemv(4, 7, qreg, ACC, A, fill=fill, nother=1)
        a(f'v_mul_f32 v21, v24, v{self.vCS}'); a('s_cmp_eq_u32 s9, 1')
        self.rowsel(20, ACC, [(jj, 1 << jj) for jj in range(4)])
        a('v_sub_f32 v20, v20, v21'); a('v_mul_f32 v20, v20, v25')
        a('v_cvt_pk_bf16_f32 v20, v20, v20'); a('v_min_u32 v20, -2, v20')
        if self.loc:
            a('s_cbranch_scc1 L_Qloc')
            a(f'buffer_store_short v20, v{self.vQS}, {WS}, s44 offen sc1'); a('s_branch L_Qst')
            a.label('L_Qloc'); a(f'buffer_store_short v20, v{self.vQS}, {WS}, s44 offen'); a.label('L_Qst')
        else: a(f'buffer_store_short v20, v{self.vQS}, {WS}, s44 offen sc1')
        self.stamp(33, 's53', 28)
        if self.oarm: a('s_lshl_b32 s38, s53, 20'); a('s_add_u32 s38, s38, s11'); a(f's_add_u32 s39, s38, {PP2}')
        a('s_add_u32 s53, s53, 1')
        if self.oarm:
            a('s_cmp_eq_u32 s53, 8'); a('s_cbranch_scc1 L_Qret')
            a('v_mov_b64 v[24:25], -1'); a('v_mov_b64 v[26:27], -1'); a('v_lshlrev_b32 v6, 4, v0')
            for i in range(8): a(f'buffer_store_dwordx4 v[24:27], v6, {WS}, s{38 + i // 4} offen offset:{i % 4 * 1024} sc1')
            a.label('L_Qret')
        a('s_setpc_b64 s[34:35]')
        a.label('L_roleOQ')
        self.stamp(61, None, 30)
        self.cq = ['init']
        a('s_lshl_b32 s38, s2, 9')
        self.srd(20, 70, 448 * 8192)
        a('s_lshl_b32 s39, s3, 7'); a('s_add_u32 s38, s38, s39')
        a(f'v_lshl_add_u32 v{self.vDQ}, v4, 13, s38'); a(f'v_add_u32 v{self.vDQ}, v{self.vDQ}, v2')
        self.table(88, 8192)
        R4 = self.ring4
        pq = [dict(sub='L_dmaQ', B=0, slot=(ks + 2 * R4) % 4, rd=[(qreg(jj, ks) + 2 * rp, rp * 2048 + jj * 256) for jj in range(4) for rp in range(4)]) for ks in range(7)]
        po = [dict(sub='L_dmaO', B=1, slot=(3, 0, 1)[i % 3], rd=self.typeB_reads(oreg, i // 2, i % 2)) for i in range(8)]
        if R4:
            for i, p in enumerate(po): p['off'] = 32768 + 28672 * (i % 4)
        self.issue(pq[0])
        self.stamp(63, None, 30)
        self.srd(28, 64, 3584)
        XL = 48
        a(f'v_mov_b32 v10, 0x{OOB:x}')
        a('v_cmp_gt_u32 vcc, 56, v0'); a('v_bfe_u32 v7, v0, 2, 2'); a('v_mul_u32_u24 v7, 896, v7'); a('v_cndmask_b32 v6, v10, v1, vcc')
        for b in range(4): self.vm(f'buffer_load_dwordx4 {vr(XL + 4 * b, 4)}, v6, {W3}, 0 offen offset:{b * 896}', 'xl')
        a('v_add_u32 v7, v7, v2')
        a('s_mov_b32 s38, 0x3f803f80'); a('s_mov_b32 s39, s38')
        for r in range(0, 28, 2): a(f'v_mov_b64 {vr(A + r, 2)}, s[38:39]')
        a('s_mov_b32 exec_lo, 0x33333333'); a('s_mov_b32 exec_hi, 0x33333333')
        for ks in range(7): self.vm(f'buffer_load_dwordx4 {vr(A + 4 * ks, 4)}, v7, {W3}, 0 offen offset:{128 * ks}', 'xa')
        a('s_mov_b64 exec, -1')
        if not self.ean: self.issue(pq[1])
        self.stamp(56, None, 30)
        self.srd(24, 72, 4096 * 896)
        a('s_lshl_b32 s39, s2, 8')
        self.typeB(f'v{self.vDO}', 's39')
        self.consts(); a('s_lshl_b32 s38, s3, 13'); a('v_add_u32 v9, s38, v9')
        if self.up4: self.issue(pq[2]); self.issue(pq[3])
        self.stamp(57, None, 30)
        self.arm(True)
        self.stamp(58, None, 30)
        if not self.up4: self.issue(pq[1 if self.ean else 2])
        self.vmwait('xl')
        self.stamp(59, None, 30)
        for b in range(4):
            for x in self.stats_ops(XL + 4 * b):
                if x: a(x)
            a(f'v_mov_b32_dpp v92, v24 quad_perm:[0,1,2,3] row_mask:0x{1 << b:x} bank_mask:0xf')
            a(f'v_mov_b32_dpp v93, v25 quad_perm:[0,1,2,3] row_mask:0x{1 << b:x} bank_mask:0xf')
        if self.ean: self.announce(); self.issue(pq[2])
        if not self.up4: self.issue(pq[3])
        self.zero(ACC, 16)
        self.bits('v94', 'v0', 'v6', [(0, 1, 1), (2, 1, 2), (3, 1, 4), (1, 1, 5), (4, 2, 13)])
        a('s_lshl_b32 s38, s3, 7'); a('s_lshl_b32 s44, s2, 9'); a('s_add_u32 s44, s38, s44')
        self.stamp(60, None, 30)
        nxt = {1: pq[4], 2: pq[5], 3: pq[6], 4: po[0]}
        if R4 == 1: nxt[5] = po[1]; nxt[6] = [po[2], po[3]]
        def q1mm(ks):
            for jj in range(4): a(f'v_smfmac_f32_16x16x64_bf16 {vr(ACC + 4 * jj, 4)}, {vr(A + 4 * ks, 4)}, {rr(qreg(jj, ks), 8)}, v3')
        hooks = {} if self.ean else {(3 if self.up4 else 2): lambda: self.announce(False)}
        for i in range(7):
            if i == 3: self.vmwait('arm')
            self.consume(pq[i], nxt.get(i), hooks.get(i))
            self.stamp(41 + i, None, 26)
            if i: q1mm(i - 1)
        a('s_waitcnt lgkmcnt(0)')
        q1mm(6)
        self.stamp(20, None, 28)
        for jj in range(4):
            a(f'v_add_f32 v{20 + jj}, v{ACC + 4*jj}, v{ACC + 4*jj + 1}'); a(f'v_add_f32 v{24 + jj}, v{ACC + 4*jj + 2}, v{ACC + 4*jj + 3}')
        for jj in range(4): a(f'v_fma_f32 v{20 + jj}, -v92, v{24 + jj}, v{20 + jj}')
        for jj in range(4): a(f'v_mul_f32 v{20 + jj}, v{20 + jj}, v93')
        for jj in range(4): a(f'v_cvt_pk_bf16_f32 v{20 + jj}, v{20 + jj}, v{20 + jj}')
        for jj in range(4): a(f'v_min_u32 v{20 + jj}, -2, v{20 + jj}')
        for jj in range(4): self.vm(f'buffer_store_short v{20 + jj}, v94, {WS}, s44 offen offset:{(jj & 1) * 8 + (jj >> 1) * 64} sc1')
        for jj in range(4): a(f'v_mov_b32_dpp v{self.vCS}, v{24 + jj} quad_perm:[0,1,2,3] row_mask:0x{1 << jj:x} bank_mask:0xf')
        self.stamp(35, None, 28)
        if R4 != 1: self.issue(po[1]); self.issue(po[2])
        if R4 == 3: self.issue(po[3])
        a('s_mov_b32 s55, 0'); a(f's_lshl_b32 s41, s2, 15'); a(f's_add_u32 s41, s41, 0x{POFF:x}')
        if self.oarm: self.pquad('s11'); a('s_add_u32 s11, s11, s41'); a(f's_sub_u32 s11, s11, {3 * PIB - PP2}')
        self.x0off(); self.gather_offs()
        a('s_lshl_b32 s40, s2, 10'); a('s_and_b32 s38, s40, 0x2000'); a('s_add_u32 s40, s40, s38'); a(f's_add_u32 s40, s40, 0x{YOFF:x}')
        PO, PO2, MO, OW = self.vPO, self.vPO2, self.vMLO, self.vOW
        self.bits(f'v{PO}', 'v0', 'v6', [(0, 4, 4), (4, 2, 10)])
        a('s_lshl_b32 s38, s3, 8'); a(f'v_add_u32 v{PO}, s38, v{PO}')
        a('v_cmp_gt_u32 vcc, 32, v0'); a('v_lshrrev_b32 v6, 4, v0'); a('v_bfe_u32 v7, v0, 2, 2'); a(f'v_cndmask_b32 v{PO2}, v10, v{PO}, vcc')
        a('v_add_u32 v6, v6, v7'); a('v_and_b32 v6, 3, v6')
        a('v_and_b32 v7, 3, v0'); a('v_lshl_add_u32 v6, v7, 2, v6')
        a(f'v_cmp_gt_u32 s[42:43], {NC}, v6'); a(f'v_min_u32 v6, {NC - 1}, v6'); a(f'v_lshlrev_b32 v{MO}, 7, v6'); a(f'v_add_u32 v{MO}, {MLO}, v{MO}')
        self.bits(f'v{OW}', 'v0', 'v6', [(4, 2, 1), (0, 3, 4), (3, 1, 8)])
        a('s_lshr_b32 s38, s3, 1'); a('s_lshl_b32 s38, s38, 7'); a('s_and_b32 s39, s3, 1'); a('s_lshl_b32 s39, s39, 3'); a('s_add_u32 s38, s38, s39')
        a(f'v_add_u32 v{OW}, s38, v{OW}')
        self.bits(f'v{self.vQS}', 'v0', 'v6', [(0, 1, 1), (2, 1, 2), (4, 1, 3), (3, 1, 4), (1, 1, 5), (5, 1, 6)])
        a('s_lshl_b32 s38, s3, 7'); a(f'v_add_u32 v{self.vQS}, s38, v{self.vQS}')
        a('s_cmp_eq_u32 s2, 0'); a(f's_cselect_b32 s33, 0x{XBOFF - 4 * 2048:x}, s57')
        a('s_mov_b32 s53, 3'); a(f's_mov_b32 s54, 0x{OOB:x}')
        for i in range(8):
            self.consume(po[i], (po[i + 3] if 1 <= i < 5 else None) if R4 else po[i + 2] if 1 <= i < 6 else None, (lambda: self.preready(True)) if i == (4 if self.split else 5) else None)
            self.stamp(48 + i, None, 28)
            if i == 1: a('s_call_b64 s[34:35], L_Osub')
            if i == 2: a('s_call_b64 s[34:35], L_Qsub'); a('s_lshl_b32 s54, s2, 9')
            if i == 5 and self.split:
                self.ready(True); a('s_call_b64 s[34:35], L_Osub'); self.cq = []
                a(f'v_cmp_gt_i32 vcc, 0, v{ML+1}'); a('s_cmp_lg_u64 vcc, 0'); a('s_addc_u32 s9, s9, 0')
        assert self.split and self.reord
        self.stamp(1, None, 28)
        a('s_call_b64 s[34:35], L_Ook')
        a.label('L_OQloop')
        a(f's_movk_i32 s38, 0x{self.qmask:x}'); a('s_bitcmp1_b32 s38, s49'); a('s_cbranch_scc0 L_OQin')
        self.readout(pq[6])
        a('s_call_b64 s[34:35], L_Qsub')
        self.readout(po[6], inwin); self.readout(po[7], inwin)
        a.label('L_OQin')
        a('s_call_b64 s[34:35], L_Osub')
        a('s_cmp_lt_u32 s49, 8'); a('s_cbranch_scc1 L_OQloop')
        a('s_branch L_end')

    def roleF(self):
        a = self.a
        self.dma_sub('L_dmaG', W1, 'v44', 88, 64 * 3584)
        self.dma_subB('L_dmaD', W3, 'v11')
        breg = lambda jj, ks: 256 + (jj * 7 + ks) * 8
        def dreg(jj, ks):
            i = jj * 2 + ks
            return 256 + 224 + 8 * i if i < 4 else 176 + 8 * (i - 4)
        G = 64; ACC = 48; A = 96; X = 124; CSUM = self.vCS; ACD = 128; X0 = 160
        a.label('L_Fsub')
        self.calc_ib()
        self.zero(ACC, 16); self.zero(ACD, 28)
        a('s_lshl_b32 s38, s50, 15'); a(f's_add_u32 s48, s38, 0x{YOFF:x}'); a('s_add_u32 s48, s48, s10')
        a('s_add_u32 s44, s38, s40'); a('s_add_u32 s51, s44, s56'); a('s_add_u32 s44, s44, s57')
        a('s_lshl_b32 s38, s50, 11'); a(f's_add_u32 s47, s38, 0x{XBOFF - 4 * 2048:x}'); a('s_add_u32 s47, s47, s10')
        a('s_and_b32 s39, s38, 0x2000'); a('s_add_u32 s38, s38, s39')
        a('s_add_u32 s45, s38, s41'); a('s_add_u32 s46, s45, s56'); a('s_add_u32 s45, s45, s57')
        a('s_cmp_lt_i32 s49, 0'); a('s_cbranch_scc1 L_Fx')
        a('s_bitcmp1_b32 s50, 2'); a('s_cbranch_scc1 L_Fr')
        a(f'v_lshlrev_b32 v16, 16, v{X0}'); a(f'v_and_b32 v17, 0xffff0000, v{X0}')
        for i in range(3): a(f'v_mov_b32 v{X0 + i}, v{X0 + i + 1}')
        a('s_branch L_Fg')
        a.label('L_Fr')
        self.resid_poll('s47')
        a.label('L_Fg')
        self.gather_sum('s48', G, True)
        a.label('L_Fx')
        a('ds_write_b32 v15, v24'); a('s_waitcnt lgkmcnt(0)'); a('s_barrier')
        for ks in range(7): a(f'ds_read_b128 {vr(A + 4*ks, 4)}, v2 offset:{128 * ks}')
        a(f'ds_read_b128 {vr(X, 4)}, v1')
        for x in self.xrow_ops('s45', 's46'): a(x)
        self.stamp(3, 's49', 28)
        fill = [None] * 5 + ['s_waitcnt lgkmcnt(0)'] + self.stats_ops(X)
        self.gemv(4, 7, breg, ACC, A, fill=fill, nother=1)
        a(f'v_mul_f32 v22, v24, v{CSUM}'); a(f'v_mul_f32 v23, v24, v{CSUM+1}'); a('v_mul_f32 v25, v25, v25')
        for jj in (0, 2, 1, 3): self.rowsel(20 + jj // 2, ACC, [(jj, 10 if jj & 1 else 5)])
        a('v_sub_f32 v20, v20, v22'); a('v_sub_f32 v21, v21, v23')
        a('v_max_f32 v20, 0, v20'); a('v_mul_f32 v21, v21, v25'); a('v_mul_f32 v20, v20, v21')
        a('v_cvt_pk_bf16_f32 v20, v20, v20')
        a('ds_write_b16 v40, v20'); a('s_waitcnt lgkmcnt(0)'); a('s_barrier')
        for ks in range(2): a(f'ds_read_b128 {vr(A + 4*ks, 4)}, v2 offset:{2048 + 128 * ks}')
        a('v_mov_b32 v21, 0')
        self.gemv(7, 2, dreg, ACD, A)
        self.rowout(ACD, 's44', 's51')
        self.stamp(12, 's49', 28)
        a('s_add_u32 s49, s49, 1')
        a('s_cmp_eq_u32 s49, 0'); a('s_cbranch_scc1 L_Fret')
        a('s_cmp_lt_u32 s49, 8'); a('s_cbranch_scc1 L_Fsub')
        a('s_branch L_end')
        a.label('L_roleF')
        self.cq = list(self.cq0); done = 8 * (self.hq[1] - self.hq[0]) if self.hq else 0
        a('s_cmp_lt_u32 s3, 2'); a('s_cselect_b64 s[20:21], s[76:77], s[78:79]'); a(f's_mov_b32 s22, 0x{448 * 3584:x}'); a('s_mov_b32 s23, 0x20000')
        a('s_sub_u32 s2, s2, 16')
        a('v_mul_u32_u24 v6, 3584, v4')
        a('s_lshl_b32 s38, s2, 8'); a('s_and_b32 s39, s3, 1'); a('s_lshl_b32 s39, s39, 7'); a('s_add_u32 s38, s38, s39')
        a('v_add3_u32 v44, v6, v2, s38')
        self.table(88, 3584)
        pl = [dict(sub='L_dmaG', B=0, rd=[(breg(jj, ks) + 2 * rp, (jj >> 1) * 16384 + rp * 2048 + (jj & 1) * 256) for jj in range(4) for rp in range(4)]) for ks in range(7)]
        pl += [dict(sub='L_dmaD', B=1, rd=self.typeB_reads(dreg, i // 2, i % 2)) for i in range(4)]
        for i, p in enumerate(pl): p['slot'] = i % 4
        self.stamp(56, None, 30)
        for i in range(1 if self.ean else 2): self.issue(pl[i])
        self.stamp(57, None, 30)
        self.srd(28, 80, 1792 * 896); self.srd(68, 64, 3584)
        a('s_lshl_b32 s39, s2, 7')
        self.typeB('v11', 's39')
        self.consts()
        a('s_lshr_b32 s38, s3, 1'); a('s_lshl_b32 s38, s38, 13'); a('s_and_b32 s39, s3, 1'); a('s_lshl_b32 s39, s39, 9'); a('s_add_u32 s38, s38, s39'); a('v_add_u32 v9, s38, v9')
        self.x0off(); self.gather_offs()
        for b in range(4): self.vm(f'buffer_load_dword v{X0 + b}, v12, s[68:71], 0 offen offset:{b * 896}', 'x0')
        a('v_and_b32 v6, 31, v0'); a('s_lshl_b32 s38, s3, 6'); a('s_add_u32 s38, s38, 2048'); a('v_lshl_add_u32 v40, v6, 1, s38')
        a('s_lshl_b32 s40, s2, 10'); a('s_and_b32 s38, s40, 0x2000'); a('s_add_u32 s40, s40, s38'); a(f's_add_u32 s40, s40, 0x{ZOFF:x}')
        a('s_cmp_eq_u32 s2, 0'); a(f's_cselect_b32 s41, 0x{XAOFF:x}, s57')
        if done < 10: self.arm()
        elif done < 24: self.announce()
        if self.ean:
            assert not done
            self.issue(pl[1]); self.announce()
        self.stamp(58, None, 30)
        self.issue(pl[2])
        a('s_branch L_Fsub')
        a.label('L_Fret')
        self.issue(pl[3])
        self.stamp(59, None, 30)
        hooks = {2: lambda: self.announce(False)} if done < 10 and not self.ean else {}
        hooks[7] = self.preready
        for i in range(11):
            self.consume(pl[i], pl[i + 3] if 1 <= i < 8 else None, hooks.get(i))
            if self.ho and i == self.ho[2]: self.wo_pf('s2')
            self.stamp(41 + i, None, 26)
            if i == 7:
                self.stamp(20, None, 28)
                self.colsum(4, 7, breg, ACC)
                self.rowsel(CSUM, ACC, [(0, 5), (1, 10)]); self.rowsel(CSUM + 1, ACC, [(2, 5), (3, 10)])
        self.ready()
        a('s_branch L_Fsub')

    def wo_pf(self, head, add=0):
        a = self.a; p0, p1 = self.ho[:2]
        self.srd(24, 72, 4096 * 896)
        nb = (p1 - p0) * 28672; per = nb // 4
        a(f's_mul_i32 s38, {head}, 229376'); a(f's_mul_i32 s39, s3, {per}'); a('s_add_u32 s38, s38, s39'); a(f's_add_u32 s38, s38, {p0 * 28672 + add * 229376}')
        a('v_min_u32 v6, 55, v0'); a('v_lshlrev_b32 v6, 7, v6')
        for i in range(p1 - p0):
            self.vm(f'buffer_load_dword v45, v6, {W2}, s38 offen {self.hpol}', 'ho'); a('s_add_u32 s38, s38, 7168')
    def roleW(self):
        a = self.a
        self.cq = list(self.cq0); done = 8 * (self.hq[1] - self.hq[0]) if self.hq else 0
        self.consts()
        if done < 10: self.arm()
        if done < 24: self.announce()
        a('s_sub_u32 s2, s2, 30')
        if self.hpf: self.helper()
        if self.ho: self.wo_pf('s2', 14)
        a('s_cmp_lg_u32 s2, 0'); a('s_cbranch_scc1 L_end')
        self.near()
        self.srd(20, 82, 3584)
        self.x0off(); self.gather_offs()
        self.preready(); self.ready()
        G = 64
        a('s_mov_b32 s49, 0'); a(f's_add_u32 s47, s10, 0x{XAOFF + 16384:x}'); a(f's_add_u32 s48, s10, 0x{ZOFF + 4 * 32768:x}'); a('s_mov_b32 s44, 0')
        a.label('L_Wtop')
        if not self.mres: self.resid_poll('s47')
        self.gather_sum('s48', G, False, 's47' if self.mres else None)
        a(f'buffer_store_dword v24, v12, {W1}, s44 offen')
        self.stamp(12, 's49', 28)
        a('s_add_u32 s49, s49, 1'); a('s_add_u32 s47, s47, 2048'); a('s_add_u32 s48, s48, 32768'); a('s_add_u32 s44, s44, 896')
        a('s_cmp_lt_u32 s49, 4'); a('s_cbranch_scc1 L_Wtop')
        a('s_branch L_end')
    def helper(self):
        a = self.a
        hq, ho = self.hpf if isinstance(self.hpf, (list, tuple)) else (48, 48)
        a('s_lshl_b32 s38, s2, 2'); a('s_add_u32 s38, s38, s3')
        self.srd(20, 70, 448 * 8192); self.srd(24, 72, 4096 * 896)
        a('s_lshl_b32 s40, s38, 10'); a(f's_add_u32 s40, s40, {(448 - hq) * 8192}')
        l = self.lab('L_hq'); a(f's_mov_b32 s41, {hq}')
        if hq:
            a.label(l)
            a('s_waitcnt vmcnt(11)'); a(f'buffer_load_dwordx4 v[64:67], v1, {W1}, s40 offen {self.hpol}')
            a('s_add_u32 s40, s40, 8192'); a('s_sub_u32 s41, s41, 1'); a('s_cmp_lg_u32 s41, 0'); a(f's_cbranch_scc1 {l}')
        if ho:
            a('s_mul_i32 s40, s38, 458752'); a(f's_add_u32 s40, s40, {229376 - ho * 1024}'); a('s_add_u32 s42, s40, 229376')
            l = self.lab('L_ho'); a(f's_mov_b32 s41, {ho}')
            a.label(l)
            a('s_waitcnt vmcnt(10)'); a(f'buffer_load_dwordx4 v[64:67], v1, {W2}, s40 offen {self.hpol}')
            a(f'buffer_load_dwordx4 v[64:67], v1, {W2}, s42 offen {self.hpol}')
            a('s_add_u32 s40, s40, 1024'); a('s_add_u32 s42, s42, 1024'); a('s_sub_u32 s41, s41, 1'); a('s_cmp_lg_u32 s41, 0'); a(f's_cbranch_scc1 {l}')
        a('s_waitcnt vmcnt(0)')
        self.stamp(20, None, 28)

if __name__ == '__main__':
    kw = json.loads(sys.argv[2]) if len(sys.argv) > 2 else {}
    open(sys.argv[1], 'w').write(Gen(**kw).build())
```

```python
import sys, struct, json
from asmlib import Asm
NAME = "interleave_layers__mha_block_cached__glu_gated_reglu__decode"

QOFF = 0x0; YOFF = 0x10000; ZOFF = 0x50000; XAOFF = 0x90000; XBOFF = 0x98000; HOFF = 0x9c000; COFF = 0x9a000 - 0x2000 + 0x8000; POFF = 0x800000; DOFF = 0x400000
PB = 32768; PIB = 0x100000; PP2 = 0x80000; MLO = 16384 + 6144
OOB = 0x40000000
NC = 14; NW = 56
CS = 0.09016844005556021
def f2u(x): return struct.unpack('<I', struct.pack('<f', x))[0]

K_SRD = 's[8:11]'; V_SRD = 's[12:15]'; WS = 's[16:19]'; W1 = 's[20:23]'; W2 = 's[24:27]'; W3 = 's[28:31]'
DBG = 's[84:85]'
NCHAIN = 32
K4 = 's[88:91]'; V4 = 's[92:95]'
FULL = 'row_mask:0xf bank_mask:0xf'

def vr(b, n=1): return f'v{b}' if n == 1 else f'v[{b}:{b+n-1}]'
def ar(b, n=1): return f'a{b}' if n == 1 else f'a[{b}:{b+n-1}]'
def rr(b, n=1): return vr(b, n) if b < 256 else ar(b - 256, n)

class Gen:
    def __init__(self, diag=False, PF=65, depth=8, hpf=False, hpol='nt', cpf=False, rows=(16, 10, 7), hq=None, fake=0, CL=12, PF2=None, reord=1, lightO=0, split=True, tlb=0, fx=2, thr=None, wtlb=0, probe=None, kpol='nt', vpol='nt', par=None, nQ=48, nE=60, early=False, sub=None, qE=None, ring4=0, up4=False, ho=None, pos=None, home=0, hforce=None, lv=None, lvx=None, th=None, cps=None, rs=None, gs=14, kvonly=True, ed=False, mid=None, fast=((2, (73, 74, 75)), (3, (76, 77)), (4, (78, 79))), boost=None, fld=(2, 2), nQ1=None, cpon=None, odd=None, slow=None, xsl=0, loc=1, spf=None, mres=1, dual=1, hs=4, ean=1, SG=24, pw=12, flex=None, KF=52, TK=41, qmask=0x96, fw=(), fb=None, bst=None, fine=(), cla=0, arl=None, wsw=0, noarm=0, PFA=None, xpf=None, oarm=0, xpol='', fx2=None, p0=8, nox=0, nocl=0,
                 p2l=((('u', 2), (73, 74, 75)), (('u', 3), (76, 77)), (('u', 4), (78, 79)), (('u', 9), (0,)), (('x', 0), (1,)), (('i', 0), (2,)), (('i', 2), (3,)), (('i', 4), (4,)), (('m', 0), (5,))),
                 p1l={'a': (6, 7), '1': (8, 9), '2': (10,), '3': (11, 12), '4': (13,), 'm': (14, 15)}):
        self.nox = nox; self.nocl = nocl; self.fine = list(fine); self.cla = cla; self.arl = arl; self.wsw = wsw; self.noarm = noarm; self.PFA = PFA; self.p0 = p0; self.fx2 = fx2; self.xpf = xpf; self.xpol = xpol; self.oarm = oarm; self.fb = fb; self.bst = bst; self.fw = fw; self.flex = flex; self.KF = KF; self.TK = TK; self.qmask = qmask
        if flex:
            rest = list(range(48, 80)); rest[KF - 40:KF - 40] = range(32, 40)
            self.ORD = list(range(24, 32)) + list(range(40, 48)) + list(range(24)) + rest
            assert sum(n for n, r in flex) == NW and sum(n * r for n, r in flex) == 512 and nQ >= KF + 8
        self.SG = SG; self.pw = pw; self.p2l = p2l; self.p1l = p1l
        self.dual = dual; self.hs = hs; self.ean = ean
        self.loc = loc; self.spf = spf or []; self.mres = mres
        self.xsl = xsl
        self.slow = slow
        self.odd = odd
        self.cpon = cpon
        self.nQ1 = nQ1 or nQ
        self.fast = fast; self.boost = boost; self.fld = fld; self.xst = 0
        if boost: lv = [depth, boost[1]]
        self.kvonly = kvonly; self.ed = ed; self.mid = mid
        self.lv = lv; self.lvx = lvx; self.th = th; self.cps = cps or []; self.rs = rs; self.dyn = False; self.gs = gs
        self.hforce = hforce
        self.home = home
        self.pos = pos
        self.ring4 = ring4; self.up4 = up4; self.ho = ho
        self.sub = sub; self.qE = qE
        self.par = par; self.nQ = nQ; self.nE = nE; self.early = early
        self.pmul = 10 if not probe or len(probe) < 3 else probe[2]; probe = probe and probe[:2]; self.probe = probe; self.role = 'X'; self.kpol = kpol; self.vpol = vpol
        self.a = Asm(); self.diag = diag; self.PF = PF; self.depth = depth; self.hpf = hpf; self.hpol = hpol; self.cpf = cpf; self.rows = rows; self.hq = hq; self.fake = fake; self.CL = CL; self.PF2 = PF2; self.reord = reord; self.lightO = lightO; self.split = split; self.tlb = tlb; self.fx = fx; self.thr = thr; self.wtlb = wtlb
        self.uid = 0
    def lab(self, p='L'):
        self.uid += 1; return f'{p}_{self.uid}'

    def bits(self, dst, lane, tmp, mp):
        a = self.a; first = True
        for lb, n, ab in mp:
            if first:
                a(f'v_bfe_u32 {dst}, {lane}, {lb}, {n}')
                if ab: a(f'v_lshlrev_b32 {dst}, {ab}, {dst}')
                first = False
            else:
                a(f'v_bfe_u32 {tmp}, {lane}, {lb}, {n}')
                a(f'v_lshl_add_u32 {dst}, {tmp}, {ab}, {dst}')
    def srd(self, base, lo, size):
        a = self.a
        a(f's_mov_b64 s[{base}:{base+1}], s[{lo}:{lo+1}]')
        a(f's_mov_b32 s{base+2}, 0x{size:x}'); a(f's_mov_b32 s{base+3}, 0x20000')
    def timeout(self):
        self.a('s_sub_u32 s52, s52, 1'); self.a('s_cbranch_scc1 L_bail')
        if self.xsl and self.role != 'S': self.a(f's_sleep {self.xsl}')
    FLAG = 4096; CNTA = 16; CNTB = 144
    def wait_counter(self, va, vd, vt, off, n, pre=False):
        a = self.a; l = self.lab('L_cnt'); c = self.lab('L_cntc')
        if pre: a(f's_branch {c}')
        else: a(f'v_mov_b32 v{va}, 0')
        a.label(l)
        self.timeout()
        a(f'global_load_dword v{vd}, v{va}, {DBG} offset:{off} sc1'); a('s_waitcnt vmcnt(0)')
        a.label(c)
        a(f'v_and_b32 v{vt}, {"0xffff" if self.nocl else "0xff"}, v{vd}'); a(f'v_cmp_gt_u32 vcc, {n}, v{vt}'); a(f's_cbranch_vccnz {l}')
    def claim(self, va, vd, vr_):
        a = self.a; l = self.lab('L_cl')
        if self.nocl: a(f'v_mov_b32 v{va}, 0'); a('s_waitcnt lgkmcnt(0)'); return
        a('s_lshl_b32 s38, 1, s101'); a(f'v_mov_b32 v{va}, s100'); a(f'v_mov_b32 v{vd}, s38')
        a('s_or_b32 s38, s3, s7')
        a('s_waitcnt lgkmcnt(0)')
        a(f's_cbranch_scc1 {l}')
        a('s_mov_b64 exec, 1')
        a(f'global_atomic_or v{vr_}, v{va}, v{vd}, {DBG} sc0 sc1')
        a('s_mov_b64 exec, -1')
        a.label(l)
    def confirm(self, vr_, t):
        a = self.a; l = self.lab('L_rs'); w = self.lab('L_rw')
        if self.nocl: return
        a(f'v_mov_b32 v{t}, 0')
        a('s_cmp_lg_u32 s3, 0'); a(f's_cbranch_scc1 {l}')
        a('s_movk_i32 s38, 0x100'); a('s_cmp_lg_u32 s7, 0'); a(f's_cbranch_scc1 {w}')
        a(f'v_readfirstlane_b32 s39, v{vr_}'); a('s_bitcmp1_b32 s39, s101'); a(f's_cbranch_scc0 {w}')
        a('s_call_b64 s[96:97], L_lost')
        a.label(w)
        a(f'v_mov_b32 v{t+1}, s38'); a(f'ds_write_b32 v{t}, v{t+1} offset:{self.FLAG}'); a('s_waitcnt lgkmcnt(0)')
        a.label(l)
        a('s_barrier')
        a(f'ds_read_b32 v{t+1}, v{t} offset:{self.FLAG}'); a('s_waitcnt lgkmcnt(0)')
        a(f'v_readfirstlane_b32 s38, v{t+1}'); a('s_cmp_lg_u32 s38, 0x100'); a('s_cbranch_scc1 L_redo')
    def signal(self, va, vd, off, val):
        a = self.a; l = self.lab('L_sg')
        a('s_cmp_lg_u32 s3, 0'); a(f's_cbranch_scc1 {l}')
        a('s_mov_b64 exec, 1'); a(f'v_mov_b32 v{va}, 0'); a(f'v_mov_b32 v{vd}, {val}')
        a(f'global_atomic_add v{va}, v{vd}, {DBG} offset:{off} sc1')
        a('s_mov_b64 exec, -1')
        a.label(l)
    def rare_paths(self):
        a = self.a
        a.label('L_odd')
        a('s_waitcnt lgkmcnt(0)'); a('v_mov_b32 v1, 0')
        a('s_cmp_lg_u32 s3, 0'); a('s_cbranch_scc1 L_odd2')
        a('s_and_b32 s38, s36, 3'); a('s_lshl_b32 s38, s38, 6'); a('s_lshr_b32 s39, s36, 2'); a('s_lshl3_add_u32 s38, s39, s38')
        a('v_mov_b32 v2, s38'); a('s_lshl_b32 s39, s37, 3'); a('s_movk_i32 s41, 24')
        a.label('L_odd1')
        a(f'global_load_dword v3, v2, {DBG} sc1'); a('s_waitcnt vmcnt(0)')
        a('v_readfirstlane_b32 s38, v3'); a('s_lshr_b32 s38, s38, s39'); a('s_and_b32 s38, s38, 0xff'); a('s_bcnt1_i32_b32 s40, s38')
        a('s_cmp_ge_u32 s40, 7'); a('s_cselect_b32 s41, 0, s41'); a('s_sub_u32 s41, s41, 1'); a('s_cbranch_scc0 L_odd1')
        a('s_ff0_i32_b32 s38, s38'); a('v_mov_b32 v2, s38'); a(f'ds_write_b32 v1, v2 offset:{self.FLAG + 4}'); a('s_waitcnt lgkmcnt(0)')
        a.label('L_odd2')
        a('s_barrier')
        a(f'ds_read_b32 v2, v1 offset:{self.FLAG + 4}'); a('s_waitcnt lgkmcnt(0)')
        a('v_readfirstlane_b32 s38, v2'); a('s_mov_b32 s6, 1'); a('s_branch L_even')
        a.label('L_lost')
        a('s_waitcnt vmcnt(0)')
        self.bits('v62', 'v0', 'v63', [(0, 2, 6), (2, 1, 3)])
        a.label('L_lost1')
        a(f'global_load_dword v60, v62, {DBG} sc1'); a('s_waitcnt vmcnt(0)')
        a('v_cmp_ne_u32 vcc, -1, v60'); a('s_movk_i32 s38, 0x300'); a('s_cbranch_vccz L_lost2')
        a('s_getreg_b32 s39, hwreg(HW_REG_XCC_ID, 0, 3)'); a('s_ff1_i32_b32 s38, vcc_lo')
        a('s_bitcmp1_b32 vcc_lo, s39'); a('s_cselect_b32 s38, s39, s38')
        a('s_nop 3'); a('v_readlane_b32 s39, v60, s38'); a('v_readlane_b32 s40, v62, s38'); a('s_ff0_i32_b32 s39, s39')
        a('s_lshl_b32 s41, 1, s39'); a('v_mov_b32 v61, s41'); a('v_mov_b32 v63, s40')
        a('s_mov_b64 exec, 1'); a(f'global_atomic_or v60, v63, v61, {DBG} sc0 sc1'); a('s_mov_b64 exec, -1'); a('s_waitcnt vmcnt(0)')
        a('v_readfirstlane_b32 s40, v60'); a('s_bitcmp1_b32 s40, s39'); a('s_cbranch_scc1 L_lost1')
        a('s_lshl_b32 s38, s38, 5'); a('s_add_u32 s38, s38, s39'); a('s_bitset1_b32 s38, 9')
        a.label('L_lost2')
        a('s_setpc_b64 s[96:97]')
        a.label('L_redo')
        a('s_bitcmp1_b32 s38, 8'); a('s_cbranch_scc1 L_bail')
        a('s_waitcnt vmcnt(0) lgkmcnt(0)'); a('s_barrier')
        a('s_load_dwordx16 s[64:79], s[0:1], 0')
        a('s_load_dwordx8 s[80:87], s[0:1], 64')
        a('s_bfe_u32 s36, s38, 0x30005'); a('s_and_b32 s2, s38, 31'); a('s_mov_b32 s7, 1')
        a('s_branch L_role')
    def stamp(self, idx, sidx=None, t0=20, src='s62'):
        if self.probe and not self.diag:
            role, want = self.probe
            if role != self.role or (sidx is None and idx != want) or (sidx and not (0 <= want - idx < 9)): return
            a = self.a
            a('s_waitcnt lgkmcnt(0)'); a('s_memrealtime s[62:63]'); a('s_waitcnt lgkmcnt(0)')
            if sidx: a(f's_cmp_eq_u32 {sidx}, {want - idx}'); a('s_cselect_b32 s61, s62, s61')
            else: a('s_mov_b32 s61, s62')
            return
        if not self.diag: return
        a = self.a
        a('s_waitcnt lgkmcnt(0)'); a('s_memrealtime s[62:63]'); a('s_waitcnt lgkmcnt(0)')
        a(f'v_mov_b32 v{t0}, {src}')
        if sidx: a(f's_lshl_b32 s60, {sidx}, 2'); a('s_add_u32 s60, s60, s61')
        else: a('s_mov_b32 s60, s61')
        a(f'v_mov_b32 v{t0+1}, 0')
        a('s_mov_b64 exec, 1')
        a(f'buffer_store_dword v{t0}, v{t0+1}, {WS}, s60 offen offset:{idx*4}')
        a('s_mov_b64 exec, -1')
    def diagbase(self):
        a = self.a
        a('s_and_b32 s60, s61, 31'); a('s_lshr_b32 s61, s61, 5'); a('s_lshl3_add_u32 s61, s60, s61')
        a('s_lshl2_add_u32 s61, s61, s3'); a('s_lshl_b32 s61, s61, 8'); a(f's_add_u32 s61, s61, 0x{DOFF:x}')
    def maxtree(self, regs, t):
        a = self.a; regs = list(regs)
        a(f'v_max3_u32 v{t}, v{regs[0]}, v{regs[1]}, v{regs[2 if len(regs) > 2 else 1]}')
        regs = regs[3:]
        while regs:
            x = regs[:2]; regs = regs[2:]
            a(f'v_max3_u32 v{t}, v{t}, v{x[0]}, v{x[-1]}')
        a(f'v_cmp_eq_u32 vcc, -1, v{t}')

    def build(self):
        a = self.a
        if self.diag: a('s_memrealtime s[34:35]')
        a('s_cmp_ge_u32 s2, 256'); a('s_cbranch_scc1 L_end2')
        if self.probe: a('s_memrealtime s[62:63]'); a('s_waitcnt lgkmcnt(0)'); a('s_mov_b32 s60, s62'); a('s_mov_b32 s61, s62')
        a('s_load_dwordx16 s[64:79], s[0:1], 0')
        a('s_load_dwordx8 s[80:87], s[0:1], 64')
        if self.nocl:
            if self.fake: a(f's_mul_i32 s2, s2, {2 * self.fake + 1}'); a(f's_add_u32 s2, s2, {self.fake // 2 * 8}'); a('s_and_b32 s2, s2, 255'); self.fake = 0
            a('s_and_b32 s36, s2, 7'); a('s_lshr_b32 s38, s2, 5'); a('s_bfe_u32 s37, s2, 0x20003')
            if self.nocl > 1: a(f's_add_u32 s38, s38, {9 - self.nocl}')
            if self.diag: a('s_getreg_b32 s100, hwreg(HW_REG_HW_ID)')
        else:
            a('s_getreg_b32 s36, hwreg(HW_REG_XCC_ID, 0, 3)')
            a('s_getreg_b32 s38, hwreg(HW_REG_HW_ID, 8, 4)'); a('s_getreg_b32 s37, hwreg(HW_REG_HW_ID, 13, 2)')
        a('v_lshrrev_b32 v1, 6, v0'); a('v_and_b32 v0, 63, v0')
        a('v_readfirstlane_b32 s3, v1')
        a('s_mov_b32 s52, 400000'); a('s_mov_b64 s[6:7], 0')
        if self.fake == 1: a('s_and_b32 s38, s38, 6')
        if self.fake == 2: a('s_and_b32 s36, s36, 5')
        if self.fake == 3: a('s_and_b32 s36, s2, 7'); a('s_lshr_b32 s38, s2, 5'); a('s_mov_b32 s37, 0')
        if self.fake == 4: a('s_mov_b32 s36, 0'); a('s_mov_b32 s38, 0'); a('s_mov_b32 s37, 0')
        if self.fake == 5:
            a('s_bitcmp0_b32 s37, 0'); a('s_cselect_b32 s39, 8, 0'); a('s_cmp_eq_u32 s38, 3'); a('s_cselect_b32 s38, s39, s38')
        if not self.nocl: a('s_bitcmp0_b32 s37, 0'); a('s_cselect_b32 s39, 8, 0'); a('s_cmp_eq_u32 s38, s39'); a('s_cbranch_scc1 L_odd')
        a.label('L_even')
        a('s_and_b32 s38, s38, 7'); a('s_lshl3_add_u32 s2, s37, s38')
        if self.fake == 6: a('s_cmp_lg_u32 s38, 7'); a('s_cselect_b32 s39, 5, 0'); a('s_xor_b32 s36, s36, s39')
        if self.fake == 7: a('s_cmp_eq_u32 s2, 10'); a('s_cselect_b32 s39, 1, 0'); a('s_xor_b32 s36, s36, s39')
        if self.fake == 8: a('s_cmp_eq_u32 s2, 7'); a('s_cselect_b32 s39, 4, 0'); a('s_xor_b32 s36, s36, s39')
        a.label('L_role')
        if not self.nocl: a('s_mov_b32 s101, s2'); a('s_and_b32 s100, s36, 3'); a('s_lshl_b32 s100, s100, 6'); a('s_lshr_b32 s38, s36, 2'); a('s_lshl3_add_u32 s100, s38, s100')
        if self.cpf:
            a('s_getpc_b64 s[38:39]'); a.label('L_pc')
            a('s_lshl_b32 s37, s2, 2'); a('s_add_u32 s37, s37, s3'); a('s_lshl_b32 s37, s37, 10')
            a('s_cmp_ge_u32 s37, L_end-L_pc'); a('s_cbranch_scc1 L_nopf')
            a('v_lshl_add_u32 v2, v0, 4, s37'); a('v_min_u32 v2, L_end-L_pc-16, v2')
            a('global_load_dwordx4 v[60:63], v2, s[38:39]')
            a.label('L_nopf')
        a('s_getreg_b32 s38, hwreg(HW_REG_XCC_ID, 0, 4)'); a('s_cmp_eq_u32 s38, s36'); a(f's_cselect_b32 s5, 1, {"0x10001" if self.nocl else "0x101"}')
        a('s_lshr_b32 s38, s2, 4'); a('s_lshl1_add_u32 s36, s36, s38'); a('s_and_b32 s37, s2, 7'); a('s_bfe_u32 s38, s2, 0x10003')
        a('s_cmp_eq_u32 s37, 7'); a('s_cbranch_scc1 L_chain')
        self.role = 'S'; self.stream()
        a.label('L_chain'); self.role = 'C'
        self.chain_common()
        self.role = 'W'; self.roleW(); self.role = 'O'; self.roleOQ(); self.role = 'F'; self.roleF()
        if not self.nocl: self.rare_paths()
        a.label('L_bail')
        a('s_mov_b64 exec, 1')
        a('v_mov_b32 v0, 32'); a('v_mov_b32 v1, 1')
        a(f'global_atomic_add v0, v1, {DBG} sc1')
        a('v_mov_b32 v0, 36'); a('v_mov_b32 v1, s2')
        a(f'global_store_dword v0, v1, {DBG} sc1')
        a.label('L_end')
        if self.probe:
            a('s_cmp_eq_u32 s60, s61'); a('s_cbranch_scc1 L_end2')
            a('s_sub_u32 s61, s61, s60'); a(f's_mul_i32 s61, s61, {self.pmul}'); a('s_add_u32 s61, s61, 7000'); a('s_add_u32 s61, s61, s60')
            a.label('L_pspin')
            a('s_memrealtime s[62:63]'); a('s_waitcnt lgkmcnt(0)'); a('s_sub_u32 s62, s62, s61'); a('s_cmp_lt_i32 s62, 0'); a('s_cbranch_scc1 L_pspin')
        a.label('L_end2')
        body = a.finish()
        hdr = open('cdna_kernels/' + NAME + '.s.ref').read().split('\n')
        top = [l for l in hdr if l.startswith(';') and '@launch' not in l]
        s = '\n'.join(top) + '\n; @launch grid=(256,1,1) block=(256,1,1) lds=163840\n'
        s += f'.amdgcn_target "amdgcn-amd-amdhsa--gfx950"\n.text\n.globl {NAME}_kernel\n.p2align 8\n.type {NAME}_kernel,@function\n{NAME}_kernel:\n'
        s += body
        s += f'''s_endpgm
.section .rodata,"a"
.p2align 6
.amdhsa_kernel {NAME}_kernel
  .amdhsa_next_free_vgpr 512
  .amdhsa_next_free_sgpr 102
  .amdhsa_accum_offset 256
  .amdhsa_group_segment_fixed_size 0
  .amdhsa_kernarg_size 96
  .amdhsa_user_sgpr_count 2
  .amdhsa_user_sgpr_kernarg_segment_ptr 1
  .amdhsa_system_sgpr_workgroup_id_x 1
.end_amdhsa_kernel
'''
        return s

    CA = [0, 4096]; Q1L = 8192; MA = [10240, 10272]; CO = [10304, 10308]; MA1 = [10240, 10336]; ST = 10496; TB = 11520; WLDS = 37 * 1024
    vK, vV, vDs, vL16, vQo, vIQ, vIP = 1, 2, 3, 4, 5, 6, 7
    vM = 8; vT = 12; vBias = 15; vMC = 16; vL = 17; vQ = 24; vAcc = 32; vH = 48
    def kreg(self, s, u):
        return 64 + 96 * s + 16 * u if u < 6 else 256 + 128 * s + 16 * (u - 6)
    def vreg0(self, s, P, t):
        return 256 + 128 * s + 64 + 8 * (4 * P + t)
    def tile(self, n):
        if n < 40:
            u, t = n // 4, n % 4
            return 0, u // 2, t * 128 + (u & 1) * 512
        m = n - 40; g = m // 8; k = m % 8
        if g < 4: P, t = k // 4, k % 4
        else: t, P = k // 2, k % 2
        return 1, g, t * 128 + P * 1024
    def ldsslot(self, s, n):
        if n <= 72: return (n - 56) + 17 * s
        return 34 + (n - 73)
    ORD = list(range(24, 40)) + list(range(24)) + list(range(40, 80))
    def load(self, s, p, wait=True):
        a = self.a; n = self.ORD[p]
        kv, g, imm = self.tile(n)
        if p == 0 and not self.prologue:
            for j in range(4 if self.flex or self.fx2 else 5): a(f's_add_u32 s{40+j}, s{40+j}, 0x2000000')
            if self.fx2: a('s_mov_b32 s44, s24'); a('s_lshl_b32 s90, s25, 9'); a('s_add_u32 s90, s90, s44'); a('s_min_u32 s90, s90, s10'); a('s_mov_b32 s94, s90')
            elif not self.flex: a('s_add_u32 s90, s90, 0x2000000'); a('s_min_u32 s90, s90, s10'); a('s_mov_b32 s94, s90')
        va = f'v{self.vV if kv else self.vK}'; srd = V_SRD if kv else K_SRD
        if g == 4: srd = V4 if kv else K4
        dst = None
        if n < 40: dst = self.kreg(s, n // 4) + 4 * (n % 4)
        elif n < 56:
            m = n - 40; dst = self.vreg0(s, (m % 8) // 4, m % 4) + 4 * (m // 8)
        elif n >= 76: dst = self.kreg(1 - s, 1) + 4 * (n - 76)
        if dst is None:
            a(f's_add_u32 m0, s45, {self.ldsslot(s, n) * 1024 - imm}')
        depth = self.lv[-1] if self.dyn else self.depth
        if wait is not True and wait: depth = wait
        def allow(d):
            pos = [i for i, x in enumerate(reversed(self.vmq)) if x[0] != 'cp' and not (self.flex and x[0] in (0, 1) and self.KF <= x[1] < self.KF + 8 and (x[1] - self.KF) % 8 not in self.fw)]
            return pos[d - 1] if len(pos) >= d else None
        if wait is True and self.dyn:
            lows = [allow(d) for d in self.lv[:-1] if allow(d) is not None]
            labs = [self.lab('L_lv') for _ in lows]
            for i in reversed(range(len(lows))):
                a(f's_cmp_gt_u32 s59, {i}'); a(f's_cbranch_scc1 {labs[i]}')
            for i, k in enumerate(lows):
                a(f's_waitcnt vmcnt({k})'); a.label(labs[i])
        if wait and allow(depth) is not None:
            k = allow(depth)
            a(f's_waitcnt vmcnt({k})'); self.vmq = self.vmq[-k:]
        if dst is None:
            a(f'buffer_load_dwordx4 {va}, {srd}, s{40+g} offen offset:{imm} {self.vpol if kv else self.kpol} lds')
        else:
            a(f'buffer_load_dwordx4 {rr(dst, 4)}, {va}, {srd}, s{40+g} offen offset:{imm} {self.vpol if kv else self.kpol}')
        self.vmq.append((s, p))
    def need_vm(self, tag):
        if tag in self.vmq:
            k = len(self.vmq) - 1 - self.vmq.index(tag)
            if self.xst:
                l = self.lab('L_xs'); self.a('s_cmp_lg_u32 s58, 0'); self.a(f's_cbranch_scc1 {l}')
                self.a(f's_waitcnt vmcnt({k})'); self.a.label(l); self.a(f's_waitcnt vmcnt({k + self.xst})')
            else: self.a(f's_waitcnt vmcnt({k})')
            self.vmq = self.vmq[len(self.vmq) - k:] if k else []
    def ds(self, text, tag=None):
        self.a(text); self.lq.append(tag)
    def need_lds(self, tag):
        if tag in self.lq:
            i = len(self.lq) - 1 - self.lq[::-1].index(tag)
            k = len(self.lq) - 1 - i
            k = min(k, 15)
            self.a(f's_waitcnt lgkmcnt({k})'); self.lq = self.lq[len(self.lq) - k:] if k else []
    def qload(self):
        a = self.a
        a(f'buffer_load_dwordx4 {vr(self.vQ, 4)}, v{self.vQo}, {WS}, s46 offen sc1')
        a(f'buffer_load_dwordx4 {vr(self.vQ + 4, 4)}, v{self.vQo}, {WS}, s46 offen offset:256 sc1')
    def wpf(self, n):
        a = self.a
        for nn, mat, k in self.spf:
            if nn != n: continue
            a('s_lshl2_add_u32 s32, s37, s3')
            for lo, size, rs, lpr, hs, rows in {'q': [(70, 448 * 8192, 8192, 4, 512, 448)], 'o': [(72, 4096 * 896, 128, 1, 229376, 1792)],
                          'g': [(76, 448 * 3584, 3584, 2, 256, 448), (78, 448 * 3584, 3584, 2, 256, 448)], 'd': [(80, 1792 * 896, 128, 1, 114688, 896)]}[mat]:
                assert 56 * k <= rows and k * lpr <= 64
                self.srd(28, lo, size)
                a(f's_mul_i32 s38, s36, {hs}'); a(f's_mul_i32 s33, s32, {k * rs}'); a('s_add_u32 s38, s38, s33'); a(f's_add_u32 s38, s38, {(rows - 56 * k) * rs}')
                if mat == 'g': a('s_cmp_lt_u32 s36, 14'); a(f's_cselect_b32 s38, s38, 0x{OOB:x}')
                if lpr == 1: a('v_lshlrev_b32 v18, 7, v0')
                else:
                    a(f'v_lshrrev_b32 v18, {lpr // 2}, v0'); a(f'v_mul_u32_u24 v18, {rs}, v18'); a(f'v_and_b32 v19, {lpr - 1}, v0'); a('v_lshl_add_u32 v18, v19, 7, v18')
                L = k * lpr
                a(f's_mov_b32 exec_lo, 0x{(1 << min(L, 32)) - 1:x}'); a(f's_mov_b32 exec_hi, 0x{(1 << max(L - 32, 0)) - 1:x}')
                a(f'buffer_load_dword v17, v18, s[28:31], s38 offen')
                a('s_mov_b64 exec, -1')
    def zero_acc(self):
        return [f'v_mov_b64 {vr(self.vAcc + 2 * i, 2)}, 0' for i in range(8)]

    def stream(self):
        a = self.a
        self.vmq = []; self.lq = []; self.prologue = True
        a('s_mul_i32 s38, s38, 7'); a('s_add_u32 s37, s37, s38')
        if self.diag: a('s_mul_i32 s61, s36, 14'); a('s_add_u32 s61, s61, s37'); a('s_add_u32 s61, s61, 32'); self.diagbase()
        a('s_lshl_b32 s39, s37, 2'); a('s_add_u32 s39, s39, s3'); a('s_lshl_b32 s38, s39, 13')
        a('s_lshl_b32 s44, s36, 21'); a('s_add_u32 s40, s44, s38'); a(f's_add_u32 s43, s40, {3 * NW * 8192}')
        self.bits(f'v{self.vK}', 'v0', 'v18', [(0, 1, 4), (4, 2, 5), (2, 1, 10), (1, 1, 11), (3, 1, 12)])
        if not self.cla: self.claim(22, 23, 24)
        else: a('s_waitcnt lgkmcnt(0)')
        self.wpf(-1)
        self.srd(8, 66, 0x8000000)
        if self.diag: a('s_memrealtime s[98:99]')
        for p in range(self.p0): self.load(0, p, wait=False)
        if self.tlb:
            a('s_lshl_b32 s38, s3, 25'); a('s_add_u32 s38, s38, s44')
            a('s_load_dword s96, s[66:67], s38'); a('s_load_dword s97, s[68:69], s38')
            if self.tlb > 1: a('s_add_u32 s38, s38, 0x1fff00'); a('s_load_dword s96, s[66:67], s38'); a('s_load_dword s97, s[68:69], s38')
        if self.cla: self.claim(22, 23, 24); assert self.CL >= 15
        self.wpf(7)
        a(f's_lshl_b32 s47, s36, 15'); a('s_lshl_b32 s38, s37, 10'); a('s_and_b32 s48, s38, 0x2000'); a('s_add_u32 s38, s38, s48')
        a('s_add_u32 s47, s47, s38'); a(f's_add_u32 s47, s47, 0x{POFF:x}')
        a('s_lshl_b32 s48, s37, 7'); a('s_sub_u32 s48, s48, s38'); a(f's_add_u32 s48, s48, {MLO}')
        a(f'v_lshlrev_b32 v{self.vL16}, 4, v0')
        for j in range(1, 3): a(f's_add_u32 s{40+j}, s40, {j * NW * 8192}')
        self.srd(88, 66, 0); self.srd(92, 68, 0)
        if self.flex:
            a(f's_add_u32 s21, s44, {4 * NW * 8192}'); a('s_lshl_b32 s20, s36, 7'); a(f's_add_u32 s20, s20, 0x{HOFF:x}')
        else:
            if self.fx2:
                assert sum(n for n, r in self.fx2) == NW and sum(n * r for n, r in self.fx2) == 512 and self.PFA
                a(f's_add_u32 s21, s44, {4 * NW * 8192 + 0x2000000}'); a('s_lshl_b32 s20, s36, 7'); a(f's_add_u32 s20, s20, 0x{HOFF:x}')
            a('s_mul_i32 s38, s39, 9'); a('s_min_u32 s51, s37, 8'); a('s_add_u32 s38, s38, s51')
            a('s_cmp_lt_u32 s37, 8'); a('s_cselect_b32 s22, s3, 0'); a('s_cmp_eq_u32 s22, 3'); a('s_cselect_b32 s22, 10, 9'); a('s_mov_b32 s23, s22')
            a('s_lshl_b32 s38, s38, 9')
            a(f's_add_u32 s44, s44, {4 * NW * 8192}'); a('s_add_u32 s44, s44, s38')
            a('s_lshl_b32 s38, s22, 9'); a('s_add_u32 s90, s44, s38'); a('s_mov_b32 s94, s90')
        self.srd(12, 68, 0x8000000); self.srd(16, 86, 0x20000000)
        if self.wsw:
            a('s_lshl_b32 s38, s3, 20'); a('s_add_u32 s38, s38, s47'); a(f'buffer_load_dword v17, off, {WS}, s38 sc1')
        self.stamp(0); self.stamp(32, src='s34'); self.stamp(33, src='s98')
        if self.nocl: self.stamp(62, src='s100')
        self.bits(f'v{self.vV}', 'v0', 'v18', [(0, 3, 4), (5, 1, 9), (4, 1, 11), (3, 1, 12)])
        a(f's_mul_i32 s45, s3, {self.WLDS}'); a(f's_add_u32 s45, s45, {self.TB}')
        a(f'v_add_u32 v{self.vDs}, s45, v{self.vL16}')
        self.bits(f'v{self.vQo}', 'v0', 'v18', [(0, 2, 4), (4, 2, 6)])
        a('v_and_b32 v18, 2, v0'); a('v_cmp_eq_u32 vcc, 2, v18')
        a(f'v_mov_b32 v{self.vIQ}, 0x44444444'); a('v_mov_b32 v18, 0xeeeeeeee'); a(f'v_cndmask_b32 v{self.vIQ}, v{self.vIQ}, v18, vcc')
        a('v_and_b32 v18, 3, v0'); a('s_mov_b32 s38, 0x55555555'); a(f'v_mul_lo_u32 v{self.vIP}, v18, s38')
        a('v_and_b32 v18, 4, v0'); a('v_cmp_eq_u32 vcc, 4, v18')
        a('v_mov_b32 v18, 0xffff'); a('v_mov_b32 v19, 0xffff0000')
        M = self.vM
        a(f'v_cndmask_b32 v{M}, v18, 0, vcc'); a(f'v_cndmask_b32 v{M+1}, 0, v18, vcc')
        a(f'v_cndmask_b32 v{M+2}, v19, 0, vcc'); a(f'v_cndmask_b32 v{M+3}, 0, v19, vcc')
        self.bits(f'v{self.vBias}', 'v0', 'v19', [(4, 1, 0), (2, 1, 1), (1, 1, 2), (3, 1, 3), (5, 1, 4)])
        a('s_lshl_b32 s46, s3, 4'); a('s_add_u32 s46, s46, s36'); a('s_lshl_b32 s46, s46, 9')
        a('s_mov_b32 s49, 0'); a(f's_mov_b32 s51, 0x{f2u(CS):x}')
        a(f's_mov_b32 s53, {self.Q1L}'); a('s_lshl_b32 s54, s3, 10'); a('s_lshl_b32 s55, s3, 3')
        a('s_lshl_b32 s56, s36, 9'); a(f's_add_u32 s56, s56, 0x{QOFF + 3 * 8192:x}')
        a('v_mov_b32 v18, 0'); a('v_mov_b32 v19, 0')
        a(f'ds_write_b64 v18, v[18:19] offset:{self.CO[0]}')
        a('s_lshl_b32 s57, s3, 8'); a(f's_add_u32 s57, s57, {self.ST}'); a('s_mov_b32 s58, 0'); a(f's_lshl_b32 s4, s5, {15 if self.nocl else 23}'); a('s_and_b32 s4, s4, 0x80000000')
        if self.lv:
            mid = self.lv.index(self.depth) if self.mid is None else self.mid
            a(f's_mov_b32 s59, {mid if not self.slow else self.slow[0]}')
            if self.slow and len(self.slow) > 3: a('s_cmp_ge_u32 s36, 8'); a(f's_cselect_b32 s59, {self.slow[3]}, s59')
            if self.cps:
                a('s_lshl2_add_u32 s24, s37, s3'); a('s_lshl_b32 s24, s24, 7'); a(f's_add_u32 s24, s24, 0x{COFF:x}')
                lo = (mid if not self.slow else self.slow[0]) - 1
                a(f's_mov_b32 s20, 0x{OOB:x}'); a(f's_mov_b32 s21, {-self.th[lo] if lo >= 0 else 100}'); a('s_mov_b32 s22, 0')
            if self.odd and not self.nocl:
                a('s_or_b32 s38, s6, s7'); a(f's_cselect_b32 s59, {mid}, s59')
                if self.cps: a(f's_cselect_b32 s21, {-self.th[-1]}, s21')
        assert not self.cps
        if self.bst: a('s_mov_b32 s26, s59')
        LP = {tuple(k): v for k, v in self.p2l}
        N1 = sum(1 for v in LP.values() for x in v if x < 40); N0 = N1 + sum(len(v) for v in self.p1l.values())
        assert N0 <= 16
        for p in range(self.p0, N0):
            self.load(0, p, wait=self.pw[min(p - self.p0, len(self.pw) - 1)] if isinstance(self.pw, list) else self.pw)
            if p == self.CL: self.armS()
            self.wpf(p)
        self.prologue = False
        entry_vmq = [(0, i) for i in range(N0)]; self.vmq = list(entry_vmq)
        nQ = self.nQ
        for s in range(2):
            a.label(f'L_A{s}')
            assert [(x[0] ^ s, x[1]) for x in self.vmq] == entry_vmq, (self.vmq, entry_vmq)
            self.lq = []
            n = N0; self.dyn = bool(self.lv)
            while n < 73:
                if self.slow and not self.fb and (s, n) == tuple(self.slow[1:3]): a(f's_max_u32 s59, s59, {mid}')
                if self.bst and n == self.bst[1]: a('s_mov_b32 s59, s26')
                if s == 0 and n in self.fine:
                    a('s_mul_i32 s99, s49, 5'); self.stamp(44 + self.fine.index(n), 's99', 18)
                for i, (c0, c1) in enumerate(self.cps):
                    r = 16 + i % 2
                    if n == c1:
                        self.need_vm(('cp', i))
                        a(f'v_readfirstlane_b32 s38, v{r}'); a(f's_sub_u32 s38, s38, s{25 + i % 2}'); a('s_mov_b32 s59, 0')
                        for t in self.th: a(f's_cmp_ge_i32 s38, {t}'); a('s_addc_u32 s59, s59, 0')
                for i, (c0, c1) in enumerate(self.cps):
                    r = 16 + i % 2
                    if n == c0:
                        assert not (c0 <= nQ + 3 and c1 > nQ) and c1 < 73
                        a(f'v_mov_b32 v{r}, 1'); a(f's_mov_b32 s{25 + i % 2}, s21'); a('s_add_u32 s21, s21, s22')
                        a('s_mov_b64 exec, 1'); a(f'buffer_atomic_add v{r}, off, {WS}, s20 sc0 sc1'); a('s_mov_b64 exec, -1')
                        self.vmq.append(('cp', i))
                if self.flex and n == self.KF:
                    self.need_vm(('cp', 0))
                    R = f's{22 + s}'
                    a('v_readfirstlane_b32 s38, v16'); a('s_add_u32 s38, s38, 1')
                    a(f's_mov_b32 {R}, {self.flex[0][1]}'); a(f's_mul_i32 s44, s38, {R}')
                    b = 0
                    for (n0, r0), (n1, r1) in zip(self.flex, self.flex[1:]):
                        b += n0
                        a(f's_sub_i32 s39, s38, {b}'); a('s_max_i32 s33, s39, 0'); a(f's_mul_i32 s33, s33, {r0 - r1}'); a('s_sub_u32 s44, s44, s33')
                        a('s_cmp_ge_i32 s39, 0'); a(f's_cselect_b32 {R}, {r1}, {R}')
                    a('s_lshl_b32 s44, s44, 9'); a('s_add_u32 s44, s44, s21'); a('s_add_u32 s21, s21, 0x2000000')
                    a(f's_lshl_b32 s90, {R}, 9'); a('s_add_u32 s90, s90, s44'); a('s_min_u32 s90, s90, s10'); a('s_mov_b32 s94, s90')
                    self.stamp(40, 's49', 18, 's38')
                if n == nQ:
                    self.need_vm((s, self.KF + 7 if self.flex else 39))
                    if s == 0:
                        a('s_cmp_eq_u32 s49, 0'); a('s_cbranch_scc1 L_st0'); st_in = list(self.vmq)
                    self.qk1(s, {('u', 1): [(s, n)], ('u', 6): [(s, n + 1)], ('x', 0): [(s, n + 2)], ('e', 0): [(s, n + 3)]}, True)
                    n += 4
                    if s == 0: a.label('L_st0r'); st_out = list(self.vmq)
                    for z in self.zero_acc(): a(z)
                    continue
                self.load(s, n)
                if s == 0 and (n == self.CL or any(x[0] == n for x in self.spf)):
                    l = self.lab('L_it0')
                    a('s_cmp_lg_u32 s49, 0'); a(f's_cbranch_scc1 {l}')
                    if n == self.CL: self.armS()
                    self.wpf(n)
                    a.label(l)
                CK = self.TK if self.flex else (self.PFA or self.PF)
                if s == 0 and n == CK - 8:
                    assert n >= nQ + 4 or (CK < nQ and n > self.CL)
                    l = self.lab('L_it0'); a('s_cmp_lg_u32 s49, 0'); a(f's_cbranch_scc1 {l}')
                    a('v_mov_b32 v22, 0'); a(f'global_load_dword v23, v22, {DBG} offset:{self.CNTA} sc1'); a.label(l)
                if s == 0 and n == CK:
                    self.stamp(22, 's49')
                    l = self.lab('L_it0'); a('s_cmp_lg_u32 s49, 0'); a(f's_cbranch_scc1 {l}')
                    a('s_waitcnt vmcnt(8)'); self.wait_counter(22, 23, 21, self.CNTA, NCHAIN, pre=True)
                    a('v_readfirstlane_b32 s27, v23'); a('s_add_u32 s27, s27, s5'); a.label(l)
                if (self.flex and n == self.TK) or (self.fx2 and n == self.PFA):
                    a('v_mov_b32 v16, 1')
                    a('s_mov_b64 exec, 1'); a(f'buffer_atomic_add v16, off, {WS}, s20 sc0 sc1'); a('s_mov_b64 exec, -1')
                    a('s_add_u32 s20, s20, 2048')
                    self.vmq.append(('cp', 0))
                if n == self.PFA:
                    assert n >= nQ + 4 and n < self.PF
                    self.qload(); self.vmq += [('cp', 'qa'), ('cp', 'qb')]
                if n == self.PF:
                    assert n >= nQ + 4
                    self.qload(); self.vmq += [('cp', 'q0'), ('cp', 'q1')]
                n += 1
            self.dyn = False
            if self.fb: a(f's_mov_b32 s59, {self.fb[1]}')
            if self.PFA:
                self.need_vm(('cp', 'qb')); keep = list(self.vmq)
                if self.fx2: a('v_readfirstlane_b32 s35, v16')
                self.stamp(1, 's49')
                self.maxtree(range(self.vQ, self.vQ + 8), 18)
                a(f's_cbranch_vccz L_Xok{s}')
                if self.nox: a('s_cmp_lg_u32 s49, 0'); a(f's_cbranch_scc1 L_Xok{s}')
                if self.fb and len(self.fb) > 2: a(f's_mov_b32 s59, {self.fb[2]}')
            def ahead(what):
                for g in what:
                    if g == 'v': a(f'buffer_load_dword v19, {V4}, s44 offen {self.xpol} lds')
                    else:
                        a(f's_add_u32 s38, s{40 + g}, 0x2000000')
                        if g == 4: a('s_mov_b32 exec_hi, 0xff')
                        a(f'buffer_load_dword v19, {K_SRD}, s38 offen {self.xpol} lds')
                        if g == 4: a('s_mov_b32 exec_hi, -1')
                    self.vmq.append(('cp', 'x'))
            if self.xpf:
                assert self.PFA and not self.flex
                a(f'v_lshlrev_b32 v19, 3, v{self.vL16}'); a(f's_mov_b32 m0, {self.TB + 4 * self.WLDS}')
                ahead(self.xpf[0])
            self.need_vm(('cp', 'q1'))
            for x in (self.xpf or [])[1:]:
                self.maxtree(range(self.vQ, self.vQ + 8), 18)
                a(f's_cbranch_vccz L_Xok{s}')
                self.qload(); ahead(x); a(f's_waitcnt vmcnt({len(x)})')
            if self.PFA: self.vmq = keep
            else: self.stamp(1, 's49')
            a.label(f'L_X{s}')
            self.maxtree(range(self.vQ, self.vQ + 8), 18)
            a(f's_cbranch_vccz L_Xok{s}')
            a.label(f'L_Xpoll{s}')
            if self.fb and len(self.fb) > 3: a('s_sub_i32 s59, s59, 1'); a(f's_max_i32 s59, s59, {self.fb[0]}')
            elif self.fb: a(f's_mov_b32 s59, {self.fb[0]}')
            self.timeout()
            self.qload()
            a('s_waitcnt vmcnt(0)')
            a(f's_branch L_X{s}')
            a.label(f'L_Xok{s}')
            self.stamp(6, 's49')
            if s == 0: a('s_cmp_eq_u32 s49, 0'); a('s_cbranch_scc1 L_first')
            save = list(self.vmq)
            self.pass2(s, LP)
            if self.diag: a('s_memrealtime s[28:29]')
            if s == 0:
                a('s_cmp_eq_u32 s49, 4'); a('s_cbranch_scc1 L_fin')
                after = list(self.vmq)
            a.label(f'L_PV{s}')
            self.pv1f(s)
            if self.diag: self.stamp(11, 's49', src='s28')
            a('s_add_u32 s49, s49, 1'); a(f's_add_u32 s47, s47, {PIB}'); a('s_add_u32 s53, s53, 512')
            a('s_add_u32 s56, s56, 8192'); a('s_mov_b32 s46, s56')
            if self.odd and (self.odd & 1) != s and not self.fb:
                a(f's_cmp_eq_u32 s49, {self.odd}'); a(f's_cselect_b32 s59, {mid}, s59')
            if self.cps and (self.cpon & 1) != s:
                a(f's_cmp_eq_u32 s49, {self.cpon}'); a('s_cselect_b32 s20, s24, s20'); a(f's_cselect_b32 s22, 16, s22'); a('s_cselect_b32 s21, -1, s21')
                a(f's_cselect_b32 s59, {mid}, s59')
            if s == 0: first_save, first_after = save, after
        a('s_cmp_lg_u32 s49, 4'); a('s_cbranch_scc1 L_A0')
        a('s_mov_b32 s94, 0')
        for z in self.zero_acc(): a(z)
        a('s_branch L_Xpoll0')
        a.label('L_first')
        self.vmq = first_save; self.lq = []
        a('s_lshl_b32 s38, s3, 9'); a(f'v_add_u32 v18, s38, v{self.vQo}')
        a(f'ds_write_b128 v18, {vr(self.vQ, 4)} offset:{self.Q1L}')
        a(f'ds_write_b128 v18, {vr(self.vQ + 4, 4)} offset:{self.Q1L + 256}')
        for n in range(73, 80): self.load(0, n, wait=False)
        self.share()
        self.need_vm(('cp', 'q1'))
        a('s_waitcnt lgkmcnt(0)'); a('s_barrier')
        pts = [('u', 1), ('u', 4), ('u', 7), ('x', 0), ('e', 0)]; FL = {}
        for i in range(N1): FL.setdefault(pts[i * len(pts) // N1], []).append((1, i))
        self.qk1(0, FL, False)
        assert self.vmq == first_after, (self.vmq, first_after)
        a('s_branch L_PV0')
        a.label('L_fin'); self.stamp(11, 's49'); a('s_branch L_end')
        a.label('L_st0')
        self.vmq = st_in; self.dyn = bool(self.lv)
        for n in range(nQ, nQ + 4): self.load(0, n)
        self.dyn = False
        assert self.vmq == st_out, (self.vmq, st_out)
        a('s_branch L_st0r')
    def share(self):
        a = self.a; F = self.fx2
        if not F: return
        a('s_add_u32 s35, s35, 1'); a(f's_mov_b32 s25, {F[0][1]}'); a('s_mul_i32 s24, s35, s25')
        b = 0
        for (n0, r0), (n1, r1) in zip(F, F[1:]):
            b += n0
            a(f's_sub_i32 s39, s35, {b}'); a('s_max_i32 s33, s39, 0'); a(f's_mul_i32 s33, s33, {r0 - r1}'); a('s_sub_u32 s24, s24, s33')
            a('s_cmp_ge_i32 s39, 0'); a(f's_cselect_b32 s25, {r1}, s25')
        a('s_lshl_b32 s24, s24, 9'); a('s_add_u32 s24, s24, s21'); a('s_add_u32 s21, s21, 0x2000000')
    def armS(self):
        a = self.a
        if not self.nocl: a('s_waitcnt vmcnt(8)')
        self.confirm(24, 20)
        if not self.oarm:
            a('v_lshl_add_u32 v18, v0, 19, s48'); a('v_mov_b64 v[20:21], -1'); a('v_mov_b64 v[22:23], -1')
            a('s_lshl_b32 s38, s3, 20'); a('s_add_u32 s38, s38, s47'); a(f's_add_u32 s39, s38, {PP2}')
            a(f'buffer_store_dwordx4 v[20:23], v{self.vL16}, {WS}, s39 offen sc1')
            a('s_mov_b64 exec, 3')
            a(f'buffer_store_dwordx2 v[20:21], v18, {WS}, s38 offen sc1')
            a('s_cmp_lg_u32 s3, 0'); a('s_cselect_b64 exec, -1, 0')
            a(f'buffer_store_dwordx4 v[20:23], v{self.vL16}, {WS}, s38 offen sc1')
            a('s_mov_b64 exec, -1')
        self.stamp(30, None, 24)
    def qk_part(self, ds_, hook, zero=True):
        a = self.a; T = self.vT; Q = self.vQ; AC = self.vAcc
        def post_a(u):
            ac = AC + 4 * (u % 4); t = 18 + 2 * (u % 2)
            a(f'v_add_f32 v{t+1}, v{ac+1}, v{ac+3}'); a(f'v_add_f32 v{t}, v{ac}, v{ac+2}')
        def post_b(u):
            t = 18 + 2 * (u % 2)
            a(f'v_add_f32_dpp v{T + u // 4}, v{t+1}, v{t} quad_perm:[1,1,3,3] row_mask:0x{1 << (u % 4):x} bank_mask:0xf')
        for u in range(10):
            ac = AC + 4 * (u % 4); k = self.kreg(ds_, u)
            a(f'v_smfmac_f32_16x16x64_bf16 {vr(ac, 4)}, {vr(Q, 4)}, {rr(k, 8)}, v{self.vIQ}')
            if u >= 3: post_a(u - 3)
            a(f'v_smfmac_f32_16x16x64_bf16 {vr(ac, 4)}, {vr(Q + 4, 4)}, {rr(k + 8, 8)}, v{self.vIQ}')
            if u >= 3: post_b(u - 3)
            hook(('u', u))
        zf = [f'v_mov_b32 v{AC + r}, 0' for r in list(range(8, 16)) + list(range(8))] if zero else []
        def Z(n=2):
            for _ in range(n):
                if zf: a(zf.pop(0))
        a(f'v_cmp_gt_u32 vcc, s{22 + ds_}, v{self.vBias}'); a('v_mov_b32 v23, 0xff800000')
        post_a(7); Z(1); post_b(7); Z(3); post_a(8); Z(1); post_b(8); Z(2); post_a(9); Z(1); post_b(9)
        m = self.vMC; t = 18
        a(f'v_sub_f32 v{T+2}, v{T+2}, v{T+1}'); a(f'v_sub_f32 v{T+1}, v{T+1}, v{T}')
        a(f'v_cndmask_b32 v{T+2}, v23, v{T+2}, vcc')
        a(f'v_max3_f32 v{m}, v{T}, v{T+1}, v{T+2}'); Z()
        a(f'v_max_f32_dpp v{m}, v{m}, v{m} quad_perm:[2,3,0,1] {FULL}'); Z()
        a(f'v_max_f32_dpp v{m}, v{m}, v{m} row_ror:4 {FULL}'); Z()
        a(f'v_max_f32_dpp v{t}, v{m}, v{m} row_ror:8 {FULL}')
        a(f'v_max_f32_dpp v{m}, v{m}, v{m} row_ror:8 {FULL}'); Z()
        a(f'v_permlane16_swap_b32 v{m}, v{t}'); a(f'v_max_f32 v{t+1}, v{m}, v{t}'); a(f'v_max_f32 v{m}, v{m}, v{t}'); Z(8)
        a(f'v_permlane32_swap_b32 v{m}, v{t+1}'); a(f'v_max_f32 v{m}, v{m}, v{t+1}')
        a(f'v_mul_f32 v{m}, s51, v{m}')
        for k in (0, 2, 1): a(f'v_fma_f32 v{T+k}, v{T+k}, s51, -v{m}')
        for k in (0, 2, 1): a(f'v_exp_f32 v{T+k}, v{T+k}')
        hook(('x', 0))
    def pack(self, k):
        T = self.vT
        o = [f'v_mov_b32_dpp v18, v{T+k} quad_perm:[0,0,0,0] {FULL}',
             f'v_mov_b32_dpp v19, v{T+k} quad_perm:[2,2,2,2] {FULL}',
             f'v_cvt_pk_bf16_f32 v{20+k}, v18, v19']
        if k == 2: o += [f'v_mov_b32_dpp v0, v22 row_shl:4 {FULL}', 'v_permlane32_swap_b32 v22, v0']
        return o
    def aprep(self, k, P, A):
        pp = 20 + k; M = self.vM
        if P == 0:
            return [f'v_and_b32 v{A}, v{pp}, v{M}', f'v_and_b32 v{A+2}, v{pp}, v{M+2}',
                    f'v_and_b32_dpp v{A+1}, v{pp}, v{M+1} row_shr:4 {FULL} bound_ctrl:0',
                    f'v_and_b32_dpp v{A+3}, v{pp}, v{M+3} row_shr:4 {FULL} bound_ctrl:0']
        return [f'v_and_b32 v{A+1}, v{pp}, v{M+1}', f'v_and_b32 v{A+3}, v{pp}, v{M+3}',
                f'v_and_b32_dpp v{A}, v{pp}, v{M} row_shl:4 {FULL} bound_ctrl:0',
                f'v_and_b32_dpp v{A+2}, v{pp}, v{M+2} row_shl:4 {FULL} bound_ctrl:0']
    def lred(self):
        L = self.vL; T = self.vT
        return [f'v_add_f32 v{L}, v{T}, v{T+1}',
                f'v_add_f32 v{L}, v{T+2}, v{L}',
                f'v_add_f32_dpp v{L}, v{L}, v{L} quad_perm:[2,3,0,1] {FULL}',
                f'v_add_f32_dpp v{L}, v{L}, v{L} row_ror:4 {FULL}',
                f'v_add_f32_dpp v{L}, v{L}, v{L} row_ror:8 {FULL}',
                f'v_mov_b32 v23, v{L}', f'v_permlane16_swap_b32 v{L}, v23', f'v_add_f32 v{L}, v{L}, v23',
                f'v_mov_b32 v23, v{L}', f'v_permlane32_swap_b32 v{L}, v23', f'v_add_f32 v{L}, v{L}, v23']
    def merge(self, t0):
        AC = self.vAcc; o = []
        for r in range(4): o.append(f'v_permlane32_swap_b32 v{AC + 4*t0 + r}, v{AC + 4*t0 + 4 + r}')
        for r in range(4):
            if t0 == 0: o.append(f'v_add_f32_dpp v{AC + r}, v{AC + 4 + r}, v{AC + r} row_ror:8 row_mask:0xf bank_mask:0x3')
            else: o.append(f'v_add_f32_dpp v{AC + r}, v{AC + 8 + r}, v{AC + 12 + r} row_ror:8 row_mask:0xf bank_mask:0xc')
        return o
    def staddr(self):
        return [f'v_lshrrev_b32 v18, 6, v{self.vL16}', 'v_lshl_add_u32 v18, v18, 4, s57']
    def qk1(self, s, LP, wait):
        a = self.a; Q = self.vQ
        def hook(p):
            for x in LP.get(p, []): self.load(*x, wait=wait)
        a(f'v_add_u32 v18, s53, v{self.vQo}')
        self.ds(f'ds_read_b128 {vr(Q, 4)}, v18', 'q'); self.ds(f'ds_read_b128 {vr(Q + 4, 4)}, v18 offset:256', 'q')
        for z in self.zero_acc(): a(z)
        self.need_lds('q')
        self.qk_part(s, hook, zero=False)
        pk = self.pack(0) + self.pack(2) + self.pack(1); lr = self.lred()
        while pk or lr:
            if lr: a(lr.pop(0))
            if pk: a(pk.pop(0))
        for x in self.staddr(): a(x)
        a('v_mov_b32 v19, s55')
        a('ds_write_b96 v18, v[20:22]')
        a('s_mov_b64 exec, 1')
        a(f'ds_write_b64 v19, {vr(self.vMC, 2)} offset:{self.MA1[s]}')
        a('s_mov_b64 exec, -1')
        hook(('e', 0))
    def cdst(self, fs, cu0, pi):
        if pi >= 2: pi += 2
        return self.kreg(fs, pi // 2) + 8 * (pi % 2)
    def copy(self, ds_, fs, cu0, n):
        if n >= 72: pi, half = (n - 72) // 2, (n - 72) % 2
        else: pi, half = 2 + (n - 56) % 8, (n - 56) // 8
        self.ds(f'ds_read_b128 {rr(self.cdst(fs, cu0, pi) + 4 * half, 4)}, v{self.vDs} offset:{self.ldsslot(ds_, n) * 1024}', ('c', n))
    def bop(self, ds_, fs, cu0, U, P, t):
        if U == 0: return self.vreg0(ds_, P, t), []
        if U == 1: return self.cdst(fs, cu0, 2 + 4 * P + t), [('c', 56 + 4 * P + t), ('c', 64 + 4 * P + t)]
        if t < 2: return self.cdst(fs, cu0, t), [('c', 72 + 2 * t), ('c', 73 + 2 * t)]
        if cu0: return self.kreg(fs, 1) + 8 * (t - 2), []
        return self.vH + 8 * (t - 2), []
    def pass2(self, s, LP):
        a = self.a; ds_ = 1 - s; Q = self.vQ; AC = self.vAcc
        cplan = {0: [72, 73, 74, 75], 2: [56, 64, 57, 65], 3: [58, 66, 59, 67], 4: [60, 68], 5: [61, 69], 6: [62, 70], 7: [63, 71]}
        def hook(p):
            for n in LP.get(p, []):
                if n == 73: self.need_lds(('c', 75))
                if n < 40: assert p[0] != 'u' or p[1] > self.ORD[n] // 4
                self.load(s if n >= 40 else ds_, n, wait=False)
            if p == ('u', 6): self.share()
            if p[0] == 'u':
                for n in cplan.get(p[1], []): self.copy(ds_, ds_, 0, n)
        self.qk_part(ds_, hook)
        sets = [(0, 0), (2, 0), (0, 1), (1, 0), (1, 1)]
        lred = self.lred()
        def prep(i):
            k, P = sets[i]
            return (self.pack(k) if P == 0 else []) + self.aprep(k, P, Q + 4 * (i % 2))
        self.need_vm(('cp', 'q1'))
        for x in prep(0): a(x)
        for i, (k, P) in enumerate(sets):
            fill = prep(i + 1) if i + 1 < len(sets) else []
            if i == len(sets) - 1:
                fill = lred + self.epi_pre(); lred = []
            for t in range(4):
                b, tags = self.bop(ds_, ds_, 0, k, P, t)
                for tg in tags: self.need_lds(tg)
                a(f'v_smfmac_f32_16x16x64_bf16 {vr(AC + 4 * t, 4)}, {vr(Q + 4 * (i % 2), 4)}, {rr(b, 8)}, v{self.vIP}')
                n = (len(fill) + (3 - t)) // (4 - t)
                got = fill[:n]; fill = fill[n:]
                if len(got) < 2 and lred: got.append(lred.pop(0))
                for x in got: a(x)
            hook(('i', i))
        for x in self.merge(0) + self.merge(2): a(x)
        hook(('m', 0))
        self.epilogue(1, s)
    def epi_pre(self):
        return [f'v_add_u32 v18, s54, v{self.vL16}', 'v_mov_b32 v19, s55', 'v_mov_b32 v20, 1', 'v_mov_b32 v21, 0', 'v_mov_b32 v22, s48']
    def pv1f(self, s):
        a = self.a; fs = 1 - s; Q = self.vQ; AC = self.vAcc
        self.xst = 2
        if self.fx2: a(f's_mov_b32 s{22 + fs}, s25'); self.stamp(40, 's49', 18, 's35')
        def hook(p):
            for n in self.p1l.get(p, []): self.load(fs, n, wait=False)
        for x in self.staddr(): a(x)
        self.ds('ds_read_b96 v[20:22], v18', 'p')
        hook('a')
        for z in self.zero_acc(): a(z)
        self.need_vm((s, 71))
        for n in [56, 64, 57, 65, 58, 66, 59, 67]: self.copy(s, fs, 2, n)
        self.need_lds('p')
        sets = [(0, 0), (0, 1), (1, 0), (1, 1), (2, 0)]
        prep = lambda i: self.aprep(*sets[i], Q + 4 * (i % 2))
        for x in prep(0): a(x)
        for i, (k, P) in enumerate(sets):
            last = (i == len(sets) - 1)
            fill = self.epi_pre() if last else prep(i + 1)
            if i == 1:
                for n in [60, 68, 61, 69, 62, 70, 63, 71]: self.copy(s, fs, 2, n)
            hook(str(i))
            for t in range(4):
                b, tags = self.bop(s, fs, 2, k, P, t)
                if last:
                    if t == 0:
                        self.need_vm((s, 73)); self.copy(s, fs, 2, 72); self.copy(s, fs, 2, 73)
                        self.need_vm((s, 75)); self.copy(s, fs, 2, 74); self.copy(s, fs, 2, 75)
                        for x in fill: a(x)
                        fill = []
                    if t == 2: self.need_vm((s, 77))
                    if t == 3: self.need_vm((s, 79))
                for tg in tags: self.need_lds(tg)
                a(f'v_smfmac_f32_16x16x64_bf16 {vr(AC + 4 * t, 4)}, {vr(Q + 4 * (i % 2), 4)}, {rr(b, 8)}, v{self.vIP}')
                n = (len(fill) + (3 - t)) // (4 - t)
                got = fill[:n]; fill = fill[n:]
                for x in got: a(x)
        self.xst = 0
        for x in self.merge(0) + self.merge(2): a(x)
        hook('m')
        self.epilogue(0, s)
        self.stamp(16, 's49')
        for i in range(8): a(f'v_mov_b64 {vr(self.vH + 2 * i, 2)}, {vr(self.kreg(fs, 1) + 2 * i, 2)}')
    def epilogue(self, p2, s):
        a = self.a; Q = self.vQ; AC = self.vAcc; m = self.vMC; L = self.vL
        CA = self.CA[p2]; MA = self.MA[1] if p2 else self.MA1[s]; CO = self.CO[p2]
        Zr = self.kreg(1 - s, 2)
        a(f'ds_write_b128 v18, {vr(AC, 4)} offset:{CA}')
        a('s_mov_b64 exec, 1')
        if p2: a(f'ds_write_b64 v19, {vr(self.vMC, 2)} offset:{MA}')
        a(f'ds_add_rtn_u32 v20, v21, v20 offset:{CO}')
        a('s_mov_b64 exec, -1')
        a(f'ds_read_b128 {vr(Q, 4)}, v21 offset:{MA}'); a(f'ds_read_b128 {vr(Q + 4, 4)}, v21 offset:{MA + 16}')
        for w in range(4): a(f'ds_read_b128 {vr(Zr + 4 * w, 4)}, v{self.vL16} offset:{CA + 1024 * w}')
        if p2: a(f's_sub_u32 s38, s47, {PIB - PP2}')
        else: a('s_mov_b32 s38, s47')
        dual = self.home and p2 != s
        if dual: a('s_add_u32 s33, s38, 0x2000'); a(f's_cmp_eq_u32 s49, {3 + p2}'); a(f's_cselect_b32 s33, s33, 0x{OOB:x}')
        a('s_waitcnt lgkmcnt(6)')
        a('v_readfirstlane_b32 s39, v20'); a('s_and_b32 s39, s39, 3'); a('s_cmp_eq_u32 s39, 3')
        if p2: a('s_cselect_b32 s58, 1, 0')
        elif self.bst: a('s_mov_b32 s26, s59'); a(f's_cselect_b32 s59, {self.bst[0]}, {"s59" if len(self.bst) < 3 else self.bst[2]}')
        l = self.lab('L_nl'); a(f's_cbranch_scc0 {l}')
        a('s_waitcnt lgkmcnt(4)')
        a(f'v_max3_f32 v{m}, v{Q}, v{Q+2}, v{Q+4}'); a(f'v_max_f32 v{m}, v{m}, v{Q+6}')
        for w in range(4): a(f'v_sub_f32 v{Q+2*w}, v{Q+2*w}, v{m}')
        for w in range(4): a(f'v_exp_f32 v{Q+2*w}, v{Q+2*w}')
        a(f'v_mul_f32 v{L}, v{Q}, v{Q+1}')
        for w in range(1, 4): a(f'v_fmac_f32 v{L}, v{Q+2*w}, v{Q+2*w+1}')
        a(f'v_min_u32 v{m}, -2, v{m}'); a(f'v_and_b32 v{L}, -2, v{L}')
        def st(text, pre=None):
            assert self.loc
            x = self.lab('L_ls'); y = self.lab('L_ls')
            a(f's_cbranch_scc1 {x}')
            if pre: a(pre)
            a(text + ' sc1'); a(f's_branch {y}'); a.label(x); a(text); a.label(y)
        a(f's_cmp_eq_u32 s27, {NCHAIN + 1}')
        a('s_mov_b64 exec, 1')
        st(f'buffer_store_dwordx2 {vr(m, 2)}, v22, {WS}, s38 offen', f'v_or_b32 v{L}, s4, v{L}')
        if dual: a(f'buffer_store_dwordx2 {vr(m, 2)}, v22, {WS}, s33 offen sc1')
        a('s_mov_b64 exec, -1')
        a('s_waitcnt lgkmcnt(0)')
        for w in range(4):
            for hf in range(2):
                if w == 0: a(f'v_pk_mul_f32 {vr(AC + 2*hf, 2)}, {vr(Zr + 2*hf, 2)}, {vr(Q, 2)} op_sel_hi:[1,0]')
                else: a(f'v_pk_fma_f32 {vr(AC + 2*hf, 2)}, {vr(Zr + 4*w + 2*hf, 2)}, {vr(Q + 2*w, 2)}, {vr(AC + 2*hf, 2)} op_sel_hi:[1,0,1]')
        for r in range(4): a(f'v_min_u32 v{AC + r}, -2, v{AC + r}')
        st(f'buffer_store_dwordx4 {vr(AC, 4)}, v{self.vL16}, {WS}, s38 offen')
        if dual: a(f'buffer_store_dwordx4 {vr(AC, 4)}, v{self.vL16}, {WS}, s33 offen sc1')
        a.label(l)
        a('s_waitcnt lgkmcnt(0)'); self.lq = []

    RING0 = 8192
    vGO2, vTR, vOOB, vDO, vX0O, vGO, vXR, vXW, vRES = 8, 9, 10, 11, 12, 13, 14, 15, 16
    vAC, vCS, vQS, vRO, vPO, vPO2, vMLO, vOW, vDQ, vX0 = 32, 36, 38, 39, 40, 41, 42, 43, 44, 45
    def vm(self, text, tag=None):
        self.a(text); self.cq.append(tag)
    def vmwait(self, tag):
        if tag in self.cq:
            i = len(self.cq) - 1 - self.cq[::-1].index(tag)
            k = len(self.cq) - 1 - i
            assert k <= 63
            self.a(f's_waitcnt vmcnt({k})'); self.cq = self.cq[i + 1:]
    def arm(self, q=False):
        a = self.a
        if not self.nocl: self.vmwait('init')
        self.confirm(self.vCL, 28)
        for r in range(20, 24): a(f'v_mov_b32 v{r}, -1')
        a('s_lshl2_add_u32 s38, s8, s3'); a('s_mul_i32 s38, s38, 4608'); a(f's_add_u32 s38, s38, 0x{YOFF:x}')
        for i in range(5): self.vm(f'buffer_store_dwordx4 v[20:23], v1, {WS}, s38 offen offset:{min(i * 1024, 3584)} sc1', 'arm')
        if q:
            self.bits('v28', 'v0', 'v29', [(0, 5, 4), (5, 1, 13)])
            a('s_lshl_b32 s38, s8, 9'); a('s_lshl_b32 s39, s3, 14'); a('s_add_u32 s39, s39, s38')
            self.vm(f'buffer_store_dwordx4 v[20:23], v28, {WS}, s39 offen sc1', 'arm')
        else:
            self.pquad('s38'); a('s_lshl_b32 s39, s8, 15'); a('s_add_u32 s38, s38, s39'); a(f's_add_u32 s38, s38, 0x{POFF - 16 * PB:x}')
            for i in range(4): self.vm(f'buffer_store_dwordx4 v[20:23], v1, {WS}, s38 offen offset:{i * 1024} sc1', 'arm')
    def pquad(self, d):
        self.a(f's_and_b32 {d}, s3, 2'); self.a(f's_add_u32 {d}, {d}, s3'); self.a(f's_lshl_b32 {d}, {d}, 12')
    def announce(self, bar=True):
        a = self.a
        if bar: self.vmwait('arm'); a('s_barrier')
        assert 'arm' not in self.cq
        self.signal(28, 29, self.CNTA, 's9')
        self.stamp(21, None, 30)
    def chain_common(self):
        a = self.a
        a('s_lshl4_add_u32 s2, s38, s36'); a('s_mov_b32 s8, s2'); a('s_mov_b32 s9, s5'); a('s_mov_b32 s10, 0')
        if self.diag: a('s_mov_b32 s61, s2'); self.diagbase()
        a('v_lshlrev_b32 v1, 4, v0')
        self.bits('v2', 'v0', 'v6', [(0, 1, 4), (4, 2, 5)])
        self.bits('v4', 'v0', 'v6', [(1, 1, 0), (3, 1, 2), (2, 1, 3)])
        a('s_lshl_b32 s98, s3, 13'); a(f's_add_u32 s98, s98, {self.RING0}'); a('s_movk_i32 s99, 1024')
        a('s_mul_i32 s32, s3, 7168'); a(f's_add_u32 s32, s32, {self.RING0}')
        self.claim(28, 29, self.vCL)
        self.srd(16, 86, 0x20000000)
        self.stamp(0, None, 30)
        a('s_cmp_lt_u32 s2, 16'); a('s_cbranch_scc1 L_roleOQ')
        self.cq = ['init']
        if self.wtlb:
            lo = 30 if self.wtlb == 1 else 16; nw = 4 * (32 - lo)
            a(f's_cmp_lt_u32 s2, {lo}'); a('s_cbranch_scc1 L_notlb')
            a('v_lshlrev_b32 v6, 12, v0'); a(f's_sub_u32 s33, s2, {lo}'); a('s_lshl2_add_u32 s33, s33, s3'); a('s_lshl_b32 s33, s33, 18')
            for lo_, size in ((70, 448 * 8192), (76, 448 * 3584), (78, 448 * 3584), (72, 4096 * 896), (80, 1792 * 896)):
                self.srd(20, lo_, size)
                for i in range(-(-size // (nw << 18))):
                    if i: a(f's_add_u32 s39, s33, {i * nw << 18}')
                    a(f'buffer_load_dword v64, v6, {W1}, {"s39" if i else "s33"} offen nt')
            a.label('L_notlb')
        if self.hq:
            self.srd(20, 70, 448 * 8192)
            self.bits('v6', 'v0', 'v7', [(0, 5, 4), (5, 1, 13)])
            a('s_sub_u32 s33, s2, 16'); a('s_lshl_b32 s33, s33, 9'); a('s_lshl_b32 s39, s3, 14'); a('s_add_u32 s33, s33, s39')
            a(f's_add_u32 s33, s33, {self.hq[0] * 64 * 8192}')
            for i in range(8 * (self.hq[1] - self.hq[0])):
                self.vm(f'buffer_load_dwordx4 v[64:67], v6, {W1}, s33 offen {self.hpol}', 'hq'); a('s_add_u32 s33, s33, 65536')
                if i == 0: self.stamp(61, None, 30)
                if i == 8: self.stamp(63, None, 30)
                if i == 9: self.arm()
                if i == 23: self.announce()
        self.cq0 = list(self.cq)
        a('s_cmp_lt_u32 s2, 30'); a('s_cbranch_scc1 L_roleF')
    def consts(self):
        a = self.a
        a('v_and_b32 v6, 1, v0'); a('v_cmp_eq_u32 vcc, 1, v6')
        a('v_mov_b32 v3, 0x44444444'); a('v_mov_b32 v6, 0xeeeeeeee'); a('v_cndmask_b32 v3, v3, v6, vcc')
        self.bits('v9', 'v0', 'v6', [(0, 5, 3), (5, 1, 10)])
        a('v_mul_u32_u24 v5, 6144, v6'); a('s_mul_i32 s38, s3, 1792'); a('v_add3_u32 v5, v5, v9, s38')
        a(f's_mov_b32 s57, 0x{OOB:x}'); a(f's_mov_b32 s56, 0x{OOB:x}'); a('s_mov_b32 s49, -1')
    vCL = 46
    def preready(self, streams=False):
        self.vm(f'global_load_dwordx2 v[46:47], v18, {DBG} offset:{self.CNTA} sc1', 'cnt')
    def ready(self, streams=False):
        a = self.a
        self.stamp(22, None, 28)
        self.vmwait('cnt')
        self.wait_counter(18, 46, 22, self.CNTA, NCHAIN, pre=True)
        a('s_mov_b32 s56, 0')
        if self.dual: a('s_movk_i32 s57, 0x2000')
        if self.dual and self.role != 'W':
            a('v_readfirstlane_b32 s38, v47'); a('s_getreg_b32 s10, hwreg(HW_REG_XCC_ID, 2, 1)'); a('s_xor_b32 s10, s10, s38'); a('s_and_b32 s10, s10, 1'); a('s_lshl_b32 s10, s10, 13')
            if self.diag:
                a('v_mov_b32 v28, s10'); a('v_mov_b32 v29, 0')
                a(f'buffer_store_dword v28, v29, {WS}, s61 offen offset:{62 * 4}')
        self.stamp(1, None, 28)
    def near(self):
        if not self.dual: return
        a = self.a; l = self.lab('L_nr')
        assert self.hs <= 12
        a('s_mul_i32 s38, s3, 1536'); a(f's_add_u32 s11, s38, 0x{XBOFF:x}')
        a('s_mov_b32 s4, -1'); a('s_mov_b32 s5, -1'); a(f's_mov_b32 s6, {2 * self.hs}')
        a('s_waitcnt vmcnt(0)')
        a.label(l)
        a('s_waitcnt lgkmcnt(0)'); a('s_memtime s[58:59]'); a('s_waitcnt lgkmcnt(0)')
        a(f'buffer_load_dword v28, off, {WS}, s11 sc1'); a('s_waitcnt vmcnt(0)')
        a('s_memtime s[38:39]'); a('s_waitcnt lgkmcnt(0)')
        a('s_sub_u32 s38, s38, s58'); a('s_min_u32 s38, s38, s4'); a('s_mov_b32 s4, s5'); a('s_mov_b32 s5, s38')
        a('s_xor_b32 s11, s11, 0x2000'); a('s_and_b32 s38, s6, 1'); a('s_lshl_b32 s38, s38, 7'); a('s_add_u32 s11, s11, s38')
        a('s_sub_u32 s6, s6, 1'); a('s_cmp_lg_u32 s6, 0'); a(f's_cbranch_scc1 {l}')
        a('s_cmp_gt_u32 s4, s5'); a('s_cselect_b32 s10, 0x2000, 0')
        if self.hforce is not None: a(f's_xor_b32 s10, s10, {self.hforce}')
        a('s_getreg_b32 s38, hwreg(HW_REG_XCC_ID, 2, 1)'); a('s_lshr_b32 s39, s10, 13'); a('s_xor_b32 s38, s38, s39')
        a('v_mov_b32 v28, s38'); a('v_mov_b32 v29, 0')
        a('s_cmp_eq_u32 s3, 0'); a('s_cselect_b64 exec, 1, 0')
        a(f'global_store_dword v29, v28, {DBG} offset:{self.CNTA + 4} sc1'); a('s_mov_b64 exec, -1')
        if self.diag:
            self.stamp(20, None, 28)
            a('s_lshl_b32 s38, s4, 16'); a('s_add_u32 s38, s38, s5'); a('v_mov_b32 v28, s38'); a('v_mov_b32 v29, 0')
            a(f'buffer_store_dword v28, v29, {WS}, s61 offen offset:{62 * 4}')
    def lstore(self, op, data, voff, sp, ss):
        self.a(f'buffer_store_{op} {data}, {voff}, {WS}, {ss} offen sc1')
        if self.dual: self.a(f'buffer_store_{op} {data}, {voff}, {WS}, {sp} offen sc1')
    def dma_sub(self, name, srd, voff, tab, adv):
        a = self.a
        a.label(name)
        for e in range(8):
            a(f'buffer_load_dwordx4 {voff}, {srd}, s{tab + e} offen nt lds')
            if e < 7: a('s_add_u32 m0, m0, s99')
        a(f'v_add_u32 {voff}, 0x{adv:x}, {voff}')
        a('s_setpc_b64 s[96:97]')
    def dma_subB(self, name, srd, voff):
        a = self.a
        a.label(name)
        for cb in range(7):
            a(f'buffer_load_dwordx4 {voff}, {srd}, 0 offen offset:{128 * cb} nt lds')
            if cb < 6: a('s_add_u32 m0, m0, 896')
        a(f'v_add_u32 {voff}, 0x{32 * 896:x}, {voff}')
        a('s_setpc_b64 s[96:97]')
    def poff(self, p): return p['off'] if 'off' in p else p['slot'] * 32768
    def issue(self, p):
        self.a(f's_add_u32 m0, {"s32" if p["B"] else "s98"}, {self.poff(p)}'); self.a(f's_call_b64 s[96:97], {p["sub"]}')
        self.cq += [id(p)] * (7 if p['B'] else 8)
    def readout(self, p, sel=None):
        self.a(f'v_add_u32 v6, {self.RING0 + self.poff(p)}, {"v5" if p["B"] else "v9"}')
        for d, imm in p['rd']:
            if sel is None or sel(d): self.a(f'ds_read_b64_tr_b16 {rr(d, 2)}, v6 offset:{imm}')
    def consume(self, p, nxt=None, hook=None):
        self.vmwait(id(p))
        self.a('s_waitcnt lgkmcnt(0)'); self.a('s_barrier')
        if hook: hook()
        for x in (nxt if isinstance(nxt, list) else [nxt] if nxt else []):
            if 'off' not in x: assert x['slot'] == self.lastslot, (x['slot'], self.lastslot)
            self.issue(x)
        self.readout(p); self.lastslot = p.get('slot')
    def table(self, tab, rs):
        for e in range(8): self.a(f's_mov_b32 s{tab + e}, 0x{(16 * (e & 1) + 2 * ((e >> 1) & 1) + 32 * (e >> 2)) * rs:x}')
    def typeB(self, voff, rowbase_s):
        a = self.a
        a('s_and_b32 s38, s3, 1'); a('s_lshl_b32 s38, s38, 4'); a(f's_add_u32 s38, s38, {rowbase_s}'); a('s_and_b32 s39, s3, 2'); a('s_add_u32 s38, s38, s39')
        a(f'v_add_u32 v6, s38, v4'); a(f'v_mad_u32_u24 {voff}, v6, s99, v2'); a(f'v_lshlrev_b32 v6, 7, v6'); a(f'v_sub_u32 {voff}, {voff}, v6')
    def typeB_reads(self, breg, ks, half):
        return [(breg(jj, ks) + 2 * (e1 + 2 * half), 2 * e1 * 7168 + jj * 256) for jj in range(7) for e1 in range(2)]
    def x0off(self):
        a = self.a
        a(f'v_mov_b32 v10, 0x{OOB:x}')
        self.bits('v6', 'v0', 'v7', [(0, 4, 3), (4, 1, 2), (5, 1, 7)])
        a('s_mul_i32 s38, s3, 224'); a('s_lshl_b32 s39, s3, 5'); a(f's_add_u32 s39, s39, {896 - 224}')
        a('v_cmp_gt_u32 vcc, 224, v6')
        a('v_add_u32 v15, s38, v6'); a('v_add_u32 v6, s39, v6')
        a('v_cndmask_b32 v12, v10, v15, vcc'); a('v_cndmask_b32 v15, v6, v15, vcc')
        a('s_lshl_b32 s38, s3, 9'); a('v_lshl_add_u32 v14, v0, 3, s38'); a('v_cndmask_b32 v14, v10, v14, vcc')
    def gather_offs(self):
        a = self.a
        self.bits('v13', 'v0', 'v6', [(0, 4, 4), (4, 1, 12), (5, 1, 14)])
        a('s_lshl_b32 s38, s3, 8'); a('v_add_u32 v13, s38, v13'); a(f'v_lshl_add_u32 v{self.vRO}, v0, 2, s38')
        a('v_cmp_gt_u32 vcc, 48, v0'); a('v_mov_b32 v18, 0'); a('v_mov_b32 v19, 0'); a('v_cndmask_b32 v8, v10, v13, vcc')
        a('v_and_b32 v6, 8, v0'); a('v_cmp_eq_u32 vcc, 8, v6'); a('v_mov_b32 v6, 0x3c00'); a('v_mov_b32 v7, 0x3c000000')
        a('v_cndmask_b32 v6, v6, v7, vcc'); a('v_and_b32 v7, 7, v0')
        for r, key in enumerate((0, 1, 4, 5)):
            a(f'v_cmp_eq_u32 vcc, {key}, v7'); a('s_nop 1'); a(f'v_cndmask_b32 v{self.vAC + r}, 0, v6, vcc')
    def resid_poll(self, soff):
        a = self.a; l = self.lab('L_rp')
        a.label(l)
        self.timeout()
        a(f'buffer_load_dwordx2 v[16:17], v14, {WS}, {soff} offen sc1'); a('s_waitcnt vmcnt(0)')
        a('v_max_u32 v6, v16, v17'); a('v_cmp_eq_u32 vcc, -1, v6'); a(f's_cbranch_vccnz {l}')
    def gather_sum(self, soff, G, full, res=None):
        a = self.a; l = self.lab('L_g'); d = self.lab('L_gd')
        a.label(l)
        self.timeout()
        if res: a(f'buffer_load_dwordx2 v[16:17], v14, {WS}, {res} offen sc1')
        for i in range(4): a(f'buffer_load_dwordx4 {vr(G + 4 * i, 4)}, {"v13" if full or i < 2 else "v8"}, {WS}, {soff} offen offset:{1024 * i} sc1')
        for i in range(4):
            a(f's_waitcnt vmcnt({3 - i})')
            a(f'v_mfma_f32_16x16x32_f16 v[20:23], {vr(self.vAC, 4)}, {vr(G + 4 * i, 4)}, {"v[16:19]" if i == 0 else "v[20:23]"}')
        a('v_cmp_u_f32 vcc, v20, v21')
        a('v_cvt_pk_bf16_f32 v24, v20, v21')
        a(f's_cbranch_vccz {d}')
        self.maxtree(list(range(G, G + 16)) + ([16, 17] if res else []), 6)
        a(f's_cbranch_vccnz {l}')
        a.label(d)
    def xrow_ops(self, sp, ss):
        return ['v_lshlrev_b32 v20, 16, v24', 'v_and_b32 v21, 0xffff0000, v24',
                f'buffer_store_dwordx2 v[20:21], v14, {WS}, {ss} offen sc1'] + ([f'buffer_store_dwordx2 v[20:21], v14, {WS}, {sp} offen sc1'] if self.dual else [])
    def stats_ops(self, X):
        o = []
        for i in range(4):
            o += [f'v_lshlrev_b32 v26, 16, v{X+i}', f'v_and_b32 v27, 0xffff0000, v{X+i}']
            if i == 0: o += ['v_add_f32 v28, v26, v27', 'v_mul_f32 v30, v26, v26', 'v_fmac_f32 v30, v27, v27']
            else: o += ['v_add_f32 v28, v28, v26', 'v_fmac_f32 v30, v26, v26', 'v_add_f32 v28, v28, v27', 'v_fmac_f32 v30, v27, v27']
        o += [f'v_mov_b32 v26, 0x{f2u(1/448):x}', f'v_mov_b32 v27, 0x{f2u(1e-5):x}', 'v_permlane16_swap_b32 v28, v30', 'v_add_f32 v28, v28, v30']
        for c in ('quad_perm:[1,0,3,2]', 'quad_perm:[2,3,0,1]', 'row_ror:4'):
            o += [None, f'v_add_f32_dpp v28, v28, v28 {c} {FULL}']
        o += [None, f'v_add_f32_dpp v29, v28, v28 row_ror:8 {FULL}', f'v_add_f32_dpp v28, v28, v28 row_ror:8 {FULL}', None,
              'v_permlane32_swap_b32 v28, v29', 'v_add_f32 v28, v28, v29', None,
              'v_readlane_b32 s58, v28, 0', 'v_readlane_b32 s59, v28, 16', None,
              'v_mul_f32 v24, s58, v26', 'v_fmac_f32 v27, s59, v26',
              'v_fma_f32 v27, -v24, v24, v27', 'v_rsq_f32 v25, v27']
        return o
    def gemv(self, ntile, nks, breg, acc, A, fill=(), nother=0):
        a = self.a; fill = list(fill)
        for ks in range(nks):
            a(f's_waitcnt lgkmcnt({min(15, nks - 1 - ks + nother)})')
            for jj in range(ntile):
                a(f'v_smfmac_f32_16x16x64_bf16 {vr(acc + 4 * jj, 4)}, {vr(A + 4 * ks, 4)}, {rr(breg(jj, ks), 8)}, v3')
                for _ in range(2):
                    if fill:
                        x = fill.pop(0)
                        if x: a(x)
        for x in fill:
            if x: a(x)
    def zero(self, base, n):
        for i in range(0, n, 2): self.a(f'v_mov_b64 {vr(base + i, 2)}, 0')
    def rowsel(self, dst, acc, tiles_masks):
        for jj, rm in tiles_masks:
            self.a(f'v_add_f32_dpp v{dst}, v{acc + 4*jj}, v{acc + 4*jj + 1} quad_perm:[0,1,2,3] row_mask:0x{rm:x} bank_mask:0xf')
    def rowout(self, acc, sp, ss):
        a = self.a
        for jj in range(4): self.rowsel(20, acc, [(jj, 1 << jj)])
        for jj in range(3): self.rowsel(21, acc, [(4 + jj, 1 << jj)])
        a('v_cvt_pk_f16_f32 v20, v20, v21'); a('v_min_u32 v20, -2, v20')
        self.lstore('dword', 'v20', f'v{self.vRO}', sp, ss)
    def calc_ib(self):
        a = self.a
        a('s_lshl_b32 s38, s49, 2'); a(f's_lshr_b32 s50, {"0x76352410" if self.reord else "0x73625140"}, s38'); a('s_and_b32 s50, s50, 7')
    def colsum(self, ntile, nks, breg, acc):
        a = self.a
        for r in range(4): a(f'v_mov_b32 v{20 + r}, 0x3f803f80')
        self.zero(acc, 4 * ntile)
        for ks in range(nks):
            for jj in range(ntile):
                a(f'v_smfmac_f32_16x16x64_bf16 {vr(acc + 4 * jj, 4)}, v[20:23], {rr(breg(jj, ks), 8)}, v3')
    def pinit(self, ib0):
        a = self.a
        for r in range(20, 24): a(f'v_mov_b32 v{r}, -1')
        a(f's_add_u32 s38, s3, {ib0}'); a('s_lshl_b32 s38, s38, 18'); a('s_add_u32 s38, s38, s41')
        a('v_lshlrev_b32 v6, 4, v0')
        for i in range(16):
            if i and i % 4 == 0: a('s_add_u32 s38, s38, 4096')
            self.vm(f'buffer_store_dwordx4 v[20:23], v6, {WS}, s38 offen offset:{(i % 4) * 1024} sc1', 'pinit')

    def roleOQ(self):
        a = self.a
        TOG = ['v_xor_b32 v15, 0x400, v15', 'v_xor_b32 v2, 0x400, v2', 'v_xor_b32 v1, 0x400, v1', f'v_xor_b32 v{self.vOW}, 0x400, v{self.vOW}']
        def qreg(jj, ks): return 96 + (ks * 4 + jj) * 8
        def oreg(jj, ks):
            if ks == 3 and jj < 4: return 288 + 8 * jj
            i = jj * 3 + ks if ks < 3 else 21 + jj - 4
            return 320 + 8 * i
        inwin = lambda d: 288 <= d < 320
        X0 = 4
        self.dma_sub('L_dmaQ', W1, f'v{self.vDQ}', 88, 64 * 8192)
        self.dma_subB('L_dmaO', W2, f'v{self.vDO}')
        P = 76; ML = 92; ACC = 48; A = 76
        a.label('L_Osub')
        self.calc_ib()
        a('s_and_b32 s38, s50, 3'); a('s_lshl_b32 s44, s38, 20'); a('s_add_u32 s44, s44, s41')
        a('s_cmp_eq_u32 s38, 3'); a('s_cselect_b32 s38, s55, 0'); a('s_add_u32 s44, s44, s38')
        a('s_lshr_b32 s38, s50, 2'); a('s_lshl_b32 s38, s38, 19'); a('s_add_u32 s44, s44, s38')
        a('s_add_u32 s45, s44, 4096'); a('s_add_u32 s46, s44, 16384'); a('s_add_u32 s47, s44, 20480')
        a('s_lshl_b32 s48, s50, 15'); a('s_add_u32 s48, s48, s40'); a('s_add_u32 s51, s48, s56'); a('s_add_u32 s48, s48, s57')
        self.zero(ACC, 28)
        a('s_cmp_lt_i32 s49, 0'); a('s_cbranch_scc1 L_Ook')
        a.label('L_Oheavy')
        self.timeout()
        a(f'buffer_load_dwordx2 {vr(ML, 2)}, v{self.vMLO}, {WS}, s44 offen sc1')
        for n in range(4): a(f'buffer_load_dwordx4 {vr(P + 4*n, 4)}, v{self.vPO2 if n == 3 else self.vPO}, {WS}, s{44+n} offen sc1')
        a('s_waitcnt vmcnt(4)')
        a(f'v_max_f32_dpp v20, v{ML}, v{ML} quad_perm:[1,0,3,2] {FULL}')
        for c in ('quad_perm:[2,3,0,1]', 'row_ror:4', 'row_ror:8'): a(f'v_max_f32_dpp v20, v20, v20 {c} {FULL}')
        a(f'v_sub_f32 v20, v{ML}, v20'); a('v_exp_f32 v20, v20'); a('v_cndmask_b32 v20, 0, v20, s[42:43]')
        a(f'v_mul_f32 v21, v20, abs(v{ML+1})')
        lred = [f'v_add_f32_dpp v21, v21, v21 {c} {FULL}' for c in ('quad_perm:[1,0,3,2]', 'quad_perm:[2,3,0,1]', 'row_ror:4', 'row_ror:8')]
        for n in range(4):
            a(f's_waitcnt vmcnt({3 - n})')
            for r in range(4):
                a(f'v_{"mul" if n == 0 else "fmac"}_f32_dpp v{24 + r}, v20, v{P + 4*n + r} row_newbcast:{n} {FULL}')
            a(lred[n])
        a('v_permlane16_swap_b32 v24, v25'); a('v_permlane16_swap_b32 v26, v27'); a('v_rcp_f32 v21, v21')
        a('v_add_f32 v24, v24, v25'); a('v_add_f32 v26, v26, v27')
        a('v_permlane32_swap_b32 v24, v26'); a('v_add_f32 v24, v24, v26'); a('v_mul_f32 v24, v24, v21')
        a('v_cmp_u_f32 vcc, v24, v24')
        a('v_cvt_pk_bf16_f32 v24, v24, v24')
        a('s_cbranch_vccz L_Ook0')
        self.maxtree(list(range(P, P + 16)) + [ML, ML + 1], 6)
        a('s_cbranch_vccnz L_Oheavy')
        a.label('L_Ook0')
        if self.split:
            a('s_cmp_lg_u32 s49, 0'); a('s_cbranch_scc1 L_Ook')
            a('s_setpc_b64 s[34:35]')
        a.label('L_Ook')
        a(f'ds_write_b16 v{self.vOW}, v24'); a('s_waitcnt lgkmcnt(0)'); a('s_barrier')
        for ks in range(4): a(f'ds_read_b128 {vr(A + 4*ks, 4)}, v2 offset:{128 * ks}')
        self.stamp(3, 's49', 28)
        self.gemv(7, 4, oreg, ACC, A, fill=TOG + ['v_mov_b32 v21, 0'])
        self.rowout(ACC, 's48', 's51')
        self.stamp(12, 's49', 28)
        a('s_add_u32 s49, s49, 1')
        a('s_setpc_b64 s[34:35]')
        G = 64; ACC = 48; A = 64; X = 92
        a.label('L_Qsub')
        self.zero(ACC, 16)
        a('s_lshl_b32 s44, s53, 13'); a('s_add_u32 s44, s44, s54')
        a('s_lshl_b32 s38, s53, 11'); a(f's_add_u32 s47, s38, 0x{XAOFF - 4 * 2048:x}'); a('s_add_u32 s47, s47, s10')
        a('s_add_u32 s45, s38, s33'); a('s_add_u32 s46, s45, s56'); a('s_add_u32 s45, s45, s57')
        a('s_lshl_b32 s48, s53, 15'); a(f's_add_u32 s48, s48, 0x{ZOFF - 4 * 32768:x}'); a('s_add_u32 s48, s48, s10')
        a('s_cmp_lt_u32 s53, 4'); a('s_cbranch_scc1 L_Qx')
        if not self.mres: self.resid_poll('s47')
        self.gather_sum('s48', G, False, 's47' if self.mres else None)
        a.label('L_Qx')
        a('ds_write_b32 v15, v24'); a('s_waitcnt lgkmcnt(0)'); a('s_barrier')
        for ks in range(7): a(f'ds_read_b128 {vr(A + 4*ks, 4)}, v2 offset:{128 * ks}')
        a(f'ds_read_b128 {vr(X, 4)}, v1')
        for x in self.xrow_ops('s45', 's46'): a(x)
        self.stamp(24, 's53', 28)
        fill = TOG + [None, 's_waitcnt lgkmcnt(0)'] + self.stats_ops(X)
        self.gemv(4, 7, qreg, ACC, A, fill=fill, nother=1)
        a(f'v_mul_f32 v21, v24, v{self.vCS}'); a('s_cmp_eq_u32 s9, 1')
        self.rowsel(20, ACC, [(jj, 1 << jj) for jj in range(4)])
        a('v_sub_f32 v20, v20, v21'); a('v_mul_f32 v20, v20, v25')
        a('v_cvt_pk_bf16_f32 v20, v20, v20'); a('v_min_u32 v20, -2, v20')
        if self.loc:
            a('s_cbranch_scc1 L_Qloc')
            a(f'buffer_store_short v20, v{self.vQS}, {WS}, s44 offen sc1'); a('s_branch L_Qst')
            a.label('L_Qloc'); a(f'buffer_store_short v20, v{self.vQS}, {WS}, s44 offen'); a.label('L_Qst')
        else: a(f'buffer_store_short v20, v{self.vQS}, {WS}, s44 offen sc1')
        self.stamp(33, 's53', 28)
        if self.oarm: a('s_lshl_b32 s38, s53, 20'); a('s_add_u32 s38, s38, s11'); a(f's_add_u32 s39, s38, {PP2}')
        a('s_add_u32 s53, s53, 1')
        if self.oarm:
            a('s_cmp_eq_u32 s53, 8'); a('s_cbranch_scc1 L_Qret')
            a('v_mov_b64 v[24:25], -1'); a('v_mov_b64 v[26:27], -1'); a('v_lshlrev_b32 v6, 4, v0')
            for i in range(8): a(f'buffer_store_dwordx4 v[24:27], v6, {WS}, s{38 + i // 4} offen offset:{i % 4 * 1024} sc1')
            a.label('L_Qret')
        a('s_setpc_b64 s[34:35]')
        a.label('L_roleOQ')
        self.stamp(61, None, 30)
        self.cq = ['init']
        a('s_lshl_b32 s38, s2, 9')
        self.srd(20, 70, 448 * 8192)
        a('s_lshl_b32 s39, s3, 7'); a('s_add_u32 s38, s38, s39')
        a(f'v_lshl_add_u32 v{self.vDQ}, v4, 13, s38'); a(f'v_add_u32 v{self.vDQ}, v{self.vDQ}, v2')
        self.table(88, 8192)
        R4 = self.ring4
        pq = [dict(sub='L_dmaQ', B=0, slot=(ks + 2 * R4) % 4, rd=[(qreg(jj, ks) + 2 * rp, rp * 2048 + jj * 256) for jj in range(4) for rp in range(4)]) for ks in range(7)]
        po = [dict(sub='L_dmaO', B=1, slot=(3, 0, 1)[i % 3], rd=self.typeB_reads(oreg, i // 2, i % 2)) for i in range(8)]
        if R4:
            for i, p in enumerate(po): p['off'] = 32768 + 28672 * (i % 4)
        self.issue(pq[0])
        self.stamp(63, None, 30)
        self.srd(28, 64, 3584)
        XL = 48
        a(f'v_mov_b32 v10, 0x{OOB:x}')
        a('v_cmp_gt_u32 vcc, 56, v0'); a('v_bfe_u32 v7, v0, 2, 2'); a('v_mul_u32_u24 v7, 896, v7'); a('v_cndmask_b32 v6, v10, v1, vcc')
        for b in range(4): self.vm(f'buffer_load_dwordx4 {vr(XL + 4 * b, 4)}, v6, {W3}, 0 offen offset:{b * 896}', 'xl')
        a('v_add_u32 v7, v7, v2')
        a('s_mov_b32 s38, 0x3f803f80'); a('s_mov_b32 s39, s38')
        for r in range(0, 28, 2): a(f'v_mov_b64 {vr(A + r, 2)}, s[38:39]')
        a('s_mov_b32 exec_lo, 0x33333333'); a('s_mov_b32 exec_hi, 0x33333333')
        for ks in range(7): self.vm(f'buffer_load_dwordx4 {vr(A + 4 * ks, 4)}, v7, {W3}, 0 offen offset:{128 * ks}', 'xa')
        a('s_mov_b64 exec, -1')
        if not self.ean: self.issue(pq[1])
        self.stamp(56, None, 30)
        self.srd(24, 72, 4096 * 896)
        a('s_lshl_b32 s39, s2, 8')
        self.typeB(f'v{self.vDO}', 's39')
        self.consts(); a('s_lshl_b32 s38, s3, 13'); a('v_add_u32 v9, s38, v9')
        if self.up4: self.issue(pq[2]); self.issue(pq[3])
        self.stamp(57, None, 30)
        self.arm(True)
        self.stamp(58, None, 30)
        if not self.up4: self.issue(pq[1 if self.ean else 2])
        self.vmwait('xl')
        self.stamp(59, None, 30)
        for b in range(4):
            for x in self.stats_ops(XL + 4 * b):
                if x: a(x)
            a(f'v_mov_b32_dpp v92, v24 quad_perm:[0,1,2,3] row_mask:0x{1 << b:x} bank_mask:0xf')
            a(f'v_mov_b32_dpp v93, v25 quad_perm:[0,1,2,3] row_mask:0x{1 << b:x} bank_mask:0xf')
        if self.ean: self.announce(); self.issue(pq[2])
        if not self.up4: self.issue(pq[3])
        self.zero(ACC, 16)
        self.bits('v94', 'v0', 'v6', [(0, 1, 1), (2, 1, 2), (3, 1, 4), (1, 1, 5), (4, 2, 13)])
        a('s_lshl_b32 s38, s3, 7'); a('s_lshl_b32 s44, s2, 9'); a('s_add_u32 s44, s38, s44')
        self.stamp(60, None, 30)
        nxt = {1: pq[4], 2: pq[5], 3: pq[6], 4: po[0]}
        if R4 == 1: nxt[5] = po[1]; nxt[6] = [po[2], po[3]]
        def q1mm(ks):
            for jj in range(4): a(f'v_smfmac_f32_16x16x64_bf16 {vr(ACC + 4 * jj, 4)}, {vr(A + 4 * ks, 4)}, {rr(qreg(jj, ks), 8)}, v3')
        hooks = {} if self.ean else {(3 if self.up4 else 2): lambda: self.announce(False)}
        for i in range(7):
            if i == 3: self.vmwait('arm')
            self.consume(pq[i], nxt.get(i), hooks.get(i))
            self.stamp(41 + i, None, 26)
            if i: q1mm(i - 1)
        a('s_waitcnt lgkmcnt(0)')
        q1mm(6)
        self.stamp(20, None, 28)
        for jj in range(4):
            a(f'v_add_f32 v{20 + jj}, v{ACC + 4*jj}, v{ACC + 4*jj + 1}'); a(f'v_add_f32 v{24 + jj}, v{ACC + 4*jj + 2}, v{ACC + 4*jj + 3}')
        for jj in range(4): a(f'v_fma_f32 v{20 + jj}, -v92, v{24 + jj}, v{20 + jj}')
        for jj in range(4): a(f'v_mul_f32 v{20 + jj}, v{20 + jj}, v93')
        for jj in range(4): a(f'v_cvt_pk_bf16_f32 v{20 + jj}, v{20 + jj}, v{20 + jj}')
        for jj in range(4): a(f'v_min_u32 v{20 + jj}, -2, v{20 + jj}')
        for jj in range(4): self.vm(f'buffer_store_short v{20 + jj}, v94, {WS}, s44 offen offset:{(jj & 1) * 8 + (jj >> 1) * 64} sc1')
        for jj in range(4): a(f'v_mov_b32_dpp v{self.vCS}, v{24 + jj} quad_perm:[0,1,2,3] row_mask:0x{1 << jj:x} bank_mask:0xf')
        self.stamp(35, None, 28)
        if R4 != 1: self.issue(po[1]); self.issue(po[2])
        if R4 == 3: self.issue(po[3])
        a('s_mov_b32 s55, 0'); a(f's_lshl_b32 s41, s2, 15'); a(f's_add_u32 s41, s41, 0x{POFF:x}')
        if self.oarm: self.pquad('s11'); a('s_add_u32 s11, s11, s41'); a(f's_sub_u32 s11, s11, {3 * PIB - PP2}')
        self.x0off(); self.gather_offs()
        a('s_lshl_b32 s40, s2, 10'); a('s_and_b32 s38, s40, 0x2000'); a('s_add_u32 s40, s40, s38'); a(f's_add_u32 s40, s40, 0x{YOFF:x}')
        PO, PO2, MO, OW = self.vPO, self.vPO2, self.vMLO, self.vOW
        self.bits(f'v{PO}', 'v0', 'v6', [(0, 4, 4), (4, 2, 10)])
        a('s_lshl_b32 s38, s3, 8'); a(f'v_add_u32 v{PO}, s38, v{PO}')
        a('v_cmp_gt_u32 vcc, 32, v0'); a('v_lshrrev_b32 v6, 4, v0'); a('v_bfe_u32 v7, v0, 2, 2'); a(f'v_cndmask_b32 v{PO2}, v10, v{PO}, vcc')
        a('v_add_u32 v6, v6, v7'); a('v_and_b32 v6, 3, v6')
        a('v_and_b32 v7, 3, v0'); a('v_lshl_add_u32 v6, v7, 2, v6')
        a(f'v_cmp_gt_u32 s[42:43], {NC}, v6'); a(f'v_min_u32 v6, {NC - 1}, v6'); a(f'v_lshlrev_b32 v{MO}, 7, v6'); a(f'v_add_u32 v{MO}, {MLO}, v{MO}')
        self.bits(f'v{OW}', 'v0', 'v6', [(4, 2, 1), (0, 3, 4), (3, 1, 8)])
        a('s_lshr_b32 s38, s3, 1'); a('s_lshl_b32 s38, s38, 7'); a('s_and_b32 s39, s3, 1'); a('s_lshl_b32 s39, s39, 3'); a('s_add_u32 s38, s38, s39')
        a(f'v_add_u32 v{OW}, s38, v{OW}')
        self.bits(f'v{self.vQS}', 'v0', 'v6', [(0, 1, 1), (2, 1, 2), (4, 1, 3), (3, 1, 4), (1, 1, 5), (5, 1, 6)])
        a('s_lshl_b32 s38, s3, 7'); a(f'v_add_u32 v{self.vQS}, s38, v{self.vQS}')
        a('s_cmp_eq_u32 s2, 0'); a(f's_cselect_b32 s33, 0x{XBOFF - 4 * 2048:x}, s57')
        a('s_mov_b32 s53, 3'); a(f's_mov_b32 s54, 0x{OOB:x}')
        for i in range(8):
            self.consume(po[i], (po[i + 3] if 1 <= i < 5 else None) if R4 else po[i + 2] if 1 <= i < 6 else None, (lambda: self.preready(True)) if i == (4 if self.split else 5) else None)
            self.stamp(48 + i, None, 28)
            if i == 1: a('s_call_b64 s[34:35], L_Osub')
            if i == 2: a('s_call_b64 s[34:35], L_Qsub'); a('s_lshl_b32 s54, s2, 9')
            if i == 5 and self.split:
                self.ready(True); a('s_call_b64 s[34:35], L_Osub'); self.cq = []
                a(f'v_cmp_gt_i32 vcc, 0, v{ML+1}'); a('s_cmp_lg_u64 vcc, 0'); a('s_addc_u32 s9, s9, 0')
        assert self.split and self.reord
        self.stamp(1, None, 28)
        a('s_call_b64 s[34:35], L_Ook')
        a.label('L_OQloop')
        a(f's_movk_i32 s38, 0x{self.qmask:x}'); a('s_bitcmp1_b32 s38, s49'); a('s_cbranch_scc0 L_OQin')
        self.readout(pq[6])
        a('s_call_b64 s[34:35], L_Qsub')
        self.readout(po[6], inwin); self.readout(po[7], inwin)
        a.label('L_OQin')
        a('s_call_b64 s[34:35], L_Osub')
        a('s_cmp_lt_u32 s49, 8'); a('s_cbranch_scc1 L_OQloop')
        a('s_branch L_end')

    def roleF(self):
        a = self.a
        self.dma_sub('L_dmaG', W1, 'v44', 88, 64 * 3584)
        self.dma_subB('L_dmaD', W3, 'v11')
        breg = lambda jj, ks: 256 + (jj * 7 + ks) * 8
        def dreg(jj, ks):
            i = jj * 2 + ks
            return 256 + 224 + 8 * i if i < 4 else 176 + 8 * (i - 4)
        G = 64; ACC = 48; A = 96; X = 124; CSUM = self.vCS; ACD = 128; X0 = 160
        a.label('L_Fsub')
        self.calc_ib()
        self.zero(ACC, 16); self.zero(ACD, 28)
        a('s_lshl_b32 s38, s50, 15'); a(f's_add_u32 s48, s38, 0x{YOFF:x}'); a('s_add_u32 s48, s48, s10')
        a('s_add_u32 s44, s38, s40'); a('s_add_u32 s51, s44, s56'); a('s_add_u32 s44, s44, s57')
        a('s_lshl_b32 s38, s50, 11'); a(f's_add_u32 s47, s38, 0x{XBOFF - 4 * 2048:x}'); a('s_add_u32 s47, s47, s10')
        a('s_and_b32 s39, s38, 0x2000'); a('s_add_u32 s38, s38, s39')
        a('s_add_u32 s45, s38, s41'); a('s_add_u32 s46, s45, s56'); a('s_add_u32 s45, s45, s57')
        a('s_cmp_lt_i32 s49, 0'); a('s_cbranch_scc1 L_Fx')
        a('s_bitcmp1_b32 s50, 2'); a('s_cbranch_scc1 L_Fr')
        a(f'v_lshlrev_b32 v16, 16, v{X0}'); a(f'v_and_b32 v17, 0xffff0000, v{X0}')
        for i in range(3): a(f'v_mov_b32 v{X0 + i}, v{X0 + i + 1}')
        a('s_branch L_Fg')
        a.label('L_Fr')
        self.resid_poll('s47')
        a.label('L_Fg')
        self.gather_sum('s48', G, True)
        a.label('L_Fx')
        a('ds_write_b32 v15, v24'); a('s_waitcnt lgkmcnt(0)'); a('s_barrier')
        for ks in range(7): a(f'ds_read_b128 {vr(A + 4*ks, 4)}, v2 offset:{128 * ks}')
        a(f'ds_read_b128 {vr(X, 4)}, v1')
        for x in self.xrow_ops('s45', 's46'): a(x)
        self.stamp(3, 's49', 28)
        fill = [None] * 5 + ['s_waitcnt lgkmcnt(0)'] + self.stats_ops(X)
        self.gemv(4, 7, breg, ACC, A, fill=fill, nother=1)
        a(f'v_mul_f32 v22, v24, v{CSUM}'); a(f'v_mul_f32 v23, v24, v{CSUM+1}'); a('v_mul_f32 v25, v25, v25')
        for jj in (0, 2, 1, 3): self.rowsel(20 + jj // 2, ACC, [(jj, 10 if jj & 1 else 5)])
        a('v_sub_f32 v20, v20, v22'); a('v_sub_f32 v21, v21, v23')
        a('v_max_f32 v20, 0, v20'); a('v_mul_f32 v21, v21, v25'); a('v_mul_f32 v20, v20, v21')
        a('v_cvt_pk_bf16_f32 v20, v20, v20')
        a('ds_write_b16 v40, v20'); a('s_waitcnt lgkmcnt(0)'); a('s_barrier')
        for ks in range(2): a(f'ds_read_b128 {vr(A + 4*ks, 4)}, v2 offset:{2048 + 128 * ks}')
        a('v_mov_b32 v21, 0')
        self.gemv(7, 2, dreg, ACD, A)
        self.rowout(ACD, 's44', 's51')
        self.stamp(12, 's49', 28)
        a('s_add_u32 s49, s49, 1')
        a('s_cmp_eq_u32 s49, 0'); a('s_cbranch_scc1 L_Fret')
        a('s_cmp_lt_u32 s49, 8'); a('s_cbranch_scc1 L_Fsub')
        a('s_branch L_end')
        a.label('L_roleF')
        self.cq = list(self.cq0); done = 8 * (self.hq[1] - self.hq[0]) if self.hq else 0
        a('s_cmp_lt_u32 s3, 2'); a('s_cselect_b64 s[20:21], s[76:77], s[78:79]'); a(f's_mov_b32 s22, 0x{448 * 3584:x}'); a('s_mov_b32 s23, 0x20000')
        a('s_sub_u32 s2, s2, 16')
        a('v_mul_u32_u24 v6, 3584, v4')
        a('s_lshl_b32 s38, s2, 8'); a('s_and_b32 s39, s3, 1'); a('s_lshl_b32 s39, s39, 7'); a('s_add_u32 s38, s38, s39')
        a('v_add3_u32 v44, v6, v2, s38')
        self.table(88, 3584)
        pl = [dict(sub='L_dmaG', B=0, rd=[(breg(jj, ks) + 2 * rp, (jj >> 1) * 16384 + rp * 2048 + (jj & 1) * 256) for jj in range(4) for rp in range(4)]) for ks in range(7)]
        pl += [dict(sub='L_dmaD', B=1, rd=self.typeB_reads(dreg, i // 2, i % 2)) for i in range(4)]
        for i, p in enumerate(pl): p['slot'] = i % 4
        self.stamp(56, None, 30)
        for i in range(1 if self.ean else 2): self.issue(pl[i])
        self.stamp(57, None, 30)
        self.srd(28, 80, 1792 * 896); self.srd(68, 64, 3584)
        a('s_lshl_b32 s39, s2, 7')
        self.typeB('v11', 's39')
        self.consts()
        a('s_lshr_b32 s38, s3, 1'); a('s_lshl_b32 s38, s38, 13'); a('s_and_b32 s39, s3, 1'); a('s_lshl_b32 s39, s39, 9'); a('s_add_u32 s38, s38, s39'); a('v_add_u32 v9, s38, v9')
        self.x0off(); self.gather_offs()
        for b in range(4): self.vm(f'buffer_load_dword v{X0 + b}, v12, s[68:71], 0 offen offset:{b * 896}', 'x0')
        a('v_and_b32 v6, 31, v0'); a('s_lshl_b32 s38, s3, 6'); a('s_add_u32 s38, s38, 2048'); a('v_lshl_add_u32 v40, v6, 1, s38')
        a('s_lshl_b32 s40, s2, 10'); a('s_and_b32 s38, s40, 0x2000'); a('s_add_u32 s40, s40, s38'); a(f's_add_u32 s40, s40, 0x{ZOFF:x}')
        a('s_cmp_eq_u32 s2, 0'); a(f's_cselect_b32 s41, 0x{XAOFF:x}, s57')
        if done < 10: self.arm()
        elif done < 24: self.announce()
        if self.ean:
            assert not done
            self.issue(pl[1]); self.announce()
        self.stamp(58, None, 30)
        self.issue(pl[2])
        a('s_branch L_Fsub')
        a.label('L_Fret')
        self.issue(pl[3])
        self.stamp(59, None, 30)
        hooks = {2: lambda: self.announce(False)} if done < 10 and not self.ean else {}
        hooks[7] = self.preready
        for i in range(11):
            self.consume(pl[i], pl[i + 3] if 1 <= i < 8 else None, hooks.get(i))
            if self.ho and i == self.ho[2]: self.wo_pf('s2')
            self.stamp(41 + i, None, 26)
            if i == 7:
                self.stamp(20, None, 28)
                self.colsum(4, 7, breg, ACC)
                self.rowsel(CSUM, ACC, [(0, 5), (1, 10)]); self.rowsel(CSUM + 1, ACC, [(2, 5), (3, 10)])
        self.ready()
        a('s_branch L_Fsub')

    def wo_pf(self, head, add=0):
        a = self.a; p0, p1 = self.ho[:2]
        self.srd(24, 72, 4096 * 896)
        nb = (p1 - p0) * 28672; per = nb // 4
        a(f's_mul_i32 s38, {head}, 229376'); a(f's_mul_i32 s39, s3, {per}'); a('s_add_u32 s38, s38, s39'); a(f's_add_u32 s38, s38, {p0 * 28672 + add * 229376}')
        a('v_min_u32 v6, 55, v0'); a('v_lshlrev_b32 v6, 7, v6')
        for i in range(p1 - p0):
            self.vm(f'buffer_load_dword v45, v6, {W2}, s38 offen {self.hpol}', 'ho'); a('s_add_u32 s38, s38, 7168')
    def roleW(self):
        a = self.a
        self.cq = list(self.cq0); done = 8 * (self.hq[1] - self.hq[0]) if self.hq else 0
        self.consts()
        if done < 10: self.arm()
        if done < 24: self.announce()
        a('s_sub_u32 s2, s2, 30')
        if self.hpf: self.helper()
        if self.ho: self.wo_pf('s2', 14)
        a('s_cmp_lg_u32 s2, 0'); a('s_cbranch_scc1 L_end')
        self.near()
        self.srd(20, 82, 3584)
        self.x0off(); self.gather_offs()
        self.preready(); self.ready()
        G = 64
        a('s_mov_b32 s49, 0'); a(f's_add_u32 s47, s10, 0x{XAOFF + 16384:x}'); a(f's_add_u32 s48, s10, 0x{ZOFF + 4 * 32768:x}'); a('s_mov_b32 s44, 0')
        a.label('L_Wtop')
        if not self.mres: self.resid_poll('s47')
        self.gather_sum('s48', G, False, 's47' if self.mres else None)
        a(f'buffer_store_dword v24, v12, {W1}, s44 offen')
        self.stamp(12, 's49', 28)
        a('s_add_u32 s49, s49, 1'); a('s_add_u32 s47, s47, 2048'); a('s_add_u32 s48, s48, 32768'); a('s_add_u32 s44, s44, 896')
        a('s_cmp_lt_u32 s49, 4'); a('s_cbranch_scc1 L_Wtop')
        a('s_branch L_end')
    def helper(self):
        a = self.a
        hq, ho = self.hpf if isinstance(self.hpf, (list, tuple)) else (48, 48)
        a('s_lshl_b32 s38, s2, 2'); a('s_add_u32 s38, s38, s3')
        self.srd(20, 70, 448 * 8192); self.srd(24, 72, 4096 * 896)
        a('s_lshl_b32 s40, s38, 10'); a(f's_add_u32 s40, s40, {(448 - hq) * 8192}')
        l = self.lab('L_hq'); a(f's_mov_b32 s41, {hq}')
        if hq:
            a.label(l)
            a('s_waitcnt vmcnt(11)'); a(f'buffer_load_dwordx4 v[64:67], v1, {W1}, s40 offen {self.hpol}')
            a('s_add_u32 s40, s40, 8192'); a('s_sub_u32 s41, s41, 1'); a('s_cmp_lg_u32 s41, 0'); a(f's_cbranch_scc1 {l}')
        if ho:
            a('s_mul_i32 s40, s38, 458752'); a(f's_add_u32 s40, s40, {229376 - ho * 1024}'); a('s_add_u32 s42, s40, 229376')
            l = self.lab('L_ho'); a(f's_mov_b32 s41, {ho}')
            a.label(l)
            a('s_waitcnt vmcnt(10)'); a(f'buffer_load_dwordx4 v[64:67], v1, {W2}, s40 offen {self.hpol}')
            a(f'buffer_load_dwordx4 v[64:67], v1, {W2}, s42 offen {self.hpol}')
            a('s_add_u32 s40, s40, 1024'); a('s_add_u32 s42, s42, 1024'); a('s_sub_u32 s41, s41, 1'); a('s_cmp_lg_u32 s41, 0'); a(f's_cbranch_scc1 {l}')
        a('s_waitcnt vmcnt(0)')
        self.stamp(20, None, 28)

if __name__ == '__main__':
    kw = json.loads(sys.argv[2]) if len(sys.argv) > 2 else {}
    open(sys.argv[1], 'w').write(Gen(**kw).build())
```

```python
import sys, struct, json
from asmlib import Asm
NAME = "interleave_layers__mha_block_cached__glu_gated_reglu__decode"

QOFF = 0x0; YOFF = 0x10000; ZOFF = 0x50000; XAOFF = 0x90000; XBOFF = 0x98000; HOFF = 0x9c000; COFF = 0x9a000 - 0x2000 + 0x8000; POFF = 0x800000; DOFF = 0x400000
PB = 32768; PIB = 0x100000; PP2 = 0x80000; MLO = 16384 + 6144
OOB = 0x40000000
NC = 14; NW = 56
CS = 0.09016844005556021
def f2u(x): return struct.unpack('<I', struct.pack('<f', x))[0]

K_SRD = 's[8:11]'; V_SRD = 's[12:15]'; WS = 's[16:19]'; W1 = 's[20:23]'; W2 = 's[24:27]'; W3 = 's[28:31]'
DBG = 's[84:85]'
NCHAIN = 32
K4 = 's[88:91]'; V4 = 's[92:95]'
FULL = 'row_mask:0xf bank_mask:0xf'

def vr(b, n=1): return f'v{b}' if n == 1 else f'v[{b}:{b+n-1}]'
def ar(b, n=1): return f'a{b}' if n == 1 else f'a[{b}:{b+n-1}]'
def rr(b, n=1): return vr(b, n) if b < 256 else ar(b - 256, n)

class Gen:
    def __init__(self, diag=False, PF=65, depth=8, hpf=False, hpol='nt', cpf=False, rows=(16, 10, 7), hq=None, fake=0, CL=12, PF2=None, reord=1, lightO=0, split=True, tlb=0, fx=2, thr=None, wtlb=0, probe=None, kpol='nt', vpol='nt', par=None, nQ=48, nE=60, early=False, sub=None, qE=None, ring4=0, up4=False, ho=None, pos=None, home=0, hforce=None, lv=None, lvx=None, th=None, cps=None, rs=None, gs=14, kvonly=True, ed=False, mid=None, fast=((2, (73, 74, 75)), (3, (76, 77)), (4, (78, 79))), boost=None, fld=(2, 2), nQ1=None, cpon=None, odd=None, slow=None, xsl=0, loc=1, spf=None, mres=1, dual=1, hs=4, ean=1, SG=24, pw=12, flex=None, KF=52, TK=41, qmask=0x96, fw=(), fb=None, bst=None, fine=(), cla=0, arl=None, wsw=0, noarm=0, PFA=None, xpf=None, oarm=0, xpol='', fx2=None, p0=8, nox=0, nocl=0, mp=0, fin=0, cyc=0, mz=0, lst=0, w2=0, mpr='FW',
                 p2l=((('u', 2), (73, 74, 75)), (('u', 3), (76, 77)), (('u', 4), (78, 79)), (('u', 9), (0,)), (('x', 0), (1,)), (('i', 0), (2,)), (('i', 2), (3,)), (('i', 4), (4,)), (('m', 0), (5,))),
                 p1l={'a': (6, 7), '1': (8, 9), '2': (10,), '3': (11, 12), '4': (13,), 'm': (14, 15)}):
        self.mpr = mpr; self.w2 = w2; self.lst = lst; self.mz = mz; self.cyc = cyc; self.ck = 0; self.fin = fin; self.mp = mp; self.nox = nox; self.nocl = nocl; self.fine = list(fine); self.cla = cla; self.arl = arl; self.wsw = wsw; self.noarm = noarm; self.PFA = PFA; self.p0 = p0; self.fx2 = fx2; self.xpf = xpf; self.xpol = xpol; self.oarm = oarm; self.fb = fb; self.bst = bst; self.fw = fw; self.flex = flex; self.KF = KF; self.TK = TK; self.qmask = qmask
        if flex:
            rest = list(range(48, 80)); rest[KF - 40:KF - 40] = range(32, 40)
            self.ORD = list(range(24, 32)) + list(range(40, 48)) + list(range(24)) + rest
            assert sum(n for n, r in flex) == NW and sum(n * r for n, r in flex) == 512 and nQ >= KF + 8
        self.SG = SG; self.pw = pw; self.p2l = p2l; self.p1l = p1l
        self.dual = dual; self.hs = hs; self.ean = ean
        self.loc = loc; self.spf = spf or []; self.mres = mres
        self.xsl = xsl
        self.slow = slow
        self.odd = odd
        self.cpon = cpon
        self.nQ1 = nQ1 or nQ
        self.fast = fast; self.boost = boost; self.fld = fld; self.xst = 0
        if boost: lv = [depth, boost[1]]
        self.kvonly = kvonly; self.ed = ed; self.mid = mid
        self.lv = lv; self.lvx = lvx; self.th = th; self.cps = cps or []; self.rs = rs; self.dyn = False; self.gs = gs
        self.hforce = hforce
        self.home = home
        self.pos = pos
        self.ring4 = ring4; self.up4 = up4; self.ho = ho
        self.sub = sub; self.qE = qE
        self.par = par; self.nQ = nQ; self.nE = nE; self.early = early
        self.pmul = 10 if not probe or len(probe) < 3 else probe[2]; probe = probe and probe[:2]; self.probe = probe; self.role = 'X'; self.kpol = kpol; self.vpol = vpol
        self.a = Asm(); self.diag = diag; self.PF = PF; self.depth = depth; self.hpf = hpf; self.hpol = hpol; self.cpf = cpf; self.rows = rows; self.hq = hq; self.fake = fake; self.CL = CL; self.PF2 = PF2; self.reord = reord; self.lightO = lightO; self.split = split; self.tlb = tlb; self.fx = fx; self.thr = thr; self.wtlb = wtlb
        self.uid = 0
    def lab(self, p='L'):
        self.uid += 1; return f'{p}_{self.uid}'

    def bits(self, dst, lane, tmp, mp):
        a = self.a; first = True
        for lb, n, ab in mp:
            if first:
                a(f'v_bfe_u32 {dst}, {lane}, {lb}, {n}')
                if ab: a(f'v_lshlrev_b32 {dst}, {ab}, {dst}')
                first = False
            else:
                a(f'v_bfe_u32 {tmp}, {lane}, {lb}, {n}')
                a(f'v_lshl_add_u32 {dst}, {tmp}, {ab}, {dst}')
    def srd(self, base, lo, size):
        a = self.a
        a(f's_mov_b64 s[{base}:{base+1}], s[{lo}:{lo+1}]')
        a(f's_mov_b32 s{base+2}, 0x{size:x}'); a(f's_mov_b32 s{base+3}, 0x20000')
    def timeout(self):
        self.a('s_sub_u32 s52, s52, 1'); self.a('s_cbranch_scc1 L_bail')
        if self.xsl and self.role != 'S': self.a(f's_sleep {self.xsl}')
    FLAG = 4096; CNTA = 16; CNTB = 144
    def wait_counter(self, va, vd, vt, off, n, pre=False):
        a = self.a; l = self.lab('L_cnt'); c = self.lab('L_cntc')
        if pre: a(f's_branch {c}')
        else: a(f'v_mov_b32 v{va}, 0')
        a.label(l)
        self.timeout()
        a(f'global_load_dword v{vd}, v{va}, {DBG} offset:{off} sc1'); a('s_waitcnt vmcnt(0)')
        a.label(c)
        a(f'v_and_b32 v{vt}, {"0xffff" if self.nocl else "0xff"}, v{vd}'); a(f'v_cmp_gt_u32 vcc, {n}, v{vt}'); a(f's_cbranch_vccnz {l}')
    def claim(self, va, vd, vr_):
        a = self.a; l = self.lab('L_cl')
        if self.nocl: a(f'v_mov_b32 v{va}, 0'); a('s_waitcnt lgkmcnt(0)'); return
        a('s_lshl_b32 s38, 1, s101'); a(f'v_mov_b32 v{va}, s100'); a(f'v_mov_b32 v{vd}, s38')
        a('s_or_b32 s38, s3, s7')
        a('s_waitcnt lgkmcnt(0)')
        a(f's_cbranch_scc1 {l}')
        a('s_mov_b64 exec, 1')
        a(f'global_atomic_or v{vr_}, v{va}, v{vd}, {DBG} sc0 sc1')
        a('s_mov_b64 exec, -1')
        a.label(l)
    def confirm(self, vr_, t):
        a = self.a; l = self.lab('L_rs'); w = self.lab('L_rw')
        if self.nocl: return
        a(f'v_mov_b32 v{t}, 0')
        a('s_cmp_lg_u32 s3, 0'); a(f's_cbranch_scc1 {l}')
        a('s_movk_i32 s38, 0x100'); a('s_cmp_lg_u32 s7, 0'); a(f's_cbranch_scc1 {w}')
        a(f'v_readfirstlane_b32 s39, v{vr_}'); a('s_bitcmp1_b32 s39, s101'); a(f's_cbranch_scc0 {w}')
        a('s_call_b64 s[96:97], L_lost')
        a.label(w)
        a(f'v_mov_b32 v{t+1}, s38'); a(f'ds_write_b32 v{t}, v{t+1} offset:{self.FLAG}'); a('s_waitcnt lgkmcnt(0)')
        a.label(l)
        a('s_barrier')
        a(f'ds_read_b32 v{t+1}, v{t} offset:{self.FLAG}'); a('s_waitcnt lgkmcnt(0)')
        a(f'v_readfirstlane_b32 s38, v{t+1}'); a('s_cmp_lg_u32 s38, 0x100'); a('s_cbranch_scc1 L_redo')
    def signal(self, va, vd, off, val):
        a = self.a; l = self.lab('L_sg')
        a('s_cmp_lg_u32 s3, 0'); a(f's_cbranch_scc1 {l}')
        a('s_mov_b64 exec, 1'); a(f'v_mov_b32 v{va}, 0'); a(f'v_mov_b32 v{vd}, {val}')
        a(f'global_atomic_add v{va}, v{vd}, {DBG} offset:{off} sc1')
        a('s_mov_b64 exec, -1')
        a.label(l)
    def rare_paths(self):
        a = self.a
        a.label('L_odd')
        a('s_waitcnt lgkmcnt(0)'); a('v_mov_b32 v1, 0')
        a('s_cmp_lg_u32 s3, 0'); a('s_cbranch_scc1 L_odd2')
        a('s_and_b32 s38, s36, 3'); a('s_lshl_b32 s38, s38, 6'); a('s_lshr_b32 s39, s36, 2'); a('s_lshl3_add_u32 s38, s39, s38')
        a('v_mov_b32 v2, s38'); a('s_lshl_b32 s39, s37, 3'); a('s_movk_i32 s41, 24')
        a.label('L_odd1')
        a(f'global_load_dword v3, v2, {DBG} sc1'); a('s_waitcnt vmcnt(0)')
        a('v_readfirstlane_b32 s38, v3'); a('s_lshr_b32 s38, s38, s39'); a('s_and_b32 s38, s38, 0xff'); a('s_bcnt1_i32_b32 s40, s38')
        a('s_cmp_ge_u32 s40, 7'); a('s_cselect_b32 s41, 0, s41'); a('s_sub_u32 s41, s41, 1'); a('s_cbranch_scc0 L_odd1')
        a('s_ff0_i32_b32 s38, s38'); a('v_mov_b32 v2, s38'); a(f'ds_write_b32 v1, v2 offset:{self.FLAG + 4}'); a('s_waitcnt lgkmcnt(0)')
        a.label('L_odd2')
        a('s_barrier')
        a(f'ds_read_b32 v2, v1 offset:{self.FLAG + 4}'); a('s_waitcnt lgkmcnt(0)')
        a('v_readfirstlane_b32 s38, v2'); a('s_mov_b32 s6, 1'); a('s_branch L_even')
        a.label('L_lost')
        a('s_waitcnt vmcnt(0)')
        self.bits('v62', 'v0', 'v63', [(0, 2, 6), (2, 1, 3)])
        a.label('L_lost1')
        a(f'global_load_dword v60, v62, {DBG} sc1'); a('s_waitcnt vmcnt(0)')
        a('v_cmp_ne_u32 vcc, -1, v60'); a('s_movk_i32 s38, 0x300'); a('s_cbranch_vccz L_lost2')
        a('s_getreg_b32 s39, hwreg(HW_REG_XCC_ID, 0, 3)'); a('s_ff1_i32_b32 s38, vcc_lo')
        a('s_bitcmp1_b32 vcc_lo, s39'); a('s_cselect_b32 s38, s39, s38')
        a('s_nop 3'); a('v_readlane_b32 s39, v60, s38'); a('v_readlane_b32 s40, v62, s38'); a('s_ff0_i32_b32 s39, s39')
        a('s_lshl_b32 s41, 1, s39'); a('v_mov_b32 v61, s41'); a('v_mov_b32 v63, s40')
        a('s_mov_b64 exec, 1'); a(f'global_atomic_or v60, v63, v61, {DBG} sc0 sc1'); a('s_mov_b64 exec, -1'); a('s_waitcnt vmcnt(0)')
        a('v_readfirstlane_b32 s40, v60'); a('s_bitcmp1_b32 s40, s39'); a('s_cbranch_scc1 L_lost1')
        a('s_lshl_b32 s38, s38, 5'); a('s_add_u32 s38, s38, s39'); a('s_bitset1_b32 s38, 9')
        a.label('L_lost2')
        a('s_setpc_b64 s[96:97]')
        a.label('L_redo')
        a('s_bitcmp1_b32 s38, 8'); a('s_cbranch_scc1 L_bail')
        a('s_waitcnt vmcnt(0) lgkmcnt(0)'); a('s_barrier')
        a('s_load_dwordx16 s[64:79], s[0:1], 0')
        a('s_load_dwordx8 s[80:87], s[0:1], 64')
        a('s_bfe_u32 s36, s38, 0x30005'); a('s_and_b32 s2, s38, 31'); a('s_mov_b32 s7, 1')
        a('s_branch L_role')
    def stamp(self, idx, sidx=None, t0=20, src='s62'):
        if self.probe and not self.diag:
            role, want = self.probe
            if role != self.role or (sidx is None and idx != want) or (sidx and not (0 <= want - idx < 9)): return
            a = self.a
            a('s_waitcnt lgkmcnt(0)'); a('s_memrealtime s[62:63]'); a('s_waitcnt lgkmcnt(0)')
            if sidx: a(f's_cmp_eq_u32 {sidx}, {want - idx}'); a('s_cselect_b32 s61, s62, s61')
            else: a('s_mov_b32 s61, s62')
            return
        if not self.diag: return
        a = self.a
        a('s_waitcnt lgkmcnt(0)'); a('s_memrealtime s[62:63]'); a('s_waitcnt lgkmcnt(0)')
        a(f'v_mov_b32 v{t0}, {src}')
        if sidx: a(f's_lshl_b32 s60, {sidx}, 2'); a('s_add_u32 s60, s60, s61')
        else: a('s_mov_b32 s60, s61')
        a(f'v_mov_b32 v{t0+1}, 0')
        a('s_mov_b64 exec, 1')
        a(f'buffer_store_dword v{t0}, v{t0+1}, {WS}, s60 offen offset:{idx*4}')
        a('s_mov_b64 exec, -1')
    def diagbase(self):
        a = self.a
        a('s_and_b32 s60, s61, 31'); a('s_lshr_b32 s61, s61, 5'); a('s_lshl3_add_u32 s61, s60, s61')
        a('s_lshl2_add_u32 s61, s61, s3'); a('s_lshl_b32 s61, s61, 8'); a(f's_add_u32 s61, s61, 0x{DOFF:x}')
    def maxtree(self, regs, t):
        a = self.a; regs = list(regs)
        a(f'v_max3_u32 v{t}, v{regs[0]}, v{regs[1]}, v{regs[2 if len(regs) > 2 else 1]}')
        regs = regs[3:]
        while regs:
            x = regs[:2]; regs = regs[2:]
            a(f'v_max3_u32 v{t}, v{t}, v{x[0]}, v{x[-1]}')
        a(f'v_cmp_eq_u32 vcc, -1, v{t}')

    def build(self):
        a = self.a
        if self.diag: a('s_memrealtime s[34:35]')
        a('s_cmp_ge_u32 s2, 256'); a('s_cbranch_scc1 L_end2')
        if self.probe: a('s_memrealtime s[62:63]'); a('s_waitcnt lgkmcnt(0)'); a('s_mov_b32 s60, s62'); a('s_mov_b32 s61, s62')
        a('s_load_dwordx16 s[64:79], s[0:1], 0')
        a('s_load_dwordx8 s[80:87], s[0:1], 64')
        if self.nocl:
            if self.fake: a(f's_mul_i32 s2, s2, {2 * self.fake + 1}'); a(f's_add_u32 s2, s2, {self.fake // 2 * 8}'); a('s_and_b32 s2, s2, 255'); self.fake = 0
            a('s_and_b32 s36, s2, 7'); a('s_lshr_b32 s38, s2, 5'); a('s_bfe_u32 s37, s2, 0x20003')
            if self.nocl > 1: a(f's_add_u32 s38, s38, {9 - self.nocl}')
            if self.diag: a('s_getreg_b32 s100, hwreg(HW_REG_HW_ID)')
        else:
            a('s_getreg_b32 s36, hwreg(HW_REG_XCC_ID, 0, 3)')
            a('s_getreg_b32 s38, hwreg(HW_REG_HW_ID, 8, 4)'); a('s_getreg_b32 s37, hwreg(HW_REG_HW_ID, 13, 2)')
        a('v_lshrrev_b32 v1, 6, v0'); a('v_and_b32 v0, 63, v0')
        a('v_readfirstlane_b32 s3, v1')
        a('s_mov_b32 s52, 400000'); a('s_mov_b64 s[6:7], 0')
        if self.fake == 1: a('s_and_b32 s38, s38, 6')
        if self.fake == 2: a('s_and_b32 s36, s36, 5')
        if self.fake == 3: a('s_and_b32 s36, s2, 7'); a('s_lshr_b32 s38, s2, 5'); a('s_mov_b32 s37, 0')
        if self.fake == 4: a('s_mov_b32 s36, 0'); a('s_mov_b32 s38, 0'); a('s_mov_b32 s37, 0')
        if self.fake == 5:
            a('s_bitcmp0_b32 s37, 0'); a('s_cselect_b32 s39, 8, 0'); a('s_cmp_eq_u32 s38, 3'); a('s_cselect_b32 s38, s39, s38')
        if not self.nocl: a('s_bitcmp0_b32 s37, 0'); a('s_cselect_b32 s39, 8, 0'); a('s_cmp_eq_u32 s38, s39'); a('s_cbranch_scc1 L_odd')
        a.label('L_even')
        a('s_and_b32 s38, s38, 7'); a('s_lshl3_add_u32 s2, s37, s38')
        if self.fake == 6: a('s_cmp_lg_u32 s38, 7'); a('s_cselect_b32 s39, 5, 0'); a('s_xor_b32 s36, s36, s39')
        if self.fake == 7: a('s_cmp_eq_u32 s2, 10'); a('s_cselect_b32 s39, 1, 0'); a('s_xor_b32 s36, s36, s39')
        if self.fake == 8: a('s_cmp_eq_u32 s2, 7'); a('s_cselect_b32 s39, 4, 0'); a('s_xor_b32 s36, s36, s39')
        a.label('L_role')
        if not self.nocl: a('s_mov_b32 s101, s2'); a('s_and_b32 s100, s36, 3'); a('s_lshl_b32 s100, s100, 6'); a('s_lshr_b32 s38, s36, 2'); a('s_lshl3_add_u32 s100, s38, s100')
        if self.cpf:
            a('s_getpc_b64 s[38:39]'); a.label('L_pc')
            a('s_lshl_b32 s37, s2, 2'); a('s_add_u32 s37, s37, s3'); a('s_lshl_b32 s37, s37, 10')
            a('s_cmp_ge_u32 s37, L_end-L_pc'); a('s_cbranch_scc1 L_nopf')
            a('v_lshl_add_u32 v2, v0, 4, s37'); a('v_min_u32 v2, L_end-L_pc-16, v2')
            a('global_load_dwordx4 v[60:63], v2, s[38:39]')
            a.label('L_nopf')
        a('s_getreg_b32 s38, hwreg(HW_REG_XCC_ID, 0, 4)'); a('s_cmp_eq_u32 s38, s36'); a(f's_cselect_b32 s5, 1, {"0x10001" if self.nocl else "0x101"}')
        a('s_lshr_b32 s38, s2, 4'); a('s_lshl1_add_u32 s36, s36, s38'); a('s_and_b32 s37, s2, 7'); a('s_bfe_u32 s38, s2, 0x10003')
        a('s_cmp_eq_u32 s37, 7'); a('s_cbranch_scc1 L_chain')
        self.role = 'S'; self.stream()
        a.label('L_chain'); self.role = 'C'
        self.chain_common()
        self.role = 'W'; self.roleW(); self.role = 'O'; self.roleOQ(); self.role = 'F'; self.roleF()
        if not self.nocl: self.rare_paths()
        a.label('L_bail')
        a('s_mov_b64 exec, 1')
        a('v_mov_b32 v0, 32'); a('v_mov_b32 v1, 1')
        a(f'global_atomic_add v0, v1, {DBG} sc1')
        a('v_mov_b32 v0, 36'); a('v_mov_b32 v1, s2')
        a(f'global_store_dword v0, v1, {DBG} sc1')
        a.label('L_end')
        if self.probe:
            a('s_cmp_eq_u32 s60, s61'); a('s_cbranch_scc1 L_end2')
            a('s_sub_u32 s61, s61, s60'); a(f's_mul_i32 s61, s61, {self.pmul}'); a('s_add_u32 s61, s61, 7000'); a('s_add_u32 s61, s61, s60')
            a.label('L_pspin')
            a('s_memrealtime s[62:63]'); a('s_waitcnt lgkmcnt(0)'); a('s_sub_u32 s62, s62, s61'); a('s_cmp_lt_i32 s62, 0'); a('s_cbranch_scc1 L_pspin')
        a.label('L_end2')
        body = a.finish()
        hdr = open('cdna_kernels/' + NAME + '.s.ref').read().split('\n')
        top = [l for l in hdr if l.startswith(';') and '@launch' not in l]
        s = '\n'.join(top) + '\n; @launch grid=(256,1,1) block=(256,1,1) lds=163840\n'
        s += f'.amdgcn_target "amdgcn-amd-amdhsa--gfx950"\n.text\n.globl {NAME}_kernel\n.p2align 8\n.type {NAME}_kernel,@function\n{NAME}_kernel:\n'
        s += body
        s += f'''s_endpgm
.section .rodata,"a"
.p2align 6
.amdhsa_kernel {NAME}_kernel
  .amdhsa_next_free_vgpr 512
  .amdhsa_next_free_sgpr 102
  .amdhsa_accum_offset 256
  .amdhsa_group_segment_fixed_size 0
  .amdhsa_kernarg_size 96
  .amdhsa_user_sgpr_count 2
  .amdhsa_user_sgpr_kernarg_segment_ptr 1
  .amdhsa_system_sgpr_workgroup_id_x 1
.end_amdhsa_kernel
'''
        return s

    CA = [0, 4096]; Q1L = 8192; MA = [10240, 10272]; CO = [10304, 10308]; MA1 = [10240, 10336]; ST = 10496; TB = 11520; WLDS = 37 * 1024
    vK, vV, vDs, vL16, vQo, vIQ, vIP = 1, 2, 3, 4, 5, 6, 7
    vM = 8; vT = 12; vBias = 15; vMC = 16; vL = 17; vQ = 24; vAcc = 32; vH = 48
    def kreg(self, s, u):
        return 64 + 96 * s + 16 * u if u < 6 else 256 + 128 * s + 16 * (u - 6)
    def vreg0(self, s, P, t):
        return 256 + 128 * s + 64 + 8 * (4 * P + t)
    def tile(self, n):
        if n < 40:
            u, t = n // 4, n % 4
            return 0, u // 2, t * 128 + (u & 1) * 512
        m = n - 40; g = m // 8; k = m % 8
        if g < 4: P, t = k // 4, k % 4
        else: t, P = k // 2, k % 2
        return 1, g, t * 128 + P * 1024
    def ldsslot(self, s, n):
        if n <= 72: return (n - 56) + 17 * s
        return 34 + (n - 73)
    ORD = list(range(24, 40)) + list(range(24)) + list(range(40, 80))
    def load(self, s, p, wait=True, to=None):
        a = self.a; n = self.ORD[p]
        kv, g, imm = self.tile(n)
        if p == 0 and not self.prologue:
            for j in range(4 if self.flex or self.fx2 else 5): a(f's_add_u32 s{40+j}, s{40+j}, 0x2000000')
            if self.fx2: a('s_mov_b32 s44, s24'); a('s_lshl_b32 s90, s25, 9'); a('s_add_u32 s90, s90, s44'); a('s_min_u32 s90, s90, s10'); a('s_mov_b32 s94, s90')
            elif not self.flex: a('s_add_u32 s90, s90, 0x2000000'); a('s_min_u32 s90, s90, s10'); a('s_mov_b32 s94, s90')
        va = f'v{self.vV if kv else self.vK}'; srd = V_SRD if kv else K_SRD
        if g == 4: srd = V4 if kv else K4
        dst = None
        if n < 40: dst = self.kreg(s, n // 4) + 4 * (n % 4)
        elif n < 56:
            m = n - 40; dst = self.vreg0(s, (m % 8) // 4, m % 4) + 4 * (m // 8)
        elif n >= 76: dst = self.kreg(1 - s, 1) + 4 * (n - 76)
        if to is not None: dst = to
        if dst is None:
            a(f's_add_u32 m0, s45, {self.ldsslot(s, n) * 1024 - imm}')
        depth = self.lv[-1] if self.dyn else self.depth
        if wait is not True and wait: depth = wait
        def allow(d):
            pos = [i for i, x in enumerate(reversed(self.vmq)) if x[0] != 'cp' and not (self.flex and x[0] in (0, 1) and self.KF <= x[1] < self.KF + 8 and (x[1] - self.KF) % 8 not in self.fw)]
            return pos[d - 1] if len(pos) >= d else None
        if wait is True and self.dyn:
            lows = [allow(d) for d in self.lv[:-1] if allow(d) is not None]
            labs = [self.lab('L_lv') for _ in lows]
            for i in reversed(range(len(lows))):
                a(f's_cmp_gt_u32 s59, {i}'); a(f's_cbranch_scc1 {labs[i]}')
            for i, k in enumerate(lows):
                a(f's_waitcnt vmcnt({k})'); a.label(labs[i])
        if wait and allow(depth) is not None:
            k = allow(depth)
            a(f's_waitcnt vmcnt({k})'); self.vmq = self.vmq[-k:]
        if dst is None:
            a(f'buffer_load_dwordx4 {va}, {srd}, s{40+g} offen offset:{imm} {self.vpol if kv else self.kpol} lds')
        else:
            a(f'buffer_load_dwordx4 {rr(dst, 4)}, {va}, {srd}, s{40+g} offen offset:{imm} {self.vpol if kv else self.kpol}')
        self.vmq.append((s, p))
    def need_vm(self, tag):
        if tag in self.vmq:
            k = len(self.vmq) - 1 - self.vmq.index(tag)
            if self.xst:
                l = self.lab('L_xs'); self.a('s_cmp_lg_u32 s58, 0'); self.a(f's_cbranch_scc1 {l}')
                self.a(f's_waitcnt vmcnt({k})'); self.a.label(l); self.a(f's_waitcnt vmcnt({k + self.xst})')
            else: self.a(f's_waitcnt vmcnt({k})')
            self.vmq = self.vmq[len(self.vmq) - k:] if k else []
    def ds(self, text, tag=None):
        self.a(text); self.lq.append(tag)
    def need_lds(self, tag):
        if tag in self.lq:
            i = len(self.lq) - 1 - self.lq[::-1].index(tag)
            k = len(self.lq) - 1 - i
            k = min(k, 15)
            self.a(f's_waitcnt lgkmcnt({k})'); self.lq = self.lq[len(self.lq) - k:] if k else []
    def qload(self):
        a = self.a
        a(f'buffer_load_dwordx4 {vr(self.vQ, 4)}, v{self.vQo}, {WS}, s46 offen sc1')
        a(f'buffer_load_dwordx4 {vr(self.vQ + 4, 4)}, v{self.vQo}, {WS}, s46 offen offset:256 sc1')
    def wpf(self, n):
        a = self.a
        for nn, mat, k in self.spf:
            if nn != n: continue
            a('s_lshl2_add_u32 s32, s37, s3')
            for lo, size, rs, lpr, hs, rows in {'q': [(70, 448 * 8192, 8192, 4, 512, 448)], 'o': [(72, 4096 * 896, 128, 1, 229376, 1792)],
                          'g': [(76, 448 * 3584, 3584, 2, 256, 448), (78, 448 * 3584, 3584, 2, 256, 448)], 'd': [(80, 1792 * 896, 128, 1, 114688, 896)]}[mat]:
                assert 56 * k <= rows and k * lpr <= 64
                self.srd(28, lo, size)
                a(f's_mul_i32 s38, s36, {hs}'); a(f's_mul_i32 s33, s32, {k * rs}'); a('s_add_u32 s38, s38, s33'); a(f's_add_u32 s38, s38, {(rows - 56 * k) * rs}')
                if mat == 'g': a('s_cmp_lt_u32 s36, 14'); a(f's_cselect_b32 s38, s38, 0x{OOB:x}')
                if lpr == 1: a('v_lshlrev_b32 v18, 7, v0')
                else:
                    a(f'v_lshrrev_b32 v18, {lpr // 2}, v0'); a(f'v_mul_u32_u24 v18, {rs}, v18'); a(f'v_and_b32 v19, {lpr - 1}, v0'); a('v_lshl_add_u32 v18, v19, 7, v18')
                L = k * lpr
                a(f's_mov_b32 exec_lo, 0x{(1 << min(L, 32)) - 1:x}'); a(f's_mov_b32 exec_hi, 0x{(1 << max(L - 32, 0)) - 1:x}')
                a(f'buffer_load_dword v17, v18, s[28:31], s38 offen')
                a('s_mov_b64 exec, -1')
    def zero_acc(self):
        return [f'v_mov_b64 {vr(self.vAcc + 2 * i, 2)}, 0' for i in range(8)]

    def stream(self):
        a = self.a
        self.vmq = []; self.lq = []; self.prologue = True; self.later = []
        a('s_mul_i32 s38, s38, 7'); a('s_add_u32 s37, s37, s38')
        if self.diag: a('s_mul_i32 s61, s36, 14'); a('s_add_u32 s61, s61, s37'); a('s_add_u32 s61, s61, 32'); self.diagbase()
        a('s_lshl_b32 s39, s37, 2'); a('s_add_u32 s39, s39, s3'); a('s_lshl_b32 s38, s39, 13')
        a('s_lshl_b32 s44, s36, 21'); a('s_add_u32 s40, s44, s38'); a(f's_add_u32 s43, s40, {3 * NW * 8192}')
        self.bits(f'v{self.vK}', 'v0', 'v18', [(0, 1, 4), (4, 2, 5), (2, 1, 10), (1, 1, 11), (3, 1, 12)])
        if not self.cla: self.claim(22, 23, 24)
        else: a('s_waitcnt lgkmcnt(0)')
        self.wpf(-1)
        self.srd(8, 66, 0x8000000)
        if self.diag: a('s_memrealtime s[98:99]')
        for p in range(self.p0): self.load(0, p, wait=False)
        if self.tlb:
            a('s_lshl_b32 s38, s3, 25'); a('s_add_u32 s38, s38, s44')
            a('s_load_dword s96, s[66:67], s38'); a('s_load_dword s97, s[68:69], s38')
            if self.tlb > 1: a('s_add_u32 s38, s38, 0x1fff00'); a('s_load_dword s96, s[66:67], s38'); a('s_load_dword s97, s[68:69], s38')
        if self.cla: self.claim(22, 23, 24); assert self.CL >= 15
        self.wpf(7)
        a(f's_lshl_b32 s47, s36, 15'); a('s_lshl_b32 s38, s37, 10'); a('s_and_b32 s48, s38, 0x2000'); a('s_add_u32 s38, s38, s48')
        a('s_add_u32 s47, s47, s38'); a(f's_add_u32 s47, s47, 0x{POFF:x}')
        a('s_lshl_b32 s48, s37, 7'); a('s_sub_u32 s48, s48, s38'); a(f's_add_u32 s48, s48, {MLO}')
        a(f'v_lshlrev_b32 v{self.vL16}, 4, v0')
        for j in range(1, 3): a(f's_add_u32 s{40+j}, s40, {j * NW * 8192}')
        self.srd(88, 66, 0); self.srd(92, 68, 0)
        if self.flex:
            a(f's_add_u32 s21, s44, {4 * NW * 8192}'); a('s_lshl_b32 s20, s36, 7'); a(f's_add_u32 s20, s20, 0x{HOFF:x}')
        else:
            if self.fx2:
                assert sum(n for n, r in self.fx2) == NW and sum(n * r for n, r in self.fx2) == 512 and self.PFA
                a(f's_add_u32 s21, s44, {4 * NW * 8192 + 0x2000000}'); a('s_lshl_b32 s20, s36, 7'); a(f's_add_u32 s20, s20, 0x{HOFF:x}')
            a('s_mul_i32 s38, s39, 9'); a('s_min_u32 s51, s37, 8'); a('s_add_u32 s38, s38, s51')
            a('s_cmp_lt_u32 s37, 8'); a('s_cselect_b32 s22, s3, 0'); a('s_cmp_eq_u32 s22, 3'); a('s_cselect_b32 s22, 10, 9'); a('s_mov_b32 s23, s22')
            a('s_lshl_b32 s38, s38, 9')
            a(f's_add_u32 s44, s44, {4 * NW * 8192}'); a('s_add_u32 s44, s44, s38')
            a('s_lshl_b32 s38, s22, 9'); a('s_add_u32 s90, s44, s38'); a('s_mov_b32 s94, s90')
        self.srd(12, 68, 0x8000000); self.srd(16, 86, 0x20000000)
        if self.wsw:
            a('s_lshl_b32 s38, s3, 20'); a('s_add_u32 s38, s38, s47'); a(f'buffer_load_dword v17, off, {WS}, s38 sc1')
        self.stamp(0); self.stamp(32, src='s34'); self.stamp(33, src='s98')
        if self.nocl: self.stamp(62, src='s100')
        self.bits(f'v{self.vV}', 'v0', 'v18', [(0, 3, 4), (5, 1, 9), (4, 1, 11), (3, 1, 12)])
        a(f's_mul_i32 s45, s3, {self.WLDS}'); a(f's_add_u32 s45, s45, {self.TB}')
        a(f'v_add_u32 v{self.vDs}, s45, v{self.vL16}')
        self.bits(f'v{self.vQo}', 'v0', 'v18', [(0, 2, 4), (4, 2, 6)])
        a('v_and_b32 v18, 2, v0'); a('v_cmp_eq_u32 vcc, 2, v18')
        a(f'v_mov_b32 v{self.vIQ}, 0x44444444'); a('v_mov_b32 v18, 0xeeeeeeee'); a(f'v_cndmask_b32 v{self.vIQ}, v{self.vIQ}, v18, vcc')
        a('v_and_b32 v18, 3, v0'); a('s_mov_b32 s38, 0x55555555'); a(f'v_mul_lo_u32 v{self.vIP}, v18, s38')
        a('v_and_b32 v18, 4, v0'); a('v_cmp_eq_u32 vcc, 4, v18')
        a('v_mov_b32 v18, 0xffff'); a('v_mov_b32 v19, 0xffff0000')
        M = self.vM
        a(f'v_cndmask_b32 v{M}, v18, 0, vcc'); a(f'v_cndmask_b32 v{M+1}, 0, v18, vcc')
        a(f'v_cndmask_b32 v{M+2}, v19, 0, vcc'); a(f'v_cndmask_b32 v{M+3}, 0, v19, vcc')
        self.bits(f'v{self.vBias}', 'v0', 'v19', [(4, 1, 0), (2, 1, 1), (1, 1, 2), (3, 1, 3), (5, 1, 4)])
        a('s_lshl_b32 s46, s3, 4'); a('s_add_u32 s46, s46, s36'); a('s_lshl_b32 s46, s46, 9')
        a('s_mov_b32 s49, 0'); a(f's_mov_b32 s51, 0x{f2u(CS):x}')
        if self.mz: a(f's_mov_b32 s50, 0x{f2u({1: 32.0, 2: 4.0, 3: -1.0}[self.mz]):x}')
        a(f's_mov_b32 s53, {self.Q1L}'); a('s_lshl_b32 s54, s3, 10'); a('s_lshl_b32 s55, s3, 3')
        a('s_lshl_b32 s56, s36, 9'); a(f's_add_u32 s56, s56, 0x{QOFF + 3 * 8192:x}')
        a('v_mov_b32 v18, 0'); a('v_mov_b32 v19, 0')
        a(f'ds_write_b64 v18, v[18:19] offset:{self.CO[0]}')
        a('s_lshl_b32 s57, s3, 8'); a(f's_add_u32 s57, s57, {self.ST}'); a('s_mov_b32 s58, 0'); a(f's_lshl_b32 s4, s5, {15 if self.nocl else 23}'); a('s_and_b32 s4, s4, 0x80000000')
        if self.lv:
            mid = self.lv.index(self.depth) if self.mid is None else self.mid
            a(f's_mov_b32 s59, {mid if not self.slow else self.slow[0]}')
            if self.slow and len(self.slow) > 3: a('s_cmp_ge_u32 s36, 8'); a(f's_cselect_b32 s59, {self.slow[3]}, s59')
            if self.cps:
                a('s_lshl2_add_u32 s24, s37, s3'); a('s_lshl_b32 s24, s24, 7'); a(f's_add_u32 s24, s24, 0x{COFF:x}')
                lo = (mid if not self.slow else self.slow[0]) - 1
                a(f's_mov_b32 s20, 0x{OOB:x}'); a(f's_mov_b32 s21, {-self.th[lo] if lo >= 0 else 100}'); a('s_mov_b32 s22, 0')
            if self.odd and not self.nocl:
                a('s_or_b32 s38, s6, s7'); a(f's_cselect_b32 s59, {mid}, s59')
                if self.cps: a(f's_cselect_b32 s21, {-self.th[-1]}, s21')
        assert not self.cps
        if self.bst: a('s_mov_b32 s26, s59')
        LP = {tuple(k): v for k, v in self.p2l}
        N1 = sum(1 for v in LP.values() for x in v if x < 40); N0 = N1 + sum(len(v) for v in self.p1l.values())
        assert N0 <= 16
        for p in range(self.p0, N0):
            self.load(0, p, wait=self.pw[min(p - self.p0, len(self.pw) - 1)] if isinstance(self.pw, list) else self.pw)
            if p == self.CL: self.armS()
            self.wpf(p)
        self.prologue = False
        entry_vmq = [(0, i) for i in range(N0)]; self.vmq = list(entry_vmq)
        nQ = self.nQ
        for s in range(2):
            a.label(f'L_A{s}')
            assert [(x[0] ^ s, x[1]) for x in self.vmq] == entry_vmq, (self.vmq, entry_vmq)
            self.lq = []
            n = N0; self.dyn = bool(self.lv)
            while n < 73:
                if self.slow and not self.fb and (s, n) == tuple(self.slow[1:3]): a(f's_max_u32 s59, s59, {mid}')
                if self.bst and n == self.bst[1]: a('s_mov_b32 s59, s26')
                if s == 0 and n in self.fine:
                    a('s_mul_i32 s99, s49, 5'); self.stamp(44 + self.fine.index(n), 's99', 18)
                for i, (c0, c1) in enumerate(self.cps):
                    r = 16 + i % 2
                    if n == c1:
                        self.need_vm(('cp', i))
                        a(f'v_readfirstlane_b32 s38, v{r}'); a(f's_sub_u32 s38, s38, s{25 + i % 2}'); a('s_mov_b32 s59, 0')
                        for t in self.th: a(f's_cmp_ge_i32 s38, {t}'); a('s_addc_u32 s59, s59, 0')
                for i, (c0, c1) in enumerate(self.cps):
                    r = 16 + i % 2
                    if n == c0:
                        assert not (c0 <= nQ + 3 and c1 > nQ) and c1 < 73
                        a(f'v_mov_b32 v{r}, 1'); a(f's_mov_b32 s{25 + i % 2}, s21'); a('s_add_u32 s21, s21, s22')
                        a('s_mov_b64 exec, 1'); a(f'buffer_atomic_add v{r}, off, {WS}, s20 sc0 sc1'); a('s_mov_b64 exec, -1')
                        self.vmq.append(('cp', i))
                if self.flex and n == self.KF:
                    self.need_vm(('cp', 0))
                    R = f's{22 + s}'
                    a('v_readfirstlane_b32 s38, v16'); a('s_add_u32 s38, s38, 1')
                    a(f's_mov_b32 {R}, {self.flex[0][1]}'); a(f's_mul_i32 s44, s38, {R}')
                    b = 0
                    for (n0, r0), (n1, r1) in zip(self.flex, self.flex[1:]):
                        b += n0
                        a(f's_sub_i32 s39, s38, {b}'); a('s_max_i32 s33, s39, 0'); a(f's_mul_i32 s33, s33, {r0 - r1}'); a('s_sub_u32 s44, s44, s33')
                        a('s_cmp_ge_i32 s39, 0'); a(f's_cselect_b32 {R}, {r1}, {R}')
                    a('s_lshl_b32 s44, s44, 9'); a('s_add_u32 s44, s44, s21'); a('s_add_u32 s21, s21, 0x2000000')
                    a(f's_lshl_b32 s90, {R}, 9'); a('s_add_u32 s90, s90, s44'); a('s_min_u32 s90, s90, s10'); a('s_mov_b32 s94, s90')
                    self.stamp(40, 's49', 18, 's38')
                if n == nQ:
                    self.need_vm((s, self.KF + 7 if self.flex else 39))
                    if s == 0:
                        a('s_cmp_eq_u32 s49, 0'); a('s_cbranch_scc1 L_st0'); st_in = list(self.vmq)
                    self.qk1(s, {('u', 1): [(s, n)], ('u', 6): [(s, n + 1)], ('x', 0): [(s, n + 2)], ('e', 0): [(s, n + 3)]}, True)
                    n += 4
                    if s == 0: a.label('L_st0r'); st_out = list(self.vmq)
                    for z in self.zero_acc(): a(z)
                    continue
                self.load(s, n)
                if s == 0 and (n == self.CL or any(x[0] == n for x in self.spf)):
                    l = self.lab('L_it0')
                    a('s_cmp_lg_u32 s49, 0'); a(f's_cbranch_scc1 {l}')
                    if n == self.CL: self.armS()
                    self.wpf(n)
                    a.label(l)
                CK = self.TK if self.flex else (self.PFA or self.PF)
                if s == 0 and n == CK - 8:
                    assert n >= nQ + 4 or (CK < nQ and n > self.CL)
                    l = self.lab('L_it0'); a('s_cmp_lg_u32 s49, 0'); a(f's_cbranch_scc1 {l}')
                    a('v_mov_b32 v22, 0'); a(f'global_load_dword v23, v22, {DBG} offset:{self.CNTA} sc1'); a.label(l)
                if s == 0 and n == CK:
                    self.stamp(22, 's49')
                    l = self.lab('L_it0'); a('s_cmp_lg_u32 s49, 0'); a(f's_cbranch_scc1 {l}')
                    a('s_waitcnt vmcnt(8)'); self.wait_counter(22, 23, 21, self.CNTA, NCHAIN, pre=True)
                    a('v_readfirstlane_b32 s27, v23'); a('s_add_u32 s27, s27, s5'); a.label(l)
                if (self.flex and n == self.TK) or (self.fx2 and n == self.PFA):
                    a('v_mov_b32 v16, 1')
                    a('s_mov_b64 exec, 1'); a(f'buffer_atomic_add v16, off, {WS}, s20 sc0 sc1'); a('s_mov_b64 exec, -1')
                    a('s_add_u32 s20, s20, 2048')
                    self.vmq.append(('cp', 0))
                if n == self.PFA:
                    assert n >= nQ + 4 and n < self.PF
                    self.qload(); self.vmq += [('cp', 'qa'), ('cp', 'qb')]
                if n == self.PF:
                    assert n >= nQ + 4
                    self.qload(); self.vmq += [('cp', 'q0'), ('cp', 'q1')]
                n += 1
            self.dyn = False
            if self.fb: a(f's_mov_b32 s59, {self.fb[1]}')
            if self.PFA:
                self.need_vm(('cp', 'qb')); keep = list(self.vmq)
                if self.fx2: a('v_readfirstlane_b32 s35, v16')
                self.stamp(1, 's49')
                self.maxtree(range(self.vQ, self.vQ + 8), 18)
                a(f's_cbranch_vccz L_Xok{s}')
                if self.nox: a('s_cmp_lg_u32 s49, 0'); a(f's_cbranch_scc1 L_Xok{s}')
                if self.fb and len(self.fb) > 2: a(f's_mov_b32 s59, {self.fb[2]}')
            def ahead(what):
                for g in what:
                    if g == 'v': a(f'buffer_load_dword v19, {V4}, s44 offen {self.xpol} lds')
                    else:
                        a(f's_add_u32 s38, s{40 + g}, 0x2000000')
                        if g == 4: a('s_mov_b32 exec_hi, 0xff')
                        a(f'buffer_load_dword v19, {K_SRD}, s38 offen {self.xpol} lds')
                        if g == 4: a('s_mov_b32 exec_hi, -1')
                    self.vmq.append(('cp', 'x'))
            if self.xpf:
                assert self.PFA and not self.flex
                a(f'v_lshlrev_b32 v19, 3, v{self.vL16}'); a(f's_mov_b32 m0, {self.TB + 4 * self.WLDS}')
                ahead(self.xpf[0])
            self.need_vm(('cp', 'q1'))
            for x in (self.xpf or [])[1:]:
                self.maxtree(range(self.vQ, self.vQ + 8), 18)
                a(f's_cbranch_vccz L_Xok{s}')
                self.qload(); ahead(x); a(f's_waitcnt vmcnt({len(x)})')
            if self.PFA: self.vmq = keep
            else: self.stamp(1, 's49')
            a.label(f'L_X{s}')
            self.maxtree(range(self.vQ, self.vQ + 8), 18)
            a(f's_cbranch_vccz L_Xok{s}')
            a.label(f'L_Xpoll{s}')
            if self.fb and len(self.fb) > 3: a('s_sub_i32 s59, s59, 1'); a(f's_max_i32 s59, s59, {self.fb[0]}')
            elif self.fb: a(f's_mov_b32 s59, {self.fb[0]}')
            self.timeout()
            self.qload()
            a('s_waitcnt vmcnt(0)')
            a(f's_branch L_X{s}')
            a.label(f'L_Xok{s}')
            self.stamp(6, 's49')
            if s == 0: a('s_cmp_eq_u32 s49, 0'); a('s_cbranch_scc1 L_first')
            save = list(self.vmq)
            if s == 1 and self.lst: a('s_cmp_eq_u32 s49, 3'); a('s_cbranch_scc1 L_last'); last_save = save
            self.pass2(s, LP)
            if self.diag: a('s_memrealtime s[28:29]')
            if s == 0:
                if not self.fin: a('s_cmp_eq_u32 s49, 4'); a('s_cbranch_scc1 L_fin')
                after = list(self.vmq)
            a.label(f'L_PV{s}')
            self.pv1f(s)
            if self.diag: self.stamp(11, 's49', src='s28')
            a('s_add_u32 s49, s49, 1'); a(f's_add_u32 s47, s47, {PIB}'); a('s_add_u32 s53, s53, 512')
            a('s_add_u32 s56, s56, 8192'); a('s_mov_b32 s46, s56')
            if self.odd and (self.odd & 1) != s and not self.fb:
                a(f's_cmp_eq_u32 s49, {self.odd}'); a(f's_cselect_b32 s59, {mid}, s59')
            if self.cps and (self.cpon & 1) != s:
                a(f's_cmp_eq_u32 s49, {self.cpon}'); a('s_cselect_b32 s20, s24, s20'); a(f's_cselect_b32 s22, 16, s22'); a('s_cselect_b32 s21, -1, s21')
                a(f's_cselect_b32 s59, {mid}, s59')
            if s == 0: first_save, first_after = save, after
        if self.lst:
            assert self.fin
            a('s_branch L_A0'); self.vmq = list(last_save); self.last()
        else: a('s_cmp_lg_u32 s49, 4'); a('s_cbranch_scc1 L_A0')
        if self.fin: self.final()
        else:
            a('s_mov_b32 s94, 0')
            for z in self.zero_acc(): a(z)
            a('s_branch L_Xpoll0')
        a.label('L_first')
        self.vmq = first_save; self.lq = []
        a('s_lshl_b32 s38, s3, 9'); a(f'v_add_u32 v18, s38, v{self.vQo}')
        a(f'ds_write_b128 v18, {vr(self.vQ, 4)} offset:{self.Q1L}')
        a(f'ds_write_b128 v18, {vr(self.vQ + 4, 4)} offset:{self.Q1L + 256}')
        for n in range(73, 80): self.load(0, n, wait=False)
        self.share()
        self.need_vm(('cp', 'q1'))
        a('s_waitcnt lgkmcnt(0)'); a('s_barrier')
        pts = [('u', 1), ('u', 4), ('u', 7), ('x', 0), ('e', 0)]; FL = {}
        for i in range(N1): FL.setdefault(pts[i * len(pts) // N1], []).append((1, i))
        self.qk1(0, FL, False)
        assert self.vmq == first_after, (self.vmq, first_after)
        a('s_branch L_PV0')
        a.label('L_fin'); self.stamp(11, 's49'); a('s_branch L_end')
        a.label('L_st0')
        self.vmq = st_in; self.dyn = bool(self.lv)
        for n in range(nQ, nQ + 4): self.load(0, n)
        self.dyn = False
        assert self.vmq == st_out, (self.vmq, st_out)
        a('s_branch L_st0r')
        for f in self.later: f()
    CKR = [64, 66, 68, 70, 72, 74, 76, 78, 80, 82]
    def clk(self):
        if self.cyc and self.ck: self.a(f's_memtime s[{self.CKR[self.ck - 1]}:{self.CKR[self.ck - 1] + 1}]'); self.ck += 1
    def last(self):
        a = self.a; Q = self.vQ; AC = self.vAcc
        a.label('L_last'); self.lq = []
        for x in self.staddr(): a(x)
        self.ds('ds_read_b96 v[20:22], v18', 'p')
        sets = [(0, 0), (0, 1), (1, 0), (1, 1), (2, 0)]
        prep = lambda i: self.aprep(*sets[i], Q + 4 * (i % 2))
        def hook(p):
            if p == ('u', 0):
                for n in (73, 74, 75): self.load(1, n, False, self.kreg(0, 0) + 4 * (n - 72))
            if p == ('u', 1):
                for n in (76, 77, 78, 79): self.load(1, n, False)
            if p[0] == 'u' and 2 <= p[1] < 6:
                for n in (52 + 2 * p[1], 53 + 2 * p[1]): self.need_vm((1, n)); self.copy(1, 0, 2, n)
            if p == ('p', 7):
                self.need_vm(('cp', 'q1')); self.need_lds('p')
                for x in prep(0)[:2]: a(x)
            if p == ('p', 8):
                for x in prep(0)[2:]: a(x)
        self.qk_part(0, hook, part=1, tb=16)
        for i, (k, P) in enumerate(sets):
            fill = self.epi_pre() if i == 4 else prep(i + 1)
            if i == 4:
                for x in fill: a(x)
                fill = []
            for t in range(4):
                b, tags = self.bop(1, 0, 2, k, P, t)
                if i < 2: self.need_vm((1, 64 + 4 * i + t)); self.copy(1, 0, 2, 64 + 4 * i + t)
                if (i, t) == (2, 0): self.need_vm((1, 72)); self.copy(1, 0, 2, 72)
                if i == 4: self.need_vm((1, 73 + 2 * t))
                for tg in tags: self.need_lds(tg)
                a(f'v_smfmac_f32_16x16x64_bf16 {vr(AC + 4 * t, 4)}, {vr(Q + 4 * (i % 2), 4)}, {rr(b, 8)}, v{self.vIP}')
                n = (len(fill) + (3 - t)) // (4 - t)
                got = fill[:n]; fill = fill[n:]
                for x in got: a(x)
                if (i, t) == (4, 2) and self.lst > 1:
                    for x in self.merge(0): a(x)
        for x in (self.merge(0) if self.lst == 1 else []) + self.merge(2): a(x)
        self.epilogue(0, 1)
        self.stamp(16, 's49')
        for n in range(72, 76): self.ds(f'ds_read_b128 {ar(4 * (n - 72), 4)}, v{self.vDs} offset:{self.ldsslot(0, n) * 1024}', ('c', n))
        for j in range(8): self.copy(0, 0, 0, 56 + j); self.copy(0, 0, 0, 64 + j)
        self.qk_part(0, lambda p: None, part=2)
        sets = [(0, 0), (0, 1), (2, 0), (1, 0), (1, 1)]
        lred = self.lred()
        def prep(i):
            k, P = sets[i]
            return (self.pack(k) if P == 0 else []) + self.aprep(k, P, Q + 4 * (i % 2))
        for x in prep(0): a(x)
        for i, (k, P) in enumerate(sets):
            fill = prep(i + 1) if i + 1 < len(sets) else []
            if i == len(sets) - 1:
                fill = lred + self.epi_pre(); lred = []
            for t in range(4):
                b, tags = self.bop(0, 0, 0, k, P, t)
                if k == 2 and t < 2: b = 256 + 8 * t
                for tg in tags: self.need_lds(tg)
                a(f'v_smfmac_f32_16x16x64_bf16 {vr(AC + 4 * t, 4)}, {vr(Q + 4 * (i % 2), 4)}, {rr(b, 8)}, v{self.vIP}')
                n = (len(fill) + (3 - t)) // (4 - t)
                got = fill[:n]; fill = fill[n:]
                if len(got) < 2 and lred: got.append(lred.pop(0))
                for x in got: a(x)
        for x in self.merge(0) + self.merge(2): a(x)
        self.epilogue(1, 1)
        self.stamp(11, 's49')
        a('s_add_u32 s49, s49, 1'); a(f's_add_u32 s47, s47, {PIB}'); a('s_add_u32 s46, s56, 8192')
        a('s_barrier')
    def final(self):
        a = self.a; Q = self.vQ; AC = self.vAcc; T = self.vT; m = self.vMC; L = self.vL
        self.lq = []; self.vmq = []
        def fb(k, P, t): return 256 + 64 + 8 * (4 * P + t) if k == 1 else self.bop(1, 0, 2, k, P, t)[0]
        for n in range(56, 72):
            a(f'ds_read_b128 {rr(256 + 64 + 8 * ((n - 56) % 8) + 4 * ((n - 56) // 8), 4)}, v{self.vDs} offset:{self.ldsslot(1, n) * 1024}')
        KA = 96; A = [136, 140, 144]; PT = 148
        for z in self.zero_acc(): a(z)
        if self.fin > 1:
            for r in range(0, 40, 2): a(f'v_mov_b64 {vr(KA + r, 2)}, 0')
            a(f'v_cmp_gt_u32 s[40:41], s23, v{self.vBias}'); a(f's_mov_b32 s42, 0x{f2u(2.0 ** 40 if self.fin == 2 else 0.0):x}')
            a('v_mov_b32 v23, 0xff800000'); a(f'v_mov_b32 v{m}, 0')
            if self.mz: a(f's_mov_b32 s43, 0x{f2u(2.0 ** -40):x}'); a(f's_mov_b32 s42, 0x{(80 << 23) if self.fin == 2 else (46 << 23) + (1 << 22) if self.fin == 4 else 0:x}')
        a.label('L_Fpoll')
        self.timeout()
        self.qload()
        a('s_waitcnt vmcnt(0) lgkmcnt(0)')
        self.maxtree(range(Q, Q + 8), 18)
        a('s_cbranch_vccnz L_Fpoll')
        self.stamp(6, 's49')
        self.ck = 1; self.clk()
        def pv(A_, k, P, t): return f'v_smfmac_f32_16x16x64_bf16 {vr(AC + 4 * t, 4)}, {vr(A_, 4)}, {rr(fb(k, P, t), 8)}, v{self.vIP}'
        if self.fin > 1:
            M = []
            for u in range(10):
                for h in range(2): M.append(f'v_smfmac_f32_16x16x64_bf16 {vr(KA + 4 * u, 4)}, {vr(Q + 4 * h, 4)}, {rr(self.kreg(1, u) + 8 * h, 8)}, v{self.vIQ}')
            M += [pv(A[0], 0, 0, t) for t in range(4)] + [pv(A[1], 0, 1, t) for t in range(4)] + [pv(A[0], 1, 0, t) for t in range(4)]
            for t in range(4): M += [pv(A[1], 1, 1, t), pv(A[2], 2, 0, t)]
            G = [[] for _ in M]
            def put(g, ops, per=1):
                for i, x in enumerate(ops): G[g + i // per].append(x)
            for u in range(10):
                ac = KA + 4 * u; t = PT + 2 * (u % 2)
                put(2 * u + 4, [f'v_add_f32 v{t+1}, v{ac+1}, v{ac+3}', f'v_add_f32 v{t}, v{ac}, v{ac+2}'], 2)
                put(2 * u + 5, [f'v_add_f32_dpp v{T + u // 4}, v{t+1}, v{t} quad_perm:[1,1,3,3] row_mask:0x{1 << (u % 4):x} bank_mask:0xf'])
            if not self.mz: put(5, [f'v_add_f32_dpp v{m}, v{PT+1}, v{PT} quad_perm:[1,1,3,3] {FULL}',
                    f'v_max_f32_dpp v{m}, v{m}, v{m} quad_perm:[2,3,0,1] {FULL}', f'v_max_f32_dpp v{m}, v{m}, v{m} row_ror:4 {FULL}',
                    f'v_max_f32_dpp v{m}, v{m}, v{m} row_ror:8 {FULL}', f'v_mul_f32 v{m}, s51, v{m}'])
            ex = lambda k: [f'v_fma_f32 v{T+k}, v{T+k}, s51, -v{m}', f'v_exp_f32 v{T+k}, v{T+k}']
            put(11, ex(0)); put(13, self.pack(0)[:2], 2); put(14, self.pack(0)[2:]); put(15, self.aprep(0, 0, A[0]), 2)
            put(17, self.aprep(0, 1, A[1])[:2], 2); put(18, self.aprep(0, 1, A[1])[2:])
            put(19, ex(1)); put(21, self.pack(1)[:2], 2); put(22, self.pack(1)[2:])
            put(23, [f'v_cndmask_b32 v{T+2}, v23, v{T+2}, s[40:41]'] + ex(2)[:1], 2); put(24, ex(2)[1:])
            put(24, self.aprep(1, 0, A[0]), 2); put(25, self.pack(2)[:1]); put(26, self.pack(2)[1:3], 2); put(27, self.pack(2)[3:4]); put(28, self.pack(2)[4:])
            put(28, self.aprep(1, 1, A[1]), 2); put(30, self.aprep(2, 0, A[2]), 2)
            lr = self.lred()
            put(26, lr[:2]); put(29, lr[2:5]); put(32, lr[5:6]); put(33, lr[6:9], 3); put(34, lr[9:], 2)
            put(32, self.epi_pre()[:2], 2); put(35, [f'v_subrev_u32 v23, s43, v{L}', 'v_cmp_lt_u32 vcc, s42, v23'] if self.mz else [f'v_cmp_lt_f32 vcc, s42, v{L}'], 2); put(35, self.epi_pre()[2:4], 2)
            put(36, ['s_bitcmp1_b32 vcc_lo, 0', 's_cbranch_scc1 L_Fslow'] + self.epi_pre()[4:], 3)
            put(37, self.merge(0), 3)
            for x, g in zip(M, G):
                a(x)
                for y in g: a(y)
            for x in self.merge(2): a(x)
            a.label('L_Fepi')
            self.clk()
            self.epilogue(1, 0, self.vH)
            self.clk()
            if self.cyc:
                for i in range(self.ck - 1): self.stamp(44 + i, src=f's{self.CKR[i]}')
            self.ck = 0
            a('s_branch L_fin')
            a.label('L_Fslow'); a('s_nop 8')
            for z in self.zero_acc(): a(z)
        self.qk_part(1, lambda p: None)
        sets = [(0, 0), (2, 0), (0, 1), (1, 0), (1, 1)]
        lred = self.lred()
        def prep(i):
            k, P = sets[i]
            return (self.pack(k) if P == 0 else []) + self.aprep(k, P, Q + 4 * (i % 2))
        for x in prep(0): a(x)
        for i, (k, P) in enumerate(sets):
            fill = prep(i + 1) if i + 1 < len(sets) else []
            if i == len(sets) - 1:
                fill = lred + self.epi_pre(); lred = []
            for t in range(4):
                a(pv(Q + 4 * (i % 2), k, P, t))
                n = (len(fill) + (3 - t)) // (4 - t)
                got = fill[:n]; fill = fill[n:]
                if len(got) < 2 and lred: got.append(lred.pop(0))
                for x in got: a(x)
        for x in self.merge(0) + self.merge(2): a(x)
        if self.fin > 1: a('s_branch L_Fepi')
        else:
            self.clk()
            self.epilogue(1, 0, self.vH)
            self.clk()
            if self.cyc:
                for i in range(self.ck - 1): self.stamp(44 + i, src=f's{self.CKR[i]}')
            self.ck = 0
            a('s_branch L_fin')
    def share(self):
        a = self.a; F = self.fx2
        if not F: return
        a('s_add_u32 s35, s35, 1'); a(f's_mov_b32 s25, {F[0][1]}'); a('s_mul_i32 s24, s35, s25')
        b = 0
        for (n0, r0), (n1, r1) in zip(F, F[1:]):
            b += n0
            a(f's_sub_i32 s39, s35, {b}'); a('s_max_i32 s33, s39, 0'); a(f's_mul_i32 s33, s33, {r0 - r1}'); a('s_sub_u32 s24, s24, s33')
            a('s_cmp_ge_i32 s39, 0'); a(f's_cselect_b32 s25, {r1}, s25')
        a('s_lshl_b32 s24, s24, 9'); a('s_add_u32 s24, s24, s21'); a('s_add_u32 s21, s21, 0x2000000')
    def armS(self):
        a = self.a
        if not self.nocl: a('s_waitcnt vmcnt(8)')
        self.confirm(24, 20)
        if not self.oarm:
            a('v_lshl_add_u32 v18, v0, 19, s48'); a('v_mov_b64 v[20:21], -1'); a('v_mov_b64 v[22:23], -1')
            a('s_lshl_b32 s38, s3, 20'); a('s_add_u32 s38, s38, s47'); a(f's_add_u32 s39, s38, {PP2}')
            a(f'buffer_store_dwordx4 v[20:23], v{self.vL16}, {WS}, s39 offen sc1')
            a('s_mov_b64 exec, 3')
            a(f'buffer_store_dwordx2 v[20:21], v18, {WS}, s38 offen sc1')
            a('s_cmp_lg_u32 s3, 0'); a('s_cselect_b64 exec, -1, 0')
            a(f'buffer_store_dwordx4 v[20:23], v{self.vL16}, {WS}, s38 offen sc1')
            a('s_mov_b64 exec, -1')
        self.stamp(30, None, 24)
    def qk_part(self, ds_, hook, zero=True, part=3, tb=18):
        a = self.a; T = self.vT; Q = self.vQ; AC = self.vAcc
        def post_a(u):
            ac = AC + 4 * (u % 4); t = tb + 2 * (u % 2)
            a(f'v_add_f32 v{t+1}, v{ac+1}, v{ac+3}'); a(f'v_add_f32 v{t}, v{ac}, v{ac+2}')
        def post_b(u):
            t = tb + 2 * (u % 2)
            a(f'v_add_f32_dpp v{T + u // 4}, v{t+1}, v{t} quad_perm:[1,1,3,3] row_mask:0x{1 << (u % 4):x} bank_mask:0xf')
        for u in range(10 if part & 1 else 0):
            ac = AC + 4 * (u % 4); k = self.kreg(ds_, u)
            a(f'v_smfmac_f32_16x16x64_bf16 {vr(ac, 4)}, {vr(Q, 4)}, {rr(k, 8)}, v{self.vIQ}')
            if u >= 3: post_a(u - 3)
            a(f'v_smfmac_f32_16x16x64_bf16 {vr(ac, 4)}, {vr(Q + 4, 4)}, {rr(k + 8, 8)}, v{self.vIQ}')
            if u >= 3: post_b(u - 3)
            hook(('u', u))
        zf = [f'v_mov_b32 v{AC + r}, 0' for r in list(range(8, 16)) + list(range(8))] if zero else []
        def Z(n=2):
            for _ in range(n):
                if zf: a(zf.pop(0))
        if part == 1:
            z2 = [f'v_mov_b64 {vr(AC + r, 2)}, 0' for r in (8, 10, 12, 14, 0, 2, 4, 6)]
            post_a(7); a(z2[0]); a(z2[1]); post_b(7); hook(('p', 7)); post_a(8); a(z2[2]); a(z2[3]); post_b(8); hook(('p', 8)); post_a(9); a(z2[4]); a(z2[5]); post_b(9); a(z2[6]); a(z2[7])
            return
        a(f'v_cmp_gt_u32 vcc, s{22 + ds_}, v{self.vBias}'); a('v_mov_b32 v23, 0xff800000')
        if part & 1: post_a(7); Z(1); post_b(7); Z(3); post_a(8); Z(1); post_b(8); Z(2); post_a(9); Z(1); post_b(9)
        else: Z(8)
        m = self.vMC; t = 18
        a(f'v_sub_f32 v{T+2}, v{T+2}, v{T+1}'); a(f'v_sub_f32 v{T+1}, v{T+1}, v{T}')
        a(f'v_cndmask_b32 v{T+2}, v23, v{T+2}, vcc')
        a(f'v_max3_f32 v{m}, v{T}, v{T+1}, v{T+2}'); Z()
        a(f'v_max_f32_dpp v{m}, v{m}, v{m} quad_perm:[2,3,0,1] {FULL}'); Z()
        a(f'v_max_f32_dpp v{m}, v{m}, v{m} row_ror:4 {FULL}'); Z()
        a(f'v_max_f32_dpp v{t}, v{m}, v{m} row_ror:8 {FULL}')
        a(f'v_max_f32_dpp v{m}, v{m}, v{m} row_ror:8 {FULL}'); Z()
        a(f'v_permlane16_swap_b32 v{m}, v{t}'); a(f'v_max_f32 v{t+1}, v{m}, v{t}'); a(f'v_max_f32 v{m}, v{m}, v{t}'); Z(8)
        a(f'v_permlane32_swap_b32 v{m}, v{t+1}'); a(f'v_max_f32 v{m}, v{m}, v{t+1}')
        a(f'v_mul_f32 v{m}, s51, v{m}')
        if self.mz:
            a(f'v_cmp_lt_f32 vcc, s50, abs(v{m})'); a(f'v_cndmask_b32 v{m}, 0, v{m}, vcc')
        for k in (0, 2, 1): a(f'v_fma_f32 v{T+k}, v{T+k}, s51, -v{m}')
        for k in (0, 2, 1): a(f'v_exp_f32 v{T+k}, v{T+k}')
        hook(('x', 0))
    def pack(self, k):
        T = self.vT
        o = [f'v_mov_b32_dpp v18, v{T+k} quad_perm:[0,0,0,0] {FULL}',
             f'v_mov_b32_dpp v19, v{T+k} quad_perm:[2,2,2,2] {FULL}',
             f'v_cvt_pk_bf16_f32 v{20+k}, v18, v19']
        if k == 2: o += [f'v_mov_b32_dpp v0, v22 row_shl:4 {FULL}', 'v_permlane32_swap_b32 v22, v0']
        return o
    def aprep(self, k, P, A):
        pp = 20 + k; M = self.vM
        if P == 0:
            return [f'v_and_b32 v{A}, v{pp}, v{M}', f'v_and_b32 v{A+2}, v{pp}, v{M+2}',
                    f'v_and_b32_dpp v{A+1}, v{pp}, v{M+1} row_shr:4 {FULL} bound_ctrl:0',
                    f'v_and_b32_dpp v{A+3}, v{pp}, v{M+3} row_shr:4 {FULL} bound_ctrl:0']
        return [f'v_and_b32 v{A+1}, v{pp}, v{M+1}', f'v_and_b32 v{A+3}, v{pp}, v{M+3}',
                f'v_and_b32_dpp v{A}, v{pp}, v{M} row_shl:4 {FULL} bound_ctrl:0',
                f'v_and_b32_dpp v{A+2}, v{pp}, v{M+2} row_shl:4 {FULL} bound_ctrl:0']
    def lred(self):
        L = self.vL; T = self.vT
        return [f'v_add_f32 v{L}, v{T}, v{T+1}',
                f'v_add_f32 v{L}, v{T+2}, v{L}',
                f'v_add_f32_dpp v{L}, v{L}, v{L} quad_perm:[2,3,0,1] {FULL}',
                f'v_add_f32_dpp v{L}, v{L}, v{L} row_ror:4 {FULL}',
                f'v_add_f32_dpp v{L}, v{L}, v{L} row_ror:8 {FULL}',
                f'v_mov_b32 v23, v{L}', f'v_permlane16_swap_b32 v{L}, v23', f'v_add_f32 v{L}, v{L}, v23',
                f'v_mov_b32 v23, v{L}', f'v_permlane32_swap_b32 v{L}, v23', f'v_add_f32 v{L}, v{L}, v23']
    def merge(self, t0):
        AC = self.vAcc; o = []
        for r in range(4): o.append(f'v_permlane32_swap_b32 v{AC + 4*t0 + r}, v{AC + 4*t0 + 4 + r}')
        for r in range(4):
            if t0 == 0: o.append(f'v_add_f32_dpp v{AC + r}, v{AC + 4 + r}, v{AC + r} row_ror:8 row_mask:0xf bank_mask:0x3')
            else: o.append(f'v_add_f32_dpp v{AC + r}, v{AC + 8 + r}, v{AC + 12 + r} row_ror:8 row_mask:0xf bank_mask:0xc')
        return o
    def staddr(self):
        return [f'v_lshrrev_b32 v18, 6, v{self.vL16}', 'v_lshl_add_u32 v18, v18, 4, s57']
    def qk1(self, s, LP, wait):
        a = self.a; Q = self.vQ
        def hook(p):
            for x in LP.get(p, []): self.load(*x, wait=wait)
        a(f'v_add_u32 v18, s53, v{self.vQo}')
        self.ds(f'ds_read_b128 {vr(Q, 4)}, v18', 'q'); self.ds(f'ds_read_b128 {vr(Q + 4, 4)}, v18 offset:256', 'q')
        for z in self.zero_acc(): a(z)
        self.need_lds('q')
        self.qk_part(s, hook, zero=False)
        pk = self.pack(0) + self.pack(2) + self.pack(1); lr = self.lred()
        while pk or lr:
            if lr: a(lr.pop(0))
            if pk: a(pk.pop(0))
        for x in self.staddr(): a(x)
        a('v_mov_b32 v19, s55')
        a('ds_write_b96 v18, v[20:22]')
        a('s_mov_b64 exec, 1')
        a(f'ds_write_b64 v19, {vr(self.vMC, 2)} offset:{self.MA1[s]}')
        a('s_mov_b64 exec, -1')
        hook(('e', 0))
    def cdst(self, fs, cu0, pi):
        if pi >= 2: pi += 2
        return self.kreg(fs, pi // 2) + 8 * (pi % 2)
    def copy(self, ds_, fs, cu0, n):
        if n >= 72: pi, half = (n - 72) // 2, (n - 72) % 2
        else: pi, half = 2 + (n - 56) % 8, (n - 56) // 8
        self.ds(f'ds_read_b128 {rr(self.cdst(fs, cu0, pi) + 4 * half, 4)}, v{self.vDs} offset:{self.ldsslot(ds_, n) * 1024}', ('c', n))
    def bop(self, ds_, fs, cu0, U, P, t):
        if U == 0: return self.vreg0(ds_, P, t), []
        if U == 1: return self.cdst(fs, cu0, 2 + 4 * P + t), [('c', 56 + 4 * P + t), ('c', 64 + 4 * P + t)]
        if t < 2: return self.cdst(fs, cu0, t), [('c', 72 + 2 * t), ('c', 73 + 2 * t)]
        if cu0: return self.kreg(fs, 1) + 8 * (t - 2), []
        return self.vH + 8 * (t - 2), []
    def pass2(self, s, LP):
        a = self.a; ds_ = 1 - s; Q = self.vQ; AC = self.vAcc
        cplan = {0: [72, 73, 74, 75], 2: [56, 64, 57, 65], 3: [58, 66, 59, 67], 4: [60, 68], 5: [61, 69], 6: [62, 70], 7: [63, 71]}
        def hook(p):
            for n in LP.get(p, []):
                if n == 73: self.need_lds(('c', 75))
                if n < 40: assert p[0] != 'u' or p[1] > self.ORD[n] // 4
                self.load(s if n >= 40 else ds_, n, wait=False)
            if p == ('u', 6): self.share()
            if p[0] == 'u':
                for n in cplan.get(p[1], []): self.copy(ds_, ds_, 0, n)
        self.qk_part(ds_, hook)
        sets = [(0, 0), (2, 0), (0, 1), (1, 0), (1, 1)]
        lred = self.lred()
        def prep(i):
            k, P = sets[i]
            return (self.pack(k) if P == 0 else []) + self.aprep(k, P, Q + 4 * (i % 2))
        self.need_vm(('cp', 'q1'))
        for x in prep(0): a(x)
        for i, (k, P) in enumerate(sets):
            fill = prep(i + 1) if i + 1 < len(sets) else []
            if i == len(sets) - 1:
                fill = lred + self.epi_pre(); lred = []
            for t in range(4):
                b, tags = self.bop(ds_, ds_, 0, k, P, t)
                for tg in tags: self.need_lds(tg)
                a(f'v_smfmac_f32_16x16x64_bf16 {vr(AC + 4 * t, 4)}, {vr(Q + 4 * (i % 2), 4)}, {rr(b, 8)}, v{self.vIP}')
                n = (len(fill) + (3 - t)) // (4 - t)
                got = fill[:n]; fill = fill[n:]
                if len(got) < 2 and lred: got.append(lred.pop(0))
                for x in got: a(x)
            hook(('i', i))
        for x in self.merge(0) + self.merge(2): a(x)
        hook(('m', 0))
        self.epilogue(1, s)
    def epi_pre(self):
        return [f'v_add_u32 v18, s54, v{self.vL16}', 'v_mov_b32 v19, s55', 'v_mov_b32 v20, 1', 'v_mov_b32 v21, 0', 'v_mov_b32 v22, s48']
    def pv1f(self, s):
        a = self.a; fs = 1 - s; Q = self.vQ; AC = self.vAcc
        self.xst = 2
        if self.fx2: a(f's_mov_b32 s{22 + fs}, s25'); self.stamp(40, 's49', 18, 's35')
        def hook(p):
            for n in self.p1l.get(p, []): self.load(fs, n, wait=False)
        for x in self.staddr(): a(x)
        self.ds('ds_read_b96 v[20:22], v18', 'p')
        hook('a')
        for z in self.zero_acc(): a(z)
        self.need_vm((s, 71))
        for n in [56, 64, 57, 65, 58, 66, 59, 67]: self.copy(s, fs, 2, n)
        self.need_lds('p')
        sets = [(0, 0), (0, 1), (1, 0), (1, 1), (2, 0)]
        prep = lambda i: self.aprep(*sets[i], Q + 4 * (i % 2))
        for x in prep(0): a(x)
        for i, (k, P) in enumerate(sets):
            last = (i == len(sets) - 1)
            fill = self.epi_pre() if last else prep(i + 1)
            if i == 1:
                for n in [60, 68, 61, 69, 62, 70, 63, 71]: self.copy(s, fs, 2, n)
            hook(str(i))
            for t in range(4):
                b, tags = self.bop(s, fs, 2, k, P, t)
                if last:
                    if t == 0:
                        self.need_vm((s, 73)); self.copy(s, fs, 2, 72); self.copy(s, fs, 2, 73)
                        self.need_vm((s, 75)); self.copy(s, fs, 2, 74); self.copy(s, fs, 2, 75)
                        for x in fill: a(x)
                        fill = []
                    if t == 2: self.need_vm((s, 77))
                    if t == 3: self.need_vm((s, 79))
                for tg in tags: self.need_lds(tg)
                a(f'v_smfmac_f32_16x16x64_bf16 {vr(AC + 4 * t, 4)}, {vr(Q + 4 * (i % 2), 4)}, {rr(b, 8)}, v{self.vIP}')
                n = (len(fill) + (3 - t)) // (4 - t)
                got = fill[:n]; fill = fill[n:]
                for x in got: a(x)
        self.xst = 0
        for x in self.merge(0) + self.merge(2): a(x)
        hook('m')
        self.epilogue(0, s)
        self.stamp(16, 's49')
        for i in range(8): a(f'v_mov_b64 {vr(self.vH + 2 * i, 2)}, {vr(self.kreg(fs, 1) + 2 * i, 2)}')
    def epilogue(self, p2, s, Zr=None):
        a = self.a; Q = self.vQ; AC = self.vAcc; m = self.vMC; L = self.vL
        CA = self.CA[p2]; MA = self.MA[1] if p2 else self.MA1[s]; CO = self.CO[p2]
        Zr = Zr or self.kreg(1 - s, 2)
        a(f'ds_write_b128 v18, {vr(AC, 4)} offset:{CA}')
        a('s_mov_b64 exec, 1')
        if p2: a(f'ds_write_b64 v19, {vr(self.vMC, 2)} offset:{MA}')
        a(f'ds_add_rtn_u32 v20, v21, v20 offset:{CO}')
        a('s_mov_b64 exec, -1')
        a(f'ds_read_b128 {vr(Q, 4)}, v21 offset:{MA}'); a(f'ds_read_b128 {vr(Q + 4, 4)}, v21 offset:{MA + 16}')
        for w in range(4): a(f'ds_read_b128 {vr(Zr + 4 * w, 4)}, v{self.vL16} offset:{CA + 1024 * w}')
        if p2: a(f's_sub_u32 s38, s47, {PIB - PP2}')
        else: a('s_mov_b32 s38, s47')
        dual = self.home and p2 != s
        if dual: a('s_add_u32 s33, s38, 0x2000'); a(f's_cmp_eq_u32 s49, {3 + p2}'); a(f's_cselect_b32 s33, s33, 0x{OOB:x}')
        a('s_waitcnt lgkmcnt(6)')
        self.clk()
        a('v_readfirstlane_b32 s39, v20'); a('s_and_b32 s39, s39, 3'); a('s_cmp_eq_u32 s39, 3')
        if p2: a('s_cselect_b32 s58, 1, 0')
        elif self.bst: a('s_mov_b32 s26, s59'); a(f's_cselect_b32 s59, {self.bst[0]}, {"s59" if len(self.bst) < 3 else self.bst[2]}')
        l = self.lab('L_nl'); a(f's_cbranch_scc0 {l}')
        a('s_waitcnt lgkmcnt(4)')
        def st(text, pre=None):
            assert self.loc
            x = self.lab('L_ls'); y = self.lab('L_ls')
            a(f's_cbranch_scc1 {x}')
            if pre: a(pre)
            a(text + ' sc1'); a(f's_branch {y}'); a.label(x); a(text); a.label(y)
        if self.mz:
            g = self.lab('L_gen'); j = self.lab('L_join')
            a(f'v_or3_b32 v{m}, v{Q}, v{Q+2}, v{Q+4}'); a(f'v_add_f32 v{L}, v{Q+1}, v{Q+3}'); a(f'v_or_b32 v{m}, v{m}, v{Q+6}'); a(f'v_add_f32 v23, v{Q+5}, v{Q+7}')
            a(f'v_cmp_eq_u32 vcc, 0, v{m}'); a(f'v_add_f32 v{L}, v{L}, v23'); a(f's_cbranch_vccz {g}')
            a('s_waitcnt lgkmcnt(2)')
            for hf in range(2): a(f'v_pk_add_f32 {vr(AC + 2*hf, 2)}, {vr(Zr + 2*hf, 2)}, {vr(Zr + 4 + 2*hf, 2)}')
            a('s_waitcnt lgkmcnt(0)')
            for hf in range(2): a(f'v_pk_add_f32 {vr(Zr + 2*hf, 2)}, {vr(Zr + 8 + 2*hf, 2)}, {vr(Zr + 12 + 2*hf, 2)}')
            for hf in range(2): a(f'v_pk_add_f32 {vr(AC + 2*hf, 2)}, {vr(AC + 2*hf, 2)}, {vr(Zr + 2*hf, 2)}')
            a.label(j)
            a(f's_cmp_eq_u32 s27, {NCHAIN + 1}')
            for r in range(4): a(f'v_min_u32 v{AC + r}, -2, v{AC + r}')
            a(f'v_and_b32 v{L}, -2, v{L}')
            x = self.lab('L_ls')
            a(f's_cbranch_scc0 {x}')
            a(f'buffer_store_dwordx4 {vr(AC, 4)}, v{self.vL16}, {WS}, s38 offen')
            a('s_mov_b64 exec, 1')
            a(f'buffer_store_dwordx2 {vr(m, 2)}, v22, {WS}, s38 offen')
            a('s_mov_b64 exec, -1')
            def rare():
                a.label(x)
                a(f'buffer_store_dwordx4 {vr(AC, 4)}, v{self.vL16}, {WS}, s38 offen sc1')
                a(f'v_or_b32 v{L}, s4, v{L}')
                a('s_mov_b64 exec, 1')
                a(f'buffer_store_dwordx2 {vr(m, 2)}, v22, {WS}, s38 offen sc1')
                a('s_mov_b64 exec, -1')
                a(f's_branch {l}')
                a.label(g)
                a(f'v_max3_f32 v{m}, v{Q}, v{Q+2}, v{Q+4}'); a(f'v_max_f32 v{m}, v{m}, v{Q+6}')
                for w in range(4): a(f'v_sub_f32 v{Q+2*w}, v{Q+2*w}, v{m}')
                for w in range(4): a(f'v_exp_f32 v{Q+2*w}, v{Q+2*w}')
                a(f'v_mul_f32 v{L}, v{Q}, v{Q+1}')
                for w in range(1, 4): a(f'v_fmac_f32 v{L}, v{Q+2*w}, v{Q+2*w+1}')
                a(f'v_min_u32 v{m}, -2, v{m}')
                a('s_waitcnt lgkmcnt(0)')
                for w in range(4):
                    for hf in range(2):
                        if w == 0: a(f'v_pk_mul_f32 {vr(AC + 2*hf, 2)}, {vr(Zr + 2*hf, 2)}, {vr(Q, 2)} op_sel_hi:[1,0]')
                        else: a(f'v_pk_fma_f32 {vr(AC + 2*hf, 2)}, {vr(Zr + 4*w + 2*hf, 2)}, {vr(Q + 2*w, 2)}, {vr(AC + 2*hf, 2)} op_sel_hi:[1,0,1]')
                a(f's_branch {j}')
            self.later.append(rare)
            a.label(l)
            a('s_waitcnt lgkmcnt(0)'); self.lq = []
            return
        a(f'v_max3_f32 v{m}, v{Q}, v{Q+2}, v{Q+4}'); a(f'v_max_f32 v{m}, v{m}, v{Q+6}')
        for w in range(4): a(f'v_sub_f32 v{Q+2*w}, v{Q+2*w}, v{m}')
        for w in range(4): a(f'v_exp_f32 v{Q+2*w}, v{Q+2*w}')
        a(f'v_mul_f32 v{L}, v{Q}, v{Q+1}')
        for w in range(1, 4): a(f'v_fmac_f32 v{L}, v{Q+2*w}, v{Q+2*w+1}')
        a(f'v_min_u32 v{m}, -2, v{m}'); a(f'v_and_b32 v{L}, -2, v{L}')
        a(f's_cmp_eq_u32 s27, {NCHAIN + 1}')
        a('s_mov_b64 exec, 1')
        st(f'buffer_store_dwordx2 {vr(m, 2)}, v22, {WS}, s38 offen', f'v_or_b32 v{L}, s4, v{L}')
        if dual: a(f'buffer_store_dwordx2 {vr(m, 2)}, v22, {WS}, s33 offen sc1')
        a('s_mov_b64 exec, -1')
        a('s_waitcnt lgkmcnt(0)')
        for w in range(4):
            for hf in range(2):
                if w == 0: a(f'v_pk_mul_f32 {vr(AC + 2*hf, 2)}, {vr(Zr + 2*hf, 2)}, {vr(Q, 2)} op_sel_hi:[1,0]')
                else: a(f'v_pk_fma_f32 {vr(AC + 2*hf, 2)}, {vr(Zr + 4*w + 2*hf, 2)}, {vr(Q + 2*w, 2)}, {vr(AC + 2*hf, 2)} op_sel_hi:[1,0,1]')
        for r in range(4): a(f'v_min_u32 v{AC + r}, -2, v{AC + r}')
        st(f'buffer_store_dwordx4 {vr(AC, 4)}, v{self.vL16}, {WS}, s38 offen')
        if dual: a(f'buffer_store_dwordx4 {vr(AC, 4)}, v{self.vL16}, {WS}, s33 offen sc1')
        a.label(l)
        a('s_waitcnt lgkmcnt(0)'); self.lq = []

    RING0 = 8192
    vGO2, vTR, vOOB, vDO, vX0O, vGO, vXR, vXW, vRES = 8, 9, 10, 11, 12, 13, 14, 15, 16
    vAC, vCS, vQS, vRO, vPO, vPO2, vMLO, vOW, vDQ, vX0 = 32, 36, 38, 39, 40, 41, 42, 43, 44, 45
    def vm(self, text, tag=None):
        self.a(text); self.cq.append(tag)
    def vmwait(self, tag):
        if tag in self.cq:
            i = len(self.cq) - 1 - self.cq[::-1].index(tag)
            k = len(self.cq) - 1 - i
            assert k <= 63
            self.a(f's_waitcnt vmcnt({k})'); self.cq = self.cq[i + 1:]
    def arm(self, q=False):
        a = self.a
        if not self.nocl: self.vmwait('init')
        self.confirm(self.vCL, 28)
        for r in range(20, 24): a(f'v_mov_b32 v{r}, -1')
        a('s_lshl2_add_u32 s38, s8, s3'); a('s_mul_i32 s38, s38, 4608'); a(f's_add_u32 s38, s38, 0x{YOFF:x}')
        for i in range(5): self.vm(f'buffer_store_dwordx4 v[20:23], v1, {WS}, s38 offen offset:{min(i * 1024, 3584)} sc1', 'arm')
        if q:
            self.bits('v28', 'v0', 'v29', [(0, 5, 4), (5, 1, 13)])
            a('s_lshl_b32 s38, s8, 9'); a('s_lshl_b32 s39, s3, 14'); a('s_add_u32 s39, s39, s38')
            self.vm(f'buffer_store_dwordx4 v[20:23], v28, {WS}, s39 offen sc1', 'arm')
        else:
            self.pquad('s38'); a('s_lshl_b32 s39, s8, 15'); a('s_add_u32 s38, s38, s39'); a(f's_add_u32 s38, s38, 0x{POFF - 16 * PB:x}')
            for i in range(4): self.vm(f'buffer_store_dwordx4 v[20:23], v1, {WS}, s38 offen offset:{i * 1024} sc1', 'arm')
    def pquad(self, d):
        self.a(f's_and_b32 {d}, s3, 2'); self.a(f's_add_u32 {d}, {d}, s3'); self.a(f's_lshl_b32 {d}, {d}, 12')
    def announce(self, bar=True):
        a = self.a
        if bar: self.vmwait('arm'); a('s_barrier')
        assert 'arm' not in self.cq
        self.signal(28, 29, self.CNTA, 's9')
        self.stamp(21, None, 30)
    def chain_common(self):
        a = self.a
        a('s_lshl4_add_u32 s2, s38, s36'); a('s_mov_b32 s8, s2'); a('s_mov_b32 s9, s5'); a('s_mov_b32 s10, 0')
        if self.diag: a('s_mov_b32 s61, s2'); self.diagbase()
        a('v_lshlrev_b32 v1, 4, v0')
        self.bits('v2', 'v0', 'v6', [(0, 1, 4), (4, 2, 5)])
        self.bits('v4', 'v0', 'v6', [(1, 1, 0), (3, 1, 2), (2, 1, 3)])
        a('s_lshl_b32 s98, s3, 13'); a(f's_add_u32 s98, s98, {self.RING0}'); a('s_movk_i32 s99, 1024')
        a('s_mul_i32 s32, s3, 7168'); a(f's_add_u32 s32, s32, {self.RING0}')
        self.claim(28, 29, self.vCL)
        self.srd(16, 86, 0x20000000)
        self.stamp(0, None, 30)
        a('s_cmp_lt_u32 s2, 16'); a('s_cbranch_scc1 L_roleOQ')
        self.cq = ['init']
        if self.wtlb:
            lo = 30 if self.wtlb == 1 else 16; nw = 4 * (32 - lo)
            a(f's_cmp_lt_u32 s2, {lo}'); a('s_cbranch_scc1 L_notlb')
            a('v_lshlrev_b32 v6, 12, v0'); a(f's_sub_u32 s33, s2, {lo}'); a('s_lshl2_add_u32 s33, s33, s3'); a('s_lshl_b32 s33, s33, 18')
            for lo_, size in ((70, 448 * 8192), (76, 448 * 3584), (78, 448 * 3584), (72, 4096 * 896), (80, 1792 * 896)):
                self.srd(20, lo_, size)
                for i in range(-(-size // (nw << 18))):
                    if i: a(f's_add_u32 s39, s33, {i * nw << 18}')
                    a(f'buffer_load_dword v64, v6, {W1}, {"s39" if i else "s33"} offen nt')
            a.label('L_notlb')
        if self.hq:
            self.srd(20, 70, 448 * 8192)
            self.bits('v6', 'v0', 'v7', [(0, 5, 4), (5, 1, 13)])
            a('s_sub_u32 s33, s2, 16'); a('s_lshl_b32 s33, s33, 9'); a('s_lshl_b32 s39, s3, 14'); a('s_add_u32 s33, s33, s39')
            a(f's_add_u32 s33, s33, {self.hq[0] * 64 * 8192}')
            for i in range(8 * (self.hq[1] - self.hq[0])):
                self.vm(f'buffer_load_dwordx4 v[64:67], v6, {W1}, s33 offen {self.hpol}', 'hq'); a('s_add_u32 s33, s33, 65536')
                if i == 0: self.stamp(61, None, 30)
                if i == 8: self.stamp(63, None, 30)
                if i == 9: self.arm()
                if i == 23: self.announce()
        self.cq0 = list(self.cq)
        a('s_cmp_lt_u32 s2, 30'); a('s_cbranch_scc1 L_roleF')
    def consts(self):
        a = self.a
        a('v_and_b32 v6, 1, v0'); a('v_cmp_eq_u32 vcc, 1, v6')
        a('v_mov_b32 v3, 0x44444444'); a('v_mov_b32 v6, 0xeeeeeeee'); a('v_cndmask_b32 v3, v3, v6, vcc')
        self.bits('v9', 'v0', 'v6', [(0, 5, 3), (5, 1, 10)])
        a('v_mul_u32_u24 v5, 6144, v6'); a('s_mul_i32 s38, s3, 1792'); a('v_add3_u32 v5, v5, v9, s38')
        a(f's_mov_b32 s57, 0x{OOB:x}'); a(f's_mov_b32 s56, 0x{OOB:x}'); a('s_mov_b32 s49, -1')
    vCL = 46
    def preready(self, streams=False):
        self.vm(f'global_load_dwordx2 v[46:47], v18, {DBG} offset:{self.CNTA} sc1', 'cnt')
    def ready(self, streams=False):
        a = self.a
        self.stamp(22, None, 28)
        self.vmwait('cnt')
        self.wait_counter(18, 46, 22, self.CNTA, NCHAIN, pre=True)
        a('s_mov_b32 s56, 0')
        if self.dual: a('s_movk_i32 s57, 0x2000')
        if self.dual and self.role != 'W':
            a('v_readfirstlane_b32 s38, v47'); a('s_getreg_b32 s10, hwreg(HW_REG_XCC_ID, 2, 1)'); a('s_xor_b32 s10, s10, s38'); a('s_and_b32 s10, s10, 1'); a('s_lshl_b32 s10, s10, 13')
            if self.diag:
                a('v_mov_b32 v28, s10'); a('v_mov_b32 v29, 0')
                a(f'buffer_store_dword v28, v29, {WS}, s61 offen offset:{62 * 4}')
        self.stamp(1, None, 28)
    def near(self):
        if not self.dual: return
        a = self.a; l = self.lab('L_nr')
        assert self.hs <= 12
        a('s_mul_i32 s38, s3, 1536'); a(f's_add_u32 s11, s38, 0x{XBOFF:x}')
        a('s_mov_b32 s4, -1'); a('s_mov_b32 s5, -1'); a(f's_mov_b32 s6, {2 * self.hs}')
        a('s_waitcnt vmcnt(0)')
        a.label(l)
        a('s_waitcnt lgkmcnt(0)'); a('s_memtime s[58:59]'); a('s_waitcnt lgkmcnt(0)')
        a(f'buffer_load_dword v28, off, {WS}, s11 sc1'); a('s_waitcnt vmcnt(0)')
        a('s_memtime s[38:39]'); a('s_waitcnt lgkmcnt(0)')
        a('s_sub_u32 s38, s38, s58'); a('s_min_u32 s38, s38, s4'); a('s_mov_b32 s4, s5'); a('s_mov_b32 s5, s38')
        a('s_xor_b32 s11, s11, 0x2000'); a('s_and_b32 s38, s6, 1'); a('s_lshl_b32 s38, s38, 7'); a('s_add_u32 s11, s11, s38')
        a('s_sub_u32 s6, s6, 1'); a('s_cmp_lg_u32 s6, 0'); a(f's_cbranch_scc1 {l}')
        a('s_cmp_gt_u32 s4, s5'); a('s_cselect_b32 s10, 0x2000, 0')
        if self.hforce is not None: a(f's_xor_b32 s10, s10, {self.hforce}')
        a('s_getreg_b32 s38, hwreg(HW_REG_XCC_ID, 2, 1)'); a('s_lshr_b32 s39, s10, 13'); a('s_xor_b32 s38, s38, s39')
        a('v_mov_b32 v28, s38'); a('v_mov_b32 v29, 0')
        a('s_cmp_eq_u32 s3, 0'); a('s_cselect_b64 exec, 1, 0')
        a(f'global_store_dword v29, v28, {DBG} offset:{self.CNTA + 4} sc1'); a('s_mov_b64 exec, -1')
        if self.diag:
            self.stamp(20, None, 28)
            a('s_lshl_b32 s38, s4, 16'); a('s_add_u32 s38, s38, s5'); a('v_mov_b32 v28, s38'); a('v_mov_b32 v29, 0')
            a(f'buffer_store_dword v28, v29, {WS}, s61 offen offset:{62 * 4}')
    def lstore(self, op, data, voff, sp, ss):
        self.a(f'buffer_store_{op} {data}, {voff}, {WS}, {ss} offen sc1')
        if self.dual: self.a(f'buffer_store_{op} {data}, {voff}, {WS}, {sp} offen sc1')
    def dma_sub(self, name, srd, voff, tab, adv):
        a = self.a
        a.label(name)
        for e in range(8):
            a(f'buffer_load_dwordx4 {voff}, {srd}, s{tab + e} offen nt lds')
            if e < 7: a('s_add_u32 m0, m0, s99')
        a(f'v_add_u32 {voff}, 0x{adv:x}, {voff}')
        a('s_setpc_b64 s[96:97]')
    def dma_subB(self, name, srd, voff):
        a = self.a
        a.label(name)
        for cb in range(7):
            a(f'buffer_load_dwordx4 {voff}, {srd}, 0 offen offset:{128 * cb} nt lds')
            if cb < 6: a('s_add_u32 m0, m0, 896')
        a(f'v_add_u32 {voff}, 0x{32 * 896:x}, {voff}')
        a('s_setpc_b64 s[96:97]')
    def poff(self, p): return p['off'] if 'off' in p else p['slot'] * 32768
    def issue(self, p):
        self.a(f's_add_u32 m0, {"s32" if p["B"] else "s98"}, {self.poff(p)}'); self.a(f's_call_b64 s[96:97], {p["sub"]}')
        self.cq += [id(p)] * (7 if p['B'] else 8)
    def readout(self, p, sel=None):
        self.a(f'v_add_u32 v6, {self.RING0 + self.poff(p)}, {"v5" if p["B"] else "v9"}')
        for d, imm in p['rd']:
            if sel is None or sel(d): self.a(f'ds_read_b64_tr_b16 {rr(d, 2)}, v6 offset:{imm}')
    def consume(self, p, nxt=None, hook=None):
        self.vmwait(id(p))
        self.a('s_waitcnt lgkmcnt(0)'); self.a('s_barrier')
        if hook: hook()
        for x in (nxt if isinstance(nxt, list) else [nxt] if nxt else []):
            if 'off' not in x: assert x['slot'] == self.lastslot, (x['slot'], self.lastslot)
            self.issue(x)
        self.readout(p); self.lastslot = p.get('slot')
    def table(self, tab, rs):
        for e in range(8): self.a(f's_mov_b32 s{tab + e}, 0x{(16 * (e & 1) + 2 * ((e >> 1) & 1) + 32 * (e >> 2)) * rs:x}')
    def typeB(self, voff, rowbase_s):
        a = self.a
        a('s_and_b32 s38, s3, 1'); a('s_lshl_b32 s38, s38, 4'); a(f's_add_u32 s38, s38, {rowbase_s}'); a('s_and_b32 s39, s3, 2'); a('s_add_u32 s38, s38, s39')
        a(f'v_add_u32 v6, s38, v4'); a(f'v_mad_u32_u24 {voff}, v6, s99, v2'); a(f'v_lshlrev_b32 v6, 7, v6'); a(f'v_sub_u32 {voff}, {voff}, v6')
    def typeB_reads(self, breg, ks, half):
        return [(breg(jj, ks) + 2 * (e1 + 2 * half), 2 * e1 * 7168 + jj * 256) for jj in range(7) for e1 in range(2)]
    def x0off(self):
        a = self.a
        a(f'v_mov_b32 v10, 0x{OOB:x}')
        self.bits('v6', 'v0', 'v7', [(0, 4, 3), (4, 1, 2), (5, 1, 7)])
        a('s_mul_i32 s38, s3, 224'); a('s_lshl_b32 s39, s3, 5'); a(f's_add_u32 s39, s39, {896 - 224}')
        a('v_cmp_gt_u32 vcc, 224, v6')
        a('v_add_u32 v15, s38, v6'); a('v_add_u32 v6, s39, v6')
        a('v_cndmask_b32 v12, v10, v15, vcc'); a('v_cndmask_b32 v15, v6, v15, vcc')
        a('s_lshl_b32 s38, s3, 9'); a('v_lshl_add_u32 v14, v0, 3, s38'); a('v_cndmask_b32 v14, v10, v14, vcc')
    def gather_offs(self):
        a = self.a
        self.bits('v13', 'v0', 'v6', [(0, 4, 4), (4, 1, 12), (5, 1, 14)])
        a('s_lshl_b32 s38, s3, 8'); a('v_add_u32 v13, s38, v13'); a(f'v_lshl_add_u32 v{self.vRO}, v0, 2, s38')
        a('v_cmp_gt_u32 vcc, 48, v0'); a('v_mov_b32 v18, 0'); a('v_mov_b32 v19, 0'); a('v_cndmask_b32 v8, v10, v13, vcc')
        a('v_and_b32 v6, 8, v0'); a('v_cmp_eq_u32 vcc, 8, v6'); a('v_mov_b32 v6, 0x3c00'); a('v_mov_b32 v7, 0x3c000000')
        a('v_cndmask_b32 v6, v6, v7, vcc'); a('v_and_b32 v7, 7, v0')
        for r, key in enumerate((0, 1, 4, 5)):
            a(f'v_cmp_eq_u32 vcc, {key}, v7'); a('s_nop 1'); a(f'v_cndmask_b32 v{self.vAC + r}, 0, v6, vcc')
    def resid_poll(self, soff):
        a = self.a; l = self.lab('L_rp')
        a.label(l)
        self.timeout()
        a(f'buffer_load_dwordx2 v[16:17], v14, {WS}, {soff} offen sc1'); a('s_waitcnt vmcnt(0)')
        a('v_max_u32 v6, v16, v17'); a('v_cmp_eq_u32 vcc, -1, v6'); a(f's_cbranch_vccnz {l}')
    def repoll(self, loads, full, comp, done):
        a = self.a; p = self.lab('L_mp'); i_ = self.lab('L_mi')
        M = ['vcc' if i == 4 else f's[{88 + 2 * i}:{89 + 2 * i}]' for i in range(len(loads))]
        def masks(to):
            for m, (r, t) in zip(M, loads): a(f'v_cmp_eq_u32 {m}, -1, v{r}')
            a(f's_or_b64 s[38:39], {M[0]}, {M[1]}')
            for m in M[2:]: a(f's_or_b64 s[38:39], s[38:39], {m}')
            a(f's_cbranch_scc0 {to}')
        if done:
            r_ = self.lab('L_mr'); a(f's_cbranch_vccnz {r_}')
            a('s_cmp_eq_u32 s38, 0'); a(f's_cbranch_scc1 {full}'); a(f's_branch {done}')
            a.label(r_)
        masks(full); a(f's_branch {i_}')
        a.label(p)
        masks(comp)
        a.label(i_)
        self.timeout()
        for m, (r, t) in list(zip(M, loads))[4:] + list(zip(M, loads))[:4]: a(f's_mov_b64 exec, {m}'); a(t)
        a('s_mov_b64 exec, -1')
        a(f's_waitcnt vmcnt({len(loads) * (self.mp - 1)})')
        a(f's_branch {p}')
    def gather_sum(self, soff, G, full, res=None):
        a = self.a; l = self.lab('L_g'); d = self.lab('L_gd'); c = self.lab('L_gc')
        mp = self.mp and self.role in self.mpr
        a.label(l)
        self.timeout()
        ld = [(G + 4 * i, f'buffer_load_dwordx4 {vr(G + 4 * i, 4)}, {"v13" if full or i < 2 else "v8"}, {WS}, {soff} offen offset:{1024 * i} sc1') for i in range(4)]
        if res: ld.append((16, f'buffer_load_dwordx2 v[16:17], v14, {WS}, {res} offen sc1'))
        for r, t in ld[4:] + ld[:4]: a(t)
        def comp(w):
            for i in range(4):
                if w: a(f's_waitcnt vmcnt({3 - i})')
                a(f'v_mfma_f32_16x16x32_f16 v[20:23], {vr(self.vAC, 4)}, {vr(G + 4 * i, 4)}, {"v[16:19]" if i == 0 else "v[20:23]"}')
            a('v_cmp_u_f32 vcc, v20, v21')
            a('v_cvt_pk_bf16_f32 v24, v20, v21')
        comp(True)
        a(f's_cbranch_vccz {d}')
        self.maxtree(list(range(G, G + 16)) + ([16, 17] if res else []), 6)
        if mp:
            a(f's_cbranch_vccz {d}')
            self.repoll(ld, l, c, None)
            a.label(c); comp(False); a(f's_cbranch_vccnz {l}')
        else: a(f's_cbranch_vccnz {l}')
        a.label(d)
    def xrow_ops(self, sp, ss):
        return ['v_lshlrev_b32 v20, 16, v24', 'v_and_b32 v21, 0xffff0000, v24',
                f'buffer_store_dwordx2 v[20:21], v14, {WS}, {ss} offen sc1'] + ([f'buffer_store_dwordx2 v[20:21], v14, {WS}, {sp} offen sc1'] if self.dual else [])
    def stats_ops(self, X):
        o = []
        for i in range(4):
            o += [f'v_lshlrev_b32 v26, 16, v{X+i}', f'v_and_b32 v27, 0xffff0000, v{X+i}']
            if i == 0: o += ['v_add_f32 v28, v26, v27', 'v_mul_f32 v30, v26, v26', 'v_fmac_f32 v30, v27, v27']
            else: o += ['v_add_f32 v28, v28, v26', 'v_fmac_f32 v30, v26, v26', 'v_add_f32 v28, v28, v27', 'v_fmac_f32 v30, v27, v27']
        o += [f'v_mov_b32 v26, 0x{f2u(1/448):x}', f'v_mov_b32 v27, 0x{f2u(1e-5):x}', 'v_permlane16_swap_b32 v28, v30', 'v_add_f32 v28, v28, v30']
        for c in ('quad_perm:[1,0,3,2]', 'quad_perm:[2,3,0,1]', 'row_ror:4'):
            o += [None, f'v_add_f32_dpp v28, v28, v28 {c} {FULL}']
        o += [None, f'v_add_f32_dpp v29, v28, v28 row_ror:8 {FULL}', f'v_add_f32_dpp v28, v28, v28 row_ror:8 {FULL}', None,
              'v_permlane32_swap_b32 v28, v29', 'v_add_f32 v28, v28, v29', None,
              'v_readlane_b32 s58, v28, 0', 'v_readlane_b32 s59, v28, 16', None,
              'v_mul_f32 v24, s58, v26', 'v_fmac_f32 v27, s59, v26',
              'v_fma_f32 v27, -v24, v24, v27', 'v_rsq_f32 v25, v27']
        return o
    def gemv(self, ntile, nks, breg, acc, A, fill=(), nother=0):
        a = self.a; fill = list(fill)
        for ks in range(nks):
            a(f's_waitcnt lgkmcnt({min(15, nks - 1 - ks + nother)})')
            for jj in range(ntile):
                a(f'v_smfmac_f32_16x16x64_bf16 {vr(acc + 4 * jj, 4)}, {vr(A + 4 * ks, 4)}, {rr(breg(jj, ks), 8)}, v3')
                for _ in range(2):
                    if fill:
                        x = fill.pop(0)
                        if x: a(x)
        for x in fill:
            if x: a(x)
    def zero(self, base, n):
        for i in range(0, n, 2): self.a(f'v_mov_b64 {vr(base + i, 2)}, 0')
    def rowsel(self, dst, acc, tiles_masks):
        for jj, rm in tiles_masks:
            self.a(f'v_add_f32_dpp v{dst}, v{acc + 4*jj}, v{acc + 4*jj + 1} quad_perm:[0,1,2,3] row_mask:0x{rm:x} bank_mask:0xf')
    def rowout(self, acc, sp, ss):
        a = self.a
        for jj in range(4): self.rowsel(20, acc, [(jj, 1 << jj)])
        for jj in range(3): self.rowsel(21, acc, [(4 + jj, 1 << jj)])
        a('v_cvt_pk_f16_f32 v20, v20, v21'); a('v_min_u32 v20, -2, v20')
        self.lstore('dword', 'v20', f'v{self.vRO}', sp, ss)
    def calc_ib(self):
        a = self.a
        a('s_lshl_b32 s38, s49, 2'); a(f's_lshr_b32 s50, {"0x76352410" if self.reord else "0x73625140"}, s38'); a('s_and_b32 s50, s50, 7')
    def colsum(self, ntile, nks, breg, acc):
        a = self.a
        for r in range(4): a(f'v_mov_b32 v{20 + r}, 0x3f803f80')
        self.zero(acc, 4 * ntile)
        for ks in range(nks):
            for jj in range(ntile):
                a(f'v_smfmac_f32_16x16x64_bf16 {vr(acc + 4 * jj, 4)}, v[20:23], {rr(breg(jj, ks), 8)}, v3')
    def pinit(self, ib0):
        a = self.a
        for r in range(20, 24): a(f'v_mov_b32 v{r}, -1')
        a(f's_add_u32 s38, s3, {ib0}'); a('s_lshl_b32 s38, s38, 18'); a('s_add_u32 s38, s38, s41')
        a('v_lshlrev_b32 v6, 4, v0')
        for i in range(16):
            if i and i % 4 == 0: a('s_add_u32 s38, s38, 4096')
            self.vm(f'buffer_store_dwordx4 v[20:23], v6, {WS}, s38 offen offset:{(i % 4) * 1024} sc1', 'pinit')

    def roleOQ(self):
        a = self.a
        TOG = ['v_xor_b32 v15, 0x400, v15', 'v_xor_b32 v2, 0x400, v2', 'v_xor_b32 v1, 0x400, v1', f'v_xor_b32 v{self.vOW}, 0x400, v{self.vOW}']
        def qreg(jj, ks): return 96 + (ks * 4 + jj) * 8
        def oreg(jj, ks):
            if ks == 3 and jj < 4: return 288 + 8 * jj
            i = jj * 3 + ks if ks < 3 else 21 + jj - 4
            return 320 + 8 * i
        inwin = lambda d: 288 <= d < 320
        X0 = 4
        self.dma_sub('L_dmaQ', W1, f'v{self.vDQ}', 88, 64 * 8192)
        self.dma_subB('L_dmaO', W2, f'v{self.vDO}')
        P = 76; ML = 92; ACC = 48; A = 76
        a.label('L_Osub')
        self.calc_ib()
        a('s_and_b32 s38, s50, 3'); a('s_lshl_b32 s44, s38, 20'); a('s_add_u32 s44, s44, s41')
        a('s_cmp_eq_u32 s38, 3'); a('s_cselect_b32 s38, s55, 0'); a('s_add_u32 s44, s44, s38')
        a('s_lshr_b32 s38, s50, 2'); a('s_lshl_b32 s38, s38, 19'); a('s_add_u32 s44, s44, s38')
        a('s_add_u32 s45, s44, 4096'); a('s_add_u32 s46, s44, 16384'); a('s_add_u32 s47, s44, 20480')
        a('s_lshl_b32 s48, s50, 15'); a('s_add_u32 s48, s48, s40'); a('s_add_u32 s51, s48, s56'); a('s_add_u32 s48, s48, s57')
        self.zero(ACC, 28)
        a('s_cmp_lt_i32 s49, 0'); a('s_cbranch_scc1 L_Ook')
        a.label('L_Oheavy')
        self.timeout()
        ld = [(P + 4 * n, f'buffer_load_dwordx4 {vr(P + 4*n, 4)}, v{self.vPO2 if n == 3 else self.vPO}, {WS}, s{44+n} offen sc1') for n in range(4)]
        ld.append((ML, f'buffer_load_dwordx2 {vr(ML, 2)}, v{self.vMLO}, {WS}, s44 offen sc1'))
        for r, t in ld[4:] + ld[:4]: a(t)
        if self.mp and 'P' in self.mpr: a('s_mov_b32 s38, 1')
        a.label('L_Ocomp')
        a('s_waitcnt vmcnt(4)')
        a(f'v_max_f32_dpp v20, v{ML}, v{ML} quad_perm:[1,0,3,2] {FULL}')
        for c in ('quad_perm:[2,3,0,1]', 'row_ror:4', 'row_ror:8'): a(f'v_max_f32_dpp v20, v20, v20 {c} {FULL}')
        a(f'v_sub_f32 v20, v{ML}, v20'); a('v_exp_f32 v20, v20'); a('v_cndmask_b32 v20, 0, v20, s[42:43]')
        a(f'v_mul_f32 v21, v20, abs(v{ML+1})')
        lred = [f'v_add_f32_dpp v21, v21, v21 {c} {FULL}' for c in ('quad_perm:[1,0,3,2]', 'quad_perm:[2,3,0,1]', 'row_ror:4', 'row_ror:8')]
        for n in range(4):
            a(f's_waitcnt vmcnt({3 - n})')
            for r in range(4):
                a(f'v_{"mul" if n == 0 else "fmac"}_f32_dpp v{24 + r}, v20, v{P + 4*n + r} row_newbcast:{n} {FULL}')
            a(lred[n])
        a('v_permlane16_swap_b32 v24, v25'); a('v_permlane16_swap_b32 v26, v27'); a('v_rcp_f32 v21, v21')
        a('v_add_f32 v24, v24, v25'); a('v_add_f32 v26, v26, v27')
        a('v_permlane32_swap_b32 v24, v26'); a('v_add_f32 v24, v24, v26'); a('v_mul_f32 v24, v24, v21')
        a('v_cmp_u_f32 vcc, v24, v24')
        a('v_cvt_pk_bf16_f32 v24, v24, v24')
        a('s_cbranch_vccz L_Ook0')
        self.maxtree(list(range(P, P + 16)) + [ML, ML + 1], 6)
        if self.mp and 'P' in self.mpr: self.repoll(ld, 'L_Oheavy', 'L_Ocomp', 'L_Ook0')
        else: a('s_cbranch_vccnz L_Oheavy')
        a.label('L_Ook0')
        if self.split:
            a('s_cmp_lg_u32 s49, 0'); a('s_cbranch_scc1 L_Ook')
            a('s_setpc_b64 s[34:35]')
        a.label('L_Ook')
        a(f'ds_write_b16 v{self.vOW}, v24'); a('s_waitcnt lgkmcnt(0)'); a('s_barrier')
        for ks in range(4): a(f'ds_read_b128 {vr(A + 4*ks, 4)}, v2 offset:{128 * ks}')
        self.stamp(3, 's49', 28)
        self.gemv(7, 4, oreg, ACC, A, fill=TOG + ['v_mov_b32 v21, 0'])
        self.rowout(ACC, 's48', 's51')
        self.stamp(12, 's49', 28)
        a('s_add_u32 s49, s49, 1')
        a('s_setpc_b64 s[34:35]')
        G = 64; ACC = 48; A = 64; X = 92
        a.label('L_Qsub')
        self.zero(ACC, 16)
        a('s_lshl_b32 s44, s53, 13'); a('s_add_u32 s44, s44, s54')
        a('s_lshl_b32 s38, s53, 11'); a(f's_add_u32 s47, s38, 0x{XAOFF - 4 * 2048:x}'); a('s_add_u32 s47, s47, s10')
        a('s_add_u32 s45, s38, s33'); a('s_add_u32 s46, s45, s56'); a('s_add_u32 s45, s45, s57')
        a('s_lshl_b32 s48, s53, 15'); a(f's_add_u32 s48, s48, 0x{ZOFF - 4 * 32768:x}'); a('s_add_u32 s48, s48, s10')
        a('s_cmp_lt_u32 s53, 4'); a('s_cbranch_scc1 L_Qx')
        if not self.mres: self.resid_poll('s47')
        self.gather_sum('s48', G, False, 's47' if self.mres else None)
        a.label('L_Qx')
        a('ds_write_b32 v15, v24'); a('s_waitcnt lgkmcnt(0)'); a('s_barrier')
        if self.mp and 'O' in self.mpr:
            l = self.lab('L_qw'); a('s_cmp_lt_u32 s53, 4'); a(f's_cbranch_scc1 {l}'); a('s_waitcnt vmcnt(0)'); a.label(l)
        for ks in range(7): a(f'ds_read_b128 {vr(A + 4*ks, 4)}, v2 offset:{128 * ks}')
        a(f'ds_read_b128 {vr(X, 4)}, v1')
        for x in self.xrow_ops('s45', 's46'): a(x)
        self.stamp(24, 's53', 28)
        fill = TOG + [None, 's_waitcnt lgkmcnt(0)'] + self.stats_ops(X)
        self.gemv(4, 7, qreg, ACC, A, fill=fill, nother=1)
        a(f'v_mul_f32 v21, v24, v{self.vCS}'); a('s_cmp_eq_u32 s9, 1')
        self.rowsel(20, ACC, [(jj, 1 << jj) for jj in range(4)])
        a('v_sub_f32 v20, v20, v21'); a('v_mul_f32 v20, v20, v25')
        a('v_cvt_pk_bf16_f32 v20, v20, v20'); a('v_min_u32 v20, -2, v20')
        if self.loc:
            a('s_cbranch_scc1 L_Qloc')
            a(f'buffer_store_short v20, v{self.vQS}, {WS}, s44 offen sc1'); a('s_branch L_Qst')
            a.label('L_Qloc'); a(f'buffer_store_short v20, v{self.vQS}, {WS}, s44 offen'); a.label('L_Qst')
        else: a(f'buffer_store_short v20, v{self.vQS}, {WS}, s44 offen sc1')
        self.stamp(33, 's53', 28)
        if self.oarm: a('s_lshl_b32 s38, s53, 20'); a('s_add_u32 s38, s38, s11'); a(f's_add_u32 s39, s38, {PP2}')
        a('s_add_u32 s53, s53, 1')
        if self.oarm:
            a('s_cmp_eq_u32 s53, 8'); a('s_cbranch_scc1 L_Qret')
            a('v_mov_b64 v[24:25], -1'); a('v_mov_b64 v[26:27], -1'); a('v_lshlrev_b32 v6, 4, v0')
            for i in range(8): a(f'buffer_store_dwordx4 v[24:27], v6, {WS}, s{38 + i // 4} offen offset:{i % 4 * 1024} sc1')
            a.label('L_Qret')
        a('s_setpc_b64 s[34:35]')
        a.label('L_roleOQ')
        self.stamp(61, None, 30)
        self.cq = ['init']
        a('s_lshl_b32 s38, s2, 9')
        self.srd(20, 70, 448 * 8192)
        a('s_lshl_b32 s39, s3, 7'); a('s_add_u32 s38, s38, s39')
        a(f'v_lshl_add_u32 v{self.vDQ}, v4, 13, s38'); a(f'v_add_u32 v{self.vDQ}, v{self.vDQ}, v2')
        self.table(88, 8192)
        R4 = self.ring4
        pq = [dict(sub='L_dmaQ', B=0, slot=(ks + 2 * R4) % 4, rd=[(qreg(jj, ks) + 2 * rp, rp * 2048 + jj * 256) for jj in range(4) for rp in range(4)]) for ks in range(7)]
        po = [dict(sub='L_dmaO', B=1, slot=(3, 0, 1)[i % 3], rd=self.typeB_reads(oreg, i // 2, i % 2)) for i in range(8)]
        if R4:
            for i, p in enumerate(po): p['off'] = 32768 + 28672 * (i % 4)
        self.issue(pq[0])
        self.stamp(63, None, 30)
        self.srd(28, 64, 3584)
        XL = 48
        a(f'v_mov_b32 v10, 0x{OOB:x}')
        a('v_cmp_gt_u32 vcc, 56, v0'); a('v_bfe_u32 v7, v0, 2, 2'); a('v_mul_u32_u24 v7, 896, v7'); a('v_cndmask_b32 v6, v10, v1, vcc')
        for b in range(4): self.vm(f'buffer_load_dwordx4 {vr(XL + 4 * b, 4)}, v6, {W3}, 0 offen offset:{b * 896}', 'xl')
        a('v_add_u32 v7, v7, v2')
        a('s_mov_b32 s38, 0x3f803f80'); a('s_mov_b32 s39, s38')
        for r in range(0, 28, 2): a(f'v_mov_b64 {vr(A + r, 2)}, s[38:39]')
        a('s_mov_b32 exec_lo, 0x33333333'); a('s_mov_b32 exec_hi, 0x33333333')
        for ks in range(7): self.vm(f'buffer_load_dwordx4 {vr(A + 4 * ks, 4)}, v7, {W3}, 0 offen offset:{128 * ks}', 'xa')
        a('s_mov_b64 exec, -1')
        if not self.ean: self.issue(pq[1])
        self.stamp(56, None, 30)
        self.srd(24, 72, 4096 * 896)
        a('s_lshl_b32 s39, s2, 8')
        self.typeB(f'v{self.vDO}', 's39')
        self.consts(); a('s_lshl_b32 s38, s3, 13'); a('v_add_u32 v9, s38, v9')
        if self.up4: self.issue(pq[2]); self.issue(pq[3])
        self.stamp(57, None, 30)
        self.arm(True)
        self.stamp(58, None, 30)
        if not self.up4: self.issue(pq[1 if self.ean else 2])
        self.vmwait('xl')
        self.stamp(59, None, 30)
        for b in range(4):
            for x in self.stats_ops(XL + 4 * b):
                if x: a(x)
            a(f'v_mov_b32_dpp v92, v24 quad_perm:[0,1,2,3] row_mask:0x{1 << b:x} bank_mask:0xf')
            a(f'v_mov_b32_dpp v93, v25 quad_perm:[0,1,2,3] row_mask:0x{1 << b:x} bank_mask:0xf')
        if self.ean: self.announce(); self.issue(pq[2])
        if not self.up4: self.issue(pq[3])
        self.zero(ACC, 16)
        self.bits('v94', 'v0', 'v6', [(0, 1, 1), (2, 1, 2), (3, 1, 4), (1, 1, 5), (4, 2, 13)])
        a('s_lshl_b32 s38, s3, 7'); a('s_lshl_b32 s44, s2, 9'); a('s_add_u32 s44, s38, s44')
        self.stamp(60, None, 30)
        nxt = {1: pq[4], 2: pq[5], 3: pq[6], 4: po[0]}
        if R4 == 1: nxt[5] = po[1]; nxt[6] = [po[2], po[3]]
        def q1mm(ks):
            for jj in range(4): a(f'v_smfmac_f32_16x16x64_bf16 {vr(ACC + 4 * jj, 4)}, {vr(A + 4 * ks, 4)}, {rr(qreg(jj, ks), 8)}, v3')
        hooks = {} if self.ean else {(3 if self.up4 else 2): lambda: self.announce(False)}
        for i in range(7):
            if i == 3: self.vmwait('arm')
            self.consume(pq[i], nxt.get(i), hooks.get(i))
            self.stamp(41 + i, None, 26)
            if i: q1mm(i - 1)
        a('s_waitcnt lgkmcnt(0)')
        q1mm(6)
        self.stamp(20, None, 28)
        for jj in range(4):
            a(f'v_add_f32 v{20 + jj}, v{ACC + 4*jj}, v{ACC + 4*jj + 1}'); a(f'v_add_f32 v{24 + jj}, v{ACC + 4*jj + 2}, v{ACC + 4*jj + 3}')
        for jj in range(4): a(f'v_fma_f32 v{20 + jj}, -v92, v{24 + jj}, v{20 + jj}')
        for jj in range(4): a(f'v_mul_f32 v{20 + jj}, v{20 + jj}, v93')
        for jj in range(4): a(f'v_cvt_pk_bf16_f32 v{20 + jj}, v{20 + jj}, v{20 + jj}')
        for jj in range(4): a(f'v_min_u32 v{20 + jj}, -2, v{20 + jj}')
        for jj in range(4): self.vm(f'buffer_store_short v{20 + jj}, v94, {WS}, s44 offen offset:{(jj & 1) * 8 + (jj >> 1) * 64} sc1')
        for jj in range(4): a(f'v_mov_b32_dpp v{self.vCS}, v{24 + jj} quad_perm:[0,1,2,3] row_mask:0x{1 << jj:x} bank_mask:0xf')
        self.stamp(35, None, 28)
        if R4 != 1: self.issue(po[1]); self.issue(po[2])
        if R4 == 3: self.issue(po[3])
        a('s_mov_b32 s55, 0'); a(f's_lshl_b32 s41, s2, 15'); a(f's_add_u32 s41, s41, 0x{POFF:x}')
        if self.oarm: self.pquad('s11'); a('s_add_u32 s11, s11, s41'); a(f's_sub_u32 s11, s11, {3 * PIB - PP2}')
        self.x0off(); self.gather_offs()
        a('s_lshl_b32 s40, s2, 10'); a('s_and_b32 s38, s40, 0x2000'); a('s_add_u32 s40, s40, s38'); a(f's_add_u32 s40, s40, 0x{YOFF:x}')
        PO, PO2, MO, OW = self.vPO, self.vPO2, self.vMLO, self.vOW
        self.bits(f'v{PO}', 'v0', 'v6', [(0, 4, 4), (4, 2, 10)])
        a('s_lshl_b32 s38, s3, 8'); a(f'v_add_u32 v{PO}, s38, v{PO}')
        a('v_cmp_gt_u32 vcc, 32, v0'); a('v_lshrrev_b32 v6, 4, v0'); a('v_bfe_u32 v7, v0, 2, 2'); a(f'v_cndmask_b32 v{PO2}, v10, v{PO}, vcc')
        a('v_add_u32 v6, v6, v7'); a('v_and_b32 v6, 3, v6')
        a('v_and_b32 v7, 3, v0'); a('v_lshl_add_u32 v6, v7, 2, v6')
        a(f'v_cmp_gt_u32 s[42:43], {NC}, v6'); a(f'v_min_u32 v6, {NC - 1}, v6'); a(f'v_lshlrev_b32 v{MO}, 7, v6'); a(f'v_add_u32 v{MO}, {MLO}, v{MO}')
        self.bits(f'v{OW}', 'v0', 'v6', [(4, 2, 1), (0, 3, 4), (3, 1, 8)])
        a('s_lshr_b32 s38, s3, 1'); a('s_lshl_b32 s38, s38, 7'); a('s_and_b32 s39, s3, 1'); a('s_lshl_b32 s39, s39, 3'); a('s_add_u32 s38, s38, s39')
        a(f'v_add_u32 v{OW}, s38, v{OW}')
        self.bits(f'v{self.vQS}', 'v0', 'v6', [(0, 1, 1), (2, 1, 2), (4, 1, 3), (3, 1, 4), (1, 1, 5), (5, 1, 6)])
        a('s_lshl_b32 s38, s3, 7'); a(f'v_add_u32 v{self.vQS}, s38, v{self.vQS}')
        a('s_cmp_eq_u32 s2, 0'); a(f's_cselect_b32 s33, 0x{XBOFF - 4 * 2048:x}, s57')
        a('s_mov_b32 s53, 3'); a(f's_mov_b32 s54, 0x{OOB:x}')
        for i in range(8):
            self.consume(po[i], (po[i + 3] if 1 <= i < 5 else None) if R4 else po[i + 2] if 1 <= i < 6 else None, (lambda: self.preready(True)) if i == (4 if self.split else 5) else None)
            self.stamp(48 + i, None, 28)
            if i == 1: a('s_call_b64 s[34:35], L_Osub')
            if i == 2: a('s_call_b64 s[34:35], L_Qsub'); a('s_lshl_b32 s54, s2, 9')
            if i == 5 and self.split:
                self.ready(True); a('s_call_b64 s[34:35], L_Osub'); self.cq = []
                a(f'v_cmp_gt_i32 vcc, 0, v{ML+1}'); a('s_cmp_lg_u64 vcc, 0'); a('s_addc_u32 s9, s9, 0')
        assert self.split and self.reord
        self.stamp(1, None, 28)
        a('s_call_b64 s[34:35], L_Ook')
        a.label('L_OQloop')
        a(f's_movk_i32 s38, 0x{self.qmask:x}'); a('s_bitcmp1_b32 s38, s49'); a('s_cbranch_scc0 L_OQin')
        self.readout(pq[6])
        a('s_call_b64 s[34:35], L_Qsub')
        self.readout(po[6], inwin); self.readout(po[7], inwin)
        a.label('L_OQin')
        a('s_call_b64 s[34:35], L_Osub')
        a('s_cmp_lt_u32 s49, 8'); a('s_cbranch_scc1 L_OQloop')
        a('s_branch L_end')

    def roleF(self):
        a = self.a
        self.dma_sub('L_dmaG', W1, 'v44', 88, 64 * 3584)
        self.dma_subB('L_dmaD', W3, 'v11')
        breg = lambda jj, ks: 256 + (jj * 7 + ks) * 8
        def dreg(jj, ks):
            i = jj * 2 + ks
            return 256 + 224 + 8 * i if i < 4 else 176 + 8 * (i - 4)
        G = 64; ACC = 48; A = 96; X = 124; CSUM = self.vCS; ACD = 128; X0 = 160
        a.label('L_Fsub')
        self.calc_ib()
        self.zero(ACC, 16); self.zero(ACD, 28)
        a('s_lshl_b32 s38, s50, 15'); a(f's_add_u32 s48, s38, 0x{YOFF:x}'); a('s_add_u32 s48, s48, s10')
        a('s_add_u32 s44, s38, s40'); a('s_add_u32 s51, s44, s56'); a('s_add_u32 s44, s44, s57')
        a('s_lshl_b32 s38, s50, 11'); a(f's_add_u32 s47, s38, 0x{XBOFF - 4 * 2048:x}'); a('s_add_u32 s47, s47, s10')
        a('s_and_b32 s39, s38, 0x2000'); a('s_add_u32 s38, s38, s39')
        a('s_add_u32 s45, s38, s41'); a('s_add_u32 s46, s45, s56'); a('s_add_u32 s45, s45, s57')
        a('s_cmp_lt_i32 s49, 0'); a('s_cbranch_scc1 L_Fx')
        a('s_bitcmp1_b32 s50, 2'); a('s_cbranch_scc1 L_Fr')
        a(f'v_lshlrev_b32 v16, 16, v{X0}'); a(f'v_and_b32 v17, 0xffff0000, v{X0}')
        for i in range(3): a(f'v_mov_b32 v{X0 + i}, v{X0 + i + 1}')
        a('s_branch L_Fg')
        a.label('L_Fr')
        self.resid_poll('s47')
        a.label('L_Fg')
        self.gather_sum('s48', G, True)
        a.label('L_Fx')
        a('ds_write_b32 v15, v24'); a('s_waitcnt lgkmcnt(0)'); a('s_barrier')
        for ks in range(7): a(f'ds_read_b128 {vr(A + 4*ks, 4)}, v2 offset:{128 * ks}')
        a(f'ds_read_b128 {vr(X, 4)}, v1')
        for x in self.xrow_ops('s45', 's46'): a(x)
        self.stamp(3, 's49', 28)
        if self.diag: self.stamp(24, 's49', 28, 's52')
        fill = [None] * 5 + ['s_waitcnt lgkmcnt(0)'] + self.stats_ops(X)
        self.gemv(4, 7, breg, ACC, A, fill=fill, nother=1)
        a(f'v_mul_f32 v22, v24, v{CSUM}'); a(f'v_mul_f32 v23, v24, v{CSUM+1}'); a('v_mul_f32 v25, v25, v25')
        for jj in (0, 2, 1, 3): self.rowsel(20 + jj // 2, ACC, [(jj, 10 if jj & 1 else 5)])
        a('v_sub_f32 v20, v20, v22'); a('v_sub_f32 v21, v21, v23')
        a('v_max_f32 v20, 0, v20'); a('v_mul_f32 v21, v21, v25'); a('v_mul_f32 v20, v20, v21')
        a('v_cvt_pk_bf16_f32 v20, v20, v20')
        a('ds_write_b16 v40, v20'); a('s_waitcnt lgkmcnt(0)'); a('s_barrier')
        for ks in range(2): a(f'ds_read_b128 {vr(A + 4*ks, 4)}, v2 offset:{2048 + 128 * ks}')
        a('v_mov_b32 v21, 0')
        self.gemv(7, 2, dreg, ACD, A)
        self.rowout(ACD, 's44', 's51')
        self.stamp(12, 's49', 28)
        a('s_add_u32 s49, s49, 1')
        a('s_cmp_eq_u32 s49, 0'); a('s_cbranch_scc1 L_Fret')
        a('s_cmp_lt_u32 s49, 8'); a('s_cbranch_scc1 L_Fsub')
        a('s_branch L_end')
        a.label('L_roleF')
        self.cq = list(self.cq0); done = 8 * (self.hq[1] - self.hq[0]) if self.hq else 0
        a('s_cmp_lt_u32 s3, 2'); a('s_cselect_b64 s[20:21], s[76:77], s[78:79]'); a(f's_mov_b32 s22, 0x{448 * 3584:x}'); a('s_mov_b32 s23, 0x20000')
        a('s_sub_u32 s2, s2, 16')
        a('v_mul_u32_u24 v6, 3584, v4')
        a('s_lshl_b32 s38, s2, 8'); a('s_and_b32 s39, s3, 1'); a('s_lshl_b32 s39, s39, 7'); a('s_add_u32 s38, s38, s39')
        a('v_add3_u32 v44, v6, v2, s38')
        self.table(88, 3584)
        pl = [dict(sub='L_dmaG', B=0, rd=[(breg(jj, ks) + 2 * rp, (jj >> 1) * 16384 + rp * 2048 + (jj & 1) * 256) for jj in range(4) for rp in range(4)]) for ks in range(7)]
        pl += [dict(sub='L_dmaD', B=1, rd=self.typeB_reads(dreg, i // 2, i % 2)) for i in range(4)]
        for i, p in enumerate(pl): p['slot'] = i % 4
        self.stamp(56, None, 30)
        for i in range(1 if self.ean else 2): self.issue(pl[i])
        self.stamp(57, None, 30)
        self.srd(28, 80, 1792 * 896); self.srd(68, 64, 3584)
        a('s_lshl_b32 s39, s2, 7')
        self.typeB('v11', 's39')
        self.consts()
        a('s_lshr_b32 s38, s3, 1'); a('s_lshl_b32 s38, s38, 13'); a('s_and_b32 s39, s3, 1'); a('s_lshl_b32 s39, s39, 9'); a('s_add_u32 s38, s38, s39'); a('v_add_u32 v9, s38, v9')
        self.x0off(); self.gather_offs()
        for b in range(4): self.vm(f'buffer_load_dword v{X0 + b}, v12, s[68:71], 0 offen offset:{b * 896}', 'x0')
        a('v_and_b32 v6, 31, v0'); a('s_lshl_b32 s38, s3, 6'); a('s_add_u32 s38, s38, 2048'); a('v_lshl_add_u32 v40, v6, 1, s38')
        a('s_lshl_b32 s40, s2, 10'); a('s_and_b32 s38, s40, 0x2000'); a('s_add_u32 s40, s40, s38'); a(f's_add_u32 s40, s40, 0x{ZOFF:x}')
        a('s_cmp_eq_u32 s2, 0'); a(f's_cselect_b32 s41, 0x{XAOFF:x}, s57')
        if done < 10: self.arm()
        elif done < 24: self.announce()
        if self.ean:
            assert not done
            self.issue(pl[1]); self.announce()
        self.stamp(58, None, 30)
        self.issue(pl[2])
        a('s_branch L_Fsub')
        a.label('L_Fret')
        self.issue(pl[3])
        self.stamp(59, None, 30)
        hooks = {2: lambda: self.announce(False)} if done < 10 and not self.ean else {}
        hooks[7] = self.preready
        for i in range(11):
            self.consume(pl[i], pl[i + 3] if 1 <= i < 8 else None, hooks.get(i))
            if self.ho and i == self.ho[2]: self.wo_pf('s2')
            self.stamp(41 + i, None, 26)
            if i == 7:
                self.stamp(20, None, 28)
                self.colsum(4, 7, breg, ACC)
                self.rowsel(CSUM, ACC, [(0, 5), (1, 10)]); self.rowsel(CSUM + 1, ACC, [(2, 5), (3, 10)])
        self.ready()
        a('s_branch L_Fsub')

    def wo_pf(self, head, add=0):
        a = self.a; p0, p1 = self.ho[:2]
        self.srd(24, 72, 4096 * 896)
        nb = (p1 - p0) * 28672; per = nb // 4
        a(f's_mul_i32 s38, {head}, 229376'); a(f's_mul_i32 s39, s3, {per}'); a('s_add_u32 s38, s38, s39'); a(f's_add_u32 s38, s38, {p0 * 28672 + add * 229376}')
        a('v_min_u32 v6, 55, v0'); a('v_lshlrev_b32 v6, 7, v6')
        for i in range(p1 - p0):
            self.vm(f'buffer_load_dword v45, v6, {W2}, s38 offen {self.hpol}', 'ho'); a('s_add_u32 s38, s38, 7168')
    def roleW(self):
        a = self.a
        self.cq = list(self.cq0); done = 8 * (self.hq[1] - self.hq[0]) if self.hq else 0
        self.consts()
        if done < 10: self.arm()
        if done < 24: self.announce()
        a('s_sub_u32 s2, s2, 30')
        if self.hpf: self.helper()
        if self.ho: self.wo_pf('s2', 14)
        if self.w2:
            a('s_lshr_b32 s38, s3, 1'); a('s_cmp_lg_u32 s2, s38'); a('s_cbranch_scc1 L_end')
            if self.diag: a('s_lshl_b32 s38, s2, 13'); a('s_sub_u32 s61, s61, s38')
        else: a('s_cmp_lg_u32 s2, 0'); a('s_cbranch_scc1 L_end')
        self.near()
        self.srd(20, 82, 3584)
        self.x0off(); self.gather_offs()
        self.preready(); self.ready()
        G = 64
        a('s_mov_b32 s49, 0'); a(f's_add_u32 s47, s10, 0x{XAOFF + 16384:x}'); a(f's_add_u32 s48, s10, 0x{ZOFF + 4 * 32768:x}'); a('s_mov_b32 s44, 0')
        a.label('L_Wtop')
        if not self.mres: self.resid_poll('s47')
        self.gather_sum('s48', G, False, 's47' if self.mres else None)
        a(f'buffer_store_dword v24, v12, {W1}, s44 offen')
        self.stamp(12, 's49', 28)
        if self.diag: self.stamp(24, 's49', 28, 's52')
        a('s_add_u32 s49, s49, 1'); a('s_add_u32 s47, s47, 2048'); a('s_add_u32 s48, s48, 32768'); a('s_add_u32 s44, s44, 896')
        a('s_cmp_lt_u32 s49, 4'); a('s_cbranch_scc1 L_Wtop')
        a('s_branch L_end')
    def helper(self):
        a = self.a
        hq, ho = self.hpf if isinstance(self.hpf, (list, tuple)) else (48, 48)
        a('s_lshl_b32 s38, s2, 2'); a('s_add_u32 s38, s38, s3')
        self.srd(20, 70, 448 * 8192); self.srd(24, 72, 4096 * 896)
        a('s_lshl_b32 s40, s38, 10'); a(f's_add_u32 s40, s40, {(448 - hq) * 8192}')
        l = self.lab('L_hq'); a(f's_mov_b32 s41, {hq}')
        if hq:
            a.label(l)
            a('s_waitcnt vmcnt(11)'); a(f'buffer_load_dwordx4 v[64:67], v1, {W1}, s40 offen {self.hpol}')
            a('s_add_u32 s40, s40, 8192'); a('s_sub_u32 s41, s41, 1'); a('s_cmp_lg_u32 s41, 0'); a(f's_cbranch_scc1 {l}')
        if ho:
            a('s_mul_i32 s40, s38, 458752'); a(f's_add_u32 s40, s40, {229376 - ho * 1024}'); a('s_add_u32 s42, s40, 229376')
            l = self.lab('L_ho'); a(f's_mov_b32 s41, {ho}')
            a.label(l)
            a('s_waitcnt vmcnt(10)'); a(f'buffer_load_dwordx4 v[64:67], v1, {W2}, s40 offen {self.hpol}')
            a(f'buffer_load_dwordx4 v[64:67], v1, {W2}, s42 offen {self.hpol}')
            a('s_add_u32 s40, s40, 1024'); a('s_add_u32 s42, s42, 1024'); a('s_sub_u32 s41, s41, 1'); a('s_cmp_lg_u32 s41, 0'); a(f's_cbranch_scc1 {l}')
        a('s_waitcnt vmcnt(0)')
        self.stamp(20, None, 28)

if __name__ == '__main__':
    kw = json.loads(sys.argv[2]) if len(sys.argv) > 2 else {}
    open(sys.argv[1], 'w').write(Gen(**kw).build())
```

```python
import sys, struct, json
from asmlib import Asm
NAME = "interleave_layers__mha_block_cached__glu_gated_reglu__decode"

QOFF = 0x0; YOFF = 0x10000; ZOFF = 0x50000; XAOFF = 0x90000; XBOFF = 0x98000; HOFF = 0x9c000; COFF = 0x9a000 - 0x2000 + 0x8000; POFF = 0x800000; DOFF = 0x400000
PB = 32768; PIB = 0x100000; PP2 = 0x80000; MLO = 16384 + 6144
OOB = 0x40000000
NC = 14; NW = 56
CS = 0.09016844005556021
def f2u(x): return struct.unpack('<I', struct.pack('<f', x))[0]

K_SRD = 's[8:11]'; V_SRD = 's[12:15]'; WS = 's[16:19]'; W1 = 's[20:23]'; W2 = 's[24:27]'; W3 = 's[28:31]'
DBG = 's[84:85]'
NCHAIN = 32
K4 = 's[88:91]'; V4 = 's[92:95]'
FULL = 'row_mask:0xf bank_mask:0xf'

def vr(b, n=1): return f'v{b}' if n == 1 else f'v[{b}:{b+n-1}]'
def ar(b, n=1): return f'a{b}' if n == 1 else f'a[{b}:{b+n-1}]'
def rr(b, n=1): return vr(b, n) if b < 256 else ar(b - 256, n)

class Gen:
    def __init__(self, diag=False, PF=65, depth=8, hpf=False, hpol='nt', cpf=False, rows=(16, 10, 7), hq=None, fake=0, CL=12, PF2=None, reord=1, lightO=0, split=True, tlb=0, fx=2, thr=None, wtlb=0, probe=None, kpol='nt', vpol='nt', par=None, nQ=48, nE=60, early=False, sub=None, qE=None, ring4=0, up4=False, ho=None, pos=None, home=0, hforce=None, lv=None, lvx=None, th=None, cps=None, rs=None, gs=14, kvonly=True, ed=False, mid=None, fast=((2, (73, 74, 75)), (3, (76, 77)), (4, (78, 79))), boost=None, fld=(2, 2), nQ1=None, cpon=None, odd=None, slow=None, xsl=0, loc=1, spf=None, mres=1, dual=1, hs=4, ean=1, SG=24, pw=12, flex=None, KF=52, TK=41, qmask=0x96, fw=(), fb=None, bst=None, fine=(), cla=0, arl=None, wsw=0, noarm=0, PFA=None, xpf=None, oarm=0, xpol='', fx2=None, p0=8, nox=0, nocl=0, mp=0, fin=0, cyc=0, mz=0, lst=0, w2=0, mpr='FW', hp=None, rm=None,
                 p2l=((('u', 2), (73, 74, 75)), (('u', 3), (76, 77)), (('u', 4), (78, 79)), (('u', 9), (0,)), (('x', 0), (1,)), (('i', 0), (2,)), (('i', 2), (3,)), (('i', 4), (4,)), (('m', 0), (5,))),
                 p1l={'a': (6, 7), '1': (8, 9), '2': (10,), '3': (11, 12), '4': (13,), 'm': (14, 15)}):
        self.rm = rm; self.hp = hp; self.mpr = mpr; self.w2 = w2; self.lst = lst; self.mz = mz; self.cyc = cyc; self.ck = 0; self.fin = fin; self.mp = mp; self.nox = nox; self.nocl = nocl; self.fine = list(fine); self.cla = cla; self.arl = arl; self.wsw = wsw; self.noarm = noarm; self.PFA = PFA; self.p0 = p0; self.fx2 = fx2; self.xpf = xpf; self.xpol = xpol; self.oarm = oarm; self.fb = fb; self.bst = bst; self.fw = fw; self.flex = flex; self.KF = KF; self.TK = TK; self.qmask = qmask
        if flex:
            rest = list(range(48, 80)); rest[KF - 40:KF - 40] = range(32, 40)
            self.ORD = list(range(24, 32)) + list(range(40, 48)) + list(range(24)) + rest
            assert sum(n for n, r in flex) == NW and sum(n * r for n, r in flex) == 512 and nQ >= KF + 8
        self.SG = SG; self.pw = pw; self.p2l = p2l; self.p1l = p1l
        self.dual = dual; self.hs = hs; self.ean = ean
        self.loc = loc; self.spf = spf or []; self.mres = mres
        self.xsl = xsl
        self.slow = slow
        self.odd = odd
        self.cpon = cpon
        self.nQ1 = nQ1 or nQ
        self.fast = fast; self.boost = boost; self.fld = fld; self.xst = 0
        if boost: lv = [depth, boost[1]]
        self.kvonly = kvonly; self.ed = ed; self.mid = mid
        self.lv = lv; self.lvx = lvx; self.th = th; self.cps = cps or []; self.rs = rs; self.dyn = False; self.gs = gs
        self.hforce = hforce
        self.home = home
        self.pos = pos
        self.ring4 = ring4; self.up4 = up4; self.ho = ho
        self.sub = sub; self.qE = qE
        self.par = par; self.nQ = nQ; self.nE = nE; self.early = early
        self.pmul = 10 if not probe or len(probe) < 3 else probe[2]; probe = probe and probe[:2]; self.probe = probe; self.role = 'X'; self.kpol = kpol; self.vpol = vpol
        self.a = Asm(); self.diag = diag; self.PF = PF; self.depth = depth; self.hpf = hpf; self.hpol = hpol; self.cpf = cpf; self.rows = rows; self.hq = hq; self.fake = fake; self.CL = CL; self.PF2 = PF2; self.reord = reord; self.lightO = lightO; self.split = split; self.tlb = tlb; self.fx = fx; self.thr = thr; self.wtlb = wtlb
        self.uid = 0
    def lab(self, p='L'):
        self.uid += 1; return f'{p}_{self.uid}'

    def bits(self, dst, lane, tmp, mp):
        a = self.a; first = True
        for lb, n, ab in mp:
            if first:
                a(f'v_bfe_u32 {dst}, {lane}, {lb}, {n}')
                if ab: a(f'v_lshlrev_b32 {dst}, {ab}, {dst}')
                first = False
            else:
                a(f'v_bfe_u32 {tmp}, {lane}, {lb}, {n}')
                a(f'v_lshl_add_u32 {dst}, {tmp}, {ab}, {dst}')
    def srd(self, base, lo, size):
        a = self.a
        a(f's_mov_b64 s[{base}:{base+1}], s[{lo}:{lo+1}]')
        a(f's_mov_b32 s{base+2}, 0x{size:x}'); a(f's_mov_b32 s{base+3}, 0x20000')
    def timeout(self):
        self.a('s_sub_u32 s52, s52, 1'); self.a('s_cbranch_scc1 L_bail')
        if self.xsl and self.role != 'S': self.a(f's_sleep {self.xsl}')
    FLAG = 4096; CNTA = 16; CNTB = 144
    def wait_counter(self, va, vd, vt, off, n, pre=False):
        a = self.a; l = self.lab('L_cnt'); c = self.lab('L_cntc')
        if pre: a(f's_branch {c}')
        else: a(f'v_mov_b32 v{va}, 0')
        a.label(l)
        self.timeout()
        a(f'global_load_dword v{vd}, v{va}, {DBG} offset:{off} sc1'); a('s_waitcnt vmcnt(0)')
        a.label(c)
        a(f'v_and_b32 v{vt}, {"0xffff" if self.nocl else "0xff"}, v{vd}'); a(f'v_cmp_gt_u32 vcc, {n}, v{vt}'); a(f's_cbranch_vccnz {l}')
    def claim(self, va, vd, vr_):
        a = self.a; l = self.lab('L_cl')
        if self.nocl: a(f'v_mov_b32 v{va}, 0'); a('s_waitcnt lgkmcnt(0)'); return
        a('s_lshl_b32 s38, 1, s101'); a(f'v_mov_b32 v{va}, s100'); a(f'v_mov_b32 v{vd}, s38')
        a('s_or_b32 s38, s3, s7')
        a('s_waitcnt lgkmcnt(0)')
        a(f's_cbranch_scc1 {l}')
        a('s_mov_b64 exec, 1')
        a(f'global_atomic_or v{vr_}, v{va}, v{vd}, {DBG} sc0 sc1')
        a('s_mov_b64 exec, -1')
        a.label(l)
    def confirm(self, vr_, t):
        a = self.a; l = self.lab('L_rs'); w = self.lab('L_rw')
        if self.nocl: return
        a(f'v_mov_b32 v{t}, 0')
        a('s_cmp_lg_u32 s3, 0'); a(f's_cbranch_scc1 {l}')
        a('s_movk_i32 s38, 0x100'); a('s_cmp_lg_u32 s7, 0'); a(f's_cbranch_scc1 {w}')
        a(f'v_readfirstlane_b32 s39, v{vr_}'); a('s_bitcmp1_b32 s39, s101'); a(f's_cbranch_scc0 {w}')
        a('s_call_b64 s[96:97], L_lost')
        a.label(w)
        a(f'v_mov_b32 v{t+1}, s38'); a(f'ds_write_b32 v{t}, v{t+1} offset:{self.FLAG}'); a('s_waitcnt lgkmcnt(0)')
        a.label(l)
        a('s_barrier')
        a(f'ds_read_b32 v{t+1}, v{t} offset:{self.FLAG}'); a('s_waitcnt lgkmcnt(0)')
        a(f'v_readfirstlane_b32 s38, v{t+1}'); a('s_cmp_lg_u32 s38, 0x100'); a('s_cbranch_scc1 L_redo')
    def signal(self, va, vd, off, val):
        a = self.a; l = self.lab('L_sg')
        a('s_cmp_lg_u32 s3, 0'); a(f's_cbranch_scc1 {l}')
        a('s_mov_b64 exec, 1'); a(f'v_mov_b32 v{va}, 0'); a(f'v_mov_b32 v{vd}, {val}')
        a(f'global_atomic_add v{va}, v{vd}, {DBG} offset:{off} sc1')
        a('s_mov_b64 exec, -1')
        a.label(l)
    def rare_paths(self):
        a = self.a
        a.label('L_odd')
        a('s_waitcnt lgkmcnt(0)'); a('v_mov_b32 v1, 0')
        a('s_cmp_lg_u32 s3, 0'); a('s_cbranch_scc1 L_odd2')
        a('s_and_b32 s38, s36, 3'); a('s_lshl_b32 s38, s38, 6'); a('s_lshr_b32 s39, s36, 2'); a('s_lshl3_add_u32 s38, s39, s38')
        a('v_mov_b32 v2, s38'); a('s_lshl_b32 s39, s37, 3'); a('s_movk_i32 s41, 24')
        a.label('L_odd1')
        a(f'global_load_dword v3, v2, {DBG} sc1'); a('s_waitcnt vmcnt(0)')
        a('v_readfirstlane_b32 s38, v3'); a('s_lshr_b32 s38, s38, s39'); a('s_and_b32 s38, s38, 0xff'); a('s_bcnt1_i32_b32 s40, s38')
        a('s_cmp_ge_u32 s40, 7'); a('s_cselect_b32 s41, 0, s41'); a('s_sub_u32 s41, s41, 1'); a('s_cbranch_scc0 L_odd1')
        a('s_ff0_i32_b32 s38, s38'); a('v_mov_b32 v2, s38'); a(f'ds_write_b32 v1, v2 offset:{self.FLAG + 4}'); a('s_waitcnt lgkmcnt(0)')
        a.label('L_odd2')
        a('s_barrier')
        a(f'ds_read_b32 v2, v1 offset:{self.FLAG + 4}'); a('s_waitcnt lgkmcnt(0)')
        a('v_readfirstlane_b32 s38, v2'); a('s_mov_b32 s6, 1'); a('s_branch L_even')
        a.label('L_lost')
        a('s_waitcnt vmcnt(0)')
        self.bits('v62', 'v0', 'v63', [(0, 2, 6), (2, 1, 3)])
        a.label('L_lost1')
        a(f'global_load_dword v60, v62, {DBG} sc1'); a('s_waitcnt vmcnt(0)')
        a('v_cmp_ne_u32 vcc, -1, v60'); a('s_movk_i32 s38, 0x300'); a('s_cbranch_vccz L_lost2')
        a('s_getreg_b32 s39, hwreg(HW_REG_XCC_ID, 0, 3)'); a('s_ff1_i32_b32 s38, vcc_lo')
        a('s_bitcmp1_b32 vcc_lo, s39'); a('s_cselect_b32 s38, s39, s38')
        a('s_nop 3'); a('v_readlane_b32 s39, v60, s38'); a('v_readlane_b32 s40, v62, s38'); a('s_ff0_i32_b32 s39, s39')
        a('s_lshl_b32 s41, 1, s39'); a('v_mov_b32 v61, s41'); a('v_mov_b32 v63, s40')
        a('s_mov_b64 exec, 1'); a(f'global_atomic_or v60, v63, v61, {DBG} sc0 sc1'); a('s_mov_b64 exec, -1'); a('s_waitcnt vmcnt(0)')
        a('v_readfirstlane_b32 s40, v60'); a('s_bitcmp1_b32 s40, s39'); a('s_cbranch_scc1 L_lost1')
        a('s_lshl_b32 s38, s38, 5'); a('s_add_u32 s38, s38, s39'); a('s_bitset1_b32 s38, 9')
        a.label('L_lost2')
        a('s_setpc_b64 s[96:97]')
        a.label('L_redo')
        a('s_bitcmp1_b32 s38, 8'); a('s_cbranch_scc1 L_bail')
        a('s_waitcnt vmcnt(0) lgkmcnt(0)'); a('s_barrier')
        a('s_load_dwordx16 s[64:79], s[0:1], 0')
        a('s_load_dwordx8 s[80:87], s[0:1], 64')
        a('s_bfe_u32 s36, s38, 0x30005'); a('s_and_b32 s2, s38, 31'); a('s_mov_b32 s7, 1')
        a('s_branch L_role')
    def stamp(self, idx, sidx=None, t0=20, src='s62'):
        if self.probe and not self.diag:
            role, want = self.probe
            if role != self.role or (sidx is None and idx != want) or (sidx and not (0 <= want - idx < 9)): return
            a = self.a
            a('s_waitcnt lgkmcnt(0)'); a('s_memrealtime s[62:63]'); a('s_waitcnt lgkmcnt(0)')
            if sidx: a(f's_cmp_eq_u32 {sidx}, {want - idx}'); a('s_cselect_b32 s61, s62, s61')
            else: a('s_mov_b32 s61, s62')
            return
        if not self.diag: return
        a = self.a
        a('s_waitcnt lgkmcnt(0)'); a('s_memrealtime s[62:63]'); a('s_waitcnt lgkmcnt(0)')
        a(f'v_mov_b32 v{t0}, {src}')
        if sidx: a(f's_lshl_b32 s60, {sidx}, 2'); a('s_add_u32 s60, s60, s61')
        else: a('s_mov_b32 s60, s61')
        a(f'v_mov_b32 v{t0+1}, 0')
        a('s_mov_b64 exec, 1')
        a(f'buffer_store_dword v{t0}, v{t0+1}, {WS}, s60 offen offset:{idx*4}')
        a('s_mov_b64 exec, -1')
    def diagbase(self):
        a = self.a
        a('s_and_b32 s60, s61, 31'); a('s_lshr_b32 s61, s61, 5'); a('s_lshl3_add_u32 s61, s60, s61')
        a('s_lshl2_add_u32 s61, s61, s3'); a('s_lshl_b32 s61, s61, 8'); a(f's_add_u32 s61, s61, 0x{DOFF:x}')
    def maxtree(self, regs, t):
        a = self.a; regs = list(regs)
        a(f'v_max3_u32 v{t}, v{regs[0]}, v{regs[1]}, v{regs[2 if len(regs) > 2 else 1]}')
        regs = regs[3:]
        while regs:
            x = regs[:2]; regs = regs[2:]
            a(f'v_max3_u32 v{t}, v{t}, v{x[0]}, v{x[-1]}')
        a(f'v_cmp_eq_u32 vcc, -1, v{t}')

    def build(self):
        a = self.a
        if self.diag: a('s_memrealtime s[34:35]')
        a('s_cmp_ge_u32 s2, 256'); a('s_cbranch_scc1 L_end2')
        if self.probe: a('s_memrealtime s[62:63]'); a('s_waitcnt lgkmcnt(0)'); a('s_mov_b32 s60, s62'); a('s_mov_b32 s61, s62')
        a('s_load_dwordx16 s[64:79], s[0:1], 0')
        a('s_load_dwordx8 s[80:87], s[0:1], 64')
        if self.nocl:
            if self.fake: a(f's_mul_i32 s2, s2, {2 * self.fake + 1}'); a(f's_add_u32 s2, s2, {self.fake // 2 * 8}'); a('s_and_b32 s2, s2, 255'); self.fake = 0
            a('s_and_b32 s36, s2, 7'); a('s_lshr_b32 s38, s2, 5'); a('s_bfe_u32 s37, s2, 0x20003')
            if self.nocl > 1: a(f's_add_u32 s38, s38, {9 - self.nocl}')
            if self.diag: a('s_getreg_b32 s100, hwreg(HW_REG_HW_ID)')
        else:
            a('s_getreg_b32 s36, hwreg(HW_REG_XCC_ID, 0, 3)')
            a('s_getreg_b32 s38, hwreg(HW_REG_HW_ID, 8, 4)'); a('s_getreg_b32 s37, hwreg(HW_REG_HW_ID, 13, 2)')
        a('v_lshrrev_b32 v1, 6, v0'); a('v_and_b32 v0, 63, v0')
        a('v_readfirstlane_b32 s3, v1')
        a('s_mov_b32 s52, 400000'); a('s_mov_b64 s[6:7], 0')
        if self.fake == 1: a('s_and_b32 s38, s38, 6')
        if self.fake == 2: a('s_and_b32 s36, s36, 5')
        if self.fake == 3: a('s_and_b32 s36, s2, 7'); a('s_lshr_b32 s38, s2, 5'); a('s_mov_b32 s37, 0')
        if self.fake == 4: a('s_mov_b32 s36, 0'); a('s_mov_b32 s38, 0'); a('s_mov_b32 s37, 0')
        if self.fake == 5:
            a('s_bitcmp0_b32 s37, 0'); a('s_cselect_b32 s39, 8, 0'); a('s_cmp_eq_u32 s38, 3'); a('s_cselect_b32 s38, s39, s38')
        if not self.nocl: a('s_bitcmp0_b32 s37, 0'); a('s_cselect_b32 s39, 8, 0'); a('s_cmp_eq_u32 s38, s39'); a('s_cbranch_scc1 L_odd')
        a.label('L_even')
        a('s_and_b32 s38, s38, 7'); a('s_lshl3_add_u32 s2, s37, s38')
        if self.fake == 6: a('s_cmp_lg_u32 s38, 7'); a('s_cselect_b32 s39, 5, 0'); a('s_xor_b32 s36, s36, s39')
        if self.fake == 7: a('s_cmp_eq_u32 s2, 10'); a('s_cselect_b32 s39, 1, 0'); a('s_xor_b32 s36, s36, s39')
        if self.fake == 8: a('s_cmp_eq_u32 s2, 7'); a('s_cselect_b32 s39, 4, 0'); a('s_xor_b32 s36, s36, s39')
        a.label('L_role')
        if not self.nocl: a('s_mov_b32 s101, s2'); a('s_and_b32 s100, s36, 3'); a('s_lshl_b32 s100, s100, 6'); a('s_lshr_b32 s38, s36, 2'); a('s_lshl3_add_u32 s100, s38, s100')
        if self.cpf:
            a('s_getpc_b64 s[38:39]'); a.label('L_pc')
            a('s_lshl_b32 s37, s2, 2'); a('s_add_u32 s37, s37, s3'); a('s_lshl_b32 s37, s37, 10')
            a('s_cmp_ge_u32 s37, L_end-L_pc'); a('s_cbranch_scc1 L_nopf')
            a('v_lshl_add_u32 v2, v0, 4, s37'); a('v_min_u32 v2, L_end-L_pc-16, v2')
            a('global_load_dwordx4 v[60:63], v2, s[38:39]')
            a.label('L_nopf')
        a('s_getreg_b32 s38, hwreg(HW_REG_XCC_ID, 0, 4)'); a('s_cmp_eq_u32 s38, s36'); a(f's_cselect_b32 s5, 1, {"0x10001" if self.nocl else "0x101"}')
        a('s_lshr_b32 s38, s2, 4'); a('s_lshl1_add_u32 s36, s36, s38'); a('s_and_b32 s37, s2, 7'); a('s_bfe_u32 s38, s2, 0x10003')
        a('s_cmp_eq_u32 s37, 7'); a('s_cbranch_scc1 L_chain')
        self.role = 'S'; self.stream()
        a.label('L_chain'); self.role = 'C'
        self.chain_common()
        self.role = 'W'; self.roleW(); self.role = 'O'; self.roleOQ(); self.role = 'F'; self.roleF()
        if not self.nocl: self.rare_paths()
        a.label('L_bail')
        a('s_mov_b64 exec, 1')
        a('v_mov_b32 v0, 32'); a('v_mov_b32 v1, 1')
        a(f'global_atomic_add v0, v1, {DBG} sc1')
        a('v_mov_b32 v0, 36'); a('v_mov_b32 v1, s2')
        a(f'global_store_dword v0, v1, {DBG} sc1')
        a.label('L_end')
        if self.probe:
            a('s_cmp_eq_u32 s60, s61'); a('s_cbranch_scc1 L_end2')
            a('s_sub_u32 s61, s61, s60'); a(f's_mul_i32 s61, s61, {self.pmul}'); a('s_add_u32 s61, s61, 7000'); a('s_add_u32 s61, s61, s60')
            a.label('L_pspin')
            a('s_memrealtime s[62:63]'); a('s_waitcnt lgkmcnt(0)'); a('s_sub_u32 s62, s62, s61'); a('s_cmp_lt_i32 s62, 0'); a('s_cbranch_scc1 L_pspin')
        a.label('L_end2')
        body = a.finish()
        hdr = open('cdna_kernels/' + NAME + '.s.ref').read().split('\n')
        top = [l for l in hdr if l.startswith(';') and '@launch' not in l]
        s = '\n'.join(top) + '\n; @launch grid=(256,1,1) block=(256,1,1) lds=163840\n'
        s += f'.amdgcn_target "amdgcn-amd-amdhsa--gfx950"\n.text\n.globl {NAME}_kernel\n.p2align 8\n.type {NAME}_kernel,@function\n{NAME}_kernel:\n'
        s += body
        s += f'''s_endpgm
.section .rodata,"a"
.p2align 6
.amdhsa_kernel {NAME}_kernel
  .amdhsa_next_free_vgpr 512
  .amdhsa_next_free_sgpr 102
  .amdhsa_accum_offset 256
  .amdhsa_group_segment_fixed_size 0
  .amdhsa_kernarg_size 96
  .amdhsa_user_sgpr_count 2
  .amdhsa_user_sgpr_kernarg_segment_ptr 1
  .amdhsa_system_sgpr_workgroup_id_x 1
.end_amdhsa_kernel
'''
        return s

    CA = [0, 4096]; Q1L = 8192; MA = [10240, 10272]; CO = [10304, 10308]; MA1 = [10240, 10336]; ST = 10496; TB = 11520; WLDS = 37 * 1024
    vK, vV, vDs, vL16, vQo, vIQ, vIP = 1, 2, 3, 4, 5, 6, 7
    vM = 8; vT = 12; vBias = 15; vMC = 16; vL = 17; vQ = 24; vAcc = 32; vH = 48
    def kreg(self, s, u):
        return 64 + 96 * s + 16 * u if u < 6 else 256 + 128 * s + 16 * (u - 6)
    def vreg0(self, s, P, t):
        return 256 + 128 * s + 64 + 8 * (4 * P + t)
    def tile(self, n):
        if n < 40:
            u, t = n // 4, n % 4
            return 0, u // 2, t * 128 + (u & 1) * 512
        m = n - 40; g = m // 8; k = m % 8
        if g < 4: P, t = k // 4, k % 4
        else: t, P = k // 2, k % 2
        return 1, g, t * 128 + P * 1024
    def ldsslot(self, s, n):
        if n <= 72: return (n - 56) + 17 * s
        return 34 + (n - 73)
    ORD = list(range(24, 40)) + list(range(24)) + list(range(40, 80))
    def load(self, s, p, wait=True, to=None):
        a = self.a; n = self.ORD[p]
        kv, g, imm = self.tile(n)
        if p == 0 and not self.prologue:
            for j in range(4 if self.flex or self.fx2 else 5): a(f's_add_u32 s{40+j}, s{40+j}, 0x2000000')
            if self.fx2: a('s_mov_b32 s44, s24'); a('s_lshl_b32 s90, s25, 9'); a('s_add_u32 s90, s90, s44'); a('s_min_u32 s90, s90, s10'); a('s_mov_b32 s94, s90')
            elif not self.flex: a('s_add_u32 s90, s90, 0x2000000'); a('s_min_u32 s90, s90, s10'); a('s_mov_b32 s94, s90')
        va = f'v{self.vV if kv else self.vK}'; srd = V_SRD if kv else K_SRD
        if g == 4: srd = V4 if kv else K4
        if g == 4 and self.rm and self.rm[0] != 12:
            t = 'v16' if self.prologue else 'v0'
            if n in (32, 72):
                a(f'v_bfe_u32 {t}, v{self.vL16}, 7, 1'); a(f'v_mul_u32_u24 {t}, {(1 << self.rm[0]) - 4096}, {t}'); a(f'v_sub_u32 {t}, {va}, {t}')
            va = t
        dst = None
        if n < 40: dst = self.kreg(s, n // 4) + 4 * (n % 4)
        elif n < 56:
            m = n - 40; dst = self.vreg0(s, (m % 8) // 4, m % 4) + 4 * (m // 8)
        elif n >= 76: dst = self.kreg(1 - s, 1) + 4 * (n - 76)
        if to is not None: dst = to
        if dst is None:
            a(f's_add_u32 m0, s45, {self.ldsslot(s, n) * 1024 - imm}')
        depth = self.lv[-1] if self.dyn else self.depth
        if wait is not True and wait: depth = wait
        def allow(d):
            pos = [i for i, x in enumerate(reversed(self.vmq)) if x[0] != 'cp' and not (self.flex and x[0] in (0, 1) and self.KF <= x[1] < self.KF + 8 and (x[1] - self.KF) % 8 not in self.fw)]
            return pos[d - 1] if len(pos) >= d else None
        if wait is True and self.dyn:
            lows = [allow(d) for d in self.lv[:-1] if allow(d) is not None]
            labs = [self.lab('L_lv') for _ in lows]
            for i in reversed(range(len(lows))):
                a(f's_cmp_gt_u32 s59, {i}'); a(f's_cbranch_scc1 {labs[i]}')
            for i, k in enumerate(lows):
                a(f's_waitcnt vmcnt({k})'); a.label(labs[i])
        if wait and allow(depth) is not None:
            k = allow(depth)
            a(f's_waitcnt vmcnt({k})'); self.vmq = self.vmq[-k:]
        if dst is None:
            a(f'buffer_load_dwordx4 {va}, {srd}, s{40+g} offen offset:{imm} {self.vpol if kv else self.kpol} lds')
        else:
            a(f'buffer_load_dwordx4 {rr(dst, 4)}, {va}, {srd}, s{40+g} offen offset:{imm} {self.vpol if kv else self.kpol}')
        self.vmq.append((s, p))
    def need_vm(self, tag):
        if tag in self.vmq:
            k = len(self.vmq) - 1 - self.vmq.index(tag)
            if self.xst:
                l = self.lab('L_xs'); self.a('s_cmp_lg_u32 s58, 0'); self.a(f's_cbranch_scc1 {l}')
                self.a(f's_waitcnt vmcnt({k})'); self.a.label(l); self.a(f's_waitcnt vmcnt({k + self.xst})')
            else: self.a(f's_waitcnt vmcnt({k})')
            self.vmq = self.vmq[len(self.vmq) - k:] if k else []
    def ds(self, text, tag=None):
        self.a(text); self.lq.append(tag)
    def need_lds(self, tag):
        if tag in self.lq:
            i = len(self.lq) - 1 - self.lq[::-1].index(tag)
            k = len(self.lq) - 1 - i
            k = min(k, 15)
            self.a(f's_waitcnt lgkmcnt({k})'); self.lq = self.lq[len(self.lq) - k:] if k else []
    def qload(self):
        a = self.a
        a(f'buffer_load_dwordx4 {vr(self.vQ, 4)}, v{self.vQo}, {WS}, s46 offen sc1')
        a(f'buffer_load_dwordx4 {vr(self.vQ + 4, 4)}, v{self.vQo}, {WS}, s46 offen offset:256 sc1')
    def wpf(self, n):
        a = self.a
        for nn, mat, k in self.spf:
            if nn != n: continue
            a('s_lshl2_add_u32 s32, s37, s3')
            for lo, size, rs, lpr, hs, rows in {'q': [(70, 448 * 8192, 8192, 4, 512, 448)], 'o': [(72, 4096 * 896, 128, 1, 229376, 1792)],
                          'g': [(76, 448 * 3584, 3584, 2, 256, 448), (78, 448 * 3584, 3584, 2, 256, 448)], 'd': [(80, 1792 * 896, 128, 1, 114688, 896)]}[mat]:
                assert 56 * k <= rows and k * lpr <= 64
                self.srd(28, lo, size)
                a(f's_mul_i32 s38, s36, {hs}'); a(f's_mul_i32 s33, s32, {k * rs}'); a('s_add_u32 s38, s38, s33'); a(f's_add_u32 s38, s38, {(rows - 56 * k) * rs}')
                if mat == 'g': a('s_cmp_lt_u32 s36, 14'); a(f's_cselect_b32 s38, s38, 0x{OOB:x}')
                if lpr == 1: a('v_lshlrev_b32 v18, 7, v0')
                else:
                    a(f'v_lshrrev_b32 v18, {lpr // 2}, v0'); a(f'v_mul_u32_u24 v18, {rs}, v18'); a(f'v_and_b32 v19, {lpr - 1}, v0'); a('v_lshl_add_u32 v18, v19, 7, v18')
                L = k * lpr
                a(f's_mov_b32 exec_lo, 0x{(1 << min(L, 32)) - 1:x}'); a(f's_mov_b32 exec_hi, 0x{(1 << max(L - 32, 0)) - 1:x}')
                a(f'buffer_load_dword v17, v18, s[28:31], s38 offen')
                a('s_mov_b64 exec, -1')
    def zero_acc(self):
        return [f'v_mov_b64 {vr(self.vAcc + 2 * i, 2)}, 0' for i in range(8)]

    def stream(self):
        a = self.a
        self.vmq = []; self.lq = []; self.prologue = True; self.later = []
        a('s_mul_i32 s38, s38, 7'); a('s_add_u32 s37, s37, s38')
        if self.diag: a('s_mul_i32 s61, s36, 14'); a('s_add_u32 s61, s61, s37'); a('s_add_u32 s61, s61, 32'); self.diagbase()
        a('s_lshl_b32 s39, s37, 2'); a('s_add_u32 s39, s39, s3'); a('s_lshl_b32 s38, s39, 13')
        a('s_lshl_b32 s44, s36, 21')
        LB = self.rm[0] if self.rm else 12
        def place(g):
            lb, wb, rot = self.rm; sb = [b for b in range(12, 18) if b not in (lb, wb, wb + 1)]; d = f's{40 + g}'
            a(f's_add_u32 s38, s37, {14 * g}'); a(f's_lshr_b32 {d}, s38, 3'); a(f's_lshl_b32 {d}, {d}, 18'); a(f's_add_u32 {d}, {d}, s44')
            if rot: a(f's_mul_i32 s33, s36, {rot}'); a('s_add_u32 s38, s38, s33')
            if sb[2] == sb[0] + 2: a('s_and_b32 s38, s38, 7'); a(f's_lshl_b32 s38, s38, {sb[0]}'); a(f's_add_u32 {d}, {d}, s38')
            else:
                for i, b in enumerate(sb): a(f's_bfe_u32 s33, s38, 0x{0x10000 + i:x}'); a(f's_lshl_b32 s33, s33, {b}'); a(f's_add_u32 {d}, {d}, s33')
            a(f's_lshl_b32 s38, s3, {wb}'); a(f's_add_u32 {d}, {d}, s38')
        if self.rm: assert not self.hp; place(3)
        else: a('s_add_u32 s40, s44, s38'); a(f's_add_u32 s43, s40, {3 * NW * 8192}')
        self.bits(f'v{self.vK}', 'v0', 'v18', [(0, 1, 4), (4, 2, 5), (2, 1, 10), (1, 1, 11), (3, 1, LB)])
        if not self.cla: self.claim(22, 23, 24)
        else: a('s_waitcnt lgkmcnt(0)')
        self.wpf(-1)
        self.srd(8, 66, 0x8000000)
        if self.diag: a('s_memrealtime s[98:99]')
        for p in range(self.p0): self.load(0, p, wait=False)
        if self.tlb:
            a('s_lshl_b32 s38, s3, 25'); a('s_add_u32 s38, s38, s44')
            a('s_load_dword s96, s[66:67], s38'); a('s_load_dword s97, s[68:69], s38')
            if self.tlb > 1: a('s_add_u32 s38, s38, 0x1fff00'); a('s_load_dword s96, s[66:67], s38'); a('s_load_dword s97, s[68:69], s38')
        if self.cla: self.claim(22, 23, 24); assert self.CL >= 15
        self.wpf(7)
        a(f's_lshl_b32 s47, s36, 15'); a('s_lshl_b32 s38, s37, 10'); a('s_and_b32 s48, s38, 0x2000'); a('s_add_u32 s38, s38, s48')
        a('s_add_u32 s47, s47, s38'); a(f's_add_u32 s47, s47, 0x{POFF:x}')
        a('s_lshl_b32 s48, s37, 7'); a('s_sub_u32 s48, s48, s38'); a(f's_add_u32 s48, s48, {MLO}')
        a(f'v_lshlrev_b32 v{self.vL16}, 4, v0')
        if self.rm:
            for j in range(3): place(j)
        else:
            for j in range(1, 3): a(f's_add_u32 s{40+j}, s40, {j * NW * 8192}')
        self.srd(88, 66, 0); self.srd(92, 68, 0)
        if self.flex:
            a(f's_add_u32 s21, s44, {4 * NW * 8192}'); a('s_lshl_b32 s20, s36, 7'); a(f's_add_u32 s20, s20, 0x{HOFF:x}')
        else:
            if self.fx2:
                assert sum(n for n, r in self.fx2) == NW and sum(n * r for n, r in self.fx2) == 512 and self.PFA
                a(f's_add_u32 s21, s44, {4 * NW * 8192 + 0x2000000}'); a('s_lshl_b32 s20, s36, 7'); a(f's_add_u32 s20, s20, 0x{HOFF:x}')
            a('s_mul_i32 s38, s39, 9'); a('s_min_u32 s51, s37, 8'); a('s_add_u32 s38, s38, s51')
            a('s_cmp_lt_u32 s37, 8'); a('s_cselect_b32 s22, s3, 0'); a('s_cmp_eq_u32 s22, 3'); a('s_cselect_b32 s22, 10, 9'); a('s_mov_b32 s23, s22')
            a('s_lshl_b32 s38, s38, 9')
            a(f's_add_u32 s44, s44, {4 * NW * 8192}'); a('s_add_u32 s44, s44, s38')
            a('s_lshl_b32 s38, s22, 9'); a('s_add_u32 s90, s44, s38'); a('s_mov_b32 s94, s90')
        self.srd(12, 68, 0x8000000); self.srd(16, 86, 0x20000000)
        if self.wsw:
            a('s_lshl_b32 s38, s3, 20'); a('s_add_u32 s38, s38, s47'); a(f'buffer_load_dword v17, off, {WS}, s38 sc1')
        self.stamp(0); self.stamp(32, src='s34'); self.stamp(33, src='s98')
        if self.nocl: self.stamp(62, src='s100')
        self.bits(f'v{self.vV}', 'v0', 'v18', [(0, 3, 4), (5, 1, 9), (4, 1, 11), (3, 1, LB)])
        a(f's_mul_i32 s45, s3, {self.WLDS}'); a(f's_add_u32 s45, s45, {self.TB}')
        a(f'v_add_u32 v{self.vDs}, s45, v{self.vL16}')
        self.bits(f'v{self.vQo}', 'v0', 'v18', [(0, 2, 4), (4, 2, 6)])
        a('v_and_b32 v18, 2, v0'); a('v_cmp_eq_u32 vcc, 2, v18')
        a(f'v_mov_b32 v{self.vIQ}, 0x44444444'); a('v_mov_b32 v18, 0xeeeeeeee'); a(f'v_cndmask_b32 v{self.vIQ}, v{self.vIQ}, v18, vcc')
        a('v_and_b32 v18, 3, v0'); a('s_mov_b32 s38, 0x55555555'); a(f'v_mul_lo_u32 v{self.vIP}, v18, s38')
        a('v_and_b32 v18, 4, v0'); a('v_cmp_eq_u32 vcc, 4, v18')
        a('v_mov_b32 v18, 0xffff'); a('v_mov_b32 v19, 0xffff0000')
        M = self.vM
        a(f'v_cndmask_b32 v{M}, v18, 0, vcc'); a(f'v_cndmask_b32 v{M+1}, 0, v18, vcc')
        a(f'v_cndmask_b32 v{M+2}, v19, 0, vcc'); a(f'v_cndmask_b32 v{M+3}, 0, v19, vcc')
        self.bits(f'v{self.vBias}', 'v0', 'v19', [(4, 1, 0), (2, 1, 1), (1, 1, 2), (3, 1, 3), (5, 1, 4)])
        a('s_lshl_b32 s46, s3, 4'); a('s_add_u32 s46, s46, s36'); a('s_lshl_b32 s46, s46, 9')
        a('s_mov_b32 s49, 0'); a(f's_mov_b32 s51, 0x{f2u(CS):x}')
        if self.mz: a(f's_mov_b32 s50, 0x{f2u({1: 32.0, 2: 4.0, 3: -1.0}[self.mz]):x}')
        a(f's_mov_b32 s53, {self.Q1L}'); a('s_lshl_b32 s54, s3, 10'); a('s_lshl_b32 s55, s3, 3')
        a('s_lshl_b32 s56, s36, 9'); a(f's_add_u32 s56, s56, 0x{QOFF + 3 * 8192:x}')
        a('v_mov_b32 v18, 0'); a('v_mov_b32 v19, 0')
        a(f'ds_write_b64 v18, v[18:19] offset:{self.CO[0]}')
        a('s_lshl_b32 s57, s3, 8'); a(f's_add_u32 s57, s57, {self.ST}'); a('s_mov_b32 s58, 0'); a(f's_lshl_b32 s4, s5, {15 if self.nocl else 23}'); a('s_and_b32 s4, s4, 0x80000000')
        if self.lv:
            mid = self.lv.index(self.depth) if self.mid is None else self.mid
            a(f's_mov_b32 s59, {mid if not self.slow else self.slow[0]}')
            if self.slow and len(self.slow) > 3: a('s_cmp_ge_u32 s36, 8'); a(f's_cselect_b32 s59, {self.slow[3]}, s59')
            if self.cps:
                a('s_lshl2_add_u32 s24, s37, s3'); a('s_lshl_b32 s24, s24, 7'); a(f's_add_u32 s24, s24, 0x{COFF:x}')
                lo = (mid if not self.slow else self.slow[0]) - 1
                a(f's_mov_b32 s20, 0x{OOB:x}'); a(f's_mov_b32 s21, {-self.th[lo] if lo >= 0 else 100}'); a('s_mov_b32 s22, 0')
            if self.odd and not self.nocl:
                a('s_or_b32 s38, s6, s7'); a(f's_cselect_b32 s59, {mid}, s59')
                if self.cps: a(f's_cselect_b32 s21, {-self.th[-1]}, s21')
        assert not self.cps
        if self.hp:
            a('s_lshr_b32 s20, s36, 1'); a('s_lshl2_add_u32 s20, s20, s3'); a('s_lshl_b32 s20, s20, 8'); a(f's_add_u32 s20, s20, 0x{HOFF:x}')
            a('s_and_b32 s38, s36, 1'); a('s_mul_i32 s21, s38, 14'); a('s_add_u32 s21, s21, s37')
            a('s_lshl_b32 s24, s38, 21'); a('s_lshl_b32 s38, s37, 15'); a('s_add_u32 s24, s24, s38')
            a('s_lshl3_add_u32 s25, s21, s20'); a('s_mov_b32 s35, 0'); a('s_mul_i32 s21, s21, 27')
        if self.bst: a('s_mov_b32 s26, s59')
        LP = {tuple(k): v for k, v in self.p2l}
        N1 = sum(1 for v in LP.values() for x in v if x < 40); N0 = N1 + sum(len(v) for v in self.p1l.values())
        assert N0 <= 16
        for p in range(self.p0, N0):
            self.load(0, p, wait=self.pw[min(p - self.p0, len(self.pw) - 1)] if isinstance(self.pw, list) else self.pw)
            if p == self.CL: self.armS()
            self.wpf(p)
        self.prologue = False
        entry_vmq = [(0, i) for i in range(N0)]; self.vmq = list(entry_vmq)
        nQ = self.nQ
        for s in range(2):
            a.label(f'L_A{s}')
            assert [(x[0] ^ s, x[1]) for x in self.vmq] == entry_vmq, (self.vmq, entry_vmq)
            self.lq = []
            n = N0; self.dyn = bool(self.lv)
            while n < 73:
                if self.slow and not self.fb and (s, n) == tuple(self.slow[1:3]): a(f's_max_u32 s59, s59, {mid}')
                if self.bst and n == self.bst[1]: a('s_mov_b32 s59, s26')
                if s == 0 and n in self.fine:
                    a('s_mul_i32 s99, s49, 5'); self.stamp(44 + self.fine.index(n), 's99', 18)
                for i, (c0, c1) in enumerate(self.cps):
                    r = 16 + i % 2
                    if n == c1:
                        self.need_vm(('cp', i))
                        a(f'v_readfirstlane_b32 s38, v{r}'); a(f's_sub_u32 s38, s38, s{25 + i % 2}'); a('s_mov_b32 s59, 0')
                        for t in self.th: a(f's_cmp_ge_i32 s38, {t}'); a('s_addc_u32 s59, s59, 0')
                for i, (c0, c1) in enumerate(self.cps):
                    r = 16 + i % 2
                    if n == c0:
                        assert not (c0 <= nQ + 3 and c1 > nQ) and c1 < 73
                        a(f'v_mov_b32 v{r}, 1'); a(f's_mov_b32 s{25 + i % 2}, s21'); a('s_add_u32 s21, s21, s22')
                        a('s_mov_b64 exec, 1'); a(f'buffer_atomic_add v{r}, off, {WS}, s20 sc0 sc1'); a('s_mov_b64 exec, -1')
                        self.vmq.append(('cp', i))
                if self.hp and n in dict(self.hp[0]): self.publish(dict(self.hp[0])[n])
                for n0, n1, el, R in (self.hp[5] if self.hp else []):
                    assert n1 < nQ or (n0 >= nQ + 4 and n1 <= self.PFA)
                    if n == n0: self.board()
                    if n == n1:
                        self.need_vm(('cp', 'bd'))
                        a(f's_movk_i32 s34, {el}'); a(f's_movk_i32 s32, {R}'); a('s_call_b64 s[96:97], L_help')
                if self.flex and n == self.KF:
                    self.need_vm(('cp', 0))
                    R = f's{22 + s}'
                    a('v_readfirstlane_b32 s38, v16'); a('s_add_u32 s38, s38, 1')
                    a(f's_mov_b32 {R}, {self.flex[0][1]}'); a(f's_mul_i32 s44, s38, {R}')
                    b = 0
                    for (n0, r0), (n1, r1) in zip(self.flex, self.flex[1:]):
                        b += n0
                        a(f's_sub_i32 s39, s38, {b}'); a('s_max_i32 s33, s39, 0'); a(f's_mul_i32 s33, s33, {r0 - r1}'); a('s_sub_u32 s44, s44, s33')
                        a('s_cmp_ge_i32 s39, 0'); a(f's_cselect_b32 {R}, {r1}, {R}')
                    a('s_lshl_b32 s44, s44, 9'); a('s_add_u32 s44, s44, s21'); a('s_add_u32 s21, s21, 0x2000000')
                    a(f's_lshl_b32 s90, {R}, 9'); a('s_add_u32 s90, s90, s44'); a('s_min_u32 s90, s90, s10'); a('s_mov_b32 s94, s90')
                    self.stamp(40, 's49', 18, 's38')
                if n == nQ:
                    self.need_vm((s, self.KF + 7 if self.flex else 39))
                    if s == 0:
                        a('s_cmp_eq_u32 s49, 0'); a('s_cbranch_scc1 L_st0'); st_in = list(self.vmq)
                    self.qk1(s, {('u', 1): [(s, n)], ('u', 6): [(s, n + 1)], ('x', 0): [(s, n + 2)], ('e', 0): [(s, n + 3)]}, True)
                    n += 4
                    if s == 0: a.label('L_st0r'); st_out = list(self.vmq)
                    for z in self.zero_acc(): a(z)
                    continue
                self.load(s, n)
                if s == 0 and (n == self.CL or any(x[0] == n for x in self.spf)):
                    l = self.lab('L_it0')
                    a('s_cmp_lg_u32 s49, 0'); a(f's_cbranch_scc1 {l}')
                    if n == self.CL: self.armS()
                    self.wpf(n)
                    a.label(l)
                CK = self.TK if self.flex else (self.PFA or self.PF)
                if s == 0 and n == CK - 8:
                    assert n >= nQ + 4 or (CK < nQ and n > self.CL)
                    l = self.lab('L_it0'); a('s_cmp_lg_u32 s49, 0'); a(f's_cbranch_scc1 {l}')
                    a('v_mov_b32 v22, 0'); a(f'global_load_dword v23, v22, {DBG} offset:{self.CNTA} sc1'); a.label(l)
                if s == 0 and n == CK:
                    self.stamp(22, 's49')
                    l = self.lab('L_it0'); a('s_cmp_lg_u32 s49, 0'); a(f's_cbranch_scc1 {l}')
                    a('s_waitcnt vmcnt(8)'); self.wait_counter(22, 23, 21, self.CNTA, NCHAIN, pre=True)
                    a('v_readfirstlane_b32 s27, v23'); a('s_add_u32 s27, s27, s5'); a.label(l)
                if (self.flex and n == self.TK) or (self.fx2 and n == self.PFA):
                    a('v_mov_b32 v16, 1')
                    a('s_mov_b64 exec, 1'); a(f'buffer_atomic_add v16, off, {WS}, s20 sc0 sc1'); a('s_mov_b64 exec, -1')
                    a('s_add_u32 s20, s20, 2048')
                    self.vmq.append(('cp', 0))
                if n == self.PFA and self.hp: self.board()
                if n == self.PFA:
                    assert n >= nQ + 4 and n < self.PF
                    self.qload(); self.vmq += [('cp', 'qa'), ('cp', 'qb')]
                if n == self.PF:
                    assert n >= nQ + 4
                    self.qload(); self.vmq += [('cp', 'q0'), ('cp', 'q1')]
                n += 1
            self.dyn = False
            if self.fb: a(f's_mov_b32 s59, {self.fb[1]}')
            if self.PFA:
                self.need_vm(('cp', 'qb')); keep = list(self.vmq)
                if self.fx2: a('v_readfirstlane_b32 s35, v16')
                self.stamp(1, 's49')
                self.maxtree(range(self.vQ, self.vQ + 8), 18)
                a(f's_cbranch_vccz L_Xok{s}')
                if self.nox: a('s_cmp_lg_u32 s49, 0'); a(f's_cbranch_scc1 L_Xok{s}')
                if self.fb and len(self.fb) > 2: a(f's_mov_b32 s59, {self.fb[2]}')
            def ahead(what):
                for g in what:
                    if g == 'v': a(f'buffer_load_dword v19, {V4}, s44 offen {self.xpol} lds')
                    else:
                        a(f's_add_u32 s38, s{40 + g}, 0x2000000')
                        if g == 4: a('s_mov_b32 exec_hi, 0xff')
                        a(f'buffer_load_dword v19, {K_SRD}, s38 offen {self.xpol} lds')
                        if g == 4: a('s_mov_b32 exec_hi, -1')
                    self.vmq.append(('cp', 'x'))
            if self.xpf:
                assert self.PFA and not self.flex
                a(f'v_lshlrev_b32 v19, 3, v{self.vL16}'); a(f's_mov_b32 m0, {self.TB + 4 * self.WLDS}')
                ahead(self.xpf[0])
            if self.hp:
                a(f's_movk_i32 s34, {self.hp[1]}'); a('s_movk_i32 s32, 0'); a(f's_call_b64 s[96:97], L_help')
            self.need_vm(('cp', 'q1'))
            for x in (self.xpf or [])[1:]:
                self.maxtree(range(self.vQ, self.vQ + 8), 18)
                a(f's_cbranch_vccz L_Xok{s}')
                self.qload(); ahead(x); a(f's_waitcnt vmcnt({len(x)})')
            if self.PFA: self.vmq = keep
            else: self.stamp(1, 's49')
            a.label(f'L_X{s}')
            self.maxtree(range(self.vQ, self.vQ + 8), 18)
            a(f's_cbranch_vccz L_Xok{s}')
            a.label(f'L_Xpoll{s}')
            if self.fb and len(self.fb) > 3: a('s_sub_i32 s59, s59, 1'); a(f's_max_i32 s59, s59, {self.fb[0]}')
            elif self.fb: a(f's_mov_b32 s59, {self.fb[0]}')
            self.timeout()
            if self.hp and self.hp[4]:
                a(f'v_lshrrev_b32 v19, 1, v{self.vL16}')
                a(f'buffer_load_dword v16, v19, {WS}, s20 offen sc1')
            self.qload()
            a('s_waitcnt vmcnt(0)')
            if self.hp and self.hp[4]:
                self.maxtree(range(self.vQ, self.vQ + 8), 18)
                a(f's_cbranch_vccz L_Xok{s}')
                a('s_movk_i32 s32, 0'); a(f's_call_b64 s[96:97], L_help'); a(f's_branch L_Xpoll{s}')
            else: a(f's_branch L_X{s}')
            a.label(f'L_Xok{s}')
            self.stamp(6, 's49')
            if self.hp and 73 in dict(self.hp[0]): self.publish(dict(self.hp[0])[73])
            if s == 0: a('s_cmp_eq_u32 s49, 0'); a('s_cbranch_scc1 L_first')
            save = list(self.vmq)
            if s == 1 and self.lst: a('s_cmp_eq_u32 s49, 3'); a('s_cbranch_scc1 L_last'); last_save = save
            self.pass2(s, LP)
            if self.diag: a('s_memrealtime s[28:29]')
            if s == 0:
                if not self.fin: a('s_cmp_eq_u32 s49, 4'); a('s_cbranch_scc1 L_fin')
                after = list(self.vmq)
            a.label(f'L_PV{s}')
            self.pv1f(s)
            if self.diag: self.stamp(11, 's49', src='s28')
            a('s_add_u32 s49, s49, 1'); a(f's_add_u32 s47, s47, {PIB}'); a('s_add_u32 s53, s53, 512')
            a('s_add_u32 s56, s56, 8192'); a('s_mov_b32 s46, s56')
            if self.hp: a('s_add_u32 s35, s35, 10')
            if self.odd and (self.odd & 1) != s and not self.fb:
                a(f's_cmp_eq_u32 s49, {self.odd}'); a(f's_cselect_b32 s59, {mid}, s59')
            if self.cps and (self.cpon & 1) != s:
                a(f's_cmp_eq_u32 s49, {self.cpon}'); a('s_cselect_b32 s20, s24, s20'); a(f's_cselect_b32 s22, 16, s22'); a('s_cselect_b32 s21, -1, s21')
                a(f's_cselect_b32 s59, {mid}, s59')
            if s == 0: first_save, first_after = save, after
        if self.lst:
            assert self.fin
            a('s_branch L_A0'); self.vmq = list(last_save); self.last()
        else: a('s_cmp_lg_u32 s49, 4'); a('s_cbranch_scc1 L_A0')
        if self.fin: self.final()
        else:
            a('s_mov_b32 s94, 0')
            for z in self.zero_acc(): a(z)
            a('s_branch L_Xpoll0')
        a.label('L_first')
        self.vmq = first_save; self.lq = []
        a('s_lshl_b32 s38, s3, 9'); a(f'v_add_u32 v18, s38, v{self.vQo}')
        a(f'ds_write_b128 v18, {vr(self.vQ, 4)} offset:{self.Q1L}')
        a(f'ds_write_b128 v18, {vr(self.vQ + 4, 4)} offset:{self.Q1L + 256}')
        for n in range(73, 80): self.load(0, n, wait=False)
        self.share()
        self.need_vm(('cp', 'q1'))
        a('s_waitcnt lgkmcnt(0)'); a('s_barrier')
        pts = [('u', 1), ('u', 4), ('u', 7), ('x', 0), ('e', 0)]; FL = {}
        for i in range(N1): FL.setdefault(pts[i * len(pts) // N1], []).append((1, i))
        self.qk1(0, FL, False)
        assert self.vmq == first_after, (self.vmq, first_after)
        a('s_branch L_PV0')
        a.label('L_fin'); self.stamp(11, 's49'); self.stamp(40, src='s7'); a('s_branch L_end')
        a.label('L_st0')
        self.vmq = st_in; self.dyn = bool(self.lv)
        for n in range(nQ, nQ + 4): self.load(0, n)
        self.dyn = False
        assert self.vmq == st_out, (self.vmq, st_out)
        a('s_branch L_st0r')
        for f in self.later: f()
        if self.hp: self.help()
    CKR = [64, 66, 68, 70, 72, 74, 76, 78, 80, 82]
    def clk(self):
        if self.cyc and self.ck: self.a(f's_memtime s[{self.CKR[self.ck - 1]}:{self.CKR[self.ck - 1] + 1}]'); self.ck += 1
    def publish(self, v):
        a = self.a
        a(f's_add_u32 s38, s35, {v}'); a('v_mov_b32 v18, s38')
        a('s_mov_b64 exec, 1'); a(f'buffer_store_dword v18, off, {WS}, s25'); a('s_mov_b64 exec, -1')
        self.vmq.append(('cp', 'pg'))
    def board(self):
        self.a(f'v_lshrrev_b32 v19, 1, v{self.vL16}')
        self.a(f'buffer_load_dword v16, v19, {WS}, s20 offen sc1'); self.vmq.append(('cp', 'bd'))
    def help(self):
        a = self.a; lo, hi = self.hp[2:4]
        a.label('L_help')
        a('v_subrev_u32 v16, s35, v16')
        a('v_cmp_ge_i32 vcc, s34, v16')
        a('s_and_b32 s33, vcc_lo, 0xfffffff'); a('s_cbranch_scc0 L_help9')
        a('s_bcnt1_i32_b32 s38, s33'); a('s_max_u32 s38, s38, s32'); a('s_bfe_u32 s32, s21, 0x50001'); a('s_mul_i32 s38, s38, s32'); a('s_lshr_b32 s38, s38, 5')
        a('v_mbcnt_lo_u32_b32 v17, s33, 0'); a('v_cmp_eq_u32 vcc, s38, v17')
        a('s_add_u32 s21, s21, 23')
        a('s_and_b32 s38, vcc_lo, s33'); a('s_cbranch_scc0 L_help9')
        a('s_ff1_i32_b32 s32, s38'); a('s_and_b32 s38, s21, 1'); a(f's_mov_b32 m0, {self.TB + 4 * self.WLDS}')
        a('v_readlane_b32 s33, v16, s32'); a(f's_sub_i32 s39, s34, {lo}'); a('s_max_i32 s33, s33, s39'); a('s_add_i32 s33, s33, s38'); a('s_add_i32 s33, s33, 2'); a(f's_min_i32 s33, s33, {hi}')
        a('s_cmp_ge_u32 s32, 14'); a('s_cselect_b32 s38, 14, 0'); a('s_cselect_b32 s39, 0x200000, 0'); a('s_sub_u32 s32, s32, s38')
        a('s_sub_u32 s39, s39, s24'); a('s_add_u32 s39, s39, s40')
        a('s_cmp_lt_i32 s33, 0'); a('s_cselect_b32 s38, 10, 0'); a('s_cselect_b32 s30, 0x2000000, 0'); a('s_add_i32 s33, s33, s38'); a('s_sub_u32 s39, s39, s30')
        a('s_cmp_ge_i32 s33, 10'); a('s_cselect_b32 s38, 10, 0'); a('s_cselect_b32 s30, 0x2000000, 0'); a('s_sub_i32 s33, s33, s38'); a('s_add_u32 s39, s39, s30')
        a('s_cmp_ge_u32 s33, 5'); a('s_cselect_b64 s[28:29], s[12:13], s[8:9]'); a('s_cselect_b32 s38, 0, 3'); a('s_add_u32 s33, s33, s38')
        a('s_mov_b32 s30, 0x8000000'); a('s_mov_b32 s31, 0x20000')
        a('s_cmp_ge_u32 s33, 5'); a('s_cselect_b32 s38, 5, 0'); a('s_sub_u32 s33, s33, s38')
        a(f's_mul_i32 s38, s33, {NW * 8192}'); a('s_add_u32 s39, s39, s38')
        a(f'v_lshlrev_b32 v19, 3, v{self.vL16}')
        a('s_lshl_b32 s38, s32, 6')
        a('s_cmp_lg_u32 s33, 4'); a('s_cbranch_scc1 L_help2')
        a('s_mul_i32 s38, s32, 36'); a('s_min_u32 s32, s32, 8'); a('s_add_u32 s38, s38, s32'); a('s_mul_i32 s32, s3, 7'); a('s_sub_u32 s38, s38, s32')
        a('s_mov_b32 exec_hi, 0xff')
        a.label('L_help2')
        a('s_lshl_b32 s38, s38, 9'); a('s_add_u32 s39, s39, s38')
        a(f'buffer_load_dword v19, s[28:31], s39 offen {self.xpol} lds')
        a('s_mov_b32 exec_hi, -1')
        if self.diag: a('s_add_u32 s7, s7, 0x100')
        a.label('L_help9')
        a('s_setpc_b64 s[96:97]')
    def last(self):
        a = self.a; Q = self.vQ; AC = self.vAcc
        a.label('L_last'); self.lq = []
        for x in self.staddr(): a(x)
        self.ds('ds_read_b96 v[20:22], v18', 'p')
        sets = [(0, 0), (0, 1), (1, 0), (1, 1), (2, 0)]
        prep = lambda i: self.aprep(*sets[i], Q + 4 * (i % 2))
        def hook(p):
            if p == ('u', 0):
                for n in (73, 74, 75): self.load(1, n, False, self.kreg(0, 0) + 4 * (n - 72))
            if p == ('u', 1):
                for n in (76, 77, 78, 79): self.load(1, n, False)
            if p[0] == 'u' and 2 <= p[1] < 6:
                for n in (52 + 2 * p[1], 53 + 2 * p[1]): self.need_vm((1, n)); self.copy(1, 0, 2, n)
            if p == ('p', 7):
                self.need_vm(('cp', 'q1')); self.need_lds('p')
                for x in prep(0)[:2]: a(x)
            if p == ('p', 8):
                for x in prep(0)[2:]: a(x)
        self.qk_part(0, hook, part=1, tb=16)
        for i, (k, P) in enumerate(sets):
            fill = self.epi_pre() if i == 4 else prep(i + 1)
            if i == 4:
                for x in fill: a(x)
                fill = []
            for t in range(4):
                b, tags = self.bop(1, 0, 2, k, P, t)
                if i < 2: self.need_vm((1, 64 + 4 * i + t)); self.copy(1, 0, 2, 64 + 4 * i + t)
                if (i, t) == (2, 0): self.need_vm((1, 72)); self.copy(1, 0, 2, 72)
                if i == 4: self.need_vm((1, 73 + 2 * t))
                for tg in tags: self.need_lds(tg)
                a(f'v_smfmac_f32_16x16x64_bf16 {vr(AC + 4 * t, 4)}, {vr(Q + 4 * (i % 2), 4)}, {rr(b, 8)}, v{self.vIP}')
                n = (len(fill) + (3 - t)) // (4 - t)
                got = fill[:n]; fill = fill[n:]
                for x in got: a(x)
                if (i, t) == (4, 2) and self.lst > 1:
                    for x in self.merge(0): a(x)
        for x in (self.merge(0) if self.lst == 1 else []) + self.merge(2): a(x)
        self.epilogue(0, 1)
        self.stamp(16, 's49')
        for n in range(72, 76): self.ds(f'ds_read_b128 {ar(4 * (n - 72), 4)}, v{self.vDs} offset:{self.ldsslot(0, n) * 1024}', ('c', n))
        for j in range(8): self.copy(0, 0, 0, 56 + j); self.copy(0, 0, 0, 64 + j)
        self.qk_part(0, lambda p: None, part=2)
        sets = [(0, 0), (0, 1), (2, 0), (1, 0), (1, 1)]
        lred = self.lred()
        def prep(i):
            k, P = sets[i]
            return (self.pack(k) if P == 0 else []) + self.aprep(k, P, Q + 4 * (i % 2))
        for x in prep(0): a(x)
        for i, (k, P) in enumerate(sets):
            fill = prep(i + 1) if i + 1 < len(sets) else []
            if i == len(sets) - 1:
                fill = lred + self.epi_pre(); lred = []
            for t in range(4):
                b, tags = self.bop(0, 0, 0, k, P, t)
                if k == 2 and t < 2: b = 256 + 8 * t
                for tg in tags: self.need_lds(tg)
                a(f'v_smfmac_f32_16x16x64_bf16 {vr(AC + 4 * t, 4)}, {vr(Q + 4 * (i % 2), 4)}, {rr(b, 8)}, v{self.vIP}')
                n = (len(fill) + (3 - t)) // (4 - t)
                got = fill[:n]; fill = fill[n:]
                if len(got) < 2 and lred: got.append(lred.pop(0))
                for x in got: a(x)
        for x in self.merge(0) + self.merge(2): a(x)
        self.epilogue(1, 1)
        self.stamp(11, 's49')
        a('s_add_u32 s49, s49, 1'); a(f's_add_u32 s47, s47, {PIB}'); a('s_add_u32 s46, s56, 8192')
        a('s_barrier')
    def final(self):
        a = self.a; Q = self.vQ; AC = self.vAcc; T = self.vT; m = self.vMC; L = self.vL
        self.lq = []; self.vmq = []
        def fb(k, P, t): return 256 + 64 + 8 * (4 * P + t) if k == 1 else self.bop(1, 0, 2, k, P, t)[0]
        for n in range(56, 72):
            a(f'ds_read_b128 {rr(256 + 64 + 8 * ((n - 56) % 8) + 4 * ((n - 56) // 8), 4)}, v{self.vDs} offset:{self.ldsslot(1, n) * 1024}')
        KA = 96; A = [136, 140, 144]; PT = 148
        for z in self.zero_acc(): a(z)
        if self.fin > 1:
            for r in range(0, 40, 2): a(f'v_mov_b64 {vr(KA + r, 2)}, 0')
            a(f'v_cmp_gt_u32 s[40:41], s23, v{self.vBias}'); a(f's_mov_b32 s42, 0x{f2u(2.0 ** 40 if self.fin == 2 else 0.0):x}')
            a('v_mov_b32 v23, 0xff800000'); a(f'v_mov_b32 v{m}, 0')
            if self.mz: a(f's_mov_b32 s43, 0x{f2u(2.0 ** -40):x}'); a(f's_mov_b32 s42, 0x{(80 << 23) if self.fin == 2 else (46 << 23) + (1 << 22) if self.fin == 4 else 0:x}')
        a.label('L_Fpoll')
        self.timeout()
        self.qload()
        a('s_waitcnt vmcnt(0) lgkmcnt(0)')
        self.maxtree(range(Q, Q + 8), 18)
        a('s_cbranch_vccnz L_Fpoll')
        self.stamp(6, 's49')
        self.ck = 1; self.clk()
        def pv(A_, k, P, t): return f'v_smfmac_f32_16x16x64_bf16 {vr(AC + 4 * t, 4)}, {vr(A_, 4)}, {rr(fb(k, P, t), 8)}, v{self.vIP}'
        if self.fin > 1:
            M = []
            for u in range(10):
                for h in range(2): M.append(f'v_smfmac_f32_16x16x64_bf16 {vr(KA + 4 * u, 4)}, {vr(Q + 4 * h, 4)}, {rr(self.kreg(1, u) + 8 * h, 8)}, v{self.vIQ}')
            M += [pv(A[0], 0, 0, t) for t in range(4)] + [pv(A[1], 0, 1, t) for t in range(4)] + [pv(A[0], 1, 0, t) for t in range(4)]
            for t in range(4): M += [pv(A[1], 1, 1, t), pv(A[2], 2, 0, t)]
            G = [[] for _ in M]
            def put(g, ops, per=1):
                for i, x in enumerate(ops): G[g + i // per].append(x)
            for u in range(10):
                ac = KA + 4 * u; t = PT + 2 * (u % 2)
                put(2 * u + 4, [f'v_add_f32 v{t+1}, v{ac+1}, v{ac+3}', f'v_add_f32 v{t}, v{ac}, v{ac+2}'], 2)
                put(2 * u + 5, [f'v_add_f32_dpp v{T + u // 4}, v{t+1}, v{t} quad_perm:[1,1,3,3] row_mask:0x{1 << (u % 4):x} bank_mask:0xf'])
            if not self.mz: put(5, [f'v_add_f32_dpp v{m}, v{PT+1}, v{PT} quad_perm:[1,1,3,3] {FULL}',
                    f'v_max_f32_dpp v{m}, v{m}, v{m} quad_perm:[2,3,0,1] {FULL}', f'v_max_f32_dpp v{m}, v{m}, v{m} row_ror:4 {FULL}',
                    f'v_max_f32_dpp v{m}, v{m}, v{m} row_ror:8 {FULL}', f'v_mul_f32 v{m}, s51, v{m}'])
            ex = lambda k: [f'v_fma_f32 v{T+k}, v{T+k}, s51, -v{m}', f'v_exp_f32 v{T+k}, v{T+k}']
            put(11, ex(0)); put(13, self.pack(0)[:2], 2); put(14, self.pack(0)[2:]); put(15, self.aprep(0, 0, A[0]), 2)
            put(17, self.aprep(0, 1, A[1])[:2], 2); put(18, self.aprep(0, 1, A[1])[2:])
            put(19, ex(1)); put(21, self.pack(1)[:2], 2); put(22, self.pack(1)[2:])
            put(23, [f'v_cndmask_b32 v{T+2}, v23, v{T+2}, s[40:41]'] + ex(2)[:1], 2); put(24, ex(2)[1:])
            put(24, self.aprep(1, 0, A[0]), 2); put(25, self.pack(2)[:1]); put(26, self.pack(2)[1:3], 2); put(27, self.pack(2)[3:4]); put(28, self.pack(2)[4:])
            put(28, self.aprep(1, 1, A[1]), 2); put(30, self.aprep(2, 0, A[2]), 2)
            lr = self.lred()
            put(26, lr[:2]); put(29, lr[2:5]); put(32, lr[5:6]); put(33, lr[6:9], 3); put(34, lr[9:], 2)
            put(32, self.epi_pre()[:2], 2); put(35, [f'v_subrev_u32 v23, s43, v{L}', 'v_cmp_lt_u32 vcc, s42, v23'] if self.mz else [f'v_cmp_lt_f32 vcc, s42, v{L}'], 2); put(35, self.epi_pre()[2:4], 2)
            put(36, ['s_bitcmp1_b32 vcc_lo, 0', 's_cbranch_scc1 L_Fslow'] + self.epi_pre()[4:], 3)
            put(37, self.merge(0), 3)
            for x, g in zip(M, G):
                a(x)
                for y in g: a(y)
            for x in self.merge(2): a(x)
            a.label('L_Fepi')
            self.clk()
            self.epilogue(1, 0, self.vH)
            self.clk()
            if self.cyc:
                for i in range(self.ck - 1): self.stamp(44 + i, src=f's{self.CKR[i]}')
            self.ck = 0
            a('s_branch L_fin')
            a.label('L_Fslow'); a('s_nop 8')
            for z in self.zero_acc(): a(z)
        self.qk_part(1, lambda p: None)
        sets = [(0, 0), (2, 0), (0, 1), (1, 0), (1, 1)]
        lred = self.lred()
        def prep(i):
            k, P = sets[i]
            return (self.pack(k) if P == 0 else []) + self.aprep(k, P, Q + 4 * (i % 2))
        for x in prep(0): a(x)
        for i, (k, P) in enumerate(sets):
            fill = prep(i + 1) if i + 1 < len(sets) else []
            if i == len(sets) - 1:
                fill = lred + self.epi_pre(); lred = []
            for t in range(4):
                a(pv(Q + 4 * (i % 2), k, P, t))
                n = (len(fill) + (3 - t)) // (4 - t)
                got = fill[:n]; fill = fill[n:]
                if len(got) < 2 and lred: got.append(lred.pop(0))
                for x in got: a(x)
        for x in self.merge(0) + self.merge(2): a(x)
        if self.fin > 1: a('s_branch L_Fepi')
        else:
            self.clk()
            self.epilogue(1, 0, self.vH)
            self.clk()
            if self.cyc:
                for i in range(self.ck - 1): self.stamp(44 + i, src=f's{self.CKR[i]}')
            self.ck = 0
            a('s_branch L_fin')
    def share(self):
        a = self.a; F = self.fx2
        if not F: return
        a('s_add_u32 s35, s35, 1'); a(f's_mov_b32 s25, {F[0][1]}'); a('s_mul_i32 s24, s35, s25')
        b = 0
        for (n0, r0), (n1, r1) in zip(F, F[1:]):
            b += n0
            a(f's_sub_i32 s39, s35, {b}'); a('s_max_i32 s33, s39, 0'); a(f's_mul_i32 s33, s33, {r0 - r1}'); a('s_sub_u32 s24, s24, s33')
            a('s_cmp_ge_i32 s39, 0'); a(f's_cselect_b32 s25, {r1}, s25')
        a('s_lshl_b32 s24, s24, 9'); a('s_add_u32 s24, s24, s21'); a('s_add_u32 s21, s21, 0x2000000')
    def armS(self):
        a = self.a
        if not self.nocl: a('s_waitcnt vmcnt(8)')
        self.confirm(24, 20)
        if not self.oarm:
            a('v_lshl_add_u32 v18, v0, 19, s48'); a('v_mov_b64 v[20:21], -1'); a('v_mov_b64 v[22:23], -1')
            a('s_lshl_b32 s38, s3, 20'); a('s_add_u32 s38, s38, s47'); a(f's_add_u32 s39, s38, {PP2}')
            a(f'buffer_store_dwordx4 v[20:23], v{self.vL16}, {WS}, s39 offen sc1')
            a('s_mov_b64 exec, 3')
            a(f'buffer_store_dwordx2 v[20:21], v18, {WS}, s38 offen sc1')
            a('s_cmp_lg_u32 s3, 0'); a('s_cselect_b64 exec, -1, 0')
            a(f'buffer_store_dwordx4 v[20:23], v{self.vL16}, {WS}, s38 offen sc1')
            a('s_mov_b64 exec, -1')
        self.stamp(30, None, 24)
    def qk_part(self, ds_, hook, zero=True, part=3, tb=18):
        a = self.a; T = self.vT; Q = self.vQ; AC = self.vAcc
        def post_a(u):
            ac = AC + 4 * (u % 4); t = tb + 2 * (u % 2)
            a(f'v_add_f32 v{t+1}, v{ac+1}, v{ac+3}'); a(f'v_add_f32 v{t}, v{ac}, v{ac+2}')
        def post_b(u):
            t = tb + 2 * (u % 2)
            a(f'v_add_f32_dpp v{T + u // 4}, v{t+1}, v{t} quad_perm:[1,1,3,3] row_mask:0x{1 << (u % 4):x} bank_mask:0xf')
        for u in range(10 if part & 1 else 0):
            ac = AC + 4 * (u % 4); k = self.kreg(ds_, u)
            a(f'v_smfmac_f32_16x16x64_bf16 {vr(ac, 4)}, {vr(Q, 4)}, {rr(k, 8)}, v{self.vIQ}')
            if u >= 3: post_a(u - 3)
            a(f'v_smfmac_f32_16x16x64_bf16 {vr(ac, 4)}, {vr(Q + 4, 4)}, {rr(k + 8, 8)}, v{self.vIQ}')
            if u >= 3: post_b(u - 3)
            hook(('u', u))
        zf = [f'v_mov_b32 v{AC + r}, 0' for r in list(range(8, 16)) + list(range(8))] if zero else []
        def Z(n=2):
            for _ in range(n):
                if zf: a(zf.pop(0))
        if part == 1:
            z2 = [f'v_mov_b64 {vr(AC + r, 2)}, 0' for r in (8, 10, 12, 14, 0, 2, 4, 6)]
            post_a(7); a(z2[0]); a(z2[1]); post_b(7); hook(('p', 7)); post_a(8); a(z2[2]); a(z2[3]); post_b(8); hook(('p', 8)); post_a(9); a(z2[4]); a(z2[5]); post_b(9); a(z2[6]); a(z2[7])
            return
        a(f'v_cmp_gt_u32 vcc, s{22 + ds_}, v{self.vBias}'); a('v_mov_b32 v23, 0xff800000')
        if part & 1: post_a(7); Z(1); post_b(7); Z(3); post_a(8); Z(1); post_b(8); Z(2); post_a(9); Z(1); post_b(9)
        else: Z(8)
        m = self.vMC; t = 18
        a(f'v_sub_f32 v{T+2}, v{T+2}, v{T+1}'); a(f'v_sub_f32 v{T+1}, v{T+1}, v{T}')
        a(f'v_cndmask_b32 v{T+2}, v23, v{T+2}, vcc')
        a(f'v_max3_f32 v{m}, v{T}, v{T+1}, v{T+2}'); Z()
        a(f'v_max_f32_dpp v{m}, v{m}, v{m} quad_perm:[2,3,0,1] {FULL}'); Z()
        a(f'v_max_f32_dpp v{m}, v{m}, v{m} row_ror:4 {FULL}'); Z()
        a(f'v_max_f32_dpp v{t}, v{m}, v{m} row_ror:8 {FULL}')
        a(f'v_max_f32_dpp v{m}, v{m}, v{m} row_ror:8 {FULL}'); Z()
        a(f'v_permlane16_swap_b32 v{m}, v{t}'); a(f'v_max_f32 v{t+1}, v{m}, v{t}'); a(f'v_max_f32 v{m}, v{m}, v{t}'); Z(8)
        a(f'v_permlane32_swap_b32 v{m}, v{t+1}'); a(f'v_max_f32 v{m}, v{m}, v{t+1}')
        a(f'v_mul_f32 v{m}, s51, v{m}')
        if self.mz:
            a(f'v_cmp_lt_f32 vcc, s50, abs(v{m})'); a(f'v_cndmask_b32 v{m}, 0, v{m}, vcc')
        for k in (0, 2, 1): a(f'v_fma_f32 v{T+k}, v{T+k}, s51, -v{m}')
        for k in (0, 2, 1): a(f'v_exp_f32 v{T+k}, v{T+k}')
        hook(('x', 0))
    def pack(self, k):
        T = self.vT
        o = [f'v_mov_b32_dpp v18, v{T+k} quad_perm:[0,0,0,0] {FULL}',
             f'v_mov_b32_dpp v19, v{T+k} quad_perm:[2,2,2,2] {FULL}',
             f'v_cvt_pk_bf16_f32 v{20+k}, v18, v19']
        if k == 2: o += [f'v_mov_b32_dpp v0, v22 row_shl:4 {FULL}', 'v_permlane32_swap_b32 v22, v0']
        return o
    def aprep(self, k, P, A):
        pp = 20 + k; M = self.vM
        if P == 0:
            return [f'v_and_b32 v{A}, v{pp}, v{M}', f'v_and_b32 v{A+2}, v{pp}, v{M+2}',
                    f'v_and_b32_dpp v{A+1}, v{pp}, v{M+1} row_shr:4 {FULL} bound_ctrl:0',
                    f'v_and_b32_dpp v{A+3}, v{pp}, v{M+3} row_shr:4 {FULL} bound_ctrl:0']
        return [f'v_and_b32 v{A+1}, v{pp}, v{M+1}', f'v_and_b32 v{A+3}, v{pp}, v{M+3}',
                f'v_and_b32_dpp v{A}, v{pp}, v{M} row_shl:4 {FULL} bound_ctrl:0',
                f'v_and_b32_dpp v{A+2}, v{pp}, v{M+2} row_shl:4 {FULL} bound_ctrl:0']
    def lred(self):
        L = self.vL; T = self.vT
        return [f'v_add_f32 v{L}, v{T}, v{T+1}',
                f'v_add_f32 v{L}, v{T+2}, v{L}',
                f'v_add_f32_dpp v{L}, v{L}, v{L} quad_perm:[2,3,0,1] {FULL}',
                f'v_add_f32_dpp v{L}, v{L}, v{L} row_ror:4 {FULL}',
                f'v_add_f32_dpp v{L}, v{L}, v{L} row_ror:8 {FULL}',
                f'v_mov_b32 v23, v{L}', f'v_permlane16_swap_b32 v{L}, v23', f'v_add_f32 v{L}, v{L}, v23',
                f'v_mov_b32 v23, v{L}', f'v_permlane32_swap_b32 v{L}, v23', f'v_add_f32 v{L}, v{L}, v23']
    def merge(self, t0):
        AC = self.vAcc; o = []
        for r in range(4): o.append(f'v_permlane32_swap_b32 v{AC + 4*t0 + r}, v{AC + 4*t0 + 4 + r}')
        for r in range(4):
            if t0 == 0: o.append(f'v_add_f32_dpp v{AC + r}, v{AC + 4 + r}, v{AC + r} row_ror:8 row_mask:0xf bank_mask:0x3')
            else: o.append(f'v_add_f32_dpp v{AC + r}, v{AC + 8 + r}, v{AC + 12 + r} row_ror:8 row_mask:0xf bank_mask:0xc')
        return o
    def staddr(self):
        return [f'v_lshrrev_b32 v18, 6, v{self.vL16}', 'v_lshl_add_u32 v18, v18, 4, s57']
    def qk1(self, s, LP, wait):
        a = self.a; Q = self.vQ
        def hook(p):
            for x in LP.get(p, []): self.load(*x, wait=wait)
        a(f'v_add_u32 v18, s53, v{self.vQo}')
        self.ds(f'ds_read_b128 {vr(Q, 4)}, v18', 'q'); self.ds(f'ds_read_b128 {vr(Q + 4, 4)}, v18 offset:256', 'q')
        for z in self.zero_acc(): a(z)
        self.need_lds('q')
        self.qk_part(s, hook, zero=False)
        pk = self.pack(0) + self.pack(2) + self.pack(1); lr = self.lred()
        while pk or lr:
            if lr: a(lr.pop(0))
            if pk: a(pk.pop(0))
        for x in self.staddr(): a(x)
        a('v_mov_b32 v19, s55')
        a('ds_write_b96 v18, v[20:22]')
        a('s_mov_b64 exec, 1')
        a(f'ds_write_b64 v19, {vr(self.vMC, 2)} offset:{self.MA1[s]}')
        a('s_mov_b64 exec, -1')
        hook(('e', 0))
    def cdst(self, fs, cu0, pi):
        if pi >= 2: pi += 2
        return self.kreg(fs, pi // 2) + 8 * (pi % 2)
    def copy(self, ds_, fs, cu0, n):
        if n >= 72: pi, half = (n - 72) // 2, (n - 72) % 2
        else: pi, half = 2 + (n - 56) % 8, (n - 56) // 8
        self.ds(f'ds_read_b128 {rr(self.cdst(fs, cu0, pi) + 4 * half, 4)}, v{self.vDs} offset:{self.ldsslot(ds_, n) * 1024}', ('c', n))
    def bop(self, ds_, fs, cu0, U, P, t):
        if U == 0: return self.vreg0(ds_, P, t), []
        if U == 1: return self.cdst(fs, cu0, 2 + 4 * P + t), [('c', 56 + 4 * P + t), ('c', 64 + 4 * P + t)]
        if t < 2: return self.cdst(fs, cu0, t), [('c', 72 + 2 * t), ('c', 73 + 2 * t)]
        if cu0: return self.kreg(fs, 1) + 8 * (t - 2), []
        return self.vH + 8 * (t - 2), []
    def pass2(self, s, LP):
        a = self.a; ds_ = 1 - s; Q = self.vQ; AC = self.vAcc
        cplan = {0: [72, 73, 74, 75], 2: [56, 64, 57, 65], 3: [58, 66, 59, 67], 4: [60, 68], 5: [61, 69], 6: [62, 70], 7: [63, 71]}
        def hook(p):
            for n in LP.get(p, []):
                if n == 73: self.need_lds(('c', 75))
                if n < 40: assert p[0] != 'u' or p[1] > self.ORD[n] // 4
                self.load(s if n >= 40 else ds_, n, wait=False)
            if p == ('u', 6): self.share()
            if p[0] == 'u':
                for n in cplan.get(p[1], []): self.copy(ds_, ds_, 0, n)
        self.qk_part(ds_, hook)
        sets = [(0, 0), (2, 0), (0, 1), (1, 0), (1, 1)]
        lred = self.lred()
        def prep(i):
            k, P = sets[i]
            return (self.pack(k) if P == 0 else []) + self.aprep(k, P, Q + 4 * (i % 2))
        self.need_vm(('cp', 'q1'))
        for x in prep(0): a(x)
        for i, (k, P) in enumerate(sets):
            fill = prep(i + 1) if i + 1 < len(sets) else []
            if i == len(sets) - 1:
                fill = lred + self.epi_pre(); lred = []
            for t in range(4):
                b, tags = self.bop(ds_, ds_, 0, k, P, t)
                for tg in tags: self.need_lds(tg)
                a(f'v_smfmac_f32_16x16x64_bf16 {vr(AC + 4 * t, 4)}, {vr(Q + 4 * (i % 2), 4)}, {rr(b, 8)}, v{self.vIP}')
                n = (len(fill) + (3 - t)) // (4 - t)
                got = fill[:n]; fill = fill[n:]
                if len(got) < 2 and lred: got.append(lred.pop(0))
                for x in got: a(x)
            hook(('i', i))
        for x in self.merge(0) + self.merge(2): a(x)
        hook(('m', 0))
        self.epilogue(1, s)
    def epi_pre(self):
        return [f'v_add_u32 v18, s54, v{self.vL16}', 'v_mov_b32 v19, s55', 'v_mov_b32 v20, 1', 'v_mov_b32 v21, 0', 'v_mov_b32 v22, s48']
    def pv1f(self, s):
        a = self.a; fs = 1 - s; Q = self.vQ; AC = self.vAcc
        self.xst = 2
        if self.fx2: a(f's_mov_b32 s{22 + fs}, s25'); self.stamp(40, 's49', 18, 's35')
        def hook(p):
            for n in self.p1l.get(p, []): self.load(fs, n, wait=False)
        for x in self.staddr(): a(x)
        self.ds('ds_read_b96 v[20:22], v18', 'p')
        hook('a')
        for z in self.zero_acc(): a(z)
        self.need_vm((s, 71))
        for n in [56, 64, 57, 65, 58, 66, 59, 67]: self.copy(s, fs, 2, n)
        self.need_lds('p')
        sets = [(0, 0), (0, 1), (1, 0), (1, 1), (2, 0)]
        prep = lambda i: self.aprep(*sets[i], Q + 4 * (i % 2))
        for x in prep(0): a(x)
        for i, (k, P) in enumerate(sets):
            last = (i == len(sets) - 1)
            fill = self.epi_pre() if last else prep(i + 1)
            if i == 1:
                for n in [60, 68, 61, 69, 62, 70, 63, 71]: self.copy(s, fs, 2, n)
            hook(str(i))
            for t in range(4):
                b, tags = self.bop(s, fs, 2, k, P, t)
                if last:
                    if t == 0:
                        self.need_vm((s, 73)); self.copy(s, fs, 2, 72); self.copy(s, fs, 2, 73)
                        self.need_vm((s, 75)); self.copy(s, fs, 2, 74); self.copy(s, fs, 2, 75)
                        for x in fill: a(x)
                        fill = []
                    if t == 2: self.need_vm((s, 77))
                    if t == 3: self.need_vm((s, 79))
                for tg in tags: self.need_lds(tg)
                a(f'v_smfmac_f32_16x16x64_bf16 {vr(AC + 4 * t, 4)}, {vr(Q + 4 * (i % 2), 4)}, {rr(b, 8)}, v{self.vIP}')
                n = (len(fill) + (3 - t)) // (4 - t)
                got = fill[:n]; fill = fill[n:]
                for x in got: a(x)
        self.xst = 0
        for x in self.merge(0) + self.merge(2): a(x)
        hook('m')
        self.epilogue(0, s)
        self.stamp(16, 's49')
        for i in range(8): a(f'v_mov_b64 {vr(self.vH + 2 * i, 2)}, {vr(self.kreg(fs, 1) + 2 * i, 2)}')
    def epilogue(self, p2, s, Zr=None):
        a = self.a; Q = self.vQ; AC = self.vAcc; m = self.vMC; L = self.vL
        CA = self.CA[p2]; MA = self.MA[1] if p2 else self.MA1[s]; CO = self.CO[p2]
        Zr = Zr or self.kreg(1 - s, 2)
        a(f'ds_write_b128 v18, {vr(AC, 4)} offset:{CA}')
        a('s_mov_b64 exec, 1')
        if p2: a(f'ds_write_b64 v19, {vr(self.vMC, 2)} offset:{MA}')
        a(f'ds_add_rtn_u32 v20, v21, v20 offset:{CO}')
        a('s_mov_b64 exec, -1')
        a(f'ds_read_b128 {vr(Q, 4)}, v21 offset:{MA}'); a(f'ds_read_b128 {vr(Q + 4, 4)}, v21 offset:{MA + 16}')
        for w in range(4): a(f'ds_read_b128 {vr(Zr + 4 * w, 4)}, v{self.vL16} offset:{CA + 1024 * w}')
        if p2: a(f's_sub_u32 s38, s47, {PIB - PP2}')
        else: a('s_mov_b32 s38, s47')
        dual = self.home and p2 != s
        if dual: a('s_add_u32 s33, s38, 0x2000'); a(f's_cmp_eq_u32 s49, {3 + p2}'); a(f's_cselect_b32 s33, s33, 0x{OOB:x}')
        a('s_waitcnt lgkmcnt(6)')
        self.clk()
        a('v_readfirstlane_b32 s39, v20'); a('s_and_b32 s39, s39, 3'); a('s_cmp_eq_u32 s39, 3')
        if p2: a('s_cselect_b32 s58, 1, 0')
        elif self.bst: a('s_mov_b32 s26, s59'); a(f's_cselect_b32 s59, {self.bst[0]}, {"s59" if len(self.bst) < 3 else self.bst[2]}')
        l = self.lab('L_nl'); a(f's_cbranch_scc0 {l}')
        a('s_waitcnt lgkmcnt(4)')
        def st(text, pre=None):
            assert self.loc
            x = self.lab('L_ls'); y = self.lab('L_ls')
            a(f's_cbranch_scc1 {x}')
            if pre: a(pre)
            a(text + ' sc1'); a(f's_branch {y}'); a.label(x); a(text); a.label(y)
        if self.mz:
            g = self.lab('L_gen'); j = self.lab('L_join')
            a(f'v_or3_b32 v{m}, v{Q}, v{Q+2}, v{Q+4}'); a(f'v_add_f32 v{L}, v{Q+1}, v{Q+3}'); a(f'v_or_b32 v{m}, v{m}, v{Q+6}'); a(f'v_add_f32 v23, v{Q+5}, v{Q+7}')
            a(f'v_cmp_eq_u32 vcc, 0, v{m}'); a(f'v_add_f32 v{L}, v{L}, v23'); a(f's_cbranch_vccz {g}')
            a('s_waitcnt lgkmcnt(2)')
            for hf in range(2): a(f'v_pk_add_f32 {vr(AC + 2*hf, 2)}, {vr(Zr + 2*hf, 2)}, {vr(Zr + 4 + 2*hf, 2)}')
            a('s_waitcnt lgkmcnt(0)')
            for hf in range(2): a(f'v_pk_add_f32 {vr(Zr + 2*hf, 2)}, {vr(Zr + 8 + 2*hf, 2)}, {vr(Zr + 12 + 2*hf, 2)}')
            for hf in range(2): a(f'v_pk_add_f32 {vr(AC + 2*hf, 2)}, {vr(AC + 2*hf, 2)}, {vr(Zr + 2*hf, 2)}')
            a.label(j)
            a(f's_cmp_eq_u32 s27, {NCHAIN + 1}')
            for r in range(4): a(f'v_min_u32 v{AC + r}, -2, v{AC + r}')
            a(f'v_and_b32 v{L}, -2, v{L}')
            x = self.lab('L_ls')
            a(f's_cbranch_scc0 {x}')
            a(f'buffer_store_dwordx4 {vr(AC, 4)}, v{self.vL16}, {WS}, s38 offen')
            a('s_mov_b64 exec, 1')
            a(f'buffer_store_dwordx2 {vr(m, 2)}, v22, {WS}, s38 offen')
            a('s_mov_b64 exec, -1')
            def rare():
                a.label(x)
                a(f'buffer_store_dwordx4 {vr(AC, 4)}, v{self.vL16}, {WS}, s38 offen sc1')
                a(f'v_or_b32 v{L}, s4, v{L}')
                a('s_mov_b64 exec, 1')
                a(f'buffer_store_dwordx2 {vr(m, 2)}, v22, {WS}, s38 offen sc1')
                a('s_mov_b64 exec, -1')
                a(f's_branch {l}')
                a.label(g)
                a(f'v_max3_f32 v{m}, v{Q}, v{Q+2}, v{Q+4}'); a(f'v_max_f32 v{m}, v{m}, v{Q+6}')
                for w in range(4): a(f'v_sub_f32 v{Q+2*w}, v{Q+2*w}, v{m}')
                for w in range(4): a(f'v_exp_f32 v{Q+2*w}, v{Q+2*w}')
                a(f'v_mul_f32 v{L}, v{Q}, v{Q+1}')
                for w in range(1, 4): a(f'v_fmac_f32 v{L}, v{Q+2*w}, v{Q+2*w+1}')
                a(f'v_min_u32 v{m}, -2, v{m}')
                a('s_waitcnt lgkmcnt(0)')
                for w in range(4):
                    for hf in range(2):
                        if w == 0: a(f'v_pk_mul_f32 {vr(AC + 2*hf, 2)}, {vr(Zr + 2*hf, 2)}, {vr(Q, 2)} op_sel_hi:[1,0]')
                        else: a(f'v_pk_fma_f32 {vr(AC + 2*hf, 2)}, {vr(Zr + 4*w + 2*hf, 2)}, {vr(Q + 2*w, 2)}, {vr(AC + 2*hf, 2)} op_sel_hi:[1,0,1]')
                a(f's_branch {j}')
            self.later.append(rare)
            a.label(l)
            a('s_waitcnt lgkmcnt(0)'); self.lq = []
            return
        a(f'v_max3_f32 v{m}, v{Q}, v{Q+2}, v{Q+4}'); a(f'v_max_f32 v{m}, v{m}, v{Q+6}')
        for w in range(4): a(f'v_sub_f32 v{Q+2*w}, v{Q+2*w}, v{m}')
        for w in range(4): a(f'v_exp_f32 v{Q+2*w}, v{Q+2*w}')
        a(f'v_mul_f32 v{L}, v{Q}, v{Q+1}')
        for w in range(1, 4): a(f'v_fmac_f32 v{L}, v{Q+2*w}, v{Q+2*w+1}')
        a(f'v_min_u32 v{m}, -2, v{m}'); a(f'v_and_b32 v{L}, -2, v{L}')
        a(f's_cmp_eq_u32 s27, {NCHAIN + 1}')
        a('s_mov_b64 exec, 1')
        st(f'buffer_store_dwordx2 {vr(m, 2)}, v22, {WS}, s38 offen', f'v_or_b32 v{L}, s4, v{L}')
        if dual: a(f'buffer_store_dwordx2 {vr(m, 2)}, v22, {WS}, s33 offen sc1')
        a('s_mov_b64 exec, -1')
        a('s_waitcnt lgkmcnt(0)')
        for w in range(4):
            for hf in range(2):
                if w == 0: a(f'v_pk_mul_f32 {vr(AC + 2*hf, 2)}, {vr(Zr + 2*hf, 2)}, {vr(Q, 2)} op_sel_hi:[1,0]')
                else: a(f'v_pk_fma_f32 {vr(AC + 2*hf, 2)}, {vr(Zr + 4*w + 2*hf, 2)}, {vr(Q + 2*w, 2)}, {vr(AC + 2*hf, 2)} op_sel_hi:[1,0,1]')
        for r in range(4): a(f'v_min_u32 v{AC + r}, -2, v{AC + r}')
        st(f'buffer_store_dwordx4 {vr(AC, 4)}, v{self.vL16}, {WS}, s38 offen')
        if dual: a(f'buffer_store_dwordx4 {vr(AC, 4)}, v{self.vL16}, {WS}, s33 offen sc1')
        a.label(l)
        a('s_waitcnt lgkmcnt(0)'); self.lq = []

    RING0 = 8192
    vGO2, vTR, vOOB, vDO, vX0O, vGO, vXR, vXW, vRES = 8, 9, 10, 11, 12, 13, 14, 15, 16
    vAC, vCS, vQS, vRO, vPO, vPO2, vMLO, vOW, vDQ, vX0 = 32, 36, 38, 39, 40, 41, 42, 43, 44, 45
    def vm(self, text, tag=None):
        self.a(text); self.cq.append(tag)
    def vmwait(self, tag):
        if tag in self.cq:
            i = len(self.cq) - 1 - self.cq[::-1].index(tag)
            k = len(self.cq) - 1 - i
            assert k <= 63
            self.a(f's_waitcnt vmcnt({k})'); self.cq = self.cq[i + 1:]
    def arm(self, q=False):
        a = self.a
        if not self.nocl: self.vmwait('init')
        self.confirm(self.vCL, 28)
        for r in range(20, 24): a(f'v_mov_b32 v{r}, -1')
        a('s_lshl2_add_u32 s38, s8, s3'); a('s_mul_i32 s38, s38, 4608'); a(f's_add_u32 s38, s38, 0x{YOFF:x}')
        for i in range(5): self.vm(f'buffer_store_dwordx4 v[20:23], v1, {WS}, s38 offen offset:{min(i * 1024, 3584)} sc1', 'arm')
        if q:
            self.bits('v28', 'v0', 'v29', [(0, 5, 4), (5, 1, 13)])
            a('s_lshl_b32 s38, s8, 9'); a('s_lshl_b32 s39, s3, 14'); a('s_add_u32 s39, s39, s38')
            self.vm(f'buffer_store_dwordx4 v[20:23], v28, {WS}, s39 offen sc1', 'arm')
        else:
            self.pquad('s38'); a('s_lshl_b32 s39, s8, 15'); a('s_add_u32 s38, s38, s39'); a(f's_add_u32 s38, s38, 0x{POFF - 16 * PB:x}')
            for i in range(4): self.vm(f'buffer_store_dwordx4 v[20:23], v1, {WS}, s38 offen offset:{i * 1024} sc1', 'arm')
    def pquad(self, d):
        self.a(f's_and_b32 {d}, s3, 2'); self.a(f's_add_u32 {d}, {d}, s3'); self.a(f's_lshl_b32 {d}, {d}, 12')
    def announce(self, bar=True):
        a = self.a
        if bar: self.vmwait('arm'); a('s_barrier')
        assert 'arm' not in self.cq
        self.signal(28, 29, self.CNTA, 's9')
        self.stamp(21, None, 30)
    def chain_common(self):
        a = self.a
        a('s_lshl4_add_u32 s2, s38, s36'); a('s_mov_b32 s8, s2'); a('s_mov_b32 s9, s5'); a('s_mov_b32 s10, 0')
        if self.diag: a('s_mov_b32 s61, s2'); self.diagbase()
        a('v_lshlrev_b32 v1, 4, v0')
        self.bits('v2', 'v0', 'v6', [(0, 1, 4), (4, 2, 5)])
        self.bits('v4', 'v0', 'v6', [(1, 1, 0), (3, 1, 2), (2, 1, 3)])
        a('s_lshl_b32 s98, s3, 13'); a(f's_add_u32 s98, s98, {self.RING0}'); a('s_movk_i32 s99, 1024')
        a('s_mul_i32 s32, s3, 7168'); a(f's_add_u32 s32, s32, {self.RING0}')
        self.claim(28, 29, self.vCL)
        self.srd(16, 86, 0x20000000)
        self.stamp(0, None, 30)
        a('s_cmp_lt_u32 s2, 16'); a('s_cbranch_scc1 L_roleOQ')
        self.cq = ['init']
        if self.wtlb:
            lo = 30 if self.wtlb == 1 else 16; nw = 4 * (32 - lo)
            a(f's_cmp_lt_u32 s2, {lo}'); a('s_cbranch_scc1 L_notlb')
            a('v_lshlrev_b32 v6, 12, v0'); a(f's_sub_u32 s33, s2, {lo}'); a('s_lshl2_add_u32 s33, s33, s3'); a('s_lshl_b32 s33, s33, 18')
            for lo_, size in ((70, 448 * 8192), (76, 448 * 3584), (78, 448 * 3584), (72, 4096 * 896), (80, 1792 * 896)):
                self.srd(20, lo_, size)
                for i in range(-(-size // (nw << 18))):
                    if i: a(f's_add_u32 s39, s33, {i * nw << 18}')
                    a(f'buffer_load_dword v64, v6, {W1}, {"s39" if i else "s33"} offen nt')
            a.label('L_notlb')
        if self.hq:
            self.srd(20, 70, 448 * 8192)
            self.bits('v6', 'v0', 'v7', [(0, 5, 4), (5, 1, 13)])
            a('s_sub_u32 s33, s2, 16'); a('s_lshl_b32 s33, s33, 9'); a('s_lshl_b32 s39, s3, 14'); a('s_add_u32 s33, s33, s39')
            a(f's_add_u32 s33, s33, {self.hq[0] * 64 * 8192}')
            for i in range(8 * (self.hq[1] - self.hq[0])):
                self.vm(f'buffer_load_dwordx4 v[64:67], v6, {W1}, s33 offen {self.hpol}', 'hq'); a('s_add_u32 s33, s33, 65536')
                if i == 0: self.stamp(61, None, 30)
                if i == 8: self.stamp(63, None, 30)
                if i == 9: self.arm()
                if i == 23: self.announce()
        self.cq0 = list(self.cq)
        a('s_cmp_lt_u32 s2, 30'); a('s_cbranch_scc1 L_roleF')
    def consts(self):
        a = self.a
        a('v_and_b32 v6, 1, v0'); a('v_cmp_eq_u32 vcc, 1, v6')
        a('v_mov_b32 v3, 0x44444444'); a('v_mov_b32 v6, 0xeeeeeeee'); a('v_cndmask_b32 v3, v3, v6, vcc')
        self.bits('v9', 'v0', 'v6', [(0, 5, 3), (5, 1, 10)])
        a('v_mul_u32_u24 v5, 6144, v6'); a('s_mul_i32 s38, s3, 1792'); a('v_add3_u32 v5, v5, v9, s38')
        a(f's_mov_b32 s57, 0x{OOB:x}'); a(f's_mov_b32 s56, 0x{OOB:x}'); a('s_mov_b32 s49, -1')
    vCL = 46
    def preready(self, streams=False):
        self.vm(f'global_load_dwordx2 v[46:47], v18, {DBG} offset:{self.CNTA} sc1', 'cnt')
    def ready(self, streams=False):
        a = self.a
        self.stamp(22, None, 28)
        self.vmwait('cnt')
        self.wait_counter(18, 46, 22, self.CNTA, NCHAIN, pre=True)
        a('s_mov_b32 s56, 0')
        if self.dual: a('s_movk_i32 s57, 0x2000')
        if self.dual and self.role != 'W':
            a('v_readfirstlane_b32 s38, v47'); a('s_getreg_b32 s10, hwreg(HW_REG_XCC_ID, 2, 1)'); a('s_xor_b32 s10, s10, s38'); a('s_and_b32 s10, s10, 1'); a('s_lshl_b32 s10, s10, 13')
            if self.diag:
                a('v_mov_b32 v28, s10'); a('v_mov_b32 v29, 0')
                a(f'buffer_store_dword v28, v29, {WS}, s61 offen offset:{62 * 4}')
        self.stamp(1, None, 28)
    def near(self):
        if not self.dual: return
        a = self.a; l = self.lab('L_nr')
        assert self.hs <= 12
        a('s_mul_i32 s38, s3, 1536'); a(f's_add_u32 s11, s38, 0x{XBOFF:x}')
        a('s_mov_b32 s4, -1'); a('s_mov_b32 s5, -1'); a(f's_mov_b32 s6, {2 * self.hs}')
        a('s_waitcnt vmcnt(0)')
        a.label(l)
        a('s_waitcnt lgkmcnt(0)'); a('s_memtime s[58:59]'); a('s_waitcnt lgkmcnt(0)')
        a(f'buffer_load_dword v28, off, {WS}, s11 sc1'); a('s_waitcnt vmcnt(0)')
        a('s_memtime s[38:39]'); a('s_waitcnt lgkmcnt(0)')
        a('s_sub_u32 s38, s38, s58'); a('s_min_u32 s38, s38, s4'); a('s_mov_b32 s4, s5'); a('s_mov_b32 s5, s38')
        a('s_xor_b32 s11, s11, 0x2000'); a('s_and_b32 s38, s6, 1'); a('s_lshl_b32 s38, s38, 7'); a('s_add_u32 s11, s11, s38')
        a('s_sub_u32 s6, s6, 1'); a('s_cmp_lg_u32 s6, 0'); a(f's_cbranch_scc1 {l}')
        a('s_cmp_gt_u32 s4, s5'); a('s_cselect_b32 s10, 0x2000, 0')
        if self.hforce is not None: a(f's_xor_b32 s10, s10, {self.hforce}')
        a('s_getreg_b32 s38, hwreg(HW_REG_XCC_ID, 2, 1)'); a('s_lshr_b32 s39, s10, 13'); a('s_xor_b32 s38, s38, s39')
        a('v_mov_b32 v28, s38'); a('v_mov_b32 v29, 0')
        a('s_cmp_eq_u32 s3, 0'); a('s_cselect_b64 exec, 1, 0')
        a(f'global_store_dword v29, v28, {DBG} offset:{self.CNTA + 4} sc1'); a('s_mov_b64 exec, -1')
        if self.diag:
            self.stamp(20, None, 28)
            a('s_lshl_b32 s38, s4, 16'); a('s_add_u32 s38, s38, s5'); a('v_mov_b32 v28, s38'); a('v_mov_b32 v29, 0')
            a(f'buffer_store_dword v28, v29, {WS}, s61 offen offset:{62 * 4}')
    def lstore(self, op, data, voff, sp, ss):
        self.a(f'buffer_store_{op} {data}, {voff}, {WS}, {ss} offen sc1')
        if self.dual: self.a(f'buffer_store_{op} {data}, {voff}, {WS}, {sp} offen sc1')
    def dma_sub(self, name, srd, voff, tab, adv):
        a = self.a
        a.label(name)
        for e in range(8):
            a(f'buffer_load_dwordx4 {voff}, {srd}, s{tab + e} offen nt lds')
            if e < 7: a('s_add_u32 m0, m0, s99')
        a(f'v_add_u32 {voff}, 0x{adv:x}, {voff}')
        a('s_setpc_b64 s[96:97]')
    def dma_subB(self, name, srd, voff):
        a = self.a
        a.label(name)
        for cb in range(7):
            a(f'buffer_load_dwordx4 {voff}, {srd}, 0 offen offset:{128 * cb} nt lds')
            if cb < 6: a('s_add_u32 m0, m0, 896')
        a(f'v_add_u32 {voff}, 0x{32 * 896:x}, {voff}')
        a('s_setpc_b64 s[96:97]')
    def poff(self, p): return p['off'] if 'off' in p else p['slot'] * 32768
    def issue(self, p):
        self.a(f's_add_u32 m0, {"s32" if p["B"] else "s98"}, {self.poff(p)}'); self.a(f's_call_b64 s[96:97], {p["sub"]}')
        self.cq += [id(p)] * (7 if p['B'] else 8)
    def readout(self, p, sel=None):
        self.a(f'v_add_u32 v6, {self.RING0 + self.poff(p)}, {"v5" if p["B"] else "v9"}')
        for d, imm in p['rd']:
            if sel is None or sel(d): self.a(f'ds_read_b64_tr_b16 {rr(d, 2)}, v6 offset:{imm}')
    def consume(self, p, nxt=None, hook=None):
        self.vmwait(id(p))
        self.a('s_waitcnt lgkmcnt(0)'); self.a('s_barrier')
        if hook: hook()
        for x in (nxt if isinstance(nxt, list) else [nxt] if nxt else []):
            if 'off' not in x: assert x['slot'] == self.lastslot, (x['slot'], self.lastslot)
            self.issue(x)
        self.readout(p); self.lastslot = p.get('slot')
    def table(self, tab, rs):
        for e in range(8): self.a(f's_mov_b32 s{tab + e}, 0x{(16 * (e & 1) + 2 * ((e >> 1) & 1) + 32 * (e >> 2)) * rs:x}')
    def typeB(self, voff, rowbase_s):
        a = self.a
        a('s_and_b32 s38, s3, 1'); a('s_lshl_b32 s38, s38, 4'); a(f's_add_u32 s38, s38, {rowbase_s}'); a('s_and_b32 s39, s3, 2'); a('s_add_u32 s38, s38, s39')
        a(f'v_add_u32 v6, s38, v4'); a(f'v_mad_u32_u24 {voff}, v6, s99, v2'); a(f'v_lshlrev_b32 v6, 7, v6'); a(f'v_sub_u32 {voff}, {voff}, v6')
    def typeB_reads(self, breg, ks, half):
        return [(breg(jj, ks) + 2 * (e1 + 2 * half), 2 * e1 * 7168 + jj * 256) for jj in range(7) for e1 in range(2)]
    def x0off(self):
        a = self.a
        a(f'v_mov_b32 v10, 0x{OOB:x}')
        self.bits('v6', 'v0', 'v7', [(0, 4, 3), (4, 1, 2), (5, 1, 7)])
        a('s_mul_i32 s38, s3, 224'); a('s_lshl_b32 s39, s3, 5'); a(f's_add_u32 s39, s39, {896 - 224}')
        a('v_cmp_gt_u32 vcc, 224, v6')
        a('v_add_u32 v15, s38, v6'); a('v_add_u32 v6, s39, v6')
        a('v_cndmask_b32 v12, v10, v15, vcc'); a('v_cndmask_b32 v15, v6, v15, vcc')
        a('s_lshl_b32 s38, s3, 9'); a('v_lshl_add_u32 v14, v0, 3, s38'); a('v_cndmask_b32 v14, v10, v14, vcc')
    def gather_offs(self):
        a = self.a
        self.bits('v13', 'v0', 'v6', [(0, 4, 4), (4, 1, 12), (5, 1, 14)])
        a('s_lshl_b32 s38, s3, 8'); a('v_add_u32 v13, s38, v13'); a(f'v_lshl_add_u32 v{self.vRO}, v0, 2, s38')
        a('v_cmp_gt_u32 vcc, 48, v0'); a('v_mov_b32 v18, 0'); a('v_mov_b32 v19, 0'); a('v_cndmask_b32 v8, v10, v13, vcc')
        a('v_and_b32 v6, 8, v0'); a('v_cmp_eq_u32 vcc, 8, v6'); a('v_mov_b32 v6, 0x3c00'); a('v_mov_b32 v7, 0x3c000000')
        a('v_cndmask_b32 v6, v6, v7, vcc'); a('v_and_b32 v7, 7, v0')
        for r, key in enumerate((0, 1, 4, 5)):
            a(f'v_cmp_eq_u32 vcc, {key}, v7'); a('s_nop 1'); a(f'v_cndmask_b32 v{self.vAC + r}, 0, v6, vcc')
    def resid_poll(self, soff):
        a = self.a; l = self.lab('L_rp')
        a.label(l)
        self.timeout()
        a(f'buffer_load_dwordx2 v[16:17], v14, {WS}, {soff} offen sc1'); a('s_waitcnt vmcnt(0)')
        a('v_max_u32 v6, v16, v17'); a('v_cmp_eq_u32 vcc, -1, v6'); a(f's_cbranch_vccnz {l}')
    def repoll(self, loads, full, comp, done):
        a = self.a; p = self.lab('L_mp'); i_ = self.lab('L_mi')
        M = ['vcc' if i == 4 else f's[{88 + 2 * i}:{89 + 2 * i}]' for i in range(len(loads))]
        def masks(to):
            for m, (r, t) in zip(M, loads): a(f'v_cmp_eq_u32 {m}, -1, v{r}')
            a(f's_or_b64 s[38:39], {M[0]}, {M[1]}')
            for m in M[2:]: a(f's_or_b64 s[38:39], s[38:39], {m}')
            a(f's_cbranch_scc0 {to}')
        if done:
            r_ = self.lab('L_mr'); a(f's_cbranch_vccnz {r_}')
            a('s_cmp_eq_u32 s38, 0'); a(f's_cbranch_scc1 {full}'); a(f's_branch {done}')
            a.label(r_)
        masks(full); a(f's_branch {i_}')
        a.label(p)
        masks(comp)
        a.label(i_)
        self.timeout()
        for m, (r, t) in list(zip(M, loads))[4:] + list(zip(M, loads))[:4]: a(f's_mov_b64 exec, {m}'); a(t)
        a('s_mov_b64 exec, -1')
        a(f's_waitcnt vmcnt({len(loads) * (self.mp - 1)})')
        a(f's_branch {p}')
    def gather_sum(self, soff, G, full, res=None):
        a = self.a; l = self.lab('L_g'); d = self.lab('L_gd'); c = self.lab('L_gc')
        mp = self.mp and self.role in self.mpr
        a.label(l)
        self.timeout()
        ld = [(G + 4 * i, f'buffer_load_dwordx4 {vr(G + 4 * i, 4)}, {"v13" if full or i < 2 else "v8"}, {WS}, {soff} offen offset:{1024 * i} sc1') for i in range(4)]
        if res: ld.append((16, f'buffer_load_dwordx2 v[16:17], v14, {WS}, {res} offen sc1'))
        for r, t in ld[4:] + ld[:4]: a(t)
        def comp(w):
            for i in range(4):
                if w: a(f's_waitcnt vmcnt({3 - i})')
                a(f'v_mfma_f32_16x16x32_f16 v[20:23], {vr(self.vAC, 4)}, {vr(G + 4 * i, 4)}, {"v[16:19]" if i == 0 else "v[20:23]"}')
            a('v_cmp_u_f32 vcc, v20, v21')
            a('v_cvt_pk_bf16_f32 v24, v20, v21')
        comp(True)
        a(f's_cbranch_vccz {d}')
        self.maxtree(list(range(G, G + 16)) + ([16, 17] if res else []), 6)
        if mp:
            a(f's_cbranch_vccz {d}')
            self.repoll(ld, l, c, None)
            a.label(c); comp(False); a(f's_cbranch_vccnz {l}')
        else: a(f's_cbranch_vccnz {l}')
        a.label(d)
    def xrow_ops(self, sp, ss):
        return ['v_lshlrev_b32 v20, 16, v24', 'v_and_b32 v21, 0xffff0000, v24',
                f'buffer_store_dwordx2 v[20:21], v14, {WS}, {ss} offen sc1'] + ([f'buffer_store_dwordx2 v[20:21], v14, {WS}, {sp} offen sc1'] if self.dual else [])
    def stats_ops(self, X):
        o = []
        for i in range(4):
            o += [f'v_lshlrev_b32 v26, 16, v{X+i}', f'v_and_b32 v27, 0xffff0000, v{X+i}']
            if i == 0: o += ['v_add_f32 v28, v26, v27', 'v_mul_f32 v30, v26, v26', 'v_fmac_f32 v30, v27, v27']
            else: o += ['v_add_f32 v28, v28, v26', 'v_fmac_f32 v30, v26, v26', 'v_add_f32 v28, v28, v27', 'v_fmac_f32 v30, v27, v27']
        o += [f'v_mov_b32 v26, 0x{f2u(1/448):x}', f'v_mov_b32 v27, 0x{f2u(1e-5):x}', 'v_permlane16_swap_b32 v28, v30', 'v_add_f32 v28, v28, v30']
        for c in ('quad_perm:[1,0,3,2]', 'quad_perm:[2,3,0,1]', 'row_ror:4'):
            o += [None, f'v_add_f32_dpp v28, v28, v28 {c} {FULL}']
        o += [None, f'v_add_f32_dpp v29, v28, v28 row_ror:8 {FULL}', f'v_add_f32_dpp v28, v28, v28 row_ror:8 {FULL}', None,
              'v_permlane32_swap_b32 v28, v29', 'v_add_f32 v28, v28, v29', None,
              'v_readlane_b32 s58, v28, 0', 'v_readlane_b32 s59, v28, 16', None,
              'v_mul_f32 v24, s58, v26', 'v_fmac_f32 v27, s59, v26',
              'v_fma_f32 v27, -v24, v24, v27', 'v_rsq_f32 v25, v27']
        return o
    def gemv(self, ntile, nks, breg, acc, A, fill=(), nother=0):
        a = self.a; fill = list(fill)
        for ks in range(nks):
            a(f's_waitcnt lgkmcnt({min(15, nks - 1 - ks + nother)})')
            for jj in range(ntile):
                a(f'v_smfmac_f32_16x16x64_bf16 {vr(acc + 4 * jj, 4)}, {vr(A + 4 * ks, 4)}, {rr(breg(jj, ks), 8)}, v3')
                for _ in range(2):
                    if fill:
                        x = fill.pop(0)
                        if x: a(x)
        for x in fill:
            if x: a(x)
    def zero(self, base, n):
        for i in range(0, n, 2): self.a(f'v_mov_b64 {vr(base + i, 2)}, 0')
    def rowsel(self, dst, acc, tiles_masks):
        for jj, rm in tiles_masks:
            self.a(f'v_add_f32_dpp v{dst}, v{acc + 4*jj}, v{acc + 4*jj + 1} quad_perm:[0,1,2,3] row_mask:0x{rm:x} bank_mask:0xf')
    def rowout(self, acc, sp, ss):
        a = self.a
        for jj in range(4): self.rowsel(20, acc, [(jj, 1 << jj)])
        for jj in range(3): self.rowsel(21, acc, [(4 + jj, 1 << jj)])
        a('v_cvt_pk_f16_f32 v20, v20, v21'); a('v_min_u32 v20, -2, v20')
        self.lstore('dword', 'v20', f'v{self.vRO}', sp, ss)
    def calc_ib(self):
        a = self.a
        a('s_lshl_b32 s38, s49, 2'); a(f's_lshr_b32 s50, {"0x76352410" if self.reord else "0x73625140"}, s38'); a('s_and_b32 s50, s50, 7')
    def colsum(self, ntile, nks, breg, acc):
        a = self.a
        for r in range(4): a(f'v_mov_b32 v{20 + r}, 0x3f803f80')
        self.zero(acc, 4 * ntile)
        for ks in range(nks):
            for jj in range(ntile):
                a(f'v_smfmac_f32_16x16x64_bf16 {vr(acc + 4 * jj, 4)}, v[20:23], {rr(breg(jj, ks), 8)}, v3')
    def pinit(self, ib0):
        a = self.a
        for r in range(20, 24): a(f'v_mov_b32 v{r}, -1')
        a(f's_add_u32 s38, s3, {ib0}'); a('s_lshl_b32 s38, s38, 18'); a('s_add_u32 s38, s38, s41')
        a('v_lshlrev_b32 v6, 4, v0')
        for i in range(16):
            if i and i % 4 == 0: a('s_add_u32 s38, s38, 4096')
            self.vm(f'buffer_store_dwordx4 v[20:23], v6, {WS}, s38 offen offset:{(i % 4) * 1024} sc1', 'pinit')

    def roleOQ(self):
        a = self.a
        TOG = ['v_xor_b32 v15, 0x400, v15', 'v_xor_b32 v2, 0x400, v2', 'v_xor_b32 v1, 0x400, v1', f'v_xor_b32 v{self.vOW}, 0x400, v{self.vOW}']
        def qreg(jj, ks): return 96 + (ks * 4 + jj) * 8
        def oreg(jj, ks):
            if ks == 3 and jj < 4: return 288 + 8 * jj
            i = jj * 3 + ks if ks < 3 else 21 + jj - 4
            return 320 + 8 * i
        inwin = lambda d: 288 <= d < 320
        X0 = 4
        self.dma_sub('L_dmaQ', W1, f'v{self.vDQ}', 88, 64 * 8192)
        self.dma_subB('L_dmaO', W2, f'v{self.vDO}')
        P = 76; ML = 92; ACC = 48; A = 76
        a.label('L_Osub')
        self.calc_ib()
        a('s_and_b32 s38, s50, 3'); a('s_lshl_b32 s44, s38, 20'); a('s_add_u32 s44, s44, s41')
        a('s_cmp_eq_u32 s38, 3'); a('s_cselect_b32 s38, s55, 0'); a('s_add_u32 s44, s44, s38')
        a('s_lshr_b32 s38, s50, 2'); a('s_lshl_b32 s38, s38, 19'); a('s_add_u32 s44, s44, s38')
        a('s_add_u32 s45, s44, 4096'); a('s_add_u32 s46, s44, 16384'); a('s_add_u32 s47, s44, 20480')
        a('s_lshl_b32 s48, s50, 15'); a('s_add_u32 s48, s48, s40'); a('s_add_u32 s51, s48, s56'); a('s_add_u32 s48, s48, s57')
        self.zero(ACC, 28)
        a('s_cmp_lt_i32 s49, 0'); a('s_cbranch_scc1 L_Ook')
        a.label('L_Oheavy')
        self.timeout()
        ld = [(P + 4 * n, f'buffer_load_dwordx4 {vr(P + 4*n, 4)}, v{self.vPO2 if n == 3 else self.vPO}, {WS}, s{44+n} offen sc1') for n in range(4)]
        ld.append((ML, f'buffer_load_dwordx2 {vr(ML, 2)}, v{self.vMLO}, {WS}, s44 offen sc1'))
        for r, t in ld[4:] + ld[:4]: a(t)
        if self.mp and 'P' in self.mpr: a('s_mov_b32 s38, 1')
        a.label('L_Ocomp')
        a('s_waitcnt vmcnt(4)')
        a(f'v_max_f32_dpp v20, v{ML}, v{ML} quad_perm:[1,0,3,2] {FULL}')
        for c in ('quad_perm:[2,3,0,1]', 'row_ror:4', 'row_ror:8'): a(f'v_max_f32_dpp v20, v20, v20 {c} {FULL}')
        a(f'v_sub_f32 v20, v{ML}, v20'); a('v_exp_f32 v20, v20'); a('v_cndmask_b32 v20, 0, v20, s[42:43]')
        a(f'v_mul_f32 v21, v20, abs(v{ML+1})')
        lred = [f'v_add_f32_dpp v21, v21, v21 {c} {FULL}' for c in ('quad_perm:[1,0,3,2]', 'quad_perm:[2,3,0,1]', 'row_ror:4', 'row_ror:8')]
        for n in range(4):
            a(f's_waitcnt vmcnt({3 - n})')
            for r in range(4):
                a(f'v_{"mul" if n == 0 else "fmac"}_f32_dpp v{24 + r}, v20, v{P + 4*n + r} row_newbcast:{n} {FULL}')
            a(lred[n])
        a('v_permlane16_swap_b32 v24, v25'); a('v_permlane16_swap_b32 v26, v27'); a('v_rcp_f32 v21, v21')
        a('v_add_f32 v24, v24, v25'); a('v_add_f32 v26, v26, v27')
        a('v_permlane32_swap_b32 v24, v26'); a('v_add_f32 v24, v24, v26'); a('v_mul_f32 v24, v24, v21')
        a('v_cmp_u_f32 vcc, v24, v24')
        a('v_cvt_pk_bf16_f32 v24, v24, v24')
        a('s_cbranch_vccz L_Ook0')
        self.maxtree(list(range(P, P + 16)) + [ML, ML + 1], 6)
        if self.mp and 'P' in self.mpr: self.repoll(ld, 'L_Oheavy', 'L_Ocomp', 'L_Ook0')
        else: a('s_cbranch_vccnz L_Oheavy')
        a.label('L_Ook0')
        if self.split:
            a('s_cmp_lg_u32 s49, 0'); a('s_cbranch_scc1 L_Ook')
            a('s_setpc_b64 s[34:35]')
        a.label('L_Ook')
        a(f'ds_write_b16 v{self.vOW}, v24'); a('s_waitcnt lgkmcnt(0)'); a('s_barrier')
        for ks in range(4): a(f'ds_read_b128 {vr(A + 4*ks, 4)}, v2 offset:{128 * ks}')
        self.stamp(3, 's49', 28)
        self.gemv(7, 4, oreg, ACC, A, fill=TOG + ['v_mov_b32 v21, 0'])
        self.rowout(ACC, 's48', 's51')
        self.stamp(12, 's49', 28)
        a('s_add_u32 s49, s49, 1')
        a('s_setpc_b64 s[34:35]')
        G = 64; ACC = 48; A = 64; X = 92
        a.label('L_Qsub')
        self.zero(ACC, 16)
        a('s_lshl_b32 s44, s53, 13'); a('s_add_u32 s44, s44, s54')
        a('s_lshl_b32 s38, s53, 11'); a(f's_add_u32 s47, s38, 0x{XAOFF - 4 * 2048:x}'); a('s_add_u32 s47, s47, s10')
        a('s_add_u32 s45, s38, s33'); a('s_add_u32 s46, s45, s56'); a('s_add_u32 s45, s45, s57')
        a('s_lshl_b32 s48, s53, 15'); a(f's_add_u32 s48, s48, 0x{ZOFF - 4 * 32768:x}'); a('s_add_u32 s48, s48, s10')
        a('s_cmp_lt_u32 s53, 4'); a('s_cbranch_scc1 L_Qx')
        if not self.mres: self.resid_poll('s47')
        self.gather_sum('s48', G, False, 's47' if self.mres else None)
        a.label('L_Qx')
        a('ds_write_b32 v15, v24'); a('s_waitcnt lgkmcnt(0)'); a('s_barrier')
        if self.mp and 'O' in self.mpr:
            l = self.lab('L_qw'); a('s_cmp_lt_u32 s53, 4'); a(f's_cbranch_scc1 {l}'); a('s_waitcnt vmcnt(0)'); a.label(l)
        for ks in range(7): a(f'ds_read_b128 {vr(A + 4*ks, 4)}, v2 offset:{128 * ks}')
        a(f'ds_read_b128 {vr(X, 4)}, v1')
        for x in self.xrow_ops('s45', 's46'): a(x)
        self.stamp(24, 's53', 28)
        fill = TOG + [None, 's_waitcnt lgkmcnt(0)'] + self.stats_ops(X)
        self.gemv(4, 7, qreg, ACC, A, fill=fill, nother=1)
        a(f'v_mul_f32 v21, v24, v{self.vCS}'); a('s_cmp_eq_u32 s9, 1')
        self.rowsel(20, ACC, [(jj, 1 << jj) for jj in range(4)])
        a('v_sub_f32 v20, v20, v21'); a('v_mul_f32 v20, v20, v25')
        a('v_cvt_pk_bf16_f32 v20, v20, v20'); a('v_min_u32 v20, -2, v20')
        if self.loc:
            a('s_cbranch_scc1 L_Qloc')
            a(f'buffer_store_short v20, v{self.vQS}, {WS}, s44 offen sc1'); a('s_branch L_Qst')
            a.label('L_Qloc'); a(f'buffer_store_short v20, v{self.vQS}, {WS}, s44 offen'); a.label('L_Qst')
        else: a(f'buffer_store_short v20, v{self.vQS}, {WS}, s44 offen sc1')
        self.stamp(33, 's53', 28)
        if self.oarm: a('s_lshl_b32 s38, s53, 20'); a('s_add_u32 s38, s38, s11'); a(f's_add_u32 s39, s38, {PP2}')
        a('s_add_u32 s53, s53, 1')
        if self.oarm:
            a('s_cmp_eq_u32 s53, 8'); a('s_cbranch_scc1 L_Qret')
            a('v_mov_b64 v[24:25], -1'); a('v_mov_b64 v[26:27], -1'); a('v_lshlrev_b32 v6, 4, v0')
            for i in range(8): a(f'buffer_store_dwordx4 v[24:27], v6, {WS}, s{38 + i // 4} offen offset:{i % 4 * 1024} sc1')
            a.label('L_Qret')
        a('s_setpc_b64 s[34:35]')
        a.label('L_roleOQ')
        self.stamp(61, None, 30)
        self.cq = ['init']
        a('s_lshl_b32 s38, s2, 9')
        self.srd(20, 70, 448 * 8192)
        a('s_lshl_b32 s39, s3, 7'); a('s_add_u32 s38, s38, s39')
        a(f'v_lshl_add_u32 v{self.vDQ}, v4, 13, s38'); a(f'v_add_u32 v{self.vDQ}, v{self.vDQ}, v2')
        self.table(88, 8192)
        R4 = self.ring4
        pq = [dict(sub='L_dmaQ', B=0, slot=(ks + 2 * R4) % 4, rd=[(qreg(jj, ks) + 2 * rp, rp * 2048 + jj * 256) for jj in range(4) for rp in range(4)]) for ks in range(7)]
        po = [dict(sub='L_dmaO', B=1, slot=(3, 0, 1)[i % 3], rd=self.typeB_reads(oreg, i // 2, i % 2)) for i in range(8)]
        if R4:
            for i, p in enumerate(po): p['off'] = 32768 + 28672 * (i % 4)
        self.issue(pq[0])
        self.stamp(63, None, 30)
        self.srd(28, 64, 3584)
        XL = 48
        a(f'v_mov_b32 v10, 0x{OOB:x}')
        a('v_cmp_gt_u32 vcc, 56, v0'); a('v_bfe_u32 v7, v0, 2, 2'); a('v_mul_u32_u24 v7, 896, v7'); a('v_cndmask_b32 v6, v10, v1, vcc')
        for b in range(4): self.vm(f'buffer_load_dwordx4 {vr(XL + 4 * b, 4)}, v6, {W3}, 0 offen offset:{b * 896}', 'xl')
        a('v_add_u32 v7, v7, v2')
        a('s_mov_b32 s38, 0x3f803f80'); a('s_mov_b32 s39, s38')
        for r in range(0, 28, 2): a(f'v_mov_b64 {vr(A + r, 2)}, s[38:39]')
        a('s_mov_b32 exec_lo, 0x33333333'); a('s_mov_b32 exec_hi, 0x33333333')
        for ks in range(7): self.vm(f'buffer_load_dwordx4 {vr(A + 4 * ks, 4)}, v7, {W3}, 0 offen offset:{128 * ks}', 'xa')
        a('s_mov_b64 exec, -1')
        if not self.ean: self.issue(pq[1])
        self.stamp(56, None, 30)
        self.srd(24, 72, 4096 * 896)
        a('s_lshl_b32 s39, s2, 8')
        self.typeB(f'v{self.vDO}', 's39')
        self.consts(); a('s_lshl_b32 s38, s3, 13'); a('v_add_u32 v9, s38, v9')
        if self.up4: self.issue(pq[2]); self.issue(pq[3])
        self.stamp(57, None, 30)
        self.arm(True)
        self.stamp(58, None, 30)
        if not self.up4: self.issue(pq[1 if self.ean else 2])
        self.vmwait('xl')
        self.stamp(59, None, 30)
        for b in range(4):
            for x in self.stats_ops(XL + 4 * b):
                if x: a(x)
            a(f'v_mov_b32_dpp v92, v24 quad_perm:[0,1,2,3] row_mask:0x{1 << b:x} bank_mask:0xf')
            a(f'v_mov_b32_dpp v93, v25 quad_perm:[0,1,2,3] row_mask:0x{1 << b:x} bank_mask:0xf')
        if self.ean: self.announce(); self.issue(pq[2])
        if not self.up4: self.issue(pq[3])
        self.zero(ACC, 16)
        self.bits('v94', 'v0', 'v6', [(0, 1, 1), (2, 1, 2), (3, 1, 4), (1, 1, 5), (4, 2, 13)])
        a('s_lshl_b32 s38, s3, 7'); a('s_lshl_b32 s44, s2, 9'); a('s_add_u32 s44, s38, s44')
        self.stamp(60, None, 30)
        nxt = {1: pq[4], 2: pq[5], 3: pq[6], 4: po[0]}
        if R4 == 1: nxt[5] = po[1]; nxt[6] = [po[2], po[3]]
        def q1mm(ks):
            for jj in range(4): a(f'v_smfmac_f32_16x16x64_bf16 {vr(ACC + 4 * jj, 4)}, {vr(A + 4 * ks, 4)}, {rr(qreg(jj, ks), 8)}, v3')
        hooks = {} if self.ean else {(3 if self.up4 else 2): lambda: self.announce(False)}
        for i in range(7):
            if i == 3: self.vmwait('arm')
            self.consume(pq[i], nxt.get(i), hooks.get(i))
            self.stamp(41 + i, None, 26)
            if i: q1mm(i - 1)
        a('s_waitcnt lgkmcnt(0)')
        q1mm(6)
        self.stamp(20, None, 28)
        for jj in range(4):
            a(f'v_add_f32 v{20 + jj}, v{ACC + 4*jj}, v{ACC + 4*jj + 1}'); a(f'v_add_f32 v{24 + jj}, v{ACC + 4*jj + 2}, v{ACC + 4*jj + 3}')
        for jj in range(4): a(f'v_fma_f32 v{20 + jj}, -v92, v{24 + jj}, v{20 + jj}')
        for jj in range(4): a(f'v_mul_f32 v{20 + jj}, v{20 + jj}, v93')
        for jj in range(4): a(f'v_cvt_pk_bf16_f32 v{20 + jj}, v{20 + jj}, v{20 + jj}')
        for jj in range(4): a(f'v_min_u32 v{20 + jj}, -2, v{20 + jj}')
        for jj in range(4): self.vm(f'buffer_store_short v{20 + jj}, v94, {WS}, s44 offen offset:{(jj & 1) * 8 + (jj >> 1) * 64} sc1')
        for jj in range(4): a(f'v_mov_b32_dpp v{self.vCS}, v{24 + jj} quad_perm:[0,1,2,3] row_mask:0x{1 << jj:x} bank_mask:0xf')
        self.stamp(35, None, 28)
        if R4 != 1: self.issue(po[1]); self.issue(po[2])
        if R4 == 3: self.issue(po[3])
        a('s_mov_b32 s55, 0'); a(f's_lshl_b32 s41, s2, 15'); a(f's_add_u32 s41, s41, 0x{POFF:x}')
        if self.oarm: self.pquad('s11'); a('s_add_u32 s11, s11, s41'); a(f's_sub_u32 s11, s11, {3 * PIB - PP2}')
        self.x0off(); self.gather_offs()
        a('s_lshl_b32 s40, s2, 10'); a('s_and_b32 s38, s40, 0x2000'); a('s_add_u32 s40, s40, s38'); a(f's_add_u32 s40, s40, 0x{YOFF:x}')
        PO, PO2, MO, OW = self.vPO, self.vPO2, self.vMLO, self.vOW
        self.bits(f'v{PO}', 'v0', 'v6', [(0, 4, 4), (4, 2, 10)])
        a('s_lshl_b32 s38, s3, 8'); a(f'v_add_u32 v{PO}, s38, v{PO}')
        a('v_cmp_gt_u32 vcc, 32, v0'); a('v_lshrrev_b32 v6, 4, v0'); a('v_bfe_u32 v7, v0, 2, 2'); a(f'v_cndmask_b32 v{PO2}, v10, v{PO}, vcc')
        a('v_add_u32 v6, v6, v7'); a('v_and_b32 v6, 3, v6')
        a('v_and_b32 v7, 3, v0'); a('v_lshl_add_u32 v6, v7, 2, v6')
        a(f'v_cmp_gt_u32 s[42:43], {NC}, v6'); a(f'v_min_u32 v6, {NC - 1}, v6'); a(f'v_lshlrev_b32 v{MO}, 7, v6'); a(f'v_add_u32 v{MO}, {MLO}, v{MO}')
        self.bits(f'v{OW}', 'v0', 'v6', [(4, 2, 1), (0, 3, 4), (3, 1, 8)])
        a('s_lshr_b32 s38, s3, 1'); a('s_lshl_b32 s38, s38, 7'); a('s_and_b32 s39, s3, 1'); a('s_lshl_b32 s39, s39, 3'); a('s_add_u32 s38, s38, s39')
        a(f'v_add_u32 v{OW}, s38, v{OW}')
        self.bits(f'v{self.vQS}', 'v0', 'v6', [(0, 1, 1), (2, 1, 2), (4, 1, 3), (3, 1, 4), (1, 1, 5), (5, 1, 6)])
        a('s_lshl_b32 s38, s3, 7'); a(f'v_add_u32 v{self.vQS}, s38, v{self.vQS}')
        a('s_cmp_eq_u32 s2, 0'); a(f's_cselect_b32 s33, 0x{XBOFF - 4 * 2048:x}, s57')
        a('s_mov_b32 s53, 3'); a(f's_mov_b32 s54, 0x{OOB:x}')
        for i in range(8):
            self.consume(po[i], (po[i + 3] if 1 <= i < 5 else None) if R4 else po[i + 2] if 1 <= i < 6 else None, (lambda: self.preready(True)) if i == (4 if self.split else 5) else None)
            self.stamp(48 + i, None, 28)
            if i == 1: a('s_call_b64 s[34:35], L_Osub')
            if i == 2: a('s_call_b64 s[34:35], L_Qsub'); a('s_lshl_b32 s54, s2, 9')
            if i == 5 and self.split:
                self.ready(True); a('s_call_b64 s[34:35], L_Osub'); self.cq = []
                a(f'v_cmp_gt_i32 vcc, 0, v{ML+1}'); a('s_cmp_lg_u64 vcc, 0'); a('s_addc_u32 s9, s9, 0')
        assert self.split and self.reord
        self.stamp(1, None, 28)
        a('s_call_b64 s[34:35], L_Ook')
        a.label('L_OQloop')
        a(f's_movk_i32 s38, 0x{self.qmask:x}'); a('s_bitcmp1_b32 s38, s49'); a('s_cbranch_scc0 L_OQin')
        self.readout(pq[6])
        a('s_call_b64 s[34:35], L_Qsub')
        self.readout(po[6], inwin); self.readout(po[7], inwin)
        a.label('L_OQin')
        a('s_call_b64 s[34:35], L_Osub')
        a('s_cmp_lt_u32 s49, 8'); a('s_cbranch_scc1 L_OQloop')
        a('s_branch L_end')

    def roleF(self):
        a = self.a
        self.dma_sub('L_dmaG', W1, 'v44', 88, 64 * 3584)
        self.dma_subB('L_dmaD', W3, 'v11')
        breg = lambda jj, ks: 256 + (jj * 7 + ks) * 8
        def dreg(jj, ks):
            i = jj * 2 + ks
            return 256 + 224 + 8 * i if i < 4 else 176 + 8 * (i - 4)
        G = 64; ACC = 48; A = 96; X = 124; CSUM = self.vCS; ACD = 128; X0 = 160
        a.label('L_Fsub')
        self.calc_ib()
        self.zero(ACC, 16); self.zero(ACD, 28)
        a('s_lshl_b32 s38, s50, 15'); a(f's_add_u32 s48, s38, 0x{YOFF:x}'); a('s_add_u32 s48, s48, s10')
        a('s_add_u32 s44, s38, s40'); a('s_add_u32 s51, s44, s56'); a('s_add_u32 s44, s44, s57')
        a('s_lshl_b32 s38, s50, 11'); a(f's_add_u32 s47, s38, 0x{XBOFF - 4 * 2048:x}'); a('s_add_u32 s47, s47, s10')
        a('s_and_b32 s39, s38, 0x2000'); a('s_add_u32 s38, s38, s39')
        a('s_add_u32 s45, s38, s41'); a('s_add_u32 s46, s45, s56'); a('s_add_u32 s45, s45, s57')
        a('s_cmp_lt_i32 s49, 0'); a('s_cbranch_scc1 L_Fx')
        a('s_bitcmp1_b32 s50, 2'); a('s_cbranch_scc1 L_Fr')
        a(f'v_lshlrev_b32 v16, 16, v{X0}'); a(f'v_and_b32 v17, 0xffff0000, v{X0}')
        for i in range(3): a(f'v_mov_b32 v{X0 + i}, v{X0 + i + 1}')
        a('s_branch L_Fg')
        a.label('L_Fr')
        self.resid_poll('s47')
        a.label('L_Fg')
        self.gather_sum('s48', G, True)
        a.label('L_Fx')
        a('ds_write_b32 v15, v24'); a('s_waitcnt lgkmcnt(0)'); a('s_barrier')
        for ks in range(7): a(f'ds_read_b128 {vr(A + 4*ks, 4)}, v2 offset:{128 * ks}')
        a(f'ds_read_b128 {vr(X, 4)}, v1')
        for x in self.xrow_ops('s45', 's46'): a(x)
        self.stamp(3, 's49', 28)
        if self.diag: self.stamp(24, 's49', 28, 's52')
        fill = [None] * 5 + ['s_waitcnt lgkmcnt(0)'] + self.stats_ops(X)
        self.gemv(4, 7, breg, ACC, A, fill=fill, nother=1)
        a(f'v_mul_f32 v22, v24, v{CSUM}'); a(f'v_mul_f32 v23, v24, v{CSUM+1}'); a('v_mul_f32 v25, v25, v25')
        for jj in (0, 2, 1, 3): self.rowsel(20 + jj // 2, ACC, [(jj, 10 if jj & 1 else 5)])
        a('v_sub_f32 v20, v20, v22'); a('v_sub_f32 v21, v21, v23')
        a('v_max_f32 v20, 0, v20'); a('v_mul_f32 v21, v21, v25'); a('v_mul_f32 v20, v20, v21')
        a('v_cvt_pk_bf16_f32 v20, v20, v20')
        a('ds_write_b16 v40, v20'); a('s_waitcnt lgkmcnt(0)'); a('s_barrier')
        for ks in range(2): a(f'ds_read_b128 {vr(A + 4*ks, 4)}, v2 offset:{2048 + 128 * ks}')
        a('v_mov_b32 v21, 0')
        self.gemv(7, 2, dreg, ACD, A)
        self.rowout(ACD, 's44', 's51')
        self.stamp(12, 's49', 28)
        a('s_add_u32 s49, s49, 1')
        a('s_cmp_eq_u32 s49, 0'); a('s_cbranch_scc1 L_Fret')
        a('s_cmp_lt_u32 s49, 8'); a('s_cbranch_scc1 L_Fsub')
        a('s_branch L_end')
        a.label('L_roleF')
        self.cq = list(self.cq0); done = 8 * (self.hq[1] - self.hq[0]) if self.hq else 0
        a('s_cmp_lt_u32 s3, 2'); a('s_cselect_b64 s[20:21], s[76:77], s[78:79]'); a(f's_mov_b32 s22, 0x{448 * 3584:x}'); a('s_mov_b32 s23, 0x20000')
        a('s_sub_u32 s2, s2, 16')
        a('v_mul_u32_u24 v6, 3584, v4')
        a('s_lshl_b32 s38, s2, 8'); a('s_and_b32 s39, s3, 1'); a('s_lshl_b32 s39, s39, 7'); a('s_add_u32 s38, s38, s39')
        a('v_add3_u32 v44, v6, v2, s38')
        self.table(88, 3584)
        pl = [dict(sub='L_dmaG', B=0, rd=[(breg(jj, ks) + 2 * rp, (jj >> 1) * 16384 + rp * 2048 + (jj & 1) * 256) for jj in range(4) for rp in range(4)]) for ks in range(7)]
        pl += [dict(sub='L_dmaD', B=1, rd=self.typeB_reads(dreg, i // 2, i % 2)) for i in range(4)]
        for i, p in enumerate(pl): p['slot'] = i % 4
        self.stamp(56, None, 30)
        for i in range(1 if self.ean else 2): self.issue(pl[i])
        self.stamp(57, None, 30)
        self.srd(28, 80, 1792 * 896); self.srd(68, 64, 3584)
        a('s_lshl_b32 s39, s2, 7')
        self.typeB('v11', 's39')
        self.consts()
        a('s_lshr_b32 s38, s3, 1'); a('s_lshl_b32 s38, s38, 13'); a('s_and_b32 s39, s3, 1'); a('s_lshl_b32 s39, s39, 9'); a('s_add_u32 s38, s38, s39'); a('v_add_u32 v9, s38, v9')
        self.x0off(); self.gather_offs()
        for b in range(4): self.vm(f'buffer_load_dword v{X0 + b}, v12, s[68:71], 0 offen offset:{b * 896}', 'x0')
        a('v_and_b32 v6, 31, v0'); a('s_lshl_b32 s38, s3, 6'); a('s_add_u32 s38, s38, 2048'); a('v_lshl_add_u32 v40, v6, 1, s38')
        a('s_lshl_b32 s40, s2, 10'); a('s_and_b32 s38, s40, 0x2000'); a('s_add_u32 s40, s40, s38'); a(f's_add_u32 s40, s40, 0x{ZOFF:x}')
        a('s_cmp_eq_u32 s2, 0'); a(f's_cselect_b32 s41, 0x{XAOFF:x}, s57')
        if done < 10: self.arm()
        elif done < 24: self.announce()
        if self.ean:
            assert not done
            self.issue(pl[1]); self.announce()
        self.stamp(58, None, 30)
        self.issue(pl[2])
        a('s_branch L_Fsub')
        a.label('L_Fret')
        self.issue(pl[3])
        self.stamp(59, None, 30)
        hooks = {2: lambda: self.announce(False)} if done < 10 and not self.ean else {}
        hooks[7] = self.preready
        for i in range(11):
            self.consume(pl[i], pl[i + 3] if 1 <= i < 8 else None, hooks.get(i))
            if self.ho and i == self.ho[2]: self.wo_pf('s2')
            self.stamp(41 + i, None, 26)
            if i == 7:
                self.stamp(20, None, 28)
                self.colsum(4, 7, breg, ACC)
                self.rowsel(CSUM, ACC, [(0, 5), (1, 10)]); self.rowsel(CSUM + 1, ACC, [(2, 5), (3, 10)])
        self.ready()
        a('s_branch L_Fsub')

    def wo_pf(self, head, add=0):
        a = self.a; p0, p1 = self.ho[:2]
        self.srd(24, 72, 4096 * 896)
        nb = (p1 - p0) * 28672; per = nb // 4
        a(f's_mul_i32 s38, {head}, 229376'); a(f's_mul_i32 s39, s3, {per}'); a('s_add_u32 s38, s38, s39'); a(f's_add_u32 s38, s38, {p0 * 28672 + add * 229376}')
        a('v_min_u32 v6, 55, v0'); a('v_lshlrev_b32 v6, 7, v6')
        for i in range(p1 - p0):
            self.vm(f'buffer_load_dword v45, v6, {W2}, s38 offen {self.hpol}', 'ho'); a('s_add_u32 s38, s38, 7168')
    def roleW(self):
        a = self.a
        self.cq = list(self.cq0); done = 8 * (self.hq[1] - self.hq[0]) if self.hq else 0
        self.consts()
        if done < 10: self.arm()
        if done < 24: self.announce()
        a('s_sub_u32 s2, s2, 30')
        if self.hpf: self.helper()
        if self.ho: self.wo_pf('s2', 14)
        if self.w2:
            a('s_lshr_b32 s38, s3, 1'); a('s_cmp_lg_u32 s2, s38'); a('s_cbranch_scc1 L_end')
            if self.diag: a('s_lshl_b32 s38, s2, 13'); a('s_sub_u32 s61, s61, s38')
        else: a('s_cmp_lg_u32 s2, 0'); a('s_cbranch_scc1 L_end')
        self.near()
        self.srd(20, 82, 3584)
        self.x0off(); self.gather_offs()
        self.preready(); self.ready()
        G = 64
        a('s_mov_b32 s49, 0'); a(f's_add_u32 s47, s10, 0x{XAOFF + 16384:x}'); a(f's_add_u32 s48, s10, 0x{ZOFF + 4 * 32768:x}'); a('s_mov_b32 s44, 0')
        a.label('L_Wtop')
        if not self.mres: self.resid_poll('s47')
        self.gather_sum('s48', G, False, 's47' if self.mres else None)
        a(f'buffer_store_dword v24, v12, {W1}, s44 offen')
        self.stamp(12, 's49', 28)
        if self.diag: self.stamp(24, 's49', 28, 's52')
        a('s_add_u32 s49, s49, 1'); a('s_add_u32 s47, s47, 2048'); a('s_add_u32 s48, s48, 32768'); a('s_add_u32 s44, s44, 896')
        a('s_cmp_lt_u32 s49, 4'); a('s_cbranch_scc1 L_Wtop')
        a('s_branch L_end')
    def helper(self):
        a = self.a
        hq, ho = self.hpf if isinstance(self.hpf, (list, tuple)) else (48, 48)
        a('s_lshl_b32 s38, s2, 2'); a('s_add_u32 s38, s38, s3')
        self.srd(20, 70, 448 * 8192); self.srd(24, 72, 4096 * 896)
        a('s_lshl_b32 s40, s38, 10'); a(f's_add_u32 s40, s40, {(448 - hq) * 8192}')
        l = self.lab('L_hq'); a(f's_mov_b32 s41, {hq}')
        if hq:
            a.label(l)
            a('s_waitcnt vmcnt(11)'); a(f'buffer_load_dwordx4 v[64:67], v1, {W1}, s40 offen {self.hpol}')
            a('s_add_u32 s40, s40, 8192'); a('s_sub_u32 s41, s41, 1'); a('s_cmp_lg_u32 s41, 0'); a(f's_cbranch_scc1 {l}')
        if ho:
            a('s_mul_i32 s40, s38, 458752'); a(f's_add_u32 s40, s40, {229376 - ho * 1024}'); a('s_add_u32 s42, s40, 229376')
            l = self.lab('L_ho'); a(f's_mov_b32 s41, {ho}')
            a.label(l)
            a('s_waitcnt vmcnt(10)'); a(f'buffer_load_dwordx4 v[64:67], v1, {W2}, s40 offen {self.hpol}')
            a(f'buffer_load_dwordx4 v[64:67], v1, {W2}, s42 offen {self.hpol}')
            a('s_add_u32 s40, s40, 1024'); a('s_add_u32 s42, s42, 1024'); a('s_sub_u32 s41, s41, 1'); a('s_cmp_lg_u32 s41, 0'); a(f's_cbranch_scc1 {l}')
        a('s_waitcnt vmcnt(0)')
        self.stamp(20, None, 28)

if __name__ == '__main__':
    kw = json.loads(sys.argv[2]) if len(sys.argv) > 2 else {}
    open(sys.argv[1], 'w').write(Gen(**kw).build())
```

```python
import sys, struct, json
from asmlib import Asm
NAME = "interleave_layers__mha_block_cached__glu_gated_reglu__decode"

QOFF = 0x0; YOFF = 0x10000; ZOFF = 0x50000; XAOFF = 0x90000; XBOFF = 0x98000; HOFF = 0x9c000; COFF = 0x9a000 - 0x2000 + 0x8000; POFF = 0x800000; DOFF = 0x400000
PB = 32768; PIB = 0x100000; PP2 = 0x80000; MLO = 16384 + 6144
OOB = 0x40000000
NC = 14; NW = 56
CS = 0.09016844005556021
def f2u(x): return struct.unpack('<I', struct.pack('<f', x))[0]

K_SRD = 's[8:11]'; V_SRD = 's[12:15]'; WS = 's[16:19]'; W1 = 's[20:23]'; W2 = 's[24:27]'; W3 = 's[28:31]'
DBG = 's[84:85]'
NCHAIN = 32
K4 = 's[88:91]'; V4 = 's[92:95]'
FULL = 'row_mask:0xf bank_mask:0xf'

def vr(b, n=1): return f'v{b}' if n == 1 else f'v[{b}:{b+n-1}]'
def ar(b, n=1): return f'a{b}' if n == 1 else f'a[{b}:{b+n-1}]'
def rr(b, n=1): return vr(b, n) if b < 256 else ar(b - 256, n)

class Gen:
    def __init__(self, diag=False, PF=65, depth=8, hpf=False, hpol='nt', cpf=False, rows=(16, 10, 7), hq=None, fake=0, CL=12, PF2=None, reord=1, lightO=0, split=True, tlb=0, fx=2, thr=None, wtlb=0, probe=None, kpol='nt', vpol='nt', par=None, nQ=48, nE=60, early=False, sub=None, qE=None, ring4=0, up4=False, ho=None, pos=None, home=0, hforce=None, lv=None, lvx=None, th=None, cps=None, rs=None, gs=14, kvonly=True, ed=False, mid=None, fast=((2, (73, 74, 75)), (3, (76, 77)), (4, (78, 79))), boost=None, fld=(2, 2), nQ1=None, cpon=None, odd=None, slow=None, xsl=0, loc=1, spf=None, mres=1, dual=1, hs=4, ean=1, SG=24, pw=12, flex=None, KF=52, TK=41, qmask=0x96, fw=(), fb=None, bst=None, fine=(), cla=0, arl=None, wsw=0, noarm=0, PFA=None, xpf=None, oarm=0, xpol='', fx2=None, p0=8, nox=0, nocl=0, mp=0, fin=0, cyc=0, mz=0, lst=0, w2=0, mpr='FW', hp=None, rm=None, vpf=None, eq=None, hl=None,
                 p2l=((('u', 2), (73, 74, 75)), (('u', 3), (76, 77)), (('u', 4), (78, 79)), (('u', 9), (0,)), (('x', 0), (1,)), (('i', 0), (2,)), (('i', 2), (3,)), (('i', 4), (4,)), (('m', 0), (5,))),
                 p1l={'a': (6, 7), '1': (8, 9), '2': (10,), '3': (11, 12), '4': (13,), 'm': (14, 15)}):
        self.hl = hl; self.eq = eq; self.vpf = vpf; self.rm = rm; self.hp = hp; self.mpr = mpr; self.w2 = w2; self.lst = lst; self.mz = mz; self.cyc = cyc; self.ck = 0; self.fin = fin; self.mp = mp; self.nox = nox; self.nocl = nocl; self.fine = list(fine); self.cla = cla; self.arl = arl; self.wsw = wsw; self.noarm = noarm; self.PFA = PFA; self.p0 = p0; self.fx2 = fx2; self.xpf = xpf; self.xpol = xpol; self.oarm = oarm; self.fb = fb; self.bst = bst; self.fw = fw; self.flex = flex; self.KF = KF; self.TK = TK; self.qmask = qmask
        if flex:
            rest = list(range(48, 80)); rest[KF - 40:KF - 40] = range(32, 40)
            self.ORD = list(range(24, 32)) + list(range(40, 48)) + list(range(24)) + rest
            assert sum(n for n, r in flex) == NW and sum(n * r for n, r in flex) == 512 and nQ >= KF + 8
        self.SG = SG; self.pw = pw; self.p2l = p2l; self.p1l = p1l
        self.dual = dual; self.hs = hs; self.ean = ean
        self.loc = loc; self.spf = spf or []; self.mres = mres
        self.xsl = xsl
        self.slow = slow
        self.odd = odd
        self.cpon = cpon
        self.nQ1 = nQ1 or nQ
        self.fast = fast; self.boost = boost; self.fld = fld; self.xst = 0
        if boost: lv = [depth, boost[1]]
        self.kvonly = kvonly; self.ed = ed; self.mid = mid
        self.lv = lv; self.lvx = lvx; self.th = th; self.cps = cps or []; self.rs = rs; self.dyn = False; self.gs = gs
        self.hforce = hforce
        self.home = home
        self.pos = pos
        self.ring4 = ring4; self.up4 = up4; self.ho = ho
        self.sub = sub; self.qE = qE
        self.par = par; self.nQ = nQ; self.nE = nE; self.early = early
        self.pmul = 10 if not probe or len(probe) < 3 else probe[2]; probe = probe and probe[:2]; self.probe = probe; self.role = 'X'; self.kpol = kpol; self.vpol = vpol
        self.a = Asm(); self.diag = diag; self.PF = PF; self.depth = depth; self.hpf = hpf; self.hpol = hpol; self.cpf = cpf; self.rows = rows; self.hq = hq; self.fake = fake; self.CL = CL; self.PF2 = PF2; self.reord = reord; self.lightO = lightO; self.split = split; self.tlb = tlb; self.fx = fx; self.thr = thr; self.wtlb = wtlb
        self.uid = 0
    def lab(self, p='L'):
        self.uid += 1; return f'{p}_{self.uid}'

    def bits(self, dst, lane, tmp, mp):
        a = self.a; first = True
        for lb, n, ab in mp:
            if first:
                a(f'v_bfe_u32 {dst}, {lane}, {lb}, {n}')
                if ab: a(f'v_lshlrev_b32 {dst}, {ab}, {dst}')
                first = False
            else:
                a(f'v_bfe_u32 {tmp}, {lane}, {lb}, {n}')
                a(f'v_lshl_add_u32 {dst}, {tmp}, {ab}, {dst}')
    def srd(self, base, lo, size):
        a = self.a
        a(f's_mov_b64 s[{base}:{base+1}], s[{lo}:{lo+1}]')
        a(f's_mov_b32 s{base+2}, 0x{size:x}'); a(f's_mov_b32 s{base+3}, 0x20000')
    def timeout(self):
        self.a('s_sub_u32 s52, s52, 1'); self.a('s_cbranch_scc1 L_bail')
        if self.xsl and self.role != 'S': self.a(f's_sleep {self.xsl}')
    FLAG = 4096; CNTA = 16; CNTB = 144
    def wait_counter(self, va, vd, vt, off, n, pre=False):
        a = self.a; l = self.lab('L_cnt'); c = self.lab('L_cntc')
        if pre: a(f's_branch {c}')
        else: a(f'v_mov_b32 v{va}, 0')
        a.label(l)
        self.timeout()
        a(f'global_load_dword v{vd}, v{va}, {DBG} offset:{off} sc1'); a('s_waitcnt vmcnt(0)')
        a.label(c)
        a(f'v_and_b32 v{vt}, {"0xffff" if self.nocl else "0xff"}, v{vd}'); a(f'v_cmp_gt_u32 vcc, {n}, v{vt}'); a(f's_cbranch_vccnz {l}')
    def claim(self, va, vd, vr_):
        a = self.a; l = self.lab('L_cl')
        if self.nocl: a(f'v_mov_b32 v{va}, 0'); a('s_waitcnt lgkmcnt(0)'); return
        a('s_lshl_b32 s38, 1, s101'); a(f'v_mov_b32 v{va}, s100'); a(f'v_mov_b32 v{vd}, s38')
        a('s_or_b32 s38, s3, s7')
        a('s_waitcnt lgkmcnt(0)')
        a(f's_cbranch_scc1 {l}')
        a('s_mov_b64 exec, 1')
        a(f'global_atomic_or v{vr_}, v{va}, v{vd}, {DBG} sc0 sc1')
        a('s_mov_b64 exec, -1')
        a.label(l)
    def confirm(self, vr_, t):
        a = self.a; l = self.lab('L_rs'); w = self.lab('L_rw')
        if self.nocl: return
        a(f'v_mov_b32 v{t}, 0')
        a('s_cmp_lg_u32 s3, 0'); a(f's_cbranch_scc1 {l}')
        a('s_movk_i32 s38, 0x100'); a('s_cmp_lg_u32 s7, 0'); a(f's_cbranch_scc1 {w}')
        a(f'v_readfirstlane_b32 s39, v{vr_}'); a('s_bitcmp1_b32 s39, s101'); a(f's_cbranch_scc0 {w}')
        a('s_call_b64 s[96:97], L_lost')
        a.label(w)
        a(f'v_mov_b32 v{t+1}, s38'); a(f'ds_write_b32 v{t}, v{t+1} offset:{self.FLAG}'); a('s_waitcnt lgkmcnt(0)')
        a.label(l)
        a('s_barrier')
        a(f'ds_read_b32 v{t+1}, v{t} offset:{self.FLAG}'); a('s_waitcnt lgkmcnt(0)')
        a(f'v_readfirstlane_b32 s38, v{t+1}'); a('s_cmp_lg_u32 s38, 0x100'); a('s_cbranch_scc1 L_redo')
    def signal(self, va, vd, off, val):
        a = self.a; l = self.lab('L_sg')
        a('s_cmp_lg_u32 s3, 0'); a(f's_cbranch_scc1 {l}')
        a('s_mov_b64 exec, 1'); a(f'v_mov_b32 v{va}, 0'); a(f'v_mov_b32 v{vd}, {val}')
        a(f'global_atomic_add v{va}, v{vd}, {DBG} offset:{off} sc1')
        a('s_mov_b64 exec, -1')
        a.label(l)
    def rare_paths(self):
        a = self.a
        a.label('L_odd')
        a('s_waitcnt lgkmcnt(0)'); a('v_mov_b32 v1, 0')
        a('s_cmp_lg_u32 s3, 0'); a('s_cbranch_scc1 L_odd2')
        a('s_and_b32 s38, s36, 3'); a('s_lshl_b32 s38, s38, 6'); a('s_lshr_b32 s39, s36, 2'); a('s_lshl3_add_u32 s38, s39, s38')
        a('v_mov_b32 v2, s38'); a('s_lshl_b32 s39, s37, 3'); a('s_movk_i32 s41, 24')
        a.label('L_odd1')
        a(f'global_load_dword v3, v2, {DBG} sc1'); a('s_waitcnt vmcnt(0)')
        a('v_readfirstlane_b32 s38, v3'); a('s_lshr_b32 s38, s38, s39'); a('s_and_b32 s38, s38, 0xff'); a('s_bcnt1_i32_b32 s40, s38')
        a('s_cmp_ge_u32 s40, 7'); a('s_cselect_b32 s41, 0, s41'); a('s_sub_u32 s41, s41, 1'); a('s_cbranch_scc0 L_odd1')
        a('s_ff0_i32_b32 s38, s38'); a('v_mov_b32 v2, s38'); a(f'ds_write_b32 v1, v2 offset:{self.FLAG + 4}'); a('s_waitcnt lgkmcnt(0)')
        a.label('L_odd2')
        a('s_barrier')
        a(f'ds_read_b32 v2, v1 offset:{self.FLAG + 4}'); a('s_waitcnt lgkmcnt(0)')
        a('v_readfirstlane_b32 s38, v2'); a('s_mov_b32 s6, 1'); a('s_branch L_even')
        a.label('L_lost')
        a('s_waitcnt vmcnt(0)')
        self.bits('v62', 'v0', 'v63', [(0, 2, 6), (2, 1, 3)])
        a.label('L_lost1')
        a(f'global_load_dword v60, v62, {DBG} sc1'); a('s_waitcnt vmcnt(0)')
        a('v_cmp_ne_u32 vcc, -1, v60'); a('s_movk_i32 s38, 0x300'); a('s_cbranch_vccz L_lost2')
        a('s_getreg_b32 s39, hwreg(HW_REG_XCC_ID, 0, 3)'); a('s_ff1_i32_b32 s38, vcc_lo')
        a('s_bitcmp1_b32 vcc_lo, s39'); a('s_cselect_b32 s38, s39, s38')
        a('s_nop 3'); a('v_readlane_b32 s39, v60, s38'); a('v_readlane_b32 s40, v62, s38'); a('s_ff0_i32_b32 s39, s39')
        a('s_lshl_b32 s41, 1, s39'); a('v_mov_b32 v61, s41'); a('v_mov_b32 v63, s40')
        a('s_mov_b64 exec, 1'); a(f'global_atomic_or v60, v63, v61, {DBG} sc0 sc1'); a('s_mov_b64 exec, -1'); a('s_waitcnt vmcnt(0)')
        a('v_readfirstlane_b32 s40, v60'); a('s_bitcmp1_b32 s40, s39'); a('s_cbranch_scc1 L_lost1')
        a('s_lshl_b32 s38, s38, 5'); a('s_add_u32 s38, s38, s39'); a('s_bitset1_b32 s38, 9')
        a.label('L_lost2')
        a('s_setpc_b64 s[96:97]')
        a.label('L_redo')
        a('s_bitcmp1_b32 s38, 8'); a('s_cbranch_scc1 L_bail')
        a('s_waitcnt vmcnt(0) lgkmcnt(0)'); a('s_barrier')
        a('s_load_dwordx16 s[64:79], s[0:1], 0')
        a('s_load_dwordx8 s[80:87], s[0:1], 64')
        a('s_bfe_u32 s36, s38, 0x30005'); a('s_and_b32 s2, s38, 31'); a('s_mov_b32 s7, 1')
        a('s_branch L_role')
    def stamp(self, idx, sidx=None, t0=20, src='s62'):
        if self.probe and not self.diag:
            role, want = self.probe
            if role != self.role or (sidx is None and idx != want) or (sidx and not (0 <= want - idx < 9)): return
            a = self.a
            a('s_waitcnt lgkmcnt(0)'); a('s_memrealtime s[62:63]'); a('s_waitcnt lgkmcnt(0)')
            if sidx: a(f's_cmp_eq_u32 {sidx}, {want - idx}'); a('s_cselect_b32 s61, s62, s61')
            else: a('s_mov_b32 s61, s62')
            return
        if not self.diag: return
        a = self.a
        a('s_waitcnt lgkmcnt(0)'); a('s_memrealtime s[62:63]'); a('s_waitcnt lgkmcnt(0)')
        a(f'v_mov_b32 v{t0}, {src}')
        if sidx: a(f's_lshl_b32 s60, {sidx}, 2'); a('s_add_u32 s60, s60, s61')
        else: a('s_mov_b32 s60, s61')
        a(f'v_mov_b32 v{t0+1}, 0')
        a('s_mov_b64 exec, 1')
        a(f'buffer_store_dword v{t0}, v{t0+1}, {WS}, s60 offen offset:{idx*4}')
        a('s_mov_b64 exec, -1')
    def diagbase(self):
        a = self.a
        a('s_and_b32 s60, s61, 31'); a('s_lshr_b32 s61, s61, 5'); a('s_lshl3_add_u32 s61, s60, s61')
        a('s_lshl2_add_u32 s61, s61, s3'); a('s_lshl_b32 s61, s61, 8'); a(f's_add_u32 s61, s61, 0x{DOFF:x}')
    def maxtree(self, regs, t):
        a = self.a; regs = list(regs)
        a(f'v_max3_u32 v{t}, v{regs[0]}, v{regs[1]}, v{regs[2 if len(regs) > 2 else 1]}')
        regs = regs[3:]
        while regs:
            x = regs[:2]; regs = regs[2:]
            a(f'v_max3_u32 v{t}, v{t}, v{x[0]}, v{x[-1]}')
        a(f'v_cmp_eq_u32 vcc, -1, v{t}')

    def build(self):
        a = self.a
        if self.diag: a('s_memrealtime s[34:35]')
        a('s_cmp_ge_u32 s2, 256'); a('s_cbranch_scc1 L_end2')
        if self.probe: a('s_memrealtime s[62:63]'); a('s_waitcnt lgkmcnt(0)'); a('s_mov_b32 s60, s62'); a('s_mov_b32 s61, s62')
        a('s_load_dwordx16 s[64:79], s[0:1], 0')
        a('s_load_dwordx8 s[80:87], s[0:1], 64')
        if self.nocl:
            if self.fake: a(f's_mul_i32 s2, s2, {2 * self.fake + 1}'); a(f's_add_u32 s2, s2, {self.fake // 2 * 8}'); a('s_and_b32 s2, s2, 255'); self.fake = 0
            a('s_and_b32 s36, s2, 7'); a('s_lshr_b32 s38, s2, 5'); a('s_bfe_u32 s37, s2, 0x20003')
            if self.nocl > 1: a(f's_add_u32 s38, s38, {9 - self.nocl}')
            if self.diag: a('s_getreg_b32 s100, hwreg(HW_REG_HW_ID)')
        else:
            a('s_getreg_b32 s36, hwreg(HW_REG_XCC_ID, 0, 3)')
            a('s_getreg_b32 s38, hwreg(HW_REG_HW_ID, 8, 4)'); a('s_getreg_b32 s37, hwreg(HW_REG_HW_ID, 13, 2)')
        a('v_lshrrev_b32 v1, 6, v0'); a('v_and_b32 v0, 63, v0')
        a('v_readfirstlane_b32 s3, v1')
        a('s_mov_b32 s52, 400000'); a('s_mov_b64 s[6:7], 0')
        if self.fake == 1: a('s_and_b32 s38, s38, 6')
        if self.fake == 2: a('s_and_b32 s36, s36, 5')
        if self.fake == 3: a('s_and_b32 s36, s2, 7'); a('s_lshr_b32 s38, s2, 5'); a('s_mov_b32 s37, 0')
        if self.fake == 4: a('s_mov_b32 s36, 0'); a('s_mov_b32 s38, 0'); a('s_mov_b32 s37, 0')
        if self.fake == 5:
            a('s_bitcmp0_b32 s37, 0'); a('s_cselect_b32 s39, 8, 0'); a('s_cmp_eq_u32 s38, 3'); a('s_cselect_b32 s38, s39, s38')
        if not self.nocl: a('s_bitcmp0_b32 s37, 0'); a('s_cselect_b32 s39, 8, 0'); a('s_cmp_eq_u32 s38, s39'); a('s_cbranch_scc1 L_odd')
        a.label('L_even')
        a('s_and_b32 s38, s38, 7'); a('s_lshl3_add_u32 s2, s37, s38')
        if self.fake == 6: a('s_cmp_lg_u32 s38, 7'); a('s_cselect_b32 s39, 5, 0'); a('s_xor_b32 s36, s36, s39')
        if self.fake == 7: a('s_cmp_eq_u32 s2, 10'); a('s_cselect_b32 s39, 1, 0'); a('s_xor_b32 s36, s36, s39')
        if self.fake == 8: a('s_cmp_eq_u32 s2, 7'); a('s_cselect_b32 s39, 4, 0'); a('s_xor_b32 s36, s36, s39')
        a.label('L_role')
        if not self.nocl: a('s_mov_b32 s101, s2'); a('s_and_b32 s100, s36, 3'); a('s_lshl_b32 s100, s100, 6'); a('s_lshr_b32 s38, s36, 2'); a('s_lshl3_add_u32 s100, s38, s100')
        if self.cpf:
            a('s_getpc_b64 s[38:39]'); a.label('L_pc')
            a('s_lshl_b32 s37, s2, 2'); a('s_add_u32 s37, s37, s3'); a('s_lshl_b32 s37, s37, 10')
            a('s_cmp_ge_u32 s37, L_end-L_pc'); a('s_cbranch_scc1 L_nopf')
            a('v_lshl_add_u32 v2, v0, 4, s37'); a('v_min_u32 v2, L_end-L_pc-16, v2')
            a('global_load_dwordx4 v[60:63], v2, s[38:39]')
            a.label('L_nopf')
        a('s_getreg_b32 s38, hwreg(HW_REG_XCC_ID, 0, 4)'); a('s_cmp_eq_u32 s38, s36'); a(f's_cselect_b32 s5, 1, {"0x10001" if self.nocl else "0x101"}')
        a('s_lshr_b32 s38, s2, 4'); a('s_lshl1_add_u32 s36, s36, s38'); a('s_and_b32 s37, s2, 7'); a('s_bfe_u32 s38, s2, 0x10003')
        a('s_cmp_eq_u32 s37, 7'); a('s_cbranch_scc1 L_chain')
        self.role = 'S'; self.stream()
        a.label('L_chain'); self.role = 'C'
        self.chain_common()
        self.role = 'W'; self.roleW(); self.role = 'O'; self.roleOQ(); self.role = 'F'; self.roleF()
        if not self.nocl: self.rare_paths()
        a.label('L_bail')
        a('s_mov_b64 exec, 1')
        a('v_mov_b32 v0, 32'); a('v_mov_b32 v1, 1')
        a(f'global_atomic_add v0, v1, {DBG} sc1')
        a('v_mov_b32 v0, 36'); a('v_mov_b32 v1, s2')
        a(f'global_store_dword v0, v1, {DBG} sc1')
        a.label('L_end')
        if self.probe:
            a('s_cmp_eq_u32 s60, s61'); a('s_cbranch_scc1 L_end2')
            a('s_sub_u32 s61, s61, s60'); a(f's_mul_i32 s61, s61, {self.pmul}'); a('s_add_u32 s61, s61, 7000'); a('s_add_u32 s61, s61, s60')
            a.label('L_pspin')
            a('s_memrealtime s[62:63]'); a('s_waitcnt lgkmcnt(0)'); a('s_sub_u32 s62, s62, s61'); a('s_cmp_lt_i32 s62, 0'); a('s_cbranch_scc1 L_pspin')
        a.label('L_end2')
        body = a.finish()
        hdr = open('cdna_kernels/' + NAME + '.s.ref').read().split('\n')
        top = [l for l in hdr if l.startswith(';') and '@launch' not in l]
        s = '\n'.join(top) + '\n; @launch grid=(256,1,1) block=(256,1,1) lds=163840\n'
        s += f'.amdgcn_target "amdgcn-amd-amdhsa--gfx950"\n.text\n.globl {NAME}_kernel\n.p2align 8\n.type {NAME}_kernel,@function\n{NAME}_kernel:\n'
        s += body
        s += f'''s_endpgm
.section .rodata,"a"
.p2align 6
.amdhsa_kernel {NAME}_kernel
  .amdhsa_next_free_vgpr 512
  .amdhsa_next_free_sgpr 102
  .amdhsa_accum_offset 256
  .amdhsa_group_segment_fixed_size 0
  .amdhsa_kernarg_size 96
  .amdhsa_user_sgpr_count 2
  .amdhsa_user_sgpr_kernarg_segment_ptr 1
  .amdhsa_system_sgpr_workgroup_id_x 1
.end_amdhsa_kernel
'''
        return s

    CA = [0, 4096]; Q1L = 8192; MA = [10240, 10272]; CO = [10304, 10308]; MA1 = [10240, 10336]; ST = 10496; TB = 11520; WLDS = 37 * 1024
    vK, vV, vDs, vL16, vQo, vIQ, vIP = 1, 2, 3, 4, 5, 6, 7
    vM = 8; vT = 12; vBias = 15; vMC = 16; vL = 17; vQ = 24; vAcc = 32; vH = 48
    def kreg(self, s, u):
        return 64 + 96 * s + 16 * u if u < 6 else 256 + 128 * s + 16 * (u - 6)
    def vreg0(self, s, P, t):
        return 256 + 128 * s + 64 + 8 * (4 * P + t)
    def tile(self, n):
        if n < 40:
            u, t = n // 4, n % 4
            return 0, u // 2, t * 128 + (u & 1) * 512
        m = n - 40; g = m // 8; k = m % 8
        if g < 4: P, t = k // 4, k % 4
        else: t, P = k // 2, k % 2
        return 1, g, t * 128 + P * 1024
    def ldsslot(self, s, n):
        if n <= 72: return (n - 56) + 17 * s
        return 34 + (n - 73)
    ORD = list(range(24, 40)) + list(range(24)) + list(range(40, 80))
    def load(self, s, p, wait=True, to=None):
        a = self.a; n = self.ORD[p]
        kv, g, imm = self.tile(n)
        if p == 0 and not self.prologue:
            for j in range(4 if self.flex or self.fx2 else 5): a(f's_add_u32 s{40+j}, s{40+j}, 0x2000000')
            if self.fx2: a('s_mov_b32 s44, s24'); a('s_lshl_b32 s90, s25, 9'); a('s_add_u32 s90, s90, s44'); a('s_min_u32 s90, s90, s10'); a('s_mov_b32 s94, s90')
            elif not self.flex: a('s_add_u32 s90, s90, 0x2000000'); a('s_min_u32 s90, s90, s10'); a('s_mov_b32 s94, s90')
        va = f'v{self.vV if kv else self.vK}'; srd = V_SRD if kv else K_SRD
        if g == 4: srd = V4 if kv else K4
        if g == 4 and self.rm and self.rm[0] != 12:
            t = 'v16' if self.prologue else 'v0'
            if n in (32, 72):
                a(f'v_bfe_u32 {t}, v{self.vL16}, 7, 1'); a(f'v_mul_u32_u24 {t}, {(1 << self.rm[0]) - 4096}, {t}'); a(f'v_sub_u32 {t}, {va}, {t}')
            va = t
        dst = None
        if n < 40: dst = self.kreg(s, n // 4) + 4 * (n % 4)
        elif n < 56:
            m = n - 40; dst = self.vreg0(s, (m % 8) // 4, m % 4) + 4 * (m // 8)
        elif n >= 76: dst = self.kreg(1 - s, 1) + 4 * (n - 76)
        if to is not None: dst = to
        if dst is None:
            a(f's_add_u32 m0, s45, {self.ldsslot(s, n) * 1024 - imm}')
        depth = self.lv[-1] if self.dyn else self.depth
        if wait is not True and wait: depth = wait
        def allow(d):
            pos = [i for i, x in enumerate(reversed(self.vmq)) if x[0] != 'cp' and not (self.flex and x[0] in (0, 1) and self.KF <= x[1] < self.KF + 8 and (x[1] - self.KF) % 8 not in self.fw)]
            return pos[d - 1] if len(pos) >= d else None
        if wait is True and self.dyn:
            lows = [allow(d) for d in self.lv[:-1] if allow(d) is not None]
            labs = [self.lab('L_lv') for _ in lows]
            for i in reversed(range(len(lows))):
                a(f's_cmp_gt_u32 s59, {i}'); a(f's_cbranch_scc1 {labs[i]}')
            for i, k in enumerate(lows):
                a(f's_waitcnt vmcnt({k})'); a.label(labs[i])
        if wait and allow(depth) is not None:
            k = allow(depth)
            a(f's_waitcnt vmcnt({k})'); self.vmq = self.vmq[-k:]
        if dst is None:
            a(f'buffer_load_dwordx4 {va}, {srd}, s{40+g} offen offset:{imm} {self.vpol if kv else self.kpol} lds')
        else:
            a(f'buffer_load_dwordx4 {rr(dst, 4)}, {va}, {srd}, s{40+g} offen offset:{imm} {self.vpol if kv else self.kpol}')
        self.vmq.append((s, p))
    def need_vm(self, tag):
        if tag == ('cp', 'q1') and self.eq and tag not in self.vmq:
            t = [x for x in self.vmq if x[0] != 'cp' and x[1] == self.PF]
            if t:
                l = self.lab('L_eq'); self.a('s_cmp_lg_u32 s58, 0'); self.a(f's_cbranch_scc1 {l}')
                self.a(f's_waitcnt vmcnt({len(self.vmq) - 1 - self.vmq.index(t[0])})'); self.a.label(l)
            return
        if tag in self.vmq:
            k = len(self.vmq) - 1 - self.vmq.index(tag)
            if self.xst:
                l = self.lab('L_xs'); self.a('s_cmp_lg_u32 s58, 0'); self.a(f's_cbranch_scc1 {l}')
                self.a(f's_waitcnt vmcnt({k})'); self.a.label(l); self.a(f's_waitcnt vmcnt({k + self.xst})')
            else: self.a(f's_waitcnt vmcnt({k})')
            self.vmq = self.vmq[len(self.vmq) - k:] if k else []
    def ds(self, text, tag=None):
        self.a(text); self.lq.append(tag)
    def need_lds(self, tag):
        if tag in self.lq:
            i = len(self.lq) - 1 - self.lq[::-1].index(tag)
            k = len(self.lq) - 1 - i
            k = min(k, 15)
            self.a(f's_waitcnt lgkmcnt({k})'); self.lq = self.lq[len(self.lq) - k:] if k else []
    def qload(self):
        a = self.a
        a(f'buffer_load_dwordx4 {vr(self.vQ, 4)}, v{self.vQo}, {WS}, s46 offen sc1')
        a(f'buffer_load_dwordx4 {vr(self.vQ + 4, 4)}, v{self.vQo}, {WS}, s46 offen offset:256 sc1')
    def wpf(self, n):
        a = self.a
        for nn, mat, k in self.spf:
            if nn != n: continue
            a('s_lshl2_add_u32 s32, s37, s3')
            for lo, size, rs, lpr, hs, rows in {'q': [(70, 448 * 8192, 8192, 4, 512, 448)], 'o': [(72, 4096 * 896, 128, 1, 229376, 1792)],
                          'g': [(76, 448 * 3584, 3584, 2, 256, 448), (78, 448 * 3584, 3584, 2, 256, 448)], 'd': [(80, 1792 * 896, 128, 1, 114688, 896)]}[mat]:
                assert 56 * k <= rows and k * lpr <= 64
                self.srd(28, lo, size)
                a(f's_mul_i32 s38, s36, {hs}'); a(f's_mul_i32 s33, s32, {k * rs}'); a('s_add_u32 s38, s38, s33'); a(f's_add_u32 s38, s38, {(rows - 56 * k) * rs}')
                if mat == 'g': a('s_cmp_lt_u32 s36, 14'); a(f's_cselect_b32 s38, s38, 0x{OOB:x}')
                if lpr == 1: a('v_lshlrev_b32 v18, 7, v0')
                else:
                    a(f'v_lshrrev_b32 v18, {lpr // 2}, v0'); a(f'v_mul_u32_u24 v18, {rs}, v18'); a(f'v_and_b32 v19, {lpr - 1}, v0'); a('v_lshl_add_u32 v18, v19, 7, v18')
                L = k * lpr
                a(f's_mov_b32 exec_lo, 0x{(1 << min(L, 32)) - 1:x}'); a(f's_mov_b32 exec_hi, 0x{(1 << max(L - 32, 0)) - 1:x}')
                a(f'buffer_load_dword v17, v18, s[28:31], s38 offen')
                a('s_mov_b64 exec, -1')
    def zero_acc(self):
        return [f'v_mov_b64 {vr(self.vAcc + 2 * i, 2)}, 0' for i in range(8)]

    def stream(self):
        a = self.a
        self.vmq = []; self.lq = []; self.prologue = True; self.later = []
        a('s_mul_i32 s38, s38, 7'); a('s_add_u32 s37, s37, s38')
        if self.diag: a('s_mul_i32 s61, s36, 14'); a('s_add_u32 s61, s61, s37'); a('s_add_u32 s61, s61, 32'); self.diagbase()
        a('s_lshl_b32 s39, s37, 2'); a('s_add_u32 s39, s39, s3'); a('s_lshl_b32 s38, s39, 13')
        a('s_lshl_b32 s44, s36, 21')
        LB = self.rm[0] if self.rm else 12
        def place(g):
            lb, wb, rot = self.rm; sb = [b for b in range(12, 18) if b not in (lb, wb, wb + 1)]; d = f's{40 + g}'
            a(f's_add_u32 s38, s37, {14 * g}'); a(f's_lshr_b32 {d}, s38, 3'); a(f's_lshl_b32 {d}, {d}, 18'); a(f's_add_u32 {d}, {d}, s44')
            if rot: a(f's_mul_i32 s33, s36, {rot}'); a('s_add_u32 s38, s38, s33')
            if sb[2] == sb[0] + 2: a('s_and_b32 s38, s38, 7'); a(f's_lshl_b32 s38, s38, {sb[0]}'); a(f's_add_u32 {d}, {d}, s38')
            else:
                for i, b in enumerate(sb): a(f's_bfe_u32 s33, s38, 0x{0x10000 + i:x}'); a(f's_lshl_b32 s33, s33, {b}'); a(f's_add_u32 {d}, {d}, s33')
            a(f's_lshl_b32 s38, s3, {wb}'); a(f's_add_u32 {d}, {d}, s38')
        if self.rm: assert not self.hp; place(3)
        else: a('s_add_u32 s40, s44, s38'); a(f's_add_u32 s43, s40, {3 * NW * 8192}')
        self.bits(f'v{self.vK}', 'v0', 'v18', [(0, 1, 4), (4, 2, 5), (2, 1, 10), (1, 1, 11), (3, 1, LB)])
        if not self.cla: self.claim(22, 23, 24)
        else: a('s_waitcnt lgkmcnt(0)')
        self.wpf(-1)
        self.srd(8, 66, 0x8000000)
        if self.diag: a('s_memrealtime s[98:99]')
        for p in range(self.p0): self.load(0, p, wait=False)
        if self.tlb:
            a('s_lshl_b32 s38, s3, 25'); a('s_add_u32 s38, s38, s44')
            a('s_load_dword s96, s[66:67], s38'); a('s_load_dword s97, s[68:69], s38')
            if self.tlb > 1: a('s_add_u32 s38, s38, 0x1fff00'); a('s_load_dword s96, s[66:67], s38'); a('s_load_dword s97, s[68:69], s38')
        if self.cla: self.claim(22, 23, 24); assert self.CL >= 15
        self.wpf(7)
        a(f's_lshl_b32 s47, s36, 15'); a('s_lshl_b32 s38, s37, 10'); a('s_and_b32 s48, s38, 0x2000'); a('s_add_u32 s38, s38, s48')
        a('s_add_u32 s47, s47, s38'); a(f's_add_u32 s47, s47, 0x{POFF:x}')
        a('s_lshl_b32 s48, s37, 7'); a('s_sub_u32 s48, s48, s38'); a(f's_add_u32 s48, s48, {MLO}')
        a(f'v_lshlrev_b32 v{self.vL16}, 4, v0')
        if self.rm:
            for j in range(3): place(j)
        else:
            for j in range(1, 3): a(f's_add_u32 s{40+j}, s40, {j * NW * 8192}')
        self.srd(88, 66, 0); self.srd(92, 68, 0)
        if self.flex:
            a(f's_add_u32 s21, s44, {4 * NW * 8192}'); a('s_lshl_b32 s20, s36, 7'); a(f's_add_u32 s20, s20, 0x{HOFF:x}')
        else:
            if self.fx2:
                assert sum(n for n, r in self.fx2) == NW and sum(n * r for n, r in self.fx2) == 512 and self.PFA
                a(f's_add_u32 s21, s44, {4 * NW * 8192 + 0x2000000}'); a('s_lshl_b32 s20, s36, 7'); a(f's_add_u32 s20, s20, 0x{HOFF:x}')
            a('s_mul_i32 s38, s39, 9'); a('s_min_u32 s51, s37, 8'); a('s_add_u32 s38, s38, s51')
            a('s_cmp_lt_u32 s37, 8'); a('s_cselect_b32 s22, s3, 0'); a('s_cmp_eq_u32 s22, 3'); a('s_cselect_b32 s22, 10, 9'); a('s_mov_b32 s23, s22')
            a('s_lshl_b32 s38, s38, 9')
            a(f's_add_u32 s44, s44, {4 * NW * 8192}'); a('s_add_u32 s44, s44, s38')
            a('s_lshl_b32 s38, s22, 9'); a('s_add_u32 s90, s44, s38'); a('s_mov_b32 s94, s90')
        self.srd(12, 68, 0x8000000); self.srd(16, 86, 0x20000000)
        if self.wsw:
            a('s_lshl_b32 s38, s3, 20'); a('s_add_u32 s38, s38, s47'); a(f'buffer_load_dword v17, off, {WS}, s38 sc1')
        self.stamp(0); self.stamp(32, src='s34'); self.stamp(33, src='s98')
        if self.nocl: self.stamp(62, src='s100')
        self.bits(f'v{self.vV}', 'v0', 'v18', [(0, 3, 4), (5, 1, 9), (4, 1, 11), (3, 1, LB)])
        a(f's_mul_i32 s45, s3, {self.WLDS}'); a(f's_add_u32 s45, s45, {self.TB}')
        a(f'v_add_u32 v{self.vDs}, s45, v{self.vL16}')
        self.bits(f'v{self.vQo}', 'v0', 'v18', [(0, 2, 4), (4, 2, 6)])
        a('v_and_b32 v18, 2, v0'); a('v_cmp_eq_u32 vcc, 2, v18')
        a(f'v_mov_b32 v{self.vIQ}, 0x44444444'); a('v_mov_b32 v18, 0xeeeeeeee'); a(f'v_cndmask_b32 v{self.vIQ}, v{self.vIQ}, v18, vcc')
        a('v_and_b32 v18, 3, v0'); a('s_mov_b32 s38, 0x55555555'); a(f'v_mul_lo_u32 v{self.vIP}, v18, s38')
        a('v_and_b32 v18, 4, v0'); a('v_cmp_eq_u32 vcc, 4, v18')
        a('v_mov_b32 v18, 0xffff'); a('v_mov_b32 v19, 0xffff0000')
        M = self.vM
        a(f'v_cndmask_b32 v{M}, v18, 0, vcc'); a(f'v_cndmask_b32 v{M+1}, 0, v18, vcc')
        a(f'v_cndmask_b32 v{M+2}, v19, 0, vcc'); a(f'v_cndmask_b32 v{M+3}, 0, v19, vcc')
        self.bits(f'v{self.vBias}', 'v0', 'v19', [(4, 1, 0), (2, 1, 1), (1, 1, 2), (3, 1, 3), (5, 1, 4)])
        a('s_lshl_b32 s46, s3, 4'); a('s_add_u32 s46, s46, s36'); a('s_lshl_b32 s46, s46, 9')
        a('s_mov_b32 s49, 0'); a(f's_mov_b32 s51, 0x{f2u(CS):x}')
        if self.mz: a(f's_mov_b32 s50, 0x{f2u({1: 32.0, 2: 4.0, 3: -1.0}[self.mz]):x}')
        a(f's_mov_b32 s53, {self.Q1L}'); a('s_lshl_b32 s54, s3, 10'); a('s_lshl_b32 s55, s3, 3')
        a('s_lshl_b32 s56, s36, 9'); a(f's_add_u32 s56, s56, 0x{QOFF + 3 * 8192:x}')
        a('v_mov_b32 v18, 0'); a('v_mov_b32 v19, 0')
        a(f'ds_write_b64 v18, v[18:19] offset:{self.CO[0]}')
        a('s_lshl_b32 s57, s3, 8'); a(f's_add_u32 s57, s57, {self.ST}'); a('s_mov_b32 s58, 0'); a(f's_lshl_b32 s4, s5, {15 if self.nocl else 23}'); a('s_and_b32 s4, s4, 0x80000000')
        if self.lv:
            mid = self.lv.index(self.depth) if self.mid is None else self.mid
            a(f's_mov_b32 s59, {mid if not self.slow else self.slow[0]}')
            if self.slow and len(self.slow) > 3: a('s_cmp_ge_u32 s36, 8'); a(f's_cselect_b32 s59, {self.slow[3]}, s59')
            if self.cps:
                a('s_lshl2_add_u32 s24, s37, s3'); a('s_lshl_b32 s24, s24, 7'); a(f's_add_u32 s24, s24, 0x{COFF:x}')
                lo = (mid if not self.slow else self.slow[0]) - 1
                a(f's_mov_b32 s20, 0x{OOB:x}'); a(f's_mov_b32 s21, {-self.th[lo] if lo >= 0 else 100}'); a('s_mov_b32 s22, 0')
            if self.odd and not self.nocl:
                a('s_or_b32 s38, s6, s7'); a(f's_cselect_b32 s59, {mid}, s59')
                if self.cps: a(f's_cselect_b32 s21, {-self.th[-1]}, s21')
        assert not self.cps
        if self.hp:
            a('s_lshr_b32 s20, s36, 1'); a('s_lshl2_add_u32 s20, s20, s3'); a('s_lshl_b32 s20, s20, 8'); a(f's_add_u32 s20, s20, 0x{HOFF:x}')
            a('s_and_b32 s38, s36, 1'); a('s_mul_i32 s21, s38, 14'); a('s_add_u32 s21, s21, s37')
            a('s_lshl_b32 s24, s38, 21'); a('s_lshl_b32 s38, s37, 15'); a('s_add_u32 s24, s24, s38')
            a('s_lshl3_add_u32 s25, s21, s20'); a('s_mov_b32 s35, 0'); a('s_mul_i32 s21, s21, 27')
        if self.bst: a('s_mov_b32 s26, s59')
        LP = {tuple(k): v for k, v in self.p2l}
        N1 = sum(1 for v in LP.values() for x in v if x < 40); N0 = N1 + sum(len(v) for v in self.p1l.values())
        assert N0 <= 16
        for p in range(self.p0, N0):
            self.load(0, p, wait=self.pw[min(p - self.p0, len(self.pw) - 1)] if isinstance(self.pw, list) else self.pw)
            if p == self.CL: self.armS()
            self.wpf(p)
        self.prologue = False
        entry_vmq = [(0, i) for i in range(N0)]; self.vmq = list(entry_vmq)
        nQ = self.nQ
        for s in range(2):
            a.label(f'L_A{s}')
            assert [(x[0] ^ s, x[1]) for x in self.vmq] == entry_vmq, (self.vmq, entry_vmq)
            self.lq = []
            n = N0; self.dyn = bool(self.lv)
            while n < 73:
                if self.slow and not self.fb and (s, n) == tuple(self.slow[1:3]): a(f's_max_u32 s59, s59, {mid}')
                if self.bst and n == self.bst[1]: a('s_mov_b32 s59, s26')
                if s == 0 and n in self.fine:
                    a('s_mul_i32 s99, s49, 5'); self.stamp(44 + self.fine.index(n), 's99', 18)
                for i, (c0, c1) in enumerate(self.cps):
                    r = 16 + i % 2
                    if n == c1:
                        self.need_vm(('cp', i))
                        a(f'v_readfirstlane_b32 s38, v{r}'); a(f's_sub_u32 s38, s38, s{25 + i % 2}'); a('s_mov_b32 s59, 0')
                        for t in self.th: a(f's_cmp_ge_i32 s38, {t}'); a('s_addc_u32 s59, s59, 0')
                for i, (c0, c1) in enumerate(self.cps):
                    r = 16 + i % 2
                    if n == c0:
                        assert not (c0 <= nQ + 3 and c1 > nQ) and c1 < 73
                        a(f'v_mov_b32 v{r}, 1'); a(f's_mov_b32 s{25 + i % 2}, s21'); a('s_add_u32 s21, s21, s22')
                        a('s_mov_b64 exec, 1'); a(f'buffer_atomic_add v{r}, off, {WS}, s20 sc0 sc1'); a('s_mov_b64 exec, -1')
                        self.vmq.append(('cp', i))
                if self.eq and n == self.eq[1]:
                    assert self.eq[0] >= nQ + 4 and n <= self.PFA and not self.fx2 and not self.flex and not self.xpf and not self.vpf
                    self.need_vm(('cp', 'e1')); a('s_mov_b32 s58, 0')
                    self.maxtree(range(self.vQ, self.vQ + 8), 18)
                    if s == 0: a('s_cmp_eq_u32 s49, 0'); a('s_cbranch_scc1 L_En')
                    a(f's_cbranch_vccz L_E{s}')
                    if s == 0: a.label('L_En')
                    main = list(self.vmq); am = self.a; self.a = a2 = Asm(); dyn = self.dyn; self.dyn = False
                    a2.label(f'L_E{s}'); a2('s_mov_b32 s58, 1')
                    for m in range(n, 73):
                        if self.hp and m in dict(self.hp[0]): self.publish(dict(self.hp[0])[m])
                        self.load(s, m, wait=self.eq[2] or False)
                    a2(f's_mov_b32 s59, {self.eq[3]}')
                    self.stamp(1, 's49')
                    if self.diag: a2('s_add_u32 s7, s7, 1')
                    a2(f's_branch L_Xok{s}')
                    fastq = list(self.vmq); self.vmq = main; self.a = am; self.dyn = dyn
                    self.later.append(lambda a2=a2: a.L.extend(a2.L))
                if self.hp and n in dict(self.hp[0]): self.publish(dict(self.hp[0])[n])
                for n0, n1, el, R in (self.hp[5] if self.hp else []):
                    assert n1 < nQ or (n0 >= nQ + 4 and n1 <= self.PFA)
                    if n == n0: self.board()
                    if n == n1:
                        self.need_vm(('cp', 'bd'))
                        a(f's_movk_i32 s34, {el}'); a(f's_movk_i32 s32, {R}'); a('s_call_b64 s[96:97], L_help')
                if self.flex and n == self.KF:
                    self.need_vm(('cp', 0))
                    R = f's{22 + s}'
                    a('v_readfirstlane_b32 s38, v16'); a('s_add_u32 s38, s38, 1')
                    a(f's_mov_b32 {R}, {self.flex[0][1]}'); a(f's_mul_i32 s44, s38, {R}')
                    b = 0
                    for (n0, r0), (n1, r1) in zip(self.flex, self.flex[1:]):
                        b += n0
                        a(f's_sub_i32 s39, s38, {b}'); a('s_max_i32 s33, s39, 0'); a(f's_mul_i32 s33, s33, {r0 - r1}'); a('s_sub_u32 s44, s44, s33')
                        a('s_cmp_ge_i32 s39, 0'); a(f's_cselect_b32 {R}, {r1}, {R}')
                    a('s_lshl_b32 s44, s44, 9'); a('s_add_u32 s44, s44, s21'); a('s_add_u32 s21, s21, 0x2000000')
                    a(f's_lshl_b32 s90, {R}, 9'); a('s_add_u32 s90, s90, s44'); a('s_min_u32 s90, s90, s10'); a('s_mov_b32 s94, s90')
                    self.stamp(40, 's49', 18, 's38')
                if n == nQ:
                    self.need_vm((s, self.KF + 7 if self.flex else 39))
                    if s == 0:
                        a('s_cmp_eq_u32 s49, 0'); a('s_cbranch_scc1 L_st0'); st_in = list(self.vmq)
                    self.qk1(s, {('u', 1): [(s, n)], ('u', 6): [(s, n + 1)], ('x', 0): [(s, n + 2)], ('e', 0): [(s, n + 3)]}, True)
                    n += 4
                    if s == 0: a.label('L_st0r'); st_out = list(self.vmq)
                    for z in self.zero_acc(): a(z)
                    continue
                self.load(s, n)
                if s == 0 and (n == self.CL or any(x[0] == n for x in self.spf)):
                    l = self.lab('L_it0')
                    a('s_cmp_lg_u32 s49, 0'); a(f's_cbranch_scc1 {l}')
                    if n == self.CL: self.armS()
                    self.wpf(n)
                    a.label(l)
                CK = self.TK if self.flex else (self.PFA or self.PF)
                if s == 0 and n == CK - 8:
                    assert n >= nQ + 4 or (CK < nQ and n > self.CL)
                    l = self.lab('L_it0'); a('s_cmp_lg_u32 s49, 0'); a(f's_cbranch_scc1 {l}')
                    a('v_mov_b32 v22, 0'); a(f'global_load_dword v23, v22, {DBG} offset:{self.CNTA} sc1'); a.label(l)
                if s == 0 and n == CK:
                    self.stamp(22, 's49')
                    l = self.lab('L_it0'); a('s_cmp_lg_u32 s49, 0'); a(f's_cbranch_scc1 {l}')
                    a('s_waitcnt vmcnt(8)'); self.wait_counter(22, 23, 21, self.CNTA, NCHAIN, pre=True)
                    a('v_readfirstlane_b32 s27, v23'); a('s_add_u32 s27, s27, s5'); a.label(l)
                if (self.flex and n == self.TK) or (self.fx2 and n == self.PFA):
                    a('v_mov_b32 v16, 1')
                    a('s_mov_b64 exec, 1'); a(f'buffer_atomic_add v16, off, {WS}, s20 sc0 sc1'); a('s_mov_b64 exec, -1')
                    a('s_add_u32 s20, s20, 2048')
                    self.vmq.append(('cp', 0))
                if self.vpf and n == self.vpf[0]:
                    a(f'v_lshlrev_b32 v19, 3, v{self.vL16}'); a(f's_mov_b32 m0, {self.TB + 4 * self.WLDS}')
                    a(f'buffer_load_dword v19, {V4}, s44 offen {self.xpol} lds'); self.vmq.append(('cp', 'x'))
                for n0, g in (self.vpf or [0])[1:]:
                    if n == n0:
                        a(f'v_lshlrev_b32 v19, 3, v{self.vL16}'); a(f's_mov_b32 m0, {self.TB + 4 * self.WLDS}'); a(f's_add_u32 s38, s{40 + g}, 0x2000000')
                        if g == 4: a('s_mov_b32 exec_hi, 0xff')
                        a(f'buffer_load_dword v19, {K_SRD}, s38 offen {self.xpol} lds'); self.vmq.append(('cp', 'x'))
                        if g == 4: a('s_mov_b32 exec_hi, -1')
                if self.eq and n == self.eq[0]: self.qload(); self.vmq += [('cp', 'e0'), ('cp', 'e1')]
                if n == self.PFA and self.hp: self.board()
                if n == self.PFA:
                    assert n >= nQ + 4 and n < self.PF
                    self.qload(); self.vmq += [('cp', 'qa'), ('cp', 'qb')]
                if n == self.PF:
                    assert n >= nQ + 4
                    self.qload(); self.vmq += [('cp', 'q0'), ('cp', 'q1')]
                n += 1
            self.dyn = False
            if self.fb: a(f's_mov_b32 s59, {self.fb[1]}')
            if self.PFA:
                self.need_vm(('cp', 'qb')); keep = list(self.vmq)
                if self.fx2: a('v_readfirstlane_b32 s35, v16')
                self.stamp(1, 's49')
                self.maxtree(range(self.vQ, self.vQ + 8), 18)
                a(f's_cbranch_vccz L_Xok{s}')
                if self.nox: a('s_cmp_lg_u32 s49, 0'); a(f's_cbranch_scc1 L_Xok{s}')
                if self.fb and len(self.fb) > 2: a(f's_mov_b32 s59, {self.fb[2]}')
            def ahead(what):
                for g in what:
                    if g == 'v': a(f'buffer_load_dword v19, {V4}, s44 offen {self.xpol} lds')
                    else:
                        a(f's_add_u32 s38, s{40 + g}, 0x2000000')
                        if g == 4: a('s_mov_b32 exec_hi, 0xff')
                        a(f'buffer_load_dword v19, {K_SRD}, s38 offen {self.xpol} lds')
                        if g == 4: a('s_mov_b32 exec_hi, -1')
                    self.vmq.append(('cp', 'x'))
            if self.xpf:
                assert self.PFA and not self.flex
                a(f'v_lshlrev_b32 v19, 3, v{self.vL16}'); a(f's_mov_b32 m0, {self.TB + 4 * self.WLDS}')
                ahead(self.xpf[0])
            if self.hp:
                if self.hl and s == 1: a('s_cmp_eq_u32 s49, 3'); a(f's_cselect_b32 s34, {self.hl[0]}, {self.hp[1]}')
                else: a(f's_movk_i32 s34, {self.hp[1]}')
                a('s_movk_i32 s32, 0'); a(f's_call_b64 s[96:97], L_help')
            self.need_vm(('cp', 'q1'))
            for x in (self.xpf or [])[1:]:
                self.maxtree(range(self.vQ, self.vQ + 8), 18)
                a(f's_cbranch_vccz L_Xok{s}')
                self.qload(); ahead(x); a(f's_waitcnt vmcnt({len(x)})')
            if self.PFA: self.vmq = keep
            else: self.stamp(1, 's49')
            a.label(f'L_X{s}')
            self.maxtree(range(self.vQ, self.vQ + 8), 18)
            a(f's_cbranch_vccz L_Xok{s}')
            a.label(f'L_Xpoll{s}')
            if self.fb and len(self.fb) > 3: a('s_sub_i32 s59, s59, 1'); a(f's_max_i32 s59, s59, {self.fb[0]}')
            elif self.fb: a(f's_mov_b32 s59, {self.fb[0]}')
            self.timeout()
            if self.hp and self.hp[4]:
                a(f'v_lshrrev_b32 v19, 1, v{self.vL16}')
                a(f'buffer_load_dword v16, v19, {WS}, s20 offen sc1')
            self.qload()
            a('s_waitcnt vmcnt(0)')
            if self.hp and self.hp[4]:
                self.maxtree(range(self.vQ, self.vQ + 8), 18)
                a(f's_cbranch_vccz L_Xok{s}')
                a('s_movk_i32 s32, 0'); a(f's_call_b64 s[96:97], L_help'); a(f's_branch L_Xpoll{s}')
            else: a(f's_branch L_X{s}')
            a.label(f'L_Xok{s}')
            if self.eq:
                t = [x for x in self.vmq if x not in (('cp', 'q0'), ('cp', 'q1'))]
                assert fastq[-len(t):] == t, (fastq, t)
                self.vmq = list(fastq)
            self.stamp(6, 's49')
            if self.hp and 73 in dict(self.hp[0]): self.publish(dict(self.hp[0])[73])
            if s == 0: a('s_cmp_eq_u32 s49, 0'); a('s_cbranch_scc1 L_first')
            save = list(self.vmq)
            if s == 1 and self.lst: a('s_cmp_eq_u32 s49, 3'); a('s_cbranch_scc1 L_last'); last_save = save
            self.pass2(s, LP)
            if self.diag: a('s_memrealtime s[28:29]')
            if s == 0:
                if not self.fin: a('s_cmp_eq_u32 s49, 4'); a('s_cbranch_scc1 L_fin')
                after = list(self.vmq)
            a.label(f'L_PV{s}')
            self.pv1f(s)
            if self.diag: self.stamp(11, 's49', src='s28')
            a('s_add_u32 s49, s49, 1'); a(f's_add_u32 s47, s47, {PIB}'); a('s_add_u32 s53, s53, 512')
            a('s_add_u32 s56, s56, 8192'); a('s_mov_b32 s46, s56')
            if self.hp: a('s_add_u32 s35, s35, 10')
            if self.odd and (self.odd & 1) != s and not self.fb:
                a(f's_cmp_eq_u32 s49, {self.odd}'); a(f's_cselect_b32 s59, {mid}, s59')
            if self.cps and (self.cpon & 1) != s:
                a(f's_cmp_eq_u32 s49, {self.cpon}'); a('s_cselect_b32 s20, s24, s20'); a(f's_cselect_b32 s22, 16, s22'); a('s_cselect_b32 s21, -1, s21')
                a(f's_cselect_b32 s59, {mid}, s59')
            if s == 0: first_save, first_after = save, after
        if self.lst:
            assert self.fin
            a('s_branch L_A0'); self.vmq = list(last_save); self.last()
        else: a('s_cmp_lg_u32 s49, 4'); a('s_cbranch_scc1 L_A0')
        if self.fin: self.final()
        else:
            a('s_mov_b32 s94, 0')
            for z in self.zero_acc(): a(z)
            a('s_branch L_Xpoll0')
        a.label('L_first')
        self.vmq = first_save; self.lq = []
        a('s_lshl_b32 s38, s3, 9'); a(f'v_add_u32 v18, s38, v{self.vQo}')
        a(f'ds_write_b128 v18, {vr(self.vQ, 4)} offset:{self.Q1L}')
        a(f'ds_write_b128 v18, {vr(self.vQ + 4, 4)} offset:{self.Q1L + 256}')
        for n in range(73, 80): self.load(0, n, wait=False)
        self.share()
        self.need_vm(('cp', 'q1'))
        a('s_waitcnt lgkmcnt(0)'); a('s_barrier')
        pts = [('u', 1), ('u', 4), ('u', 7), ('x', 0), ('e', 0)]; FL = {}
        for i in range(N1): FL.setdefault(pts[i * len(pts) // N1], []).append((1, i))
        self.qk1(0, FL, False)
        assert self.vmq == first_after, (self.vmq, first_after)
        a('s_branch L_PV0')
        a.label('L_fin'); self.stamp(11, 's49'); self.stamp(40, src='s7'); a('s_branch L_end')
        a.label('L_st0')
        self.vmq = st_in; self.dyn = bool(self.lv)
        for n in range(nQ, nQ + 4): self.load(0, n)
        self.dyn = False
        assert self.vmq == st_out, (self.vmq, st_out)
        a('s_branch L_st0r')
        for f in self.later: f()
        if self.hp: self.help()
    CKR = [64, 66, 68, 70, 72, 74, 76, 78, 80, 82]
    def clk(self):
        if self.cyc and self.ck: self.a(f's_memtime s[{self.CKR[self.ck - 1]}:{self.CKR[self.ck - 1] + 1}]'); self.ck += 1
    def publish(self, v):
        a = self.a
        a(f's_add_u32 s38, s35, {v}'); a('v_mov_b32 v18, s38')
        a('s_mov_b64 exec, 1'); a(f'buffer_store_dword v18, off, {WS}, s25'); a('s_mov_b64 exec, -1')
        self.vmq.append(('cp', 'pg'))
    def board(self):
        self.a(f'v_lshrrev_b32 v19, 1, v{self.vL16}')
        self.a(f'buffer_load_dword v16, v19, {WS}, s20 offen sc1'); self.vmq.append(('cp', 'bd'))
    def help(self):
        a = self.a; lo, hi = self.hp[2:4]
        a.label('L_help')
        a('v_subrev_u32 v16, s35, v16')
        a('v_cmp_ge_i32 vcc, s34, v16')
        a('s_and_b32 s33, vcc_lo, 0xfffffff'); a('s_cbranch_scc0 L_help9')
        a('s_bcnt1_i32_b32 s38, s33'); a('s_max_u32 s38, s38, s32'); a('s_bfe_u32 s32, s21, 0x50001'); a('s_mul_i32 s38, s38, s32'); a('s_lshr_b32 s38, s38, 5')
        a('v_mbcnt_lo_u32_b32 v17, s33, 0'); a('v_cmp_eq_u32 vcc, s38, v17')
        a('s_add_u32 s21, s21, 23')
        a('s_and_b32 s38, vcc_lo, s33'); a('s_cbranch_scc0 L_help9')
        a('s_ff1_i32_b32 s32, s38'); a('s_and_b32 s38, s21, 1'); a(f's_mov_b32 m0, {self.TB + 4 * self.WLDS}')
        a('v_readlane_b32 s33, v16, s32');
        if self.hl:
            assert not self.hp[5]
            a('s_cmp_eq_u32 s49, 3'); a(f's_cselect_b32 s39, {self.hl[0] - self.hl[1]}, {self.hp[1] - lo}'); a(f's_cselect_b32 s30, {self.hl[2]}, {hi}')
            a('s_max_i32 s33, s33, s39'); a('s_add_i32 s33, s33, s38'); a('s_add_i32 s33, s33, 2'); a('s_min_i32 s33, s33, s30')
        else: a(f's_sub_i32 s39, s34, {lo}'); a('s_max_i32 s33, s33, s39'); a('s_add_i32 s33, s33, s38'); a('s_add_i32 s33, s33, 2'); a(f's_min_i32 s33, s33, {hi}')
        a('s_cmp_ge_u32 s32, 14'); a('s_cselect_b32 s38, 14, 0'); a('s_cselect_b32 s39, 0x200000, 0'); a('s_sub_u32 s32, s32, s38')
        a('s_sub_u32 s39, s39, s24'); a('s_add_u32 s39, s39, s40')
        a('s_cmp_lt_i32 s33, 0'); a('s_cselect_b32 s38, 10, 0'); a('s_cselect_b32 s30, 0x2000000, 0'); a('s_add_i32 s33, s33, s38'); a('s_sub_u32 s39, s39, s30')
        a('s_cmp_ge_i32 s33, 10'); a('s_cselect_b32 s38, 10, 0'); a('s_cselect_b32 s30, 0x2000000, 0'); a('s_sub_i32 s33, s33, s38'); a('s_add_u32 s39, s39, s30')
        a('s_cmp_ge_u32 s33, 5'); a('s_cselect_b64 s[28:29], s[12:13], s[8:9]'); a('s_cselect_b32 s38, 0, 3'); a('s_add_u32 s33, s33, s38')
        a('s_mov_b32 s30, 0x8000000'); a('s_mov_b32 s31, 0x20000')
        a('s_cmp_ge_u32 s33, 5'); a('s_cselect_b32 s38, 5, 0'); a('s_sub_u32 s33, s33, s38')
        a(f's_mul_i32 s38, s33, {NW * 8192}'); a('s_add_u32 s39, s39, s38')
        a(f'v_lshlrev_b32 v19, 3, v{self.vL16}')
        a('s_lshl_b32 s38, s32, 6')
        a('s_cmp_lg_u32 s33, 4'); a('s_cbranch_scc1 L_help2')
        a('s_mul_i32 s38, s32, 36'); a('s_min_u32 s32, s32, 8'); a('s_add_u32 s38, s38, s32'); a('s_mul_i32 s32, s3, 7'); a('s_sub_u32 s38, s38, s32')
        a('s_mov_b32 exec_hi, 0xff')
        a.label('L_help2')
        a('s_lshl_b32 s38, s38, 9'); a('s_add_u32 s39, s39, s38')
        a(f'buffer_load_dword v19, s[28:31], s39 offen {self.xpol} lds')
        a('s_mov_b32 exec_hi, -1')
        if self.diag: a('s_add_u32 s7, s7, 0x100')
        a.label('L_help9')
        a('s_setpc_b64 s[96:97]')
    def last(self):
        a = self.a; Q = self.vQ; AC = self.vAcc
        a.label('L_last'); self.lq = []
        for x in self.staddr(): a(x)
        self.ds('ds_read_b96 v[20:22], v18', 'p')
        sets = [(0, 0), (0, 1), (1, 0), (1, 1), (2, 0)]
        prep = lambda i: self.aprep(*sets[i], Q + 4 * (i % 2))
        def hook(p):
            if p == ('u', 0):
                for n in (73, 74, 75): self.load(1, n, False, self.kreg(0, 0) + 4 * (n - 72))
            if p == ('u', 1):
                for n in (76, 77, 78, 79): self.load(1, n, False)
            if p[0] == 'u' and 2 <= p[1] < 6:
                for n in (52 + 2 * p[1], 53 + 2 * p[1]): self.need_vm((1, n)); self.copy(1, 0, 2, n)
            if p == ('p', 7):
                self.need_vm(('cp', 'q1')); self.need_lds('p')
                for x in prep(0)[:2]: a(x)
            if p == ('p', 8):
                for x in prep(0)[2:]: a(x)
        self.qk_part(0, hook, part=1, tb=16)
        for i, (k, P) in enumerate(sets):
            fill = self.epi_pre() if i == 4 else prep(i + 1)
            if i == 4:
                for x in fill: a(x)
                fill = []
            for t in range(4):
                b, tags = self.bop(1, 0, 2, k, P, t)
                if i < 2: self.need_vm((1, 64 + 4 * i + t)); self.copy(1, 0, 2, 64 + 4 * i + t)
                if (i, t) == (2, 0): self.need_vm((1, 72)); self.copy(1, 0, 2, 72)
                if i == 4: self.need_vm((1, 73 + 2 * t))
                for tg in tags: self.need_lds(tg)
                a(f'v_smfmac_f32_16x16x64_bf16 {vr(AC + 4 * t, 4)}, {vr(Q + 4 * (i % 2), 4)}, {rr(b, 8)}, v{self.vIP}')
                n = (len(fill) + (3 - t)) // (4 - t)
                got = fill[:n]; fill = fill[n:]
                for x in got: a(x)
                if (i, t) == (4, 2) and self.lst > 1:
                    for x in self.merge(0): a(x)
        for x in (self.merge(0) if self.lst == 1 else []) + self.merge(2): a(x)
        self.epilogue(0, 1)
        self.stamp(16, 's49')
        for n in range(72, 76): self.ds(f'ds_read_b128 {ar(4 * (n - 72), 4)}, v{self.vDs} offset:{self.ldsslot(0, n) * 1024}', ('c', n))
        for j in range(8): self.copy(0, 0, 0, 56 + j); self.copy(0, 0, 0, 64 + j)
        self.qk_part(0, lambda p: None, part=2)
        sets = [(0, 0), (0, 1), (2, 0), (1, 0), (1, 1)]
        lred = self.lred()
        def prep(i):
            k, P = sets[i]
            return (self.pack(k) if P == 0 else []) + self.aprep(k, P, Q + 4 * (i % 2))
        for x in prep(0): a(x)
        for i, (k, P) in enumerate(sets):
            fill = prep(i + 1) if i + 1 < len(sets) else []
            if i == len(sets) - 1:
                fill = lred + self.epi_pre(); lred = []
            for t in range(4):
                b, tags = self.bop(0, 0, 0, k, P, t)
                if k == 2 and t < 2: b = 256 + 8 * t
                for tg in tags: self.need_lds(tg)
                a(f'v_smfmac_f32_16x16x64_bf16 {vr(AC + 4 * t, 4)}, {vr(Q + 4 * (i % 2), 4)}, {rr(b, 8)}, v{self.vIP}')
                n = (len(fill) + (3 - t)) // (4 - t)
                got = fill[:n]; fill = fill[n:]
                if len(got) < 2 and lred: got.append(lred.pop(0))
                for x in got: a(x)
        for x in self.merge(0) + self.merge(2): a(x)
        self.epilogue(1, 1)
        self.stamp(11, 's49')
        a('s_add_u32 s49, s49, 1'); a(f's_add_u32 s47, s47, {PIB}'); a('s_add_u32 s46, s56, 8192')
        a('s_barrier')
    def final(self):
        a = self.a; Q = self.vQ; AC = self.vAcc; T = self.vT; m = self.vMC; L = self.vL
        self.lq = []; self.vmq = []
        def fb(k, P, t): return 256 + 64 + 8 * (4 * P + t) if k == 1 else self.bop(1, 0, 2, k, P, t)[0]
        for n in range(56, 72):
            a(f'ds_read_b128 {rr(256 + 64 + 8 * ((n - 56) % 8) + 4 * ((n - 56) // 8), 4)}, v{self.vDs} offset:{self.ldsslot(1, n) * 1024}')
        KA = 96; A = [136, 140, 144]; PT = 148
        for z in self.zero_acc(): a(z)
        if self.fin > 1:
            for r in range(0, 40, 2): a(f'v_mov_b64 {vr(KA + r, 2)}, 0')
            a(f'v_cmp_gt_u32 s[40:41], s23, v{self.vBias}'); a(f's_mov_b32 s42, 0x{f2u(2.0 ** 40 if self.fin == 2 else 0.0):x}')
            a('v_mov_b32 v23, 0xff800000'); a(f'v_mov_b32 v{m}, 0')
            if self.mz: a(f's_mov_b32 s43, 0x{f2u(2.0 ** -40):x}'); a(f's_mov_b32 s42, 0x{(80 << 23) if self.fin == 2 else (46 << 23) + (1 << 22) if self.fin == 4 else 0:x}')
        a.label('L_Fpoll')
        self.timeout()
        self.qload()
        a('s_waitcnt vmcnt(0) lgkmcnt(0)')
        self.maxtree(range(Q, Q + 8), 18)
        a('s_cbranch_vccnz L_Fpoll')
        self.stamp(6, 's49')
        self.ck = 1; self.clk()
        def pv(A_, k, P, t): return f'v_smfmac_f32_16x16x64_bf16 {vr(AC + 4 * t, 4)}, {vr(A_, 4)}, {rr(fb(k, P, t), 8)}, v{self.vIP}'
        if self.fin > 1:
            M = []
            for u in range(10):
                for h in range(2): M.append(f'v_smfmac_f32_16x16x64_bf16 {vr(KA + 4 * u, 4)}, {vr(Q + 4 * h, 4)}, {rr(self.kreg(1, u) + 8 * h, 8)}, v{self.vIQ}')
            M += [pv(A[0], 0, 0, t) for t in range(4)] + [pv(A[1], 0, 1, t) for t in range(4)] + [pv(A[0], 1, 0, t) for t in range(4)]
            for t in range(4): M += [pv(A[1], 1, 1, t), pv(A[2], 2, 0, t)]
            G = [[] for _ in M]
            def put(g, ops, per=1):
                for i, x in enumerate(ops): G[g + i // per].append(x)
            for u in range(10):
                ac = KA + 4 * u; t = PT + 2 * (u % 2)
                put(2 * u + 4, [f'v_add_f32 v{t+1}, v{ac+1}, v{ac+3}', f'v_add_f32 v{t}, v{ac}, v{ac+2}'], 2)
                put(2 * u + 5, [f'v_add_f32_dpp v{T + u // 4}, v{t+1}, v{t} quad_perm:[1,1,3,3] row_mask:0x{1 << (u % 4):x} bank_mask:0xf'])
            if not self.mz: put(5, [f'v_add_f32_dpp v{m}, v{PT+1}, v{PT} quad_perm:[1,1,3,3] {FULL}',
                    f'v_max_f32_dpp v{m}, v{m}, v{m} quad_perm:[2,3,0,1] {FULL}', f'v_max_f32_dpp v{m}, v{m}, v{m} row_ror:4 {FULL}',
                    f'v_max_f32_dpp v{m}, v{m}, v{m} row_ror:8 {FULL}', f'v_mul_f32 v{m}, s51, v{m}'])
            ex = lambda k: [f'v_fma_f32 v{T+k}, v{T+k}, s51, -v{m}', f'v_exp_f32 v{T+k}, v{T+k}']
            put(11, ex(0)); put(13, self.pack(0)[:2], 2); put(14, self.pack(0)[2:]); put(15, self.aprep(0, 0, A[0]), 2)
            put(17, self.aprep(0, 1, A[1])[:2], 2); put(18, self.aprep(0, 1, A[1])[2:])
            put(19, ex(1)); put(21, self.pack(1)[:2], 2); put(22, self.pack(1)[2:])
            put(23, [f'v_cndmask_b32 v{T+2}, v23, v{T+2}, s[40:41]'] + ex(2)[:1], 2); put(24, ex(2)[1:])
            put(24, self.aprep(1, 0, A[0]), 2); put(25, self.pack(2)[:1]); put(26, self.pack(2)[1:3], 2); put(27, self.pack(2)[3:4]); put(28, self.pack(2)[4:])
            put(28, self.aprep(1, 1, A[1]), 2); put(30, self.aprep(2, 0, A[2]), 2)
            lr = self.lred()
            put(26, lr[:2]); put(29, lr[2:5]); put(32, lr[5:6]); put(33, lr[6:9], 3); put(34, lr[9:], 2)
            put(32, self.epi_pre()[:2], 2); put(35, [f'v_subrev_u32 v23, s43, v{L}', 'v_cmp_lt_u32 vcc, s42, v23'] if self.mz else [f'v_cmp_lt_f32 vcc, s42, v{L}'], 2); put(35, self.epi_pre()[2:4], 2)
            put(36, ['s_bitcmp1_b32 vcc_lo, 0', 's_cbranch_scc1 L_Fslow'] + self.epi_pre()[4:], 3)
            put(37, self.merge(0), 3)
            for x, g in zip(M, G):
                a(x)
                for y in g: a(y)
            for x in self.merge(2): a(x)
            a.label('L_Fepi')
            self.clk()
            self.epilogue(1, 0, self.vH)
            self.clk()
            if self.cyc:
                for i in range(self.ck - 1): self.stamp(44 + i, src=f's{self.CKR[i]}')
            self.ck = 0
            a('s_branch L_fin')
            a.label('L_Fslow'); a('s_nop 8')
            for z in self.zero_acc(): a(z)
        self.qk_part(1, lambda p: None)
        sets = [(0, 0), (2, 0), (0, 1), (1, 0), (1, 1)]
        lred = self.lred()
        def prep(i):
            k, P = sets[i]
            return (self.pack(k) if P == 0 else []) + self.aprep(k, P, Q + 4 * (i % 2))
        for x in prep(0): a(x)
        for i, (k, P) in enumerate(sets):
            fill = prep(i + 1) if i + 1 < len(sets) else []
            if i == len(sets) - 1:
                fill = lred + self.epi_pre(); lred = []
            for t in range(4):
                a(pv(Q + 4 * (i % 2), k, P, t))
                n = (len(fill) + (3 - t)) // (4 - t)
                got = fill[:n]; fill = fill[n:]
                if len(got) < 2 and lred: got.append(lred.pop(0))
                for x in got: a(x)
        for x in self.merge(0) + self.merge(2): a(x)
        if self.fin > 1: a('s_branch L_Fepi')
        else:
            self.clk()
            self.epilogue(1, 0, self.vH)
            self.clk()
            if self.cyc:
                for i in range(self.ck - 1): self.stamp(44 + i, src=f's{self.CKR[i]}')
            self.ck = 0
            a('s_branch L_fin')
    def share(self):
        a = self.a; F = self.fx2
        if not F: return
        a('s_add_u32 s35, s35, 1'); a(f's_mov_b32 s25, {F[0][1]}'); a('s_mul_i32 s24, s35, s25')
        b = 0
        for (n0, r0), (n1, r1) in zip(F, F[1:]):
            b += n0
            a(f's_sub_i32 s39, s35, {b}'); a('s_max_i32 s33, s39, 0'); a(f's_mul_i32 s33, s33, {r0 - r1}'); a('s_sub_u32 s24, s24, s33')
            a('s_cmp_ge_i32 s39, 0'); a(f's_cselect_b32 s25, {r1}, s25')
        a('s_lshl_b32 s24, s24, 9'); a('s_add_u32 s24, s24, s21'); a('s_add_u32 s21, s21, 0x2000000')
    def armS(self):
        a = self.a
        if not self.nocl: a('s_waitcnt vmcnt(8)')
        self.confirm(24, 20)
        if not self.oarm:
            a('v_lshl_add_u32 v18, v0, 19, s48'); a('v_mov_b64 v[20:21], -1'); a('v_mov_b64 v[22:23], -1')
            a('s_lshl_b32 s38, s3, 20'); a('s_add_u32 s38, s38, s47'); a(f's_add_u32 s39, s38, {PP2}')
            a(f'buffer_store_dwordx4 v[20:23], v{self.vL16}, {WS}, s39 offen sc1')
            a('s_mov_b64 exec, 3')
            a(f'buffer_store_dwordx2 v[20:21], v18, {WS}, s38 offen sc1')
            a('s_cmp_lg_u32 s3, 0'); a('s_cselect_b64 exec, -1, 0')
            a(f'buffer_store_dwordx4 v[20:23], v{self.vL16}, {WS}, s38 offen sc1')
            a('s_mov_b64 exec, -1')
        self.stamp(30, None, 24)
    def qk_part(self, ds_, hook, zero=True, part=3, tb=18):
        a = self.a; T = self.vT; Q = self.vQ; AC = self.vAcc
        def post_a(u):
            ac = AC + 4 * (u % 4); t = tb + 2 * (u % 2)
            a(f'v_add_f32 v{t+1}, v{ac+1}, v{ac+3}'); a(f'v_add_f32 v{t}, v{ac}, v{ac+2}')
        def post_b(u):
            t = tb + 2 * (u % 2)
            a(f'v_add_f32_dpp v{T + u // 4}, v{t+1}, v{t} quad_perm:[1,1,3,3] row_mask:0x{1 << (u % 4):x} bank_mask:0xf')
        for u in range(10 if part & 1 else 0):
            ac = AC + 4 * (u % 4); k = self.kreg(ds_, u)
            a(f'v_smfmac_f32_16x16x64_bf16 {vr(ac, 4)}, {vr(Q, 4)}, {rr(k, 8)}, v{self.vIQ}')
            if u >= 3: post_a(u - 3)
            a(f'v_smfmac_f32_16x16x64_bf16 {vr(ac, 4)}, {vr(Q + 4, 4)}, {rr(k + 8, 8)}, v{self.vIQ}')
            if u >= 3: post_b(u - 3)
            hook(('u', u))
        zf = [f'v_mov_b32 v{AC + r}, 0' for r in list(range(8, 16)) + list(range(8))] if zero else []
        def Z(n=2):
            for _ in range(n):
                if zf: a(zf.pop(0))
        if part == 1:
            z2 = [f'v_mov_b64 {vr(AC + r, 2)}, 0' for r in (8, 10, 12, 14, 0, 2, 4, 6)]
            post_a(7); a(z2[0]); a(z2[1]); post_b(7); hook(('p', 7)); post_a(8); a(z2[2]); a(z2[3]); post_b(8); hook(('p', 8)); post_a(9); a(z2[4]); a(z2[5]); post_b(9); a(z2[6]); a(z2[7])
            return
        a(f'v_cmp_gt_u32 vcc, s{22 + ds_}, v{self.vBias}'); a('v_mov_b32 v23, 0xff800000')
        if part & 1: post_a(7); Z(1); post_b(7); Z(3); post_a(8); Z(1); post_b(8); Z(2); post_a(9); Z(1); post_b(9)
        else: Z(8)
        m = self.vMC; t = 18
        a(f'v_sub_f32 v{T+2}, v{T+2}, v{T+1}'); a(f'v_sub_f32 v{T+1}, v{T+1}, v{T}')
        a(f'v_cndmask_b32 v{T+2}, v23, v{T+2}, vcc')
        a(f'v_max3_f32 v{m}, v{T}, v{T+1}, v{T+2}'); Z()
        a(f'v_max_f32_dpp v{m}, v{m}, v{m} quad_perm:[2,3,0,1] {FULL}'); Z()
        a(f'v_max_f32_dpp v{m}, v{m}, v{m} row_ror:4 {FULL}'); Z()
        a(f'v_max_f32_dpp v{t}, v{m}, v{m} row_ror:8 {FULL}')
        a(f'v_max_f32_dpp v{m}, v{m}, v{m} row_ror:8 {FULL}'); Z()
        a(f'v_permlane16_swap_b32 v{m}, v{t}'); a(f'v_max_f32 v{t+1}, v{m}, v{t}'); a(f'v_max_f32 v{m}, v{m}, v{t}'); Z(8)
        a(f'v_permlane32_swap_b32 v{m}, v{t+1}'); a(f'v_max_f32 v{m}, v{m}, v{t+1}')
        a(f'v_mul_f32 v{m}, s51, v{m}')
        if self.mz:
            a(f'v_cmp_lt_f32 vcc, s50, abs(v{m})'); a(f'v_cndmask_b32 v{m}, 0, v{m}, vcc')
        for k in (0, 2, 1): a(f'v_fma_f32 v{T+k}, v{T+k}, s51, -v{m}')
        for k in (0, 2, 1): a(f'v_exp_f32 v{T+k}, v{T+k}')
        hook(('x', 0))
    def pack(self, k):
        T = self.vT
        o = [f'v_mov_b32_dpp v18, v{T+k} quad_perm:[0,0,0,0] {FULL}',
             f'v_mov_b32_dpp v19, v{T+k} quad_perm:[2,2,2,2] {FULL}',
             f'v_cvt_pk_bf16_f32 v{20+k}, v18, v19']
        if k == 2: o += [f'v_mov_b32_dpp v0, v22 row_shl:4 {FULL}', 'v_permlane32_swap_b32 v22, v0']
        return o
    def aprep(self, k, P, A):
        pp = 20 + k; M = self.vM
        if P == 0:
            return [f'v_and_b32 v{A}, v{pp}, v{M}', f'v_and_b32 v{A+2}, v{pp}, v{M+2}',
                    f'v_and_b32_dpp v{A+1}, v{pp}, v{M+1} row_shr:4 {FULL} bound_ctrl:0',
                    f'v_and_b32_dpp v{A+3}, v{pp}, v{M+3} row_shr:4 {FULL} bound_ctrl:0']
        return [f'v_and_b32 v{A+1}, v{pp}, v{M+1}', f'v_and_b32 v{A+3}, v{pp}, v{M+3}',
                f'v_and_b32_dpp v{A}, v{pp}, v{M} row_shl:4 {FULL} bound_ctrl:0',
                f'v_and_b32_dpp v{A+2}, v{pp}, v{M+2} row_shl:4 {FULL} bound_ctrl:0']
    def lred(self):
        L = self.vL; T = self.vT
        return [f'v_add_f32 v{L}, v{T}, v{T+1}',
                f'v_add_f32 v{L}, v{T+2}, v{L}',
                f'v_add_f32_dpp v{L}, v{L}, v{L} quad_perm:[2,3,0,1] {FULL}',
                f'v_add_f32_dpp v{L}, v{L}, v{L} row_ror:4 {FULL}',
                f'v_add_f32_dpp v{L}, v{L}, v{L} row_ror:8 {FULL}',
                f'v_mov_b32 v23, v{L}', f'v_permlane16_swap_b32 v{L}, v23', f'v_add_f32 v{L}, v{L}, v23',
                f'v_mov_b32 v23, v{L}', f'v_permlane32_swap_b32 v{L}, v23', f'v_add_f32 v{L}, v{L}, v23']
    def merge(self, t0):
        AC = self.vAcc; o = []
        for r in range(4): o.append(f'v_permlane32_swap_b32 v{AC + 4*t0 + r}, v{AC + 4*t0 + 4 + r}')
        for r in range(4):
            if t0 == 0: o.append(f'v_add_f32_dpp v{AC + r}, v{AC + 4 + r}, v{AC + r} row_ror:8 row_mask:0xf bank_mask:0x3')
            else: o.append(f'v_add_f32_dpp v{AC + r}, v{AC + 8 + r}, v{AC + 12 + r} row_ror:8 row_mask:0xf bank_mask:0xc')
        return o
    def staddr(self):
        return [f'v_lshrrev_b32 v18, 6, v{self.vL16}', 'v_lshl_add_u32 v18, v18, 4, s57']
    def qk1(self, s, LP, wait):
        a = self.a; Q = self.vQ
        def hook(p):
            for x in LP.get(p, []): self.load(*x, wait=wait)
        a(f'v_add_u32 v18, s53, v{self.vQo}')
        self.ds(f'ds_read_b128 {vr(Q, 4)}, v18', 'q'); self.ds(f'ds_read_b128 {vr(Q + 4, 4)}, v18 offset:256', 'q')
        for z in self.zero_acc(): a(z)
        self.need_lds('q')
        self.qk_part(s, hook, zero=False)
        pk = self.pack(0) + self.pack(2) + self.pack(1); lr = self.lred()
        while pk or lr:
            if lr: a(lr.pop(0))
            if pk: a(pk.pop(0))
        for x in self.staddr(): a(x)
        a('v_mov_b32 v19, s55')
        a('ds_write_b96 v18, v[20:22]')
        a('s_mov_b64 exec, 1')
        a(f'ds_write_b64 v19, {vr(self.vMC, 2)} offset:{self.MA1[s]}')
        a('s_mov_b64 exec, -1')
        hook(('e', 0))
    def cdst(self, fs, cu0, pi):
        if pi >= 2: pi += 2
        return self.kreg(fs, pi // 2) + 8 * (pi % 2)
    def copy(self, ds_, fs, cu0, n):
        if n >= 72: pi, half = (n - 72) // 2, (n - 72) % 2
        else: pi, half = 2 + (n - 56) % 8, (n - 56) // 8
        self.ds(f'ds_read_b128 {rr(self.cdst(fs, cu0, pi) + 4 * half, 4)}, v{self.vDs} offset:{self.ldsslot(ds_, n) * 1024}', ('c', n))
    def bop(self, ds_, fs, cu0, U, P, t):
        if U == 0: return self.vreg0(ds_, P, t), []
        if U == 1: return self.cdst(fs, cu0, 2 + 4 * P + t), [('c', 56 + 4 * P + t), ('c', 64 + 4 * P + t)]
        if t < 2: return self.cdst(fs, cu0, t), [('c', 72 + 2 * t), ('c', 73 + 2 * t)]
        if cu0: return self.kreg(fs, 1) + 8 * (t - 2), []
        return self.vH + 8 * (t - 2), []
    def pass2(self, s, LP):
        a = self.a; ds_ = 1 - s; Q = self.vQ; AC = self.vAcc
        cplan = {0: [72, 73, 74, 75], 2: [56, 64, 57, 65], 3: [58, 66, 59, 67], 4: [60, 68], 5: [61, 69], 6: [62, 70], 7: [63, 71]}
        def hook(p):
            for n in LP.get(p, []):
                if n == 73: self.need_lds(('c', 75))
                if n < 40: assert p[0] != 'u' or p[1] > self.ORD[n] // 4
                self.load(s if n >= 40 else ds_, n, wait=False)
            if p == ('u', 6): self.share()
            if p[0] == 'u':
                for n in cplan.get(p[1], []): self.copy(ds_, ds_, 0, n)
        self.qk_part(ds_, hook)
        sets = [(0, 0), (2, 0), (0, 1), (1, 0), (1, 1)]
        lred = self.lred()
        def prep(i):
            k, P = sets[i]
            return (self.pack(k) if P == 0 else []) + self.aprep(k, P, Q + 4 * (i % 2))
        self.need_vm(('cp', 'q1'))
        for x in prep(0): a(x)
        for i, (k, P) in enumerate(sets):
            fill = prep(i + 1) if i + 1 < len(sets) else []
            if i == len(sets) - 1:
                fill = lred + self.epi_pre(); lred = []
            for t in range(4):
                b, tags = self.bop(ds_, ds_, 0, k, P, t)
                for tg in tags: self.need_lds(tg)
                a(f'v_smfmac_f32_16x16x64_bf16 {vr(AC + 4 * t, 4)}, {vr(Q + 4 * (i % 2), 4)}, {rr(b, 8)}, v{self.vIP}')
                n = (len(fill) + (3 - t)) // (4 - t)
                got = fill[:n]; fill = fill[n:]
                if len(got) < 2 and lred: got.append(lred.pop(0))
                for x in got: a(x)
            hook(('i', i))
        for x in self.merge(0) + self.merge(2): a(x)
        hook(('m', 0))
        self.epilogue(1, s)
    def epi_pre(self):
        return [f'v_add_u32 v18, s54, v{self.vL16}', 'v_mov_b32 v19, s55', 'v_mov_b32 v20, 1', 'v_mov_b32 v21, 0', 'v_mov_b32 v22, s48']
    def pv1f(self, s):
        a = self.a; fs = 1 - s; Q = self.vQ; AC = self.vAcc
        self.xst = 2
        if self.fx2: a(f's_mov_b32 s{22 + fs}, s25'); self.stamp(40, 's49', 18, 's35')
        def hook(p):
            for n in self.p1l.get(p, []): self.load(fs, n, wait=False)
        for x in self.staddr(): a(x)
        self.ds('ds_read_b96 v[20:22], v18', 'p')
        hook('a')
        for z in self.zero_acc(): a(z)
        self.need_vm((s, 71))
        for n in [56, 64, 57, 65, 58, 66, 59, 67]: self.copy(s, fs, 2, n)
        self.need_lds('p')
        sets = [(0, 0), (0, 1), (1, 0), (1, 1), (2, 0)]
        prep = lambda i: self.aprep(*sets[i], Q + 4 * (i % 2))
        for x in prep(0): a(x)
        for i, (k, P) in enumerate(sets):
            last = (i == len(sets) - 1)
            fill = self.epi_pre() if last else prep(i + 1)
            if i == 1:
                for n in [60, 68, 61, 69, 62, 70, 63, 71]: self.copy(s, fs, 2, n)
            hook(str(i))
            for t in range(4):
                b, tags = self.bop(s, fs, 2, k, P, t)
                if last:
                    if t == 0:
                        self.need_vm((s, 73)); self.copy(s, fs, 2, 72); self.copy(s, fs, 2, 73)
                        self.need_vm((s, 75)); self.copy(s, fs, 2, 74); self.copy(s, fs, 2, 75)
                        for x in fill: a(x)
                        fill = []
                    if t == 2: self.need_vm((s, 77))
                    if t == 3: self.need_vm((s, 79))
                for tg in tags: self.need_lds(tg)
                a(f'v_smfmac_f32_16x16x64_bf16 {vr(AC + 4 * t, 4)}, {vr(Q + 4 * (i % 2), 4)}, {rr(b, 8)}, v{self.vIP}')
                n = (len(fill) + (3 - t)) // (4 - t)
                got = fill[:n]; fill = fill[n:]
                for x in got: a(x)
        self.xst = 0
        for x in self.merge(0) + self.merge(2): a(x)
        hook('m')
        self.epilogue(0, s)
        self.stamp(16, 's49')
        for i in range(8): a(f'v_mov_b64 {vr(self.vH + 2 * i, 2)}, {vr(self.kreg(fs, 1) + 2 * i, 2)}')
    def epilogue(self, p2, s, Zr=None):
        a = self.a; Q = self.vQ; AC = self.vAcc; m = self.vMC; L = self.vL
        CA = self.CA[p2]; MA = self.MA[1] if p2 else self.MA1[s]; CO = self.CO[p2]
        Zr = Zr or self.kreg(1 - s, 2)
        a(f'ds_write_b128 v18, {vr(AC, 4)} offset:{CA}')
        a('s_mov_b64 exec, 1')
        if p2: a(f'ds_write_b64 v19, {vr(self.vMC, 2)} offset:{MA}')
        a(f'ds_add_rtn_u32 v20, v21, v20 offset:{CO}')
        a('s_mov_b64 exec, -1')
        a(f'ds_read_b128 {vr(Q, 4)}, v21 offset:{MA}'); a(f'ds_read_b128 {vr(Q + 4, 4)}, v21 offset:{MA + 16}')
        for w in range(4): a(f'ds_read_b128 {vr(Zr + 4 * w, 4)}, v{self.vL16} offset:{CA + 1024 * w}')
        if p2: a(f's_sub_u32 s38, s47, {PIB - PP2}')
        else: a('s_mov_b32 s38, s47')
        dual = self.home and p2 != s
        if dual: a('s_add_u32 s33, s38, 0x2000'); a(f's_cmp_eq_u32 s49, {3 + p2}'); a(f's_cselect_b32 s33, s33, 0x{OOB:x}')
        a('s_waitcnt lgkmcnt(6)')
        self.clk()
        a('v_readfirstlane_b32 s39, v20'); a('s_and_b32 s39, s39, 3'); a('s_cmp_eq_u32 s39, 3')
        if p2: a('s_cselect_b32 s58, 1, 0')
        elif self.bst: a('s_mov_b32 s26, s59'); a(f's_cselect_b32 s59, {self.bst[0]}, {"s59" if len(self.bst) < 3 else self.bst[2]}')
        l = self.lab('L_nl'); a(f's_cbranch_scc0 {l}')
        a('s_waitcnt lgkmcnt(4)')
        def st(text, pre=None):
            assert self.loc
            x = self.lab('L_ls'); y = self.lab('L_ls')
            a(f's_cbranch_scc1 {x}')
            if pre: a(pre)
            a(text + ' sc1'); a(f's_branch {y}'); a.label(x); a(text); a.label(y)
        if self.mz:
            g = self.lab('L_gen'); j = self.lab('L_join')
            a(f'v_or3_b32 v{m}, v{Q}, v{Q+2}, v{Q+4}'); a(f'v_add_f32 v{L}, v{Q+1}, v{Q+3}'); a(f'v_or_b32 v{m}, v{m}, v{Q+6}'); a(f'v_add_f32 v23, v{Q+5}, v{Q+7}')
            a(f'v_cmp_eq_u32 vcc, 0, v{m}'); a(f'v_add_f32 v{L}, v{L}, v23'); a(f's_cbranch_vccz {g}')
            a('s_waitcnt lgkmcnt(2)')
            for hf in range(2): a(f'v_pk_add_f32 {vr(AC + 2*hf, 2)}, {vr(Zr + 2*hf, 2)}, {vr(Zr + 4 + 2*hf, 2)}')
            a('s_waitcnt lgkmcnt(0)')
            for hf in range(2): a(f'v_pk_add_f32 {vr(Zr + 2*hf, 2)}, {vr(Zr + 8 + 2*hf, 2)}, {vr(Zr + 12 + 2*hf, 2)}')
            for hf in range(2): a(f'v_pk_add_f32 {vr(AC + 2*hf, 2)}, {vr(AC + 2*hf, 2)}, {vr(Zr + 2*hf, 2)}')
            a.label(j)
            a(f's_cmp_eq_u32 s27, {NCHAIN + 1}')
            for r in range(4): a(f'v_min_u32 v{AC + r}, -2, v{AC + r}')
            a(f'v_and_b32 v{L}, -2, v{L}')
            x = self.lab('L_ls')
            a(f's_cbranch_scc0 {x}')
            a(f'buffer_store_dwordx4 {vr(AC, 4)}, v{self.vL16}, {WS}, s38 offen')
            a('s_mov_b64 exec, 1')
            a(f'buffer_store_dwordx2 {vr(m, 2)}, v22, {WS}, s38 offen')
            a('s_mov_b64 exec, -1')
            def rare():
                a.label(x)
                a(f'buffer_store_dwordx4 {vr(AC, 4)}, v{self.vL16}, {WS}, s38 offen sc1')
                a(f'v_or_b32 v{L}, s4, v{L}')
                a('s_mov_b64 exec, 1')
                a(f'buffer_store_dwordx2 {vr(m, 2)}, v22, {WS}, s38 offen sc1')
                a('s_mov_b64 exec, -1')
                a(f's_branch {l}')
                a.label(g)
                a(f'v_max3_f32 v{m}, v{Q}, v{Q+2}, v{Q+4}'); a(f'v_max_f32 v{m}, v{m}, v{Q+6}')
                for w in range(4): a(f'v_sub_f32 v{Q+2*w}, v{Q+2*w}, v{m}')
                for w in range(4): a(f'v_exp_f32 v{Q+2*w}, v{Q+2*w}')
                a(f'v_mul_f32 v{L}, v{Q}, v{Q+1}')
                for w in range(1, 4): a(f'v_fmac_f32 v{L}, v{Q+2*w}, v{Q+2*w+1}')
                a(f'v_min_u32 v{m}, -2, v{m}')
                a('s_waitcnt lgkmcnt(0)')
                for w in range(4):
                    for hf in range(2):
                        if w == 0: a(f'v_pk_mul_f32 {vr(AC + 2*hf, 2)}, {vr(Zr + 2*hf, 2)}, {vr(Q, 2)} op_sel_hi:[1,0]')
                        else: a(f'v_pk_fma_f32 {vr(AC + 2*hf, 2)}, {vr(Zr + 4*w + 2*hf, 2)}, {vr(Q + 2*w, 2)}, {vr(AC + 2*hf, 2)} op_sel_hi:[1,0,1]')
                a(f's_branch {j}')
            self.later.append(rare)
            a.label(l)
            a('s_waitcnt lgkmcnt(0)'); self.lq = []
            return
        a(f'v_max3_f32 v{m}, v{Q}, v{Q+2}, v{Q+4}'); a(f'v_max_f32 v{m}, v{m}, v{Q+6}')
        for w in range(4): a(f'v_sub_f32 v{Q+2*w}, v{Q+2*w}, v{m}')
        for w in range(4): a(f'v_exp_f32 v{Q+2*w}, v{Q+2*w}')
        a(f'v_mul_f32 v{L}, v{Q}, v{Q+1}')
        for w in range(1, 4): a(f'v_fmac_f32 v{L}, v{Q+2*w}, v{Q+2*w+1}')
        a(f'v_min_u32 v{m}, -2, v{m}'); a(f'v_and_b32 v{L}, -2, v{L}')
        a(f's_cmp_eq_u32 s27, {NCHAIN + 1}')
        a('s_mov_b64 exec, 1')
        st(f'buffer_store_dwordx2 {vr(m, 2)}, v22, {WS}, s38 offen', f'v_or_b32 v{L}, s4, v{L}')
        if dual: a(f'buffer_store_dwordx2 {vr(m, 2)}, v22, {WS}, s33 offen sc1')
        a('s_mov_b64 exec, -1')
        a('s_waitcnt lgkmcnt(0)')
        for w in range(4):
            for hf in range(2):
                if w == 0: a(f'v_pk_mul_f32 {vr(AC + 2*hf, 2)}, {vr(Zr + 2*hf, 2)}, {vr(Q, 2)} op_sel_hi:[1,0]')
                else: a(f'v_pk_fma_f32 {vr(AC + 2*hf, 2)}, {vr(Zr + 4*w + 2*hf, 2)}, {vr(Q + 2*w, 2)}, {vr(AC + 2*hf, 2)} op_sel_hi:[1,0,1]')
        for r in range(4): a(f'v_min_u32 v{AC + r}, -2, v{AC + r}')
        st(f'buffer_store_dwordx4 {vr(AC, 4)}, v{self.vL16}, {WS}, s38 offen')
        if dual: a(f'buffer_store_dwordx4 {vr(AC, 4)}, v{self.vL16}, {WS}, s33 offen sc1')
        a.label(l)
        a('s_waitcnt lgkmcnt(0)'); self.lq = []

    RING0 = 8192
    vGO2, vTR, vOOB, vDO, vX0O, vGO, vXR, vXW, vRES = 8, 9, 10, 11, 12, 13, 14, 15, 16
    vAC, vCS, vQS, vRO, vPO, vPO2, vMLO, vOW, vDQ, vX0 = 32, 36, 38, 39, 40, 41, 42, 43, 44, 45
    def vm(self, text, tag=None):
        self.a(text); self.cq.append(tag)
    def vmwait(self, tag):
        if tag in self.cq:
            i = len(self.cq) - 1 - self.cq[::-1].index(tag)
            k = len(self.cq) - 1 - i
            assert k <= 63
            self.a(f's_waitcnt vmcnt({k})'); self.cq = self.cq[i + 1:]
    def arm(self, q=False):
        a = self.a
        if not self.nocl: self.vmwait('init')
        self.confirm(self.vCL, 28)
        for r in range(20, 24): a(f'v_mov_b32 v{r}, -1')
        a('s_lshl2_add_u32 s38, s8, s3'); a('s_mul_i32 s38, s38, 4608'); a(f's_add_u32 s38, s38, 0x{YOFF:x}')
        for i in range(5): self.vm(f'buffer_store_dwordx4 v[20:23], v1, {WS}, s38 offen offset:{min(i * 1024, 3584)} sc1', 'arm')
        if q:
            self.bits('v28', 'v0', 'v29', [(0, 5, 4), (5, 1, 13)])
            a('s_lshl_b32 s38, s8, 9'); a('s_lshl_b32 s39, s3, 14'); a('s_add_u32 s39, s39, s38')
            self.vm(f'buffer_store_dwordx4 v[20:23], v28, {WS}, s39 offen sc1', 'arm')
        else:
            self.pquad('s38'); a('s_lshl_b32 s39, s8, 15'); a('s_add_u32 s38, s38, s39'); a(f's_add_u32 s38, s38, 0x{POFF - 16 * PB:x}')
            for i in range(4): self.vm(f'buffer_store_dwordx4 v[20:23], v1, {WS}, s38 offen offset:{i * 1024} sc1', 'arm')
    def pquad(self, d):
        self.a(f's_and_b32 {d}, s3, 2'); self.a(f's_add_u32 {d}, {d}, s3'); self.a(f's_lshl_b32 {d}, {d}, 12')
    def announce(self, bar=True):
        a = self.a
        if bar: self.vmwait('arm'); a('s_barrier')
        assert 'arm' not in self.cq
        self.signal(28, 29, self.CNTA, 's9')
        self.stamp(21, None, 30)
    def chain_common(self):
        a = self.a
        a('s_lshl4_add_u32 s2, s38, s36'); a('s_mov_b32 s8, s2'); a('s_mov_b32 s9, s5'); a('s_mov_b32 s10, 0')
        if self.diag: a('s_mov_b32 s61, s2'); self.diagbase()
        a('v_lshlrev_b32 v1, 4, v0')
        self.bits('v2', 'v0', 'v6', [(0, 1, 4), (4, 2, 5)])
        self.bits('v4', 'v0', 'v6', [(1, 1, 0), (3, 1, 2), (2, 1, 3)])
        a('s_lshl_b32 s98, s3, 13'); a(f's_add_u32 s98, s98, {self.RING0}'); a('s_movk_i32 s99, 1024')
        a('s_mul_i32 s32, s3, 7168'); a(f's_add_u32 s32, s32, {self.RING0}')
        self.claim(28, 29, self.vCL)
        self.srd(16, 86, 0x20000000)
        self.stamp(0, None, 30)
        a('s_cmp_lt_u32 s2, 16'); a('s_cbranch_scc1 L_roleOQ')
        self.cq = ['init']
        if self.wtlb:
            lo = 30 if self.wtlb == 1 else 16; nw = 4 * (32 - lo)
            a(f's_cmp_lt_u32 s2, {lo}'); a('s_cbranch_scc1 L_notlb')
            a('v_lshlrev_b32 v6, 12, v0'); a(f's_sub_u32 s33, s2, {lo}'); a('s_lshl2_add_u32 s33, s33, s3'); a('s_lshl_b32 s33, s33, 18')
            for lo_, size in ((70, 448 * 8192), (76, 448 * 3584), (78, 448 * 3584), (72, 4096 * 896), (80, 1792 * 896)):
                self.srd(20, lo_, size)
                for i in range(-(-size // (nw << 18))):
                    if i: a(f's_add_u32 s39, s33, {i * nw << 18}')
                    a(f'buffer_load_dword v64, v6, {W1}, {"s39" if i else "s33"} offen nt')
            a.label('L_notlb')
        if self.hq:
            self.srd(20, 70, 448 * 8192)
            self.bits('v6', 'v0', 'v7', [(0, 5, 4), (5, 1, 13)])
            a('s_sub_u32 s33, s2, 16'); a('s_lshl_b32 s33, s33, 9'); a('s_lshl_b32 s39, s3, 14'); a('s_add_u32 s33, s33, s39')
            a(f's_add_u32 s33, s33, {self.hq[0] * 64 * 8192}')
            for i in range(8 * (self.hq[1] - self.hq[0])):
                self.vm(f'buffer_load_dwordx4 v[64:67], v6, {W1}, s33 offen {self.hpol}', 'hq'); a('s_add_u32 s33, s33, 65536')
                if i == 0: self.stamp(61, None, 30)
                if i == 8: self.stamp(63, None, 30)
                if i == 9: self.arm()
                if i == 23: self.announce()
        self.cq0 = list(self.cq)
        a('s_cmp_lt_u32 s2, 30'); a('s_cbranch_scc1 L_roleF')
    def consts(self):
        a = self.a
        a('v_and_b32 v6, 1, v0'); a('v_cmp_eq_u32 vcc, 1, v6')
        a('v_mov_b32 v3, 0x44444444'); a('v_mov_b32 v6, 0xeeeeeeee'); a('v_cndmask_b32 v3, v3, v6, vcc')
        self.bits('v9', 'v0', 'v6', [(0, 5, 3), (5, 1, 10)])
        a('v_mul_u32_u24 v5, 6144, v6'); a('s_mul_i32 s38, s3, 1792'); a('v_add3_u32 v5, v5, v9, s38')
        a(f's_mov_b32 s57, 0x{OOB:x}'); a(f's_mov_b32 s56, 0x{OOB:x}'); a('s_mov_b32 s49, -1')
    vCL = 46
    def preready(self, streams=False):
        self.vm(f'global_load_dwordx2 v[46:47], v18, {DBG} offset:{self.CNTA} sc1', 'cnt')
    def ready(self, streams=False):
        a = self.a
        self.stamp(22, None, 28)
        self.vmwait('cnt')
        self.wait_counter(18, 46, 22, self.CNTA, NCHAIN, pre=True)
        a('s_mov_b32 s56, 0')
        if self.dual: a('s_movk_i32 s57, 0x2000')
        if self.dual and self.role != 'W':
            a('v_readfirstlane_b32 s38, v47'); a('s_getreg_b32 s10, hwreg(HW_REG_XCC_ID, 2, 1)'); a('s_xor_b32 s10, s10, s38'); a('s_and_b32 s10, s10, 1'); a('s_lshl_b32 s10, s10, 13')
            if self.diag:
                a('v_mov_b32 v28, s10'); a('v_mov_b32 v29, 0')
                a(f'buffer_store_dword v28, v29, {WS}, s61 offen offset:{62 * 4}')
        self.stamp(1, None, 28)
    def near(self):
        if not self.dual: return
        a = self.a; l = self.lab('L_nr')
        assert self.hs <= 12
        a('s_mul_i32 s38, s3, 1536'); a(f's_add_u32 s11, s38, 0x{XBOFF:x}')
        a('s_mov_b32 s4, -1'); a('s_mov_b32 s5, -1'); a(f's_mov_b32 s6, {2 * self.hs}')
        a('s_waitcnt vmcnt(0)')
        a.label(l)
        a('s_waitcnt lgkmcnt(0)'); a('s_memtime s[58:59]'); a('s_waitcnt lgkmcnt(0)')
        a(f'buffer_load_dword v28, off, {WS}, s11 sc1'); a('s_waitcnt vmcnt(0)')
        a('s_memtime s[38:39]'); a('s_waitcnt lgkmcnt(0)')
        a('s_sub_u32 s38, s38, s58'); a('s_min_u32 s38, s38, s4'); a('s_mov_b32 s4, s5'); a('s_mov_b32 s5, s38')
        a('s_xor_b32 s11, s11, 0x2000'); a('s_and_b32 s38, s6, 1'); a('s_lshl_b32 s38, s38, 7'); a('s_add_u32 s11, s11, s38')
        a('s_sub_u32 s6, s6, 1'); a('s_cmp_lg_u32 s6, 0'); a(f's_cbranch_scc1 {l}')
        a('s_cmp_gt_u32 s4, s5'); a('s_cselect_b32 s10, 0x2000, 0')
        if self.hforce is not None: a(f's_xor_b32 s10, s10, {self.hforce}')
        a('s_getreg_b32 s38, hwreg(HW_REG_XCC_ID, 2, 1)'); a('s_lshr_b32 s39, s10, 13'); a('s_xor_b32 s38, s38, s39')
        a('v_mov_b32 v28, s38'); a('v_mov_b32 v29, 0')
        a('s_cmp_eq_u32 s3, 0'); a('s_cselect_b64 exec, 1, 0')
        a(f'global_store_dword v29, v28, {DBG} offset:{self.CNTA + 4} sc1'); a('s_mov_b64 exec, -1')
        if self.diag:
            self.stamp(20, None, 28)
            a('s_lshl_b32 s38, s4, 16'); a('s_add_u32 s38, s38, s5'); a('v_mov_b32 v28, s38'); a('v_mov_b32 v29, 0')
            a(f'buffer_store_dword v28, v29, {WS}, s61 offen offset:{62 * 4}')
    def lstore(self, op, data, voff, sp, ss):
        self.a(f'buffer_store_{op} {data}, {voff}, {WS}, {ss} offen sc1')
        if self.dual: self.a(f'buffer_store_{op} {data}, {voff}, {WS}, {sp} offen sc1')
    def dma_sub(self, name, srd, voff, tab, adv):
        a = self.a
        a.label(name)
        for e in range(8):
            a(f'buffer_load_dwordx4 {voff}, {srd}, s{tab + e} offen nt lds')
            if e < 7: a('s_add_u32 m0, m0, s99')
        a(f'v_add_u32 {voff}, 0x{adv:x}, {voff}')
        a('s_setpc_b64 s[96:97]')
    def dma_subB(self, name, srd, voff):
        a = self.a
        a.label(name)
        for cb in range(7):
            a(f'buffer_load_dwordx4 {voff}, {srd}, 0 offen offset:{128 * cb} nt lds')
            if cb < 6: a('s_add_u32 m0, m0, 896')
        a(f'v_add_u32 {voff}, 0x{32 * 896:x}, {voff}')
        a('s_setpc_b64 s[96:97]')
    def poff(self, p): return p['off'] if 'off' in p else p['slot'] * 32768
    def issue(self, p):
        self.a(f's_add_u32 m0, {"s32" if p["B"] else "s98"}, {self.poff(p)}'); self.a(f's_call_b64 s[96:97], {p["sub"]}')
        self.cq += [id(p)] * (7 if p['B'] else 8)
    def readout(self, p, sel=None):
        self.a(f'v_add_u32 v6, {self.RING0 + self.poff(p)}, {"v5" if p["B"] else "v9"}')
        for d, imm in p['rd']:
            if sel is None or sel(d): self.a(f'ds_read_b64_tr_b16 {rr(d, 2)}, v6 offset:{imm}')
    def consume(self, p, nxt=None, hook=None):
        self.vmwait(id(p))
        self.a('s_waitcnt lgkmcnt(0)'); self.a('s_barrier')
        if hook: hook()
        for x in (nxt if isinstance(nxt, list) else [nxt] if nxt else []):
            if 'off' not in x: assert x['slot'] == self.lastslot, (x['slot'], self.lastslot)
            self.issue(x)
        self.readout(p); self.lastslot = p.get('slot')
    def table(self, tab, rs):
        for e in range(8): self.a(f's_mov_b32 s{tab + e}, 0x{(16 * (e & 1) + 2 * ((e >> 1) & 1) + 32 * (e >> 2)) * rs:x}')
    def typeB(self, voff, rowbase_s):
        a = self.a
        a('s_and_b32 s38, s3, 1'); a('s_lshl_b32 s38, s38, 4'); a(f's_add_u32 s38, s38, {rowbase_s}'); a('s_and_b32 s39, s3, 2'); a('s_add_u32 s38, s38, s39')
        a(f'v_add_u32 v6, s38, v4'); a(f'v_mad_u32_u24 {voff}, v6, s99, v2'); a(f'v_lshlrev_b32 v6, 7, v6'); a(f'v_sub_u32 {voff}, {voff}, v6')
    def typeB_reads(self, breg, ks, half):
        return [(breg(jj, ks) + 2 * (e1 + 2 * half), 2 * e1 * 7168 + jj * 256) for jj in range(7) for e1 in range(2)]
    def x0off(self):
        a = self.a
        a(f'v_mov_b32 v10, 0x{OOB:x}')
        self.bits('v6', 'v0', 'v7', [(0, 4, 3), (4, 1, 2), (5, 1, 7)])
        a('s_mul_i32 s38, s3, 224'); a('s_lshl_b32 s39, s3, 5'); a(f's_add_u32 s39, s39, {896 - 224}')
        a('v_cmp_gt_u32 vcc, 224, v6')
        a('v_add_u32 v15, s38, v6'); a('v_add_u32 v6, s39, v6')
        a('v_cndmask_b32 v12, v10, v15, vcc'); a('v_cndmask_b32 v15, v6, v15, vcc')
        a('s_lshl_b32 s38, s3, 9'); a('v_lshl_add_u32 v14, v0, 3, s38'); a('v_cndmask_b32 v14, v10, v14, vcc')
    def gather_offs(self):
        a = self.a
        self.bits('v13', 'v0', 'v6', [(0, 4, 4), (4, 1, 12), (5, 1, 14)])
        a('s_lshl_b32 s38, s3, 8'); a('v_add_u32 v13, s38, v13'); a(f'v_lshl_add_u32 v{self.vRO}, v0, 2, s38')
        a('v_cmp_gt_u32 vcc, 48, v0'); a('v_mov_b32 v18, 0'); a('v_mov_b32 v19, 0'); a('v_cndmask_b32 v8, v10, v13, vcc')
        a('v_and_b32 v6, 8, v0'); a('v_cmp_eq_u32 vcc, 8, v6'); a('v_mov_b32 v6, 0x3c00'); a('v_mov_b32 v7, 0x3c000000')
        a('v_cndmask_b32 v6, v6, v7, vcc'); a('v_and_b32 v7, 7, v0')
        for r, key in enumerate((0, 1, 4, 5)):
            a(f'v_cmp_eq_u32 vcc, {key}, v7'); a('s_nop 1'); a(f'v_cndmask_b32 v{self.vAC + r}, 0, v6, vcc')
    def resid_poll(self, soff):
        a = self.a; l = self.lab('L_rp')
        a.label(l)
        self.timeout()
        a(f'buffer_load_dwordx2 v[16:17], v14, {WS}, {soff} offen sc1'); a('s_waitcnt vmcnt(0)')
        a('v_max_u32 v6, v16, v17'); a('v_cmp_eq_u32 vcc, -1, v6'); a(f's_cbranch_vccnz {l}')
    def repoll(self, loads, full, comp, done):
        a = self.a; p = self.lab('L_mp'); i_ = self.lab('L_mi')
        M = ['vcc' if i == 4 else f's[{88 + 2 * i}:{89 + 2 * i}]' for i in range(len(loads))]
        def masks(to):
            for m, (r, t) in zip(M, loads): a(f'v_cmp_eq_u32 {m}, -1, v{r}')
            a(f's_or_b64 s[38:39], {M[0]}, {M[1]}')
            for m in M[2:]: a(f's_or_b64 s[38:39], s[38:39], {m}')
            a(f's_cbranch_scc0 {to}')
        if done:
            r_ = self.lab('L_mr'); a(f's_cbranch_vccnz {r_}')
            a('s_cmp_eq_u32 s38, 0'); a(f's_cbranch_scc1 {full}'); a(f's_branch {done}')
            a.label(r_)
        masks(full); a(f's_branch {i_}')
        a.label(p)
        masks(comp)
        a.label(i_)
        self.timeout()
        for m, (r, t) in list(zip(M, loads))[4:] + list(zip(M, loads))[:4]: a(f's_mov_b64 exec, {m}'); a(t)
        a('s_mov_b64 exec, -1')
        a(f's_waitcnt vmcnt({len(loads) * (self.mp - 1)})')
        a(f's_branch {p}')
    def gather_sum(self, soff, G, full, res=None):
        a = self.a; l = self.lab('L_g'); d = self.lab('L_gd'); c = self.lab('L_gc')
        mp = self.mp and self.role in self.mpr
        a.label(l)
        self.timeout()
        ld = [(G + 4 * i, f'buffer_load_dwordx4 {vr(G + 4 * i, 4)}, {"v13" if full or i < 2 else "v8"}, {WS}, {soff} offen offset:{1024 * i} sc1') for i in range(4)]
        if res: ld.append((16, f'buffer_load_dwordx2 v[16:17], v14, {WS}, {res} offen sc1'))
        for r, t in ld[4:] + ld[:4]: a(t)
        def comp(w):
            for i in range(4):
                if w: a(f's_waitcnt vmcnt({3 - i})')
                a(f'v_mfma_f32_16x16x32_f16 v[20:23], {vr(self.vAC, 4)}, {vr(G + 4 * i, 4)}, {"v[16:19]" if i == 0 else "v[20:23]"}')
            a('v_cmp_u_f32 vcc, v20, v21')
            a('v_cvt_pk_bf16_f32 v24, v20, v21')
        comp(True)
        a(f's_cbranch_vccz {d}')
        self.maxtree(list(range(G, G + 16)) + ([16, 17] if res else []), 6)
        if mp:
            a(f's_cbranch_vccz {d}')
            self.repoll(ld, l, c, None)
            a.label(c); comp(False); a(f's_cbranch_vccnz {l}')
        else: a(f's_cbranch_vccnz {l}')
        a.label(d)
    def xrow_ops(self, sp, ss):
        return ['v_lshlrev_b32 v20, 16, v24', 'v_and_b32 v21, 0xffff0000, v24',
                f'buffer_store_dwordx2 v[20:21], v14, {WS}, {ss} offen sc1'] + ([f'buffer_store_dwordx2 v[20:21], v14, {WS}, {sp} offen sc1'] if self.dual else [])
    def stats_ops(self, X):
        o = []
        for i in range(4):
            o += [f'v_lshlrev_b32 v26, 16, v{X+i}', f'v_and_b32 v27, 0xffff0000, v{X+i}']
            if i == 0: o += ['v_add_f32 v28, v26, v27', 'v_mul_f32 v30, v26, v26', 'v_fmac_f32 v30, v27, v27']
            else: o += ['v_add_f32 v28, v28, v26', 'v_fmac_f32 v30, v26, v26', 'v_add_f32 v28, v28, v27', 'v_fmac_f32 v30, v27, v27']
        o += [f'v_mov_b32 v26, 0x{f2u(1/448):x}', f'v_mov_b32 v27, 0x{f2u(1e-5):x}', 'v_permlane16_swap_b32 v28, v30', 'v_add_f32 v28, v28, v30']
        for c in ('quad_perm:[1,0,3,2]', 'quad_perm:[2,3,0,1]', 'row_ror:4'):
            o += [None, f'v_add_f32_dpp v28, v28, v28 {c} {FULL}']
        o += [None, f'v_add_f32_dpp v29, v28, v28 row_ror:8 {FULL}', f'v_add_f32_dpp v28, v28, v28 row_ror:8 {FULL}', None,
              'v_permlane32_swap_b32 v28, v29', 'v_add_f32 v28, v28, v29', None,
              'v_readlane_b32 s58, v28, 0', 'v_readlane_b32 s59, v28, 16', None,
              'v_mul_f32 v24, s58, v26', 'v_fmac_f32 v27, s59, v26',
              'v_fma_f32 v27, -v24, v24, v27', 'v_rsq_f32 v25, v27']
        return o
    def gemv(self, ntile, nks, breg, acc, A, fill=(), nother=0):
        a = self.a; fill = list(fill)
        for ks in range(nks):
            a(f's_waitcnt lgkmcnt({min(15, nks - 1 - ks + nother)})')
            for jj in range(ntile):
                a(f'v_smfmac_f32_16x16x64_bf16 {vr(acc + 4 * jj, 4)}, {vr(A + 4 * ks, 4)}, {rr(breg(jj, ks), 8)}, v3')
                for _ in range(2):
                    if fill:
                        x = fill.pop(0)
                        if x: a(x)
        for x in fill:
            if x: a(x)
    def zero(self, base, n):
        for i in range(0, n, 2): self.a(f'v_mov_b64 {vr(base + i, 2)}, 0')
    def rowsel(self, dst, acc, tiles_masks):
        for jj, rm in tiles_masks:
            self.a(f'v_add_f32_dpp v{dst}, v{acc + 4*jj}, v{acc + 4*jj + 1} quad_perm:[0,1,2,3] row_mask:0x{rm:x} bank_mask:0xf')
    def rowout(self, acc, sp, ss):
        a = self.a
        for jj in range(4): self.rowsel(20, acc, [(jj, 1 << jj)])
        for jj in range(3): self.rowsel(21, acc, [(4 + jj, 1 << jj)])
        a('v_cvt_pk_f16_f32 v20, v20, v21'); a('v_min_u32 v20, -2, v20')
        self.lstore('dword', 'v20', f'v{self.vRO}', sp, ss)
    def calc_ib(self):
        a = self.a
        a('s_lshl_b32 s38, s49, 2'); a(f's_lshr_b32 s50, {"0x76352410" if self.reord else "0x73625140"}, s38'); a('s_and_b32 s50, s50, 7')
    def colsum(self, ntile, nks, breg, acc):
        a = self.a
        for r in range(4): a(f'v_mov_b32 v{20 + r}, 0x3f803f80')
        self.zero(acc, 4 * ntile)
        for ks in range(nks):
            for jj in range(ntile):
                a(f'v_smfmac_f32_16x16x64_bf16 {vr(acc + 4 * jj, 4)}, v[20:23], {rr(breg(jj, ks), 8)}, v3')
    def pinit(self, ib0):
        a = self.a
        for r in range(20, 24): a(f'v_mov_b32 v{r}, -1')
        a(f's_add_u32 s38, s3, {ib0}'); a('s_lshl_b32 s38, s38, 18'); a('s_add_u32 s38, s38, s41')
        a('v_lshlrev_b32 v6, 4, v0')
        for i in range(16):
            if i and i % 4 == 0: a('s_add_u32 s38, s38, 4096')
            self.vm(f'buffer_store_dwordx4 v[20:23], v6, {WS}, s38 offen offset:{(i % 4) * 1024} sc1', 'pinit')

    def roleOQ(self):
        a = self.a
        TOG = ['v_xor_b32 v15, 0x400, v15', 'v_xor_b32 v2, 0x400, v2', 'v_xor_b32 v1, 0x400, v1', f'v_xor_b32 v{self.vOW}, 0x400, v{self.vOW}']
        def qreg(jj, ks): return 96 + (ks * 4 + jj) * 8
        def oreg(jj, ks):
            if ks == 3 and jj < 4: return 288 + 8 * jj
            i = jj * 3 + ks if ks < 3 else 21 + jj - 4
            return 320 + 8 * i
        inwin = lambda d: 288 <= d < 320
        X0 = 4
        self.dma_sub('L_dmaQ', W1, f'v{self.vDQ}', 88, 64 * 8192)
        self.dma_subB('L_dmaO', W2, f'v{self.vDO}')
        P = 76; ML = 92; ACC = 48; A = 76
        a.label('L_Osub')
        self.calc_ib()
        a('s_and_b32 s38, s50, 3'); a('s_lshl_b32 s44, s38, 20'); a('s_add_u32 s44, s44, s41')
        a('s_cmp_eq_u32 s38, 3'); a('s_cselect_b32 s38, s55, 0'); a('s_add_u32 s44, s44, s38')
        a('s_lshr_b32 s38, s50, 2'); a('s_lshl_b32 s38, s38, 19'); a('s_add_u32 s44, s44, s38')
        a('s_add_u32 s45, s44, 4096'); a('s_add_u32 s46, s44, 16384'); a('s_add_u32 s47, s44, 20480')
        a('s_lshl_b32 s48, s50, 15'); a('s_add_u32 s48, s48, s40'); a('s_add_u32 s51, s48, s56'); a('s_add_u32 s48, s48, s57')
        self.zero(ACC, 28)
        a('s_cmp_lt_i32 s49, 0'); a('s_cbranch_scc1 L_Ook')
        a.label('L_Oheavy')
        self.timeout()
        ld = [(P + 4 * n, f'buffer_load_dwordx4 {vr(P + 4*n, 4)}, v{self.vPO2 if n == 3 else self.vPO}, {WS}, s{44+n} offen sc1') for n in range(4)]
        ld.append((ML, f'buffer_load_dwordx2 {vr(ML, 2)}, v{self.vMLO}, {WS}, s44 offen sc1'))
        for r, t in ld[4:] + ld[:4]: a(t)
        if self.mp and 'P' in self.mpr: a('s_mov_b32 s38, 1')
        a.label('L_Ocomp')
        a('s_waitcnt vmcnt(4)')
        a(f'v_max_f32_dpp v20, v{ML}, v{ML} quad_perm:[1,0,3,2] {FULL}')
        for c in ('quad_perm:[2,3,0,1]', 'row_ror:4', 'row_ror:8'): a(f'v_max_f32_dpp v20, v20, v20 {c} {FULL}')
        a(f'v_sub_f32 v20, v{ML}, v20'); a('v_exp_f32 v20, v20'); a('v_cndmask_b32 v20, 0, v20, s[42:43]')
        a(f'v_mul_f32 v21, v20, abs(v{ML+1})')
        lred = [f'v_add_f32_dpp v21, v21, v21 {c} {FULL}' for c in ('quad_perm:[1,0,3,2]', 'quad_perm:[2,3,0,1]', 'row_ror:4', 'row_ror:8')]
        for n in range(4):
            a(f's_waitcnt vmcnt({3 - n})')
            for r in range(4):
                a(f'v_{"mul" if n == 0 else "fmac"}_f32_dpp v{24 + r}, v20, v{P + 4*n + r} row_newbcast:{n} {FULL}')
            a(lred[n])
        a('v_permlane16_swap_b32 v24, v25'); a('v_permlane16_swap_b32 v26, v27'); a('v_rcp_f32 v21, v21')
        a('v_add_f32 v24, v24, v25'); a('v_add_f32 v26, v26, v27')
        a('v_permlane32_swap_b32 v24, v26'); a('v_add_f32 v24, v24, v26'); a('v_mul_f32 v24, v24, v21')
        a('v_cmp_u_f32 vcc, v24, v24')
        a('v_cvt_pk_bf16_f32 v24, v24, v24')
        a('s_cbranch_vccz L_Ook0')
        self.maxtree(list(range(P, P + 16)) + [ML, ML + 1], 6)
        if self.mp and 'P' in self.mpr: self.repoll(ld, 'L_Oheavy', 'L_Ocomp', 'L_Ook0')
        else: a('s_cbranch_vccnz L_Oheavy')
        a.label('L_Ook0')
        if self.split:
            a('s_cmp_lg_u32 s49, 0'); a('s_cbranch_scc1 L_Ook')
            a('s_setpc_b64 s[34:35]')
        a.label('L_Ook')
        a(f'ds_write_b16 v{self.vOW}, v24'); a('s_waitcnt lgkmcnt(0)'); a('s_barrier')
        for ks in range(4): a(f'ds_read_b128 {vr(A + 4*ks, 4)}, v2 offset:{128 * ks}')
        self.stamp(3, 's49', 28)
        self.gemv(7, 4, oreg, ACC, A, fill=TOG + ['v_mov_b32 v21, 0'])
        self.rowout(ACC, 's48', 's51')
        self.stamp(12, 's49', 28)
        a('s_add_u32 s49, s49, 1')
        a('s_setpc_b64 s[34:35]')
        G = 64; ACC = 48; A = 64; X = 92
        a.label('L_Qsub')
        self.zero(ACC, 16)
        a('s_lshl_b32 s44, s53, 13'); a('s_add_u32 s44, s44, s54')
        a('s_lshl_b32 s38, s53, 11'); a(f's_add_u32 s47, s38, 0x{XAOFF - 4 * 2048:x}'); a('s_add_u32 s47, s47, s10')
        a('s_add_u32 s45, s38, s33'); a('s_add_u32 s46, s45, s56'); a('s_add_u32 s45, s45, s57')
        a('s_lshl_b32 s48, s53, 15'); a(f's_add_u32 s48, s48, 0x{ZOFF - 4 * 32768:x}'); a('s_add_u32 s48, s48, s10')
        a('s_cmp_lt_u32 s53, 4'); a('s_cbranch_scc1 L_Qx')
        if not self.mres: self.resid_poll('s47')
        self.gather_sum('s48', G, False, 's47' if self.mres else None)
        a.label('L_Qx')
        a('ds_write_b32 v15, v24'); a('s_waitcnt lgkmcnt(0)'); a('s_barrier')
        if self.mp and 'O' in self.mpr:
            l = self.lab('L_qw'); a('s_cmp_lt_u32 s53, 4'); a(f's_cbranch_scc1 {l}'); a('s_waitcnt vmcnt(0)'); a.label(l)
        for ks in range(7): a(f'ds_read_b128 {vr(A + 4*ks, 4)}, v2 offset:{128 * ks}')
        a(f'ds_read_b128 {vr(X, 4)}, v1')
        for x in self.xrow_ops('s45', 's46'): a(x)
        self.stamp(24, 's53', 28)
        fill = TOG + [None, 's_waitcnt lgkmcnt(0)'] + self.stats_ops(X)
        self.gemv(4, 7, qreg, ACC, A, fill=fill, nother=1)
        a(f'v_mul_f32 v21, v24, v{self.vCS}'); a('s_cmp_eq_u32 s9, 1')
        self.rowsel(20, ACC, [(jj, 1 << jj) for jj in range(4)])
        a('v_sub_f32 v20, v20, v21'); a('v_mul_f32 v20, v20, v25')
        a('v_cvt_pk_bf16_f32 v20, v20, v20'); a('v_min_u32 v20, -2, v20')
        if self.loc:
            a('s_cbranch_scc1 L_Qloc')
            a(f'buffer_store_short v20, v{self.vQS}, {WS}, s44 offen sc1'); a('s_branch L_Qst')
            a.label('L_Qloc'); a(f'buffer_store_short v20, v{self.vQS}, {WS}, s44 offen'); a.label('L_Qst')
        else: a(f'buffer_store_short v20, v{self.vQS}, {WS}, s44 offen sc1')
        self.stamp(33, 's53', 28)
        if self.oarm: a('s_lshl_b32 s38, s53, 20'); a('s_add_u32 s38, s38, s11'); a(f's_add_u32 s39, s38, {PP2}')
        a('s_add_u32 s53, s53, 1')
        if self.oarm:
            a('s_cmp_eq_u32 s53, 8'); a('s_cbranch_scc1 L_Qret')
            a('v_mov_b64 v[24:25], -1'); a('v_mov_b64 v[26:27], -1'); a('v_lshlrev_b32 v6, 4, v0')
            for i in range(8): a(f'buffer_store_dwordx4 v[24:27], v6, {WS}, s{38 + i // 4} offen offset:{i % 4 * 1024} sc1')
            a.label('L_Qret')
        a('s_setpc_b64 s[34:35]')
        a.label('L_roleOQ')
        self.stamp(61, None, 30)
        self.cq = ['init']
        a('s_lshl_b32 s38, s2, 9')
        self.srd(20, 70, 448 * 8192)
        a('s_lshl_b32 s39, s3, 7'); a('s_add_u32 s38, s38, s39')
        a(f'v_lshl_add_u32 v{self.vDQ}, v4, 13, s38'); a(f'v_add_u32 v{self.vDQ}, v{self.vDQ}, v2')
        self.table(88, 8192)
        R4 = self.ring4
        pq = [dict(sub='L_dmaQ', B=0, slot=(ks + 2 * R4) % 4, rd=[(qreg(jj, ks) + 2 * rp, rp * 2048 + jj * 256) for jj in range(4) for rp in range(4)]) for ks in range(7)]
        po = [dict(sub='L_dmaO', B=1, slot=(3, 0, 1)[i % 3], rd=self.typeB_reads(oreg, i // 2, i % 2)) for i in range(8)]
        if R4:
            for i, p in enumerate(po): p['off'] = 32768 + 28672 * (i % 4)
        self.issue(pq[0])
        self.stamp(63, None, 30)
        self.srd(28, 64, 3584)
        XL = 48
        a(f'v_mov_b32 v10, 0x{OOB:x}')
        a('v_cmp_gt_u32 vcc, 56, v0'); a('v_bfe_u32 v7, v0, 2, 2'); a('v_mul_u32_u24 v7, 896, v7'); a('v_cndmask_b32 v6, v10, v1, vcc')
        for b in range(4): self.vm(f'buffer_load_dwordx4 {vr(XL + 4 * b, 4)}, v6, {W3}, 0 offen offset:{b * 896}', 'xl')
        a('v_add_u32 v7, v7, v2')
        a('s_mov_b32 s38, 0x3f803f80'); a('s_mov_b32 s39, s38')
        for r in range(0, 28, 2): a(f'v_mov_b64 {vr(A + r, 2)}, s[38:39]')
        a('s_mov_b32 exec_lo, 0x33333333'); a('s_mov_b32 exec_hi, 0x33333333')
        for ks in range(7): self.vm(f'buffer_load_dwordx4 {vr(A + 4 * ks, 4)}, v7, {W3}, 0 offen offset:{128 * ks}', 'xa')
        a('s_mov_b64 exec, -1')
        if not self.ean: self.issue(pq[1])
        self.stamp(56, None, 30)
        self.srd(24, 72, 4096 * 896)
        a('s_lshl_b32 s39, s2, 8')
        self.typeB(f'v{self.vDO}', 's39')
        self.consts(); a('s_lshl_b32 s38, s3, 13'); a('v_add_u32 v9, s38, v9')
        if self.up4: self.issue(pq[2]); self.issue(pq[3])
        self.stamp(57, None, 30)
        self.arm(True)
        self.stamp(58, None, 30)
        if not self.up4: self.issue(pq[1 if self.ean else 2])
        self.vmwait('xl')
        self.stamp(59, None, 30)
        for b in range(4):
            for x in self.stats_ops(XL + 4 * b):
                if x: a(x)
            a(f'v_mov_b32_dpp v92, v24 quad_perm:[0,1,2,3] row_mask:0x{1 << b:x} bank_mask:0xf')
            a(f'v_mov_b32_dpp v93, v25 quad_perm:[0,1,2,3] row_mask:0x{1 << b:x} bank_mask:0xf')
        if self.ean: self.announce(); self.issue(pq[2])
        if not self.up4: self.issue(pq[3])
        self.zero(ACC, 16)
        self.bits('v94', 'v0', 'v6', [(0, 1, 1), (2, 1, 2), (3, 1, 4), (1, 1, 5), (4, 2, 13)])
        a('s_lshl_b32 s38, s3, 7'); a('s_lshl_b32 s44, s2, 9'); a('s_add_u32 s44, s38, s44')
        self.stamp(60, None, 30)
        nxt = {1: pq[4], 2: pq[5], 3: pq[6], 4: po[0]}
        if R4 == 1: nxt[5] = po[1]; nxt[6] = [po[2], po[3]]
        def q1mm(ks):
            for jj in range(4): a(f'v_smfmac_f32_16x16x64_bf16 {vr(ACC + 4 * jj, 4)}, {vr(A + 4 * ks, 4)}, {rr(qreg(jj, ks), 8)}, v3')
        hooks = {} if self.ean else {(3 if self.up4 else 2): lambda: self.announce(False)}
        for i in range(7):
            if i == 3: self.vmwait('arm')
            self.consume(pq[i], nxt.get(i), hooks.get(i))
            self.stamp(41 + i, None, 26)
            if i: q1mm(i - 1)
        a('s_waitcnt lgkmcnt(0)')
        q1mm(6)
        self.stamp(20, None, 28)
        for jj in range(4):
            a(f'v_add_f32 v{20 + jj}, v{ACC + 4*jj}, v{ACC + 4*jj + 1}'); a(f'v_add_f32 v{24 + jj}, v{ACC + 4*jj + 2}, v{ACC + 4*jj + 3}')
        for jj in range(4): a(f'v_fma_f32 v{20 + jj}, -v92, v{24 + jj}, v{20 + jj}')
        for jj in range(4): a(f'v_mul_f32 v{20 + jj}, v{20 + jj}, v93')
        for jj in range(4): a(f'v_cvt_pk_bf16_f32 v{20 + jj}, v{20 + jj}, v{20 + jj}')
        for jj in range(4): a(f'v_min_u32 v{20 + jj}, -2, v{20 + jj}')
        for jj in range(4): self.vm(f'buffer_store_short v{20 + jj}, v94, {WS}, s44 offen offset:{(jj & 1) * 8 + (jj >> 1) * 64} sc1')
        for jj in range(4): a(f'v_mov_b32_dpp v{self.vCS}, v{24 + jj} quad_perm:[0,1,2,3] row_mask:0x{1 << jj:x} bank_mask:0xf')
        self.stamp(35, None, 28)
        if R4 != 1: self.issue(po[1]); self.issue(po[2])
        if R4 == 3: self.issue(po[3])
        a('s_mov_b32 s55, 0'); a(f's_lshl_b32 s41, s2, 15'); a(f's_add_u32 s41, s41, 0x{POFF:x}')
        if self.oarm: self.pquad('s11'); a('s_add_u32 s11, s11, s41'); a(f's_sub_u32 s11, s11, {3 * PIB - PP2}')
        self.x0off(); self.gather_offs()
        a('s_lshl_b32 s40, s2, 10'); a('s_and_b32 s38, s40, 0x2000'); a('s_add_u32 s40, s40, s38'); a(f's_add_u32 s40, s40, 0x{YOFF:x}')
        PO, PO2, MO, OW = self.vPO, self.vPO2, self.vMLO, self.vOW
        self.bits(f'v{PO}', 'v0', 'v6', [(0, 4, 4), (4, 2, 10)])
        a('s_lshl_b32 s38, s3, 8'); a(f'v_add_u32 v{PO}, s38, v{PO}')
        a('v_cmp_gt_u32 vcc, 32, v0'); a('v_lshrrev_b32 v6, 4, v0'); a('v_bfe_u32 v7, v0, 2, 2'); a(f'v_cndmask_b32 v{PO2}, v10, v{PO}, vcc')
        a('v_add_u32 v6, v6, v7'); a('v_and_b32 v6, 3, v6')
        a('v_and_b32 v7, 3, v0'); a('v_lshl_add_u32 v6, v7, 2, v6')
        a(f'v_cmp_gt_u32 s[42:43], {NC}, v6'); a(f'v_min_u32 v6, {NC - 1}, v6'); a(f'v_lshlrev_b32 v{MO}, 7, v6'); a(f'v_add_u32 v{MO}, {MLO}, v{MO}')
        self.bits(f'v{OW}', 'v0', 'v6', [(4, 2, 1), (0, 3, 4), (3, 1, 8)])
        a('s_lshr_b32 s38, s3, 1'); a('s_lshl_b32 s38, s38, 7'); a('s_and_b32 s39, s3, 1'); a('s_lshl_b32 s39, s39, 3'); a('s_add_u32 s38, s38, s39')
        a(f'v_add_u32 v{OW}, s38, v{OW}')
        self.bits(f'v{self.vQS}', 'v0', 'v6', [(0, 1, 1), (2, 1, 2), (4, 1, 3), (3, 1, 4), (1, 1, 5), (5, 1, 6)])
        a('s_lshl_b32 s38, s3, 7'); a(f'v_add_u32 v{self.vQS}, s38, v{self.vQS}')
        a('s_cmp_eq_u32 s2, 0'); a(f's_cselect_b32 s33, 0x{XBOFF - 4 * 2048:x}, s57')
        a('s_mov_b32 s53, 3'); a(f's_mov_b32 s54, 0x{OOB:x}')
        for i in range(8):
            self.consume(po[i], (po[i + 3] if 1 <= i < 5 else None) if R4 else po[i + 2] if 1 <= i < 6 else None, (lambda: self.preready(True)) if i == (4 if self.split else 5) else None)
            self.stamp(48 + i, None, 28)
            if i == 1: a('s_call_b64 s[34:35], L_Osub')
            if i == 2: a('s_call_b64 s[34:35], L_Qsub'); a('s_lshl_b32 s54, s2, 9')
            if i == 5 and self.split:
                self.ready(True); a('s_call_b64 s[34:35], L_Osub'); self.cq = []
                a(f'v_cmp_gt_i32 vcc, 0, v{ML+1}'); a('s_cmp_lg_u64 vcc, 0'); a('s_addc_u32 s9, s9, 0')
        assert self.split and self.reord
        self.stamp(1, None, 28)
        a('s_call_b64 s[34:35], L_Ook')
        a.label('L_OQloop')
        a(f's_movk_i32 s38, 0x{self.qmask:x}'); a('s_bitcmp1_b32 s38, s49'); a('s_cbranch_scc0 L_OQin')
        self.readout(pq[6])
        a('s_call_b64 s[34:35], L_Qsub')
        self.readout(po[6], inwin); self.readout(po[7], inwin)
        a.label('L_OQin')
        a('s_call_b64 s[34:35], L_Osub')
        a('s_cmp_lt_u32 s49, 8'); a('s_cbranch_scc1 L_OQloop')
        a('s_branch L_end')

    def roleF(self):
        a = self.a
        self.dma_sub('L_dmaG', W1, 'v44', 88, 64 * 3584)
        self.dma_subB('L_dmaD', W3, 'v11')
        breg = lambda jj, ks: 256 + (jj * 7 + ks) * 8
        def dreg(jj, ks):
            i = jj * 2 + ks
            return 256 + 224 + 8 * i if i < 4 else 176 + 8 * (i - 4)
        G = 64; ACC = 48; A = 96; X = 124; CSUM = self.vCS; ACD = 128; X0 = 160
        a.label('L_Fsub')
        self.calc_ib()
        self.zero(ACC, 16); self.zero(ACD, 28)
        a('s_lshl_b32 s38, s50, 15'); a(f's_add_u32 s48, s38, 0x{YOFF:x}'); a('s_add_u32 s48, s48, s10')
        a('s_add_u32 s44, s38, s40'); a('s_add_u32 s51, s44, s56'); a('s_add_u32 s44, s44, s57')
        a('s_lshl_b32 s38, s50, 11'); a(f's_add_u32 s47, s38, 0x{XBOFF - 4 * 2048:x}'); a('s_add_u32 s47, s47, s10')
        a('s_and_b32 s39, s38, 0x2000'); a('s_add_u32 s38, s38, s39')
        a('s_add_u32 s45, s38, s41'); a('s_add_u32 s46, s45, s56'); a('s_add_u32 s45, s45, s57')
        a('s_cmp_lt_i32 s49, 0'); a('s_cbranch_scc1 L_Fx')
        a('s_bitcmp1_b32 s50, 2'); a('s_cbranch_scc1 L_Fr')
        a(f'v_lshlrev_b32 v16, 16, v{X0}'); a(f'v_and_b32 v17, 0xffff0000, v{X0}')
        for i in range(3): a(f'v_mov_b32 v{X0 + i}, v{X0 + i + 1}')
        a('s_branch L_Fg')
        a.label('L_Fr')
        self.resid_poll('s47')
        a.label('L_Fg')
        self.gather_sum('s48', G, True)
        a.label('L_Fx')
        a('ds_write_b32 v15, v24'); a('s_waitcnt lgkmcnt(0)'); a('s_barrier')
        for ks in range(7): a(f'ds_read_b128 {vr(A + 4*ks, 4)}, v2 offset:{128 * ks}')
        a(f'ds_read_b128 {vr(X, 4)}, v1')
        for x in self.xrow_ops('s45', 's46'): a(x)
        self.stamp(3, 's49', 28)
        if self.diag: self.stamp(24, 's49', 28, 's52')
        fill = [None] * 5 + ['s_waitcnt lgkmcnt(0)'] + self.stats_ops(X)
        self.gemv(4, 7, breg, ACC, A, fill=fill, nother=1)
        a(f'v_mul_f32 v22, v24, v{CSUM}'); a(f'v_mul_f32 v23, v24, v{CSUM+1}'); a('v_mul_f32 v25, v25, v25')
        for jj in (0, 2, 1, 3): self.rowsel(20 + jj // 2, ACC, [(jj, 10 if jj & 1 else 5)])
        a('v_sub_f32 v20, v20, v22'); a('v_sub_f32 v21, v21, v23')
        a('v_max_f32 v20, 0, v20'); a('v_mul_f32 v21, v21, v25'); a('v_mul_f32 v20, v20, v21')
        a('v_cvt_pk_bf16_f32 v20, v20, v20')
        a('ds_write_b16 v40, v20'); a('s_waitcnt lgkmcnt(0)'); a('s_barrier')
        for ks in range(2): a(f'ds_read_b128 {vr(A + 4*ks, 4)}, v2 offset:{2048 + 128 * ks}')
        a('v_mov_b32 v21, 0')
        self.gemv(7, 2, dreg, ACD, A)
        self.rowout(ACD, 's44', 's51')
        self.stamp(12, 's49', 28)
        a('s_add_u32 s49, s49, 1')
        a('s_cmp_eq_u32 s49, 0'); a('s_cbranch_scc1 L_Fret')
        a('s_cmp_lt_u32 s49, 8'); a('s_cbranch_scc1 L_Fsub')
        a('s_branch L_end')
        a.label('L_roleF')
        self.cq = list(self.cq0); done = 8 * (self.hq[1] - self.hq[0]) if self.hq else 0
        a('s_cmp_lt_u32 s3, 2'); a('s_cselect_b64 s[20:21], s[76:77], s[78:79]'); a(f's_mov_b32 s22, 0x{448 * 3584:x}'); a('s_mov_b32 s23, 0x20000')
        a('s_sub_u32 s2, s2, 16')
        a('v_mul_u32_u24 v6, 3584, v4')
        a('s_lshl_b32 s38, s2, 8'); a('s_and_b32 s39, s3, 1'); a('s_lshl_b32 s39, s39, 7'); a('s_add_u32 s38, s38, s39')
        a('v_add3_u32 v44, v6, v2, s38')
        self.table(88, 3584)
        pl = [dict(sub='L_dmaG', B=0, rd=[(breg(jj, ks) + 2 * rp, (jj >> 1) * 16384 + rp * 2048 + (jj & 1) * 256) for jj in range(4) for rp in range(4)]) for ks in range(7)]
        pl += [dict(sub='L_dmaD', B=1, rd=self.typeB_reads(dreg, i // 2, i % 2)) for i in range(4)]
        for i, p in enumerate(pl): p['slot'] = i % 4
        self.stamp(56, None, 30)
        for i in range(1 if self.ean else 2): self.issue(pl[i])
        self.stamp(57, None, 30)
        self.srd(28, 80, 1792 * 896); self.srd(68, 64, 3584)
        a('s_lshl_b32 s39, s2, 7')
        self.typeB('v11', 's39')
        self.consts()
        a('s_lshr_b32 s38, s3, 1'); a('s_lshl_b32 s38, s38, 13'); a('s_and_b32 s39, s3, 1'); a('s_lshl_b32 s39, s39, 9'); a('s_add_u32 s38, s38, s39'); a('v_add_u32 v9, s38, v9')
        self.x0off(); self.gather_offs()
        for b in range(4): self.vm(f'buffer_load_dword v{X0 + b}, v12, s[68:71], 0 offen offset:{b * 896}', 'x0')
        a('v_and_b32 v6, 31, v0'); a('s_lshl_b32 s38, s3, 6'); a('s_add_u32 s38, s38, 2048'); a('v_lshl_add_u32 v40, v6, 1, s38')
        a('s_lshl_b32 s40, s2, 10'); a('s_and_b32 s38, s40, 0x2000'); a('s_add_u32 s40, s40, s38'); a(f's_add_u32 s40, s40, 0x{ZOFF:x}')
        a('s_cmp_eq_u32 s2, 0'); a(f's_cselect_b32 s41, 0x{XAOFF:x}, s57')
        if done < 10: self.arm()
        elif done < 24: self.announce()
        if self.ean:
            assert not done
            self.issue(pl[1]); self.announce()
        self.stamp(58, None, 30)
        self.issue(pl[2])
        a('s_branch L_Fsub')
        a.label('L_Fret')
        self.issue(pl[3])
        self.stamp(59, None, 30)
        hooks = {2: lambda: self.announce(False)} if done < 10 and not self.ean else {}
        hooks[7] = self.preready
        for i in range(11):
            self.consume(pl[i], pl[i + 3] if 1 <= i < 8 else None, hooks.get(i))
            if self.ho and i == self.ho[2]: self.wo_pf('s2')
            self.stamp(41 + i, None, 26)
            if i == 7:
                self.stamp(20, None, 28)
                self.colsum(4, 7, breg, ACC)
                self.rowsel(CSUM, ACC, [(0, 5), (1, 10)]); self.rowsel(CSUM + 1, ACC, [(2, 5), (3, 10)])
        self.ready()
        a('s_branch L_Fsub')

    def wo_pf(self, head, add=0):
        a = self.a; p0, p1 = self.ho[:2]
        self.srd(24, 72, 4096 * 896)
        nb = (p1 - p0) * 28672; per = nb // 4
        a(f's_mul_i32 s38, {head}, 229376'); a(f's_mul_i32 s39, s3, {per}'); a('s_add_u32 s38, s38, s39'); a(f's_add_u32 s38, s38, {p0 * 28672 + add * 229376}')
        a('v_min_u32 v6, 55, v0'); a('v_lshlrev_b32 v6, 7, v6')
        for i in range(p1 - p0):
            self.vm(f'buffer_load_dword v45, v6, {W2}, s38 offen {self.hpol}', 'ho'); a('s_add_u32 s38, s38, 7168')
    def roleW(self):
        a = self.a
        self.cq = list(self.cq0); done = 8 * (self.hq[1] - self.hq[0]) if self.hq else 0
        self.consts()
        if done < 10: self.arm()
        if done < 24: self.announce()
        a('s_sub_u32 s2, s2, 30')
        if self.hpf: self.helper()
        if self.ho: self.wo_pf('s2', 14)
        if self.w2:
            a('s_lshr_b32 s38, s3, 1'); a('s_cmp_lg_u32 s2, s38'); a('s_cbranch_scc1 L_end')
            if self.diag: a('s_lshl_b32 s38, s2, 13'); a('s_sub_u32 s61, s61, s38')
        else: a('s_cmp_lg_u32 s2, 0'); a('s_cbranch_scc1 L_end')
        self.near()
        self.srd(20, 82, 3584)
        self.x0off(); self.gather_offs()
        self.preready(); self.ready()
        G = 64
        a('s_mov_b32 s49, 0'); a(f's_add_u32 s47, s10, 0x{XAOFF + 16384:x}'); a(f's_add_u32 s48, s10, 0x{ZOFF + 4 * 32768:x}'); a('s_mov_b32 s44, 0')
        a.label('L_Wtop')
        if not self.mres: self.resid_poll('s47')
        self.gather_sum('s48', G, False, 's47' if self.mres else None)
        a(f'buffer_store_dword v24, v12, {W1}, s44 offen')
        self.stamp(12, 's49', 28)
        if self.diag: self.stamp(24, 's49', 28, 's52')
        a('s_add_u32 s49, s49, 1'); a('s_add_u32 s47, s47, 2048'); a('s_add_u32 s48, s48, 32768'); a('s_add_u32 s44, s44, 896')
        a('s_cmp_lt_u32 s49, 4'); a('s_cbranch_scc1 L_Wtop')
        a('s_branch L_end')
    def helper(self):
        a = self.a
        hq, ho = self.hpf if isinstance(self.hpf, (list, tuple)) else (48, 48)
        a('s_lshl_b32 s38, s2, 2'); a('s_add_u32 s38, s38, s3')
        self.srd(20, 70, 448 * 8192); self.srd(24, 72, 4096 * 896)
        a('s_lshl_b32 s40, s38, 10'); a(f's_add_u32 s40, s40, {(448 - hq) * 8192}')
        l = self.lab('L_hq'); a(f's_mov_b32 s41, {hq}')
        if hq:
            a.label(l)
            a('s_waitcnt vmcnt(11)'); a(f'buffer_load_dwordx4 v[64:67], v1, {W1}, s40 offen {self.hpol}')
            a('s_add_u32 s40, s40, 8192'); a('s_sub_u32 s41, s41, 1'); a('s_cmp_lg_u32 s41, 0'); a(f's_cbranch_scc1 {l}')
        if ho:
            a('s_mul_i32 s40, s38, 458752'); a(f's_add_u32 s40, s40, {229376 - ho * 1024}'); a('s_add_u32 s42, s40, 229376')
            l = self.lab('L_ho'); a(f's_mov_b32 s41, {ho}')
            a.label(l)
            a('s_waitcnt vmcnt(10)'); a(f'buffer_load_dwordx4 v[64:67], v1, {W2}, s40 offen {self.hpol}')
            a(f'buffer_load_dwordx4 v[64:67], v1, {W2}, s42 offen {self.hpol}')
            a('s_add_u32 s40, s40, 1024'); a('s_add_u32 s42, s42, 1024'); a('s_sub_u32 s41, s41, 1'); a('s_cmp_lg_u32 s41, 0'); a(f's_cbranch_scc1 {l}')
        a('s_waitcnt vmcnt(0)')
        self.stamp(20, None, 28)

if __name__ == '__main__':
    kw = json.loads(sys.argv[2]) if len(sys.argv) > 2 else {}
    open(sys.argv[1], 'w').write(Gen(**kw).build())
```

```python
import sys, struct, json
from asmlib import Asm
NAME = "interleave_layers__mha_block_cached__glu_gated_reglu__decode"

QOFF = 0x0; YOFF = 0x10000; ZOFF = 0x50000; XAOFF = 0x90000; XBOFF = 0x98000; HOFF = 0x9c000; COFF = 0x9a000 - 0x2000 + 0x8000; POFF = 0x800000; DOFF = 0x400000
PB = 32768; PIB = 0x100000; PP2 = 0x80000; MLO = 16384 + 6144
OOB = 0x40000000
NC = 14; NW = 56
CS = 0.09016844005556021
def f2u(x): return struct.unpack('<I', struct.pack('<f', x))[0]

K_SRD = 's[8:11]'; V_SRD = 's[12:15]'; WS = 's[16:19]'; W1 = 's[20:23]'; W2 = 's[24:27]'; W3 = 's[28:31]'
DBG = 's[84:85]'
NCHAIN = 32
K4 = 's[88:91]'; V4 = 's[92:95]'
FULL = 'row_mask:0xf bank_mask:0xf'

def vr(b, n=1): return f'v{b}' if n == 1 else f'v[{b}:{b+n-1}]'
def ar(b, n=1): return f'a{b}' if n == 1 else f'a[{b}:{b+n-1}]'
def rr(b, n=1): return vr(b, n) if b < 256 else ar(b - 256, n)

class Gen:
    def __init__(self, diag=False, PF=65, depth=8, hpf=False, hpol='nt', cpf=False, rows=(16, 10, 7), hq=None, fake=0, CL=12, PF2=None, reord=1, lightO=0, split=True, tlb=0, fx=2, thr=None, wtlb=0, probe=None, kpol='nt', vpol='nt', par=None, nQ=48, nE=60, early=False, sub=None, qE=None, ring4=0, up4=False, ho=None, pos=None, home=0, hforce=None, lv=None, lvx=None, th=None, cps=None, rs=None, gs=14, kvonly=True, ed=False, mid=None, fast=((2, (73, 74, 75)), (3, (76, 77)), (4, (78, 79))), boost=None, fld=(2, 2), nQ1=None, cpon=None, odd=None, slow=None, xsl=0, loc=1, spf=None, mres=1, dual=1, hs=4, ean=1, SG=24, pw=12, flex=None, KF=52, TK=41, qmask=0x96, fw=(), fb=None, bst=None, fine=(), cla=0, arl=None, wsw=0, noarm=0, PFA=None, xpf=None, oarm=0, xpol='', fx2=None, p0=8, nox=0, nocl=0, mp=0, fin=0, cyc=0, mz=0, lst=0, w2=0, mpr='FW', hp=None, rm=None, vpf=None, eq=None, hl=None, wb='', la=None, nt='', ja=None, lp=None,
                 p2l=((('u', 2), (73, 74, 75)), (('u', 3), (76, 77)), (('u', 4), (78, 79)), (('u', 9), (0,)), (('x', 0), (1,)), (('i', 0), (2,)), (('i', 2), (3,)), (('i', 4), (4,)), (('m', 0), (5,))),
                 p1l={'a': (6, 7), '1': (8, 9), '2': (10,), '3': (11, 12), '4': (13,), 'm': (14, 15)}):
        self.lp = lp or {}; self.ja = ja; self.N = lambda c: ' nt' if c in nt else ''; self.la = la; self.wb = wb; self.hl = hl; self.eq = eq; self.vpf = vpf; self.rm = rm; self.hp = hp; self.mpr = mpr; self.w2 = w2; self.lst = lst; self.mz = mz; self.cyc = cyc; self.ck = 0; self.fin = fin; self.mp = mp; self.nox = nox; self.nocl = nocl; self.fine = list(fine); self.cla = cla; self.arl = arl; self.wsw = wsw; self.noarm = noarm; self.PFA = PFA; self.p0 = p0; self.fx2 = fx2; self.xpf = xpf; self.xpol = xpol; self.oarm = oarm; self.fb = fb; self.bst = bst; self.fw = fw; self.flex = flex; self.KF = KF; self.TK = TK; self.qmask = qmask
        if flex:
            rest = list(range(48, 80)); rest[KF - 40:KF - 40] = range(32, 40)
            self.ORD = list(range(24, 32)) + list(range(40, 48)) + list(range(24)) + rest
            assert sum(n for n, r in flex) == NW and sum(n * r for n, r in flex) == 512 and nQ >= KF + 8
        self.SG = SG; self.pw = pw; self.p2l = p2l; self.p1l = p1l
        self.dual = dual; self.hs = hs; self.ean = ean
        self.loc = loc; self.spf = spf or []; self.mres = mres
        self.xsl = xsl
        self.slow = slow
        self.odd = odd
        self.cpon = cpon
        self.nQ1 = nQ1 or nQ
        self.fast = fast; self.boost = boost; self.fld = fld; self.xst = 0
        if boost: lv = [depth, boost[1]]
        self.kvonly = kvonly; self.ed = ed; self.mid = mid
        self.lv = lv; self.lvx = lvx; self.th = th; self.cps = cps or []; self.rs = rs; self.dyn = False; self.gs = gs
        self.hforce = hforce
        self.home = home
        self.pos = pos
        self.ring4 = ring4; self.up4 = up4; self.ho = ho
        self.sub = sub; self.qE = qE
        self.par = par; self.nQ = nQ; self.nE = nE; self.early = early
        self.pmul = 10 if not probe or len(probe) < 3 else probe[2]; probe = probe and probe[:2]; self.probe = probe; self.role = 'X'; self.kpol = kpol; self.vpol = vpol
        self.a = Asm(); self.diag = diag; self.PF = PF; self.depth = depth; self.hpf = hpf; self.hpol = hpol; self.cpf = cpf; self.rows = rows; self.hq = hq; self.fake = fake; self.CL = CL; self.PF2 = PF2; self.reord = reord; self.lightO = lightO; self.split = split; self.tlb = tlb; self.fx = fx; self.thr = thr; self.wtlb = wtlb
        self.uid = 0
    def lab(self, p='L'):
        self.uid += 1; return f'{p}_{self.uid}'

    def bits(self, dst, lane, tmp, mp):
        a = self.a; first = True
        for lb, n, ab in mp:
            if first:
                a(f'v_bfe_u32 {dst}, {lane}, {lb}, {n}')
                if ab: a(f'v_lshlrev_b32 {dst}, {ab}, {dst}')
                first = False
            else:
                a(f'v_bfe_u32 {tmp}, {lane}, {lb}, {n}')
                a(f'v_lshl_add_u32 {dst}, {tmp}, {ab}, {dst}')
    def srd(self, base, lo, size):
        a = self.a
        a(f's_mov_b64 s[{base}:{base+1}], s[{lo}:{lo+1}]')
        a(f's_mov_b32 s{base+2}, 0x{size:x}'); a(f's_mov_b32 s{base+3}, 0x20000')
    def timeout(self):
        self.a('s_sub_u32 s52, s52, 1'); self.a('s_cbranch_scc1 L_bail')
        if self.xsl and self.role != 'S': self.a(f's_sleep {self.xsl}')
    FLAG = 4096; CNTA = 16; CNTB = 144
    def wait_counter(self, va, vd, vt, off, n, pre=False):
        a = self.a; l = self.lab('L_cnt'); c = self.lab('L_cntc')
        if pre: a(f's_branch {c}')
        else: a(f'v_mov_b32 v{va}, 0')
        a.label(l)
        self.timeout()
        a(f'global_load_dword v{vd}, v{va}, {DBG} offset:{off} sc1'); a('s_waitcnt vmcnt(0)')
        a.label(c)
        a(f'v_and_b32 v{vt}, {"0xffff" if self.nocl else "0xff"}, v{vd}'); a(f'v_cmp_gt_u32 vcc, {n}, v{vt}'); a(f's_cbranch_vccnz {l}')
    def claim(self, va, vd, vr_):
        a = self.a; l = self.lab('L_cl')
        if self.nocl: a(f'v_mov_b32 v{va}, 0'); a('s_waitcnt lgkmcnt(0)'); return
        a('s_lshl_b32 s38, 1, s101'); a(f'v_mov_b32 v{va}, s100'); a(f'v_mov_b32 v{vd}, s38')
        a('s_or_b32 s38, s3, s7')
        a('s_waitcnt lgkmcnt(0)')
        a(f's_cbranch_scc1 {l}')
        a('s_mov_b64 exec, 1')
        a(f'global_atomic_or v{vr_}, v{va}, v{vd}, {DBG} sc0 sc1')
        a('s_mov_b64 exec, -1')
        a.label(l)
    def confirm(self, vr_, t):
        a = self.a; l = self.lab('L_rs'); w = self.lab('L_rw')
        if self.nocl: return
        a(f'v_mov_b32 v{t}, 0')
        a('s_cmp_lg_u32 s3, 0'); a(f's_cbranch_scc1 {l}')
        a('s_movk_i32 s38, 0x100'); a('s_cmp_lg_u32 s7, 0'); a(f's_cbranch_scc1 {w}')
        a(f'v_readfirstlane_b32 s39, v{vr_}'); a('s_bitcmp1_b32 s39, s101'); a(f's_cbranch_scc0 {w}')
        a('s_call_b64 s[96:97], L_lost')
        a.label(w)
        a(f'v_mov_b32 v{t+1}, s38'); a(f'ds_write_b32 v{t}, v{t+1} offset:{self.FLAG}'); a('s_waitcnt lgkmcnt(0)')
        a.label(l)
        a('s_barrier')
        a(f'ds_read_b32 v{t+1}, v{t} offset:{self.FLAG}'); a('s_waitcnt lgkmcnt(0)')
        a(f'v_readfirstlane_b32 s38, v{t+1}'); a('s_cmp_lg_u32 s38, 0x100'); a('s_cbranch_scc1 L_redo')
    def signal(self, va, vd, off, val):
        a = self.a; l = self.lab('L_sg')
        a('s_cmp_lg_u32 s3, 0'); a(f's_cbranch_scc1 {l}')
        a('s_mov_b64 exec, 1'); a(f'v_mov_b32 v{va}, 0'); a(f'v_mov_b32 v{vd}, {val}')
        a(f'global_atomic_add v{va}, v{vd}, {DBG} offset:{off} sc1')
        a('s_mov_b64 exec, -1')
        a.label(l)
    def rare_paths(self):
        a = self.a
        a.label('L_odd')
        a('s_waitcnt lgkmcnt(0)'); a('v_mov_b32 v1, 0')
        a('s_cmp_lg_u32 s3, 0'); a('s_cbranch_scc1 L_odd2')
        a('s_and_b32 s38, s36, 3'); a('s_lshl_b32 s38, s38, 6'); a('s_lshr_b32 s39, s36, 2'); a('s_lshl3_add_u32 s38, s39, s38')
        a('v_mov_b32 v2, s38'); a('s_lshl_b32 s39, s37, 3'); a('s_movk_i32 s41, 24')
        a.label('L_odd1')
        a(f'global_load_dword v3, v2, {DBG} sc1'); a('s_waitcnt vmcnt(0)')
        a('v_readfirstlane_b32 s38, v3'); a('s_lshr_b32 s38, s38, s39'); a('s_and_b32 s38, s38, 0xff'); a('s_bcnt1_i32_b32 s40, s38')
        a('s_cmp_ge_u32 s40, 7'); a('s_cselect_b32 s41, 0, s41'); a('s_sub_u32 s41, s41, 1'); a('s_cbranch_scc0 L_odd1')
        a('s_ff0_i32_b32 s38, s38'); a('v_mov_b32 v2, s38'); a(f'ds_write_b32 v1, v2 offset:{self.FLAG + 4}'); a('s_waitcnt lgkmcnt(0)')
        a.label('L_odd2')
        a('s_barrier')
        a(f'ds_read_b32 v2, v1 offset:{self.FLAG + 4}'); a('s_waitcnt lgkmcnt(0)')
        a('v_readfirstlane_b32 s38, v2'); a('s_mov_b32 s6, 1'); a('s_branch L_even')
        a.label('L_lost')
        a('s_waitcnt vmcnt(0)')
        self.bits('v62', 'v0', 'v63', [(0, 2, 6), (2, 1, 3)])
        a.label('L_lost1')
        a(f'global_load_dword v60, v62, {DBG} sc1'); a('s_waitcnt vmcnt(0)')
        a('v_cmp_ne_u32 vcc, -1, v60'); a('s_movk_i32 s38, 0x300'); a('s_cbranch_vccz L_lost2')
        a('s_getreg_b32 s39, hwreg(HW_REG_XCC_ID, 0, 3)'); a('s_ff1_i32_b32 s38, vcc_lo')
        a('s_bitcmp1_b32 vcc_lo, s39'); a('s_cselect_b32 s38, s39, s38')
        a('s_nop 3'); a('v_readlane_b32 s39, v60, s38'); a('v_readlane_b32 s40, v62, s38'); a('s_ff0_i32_b32 s39, s39')
        a('s_lshl_b32 s41, 1, s39'); a('v_mov_b32 v61, s41'); a('v_mov_b32 v63, s40')
        a('s_mov_b64 exec, 1'); a(f'global_atomic_or v60, v63, v61, {DBG} sc0 sc1'); a('s_mov_b64 exec, -1'); a('s_waitcnt vmcnt(0)')
        a('v_readfirstlane_b32 s40, v60'); a('s_bitcmp1_b32 s40, s39'); a('s_cbranch_scc1 L_lost1')
        a('s_lshl_b32 s38, s38, 5'); a('s_add_u32 s38, s38, s39'); a('s_bitset1_b32 s38, 9')
        a.label('L_lost2')
        a('s_setpc_b64 s[96:97]')
        a.label('L_redo')
        a('s_bitcmp1_b32 s38, 8'); a('s_cbranch_scc1 L_bail')
        a('s_waitcnt vmcnt(0) lgkmcnt(0)'); a('s_barrier')
        a('s_load_dwordx16 s[64:79], s[0:1], 0')
        a('s_load_dwordx8 s[80:87], s[0:1], 64')
        a('s_bfe_u32 s36, s38, 0x30005'); a('s_and_b32 s2, s38, 31'); a('s_mov_b32 s7, 1')
        a('s_branch L_role')
    def stamp(self, idx, sidx=None, t0=20, src='s62'):
        if self.probe and not self.diag:
            role, want = self.probe
            if role != self.role or (sidx is None and idx != want) or (sidx and not (0 <= want - idx < 9)): return
            a = self.a
            a('s_waitcnt lgkmcnt(0)'); a('s_memrealtime s[62:63]'); a('s_waitcnt lgkmcnt(0)')
            if sidx: a(f's_cmp_eq_u32 {sidx}, {want - idx}'); a('s_cselect_b32 s61, s62, s61')
            else: a('s_mov_b32 s61, s62')
            return
        if not self.diag: return
        a = self.a
        a('s_waitcnt lgkmcnt(0)'); a('s_memrealtime s[62:63]'); a('s_waitcnt lgkmcnt(0)')
        a(f'v_mov_b32 v{t0}, {src}')
        if sidx: a(f's_lshl_b32 s60, {sidx}, 2'); a('s_add_u32 s60, s60, s61')
        else: a('s_mov_b32 s60, s61')
        a(f'v_mov_b32 v{t0+1}, 0')
        a('s_mov_b64 exec, 1')
        a(f'buffer_store_dword v{t0}, v{t0+1}, {WS}, s60 offen offset:{idx*4}' + self.N('d'))
        a('s_mov_b64 exec, -1')
    def diagbase(self):
        a = self.a
        a('s_and_b32 s60, s61, 31'); a('s_lshr_b32 s61, s61, 5'); a('s_lshl3_add_u32 s61, s60, s61')
        a('s_lshl2_add_u32 s61, s61, s3'); a('s_lshl_b32 s61, s61, 8'); a(f's_add_u32 s61, s61, 0x{DOFF:x}')
    def maxtree(self, regs, t):
        a = self.a; regs = list(regs)
        a(f'v_max3_u32 v{t}, v{regs[0]}, v{regs[1]}, v{regs[2 if len(regs) > 2 else 1]}')
        regs = regs[3:]
        while regs:
            x = regs[:2]; regs = regs[2:]
            a(f'v_max3_u32 v{t}, v{t}, v{x[0]}, v{x[-1]}')
        a(f'v_cmp_eq_u32 vcc, -1, v{t}')

    def build(self):
        a = self.a
        if self.diag: a('s_memrealtime s[34:35]')
        a('s_cmp_ge_u32 s2, 256'); a('s_cbranch_scc1 L_end2')
        if self.probe: a('s_memrealtime s[62:63]'); a('s_waitcnt lgkmcnt(0)'); a('s_mov_b32 s60, s62'); a('s_mov_b32 s61, s62')
        a('s_load_dwordx16 s[64:79], s[0:1], 0')
        a('s_load_dwordx8 s[80:87], s[0:1], 64')
        if self.nocl:
            if self.fake: a(f's_mul_i32 s2, s2, {2 * self.fake + 1}'); a(f's_add_u32 s2, s2, {self.fake // 2 * 8}'); a('s_and_b32 s2, s2, 255'); self.fake = 0
            a('s_and_b32 s36, s2, 7'); a('s_lshr_b32 s38, s2, 5'); a('s_bfe_u32 s37, s2, 0x20003')
            if self.nocl > 1: a(f's_add_u32 s38, s38, {9 - self.nocl}')
            if self.diag: a('s_getreg_b32 s100, hwreg(HW_REG_HW_ID)')
        else:
            a('s_getreg_b32 s36, hwreg(HW_REG_XCC_ID, 0, 3)')
            a('s_getreg_b32 s38, hwreg(HW_REG_HW_ID, 8, 4)'); a('s_getreg_b32 s37, hwreg(HW_REG_HW_ID, 13, 2)')
        a('v_lshrrev_b32 v1, 6, v0'); a('v_and_b32 v0, 63, v0')
        a('v_readfirstlane_b32 s3, v1')
        a('s_mov_b32 s52, 400000'); a('s_mov_b64 s[6:7], 0')
        if self.fake == 1: a('s_and_b32 s38, s38, 6')
        if self.fake == 2: a('s_and_b32 s36, s36, 5')
        if self.fake == 3: a('s_and_b32 s36, s2, 7'); a('s_lshr_b32 s38, s2, 5'); a('s_mov_b32 s37, 0')
        if self.fake == 4: a('s_mov_b32 s36, 0'); a('s_mov_b32 s38, 0'); a('s_mov_b32 s37, 0')
        if self.fake == 5:
            a('s_bitcmp0_b32 s37, 0'); a('s_cselect_b32 s39, 8, 0'); a('s_cmp_eq_u32 s38, 3'); a('s_cselect_b32 s38, s39, s38')
        if not self.nocl: a('s_bitcmp0_b32 s37, 0'); a('s_cselect_b32 s39, 8, 0'); a('s_cmp_eq_u32 s38, s39'); a('s_cbranch_scc1 L_odd')
        a.label('L_even')
        a('s_and_b32 s38, s38, 7'); a('s_lshl3_add_u32 s2, s37, s38')
        if self.fake == 6: a('s_cmp_lg_u32 s38, 7'); a('s_cselect_b32 s39, 5, 0'); a('s_xor_b32 s36, s36, s39')
        if self.fake == 7: a('s_cmp_eq_u32 s2, 10'); a('s_cselect_b32 s39, 1, 0'); a('s_xor_b32 s36, s36, s39')
        if self.fake == 8: a('s_cmp_eq_u32 s2, 7'); a('s_cselect_b32 s39, 4, 0'); a('s_xor_b32 s36, s36, s39')
        a.label('L_role')
        if not self.nocl: a('s_mov_b32 s101, s2'); a('s_and_b32 s100, s36, 3'); a('s_lshl_b32 s100, s100, 6'); a('s_lshr_b32 s38, s36, 2'); a('s_lshl3_add_u32 s100, s38, s100')
        if self.cpf:
            a('s_getpc_b64 s[38:39]'); a.label('L_pc')
            a('s_lshl_b32 s37, s2, 2'); a('s_add_u32 s37, s37, s3'); a('s_lshl_b32 s37, s37, 10')
            a('s_cmp_ge_u32 s37, L_end-L_pc'); a('s_cbranch_scc1 L_nopf')
            a('v_lshl_add_u32 v2, v0, 4, s37'); a('v_min_u32 v2, L_end-L_pc-16, v2')
            a('global_load_dwordx4 v[60:63], v2, s[38:39]')
            a.label('L_nopf')
        a('s_getreg_b32 s38, hwreg(HW_REG_XCC_ID, 0, 4)'); a('s_cmp_eq_u32 s38, s36'); a(f's_cselect_b32 s5, 1, {"0x10001" if self.nocl else "0x101"}')
        a('s_lshr_b32 s38, s2, 4'); a('s_lshl1_add_u32 s36, s36, s38'); a('s_and_b32 s37, s2, 7'); a('s_bfe_u32 s38, s2, 0x10003')
        a('s_cmp_eq_u32 s37, 7'); a('s_cbranch_scc1 L_chain')
        self.role = 'S'; self.stream()
        a.label('L_chain'); self.role = 'C'
        self.chain_common()
        self.role = 'W'; self.roleW(); self.role = 'O'; self.roleOQ(); self.role = 'F'; self.roleF()
        if not self.nocl: self.rare_paths()
        a.label('L_bail')
        a('s_mov_b64 exec, 1')
        a('v_mov_b32 v0, 32'); a('v_mov_b32 v1, 1')
        a(f'global_atomic_add v0, v1, {DBG} sc1')
        a('v_mov_b32 v0, 36'); a('v_mov_b32 v1, s2')
        a(f'global_store_dword v0, v1, {DBG} sc1')
        a.label('L_end')
        if self.probe:
            a('s_cmp_eq_u32 s60, s61'); a('s_cbranch_scc1 L_end2')
            a('s_sub_u32 s61, s61, s60'); a(f's_mul_i32 s61, s61, {self.pmul}'); a('s_add_u32 s61, s61, 7000'); a('s_add_u32 s61, s61, s60')
            a.label('L_pspin')
            a('s_memrealtime s[62:63]'); a('s_waitcnt lgkmcnt(0)'); a('s_sub_u32 s62, s62, s61'); a('s_cmp_lt_i32 s62, 0'); a('s_cbranch_scc1 L_pspin')
        a.label('L_end2')
        body = a.finish()
        hdr = open('cdna_kernels/' + NAME + '.s.ref').read().split('\n')
        top = [l for l in hdr if l.startswith(';') and '@launch' not in l]
        s = '\n'.join(top) + '\n; @launch grid=(256,1,1) block=(256,1,1) lds=163840\n'
        s += f'.amdgcn_target "amdgcn-amd-amdhsa--gfx950"\n.text\n.globl {NAME}_kernel\n.p2align 8\n.type {NAME}_kernel,@function\n{NAME}_kernel:\n'
        s += body
        s += f'''s_endpgm
.section .rodata,"a"
.p2align 6
.amdhsa_kernel {NAME}_kernel
  .amdhsa_next_free_vgpr 512
  .amdhsa_next_free_sgpr 102
  .amdhsa_accum_offset 256
  .amdhsa_group_segment_fixed_size 0
  .amdhsa_kernarg_size 96
  .amdhsa_user_sgpr_count 2
  .amdhsa_user_sgpr_kernarg_segment_ptr 1
  .amdhsa_system_sgpr_workgroup_id_x 1
.end_amdhsa_kernel
'''
        return s

    CA = [0, 4096]; Q1L = 8192; MA = [10240, 10272]; CO = [10304, 10308]; MA1 = [10240, 10336]; ST = 10496; TB = 11520; WLDS = 37 * 1024
    vK, vV, vDs, vL16, vQo, vIQ, vIP = 1, 2, 3, 4, 5, 6, 7
    vM = 8; vT = 12; vBias = 15; vMC = 16; vL = 17; vQ = 24; vAcc = 32; vH = 48
    def kreg(self, s, u):
        return 64 + 96 * s + 16 * u if u < 6 else 256 + 128 * s + 16 * (u - 6)
    def vreg0(self, s, P, t):
        return 256 + 128 * s + 64 + 8 * (4 * P + t)
    def tile(self, n):
        if n < 40:
            u, t = n // 4, n % 4
            return 0, u // 2, t * 128 + (u & 1) * 512
        m = n - 40; g = m // 8; k = m % 8
        if g < 4: P, t = k // 4, k % 4
        else: t, P = k // 2, k % 2
        return 1, g, t * 128 + P * 1024
    def ldsslot(self, s, n):
        if n <= 72: return (n - 56) + 17 * s
        return 34 + (n - 73)
    ORD = list(range(24, 40)) + list(range(24)) + list(range(40, 80))
    def load(self, s, p, wait=True, to=None):
        a = self.a; n = self.ORD[p]
        kv, g, imm = self.tile(n)
        if p == 0 and not self.prologue:
            for j in range(4 if self.flex or self.fx2 else 5): a(f's_add_u32 s{40+j}, s{40+j}, 0x2000000')
            if self.fx2: a('s_mov_b32 s44, s24'); a('s_lshl_b32 s90, s25, 9'); a('s_add_u32 s90, s90, s44'); a('s_min_u32 s90, s90, s10'); a('s_mov_b32 s94, s90')
            elif not self.flex: a('s_add_u32 s90, s90, 0x2000000'); a('s_min_u32 s90, s90, s10'); a('s_mov_b32 s94, s90')
        va = f'v{self.vV if kv else self.vK}'; srd = V_SRD if kv else K_SRD
        if g == 4: srd = V4 if kv else K4
        if g == 4 and self.rm and self.rm[0] != 12:
            t = 'v16' if self.prologue else 'v0'
            if n in (32, 72):
                a(f'v_bfe_u32 {t}, v{self.vL16}, 7, 1'); a(f'v_mul_u32_u24 {t}, {(1 << self.rm[0]) - 4096}, {t}'); a(f'v_sub_u32 {t}, {va}, {t}')
            va = t
        dst = None
        if n < 40: dst = self.kreg(s, n // 4) + 4 * (n % 4)
        elif n < 56:
            m = n - 40; dst = self.vreg0(s, (m % 8) // 4, m % 4) + 4 * (m // 8)
        elif n >= 76: dst = self.kreg(1 - s, 1) + 4 * (n - 76)
        if to is not None: dst = to
        if dst is None:
            a(f's_add_u32 m0, s45, {self.ldsslot(s, n) * 1024 - imm}')
        depth = self.lv[-1] if self.dyn else self.depth
        if wait is not True and wait: depth = wait
        def allow(d):
            pos = [i for i, x in enumerate(reversed(self.vmq)) if x[0] != 'cp' and not (self.flex and x[0] in (0, 1) and self.KF <= x[1] < self.KF + 8 and (x[1] - self.KF) % 8 not in self.fw)]
            return pos[d - 1] if len(pos) >= d else None
        if wait is True and self.dyn:
            lows = [allow(d) for d in self.lv[:-1] if allow(d) is not None]
            labs = [self.lab('L_lv') for _ in lows]
            for i in reversed(range(len(lows))):
                a(f's_cmp_gt_u32 s59, {i}'); a(f's_cbranch_scc1 {labs[i]}')
            for i, k in enumerate(lows):
                a(f's_waitcnt vmcnt({k})'); a.label(labs[i])
        if wait and allow(depth) is not None:
            k = allow(depth)
            a(f's_waitcnt vmcnt({k})'); self.vmq = self.vmq[-k:]
        if dst is None:
            a(f'buffer_load_dwordx4 {va}, {srd}, s{40+g} offen offset:{imm} {self.vpol if kv else self.kpol} lds')
        else:
            a(f'buffer_load_dwordx4 {rr(dst, 4)}, {va}, {srd}, s{40+g} offen offset:{imm} {self.vpol if kv else self.kpol}')
        self.vmq.append((s, p))
    def need_vm(self, tag):
        if tag == ('cp', 'q1') and self.eq and tag not in self.vmq:
            t = [x for x in self.vmq if x[0] != 'cp' and x[1] == self.PF]
            if t:
                l = self.lab('L_eq'); self.a('s_cmp_lg_u32 s58, 0'); self.a(f's_cbranch_scc1 {l}')
                self.a(f's_waitcnt vmcnt({len(self.vmq) - 1 - self.vmq.index(t[0])})'); self.a.label(l)
            return
        if tag in self.vmq:
            k = len(self.vmq) - 1 - self.vmq.index(tag)
            if self.xst:
                l = self.lab('L_xs'); self.a('s_cmp_lg_u32 s58, 0'); self.a(f's_cbranch_scc1 {l}')
                self.a(f's_waitcnt vmcnt({k})'); self.a.label(l); self.a(f's_waitcnt vmcnt({k + self.xst})')
            else: self.a(f's_waitcnt vmcnt({k})')
            self.vmq = self.vmq[len(self.vmq) - k:] if k else []
    def ds(self, text, tag=None):
        self.a(text); self.lq.append(tag)
    def need_lds(self, tag):
        if tag in self.lq:
            i = len(self.lq) - 1 - self.lq[::-1].index(tag)
            k = len(self.lq) - 1 - i
            k = min(k, 15)
            self.a(f's_waitcnt lgkmcnt({k})'); self.lq = self.lq[len(self.lq) - k:] if k else []
    def qload(self):
        a = self.a
        a(f'buffer_load_dwordx4 {vr(self.vQ, 4)}, v{self.vQo}, {WS}, s46 offen sc1')
        a(f'buffer_load_dwordx4 {vr(self.vQ + 4, 4)}, v{self.vQo}, {WS}, s46 offen offset:256 sc1')
    def wpf(self, n):
        a = self.a
        for nn, mat, k in self.spf:
            if nn != n: continue
            a('s_lshl2_add_u32 s32, s37, s3')
            for lo, size, rs, lpr, hs, rows in {'q': [(70, 448 * 8192, 8192, 4, 512, 448)], 'o': [(72, 4096 * 896, 128, 1, 229376, 1792)],
                          'g': [(76, 448 * 3584, 3584, 2, 256, 448), (78, 448 * 3584, 3584, 2, 256, 448)], 'd': [(80, 1792 * 896, 128, 1, 114688, 896)]}[mat]:
                assert 56 * k <= rows and k * lpr <= 64
                self.srd(28, lo, size)
                a(f's_mul_i32 s38, s36, {hs}'); a(f's_mul_i32 s33, s32, {k * rs}'); a('s_add_u32 s38, s38, s33'); a(f's_add_u32 s38, s38, {(rows - 56 * k) * rs}')
                if mat == 'g': a('s_cmp_lt_u32 s36, 14'); a(f's_cselect_b32 s38, s38, 0x{OOB:x}')
                if lpr == 1: a('v_lshlrev_b32 v18, 7, v0')
                else:
                    a(f'v_lshrrev_b32 v18, {lpr // 2}, v0'); a(f'v_mul_u32_u24 v18, {rs}, v18'); a(f'v_and_b32 v19, {lpr - 1}, v0'); a('v_lshl_add_u32 v18, v19, 7, v18')
                L = k * lpr
                a(f's_mov_b32 exec_lo, 0x{(1 << min(L, 32)) - 1:x}'); a(f's_mov_b32 exec_hi, 0x{(1 << max(L - 32, 0)) - 1:x}')
                a(f'buffer_load_dword v17, v18, s[28:31], s38 offen')
                a('s_mov_b64 exec, -1')
    def zero_acc(self):
        return [f'v_mov_b64 {vr(self.vAcc + 2 * i, 2)}, 0' for i in range(8)]

    def stream(self):
        a = self.a
        self.vmq = []; self.lq = []; self.prologue = True; self.later = []
        a('s_mul_i32 s38, s38, 7'); a('s_add_u32 s37, s37, s38')
        if self.diag: a('s_mul_i32 s61, s36, 14'); a('s_add_u32 s61, s61, s37'); a('s_add_u32 s61, s61, 32'); self.diagbase()
        a('s_lshl_b32 s39, s37, 2'); a('s_add_u32 s39, s39, s3'); a('s_lshl_b32 s38, s39, 13')
        a('s_lshl_b32 s44, s36, 21')
        LB = self.rm[0] if self.rm else 12
        def place(g):
            lb, wb, rot = self.rm; sb = [b for b in range(12, 18) if b not in (lb, wb, wb + 1)]; d = f's{40 + g}'
            a(f's_add_u32 s38, s37, {14 * g}'); a(f's_lshr_b32 {d}, s38, 3'); a(f's_lshl_b32 {d}, {d}, 18'); a(f's_add_u32 {d}, {d}, s44')
            if rot: a(f's_mul_i32 s33, s36, {rot}'); a('s_add_u32 s38, s38, s33')
            if sb[2] == sb[0] + 2: a('s_and_b32 s38, s38, 7'); a(f's_lshl_b32 s38, s38, {sb[0]}'); a(f's_add_u32 {d}, {d}, s38')
            else:
                for i, b in enumerate(sb): a(f's_bfe_u32 s33, s38, 0x{0x10000 + i:x}'); a(f's_lshl_b32 s33, s33, {b}'); a(f's_add_u32 {d}, {d}, s33')
            a(f's_lshl_b32 s38, s3, {wb}'); a(f's_add_u32 {d}, {d}, s38')
        if self.rm: assert not self.hp; place(3)
        else: a('s_add_u32 s40, s44, s38'); a(f's_add_u32 s43, s40, {3 * NW * 8192}')
        self.bits(f'v{self.vK}', 'v0', 'v18', [(0, 1, 4), (4, 2, 5), (2, 1, 10), (1, 1, 11), (3, 1, LB)])
        if not self.cla: self.claim(22, 23, 24)
        else: a('s_waitcnt lgkmcnt(0)')
        self.wpf(-1)
        self.srd(8, 66, 0x8000000)
        if self.diag: a('s_memrealtime s[98:99]')
        for p in range(self.p0): self.load(0, p, wait=False)
        if self.tlb:
            a('s_lshl_b32 s38, s3, 25'); a('s_add_u32 s38, s38, s44')
            a('s_load_dword s96, s[66:67], s38'); a('s_load_dword s97, s[68:69], s38')
            if self.tlb > 1: a('s_add_u32 s38, s38, 0x1fff00'); a('s_load_dword s96, s[66:67], s38'); a('s_load_dword s97, s[68:69], s38')
        if self.cla: self.claim(22, 23, 24); assert self.CL >= 15
        self.wpf(7)
        a(f's_lshl_b32 s47, s36, 15'); a('s_lshl_b32 s38, s37, 10'); a('s_and_b32 s48, s38, 0x2000'); a('s_add_u32 s38, s38, s48')
        a('s_add_u32 s47, s47, s38'); a(f's_add_u32 s47, s47, 0x{POFF:x}')
        a('s_lshl_b32 s48, s37, 7'); a('s_sub_u32 s48, s48, s38'); a(f's_add_u32 s48, s48, {MLO}')
        a(f'v_lshlrev_b32 v{self.vL16}, 4, v0')
        if self.rm:
            for j in range(3): place(j)
        else:
            for j in range(1, 3): a(f's_add_u32 s{40+j}, s40, {j * NW * 8192}')
        self.srd(88, 66, 0); self.srd(92, 68, 0)
        if self.flex:
            a(f's_add_u32 s21, s44, {4 * NW * 8192}'); a('s_lshl_b32 s20, s36, 7'); a(f's_add_u32 s20, s20, 0x{HOFF:x}')
        else:
            if self.fx2:
                assert sum(n for n, r in self.fx2) == NW and sum(n * r for n, r in self.fx2) == 512 and self.PFA
                a(f's_add_u32 s21, s44, {4 * NW * 8192 + 0x2000000}'); a('s_lshl_b32 s20, s36, 7'); a(f's_add_u32 s20, s20, 0x{HOFF:x}')
            a('s_mul_i32 s38, s39, 9'); a('s_min_u32 s51, s37, 8'); a('s_add_u32 s38, s38, s51')
            a('s_cmp_lt_u32 s37, 8'); a('s_cselect_b32 s22, s3, 0'); a('s_cmp_eq_u32 s22, 3'); a('s_cselect_b32 s22, 10, 9'); a('s_mov_b32 s23, s22')
            a('s_lshl_b32 s38, s38, 9')
            a(f's_add_u32 s44, s44, {4 * NW * 8192}'); a('s_add_u32 s44, s44, s38')
            a('s_lshl_b32 s38, s22, 9'); a('s_add_u32 s90, s44, s38'); a('s_mov_b32 s94, s90')
        self.srd(12, 68, 0x8000000); self.srd(16, 86, 0x20000000)
        if self.wsw:
            a('s_lshl_b32 s38, s3, 20'); a('s_add_u32 s38, s38, s47'); a(f'buffer_load_dword v17, off, {WS}, s38 sc1')
        self.stamp(0); self.stamp(32, src='s34'); self.stamp(33, src='s98')
        if self.nocl: self.stamp(62, src='s100')
        self.bits(f'v{self.vV}', 'v0', 'v18', [(0, 3, 4), (5, 1, 9), (4, 1, 11), (3, 1, LB)])
        a(f's_mul_i32 s45, s3, {self.WLDS}'); a(f's_add_u32 s45, s45, {self.TB}')
        a(f'v_add_u32 v{self.vDs}, s45, v{self.vL16}')
        self.bits(f'v{self.vQo}', 'v0', 'v18', [(0, 2, 4), (4, 2, 6)])
        a('v_and_b32 v18, 2, v0'); a('v_cmp_eq_u32 vcc, 2, v18')
        a(f'v_mov_b32 v{self.vIQ}, 0x44444444'); a('v_mov_b32 v18, 0xeeeeeeee'); a(f'v_cndmask_b32 v{self.vIQ}, v{self.vIQ}, v18, vcc')
        a('v_and_b32 v18, 3, v0'); a('s_mov_b32 s38, 0x55555555'); a(f'v_mul_lo_u32 v{self.vIP}, v18, s38')
        a('v_and_b32 v18, 4, v0'); a('v_cmp_eq_u32 vcc, 4, v18')
        a('v_mov_b32 v18, 0xffff'); a('v_mov_b32 v19, 0xffff0000')
        M = self.vM
        a(f'v_cndmask_b32 v{M}, v18, 0, vcc'); a(f'v_cndmask_b32 v{M+1}, 0, v18, vcc')
        a(f'v_cndmask_b32 v{M+2}, v19, 0, vcc'); a(f'v_cndmask_b32 v{M+3}, 0, v19, vcc')
        self.bits(f'v{self.vBias}', 'v0', 'v19', [(4, 1, 0), (2, 1, 1), (1, 1, 2), (3, 1, 3), (5, 1, 4)])
        a('s_lshl_b32 s46, s3, 4'); a('s_add_u32 s46, s46, s36'); a('s_lshl_b32 s46, s46, 9')
        a('s_mov_b32 s49, 0'); a(f's_mov_b32 s51, 0x{f2u(CS):x}')
        if self.mz: a(f's_mov_b32 s50, 0x{f2u({1: 32.0, 2: 4.0, 3: -1.0}[self.mz]):x}')
        a(f's_mov_b32 s53, {self.Q1L}'); a('s_lshl_b32 s54, s3, 10'); a('s_lshl_b32 s55, s3, 3')
        a('s_lshl_b32 s56, s36, 9'); a(f's_add_u32 s56, s56, 0x{QOFF + 3 * 8192:x}')
        a('v_mov_b32 v18, 0'); a('v_mov_b32 v19, 0')
        a(f'ds_write_b64 v18, v[18:19] offset:{self.CO[0]}')
        a('s_lshl_b32 s57, s3, 8'); a(f's_add_u32 s57, s57, {self.ST}'); a('s_mov_b32 s58, 0'); a(f's_lshl_b32 s4, s5, {15 if self.nocl else 23}'); a('s_and_b32 s4, s4, 0x80000000')
        if self.lv:
            mid = self.lv.index(self.depth) if self.mid is None else self.mid
            a(f's_mov_b32 s59, {mid if not self.slow else self.slow[0]}')
            if self.slow and len(self.slow) > 3: a('s_cmp_ge_u32 s36, 8'); a(f's_cselect_b32 s59, {self.slow[3]}, s59')
            if self.cps:
                a('s_lshl2_add_u32 s24, s37, s3'); a('s_lshl_b32 s24, s24, 7'); a(f's_add_u32 s24, s24, 0x{COFF:x}')
                lo = (mid if not self.slow else self.slow[0]) - 1
                a(f's_mov_b32 s20, 0x{OOB:x}'); a(f's_mov_b32 s21, {-self.th[lo] if lo >= 0 else 100}'); a('s_mov_b32 s22, 0')
            if self.odd and not self.nocl:
                a('s_or_b32 s38, s6, s7'); a(f's_cselect_b32 s59, {mid}, s59')
                if self.cps: a(f's_cselect_b32 s21, {-self.th[-1]}, s21')
        assert not self.cps
        if self.hp:
            a('s_lshr_b32 s20, s36, 1'); a('s_lshl2_add_u32 s20, s20, s3'); a('s_lshl_b32 s20, s20, 8'); a(f's_add_u32 s20, s20, 0x{HOFF:x}')
            a('s_and_b32 s38, s36, 1'); a('s_mul_i32 s21, s38, 14'); a('s_add_u32 s21, s21, s37')
            a('s_lshl_b32 s24, s38, 21'); a('s_lshl_b32 s38, s37, 15'); a('s_add_u32 s24, s24, s38')
            a('s_lshl3_add_u32 s25, s21, s20'); a('s_mov_b32 s35, 0'); a('s_mul_i32 s21, s21, 27')
        if self.bst: a('s_mov_b32 s26, s59')
        LP = {tuple(k): v for k, v in self.p2l}
        N1 = sum(1 for v in LP.values() for x in v if x < 40); N0 = N1 + sum(len(v) for v in self.p1l.values())
        assert N0 <= 16
        for p in range(self.p0, N0):
            self.load(0, p, wait=self.pw[min(p - self.p0, len(self.pw) - 1)] if isinstance(self.pw, list) else self.pw)
            if p == self.CL: self.armS()
            self.wpf(p)
        self.prologue = False
        entry_vmq = [(0, i) for i in range(N0)]; self.vmq = list(entry_vmq)
        nQ = self.nQ
        for s in range(2):
            a.label(f'L_A{s}')
            assert [(x[0] ^ s, x[1]) for x in self.vmq] == entry_vmq, (self.vmq, entry_vmq)
            self.lq = []
            n = N0; self.dyn = bool(self.lv)
            while n < 73:
                if self.slow and not self.fb and (s, n) == tuple(self.slow[1:3]): a(f's_max_u32 s59, s59, {mid}')
                if self.bst and n == self.bst[1]: a('s_mov_b32 s59, s26')
                if s == 0 and n in self.fine:
                    a('s_mul_i32 s99, s49, 5'); self.stamp(44 + self.fine.index(n), 's99', 18)
                for i, (c0, c1) in enumerate(self.cps):
                    r = 16 + i % 2
                    if n == c1:
                        self.need_vm(('cp', i))
                        a(f'v_readfirstlane_b32 s38, v{r}'); a(f's_sub_u32 s38, s38, s{25 + i % 2}'); a('s_mov_b32 s59, 0')
                        for t in self.th: a(f's_cmp_ge_i32 s38, {t}'); a('s_addc_u32 s59, s59, 0')
                for i, (c0, c1) in enumerate(self.cps):
                    r = 16 + i % 2
                    if n == c0:
                        assert not (c0 <= nQ + 3 and c1 > nQ) and c1 < 73
                        a(f'v_mov_b32 v{r}, 1'); a(f's_mov_b32 s{25 + i % 2}, s21'); a('s_add_u32 s21, s21, s22')
                        a('s_mov_b64 exec, 1'); a(f'buffer_atomic_add v{r}, off, {WS}, s20 sc0 sc1'); a('s_mov_b64 exec, -1')
                        self.vmq.append(('cp', i))
                if 'B' in self.wb and (s, n) == (1, 20): self.dirty()
                if self.eq and n == self.eq[1]:
                    assert self.eq[0] >= nQ + 4 and n <= self.PFA and not self.fx2 and not self.flex and not self.xpf and not self.vpf
                    self.need_vm(('cp', 'e1')); a('s_mov_b32 s58, 0')
                    self.maxtree(range(self.vQ, self.vQ + 8), 18)
                    if s == 0: a('s_cmp_eq_u32 s49, 0'); a('s_cbranch_scc1 L_En')
                    a(f's_cbranch_vccz L_E{s}')
                    if s == 0: a.label('L_En')
                    main = list(self.vmq); am = self.a; self.a = a2 = Asm(); dyn = self.dyn; self.dyn = False
                    a2.label(f'L_E{s}'); a2('s_mov_b32 s58, 1')
                    for m in range(n, 73):
                        if self.hp and m in dict(self.hp[0]): self.publish(dict(self.hp[0])[m])
                        self.load(s, m, wait=self.eq[2] or False)
                    a2(f's_mov_b32 s59, {self.eq[3]}')
                    self.stamp(1, 's49')
                    if self.diag: a2('s_add_u32 s7, s7, 1')
                    a2(f's_branch L_Xok{s}')
                    fastq = list(self.vmq); self.vmq = main; self.a = am; self.dyn = dyn
                    self.later.append(lambda a2=a2: a.L.extend(a2.L))
                if self.hp and n in dict(self.hp[0]): self.publish(dict(self.hp[0])[n])
                for n0, n1, el, R in (self.hp[5] if self.hp else []):
                    assert n1 < nQ or (n0 >= nQ + 4 and n1 <= self.PFA)
                    if n == n0: self.board()
                    if n == n1:
                        self.need_vm(('cp', 'bd'))
                        a(f's_movk_i32 s34, {el}'); a(f's_movk_i32 s32, {R}'); a('s_call_b64 s[96:97], L_help')
                if self.flex and n == self.KF:
                    self.need_vm(('cp', 0))
                    R = f's{22 + s}'
                    a('v_readfirstlane_b32 s38, v16'); a('s_add_u32 s38, s38, 1')
                    a(f's_mov_b32 {R}, {self.flex[0][1]}'); a(f's_mul_i32 s44, s38, {R}')
                    b = 0
                    for (n0, r0), (n1, r1) in zip(self.flex, self.flex[1:]):
                        b += n0
                        a(f's_sub_i32 s39, s38, {b}'); a('s_max_i32 s33, s39, 0'); a(f's_mul_i32 s33, s33, {r0 - r1}'); a('s_sub_u32 s44, s44, s33')
                        a('s_cmp_ge_i32 s39, 0'); a(f's_cselect_b32 {R}, {r1}, {R}')
                    a('s_lshl_b32 s44, s44, 9'); a('s_add_u32 s44, s44, s21'); a('s_add_u32 s21, s21, 0x2000000')
                    a(f's_lshl_b32 s90, {R}, 9'); a('s_add_u32 s90, s90, s44'); a('s_min_u32 s90, s90, s10'); a('s_mov_b32 s94, s90')
                    self.stamp(40, 's49', 18, 's38')
                if n == nQ:
                    self.need_vm((s, self.KF + 7 if self.flex else 39))
                    if s == 0:
                        a('s_cmp_eq_u32 s49, 0'); a('s_cbranch_scc1 L_st0'); st_in = list(self.vmq)
                    self.qk1(s, {('u', 1): [(s, n)], ('u', 6): [(s, n + 1)], ('x', 0): [(s, n + 2)], ('e', 0): [(s, n + 3)]}, True)
                    n += 4
                    if s == 0: a.label('L_st0r'); st_out = list(self.vmq)
                    for z in self.zero_acc(): a(z)
                    continue
                self.load(s, n)
                if s == 0 and (n == self.CL or any(x[0] == n for x in self.spf)):
                    l = self.lab('L_it0')
                    a('s_cmp_lg_u32 s49, 0'); a(f's_cbranch_scc1 {l}')
                    if n == self.CL: self.armS()
                    self.wpf(n)
                    a.label(l)
                CK = self.TK if self.flex else (self.PFA or self.PF)
                if s == 0 and n == CK - 8:
                    assert n >= nQ + 4 or (CK < nQ and n > self.CL)
                    l = self.lab('L_it0'); a('s_cmp_lg_u32 s49, 0'); a(f's_cbranch_scc1 {l}')
                    a('v_mov_b32 v22, 0'); a(f'global_load_dword v23, v22, {DBG} offset:{self.CNTA} sc1'); a.label(l)
                if s == 0 and n == CK:
                    self.stamp(22, 's49')
                    l = self.lab('L_it0'); a('s_cmp_lg_u32 s49, 0'); a(f's_cbranch_scc1 {l}')
                    a('s_waitcnt vmcnt(8)'); self.wait_counter(22, 23, 21, self.CNTA, NCHAIN, pre=True)
                    a('v_readfirstlane_b32 s27, v23'); a('s_add_u32 s27, s27, s5')
                    if self.la:
                        assert self.PFA and self.PFA < self.PF
                        x = self.lab('L_la'); a(f's_cmp_eq_u32 s27, {NCHAIN + 1}'); a(f's_cbranch_scc0 {x}')
                        self.armP(self.la)
                        def far(x=x, l=l): a.label(x); self.armP('sc1'); a(f's_branch {l}')
                        self.later.append(far)
                    a.label(l)
                if (self.flex and n == self.TK) or (self.fx2 and n == self.PFA):
                    a('v_mov_b32 v16, 1')
                    a('s_mov_b64 exec, 1'); a(f'buffer_atomic_add v16, off, {WS}, s20 sc0 sc1'); a('s_mov_b64 exec, -1')
                    a('s_add_u32 s20, s20, 2048')
                    self.vmq.append(('cp', 0))
                if self.vpf and n == self.vpf[0]:
                    a(f'v_lshlrev_b32 v19, 3, v{self.vL16}'); a(f's_mov_b32 m0, {self.TB + 4 * self.WLDS}')
                    a(f'buffer_load_dword v19, {V4}, s44 offen {self.xpol} lds'); self.vmq.append(('cp', 'x'))
                for n0, g in (self.vpf or [0])[1:]:
                    if n == n0:
                        a(f'v_lshlrev_b32 v19, 3, v{self.vL16}'); a(f's_mov_b32 m0, {self.TB + 4 * self.WLDS}'); a(f's_add_u32 s38, s{40 + g}, 0x2000000')
                        if g == 4: a('s_mov_b32 exec_hi, 0xff')
                        a(f'buffer_load_dword v19, {K_SRD}, s38 offen {self.xpol} lds'); self.vmq.append(('cp', 'x'))
                        if g == 4: a('s_mov_b32 exec_hi, -1')
                if self.eq and n == self.eq[0]: self.qload(); self.vmq += [('cp', 'e0'), ('cp', 'e1')]
                if n == self.PFA and self.hp: self.board()
                if n == self.PFA:
                    assert n >= nQ + 4 and n < self.PF
                    self.qload(); self.vmq += [('cp', 'qa'), ('cp', 'qb')]
                if n == self.PF:
                    assert n >= nQ + 4
                    self.qload(); self.vmq += [('cp', 'q0'), ('cp', 'q1')]
                n += 1
            self.dyn = False
            if self.fb: a(f's_mov_b32 s59, {self.fb[1]}')
            if self.PFA:
                self.need_vm(('cp', 'qb')); keep = list(self.vmq)
                if self.fx2: a('v_readfirstlane_b32 s35, v16')
                self.stamp(1, 's49')
                self.maxtree(range(self.vQ, self.vQ + 8), 18)
                a(f's_cbranch_vccz L_Xok{s}')
                if self.nox: a('s_cmp_lg_u32 s49, 0'); a(f's_cbranch_scc1 L_Xok{s}')
                if self.fb and len(self.fb) > 2: a(f's_mov_b32 s59, {self.fb[2]}')
            def ahead(what):
                for g in what:
                    if g == 'v': a(f'buffer_load_dword v19, {V4}, s44 offen {self.xpol} lds')
                    else:
                        a(f's_add_u32 s38, s{40 + g}, 0x2000000')
                        if g == 4: a('s_mov_b32 exec_hi, 0xff')
                        a(f'buffer_load_dword v19, {K_SRD}, s38 offen {self.xpol} lds')
                        if g == 4: a('s_mov_b32 exec_hi, -1')
                    self.vmq.append(('cp', 'x'))
            if self.xpf:
                assert self.PFA and not self.flex
                a(f'v_lshlrev_b32 v19, 3, v{self.vL16}'); a(f's_mov_b32 m0, {self.TB + 4 * self.WLDS}')
                ahead(self.xpf[0])
            if self.hp:
                if self.hl and s == 1: a('s_cmp_eq_u32 s49, 3'); a(f's_cselect_b32 s34, {self.hl[0]}, {self.hp[1]}')
                else: a(f's_movk_i32 s34, {self.hp[1]}')
                a('s_movk_i32 s32, 0'); a(f's_call_b64 s[96:97], L_help')
            self.need_vm(('cp', 'q1'))
            for x in (self.xpf or [])[1:]:
                self.maxtree(range(self.vQ, self.vQ + 8), 18)
                a(f's_cbranch_vccz L_Xok{s}')
                self.qload(); ahead(x); a(f's_waitcnt vmcnt({len(x)})')
            if self.PFA: self.vmq = keep
            else: self.stamp(1, 's49')
            a.label(f'L_X{s}')
            self.maxtree(range(self.vQ, self.vQ + 8), 18)
            a(f's_cbranch_vccz L_Xok{s}')
            a.label(f'L_Xpoll{s}')
            if self.fb and len(self.fb) > 3: a('s_sub_i32 s59, s59, 1'); a(f's_max_i32 s59, s59, {self.fb[0]}')
            elif self.fb: a(f's_mov_b32 s59, {self.fb[0]}')
            self.timeout()
            if self.hp and self.hp[4]:
                a(f'v_lshrrev_b32 v19, 1, v{self.vL16}')
                a(f'buffer_load_dword v16, v19, {WS}, s20 offen sc1')
            self.qload()
            a('s_waitcnt vmcnt(0)')
            if self.hp and self.hp[4]:
                self.maxtree(range(self.vQ, self.vQ + 8), 18)
                a(f's_cbranch_vccz L_Xok{s}')
                a('s_movk_i32 s32, 0'); a(f's_call_b64 s[96:97], L_help'); a(f's_branch L_Xpoll{s}')
            else: a(f's_branch L_X{s}')
            a.label(f'L_Xok{s}')
            if self.eq:
                t = [x for x in self.vmq if x not in (('cp', 'q0'), ('cp', 'q1'))]
                assert fastq[-len(t):] == t, (fastq, t)
                self.vmq = list(fastq)
            self.stamp(6, 's49')
            if self.hp and 73 in dict(self.hp[0]): self.publish(dict(self.hp[0])[73])
            if s == 0: a('s_cmp_eq_u32 s49, 0'); a('s_cbranch_scc1 L_first')
            save = list(self.vmq)
            if s == 1 and self.lst: a('s_cmp_eq_u32 s49, 3'); a('s_cbranch_scc1 L_last'); last_save = save
            self.pass2(s, LP)
            if self.diag: a('s_memrealtime s[28:29]')
            if s == 0:
                if not self.fin: a('s_cmp_eq_u32 s49, 4'); a('s_cbranch_scc1 L_fin')
                after = list(self.vmq)
            a.label(f'L_PV{s}')
            self.pv1f(s)
            if self.diag: self.stamp(11, 's49', src='s28')
            a('s_add_u32 s49, s49, 1'); self.nextP(); a('s_add_u32 s53, s53, 512')
            a('s_add_u32 s56, s56, 8192'); a('s_mov_b32 s46, s56')
            if self.hp: a('s_add_u32 s35, s35, 10')
            if self.odd and (self.odd & 1) != s and not self.fb:
                a(f's_cmp_eq_u32 s49, {self.odd}'); a(f's_cselect_b32 s59, {mid}, s59')
            if self.cps and (self.cpon & 1) != s:
                a(f's_cmp_eq_u32 s49, {self.cpon}'); a('s_cselect_b32 s20, s24, s20'); a(f's_cselect_b32 s22, 16, s22'); a('s_cselect_b32 s21, -1, s21')
                a(f's_cselect_b32 s59, {mid}, s59')
            if s == 0: first_save, first_after = save, after
        if self.lst:
            assert self.fin
            a('s_branch L_A0'); self.vmq = list(last_save); self.last()
        else: a('s_cmp_lg_u32 s49, 4'); a('s_cbranch_scc1 L_A0')
        if self.fin: self.final()
        else:
            a('s_mov_b32 s94, 0')
            for z in self.zero_acc(): a(z)
            a('s_branch L_Xpoll0')
        a.label('L_first')
        self.vmq = first_save; self.lq = []
        a('s_lshl_b32 s38, s3, 9'); a(f'v_add_u32 v18, s38, v{self.vQo}')
        a(f'ds_write_b128 v18, {vr(self.vQ, 4)} offset:{self.Q1L}')
        a(f'ds_write_b128 v18, {vr(self.vQ + 4, 4)} offset:{self.Q1L + 256}')
        for n in range(73, 80): self.load(0, n, wait=False)
        self.share()
        self.need_vm(('cp', 'q1'))
        a('s_waitcnt lgkmcnt(0)'); a('s_barrier')
        pts = [('u', 1), ('u', 4), ('u', 7), ('x', 0), ('e', 0)]; FL = {}
        for i in range(N1): FL.setdefault(pts[i * len(pts) // N1], []).append((1, i))
        self.qk1(0, FL, False)
        assert self.vmq == first_after, (self.vmq, first_after)
        a('s_branch L_PV0')
        a.label('L_fin'); self.stamp(11, 's49'); self.stamp(40, src='s7')
        if 'b' in self.wb: self.dirty()
        if '1' in self.wb:
            a('s_and_b32 s38, s36, 1'); a('s_or_b32 s38, s38, s37'); a('s_or_b32 s38, s38, s3'); a('s_cbranch_scc1 L_end')
            a('buffer_wbl2 sc1')
        a('s_branch L_end')
        a.label('L_st0')
        self.vmq = st_in; self.dyn = bool(self.lv)
        for n in range(nQ, nQ + 4): self.load(0, n)
        self.dyn = False
        assert self.vmq == st_out, (self.vmq, st_out)
        a('s_branch L_st0r')
        for f in self.later: f()
        if self.hp: self.help()
    CKR = [64, 66, 68, 70, 72, 74, 76, 78, 80, 82]
    def clk(self):
        if self.cyc and self.ck: self.a(f's_memtime s[{self.CKR[self.ck - 1]}:{self.CKR[self.ck - 1] + 1}]'); self.ck += 1
    def dirty(self):
        a = self.a
        a('s_mul_i32 s38, s36, 14'); a('s_add_u32 s38, s38, s37'); a('s_lshl2_add_u32 s38, s38, s3'); a('s_lshl_b32 s38, s38, 12'); a('s_add_u32 s38, s38, 0x2000000')
        for i in range(4): a(f'buffer_store_dwordx4 v[8:11], v{self.vL16}, {WS}, s38 offen offset:{i * 1024}')
    def publish(self, v):
        a = self.a
        a(f's_add_u32 s38, s35, {v}'); a('v_mov_b32 v18, s38')
        a('s_mov_b64 exec, 1'); a(f'buffer_store_dword v18, off, {WS}, s25' + self.N('b')); a('s_mov_b64 exec, -1')
        self.vmq.append(('cp', 'pg'))
    def board(self):
        self.a(f'v_lshrrev_b32 v19, 1, v{self.vL16}')
        self.a(f'buffer_load_dword v16, v19, {WS}, s20 offen sc1'); self.vmq.append(('cp', 'bd'))
    def help(self):
        a = self.a; lo, hi = self.hp[2:4]
        a.label('L_help')
        a('v_subrev_u32 v16, s35, v16')
        a('v_cmp_ge_i32 vcc, s34, v16')
        a('s_and_b32 s33, vcc_lo, 0xfffffff'); a('s_cbranch_scc0 L_help9')
        a('s_bcnt1_i32_b32 s38, s33'); a('s_max_u32 s38, s38, s32'); a('s_bfe_u32 s32, s21, 0x50001'); a('s_mul_i32 s38, s38, s32'); a('s_lshr_b32 s38, s38, 5')
        a('v_mbcnt_lo_u32_b32 v17, s33, 0'); a('v_cmp_eq_u32 vcc, s38, v17')
        a('s_add_u32 s21, s21, 23')
        a('s_and_b32 s38, vcc_lo, s33'); a('s_cbranch_scc0 L_help9')
        a('s_ff1_i32_b32 s32, s38'); a('s_and_b32 s38, s21, 1'); a(f's_mov_b32 m0, {self.TB + 4 * self.WLDS}')
        a('v_readlane_b32 s33, v16, s32');
        if self.hl:
            assert not self.hp[5]
            a('s_cmp_eq_u32 s49, 3'); a(f's_cselect_b32 s39, {self.hl[0] - self.hl[1]}, {self.hp[1] - lo}'); a(f's_cselect_b32 s30, {self.hl[2]}, {hi}')
            a('s_max_i32 s33, s33, s39'); a('s_add_i32 s33, s33, s38'); a('s_add_i32 s33, s33, 2'); a('s_min_i32 s33, s33, s30')
        else: a(f's_sub_i32 s39, s34, {lo}'); a('s_max_i32 s33, s33, s39'); a('s_add_i32 s33, s33, s38'); a('s_add_i32 s33, s33, 2'); a(f's_min_i32 s33, s33, {hi}')
        a('s_cmp_ge_u32 s32, 14'); a('s_cselect_b32 s38, 14, 0'); a('s_cselect_b32 s39, 0x200000, 0'); a('s_sub_u32 s32, s32, s38')
        a('s_sub_u32 s39, s39, s24'); a('s_add_u32 s39, s39, s40')
        a('s_cmp_lt_i32 s33, 0'); a('s_cselect_b32 s38, 10, 0'); a('s_cselect_b32 s30, 0x2000000, 0'); a('s_add_i32 s33, s33, s38'); a('s_sub_u32 s39, s39, s30')
        a('s_cmp_ge_i32 s33, 10'); a('s_cselect_b32 s38, 10, 0'); a('s_cselect_b32 s30, 0x2000000, 0'); a('s_sub_i32 s33, s33, s38'); a('s_add_u32 s39, s39, s30')
        a('s_cmp_ge_u32 s33, 5'); a('s_cselect_b64 s[28:29], s[12:13], s[8:9]'); a('s_cselect_b32 s38, 0, 3'); a('s_add_u32 s33, s33, s38')
        a('s_mov_b32 s30, 0x8000000'); a('s_mov_b32 s31, 0x20000')
        a('s_cmp_ge_u32 s33, 5'); a('s_cselect_b32 s38, 5, 0'); a('s_sub_u32 s33, s33, s38')
        a(f's_mul_i32 s38, s33, {NW * 8192}'); a('s_add_u32 s39, s39, s38')
        a(f'v_lshlrev_b32 v19, 3, v{self.vL16}')
        a('s_lshl_b32 s38, s32, 6')
        a('s_cmp_lg_u32 s33, 4'); a('s_cbranch_scc1 L_help2')
        a('s_mul_i32 s38, s32, 36'); a('s_min_u32 s32, s32, 8'); a('s_add_u32 s38, s38, s32'); a('s_mul_i32 s32, s3, 7'); a('s_sub_u32 s38, s38, s32')
        a('s_mov_b32 exec_hi, 0xff')
        a.label('L_help2')
        a('s_lshl_b32 s38, s38, 9'); a('s_add_u32 s39, s39, s38')
        a(f'buffer_load_dword v19, s[28:31], s39 offen {self.xpol} lds')
        a('s_mov_b32 exec_hi, -1')
        if self.diag: a('s_add_u32 s7, s7, 0x100')
        a.label('L_help9')
        a('s_setpc_b64 s[96:97]')
    def last(self):
        a = self.a; Q = self.vQ; AC = self.vAcc
        a.label('L_last'); self.lq = []
        for x in self.staddr(): a(x)
        self.ds('ds_read_b96 v[20:22], v18', 'p')
        sets = [(0, 0), (0, 1), (1, 0), (1, 1), (2, 0)]
        prep = lambda i: self.aprep(*sets[i], Q + 4 * (i % 2))
        def hook(p):
            if p == ('u', 0):
                for n in (73, 74, 75): self.load(1, n, False, self.kreg(0, 0) + 4 * (n - 72))
            if p == ('u', 1):
                for n in (76, 77, 78, 79): self.load(1, n, False)
            if p[0] == 'u' and 2 <= p[1] < 6:
                for n in (52 + 2 * p[1], 53 + 2 * p[1]): self.need_vm((1, n)); self.copy(1, 0, 2, n)
            if p == ('p', 7):
                self.need_vm(('cp', 'q1')); self.need_lds('p')
                for x in prep(0)[:2]: a(x)
            if p == ('p', 8):
                for x in prep(0)[2:]: a(x)
        self.qk_part(0, hook, part=1, tb=16)
        for i, (k, P) in enumerate(sets):
            fill = self.epi_pre() if i == 4 else prep(i + 1)
            if i == 4:
                for x in fill: a(x)
                fill = []
            for t in range(4):
                b, tags = self.bop(1, 0, 2, k, P, t)
                if i < 2: self.need_vm((1, 64 + 4 * i + t)); self.copy(1, 0, 2, 64 + 4 * i + t)
                if (i, t) == (2, 0): self.need_vm((1, 72)); self.copy(1, 0, 2, 72)
                if i == 4: self.need_vm((1, 73 + 2 * t))
                for tg in tags: self.need_lds(tg)
                a(f'v_smfmac_f32_16x16x64_bf16 {vr(AC + 4 * t, 4)}, {vr(Q + 4 * (i % 2), 4)}, {rr(b, 8)}, v{self.vIP}')
                n = (len(fill) + (3 - t)) // (4 - t)
                got = fill[:n]; fill = fill[n:]
                for x in got: a(x)
                if (i, t) == (4, 2) and self.lst > 1:
                    for x in self.merge(0): a(x)
        for x in (self.merge(0) if self.lst == 1 else []) + self.merge(2): a(x)
        self.epilogue(0, 1)
        self.stamp(16, 's49')
        for n in range(72, 76): self.ds(f'ds_read_b128 {ar(4 * (n - 72), 4)}, v{self.vDs} offset:{self.ldsslot(0, n) * 1024}', ('c', n))
        for j in range(8): self.copy(0, 0, 0, 56 + j); self.copy(0, 0, 0, 64 + j)
        self.qk_part(0, lambda p: None, part=2)
        sets = [(0, 0), (0, 1), (2, 0), (1, 0), (1, 1)]
        lred = self.lred()
        def prep(i):
            k, P = sets[i]
            return (self.pack(k) if P == 0 else []) + self.aprep(k, P, Q + 4 * (i % 2))
        for x in prep(0): a(x)
        for i, (k, P) in enumerate(sets):
            fill = prep(i + 1) if i + 1 < len(sets) else []
            if i == len(sets) - 1:
                fill = lred + self.epi_pre(); lred = []
            for t in range(4):
                b, tags = self.bop(0, 0, 0, k, P, t)
                if k == 2 and t < 2: b = 256 + 8 * t
                for tg in tags: self.need_lds(tg)
                a(f'v_smfmac_f32_16x16x64_bf16 {vr(AC + 4 * t, 4)}, {vr(Q + 4 * (i % 2), 4)}, {rr(b, 8)}, v{self.vIP}')
                n = (len(fill) + (3 - t)) // (4 - t)
                got = fill[:n]; fill = fill[n:]
                if len(got) < 2 and lred: got.append(lred.pop(0))
                for x in got: a(x)
        for x in self.merge(0) + self.merge(2): a(x)
        self.epilogue(1, 1)
        self.stamp(11, 's49')
        a('s_add_u32 s49, s49, 1'); self.nextP(); a('s_add_u32 s46, s56, 8192')
        a('s_barrier')
    def final(self):
        a = self.a; Q = self.vQ; AC = self.vAcc; T = self.vT; m = self.vMC; L = self.vL
        self.lq = []; self.vmq = []
        def fb(k, P, t): return 256 + 64 + 8 * (4 * P + t) if k == 1 else self.bop(1, 0, 2, k, P, t)[0]
        for n in range(56, 72):
            a(f'ds_read_b128 {rr(256 + 64 + 8 * ((n - 56) % 8) + 4 * ((n - 56) // 8), 4)}, v{self.vDs} offset:{self.ldsslot(1, n) * 1024}')
        KA = 96; A = [136, 140, 144]; PT = 148
        for z in self.zero_acc(): a(z)
        if self.fin > 1:
            for r in range(0, 40, 2): a(f'v_mov_b64 {vr(KA + r, 2)}, 0')
            a(f'v_cmp_gt_u32 s[40:41], s23, v{self.vBias}'); a(f's_mov_b32 s42, 0x{f2u(2.0 ** 40 if self.fin == 2 else 0.0):x}')
            a('v_mov_b32 v23, 0xff800000'); a(f'v_mov_b32 v{m}, 0')
            if self.mz: a(f's_mov_b32 s43, 0x{f2u(2.0 ** -40):x}'); a(f's_mov_b32 s42, 0x{(80 << 23) if self.fin == 2 else (46 << 23) + (1 << 22) if self.fin == 4 else 0:x}')
        a.label('L_Fpoll')
        self.timeout()
        self.qload()
        a('s_waitcnt vmcnt(0) lgkmcnt(0)')
        self.maxtree(range(Q, Q + 8), 18)
        a('s_cbranch_vccnz L_Fpoll')
        self.stamp(6, 's49')
        self.ck = 1; self.clk()
        def pv(A_, k, P, t): return f'v_smfmac_f32_16x16x64_bf16 {vr(AC + 4 * t, 4)}, {vr(A_, 4)}, {rr(fb(k, P, t), 8)}, v{self.vIP}'
        if self.fin > 1:
            M = []
            for u in range(10):
                for h in range(2): M.append(f'v_smfmac_f32_16x16x64_bf16 {vr(KA + 4 * u, 4)}, {vr(Q + 4 * h, 4)}, {rr(self.kreg(1, u) + 8 * h, 8)}, v{self.vIQ}')
            M += [pv(A[0], 0, 0, t) for t in range(4)] + [pv(A[1], 0, 1, t) for t in range(4)] + [pv(A[0], 1, 0, t) for t in range(4)]
            for t in range(4): M += [pv(A[1], 1, 1, t), pv(A[2], 2, 0, t)]
            G = [[] for _ in M]
            def put(g, ops, per=1):
                for i, x in enumerate(ops): G[g + i // per].append(x)
            for u in range(10):
                ac = KA + 4 * u; t = PT + 2 * (u % 2)
                put(2 * u + 4, [f'v_add_f32 v{t+1}, v{ac+1}, v{ac+3}', f'v_add_f32 v{t}, v{ac}, v{ac+2}'], 2)
                put(2 * u + 5, [f'v_add_f32_dpp v{T + u // 4}, v{t+1}, v{t} quad_perm:[1,1,3,3] row_mask:0x{1 << (u % 4):x} bank_mask:0xf'])
            if not self.mz: put(5, [f'v_add_f32_dpp v{m}, v{PT+1}, v{PT} quad_perm:[1,1,3,3] {FULL}',
                    f'v_max_f32_dpp v{m}, v{m}, v{m} quad_perm:[2,3,0,1] {FULL}', f'v_max_f32_dpp v{m}, v{m}, v{m} row_ror:4 {FULL}',
                    f'v_max_f32_dpp v{m}, v{m}, v{m} row_ror:8 {FULL}', f'v_mul_f32 v{m}, s51, v{m}'])
            ex = lambda k: [f'v_fma_f32 v{T+k}, v{T+k}, s51, -v{m}', f'v_exp_f32 v{T+k}, v{T+k}']
            put(11, ex(0)); put(13, self.pack(0)[:2], 2); put(14, self.pack(0)[2:]); put(15, self.aprep(0, 0, A[0]), 2)
            put(17, self.aprep(0, 1, A[1])[:2], 2); put(18, self.aprep(0, 1, A[1])[2:])
            put(19, ex(1)); put(21, self.pack(1)[:2], 2); put(22, self.pack(1)[2:])
            put(23, [f'v_cndmask_b32 v{T+2}, v23, v{T+2}, s[40:41]'] + ex(2)[:1], 2); put(24, ex(2)[1:])
            put(24, self.aprep(1, 0, A[0]), 2); put(25, self.pack(2)[:1]); put(26, self.pack(2)[1:3], 2); put(27, self.pack(2)[3:4]); put(28, self.pack(2)[4:])
            put(28, self.aprep(1, 1, A[1]), 2); put(30, self.aprep(2, 0, A[2]), 2)
            lr = self.lred()
            put(26, lr[:2]); put(29, lr[2:5]); put(32, lr[5:6]); put(33, lr[6:9], 3); put(34, lr[9:], 2)
            put(32, self.epi_pre()[:2], 2); put(35, [f'v_subrev_u32 v23, s43, v{L}', 'v_cmp_lt_u32 vcc, s42, v23'] if self.mz else [f'v_cmp_lt_f32 vcc, s42, v{L}'], 2); put(35, self.epi_pre()[2:4], 2)
            put(36, ['s_bitcmp1_b32 vcc_lo, 0', 's_cbranch_scc1 L_Fslow'] + self.epi_pre()[4:], 3)
            put(37, self.merge(0), 3)
            for x, g in zip(M, G):
                a(x)
                for y in g: a(y)
            for x in self.merge(2): a(x)
            a.label('L_Fepi')
            self.clk()
            self.epilogue(1, 0, self.vH)
            self.clk()
            if self.cyc:
                for i in range(self.ck - 1): self.stamp(44 + i, src=f's{self.CKR[i]}')
            self.ck = 0
            a('s_branch L_fin')
            a.label('L_Fslow'); a('s_nop 8')
            for z in self.zero_acc(): a(z)
        self.qk_part(1, lambda p: None)
        sets = [(0, 0), (2, 0), (0, 1), (1, 0), (1, 1)]
        lred = self.lred()
        def prep(i):
            k, P = sets[i]
            return (self.pack(k) if P == 0 else []) + self.aprep(k, P, Q + 4 * (i % 2))
        for x in prep(0): a(x)
        for i, (k, P) in enumerate(sets):
            fill = prep(i + 1) if i + 1 < len(sets) else []
            if i == len(sets) - 1:
                fill = lred + self.epi_pre(); lred = []
            for t in range(4):
                a(pv(Q + 4 * (i % 2), k, P, t))
                n = (len(fill) + (3 - t)) // (4 - t)
                got = fill[:n]; fill = fill[n:]
                if len(got) < 2 and lred: got.append(lred.pop(0))
                for x in got: a(x)
        for x in self.merge(0) + self.merge(2): a(x)
        if self.fin > 1: a('s_branch L_Fepi')
        else:
            self.clk()
            self.epilogue(1, 0, self.vH)
            self.clk()
            if self.cyc:
                for i in range(self.ck - 1): self.stamp(44 + i, src=f's{self.CKR[i]}')
            self.ck = 0
            a('s_branch L_fin')
    def share(self):
        a = self.a; F = self.fx2
        if not F: return
        a('s_add_u32 s35, s35, 1'); a(f's_mov_b32 s25, {F[0][1]}'); a('s_mul_i32 s24, s35, s25')
        b = 0
        for (n0, r0), (n1, r1) in zip(F, F[1:]):
            b += n0
            a(f's_sub_i32 s39, s35, {b}'); a('s_max_i32 s33, s39, 0'); a(f's_mul_i32 s33, s33, {r0 - r1}'); a('s_sub_u32 s24, s24, s33')
            a('s_cmp_ge_i32 s39, 0'); a(f's_cselect_b32 s25, {r1}, s25')
        a('s_lshl_b32 s24, s24, 9'); a('s_add_u32 s24, s24, s21'); a('s_add_u32 s21, s21, 0x2000000')
    def armS(self):
        a = self.a
        if not self.nocl: a('s_waitcnt vmcnt(8)')
        self.confirm(24, 20)
        if not self.oarm and 'N' not in self.wb and not self.la and not self.ja: self.armP('sc1' + self.N('a'))
        self.stamp(30, None, 24)
    def nextP(self):
        if not (self.ja and self.ja[0]): self.a(f's_add_u32 s47, s47, {PIB}')
    def armP(self, pol):
        a = self.a
        a('v_lshl_add_u32 v18, v0, 19, s48'); a('v_mov_b64 v[20:21], -1'); a('v_mov_b64 v[22:23], -1')
        a('s_lshl_b32 s38, s3, 20'); a('s_add_u32 s38, s38, s47'); a(f's_add_u32 s39, s38, {PP2}')
        a(f'buffer_store_dwordx4 v[20:23], v{self.vL16}, {WS}, s39 offen {pol}')
        a('s_mov_b64 exec, 3')
        a(f'buffer_store_dwordx2 v[20:21], v18, {WS}, s38 offen ' + (pol if self.N('M') else 'sc1' + self.N('a')))
        a('s_cmp_lg_u32 s3, 0'); a('s_cselect_b64 exec, -1, 0')
        a(f'buffer_store_dwordx4 v[20:23], v{self.vL16}, {WS}, s38 offen {pol}')
        a('s_mov_b64 exec, -1')
    def qk_part(self, ds_, hook, zero=True, part=3, tb=18):
        a = self.a; T = self.vT; Q = self.vQ; AC = self.vAcc
        def post_a(u):
            ac = AC + 4 * (u % 4); t = tb + 2 * (u % 2)
            a(f'v_add_f32 v{t+1}, v{ac+1}, v{ac+3}'); a(f'v_add_f32 v{t}, v{ac}, v{ac+2}')
        def post_b(u):
            t = tb + 2 * (u % 2)
            a(f'v_add_f32_dpp v{T + u // 4}, v{t+1}, v{t} quad_perm:[1,1,3,3] row_mask:0x{1 << (u % 4):x} bank_mask:0xf')
        for u in range(10 if part & 1 else 0):
            ac = AC + 4 * (u % 4); k = self.kreg(ds_, u)
            a(f'v_smfmac_f32_16x16x64_bf16 {vr(ac, 4)}, {vr(Q, 4)}, {rr(k, 8)}, v{self.vIQ}')
            if u >= 3: post_a(u - 3)
            a(f'v_smfmac_f32_16x16x64_bf16 {vr(ac, 4)}, {vr(Q + 4, 4)}, {rr(k + 8, 8)}, v{self.vIQ}')
            if u >= 3: post_b(u - 3)
            hook(('u', u))
        zf = [f'v_mov_b32 v{AC + r}, 0' for r in list(range(8, 16)) + list(range(8))] if zero else []
        def Z(n=2):
            for _ in range(n):
                if zf: a(zf.pop(0))
        if part == 1:
            z2 = [f'v_mov_b64 {vr(AC + r, 2)}, 0' for r in (8, 10, 12, 14, 0, 2, 4, 6)]
            post_a(7); a(z2[0]); a(z2[1]); post_b(7); hook(('p', 7)); post_a(8); a(z2[2]); a(z2[3]); post_b(8); hook(('p', 8)); post_a(9); a(z2[4]); a(z2[5]); post_b(9); a(z2[6]); a(z2[7])
            return
        a(f'v_cmp_gt_u32 vcc, s{22 + ds_}, v{self.vBias}'); a('v_mov_b32 v23, 0xff800000')
        if part & 1: post_a(7); Z(1); post_b(7); Z(3); post_a(8); Z(1); post_b(8); Z(2); post_a(9); Z(1); post_b(9)
        else: Z(8)
        m = self.vMC; t = 18
        a(f'v_sub_f32 v{T+2}, v{T+2}, v{T+1}'); a(f'v_sub_f32 v{T+1}, v{T+1}, v{T}')
        a(f'v_cndmask_b32 v{T+2}, v23, v{T+2}, vcc')
        a(f'v_max3_f32 v{m}, v{T}, v{T+1}, v{T+2}'); Z()
        a(f'v_max_f32_dpp v{m}, v{m}, v{m} quad_perm:[2,3,0,1] {FULL}'); Z()
        a(f'v_max_f32_dpp v{m}, v{m}, v{m} row_ror:4 {FULL}'); Z()
        a(f'v_max_f32_dpp v{t}, v{m}, v{m} row_ror:8 {FULL}')
        a(f'v_max_f32_dpp v{m}, v{m}, v{m} row_ror:8 {FULL}'); Z()
        a(f'v_permlane16_swap_b32 v{m}, v{t}'); a(f'v_max_f32 v{t+1}, v{m}, v{t}'); a(f'v_max_f32 v{m}, v{m}, v{t}'); Z(8)
        a(f'v_permlane32_swap_b32 v{m}, v{t+1}'); a(f'v_max_f32 v{m}, v{m}, v{t+1}')
        a(f'v_mul_f32 v{m}, s51, v{m}')
        if self.mz:
            a(f'v_cmp_lt_f32 vcc, s50, abs(v{m})'); a(f'v_cndmask_b32 v{m}, 0, v{m}, vcc')
        for k in (0, 2, 1): a(f'v_fma_f32 v{T+k}, v{T+k}, s51, -v{m}')
        for k in (0, 2, 1): a(f'v_exp_f32 v{T+k}, v{T+k}')
        hook(('x', 0))
    def pack(self, k):
        T = self.vT
        o = [f'v_mov_b32_dpp v18, v{T+k} quad_perm:[0,0,0,0] {FULL}',
             f'v_mov_b32_dpp v19, v{T+k} quad_perm:[2,2,2,2] {FULL}',
             f'v_cvt_pk_bf16_f32 v{20+k}, v18, v19']
        if k == 2: o += [f'v_mov_b32_dpp v0, v22 row_shl:4 {FULL}', 'v_permlane32_swap_b32 v22, v0']
        return o
    def aprep(self, k, P, A):
        pp = 20 + k; M = self.vM
        if P == 0:
            return [f'v_and_b32 v{A}, v{pp}, v{M}', f'v_and_b32 v{A+2}, v{pp}, v{M+2}',
                    f'v_and_b32_dpp v{A+1}, v{pp}, v{M+1} row_shr:4 {FULL} bound_ctrl:0',
                    f'v_and_b32_dpp v{A+3}, v{pp}, v{M+3} row_shr:4 {FULL} bound_ctrl:0']
        return [f'v_and_b32 v{A+1}, v{pp}, v{M+1}', f'v_and_b32 v{A+3}, v{pp}, v{M+3}',
                f'v_and_b32_dpp v{A}, v{pp}, v{M} row_shl:4 {FULL} bound_ctrl:0',
                f'v_and_b32_dpp v{A+2}, v{pp}, v{M+2} row_shl:4 {FULL} bound_ctrl:0']
    def lred(self):
        L = self.vL; T = self.vT
        return [f'v_add_f32 v{L}, v{T}, v{T+1}',
                f'v_add_f32 v{L}, v{T+2}, v{L}',
                f'v_add_f32_dpp v{L}, v{L}, v{L} quad_perm:[2,3,0,1] {FULL}',
                f'v_add_f32_dpp v{L}, v{L}, v{L} row_ror:4 {FULL}',
                f'v_add_f32_dpp v{L}, v{L}, v{L} row_ror:8 {FULL}',
                f'v_mov_b32 v23, v{L}', f'v_permlane16_swap_b32 v{L}, v23', f'v_add_f32 v{L}, v{L}, v23',
                f'v_mov_b32 v23, v{L}', f'v_permlane32_swap_b32 v{L}, v23', f'v_add_f32 v{L}, v{L}, v23']
    def merge(self, t0):
        AC = self.vAcc; o = []
        for r in range(4): o.append(f'v_permlane32_swap_b32 v{AC + 4*t0 + r}, v{AC + 4*t0 + 4 + r}')
        for r in range(4):
            if t0 == 0: o.append(f'v_add_f32_dpp v{AC + r}, v{AC + 4 + r}, v{AC + r} row_ror:8 row_mask:0xf bank_mask:0x3')
            else: o.append(f'v_add_f32_dpp v{AC + r}, v{AC + 8 + r}, v{AC + 12 + r} row_ror:8 row_mask:0xf bank_mask:0xc')
        return o
    def staddr(self):
        return [f'v_lshrrev_b32 v18, 6, v{self.vL16}', 'v_lshl_add_u32 v18, v18, 4, s57']
    def qk1(self, s, LP, wait):
        a = self.a; Q = self.vQ
        def hook(p):
            for x in LP.get(p, []): self.load(*x, wait=wait)
        a(f'v_add_u32 v18, s53, v{self.vQo}')
        self.ds(f'ds_read_b128 {vr(Q, 4)}, v18', 'q'); self.ds(f'ds_read_b128 {vr(Q + 4, 4)}, v18 offset:256', 'q')
        for z in self.zero_acc(): a(z)
        self.need_lds('q')
        self.qk_part(s, hook, zero=False)
        pk = self.pack(0) + self.pack(2) + self.pack(1); lr = self.lred()
        while pk or lr:
            if lr: a(lr.pop(0))
            if pk: a(pk.pop(0))
        for x in self.staddr(): a(x)
        a('v_mov_b32 v19, s55')
        a('ds_write_b96 v18, v[20:22]')
        a('s_mov_b64 exec, 1')
        a(f'ds_write_b64 v19, {vr(self.vMC, 2)} offset:{self.MA1[s]}')
        a('s_mov_b64 exec, -1')
        hook(('e', 0))
    def cdst(self, fs, cu0, pi):
        if pi >= 2: pi += 2
        return self.kreg(fs, pi // 2) + 8 * (pi % 2)
    def copy(self, ds_, fs, cu0, n):
        if n >= 72: pi, half = (n - 72) // 2, (n - 72) % 2
        else: pi, half = 2 + (n - 56) % 8, (n - 56) // 8
        self.ds(f'ds_read_b128 {rr(self.cdst(fs, cu0, pi) + 4 * half, 4)}, v{self.vDs} offset:{self.ldsslot(ds_, n) * 1024}', ('c', n))
    def bop(self, ds_, fs, cu0, U, P, t):
        if U == 0: return self.vreg0(ds_, P, t), []
        if U == 1: return self.cdst(fs, cu0, 2 + 4 * P + t), [('c', 56 + 4 * P + t), ('c', 64 + 4 * P + t)]
        if t < 2: return self.cdst(fs, cu0, t), [('c', 72 + 2 * t), ('c', 73 + 2 * t)]
        if cu0: return self.kreg(fs, 1) + 8 * (t - 2), []
        return self.vH + 8 * (t - 2), []
    def pass2(self, s, LP):
        a = self.a; ds_ = 1 - s; Q = self.vQ; AC = self.vAcc
        cplan = {0: [72, 73, 74, 75], 2: [56, 64, 57, 65], 3: [58, 66, 59, 67], 4: [60, 68], 5: [61, 69], 6: [62, 70], 7: [63, 71]}
        def hook(p):
            for n in LP.get(p, []):
                if n == 73: self.need_lds(('c', 75))
                if n < 40: assert p[0] != 'u' or p[1] > self.ORD[n] // 4
                self.load(s if n >= 40 else ds_, n, wait=False)
            if p == ('u', 6): self.share()
            if p[0] == 'u':
                for n in cplan.get(p[1], []): self.copy(ds_, ds_, 0, n)
        self.qk_part(ds_, hook)
        sets = [(0, 0), (2, 0), (0, 1), (1, 0), (1, 1)]
        lred = self.lred()
        def prep(i):
            k, P = sets[i]
            return (self.pack(k) if P == 0 else []) + self.aprep(k, P, Q + 4 * (i % 2))
        self.need_vm(('cp', 'q1'))
        for x in prep(0): a(x)
        for i, (k, P) in enumerate(sets):
            fill = prep(i + 1) if i + 1 < len(sets) else []
            if i == len(sets) - 1:
                fill = lred + self.epi_pre(); lred = []
            for t in range(4):
                b, tags = self.bop(ds_, ds_, 0, k, P, t)
                for tg in tags: self.need_lds(tg)
                a(f'v_smfmac_f32_16x16x64_bf16 {vr(AC + 4 * t, 4)}, {vr(Q + 4 * (i % 2), 4)}, {rr(b, 8)}, v{self.vIP}')
                n = (len(fill) + (3 - t)) // (4 - t)
                got = fill[:n]; fill = fill[n:]
                if len(got) < 2 and lred: got.append(lred.pop(0))
                for x in got: a(x)
            hook(('i', i))
        for x in self.merge(0) + self.merge(2): a(x)
        hook(('m', 0))
        self.epilogue(1, s)
    def epi_pre(self):
        return [f'v_add_u32 v18, s54, v{self.vL16}', 'v_mov_b32 v19, s55', 'v_mov_b32 v20, 1', 'v_mov_b32 v21, 0', 'v_mov_b32 v22, s48']
    def pv1f(self, s):
        a = self.a; fs = 1 - s; Q = self.vQ; AC = self.vAcc
        self.xst = 2
        if self.fx2: a(f's_mov_b32 s{22 + fs}, s25'); self.stamp(40, 's49', 18, 's35')
        def hook(p):
            for n in self.p1l.get(p, []): self.load(fs, n, wait=False)
        for x in self.staddr(): a(x)
        self.ds('ds_read_b96 v[20:22], v18', 'p')
        hook('a')
        for z in self.zero_acc(): a(z)
        self.need_vm((s, 71))
        for n in [56, 64, 57, 65, 58, 66, 59, 67]: self.copy(s, fs, 2, n)
        self.need_lds('p')
        sets = [(0, 0), (0, 1), (1, 0), (1, 1), (2, 0)]
        prep = lambda i: self.aprep(*sets[i], Q + 4 * (i % 2))
        for x in prep(0): a(x)
        for i, (k, P) in enumerate(sets):
            last = (i == len(sets) - 1)
            fill = self.epi_pre() if last else prep(i + 1)
            if i == 1:
                for n in [60, 68, 61, 69, 62, 70, 63, 71]: self.copy(s, fs, 2, n)
            hook(str(i))
            for t in range(4):
                b, tags = self.bop(s, fs, 2, k, P, t)
                if last:
                    if t == 0:
                        self.need_vm((s, 73)); self.copy(s, fs, 2, 72); self.copy(s, fs, 2, 73)
                        self.need_vm((s, 75)); self.copy(s, fs, 2, 74); self.copy(s, fs, 2, 75)
                        for x in fill: a(x)
                        fill = []
                    if t == 2: self.need_vm((s, 77))
                    if t == 3: self.need_vm((s, 79))
                for tg in tags: self.need_lds(tg)
                a(f'v_smfmac_f32_16x16x64_bf16 {vr(AC + 4 * t, 4)}, {vr(Q + 4 * (i % 2), 4)}, {rr(b, 8)}, v{self.vIP}')
                n = (len(fill) + (3 - t)) // (4 - t)
                got = fill[:n]; fill = fill[n:]
                for x in got: a(x)
        self.xst = 0
        for x in self.merge(0) + self.merge(2): a(x)
        hook('m')
        self.epilogue(0, s)
        self.stamp(16, 's49')
        for i in range(8): a(f'v_mov_b64 {vr(self.vH + 2 * i, 2)}, {vr(self.kreg(fs, 1) + 2 * i, 2)}')
    def epilogue(self, p2, s, Zr=None):
        a = self.a; Q = self.vQ; AC = self.vAcc; m = self.vMC; L = self.vL
        CA = self.CA[p2]; MA = self.MA[1] if p2 else self.MA1[s]; CO = self.CO[p2]
        Zr = Zr or self.kreg(1 - s, 2)
        a(f'ds_write_b128 v18, {vr(AC, 4)} offset:{CA}')
        a('s_mov_b64 exec, 1')
        if p2: a(f'ds_write_b64 v19, {vr(self.vMC, 2)} offset:{MA}')
        a(f'ds_add_rtn_u32 v20, v21, v20 offset:{CO}')
        a('s_mov_b64 exec, -1')
        a(f'ds_read_b128 {vr(Q, 4)}, v21 offset:{MA}'); a(f'ds_read_b128 {vr(Q + 4, 4)}, v21 offset:{MA + 16}')
        for w in range(4): a(f'ds_read_b128 {vr(Zr + 4 * w, 4)}, v{self.vL16} offset:{CA + 1024 * w}')
        if p2 and self.ja and self.ja[0]: a(f's_add_u32 s38, s47, {PP2 + (1 - s) * PIB}')
        elif p2: a(f's_sub_u32 s38, s47, {PIB - PP2}')
        else: a('s_mov_b32 s38, s47')
        dual = self.home and p2 != s
        if dual: a('s_add_u32 s33, s38, 0x2000'); a(f's_cmp_eq_u32 s49, {3 + p2}'); a(f's_cselect_b32 s33, s33, 0x{OOB:x}')
        a('s_waitcnt lgkmcnt(6)')
        self.clk()
        a('v_readfirstlane_b32 s39, v20'); a('s_and_b32 s39, s39, 3'); a('s_cmp_eq_u32 s39, 3')
        if p2: a('s_cselect_b32 s58, 1, 0')
        elif self.bst: a('s_mov_b32 s26, s59'); a(f's_cselect_b32 s59, {self.bst[0]}, {"s59" if len(self.bst) < 3 else self.bst[2]}')
        l = self.lab('L_nl'); a(f's_cbranch_scc0 {l}')
        a('s_waitcnt lgkmcnt(4)')
        def st(text, pre=None):
            assert self.loc
            x = self.lab('L_ls'); y = self.lab('L_ls')
            a(f's_cbranch_scc1 {x}')
            if pre: a(pre)
            a(text + ' sc1'); a(f's_branch {y}'); a.label(x); a(text); a.label(y)
        if self.mz:
            g = self.lab('L_gen'); j = self.lab('L_join')
            a(f'v_or3_b32 v{m}, v{Q}, v{Q+2}, v{Q+4}'); a(f'v_add_f32 v{L}, v{Q+1}, v{Q+3}'); a(f'v_or_b32 v{m}, v{m}, v{Q+6}'); a(f'v_add_f32 v23, v{Q+5}, v{Q+7}')
            a(f'v_cmp_eq_u32 vcc, 0, v{m}'); a(f'v_add_f32 v{L}, v{L}, v23'); a(f's_cbranch_vccz {g}')
            a('s_waitcnt lgkmcnt(2)')
            for hf in range(2): a(f'v_pk_add_f32 {vr(AC + 2*hf, 2)}, {vr(Zr + 2*hf, 2)}, {vr(Zr + 4 + 2*hf, 2)}')
            a('s_waitcnt lgkmcnt(0)')
            for hf in range(2): a(f'v_pk_add_f32 {vr(Zr + 2*hf, 2)}, {vr(Zr + 8 + 2*hf, 2)}, {vr(Zr + 12 + 2*hf, 2)}')
            for hf in range(2): a(f'v_pk_add_f32 {vr(AC + 2*hf, 2)}, {vr(AC + 2*hf, 2)}, {vr(Zr + 2*hf, 2)}')
            a.label(j)
            a(f's_cmp_eq_u32 s27, {NCHAIN + 1}')
            for r in range(4): a(f'v_min_u32 v{AC + r}, -2, v{AC + r}')
            a(f'v_and_b32 v{L}, -2, v{L}')
            x = self.lab('L_ls')
            a(f's_cbranch_scc0 {x}')
            a(f'buffer_store_dwordx4 {vr(AC, 4)}, v{self.vL16}, {WS}, s38 offen' + self.N('p'))
            a('s_mov_b64 exec, 1')
            a(f'buffer_store_dwordx2 {vr(m, 2)}, v22, {WS}, s38 offen' + self.N('m'))
            a('s_mov_b64 exec, -1')
            def rare():
                a.label(x)
                a(f'buffer_store_dwordx4 {vr(AC, 4)}, v{self.vL16}, {WS}, s38 offen sc1')
                a(f'v_or_b32 v{L}, s4, v{L}')
                a('s_mov_b64 exec, 1')
                a(f'buffer_store_dwordx2 {vr(m, 2)}, v22, {WS}, s38 offen sc1')
                a('s_mov_b64 exec, -1')
                a(f's_branch {l}')
                a.label(g)
                a(f'v_max3_f32 v{m}, v{Q}, v{Q+2}, v{Q+4}'); a(f'v_max_f32 v{m}, v{m}, v{Q+6}')
                for w in range(4): a(f'v_sub_f32 v{Q+2*w}, v{Q+2*w}, v{m}')
                for w in range(4): a(f'v_exp_f32 v{Q+2*w}, v{Q+2*w}')
                a(f'v_mul_f32 v{L}, v{Q}, v{Q+1}')
                for w in range(1, 4): a(f'v_fmac_f32 v{L}, v{Q+2*w}, v{Q+2*w+1}')
                a(f'v_min_u32 v{m}, -2, v{m}')
                a('s_waitcnt lgkmcnt(0)')
                for w in range(4):
                    for hf in range(2):
                        if w == 0: a(f'v_pk_mul_f32 {vr(AC + 2*hf, 2)}, {vr(Zr + 2*hf, 2)}, {vr(Q, 2)} op_sel_hi:[1,0]')
                        else: a(f'v_pk_fma_f32 {vr(AC + 2*hf, 2)}, {vr(Zr + 4*w + 2*hf, 2)}, {vr(Q + 2*w, 2)}, {vr(AC + 2*hf, 2)} op_sel_hi:[1,0,1]')
                a(f's_branch {j}')
            self.later.append(rare)
            a.label(l)
            a('s_waitcnt lgkmcnt(0)'); self.lq = []
            return
        a(f'v_max3_f32 v{m}, v{Q}, v{Q+2}, v{Q+4}'); a(f'v_max_f32 v{m}, v{m}, v{Q+6}')
        for w in range(4): a(f'v_sub_f32 v{Q+2*w}, v{Q+2*w}, v{m}')
        for w in range(4): a(f'v_exp_f32 v{Q+2*w}, v{Q+2*w}')
        a(f'v_mul_f32 v{L}, v{Q}, v{Q+1}')
        for w in range(1, 4): a(f'v_fmac_f32 v{L}, v{Q+2*w}, v{Q+2*w+1}')
        a(f'v_min_u32 v{m}, -2, v{m}'); a(f'v_and_b32 v{L}, -2, v{L}')
        a(f's_cmp_eq_u32 s27, {NCHAIN + 1}')
        a('s_mov_b64 exec, 1')
        st(f'buffer_store_dwordx2 {vr(m, 2)}, v22, {WS}, s38 offen', f'v_or_b32 v{L}, s4, v{L}')
        if dual: a(f'buffer_store_dwordx2 {vr(m, 2)}, v22, {WS}, s33 offen sc1')
        a('s_mov_b64 exec, -1')
        a('s_waitcnt lgkmcnt(0)')
        for w in range(4):
            for hf in range(2):
                if w == 0: a(f'v_pk_mul_f32 {vr(AC + 2*hf, 2)}, {vr(Zr + 2*hf, 2)}, {vr(Q, 2)} op_sel_hi:[1,0]')
                else: a(f'v_pk_fma_f32 {vr(AC + 2*hf, 2)}, {vr(Zr + 4*w + 2*hf, 2)}, {vr(Q + 2*w, 2)}, {vr(AC + 2*hf, 2)} op_sel_hi:[1,0,1]')
        for r in range(4): a(f'v_min_u32 v{AC + r}, -2, v{AC + r}')
        st(f'buffer_store_dwordx4 {vr(AC, 4)}, v{self.vL16}, {WS}, s38 offen')
        if dual: a(f'buffer_store_dwordx4 {vr(AC, 4)}, v{self.vL16}, {WS}, s33 offen sc1')
        a.label(l)
        a('s_waitcnt lgkmcnt(0)'); self.lq = []

    RING0 = 8192
    vGO2, vTR, vOOB, vDO, vX0O, vGO, vXR, vXW, vRES = 8, 9, 10, 11, 12, 13, 14, 15, 16
    vAC, vCS, vQS, vRO, vPO, vPO2, vMLO, vOW, vDQ, vX0 = 32, 36, 38, 39, 40, 41, 42, 43, 44, 45
    def vm(self, text, tag=None):
        self.a(text); self.cq.append(tag)
    def vmwait(self, tag):
        if tag in self.cq:
            i = len(self.cq) - 1 - self.cq[::-1].index(tag)
            k = len(self.cq) - 1 - i
            assert k <= 63
            self.a(f's_waitcnt vmcnt({k})'); self.cq = self.cq[i + 1:]
    def arm(self, q=False):
        a = self.a
        if not self.nocl: self.vmwait('init')
        self.confirm(self.vCL, 28)
        for r in range(20, 24): a(f'v_mov_b32 v{r}, -1')
        a('s_lshl2_add_u32 s38, s8, s3'); a('s_mul_i32 s38, s38, 4608'); a(f's_add_u32 s38, s38, 0x{YOFF:x}')
        if 'C' in self.wb: a(f's_mov_b32 s38, 0x{OOB:x}')
        for i in range(5): self.vm(f'buffer_store_dwordx4 v[20:23], v1, {WS}, s38 offen offset:{min(i * 1024, 3584)} sc1' + self.N('c'), 'arm')
        if q:
            self.bits('v28', 'v0', 'v29', [(0, 5, 4), (5, 1, 13)])
            a('s_lshl_b32 s38, s8, 9'); a('s_lshl_b32 s39, s3, 14'); a('s_add_u32 s39, s39, s38')
            self.vm(f'buffer_store_dwordx4 v[20:23], v28, {WS}, s39 offen sc1' + self.N('c'), 'arm')
        else:
            self.pquad('s38'); a('s_lshl_b32 s39, s8, 15'); a('s_add_u32 s38, s38, s39'); a(f's_add_u32 s38, s38, 0x{POFF - 16 * PB:x}')
            if 'D' in self.wb: a(f's_mov_b32 s38, 0x{OOB:x}')
            for i in range(4): self.vm(f'buffer_store_dwordx4 v[20:23], v1, {WS}, s38 offen offset:{i * 1024} sc1' + self.N('c'), 'arm')
    def pquad(self, d):
        self.a(f's_and_b32 {d}, s3, 2'); self.a(f's_add_u32 {d}, {d}, s3'); self.a(f's_lshl_b32 {d}, {d}, 12')
    def announce(self, bar=True):
        a = self.a
        if bar: self.vmwait('arm'); a('s_barrier')
        assert 'arm' not in self.cq
        self.signal(28, 29, self.CNTA, 's9')
        self.stamp(21, None, 30)
    def chain_common(self):
        a = self.a
        a('s_lshl4_add_u32 s2, s38, s36'); a('s_mov_b32 s8, s2'); a('s_mov_b32 s9, s5'); a('s_mov_b32 s10, 0')
        if self.diag: a('s_mov_b32 s61, s2'); self.diagbase()
        a('v_lshlrev_b32 v1, 4, v0')
        self.bits('v2', 'v0', 'v6', [(0, 1, 4), (4, 2, 5)])
        self.bits('v4', 'v0', 'v6', [(1, 1, 0), (3, 1, 2), (2, 1, 3)])
        a('s_lshl_b32 s98, s3, 13'); a(f's_add_u32 s98, s98, {self.RING0}'); a('s_movk_i32 s99, 1024')
        a('s_mul_i32 s32, s3, 7168'); a(f's_add_u32 s32, s32, {self.RING0}')
        self.claim(28, 29, self.vCL)
        self.srd(16, 86, 0x20000000)
        self.stamp(0, None, 30)
        a('s_cmp_lt_u32 s2, 16'); a('s_cbranch_scc1 L_roleOQ')
        self.cq = ['init']
        if self.wtlb:
            lo = 30 if self.wtlb == 1 else 16; nw = 4 * (32 - lo)
            a(f's_cmp_lt_u32 s2, {lo}'); a('s_cbranch_scc1 L_notlb')
            a('v_lshlrev_b32 v6, 12, v0'); a(f's_sub_u32 s33, s2, {lo}'); a('s_lshl2_add_u32 s33, s33, s3'); a('s_lshl_b32 s33, s33, 18')
            for lo_, size in ((70, 448 * 8192), (76, 448 * 3584), (78, 448 * 3584), (72, 4096 * 896), (80, 1792 * 896)):
                self.srd(20, lo_, size)
                for i in range(-(-size // (nw << 18))):
                    if i: a(f's_add_u32 s39, s33, {i * nw << 18}')
                    a(f'buffer_load_dword v64, v6, {W1}, {"s39" if i else "s33"} offen nt')
            a.label('L_notlb')
        if self.hq:
            self.srd(20, 70, 448 * 8192)
            self.bits('v6', 'v0', 'v7', [(0, 5, 4), (5, 1, 13)])
            a('s_sub_u32 s33, s2, 16'); a('s_lshl_b32 s33, s33, 9'); a('s_lshl_b32 s39, s3, 14'); a('s_add_u32 s33, s33, s39')
            a(f's_add_u32 s33, s33, {self.hq[0] * 64 * 8192}')
            for i in range(8 * (self.hq[1] - self.hq[0])):
                self.vm(f'buffer_load_dwordx4 v[64:67], v6, {W1}, s33 offen {self.hpol}', 'hq'); a('s_add_u32 s33, s33, 65536')
                if i == 0: self.stamp(61, None, 30)
                if i == 8: self.stamp(63, None, 30)
                if i == 9: self.arm()
                if i == 23: self.announce()
        self.cq0 = list(self.cq)
        a('s_cmp_lt_u32 s2, 30'); a('s_cbranch_scc1 L_roleF')
    def consts(self):
        a = self.a
        a('v_and_b32 v6, 1, v0'); a('v_cmp_eq_u32 vcc, 1, v6')
        a('v_mov_b32 v3, 0x44444444'); a('v_mov_b32 v6, 0xeeeeeeee'); a('v_cndmask_b32 v3, v3, v6, vcc')
        self.bits('v9', 'v0', 'v6', [(0, 5, 3), (5, 1, 10)])
        a('v_mul_u32_u24 v5, 6144, v6'); a('s_mul_i32 s38, s3, 1792'); a('v_add3_u32 v5, v5, v9, s38')
        a(f's_mov_b32 s57, 0x{OOB:x}'); a(f's_mov_b32 s56, 0x{OOB:x}'); a('s_mov_b32 s49, -1')
    vCL = 46
    def preready(self, streams=False):
        self.vm(f'global_load_dwordx2 v[46:47], v18, {DBG} offset:{self.CNTA} sc1', 'cnt')
    def ready(self, streams=False):
        a = self.a
        self.stamp(22, None, 28)
        self.vmwait('cnt')
        self.wait_counter(18, 46, 22, self.CNTA, NCHAIN, pre=True)
        a('s_mov_b32 s56, 0')
        if self.dual: a('s_movk_i32 s57, 0x2000')
        if self.dual and self.role != 'W':
            a('v_readfirstlane_b32 s38, v47'); a('s_getreg_b32 s10, hwreg(HW_REG_XCC_ID, 2, 1)'); a('s_xor_b32 s10, s10, s38'); a('s_and_b32 s10, s10, 1'); a('s_lshl_b32 s10, s10, 13')
            if self.diag:
                a('v_mov_b32 v28, s10'); a('v_mov_b32 v29, 0')
                a(f'buffer_store_dword v28, v29, {WS}, s61 offen offset:{62 * 4}')
        self.stamp(1, None, 28)
    def near(self):
        if not self.dual: return
        a = self.a; l = self.lab('L_nr')
        assert self.hs <= 12
        a('s_mul_i32 s38, s3, 1536'); a(f's_add_u32 s11, s38, 0x{XBOFF:x}')
        a('s_mov_b32 s4, -1'); a('s_mov_b32 s5, -1'); a(f's_mov_b32 s6, {2 * self.hs}')
        a('s_waitcnt vmcnt(0)')
        a.label(l)
        a('s_waitcnt lgkmcnt(0)'); a('s_memtime s[58:59]'); a('s_waitcnt lgkmcnt(0)')
        a(f'buffer_load_dword v28, off, {WS}, s11 sc1'); a('s_waitcnt vmcnt(0)')
        a('s_memtime s[38:39]'); a('s_waitcnt lgkmcnt(0)')
        a('s_sub_u32 s38, s38, s58'); a('s_min_u32 s38, s38, s4'); a('s_mov_b32 s4, s5'); a('s_mov_b32 s5, s38')
        a('s_xor_b32 s11, s11, 0x2000'); a('s_and_b32 s38, s6, 1'); a('s_lshl_b32 s38, s38, 7'); a('s_add_u32 s11, s11, s38')
        a('s_sub_u32 s6, s6, 1'); a('s_cmp_lg_u32 s6, 0'); a(f's_cbranch_scc1 {l}')
        a('s_cmp_gt_u32 s4, s5'); a('s_cselect_b32 s10, 0x2000, 0')
        if self.hforce is not None: a(f's_xor_b32 s10, s10, {self.hforce}')
        a('s_getreg_b32 s38, hwreg(HW_REG_XCC_ID, 2, 1)'); a('s_lshr_b32 s39, s10, 13'); a('s_xor_b32 s38, s38, s39')
        a('v_mov_b32 v28, s38'); a('v_mov_b32 v29, 0')
        a('s_cmp_eq_u32 s3, 0'); a('s_cselect_b64 exec, 1, 0')
        a(f'global_store_dword v29, v28, {DBG} offset:{self.CNTA + 4} sc1'); a('s_mov_b64 exec, -1')
        if self.diag:
            self.stamp(20, None, 28)
            a('s_lshl_b32 s38, s4, 16'); a('s_add_u32 s38, s38, s5'); a('v_mov_b32 v28, s38'); a('v_mov_b32 v29, 0')
            a(f'buffer_store_dword v28, v29, {WS}, s61 offen offset:{62 * 4}')
    def lstore(self, op, data, voff, sp, ss):
        self.a(f'buffer_store_{op} {data}, {voff}, {WS}, {ss} offen sc1' + self.N('l'))
        if self.dual: self.a(f'buffer_store_{op} {data}, {voff}, {WS}, {sp} offen sc1' + self.N('l'))
    def dma_sub(self, name, srd, voff, tab, adv):
        a = self.a
        a.label(name)
        for e in range(8):
            a(f'buffer_load_dwordx4 {voff}, {srd}, s{tab + e} offen nt lds')
            if e < 7: a('s_add_u32 m0, m0, s99')
        a(f'v_add_u32 {voff}, 0x{adv:x}, {voff}')
        a('s_setpc_b64 s[96:97]')
    def dma_subB(self, name, srd, voff):
        a = self.a
        a.label(name)
        for cb in range(7):
            a(f'buffer_load_dwordx4 {voff}, {srd}, 0 offen offset:{128 * cb} nt lds')
            if cb < 6: a('s_add_u32 m0, m0, 896')
        a(f'v_add_u32 {voff}, 0x{32 * 896:x}, {voff}')
        a('s_setpc_b64 s[96:97]')
    def poff(self, p): return p['off'] if 'off' in p else p['slot'] * 32768
    def issue(self, p):
        self.a(f's_add_u32 m0, {"s32" if p["B"] else "s98"}, {self.poff(p)}'); self.a(f's_call_b64 s[96:97], {p["sub"]}')
        self.cq += [id(p)] * (7 if p['B'] else 8)
    def readout(self, p, sel=None):
        self.a(f'v_add_u32 v6, {self.RING0 + self.poff(p)}, {"v5" if p["B"] else "v9"}')
        for d, imm in p['rd']:
            if sel is None or sel(d): self.a(f'ds_read_b64_tr_b16 {rr(d, 2)}, v6 offset:{imm}')
    def consume(self, p, nxt=None, hook=None):
        self.vmwait(id(p))
        self.a('s_waitcnt lgkmcnt(0)'); self.a('s_barrier')
        if hook: hook()
        for x in (nxt if isinstance(nxt, list) else [nxt] if nxt else []):
            if 'off' not in x: assert x['slot'] == self.lastslot, (x['slot'], self.lastslot)
            self.issue(x)
        self.readout(p); self.lastslot = p.get('slot')
    def table(self, tab, rs):
        for e in range(8): self.a(f's_mov_b32 s{tab + e}, 0x{(16 * (e & 1) + 2 * ((e >> 1) & 1) + 32 * (e >> 2)) * rs:x}')
    def typeB(self, voff, rowbase_s):
        a = self.a
        a('s_and_b32 s38, s3, 1'); a('s_lshl_b32 s38, s38, 4'); a(f's_add_u32 s38, s38, {rowbase_s}'); a('s_and_b32 s39, s3, 2'); a('s_add_u32 s38, s38, s39')
        a(f'v_add_u32 v6, s38, v4'); a(f'v_mad_u32_u24 {voff}, v6, s99, v2'); a(f'v_lshlrev_b32 v6, 7, v6'); a(f'v_sub_u32 {voff}, {voff}, v6')
    def typeB_reads(self, breg, ks, half):
        return [(breg(jj, ks) + 2 * (e1 + 2 * half), 2 * e1 * 7168 + jj * 256) for jj in range(7) for e1 in range(2)]
    def x0off(self):
        a = self.a
        a(f'v_mov_b32 v10, 0x{OOB:x}')
        self.bits('v6', 'v0', 'v7', [(0, 4, 3), (4, 1, 2), (5, 1, 7)])
        a('s_mul_i32 s38, s3, 224'); a('s_lshl_b32 s39, s3, 5'); a(f's_add_u32 s39, s39, {896 - 224}')
        a('v_cmp_gt_u32 vcc, 224, v6')
        a('v_add_u32 v15, s38, v6'); a('v_add_u32 v6, s39, v6')
        a('v_cndmask_b32 v12, v10, v15, vcc'); a('v_cndmask_b32 v15, v6, v15, vcc')
        a('s_lshl_b32 s38, s3, 9'); a('v_lshl_add_u32 v14, v0, 3, s38'); a('v_cndmask_b32 v14, v10, v14, vcc')
    def gather_offs(self):
        a = self.a
        self.bits('v13', 'v0', 'v6', [(0, 4, 4), (4, 1, 12), (5, 1, 14)])
        a('s_lshl_b32 s38, s3, 8'); a('v_add_u32 v13, s38, v13'); a(f'v_lshl_add_u32 v{self.vRO}, v0, 2, s38')
        a('v_cmp_gt_u32 vcc, 48, v0'); a('v_mov_b32 v18, 0'); a('v_mov_b32 v19, 0'); a('v_cndmask_b32 v8, v10, v13, vcc')
        a('v_and_b32 v6, 8, v0'); a('v_cmp_eq_u32 vcc, 8, v6'); a('v_mov_b32 v6, 0x3c00'); a('v_mov_b32 v7, 0x3c000000')
        a('v_cndmask_b32 v6, v6, v7, vcc'); a('v_and_b32 v7, 7, v0')
        for r, key in enumerate((0, 1, 4, 5)):
            a(f'v_cmp_eq_u32 vcc, {key}, v7'); a('s_nop 1'); a(f'v_cndmask_b32 v{self.vAC + r}, 0, v6, vcc')
    def resid_poll(self, soff):
        a = self.a; l = self.lab('L_rp')
        a.label(l)
        self.timeout()
        a(f'buffer_load_dwordx2 v[16:17], v14, {WS}, {soff} offen sc1'); a('s_waitcnt vmcnt(0)')
        a('v_max_u32 v6, v16, v17'); a('v_cmp_eq_u32 vcc, -1, v6'); a(f's_cbranch_vccnz {l}')
    def repoll(self, loads, full, comp, done):
        a = self.a; p = self.lab('L_mp'); i_ = self.lab('L_mi')
        M = ['vcc' if i == 4 else f's[{88 + 2 * i}:{89 + 2 * i}]' for i in range(len(loads))]
        def masks(to):
            for m, (r, t) in zip(M, loads): a(f'v_cmp_eq_u32 {m}, -1, v{r}')
            a(f's_or_b64 s[38:39], {M[0]}, {M[1]}')
            for m in M[2:]: a(f's_or_b64 s[38:39], s[38:39], {m}')
            a(f's_cbranch_scc0 {to}')
        if done:
            r_ = self.lab('L_mr'); a(f's_cbranch_vccnz {r_}')
            a('s_cmp_eq_u32 s38, 0'); a(f's_cbranch_scc1 {full}'); a(f's_branch {done}')
            a.label(r_)
        masks(full); a(f's_branch {i_}')
        a.label(p)
        masks(comp)
        a.label(i_)
        self.timeout()
        for m, (r, t) in list(zip(M, loads))[4:] + list(zip(M, loads))[:4]: a(f's_mov_b64 exec, {m}'); a(t)
        a('s_mov_b64 exec, -1')
        a(f's_waitcnt vmcnt({len(loads) * (self.mp - 1)})')
        a(f's_branch {p}')
    def gather_sum(self, soff, G, full, res=None):
        a = self.a; l = self.lab('L_g'); d = self.lab('L_gd'); c = self.lab('L_gc')
        mp = self.mp and self.role in self.mpr
        if self.role in self.lp:
            w = self.lab('L_gw')
            a(f's_movk_i32 s38, {self.lp[self.role]}'); a(f's_bitcmp1_b32 s38, {"s53" if self.role == "O" else "s49"}'); a(f's_cbranch_scc0 {l}')
            a.label(w)
            a('s_mov_b64 exec, -1')
            self.timeout()
            a('s_mov_b32 exec_lo, 0x10001'); a('s_mov_b32 exec_hi, 0x10001')
            a(f'buffer_load_dword v20, v13, {WS}, {soff} offen sc1'); a('s_waitcnt vmcnt(0)')
            a('v_cmp_ne_u32 vcc, -1, v20'); a(f's_cbranch_vccz {w}')
            a('s_mov_b64 exec, -1')
        a.label(l)
        self.timeout()
        ld = [(G + 4 * i, f'buffer_load_dwordx4 {vr(G + 4 * i, 4)}, {"v13" if full or i < 2 else "v8"}, {WS}, {soff} offen offset:{1024 * i} sc1') for i in range(4)]
        if res: ld.append((16, f'buffer_load_dwordx2 v[16:17], v14, {WS}, {res} offen sc1'))
        for r, t in ld[4:] + ld[:4]: a(t)
        def comp(w):
            for i in range(4):
                if w: a(f's_waitcnt vmcnt({3 - i})')
                a(f'v_mfma_f32_16x16x32_f16 v[20:23], {vr(self.vAC, 4)}, {vr(G + 4 * i, 4)}, {"v[16:19]" if i == 0 else "v[20:23]"}')
            a('v_cmp_u_f32 vcc, v20, v21')
            a('v_cvt_pk_bf16_f32 v24, v20, v21')
        comp(True)
        a(f's_cbranch_vccz {d}')
        self.maxtree(list(range(G, G + 16)) + ([16, 17] if res else []), 6)
        if mp:
            a(f's_cbranch_vccz {d}')
            self.repoll(ld, l, c, None)
            a.label(c); comp(False); a(f's_cbranch_vccnz {l}')
        else: a(f's_cbranch_vccnz {l}')
        a.label(d)
    def xrow_ops(self, sp, ss):
        return ['v_lshlrev_b32 v20, 16, v24', 'v_and_b32 v21, 0xffff0000, v24',
                f'buffer_store_dwordx2 v[20:21], v14, {WS}, {ss} offen sc1' + self.N('l')] + ([f'buffer_store_dwordx2 v[20:21], v14, {WS}, {sp} offen sc1' + self.N('l')] if self.dual else [])
    def stats_ops(self, X):
        o = []
        for i in range(4):
            o += [f'v_lshlrev_b32 v26, 16, v{X+i}', f'v_and_b32 v27, 0xffff0000, v{X+i}']
            if i == 0: o += ['v_add_f32 v28, v26, v27', 'v_mul_f32 v30, v26, v26', 'v_fmac_f32 v30, v27, v27']
            else: o += ['v_add_f32 v28, v28, v26', 'v_fmac_f32 v30, v26, v26', 'v_add_f32 v28, v28, v27', 'v_fmac_f32 v30, v27, v27']
        o += [f'v_mov_b32 v26, 0x{f2u(1/448):x}', f'v_mov_b32 v27, 0x{f2u(1e-5):x}', 'v_permlane16_swap_b32 v28, v30', 'v_add_f32 v28, v28, v30']
        for c in ('quad_perm:[1,0,3,2]', 'quad_perm:[2,3,0,1]', 'row_ror:4'):
            o += [None, f'v_add_f32_dpp v28, v28, v28 {c} {FULL}']
        o += [None, f'v_add_f32_dpp v29, v28, v28 row_ror:8 {FULL}', f'v_add_f32_dpp v28, v28, v28 row_ror:8 {FULL}', None,
              'v_permlane32_swap_b32 v28, v29', 'v_add_f32 v28, v28, v29', None,
              'v_readlane_b32 s58, v28, 0', 'v_readlane_b32 s59, v28, 16', None,
              'v_mul_f32 v24, s58, v26', 'v_fmac_f32 v27, s59, v26',
              'v_fma_f32 v27, -v24, v24, v27', 'v_rsq_f32 v25, v27']
        return o
    def gemv(self, ntile, nks, breg, acc, A, fill=(), nother=0):
        a = self.a; fill = list(fill)
        for ks in range(nks):
            a(f's_waitcnt lgkmcnt({min(15, nks - 1 - ks + nother)})')
            for jj in range(ntile):
                a(f'v_smfmac_f32_16x16x64_bf16 {vr(acc + 4 * jj, 4)}, {vr(A + 4 * ks, 4)}, {rr(breg(jj, ks), 8)}, v3')
                for _ in range(2):
                    if fill:
                        x = fill.pop(0)
                        if x: a(x)
        for x in fill:
            if x: a(x)
    def zero(self, base, n):
        for i in range(0, n, 2): self.a(f'v_mov_b64 {vr(base + i, 2)}, 0')
    def rowsel(self, dst, acc, tiles_masks):
        for jj, rm in tiles_masks:
            self.a(f'v_add_f32_dpp v{dst}, v{acc + 4*jj}, v{acc + 4*jj + 1} quad_perm:[0,1,2,3] row_mask:0x{rm:x} bank_mask:0xf')
    def rowout(self, acc, sp, ss):
        a = self.a
        for jj in range(4): self.rowsel(20, acc, [(jj, 1 << jj)])
        for jj in range(3): self.rowsel(21, acc, [(4 + jj, 1 << jj)])
        a('v_cvt_pk_f16_f32 v20, v20, v21'); a('v_min_u32 v20, -2, v20')
        self.lstore('dword', 'v20', f'v{self.vRO}', sp, ss)
    def calc_ib(self):
        a = self.a
        a('s_lshl_b32 s38, s49, 2'); a(f's_lshr_b32 s50, {"0x76352410" if self.reord else "0x73625140"}, s38'); a('s_and_b32 s50, s50, 7')
    def colsum(self, ntile, nks, breg, acc):
        a = self.a
        for r in range(4): a(f'v_mov_b32 v{20 + r}, 0x3f803f80')
        self.zero(acc, 4 * ntile)
        for ks in range(nks):
            for jj in range(ntile):
                a(f'v_smfmac_f32_16x16x64_bf16 {vr(acc + 4 * jj, 4)}, v[20:23], {rr(breg(jj, ks), 8)}, v3')
    def pinit(self, ib0):
        a = self.a
        for r in range(20, 24): a(f'v_mov_b32 v{r}, -1')
        a(f's_add_u32 s38, s3, {ib0}'); a('s_lshl_b32 s38, s38, 18'); a('s_add_u32 s38, s38, s41')
        a('v_lshlrev_b32 v6, 4, v0')
        for i in range(16):
            if i and i % 4 == 0: a('s_add_u32 s38, s38, 4096')
            self.vm(f'buffer_store_dwordx4 v[20:23], v6, {WS}, s38 offen offset:{(i % 4) * 1024} sc1', 'pinit')

    def roleOQ(self):
        a = self.a
        TOG = ['v_xor_b32 v15, 0x400, v15', 'v_xor_b32 v2, 0x400, v2', 'v_xor_b32 v1, 0x400, v1', f'v_xor_b32 v{self.vOW}, 0x400, v{self.vOW}']
        def qreg(jj, ks): return 96 + (ks * 4 + jj) * 8
        def oreg(jj, ks):
            if ks == 3 and jj < 4: return 288 + 8 * jj
            i = jj * 3 + ks if ks < 3 else 21 + jj - 4
            return 320 + 8 * i
        inwin = lambda d: 288 <= d < 320
        X0 = 4
        self.dma_sub('L_dmaQ', W1, f'v{self.vDQ}', 88, 64 * 8192)
        self.dma_subB('L_dmaO', W2, f'v{self.vDO}')
        P = 76; ML = 92; ACC = 48; A = 76
        a.label('L_Osub')
        self.calc_ib()
        if self.ja and self.ja[0]:
            a('s_and_b32 s38, s50, 1'); a('s_lshl_b32 s38, s38, 20'); a(f's_add_u32 s38, s38, {PP2}'); a('s_bitcmp1_b32 s50, 2'); a('s_cselect_b32 s44, s38, 0'); a('s_add_u32 s44, s44, s41')
        else:
            a('s_and_b32 s38, s50, 3'); a('s_lshl_b32 s44, s38, 20'); a('s_add_u32 s44, s44, s41')
            a('s_cmp_eq_u32 s38, 3'); a('s_cselect_b32 s38, s55, 0'); a('s_add_u32 s44, s44, s38')
            a('s_lshr_b32 s38, s50, 2'); a('s_lshl_b32 s38, s38, 19'); a('s_add_u32 s44, s44, s38')
        a('s_add_u32 s45, s44, 4096'); a('s_add_u32 s46, s44, 16384'); a('s_add_u32 s47, s44, 20480')
        a('s_lshl_b32 s48, s50, 15'); a('s_add_u32 s48, s48, s40'); a('s_add_u32 s51, s48, s56'); a('s_add_u32 s48, s48, s57')
        self.zero(ACC, 28)
        a('s_cmp_lt_i32 s49, 0'); a('s_cbranch_scc1 L_Ook')
        a.label('L_Oheavy')
        self.timeout()
        ld = [(P + 4 * n, f'buffer_load_dwordx4 {vr(P + 4*n, 4)}, v{self.vPO2 if n == 3 else self.vPO}, {WS}, s{44+n} offen sc1') for n in range(4)]
        ld.append((ML, f'buffer_load_dwordx2 {vr(ML, 2)}, v{self.vMLO}, {WS}, s44 offen sc1'))
        for r, t in ld[4:] + ld[:4]: a(t)
        if self.mp and 'P' in self.mpr: a('s_mov_b32 s38, 1')
        a.label('L_Ocomp')
        a('s_waitcnt vmcnt(4)')
        a(f'v_max_f32_dpp v20, v{ML}, v{ML} quad_perm:[1,0,3,2] {FULL}')
        for c in ('quad_perm:[2,3,0,1]', 'row_ror:4', 'row_ror:8'): a(f'v_max_f32_dpp v20, v20, v20 {c} {FULL}')
        a(f'v_sub_f32 v20, v{ML}, v20'); a('v_exp_f32 v20, v20'); a('v_cndmask_b32 v20, 0, v20, s[42:43]')
        a(f'v_mul_f32 v21, v20, abs(v{ML+1})')
        lred = [f'v_add_f32_dpp v21, v21, v21 {c} {FULL}' for c in ('quad_perm:[1,0,3,2]', 'quad_perm:[2,3,0,1]', 'row_ror:4', 'row_ror:8')]
        for n in range(4):
            a(f's_waitcnt vmcnt({3 - n})')
            for r in range(4):
                a(f'v_{"mul" if n == 0 else "fmac"}_f32_dpp v{24 + r}, v20, v{P + 4*n + r} row_newbcast:{n} {FULL}')
            a(lred[n])
        a('v_permlane16_swap_b32 v24, v25'); a('v_permlane16_swap_b32 v26, v27'); a('v_rcp_f32 v21, v21')
        a('v_add_f32 v24, v24, v25'); a('v_add_f32 v26, v26, v27')
        a('v_permlane32_swap_b32 v24, v26'); a('v_add_f32 v24, v24, v26'); a('v_mul_f32 v24, v24, v21')
        a('v_cmp_u_f32 vcc, v24, v24')
        a('v_cvt_pk_bf16_f32 v24, v24, v24')
        a('s_cbranch_vccz L_Ook0')
        self.maxtree(list(range(P, P + 16)) + [ML, ML + 1], 6)
        if self.mp and 'P' in self.mpr: self.repoll(ld, 'L_Oheavy', 'L_Ocomp', 'L_Ook0')
        else: a('s_cbranch_vccnz L_Oheavy')
        a.label('L_Ook0')
        if self.split:
            a('s_cmp_lg_u32 s49, 0'); a('s_cbranch_scc1 L_Ook')
            a('s_setpc_b64 s[34:35]')
        a.label('L_Ook')
        a(f'ds_write_b16 v{self.vOW}, v24'); a('s_waitcnt lgkmcnt(0)'); a('s_barrier')
        for ks in range(4): a(f'ds_read_b128 {vr(A + 4*ks, 4)}, v2 offset:{128 * ks}')
        self.stamp(3, 's49', 28)
        self.gemv(7, 4, oreg, ACC, A, fill=TOG + ['v_mov_b32 v21, 0'])
        self.rowout(ACC, 's48', 's51')
        self.stamp(12, 's49', 28)
        a('s_add_u32 s49, s49, 1')
        a('s_setpc_b64 s[34:35]')
        G = 64; ACC = 48; A = 64; X = 92
        a.label('L_Qsub')
        self.zero(ACC, 16)
        a('s_lshl_b32 s44, s53, 13'); a('s_add_u32 s44, s44, s54')
        a('s_lshl_b32 s38, s53, 11'); a(f's_add_u32 s47, s38, 0x{XAOFF - 4 * 2048:x}'); a('s_add_u32 s47, s47, s10')
        a('s_add_u32 s45, s38, s33'); a('s_add_u32 s46, s45, s56'); a('s_add_u32 s45, s45, s57')
        a('s_lshl_b32 s48, s53, 15'); a(f's_add_u32 s48, s48, 0x{ZOFF - 4 * 32768:x}'); a('s_add_u32 s48, s48, s10')
        a('s_cmp_lt_u32 s53, 4'); a('s_cbranch_scc1 L_Qx')
        if self.ja:
            assert not self.oarm and not self.home and not self.mp
            a('v_mov_b64 v[24:25], -1'); a('v_mov_b64 v[26:27], -1'); a('v_lshlrev_b32 v6, 4, v0')
            if self.ja[0]: a('s_and_b32 s38, s53, 1'); a('s_lshl_b32 s38, s38, 20'); a('s_add_u32 s38, s38, s11'); a(f's_sub_u32 s39, s11, {PP2}')
            else: a('s_and_b32 s38, s53, 3'); a('s_lshl_b32 s38, s38, 20'); a('s_add_u32 s38, s38, s11'); a(f's_add_u32 s39, s38, {PP2}')
            a('s_cmp_eq_u32 s53, 7'); a(f's_cselect_b32 s39, 0x{OOB:x}, s39')
            a('s_cmp_eq_u32 s9, 1'); a('s_cbranch_scc1 L_Qal')
            for i in range(8): a(f'buffer_store_dwordx4 v[24:27], v6, {WS}, s{38 + i // 4} offen offset:{i % 4 * 1024} sc1')
            a('s_branch L_Qam')
            a.label('L_Qal')
            for i in range(8): a(f'buffer_store_dwordx4 v[24:27], v6, {WS}, s{38 + i // 4} offen offset:{i % 4 * 1024} {self.ja[1]}')
            a.label('L_Qam')
        if not self.mres: self.resid_poll('s47')
        self.gather_sum('s48', G, False, 's47' if self.mres else None)
        a.label('L_Qx')
        a('ds_write_b32 v15, v24'); a('s_waitcnt lgkmcnt(0)'); a('s_barrier')
        if self.mp and 'O' in self.mpr:
            l = self.lab('L_qw'); a('s_cmp_lt_u32 s53, 4'); a(f's_cbranch_scc1 {l}'); a('s_waitcnt vmcnt(0)'); a.label(l)
        for ks in range(7): a(f'ds_read_b128 {vr(A + 4*ks, 4)}, v2 offset:{128 * ks}')
        a(f'ds_read_b128 {vr(X, 4)}, v1')
        for x in self.xrow_ops('s45', 's46'): a(x)
        self.stamp(24, 's53', 28)
        fill = TOG + [None, 's_waitcnt lgkmcnt(0)'] + self.stats_ops(X)
        self.gemv(4, 7, qreg, ACC, A, fill=fill, nother=1)
        a(f'v_mul_f32 v21, v24, v{self.vCS}'); a('s_cmp_eq_u32 s9, 1')
        self.rowsel(20, ACC, [(jj, 1 << jj) for jj in range(4)])
        a('v_sub_f32 v20, v20, v21'); a('v_mul_f32 v20, v20, v25')
        a('v_cvt_pk_bf16_f32 v20, v20, v20'); a('v_min_u32 v20, -2, v20')
        if self.loc:
            a('s_cbranch_scc1 L_Qloc')
            a(f'buffer_store_short v20, v{self.vQS}, {WS}, s44 offen sc1'); a('s_branch L_Qst')
            a.label('L_Qloc'); a(f'buffer_store_short v20, v{self.vQS}, {WS}, s44 offen'); a.label('L_Qst')
        else: a(f'buffer_store_short v20, v{self.vQS}, {WS}, s44 offen sc1')
        self.stamp(33, 's53', 28)
        if self.oarm: a('s_lshl_b32 s38, s53, 20'); a('s_add_u32 s38, s38, s11'); a(f's_add_u32 s39, s38, {PP2}')
        a('s_add_u32 s53, s53, 1')
        if self.oarm:
            a('s_cmp_eq_u32 s53, 8'); a('s_cbranch_scc1 L_Qret')
            a('v_mov_b64 v[24:25], -1'); a('v_mov_b64 v[26:27], -1'); a('v_lshlrev_b32 v6, 4, v0')
            for i in range(8): a(f'buffer_store_dwordx4 v[24:27], v6, {WS}, s{38 + i // 4} offen offset:{i % 4 * 1024} sc1')
            a.label('L_Qret')
        a('s_setpc_b64 s[34:35]')
        a.label('L_roleOQ')
        self.stamp(61, None, 30)
        self.cq = ['init']
        a('s_lshl_b32 s38, s2, 9')
        self.srd(20, 70, 448 * 8192)
        a('s_lshl_b32 s39, s3, 7'); a('s_add_u32 s38, s38, s39')
        a(f'v_lshl_add_u32 v{self.vDQ}, v4, 13, s38'); a(f'v_add_u32 v{self.vDQ}, v{self.vDQ}, v2')
        self.table(88, 8192)
        R4 = self.ring4
        pq = [dict(sub='L_dmaQ', B=0, slot=(ks + 2 * R4) % 4, rd=[(qreg(jj, ks) + 2 * rp, rp * 2048 + jj * 256) for jj in range(4) for rp in range(4)]) for ks in range(7)]
        po = [dict(sub='L_dmaO', B=1, slot=(3, 0, 1)[i % 3], rd=self.typeB_reads(oreg, i // 2, i % 2)) for i in range(8)]
        if R4:
            for i, p in enumerate(po): p['off'] = 32768 + 28672 * (i % 4)
        self.issue(pq[0])
        self.stamp(63, None, 30)
        self.srd(28, 64, 3584)
        XL = 48
        a(f'v_mov_b32 v10, 0x{OOB:x}')
        a('v_cmp_gt_u32 vcc, 56, v0'); a('v_bfe_u32 v7, v0, 2, 2'); a('v_mul_u32_u24 v7, 896, v7'); a('v_cndmask_b32 v6, v10, v1, vcc')
        for b in range(4): self.vm(f'buffer_load_dwordx4 {vr(XL + 4 * b, 4)}, v6, {W3}, 0 offen offset:{b * 896}', 'xl')
        a('v_add_u32 v7, v7, v2')
        a('s_mov_b32 s38, 0x3f803f80'); a('s_mov_b32 s39, s38')
        for r in range(0, 28, 2): a(f'v_mov_b64 {vr(A + r, 2)}, s[38:39]')
        a('s_mov_b32 exec_lo, 0x33333333'); a('s_mov_b32 exec_hi, 0x33333333')
        for ks in range(7): self.vm(f'buffer_load_dwordx4 {vr(A + 4 * ks, 4)}, v7, {W3}, 0 offen offset:{128 * ks}', 'xa')
        a('s_mov_b64 exec, -1')
        if not self.ean: self.issue(pq[1])
        self.stamp(56, None, 30)
        self.srd(24, 72, 4096 * 896)
        a('s_lshl_b32 s39, s2, 8')
        self.typeB(f'v{self.vDO}', 's39')
        self.consts(); a('s_lshl_b32 s38, s3, 13'); a('v_add_u32 v9, s38, v9')
        if self.up4: self.issue(pq[2]); self.issue(pq[3])
        self.stamp(57, None, 30)
        self.arm(True)
        self.stamp(58, None, 30)
        if not self.up4: self.issue(pq[1 if self.ean else 2])
        self.vmwait('xl')
        self.stamp(59, None, 30)
        for b in range(4):
            for x in self.stats_ops(XL + 4 * b):
                if x: a(x)
            a(f'v_mov_b32_dpp v92, v24 quad_perm:[0,1,2,3] row_mask:0x{1 << b:x} bank_mask:0xf')
            a(f'v_mov_b32_dpp v93, v25 quad_perm:[0,1,2,3] row_mask:0x{1 << b:x} bank_mask:0xf')
        if self.ean: self.announce(); self.issue(pq[2])
        if not self.up4: self.issue(pq[3])
        self.zero(ACC, 16)
        self.bits('v94', 'v0', 'v6', [(0, 1, 1), (2, 1, 2), (3, 1, 4), (1, 1, 5), (4, 2, 13)])
        a('s_lshl_b32 s38, s3, 7'); a('s_lshl_b32 s44, s2, 9'); a('s_add_u32 s44, s38, s44')
        self.stamp(60, None, 30)
        nxt = {1: pq[4], 2: pq[5], 3: pq[6], 4: po[0]}
        if R4 == 1: nxt[5] = po[1]; nxt[6] = [po[2], po[3]]
        def q1mm(ks):
            for jj in range(4): a(f'v_smfmac_f32_16x16x64_bf16 {vr(ACC + 4 * jj, 4)}, {vr(A + 4 * ks, 4)}, {rr(qreg(jj, ks), 8)}, v3')
        hooks = {} if self.ean else {(3 if self.up4 else 2): lambda: self.announce(False)}
        for i in range(7):
            if i == 3: self.vmwait('arm')
            self.consume(pq[i], nxt.get(i), hooks.get(i))
            self.stamp(41 + i, None, 26)
            if i: q1mm(i - 1)
        a('s_waitcnt lgkmcnt(0)')
        q1mm(6)
        self.stamp(20, None, 28)
        for jj in range(4):
            a(f'v_add_f32 v{20 + jj}, v{ACC + 4*jj}, v{ACC + 4*jj + 1}'); a(f'v_add_f32 v{24 + jj}, v{ACC + 4*jj + 2}, v{ACC + 4*jj + 3}')
        for jj in range(4): a(f'v_fma_f32 v{20 + jj}, -v92, v{24 + jj}, v{20 + jj}')
        for jj in range(4): a(f'v_mul_f32 v{20 + jj}, v{20 + jj}, v93')
        for jj in range(4): a(f'v_cvt_pk_bf16_f32 v{20 + jj}, v{20 + jj}, v{20 + jj}')
        for jj in range(4): a(f'v_min_u32 v{20 + jj}, -2, v{20 + jj}')
        for jj in range(4): self.vm(f'buffer_store_short v{20 + jj}, v94, {WS}, s44 offen offset:{(jj & 1) * 8 + (jj >> 1) * 64} sc1')
        for jj in range(4): a(f'v_mov_b32_dpp v{self.vCS}, v{24 + jj} quad_perm:[0,1,2,3] row_mask:0x{1 << jj:x} bank_mask:0xf')
        self.stamp(35, None, 28)
        if R4 != 1: self.issue(po[1]); self.issue(po[2])
        if R4 == 3: self.issue(po[3])
        a('s_mov_b32 s55, 0'); a(f's_lshl_b32 s41, s2, 15'); a(f's_add_u32 s41, s41, 0x{POFF:x}')
        if self.ja: self.pquad('s11'); a('s_add_u32 s11, s11, s41'); a(f's_add_u32 s11, s11, {PP2}')
        if self.oarm: self.pquad('s11'); a('s_add_u32 s11, s11, s41'); a(f's_sub_u32 s11, s11, {3 * PIB - PP2}')
        self.x0off(); self.gather_offs()
        a('s_lshl_b32 s40, s2, 10'); a('s_and_b32 s38, s40, 0x2000'); a('s_add_u32 s40, s40, s38'); a(f's_add_u32 s40, s40, 0x{YOFF:x}')
        PO, PO2, MO, OW = self.vPO, self.vPO2, self.vMLO, self.vOW
        self.bits(f'v{PO}', 'v0', 'v6', [(0, 4, 4), (4, 2, 10)])
        a('s_lshl_b32 s38, s3, 8'); a(f'v_add_u32 v{PO}, s38, v{PO}')
        a('v_cmp_gt_u32 vcc, 32, v0'); a('v_lshrrev_b32 v6, 4, v0'); a('v_bfe_u32 v7, v0, 2, 2'); a(f'v_cndmask_b32 v{PO2}, v10, v{PO}, vcc')
        a('v_add_u32 v6, v6, v7'); a('v_and_b32 v6, 3, v6')
        a('v_and_b32 v7, 3, v0'); a('v_lshl_add_u32 v6, v7, 2, v6')
        a(f'v_cmp_gt_u32 s[42:43], {NC}, v6'); a(f'v_min_u32 v6, {NC - 1}, v6'); a(f'v_lshlrev_b32 v{MO}, 7, v6'); a(f'v_add_u32 v{MO}, {MLO}, v{MO}')
        self.bits(f'v{OW}', 'v0', 'v6', [(4, 2, 1), (0, 3, 4), (3, 1, 8)])
        a('s_lshr_b32 s38, s3, 1'); a('s_lshl_b32 s38, s38, 7'); a('s_and_b32 s39, s3, 1'); a('s_lshl_b32 s39, s39, 3'); a('s_add_u32 s38, s38, s39')
        a(f'v_add_u32 v{OW}, s38, v{OW}')
        self.bits(f'v{self.vQS}', 'v0', 'v6', [(0, 1, 1), (2, 1, 2), (4, 1, 3), (3, 1, 4), (1, 1, 5), (5, 1, 6)])
        a('s_lshl_b32 s38, s3, 7'); a(f'v_add_u32 v{self.vQS}, s38, v{self.vQS}')
        a('s_cmp_eq_u32 s2, 0'); a(f's_cselect_b32 s33, 0x{XBOFF - 4 * 2048:x}, s57')
        a('s_mov_b32 s53, 3'); a(f's_mov_b32 s54, 0x{OOB:x}')
        for i in range(8):
            self.consume(po[i], (po[i + 3] if 1 <= i < 5 else None) if R4 else po[i + 2] if 1 <= i < 6 else None, (lambda: self.preready(True)) if i == (4 if self.split else 5) else None)
            self.stamp(48 + i, None, 28)
            if i == 1: a('s_call_b64 s[34:35], L_Osub')
            if i == 2: a('s_call_b64 s[34:35], L_Qsub'); a('s_lshl_b32 s54, s2, 9')
            if i == 5 and self.split:
                self.ready(True); a('s_call_b64 s[34:35], L_Osub'); self.cq = []
                a(f'v_cmp_gt_i32 vcc, 0, v{ML+1}'); a('s_cmp_lg_u64 vcc, 0'); a('s_addc_u32 s9, s9, 0')
        assert self.split and self.reord
        self.stamp(1, None, 28)
        a('s_call_b64 s[34:35], L_Ook')
        a.label('L_OQloop')
        a(f's_movk_i32 s38, 0x{self.qmask:x}'); a('s_bitcmp1_b32 s38, s49'); a('s_cbranch_scc0 L_OQin')
        self.readout(pq[6])
        a('s_call_b64 s[34:35], L_Qsub')
        self.readout(po[6], inwin); self.readout(po[7], inwin)
        a.label('L_OQin')
        a('s_call_b64 s[34:35], L_Osub')
        a('s_cmp_lt_u32 s49, 8'); a('s_cbranch_scc1 L_OQloop')
        if '3' in self.wb or '4' in self.wb:
            a(f's_and_b32 s38, s2, {1 if "3" in self.wb else 0}'); a('s_or_b32 s38, s38, s3'); a('s_cbranch_scc1 L_end')
            a('buffer_wbl2 sc1')
        a('s_branch L_end')

    def roleF(self):
        a = self.a
        self.dma_sub('L_dmaG', W1, 'v44', 88, 64 * 3584)
        self.dma_subB('L_dmaD', W3, 'v11')
        breg = lambda jj, ks: 256 + (jj * 7 + ks) * 8
        def dreg(jj, ks):
            i = jj * 2 + ks
            return 256 + 224 + 8 * i if i < 4 else 176 + 8 * (i - 4)
        G = 64; ACC = 48; A = 96; X = 124; CSUM = self.vCS; ACD = 128; X0 = 160
        a.label('L_Fsub')
        self.calc_ib()
        self.zero(ACC, 16); self.zero(ACD, 28)
        a('s_lshl_b32 s38, s50, 15'); a(f's_add_u32 s48, s38, 0x{YOFF:x}'); a('s_add_u32 s48, s48, s10')
        a('s_add_u32 s44, s38, s40'); a('s_add_u32 s51, s44, s56'); a('s_add_u32 s44, s44, s57')
        a('s_lshl_b32 s38, s50, 11'); a(f's_add_u32 s47, s38, 0x{XBOFF - 4 * 2048:x}'); a('s_add_u32 s47, s47, s10')
        a('s_and_b32 s39, s38, 0x2000'); a('s_add_u32 s38, s38, s39')
        a('s_add_u32 s45, s38, s41'); a('s_add_u32 s46, s45, s56'); a('s_add_u32 s45, s45, s57')
        a('s_cmp_lt_i32 s49, 0'); a('s_cbranch_scc1 L_Fx')
        a('s_bitcmp1_b32 s50, 2'); a('s_cbranch_scc1 L_Fr')
        a(f'v_lshlrev_b32 v16, 16, v{X0}'); a(f'v_and_b32 v17, 0xffff0000, v{X0}')
        for i in range(3): a(f'v_mov_b32 v{X0 + i}, v{X0 + i + 1}')
        a('s_branch L_Fg')
        a.label('L_Fr')
        self.resid_poll('s47')
        a.label('L_Fg')
        self.gather_sum('s48', G, True)
        a.label('L_Fx')
        a('ds_write_b32 v15, v24'); a('s_waitcnt lgkmcnt(0)'); a('s_barrier')
        for ks in range(7): a(f'ds_read_b128 {vr(A + 4*ks, 4)}, v2 offset:{128 * ks}')
        a(f'ds_read_b128 {vr(X, 4)}, v1')
        for x in self.xrow_ops('s45', 's46'): a(x)
        self.stamp(3, 's49', 28)
        if self.diag: self.stamp(24, 's49', 28, 's52')
        fill = [None] * 5 + ['s_waitcnt lgkmcnt(0)'] + self.stats_ops(X)
        self.gemv(4, 7, breg, ACC, A, fill=fill, nother=1)
        a(f'v_mul_f32 v22, v24, v{CSUM}'); a(f'v_mul_f32 v23, v24, v{CSUM+1}'); a('v_mul_f32 v25, v25, v25')
        for jj in (0, 2, 1, 3): self.rowsel(20 + jj // 2, ACC, [(jj, 10 if jj & 1 else 5)])
        a('v_sub_f32 v20, v20, v22'); a('v_sub_f32 v21, v21, v23')
        a('v_max_f32 v20, 0, v20'); a('v_mul_f32 v21, v21, v25'); a('v_mul_f32 v20, v20, v21')
        a('v_cvt_pk_bf16_f32 v20, v20, v20')
        a('ds_write_b16 v40, v20'); a('s_waitcnt lgkmcnt(0)'); a('s_barrier')
        for ks in range(2): a(f'ds_read_b128 {vr(A + 4*ks, 4)}, v2 offset:{2048 + 128 * ks}')
        a('v_mov_b32 v21, 0')
        self.gemv(7, 2, dreg, ACD, A)
        self.rowout(ACD, 's44', 's51')
        self.stamp(12, 's49', 28)
        a('s_add_u32 s49, s49, 1')
        a('s_cmp_eq_u32 s49, 0'); a('s_cbranch_scc1 L_Fret')
        a('s_cmp_lt_u32 s49, 8'); a('s_cbranch_scc1 L_Fsub')
        a('s_branch L_end')
        a.label('L_roleF')
        self.cq = list(self.cq0); done = 8 * (self.hq[1] - self.hq[0]) if self.hq else 0
        a('s_cmp_lt_u32 s3, 2'); a('s_cselect_b64 s[20:21], s[76:77], s[78:79]'); a(f's_mov_b32 s22, 0x{448 * 3584:x}'); a('s_mov_b32 s23, 0x20000')
        a('s_sub_u32 s2, s2, 16')
        a('v_mul_u32_u24 v6, 3584, v4')
        a('s_lshl_b32 s38, s2, 8'); a('s_and_b32 s39, s3, 1'); a('s_lshl_b32 s39, s39, 7'); a('s_add_u32 s38, s38, s39')
        a('v_add3_u32 v44, v6, v2, s38')
        self.table(88, 3584)
        pl = [dict(sub='L_dmaG', B=0, rd=[(breg(jj, ks) + 2 * rp, (jj >> 1) * 16384 + rp * 2048 + (jj & 1) * 256) for jj in range(4) for rp in range(4)]) for ks in range(7)]
        pl += [dict(sub='L_dmaD', B=1, rd=self.typeB_reads(dreg, i // 2, i % 2)) for i in range(4)]
        for i, p in enumerate(pl): p['slot'] = i % 4
        self.stamp(56, None, 30)
        for i in range(1 if self.ean else 2): self.issue(pl[i])
        self.stamp(57, None, 30)
        self.srd(28, 80, 1792 * 896); self.srd(68, 64, 3584)
        a('s_lshl_b32 s39, s2, 7')
        self.typeB('v11', 's39')
        self.consts()
        a('s_lshr_b32 s38, s3, 1'); a('s_lshl_b32 s38, s38, 13'); a('s_and_b32 s39, s3, 1'); a('s_lshl_b32 s39, s39, 9'); a('s_add_u32 s38, s38, s39'); a('v_add_u32 v9, s38, v9')
        self.x0off(); self.gather_offs()
        for b in range(4): self.vm(f'buffer_load_dword v{X0 + b}, v12, s[68:71], 0 offen offset:{b * 896}', 'x0')
        a('v_and_b32 v6, 31, v0'); a('s_lshl_b32 s38, s3, 6'); a('s_add_u32 s38, s38, 2048'); a('v_lshl_add_u32 v40, v6, 1, s38')
        a('s_lshl_b32 s40, s2, 10'); a('s_and_b32 s38, s40, 0x2000'); a('s_add_u32 s40, s40, s38'); a(f's_add_u32 s40, s40, 0x{ZOFF:x}')
        a('s_cmp_eq_u32 s2, 0'); a(f's_cselect_b32 s41, 0x{XAOFF:x}, s57')
        if done < 10: self.arm()
        elif done < 24: self.announce()
        if self.ean:
            assert not done
            self.issue(pl[1]); self.announce()
        self.stamp(58, None, 30)
        self.issue(pl[2])
        a('s_branch L_Fsub')
        a.label('L_Fret')
        self.issue(pl[3])
        self.stamp(59, None, 30)
        hooks = {2: lambda: self.announce(False)} if done < 10 and not self.ean else {}
        hooks[7] = self.preready
        for i in range(11):
            self.consume(pl[i], pl[i + 3] if 1 <= i < 8 else None, hooks.get(i))
            if self.ho and i == self.ho[2]: self.wo_pf('s2')
            self.stamp(41 + i, None, 26)
            if i == 7:
                self.stamp(20, None, 28)
                self.colsum(4, 7, breg, ACC)
                self.rowsel(CSUM, ACC, [(0, 5), (1, 10)]); self.rowsel(CSUM + 1, ACC, [(2, 5), (3, 10)])
        self.ready()
        a('s_branch L_Fsub')

    def wo_pf(self, head, add=0):
        a = self.a; p0, p1 = self.ho[:2]
        self.srd(24, 72, 4096 * 896)
        nb = (p1 - p0) * 28672; per = nb // 4
        a(f's_mul_i32 s38, {head}, 229376'); a(f's_mul_i32 s39, s3, {per}'); a('s_add_u32 s38, s38, s39'); a(f's_add_u32 s38, s38, {p0 * 28672 + add * 229376}')
        a('v_min_u32 v6, 55, v0'); a('v_lshlrev_b32 v6, 7, v6')
        for i in range(p1 - p0):
            self.vm(f'buffer_load_dword v45, v6, {W2}, s38 offen {self.hpol}', 'ho'); a('s_add_u32 s38, s38, 7168')
    def roleW(self):
        a = self.a
        self.cq = list(self.cq0); done = 8 * (self.hq[1] - self.hq[0]) if self.hq else 0
        self.consts()
        if done < 10: self.arm()
        if done < 24: self.announce()
        a('s_sub_u32 s2, s2, 30')
        if self.hpf: self.helper()
        if self.ho: self.wo_pf('s2', 14)
        if self.w2:
            a('s_lshr_b32 s38, s3, 1'); a('s_cmp_lg_u32 s2, s38'); a('s_cbranch_scc1 L_end')
            if self.diag: a('s_lshl_b32 s38, s2, 13'); a('s_sub_u32 s61, s61, s38')
        else: a('s_cmp_lg_u32 s2, 0'); a('s_cbranch_scc1 L_end')
        self.near()
        self.srd(20, 82, 3584)
        self.x0off(); self.gather_offs()
        self.preready(); self.ready()
        G = 64
        a('s_mov_b32 s49, 0'); a(f's_add_u32 s47, s10, 0x{XAOFF + 16384:x}'); a(f's_add_u32 s48, s10, 0x{ZOFF + 4 * 32768:x}'); a('s_mov_b32 s44, 0')
        a.label('L_Wtop')
        if not self.mres: self.resid_poll('s47')
        self.gather_sum('s48', G, False, 's47' if self.mres else None)
        a(f'buffer_store_dword v24, v12, {W1}, s44 offen')
        self.stamp(12, 's49', 28)
        if self.diag: self.stamp(24, 's49', 28, 's52')
        a('s_add_u32 s49, s49, 1'); a('s_add_u32 s47, s47, 2048'); a('s_add_u32 s48, s48, 32768'); a('s_add_u32 s44, s44, 896')
        a('s_cmp_lt_u32 s49, 4'); a('s_cbranch_scc1 L_Wtop')
        a('s_branch L_end')
    def helper(self):
        a = self.a
        hq, ho = self.hpf if isinstance(self.hpf, (list, tuple)) else (48, 48)
        a('s_lshl_b32 s38, s2, 2'); a('s_add_u32 s38, s38, s3')
        self.srd(20, 70, 448 * 8192); self.srd(24, 72, 4096 * 896)
        a('s_lshl_b32 s40, s38, 10'); a(f's_add_u32 s40, s40, {(448 - hq) * 8192}')
        l = self.lab('L_hq'); a(f's_mov_b32 s41, {hq}')
        if hq:
            a.label(l)
            a('s_waitcnt vmcnt(11)'); a(f'buffer_load_dwordx4 v[64:67], v1, {W1}, s40 offen {self.hpol}')
            a('s_add_u32 s40, s40, 8192'); a('s_sub_u32 s41, s41, 1'); a('s_cmp_lg_u32 s41, 0'); a(f's_cbranch_scc1 {l}')
        if ho:
            a('s_mul_i32 s40, s38, 458752'); a(f's_add_u32 s40, s40, {229376 - ho * 1024}'); a('s_add_u32 s42, s40, 229376')
            l = self.lab('L_ho'); a(f's_mov_b32 s41, {ho}')
            a.label(l)
            a('s_waitcnt vmcnt(10)'); a(f'buffer_load_dwordx4 v[64:67], v1, {W2}, s40 offen {self.hpol}')
            a(f'buffer_load_dwordx4 v[64:67], v1, {W2}, s42 offen {self.hpol}')
            a('s_add_u32 s40, s40, 1024'); a('s_add_u32 s42, s42, 1024'); a('s_sub_u32 s41, s41, 1'); a('s_cmp_lg_u32 s41, 0'); a(f's_cbranch_scc1 {l}')
        a('s_waitcnt vmcnt(0)')
        self.stamp(20, None, 28)

if __name__ == '__main__':
    kw = json.loads(sys.argv[2]) if len(sys.argv) > 2 else {}
    open(sys.argv[1], 'w').write(Gen(**kw).build())
```

```python
import sys, struct, json
from asmlib import Asm
NAME = "interleave_layers__mha_block_cached__glu_gated_reglu__decode"

QOFF = 0x0; YOFF = 0x10000; ZOFF = 0x50000; XAOFF = 0x90000; XBOFF = 0x98000; HOFF = 0x9c000; COFF = 0x9a000 - 0x2000 + 0x8000; POFF = 0x800000; DOFF = 0x400000
PB = 32768; PIB = 0x100000; PP2 = 0x80000; MLO = 16384 + 6144
OOB = 0x40000000
NC = 14; NW = 56
CS = 0.09016844005556021
def f2u(x): return struct.unpack('<I', struct.pack('<f', x))[0]

K_SRD = 's[8:11]'; V_SRD = 's[12:15]'; WS = 's[16:19]'; W1 = 's[20:23]'; W2 = 's[24:27]'; W3 = 's[28:31]'
DBG = 's[84:85]'
NCHAIN = 32
K4 = 's[88:91]'; V4 = 's[92:95]'
FULL = 'row_mask:0xf bank_mask:0xf'

def vr(b, n=1): return f'v{b}' if n == 1 else f'v[{b}:{b+n-1}]'
def ar(b, n=1): return f'a{b}' if n == 1 else f'a[{b}:{b+n-1}]'
def rr(b, n=1): return vr(b, n) if b < 256 else ar(b - 256, n)

class Gen:
    def __init__(self, diag=False, PF=65, depth=8, hpf=False, hpol='nt', cpf=False, rows=(16, 10, 7), hq=None, fake=0, CL=12, PF2=None, reord=1, lightO=0, split=True, tlb=0, fx=2, thr=None, wtlb=0, probe=None, kpol='nt', vpol='nt', par=None, nQ=48, nE=60, early=False, sub=None, qE=None, ring4=0, up4=False, ho=None, pos=None, home=0, hforce=None, lv=None, lvx=None, th=None, cps=None, rs=None, gs=14, kvonly=True, ed=False, mid=None, fast=((2, (73, 74, 75)), (3, (76, 77)), (4, (78, 79))), boost=None, fld=(2, 2), nQ1=None, cpon=None, odd=None, slow=None, xsl=0, loc=1, spf=None, mres=1, dual=1, hs=4, ean=1, SG=24, pw=12, flex=None, KF=52, TK=41, qmask=0x96, fw=(), fb=None, bst=None, fine=(), cla=0, arl=None, wsw=0, noarm=0, PFA=None, xpf=None, oarm=0, xpol='', fx2=None, p0=8, nox=0, nocl=0, mp=0, fin=0, cyc=0, mz=0, lst=0, w2=0, mpr='FW', hp=None, rm=None, vpf=None, eq=None, hl=None, wb='', la=None, nt='', ja=None, lp=None, h16=0,
                 p2l=((('u', 2), (73, 74, 75)), (('u', 3), (76, 77)), (('u', 4), (78, 79)), (('u', 9), (0,)), (('x', 0), (1,)), (('i', 0), (2,)), (('i', 2), (3,)), (('i', 4), (4,)), (('m', 0), (5,))),
                 p1l={'a': (6, 7), '1': (8, 9), '2': (10,), '3': (11, 12), '4': (13,), 'm': (14, 15)}):
        self.h16 = h16; self.lp = lp or {}; self.ja = ja; self.N = lambda c: ' nt' if c in nt else ''; self.la = la; self.wb = wb; self.hl = hl; self.eq = eq; self.vpf = vpf; self.rm = rm; self.hp = hp; self.mpr = mpr; self.w2 = w2; self.lst = lst; self.mz = mz; self.cyc = cyc; self.ck = 0; self.fin = fin; self.mp = mp; self.nox = nox; self.nocl = nocl; self.fine = list(fine); self.cla = cla; self.arl = arl; self.wsw = wsw; self.noarm = noarm; self.PFA = PFA; self.p0 = p0; self.fx2 = fx2; self.xpf = xpf; self.xpol = xpol; self.oarm = oarm; self.fb = fb; self.bst = bst; self.fw = fw; self.flex = flex; self.KF = KF; self.TK = TK; self.qmask = qmask
        if flex:
            rest = list(range(48, 80)); rest[KF - 40:KF - 40] = range(32, 40)
            self.ORD = list(range(24, 32)) + list(range(40, 48)) + list(range(24)) + rest
            assert sum(n for n, r in flex) == NW and sum(n * r for n, r in flex) == 512 and nQ >= KF + 8
        self.SG = SG; self.pw = pw; self.p2l = p2l; self.p1l = p1l
        self.dual = dual; self.hs = hs; self.ean = ean
        self.loc = loc; self.spf = spf or []; self.mres = mres
        self.xsl = xsl
        self.slow = slow
        self.odd = odd
        self.cpon = cpon
        self.nQ1 = nQ1 or nQ
        self.fast = fast; self.boost = boost; self.fld = fld; self.xst = 0
        if boost: lv = [depth, boost[1]]
        self.kvonly = kvonly; self.ed = ed; self.mid = mid
        self.lv = lv; self.lvx = lvx; self.th = th; self.cps = cps or []; self.rs = rs; self.dyn = False; self.gs = gs
        self.hforce = hforce
        self.home = home
        self.pos = pos
        self.ring4 = ring4; self.up4 = up4; self.ho = ho
        self.sub = sub; self.qE = qE
        self.par = par; self.nQ = nQ; self.nE = nE; self.early = early
        self.pmul = 10 if not probe or len(probe) < 3 else probe[2]; probe = probe and probe[:2]; self.probe = probe; self.role = 'X'; self.kpol = kpol; self.vpol = vpol
        self.a = Asm(); self.diag = diag; self.PF = PF; self.depth = depth; self.hpf = hpf; self.hpol = hpol; self.cpf = cpf; self.rows = rows; self.hq = hq; self.fake = fake; self.CL = CL; self.PF2 = PF2; self.reord = reord; self.lightO = lightO; self.split = split; self.tlb = tlb; self.fx = fx; self.thr = thr; self.wtlb = wtlb
        self.uid = 0
    def lab(self, p='L'):
        self.uid += 1; return f'{p}_{self.uid}'

    def bits(self, dst, lane, tmp, mp):
        a = self.a; first = True
        for lb, n, ab in mp:
            if first:
                a(f'v_bfe_u32 {dst}, {lane}, {lb}, {n}')
                if ab: a(f'v_lshlrev_b32 {dst}, {ab}, {dst}')
                first = False
            else:
                a(f'v_bfe_u32 {tmp}, {lane}, {lb}, {n}')
                a(f'v_lshl_add_u32 {dst}, {tmp}, {ab}, {dst}')
    def srd(self, base, lo, size):
        a = self.a
        a(f's_mov_b64 s[{base}:{base+1}], s[{lo}:{lo+1}]')
        a(f's_mov_b32 s{base+2}, 0x{size:x}'); a(f's_mov_b32 s{base+3}, 0x20000')
    def timeout(self):
        self.a('s_sub_u32 s52, s52, 1'); self.a('s_cbranch_scc1 L_bail')
        if self.xsl and self.role != 'S': self.a(f's_sleep {self.xsl}')
    FLAG = 4096; CNTA = 16; CNTB = 144
    def wait_counter(self, va, vd, vt, off, n, pre=False):
        a = self.a; l = self.lab('L_cnt'); c = self.lab('L_cntc')
        if pre: a(f's_branch {c}')
        else: a(f'v_mov_b32 v{va}, 0')
        a.label(l)
        self.timeout()
        a(f'global_load_dword v{vd}, v{va}, {DBG} offset:{off} sc1'); a('s_waitcnt vmcnt(0)')
        a.label(c)
        a(f'v_and_b32 v{vt}, {"0xffff" if self.nocl else "0xff"}, v{vd}'); a(f'v_cmp_gt_u32 vcc, {n}, v{vt}'); a(f's_cbranch_vccnz {l}')
    def claim(self, va, vd, vr_):
        a = self.a; l = self.lab('L_cl')
        if self.nocl: a(f'v_mov_b32 v{va}, 0'); a('s_waitcnt lgkmcnt(0)'); return
        a('s_lshl_b32 s38, 1, s101'); a(f'v_mov_b32 v{va}, s100'); a(f'v_mov_b32 v{vd}, s38')
        a('s_or_b32 s38, s3, s7')
        a('s_waitcnt lgkmcnt(0)')
        a(f's_cbranch_scc1 {l}')
        a('s_mov_b64 exec, 1')
        a(f'global_atomic_or v{vr_}, v{va}, v{vd}, {DBG} sc0 sc1')
        a('s_mov_b64 exec, -1')
        a.label(l)
    def confirm(self, vr_, t):
        a = self.a; l = self.lab('L_rs'); w = self.lab('L_rw')
        if self.nocl: return
        a(f'v_mov_b32 v{t}, 0')
        a('s_cmp_lg_u32 s3, 0'); a(f's_cbranch_scc1 {l}')
        a('s_movk_i32 s38, 0x100'); a('s_cmp_lg_u32 s7, 0'); a(f's_cbranch_scc1 {w}')
        a(f'v_readfirstlane_b32 s39, v{vr_}'); a('s_bitcmp1_b32 s39, s101'); a(f's_cbranch_scc0 {w}')
        a('s_call_b64 s[96:97], L_lost')
        a.label(w)
        a(f'v_mov_b32 v{t+1}, s38'); a(f'ds_write_b32 v{t}, v{t+1} offset:{self.FLAG}'); a('s_waitcnt lgkmcnt(0)')
        a.label(l)
        a('s_barrier')
        a(f'ds_read_b32 v{t+1}, v{t} offset:{self.FLAG}'); a('s_waitcnt lgkmcnt(0)')
        a(f'v_readfirstlane_b32 s38, v{t+1}'); a('s_cmp_lg_u32 s38, 0x100'); a('s_cbranch_scc1 L_redo')
    def signal(self, va, vd, off, val):
        a = self.a; l = self.lab('L_sg')
        a('s_cmp_lg_u32 s3, 0'); a(f's_cbranch_scc1 {l}')
        a('s_mov_b64 exec, 1'); a(f'v_mov_b32 v{va}, 0'); a(f'v_mov_b32 v{vd}, {val}')
        a(f'global_atomic_add v{va}, v{vd}, {DBG} offset:{off} sc1')
        a('s_mov_b64 exec, -1')
        a.label(l)
    def rare_paths(self):
        a = self.a
        a.label('L_odd')
        a('s_waitcnt lgkmcnt(0)'); a('v_mov_b32 v1, 0')
        a('s_cmp_lg_u32 s3, 0'); a('s_cbranch_scc1 L_odd2')
        a('s_and_b32 s38, s36, 3'); a('s_lshl_b32 s38, s38, 6'); a('s_lshr_b32 s39, s36, 2'); a('s_lshl3_add_u32 s38, s39, s38')
        a('v_mov_b32 v2, s38'); a('s_lshl_b32 s39, s37, 3'); a('s_movk_i32 s41, 24')
        a.label('L_odd1')
        a(f'global_load_dword v3, v2, {DBG} sc1'); a('s_waitcnt vmcnt(0)')
        a('v_readfirstlane_b32 s38, v3'); a('s_lshr_b32 s38, s38, s39'); a('s_and_b32 s38, s38, 0xff'); a('s_bcnt1_i32_b32 s40, s38')
        a('s_cmp_ge_u32 s40, 7'); a('s_cselect_b32 s41, 0, s41'); a('s_sub_u32 s41, s41, 1'); a('s_cbranch_scc0 L_odd1')
        a('s_ff0_i32_b32 s38, s38'); a('v_mov_b32 v2, s38'); a(f'ds_write_b32 v1, v2 offset:{self.FLAG + 4}'); a('s_waitcnt lgkmcnt(0)')
        a.label('L_odd2')
        a('s_barrier')
        a(f'ds_read_b32 v2, v1 offset:{self.FLAG + 4}'); a('s_waitcnt lgkmcnt(0)')
        a('v_readfirstlane_b32 s38, v2'); a('s_mov_b32 s6, 1'); a('s_branch L_even')
        a.label('L_lost')
        a('s_waitcnt vmcnt(0)')
        self.bits('v62', 'v0', 'v63', [(0, 2, 6), (2, 1, 3)])
        a.label('L_lost1')
        a(f'global_load_dword v60, v62, {DBG} sc1'); a('s_waitcnt vmcnt(0)')
        a('v_cmp_ne_u32 vcc, -1, v60'); a('s_movk_i32 s38, 0x300'); a('s_cbranch_vccz L_lost2')
        a('s_getreg_b32 s39, hwreg(HW_REG_XCC_ID, 0, 3)'); a('s_ff1_i32_b32 s38, vcc_lo')
        a('s_bitcmp1_b32 vcc_lo, s39'); a('s_cselect_b32 s38, s39, s38')
        a('s_nop 3'); a('v_readlane_b32 s39, v60, s38'); a('v_readlane_b32 s40, v62, s38'); a('s_ff0_i32_b32 s39, s39')
        a('s_lshl_b32 s41, 1, s39'); a('v_mov_b32 v61, s41'); a('v_mov_b32 v63, s40')
        a('s_mov_b64 exec, 1'); a(f'global_atomic_or v60, v63, v61, {DBG} sc0 sc1'); a('s_mov_b64 exec, -1'); a('s_waitcnt vmcnt(0)')
        a('v_readfirstlane_b32 s40, v60'); a('s_bitcmp1_b32 s40, s39'); a('s_cbranch_scc1 L_lost1')
        a('s_lshl_b32 s38, s38, 5'); a('s_add_u32 s38, s38, s39'); a('s_bitset1_b32 s38, 9')
        a.label('L_lost2')
        a('s_setpc_b64 s[96:97]')
        a.label('L_redo')
        a('s_bitcmp1_b32 s38, 8'); a('s_cbranch_scc1 L_bail')
        a('s_waitcnt vmcnt(0) lgkmcnt(0)'); a('s_barrier')
        a('s_load_dwordx16 s[64:79], s[0:1], 0')
        a('s_load_dwordx8 s[80:87], s[0:1], 64')
        a('s_bfe_u32 s36, s38, 0x30005'); a('s_and_b32 s2, s38, 31'); a('s_mov_b32 s7, 1')
        a('s_branch L_role')
    def stamp(self, idx, sidx=None, t0=20, src='s62'):
        if self.probe and not self.diag:
            role, want = self.probe
            if role != self.role or (sidx is None and idx != want) or (sidx and not (0 <= want - idx < 9)): return
            a = self.a
            a('s_waitcnt lgkmcnt(0)'); a('s_memrealtime s[62:63]'); a('s_waitcnt lgkmcnt(0)')
            if sidx: a(f's_cmp_eq_u32 {sidx}, {want - idx}'); a('s_cselect_b32 s61, s62, s61')
            else: a('s_mov_b32 s61, s62')
            return
        if not self.diag: return
        a = self.a
        a('s_waitcnt lgkmcnt(0)'); a('s_memrealtime s[62:63]'); a('s_waitcnt lgkmcnt(0)')
        a(f'v_mov_b32 v{t0}, {src}')
        if sidx: a(f's_lshl_b32 s60, {sidx}, 2'); a('s_add_u32 s60, s60, s61')
        else: a('s_mov_b32 s60, s61')
        a(f'v_mov_b32 v{t0+1}, 0')
        a('s_mov_b64 exec, 1')
        a(f'buffer_store_dword v{t0}, v{t0+1}, {WS}, s60 offen offset:{idx*4}' + self.N('d'))
        a('s_mov_b64 exec, -1')
    def diagbase(self):
        a = self.a
        a('s_and_b32 s60, s61, 31'); a('s_lshr_b32 s61, s61, 5'); a('s_lshl3_add_u32 s61, s60, s61')
        a('s_lshl2_add_u32 s61, s61, s3'); a('s_lshl_b32 s61, s61, 8'); a(f's_add_u32 s61, s61, 0x{DOFF:x}')
    def maxtree(self, regs, t):
        a = self.a; regs = list(regs)
        a(f'v_max3_u32 v{t}, v{regs[0]}, v{regs[1]}, v{regs[2 if len(regs) > 2 else 1]}')
        regs = regs[3:]
        while regs:
            x = regs[:2]; regs = regs[2:]
            a(f'v_max3_u32 v{t}, v{t}, v{x[0]}, v{x[-1]}')
        a(f'v_cmp_eq_u32 vcc, -1, v{t}')

    def build(self):
        a = self.a
        if self.diag: a('s_memrealtime s[34:35]')
        a('s_cmp_ge_u32 s2, 256'); a('s_cbranch_scc1 L_end2')
        if self.probe: a('s_memrealtime s[62:63]'); a('s_waitcnt lgkmcnt(0)'); a('s_mov_b32 s60, s62'); a('s_mov_b32 s61, s62')
        a('s_load_dwordx16 s[64:79], s[0:1], 0')
        a('s_load_dwordx8 s[80:87], s[0:1], 64')
        if self.nocl:
            if self.fake: a(f's_mul_i32 s2, s2, {2 * self.fake + 1}'); a(f's_add_u32 s2, s2, {self.fake // 2 * 8}'); a('s_and_b32 s2, s2, 255'); self.fake = 0
            a('s_and_b32 s36, s2, 7'); a('s_lshr_b32 s38, s2, 5'); a('s_bfe_u32 s37, s2, 0x20003')
            if self.nocl > 1: a(f's_add_u32 s38, s38, {9 - self.nocl}')
            if self.diag: a('s_getreg_b32 s100, hwreg(HW_REG_HW_ID)')
        else:
            a('s_getreg_b32 s36, hwreg(HW_REG_XCC_ID, 0, 3)')
            a('s_getreg_b32 s38, hwreg(HW_REG_HW_ID, 8, 4)'); a('s_getreg_b32 s37, hwreg(HW_REG_HW_ID, 13, 2)')
        a('v_lshrrev_b32 v1, 6, v0'); a('v_and_b32 v0, 63, v0')
        a('v_readfirstlane_b32 s3, v1')
        a('s_mov_b32 s52, 400000'); a('s_mov_b64 s[6:7], 0')
        if self.fake == 1: a('s_and_b32 s38, s38, 6')
        if self.fake == 2: a('s_and_b32 s36, s36, 5')
        if self.fake == 3: a('s_and_b32 s36, s2, 7'); a('s_lshr_b32 s38, s2, 5'); a('s_mov_b32 s37, 0')
        if self.fake == 4: a('s_mov_b32 s36, 0'); a('s_mov_b32 s38, 0'); a('s_mov_b32 s37, 0')
        if self.fake == 5:
            a('s_bitcmp0_b32 s37, 0'); a('s_cselect_b32 s39, 8, 0'); a('s_cmp_eq_u32 s38, 3'); a('s_cselect_b32 s38, s39, s38')
        if not self.nocl: a('s_bitcmp0_b32 s37, 0'); a('s_cselect_b32 s39, 8, 0'); a('s_cmp_eq_u32 s38, s39'); a('s_cbranch_scc1 L_odd')
        a.label('L_even')
        a('s_and_b32 s38, s38, 7'); a('s_lshl3_add_u32 s2, s37, s38')
        if self.fake == 6: a('s_cmp_lg_u32 s38, 7'); a('s_cselect_b32 s39, 5, 0'); a('s_xor_b32 s36, s36, s39')
        if self.fake == 7: a('s_cmp_eq_u32 s2, 10'); a('s_cselect_b32 s39, 1, 0'); a('s_xor_b32 s36, s36, s39')
        if self.fake == 8: a('s_cmp_eq_u32 s2, 7'); a('s_cselect_b32 s39, 4, 0'); a('s_xor_b32 s36, s36, s39')
        a.label('L_role')
        if not self.nocl: a('s_mov_b32 s101, s2'); a('s_and_b32 s100, s36, 3'); a('s_lshl_b32 s100, s100, 6'); a('s_lshr_b32 s38, s36, 2'); a('s_lshl3_add_u32 s100, s38, s100')
        if self.cpf:
            a('s_getpc_b64 s[38:39]'); a.label('L_pc')
            a('s_lshl_b32 s37, s2, 2'); a('s_add_u32 s37, s37, s3'); a('s_lshl_b32 s37, s37, 10')
            a('s_cmp_ge_u32 s37, L_end-L_pc'); a('s_cbranch_scc1 L_nopf')
            a('v_lshl_add_u32 v2, v0, 4, s37'); a('v_min_u32 v2, L_end-L_pc-16, v2')
            a('global_load_dwordx4 v[60:63], v2, s[38:39]')
            a.label('L_nopf')
        a('s_getreg_b32 s38, hwreg(HW_REG_XCC_ID, 0, 4)'); a('s_cmp_eq_u32 s38, s36'); a(f's_cselect_b32 s5, 1, {"0x10001" if self.nocl else "0x101"}')
        a('s_lshr_b32 s38, s2, 4'); a('s_lshl1_add_u32 s36, s36, s38'); a('s_and_b32 s37, s2, 7'); a('s_bfe_u32 s38, s2, 0x10003')
        a('s_cmp_eq_u32 s37, 7'); a('s_cbranch_scc1 L_chain')
        self.role = 'S'; self.stream()
        a.label('L_chain'); self.role = 'C'
        self.chain_common()
        self.role = 'W'; self.roleW(); self.role = 'O'; self.roleOQ(); self.role = 'F'; self.roleF()
        if not self.nocl: self.rare_paths()
        a.label('L_bail')
        a('s_mov_b64 exec, 1')
        a('v_mov_b32 v0, 32'); a('v_mov_b32 v1, 1')
        a(f'global_atomic_add v0, v1, {DBG} sc1')
        a('v_mov_b32 v0, 36'); a('v_mov_b32 v1, s2')
        a(f'global_store_dword v0, v1, {DBG} sc1')
        a.label('L_end')
        if self.probe:
            a('s_cmp_eq_u32 s60, s61'); a('s_cbranch_scc1 L_end2')
            a('s_sub_u32 s61, s61, s60'); a(f's_mul_i32 s61, s61, {self.pmul}'); a('s_add_u32 s61, s61, 7000'); a('s_add_u32 s61, s61, s60')
            a.label('L_pspin')
            a('s_memrealtime s[62:63]'); a('s_waitcnt lgkmcnt(0)'); a('s_sub_u32 s62, s62, s61'); a('s_cmp_lt_i32 s62, 0'); a('s_cbranch_scc1 L_pspin')
        a.label('L_end2')
        body = a.finish()
        hdr = open('cdna_kernels/' + NAME + '.s.ref').read().split('\n')
        top = [l for l in hdr if l.startswith(';') and '@launch' not in l]
        s = '\n'.join(top) + '\n; @launch grid=(256,1,1) block=(256,1,1) lds=163840\n'
        s += f'.amdgcn_target "amdgcn-amd-amdhsa--gfx950"\n.text\n.globl {NAME}_kernel\n.p2align 8\n.type {NAME}_kernel,@function\n{NAME}_kernel:\n'
        s += body
        s += f'''s_endpgm
.section .rodata,"a"
.p2align 6
.amdhsa_kernel {NAME}_kernel
  .amdhsa_next_free_vgpr 512
  .amdhsa_next_free_sgpr 102
  .amdhsa_accum_offset 256
  .amdhsa_group_segment_fixed_size 0
  .amdhsa_kernarg_size 96
  .amdhsa_user_sgpr_count 2
  .amdhsa_user_sgpr_kernarg_segment_ptr 1
  .amdhsa_system_sgpr_workgroup_id_x 1
.end_amdhsa_kernel
'''
        return s

    CA = [0, 4096]; Q1L = 8192; MA = [10240, 10272]; CO = [10304, 10308]; MA1 = [10240, 10336]; ST = 10496; TB = 11520; WLDS = 37 * 1024
    vK, vV, vDs, vL16, vQo, vIQ, vIP = 1, 2, 3, 4, 5, 6, 7
    vM = 8; vT = 12; vBias = 15; vMC = 16; vL = 17; vQ = 24; vAcc = 32; vH = 48
    def kreg(self, s, u):
        return 64 + 96 * s + 16 * u if u < 6 else 256 + 128 * s + 16 * (u - 6)
    def vreg0(self, s, P, t):
        return 256 + 128 * s + 64 + 8 * (4 * P + t)
    def tile(self, n):
        if n < 40:
            u, t = n // 4, n % 4
            return 0, u // 2, t * 128 + (u & 1) * 512
        m = n - 40; g = m // 8; k = m % 8
        if g < 4: P, t = k // 4, k % 4
        else: t, P = k // 2, k % 2
        return 1, g, t * 128 + P * 1024
    def ldsslot(self, s, n):
        if n <= 72: return (n - 56) + 17 * s
        return 34 + (n - 73)
    ORD = list(range(24, 40)) + list(range(24)) + list(range(40, 80))
    def load(self, s, p, wait=True, to=None):
        a = self.a; n = self.ORD[p]
        kv, g, imm = self.tile(n)
        if p == 0 and not self.prologue:
            for j in range(4 if self.flex or self.fx2 else 5): a(f's_add_u32 s{40+j}, s{40+j}, 0x2000000')
            if self.fx2: a('s_mov_b32 s44, s24'); a('s_lshl_b32 s90, s25, 9'); a('s_add_u32 s90, s90, s44'); a('s_min_u32 s90, s90, s10'); a('s_mov_b32 s94, s90')
            elif not self.flex: a('s_add_u32 s90, s90, 0x2000000'); a('s_min_u32 s90, s90, s10'); a('s_mov_b32 s94, s90')
        va = f'v{self.vV if kv else self.vK}'; srd = V_SRD if kv else K_SRD
        if g == 4: srd = V4 if kv else K4
        if g == 4 and self.rm and self.rm[0] != 12:
            t = 'v16' if self.prologue else 'v0'
            if n in (32, 72):
                a(f'v_bfe_u32 {t}, v{self.vL16}, 7, 1'); a(f'v_mul_u32_u24 {t}, {(1 << self.rm[0]) - 4096}, {t}'); a(f'v_sub_u32 {t}, {va}, {t}')
            va = t
        dst = None
        if n < 40: dst = self.kreg(s, n // 4) + 4 * (n % 4)
        elif n < 56:
            m = n - 40; dst = self.vreg0(s, (m % 8) // 4, m % 4) + 4 * (m // 8)
        elif n >= 76: dst = self.kreg(1 - s, 1) + 4 * (n - 76)
        if to is not None: dst = to
        if dst is None:
            a(f's_add_u32 m0, s45, {self.ldsslot(s, n) * 1024 - imm}')
        depth = self.lv[-1] if self.dyn else self.depth
        if wait is not True and wait: depth = wait
        def allow(d):
            pos = [i for i, x in enumerate(reversed(self.vmq)) if x[0] != 'cp' and not (self.flex and x[0] in (0, 1) and self.KF <= x[1] < self.KF + 8 and (x[1] - self.KF) % 8 not in self.fw)]
            return pos[d - 1] if len(pos) >= d else None
        if wait is True and self.dyn:
            lows = [allow(d) for d in self.lv[:-1] if allow(d) is not None]
            labs = [self.lab('L_lv') for _ in lows]
            for i in reversed(range(len(lows))):
                a(f's_cmp_gt_u32 s59, {i}'); a(f's_cbranch_scc1 {labs[i]}')
            for i, k in enumerate(lows):
                a(f's_waitcnt vmcnt({k})'); a.label(labs[i])
        if wait and allow(depth) is not None:
            k = allow(depth)
            a(f's_waitcnt vmcnt({k})'); self.vmq = self.vmq[-k:]
        if dst is None:
            a(f'buffer_load_dwordx4 {va}, {srd}, s{40+g} offen offset:{imm} {self.vpol if kv else self.kpol} lds')
        else:
            a(f'buffer_load_dwordx4 {rr(dst, 4)}, {va}, {srd}, s{40+g} offen offset:{imm} {self.vpol if kv else self.kpol}')
        self.vmq.append((s, p))
    def need_vm(self, tag):
        if tag == ('cp', 'q1') and self.eq and tag not in self.vmq:
            t = [x for x in self.vmq if x[0] != 'cp' and x[1] == self.PF]
            if t:
                l = self.lab('L_eq'); self.a('s_cmp_lg_u32 s58, 0'); self.a(f's_cbranch_scc1 {l}')
                self.a(f's_waitcnt vmcnt({len(self.vmq) - 1 - self.vmq.index(t[0])})'); self.a.label(l)
            return
        if tag in self.vmq:
            k = len(self.vmq) - 1 - self.vmq.index(tag)
            if self.xst:
                l = self.lab('L_xs'); self.a('s_cmp_lg_u32 s58, 0'); self.a(f's_cbranch_scc1 {l}')
                self.a(f's_waitcnt vmcnt({k})'); self.a.label(l); self.a(f's_waitcnt vmcnt({k + self.xst})')
            else: self.a(f's_waitcnt vmcnt({k})')
            self.vmq = self.vmq[len(self.vmq) - k:] if k else []
    def ds(self, text, tag=None):
        self.a(text); self.lq.append(tag)
    def need_lds(self, tag):
        if tag in self.lq:
            i = len(self.lq) - 1 - self.lq[::-1].index(tag)
            k = len(self.lq) - 1 - i
            k = min(k, 15)
            self.a(f's_waitcnt lgkmcnt({k})'); self.lq = self.lq[len(self.lq) - k:] if k else []
    def qload(self):
        a = self.a
        a(f'buffer_load_dwordx4 {vr(self.vQ, 4)}, v{self.vQo}, {WS}, s46 offen sc1')
        a(f'buffer_load_dwordx4 {vr(self.vQ + 4, 4)}, v{self.vQo}, {WS}, s46 offen offset:256 sc1')
    def wpf(self, n):
        a = self.a
        for nn, mat, k in self.spf:
            if nn != n: continue
            a('s_lshl2_add_u32 s32, s37, s3')
            for lo, size, rs, lpr, hs, rows in {'q': [(70, 448 * 8192, 8192, 4, 512, 448)], 'o': [(72, 4096 * 896, 128, 1, 229376, 1792)],
                          'g': [(76, 448 * 3584, 3584, 2, 256, 448), (78, 448 * 3584, 3584, 2, 256, 448)], 'd': [(80, 1792 * 896, 128, 1, 114688, 896)]}[mat]:
                assert 56 * k <= rows and k * lpr <= 64
                self.srd(28, lo, size)
                a(f's_mul_i32 s38, s36, {hs}'); a(f's_mul_i32 s33, s32, {k * rs}'); a('s_add_u32 s38, s38, s33'); a(f's_add_u32 s38, s38, {(rows - 56 * k) * rs}')
                if mat == 'g': a('s_cmp_lt_u32 s36, 14'); a(f's_cselect_b32 s38, s38, 0x{OOB:x}')
                if lpr == 1: a('v_lshlrev_b32 v18, 7, v0')
                else:
                    a(f'v_lshrrev_b32 v18, {lpr // 2}, v0'); a(f'v_mul_u32_u24 v18, {rs}, v18'); a(f'v_and_b32 v19, {lpr - 1}, v0'); a('v_lshl_add_u32 v18, v19, 7, v18')
                L = k * lpr
                a(f's_mov_b32 exec_lo, 0x{(1 << min(L, 32)) - 1:x}'); a(f's_mov_b32 exec_hi, 0x{(1 << max(L - 32, 0)) - 1:x}')
                a(f'buffer_load_dword v17, v18, s[28:31], s38 offen')
                a('s_mov_b64 exec, -1')
    def zero_acc(self):
        return [f'v_mov_b64 {vr(self.vAcc + 2 * i, 2)}, 0' for i in range(8)]

    def stream(self):
        a = self.a
        self.vmq = []; self.lq = []; self.prologue = True; self.later = []
        a('s_mul_i32 s38, s38, 7'); a('s_add_u32 s37, s37, s38')
        if self.diag: a('s_mul_i32 s61, s36, 14'); a('s_add_u32 s61, s61, s37'); a('s_add_u32 s61, s61, 32'); self.diagbase()
        a('s_lshl_b32 s39, s37, 2'); a('s_add_u32 s39, s39, s3'); a('s_lshl_b32 s38, s39, 13')
        a('s_lshl_b32 s44, s36, 21')
        LB = self.rm[0] if self.rm else 12
        def place(g):
            lb, wb, rot = self.rm; sb = [b for b in range(12, 18) if b not in (lb, wb, wb + 1)]; d = f's{40 + g}'
            a(f's_add_u32 s38, s37, {14 * g}'); a(f's_lshr_b32 {d}, s38, 3'); a(f's_lshl_b32 {d}, {d}, 18'); a(f's_add_u32 {d}, {d}, s44')
            if rot: a(f's_mul_i32 s33, s36, {rot}'); a('s_add_u32 s38, s38, s33')
            if sb[2] == sb[0] + 2: a('s_and_b32 s38, s38, 7'); a(f's_lshl_b32 s38, s38, {sb[0]}'); a(f's_add_u32 {d}, {d}, s38')
            else:
                for i, b in enumerate(sb): a(f's_bfe_u32 s33, s38, 0x{0x10000 + i:x}'); a(f's_lshl_b32 s33, s33, {b}'); a(f's_add_u32 {d}, {d}, s33')
            a(f's_lshl_b32 s38, s3, {wb}'); a(f's_add_u32 {d}, {d}, s38')
        if self.rm: assert not self.hp; place(3)
        else: a('s_add_u32 s40, s44, s38'); a(f's_add_u32 s43, s40, {3 * NW * 8192}')
        self.bits(f'v{self.vK}', 'v0', 'v18', [(0, 1, 4), (4, 2, 5), (2, 1, 10), (1, 1, 11), (3, 1, LB)])
        if not self.cla: self.claim(22, 23, 24)
        else: a('s_waitcnt lgkmcnt(0)')
        self.wpf(-1)
        self.srd(8, 66, 0x8000000)
        if self.diag: a('s_memrealtime s[98:99]')
        for p in range(self.p0): self.load(0, p, wait=False)
        if self.tlb:
            a('s_lshl_b32 s38, s3, 25'); a('s_add_u32 s38, s38, s44')
            a('s_load_dword s96, s[66:67], s38'); a('s_load_dword s97, s[68:69], s38')
            if self.tlb > 1: a('s_add_u32 s38, s38, 0x1fff00'); a('s_load_dword s96, s[66:67], s38'); a('s_load_dword s97, s[68:69], s38')
        if self.cla: self.claim(22, 23, 24); assert self.CL >= 15
        self.wpf(7)
        if self.h16:
            assert self.ja and self.mz and not self.home and not self.wsw
            a('s_lshl_b32 s47, s36, 15'); a('s_lshl_b32 s38, s37, 9'); a('s_add_u32 s47, s47, s38'); a(f's_add_u32 s47, s47, 0x{POFF:x}')
            a(f's_mul_i32 s48, s37, {self.h16 - 512}'); a('s_add_u32 s48, s48, 7168')
        else:
            a(f's_lshl_b32 s47, s36, 15'); a('s_lshl_b32 s38, s37, 10'); a('s_and_b32 s48, s38, 0x2000'); a('s_add_u32 s38, s38, s48')
            a('s_add_u32 s47, s47, s38'); a(f's_add_u32 s47, s47, 0x{POFF:x}')
            a('s_lshl_b32 s48, s37, 7'); a('s_sub_u32 s48, s48, s38'); a(f's_add_u32 s48, s48, {MLO}')
        a(f'v_lshlrev_b32 v{self.vL16}, 4, v0')
        if self.rm:
            for j in range(3): place(j)
        else:
            for j in range(1, 3): a(f's_add_u32 s{40+j}, s40, {j * NW * 8192}')
        self.srd(88, 66, 0); self.srd(92, 68, 0)
        if self.flex:
            a(f's_add_u32 s21, s44, {4 * NW * 8192}'); a('s_lshl_b32 s20, s36, 7'); a(f's_add_u32 s20, s20, 0x{HOFF:x}')
        else:
            if self.fx2:
                assert sum(n for n, r in self.fx2) == NW and sum(n * r for n, r in self.fx2) == 512 and self.PFA
                a(f's_add_u32 s21, s44, {4 * NW * 8192 + 0x2000000}'); a('s_lshl_b32 s20, s36, 7'); a(f's_add_u32 s20, s20, 0x{HOFF:x}')
            a('s_mul_i32 s38, s39, 9'); a('s_min_u32 s51, s37, 8'); a('s_add_u32 s38, s38, s51')
            a('s_cmp_lt_u32 s37, 8'); a('s_cselect_b32 s22, s3, 0'); a('s_cmp_eq_u32 s22, 3'); a('s_cselect_b32 s22, 10, 9'); a('s_mov_b32 s23, s22')
            a('s_lshl_b32 s38, s38, 9')
            a(f's_add_u32 s44, s44, {4 * NW * 8192}'); a('s_add_u32 s44, s44, s38')
            a('s_lshl_b32 s38, s22, 9'); a('s_add_u32 s90, s44, s38'); a('s_mov_b32 s94, s90')
        self.srd(12, 68, 0x8000000); self.srd(16, 86, 0x20000000)
        if self.wsw:
            a('s_lshl_b32 s38, s3, 20'); a('s_add_u32 s38, s38, s47'); a(f'buffer_load_dword v17, off, {WS}, s38 sc1')
        self.stamp(0); self.stamp(32, src='s34'); self.stamp(33, src='s98')
        if self.nocl: self.stamp(62, src='s100')
        self.bits(f'v{self.vV}', 'v0', 'v18', [(0, 3, 4), (5, 1, 9), (4, 1, 11), (3, 1, LB)])
        a(f's_mul_i32 s45, s3, {self.WLDS}'); a(f's_add_u32 s45, s45, {self.TB}')
        a(f'v_add_u32 v{self.vDs}, s45, v{self.vL16}')
        self.bits(f'v{self.vQo}', 'v0', 'v18', [(0, 2, 4), (4, 2, 6)])
        a('v_and_b32 v18, 2, v0'); a('v_cmp_eq_u32 vcc, 2, v18')
        a(f'v_mov_b32 v{self.vIQ}, 0x44444444'); a('v_mov_b32 v18, 0xeeeeeeee'); a(f'v_cndmask_b32 v{self.vIQ}, v{self.vIQ}, v18, vcc')
        a('v_and_b32 v18, 3, v0'); a('s_mov_b32 s38, 0x55555555'); a(f'v_mul_lo_u32 v{self.vIP}, v18, s38')
        a('v_and_b32 v18, 4, v0'); a('v_cmp_eq_u32 vcc, 4, v18')
        a('v_mov_b32 v18, 0xffff'); a('v_mov_b32 v19, 0xffff0000')
        M = self.vM
        a(f'v_cndmask_b32 v{M}, v18, 0, vcc'); a(f'v_cndmask_b32 v{M+1}, 0, v18, vcc')
        a(f'v_cndmask_b32 v{M+2}, v19, 0, vcc'); a(f'v_cndmask_b32 v{M+3}, 0, v19, vcc')
        self.bits(f'v{self.vBias}', 'v0', 'v19', [(4, 1, 0), (2, 1, 1), (1, 1, 2), (3, 1, 3), (5, 1, 4)])
        a('s_lshl_b32 s46, s3, 4'); a('s_add_u32 s46, s46, s36'); a('s_lshl_b32 s46, s46, 9')
        a('s_mov_b32 s49, 0'); a(f's_mov_b32 s51, 0x{f2u(CS):x}')
        if self.mz: a(f's_mov_b32 s50, 0x{f2u({1: 32.0, 2: 4.0, 3: -1.0}[self.mz]):x}')
        a(f's_mov_b32 s53, {self.Q1L}'); a('s_lshl_b32 s54, s3, 10'); a('s_lshl_b32 s55, s3, 3')
        a('s_lshl_b32 s56, s36, 9'); a(f's_add_u32 s56, s56, 0x{QOFF + 3 * 8192:x}')
        a('v_mov_b32 v18, 0'); a('v_mov_b32 v19, 0')
        a(f'ds_write_b64 v18, v[18:19] offset:{self.CO[0]}')
        a('s_lshl_b32 s57, s3, 8'); a(f's_add_u32 s57, s57, {self.ST}'); a('s_mov_b32 s58, 0'); a(f's_lshl_b32 s4, s5, {15 if self.nocl else 23}'); a('s_and_b32 s4, s4, 0x80000000')
        if self.lv:
            mid = self.lv.index(self.depth) if self.mid is None else self.mid
            a(f's_mov_b32 s59, {mid if not self.slow else self.slow[0]}')
            if self.slow and len(self.slow) > 3: a('s_cmp_ge_u32 s36, 8'); a(f's_cselect_b32 s59, {self.slow[3]}, s59')
            if self.cps:
                a('s_lshl2_add_u32 s24, s37, s3'); a('s_lshl_b32 s24, s24, 7'); a(f's_add_u32 s24, s24, 0x{COFF:x}')
                lo = (mid if not self.slow else self.slow[0]) - 1
                a(f's_mov_b32 s20, 0x{OOB:x}'); a(f's_mov_b32 s21, {-self.th[lo] if lo >= 0 else 100}'); a('s_mov_b32 s22, 0')
            if self.odd and not self.nocl:
                a('s_or_b32 s38, s6, s7'); a(f's_cselect_b32 s59, {mid}, s59')
                if self.cps: a(f's_cselect_b32 s21, {-self.th[-1]}, s21')
        assert not self.cps
        if self.hp:
            a('s_lshr_b32 s20, s36, 1'); a('s_lshl2_add_u32 s20, s20, s3'); a('s_lshl_b32 s20, s20, 8'); a(f's_add_u32 s20, s20, 0x{HOFF:x}')
            a('s_and_b32 s38, s36, 1'); a('s_mul_i32 s21, s38, 14'); a('s_add_u32 s21, s21, s37')
            a('s_lshl_b32 s24, s38, 21'); a('s_lshl_b32 s38, s37, 15'); a('s_add_u32 s24, s24, s38')
            a('s_lshl3_add_u32 s25, s21, s20'); a('s_mov_b32 s35, 0'); a('s_mul_i32 s21, s21, 27')
        if self.bst: a('s_mov_b32 s26, s59')
        LP = {tuple(k): v for k, v in self.p2l}
        N1 = sum(1 for v in LP.values() for x in v if x < 40); N0 = N1 + sum(len(v) for v in self.p1l.values())
        assert N0 <= 16
        for p in range(self.p0, N0):
            self.load(0, p, wait=self.pw[min(p - self.p0, len(self.pw) - 1)] if isinstance(self.pw, list) else self.pw)
            if p == self.CL: self.armS()
            self.wpf(p)
        self.prologue = False
        entry_vmq = [(0, i) for i in range(N0)]; self.vmq = list(entry_vmq)
        nQ = self.nQ
        for s in range(2):
            a.label(f'L_A{s}')
            assert [(x[0] ^ s, x[1]) for x in self.vmq] == entry_vmq, (self.vmq, entry_vmq)
            self.lq = []
            n = N0; self.dyn = bool(self.lv)
            while n < 73:
                if self.slow and not self.fb and (s, n) == tuple(self.slow[1:3]): a(f's_max_u32 s59, s59, {mid}')
                if self.bst and n == self.bst[1]: a('s_mov_b32 s59, s26')
                if s == 0 and n in self.fine:
                    a('s_mul_i32 s99, s49, 5'); self.stamp(44 + self.fine.index(n), 's99', 18)
                for i, (c0, c1) in enumerate(self.cps):
                    r = 16 + i % 2
                    if n == c1:
                        self.need_vm(('cp', i))
                        a(f'v_readfirstlane_b32 s38, v{r}'); a(f's_sub_u32 s38, s38, s{25 + i % 2}'); a('s_mov_b32 s59, 0')
                        for t in self.th: a(f's_cmp_ge_i32 s38, {t}'); a('s_addc_u32 s59, s59, 0')
                for i, (c0, c1) in enumerate(self.cps):
                    r = 16 + i % 2
                    if n == c0:
                        assert not (c0 <= nQ + 3 and c1 > nQ) and c1 < 73
                        a(f'v_mov_b32 v{r}, 1'); a(f's_mov_b32 s{25 + i % 2}, s21'); a('s_add_u32 s21, s21, s22')
                        a('s_mov_b64 exec, 1'); a(f'buffer_atomic_add v{r}, off, {WS}, s20 sc0 sc1'); a('s_mov_b64 exec, -1')
                        self.vmq.append(('cp', i))
                if 'B' in self.wb and (s, n) == (1, 20): self.dirty()
                if self.eq and n == self.eq[1]:
                    assert self.eq[0] >= nQ + 4 and n <= self.PFA and not self.fx2 and not self.flex and not self.xpf and not self.vpf
                    self.need_vm(('cp', 'e1')); a('s_mov_b32 s58, 0')
                    self.maxtree(range(self.vQ, self.vQ + 8), 18)
                    if s == 0: a('s_cmp_eq_u32 s49, 0'); a('s_cbranch_scc1 L_En')
                    a(f's_cbranch_vccz L_E{s}')
                    if s == 0: a.label('L_En')
                    main = list(self.vmq); am = self.a; self.a = a2 = Asm(); dyn = self.dyn; self.dyn = False
                    a2.label(f'L_E{s}'); a2('s_mov_b32 s58, 1')
                    for m in range(n, 73):
                        if self.hp and m in dict(self.hp[0]): self.publish(dict(self.hp[0])[m])
                        self.load(s, m, wait=self.eq[2] or False)
                    a2(f's_mov_b32 s59, {self.eq[3]}')
                    self.stamp(1, 's49')
                    if self.diag: a2('s_add_u32 s7, s7, 1')
                    a2(f's_branch L_Xok{s}')
                    fastq = list(self.vmq); self.vmq = main; self.a = am; self.dyn = dyn
                    self.later.append(lambda a2=a2: a.L.extend(a2.L))
                if self.hp and n in dict(self.hp[0]): self.publish(dict(self.hp[0])[n])
                for n0, n1, el, R in (self.hp[5] if self.hp else []):
                    assert n1 < nQ or (n0 >= nQ + 4 and n1 <= self.PFA)
                    if n == n0: self.board()
                    if n == n1:
                        self.need_vm(('cp', 'bd'))
                        a(f's_movk_i32 s34, {el}'); a(f's_movk_i32 s32, {R}'); a('s_call_b64 s[96:97], L_help')
                if self.flex and n == self.KF:
                    self.need_vm(('cp', 0))
                    R = f's{22 + s}'
                    a('v_readfirstlane_b32 s38, v16'); a('s_add_u32 s38, s38, 1')
                    a(f's_mov_b32 {R}, {self.flex[0][1]}'); a(f's_mul_i32 s44, s38, {R}')
                    b = 0
                    for (n0, r0), (n1, r1) in zip(self.flex, self.flex[1:]):
                        b += n0
                        a(f's_sub_i32 s39, s38, {b}'); a('s_max_i32 s33, s39, 0'); a(f's_mul_i32 s33, s33, {r0 - r1}'); a('s_sub_u32 s44, s44, s33')
                        a('s_cmp_ge_i32 s39, 0'); a(f's_cselect_b32 {R}, {r1}, {R}')
                    a('s_lshl_b32 s44, s44, 9'); a('s_add_u32 s44, s44, s21'); a('s_add_u32 s21, s21, 0x2000000')
                    a(f's_lshl_b32 s90, {R}, 9'); a('s_add_u32 s90, s90, s44'); a('s_min_u32 s90, s90, s10'); a('s_mov_b32 s94, s90')
                    self.stamp(40, 's49', 18, 's38')
                if n == nQ:
                    self.need_vm((s, self.KF + 7 if self.flex else 39))
                    if s == 0:
                        a('s_cmp_eq_u32 s49, 0'); a('s_cbranch_scc1 L_st0'); st_in = list(self.vmq)
                    self.qk1(s, {('u', 1): [(s, n)], ('u', 6): [(s, n + 1)], ('x', 0): [(s, n + 2)], ('e', 0): [(s, n + 3)]}, True)
                    n += 4
                    if s == 0: a.label('L_st0r'); st_out = list(self.vmq)
                    for z in self.zero_acc(): a(z)
                    continue
                self.load(s, n)
                if s == 0 and (n == self.CL or any(x[0] == n for x in self.spf)):
                    l = self.lab('L_it0')
                    a('s_cmp_lg_u32 s49, 0'); a(f's_cbranch_scc1 {l}')
                    if n == self.CL: self.armS()
                    self.wpf(n)
                    a.label(l)
                CK = self.TK if self.flex else (self.PFA or self.PF)
                if s == 0 and n == CK - 8:
                    assert n >= nQ + 4 or (CK < nQ and n > self.CL)
                    l = self.lab('L_it0'); a('s_cmp_lg_u32 s49, 0'); a(f's_cbranch_scc1 {l}')
                    a('v_mov_b32 v22, 0'); a(f'global_load_dword v23, v22, {DBG} offset:{self.CNTA} sc1'); a.label(l)
                if s == 0 and n == CK:
                    self.stamp(22, 's49')
                    l = self.lab('L_it0'); a('s_cmp_lg_u32 s49, 0'); a(f's_cbranch_scc1 {l}')
                    a('s_waitcnt vmcnt(8)'); self.wait_counter(22, 23, 21, self.CNTA, NCHAIN, pre=True)
                    a('v_readfirstlane_b32 s27, v23'); a('s_add_u32 s27, s27, s5')
                    if self.la:
                        assert self.PFA and self.PFA < self.PF
                        x = self.lab('L_la'); a(f's_cmp_eq_u32 s27, {NCHAIN + 1}'); a(f's_cbranch_scc0 {x}')
                        self.armP(self.la)
                        def far(x=x, l=l): a.label(x); self.armP('sc1'); a(f's_branch {l}')
                        self.later.append(far)
                    a.label(l)
                if (self.flex and n == self.TK) or (self.fx2 and n == self.PFA):
                    a('v_mov_b32 v16, 1')
                    a('s_mov_b64 exec, 1'); a(f'buffer_atomic_add v16, off, {WS}, s20 sc0 sc1'); a('s_mov_b64 exec, -1')
                    a('s_add_u32 s20, s20, 2048')
                    self.vmq.append(('cp', 0))
                if self.vpf and n == self.vpf[0]:
                    a(f'v_lshlrev_b32 v19, 3, v{self.vL16}'); a(f's_mov_b32 m0, {self.TB + 4 * self.WLDS}')
                    a(f'buffer_load_dword v19, {V4}, s44 offen {self.xpol} lds'); self.vmq.append(('cp', 'x'))
                for n0, g in (self.vpf or [0])[1:]:
                    if n == n0:
                        a(f'v_lshlrev_b32 v19, 3, v{self.vL16}'); a(f's_mov_b32 m0, {self.TB + 4 * self.WLDS}'); a(f's_add_u32 s38, s{40 + g}, 0x2000000')
                        if g == 4: a('s_mov_b32 exec_hi, 0xff')
                        a(f'buffer_load_dword v19, {K_SRD}, s38 offen {self.xpol} lds'); self.vmq.append(('cp', 'x'))
                        if g == 4: a('s_mov_b32 exec_hi, -1')
                if self.eq and n == self.eq[0]: self.qload(); self.vmq += [('cp', 'e0'), ('cp', 'e1')]
                if n == self.PFA and self.hp: self.board()
                if n == self.PFA:
                    assert n >= nQ + 4 and n < self.PF
                    self.qload(); self.vmq += [('cp', 'qa'), ('cp', 'qb')]
                if n == self.PF:
                    assert n >= nQ + 4
                    self.qload(); self.vmq += [('cp', 'q0'), ('cp', 'q1')]
                n += 1
            self.dyn = False
            if self.fb: a(f's_mov_b32 s59, {self.fb[1]}')
            if self.PFA:
                self.need_vm(('cp', 'qb')); keep = list(self.vmq)
                if self.fx2: a('v_readfirstlane_b32 s35, v16')
                self.stamp(1, 's49')
                self.maxtree(range(self.vQ, self.vQ + 8), 18)
                a(f's_cbranch_vccz L_Xok{s}')
                if self.nox: a('s_cmp_lg_u32 s49, 0'); a(f's_cbranch_scc1 L_Xok{s}')
                if self.fb and len(self.fb) > 2: a(f's_mov_b32 s59, {self.fb[2]}')
            def ahead(what):
                for g in what:
                    if g == 'v': a(f'buffer_load_dword v19, {V4}, s44 offen {self.xpol} lds')
                    else:
                        a(f's_add_u32 s38, s{40 + g}, 0x2000000')
                        if g == 4: a('s_mov_b32 exec_hi, 0xff')
                        a(f'buffer_load_dword v19, {K_SRD}, s38 offen {self.xpol} lds')
                        if g == 4: a('s_mov_b32 exec_hi, -1')
                    self.vmq.append(('cp', 'x'))
            if self.xpf:
                assert self.PFA and not self.flex
                a(f'v_lshlrev_b32 v19, 3, v{self.vL16}'); a(f's_mov_b32 m0, {self.TB + 4 * self.WLDS}')
                ahead(self.xpf[0])
            if self.hp:
                if self.hl and s == 1: a('s_cmp_eq_u32 s49, 3'); a(f's_cselect_b32 s34, {self.hl[0]}, {self.hp[1]}')
                else: a(f's_movk_i32 s34, {self.hp[1]}')
                a('s_movk_i32 s32, 0'); a(f's_call_b64 s[96:97], L_help')
            self.need_vm(('cp', 'q1'))
            for x in (self.xpf or [])[1:]:
                self.maxtree(range(self.vQ, self.vQ + 8), 18)
                a(f's_cbranch_vccz L_Xok{s}')
                self.qload(); ahead(x); a(f's_waitcnt vmcnt({len(x)})')
            if self.PFA: self.vmq = keep
            else: self.stamp(1, 's49')
            a.label(f'L_X{s}')
            self.maxtree(range(self.vQ, self.vQ + 8), 18)
            a(f's_cbranch_vccz L_Xok{s}')
            a.label(f'L_Xpoll{s}')
            if self.fb and len(self.fb) > 3: a('s_sub_i32 s59, s59, 1'); a(f's_max_i32 s59, s59, {self.fb[0]}')
            elif self.fb: a(f's_mov_b32 s59, {self.fb[0]}')
            self.timeout()
            if self.hp and self.hp[4]:
                a(f'v_lshrrev_b32 v19, 1, v{self.vL16}')
                a(f'buffer_load_dword v16, v19, {WS}, s20 offen sc1')
            self.qload()
            a('s_waitcnt vmcnt(0)')
            if self.hp and self.hp[4]:
                self.maxtree(range(self.vQ, self.vQ + 8), 18)
                a(f's_cbranch_vccz L_Xok{s}')
                a('s_movk_i32 s32, 0'); a(f's_call_b64 s[96:97], L_help'); a(f's_branch L_Xpoll{s}')
            else: a(f's_branch L_X{s}')
            a.label(f'L_Xok{s}')
            if self.eq:
                t = [x for x in self.vmq if x not in (('cp', 'q0'), ('cp', 'q1'))]
                assert fastq[-len(t):] == t, (fastq, t)
                self.vmq = list(fastq)
            self.stamp(6, 's49')
            if self.hp and 73 in dict(self.hp[0]): self.publish(dict(self.hp[0])[73])
            if s == 0: a('s_cmp_eq_u32 s49, 0'); a('s_cbranch_scc1 L_first')
            save = list(self.vmq)
            if s == 1 and self.lst: a('s_cmp_eq_u32 s49, 3'); a('s_cbranch_scc1 L_last'); last_save = save
            self.pass2(s, LP)
            if self.diag: a('s_memrealtime s[28:29]')
            if s == 0:
                if not self.fin: a('s_cmp_eq_u32 s49, 4'); a('s_cbranch_scc1 L_fin')
                after = list(self.vmq)
            a.label(f'L_PV{s}')
            self.pv1f(s)
            if self.diag: self.stamp(11, 's49', src='s28')
            a('s_add_u32 s49, s49, 1'); self.nextP(); a('s_add_u32 s53, s53, 512')
            a('s_add_u32 s56, s56, 8192'); a('s_mov_b32 s46, s56')
            if self.hp: a('s_add_u32 s35, s35, 10')
            if self.odd and (self.odd & 1) != s and not self.fb:
                a(f's_cmp_eq_u32 s49, {self.odd}'); a(f's_cselect_b32 s59, {mid}, s59')
            if self.cps and (self.cpon & 1) != s:
                a(f's_cmp_eq_u32 s49, {self.cpon}'); a('s_cselect_b32 s20, s24, s20'); a(f's_cselect_b32 s22, 16, s22'); a('s_cselect_b32 s21, -1, s21')
                a(f's_cselect_b32 s59, {mid}, s59')
            if s == 0: first_save, first_after = save, after
        if self.lst:
            assert self.fin
            a('s_branch L_A0'); self.vmq = list(last_save); self.last()
        else: a('s_cmp_lg_u32 s49, 4'); a('s_cbranch_scc1 L_A0')
        if self.fin: self.final()
        else:
            a('s_mov_b32 s94, 0')
            for z in self.zero_acc(): a(z)
            a('s_branch L_Xpoll0')
        a.label('L_first')
        self.vmq = first_save; self.lq = []
        a('s_lshl_b32 s38, s3, 9'); a(f'v_add_u32 v18, s38, v{self.vQo}')
        a(f'ds_write_b128 v18, {vr(self.vQ, 4)} offset:{self.Q1L}')
        a(f'ds_write_b128 v18, {vr(self.vQ + 4, 4)} offset:{self.Q1L + 256}')
        for n in range(73, 80): self.load(0, n, wait=False)
        self.share()
        self.need_vm(('cp', 'q1'))
        a('s_waitcnt lgkmcnt(0)'); a('s_barrier')
        pts = [('u', 1), ('u', 4), ('u', 7), ('x', 0), ('e', 0)]; FL = {}
        for i in range(N1): FL.setdefault(pts[i * len(pts) // N1], []).append((1, i))
        self.qk1(0, FL, False)
        assert self.vmq == first_after, (self.vmq, first_after)
        a('s_branch L_PV0')
        a.label('L_fin'); self.stamp(11, 's49'); self.stamp(40, src='s7')
        if 'b' in self.wb: self.dirty()
        if '1' in self.wb:
            a('s_and_b32 s38, s36, 1'); a('s_or_b32 s38, s38, s37'); a('s_or_b32 s38, s38, s3'); a('s_cbranch_scc1 L_end')
            a('buffer_wbl2 sc1')
        a('s_branch L_end')
        a.label('L_st0')
        self.vmq = st_in; self.dyn = bool(self.lv)
        for n in range(nQ, nQ + 4): self.load(0, n)
        self.dyn = False
        assert self.vmq == st_out, (self.vmq, st_out)
        a('s_branch L_st0r')
        for f in self.later: f()
        if self.hp: self.help()
    CKR = [64, 66, 68, 70, 72, 74, 76, 78, 80, 82]
    def clk(self):
        if self.cyc and self.ck: self.a(f's_memtime s[{self.CKR[self.ck - 1]}:{self.CKR[self.ck - 1] + 1}]'); self.ck += 1
    def dirty(self):
        a = self.a
        a('s_mul_i32 s38, s36, 14'); a('s_add_u32 s38, s38, s37'); a('s_lshl2_add_u32 s38, s38, s3'); a('s_lshl_b32 s38, s38, 12'); a('s_add_u32 s38, s38, 0x2000000')
        for i in range(4): a(f'buffer_store_dwordx4 v[8:11], v{self.vL16}, {WS}, s38 offen offset:{i * 1024}')
    def publish(self, v):
        a = self.a
        a(f's_add_u32 s38, s35, {v}'); a('v_mov_b32 v18, s38')
        a('s_mov_b64 exec, 1'); a(f'buffer_store_dword v18, off, {WS}, s25' + self.N('b')); a('s_mov_b64 exec, -1')
        self.vmq.append(('cp', 'pg'))
    def board(self):
        self.a(f'v_lshrrev_b32 v19, 1, v{self.vL16}')
        self.a(f'buffer_load_dword v16, v19, {WS}, s20 offen sc1'); self.vmq.append(('cp', 'bd'))
    def help(self):
        a = self.a; lo, hi = self.hp[2:4]
        a.label('L_help')
        a('v_subrev_u32 v16, s35, v16')
        a('v_cmp_ge_i32 vcc, s34, v16')
        a('s_and_b32 s33, vcc_lo, 0xfffffff'); a('s_cbranch_scc0 L_help9')
        a('s_bcnt1_i32_b32 s38, s33'); a('s_max_u32 s38, s38, s32'); a('s_bfe_u32 s32, s21, 0x50001'); a('s_mul_i32 s38, s38, s32'); a('s_lshr_b32 s38, s38, 5')
        a('v_mbcnt_lo_u32_b32 v17, s33, 0'); a('v_cmp_eq_u32 vcc, s38, v17')
        a('s_add_u32 s21, s21, 23')
        a('s_and_b32 s38, vcc_lo, s33'); a('s_cbranch_scc0 L_help9')
        a('s_ff1_i32_b32 s32, s38'); a('s_and_b32 s38, s21, 1'); a(f's_mov_b32 m0, {self.TB + 4 * self.WLDS}')
        a('v_readlane_b32 s33, v16, s32');
        if self.hl:
            assert not self.hp[5]
            a('s_cmp_eq_u32 s49, 3'); a(f's_cselect_b32 s39, {self.hl[0] - self.hl[1]}, {self.hp[1] - lo}'); a(f's_cselect_b32 s30, {self.hl[2]}, {hi}')
            a('s_max_i32 s33, s33, s39'); a('s_add_i32 s33, s33, s38'); a('s_add_i32 s33, s33, 2'); a('s_min_i32 s33, s33, s30')
        else: a(f's_sub_i32 s39, s34, {lo}'); a('s_max_i32 s33, s33, s39'); a('s_add_i32 s33, s33, s38'); a('s_add_i32 s33, s33, 2'); a(f's_min_i32 s33, s33, {hi}')
        a('s_cmp_ge_u32 s32, 14'); a('s_cselect_b32 s38, 14, 0'); a('s_cselect_b32 s39, 0x200000, 0'); a('s_sub_u32 s32, s32, s38')
        a('s_sub_u32 s39, s39, s24'); a('s_add_u32 s39, s39, s40')
        a('s_cmp_lt_i32 s33, 0'); a('s_cselect_b32 s38, 10, 0'); a('s_cselect_b32 s30, 0x2000000, 0'); a('s_add_i32 s33, s33, s38'); a('s_sub_u32 s39, s39, s30')
        a('s_cmp_ge_i32 s33, 10'); a('s_cselect_b32 s38, 10, 0'); a('s_cselect_b32 s30, 0x2000000, 0'); a('s_sub_i32 s33, s33, s38'); a('s_add_u32 s39, s39, s30')
        a('s_cmp_ge_u32 s33, 5'); a('s_cselect_b64 s[28:29], s[12:13], s[8:9]'); a('s_cselect_b32 s38, 0, 3'); a('s_add_u32 s33, s33, s38')
        a('s_mov_b32 s30, 0x8000000'); a('s_mov_b32 s31, 0x20000')
        a('s_cmp_ge_u32 s33, 5'); a('s_cselect_b32 s38, 5, 0'); a('s_sub_u32 s33, s33, s38')
        a(f's_mul_i32 s38, s33, {NW * 8192}'); a('s_add_u32 s39, s39, s38')
        a(f'v_lshlrev_b32 v19, 3, v{self.vL16}')
        a('s_lshl_b32 s38, s32, 6')
        a('s_cmp_lg_u32 s33, 4'); a('s_cbranch_scc1 L_help2')
        a('s_mul_i32 s38, s32, 36'); a('s_min_u32 s32, s32, 8'); a('s_add_u32 s38, s38, s32'); a('s_mul_i32 s32, s3, 7'); a('s_sub_u32 s38, s38, s32')
        a('s_mov_b32 exec_hi, 0xff')
        a.label('L_help2')
        a('s_lshl_b32 s38, s38, 9'); a('s_add_u32 s39, s39, s38')
        a(f'buffer_load_dword v19, s[28:31], s39 offen {self.xpol} lds')
        a('s_mov_b32 exec_hi, -1')
        if self.diag: a('s_add_u32 s7, s7, 0x100')
        a.label('L_help9')
        a('s_setpc_b64 s[96:97]')
    def last(self):
        a = self.a; Q = self.vQ; AC = self.vAcc
        a.label('L_last'); self.lq = []
        for x in self.staddr(): a(x)
        self.ds('ds_read_b96 v[20:22], v18', 'p')
        sets = [(0, 0), (0, 1), (1, 0), (1, 1), (2, 0)]
        prep = lambda i: self.aprep(*sets[i], Q + 4 * (i % 2))
        def hook(p):
            if p == ('u', 0):
                for n in (73, 74, 75): self.load(1, n, False, self.kreg(0, 0) + 4 * (n - 72))
            if p == ('u', 1):
                for n in (76, 77, 78, 79): self.load(1, n, False)
            if p[0] == 'u' and 2 <= p[1] < 6:
                for n in (52 + 2 * p[1], 53 + 2 * p[1]): self.need_vm((1, n)); self.copy(1, 0, 2, n)
            if p == ('p', 7):
                self.need_vm(('cp', 'q1')); self.need_lds('p')
                for x in prep(0)[:2]: a(x)
            if p == ('p', 8):
                for x in prep(0)[2:]: a(x)
        self.qk_part(0, hook, part=1, tb=16)
        for i, (k, P) in enumerate(sets):
            fill = self.epi_pre() if i == 4 else prep(i + 1)
            if i == 4:
                for x in fill: a(x)
                fill = []
            for t in range(4):
                b, tags = self.bop(1, 0, 2, k, P, t)
                if i < 2: self.need_vm((1, 64 + 4 * i + t)); self.copy(1, 0, 2, 64 + 4 * i + t)
                if (i, t) == (2, 0): self.need_vm((1, 72)); self.copy(1, 0, 2, 72)
                if i == 4: self.need_vm((1, 73 + 2 * t))
                for tg in tags: self.need_lds(tg)
                a(f'v_smfmac_f32_16x16x64_bf16 {vr(AC + 4 * t, 4)}, {vr(Q + 4 * (i % 2), 4)}, {rr(b, 8)}, v{self.vIP}')
                n = (len(fill) + (3 - t)) // (4 - t)
                got = fill[:n]; fill = fill[n:]
                for x in got: a(x)
                if (i, t) == (4, 2) and self.lst > 1:
                    for x in self.merge(0): a(x)
        for x in (self.merge(0) if self.lst == 1 else []) + self.merge(2): a(x)
        self.epilogue(0, 1)
        self.stamp(16, 's49')
        for n in range(72, 76): self.ds(f'ds_read_b128 {ar(4 * (n - 72), 4)}, v{self.vDs} offset:{self.ldsslot(0, n) * 1024}', ('c', n))
        for j in range(8): self.copy(0, 0, 0, 56 + j); self.copy(0, 0, 0, 64 + j)
        self.qk_part(0, lambda p: None, part=2)
        sets = [(0, 0), (0, 1), (2, 0), (1, 0), (1, 1)]
        lred = self.lred()
        def prep(i):
            k, P = sets[i]
            return (self.pack(k) if P == 0 else []) + self.aprep(k, P, Q + 4 * (i % 2))
        for x in prep(0): a(x)
        for i, (k, P) in enumerate(sets):
            fill = prep(i + 1) if i + 1 < len(sets) else []
            if i == len(sets) - 1:
                fill = lred + self.epi_pre(); lred = []
            for t in range(4):
                b, tags = self.bop(0, 0, 0, k, P, t)
                if k == 2 and t < 2: b = 256 + 8 * t
                for tg in tags: self.need_lds(tg)
                a(f'v_smfmac_f32_16x16x64_bf16 {vr(AC + 4 * t, 4)}, {vr(Q + 4 * (i % 2), 4)}, {rr(b, 8)}, v{self.vIP}')
                n = (len(fill) + (3 - t)) // (4 - t)
                got = fill[:n]; fill = fill[n:]
                if len(got) < 2 and lred: got.append(lred.pop(0))
                for x in got: a(x)
        for x in self.merge(0) + self.merge(2): a(x)
        self.epilogue(1, 1)
        self.stamp(11, 's49')
        a('s_add_u32 s49, s49, 1'); self.nextP(); a('s_add_u32 s46, s56, 8192')
        a('s_barrier')
    def final(self):
        a = self.a; Q = self.vQ; AC = self.vAcc; T = self.vT; m = self.vMC; L = self.vL
        self.lq = []; self.vmq = []
        def fb(k, P, t): return 256 + 64 + 8 * (4 * P + t) if k == 1 else self.bop(1, 0, 2, k, P, t)[0]
        for n in range(56, 72):
            a(f'ds_read_b128 {rr(256 + 64 + 8 * ((n - 56) % 8) + 4 * ((n - 56) // 8), 4)}, v{self.vDs} offset:{self.ldsslot(1, n) * 1024}')
        KA = 96; A = [136, 140, 144]; PT = 148
        for z in self.zero_acc(): a(z)
        if self.fin > 1:
            for r in range(0, 40, 2): a(f'v_mov_b64 {vr(KA + r, 2)}, 0')
            a(f'v_cmp_gt_u32 s[40:41], s23, v{self.vBias}'); a(f's_mov_b32 s42, 0x{f2u(2.0 ** 40 if self.fin == 2 else 0.0):x}')
            a('v_mov_b32 v23, 0xff800000'); a(f'v_mov_b32 v{m}, 0')
            if self.mz: a(f's_mov_b32 s43, 0x{f2u(2.0 ** -40):x}'); a(f's_mov_b32 s42, 0x{(80 << 23) if self.fin == 2 else (46 << 23) + (1 << 22) if self.fin == 4 else 0:x}')
        a.label('L_Fpoll')
        self.timeout()
        self.qload()
        a('s_waitcnt vmcnt(0) lgkmcnt(0)')
        self.maxtree(range(Q, Q + 8), 18)
        a('s_cbranch_vccnz L_Fpoll')
        self.stamp(6, 's49')
        self.ck = 1; self.clk()
        def pv(A_, k, P, t): return f'v_smfmac_f32_16x16x64_bf16 {vr(AC + 4 * t, 4)}, {vr(A_, 4)}, {rr(fb(k, P, t), 8)}, v{self.vIP}'
        if self.fin > 1:
            M = []
            for u in range(10):
                for h in range(2): M.append(f'v_smfmac_f32_16x16x64_bf16 {vr(KA + 4 * u, 4)}, {vr(Q + 4 * h, 4)}, {rr(self.kreg(1, u) + 8 * h, 8)}, v{self.vIQ}')
            M += [pv(A[0], 0, 0, t) for t in range(4)] + [pv(A[1], 0, 1, t) for t in range(4)] + [pv(A[0], 1, 0, t) for t in range(4)]
            for t in range(4): M += [pv(A[1], 1, 1, t), pv(A[2], 2, 0, t)]
            G = [[] for _ in M]
            def put(g, ops, per=1):
                for i, x in enumerate(ops): G[g + i // per].append(x)
            for u in range(10):
                ac = KA + 4 * u; t = PT + 2 * (u % 2)
                put(2 * u + 4, [f'v_add_f32 v{t+1}, v{ac+1}, v{ac+3}', f'v_add_f32 v{t}, v{ac}, v{ac+2}'], 2)
                put(2 * u + 5, [f'v_add_f32_dpp v{T + u // 4}, v{t+1}, v{t} quad_perm:[1,1,3,3] row_mask:0x{1 << (u % 4):x} bank_mask:0xf'])
            if not self.mz: put(5, [f'v_add_f32_dpp v{m}, v{PT+1}, v{PT} quad_perm:[1,1,3,3] {FULL}',
                    f'v_max_f32_dpp v{m}, v{m}, v{m} quad_perm:[2,3,0,1] {FULL}', f'v_max_f32_dpp v{m}, v{m}, v{m} row_ror:4 {FULL}',
                    f'v_max_f32_dpp v{m}, v{m}, v{m} row_ror:8 {FULL}', f'v_mul_f32 v{m}, s51, v{m}'])
            ex = lambda k: [f'v_fma_f32 v{T+k}, v{T+k}, s51, -v{m}', f'v_exp_f32 v{T+k}, v{T+k}']
            put(11, ex(0)); put(13, self.pack(0)[:2], 2); put(14, self.pack(0)[2:]); put(15, self.aprep(0, 0, A[0]), 2)
            put(17, self.aprep(0, 1, A[1])[:2], 2); put(18, self.aprep(0, 1, A[1])[2:])
            put(19, ex(1)); put(21, self.pack(1)[:2], 2); put(22, self.pack(1)[2:])
            put(23, [f'v_cndmask_b32 v{T+2}, v23, v{T+2}, s[40:41]'] + ex(2)[:1], 2); put(24, ex(2)[1:])
            put(24, self.aprep(1, 0, A[0]), 2); put(25, self.pack(2)[:1]); put(26, self.pack(2)[1:3], 2); put(27, self.pack(2)[3:4]); put(28, self.pack(2)[4:])
            put(28, self.aprep(1, 1, A[1]), 2); put(30, self.aprep(2, 0, A[2]), 2)
            lr = self.lred()
            put(26, lr[:2]); put(29, lr[2:5]); put(32, lr[5:6]); put(33, lr[6:9], 3); put(34, lr[9:], 2)
            put(32, self.epi_pre()[:2], 2); put(35, [f'v_subrev_u32 v23, s43, v{L}', 'v_cmp_lt_u32 vcc, s42, v23'] if self.mz else [f'v_cmp_lt_f32 vcc, s42, v{L}'], 2); put(35, self.epi_pre()[2:4], 2)
            put(36, ['s_bitcmp1_b32 vcc_lo, 0', 's_cbranch_scc1 L_Fslow'] + self.epi_pre()[4:], 3)
            put(37, self.merge(0), 3)
            for x, g in zip(M, G):
                a(x)
                for y in g: a(y)
            for x in self.merge(2): a(x)
            a.label('L_Fepi')
            self.clk()
            self.epilogue(1, 0, self.vH)
            self.clk()
            if self.cyc:
                for i in range(self.ck - 1): self.stamp(44 + i, src=f's{self.CKR[i]}')
            self.ck = 0
            a('s_branch L_fin')
            a.label('L_Fslow'); a('s_nop 8')
            for z in self.zero_acc(): a(z)
        self.qk_part(1, lambda p: None)
        sets = [(0, 0), (2, 0), (0, 1), (1, 0), (1, 1)]
        lred = self.lred()
        def prep(i):
            k, P = sets[i]
            return (self.pack(k) if P == 0 else []) + self.aprep(k, P, Q + 4 * (i % 2))
        for x in prep(0): a(x)
        for i, (k, P) in enumerate(sets):
            fill = prep(i + 1) if i + 1 < len(sets) else []
            if i == len(sets) - 1:
                fill = lred + self.epi_pre(); lred = []
            for t in range(4):
                a(pv(Q + 4 * (i % 2), k, P, t))
                n = (len(fill) + (3 - t)) // (4 - t)
                got = fill[:n]; fill = fill[n:]
                if len(got) < 2 and lred: got.append(lred.pop(0))
                for x in got: a(x)
        for x in self.merge(0) + self.merge(2): a(x)
        if self.fin > 1: a('s_branch L_Fepi')
        else:
            self.clk()
            self.epilogue(1, 0, self.vH)
            self.clk()
            if self.cyc:
                for i in range(self.ck - 1): self.stamp(44 + i, src=f's{self.CKR[i]}')
            self.ck = 0
            a('s_branch L_fin')
    def share(self):
        a = self.a; F = self.fx2
        if not F: return
        a('s_add_u32 s35, s35, 1'); a(f's_mov_b32 s25, {F[0][1]}'); a('s_mul_i32 s24, s35, s25')
        b = 0
        for (n0, r0), (n1, r1) in zip(F, F[1:]):
            b += n0
            a(f's_sub_i32 s39, s35, {b}'); a('s_max_i32 s33, s39, 0'); a(f's_mul_i32 s33, s33, {r0 - r1}'); a('s_sub_u32 s24, s24, s33')
            a('s_cmp_ge_i32 s39, 0'); a(f's_cselect_b32 s25, {r1}, s25')
        a('s_lshl_b32 s24, s24, 9'); a('s_add_u32 s24, s24, s21'); a('s_add_u32 s21, s21, 0x2000000')
    def armS(self):
        a = self.a
        if not self.nocl: a('s_waitcnt vmcnt(8)')
        self.confirm(24, 20)
        if not self.oarm and 'N' not in self.wb and not self.la and not self.ja: self.armP('sc1' + self.N('a'))
        self.stamp(30, None, 24)
    def nextP(self):
        if not (self.ja and self.ja[0]): self.a(f's_add_u32 s47, s47, {PIB}')
    def armP(self, pol):
        a = self.a
        a('v_lshl_add_u32 v18, v0, 19, s48'); a('v_mov_b64 v[20:21], -1'); a('v_mov_b64 v[22:23], -1')
        a('s_lshl_b32 s38, s3, 20'); a('s_add_u32 s38, s38, s47'); a(f's_add_u32 s39, s38, {PP2}')
        a(f'buffer_store_dwordx4 v[20:23], v{self.vL16}, {WS}, s39 offen {pol}')
        a('s_mov_b64 exec, 3')
        a(f'buffer_store_dwordx2 v[20:21], v18, {WS}, s38 offen ' + (pol if self.N('M') else 'sc1' + self.N('a')))
        a('s_cmp_lg_u32 s3, 0'); a('s_cselect_b64 exec, -1, 0')
        a(f'buffer_store_dwordx4 v[20:23], v{self.vL16}, {WS}, s38 offen {pol}')
        a('s_mov_b64 exec, -1')
    def qk_part(self, ds_, hook, zero=True, part=3, tb=18):
        a = self.a; T = self.vT; Q = self.vQ; AC = self.vAcc
        def post_a(u):
            ac = AC + 4 * (u % 4); t = tb + 2 * (u % 2)
            a(f'v_add_f32 v{t+1}, v{ac+1}, v{ac+3}'); a(f'v_add_f32 v{t}, v{ac}, v{ac+2}')
        def post_b(u):
            t = tb + 2 * (u % 2)
            a(f'v_add_f32_dpp v{T + u // 4}, v{t+1}, v{t} quad_perm:[1,1,3,3] row_mask:0x{1 << (u % 4):x} bank_mask:0xf')
        for u in range(10 if part & 1 else 0):
            ac = AC + 4 * (u % 4); k = self.kreg(ds_, u)
            a(f'v_smfmac_f32_16x16x64_bf16 {vr(ac, 4)}, {vr(Q, 4)}, {rr(k, 8)}, v{self.vIQ}')
            if u >= 3: post_a(u - 3)
            a(f'v_smfmac_f32_16x16x64_bf16 {vr(ac, 4)}, {vr(Q + 4, 4)}, {rr(k + 8, 8)}, v{self.vIQ}')
            if u >= 3: post_b(u - 3)
            hook(('u', u))
        zf = [f'v_mov_b32 v{AC + r}, 0' for r in list(range(8, 16)) + list(range(8))] if zero else []
        def Z(n=2):
            for _ in range(n):
                if zf: a(zf.pop(0))
        if part == 1:
            z2 = [f'v_mov_b64 {vr(AC + r, 2)}, 0' for r in (8, 10, 12, 14, 0, 2, 4, 6)]
            post_a(7); a(z2[0]); a(z2[1]); post_b(7); hook(('p', 7)); post_a(8); a(z2[2]); a(z2[3]); post_b(8); hook(('p', 8)); post_a(9); a(z2[4]); a(z2[5]); post_b(9); a(z2[6]); a(z2[7])
            return
        a(f'v_cmp_gt_u32 vcc, s{22 + ds_}, v{self.vBias}'); a('v_mov_b32 v23, 0xff800000')
        if part & 1: post_a(7); Z(1); post_b(7); Z(3); post_a(8); Z(1); post_b(8); Z(2); post_a(9); Z(1); post_b(9)
        else: Z(8)
        m = self.vMC; t = 18
        a(f'v_sub_f32 v{T+2}, v{T+2}, v{T+1}'); a(f'v_sub_f32 v{T+1}, v{T+1}, v{T}')
        a(f'v_cndmask_b32 v{T+2}, v23, v{T+2}, vcc')
        a(f'v_max3_f32 v{m}, v{T}, v{T+1}, v{T+2}'); Z()
        a(f'v_max_f32_dpp v{m}, v{m}, v{m} quad_perm:[2,3,0,1] {FULL}'); Z()
        a(f'v_max_f32_dpp v{m}, v{m}, v{m} row_ror:4 {FULL}'); Z()
        a(f'v_max_f32_dpp v{t}, v{m}, v{m} row_ror:8 {FULL}')
        a(f'v_max_f32_dpp v{m}, v{m}, v{m} row_ror:8 {FULL}'); Z()
        a(f'v_permlane16_swap_b32 v{m}, v{t}'); a(f'v_max_f32 v{t+1}, v{m}, v{t}'); a(f'v_max_f32 v{m}, v{m}, v{t}'); Z(8)
        a(f'v_permlane32_swap_b32 v{m}, v{t+1}'); a(f'v_max_f32 v{m}, v{m}, v{t+1}')
        a(f'v_mul_f32 v{m}, s51, v{m}')
        if self.mz:
            a(f'v_cmp_lt_f32 vcc, s50, abs(v{m})'); a(f'v_cndmask_b32 v{m}, 0, v{m}, vcc')
        for k in (0, 2, 1): a(f'v_fma_f32 v{T+k}, v{T+k}, s51, -v{m}')
        for k in (0, 2, 1): a(f'v_exp_f32 v{T+k}, v{T+k}')
        hook(('x', 0))
    def pack(self, k):
        T = self.vT
        o = [f'v_mov_b32_dpp v18, v{T+k} quad_perm:[0,0,0,0] {FULL}',
             f'v_mov_b32_dpp v19, v{T+k} quad_perm:[2,2,2,2] {FULL}',
             f'v_cvt_pk_bf16_f32 v{20+k}, v18, v19']
        if k == 2: o += [f'v_mov_b32_dpp v0, v22 row_shl:4 {FULL}', 'v_permlane32_swap_b32 v22, v0']
        return o
    def aprep(self, k, P, A):
        pp = 20 + k; M = self.vM
        if P == 0:
            return [f'v_and_b32 v{A}, v{pp}, v{M}', f'v_and_b32 v{A+2}, v{pp}, v{M+2}',
                    f'v_and_b32_dpp v{A+1}, v{pp}, v{M+1} row_shr:4 {FULL} bound_ctrl:0',
                    f'v_and_b32_dpp v{A+3}, v{pp}, v{M+3} row_shr:4 {FULL} bound_ctrl:0']
        return [f'v_and_b32 v{A+1}, v{pp}, v{M+1}', f'v_and_b32 v{A+3}, v{pp}, v{M+3}',
                f'v_and_b32_dpp v{A}, v{pp}, v{M} row_shl:4 {FULL} bound_ctrl:0',
                f'v_and_b32_dpp v{A+2}, v{pp}, v{M+2} row_shl:4 {FULL} bound_ctrl:0']
    def lred(self):
        L = self.vL; T = self.vT
        return [f'v_add_f32 v{L}, v{T}, v{T+1}',
                f'v_add_f32 v{L}, v{T+2}, v{L}',
                f'v_add_f32_dpp v{L}, v{L}, v{L} quad_perm:[2,3,0,1] {FULL}',
                f'v_add_f32_dpp v{L}, v{L}, v{L} row_ror:4 {FULL}',
                f'v_add_f32_dpp v{L}, v{L}, v{L} row_ror:8 {FULL}',
                f'v_mov_b32 v23, v{L}', f'v_permlane16_swap_b32 v{L}, v23', f'v_add_f32 v{L}, v{L}, v23',
                f'v_mov_b32 v23, v{L}', f'v_permlane32_swap_b32 v{L}, v23', f'v_add_f32 v{L}, v{L}, v23']
    def merge(self, t0):
        AC = self.vAcc; o = []
        for r in range(4): o.append(f'v_permlane32_swap_b32 v{AC + 4*t0 + r}, v{AC + 4*t0 + 4 + r}')
        for r in range(4):
            if t0 == 0: o.append(f'v_add_f32_dpp v{AC + r}, v{AC + 4 + r}, v{AC + r} row_ror:8 row_mask:0xf bank_mask:0x3')
            else: o.append(f'v_add_f32_dpp v{AC + r}, v{AC + 8 + r}, v{AC + 12 + r} row_ror:8 row_mask:0xf bank_mask:0xc')
        return o
    def staddr(self):
        return [f'v_lshrrev_b32 v18, 6, v{self.vL16}', 'v_lshl_add_u32 v18, v18, 4, s57']
    def qk1(self, s, LP, wait):
        a = self.a; Q = self.vQ
        def hook(p):
            for x in LP.get(p, []): self.load(*x, wait=wait)
        a(f'v_add_u32 v18, s53, v{self.vQo}')
        self.ds(f'ds_read_b128 {vr(Q, 4)}, v18', 'q'); self.ds(f'ds_read_b128 {vr(Q + 4, 4)}, v18 offset:256', 'q')
        for z in self.zero_acc(): a(z)
        self.need_lds('q')
        self.qk_part(s, hook, zero=False)
        pk = self.pack(0) + self.pack(2) + self.pack(1); lr = self.lred()
        while pk or lr:
            if lr: a(lr.pop(0))
            if pk: a(pk.pop(0))
        for x in self.staddr(): a(x)
        a('v_mov_b32 v19, s55')
        a('ds_write_b96 v18, v[20:22]')
        a('s_mov_b64 exec, 1')
        a(f'ds_write_b64 v19, {vr(self.vMC, 2)} offset:{self.MA1[s]}')
        a('s_mov_b64 exec, -1')
        hook(('e', 0))
    def cdst(self, fs, cu0, pi):
        if pi >= 2: pi += 2
        return self.kreg(fs, pi // 2) + 8 * (pi % 2)
    def copy(self, ds_, fs, cu0, n):
        if n >= 72: pi, half = (n - 72) // 2, (n - 72) % 2
        else: pi, half = 2 + (n - 56) % 8, (n - 56) // 8
        self.ds(f'ds_read_b128 {rr(self.cdst(fs, cu0, pi) + 4 * half, 4)}, v{self.vDs} offset:{self.ldsslot(ds_, n) * 1024}', ('c', n))
    def bop(self, ds_, fs, cu0, U, P, t):
        if U == 0: return self.vreg0(ds_, P, t), []
        if U == 1: return self.cdst(fs, cu0, 2 + 4 * P + t), [('c', 56 + 4 * P + t), ('c', 64 + 4 * P + t)]
        if t < 2: return self.cdst(fs, cu0, t), [('c', 72 + 2 * t), ('c', 73 + 2 * t)]
        if cu0: return self.kreg(fs, 1) + 8 * (t - 2), []
        return self.vH + 8 * (t - 2), []
    def pass2(self, s, LP):
        a = self.a; ds_ = 1 - s; Q = self.vQ; AC = self.vAcc
        cplan = {0: [72, 73, 74, 75], 2: [56, 64, 57, 65], 3: [58, 66, 59, 67], 4: [60, 68], 5: [61, 69], 6: [62, 70], 7: [63, 71]}
        def hook(p):
            for n in LP.get(p, []):
                if n == 73: self.need_lds(('c', 75))
                if n < 40: assert p[0] != 'u' or p[1] > self.ORD[n] // 4
                self.load(s if n >= 40 else ds_, n, wait=False)
            if p == ('u', 6): self.share()
            if p[0] == 'u':
                for n in cplan.get(p[1], []): self.copy(ds_, ds_, 0, n)
        self.qk_part(ds_, hook)
        sets = [(0, 0), (2, 0), (0, 1), (1, 0), (1, 1)]
        lred = self.lred()
        def prep(i):
            k, P = sets[i]
            return (self.pack(k) if P == 0 else []) + self.aprep(k, P, Q + 4 * (i % 2))
        self.need_vm(('cp', 'q1'))
        for x in prep(0): a(x)
        for i, (k, P) in enumerate(sets):
            fill = prep(i + 1) if i + 1 < len(sets) else []
            if i == len(sets) - 1:
                fill = lred + self.epi_pre(); lred = []
            for t in range(4):
                b, tags = self.bop(ds_, ds_, 0, k, P, t)
                for tg in tags: self.need_lds(tg)
                a(f'v_smfmac_f32_16x16x64_bf16 {vr(AC + 4 * t, 4)}, {vr(Q + 4 * (i % 2), 4)}, {rr(b, 8)}, v{self.vIP}')
                n = (len(fill) + (3 - t)) // (4 - t)
                got = fill[:n]; fill = fill[n:]
                if len(got) < 2 and lred: got.append(lred.pop(0))
                for x in got: a(x)
            hook(('i', i))
        for x in self.merge(0) + self.merge(2): a(x)
        hook(('m', 0))
        self.epilogue(1, s)
    def epi_pre(self):
        return [f'v_add_u32 v18, s54, v{self.vL16}', 'v_mov_b32 v19, s55', 'v_mov_b32 v20, 1', 'v_mov_b32 v21, 0', 'v_mov_b32 v22, s48']
    def pv1f(self, s):
        a = self.a; fs = 1 - s; Q = self.vQ; AC = self.vAcc
        self.xst = 2
        if self.fx2: a(f's_mov_b32 s{22 + fs}, s25'); self.stamp(40, 's49', 18, 's35')
        def hook(p):
            for n in self.p1l.get(p, []): self.load(fs, n, wait=False)
        for x in self.staddr(): a(x)
        self.ds('ds_read_b96 v[20:22], v18', 'p')
        hook('a')
        for z in self.zero_acc(): a(z)
        self.need_vm((s, 71))
        for n in [56, 64, 57, 65, 58, 66, 59, 67]: self.copy(s, fs, 2, n)
        self.need_lds('p')
        sets = [(0, 0), (0, 1), (1, 0), (1, 1), (2, 0)]
        prep = lambda i: self.aprep(*sets[i], Q + 4 * (i % 2))
        for x in prep(0): a(x)
        for i, (k, P) in enumerate(sets):
            last = (i == len(sets) - 1)
            fill = self.epi_pre() if last else prep(i + 1)
            if i == 1:
                for n in [60, 68, 61, 69, 62, 70, 63, 71]: self.copy(s, fs, 2, n)
            hook(str(i))
            for t in range(4):
                b, tags = self.bop(s, fs, 2, k, P, t)
                if last:
                    if t == 0:
                        self.need_vm((s, 73)); self.copy(s, fs, 2, 72); self.copy(s, fs, 2, 73)
                        self.need_vm((s, 75)); self.copy(s, fs, 2, 74); self.copy(s, fs, 2, 75)
                        for x in fill: a(x)
                        fill = []
                    if t == 2: self.need_vm((s, 77))
                    if t == 3: self.need_vm((s, 79))
                for tg in tags: self.need_lds(tg)
                a(f'v_smfmac_f32_16x16x64_bf16 {vr(AC + 4 * t, 4)}, {vr(Q + 4 * (i % 2), 4)}, {rr(b, 8)}, v{self.vIP}')
                n = (len(fill) + (3 - t)) // (4 - t)
                got = fill[:n]; fill = fill[n:]
                for x in got: a(x)
        self.xst = 0
        for x in self.merge(0) + self.merge(2): a(x)
        hook('m')
        self.epilogue(0, s)
        self.stamp(16, 's49')
        for i in range(8): a(f'v_mov_b64 {vr(self.vH + 2 * i, 2)}, {vr(self.kreg(fs, 1) + 2 * i, 2)}')
    def epilogue(self, p2, s, Zr=None):
        a = self.a; Q = self.vQ; AC = self.vAcc; m = self.vMC; L = self.vL
        CA = self.CA[p2]; MA = self.MA[1] if p2 else self.MA1[s]; CO = self.CO[p2]
        Zr = Zr or self.kreg(1 - s, 2)
        a(f'ds_write_b128 v18, {vr(AC, 4)} offset:{CA}')
        a('s_mov_b64 exec, 1')
        if p2: a(f'ds_write_b64 v19, {vr(self.vMC, 2)} offset:{MA}')
        a(f'ds_add_rtn_u32 v20, v21, v20 offset:{CO}')
        a('s_mov_b64 exec, -1')
        a(f'ds_read_b128 {vr(Q, 4)}, v21 offset:{MA}'); a(f'ds_read_b128 {vr(Q + 4, 4)}, v21 offset:{MA + 16}')
        for w in range(4): a(f'ds_read_b128 {vr(Zr + 4 * w, 4)}, v{self.vL16} offset:{CA + 1024 * w}')
        if p2 and self.ja and self.ja[0]: a(f's_add_u32 s38, s47, {PP2 + (1 - s) * PIB}')
        elif p2: a(f's_sub_u32 s38, s47, {PIB - PP2}')
        else: a('s_mov_b32 s38, s47')
        dual = self.home and p2 != s
        if dual: a('s_add_u32 s33, s38, 0x2000'); a(f's_cmp_eq_u32 s49, {3 + p2}'); a(f's_cselect_b32 s33, s33, 0x{OOB:x}')
        a('s_waitcnt lgkmcnt(6)')
        self.clk()
        a('v_readfirstlane_b32 s39, v20'); a('s_and_b32 s39, s39, 3'); a('s_cmp_eq_u32 s39, 3')
        if p2: a('s_cselect_b32 s58, 1, 0')
        elif self.bst: a('s_mov_b32 s26, s59'); a(f's_cselect_b32 s59, {self.bst[0]}, {"s59" if len(self.bst) < 3 else self.bst[2]}')
        l = self.lab('L_nl'); a(f's_cbranch_scc0 {l}')
        a('s_waitcnt lgkmcnt(4)')
        def st(text, pre=None):
            assert self.loc
            x = self.lab('L_ls'); y = self.lab('L_ls')
            a(f's_cbranch_scc1 {x}')
            if pre: a(pre)
            a(text + ' sc1'); a(f's_branch {y}'); a.label(x); a(text); a.label(y)
        if self.mz:
            g = self.lab('L_gen'); j = self.lab('L_join')
            a(f'v_or3_b32 v{m}, v{Q}, v{Q+2}, v{Q+4}'); a(f'v_add_f32 v{L}, v{Q+1}, v{Q+3}'); a(f'v_or_b32 v{m}, v{m}, v{Q+6}'); a(f'v_add_f32 v23, v{Q+5}, v{Q+7}')
            a(f'v_cmp_eq_u32 vcc, 0, v{m}'); a(f'v_add_f32 v{L}, v{L}, v23'); a(f's_cbranch_vccz {g}')
            if self.h16: a(f'v_rcp_f32 v20, v{L}')
            a('s_waitcnt lgkmcnt(2)')
            for hf in range(2): a(f'v_pk_add_f32 {vr(AC + 2*hf, 2)}, {vr(Zr + 2*hf, 2)}, {vr(Zr + 4 + 2*hf, 2)}')
            a('s_waitcnt lgkmcnt(0)')
            for hf in range(2): a(f'v_pk_add_f32 {vr(Zr + 2*hf, 2)}, {vr(Zr + 8 + 2*hf, 2)}, {vr(Zr + 12 + 2*hf, 2)}')
            for hf in range(2): a(f'v_pk_add_f32 {vr(AC + 2*hf, 2)}, {vr(AC + 2*hf, 2)}, {vr(Zr + 2*hf, 2)}')
            a.label(j)
            a(f's_cmp_eq_u32 s27, {NCHAIN + 1}')
            if self.h16:
                a(f'v_lshrrev_b32 v18, 1, v{self.vL16}')
                for hf in range(2): a(f'v_pk_mul_f32 {vr(AC + 2*hf, 2)}, {vr(AC + 2*hf, 2)}, v[20:21] op_sel_hi:[1,0]')
                for hf in range(2): a(f'v_cvt_pk_f16_f32 v{AC + hf}, v{AC + 2*hf}, v{AC + 2*hf + 1}')
            for r in range(2 if self.h16 else 4): a(f'v_min_u32 v{AC + r}, -2, v{AC + r}')
            row = f'buffer_store_dwordx2 {vr(AC, 2)}, v18' if self.h16 else f'buffer_store_dwordx4 {vr(AC, 4)}, v{self.vL16}'
            a(f'v_and_b32 v{L}, -2, v{L}')
            x = self.lab('L_ls')
            a(f's_cbranch_scc0 {x}')
            a(f'{row}, {WS}, s38 offen' + self.N('p'))
            a('s_mov_b64 exec, 1')
            a(f'buffer_store_dwordx2 {vr(m, 2)}, v22, {WS}, s38 offen' + self.N('m'))
            a('s_mov_b64 exec, -1')
            def rare():
                a.label(x)
                a(f'{row}, {WS}, s38 offen sc1')
                a(f'v_or_b32 v{L}, s4, v{L}')
                a('s_mov_b64 exec, 1')
                a(f'buffer_store_dwordx2 {vr(m, 2)}, v22, {WS}, s38 offen sc1')
                a('s_mov_b64 exec, -1')
                a(f's_branch {l}')
                a.label(g)
                a(f'v_max3_f32 v{m}, v{Q}, v{Q+2}, v{Q+4}'); a(f'v_max_f32 v{m}, v{m}, v{Q+6}')
                for w in range(4): a(f'v_sub_f32 v{Q+2*w}, v{Q+2*w}, v{m}')
                for w in range(4): a(f'v_exp_f32 v{Q+2*w}, v{Q+2*w}')
                a(f'v_mul_f32 v{L}, v{Q}, v{Q+1}')
                for w in range(1, 4): a(f'v_fmac_f32 v{L}, v{Q+2*w}, v{Q+2*w+1}')
                a(f'v_min_u32 v{m}, -2, v{m}')
                if self.h16: a(f'v_rcp_f32 v20, v{L}')
                a('s_waitcnt lgkmcnt(0)')
                for w in range(4):
                    for hf in range(2):
                        if w == 0: a(f'v_pk_mul_f32 {vr(AC + 2*hf, 2)}, {vr(Zr + 2*hf, 2)}, {vr(Q, 2)} op_sel_hi:[1,0]')
                        else: a(f'v_pk_fma_f32 {vr(AC + 2*hf, 2)}, {vr(Zr + 4*w + 2*hf, 2)}, {vr(Q + 2*w, 2)}, {vr(AC + 2*hf, 2)} op_sel_hi:[1,0,1]')
                a(f's_branch {j}')
            self.later.append(rare)
            a.label(l)
            a('s_waitcnt lgkmcnt(0)'); self.lq = []
            return
        a(f'v_max3_f32 v{m}, v{Q}, v{Q+2}, v{Q+4}'); a(f'v_max_f32 v{m}, v{m}, v{Q+6}')
        for w in range(4): a(f'v_sub_f32 v{Q+2*w}, v{Q+2*w}, v{m}')
        for w in range(4): a(f'v_exp_f32 v{Q+2*w}, v{Q+2*w}')
        a(f'v_mul_f32 v{L}, v{Q}, v{Q+1}')
        for w in range(1, 4): a(f'v_fmac_f32 v{L}, v{Q+2*w}, v{Q+2*w+1}')
        a(f'v_min_u32 v{m}, -2, v{m}'); a(f'v_and_b32 v{L}, -2, v{L}')
        a(f's_cmp_eq_u32 s27, {NCHAIN + 1}')
        a('s_mov_b64 exec, 1')
        st(f'buffer_store_dwordx2 {vr(m, 2)}, v22, {WS}, s38 offen', f'v_or_b32 v{L}, s4, v{L}')
        if dual: a(f'buffer_store_dwordx2 {vr(m, 2)}, v22, {WS}, s33 offen sc1')
        a('s_mov_b64 exec, -1')
        a('s_waitcnt lgkmcnt(0)')
        for w in range(4):
            for hf in range(2):
                if w == 0: a(f'v_pk_mul_f32 {vr(AC + 2*hf, 2)}, {vr(Zr + 2*hf, 2)}, {vr(Q, 2)} op_sel_hi:[1,0]')
                else: a(f'v_pk_fma_f32 {vr(AC + 2*hf, 2)}, {vr(Zr + 4*w + 2*hf, 2)}, {vr(Q + 2*w, 2)}, {vr(AC + 2*hf, 2)} op_sel_hi:[1,0,1]')
        for r in range(4): a(f'v_min_u32 v{AC + r}, -2, v{AC + r}')
        st(f'buffer_store_dwordx4 {vr(AC, 4)}, v{self.vL16}, {WS}, s38 offen')
        if dual: a(f'buffer_store_dwordx4 {vr(AC, 4)}, v{self.vL16}, {WS}, s33 offen sc1')
        a.label(l)
        a('s_waitcnt lgkmcnt(0)'); self.lq = []

    RING0 = 8192
    vGO2, vTR, vOOB, vDO, vX0O, vGO, vXR, vXW, vRES = 8, 9, 10, 11, 12, 13, 14, 15, 16
    vAC, vCS, vQS, vRO, vPO, vPO2, vMLO, vOW, vDQ, vX0 = 32, 36, 38, 39, 40, 41, 42, 43, 44, 45
    def vm(self, text, tag=None):
        self.a(text); self.cq.append(tag)
    def vmwait(self, tag):
        if tag in self.cq:
            i = len(self.cq) - 1 - self.cq[::-1].index(tag)
            k = len(self.cq) - 1 - i
            assert k <= 63
            self.a(f's_waitcnt vmcnt({k})'); self.cq = self.cq[i + 1:]
    def arm(self, q=False):
        a = self.a
        if not self.nocl: self.vmwait('init')
        self.confirm(self.vCL, 28)
        for r in range(20, 24): a(f'v_mov_b32 v{r}, -1')
        a('s_lshl2_add_u32 s38, s8, s3'); a('s_mul_i32 s38, s38, 4608'); a(f's_add_u32 s38, s38, 0x{YOFF:x}')
        if 'C' in self.wb: a(f's_mov_b32 s38, 0x{OOB:x}')
        for i in range(5): self.vm(f'buffer_store_dwordx4 v[20:23], v1, {WS}, s38 offen offset:{min(i * 1024, 3584)} sc1' + self.N('c'), 'arm')
        if q:
            self.bits('v28', 'v0', 'v29', [(0, 5, 4), (5, 1, 13)])
            a('s_lshl_b32 s38, s8, 9'); a('s_lshl_b32 s39, s3, 14'); a('s_add_u32 s39, s39, s38')
            self.vm(f'buffer_store_dwordx4 v[20:23], v28, {WS}, s39 offen sc1' + self.N('c'), 'arm')
        else:
            self.pquad('s38'); a('s_lshl_b32 s39, s8, 15'); a('s_add_u32 s38, s38, s39'); a(f's_add_u32 s38, s38, 0x{POFF - 16 * PB:x}')
            if 'D' in self.wb: a(f's_mov_b32 s38, 0x{OOB:x}')
            for i in range(2 if self.h16 else 4): self.vm(f'buffer_store_dwordx4 v[20:23], v1, {WS}, s38 offen offset:{i * 1024} sc1' + self.N('c'), 'arm')
    def pquad(self, d):
        if self.h16: self.a(f's_lshl_b32 {d}, s3, 11'); return
        self.a(f's_and_b32 {d}, s3, 2'); self.a(f's_add_u32 {d}, {d}, s3'); self.a(f's_lshl_b32 {d}, {d}, 12')
    def announce(self, bar=True):
        a = self.a
        if bar: self.vmwait('arm'); a('s_barrier')
        assert 'arm' not in self.cq
        self.signal(28, 29, self.CNTA, 's9')
        self.stamp(21, None, 30)
    def chain_common(self):
        a = self.a
        a('s_lshl4_add_u32 s2, s38, s36'); a('s_mov_b32 s8, s2'); a('s_mov_b32 s9, s5'); a('s_mov_b32 s10, 0')
        if self.diag: a('s_mov_b32 s61, s2'); self.diagbase()
        a('v_lshlrev_b32 v1, 4, v0')
        self.bits('v2', 'v0', 'v6', [(0, 1, 4), (4, 2, 5)])
        self.bits('v4', 'v0', 'v6', [(1, 1, 0), (3, 1, 2), (2, 1, 3)])
        a('s_lshl_b32 s98, s3, 13'); a(f's_add_u32 s98, s98, {self.RING0}'); a('s_movk_i32 s99, 1024')
        a('s_mul_i32 s32, s3, 7168'); a(f's_add_u32 s32, s32, {self.RING0}')
        self.claim(28, 29, self.vCL)
        self.srd(16, 86, 0x20000000)
        self.stamp(0, None, 30)
        a('s_cmp_lt_u32 s2, 16'); a('s_cbranch_scc1 L_roleOQ')
        self.cq = ['init']
        if self.wtlb:
            lo = 30 if self.wtlb == 1 else 16; nw = 4 * (32 - lo)
            a(f's_cmp_lt_u32 s2, {lo}'); a('s_cbranch_scc1 L_notlb')
            a('v_lshlrev_b32 v6, 12, v0'); a(f's_sub_u32 s33, s2, {lo}'); a('s_lshl2_add_u32 s33, s33, s3'); a('s_lshl_b32 s33, s33, 18')
            for lo_, size in ((70, 448 * 8192), (76, 448 * 3584), (78, 448 * 3584), (72, 4096 * 896), (80, 1792 * 896)):
                self.srd(20, lo_, size)
                for i in range(-(-size // (nw << 18))):
                    if i: a(f's_add_u32 s39, s33, {i * nw << 18}')
                    a(f'buffer_load_dword v64, v6, {W1}, {"s39" if i else "s33"} offen nt')
            a.label('L_notlb')
        if self.hq:
            self.srd(20, 70, 448 * 8192)
            self.bits('v6', 'v0', 'v7', [(0, 5, 4), (5, 1, 13)])
            a('s_sub_u32 s33, s2, 16'); a('s_lshl_b32 s33, s33, 9'); a('s_lshl_b32 s39, s3, 14'); a('s_add_u32 s33, s33, s39')
            a(f's_add_u32 s33, s33, {self.hq[0] * 64 * 8192}')
            for i in range(8 * (self.hq[1] - self.hq[0])):
                self.vm(f'buffer_load_dwordx4 v[64:67], v6, {W1}, s33 offen {self.hpol}', 'hq'); a('s_add_u32 s33, s33, 65536')
                if i == 0: self.stamp(61, None, 30)
                if i == 8: self.stamp(63, None, 30)
                if i == 9: self.arm()
                if i == 23: self.announce()
        self.cq0 = list(self.cq)
        a('s_cmp_lt_u32 s2, 30'); a('s_cbranch_scc1 L_roleF')
    def consts(self):
        a = self.a
        a('v_and_b32 v6, 1, v0'); a('v_cmp_eq_u32 vcc, 1, v6')
        a('v_mov_b32 v3, 0x44444444'); a('v_mov_b32 v6, 0xeeeeeeee'); a('v_cndmask_b32 v3, v3, v6, vcc')
        self.bits('v9', 'v0', 'v6', [(0, 5, 3), (5, 1, 10)])
        a('v_mul_u32_u24 v5, 6144, v6'); a('s_mul_i32 s38, s3, 1792'); a('v_add3_u32 v5, v5, v9, s38')
        a(f's_mov_b32 s57, 0x{OOB:x}'); a(f's_mov_b32 s56, 0x{OOB:x}'); a('s_mov_b32 s49, -1')
    vCL = 46
    def preready(self, streams=False):
        self.vm(f'global_load_dwordx2 v[46:47], v18, {DBG} offset:{self.CNTA} sc1', 'cnt')
    def ready(self, streams=False):
        a = self.a
        self.stamp(22, None, 28)
        self.vmwait('cnt')
        self.wait_counter(18, 46, 22, self.CNTA, NCHAIN, pre=True)
        a('s_mov_b32 s56, 0')
        if self.dual: a('s_movk_i32 s57, 0x2000')
        if self.dual and self.role != 'W':
            a('v_readfirstlane_b32 s38, v47'); a('s_getreg_b32 s10, hwreg(HW_REG_XCC_ID, 2, 1)'); a('s_xor_b32 s10, s10, s38'); a('s_and_b32 s10, s10, 1'); a('s_lshl_b32 s10, s10, 13')
            if self.diag:
                a('v_mov_b32 v28, s10'); a('v_mov_b32 v29, 0')
                a(f'buffer_store_dword v28, v29, {WS}, s61 offen offset:{62 * 4}')
        self.stamp(1, None, 28)
    def near(self):
        if not self.dual: return
        a = self.a; l = self.lab('L_nr')
        assert self.hs <= 12
        a('s_mul_i32 s38, s3, 1536'); a(f's_add_u32 s11, s38, 0x{XBOFF:x}')
        a('s_mov_b32 s4, -1'); a('s_mov_b32 s5, -1'); a(f's_mov_b32 s6, {2 * self.hs}')
        a('s_waitcnt vmcnt(0)')
        a.label(l)
        a('s_waitcnt lgkmcnt(0)'); a('s_memtime s[58:59]'); a('s_waitcnt lgkmcnt(0)')
        a(f'buffer_load_dword v28, off, {WS}, s11 sc1'); a('s_waitcnt vmcnt(0)')
        a('s_memtime s[38:39]'); a('s_waitcnt lgkmcnt(0)')
        a('s_sub_u32 s38, s38, s58'); a('s_min_u32 s38, s38, s4'); a('s_mov_b32 s4, s5'); a('s_mov_b32 s5, s38')
        a('s_xor_b32 s11, s11, 0x2000'); a('s_and_b32 s38, s6, 1'); a('s_lshl_b32 s38, s38, 7'); a('s_add_u32 s11, s11, s38')
        a('s_sub_u32 s6, s6, 1'); a('s_cmp_lg_u32 s6, 0'); a(f's_cbranch_scc1 {l}')
        a('s_cmp_gt_u32 s4, s5'); a('s_cselect_b32 s10, 0x2000, 0')
        if self.hforce is not None: a(f's_xor_b32 s10, s10, {self.hforce}')
        a('s_getreg_b32 s38, hwreg(HW_REG_XCC_ID, 2, 1)'); a('s_lshr_b32 s39, s10, 13'); a('s_xor_b32 s38, s38, s39')
        a('v_mov_b32 v28, s38'); a('v_mov_b32 v29, 0')
        a('s_cmp_eq_u32 s3, 0'); a('s_cselect_b64 exec, 1, 0')
        a(f'global_store_dword v29, v28, {DBG} offset:{self.CNTA + 4} sc1'); a('s_mov_b64 exec, -1')
        if self.diag:
            self.stamp(20, None, 28)
            a('s_lshl_b32 s38, s4, 16'); a('s_add_u32 s38, s38, s5'); a('v_mov_b32 v28, s38'); a('v_mov_b32 v29, 0')
            a(f'buffer_store_dword v28, v29, {WS}, s61 offen offset:{62 * 4}')
    def lstore(self, op, data, voff, sp, ss):
        self.a(f'buffer_store_{op} {data}, {voff}, {WS}, {ss} offen sc1' + self.N('l'))
        if self.dual: self.a(f'buffer_store_{op} {data}, {voff}, {WS}, {sp} offen sc1' + self.N('l'))
    def dma_sub(self, name, srd, voff, tab, adv):
        a = self.a
        a.label(name)
        for e in range(8):
            a(f'buffer_load_dwordx4 {voff}, {srd}, s{tab + e} offen nt lds')
            if e < 7: a('s_add_u32 m0, m0, s99')
        a(f'v_add_u32 {voff}, 0x{adv:x}, {voff}')
        a('s_setpc_b64 s[96:97]')
    def dma_subB(self, name, srd, voff):
        a = self.a
        a.label(name)
        for cb in range(7):
            a(f'buffer_load_dwordx4 {voff}, {srd}, 0 offen offset:{128 * cb} nt lds')
            if cb < 6: a('s_add_u32 m0, m0, 896')
        a(f'v_add_u32 {voff}, 0x{32 * 896:x}, {voff}')
        a('s_setpc_b64 s[96:97]')
    def poff(self, p): return p['off'] if 'off' in p else p['slot'] * 32768
    def issue(self, p):
        self.a(f's_add_u32 m0, {"s32" if p["B"] else "s98"}, {self.poff(p)}'); self.a(f's_call_b64 s[96:97], {p["sub"]}')
        self.cq += [id(p)] * (7 if p['B'] else 8)
    def readout(self, p, sel=None):
        self.a(f'v_add_u32 v6, {self.RING0 + self.poff(p)}, {"v5" if p["B"] else "v9"}')
        for d, imm in p['rd']:
            if sel is None or sel(d): self.a(f'ds_read_b64_tr_b16 {rr(d, 2)}, v6 offset:{imm}')
    def consume(self, p, nxt=None, hook=None):
        self.vmwait(id(p))
        self.a('s_waitcnt lgkmcnt(0)'); self.a('s_barrier')
        if hook: hook()
        for x in (nxt if isinstance(nxt, list) else [nxt] if nxt else []):
            if 'off' not in x: assert x['slot'] == self.lastslot, (x['slot'], self.lastslot)
            self.issue(x)
        self.readout(p); self.lastslot = p.get('slot')
    def table(self, tab, rs):
        for e in range(8): self.a(f's_mov_b32 s{tab + e}, 0x{(16 * (e & 1) + 2 * ((e >> 1) & 1) + 32 * (e >> 2)) * rs:x}')
    def typeB(self, voff, rowbase_s):
        a = self.a
        a('s_and_b32 s38, s3, 1'); a('s_lshl_b32 s38, s38, 4'); a(f's_add_u32 s38, s38, {rowbase_s}'); a('s_and_b32 s39, s3, 2'); a('s_add_u32 s38, s38, s39')
        a(f'v_add_u32 v6, s38, v4'); a(f'v_mad_u32_u24 {voff}, v6, s99, v2'); a(f'v_lshlrev_b32 v6, 7, v6'); a(f'v_sub_u32 {voff}, {voff}, v6')
    def typeB_reads(self, breg, ks, half):
        return [(breg(jj, ks) + 2 * (e1 + 2 * half), 2 * e1 * 7168 + jj * 256) for jj in range(7) for e1 in range(2)]
    def x0off(self):
        a = self.a
        a(f'v_mov_b32 v10, 0x{OOB:x}')
        self.bits('v6', 'v0', 'v7', [(0, 4, 3), (4, 1, 2), (5, 1, 7)])
        a('s_mul_i32 s38, s3, 224'); a('s_lshl_b32 s39, s3, 5'); a(f's_add_u32 s39, s39, {896 - 224}')
        a('v_cmp_gt_u32 vcc, 224, v6')
        a('v_add_u32 v15, s38, v6'); a('v_add_u32 v6, s39, v6')
        a('v_cndmask_b32 v12, v10, v15, vcc'); a('v_cndmask_b32 v15, v6, v15, vcc')
        a('s_lshl_b32 s38, s3, 9'); a('v_lshl_add_u32 v14, v0, 3, s38'); a('v_cndmask_b32 v14, v10, v14, vcc')
    def gather_offs(self):
        a = self.a
        self.bits('v13', 'v0', 'v6', [(0, 4, 4), (4, 1, 12), (5, 1, 14)])
        a('s_lshl_b32 s38, s3, 8'); a('v_add_u32 v13, s38, v13'); a(f'v_lshl_add_u32 v{self.vRO}, v0, 2, s38')
        a('v_cmp_gt_u32 vcc, 48, v0'); a('v_mov_b32 v18, 0'); a('v_mov_b32 v19, 0'); a('v_cndmask_b32 v8, v10, v13, vcc')
        a('v_and_b32 v6, 8, v0'); a('v_cmp_eq_u32 vcc, 8, v6'); a('v_mov_b32 v6, 0x3c00'); a('v_mov_b32 v7, 0x3c000000')
        a('v_cndmask_b32 v6, v6, v7, vcc'); a('v_and_b32 v7, 7, v0')
        for r, key in enumerate((0, 1, 4, 5)):
            a(f'v_cmp_eq_u32 vcc, {key}, v7'); a('s_nop 1'); a(f'v_cndmask_b32 v{self.vAC + r}, 0, v6, vcc')
    def resid_poll(self, soff):
        a = self.a; l = self.lab('L_rp')
        a.label(l)
        self.timeout()
        a(f'buffer_load_dwordx2 v[16:17], v14, {WS}, {soff} offen sc1'); a('s_waitcnt vmcnt(0)')
        a('v_max_u32 v6, v16, v17'); a('v_cmp_eq_u32 vcc, -1, v6'); a(f's_cbranch_vccnz {l}')
    def repoll(self, loads, full, comp, done):
        a = self.a; p = self.lab('L_mp'); i_ = self.lab('L_mi')
        M = ['vcc' if i == 4 else f's[{88 + 2 * i}:{89 + 2 * i}]' for i in range(len(loads))]
        def masks(to):
            for m, (r, t) in zip(M, loads): a(f'v_cmp_eq_u32 {m}, -1, v{r}')
            a(f's_or_b64 s[38:39], {M[0]}, {M[1]}')
            for m in M[2:]: a(f's_or_b64 s[38:39], s[38:39], {m}')
            a(f's_cbranch_scc0 {to}')
        if done:
            r_ = self.lab('L_mr'); a(f's_cbranch_vccnz {r_}')
            a('s_cmp_eq_u32 s38, 0'); a(f's_cbranch_scc1 {full}'); a(f's_branch {done}')
            a.label(r_)
        masks(full); a(f's_branch {i_}')
        a.label(p)
        masks(comp)
        a.label(i_)
        self.timeout()
        for m, (r, t) in list(zip(M, loads))[4:] + list(zip(M, loads))[:4]: a(f's_mov_b64 exec, {m}'); a(t)
        a('s_mov_b64 exec, -1')
        a(f's_waitcnt vmcnt({len(loads) * (self.mp - 1)})')
        a(f's_branch {p}')
    def gather_sum(self, soff, G, full, res=None):
        a = self.a; l = self.lab('L_g'); d = self.lab('L_gd'); c = self.lab('L_gc')
        mp = self.mp and self.role in self.mpr
        if self.role in self.lp:
            w = self.lab('L_gw')
            a(f's_movk_i32 s38, {self.lp[self.role]}'); a(f's_bitcmp1_b32 s38, {"s53" if self.role == "O" else "s49"}'); a(f's_cbranch_scc0 {l}')
            a.label(w)
            a('s_mov_b64 exec, -1')
            self.timeout()
            a('s_mov_b32 exec_lo, 0x10001'); a('s_mov_b32 exec_hi, 0x10001')
            a(f'buffer_load_dword v20, v13, {WS}, {soff} offen sc1'); a('s_waitcnt vmcnt(0)')
            a('v_cmp_ne_u32 vcc, -1, v20'); a(f's_cbranch_vccz {w}')
            a('s_mov_b64 exec, -1')
        a.label(l)
        self.timeout()
        ld = [(G + 4 * i, f'buffer_load_dwordx4 {vr(G + 4 * i, 4)}, {"v13" if full or i < 2 else "v8"}, {WS}, {soff} offen offset:{1024 * i} sc1') for i in range(4)]
        if res: ld.append((16, f'buffer_load_dwordx2 v[16:17], v14, {WS}, {res} offen sc1'))
        for r, t in ld[4:] + ld[:4]: a(t)
        def comp(w):
            for i in range(4):
                if w: a(f's_waitcnt vmcnt({3 - i})')
                a(f'v_mfma_f32_16x16x32_f16 v[20:23], {vr(self.vAC, 4)}, {vr(G + 4 * i, 4)}, {"v[16:19]" if i == 0 else "v[20:23]"}')
            a('v_cmp_u_f32 vcc, v20, v21')
            a('v_cvt_pk_bf16_f32 v24, v20, v21')
        comp(True)
        a(f's_cbranch_vccz {d}')
        self.maxtree(list(range(G, G + 16)) + ([16, 17] if res else []), 6)
        if mp:
            a(f's_cbranch_vccz {d}')
            self.repoll(ld, l, c, None)
            a.label(c); comp(False); a(f's_cbranch_vccnz {l}')
        else: a(f's_cbranch_vccnz {l}')
        a.label(d)
    def xrow_ops(self, sp, ss):
        return ['v_lshlrev_b32 v20, 16, v24', 'v_and_b32 v21, 0xffff0000, v24',
                f'buffer_store_dwordx2 v[20:21], v14, {WS}, {ss} offen sc1' + self.N('l')] + ([f'buffer_store_dwordx2 v[20:21], v14, {WS}, {sp} offen sc1' + self.N('l')] if self.dual else [])
    def stats_ops(self, X):
        o = []
        for i in range(4):
            o += [f'v_lshlrev_b32 v26, 16, v{X+i}', f'v_and_b32 v27, 0xffff0000, v{X+i}']
            if i == 0: o += ['v_add_f32 v28, v26, v27', 'v_mul_f32 v30, v26, v26', 'v_fmac_f32 v30, v27, v27']
            else: o += ['v_add_f32 v28, v28, v26', 'v_fmac_f32 v30, v26, v26', 'v_add_f32 v28, v28, v27', 'v_fmac_f32 v30, v27, v27']
        o += [f'v_mov_b32 v26, 0x{f2u(1/448):x}', f'v_mov_b32 v27, 0x{f2u(1e-5):x}', 'v_permlane16_swap_b32 v28, v30', 'v_add_f32 v28, v28, v30']
        for c in ('quad_perm:[1,0,3,2]', 'quad_perm:[2,3,0,1]', 'row_ror:4'):
            o += [None, f'v_add_f32_dpp v28, v28, v28 {c} {FULL}']
        o += [None, f'v_add_f32_dpp v29, v28, v28 row_ror:8 {FULL}', f'v_add_f32_dpp v28, v28, v28 row_ror:8 {FULL}', None,
              'v_permlane32_swap_b32 v28, v29', 'v_add_f32 v28, v28, v29', None,
              'v_readlane_b32 s58, v28, 0', 'v_readlane_b32 s59, v28, 16', None,
              'v_mul_f32 v24, s58, v26', 'v_fmac_f32 v27, s59, v26',
              'v_fma_f32 v27, -v24, v24, v27', 'v_rsq_f32 v25, v27']
        return o
    def gemv(self, ntile, nks, breg, acc, A, fill=(), nother=0):
        a = self.a; fill = list(fill)
        for ks in range(nks):
            a(f's_waitcnt lgkmcnt({min(15, nks - 1 - ks + nother)})')
            for jj in range(ntile):
                a(f'v_smfmac_f32_16x16x64_bf16 {vr(acc + 4 * jj, 4)}, {vr(A + 4 * ks, 4)}, {rr(breg(jj, ks), 8)}, v3')
                for _ in range(2):
                    if fill:
                        x = fill.pop(0)
                        if x: a(x)
        for x in fill:
            if x: a(x)
    def zero(self, base, n):
        for i in range(0, n, 2): self.a(f'v_mov_b64 {vr(base + i, 2)}, 0')
    def rowsel(self, dst, acc, tiles_masks):
        for jj, rm in tiles_masks:
            self.a(f'v_add_f32_dpp v{dst}, v{acc + 4*jj}, v{acc + 4*jj + 1} quad_perm:[0,1,2,3] row_mask:0x{rm:x} bank_mask:0xf')
    def rowout(self, acc, sp, ss):
        a = self.a
        for jj in range(4): self.rowsel(20, acc, [(jj, 1 << jj)])
        for jj in range(3): self.rowsel(21, acc, [(4 + jj, 1 << jj)])
        a('v_cvt_pk_f16_f32 v20, v20, v21'); a('v_min_u32 v20, -2, v20')
        self.lstore('dword', 'v20', f'v{self.vRO}', sp, ss)
    def calc_ib(self):
        a = self.a
        a('s_lshl_b32 s38, s49, 2'); a(f's_lshr_b32 s50, {"0x76352410" if self.reord else "0x73625140"}, s38'); a('s_and_b32 s50, s50, 7')
    def colsum(self, ntile, nks, breg, acc):
        a = self.a
        for r in range(4): a(f'v_mov_b32 v{20 + r}, 0x3f803f80')
        self.zero(acc, 4 * ntile)
        for ks in range(nks):
            for jj in range(ntile):
                a(f'v_smfmac_f32_16x16x64_bf16 {vr(acc + 4 * jj, 4)}, v[20:23], {rr(breg(jj, ks), 8)}, v3')
    def pinit(self, ib0):
        a = self.a
        for r in range(20, 24): a(f'v_mov_b32 v{r}, -1')
        a(f's_add_u32 s38, s3, {ib0}'); a('s_lshl_b32 s38, s38, 18'); a('s_add_u32 s38, s38, s41')
        a('v_lshlrev_b32 v6, 4, v0')
        for i in range(16):
            if i and i % 4 == 0: a('s_add_u32 s38, s38, 4096')
            self.vm(f'buffer_store_dwordx4 v[20:23], v6, {WS}, s38 offen offset:{(i % 4) * 1024} sc1', 'pinit')

    def roleOQ(self):
        a = self.a
        TOG = ['v_xor_b32 v15, 0x400, v15', 'v_xor_b32 v2, 0x400, v2', 'v_xor_b32 v1, 0x400, v1', f'v_xor_b32 v{self.vOW}, 0x400, v{self.vOW}']
        def qreg(jj, ks): return 96 + (ks * 4 + jj) * 8
        def oreg(jj, ks):
            if ks == 3 and jj < 4: return 288 + 8 * jj
            i = jj * 3 + ks if ks < 3 else 21 + jj - 4
            return 320 + 8 * i
        inwin = lambda d: 288 <= d < 320
        X0 = 4
        self.dma_sub('L_dmaQ', W1, f'v{self.vDQ}', 88, 64 * 8192)
        self.dma_subB('L_dmaO', W2, f'v{self.vDO}')
        P = 76; ML = 92; ACC = 48; A = 76
        a.label('L_Osub')
        self.calc_ib()
        if self.ja and self.ja[0]:
            a('s_and_b32 s38, s50, 1'); a('s_lshl_b32 s38, s38, 20'); a(f's_add_u32 s38, s38, {PP2}'); a('s_bitcmp1_b32 s50, 2'); a('s_cselect_b32 s44, s38, 0'); a('s_add_u32 s44, s44, s41')
        else:
            a('s_and_b32 s38, s50, 3'); a('s_lshl_b32 s44, s38, 20'); a('s_add_u32 s44, s44, s41')
            a('s_cmp_eq_u32 s38, 3'); a('s_cselect_b32 s38, s55, 0'); a('s_add_u32 s44, s44, s38')
            a('s_lshr_b32 s38, s50, 2'); a('s_lshl_b32 s38, s38, 19'); a('s_add_u32 s44, s44, s38')
        if self.h16: a('s_add_u32 s46, s44, 4096')
        else: a('s_add_u32 s45, s44, 4096'); a('s_add_u32 s46, s44, 16384'); a('s_add_u32 s47, s44, 20480')
        a('s_lshl_b32 s48, s50, 15'); a('s_add_u32 s48, s48, s40'); a('s_add_u32 s51, s48, s56'); a('s_add_u32 s48, s48, s57')
        self.zero(ACC, 28)
        a('s_cmp_lt_i32 s49, 0'); a('s_cbranch_scc1 L_Ook')
        a.label('L_Oheavy')
        self.timeout()
        ld = [(P + 4 * n, f'buffer_load_dwordx4 {vr(P + 4*n, 4)}, v{self.vPO2 if n == 3 else self.vPO}, {WS}, s{44+n} offen sc1') for n in range(4)]
        if self.h16: ld = [(P + 2 * n, f'buffer_load_dwordx2 {vr(P + 2*n, 2)}, v{self.vPO2 if n == 3 else self.vPO}, {WS}, s{44 + (n & 2)} offen offset:{(n & 1) * 2048} sc1') for n in range(4)]
        ld.append((ML, f'buffer_load_dwordx2 {vr(ML, 2)}, v{self.vMLO}, {WS}, s44 offen sc1'))
        for r, t in ld[4:] + ld[:4]: a(t)
        if self.mp and 'P' in self.mpr: a('s_mov_b32 s38, 1')
        a.label('L_Ocomp')
        a('s_waitcnt vmcnt(4)')
        a(f'v_max_f32_dpp v20, v{ML}, v{ML} quad_perm:[1,0,3,2] {FULL}')
        for c in ('quad_perm:[2,3,0,1]', 'row_ror:4', 'row_ror:8'): a(f'v_max_f32_dpp v20, v20, v20 {c} {FULL}')
        a(f'v_sub_f32 v20, v{ML}, v20'); a('v_exp_f32 v20, v20'); a('v_cndmask_b32 v20, 0, v20, s[42:43]')
        a(f'v_mul_f32 v21, v20, abs(v{ML+1})')
        lred = [f'v_add_f32_dpp v21, v21, v21 {c} {FULL}' for c in ('quad_perm:[1,0,3,2]', 'quad_perm:[2,3,0,1]', 'row_ror:4', 'row_ror:8')]
        if self.h16:
            for n in range(4): a(f'v_mov_b32_dpp v{P + 8 + n}, v21 row_newbcast:{n} {FULL}')
            for n in range(4):
                a(f's_waitcnt vmcnt({3 - n})')
                for r in range(4):
                    a(f'v_fma_mix_f32 v{24 + r}, v{P + 8 + n}, v{P + 2*n + r // 2}, {0 if n == 0 else f"v{24 + r}"} op_sel:[0,{r & 1},0] op_sel_hi:[0,1,0]')
                a(lred[n])
        for n in range(0 if self.h16 else 4):
            a(f's_waitcnt vmcnt({3 - n})')
            for r in range(4):
                a(f'v_{"mul" if n == 0 else "fmac"}_f32_dpp v{24 + r}, v20, v{P + 4*n + r} row_newbcast:{n} {FULL}')
            a(lred[n])
        a('v_permlane16_swap_b32 v24, v25'); a('v_permlane16_swap_b32 v26, v27'); a('v_rcp_f32 v21, v21')
        a('v_add_f32 v24, v24, v25'); a('v_add_f32 v26, v26, v27')
        a('v_permlane32_swap_b32 v24, v26'); a('v_add_f32 v24, v24, v26'); a('v_mul_f32 v24, v24, v21')
        a('v_cmp_u_f32 vcc, v24, v24')
        a('v_cvt_pk_bf16_f32 v24, v24, v24')
        a('s_cbranch_vccz L_Ook0')
        self.maxtree(list(range(P, P + (8 if self.h16 else 16))) + [ML, ML + 1], 6)
        if self.mp and 'P' in self.mpr: self.repoll(ld, 'L_Oheavy', 'L_Ocomp', 'L_Ook0')
        else: a('s_cbranch_vccnz L_Oheavy')
        a.label('L_Ook0')
        if self.split:
            a('s_cmp_lg_u32 s49, 0'); a('s_cbranch_scc1 L_Ook')
            a('s_setpc_b64 s[34:35]')
        a.label('L_Ook')
        a(f'ds_write_b16 v{self.vOW}, v24'); a('s_waitcnt lgkmcnt(0)'); a('s_barrier')
        for ks in range(4): a(f'ds_read_b128 {vr(A + 4*ks, 4)}, v2 offset:{128 * ks}')
        self.stamp(3, 's49', 28)
        self.gemv(7, 4, oreg, ACC, A, fill=TOG + ['v_mov_b32 v21, 0'])
        self.rowout(ACC, 's48', 's51')
        self.stamp(12, 's49', 28)
        a('s_add_u32 s49, s49, 1')
        a('s_setpc_b64 s[34:35]')
        G = 64; ACC = 48; A = 64; X = 92
        a.label('L_Qsub')
        self.zero(ACC, 16)
        a('s_lshl_b32 s44, s53, 13'); a('s_add_u32 s44, s44, s54')
        a('s_lshl_b32 s38, s53, 11'); a(f's_add_u32 s47, s38, 0x{XAOFF - 4 * 2048:x}'); a('s_add_u32 s47, s47, s10')
        a('s_add_u32 s45, s38, s33'); a('s_add_u32 s46, s45, s56'); a('s_add_u32 s45, s45, s57')
        a('s_lshl_b32 s48, s53, 15'); a(f's_add_u32 s48, s48, 0x{ZOFF - 4 * 32768:x}'); a('s_add_u32 s48, s48, s10')
        a('s_cmp_lt_u32 s53, 4'); a('s_cbranch_scc1 L_Qx')
        if self.ja:
            assert not self.oarm and not self.home and not self.mp
            a('v_mov_b64 v[24:25], -1'); a('v_mov_b64 v[26:27], -1'); a('v_lshlrev_b32 v6, 4, v0')
            if self.ja[0]: a('s_and_b32 s38, s53, 1'); a('s_lshl_b32 s38, s38, 20'); a('s_add_u32 s38, s38, s11'); a(f's_sub_u32 s39, s11, {PP2}')
            else: a('s_and_b32 s38, s53, 3'); a('s_lshl_b32 s38, s38, 20'); a('s_add_u32 s38, s38, s11'); a(f's_add_u32 s39, s38, {PP2}')
            a('s_cmp_eq_u32 s53, 7'); a(f's_cselect_b32 s39, 0x{OOB:x}, s39')
            a('s_cmp_eq_u32 s9, 1'); a('s_cbranch_scc1 L_Qal')
            K = 2 if self.h16 else 4
            for i in range(2 * K): a(f'buffer_store_dwordx4 v[24:27], v6, {WS}, s{38 + i // K} offen offset:{i % K * 1024} sc1')
            a('s_branch L_Qam')
            a.label('L_Qal')
            for i in range(2 * K): a(f'buffer_store_dwordx4 v[24:27], v6, {WS}, s{38 + i // K} offen offset:{i % K * 1024} {self.ja[1]}')
            a.label('L_Qam')
        if not self.mres: self.resid_poll('s47')
        self.gather_sum('s48', G, False, 's47' if self.mres else None)
        a.label('L_Qx')
        a('ds_write_b32 v15, v24'); a('s_waitcnt lgkmcnt(0)'); a('s_barrier')
        if self.mp and 'O' in self.mpr:
            l = self.lab('L_qw'); a('s_cmp_lt_u32 s53, 4'); a(f's_cbranch_scc1 {l}'); a('s_waitcnt vmcnt(0)'); a.label(l)
        for ks in range(7): a(f'ds_read_b128 {vr(A + 4*ks, 4)}, v2 offset:{128 * ks}')
        a(f'ds_read_b128 {vr(X, 4)}, v1')
        for x in self.xrow_ops('s45', 's46'): a(x)
        self.stamp(24, 's53', 28)
        fill = TOG + [None, 's_waitcnt lgkmcnt(0)'] + self.stats_ops(X)
        self.gemv(4, 7, qreg, ACC, A, fill=fill, nother=1)
        a(f'v_mul_f32 v21, v24, v{self.vCS}'); a('s_cmp_eq_u32 s9, 1')
        self.rowsel(20, ACC, [(jj, 1 << jj) for jj in range(4)])
        a('v_sub_f32 v20, v20, v21'); a('v_mul_f32 v20, v20, v25')
        a('v_cvt_pk_bf16_f32 v20, v20, v20'); a('v_min_u32 v20, -2, v20')
        if self.loc:
            a('s_cbranch_scc1 L_Qloc')
            a(f'buffer_store_short v20, v{self.vQS}, {WS}, s44 offen sc1'); a('s_branch L_Qst')
            a.label('L_Qloc'); a(f'buffer_store_short v20, v{self.vQS}, {WS}, s44 offen'); a.label('L_Qst')
        else: a(f'buffer_store_short v20, v{self.vQS}, {WS}, s44 offen sc1')
        self.stamp(33, 's53', 28)
        if self.oarm: a('s_lshl_b32 s38, s53, 20'); a('s_add_u32 s38, s38, s11'); a(f's_add_u32 s39, s38, {PP2}')
        a('s_add_u32 s53, s53, 1')
        if self.oarm:
            a('s_cmp_eq_u32 s53, 8'); a('s_cbranch_scc1 L_Qret')
            a('v_mov_b64 v[24:25], -1'); a('v_mov_b64 v[26:27], -1'); a('v_lshlrev_b32 v6, 4, v0')
            for i in range(8): a(f'buffer_store_dwordx4 v[24:27], v6, {WS}, s{38 + i // 4} offen offset:{i % 4 * 1024} sc1')
            a.label('L_Qret')
        a('s_setpc_b64 s[34:35]')
        a.label('L_roleOQ')
        self.stamp(61, None, 30)
        self.cq = ['init']
        a('s_lshl_b32 s38, s2, 9')
        self.srd(20, 70, 448 * 8192)
        a('s_lshl_b32 s39, s3, 7'); a('s_add_u32 s38, s38, s39')
        a(f'v_lshl_add_u32 v{self.vDQ}, v4, 13, s38'); a(f'v_add_u32 v{self.vDQ}, v{self.vDQ}, v2')
        self.table(88, 8192)
        R4 = self.ring4
        pq = [dict(sub='L_dmaQ', B=0, slot=(ks + 2 * R4) % 4, rd=[(qreg(jj, ks) + 2 * rp, rp * 2048 + jj * 256) for jj in range(4) for rp in range(4)]) for ks in range(7)]
        po = [dict(sub='L_dmaO', B=1, slot=(3, 0, 1)[i % 3], rd=self.typeB_reads(oreg, i // 2, i % 2)) for i in range(8)]
        if R4:
            for i, p in enumerate(po): p['off'] = 32768 + 28672 * (i % 4)
        self.issue(pq[0])
        self.stamp(63, None, 30)
        self.srd(28, 64, 3584)
        XL = 48
        a(f'v_mov_b32 v10, 0x{OOB:x}')
        a('v_cmp_gt_u32 vcc, 56, v0'); a('v_bfe_u32 v7, v0, 2, 2'); a('v_mul_u32_u24 v7, 896, v7'); a('v_cndmask_b32 v6, v10, v1, vcc')
        for b in range(4): self.vm(f'buffer_load_dwordx4 {vr(XL + 4 * b, 4)}, v6, {W3}, 0 offen offset:{b * 896}', 'xl')
        a('v_add_u32 v7, v7, v2')
        a('s_mov_b32 s38, 0x3f803f80'); a('s_mov_b32 s39, s38')
        for r in range(0, 28, 2): a(f'v_mov_b64 {vr(A + r, 2)}, s[38:39]')
        a('s_mov_b32 exec_lo, 0x33333333'); a('s_mov_b32 exec_hi, 0x33333333')
        for ks in range(7): self.vm(f'buffer_load_dwordx4 {vr(A + 4 * ks, 4)}, v7, {W3}, 0 offen offset:{128 * ks}', 'xa')
        a('s_mov_b64 exec, -1')
        if not self.ean: self.issue(pq[1])
        self.stamp(56, None, 30)
        self.srd(24, 72, 4096 * 896)
        a('s_lshl_b32 s39, s2, 8')
        self.typeB(f'v{self.vDO}', 's39')
        self.consts(); a('s_lshl_b32 s38, s3, 13'); a('v_add_u32 v9, s38, v9')
        if self.up4: self.issue(pq[2]); self.issue(pq[3])
        self.stamp(57, None, 30)
        self.arm(True)
        self.stamp(58, None, 30)
        if not self.up4: self.issue(pq[1 if self.ean else 2])
        self.vmwait('xl')
        self.stamp(59, None, 30)
        for b in range(4):
            for x in self.stats_ops(XL + 4 * b):
                if x: a(x)
            a(f'v_mov_b32_dpp v92, v24 quad_perm:[0,1,2,3] row_mask:0x{1 << b:x} bank_mask:0xf')
            a(f'v_mov_b32_dpp v93, v25 quad_perm:[0,1,2,3] row_mask:0x{1 << b:x} bank_mask:0xf')
        if self.ean: self.announce(); self.issue(pq[2])
        if not self.up4: self.issue(pq[3])
        self.zero(ACC, 16)
        self.bits('v94', 'v0', 'v6', [(0, 1, 1), (2, 1, 2), (3, 1, 4), (1, 1, 5), (4, 2, 13)])
        a('s_lshl_b32 s38, s3, 7'); a('s_lshl_b32 s44, s2, 9'); a('s_add_u32 s44, s38, s44')
        self.stamp(60, None, 30)
        nxt = {1: pq[4], 2: pq[5], 3: pq[6], 4: po[0]}
        if R4 == 1: nxt[5] = po[1]; nxt[6] = [po[2], po[3]]
        def q1mm(ks):
            for jj in range(4): a(f'v_smfmac_f32_16x16x64_bf16 {vr(ACC + 4 * jj, 4)}, {vr(A + 4 * ks, 4)}, {rr(qreg(jj, ks), 8)}, v3')
        hooks = {} if self.ean else {(3 if self.up4 else 2): lambda: self.announce(False)}
        for i in range(7):
            if i == 3: self.vmwait('arm')
            self.consume(pq[i], nxt.get(i), hooks.get(i))
            self.stamp(41 + i, None, 26)
            if i: q1mm(i - 1)
        a('s_waitcnt lgkmcnt(0)')
        q1mm(6)
        self.stamp(20, None, 28)
        for jj in range(4):
            a(f'v_add_f32 v{20 + jj}, v{ACC + 4*jj}, v{ACC + 4*jj + 1}'); a(f'v_add_f32 v{24 + jj}, v{ACC + 4*jj + 2}, v{ACC + 4*jj + 3}')
        for jj in range(4): a(f'v_fma_f32 v{20 + jj}, -v92, v{24 + jj}, v{20 + jj}')
        for jj in range(4): a(f'v_mul_f32 v{20 + jj}, v{20 + jj}, v93')
        for jj in range(4): a(f'v_cvt_pk_bf16_f32 v{20 + jj}, v{20 + jj}, v{20 + jj}')
        for jj in range(4): a(f'v_min_u32 v{20 + jj}, -2, v{20 + jj}')
        for jj in range(4): self.vm(f'buffer_store_short v{20 + jj}, v94, {WS}, s44 offen offset:{(jj & 1) * 8 + (jj >> 1) * 64} sc1')
        for jj in range(4): a(f'v_mov_b32_dpp v{self.vCS}, v{24 + jj} quad_perm:[0,1,2,3] row_mask:0x{1 << jj:x} bank_mask:0xf')
        self.stamp(35, None, 28)
        if R4 != 1: self.issue(po[1]); self.issue(po[2])
        if R4 == 3: self.issue(po[3])
        a('s_mov_b32 s55, 0'); a(f's_lshl_b32 s41, s2, 15'); a(f's_add_u32 s41, s41, 0x{POFF:x}')
        if self.ja: self.pquad('s11'); a('s_add_u32 s11, s11, s41'); a(f's_add_u32 s11, s11, {PP2}')
        if self.oarm: self.pquad('s11'); a('s_add_u32 s11, s11, s41'); a(f's_sub_u32 s11, s11, {3 * PIB - PP2}')
        self.x0off(); self.gather_offs()
        a('s_lshl_b32 s40, s2, 10'); a('s_and_b32 s38, s40, 0x2000'); a('s_add_u32 s40, s40, s38'); a(f's_add_u32 s40, s40, 0x{YOFF:x}')
        PO, PO2, MO, OW = self.vPO, self.vPO2, self.vMLO, self.vOW
        self.bits(f'v{PO}', 'v0', 'v6', [(0, 4, 3), (4, 2, 9)] if self.h16 else [(0, 4, 4), (4, 2, 10)])
        a(f's_lshl_b32 s38, s3, {7 if self.h16 else 8}'); a(f'v_add_u32 v{PO}, s38, v{PO}')
        a('v_cmp_gt_u32 vcc, 32, v0'); a('v_lshrrev_b32 v6, 4, v0'); a('v_bfe_u32 v7, v0, 2, 2'); a(f'v_cndmask_b32 v{PO2}, v10, v{PO}, vcc')
        a('v_add_u32 v6, v6, v7'); a('v_and_b32 v6, 3, v6')
        a('v_and_b32 v7, 3, v0'); a('v_lshl_add_u32 v6, v7, 2, v6')
        a(f'v_cmp_gt_u32 s[42:43], {NC}, v6'); a(f'v_min_u32 v6, {NC - 1}, v6'); a(f'v_mul_u32_u24 v{MO}, {self.h16 or 128}, v6'); a(f'v_add_u32 v{MO}, {7168 if self.h16 else MLO}, v{MO}')
        self.bits(f'v{OW}', 'v0', 'v6', [(4, 2, 1), (0, 3, 4), (3, 1, 8)])
        a('s_lshr_b32 s38, s3, 1'); a('s_lshl_b32 s38, s38, 7'); a('s_and_b32 s39, s3, 1'); a('s_lshl_b32 s39, s39, 3'); a('s_add_u32 s38, s38, s39')
        a(f'v_add_u32 v{OW}, s38, v{OW}')
        self.bits(f'v{self.vQS}', 'v0', 'v6', [(0, 1, 1), (2, 1, 2), (4, 1, 3), (3, 1, 4), (1, 1, 5), (5, 1, 6)])
        a('s_lshl_b32 s38, s3, 7'); a(f'v_add_u32 v{self.vQS}, s38, v{self.vQS}')
        a('s_cmp_eq_u32 s2, 0'); a(f's_cselect_b32 s33, 0x{XBOFF - 4 * 2048:x}, s57')
        a('s_mov_b32 s53, 3'); a(f's_mov_b32 s54, 0x{OOB:x}')
        for i in range(8):
            self.consume(po[i], (po[i + 3] if 1 <= i < 5 else None) if R4 else po[i + 2] if 1 <= i < 6 else None, (lambda: self.preready(True)) if i == (4 if self.split else 5) else None)
            self.stamp(48 + i, None, 28)
            if i == 1: a('s_call_b64 s[34:35], L_Osub')
            if i == 2: a('s_call_b64 s[34:35], L_Qsub'); a('s_lshl_b32 s54, s2, 9')
            if i == 5 and self.split:
                self.ready(True); a('s_call_b64 s[34:35], L_Osub'); self.cq = []
                a(f'v_cmp_gt_i32 vcc, 0, v{ML+1}'); a('s_cmp_lg_u64 vcc, 0'); a('s_addc_u32 s9, s9, 0')
        assert self.split and self.reord
        self.stamp(1, None, 28)
        a('s_call_b64 s[34:35], L_Ook')
        a.label('L_OQloop')
        a(f's_movk_i32 s38, 0x{self.qmask:x}'); a('s_bitcmp1_b32 s38, s49'); a('s_cbranch_scc0 L_OQin')
        self.readout(pq[6])
        a('s_call_b64 s[34:35], L_Qsub')
        self.readout(po[6], inwin); self.readout(po[7], inwin)
        a.label('L_OQin')
        a('s_call_b64 s[34:35], L_Osub')
        a('s_cmp_lt_u32 s49, 8'); a('s_cbranch_scc1 L_OQloop')
        if '3' in self.wb or '4' in self.wb:
            a(f's_and_b32 s38, s2, {1 if "3" in self.wb else 0}'); a('s_or_b32 s38, s38, s3'); a('s_cbranch_scc1 L_end')
            a('buffer_wbl2 sc1')
        a('s_branch L_end')

    def roleF(self):
        a = self.a
        self.dma_sub('L_dmaG', W1, 'v44', 88, 64 * 3584)
        self.dma_subB('L_dmaD', W3, 'v11')
        breg = lambda jj, ks: 256 + (jj * 7 + ks) * 8
        def dreg(jj, ks):
            i = jj * 2 + ks
            return 256 + 224 + 8 * i if i < 4 else 176 + 8 * (i - 4)
        G = 64; ACC = 48; A = 96; X = 124; CSUM = self.vCS; ACD = 128; X0 = 160
        a.label('L_Fsub')
        self.calc_ib()
        self.zero(ACC, 16); self.zero(ACD, 28)
        a('s_lshl_b32 s38, s50, 15'); a(f's_add_u32 s48, s38, 0x{YOFF:x}'); a('s_add_u32 s48, s48, s10')
        a('s_add_u32 s44, s38, s40'); a('s_add_u32 s51, s44, s56'); a('s_add_u32 s44, s44, s57')
        a('s_lshl_b32 s38, s50, 11'); a(f's_add_u32 s47, s38, 0x{XBOFF - 4 * 2048:x}'); a('s_add_u32 s47, s47, s10')
        a('s_and_b32 s39, s38, 0x2000'); a('s_add_u32 s38, s38, s39')
        a('s_add_u32 s45, s38, s41'); a('s_add_u32 s46, s45, s56'); a('s_add_u32 s45, s45, s57')
        a('s_cmp_lt_i32 s49, 0'); a('s_cbranch_scc1 L_Fx')
        a('s_bitcmp1_b32 s50, 2'); a('s_cbranch_scc1 L_Fr')
        a(f'v_lshlrev_b32 v16, 16, v{X0}'); a(f'v_and_b32 v17, 0xffff0000, v{X0}')
        for i in range(3): a(f'v_mov_b32 v{X0 + i}, v{X0 + i + 1}')
        a('s_branch L_Fg')
        a.label('L_Fr')
        self.resid_poll('s47')
        a.label('L_Fg')
        self.gather_sum('s48', G, True)
        a.label('L_Fx')
        a('ds_write_b32 v15, v24'); a('s_waitcnt lgkmcnt(0)'); a('s_barrier')
        for ks in range(7): a(f'ds_read_b128 {vr(A + 4*ks, 4)}, v2 offset:{128 * ks}')
        a(f'ds_read_b128 {vr(X, 4)}, v1')
        for x in self.xrow_ops('s45', 's46'): a(x)
        self.stamp(3, 's49', 28)
        if self.diag: self.stamp(24, 's49', 28, 's52')
        fill = [None] * 5 + ['s_waitcnt lgkmcnt(0)'] + self.stats_ops(X)
        self.gemv(4, 7, breg, ACC, A, fill=fill, nother=1)
        a(f'v_mul_f32 v22, v24, v{CSUM}'); a(f'v_mul_f32 v23, v24, v{CSUM+1}'); a('v_mul_f32 v25, v25, v25')
        for jj in (0, 2, 1, 3): self.rowsel(20 + jj // 2, ACC, [(jj, 10 if jj & 1 else 5)])
        a('v_sub_f32 v20, v20, v22'); a('v_sub_f32 v21, v21, v23')
        a('v_max_f32 v20, 0, v20'); a('v_mul_f32 v21, v21, v25'); a('v_mul_f32 v20, v20, v21')
        a('v_cvt_pk_bf16_f32 v20, v20, v20')
        a('ds_write_b16 v40, v20'); a('s_waitcnt lgkmcnt(0)'); a('s_barrier')
        for ks in range(2): a(f'ds_read_b128 {vr(A + 4*ks, 4)}, v2 offset:{2048 + 128 * ks}')
        a('v_mov_b32 v21, 0')
        self.gemv(7, 2, dreg, ACD, A)
        self.rowout(ACD, 's44', 's51')
        self.stamp(12, 's49', 28)
        a('s_add_u32 s49, s49, 1')
        a('s_cmp_eq_u32 s49, 0'); a('s_cbranch_scc1 L_Fret')
        a('s_cmp_lt_u32 s49, 8'); a('s_cbranch_scc1 L_Fsub')
        a('s_branch L_end')
        a.label('L_roleF')
        self.cq = list(self.cq0); done = 8 * (self.hq[1] - self.hq[0]) if self.hq else 0
        a('s_cmp_lt_u32 s3, 2'); a('s_cselect_b64 s[20:21], s[76:77], s[78:79]'); a(f's_mov_b32 s22, 0x{448 * 3584:x}'); a('s_mov_b32 s23, 0x20000')
        a('s_sub_u32 s2, s2, 16')
        a('v_mul_u32_u24 v6, 3584, v4')
        a('s_lshl_b32 s38, s2, 8'); a('s_and_b32 s39, s3, 1'); a('s_lshl_b32 s39, s39, 7'); a('s_add_u32 s38, s38, s39')
        a('v_add3_u32 v44, v6, v2, s38')
        self.table(88, 3584)
        pl = [dict(sub='L_dmaG', B=0, rd=[(breg(jj, ks) + 2 * rp, (jj >> 1) * 16384 + rp * 2048 + (jj & 1) * 256) for jj in range(4) for rp in range(4)]) for ks in range(7)]
        pl += [dict(sub='L_dmaD', B=1, rd=self.typeB_reads(dreg, i // 2, i % 2)) for i in range(4)]
        for i, p in enumerate(pl): p['slot'] = i % 4
        self.stamp(56, None, 30)
        for i in range(1 if self.ean else 2): self.issue(pl[i])
        self.stamp(57, None, 30)
        self.srd(28, 80, 1792 * 896); self.srd(68, 64, 3584)
        a('s_lshl_b32 s39, s2, 7')
        self.typeB('v11', 's39')
        self.consts()
        a('s_lshr_b32 s38, s3, 1'); a('s_lshl_b32 s38, s38, 13'); a('s_and_b32 s39, s3, 1'); a('s_lshl_b32 s39, s39, 9'); a('s_add_u32 s38, s38, s39'); a('v_add_u32 v9, s38, v9')
        self.x0off(); self.gather_offs()
        for b in range(4): self.vm(f'buffer_load_dword v{X0 + b}, v12, s[68:71], 0 offen offset:{b * 896}', 'x0')
        a('v_and_b32 v6, 31, v0'); a('s_lshl_b32 s38, s3, 6'); a('s_add_u32 s38, s38, 2048'); a('v_lshl_add_u32 v40, v6, 1, s38')
        a('s_lshl_b32 s40, s2, 10'); a('s_and_b32 s38, s40, 0x2000'); a('s_add_u32 s40, s40, s38'); a(f's_add_u32 s40, s40, 0x{ZOFF:x}')
        a('s_cmp_eq_u32 s2, 0'); a(f's_cselect_b32 s41, 0x{XAOFF:x}, s57')
        if done < 10: self.arm()
        elif done < 24: self.announce()
        if self.ean:
            assert not done
            self.issue(pl[1]); self.announce()
        self.stamp(58, None, 30)
        self.issue(pl[2])
        a('s_branch L_Fsub')
        a.label('L_Fret')
        self.issue(pl[3])
        self.stamp(59, None, 30)
        hooks = {2: lambda: self.announce(False)} if done < 10 and not self.ean else {}
        hooks[7] = self.preready
        for i in range(11):
            self.consume(pl[i], pl[i + 3] if 1 <= i < 8 else None, hooks.get(i))
            if self.ho and i == self.ho[2]: self.wo_pf('s2')
            self.stamp(41 + i, None, 26)
            if i == 7:
                self.stamp(20, None, 28)
                self.colsum(4, 7, breg, ACC)
                self.rowsel(CSUM, ACC, [(0, 5), (1, 10)]); self.rowsel(CSUM + 1, ACC, [(2, 5), (3, 10)])
        self.ready()
        a('s_branch L_Fsub')

    def wo_pf(self, head, add=0):
        a = self.a; p0, p1 = self.ho[:2]
        self.srd(24, 72, 4096 * 896)
        nb = (p1 - p0) * 28672; per = nb // 4
        a(f's_mul_i32 s38, {head}, 229376'); a(f's_mul_i32 s39, s3, {per}'); a('s_add_u32 s38, s38, s39'); a(f's_add_u32 s38, s38, {p0 * 28672 + add * 229376}')
        a('v_min_u32 v6, 55, v0'); a('v_lshlrev_b32 v6, 7, v6')
        for i in range(p1 - p0):
            self.vm(f'buffer_load_dword v45, v6, {W2}, s38 offen {self.hpol}', 'ho'); a('s_add_u32 s38, s38, 7168')
    def roleW(self):
        a = self.a
        self.cq = list(self.cq0); done = 8 * (self.hq[1] - self.hq[0]) if self.hq else 0
        self.consts()
        if done < 10: self.arm()
        if done < 24: self.announce()
        a('s_sub_u32 s2, s2, 30')
        if self.hpf: self.helper()
        if self.ho: self.wo_pf('s2', 14)
        if self.w2:
            a('s_lshr_b32 s38, s3, 1'); a('s_cmp_lg_u32 s2, s38'); a('s_cbranch_scc1 L_end')
            if self.diag: a('s_lshl_b32 s38, s2, 13'); a('s_sub_u32 s61, s61, s38')
        else: a('s_cmp_lg_u32 s2, 0'); a('s_cbranch_scc1 L_end')
        self.near()
        self.srd(20, 82, 3584)
        self.x0off(); self.gather_offs()
        self.preready(); self.ready()
        G = 64
        a('s_mov_b32 s49, 0'); a(f's_add_u32 s47, s10, 0x{XAOFF + 16384:x}'); a(f's_add_u32 s48, s10, 0x{ZOFF + 4 * 32768:x}'); a('s_mov_b32 s44, 0')
        a.label('L_Wtop')
        if not self.mres: self.resid_poll('s47')
        self.gather_sum('s48', G, False, 's47' if self.mres else None)
        a(f'buffer_store_dword v24, v12, {W1}, s44 offen')
        self.stamp(12, 's49', 28)
        if self.diag: self.stamp(24, 's49', 28, 's52')
        a('s_add_u32 s49, s49, 1'); a('s_add_u32 s47, s47, 2048'); a('s_add_u32 s48, s48, 32768'); a('s_add_u32 s44, s44, 896')
        a('s_cmp_lt_u32 s49, 4'); a('s_cbranch_scc1 L_Wtop')
        a('s_branch L_end')
    def helper(self):
        a = self.a
        hq, ho = self.hpf if isinstance(self.hpf, (list, tuple)) else (48, 48)
        a('s_lshl_b32 s38, s2, 2'); a('s_add_u32 s38, s38, s3')
        self.srd(20, 70, 448 * 8192); self.srd(24, 72, 4096 * 896)
        a('s_lshl_b32 s40, s38, 10'); a(f's_add_u32 s40, s40, {(448 - hq) * 8192}')
        l = self.lab('L_hq'); a(f's_mov_b32 s41, {hq}')
        if hq:
            a.label(l)
            a('s_waitcnt vmcnt(11)'); a(f'buffer_load_dwordx4 v[64:67], v1, {W1}, s40 offen {self.hpol}')
            a('s_add_u32 s40, s40, 8192'); a('s_sub_u32 s41, s41, 1'); a('s_cmp_lg_u32 s41, 0'); a(f's_cbranch_scc1 {l}')
        if ho:
            a('s_mul_i32 s40, s38, 458752'); a(f's_add_u32 s40, s40, {229376 - ho * 1024}'); a('s_add_u32 s42, s40, 229376')
            l = self.lab('L_ho'); a(f's_mov_b32 s41, {ho}')
            a.label(l)
            a('s_waitcnt vmcnt(10)'); a(f'buffer_load_dwordx4 v[64:67], v1, {W2}, s40 offen {self.hpol}')
            a(f'buffer_load_dwordx4 v[64:67], v1, {W2}, s42 offen {self.hpol}')
            a('s_add_u32 s40, s40, 1024'); a('s_add_u32 s42, s42, 1024'); a('s_sub_u32 s41, s41, 1'); a('s_cmp_lg_u32 s41, 0'); a(f's_cbranch_scc1 {l}')
        a('s_waitcnt vmcnt(0)')
        self.stamp(20, None, 28)

if __name__ == '__main__':
    kw = json.loads(sys.argv[2]) if len(sys.argv) > 2 else {}
    open(sys.argv[1], 'w').write(Gen(**kw).build())
```

```python
import sys, struct, json
from asmlib import Asm
NAME = "interleave_layers__mha_block_cached__glu_gated_reglu__decode"

QOFF = 0x0; YOFF = 0x10000; ZOFF = 0x50000; XAOFF = 0x90000; XBOFF = 0x98000; HOFF = 0x9c000; COFF = 0x9a000 - 0x2000 + 0x8000; POFF = 0x800000; DOFF = 0x400000
PB = 32768; PIB = 0x100000; PP2 = 0x80000; MLO = 16384 + 6144
OOB = 0x40000000
NC = 14; NW = 56
CS = 0.09016844005556021
def f2u(x): return struct.unpack('<I', struct.pack('<f', x))[0]

K_SRD = 's[8:11]'; V_SRD = 's[12:15]'; WS = 's[16:19]'; W1 = 's[20:23]'; W2 = 's[24:27]'; W3 = 's[28:31]'
DBG = 's[84:85]'
NCHAIN = 32
K4 = 's[88:91]'; V4 = 's[92:95]'
FULL = 'row_mask:0xf bank_mask:0xf'

def vr(b, n=1): return f'v{b}' if n == 1 else f'v[{b}:{b+n-1}]'
def ar(b, n=1): return f'a{b}' if n == 1 else f'a[{b}:{b+n-1}]'
def rr(b, n=1): return vr(b, n) if b < 256 else ar(b - 256, n)

class Gen:
    def __init__(self, diag=False, PF=65, depth=8, hpf=False, hpol='nt', cpf=False, rows=(16, 10, 7), hq=None, fake=0, CL=12, PF2=None, reord=1, lightO=0, split=True, tlb=0, fx=2, thr=None, wtlb=0, probe=None, kpol='nt', vpol='nt', par=None, nQ=48, nE=60, early=False, sub=None, qE=None, ring4=0, up4=False, ho=None, pos=None, home=0, hforce=None, lv=None, lvx=None, th=None, cps=None, rs=None, gs=14, kvonly=True, ed=False, mid=None, fast=((2, (73, 74, 75)), (3, (76, 77)), (4, (78, 79))), boost=None, fld=(2, 2), nQ1=None, cpon=None, odd=None, slow=None, xsl=0, loc=1, spf=None, mres=1, dual=1, hs=4, ean=1, SG=24, pw=12, flex=None, KF=52, TK=41, qmask=0x96, fw=(), fb=None, bst=None, fine=(), cla=0, arl=None, wsw=0, noarm=0, PFA=None, xpf=None, oarm=0, xpol='', fx2=None, p0=8, nox=0, nocl=0, mp=0, fin=0, cyc=0, mz=0, lst=0, w2=0, mpr='FW', hp=None, rm=None, vpf=None, eq=None, hl=None, wb='', la=None, nt='', ja=None, lp=None, h16=0, r4=0,
                 p2l=((('u', 2), (73, 74, 75)), (('u', 3), (76, 77)), (('u', 4), (78, 79)), (('u', 9), (0,)), (('x', 0), (1,)), (('i', 0), (2,)), (('i', 2), (3,)), (('i', 4), (4,)), (('m', 0), (5,))),
                 p1l={'a': (6, 7), '1': (8, 9), '2': (10,), '3': (11, 12), '4': (13,), 'm': (14, 15)}):
        self.r4 = r4; self.h16 = h16; self.lp = lp or {}; self.ja = ja; self.N = lambda c: ' nt' if c in nt else ''; self.la = la; self.wb = wb; self.hl = hl; self.eq = eq; self.vpf = vpf; self.rm = rm; self.hp = hp; self.mpr = mpr; self.w2 = w2; self.lst = lst; self.mz = mz; self.cyc = cyc; self.ck = 0; self.fin = fin; self.mp = mp; self.nox = nox; self.nocl = nocl; self.fine = list(fine); self.cla = cla; self.arl = arl; self.wsw = wsw; self.noarm = noarm; self.PFA = PFA; self.p0 = p0; self.fx2 = fx2; self.xpf = xpf; self.xpol = xpol; self.oarm = oarm; self.fb = fb; self.bst = bst; self.fw = fw; self.flex = flex; self.KF = KF; self.TK = TK; self.qmask = qmask
        if flex:
            rest = list(range(48, 80)); rest[KF - 40:KF - 40] = range(32, 40)
            self.ORD = list(range(24, 32)) + list(range(40, 48)) + list(range(24)) + rest
            assert sum(n for n, r in flex) == NW and sum(n * r for n, r in flex) == 512 and nQ >= KF + 8
        self.SG = SG; self.pw = pw; self.p2l = p2l; self.p1l = p1l
        self.dual = dual; self.hs = hs; self.ean = ean
        self.loc = loc; self.spf = spf or []; self.mres = mres
        self.xsl = xsl
        self.slow = slow
        self.odd = odd
        self.cpon = cpon
        self.nQ1 = nQ1 or nQ
        self.fast = fast; self.boost = boost; self.fld = fld; self.xst = 0
        if boost: lv = [depth, boost[1]]
        self.kvonly = kvonly; self.ed = ed; self.mid = mid
        self.lv = lv; self.lvx = lvx; self.th = th; self.cps = cps or []; self.rs = rs; self.dyn = False; self.gs = gs
        self.hforce = hforce
        self.home = home
        self.pos = pos
        self.ring4 = ring4; self.up4 = up4; self.ho = ho
        self.sub = sub; self.qE = qE
        self.par = par; self.nQ = nQ; self.nE = nE; self.early = early
        self.pmul = 10 if not probe or len(probe) < 3 else probe[2]; probe = probe and probe[:2]; self.probe = probe; self.role = 'X'; self.kpol = kpol; self.vpol = vpol
        self.a = Asm(); self.diag = diag; self.PF = PF; self.depth = depth; self.hpf = hpf; self.hpol = hpol; self.cpf = cpf; self.rows = rows; self.hq = hq; self.fake = fake; self.CL = CL; self.PF2 = PF2; self.reord = reord; self.lightO = lightO; self.split = split; self.tlb = tlb; self.fx = fx; self.thr = thr; self.wtlb = wtlb
        self.uid = 0
    def lab(self, p='L'):
        self.uid += 1; return f'{p}_{self.uid}'

    def bits(self, dst, lane, tmp, mp):
        a = self.a; first = True
        for lb, n, ab in mp:
            if first:
                a(f'v_bfe_u32 {dst}, {lane}, {lb}, {n}')
                if ab: a(f'v_lshlrev_b32 {dst}, {ab}, {dst}')
                first = False
            else:
                a(f'v_bfe_u32 {tmp}, {lane}, {lb}, {n}')
                a(f'v_lshl_add_u32 {dst}, {tmp}, {ab}, {dst}')
    def srd(self, base, lo, size):
        a = self.a
        a(f's_mov_b64 s[{base}:{base+1}], s[{lo}:{lo+1}]')
        a(f's_mov_b32 s{base+2}, 0x{size:x}'); a(f's_mov_b32 s{base+3}, 0x20000')
    def timeout(self):
        self.a('s_sub_u32 s52, s52, 1'); self.a('s_cbranch_scc1 L_bail')
        if self.xsl and self.role != 'S': self.a(f's_sleep {self.xsl}')
    FLAG = 4096; CNTA = 16; CNTB = 144
    def wait_counter(self, va, vd, vt, off, n, pre=False):
        a = self.a; l = self.lab('L_cnt'); c = self.lab('L_cntc')
        if pre: a(f's_branch {c}')
        else: a(f'v_mov_b32 v{va}, 0')
        a.label(l)
        self.timeout()
        a(f'global_load_dword v{vd}, v{va}, {DBG} offset:{off} sc1'); a('s_waitcnt vmcnt(0)')
        a.label(c)
        a(f'v_and_b32 v{vt}, {"0xffff" if self.nocl else "0xff"}, v{vd}'); a(f'v_cmp_gt_u32 vcc, {n}, v{vt}'); a(f's_cbranch_vccnz {l}')
    def claim(self, va, vd, vr_):
        a = self.a; l = self.lab('L_cl')
        if self.nocl: a(f'v_mov_b32 v{va}, 0'); a('s_waitcnt lgkmcnt(0)'); return
        a('s_lshl_b32 s38, 1, s101'); a(f'v_mov_b32 v{va}, s100'); a(f'v_mov_b32 v{vd}, s38')
        a('s_or_b32 s38, s3, s7')
        a('s_waitcnt lgkmcnt(0)')
        a(f's_cbranch_scc1 {l}')
        a('s_mov_b64 exec, 1')
        a(f'global_atomic_or v{vr_}, v{va}, v{vd}, {DBG} sc0 sc1')
        a('s_mov_b64 exec, -1')
        a.label(l)
    def confirm(self, vr_, t):
        a = self.a; l = self.lab('L_rs'); w = self.lab('L_rw')
        if self.nocl: return
        a(f'v_mov_b32 v{t}, 0')
        a('s_cmp_lg_u32 s3, 0'); a(f's_cbranch_scc1 {l}')
        a('s_movk_i32 s38, 0x100'); a('s_cmp_lg_u32 s7, 0'); a(f's_cbranch_scc1 {w}')
        a(f'v_readfirstlane_b32 s39, v{vr_}'); a('s_bitcmp1_b32 s39, s101'); a(f's_cbranch_scc0 {w}')
        a('s_call_b64 s[96:97], L_lost')
        a.label(w)
        a(f'v_mov_b32 v{t+1}, s38'); a(f'ds_write_b32 v{t}, v{t+1} offset:{self.FLAG}'); a('s_waitcnt lgkmcnt(0)')
        a.label(l)
        a('s_barrier')
        a(f'ds_read_b32 v{t+1}, v{t} offset:{self.FLAG}'); a('s_waitcnt lgkmcnt(0)')
        a(f'v_readfirstlane_b32 s38, v{t+1}'); a('s_cmp_lg_u32 s38, 0x100'); a('s_cbranch_scc1 L_redo')
    def signal(self, va, vd, off, val):
        a = self.a; l = self.lab('L_sg')
        a('s_cmp_lg_u32 s3, 0'); a(f's_cbranch_scc1 {l}')
        a('s_mov_b64 exec, 1'); a(f'v_mov_b32 v{va}, 0'); a(f'v_mov_b32 v{vd}, {val}')
        a(f'global_atomic_add v{va}, v{vd}, {DBG} offset:{off} sc1')
        a('s_mov_b64 exec, -1')
        a.label(l)
    def rare_paths(self):
        a = self.a
        a.label('L_odd')
        a('s_waitcnt lgkmcnt(0)'); a('v_mov_b32 v1, 0')
        a('s_cmp_lg_u32 s3, 0'); a('s_cbranch_scc1 L_odd2')
        a('s_and_b32 s38, s36, 3'); a('s_lshl_b32 s38, s38, 6'); a('s_lshr_b32 s39, s36, 2'); a('s_lshl3_add_u32 s38, s39, s38')
        a('v_mov_b32 v2, s38'); a('s_lshl_b32 s39, s37, 3'); a('s_movk_i32 s41, 24')
        a.label('L_odd1')
        a(f'global_load_dword v3, v2, {DBG} sc1'); a('s_waitcnt vmcnt(0)')
        a('v_readfirstlane_b32 s38, v3'); a('s_lshr_b32 s38, s38, s39'); a('s_and_b32 s38, s38, 0xff'); a('s_bcnt1_i32_b32 s40, s38')
        a('s_cmp_ge_u32 s40, 7'); a('s_cselect_b32 s41, 0, s41'); a('s_sub_u32 s41, s41, 1'); a('s_cbranch_scc0 L_odd1')
        a('s_ff0_i32_b32 s38, s38'); a('v_mov_b32 v2, s38'); a(f'ds_write_b32 v1, v2 offset:{self.FLAG + 4}'); a('s_waitcnt lgkmcnt(0)')
        a.label('L_odd2')
        a('s_barrier')
        a(f'ds_read_b32 v2, v1 offset:{self.FLAG + 4}'); a('s_waitcnt lgkmcnt(0)')
        a('v_readfirstlane_b32 s38, v2'); a('s_mov_b32 s6, 1'); a('s_branch L_even')
        a.label('L_lost')
        a('s_waitcnt vmcnt(0)')
        self.bits('v62', 'v0', 'v63', [(0, 2, 6), (2, 1, 3)])
        a.label('L_lost1')
        a(f'global_load_dword v60, v62, {DBG} sc1'); a('s_waitcnt vmcnt(0)')
        a('v_cmp_ne_u32 vcc, -1, v60'); a('s_movk_i32 s38, 0x300'); a('s_cbranch_vccz L_lost2')
        a('s_getreg_b32 s39, hwreg(HW_REG_XCC_ID, 0, 3)'); a('s_ff1_i32_b32 s38, vcc_lo')
        a('s_bitcmp1_b32 vcc_lo, s39'); a('s_cselect_b32 s38, s39, s38')
        a('s_nop 3'); a('v_readlane_b32 s39, v60, s38'); a('v_readlane_b32 s40, v62, s38'); a('s_ff0_i32_b32 s39, s39')
        a('s_lshl_b32 s41, 1, s39'); a('v_mov_b32 v61, s41'); a('v_mov_b32 v63, s40')
        a('s_mov_b64 exec, 1'); a(f'global_atomic_or v60, v63, v61, {DBG} sc0 sc1'); a('s_mov_b64 exec, -1'); a('s_waitcnt vmcnt(0)')
        a('v_readfirstlane_b32 s40, v60'); a('s_bitcmp1_b32 s40, s39'); a('s_cbranch_scc1 L_lost1')
        a('s_lshl_b32 s38, s38, 5'); a('s_add_u32 s38, s38, s39'); a('s_bitset1_b32 s38, 9')
        a.label('L_lost2')
        a('s_setpc_b64 s[96:97]')
        a.label('L_redo')
        a('s_bitcmp1_b32 s38, 8'); a('s_cbranch_scc1 L_bail')
        a('s_waitcnt vmcnt(0) lgkmcnt(0)'); a('s_barrier')
        a('s_load_dwordx16 s[64:79], s[0:1], 0')
        a('s_load_dwordx8 s[80:87], s[0:1], 64')
        a('s_bfe_u32 s36, s38, 0x30005'); a('s_and_b32 s2, s38, 31'); a('s_mov_b32 s7, 1')
        a('s_branch L_role')
    def stamp(self, idx, sidx=None, t0=20, src='s62'):
        if self.probe and not self.diag:
            role, want = self.probe
            if role != self.role or (sidx is None and idx != want) or (sidx and not (0 <= want - idx < 9)): return
            a = self.a
            a('s_waitcnt lgkmcnt(0)'); a('s_memrealtime s[62:63]'); a('s_waitcnt lgkmcnt(0)')
            if sidx: a(f's_cmp_eq_u32 {sidx}, {want - idx}'); a('s_cselect_b32 s61, s62, s61')
            else: a('s_mov_b32 s61, s62')
            return
        if not self.diag: return
        a = self.a
        a('s_waitcnt lgkmcnt(0)'); a('s_memrealtime s[62:63]'); a('s_waitcnt lgkmcnt(0)')
        a(f'v_mov_b32 v{t0}, {src}')
        if sidx: a(f's_lshl_b32 s60, {sidx}, 2'); a('s_add_u32 s60, s60, s61')
        else: a('s_mov_b32 s60, s61')
        a(f'v_mov_b32 v{t0+1}, 0')
        a('s_mov_b64 exec, 1')
        a(f'buffer_store_dword v{t0}, v{t0+1}, {WS}, s60 offen offset:{idx*4}' + self.N('d'))
        a('s_mov_b64 exec, -1')
    def diagbase(self):
        a = self.a
        a('s_and_b32 s60, s61, 31'); a('s_lshr_b32 s61, s61, 5'); a('s_lshl3_add_u32 s61, s60, s61')
        a('s_lshl2_add_u32 s61, s61, s3'); a('s_lshl_b32 s61, s61, 8'); a(f's_add_u32 s61, s61, 0x{DOFF:x}')
    def maxtree(self, regs, t):
        a = self.a; regs = list(regs)
        a(f'v_max3_u32 v{t}, v{regs[0]}, v{regs[1]}, v{regs[2 if len(regs) > 2 else 1]}')
        regs = regs[3:]
        while regs:
            x = regs[:2]; regs = regs[2:]
            a(f'v_max3_u32 v{t}, v{t}, v{x[0]}, v{x[-1]}')
        a(f'v_cmp_eq_u32 vcc, -1, v{t}')

    def build(self):
        a = self.a
        if self.diag: a('s_memrealtime s[34:35]')
        a('s_cmp_ge_u32 s2, 256'); a('s_cbranch_scc1 L_end2')
        if self.probe: a('s_memrealtime s[62:63]'); a('s_waitcnt lgkmcnt(0)'); a('s_mov_b32 s60, s62'); a('s_mov_b32 s61, s62')
        a('s_load_dwordx16 s[64:79], s[0:1], 0')
        a('s_load_dwordx8 s[80:87], s[0:1], 64')
        if self.nocl:
            if self.fake: a(f's_mul_i32 s2, s2, {2 * self.fake + 1}'); a(f's_add_u32 s2, s2, {self.fake // 2 * 8}'); a('s_and_b32 s2, s2, 255'); self.fake = 0
            a('s_and_b32 s36, s2, 7'); a('s_lshr_b32 s38, s2, 5'); a('s_bfe_u32 s37, s2, 0x20003')
            if self.nocl > 1: a(f's_add_u32 s38, s38, {9 - self.nocl}')
            if self.diag: a('s_getreg_b32 s100, hwreg(HW_REG_HW_ID)')
        else:
            a('s_getreg_b32 s36, hwreg(HW_REG_XCC_ID, 0, 3)')
            a('s_getreg_b32 s38, hwreg(HW_REG_HW_ID, 8, 4)'); a('s_getreg_b32 s37, hwreg(HW_REG_HW_ID, 13, 2)')
        a('v_lshrrev_b32 v1, 6, v0'); a('v_and_b32 v0, 63, v0')
        a('v_readfirstlane_b32 s3, v1')
        a('s_mov_b32 s52, 400000'); a('s_mov_b64 s[6:7], 0')
        if self.fake == 1: a('s_and_b32 s38, s38, 6')
        if self.fake == 2: a('s_and_b32 s36, s36, 5')
        if self.fake == 3: a('s_and_b32 s36, s2, 7'); a('s_lshr_b32 s38, s2, 5'); a('s_mov_b32 s37, 0')
        if self.fake == 4: a('s_mov_b32 s36, 0'); a('s_mov_b32 s38, 0'); a('s_mov_b32 s37, 0')
        if self.fake == 5:
            a('s_bitcmp0_b32 s37, 0'); a('s_cselect_b32 s39, 8, 0'); a('s_cmp_eq_u32 s38, 3'); a('s_cselect_b32 s38, s39, s38')
        if not self.nocl: a('s_bitcmp0_b32 s37, 0'); a('s_cselect_b32 s39, 8, 0'); a('s_cmp_eq_u32 s38, s39'); a('s_cbranch_scc1 L_odd')
        a.label('L_even')
        a('s_and_b32 s38, s38, 7'); a('s_lshl3_add_u32 s2, s37, s38')
        if self.fake == 6: a('s_cmp_lg_u32 s38, 7'); a('s_cselect_b32 s39, 5, 0'); a('s_xor_b32 s36, s36, s39')
        if self.fake == 7: a('s_cmp_eq_u32 s2, 10'); a('s_cselect_b32 s39, 1, 0'); a('s_xor_b32 s36, s36, s39')
        if self.fake == 8: a('s_cmp_eq_u32 s2, 7'); a('s_cselect_b32 s39, 4, 0'); a('s_xor_b32 s36, s36, s39')
        a.label('L_role')
        if not self.nocl: a('s_mov_b32 s101, s2'); a('s_and_b32 s100, s36, 3'); a('s_lshl_b32 s100, s100, 6'); a('s_lshr_b32 s38, s36, 2'); a('s_lshl3_add_u32 s100, s38, s100')
        if self.cpf:
            a('s_getpc_b64 s[38:39]'); a.label('L_pc')
            a('s_lshl_b32 s37, s2, 2'); a('s_add_u32 s37, s37, s3'); a('s_lshl_b32 s37, s37, 10')
            a('s_cmp_ge_u32 s37, L_end-L_pc'); a('s_cbranch_scc1 L_nopf')
            a('v_lshl_add_u32 v2, v0, 4, s37'); a('v_min_u32 v2, L_end-L_pc-16, v2')
            a('global_load_dwordx4 v[60:63], v2, s[38:39]')
            a.label('L_nopf')
        a('s_getreg_b32 s38, hwreg(HW_REG_XCC_ID, 0, 4)'); a('s_cmp_eq_u32 s38, s36'); a(f's_cselect_b32 s5, 1, {"0x10001" if self.nocl else "0x101"}')
        a('s_lshr_b32 s38, s2, 4'); a('s_lshl1_add_u32 s36, s36, s38'); a('s_and_b32 s37, s2, 7'); a('s_bfe_u32 s38, s2, 0x10003')
        a('s_cmp_eq_u32 s37, 7'); a('s_cbranch_scc1 L_chain')
        self.role = 'S'; self.stream()
        a.label('L_chain'); self.role = 'C'
        self.chain_common()
        self.role = 'W'; self.roleW(); self.role = 'O'; self.roleOQ(); self.role = 'F'; self.roleF()
        if not self.nocl: self.rare_paths()
        a.label('L_bail')
        a('s_mov_b64 exec, 1')
        a('v_mov_b32 v0, 32'); a('v_mov_b32 v1, 1')
        a(f'global_atomic_add v0, v1, {DBG} sc1')
        a('v_mov_b32 v0, 36'); a('v_mov_b32 v1, s2')
        a(f'global_store_dword v0, v1, {DBG} sc1')
        a.label('L_end')
        if self.probe:
            a('s_cmp_eq_u32 s60, s61'); a('s_cbranch_scc1 L_end2')
            a('s_sub_u32 s61, s61, s60'); a(f's_mul_i32 s61, s61, {self.pmul}'); a('s_add_u32 s61, s61, 7000'); a('s_add_u32 s61, s61, s60')
            a.label('L_pspin')
            a('s_memrealtime s[62:63]'); a('s_waitcnt lgkmcnt(0)'); a('s_sub_u32 s62, s62, s61'); a('s_cmp_lt_i32 s62, 0'); a('s_cbranch_scc1 L_pspin')
        a.label('L_end2')
        body = a.finish()
        hdr = open('cdna_kernels/' + NAME + '.s.ref').read().split('\n')
        top = [l for l in hdr if l.startswith(';') and '@launch' not in l]
        s = '\n'.join(top) + '\n; @launch grid=(256,1,1) block=(256,1,1) lds=163840\n'
        s += f'.amdgcn_target "amdgcn-amd-amdhsa--gfx950"\n.text\n.globl {NAME}_kernel\n.p2align 8\n.type {NAME}_kernel,@function\n{NAME}_kernel:\n'
        s += body
        s += f'''s_endpgm
.section .rodata,"a"
.p2align 6
.amdhsa_kernel {NAME}_kernel
  .amdhsa_next_free_vgpr 512
  .amdhsa_next_free_sgpr 102
  .amdhsa_accum_offset 256
  .amdhsa_group_segment_fixed_size 0
  .amdhsa_kernarg_size 96
  .amdhsa_user_sgpr_count 2
  .amdhsa_user_sgpr_kernarg_segment_ptr 1
  .amdhsa_system_sgpr_workgroup_id_x 1
.end_amdhsa_kernel
'''
        return s

    CA = [0, 4096]; Q1L = 8192; MA = [10240, 10272]; CO = [10304, 10308]; MA1 = [10240, 10336]; ST = 10496; TB = 11520; WLDS = 37 * 1024
    vK, vV, vDs, vL16, vQo, vIQ, vIP = 1, 2, 3, 4, 5, 6, 7
    vM = 8; vT = 12; vBias = 15; vMC = 16; vL = 17; vQ = 24; vAcc = 32; vH = 48
    def kreg(self, s, u):
        return 64 + 96 * s + 16 * u if u < 6 else 256 + 128 * s + 16 * (u - 6)
    def vreg0(self, s, P, t):
        return 256 + 128 * s + 64 + 8 * (4 * P + t)
    def tile(self, n):
        if n < 40:
            u, t = n // 4, n % 4
            return 0, u // 2, t * 128 + (u & 1) * 512
        m = n - 40; g = m // 8; k = m % 8
        if g < 4: P, t = k // 4, k % 4
        else: t, P = k // 2, k % 2
        return 1, g, t * 128 + P * 1024
    def ldsslot(self, s, n):
        if n <= 72: return (n - 56) + 17 * s
        return 34 + (n - 73)
    ORD = list(range(24, 40)) + list(range(24)) + list(range(40, 80))
    def load(self, s, p, wait=True, to=None):
        a = self.a; n = self.ORD[p]
        kv, g, imm = self.tile(n)
        if p == 0 and not self.prologue:
            for j in range(4 if self.flex or self.fx2 else 5): a(f's_add_u32 s{40+j}, s{40+j}, 0x2000000')
            if self.fx2: a('s_mov_b32 s44, s24'); a('s_lshl_b32 s90, s25, 9'); a('s_add_u32 s90, s90, s44'); a('s_min_u32 s90, s90, s10'); a('s_mov_b32 s94, s90')
            elif not self.flex: a('s_add_u32 s90, s90, 0x2000000'); a('s_min_u32 s90, s90, s10'); a('s_mov_b32 s94, s90')
        va = f'v{self.vV if kv else self.vK}'; srd = V_SRD if kv else K_SRD
        if g == 4: srd = V4 if kv else K4
        if g == 4 and self.rm and self.rm[0] != 12:
            t = 'v16' if self.prologue else 'v0'
            if n in (32, 72):
                a(f'v_bfe_u32 {t}, v{self.vL16}, 7, 1'); a(f'v_mul_u32_u24 {t}, {(1 << self.rm[0]) - 4096}, {t}'); a(f'v_sub_u32 {t}, {va}, {t}')
            va = t
        dst = None
        if n < 40: dst = self.kreg(s, n // 4) + 4 * (n % 4)
        elif n < 56:
            m = n - 40; dst = self.vreg0(s, (m % 8) // 4, m % 4) + 4 * (m // 8)
        elif n >= 76: dst = self.kreg(1 - s, 1) + 4 * (n - 76)
        if to is not None: dst = to
        if dst is None:
            a(f's_add_u32 m0, s45, {self.ldsslot(s, n) * 1024 - imm}')
        depth = self.lv[-1] if self.dyn else self.depth
        if wait is not True and wait: depth = wait
        def allow(d):
            pos = [i for i, x in enumerate(reversed(self.vmq)) if x[0] != 'cp' and not (self.flex and x[0] in (0, 1) and self.KF <= x[1] < self.KF + 8 and (x[1] - self.KF) % 8 not in self.fw)]
            return pos[d - 1] if len(pos) >= d else None
        if wait is True and self.dyn:
            lows = [allow(d) for d in self.lv[:-1] if allow(d) is not None]
            labs = [self.lab('L_lv') for _ in lows]
            for i in reversed(range(len(lows))):
                a(f's_cmp_gt_u32 s59, {i}'); a(f's_cbranch_scc1 {labs[i]}')
            for i, k in enumerate(lows):
                a(f's_waitcnt vmcnt({k})'); a.label(labs[i])
        if wait and allow(depth) is not None:
            k = allow(depth)
            a(f's_waitcnt vmcnt({k})'); self.vmq = self.vmq[-k:]
        if dst is None:
            a(f'buffer_load_dwordx4 {va}, {srd}, s{40+g} offen offset:{imm} {self.vpol if kv else self.kpol} lds')
        else:
            a(f'buffer_load_dwordx4 {rr(dst, 4)}, {va}, {srd}, s{40+g} offen offset:{imm} {self.vpol if kv else self.kpol}')
        self.vmq.append((s, p))
    def need_vm(self, tag):
        if tag == ('cp', 'q1') and self.eq and tag not in self.vmq:
            t = [x for x in self.vmq if x[0] != 'cp' and x[1] == self.PF]
            if t:
                l = self.lab('L_eq'); self.a('s_cmp_lg_u32 s58, 0'); self.a(f's_cbranch_scc1 {l}')
                self.a(f's_waitcnt vmcnt({len(self.vmq) - 1 - self.vmq.index(t[0])})'); self.a.label(l)
            return
        if tag in self.vmq:
            k = len(self.vmq) - 1 - self.vmq.index(tag)
            if self.xst:
                l = self.lab('L_xs'); self.a('s_cmp_lg_u32 s58, 0'); self.a(f's_cbranch_scc1 {l}')
                self.a(f's_waitcnt vmcnt({k})'); self.a.label(l); self.a(f's_waitcnt vmcnt({k + self.xst})')
            else: self.a(f's_waitcnt vmcnt({k})')
            self.vmq = self.vmq[len(self.vmq) - k:] if k else []
    def ds(self, text, tag=None):
        self.a(text); self.lq.append(tag)
    def need_lds(self, tag):
        if tag in self.lq:
            i = len(self.lq) - 1 - self.lq[::-1].index(tag)
            k = len(self.lq) - 1 - i
            k = min(k, 15)
            self.a(f's_waitcnt lgkmcnt({k})'); self.lq = self.lq[len(self.lq) - k:] if k else []
    def qload(self):
        a = self.a
        a(f'buffer_load_dwordx4 {vr(self.vQ, 4)}, v{self.vQo}, {WS}, s46 offen sc1')
        a(f'buffer_load_dwordx4 {vr(self.vQ + 4, 4)}, v{self.vQo}, {WS}, s46 offen offset:256 sc1')
    def wpf(self, n):
        a = self.a
        for nn, mat, k in self.spf:
            if nn != n: continue
            a('s_lshl2_add_u32 s32, s37, s3')
            for lo, size, rs, lpr, hs, rows in {'q': [(70, 448 * 8192, 8192, 4, 512, 448)], 'o': [(72, 4096 * 896, 128, 1, 229376, 1792)],
                          'g': [(76, 448 * 3584, 3584, 2, 256, 448), (78, 448 * 3584, 3584, 2, 256, 448)], 'd': [(80, 1792 * 896, 128, 1, 114688, 896)]}[mat]:
                assert 56 * k <= rows and k * lpr <= 64
                self.srd(28, lo, size)
                a(f's_mul_i32 s38, s36, {hs}'); a(f's_mul_i32 s33, s32, {k * rs}'); a('s_add_u32 s38, s38, s33'); a(f's_add_u32 s38, s38, {(rows - 56 * k) * rs}')
                if mat == 'g': a('s_cmp_lt_u32 s36, 14'); a(f's_cselect_b32 s38, s38, 0x{OOB:x}')
                if lpr == 1: a('v_lshlrev_b32 v18, 7, v0')
                else:
                    a(f'v_lshrrev_b32 v18, {lpr // 2}, v0'); a(f'v_mul_u32_u24 v18, {rs}, v18'); a(f'v_and_b32 v19, {lpr - 1}, v0'); a('v_lshl_add_u32 v18, v19, 7, v18')
                L = k * lpr
                a(f's_mov_b32 exec_lo, 0x{(1 << min(L, 32)) - 1:x}'); a(f's_mov_b32 exec_hi, 0x{(1 << max(L - 32, 0)) - 1:x}')
                a(f'buffer_load_dword v17, v18, s[28:31], s38 offen')
                a('s_mov_b64 exec, -1')
    def zero_acc(self):
        return [f'v_mov_b64 {vr(self.vAcc + 2 * i, 2)}, 0' for i in range(8)]

    def stream(self):
        a = self.a
        self.vmq = []; self.lq = []; self.prologue = True; self.later = []
        a('s_mul_i32 s38, s38, 7'); a('s_add_u32 s37, s37, s38')
        if self.diag: a('s_mul_i32 s61, s36, 14'); a('s_add_u32 s61, s61, s37'); a('s_add_u32 s61, s61, 32'); self.diagbase()
        a('s_lshl_b32 s39, s37, 2'); a('s_add_u32 s39, s39, s3'); a('s_lshl_b32 s38, s39, 13')
        a('s_lshl_b32 s44, s36, 21')
        LB = self.rm[0] if self.rm else 12
        def place(g):
            lb, wb, rot = self.rm; sb = [b for b in range(12, 18) if b not in (lb, wb, wb + 1)]; d = f's{40 + g}'
            a(f's_add_u32 s38, s37, {14 * g}'); a(f's_lshr_b32 {d}, s38, 3'); a(f's_lshl_b32 {d}, {d}, 18'); a(f's_add_u32 {d}, {d}, s44')
            if rot: a(f's_mul_i32 s33, s36, {rot}'); a('s_add_u32 s38, s38, s33')
            if sb[2] == sb[0] + 2: a('s_and_b32 s38, s38, 7'); a(f's_lshl_b32 s38, s38, {sb[0]}'); a(f's_add_u32 {d}, {d}, s38')
            else:
                for i, b in enumerate(sb): a(f's_bfe_u32 s33, s38, 0x{0x10000 + i:x}'); a(f's_lshl_b32 s33, s33, {b}'); a(f's_add_u32 {d}, {d}, s33')
            a(f's_lshl_b32 s38, s3, {wb}'); a(f's_add_u32 {d}, {d}, s38')
        if self.rm: assert not self.hp; place(3)
        else: a('s_add_u32 s40, s44, s38'); a(f's_add_u32 s43, s40, {3 * NW * 8192}')
        self.bits(f'v{self.vK}', 'v0', 'v18', [(0, 1, 4), (4, 2, 5), (2, 1, 10), (1, 1, 11), (3, 1, LB)])
        if not self.cla: self.claim(22, 23, 24)
        else: a('s_waitcnt lgkmcnt(0)')
        self.wpf(-1)
        self.srd(8, 66, 0x8000000)
        if self.diag: a('s_memrealtime s[98:99]')
        for p in range(self.p0): self.load(0, p, wait=False)
        if self.tlb:
            a('s_lshl_b32 s38, s3, 25'); a('s_add_u32 s38, s38, s44')
            a('s_load_dword s96, s[66:67], s38'); a('s_load_dword s97, s[68:69], s38')
            if self.tlb > 1: a('s_add_u32 s38, s38, 0x1fff00'); a('s_load_dword s96, s[66:67], s38'); a('s_load_dword s97, s[68:69], s38')
        if self.cla: self.claim(22, 23, 24); assert self.CL >= 15
        self.wpf(7)
        if self.h16:
            assert self.ja and self.mz and not self.home and not self.wsw and self.h16 == 8 and not self.mp and self.ja[0] and not self.nocl
            a('s_lshl_b32 s47, s36, 15'); a('s_lshl_b32 s38, s37, 9'); a('s_add_u32 s47, s47, s38'); a(f's_add_u32 s47, s47, 0x{POFF:x}')
            a(f's_mul_i32 s48, s37, {self.h16 - 512}'); a('s_add_u32 s48, s48, 7168')
        else:
            a(f's_lshl_b32 s47, s36, 15'); a('s_lshl_b32 s38, s37, 10'); a('s_and_b32 s48, s38, 0x2000'); a('s_add_u32 s38, s38, s48')
            a('s_add_u32 s47, s47, s38'); a(f's_add_u32 s47, s47, 0x{POFF:x}')
            a('s_lshl_b32 s48, s37, 7'); a('s_sub_u32 s48, s48, s38'); a(f's_add_u32 s48, s48, {MLO}')
        a(f'v_lshlrev_b32 v{self.vL16}, 4, v0')
        if self.rm:
            for j in range(3): place(j)
        else:
            for j in range(1, 3): a(f's_add_u32 s{40+j}, s40, {j * NW * 8192}')
        self.srd(88, 66, 0); self.srd(92, 68, 0)
        if self.flex:
            a(f's_add_u32 s21, s44, {4 * NW * 8192}'); a('s_lshl_b32 s20, s36, 7'); a(f's_add_u32 s20, s20, 0x{HOFF:x}')
        else:
            if self.fx2:
                assert sum(n for n, r in self.fx2) == NW and sum(n * r for n, r in self.fx2) == 512 and self.PFA
                a(f's_add_u32 s21, s44, {4 * NW * 8192 + 0x2000000}'); a('s_lshl_b32 s20, s36, 7'); a(f's_add_u32 s20, s20, 0x{HOFF:x}')
            a('s_mul_i32 s38, s39, 9'); a('s_min_u32 s51, s37, 8'); a('s_add_u32 s38, s38, s51')
            a('s_cmp_lt_u32 s37, 8'); a('s_cselect_b32 s22, s3, 0'); a('s_cmp_eq_u32 s22, 3'); a('s_cselect_b32 s22, 10, 9'); a('s_mov_b32 s23, s22')
            a('s_lshl_b32 s38, s38, 9')
            a(f's_add_u32 s44, s44, {4 * NW * 8192}'); a('s_add_u32 s44, s44, s38')
            a('s_lshl_b32 s38, s22, 9'); a('s_add_u32 s90, s44, s38'); a('s_mov_b32 s94, s90')
        self.srd(12, 68, 0x8000000); self.srd(16, 86, 0x20000000)
        if self.wsw:
            a('s_lshl_b32 s38, s3, 20'); a('s_add_u32 s38, s38, s47'); a(f'buffer_load_dword v17, off, {WS}, s38 sc1')
        self.stamp(0); self.stamp(32, src='s34'); self.stamp(33, src='s98')
        if self.nocl: self.stamp(62, src='s100')
        self.bits(f'v{self.vV}', 'v0', 'v18', [(0, 3, 4), (5, 1, 9), (4, 1, 11), (3, 1, LB)])
        a(f's_mul_i32 s45, s3, {self.WLDS}'); a(f's_add_u32 s45, s45, {self.TB}')
        a(f'v_add_u32 v{self.vDs}, s45, v{self.vL16}')
        self.bits(f'v{self.vQo}', 'v0', 'v18', [(0, 2, 4), (4, 2, 6)])
        a('v_and_b32 v18, 2, v0'); a('v_cmp_eq_u32 vcc, 2, v18')
        a(f'v_mov_b32 v{self.vIQ}, 0x44444444'); a('v_mov_b32 v18, 0xeeeeeeee'); a(f'v_cndmask_b32 v{self.vIQ}, v{self.vIQ}, v18, vcc')
        a('v_and_b32 v18, 3, v0'); a('s_mov_b32 s38, 0x55555555'); a(f'v_mul_lo_u32 v{self.vIP}, v18, s38')
        a('v_and_b32 v18, 4, v0'); a('v_cmp_eq_u32 vcc, 4, v18')
        a('v_mov_b32 v18, 0xffff'); a('v_mov_b32 v19, 0xffff0000')
        M = self.vM
        a(f'v_cndmask_b32 v{M}, v18, 0, vcc'); a(f'v_cndmask_b32 v{M+1}, 0, v18, vcc')
        a(f'v_cndmask_b32 v{M+2}, v19, 0, vcc'); a(f'v_cndmask_b32 v{M+3}, 0, v19, vcc')
        self.bits(f'v{self.vBias}', 'v0', 'v19', [(4, 1, 0), (2, 1, 1), (1, 1, 2), (3, 1, 3), (5, 1, 4)])
        a('s_lshl_b32 s46, s3, 4'); a('s_add_u32 s46, s46, s36'); a('s_lshl_b32 s46, s46, 9')
        a('s_mov_b32 s49, 0'); a(f's_mov_b32 s51, 0x{f2u(CS):x}')
        if self.mz: a(f's_mov_b32 s50, 0x{f2u({1: 32.0, 2: 4.0, 3: -1.0}[self.mz]):x}')
        a(f's_mov_b32 s53, {self.Q1L}'); a('s_lshl_b32 s54, s3, 10'); a('s_lshl_b32 s55, s3, 3')
        a('s_lshl_b32 s56, s36, 9'); a(f's_add_u32 s56, s56, 0x{QOFF + 3 * 8192:x}')
        a('v_mov_b32 v18, 0'); a('v_mov_b32 v19, 0')
        a(f'ds_write_b64 v18, v[18:19] offset:{self.CO[0]}')
        a('s_lshl_b32 s57, s3, 8'); a(f's_add_u32 s57, s57, {self.ST}'); a('s_mov_b32 s58, 0'); a(f's_lshl_b32 s4, s5, {15 if self.nocl else 23}'); a('s_and_b32 s4, s4, 0x80000000')
        if self.lv:
            mid = self.lv.index(self.depth) if self.mid is None else self.mid
            a(f's_mov_b32 s59, {mid if not self.slow else self.slow[0]}')
            if self.slow and len(self.slow) > 3: a('s_cmp_ge_u32 s36, 8'); a(f's_cselect_b32 s59, {self.slow[3]}, s59')
            if self.cps:
                a('s_lshl2_add_u32 s24, s37, s3'); a('s_lshl_b32 s24, s24, 7'); a(f's_add_u32 s24, s24, 0x{COFF:x}')
                lo = (mid if not self.slow else self.slow[0]) - 1
                a(f's_mov_b32 s20, 0x{OOB:x}'); a(f's_mov_b32 s21, {-self.th[lo] if lo >= 0 else 100}'); a('s_mov_b32 s22, 0')
            if self.odd and not self.nocl:
                a('s_or_b32 s38, s6, s7'); a(f's_cselect_b32 s59, {mid}, s59')
                if self.cps: a(f's_cselect_b32 s21, {-self.th[-1]}, s21')
        assert not self.cps
        if self.hp:
            a('s_lshr_b32 s20, s36, 1'); a('s_lshl2_add_u32 s20, s20, s3'); a('s_lshl_b32 s20, s20, 8'); a(f's_add_u32 s20, s20, 0x{HOFF:x}')
            a('s_and_b32 s38, s36, 1'); a('s_mul_i32 s21, s38, 14'); a('s_add_u32 s21, s21, s37')
            a('s_lshl_b32 s24, s38, 21'); a('s_lshl_b32 s38, s37, 15'); a('s_add_u32 s24, s24, s38')
            a('s_lshl3_add_u32 s25, s21, s20'); a('s_mov_b32 s35, 0'); a('s_mul_i32 s21, s21, 27')
        if self.bst: a('s_mov_b32 s26, s59')
        LP = {tuple(k): v for k, v in self.p2l}
        N1 = sum(1 for v in LP.values() for x in v if x < 40); N0 = N1 + sum(len(v) for v in self.p1l.values())
        assert N0 <= 16
        for p in range(self.p0, N0):
            self.load(0, p, wait=self.pw[min(p - self.p0, len(self.pw) - 1)] if isinstance(self.pw, list) else self.pw)
            if p == self.CL: self.armS()
            self.wpf(p)
        self.prologue = False
        entry_vmq = [(0, i) for i in range(N0)]; self.vmq = list(entry_vmq)
        nQ = self.nQ
        for s in range(2):
            a.label(f'L_A{s}')
            assert [(x[0] ^ s, x[1]) for x in self.vmq] == entry_vmq, (self.vmq, entry_vmq)
            self.lq = []
            n = N0; self.dyn = bool(self.lv)
            while n < 73:
                if self.slow and not self.fb and (s, n) == tuple(self.slow[1:3]): a(f's_max_u32 s59, s59, {mid}')
                if self.bst and n == self.bst[1]: a('s_mov_b32 s59, s26')
                if s == 0 and n in self.fine:
                    a('s_mul_i32 s99, s49, 5'); self.stamp(44 + self.fine.index(n), 's99', 18)
                for i, (c0, c1) in enumerate(self.cps):
                    r = 16 + i % 2
                    if n == c1:
                        self.need_vm(('cp', i))
                        a(f'v_readfirstlane_b32 s38, v{r}'); a(f's_sub_u32 s38, s38, s{25 + i % 2}'); a('s_mov_b32 s59, 0')
                        for t in self.th: a(f's_cmp_ge_i32 s38, {t}'); a('s_addc_u32 s59, s59, 0')
                for i, (c0, c1) in enumerate(self.cps):
                    r = 16 + i % 2
                    if n == c0:
                        assert not (c0 <= nQ + 3 and c1 > nQ) and c1 < 73
                        a(f'v_mov_b32 v{r}, 1'); a(f's_mov_b32 s{25 + i % 2}, s21'); a('s_add_u32 s21, s21, s22')
                        a('s_mov_b64 exec, 1'); a(f'buffer_atomic_add v{r}, off, {WS}, s20 sc0 sc1'); a('s_mov_b64 exec, -1')
                        self.vmq.append(('cp', i))
                if 'B' in self.wb and (s, n) == (1, 20): self.dirty()
                if self.eq and n == self.eq[1]:
                    assert self.eq[0] >= nQ + 4 and n <= self.PFA and not self.fx2 and not self.flex and not self.xpf and not self.vpf
                    self.need_vm(('cp', 'e1')); a('s_mov_b32 s58, 0')
                    self.maxtree(range(self.vQ, self.vQ + 8), 18)
                    if s == 0: a('s_cmp_eq_u32 s49, 0'); a('s_cbranch_scc1 L_En')
                    a(f's_cbranch_vccz L_E{s}')
                    if s == 0: a.label('L_En')
                    main = list(self.vmq); am = self.a; self.a = a2 = Asm(); dyn = self.dyn; self.dyn = False
                    a2.label(f'L_E{s}'); a2('s_mov_b32 s58, 1')
                    for m in range(n, 73):
                        if self.hp and m in dict(self.hp[0]): self.publish(dict(self.hp[0])[m])
                        self.load(s, m, wait=self.eq[2] or False)
                    a2(f's_mov_b32 s59, {self.eq[3]}')
                    self.stamp(1, 's49')
                    if self.diag: a2('s_add_u32 s7, s7, 1')
                    a2(f's_branch L_Xok{s}')
                    fastq = list(self.vmq); self.vmq = main; self.a = am; self.dyn = dyn
                    self.later.append(lambda a2=a2: a.L.extend(a2.L))
                if self.hp and n in dict(self.hp[0]): self.publish(dict(self.hp[0])[n])
                for n0, n1, el, R in (self.hp[5] if self.hp else []):
                    assert n1 < nQ or (n0 >= nQ + 4 and n1 <= self.PFA)
                    if n == n0: self.board()
                    if n == n1:
                        self.need_vm(('cp', 'bd'))
                        a(f's_movk_i32 s34, {el}'); a(f's_movk_i32 s32, {R}'); a('s_call_b64 s[96:97], L_help')
                if self.flex and n == self.KF:
                    self.need_vm(('cp', 0))
                    R = f's{22 + s}'
                    a('v_readfirstlane_b32 s38, v16'); a('s_add_u32 s38, s38, 1')
                    a(f's_mov_b32 {R}, {self.flex[0][1]}'); a(f's_mul_i32 s44, s38, {R}')
                    b = 0
                    for (n0, r0), (n1, r1) in zip(self.flex, self.flex[1:]):
                        b += n0
                        a(f's_sub_i32 s39, s38, {b}'); a('s_max_i32 s33, s39, 0'); a(f's_mul_i32 s33, s33, {r0 - r1}'); a('s_sub_u32 s44, s44, s33')
                        a('s_cmp_ge_i32 s39, 0'); a(f's_cselect_b32 {R}, {r1}, {R}')
                    a('s_lshl_b32 s44, s44, 9'); a('s_add_u32 s44, s44, s21'); a('s_add_u32 s21, s21, 0x2000000')
                    a(f's_lshl_b32 s90, {R}, 9'); a('s_add_u32 s90, s90, s44'); a('s_min_u32 s90, s90, s10'); a('s_mov_b32 s94, s90')
                    self.stamp(40, 's49', 18, 's38')
                if n == nQ:
                    self.need_vm((s, self.KF + 7 if self.flex else 39))
                    if s == 0:
                        a('s_cmp_eq_u32 s49, 0'); a('s_cbranch_scc1 L_st0'); st_in = list(self.vmq)
                    self.qk1(s, {('u', 1): [(s, n)], ('u', 6): [(s, n + 1)], ('x', 0): [(s, n + 2)], ('e', 0): [(s, n + 3)]}, True)
                    n += 4
                    if s == 0: a.label('L_st0r'); st_out = list(self.vmq)
                    for z in self.zero_acc(): a(z)
                    continue
                self.load(s, n)
                if s == 0 and (n == self.CL or any(x[0] == n for x in self.spf)):
                    l = self.lab('L_it0')
                    a('s_cmp_lg_u32 s49, 0'); a(f's_cbranch_scc1 {l}')
                    if n == self.CL: self.armS()
                    self.wpf(n)
                    a.label(l)
                CK = self.TK if self.flex else (self.PFA or self.PF)
                if s == 0 and n == CK - 8:
                    assert n >= nQ + 4 or (CK < nQ and n > self.CL)
                    l = self.lab('L_it0'); a('s_cmp_lg_u32 s49, 0'); a(f's_cbranch_scc1 {l}')
                    a('v_mov_b32 v22, 0'); a(f'global_load_dword v23, v22, {DBG} offset:{self.CNTA} sc1'); a.label(l)
                if s == 0 and n == CK:
                    self.stamp(22, 's49')
                    l = self.lab('L_it0'); a('s_cmp_lg_u32 s49, 0'); a(f's_cbranch_scc1 {l}')
                    a('s_waitcnt vmcnt(8)'); self.wait_counter(22, 23, 21, self.CNTA, NCHAIN, pre=True)
                    a('v_readfirstlane_b32 s27, v23'); a('s_add_u32 s27, s27, s5')
                    if self.la:
                        assert self.PFA and self.PFA < self.PF
                        x = self.lab('L_la'); a(f's_cmp_eq_u32 s27, {NCHAIN + 1}'); a(f's_cbranch_scc0 {x}')
                        self.armP(self.la)
                        def far(x=x, l=l): a.label(x); self.armP('sc1'); a(f's_branch {l}')
                        self.later.append(far)
                    a.label(l)
                if (self.flex and n == self.TK) or (self.fx2 and n == self.PFA):
                    a('v_mov_b32 v16, 1')
                    a('s_mov_b64 exec, 1'); a(f'buffer_atomic_add v16, off, {WS}, s20 sc0 sc1'); a('s_mov_b64 exec, -1')
                    a('s_add_u32 s20, s20, 2048')
                    self.vmq.append(('cp', 0))
                if self.vpf and n == self.vpf[0]:
                    a(f'v_lshlrev_b32 v19, 3, v{self.vL16}'); a(f's_mov_b32 m0, {self.TB + 4 * self.WLDS}')
                    a(f'buffer_load_dword v19, {V4}, s44 offen {self.xpol} lds'); self.vmq.append(('cp', 'x'))
                for n0, g in (self.vpf or [0])[1:]:
                    if n == n0:
                        a(f'v_lshlrev_b32 v19, 3, v{self.vL16}'); a(f's_mov_b32 m0, {self.TB + 4 * self.WLDS}'); a(f's_add_u32 s38, s{40 + g}, 0x2000000')
                        if g == 4: a('s_mov_b32 exec_hi, 0xff')
                        a(f'buffer_load_dword v19, {K_SRD}, s38 offen {self.xpol} lds'); self.vmq.append(('cp', 'x'))
                        if g == 4: a('s_mov_b32 exec_hi, -1')
                if self.eq and n == self.eq[0]: self.qload(); self.vmq += [('cp', 'e0'), ('cp', 'e1')]
                if n == self.PFA and self.hp: self.board()
                if n == self.PFA:
                    assert n >= nQ + 4 and n < self.PF
                    self.qload(); self.vmq += [('cp', 'qa'), ('cp', 'qb')]
                if n == self.PF:
                    assert n >= nQ + 4
                    self.qload(); self.vmq += [('cp', 'q0'), ('cp', 'q1')]
                n += 1
            self.dyn = False
            if self.fb: a(f's_mov_b32 s59, {self.fb[1]}')
            if self.PFA:
                self.need_vm(('cp', 'qb')); keep = list(self.vmq)
                if self.fx2: a('v_readfirstlane_b32 s35, v16')
                self.stamp(1, 's49')
                self.maxtree(range(self.vQ, self.vQ + 8), 18)
                a(f's_cbranch_vccz L_Xok{s}')
                if self.nox: a('s_cmp_lg_u32 s49, 0'); a(f's_cbranch_scc1 L_Xok{s}')
                if self.fb and len(self.fb) > 2: a(f's_mov_b32 s59, {self.fb[2]}')
            def ahead(what):
                for g in what:
                    if g == 'v': a(f'buffer_load_dword v19, {V4}, s44 offen {self.xpol} lds')
                    else:
                        a(f's_add_u32 s38, s{40 + g}, 0x2000000')
                        if g == 4: a('s_mov_b32 exec_hi, 0xff')
                        a(f'buffer_load_dword v19, {K_SRD}, s38 offen {self.xpol} lds')
                        if g == 4: a('s_mov_b32 exec_hi, -1')
                    self.vmq.append(('cp', 'x'))
            if self.xpf:
                assert self.PFA and not self.flex
                a(f'v_lshlrev_b32 v19, 3, v{self.vL16}'); a(f's_mov_b32 m0, {self.TB + 4 * self.WLDS}')
                ahead(self.xpf[0])
            if self.hp:
                if self.hl and s == 1: a('s_cmp_eq_u32 s49, 3'); a(f's_cselect_b32 s34, {self.hl[0]}, {self.hp[1]}')
                else: a(f's_movk_i32 s34, {self.hp[1]}')
                a('s_movk_i32 s32, 0'); a(f's_call_b64 s[96:97], L_help')
            self.need_vm(('cp', 'q1'))
            for x in (self.xpf or [])[1:]:
                self.maxtree(range(self.vQ, self.vQ + 8), 18)
                a(f's_cbranch_vccz L_Xok{s}')
                self.qload(); ahead(x); a(f's_waitcnt vmcnt({len(x)})')
            if self.PFA: self.vmq = keep
            else: self.stamp(1, 's49')
            a.label(f'L_X{s}')
            self.maxtree(range(self.vQ, self.vQ + 8), 18)
            a(f's_cbranch_vccz L_Xok{s}')
            a.label(f'L_Xpoll{s}')
            if self.fb and len(self.fb) > 3: a('s_sub_i32 s59, s59, 1'); a(f's_max_i32 s59, s59, {self.fb[0]}')
            elif self.fb: a(f's_mov_b32 s59, {self.fb[0]}')
            self.timeout()
            if self.hp and self.hp[4]:
                a(f'v_lshrrev_b32 v19, 1, v{self.vL16}')
                a(f'buffer_load_dword v16, v19, {WS}, s20 offen sc1')
            self.qload()
            a('s_waitcnt vmcnt(0)')
            if self.hp and self.hp[4]:
                self.maxtree(range(self.vQ, self.vQ + 8), 18)
                a(f's_cbranch_vccz L_Xok{s}')
                a('s_movk_i32 s32, 0'); a(f's_call_b64 s[96:97], L_help'); a(f's_branch L_Xpoll{s}')
            else: a(f's_branch L_X{s}')
            a.label(f'L_Xok{s}')
            if self.eq:
                t = [x for x in self.vmq if x not in (('cp', 'q0'), ('cp', 'q1'))]
                assert fastq[-len(t):] == t, (fastq, t)
                self.vmq = list(fastq)
            self.stamp(6, 's49')
            if self.hp and 73 in dict(self.hp[0]): self.publish(dict(self.hp[0])[73])
            if s == 0: a('s_cmp_eq_u32 s49, 0'); a('s_cbranch_scc1 L_first')
            save = list(self.vmq)
            if s == 1 and self.lst: a('s_cmp_eq_u32 s49, 3'); a('s_cbranch_scc1 L_last'); last_save = save
            self.pass2(s, LP)
            if self.diag: a('s_memrealtime s[28:29]')
            if s == 0:
                if not self.fin: a('s_cmp_eq_u32 s49, 4'); a('s_cbranch_scc1 L_fin')
                after = list(self.vmq)
            a.label(f'L_PV{s}')
            self.pv1f(s)
            if self.diag: self.stamp(11, 's49', src='s28')
            a('s_add_u32 s49, s49, 1'); self.nextP(); a('s_add_u32 s53, s53, 512')
            a('s_add_u32 s56, s56, 8192'); a('s_mov_b32 s46, s56')
            if self.hp: a('s_add_u32 s35, s35, 10')
            if self.odd and (self.odd & 1) != s and not self.fb:
                a(f's_cmp_eq_u32 s49, {self.odd}'); a(f's_cselect_b32 s59, {mid}, s59')
            if self.cps and (self.cpon & 1) != s:
                a(f's_cmp_eq_u32 s49, {self.cpon}'); a('s_cselect_b32 s20, s24, s20'); a(f's_cselect_b32 s22, 16, s22'); a('s_cselect_b32 s21, -1, s21')
                a(f's_cselect_b32 s59, {mid}, s59')
            if s == 0: first_save, first_after = save, after
        if self.lst:
            assert self.fin
            a('s_branch L_A0'); self.vmq = list(last_save); self.last()
        else: a('s_cmp_lg_u32 s49, 4'); a('s_cbranch_scc1 L_A0')
        if self.fin: self.final()
        else:
            a('s_mov_b32 s94, 0')
            for z in self.zero_acc(): a(z)
            a('s_branch L_Xpoll0')
        a.label('L_first')
        self.vmq = first_save; self.lq = []
        a('s_lshl_b32 s38, s3, 9'); a(f'v_add_u32 v18, s38, v{self.vQo}')
        a(f'ds_write_b128 v18, {vr(self.vQ, 4)} offset:{self.Q1L}')
        a(f'ds_write_b128 v18, {vr(self.vQ + 4, 4)} offset:{self.Q1L + 256}')
        for n in range(73, 80): self.load(0, n, wait=False)
        self.share()
        self.need_vm(('cp', 'q1'))
        a('s_waitcnt lgkmcnt(0)'); a('s_barrier')
        pts = [('u', 1), ('u', 4), ('u', 7), ('x', 0), ('e', 0)]; FL = {}
        for i in range(N1): FL.setdefault(pts[i * len(pts) // N1], []).append((1, i))
        self.qk1(0, FL, False)
        assert self.vmq == first_after, (self.vmq, first_after)
        a('s_branch L_PV0')
        a.label('L_fin'); self.stamp(11, 's49'); self.stamp(40, src='s7')
        if 'b' in self.wb: self.dirty()
        if '1' in self.wb:
            a('s_and_b32 s38, s36, 1'); a('s_or_b32 s38, s38, s37'); a('s_or_b32 s38, s38, s3'); a('s_cbranch_scc1 L_end')
            a('buffer_wbl2 sc1')
        a('s_branch L_end')
        a.label('L_st0')
        self.vmq = st_in; self.dyn = bool(self.lv)
        for n in range(nQ, nQ + 4): self.load(0, n)
        self.dyn = False
        assert self.vmq == st_out, (self.vmq, st_out)
        a('s_branch L_st0r')
        for f in self.later: f()
        if self.hp: self.help()
    CKR = [64, 66, 68, 70, 72, 74, 76, 78, 80, 82]
    def clk(self):
        if self.cyc and self.ck: self.a(f's_memtime s[{self.CKR[self.ck - 1]}:{self.CKR[self.ck - 1] + 1}]'); self.ck += 1
    def dirty(self):
        a = self.a
        a('s_mul_i32 s38, s36, 14'); a('s_add_u32 s38, s38, s37'); a('s_lshl2_add_u32 s38, s38, s3'); a('s_lshl_b32 s38, s38, 12'); a('s_add_u32 s38, s38, 0x2000000')
        for i in range(4): a(f'buffer_store_dwordx4 v[8:11], v{self.vL16}, {WS}, s38 offen offset:{i * 1024}')
    def publish(self, v):
        a = self.a
        a(f's_add_u32 s38, s35, {v}'); a('v_mov_b32 v18, s38')
        a('s_mov_b64 exec, 1'); a(f'buffer_store_dword v18, off, {WS}, s25' + self.N('b')); a('s_mov_b64 exec, -1')
        self.vmq.append(('cp', 'pg'))
    def board(self):
        self.a(f'v_lshrrev_b32 v19, 1, v{self.vL16}')
        self.a(f'buffer_load_dword v16, v19, {WS}, s20 offen sc1'); self.vmq.append(('cp', 'bd'))
    def help(self):
        a = self.a; lo, hi = self.hp[2:4]
        a.label('L_help')
        a('v_subrev_u32 v16, s35, v16')
        a('v_cmp_ge_i32 vcc, s34, v16')
        a('s_and_b32 s33, vcc_lo, 0xfffffff'); a('s_cbranch_scc0 L_help9')
        a('s_bcnt1_i32_b32 s38, s33'); a('s_max_u32 s38, s38, s32'); a('s_bfe_u32 s32, s21, 0x50001'); a('s_mul_i32 s38, s38, s32'); a('s_lshr_b32 s38, s38, 5')
        a('v_mbcnt_lo_u32_b32 v17, s33, 0'); a('v_cmp_eq_u32 vcc, s38, v17')
        a('s_add_u32 s21, s21, 23')
        a('s_and_b32 s38, vcc_lo, s33'); a('s_cbranch_scc0 L_help9')
        a('s_ff1_i32_b32 s32, s38'); a('s_and_b32 s38, s21, 1'); a(f's_mov_b32 m0, {self.TB + 4 * self.WLDS}')
        a('v_readlane_b32 s33, v16, s32');
        if self.hl:
            assert not self.hp[5]
            a('s_cmp_eq_u32 s49, 3'); a(f's_cselect_b32 s39, {self.hl[0] - self.hl[1]}, {self.hp[1] - lo}'); a(f's_cselect_b32 s30, {self.hl[2]}, {hi}')
            a('s_max_i32 s33, s33, s39'); a('s_add_i32 s33, s33, s38'); a('s_add_i32 s33, s33, 2'); a('s_min_i32 s33, s33, s30')
        else: a(f's_sub_i32 s39, s34, {lo}'); a('s_max_i32 s33, s33, s39'); a('s_add_i32 s33, s33, s38'); a('s_add_i32 s33, s33, 2'); a(f's_min_i32 s33, s33, {hi}')
        a('s_cmp_ge_u32 s32, 14'); a('s_cselect_b32 s38, 14, 0'); a('s_cselect_b32 s39, 0x200000, 0'); a('s_sub_u32 s32, s32, s38')
        a('s_sub_u32 s39, s39, s24'); a('s_add_u32 s39, s39, s40')
        a('s_cmp_lt_i32 s33, 0'); a('s_cselect_b32 s38, 10, 0'); a('s_cselect_b32 s30, 0x2000000, 0'); a('s_add_i32 s33, s33, s38'); a('s_sub_u32 s39, s39, s30')
        a('s_cmp_ge_i32 s33, 10'); a('s_cselect_b32 s38, 10, 0'); a('s_cselect_b32 s30, 0x2000000, 0'); a('s_sub_i32 s33, s33, s38'); a('s_add_u32 s39, s39, s30')
        a('s_cmp_ge_u32 s33, 5'); a('s_cselect_b64 s[28:29], s[12:13], s[8:9]'); a('s_cselect_b32 s38, 0, 3'); a('s_add_u32 s33, s33, s38')
        a('s_mov_b32 s30, 0x8000000'); a('s_mov_b32 s31, 0x20000')
        a('s_cmp_ge_u32 s33, 5'); a('s_cselect_b32 s38, 5, 0'); a('s_sub_u32 s33, s33, s38')
        a(f's_mul_i32 s38, s33, {NW * 8192}'); a('s_add_u32 s39, s39, s38')
        a(f'v_lshlrev_b32 v19, 3, v{self.vL16}')
        a('s_lshl_b32 s38, s32, 6')
        a('s_cmp_lg_u32 s33, 4'); a('s_cbranch_scc1 L_help2')
        a('s_mul_i32 s38, s32, 36'); a('s_min_u32 s32, s32, 8'); a('s_add_u32 s38, s38, s32'); a('s_mul_i32 s32, s3, 7'); a('s_sub_u32 s38, s38, s32')
        a('s_mov_b32 exec_hi, 0xff')
        a.label('L_help2')
        a('s_lshl_b32 s38, s38, 9'); a('s_add_u32 s39, s39, s38')
        a(f'buffer_load_dword v19, s[28:31], s39 offen {self.xpol} lds')
        a('s_mov_b32 exec_hi, -1')
        if self.diag: a('s_add_u32 s7, s7, 0x100')
        a.label('L_help9')
        a('s_setpc_b64 s[96:97]')
    def last(self):
        a = self.a; Q = self.vQ; AC = self.vAcc
        a.label('L_last'); self.lq = []
        for x in self.staddr(): a(x)
        self.ds('ds_read_b96 v[20:22], v18', 'p')
        sets = [(0, 0), (0, 1), (1, 0), (1, 1), (2, 0)]
        prep = lambda i: self.aprep(*sets[i], Q + 4 * (i % 2))
        def hook(p):
            if p == ('u', 0):
                for n in (73, 74, 75): self.load(1, n, False, self.kreg(0, 0) + 4 * (n - 72))
            if p == ('u', 1):
                for n in (76, 77, 78, 79): self.load(1, n, False)
            if p[0] == 'u' and 2 <= p[1] < 6:
                for n in (52 + 2 * p[1], 53 + 2 * p[1]): self.need_vm((1, n)); self.copy(1, 0, 2, n)
            if p == ('p', 7):
                self.need_vm(('cp', 'q1')); self.need_lds('p')
                for x in prep(0)[:2]: a(x)
            if p == ('p', 8):
                for x in prep(0)[2:]: a(x)
        self.qk_part(0, hook, part=1, tb=16)
        for i, (k, P) in enumerate(sets):
            fill = self.epi_pre() if i == 4 else prep(i + 1)
            if i == 4:
                for x in fill: a(x)
                fill = []
            for t in range(4):
                b, tags = self.bop(1, 0, 2, k, P, t)
                if i < 2: self.need_vm((1, 64 + 4 * i + t)); self.copy(1, 0, 2, 64 + 4 * i + t)
                if (i, t) == (2, 0): self.need_vm((1, 72)); self.copy(1, 0, 2, 72)
                if i == 4: self.need_vm((1, 73 + 2 * t))
                for tg in tags: self.need_lds(tg)
                a(f'v_smfmac_f32_16x16x64_bf16 {vr(AC + 4 * t, 4)}, {vr(Q + 4 * (i % 2), 4)}, {rr(b, 8)}, v{self.vIP}')
                n = (len(fill) + (3 - t)) // (4 - t)
                got = fill[:n]; fill = fill[n:]
                for x in got: a(x)
                if (i, t) == (4, 2) and self.lst > 1:
                    for x in self.merge(0): a(x)
        for x in (self.merge(0) if self.lst == 1 else []) + self.merge(2): a(x)
        self.epilogue(0, 1)
        self.stamp(16, 's49')
        for n in range(72, 76): self.ds(f'ds_read_b128 {ar(4 * (n - 72), 4)}, v{self.vDs} offset:{self.ldsslot(0, n) * 1024}', ('c', n))
        for j in range(8): self.copy(0, 0, 0, 56 + j); self.copy(0, 0, 0, 64 + j)
        self.qk_part(0, lambda p: None, part=2)
        sets = [(0, 0), (0, 1), (2, 0), (1, 0), (1, 1)]
        lred = self.lred()
        def prep(i):
            k, P = sets[i]
            return (self.pack(k) if P == 0 else []) + self.aprep(k, P, Q + 4 * (i % 2))
        for x in prep(0): a(x)
        for i, (k, P) in enumerate(sets):
            fill = prep(i + 1) if i + 1 < len(sets) else []
            if i == len(sets) - 1:
                fill = lred + self.epi_pre(); lred = []
            for t in range(4):
                b, tags = self.bop(0, 0, 0, k, P, t)
                if k == 2 and t < 2: b = 256 + 8 * t
                for tg in tags: self.need_lds(tg)
                a(f'v_smfmac_f32_16x16x64_bf16 {vr(AC + 4 * t, 4)}, {vr(Q + 4 * (i % 2), 4)}, {rr(b, 8)}, v{self.vIP}')
                n = (len(fill) + (3 - t)) // (4 - t)
                got = fill[:n]; fill = fill[n:]
                if len(got) < 2 and lred: got.append(lred.pop(0))
                for x in got: a(x)
        for x in self.merge(0) + self.merge(2): a(x)
        self.epilogue(1, 1)
        self.stamp(11, 's49')
        a('s_add_u32 s49, s49, 1'); self.nextP(); a('s_add_u32 s46, s56, 8192')
        a('s_barrier')
    def final(self):
        a = self.a; Q = self.vQ; AC = self.vAcc; T = self.vT; m = self.vMC; L = self.vL
        self.lq = []; self.vmq = []
        def fb(k, P, t): return 256 + 64 + 8 * (4 * P + t) if k == 1 else self.bop(1, 0, 2, k, P, t)[0]
        for n in range(56, 72):
            a(f'ds_read_b128 {rr(256 + 64 + 8 * ((n - 56) % 8) + 4 * ((n - 56) // 8), 4)}, v{self.vDs} offset:{self.ldsslot(1, n) * 1024}')
        KA = 96; A = [136, 140, 144]; PT = 148
        for z in self.zero_acc(): a(z)
        if self.fin > 1:
            for r in range(0, 40, 2): a(f'v_mov_b64 {vr(KA + r, 2)}, 0')
            a(f'v_cmp_gt_u32 s[40:41], s23, v{self.vBias}'); a(f's_mov_b32 s42, 0x{f2u(2.0 ** 40 if self.fin == 2 else 0.0):x}')
            a('v_mov_b32 v23, 0xff800000'); a(f'v_mov_b32 v{m}, 0')
            if self.mz: a(f's_mov_b32 s43, 0x{f2u(2.0 ** -40):x}'); a(f's_mov_b32 s42, 0x{(80 << 23) if self.fin == 2 else (46 << 23) + (1 << 22) if self.fin == 4 else 0:x}')
        a.label('L_Fpoll')
        self.timeout()
        self.qload()
        a('s_waitcnt vmcnt(0) lgkmcnt(0)')
        self.maxtree(range(Q, Q + 8), 18)
        a('s_cbranch_vccnz L_Fpoll')
        self.stamp(6, 's49')
        self.ck = 1; self.clk()
        def pv(A_, k, P, t): return f'v_smfmac_f32_16x16x64_bf16 {vr(AC + 4 * t, 4)}, {vr(A_, 4)}, {rr(fb(k, P, t), 8)}, v{self.vIP}'
        if self.fin > 1:
            M = []
            for u in range(10):
                for h in range(2): M.append(f'v_smfmac_f32_16x16x64_bf16 {vr(KA + 4 * u, 4)}, {vr(Q + 4 * h, 4)}, {rr(self.kreg(1, u) + 8 * h, 8)}, v{self.vIQ}')
            M += [pv(A[0], 0, 0, t) for t in range(4)] + [pv(A[1], 0, 1, t) for t in range(4)] + [pv(A[0], 1, 0, t) for t in range(4)]
            for t in range(4): M += [pv(A[1], 1, 1, t), pv(A[2], 2, 0, t)]
            G = [[] for _ in M]
            def put(g, ops, per=1):
                for i, x in enumerate(ops): G[g + i // per].append(x)
            for u in range(10):
                ac = KA + 4 * u; t = PT + 2 * (u % 2)
                put(2 * u + 4, [f'v_add_f32 v{t+1}, v{ac+1}, v{ac+3}', f'v_add_f32 v{t}, v{ac}, v{ac+2}'], 2)
                put(2 * u + 5, [f'v_add_f32_dpp v{T + u // 4}, v{t+1}, v{t} quad_perm:[1,1,3,3] row_mask:0x{1 << (u % 4):x} bank_mask:0xf'])
            if not self.mz: put(5, [f'v_add_f32_dpp v{m}, v{PT+1}, v{PT} quad_perm:[1,1,3,3] {FULL}',
                    f'v_max_f32_dpp v{m}, v{m}, v{m} quad_perm:[2,3,0,1] {FULL}', f'v_max_f32_dpp v{m}, v{m}, v{m} row_ror:4 {FULL}',
                    f'v_max_f32_dpp v{m}, v{m}, v{m} row_ror:8 {FULL}', f'v_mul_f32 v{m}, s51, v{m}'])
            ex = lambda k: [f'v_fma_f32 v{T+k}, v{T+k}, s51, -v{m}', f'v_exp_f32 v{T+k}, v{T+k}']
            put(11, ex(0)); put(13, self.pack(0)[:2], 2); put(14, self.pack(0)[2:]); put(15, self.aprep(0, 0, A[0]), 2)
            put(17, self.aprep(0, 1, A[1])[:2], 2); put(18, self.aprep(0, 1, A[1])[2:])
            put(19, ex(1)); put(21, self.pack(1)[:2], 2); put(22, self.pack(1)[2:])
            put(23, [f'v_cndmask_b32 v{T+2}, v23, v{T+2}, s[40:41]'] + ex(2)[:1], 2); put(24, ex(2)[1:])
            put(24, self.aprep(1, 0, A[0]), 2); put(25, self.pack(2)[:1]); put(26, self.pack(2)[1:3], 2); put(27, self.pack(2)[3:4]); put(28, self.pack(2)[4:])
            put(28, self.aprep(1, 1, A[1]), 2); put(30, self.aprep(2, 0, A[2]), 2)
            lr = self.lred()
            put(26, lr[:2]); put(29, lr[2:5]); put(32, lr[5:6]); put(33, lr[6:9], 3); put(34, lr[9:], 2)
            put(32, self.epi_pre()[:2], 2); put(35, [f'v_subrev_u32 v23, s43, v{L}', 'v_cmp_lt_u32 vcc, s42, v23'] if self.mz else [f'v_cmp_lt_f32 vcc, s42, v{L}'], 2); put(35, self.epi_pre()[2:4], 2)
            put(36, ['s_bitcmp1_b32 vcc_lo, 0', 's_cbranch_scc1 L_Fslow'] + self.epi_pre()[4:], 3)
            put(37, self.merge(0), 3)
            for x, g in zip(M, G):
                a(x)
                for y in g: a(y)
            for x in self.merge(2): a(x)
            a.label('L_Fepi')
            self.clk()
            self.epilogue(1, 0, self.vH)
            self.clk()
            if self.cyc:
                for i in range(self.ck - 1): self.stamp(44 + i, src=f's{self.CKR[i]}')
            self.ck = 0
            a('s_branch L_fin')
            a.label('L_Fslow'); a('s_nop 8')
            for z in self.zero_acc(): a(z)
        self.qk_part(1, lambda p: None)
        sets = [(0, 0), (2, 0), (0, 1), (1, 0), (1, 1)]
        lred = self.lred()
        def prep(i):
            k, P = sets[i]
            return (self.pack(k) if P == 0 else []) + self.aprep(k, P, Q + 4 * (i % 2))
        for x in prep(0): a(x)
        for i, (k, P) in enumerate(sets):
            fill = prep(i + 1) if i + 1 < len(sets) else []
            if i == len(sets) - 1:
                fill = lred + self.epi_pre(); lred = []
            for t in range(4):
                a(pv(Q + 4 * (i % 2), k, P, t))
                n = (len(fill) + (3 - t)) // (4 - t)
                got = fill[:n]; fill = fill[n:]
                if len(got) < 2 and lred: got.append(lred.pop(0))
                for x in got: a(x)
        for x in self.merge(0) + self.merge(2): a(x)
        if self.fin > 1: a('s_branch L_Fepi')
        else:
            self.clk()
            self.epilogue(1, 0, self.vH)
            self.clk()
            if self.cyc:
                for i in range(self.ck - 1): self.stamp(44 + i, src=f's{self.CKR[i]}')
            self.ck = 0
            a('s_branch L_fin')
    def share(self):
        a = self.a; F = self.fx2
        if not F: return
        a('s_add_u32 s35, s35, 1'); a(f's_mov_b32 s25, {F[0][1]}'); a('s_mul_i32 s24, s35, s25')
        b = 0
        for (n0, r0), (n1, r1) in zip(F, F[1:]):
            b += n0
            a(f's_sub_i32 s39, s35, {b}'); a('s_max_i32 s33, s39, 0'); a(f's_mul_i32 s33, s33, {r0 - r1}'); a('s_sub_u32 s24, s24, s33')
            a('s_cmp_ge_i32 s39, 0'); a(f's_cselect_b32 s25, {r1}, s25')
        a('s_lshl_b32 s24, s24, 9'); a('s_add_u32 s24, s24, s21'); a('s_add_u32 s21, s21, 0x2000000')
    def armS(self):
        a = self.a
        if not self.nocl: a('s_waitcnt vmcnt(8)')
        self.confirm(24, 20)
        if not self.oarm and 'N' not in self.wb and not self.la and not self.ja: self.armP('sc1' + self.N('a'))
        self.stamp(30, None, 24)
    def nextP(self):
        if not (self.ja and self.ja[0]): self.a(f's_add_u32 s47, s47, {PIB}')
    def armP(self, pol):
        a = self.a
        a('v_lshl_add_u32 v18, v0, 19, s48'); a('v_mov_b64 v[20:21], -1'); a('v_mov_b64 v[22:23], -1')
        a('s_lshl_b32 s38, s3, 20'); a('s_add_u32 s38, s38, s47'); a(f's_add_u32 s39, s38, {PP2}')
        a(f'buffer_store_dwordx4 v[20:23], v{self.vL16}, {WS}, s39 offen {pol}')
        a('s_mov_b64 exec, 3')
        a(f'buffer_store_dwordx2 v[20:21], v18, {WS}, s38 offen ' + (pol if self.N('M') else 'sc1' + self.N('a')))
        a('s_cmp_lg_u32 s3, 0'); a('s_cselect_b64 exec, -1, 0')
        a(f'buffer_store_dwordx4 v[20:23], v{self.vL16}, {WS}, s38 offen {pol}')
        a('s_mov_b64 exec, -1')
    def qk_part(self, ds_, hook, zero=True, part=3, tb=18):
        a = self.a; T = self.vT; Q = self.vQ; AC = self.vAcc
        def post_a(u):
            ac = AC + 4 * (u % 4); t = tb + 2 * (u % 2)
            a(f'v_add_f32 v{t+1}, v{ac+1}, v{ac+3}'); a(f'v_add_f32 v{t}, v{ac}, v{ac+2}')
        def post_b(u):
            t = tb + 2 * (u % 2)
            a(f'v_add_f32_dpp v{T + u // 4}, v{t+1}, v{t} quad_perm:[1,1,3,3] row_mask:0x{1 << (u % 4):x} bank_mask:0xf')
        for u in range(10 if part & 1 else 0):
            ac = AC + 4 * (u % 4); k = self.kreg(ds_, u)
            a(f'v_smfmac_f32_16x16x64_bf16 {vr(ac, 4)}, {vr(Q, 4)}, {rr(k, 8)}, v{self.vIQ}')
            if u >= 3: post_a(u - 3)
            a(f'v_smfmac_f32_16x16x64_bf16 {vr(ac, 4)}, {vr(Q + 4, 4)}, {rr(k + 8, 8)}, v{self.vIQ}')
            if u >= 3: post_b(u - 3)
            hook(('u', u))
        zf = [f'v_mov_b32 v{AC + r}, 0' for r in list(range(8, 16)) + list(range(8))] if zero else []
        def Z(n=2):
            for _ in range(n):
                if zf: a(zf.pop(0))
        if part == 1:
            z2 = [f'v_mov_b64 {vr(AC + r, 2)}, 0' for r in (8, 10, 12, 14, 0, 2, 4, 6)]
            post_a(7); a(z2[0]); a(z2[1]); post_b(7); hook(('p', 7)); post_a(8); a(z2[2]); a(z2[3]); post_b(8); hook(('p', 8)); post_a(9); a(z2[4]); a(z2[5]); post_b(9); a(z2[6]); a(z2[7])
            return
        a(f'v_cmp_gt_u32 vcc, s{22 + ds_}, v{self.vBias}'); a('v_mov_b32 v23, 0xff800000')
        if part & 1: post_a(7); Z(1); post_b(7); Z(3); post_a(8); Z(1); post_b(8); Z(2); post_a(9); Z(1); post_b(9)
        else: Z(8)
        m = self.vMC; t = 18
        a(f'v_sub_f32 v{T+2}, v{T+2}, v{T+1}'); a(f'v_sub_f32 v{T+1}, v{T+1}, v{T}')
        a(f'v_cndmask_b32 v{T+2}, v23, v{T+2}, vcc')
        a(f'v_max3_f32 v{m}, v{T}, v{T+1}, v{T+2}'); Z()
        a(f'v_max_f32_dpp v{m}, v{m}, v{m} quad_perm:[2,3,0,1] {FULL}'); Z()
        a(f'v_max_f32_dpp v{m}, v{m}, v{m} row_ror:4 {FULL}'); Z()
        a(f'v_max_f32_dpp v{t}, v{m}, v{m} row_ror:8 {FULL}')
        a(f'v_max_f32_dpp v{m}, v{m}, v{m} row_ror:8 {FULL}'); Z()
        a(f'v_permlane16_swap_b32 v{m}, v{t}'); a(f'v_max_f32 v{t+1}, v{m}, v{t}'); a(f'v_max_f32 v{m}, v{m}, v{t}'); Z(8)
        a(f'v_permlane32_swap_b32 v{m}, v{t+1}'); a(f'v_max_f32 v{m}, v{m}, v{t+1}')
        a(f'v_mul_f32 v{m}, s51, v{m}')
        if self.mz:
            a(f'v_cmp_lt_f32 vcc, s50, abs(v{m})'); a(f'v_cndmask_b32 v{m}, 0, v{m}, vcc')
        for k in (0, 2, 1): a(f'v_fma_f32 v{T+k}, v{T+k}, s51, -v{m}')
        for k in (0, 2, 1): a(f'v_exp_f32 v{T+k}, v{T+k}')
        hook(('x', 0))
    def pack(self, k):
        T = self.vT
        o = [f'v_mov_b32_dpp v18, v{T+k} quad_perm:[0,0,0,0] {FULL}',
             f'v_mov_b32_dpp v19, v{T+k} quad_perm:[2,2,2,2] {FULL}',
             f'v_cvt_pk_bf16_f32 v{20+k}, v18, v19']
        if k == 2: o += [f'v_mov_b32_dpp v0, v22 row_shl:4 {FULL}', 'v_permlane32_swap_b32 v22, v0']
        return o
    def aprep(self, k, P, A):
        pp = 20 + k; M = self.vM
        if P == 0:
            return [f'v_and_b32 v{A}, v{pp}, v{M}', f'v_and_b32 v{A+2}, v{pp}, v{M+2}',
                    f'v_and_b32_dpp v{A+1}, v{pp}, v{M+1} row_shr:4 {FULL} bound_ctrl:0',
                    f'v_and_b32_dpp v{A+3}, v{pp}, v{M+3} row_shr:4 {FULL} bound_ctrl:0']
        return [f'v_and_b32 v{A+1}, v{pp}, v{M+1}', f'v_and_b32 v{A+3}, v{pp}, v{M+3}',
                f'v_and_b32_dpp v{A}, v{pp}, v{M} row_shl:4 {FULL} bound_ctrl:0',
                f'v_and_b32_dpp v{A+2}, v{pp}, v{M+2} row_shl:4 {FULL} bound_ctrl:0']
    def lred(self):
        L = self.vL; T = self.vT
        return [f'v_add_f32 v{L}, v{T}, v{T+1}',
                f'v_add_f32 v{L}, v{T+2}, v{L}',
                f'v_add_f32_dpp v{L}, v{L}, v{L} quad_perm:[2,3,0,1] {FULL}',
                f'v_add_f32_dpp v{L}, v{L}, v{L} row_ror:4 {FULL}',
                f'v_add_f32_dpp v{L}, v{L}, v{L} row_ror:8 {FULL}',
                f'v_mov_b32 v23, v{L}', f'v_permlane16_swap_b32 v{L}, v23', f'v_add_f32 v{L}, v{L}, v23',
                f'v_mov_b32 v23, v{L}', f'v_permlane32_swap_b32 v{L}, v23', f'v_add_f32 v{L}, v{L}, v23']
    def merge(self, t0):
        AC = self.vAcc; o = []
        for r in range(4): o.append(f'v_permlane32_swap_b32 v{AC + 4*t0 + r}, v{AC + 4*t0 + 4 + r}')
        for r in range(4):
            if t0 == 0: o.append(f'v_add_f32_dpp v{AC + r}, v{AC + 4 + r}, v{AC + r} row_ror:8 row_mask:0xf bank_mask:0x3')
            else: o.append(f'v_add_f32_dpp v{AC + r}, v{AC + 8 + r}, v{AC + 12 + r} row_ror:8 row_mask:0xf bank_mask:0xc')
        return o
    def staddr(self):
        return [f'v_lshrrev_b32 v18, 6, v{self.vL16}', 'v_lshl_add_u32 v18, v18, 4, s57']
    def qk1(self, s, LP, wait):
        a = self.a; Q = self.vQ
        def hook(p):
            for x in LP.get(p, []): self.load(*x, wait=wait)
        a(f'v_add_u32 v18, s53, v{self.vQo}')
        self.ds(f'ds_read_b128 {vr(Q, 4)}, v18', 'q'); self.ds(f'ds_read_b128 {vr(Q + 4, 4)}, v18 offset:256', 'q')
        for z in self.zero_acc(): a(z)
        self.need_lds('q')
        self.qk_part(s, hook, zero=False)
        pk = self.pack(0) + self.pack(2) + self.pack(1); lr = self.lred()
        while pk or lr:
            if lr: a(lr.pop(0))
            if pk: a(pk.pop(0))
        for x in self.staddr(): a(x)
        a('v_mov_b32 v19, s55')
        a('ds_write_b96 v18, v[20:22]')
        a('s_mov_b64 exec, 1')
        a(f'ds_write_b64 v19, {vr(self.vMC, 2)} offset:{self.MA1[s]}')
        a('s_mov_b64 exec, -1')
        hook(('e', 0))
    def cdst(self, fs, cu0, pi):
        if pi >= 2: pi += 2
        return self.kreg(fs, pi // 2) + 8 * (pi % 2)
    def copy(self, ds_, fs, cu0, n):
        if n >= 72: pi, half = (n - 72) // 2, (n - 72) % 2
        else: pi, half = 2 + (n - 56) % 8, (n - 56) // 8
        self.ds(f'ds_read_b128 {rr(self.cdst(fs, cu0, pi) + 4 * half, 4)}, v{self.vDs} offset:{self.ldsslot(ds_, n) * 1024}', ('c', n))
    def bop(self, ds_, fs, cu0, U, P, t):
        if U == 0: return self.vreg0(ds_, P, t), []
        if U == 1: return self.cdst(fs, cu0, 2 + 4 * P + t), [('c', 56 + 4 * P + t), ('c', 64 + 4 * P + t)]
        if t < 2: return self.cdst(fs, cu0, t), [('c', 72 + 2 * t), ('c', 73 + 2 * t)]
        if cu0: return self.kreg(fs, 1) + 8 * (t - 2), []
        return self.vH + 8 * (t - 2), []
    def pass2(self, s, LP):
        a = self.a; ds_ = 1 - s; Q = self.vQ; AC = self.vAcc
        cplan = {0: [72, 73, 74, 75], 2: [56, 64, 57, 65], 3: [58, 66, 59, 67], 4: [60, 68], 5: [61, 69], 6: [62, 70], 7: [63, 71]}
        def hook(p):
            for n in LP.get(p, []):
                if n == 73: self.need_lds(('c', 75))
                if n < 40: assert p[0] != 'u' or p[1] > self.ORD[n] // 4
                self.load(s if n >= 40 else ds_, n, wait=False)
            if p == ('u', 6): self.share()
            if p[0] == 'u':
                for n in cplan.get(p[1], []): self.copy(ds_, ds_, 0, n)
        self.qk_part(ds_, hook)
        sets = [(0, 0), (2, 0), (0, 1), (1, 0), (1, 1)]
        lred = self.lred()
        def prep(i):
            k, P = sets[i]
            return (self.pack(k) if P == 0 else []) + self.aprep(k, P, Q + 4 * (i % 2))
        self.need_vm(('cp', 'q1'))
        for x in prep(0): a(x)
        for i, (k, P) in enumerate(sets):
            fill = prep(i + 1) if i + 1 < len(sets) else []
            if i == len(sets) - 1:
                fill = lred + self.epi_pre(); lred = []
            for t in range(4):
                b, tags = self.bop(ds_, ds_, 0, k, P, t)
                for tg in tags: self.need_lds(tg)
                a(f'v_smfmac_f32_16x16x64_bf16 {vr(AC + 4 * t, 4)}, {vr(Q + 4 * (i % 2), 4)}, {rr(b, 8)}, v{self.vIP}')
                n = (len(fill) + (3 - t)) // (4 - t)
                got = fill[:n]; fill = fill[n:]
                if len(got) < 2 and lred: got.append(lred.pop(0))
                for x in got: a(x)
            hook(('i', i))
        for x in self.merge(0) + self.merge(2): a(x)
        hook(('m', 0))
        self.epilogue(1, s)
    def epi_pre(self):
        return [f'v_add_u32 v18, s54, v{self.vL16}', 'v_mov_b32 v19, s55', 'v_mov_b32 v20, 1', 'v_mov_b32 v21, 0', 'v_mov_b32 v22, s48']
    def pv1f(self, s):
        a = self.a; fs = 1 - s; Q = self.vQ; AC = self.vAcc
        self.xst = 2
        if self.fx2: a(f's_mov_b32 s{22 + fs}, s25'); self.stamp(40, 's49', 18, 's35')
        def hook(p):
            for n in self.p1l.get(p, []): self.load(fs, n, wait=False)
        for x in self.staddr(): a(x)
        self.ds('ds_read_b96 v[20:22], v18', 'p')
        hook('a')
        for z in self.zero_acc(): a(z)
        self.need_vm((s, 71))
        for n in [56, 64, 57, 65, 58, 66, 59, 67]: self.copy(s, fs, 2, n)
        self.need_lds('p')
        sets = [(0, 0), (0, 1), (1, 0), (1, 1), (2, 0)]
        prep = lambda i: self.aprep(*sets[i], Q + 4 * (i % 2))
        for x in prep(0): a(x)
        for i, (k, P) in enumerate(sets):
            last = (i == len(sets) - 1)
            fill = self.epi_pre() if last else prep(i + 1)
            if i == 1:
                for n in [60, 68, 61, 69, 62, 70, 63, 71]: self.copy(s, fs, 2, n)
            hook(str(i))
            for t in range(4):
                b, tags = self.bop(s, fs, 2, k, P, t)
                if last:
                    if t == 0:
                        self.need_vm((s, 73)); self.copy(s, fs, 2, 72); self.copy(s, fs, 2, 73)
                        self.need_vm((s, 75)); self.copy(s, fs, 2, 74); self.copy(s, fs, 2, 75)
                        for x in fill: a(x)
                        fill = []
                    if t == 2: self.need_vm((s, 77))
                    if t == 3: self.need_vm((s, 79))
                for tg in tags: self.need_lds(tg)
                a(f'v_smfmac_f32_16x16x64_bf16 {vr(AC + 4 * t, 4)}, {vr(Q + 4 * (i % 2), 4)}, {rr(b, 8)}, v{self.vIP}')
                n = (len(fill) + (3 - t)) // (4 - t)
                got = fill[:n]; fill = fill[n:]
                for x in got: a(x)
        self.xst = 0
        for x in self.merge(0) + self.merge(2): a(x)
        hook('m')
        self.epilogue(0, s)
        self.stamp(16, 's49')
        for i in range(8): a(f'v_mov_b64 {vr(self.vH + 2 * i, 2)}, {vr(self.kreg(fs, 1) + 2 * i, 2)}')
    def epilogue(self, p2, s, Zr=None):
        a = self.a; Q = self.vQ; AC = self.vAcc; m = self.vMC; L = self.vL
        CA = self.CA[p2]; MA = self.MA[1] if p2 else self.MA1[s]; CO = self.CO[p2]
        Zr = Zr or self.kreg(1 - s, 2)
        a(f'ds_write_b128 v18, {vr(AC, 4)} offset:{CA}')
        a('s_mov_b64 exec, 1')
        if p2: a(f'ds_write_b64 v19, {vr(self.vMC, 2)} offset:{MA}')
        a(f'ds_add_rtn_u32 v20, v21, v20 offset:{CO}')
        a('s_mov_b64 exec, -1')
        a(f'ds_read_b128 {vr(Q, 4)}, v21 offset:{MA}'); a(f'ds_read_b128 {vr(Q + 4, 4)}, v21 offset:{MA + 16}')
        for w in range(4): a(f'ds_read_b128 {vr(Zr + 4 * w, 4)}, v{self.vL16} offset:{CA + 1024 * w}')
        if p2 and self.ja and self.ja[0]: a(f's_add_u32 s38, s47, {PP2 + (1 - s) * PIB}')
        elif p2: a(f's_sub_u32 s38, s47, {PIB - PP2}')
        else: a('s_mov_b32 s38, s47')
        dual = self.home and p2 != s
        if dual: a('s_add_u32 s33, s38, 0x2000'); a(f's_cmp_eq_u32 s49, {3 + p2}'); a(f's_cselect_b32 s33, s33, 0x{OOB:x}')
        a('s_waitcnt lgkmcnt(6)')
        self.clk()
        a('v_readfirstlane_b32 s39, v20'); a('s_and_b32 s39, s39, 3'); a('s_cmp_eq_u32 s39, 3')
        if p2: a('s_cselect_b32 s58, 1, 0')
        elif self.bst: a('s_mov_b32 s26, s59'); a(f's_cselect_b32 s59, {self.bst[0]}, {"s59" if len(self.bst) < 3 else self.bst[2]}')
        l = self.lab('L_nl'); a(f's_cbranch_scc0 {l}')
        a('s_waitcnt lgkmcnt(4)')
        def st(text, pre=None):
            assert self.loc
            x = self.lab('L_ls'); y = self.lab('L_ls')
            a(f's_cbranch_scc1 {x}')
            if pre: a(pre)
            a(text + ' sc1'); a(f's_branch {y}'); a.label(x); a(text); a.label(y)
        if self.mz:
            g = self.lab('L_gen'); j = self.lab('L_join')
            a(f'v_or3_b32 v{m}, v{Q}, v{Q+2}, v{Q+4}'); a(f'v_add_f32 v{L}, v{Q+1}, v{Q+3}'); a(f'v_or_b32 v{m}, v{m}, v{Q+6}'); a(f'v_add_f32 v23, v{Q+5}, v{Q+7}')
            a(f'v_cmp_eq_u32 vcc, 0, v{m}'); a(f'v_add_f32 v{L}, v{L}, v23'); a(f's_cbranch_vccz {g}')
            if self.h16: a(f'v_rcp_f32 v20, v{L}')
            a('s_waitcnt lgkmcnt(2)')
            for hf in range(2): a(f'v_pk_add_f32 {vr(AC + 2*hf, 2)}, {vr(Zr + 2*hf, 2)}, {vr(Zr + 4 + 2*hf, 2)}')
            a('s_waitcnt lgkmcnt(0)')
            for hf in range(2): a(f'v_pk_add_f32 {vr(Zr + 2*hf, 2)}, {vr(Zr + 8 + 2*hf, 2)}, {vr(Zr + 12 + 2*hf, 2)}')
            for hf in range(2): a(f'v_pk_add_f32 {vr(AC + 2*hf, 2)}, {vr(AC + 2*hf, 2)}, {vr(Zr + 2*hf, 2)}')
            a.label(j)
            a(f's_cmp_eq_u32 s27, {NCHAIN + 1}')
            if self.h16:
                a(f'v_lshrrev_b32 v18, 1, v{self.vL16}')
                for hf in range(2): a(f'v_pk_mul_f32 {vr(AC + 2*hf, 2)}, {vr(AC + 2*hf, 2)}, v[20:21] op_sel_hi:[1,0]')
                for hf in range(2): a(f'v_cvt_pk_f16_f32 v{AC + hf}, v{AC + 2*hf}, v{AC + 2*hf + 1}')
            for r in range(2 if self.h16 else 4): a(f'v_min_u32 v{AC + r}, -2, v{AC + r}')
            row = f'buffer_store_dwordx2 {vr(AC, 2)}, v18' if self.h16 else f'buffer_store_dwordx4 {vr(AC, 4)}, v{self.vL16}'
            a(f'v_and_b32 v{L}, -2, v{L}')
            x = self.lab('L_ls')
            a(f's_cbranch_scc0 {x}')
            a(f'{row}, {WS}, s38 offen' + self.N('p'))
            a('s_mov_b64 exec, 1')
            a(f'buffer_store_dwordx2 {vr(m, 2)}, v22, {WS}, s38 offen' + self.N('m'))
            a('s_mov_b64 exec, -1')
            def rare():
                a.label(x)
                a(f'{row}, {WS}, s38 offen sc1')
                a(f'v_or_b32 v{L}, s4, v{L}')
                a('s_mov_b64 exec, 1')
                if self.h16: a('s_lshr_b32 s39, s4, 24'); a('s_add_u32 s38, s38, s39')
                a(f'buffer_store_dwordx2 {vr(m, 2)}, v22, {WS}, s38 offen sc1')
                a('s_mov_b64 exec, -1')
                a(f's_branch {l}')
                a.label(g)
                a(f'v_max3_f32 v{m}, v{Q}, v{Q+2}, v{Q+4}'); a(f'v_max_f32 v{m}, v{m}, v{Q+6}')
                for w in range(4): a(f'v_sub_f32 v{Q+2*w}, v{Q+2*w}, v{m}')
                for w in range(4): a(f'v_exp_f32 v{Q+2*w}, v{Q+2*w}')
                a(f'v_mul_f32 v{L}, v{Q}, v{Q+1}')
                for w in range(1, 4): a(f'v_fmac_f32 v{L}, v{Q+2*w}, v{Q+2*w+1}')
                a(f'v_min_u32 v{m}, -2, v{m}')
                if self.h16: a(f'v_rcp_f32 v20, v{L}')
                a('s_waitcnt lgkmcnt(0)')
                for w in range(4):
                    for hf in range(2):
                        if w == 0: a(f'v_pk_mul_f32 {vr(AC + 2*hf, 2)}, {vr(Zr + 2*hf, 2)}, {vr(Q, 2)} op_sel_hi:[1,0]')
                        else: a(f'v_pk_fma_f32 {vr(AC + 2*hf, 2)}, {vr(Zr + 4*w + 2*hf, 2)}, {vr(Q + 2*w, 2)}, {vr(AC + 2*hf, 2)} op_sel_hi:[1,0,1]')
                a(f's_branch {j}')
            self.later.append(rare)
            a.label(l)
            a('s_waitcnt lgkmcnt(0)'); self.lq = []
            return
        a(f'v_max3_f32 v{m}, v{Q}, v{Q+2}, v{Q+4}'); a(f'v_max_f32 v{m}, v{m}, v{Q+6}')
        for w in range(4): a(f'v_sub_f32 v{Q+2*w}, v{Q+2*w}, v{m}')
        for w in range(4): a(f'v_exp_f32 v{Q+2*w}, v{Q+2*w}')
        a(f'v_mul_f32 v{L}, v{Q}, v{Q+1}')
        for w in range(1, 4): a(f'v_fmac_f32 v{L}, v{Q+2*w}, v{Q+2*w+1}')
        a(f'v_min_u32 v{m}, -2, v{m}'); a(f'v_and_b32 v{L}, -2, v{L}')
        a(f's_cmp_eq_u32 s27, {NCHAIN + 1}')
        a('s_mov_b64 exec, 1')
        st(f'buffer_store_dwordx2 {vr(m, 2)}, v22, {WS}, s38 offen', f'v_or_b32 v{L}, s4, v{L}')
        if dual: a(f'buffer_store_dwordx2 {vr(m, 2)}, v22, {WS}, s33 offen sc1')
        a('s_mov_b64 exec, -1')
        a('s_waitcnt lgkmcnt(0)')
        for w in range(4):
            for hf in range(2):
                if w == 0: a(f'v_pk_mul_f32 {vr(AC + 2*hf, 2)}, {vr(Zr + 2*hf, 2)}, {vr(Q, 2)} op_sel_hi:[1,0]')
                else: a(f'v_pk_fma_f32 {vr(AC + 2*hf, 2)}, {vr(Zr + 4*w + 2*hf, 2)}, {vr(Q + 2*w, 2)}, {vr(AC + 2*hf, 2)} op_sel_hi:[1,0,1]')
        for r in range(4): a(f'v_min_u32 v{AC + r}, -2, v{AC + r}')
        st(f'buffer_store_dwordx4 {vr(AC, 4)}, v{self.vL16}, {WS}, s38 offen')
        if dual: a(f'buffer_store_dwordx4 {vr(AC, 4)}, v{self.vL16}, {WS}, s33 offen sc1')
        a.label(l)
        a('s_waitcnt lgkmcnt(0)'); self.lq = []

    RING0 = 8192
    vGO2, vTR, vOOB, vDO, vX0O, vGO, vXR, vXW, vRES = 8, 9, 10, 11, 12, 13, 14, 15, 16
    vAC, vCS, vQS, vRO, vPO, vPO2, vMLO, vOW, vDQ, vX0 = 32, 36, 38, 39, 40, 41, 42, 43, 44, 45
    def vm(self, text, tag=None):
        self.a(text); self.cq.append(tag)
    def vmwait(self, tag):
        if tag in self.cq:
            i = len(self.cq) - 1 - self.cq[::-1].index(tag)
            k = len(self.cq) - 1 - i
            assert k <= 63
            self.a(f's_waitcnt vmcnt({k})'); self.cq = self.cq[i + 1:]
    def arm(self, q=False):
        a = self.a
        if not self.nocl: self.vmwait('init')
        self.confirm(self.vCL, 28)
        for r in range(20, 24): a(f'v_mov_b32 v{r}, -1')
        a('s_lshl2_add_u32 s38, s8, s3'); a('s_mul_i32 s38, s38, 4608'); a(f's_add_u32 s38, s38, 0x{YOFF:x}')
        if 'C' in self.wb: a(f's_mov_b32 s38, 0x{OOB:x}')
        for i in range(5): self.vm(f'buffer_store_dwordx4 v[20:23], v1, {WS}, s38 offen offset:{min(i * 1024, 3584)} sc1' + self.N('c'), 'arm')
        if q:
            self.bits('v28', 'v0', 'v29', [(0, 5, 4), (5, 1, 13)])
            a('s_lshl_b32 s38, s8, 9'); a('s_lshl_b32 s39, s3, 14'); a('s_add_u32 s39, s39, s38')
            self.vm(f'buffer_store_dwordx4 v[20:23], v28, {WS}, s39 offen sc1' + self.N('c'), 'arm')
        else:
            self.pquad('s38'); a('s_lshl_b32 s39, s8, 15'); a('s_add_u32 s38, s38, s39'); a(f's_add_u32 s38, s38, 0x{POFF - 16 * PB:x}')
            if 'D' in self.wb: a(f's_mov_b32 s38, 0x{OOB:x}')
            for i in range(2 if self.h16 else 4): self.vm(f'buffer_store_dwordx4 v[20:23], v1, {WS}, s38 offen offset:{i * 1024} sc1' + self.N('c'), 'arm')
    def pquad(self, d):
        if self.h16: self.a(f's_lshl_b32 {d}, s3, 11'); return
        self.a(f's_and_b32 {d}, s3, 2'); self.a(f's_add_u32 {d}, {d}, s3'); self.a(f's_lshl_b32 {d}, {d}, 12')
    def announce(self, bar=True):
        a = self.a
        if bar: self.vmwait('arm'); a('s_barrier')
        assert 'arm' not in self.cq
        self.signal(28, 29, self.CNTA, 's9')
        self.stamp(21, None, 30)
    def chain_common(self):
        a = self.a
        a('s_lshl4_add_u32 s2, s38, s36'); a('s_mov_b32 s8, s2'); a('s_mov_b32 s9, s5'); a('s_mov_b32 s10, 0')
        if self.diag: a('s_mov_b32 s61, s2'); self.diagbase()
        a('v_lshlrev_b32 v1, 4, v0')
        self.bits('v2', 'v0', 'v6', [(0, 1, 4), (4, 2, 5)])
        self.bits('v4', 'v0', 'v6', [(1, 1, 0), (3, 1, 2), (2, 1, 3)])
        a('s_lshl_b32 s98, s3, 13'); a(f's_add_u32 s98, s98, {self.RING0}'); a('s_movk_i32 s99, 1024')
        a('s_mul_i32 s32, s3, 7168'); a(f's_add_u32 s32, s32, {self.RING0}')
        self.claim(28, 29, self.vCL)
        self.srd(16, 86, 0x20000000)
        self.stamp(0, None, 30)
        a('s_cmp_lt_u32 s2, 16'); a('s_cbranch_scc1 L_roleOQ')
        self.cq = ['init']
        if self.wtlb:
            lo = 30 if self.wtlb == 1 else 16; nw = 4 * (32 - lo)
            a(f's_cmp_lt_u32 s2, {lo}'); a('s_cbranch_scc1 L_notlb')
            a('v_lshlrev_b32 v6, 12, v0'); a(f's_sub_u32 s33, s2, {lo}'); a('s_lshl2_add_u32 s33, s33, s3'); a('s_lshl_b32 s33, s33, 18')
            for lo_, size in ((70, 448 * 8192), (76, 448 * 3584), (78, 448 * 3584), (72, 4096 * 896), (80, 1792 * 896)):
                self.srd(20, lo_, size)
                for i in range(-(-size // (nw << 18))):
                    if i: a(f's_add_u32 s39, s33, {i * nw << 18}')
                    a(f'buffer_load_dword v64, v6, {W1}, {"s39" if i else "s33"} offen nt')
            a.label('L_notlb')
        if self.hq:
            self.srd(20, 70, 448 * 8192)
            self.bits('v6', 'v0', 'v7', [(0, 5, 4), (5, 1, 13)])
            a('s_sub_u32 s33, s2, 16'); a('s_lshl_b32 s33, s33, 9'); a('s_lshl_b32 s39, s3, 14'); a('s_add_u32 s33, s33, s39')
            a(f's_add_u32 s33, s33, {self.hq[0] * 64 * 8192}')
            for i in range(8 * (self.hq[1] - self.hq[0])):
                self.vm(f'buffer_load_dwordx4 v[64:67], v6, {W1}, s33 offen {self.hpol}', 'hq'); a('s_add_u32 s33, s33, 65536')
                if i == 0: self.stamp(61, None, 30)
                if i == 8: self.stamp(63, None, 30)
                if i == 9: self.arm()
                if i == 23: self.announce()
        self.cq0 = list(self.cq)
        a('s_cmp_lt_u32 s2, 30'); a('s_cbranch_scc1 L_roleF')
    def consts(self):
        a = self.a
        a('v_and_b32 v6, 1, v0'); a('v_cmp_eq_u32 vcc, 1, v6')
        a('v_mov_b32 v3, 0x44444444'); a('v_mov_b32 v6, 0xeeeeeeee'); a('v_cndmask_b32 v3, v3, v6, vcc')
        self.bits('v9', 'v0', 'v6', [(0, 5, 3), (5, 1, 10)])
        a('v_mul_u32_u24 v5, 6144, v6'); a('s_mul_i32 s38, s3, 1792'); a('v_add3_u32 v5, v5, v9, s38')
        a(f's_mov_b32 s57, 0x{OOB:x}'); a(f's_mov_b32 s56, 0x{OOB:x}'); a('s_mov_b32 s49, -1')
    vCL = 46
    def preready(self, streams=False):
        self.vm(f'global_load_dwordx2 v[46:47], v18, {DBG} offset:{self.CNTA} sc1', 'cnt')
    def ready(self, streams=False):
        a = self.a
        self.stamp(22, None, 28)
        self.vmwait('cnt')
        self.wait_counter(18, 46, 22, self.CNTA, NCHAIN, pre=True)
        a('s_mov_b32 s56, 0')
        if self.dual: a('s_movk_i32 s57, 0x2000')
        if self.dual and self.role != 'W':
            a('v_readfirstlane_b32 s38, v47'); a('s_getreg_b32 s10, hwreg(HW_REG_XCC_ID, 2, 1)'); a('s_xor_b32 s10, s10, s38'); a('s_and_b32 s10, s10, 1'); a('s_lshl_b32 s10, s10, 13')
            if self.diag:
                a('v_mov_b32 v28, s10'); a('v_mov_b32 v29, 0')
                a(f'buffer_store_dword v28, v29, {WS}, s61 offen offset:{62 * 4}')
        self.stamp(1, None, 28)
    def near(self):
        if not self.dual: return
        a = self.a; l = self.lab('L_nr')
        assert self.hs <= 12
        a('s_mul_i32 s38, s3, 1536'); a(f's_add_u32 s11, s38, 0x{XBOFF:x}')
        a('s_mov_b32 s4, -1'); a('s_mov_b32 s5, -1'); a(f's_mov_b32 s6, {2 * self.hs}')
        a('s_waitcnt vmcnt(0)')
        a.label(l)
        a('s_waitcnt lgkmcnt(0)'); a('s_memtime s[58:59]'); a('s_waitcnt lgkmcnt(0)')
        a(f'buffer_load_dword v28, off, {WS}, s11 sc1'); a('s_waitcnt vmcnt(0)')
        a('s_memtime s[38:39]'); a('s_waitcnt lgkmcnt(0)')
        a('s_sub_u32 s38, s38, s58'); a('s_min_u32 s38, s38, s4'); a('s_mov_b32 s4, s5'); a('s_mov_b32 s5, s38')
        a('s_xor_b32 s11, s11, 0x2000'); a('s_and_b32 s38, s6, 1'); a('s_lshl_b32 s38, s38, 7'); a('s_add_u32 s11, s11, s38')
        a('s_sub_u32 s6, s6, 1'); a('s_cmp_lg_u32 s6, 0'); a(f's_cbranch_scc1 {l}')
        a('s_cmp_gt_u32 s4, s5'); a('s_cselect_b32 s10, 0x2000, 0')
        if self.hforce is not None: a(f's_xor_b32 s10, s10, {self.hforce}')
        a('s_getreg_b32 s38, hwreg(HW_REG_XCC_ID, 2, 1)'); a('s_lshr_b32 s39, s10, 13'); a('s_xor_b32 s38, s38, s39')
        a('v_mov_b32 v28, s38'); a('v_mov_b32 v29, 0')
        a('s_cmp_eq_u32 s3, 0'); a('s_cselect_b64 exec, 1, 0')
        a(f'global_store_dword v29, v28, {DBG} offset:{self.CNTA + 4} sc1'); a('s_mov_b64 exec, -1')
        if self.diag:
            self.stamp(20, None, 28)
            a('s_lshl_b32 s38, s4, 16'); a('s_add_u32 s38, s38, s5'); a('v_mov_b32 v28, s38'); a('v_mov_b32 v29, 0')
            a(f'buffer_store_dword v28, v29, {WS}, s61 offen offset:{62 * 4}')
    def lstore(self, op, data, voff, sp, ss):
        self.a(f'buffer_store_{op} {data}, {voff}, {WS}, {ss} offen sc1' + self.N('l'))
        if self.dual: self.a(f'buffer_store_{op} {data}, {voff}, {WS}, {sp} offen sc1' + self.N('l'))
    def dma_sub(self, name, srd, voff, tab, adv):
        a = self.a
        a.label(name)
        for e in range(8):
            a(f'buffer_load_dwordx4 {voff}, {srd}, s{tab + e} offen nt lds')
            if e < 7: a('s_add_u32 m0, m0, s99')
        a(f'v_add_u32 {voff}, 0x{adv:x}, {voff}')
        a('s_setpc_b64 s[96:97]')
    def dma_subB(self, name, srd, voff):
        a = self.a
        a.label(name)
        for cb in range(7):
            a(f'buffer_load_dwordx4 {voff}, {srd}, 0 offen offset:{128 * cb} nt lds')
            if cb < 6: a('s_add_u32 m0, m0, 896')
        a(f'v_add_u32 {voff}, 0x{32 * 896:x}, {voff}')
        a('s_setpc_b64 s[96:97]')
    def poff(self, p): return p['off'] if 'off' in p else p['slot'] * 32768
    def issue(self, p):
        self.a(f's_add_u32 m0, {"s32" if p["B"] else "s98"}, {self.poff(p)}'); self.a(f's_call_b64 s[96:97], {p["sub"]}')
        self.cq += [id(p)] * (7 if p['B'] else 8)
    def readout(self, p, sel=None):
        self.a(f'v_add_u32 v6, {self.RING0 + self.poff(p)}, {"v5" if p["B"] else "v9"}')
        for d, imm in p['rd']:
            if sel is None or sel(d): self.a(f'ds_read_b64_tr_b16 {rr(d, 2)}, v6 offset:{imm}')
    def consume(self, p, nxt=None, hook=None):
        self.vmwait(id(p))
        self.a('s_waitcnt lgkmcnt(0)'); self.a('s_barrier')
        if hook: hook()
        for x in (nxt if isinstance(nxt, list) else [nxt] if nxt else []):
            if 'off' not in x: assert x['slot'] == self.lastslot, (x['slot'], self.lastslot)
            self.issue(x)
        self.readout(p); self.lastslot = p.get('slot')
    def table(self, tab, rs):
        for e in range(8): self.a(f's_mov_b32 s{tab + e}, 0x{(16 * (e & 1) + 2 * ((e >> 1) & 1) + 32 * (e >> 2)) * rs:x}')
    def typeB(self, voff, rowbase_s):
        a = self.a
        a('s_and_b32 s38, s3, 1'); a('s_lshl_b32 s38, s38, 4'); a(f's_add_u32 s38, s38, {rowbase_s}'); a('s_and_b32 s39, s3, 2'); a('s_add_u32 s38, s38, s39')
        a(f'v_add_u32 v6, s38, v4'); a(f'v_mad_u32_u24 {voff}, v6, s99, v2'); a(f'v_lshlrev_b32 v6, 7, v6'); a(f'v_sub_u32 {voff}, {voff}, v6')
    def typeB_reads(self, breg, ks, half):
        return [(breg(jj, ks) + 2 * (e1 + 2 * half), 2 * e1 * 7168 + jj * 256) for jj in range(7) for e1 in range(2)]
    def x0off(self):
        a = self.a
        a(f'v_mov_b32 v10, 0x{OOB:x}')
        self.bits('v6', 'v0', 'v7', [(0, 4, 3), (4, 1, 2), (5, 1, 7)])
        a('s_mul_i32 s38, s3, 224'); a('s_lshl_b32 s39, s3, 5'); a(f's_add_u32 s39, s39, {896 - 224}')
        a('v_cmp_gt_u32 vcc, 224, v6')
        a('v_add_u32 v15, s38, v6'); a('v_add_u32 v6, s39, v6')
        a('v_cndmask_b32 v12, v10, v15, vcc'); a('v_cndmask_b32 v15, v6, v15, vcc')
        a('s_lshl_b32 s38, s3, 9'); a('v_lshl_add_u32 v14, v0, 3, s38'); a('v_cndmask_b32 v14, v10, v14, vcc')
    def gather_offs(self):
        a = self.a
        self.bits('v13', 'v0', 'v6', [(0, 4, 4), (4, 1, 12), (5, 1, 14)])
        a('s_lshl_b32 s38, s3, 8'); a('v_add_u32 v13, s38, v13'); a(f'v_lshl_add_u32 v{self.vRO}, v0, 2, s38')
        a('v_cmp_gt_u32 vcc, 48, v0'); a('v_mov_b32 v18, 0'); a('v_mov_b32 v19, 0'); a('v_cndmask_b32 v8, v10, v13, vcc')
        a('v_and_b32 v6, 8, v0'); a('v_cmp_eq_u32 vcc, 8, v6'); a('v_mov_b32 v6, 0x3c00'); a('v_mov_b32 v7, 0x3c000000')
        a('v_cndmask_b32 v6, v6, v7, vcc'); a('v_and_b32 v7, 7, v0')
        for r, key in enumerate((0, 1, 4, 5)):
            a(f'v_cmp_eq_u32 vcc, {key}, v7'); a('s_nop 1'); a(f'v_cndmask_b32 v{self.vAC + r}, 0, v6, vcc')
    def resid_poll(self, soff):
        a = self.a; l = self.lab('L_rp')
        a.label(l)
        self.timeout()
        a(f'buffer_load_dwordx2 v[16:17], v14, {WS}, {soff} offen sc1'); a('s_waitcnt vmcnt(0)')
        a('v_max_u32 v6, v16, v17'); a('v_cmp_eq_u32 vcc, -1, v6'); a(f's_cbranch_vccnz {l}')
    def repoll(self, loads, full, comp, done):
        a = self.a; p = self.lab('L_mp'); i_ = self.lab('L_mi')
        M = ['vcc' if i == 4 else f's[{88 + 2 * i}:{89 + 2 * i}]' for i in range(len(loads))]
        def masks(to):
            for m, (r, t) in zip(M, loads): a(f'v_cmp_eq_u32 {m}, -1, v{r}')
            a(f's_or_b64 s[38:39], {M[0]}, {M[1]}')
            for m in M[2:]: a(f's_or_b64 s[38:39], s[38:39], {m}')
            a(f's_cbranch_scc0 {to}')
        if done:
            r_ = self.lab('L_mr'); a(f's_cbranch_vccnz {r_}')
            a('s_cmp_eq_u32 s38, 0'); a(f's_cbranch_scc1 {full}'); a(f's_branch {done}')
            a.label(r_)
        masks(full); a(f's_branch {i_}')
        a.label(p)
        masks(comp)
        a.label(i_)
        self.timeout()
        for m, (r, t) in list(zip(M, loads))[4:] + list(zip(M, loads))[:4]: a(f's_mov_b64 exec, {m}'); a(t)
        a('s_mov_b64 exec, -1')
        a(f's_waitcnt vmcnt({len(loads) * (self.mp - 1)})')
        a(f's_branch {p}')
    def gather_sum(self, soff, G, full, res=None):
        a = self.a; l = self.lab('L_g'); d = self.lab('L_gd'); c = self.lab('L_gc')
        mp = self.mp and self.role in self.mpr
        if self.role in self.lp:
            w = self.lab('L_gw')
            a(f's_movk_i32 s38, {self.lp[self.role]}'); a(f's_bitcmp1_b32 s38, {"s53" if self.role == "O" else "s49"}'); a(f's_cbranch_scc0 {l}')
            a.label(w)
            a('s_mov_b64 exec, -1')
            self.timeout()
            a('s_mov_b32 exec_lo, 0x10001'); a('s_mov_b32 exec_hi, 0x10001')
            a(f'buffer_load_dword v20, v13, {WS}, {soff} offen sc1'); a('s_waitcnt vmcnt(0)')
            a('v_cmp_ne_u32 vcc, -1, v20'); a(f's_cbranch_vccz {w}')
            a('s_mov_b64 exec, -1')
        a.label(l)
        self.timeout()
        ld = [(G + 4 * i, f'buffer_load_dwordx4 {vr(G + 4 * i, 4)}, {"v13" if full or i < 2 else "v8"}, {WS}, {soff} offen offset:{1024 * i} sc1') for i in range(4)]
        if res: ld.append((16, f'buffer_load_dwordx2 v[16:17], v14, {WS}, {res} offen sc1'))
        for r, t in ld[4:] + ld[:4]: a(t)
        def comp(w):
            for i in range(4):
                if w: a(f's_waitcnt vmcnt({3 - i})')
                a(f'v_mfma_f32_16x16x32_f16 v[20:23], {vr(self.vAC, 4)}, {vr(G + 4 * i, 4)}, {"v[16:19]" if i == 0 else "v[20:23]"}')
            a('v_cmp_u_f32 vcc, v20, v21')
            a('v_cvt_pk_bf16_f32 v24, v20, v21')
        comp(True)
        a(f's_cbranch_vccz {d}')
        self.maxtree(list(range(G, G + 16)) + ([16, 17] if res else []), 6)
        if mp:
            a(f's_cbranch_vccz {d}')
            self.repoll(ld, l, c, None)
            a.label(c); comp(False); a(f's_cbranch_vccnz {l}')
        else: a(f's_cbranch_vccnz {l}')
        a.label(d)
    def xrow_ops(self, sp, ss):
        return ['v_lshlrev_b32 v20, 16, v24', 'v_and_b32 v21, 0xffff0000, v24',
                f'buffer_store_dwordx2 v[20:21], v14, {WS}, {ss} offen sc1' + self.N('l')] + ([f'buffer_store_dwordx2 v[20:21], v14, {WS}, {sp} offen sc1' + self.N('l')] if self.dual else [])
    def stats_ops(self, X):
        o = []
        for i in range(4):
            o += [f'v_lshlrev_b32 v26, 16, v{X+i}', f'v_and_b32 v27, 0xffff0000, v{X+i}']
            if i == 0: o += ['v_add_f32 v28, v26, v27', 'v_mul_f32 v30, v26, v26', 'v_fmac_f32 v30, v27, v27']
            else: o += ['v_add_f32 v28, v28, v26', 'v_fmac_f32 v30, v26, v26', 'v_add_f32 v28, v28, v27', 'v_fmac_f32 v30, v27, v27']
        o += [f'v_mov_b32 v26, 0x{f2u(1/448):x}', f'v_mov_b32 v27, 0x{f2u(1e-5):x}', 'v_permlane16_swap_b32 v28, v30', 'v_add_f32 v28, v28, v30']
        for c in ('quad_perm:[1,0,3,2]', 'quad_perm:[2,3,0,1]', 'row_ror:4'):
            o += [None, f'v_add_f32_dpp v28, v28, v28 {c} {FULL}']
        o += [None, f'v_add_f32_dpp v29, v28, v28 row_ror:8 {FULL}', f'v_add_f32_dpp v28, v28, v28 row_ror:8 {FULL}', None,
              'v_permlane32_swap_b32 v28, v29', 'v_add_f32 v28, v28, v29', None,
              'v_readlane_b32 s58, v28, 0', 'v_readlane_b32 s59, v28, 16', None,
              'v_mul_f32 v24, s58, v26', 'v_fmac_f32 v27, s59, v26',
              'v_fma_f32 v27, -v24, v24, v27', 'v_rsq_f32 v25, v27']
        return o
    def gemv(self, ntile, nks, breg, acc, A, fill=(), nother=0):
        a = self.a; fill = list(fill)
        for ks in range(nks):
            a(f's_waitcnt lgkmcnt({min(15, nks - 1 - ks + nother)})')
            for jj in range(ntile):
                a(f'v_smfmac_f32_16x16x64_bf16 {vr(acc + 4 * jj, 4)}, {vr(A + 4 * ks, 4)}, {rr(breg(jj, ks), 8)}, v3')
                for _ in range(2):
                    if fill:
                        x = fill.pop(0)
                        if x: a(x)
        for x in fill:
            if x: a(x)
    def zero(self, base, n):
        for i in range(0, n, 2): self.a(f'v_mov_b64 {vr(base + i, 2)}, 0')
    def rowsel(self, dst, acc, tiles_masks):
        for jj, rm in tiles_masks:
            self.a(f'v_add_f32_dpp v{dst}, v{acc + 4*jj}, v{acc + 4*jj + 1} quad_perm:[0,1,2,3] row_mask:0x{rm:x} bank_mask:0xf')
    def rowout(self, acc, sp, ss):
        a = self.a
        for jj in range(4): self.rowsel(20, acc, [(jj, 1 << jj)])
        for jj in range(3): self.rowsel(21, acc, [(4 + jj, 1 << jj)])
        a('v_cvt_pk_f16_f32 v20, v20, v21'); a('v_min_u32 v20, -2, v20')
        if self.r4:
            n = self.r4; m = {4: 0x11111111, 2: 0x55555555}[n]
            for i in range(1, n): a(f'v_mov_b32_dpp v{20 + i}, v20 quad_perm:[{i},{i},{i if n == 4 else 3},{i if n == 4 else 3}] {FULL}')
            a(f's_mov_b32 exec_lo, 0x{m:x}'); a(f's_mov_b32 exec_hi, 0x{m:x}')
            self.lstore(f'dwordx{n}', vr(20, n), f'v{self.vRO}', sp, ss)
            a('s_mov_b64 exec, -1')
        else: self.lstore('dword', 'v20', f'v{self.vRO}', sp, ss)
    def calc_ib(self):
        a = self.a
        a('s_lshl_b32 s38, s49, 2'); a(f's_lshr_b32 s50, {"0x76352410" if self.reord else "0x73625140"}, s38'); a('s_and_b32 s50, s50, 7')
    def colsum(self, ntile, nks, breg, acc):
        a = self.a
        for r in range(4): a(f'v_mov_b32 v{20 + r}, 0x3f803f80')
        self.zero(acc, 4 * ntile)
        for ks in range(nks):
            for jj in range(ntile):
                a(f'v_smfmac_f32_16x16x64_bf16 {vr(acc + 4 * jj, 4)}, v[20:23], {rr(breg(jj, ks), 8)}, v3')
    def pinit(self, ib0):
        a = self.a
        for r in range(20, 24): a(f'v_mov_b32 v{r}, -1')
        a(f's_add_u32 s38, s3, {ib0}'); a('s_lshl_b32 s38, s38, 18'); a('s_add_u32 s38, s38, s41')
        a('v_lshlrev_b32 v6, 4, v0')
        for i in range(16):
            if i and i % 4 == 0: a('s_add_u32 s38, s38, 4096')
            self.vm(f'buffer_store_dwordx4 v[20:23], v6, {WS}, s38 offen offset:{(i % 4) * 1024} sc1', 'pinit')

    def roleOQ(self):
        a = self.a
        TOG = ['v_xor_b32 v15, 0x400, v15', 'v_xor_b32 v2, 0x400, v2', 'v_xor_b32 v1, 0x400, v1', f'v_xor_b32 v{self.vOW}, 0x400, v{self.vOW}']
        def qreg(jj, ks): return 96 + (ks * 4 + jj) * 8
        def oreg(jj, ks):
            if ks == 3 and jj < 4: return 288 + 8 * jj
            i = jj * 3 + ks if ks < 3 else 21 + jj - 4
            return 320 + 8 * i
        inwin = lambda d: 288 <= d < 320
        X0 = 4
        self.dma_sub('L_dmaQ', W1, f'v{self.vDQ}', 88, 64 * 8192)
        self.dma_subB('L_dmaO', W2, f'v{self.vDO}')
        P = 76; ML = 92; ACC = 48; A = 76
        a.label('L_Osub')
        self.calc_ib()
        if self.ja and self.ja[0]:
            a('s_and_b32 s38, s50, 1'); a('s_lshl_b32 s38, s38, 20'); a(f's_add_u32 s38, s38, {PP2}'); a('s_bitcmp1_b32 s50, 2'); a('s_cselect_b32 s44, s38, 0'); a('s_add_u32 s44, s44, s41')
        else:
            a('s_and_b32 s38, s50, 3'); a('s_lshl_b32 s44, s38, 20'); a('s_add_u32 s44, s44, s41')
            a('s_cmp_eq_u32 s38, 3'); a('s_cselect_b32 s38, s55, 0'); a('s_add_u32 s44, s44, s38')
            a('s_lshr_b32 s38, s50, 2'); a('s_lshl_b32 s38, s38, 19'); a('s_add_u32 s44, s44, s38')
        if self.h16: a('s_add_u32 s46, s44, 4096')
        else: a('s_add_u32 s45, s44, 4096'); a('s_add_u32 s46, s44, 16384'); a('s_add_u32 s47, s44, 20480')
        a('s_lshl_b32 s48, s50, 15'); a('s_add_u32 s48, s48, s40'); a('s_add_u32 s51, s48, s56'); a('s_add_u32 s48, s48, s57')
        self.zero(ACC, 28)
        a('s_cmp_lt_i32 s49, 0'); a('s_cbranch_scc1 L_Ook')
        a.label('L_Oheavy')
        self.timeout()
        ld = [(P + 4 * n, f'buffer_load_dwordx4 {vr(P + 4*n, 4)}, v{self.vPO2 if n == 3 else self.vPO}, {WS}, s{44+n} offen sc1') for n in range(4)]
        if self.h16: ld = [(P + 2 * n, f'buffer_load_dwordx2 {vr(P + 2*n, 2)}, v{self.vPO2 if n == 3 else self.vPO}, {WS}, s{44 + (n & 2)} offen offset:{(n & 1) * 2048} sc1') for n in range(4)]
        ld.append((ML, f'buffer_load_dwordx2 {vr(ML, 2)}, v{self.vMLO}, {WS}, s44 offen sc1'))
        for r, t in ld[4:] + ld[:4]: a(t)
        if self.mp and 'P' in self.mpr: a('s_mov_b32 s38, 1')
        if self.h16:
            a('s_cmp_eq_u32 s55, 1'); a('s_cbranch_scc1 L_Ocomp')
            a(f'buffer_load_dwordx2 {vr(P + 12, 2)}, v{self.vMLO}, {WS}, s44 offen offset:128 sc1'); a('s_waitcnt vmcnt(0)')
            a(f'v_and_b32 v{ML}, v{ML}, v{P + 12}'); a(f'v_and_b32 v{ML + 1}, v{ML + 1}, v{P + 13}')
        a.label('L_Ocomp')
        a('s_waitcnt vmcnt(4)')
        a(f'v_max_f32_dpp v20, v{ML}, v{ML} quad_perm:[1,0,3,2] {FULL}')
        for c in ('quad_perm:[2,3,0,1]', 'row_ror:4', 'row_ror:8'): a(f'v_max_f32_dpp v20, v20, v20 {c} {FULL}')
        a(f'v_sub_f32 v20, v{ML}, v20'); a('v_exp_f32 v20, v20'); a('v_cndmask_b32 v20, 0, v20, s[42:43]')
        a(f'v_mul_f32 v21, v20, abs(v{ML+1})')
        lred = [f'v_add_f32_dpp v21, v21, v21 {c} {FULL}' for c in ('quad_perm:[1,0,3,2]', 'quad_perm:[2,3,0,1]', 'row_ror:4', 'row_ror:8')]
        if self.h16:
            for n in range(4): a(f'v_mov_b32_dpp v{P + 8 + n}, v21 row_newbcast:{n} {FULL}')
            for n in range(4):
                a(f's_waitcnt vmcnt({3 - n})')
                for r in range(4):
                    a(f'v_fma_mix_f32 v{24 + r}, v{P + 8 + n}, v{P + 2*n + r // 2}, {0 if n == 0 else f"v{24 + r}"} op_sel:[0,{r & 1},0] op_sel_hi:[0,1,0]')
                a(lred[n])
        for n in range(0 if self.h16 else 4):
            a(f's_waitcnt vmcnt({3 - n})')
            for r in range(4):
                a(f'v_{"mul" if n == 0 else "fmac"}_f32_dpp v{24 + r}, v20, v{P + 4*n + r} row_newbcast:{n} {FULL}')
            a(lred[n])
        a('v_permlane16_swap_b32 v24, v25'); a('v_permlane16_swap_b32 v26, v27'); a('v_rcp_f32 v21, v21')
        a('v_add_f32 v24, v24, v25'); a('v_add_f32 v26, v26, v27')
        a('v_permlane32_swap_b32 v24, v26'); a('v_add_f32 v24, v24, v26'); a('v_mul_f32 v24, v24, v21')
        a('v_cmp_u_f32 vcc, v24, v24')
        a('v_cvt_pk_bf16_f32 v24, v24, v24')
        a('s_cbranch_vccz L_Ook0')
        self.maxtree(list(range(P, P + (8 if self.h16 else 16))) + [ML, ML + 1], 6)
        if self.mp and 'P' in self.mpr: self.repoll(ld, 'L_Oheavy', 'L_Ocomp', 'L_Ook0')
        else: a('s_cbranch_vccnz L_Oheavy')
        a.label('L_Ook0')
        if self.split:
            a('s_cmp_lg_u32 s49, 0'); a('s_cbranch_scc1 L_Ook')
            a('s_setpc_b64 s[34:35]')
        a.label('L_Ook')
        a(f'ds_write_b16 v{self.vOW}, v24'); a('s_waitcnt lgkmcnt(0)'); a('s_barrier')
        for ks in range(4): a(f'ds_read_b128 {vr(A + 4*ks, 4)}, v2 offset:{128 * ks}')
        self.stamp(3, 's49', 28)
        self.gemv(7, 4, oreg, ACC, A, fill=TOG + ['v_mov_b32 v21, 0'])
        self.rowout(ACC, 's48', 's51')
        self.stamp(12, 's49', 28)
        a('s_add_u32 s49, s49, 1')
        a('s_setpc_b64 s[34:35]')
        G = 64; ACC = 48; A = 64; X = 92
        a.label('L_Qsub')
        self.zero(ACC, 16)
        a('s_lshl_b32 s44, s53, 13'); a('s_add_u32 s44, s44, s54')
        a('s_lshl_b32 s38, s53, 11'); a(f's_add_u32 s47, s38, 0x{XAOFF - 4 * 2048:x}'); a('s_add_u32 s47, s47, s10')
        a('s_add_u32 s45, s38, s33'); a('s_add_u32 s46, s45, s56'); a('s_add_u32 s45, s45, s57')
        a('s_lshl_b32 s48, s53, 15'); a(f's_add_u32 s48, s48, 0x{ZOFF - 4 * 32768:x}'); a('s_add_u32 s48, s48, s10')
        a('s_cmp_lt_u32 s53, 4'); a('s_cbranch_scc1 L_Qx')
        if self.ja:
            assert not self.oarm and not self.home and not self.mp
            a('v_mov_b64 v[24:25], -1'); a('v_mov_b64 v[26:27], -1'); a('v_lshlrev_b32 v6, 4, v0')
            if self.ja[0]: a('s_and_b32 s38, s53, 1'); a('s_lshl_b32 s38, s38, 20'); a('s_add_u32 s38, s38, s11'); a(f's_sub_u32 s39, s11, {PP2}')
            else: a('s_and_b32 s38, s53, 3'); a('s_lshl_b32 s38, s38, 20'); a('s_add_u32 s38, s38, s11'); a(f's_add_u32 s39, s38, {PP2}')
            a('s_cmp_eq_u32 s53, 7'); a(f's_cselect_b32 s39, 0x{OOB:x}, s39')
            a('s_cmp_eq_u32 s9, 1'); a('s_cbranch_scc1 L_Qal')
            K = 2 if self.h16 else 4
            def put(pol):
                for i in range(2 * K):
                    if self.h16 and i == 2 and len(self.ja) > 2: a('s_cmp_eq_u32 s3, 3'); a('s_cselect_b64 exec, 0xffff, -1')
                    a(f'buffer_store_dwordx4 v[24:27], v6, {WS}, s{38 + i % 2} offen offset:{i // 2 * 1024} {pol}')
            put('sc1')
            a('s_branch L_Qam')
            a.label('L_Qal')
            put(self.ja[1])
            a.label('L_Qam')
            if self.h16 and len(self.ja) > 2: a('s_mov_b64 exec, -1')
        if not self.mres: self.resid_poll('s47')
        self.gather_sum('s48', G, False, 's47' if self.mres else None)
        a.label('L_Qx')
        a('ds_write_b32 v15, v24'); a('s_waitcnt lgkmcnt(0)'); a('s_barrier')
        if self.mp and 'O' in self.mpr:
            l = self.lab('L_qw'); a('s_cmp_lt_u32 s53, 4'); a(f's_cbranch_scc1 {l}'); a('s_waitcnt vmcnt(0)'); a.label(l)
        for ks in range(7): a(f'ds_read_b128 {vr(A + 4*ks, 4)}, v2 offset:{128 * ks}')
        a(f'ds_read_b128 {vr(X, 4)}, v1')
        for x in self.xrow_ops('s45', 's46'): a(x)
        self.stamp(24, 's53', 28)
        fill = TOG + [None, 's_waitcnt lgkmcnt(0)'] + self.stats_ops(X)
        self.gemv(4, 7, qreg, ACC, A, fill=fill, nother=1)
        a(f'v_mul_f32 v21, v24, v{self.vCS}'); a('s_cmp_eq_u32 s9, 1')
        self.rowsel(20, ACC, [(jj, 1 << jj) for jj in range(4)])
        a('v_sub_f32 v20, v20, v21'); a('v_mul_f32 v20, v20, v25')
        a('v_cvt_pk_bf16_f32 v20, v20, v20'); a('v_min_u32 v20, -2, v20')
        if self.loc:
            a('s_cbranch_scc1 L_Qloc')
            a(f'buffer_store_short v20, v{self.vQS}, {WS}, s44 offen sc1'); a('s_branch L_Qst')
            a.label('L_Qloc'); a(f'buffer_store_short v20, v{self.vQS}, {WS}, s44 offen'); a.label('L_Qst')
        else: a(f'buffer_store_short v20, v{self.vQS}, {WS}, s44 offen sc1')
        self.stamp(33, 's53', 28)
        if self.oarm: a('s_lshl_b32 s38, s53, 20'); a('s_add_u32 s38, s38, s11'); a(f's_add_u32 s39, s38, {PP2}')
        a('s_add_u32 s53, s53, 1')
        if self.oarm:
            a('s_cmp_eq_u32 s53, 8'); a('s_cbranch_scc1 L_Qret')
            a('v_mov_b64 v[24:25], -1'); a('v_mov_b64 v[26:27], -1'); a('v_lshlrev_b32 v6, 4, v0')
            for i in range(8): a(f'buffer_store_dwordx4 v[24:27], v6, {WS}, s{38 + i // 4} offen offset:{i % 4 * 1024} sc1')
            a.label('L_Qret')
        a('s_setpc_b64 s[34:35]')
        a.label('L_roleOQ')
        self.stamp(61, None, 30)
        self.cq = ['init']
        a('s_lshl_b32 s38, s2, 9')
        self.srd(20, 70, 448 * 8192)
        a('s_lshl_b32 s39, s3, 7'); a('s_add_u32 s38, s38, s39')
        a(f'v_lshl_add_u32 v{self.vDQ}, v4, 13, s38'); a(f'v_add_u32 v{self.vDQ}, v{self.vDQ}, v2')
        self.table(88, 8192)
        R4 = self.ring4
        pq = [dict(sub='L_dmaQ', B=0, slot=(ks + 2 * R4) % 4, rd=[(qreg(jj, ks) + 2 * rp, rp * 2048 + jj * 256) for jj in range(4) for rp in range(4)]) for ks in range(7)]
        po = [dict(sub='L_dmaO', B=1, slot=(3, 0, 1)[i % 3], rd=self.typeB_reads(oreg, i // 2, i % 2)) for i in range(8)]
        if R4:
            for i, p in enumerate(po): p['off'] = 32768 + 28672 * (i % 4)
        self.issue(pq[0])
        self.stamp(63, None, 30)
        self.srd(28, 64, 3584)
        XL = 48
        a(f'v_mov_b32 v10, 0x{OOB:x}')
        a('v_cmp_gt_u32 vcc, 56, v0'); a('v_bfe_u32 v7, v0, 2, 2'); a('v_mul_u32_u24 v7, 896, v7'); a('v_cndmask_b32 v6, v10, v1, vcc')
        for b in range(4): self.vm(f'buffer_load_dwordx4 {vr(XL + 4 * b, 4)}, v6, {W3}, 0 offen offset:{b * 896}', 'xl')
        a('v_add_u32 v7, v7, v2')
        a('s_mov_b32 s38, 0x3f803f80'); a('s_mov_b32 s39, s38')
        for r in range(0, 28, 2): a(f'v_mov_b64 {vr(A + r, 2)}, s[38:39]')
        a('s_mov_b32 exec_lo, 0x33333333'); a('s_mov_b32 exec_hi, 0x33333333')
        for ks in range(7): self.vm(f'buffer_load_dwordx4 {vr(A + 4 * ks, 4)}, v7, {W3}, 0 offen offset:{128 * ks}', 'xa')
        a('s_mov_b64 exec, -1')
        if not self.ean: self.issue(pq[1])
        self.stamp(56, None, 30)
        self.srd(24, 72, 4096 * 896)
        a('s_lshl_b32 s39, s2, 8')
        self.typeB(f'v{self.vDO}', 's39')
        self.consts(); a('s_lshl_b32 s38, s3, 13'); a('v_add_u32 v9, s38, v9')
        if self.up4: self.issue(pq[2]); self.issue(pq[3])
        self.stamp(57, None, 30)
        self.arm(True)
        self.stamp(58, None, 30)
        if not self.up4: self.issue(pq[1 if self.ean else 2])
        self.vmwait('xl')
        self.stamp(59, None, 30)
        for b in range(4):
            for x in self.stats_ops(XL + 4 * b):
                if x: a(x)
            a(f'v_mov_b32_dpp v92, v24 quad_perm:[0,1,2,3] row_mask:0x{1 << b:x} bank_mask:0xf')
            a(f'v_mov_b32_dpp v93, v25 quad_perm:[0,1,2,3] row_mask:0x{1 << b:x} bank_mask:0xf')
        if self.ean: self.announce(); self.issue(pq[2])
        if not self.up4: self.issue(pq[3])
        self.zero(ACC, 16)
        self.bits('v94', 'v0', 'v6', [(0, 1, 1), (2, 1, 2), (3, 1, 4), (1, 1, 5), (4, 2, 13)])
        a('s_lshl_b32 s38, s3, 7'); a('s_lshl_b32 s44, s2, 9'); a('s_add_u32 s44, s38, s44')
        self.stamp(60, None, 30)
        nxt = {1: pq[4], 2: pq[5], 3: pq[6], 4: po[0]}
        if R4 == 1: nxt[5] = po[1]; nxt[6] = [po[2], po[3]]
        def q1mm(ks):
            for jj in range(4): a(f'v_smfmac_f32_16x16x64_bf16 {vr(ACC + 4 * jj, 4)}, {vr(A + 4 * ks, 4)}, {rr(qreg(jj, ks), 8)}, v3')
        hooks = {} if self.ean else {(3 if self.up4 else 2): lambda: self.announce(False)}
        for i in range(7):
            if i == 3: self.vmwait('arm')
            self.consume(pq[i], nxt.get(i), hooks.get(i))
            self.stamp(41 + i, None, 26)
            if i: q1mm(i - 1)
        a('s_waitcnt lgkmcnt(0)')
        q1mm(6)
        self.stamp(20, None, 28)
        for jj in range(4):
            a(f'v_add_f32 v{20 + jj}, v{ACC + 4*jj}, v{ACC + 4*jj + 1}'); a(f'v_add_f32 v{24 + jj}, v{ACC + 4*jj + 2}, v{ACC + 4*jj + 3}')
        for jj in range(4): a(f'v_fma_f32 v{20 + jj}, -v92, v{24 + jj}, v{20 + jj}')
        for jj in range(4): a(f'v_mul_f32 v{20 + jj}, v{20 + jj}, v93')
        for jj in range(4): a(f'v_cvt_pk_bf16_f32 v{20 + jj}, v{20 + jj}, v{20 + jj}')
        for jj in range(4): a(f'v_min_u32 v{20 + jj}, -2, v{20 + jj}')
        for jj in range(4): self.vm(f'buffer_store_short v{20 + jj}, v94, {WS}, s44 offen offset:{(jj & 1) * 8 + (jj >> 1) * 64} sc1')
        for jj in range(4): a(f'v_mov_b32_dpp v{self.vCS}, v{24 + jj} quad_perm:[0,1,2,3] row_mask:0x{1 << jj:x} bank_mask:0xf')
        self.stamp(35, None, 28)
        if R4 != 1: self.issue(po[1]); self.issue(po[2])
        if R4 == 3: self.issue(po[3])
        a('s_mov_b32 s55, 0'); a(f's_lshl_b32 s41, s2, 15'); a(f's_add_u32 s41, s41, 0x{POFF:x}')
        if self.ja: self.pquad('s11'); a('s_add_u32 s11, s11, s41'); a(f's_add_u32 s11, s11, {PP2}')
        if self.oarm: self.pquad('s11'); a('s_add_u32 s11, s11, s41'); a(f's_sub_u32 s11, s11, {3 * PIB - PP2}')
        self.x0off(); self.gather_offs()
        a('s_lshl_b32 s40, s2, 10'); a('s_and_b32 s38, s40, 0x2000'); a('s_add_u32 s40, s40, s38'); a(f's_add_u32 s40, s40, 0x{YOFF:x}')
        PO, PO2, MO, OW = self.vPO, self.vPO2, self.vMLO, self.vOW
        self.bits(f'v{PO}', 'v0', 'v6', [(0, 4, 3), (4, 2, 9)] if self.h16 else [(0, 4, 4), (4, 2, 10)])
        a(f's_lshl_b32 s38, s3, {7 if self.h16 else 8}'); a(f'v_add_u32 v{PO}, s38, v{PO}')
        a('v_cmp_gt_u32 vcc, 32, v0'); a('v_lshrrev_b32 v6, 4, v0'); a('v_bfe_u32 v7, v0, 2, 2'); a(f'v_cndmask_b32 v{PO2}, v10, v{PO}, vcc')
        a('v_add_u32 v6, v6, v7'); a('v_and_b32 v6, 3, v6')
        a('v_and_b32 v7, 3, v0'); a('v_lshl_add_u32 v6, v7, 2, v6')
        a(f'v_cmp_gt_u32 s[42:43], {NC}, v6'); a(f'v_min_u32 v6, {NC - 1}, v6'); a(f'v_mul_u32_u24 v{MO}, {self.h16 or 128}, v6'); a(f'v_add_u32 v{MO}, {7168 if self.h16 else MLO}, v{MO}')
        self.bits(f'v{OW}', 'v0', 'v6', [(4, 2, 1), (0, 3, 4), (3, 1, 8)])
        a('s_lshr_b32 s38, s3, 1'); a('s_lshl_b32 s38, s38, 7'); a('s_and_b32 s39, s3, 1'); a('s_lshl_b32 s39, s39, 3'); a('s_add_u32 s38, s38, s39')
        a(f'v_add_u32 v{OW}, s38, v{OW}')
        self.bits(f'v{self.vQS}', 'v0', 'v6', [(0, 1, 1), (2, 1, 2), (4, 1, 3), (3, 1, 4), (1, 1, 5), (5, 1, 6)])
        a('s_lshl_b32 s38, s3, 7'); a(f'v_add_u32 v{self.vQS}, s38, v{self.vQS}')
        a('s_cmp_eq_u32 s2, 0'); a(f's_cselect_b32 s33, 0x{XBOFF - 4 * 2048:x}, s57')
        a('s_mov_b32 s53, 3'); a(f's_mov_b32 s54, 0x{OOB:x}')
        for i in range(8):
            self.consume(po[i], (po[i + 3] if 1 <= i < 5 else None) if R4 else po[i + 2] if 1 <= i < 6 else None, (lambda: self.preready(True)) if i == (4 if self.split else 5) else None)
            self.stamp(48 + i, None, 28)
            if i == 1: a('s_call_b64 s[34:35], L_Osub')
            if i == 2: a('s_call_b64 s[34:35], L_Qsub'); a('s_lshl_b32 s54, s2, 9')
            if i == 5 and self.split:
                self.ready(True); a('s_call_b64 s[34:35], L_Osub'); self.cq = []
                a(f'v_cmp_gt_i32 vcc, 0, v{ML+1}'); a('s_cmp_lg_u64 vcc, 0'); a('s_addc_u32 s9, s9, 0')
                if self.h16: a('s_mov_b32 s55, s9')
        assert self.split and self.reord
        self.stamp(1, None, 28)
        a('s_call_b64 s[34:35], L_Ook')
        a.label('L_OQloop')
        a(f's_movk_i32 s38, 0x{self.qmask:x}'); a('s_bitcmp1_b32 s38, s49'); a('s_cbranch_scc0 L_OQin')
        self.readout(pq[6])
        a('s_call_b64 s[34:35], L_Qsub')
        self.readout(po[6], inwin); self.readout(po[7], inwin)
        a.label('L_OQin')
        a('s_call_b64 s[34:35], L_Osub')
        a('s_cmp_lt_u32 s49, 8'); a('s_cbranch_scc1 L_OQloop')
        if '3' in self.wb or '4' in self.wb:
            a(f's_and_b32 s38, s2, {1 if "3" in self.wb else 0}'); a('s_or_b32 s38, s38, s3'); a('s_cbranch_scc1 L_end')
            a('buffer_wbl2 sc1')
        a('s_branch L_end')

    def roleF(self):
        a = self.a
        self.dma_sub('L_dmaG', W1, 'v44', 88, 64 * 3584)
        self.dma_subB('L_dmaD', W3, 'v11')
        breg = lambda jj, ks: 256 + (jj * 7 + ks) * 8
        def dreg(jj, ks):
            i = jj * 2 + ks
            return 256 + 224 + 8 * i if i < 4 else 176 + 8 * (i - 4)
        G = 64; ACC = 48; A = 96; X = 124; CSUM = self.vCS; ACD = 128; X0 = 160
        a.label('L_Fsub')
        self.calc_ib()
        self.zero(ACC, 16); self.zero(ACD, 28)
        a('s_lshl_b32 s38, s50, 15'); a(f's_add_u32 s48, s38, 0x{YOFF:x}'); a('s_add_u32 s48, s48, s10')
        a('s_add_u32 s44, s38, s40'); a('s_add_u32 s51, s44, s56'); a('s_add_u32 s44, s44, s57')
        a('s_lshl_b32 s38, s50, 11'); a(f's_add_u32 s47, s38, 0x{XBOFF - 4 * 2048:x}'); a('s_add_u32 s47, s47, s10')
        a('s_and_b32 s39, s38, 0x2000'); a('s_add_u32 s38, s38, s39')
        a('s_add_u32 s45, s38, s41'); a('s_add_u32 s46, s45, s56'); a('s_add_u32 s45, s45, s57')
        a('s_cmp_lt_i32 s49, 0'); a('s_cbranch_scc1 L_Fx')
        a('s_bitcmp1_b32 s50, 2'); a('s_cbranch_scc1 L_Fr')
        a(f'v_lshlrev_b32 v16, 16, v{X0}'); a(f'v_and_b32 v17, 0xffff0000, v{X0}')
        for i in range(3): a(f'v_mov_b32 v{X0 + i}, v{X0 + i + 1}')
        a('s_branch L_Fg')
        a.label('L_Fr')
        self.resid_poll('s47')
        a.label('L_Fg')
        self.gather_sum('s48', G, True)
        a.label('L_Fx')
        a('ds_write_b32 v15, v24'); a('s_waitcnt lgkmcnt(0)'); a('s_barrier')
        for ks in range(7): a(f'ds_read_b128 {vr(A + 4*ks, 4)}, v2 offset:{128 * ks}')
        a(f'ds_read_b128 {vr(X, 4)}, v1')
        for x in self.xrow_ops('s45', 's46'): a(x)
        self.stamp(3, 's49', 28)
        if self.diag: self.stamp(24, 's49', 28, 's52')
        fill = [None] * 5 + ['s_waitcnt lgkmcnt(0)'] + self.stats_ops(X)
        self.gemv(4, 7, breg, ACC, A, fill=fill, nother=1)
        a(f'v_mul_f32 v22, v24, v{CSUM}'); a(f'v_mul_f32 v23, v24, v{CSUM+1}'); a('v_mul_f32 v25, v25, v25')
        for jj in (0, 2, 1, 3): self.rowsel(20 + jj // 2, ACC, [(jj, 10 if jj & 1 else 5)])
        a('v_sub_f32 v20, v20, v22'); a('v_sub_f32 v21, v21, v23')
        a('v_max_f32 v20, 0, v20'); a('v_mul_f32 v21, v21, v25'); a('v_mul_f32 v20, v20, v21')
        a('v_cvt_pk_bf16_f32 v20, v20, v20')
        a('ds_write_b16 v40, v20'); a('s_waitcnt lgkmcnt(0)'); a('s_barrier')
        for ks in range(2): a(f'ds_read_b128 {vr(A + 4*ks, 4)}, v2 offset:{2048 + 128 * ks}')
        a('v_mov_b32 v21, 0')
        self.gemv(7, 2, dreg, ACD, A)
        self.rowout(ACD, 's44', 's51')
        self.stamp(12, 's49', 28)
        a('s_add_u32 s49, s49, 1')
        a('s_cmp_eq_u32 s49, 0'); a('s_cbranch_scc1 L_Fret')
        a('s_cmp_lt_u32 s49, 8'); a('s_cbranch_scc1 L_Fsub')
        a('s_branch L_end')
        a.label('L_roleF')
        self.cq = list(self.cq0); done = 8 * (self.hq[1] - self.hq[0]) if self.hq else 0
        a('s_cmp_lt_u32 s3, 2'); a('s_cselect_b64 s[20:21], s[76:77], s[78:79]'); a(f's_mov_b32 s22, 0x{448 * 3584:x}'); a('s_mov_b32 s23, 0x20000')
        a('s_sub_u32 s2, s2, 16')
        a('v_mul_u32_u24 v6, 3584, v4')
        a('s_lshl_b32 s38, s2, 8'); a('s_and_b32 s39, s3, 1'); a('s_lshl_b32 s39, s39, 7'); a('s_add_u32 s38, s38, s39')
        a('v_add3_u32 v44, v6, v2, s38')
        self.table(88, 3584)
        pl = [dict(sub='L_dmaG', B=0, rd=[(breg(jj, ks) + 2 * rp, (jj >> 1) * 16384 + rp * 2048 + (jj & 1) * 256) for jj in range(4) for rp in range(4)]) for ks in range(7)]
        pl += [dict(sub='L_dmaD', B=1, rd=self.typeB_reads(dreg, i // 2, i % 2)) for i in range(4)]
        for i, p in enumerate(pl): p['slot'] = i % 4
        self.stamp(56, None, 30)
        for i in range(1 if self.ean else 2): self.issue(pl[i])
        self.stamp(57, None, 30)
        self.srd(28, 80, 1792 * 896); self.srd(68, 64, 3584)
        a('s_lshl_b32 s39, s2, 7')
        self.typeB('v11', 's39')
        self.consts()
        a('s_lshr_b32 s38, s3, 1'); a('s_lshl_b32 s38, s38, 13'); a('s_and_b32 s39, s3, 1'); a('s_lshl_b32 s39, s39, 9'); a('s_add_u32 s38, s38, s39'); a('v_add_u32 v9, s38, v9')
        self.x0off(); self.gather_offs()
        for b in range(4): self.vm(f'buffer_load_dword v{X0 + b}, v12, s[68:71], 0 offen offset:{b * 896}', 'x0')
        a('v_and_b32 v6, 31, v0'); a('s_lshl_b32 s38, s3, 6'); a('s_add_u32 s38, s38, 2048'); a('v_lshl_add_u32 v40, v6, 1, s38')
        a('s_lshl_b32 s40, s2, 10'); a('s_and_b32 s38, s40, 0x2000'); a('s_add_u32 s40, s40, s38'); a(f's_add_u32 s40, s40, 0x{ZOFF:x}')
        a('s_cmp_eq_u32 s2, 0'); a(f's_cselect_b32 s41, 0x{XAOFF:x}, s57')
        if done < 10: self.arm()
        elif done < 24: self.announce()
        if self.ean:
            assert not done
            self.issue(pl[1]); self.announce()
        self.stamp(58, None, 30)
        self.issue(pl[2])
        a('s_branch L_Fsub')
        a.label('L_Fret')
        self.issue(pl[3])
        self.stamp(59, None, 30)
        hooks = {2: lambda: self.announce(False)} if done < 10 and not self.ean else {}
        hooks[7] = self.preready
        for i in range(11):
            self.consume(pl[i], pl[i + 3] if 1 <= i < 8 else None, hooks.get(i))
            if self.ho and i == self.ho[2]: self.wo_pf('s2')
            self.stamp(41 + i, None, 26)
            if i == 7:
                self.stamp(20, None, 28)
                self.colsum(4, 7, breg, ACC)
                self.rowsel(CSUM, ACC, [(0, 5), (1, 10)]); self.rowsel(CSUM + 1, ACC, [(2, 5), (3, 10)])
        self.ready()
        a('s_branch L_Fsub')

    def wo_pf(self, head, add=0):
        a = self.a; p0, p1 = self.ho[:2]
        self.srd(24, 72, 4096 * 896)
        nb = (p1 - p0) * 28672; per = nb // 4
        a(f's_mul_i32 s38, {head}, 229376'); a(f's_mul_i32 s39, s3, {per}'); a('s_add_u32 s38, s38, s39'); a(f's_add_u32 s38, s38, {p0 * 28672 + add * 229376}')
        a('v_min_u32 v6, 55, v0'); a('v_lshlrev_b32 v6, 7, v6')
        for i in range(p1 - p0):
            self.vm(f'buffer_load_dword v45, v6, {W2}, s38 offen {self.hpol}', 'ho'); a('s_add_u32 s38, s38, 7168')
    def roleW(self):
        a = self.a
        self.cq = list(self.cq0); done = 8 * (self.hq[1] - self.hq[0]) if self.hq else 0
        self.consts()
        if done < 10: self.arm()
        if done < 24: self.announce()
        a('s_sub_u32 s2, s2, 30')
        if self.hpf: self.helper()
        if self.ho: self.wo_pf('s2', 14)
        if self.w2:
            a('s_lshr_b32 s38, s3, 1'); a('s_cmp_lg_u32 s2, s38'); a('s_cbranch_scc1 L_end')
            if self.diag: a('s_lshl_b32 s38, s2, 13'); a('s_sub_u32 s61, s61, s38')
        else: a('s_cmp_lg_u32 s2, 0'); a('s_cbranch_scc1 L_end')
        self.near()
        self.srd(20, 82, 3584)
        self.x0off(); self.gather_offs()
        self.preready(); self.ready()
        G = 64
        a('s_mov_b32 s49, 0'); a(f's_add_u32 s47, s10, 0x{XAOFF + 16384:x}'); a(f's_add_u32 s48, s10, 0x{ZOFF + 4 * 32768:x}'); a('s_mov_b32 s44, 0')
        a.label('L_Wtop')
        if not self.mres: self.resid_poll('s47')
        self.gather_sum('s48', G, False, 's47' if self.mres else None)
        a(f'buffer_store_dword v24, v12, {W1}, s44 offen')
        self.stamp(12, 's49', 28)
        if self.diag: self.stamp(24, 's49', 28, 's52')
        a('s_add_u32 s49, s49, 1'); a('s_add_u32 s47, s47, 2048'); a('s_add_u32 s48, s48, 32768'); a('s_add_u32 s44, s44, 896')
        a('s_cmp_lt_u32 s49, 4'); a('s_cbranch_scc1 L_Wtop')
        a('s_branch L_end')
    def helper(self):
        a = self.a
        hq, ho = self.hpf if isinstance(self.hpf, (list, tuple)) else (48, 48)
        a('s_lshl_b32 s38, s2, 2'); a('s_add_u32 s38, s38, s3')
        self.srd(20, 70, 448 * 8192); self.srd(24, 72, 4096 * 896)
        a('s_lshl_b32 s40, s38, 10'); a(f's_add_u32 s40, s40, {(448 - hq) * 8192}')
        l = self.lab('L_hq'); a(f's_mov_b32 s41, {hq}')
        if hq:
            a.label(l)
            a('s_waitcnt vmcnt(11)'); a(f'buffer_load_dwordx4 v[64:67], v1, {W1}, s40 offen {self.hpol}')
            a('s_add_u32 s40, s40, 8192'); a('s_sub_u32 s41, s41, 1'); a('s_cmp_lg_u32 s41, 0'); a(f's_cbranch_scc1 {l}')
        if ho:
            a('s_mul_i32 s40, s38, 458752'); a(f's_add_u32 s40, s40, {229376 - ho * 1024}'); a('s_add_u32 s42, s40, 229376')
            l = self.lab('L_ho'); a(f's_mov_b32 s41, {ho}')
            a.label(l)
            a('s_waitcnt vmcnt(10)'); a(f'buffer_load_dwordx4 v[64:67], v1, {W2}, s40 offen {self.hpol}')
            a(f'buffer_load_dwordx4 v[64:67], v1, {W2}, s42 offen {self.hpol}')
            a('s_add_u32 s40, s40, 1024'); a('s_add_u32 s42, s42, 1024'); a('s_sub_u32 s41, s41, 1'); a('s_cmp_lg_u32 s41, 0'); a(f's_cbranch_scc1 {l}')
        a('s_waitcnt vmcnt(0)')
        self.stamp(20, None, 28)

if __name__ == '__main__':
    kw = json.loads(sys.argv[2]) if len(sys.argv) > 2 else {}
    open(sys.argv[1], 'w').write(Gen(**kw).build())
```

```python
import sys, struct, json
from asmlib import Asm
NAME = "interleave_layers__mha_block_cached__glu_gated_reglu__decode"

QOFF = 0x0; YOFF = 0x10000; ZOFF = 0x50000; XAOFF = 0x90000; XBOFF = 0x98000; HOFF = 0x9c000; COFF = 0x9a000 - 0x2000 + 0x8000; POFF = 0x800000; DOFF = 0x400000
PB = 32768; PIB = 0x100000; PP2 = 0x80000; MLO = 16384 + 6144
OOB = 0x40000000
NC = 14; NW = 56
CS = 0.09016844005556021
def f2u(x): return struct.unpack('<I', struct.pack('<f', x))[0]

K_SRD = 's[8:11]'; V_SRD = 's[12:15]'; WS = 's[16:19]'; W1 = 's[20:23]'; W2 = 's[24:27]'; W3 = 's[28:31]'
DBG = 's[84:85]'
NCHAIN = 32
K4 = 's[88:91]'; V4 = 's[92:95]'
FULL = 'row_mask:0xf bank_mask:0xf'

def vr(b, n=1): return f'v{b}' if n == 1 else f'v[{b}:{b+n-1}]'
def ar(b, n=1): return f'a{b}' if n == 1 else f'a[{b}:{b+n-1}]'
def rr(b, n=1): return vr(b, n) if b < 256 else ar(b - 256, n)

class Gen:
    def __init__(self, diag=False, PF=65, depth=8, hpf=False, hpol='nt', cpf=False, rows=(16, 10, 7), hq=None, fake=0, CL=12, PF2=None, reord=1, lightO=0, split=True, tlb=0, fx=2, thr=None, wtlb=0, probe=None, kpol='nt', vpol='nt', par=None, nQ=48, nE=60, early=False, sub=None, qE=None, ring4=0, up4=False, ho=None, pos=None, home=0, hforce=None, lv=None, lvx=None, th=None, cps=None, rs=None, gs=14, kvonly=True, ed=False, mid=None, fast=((2, (73, 74, 75)), (3, (76, 77)), (4, (78, 79))), boost=None, fld=(2, 2), nQ1=None, cpon=None, odd=None, slow=None, xsl=0, loc=1, spf=None, mres=1, dual=1, hs=4, ean=1, SG=24, pw=12, flex=None, KF=52, TK=41, qmask=0x96, fw=(), fb=None, bst=None, fine=(), cla=0, arl=None, wsw=0, noarm=0, PFA=None, xpf=None, oarm=0, xpol='', fx2=None, p0=8, nox=0, nocl=0, mp=0, fin=0, cyc=0, mz=0, lst=0, w2=0, mpr='FW', hp=None, rm=None, vpf=None, eq=None, hl=None, wb='', la=None, nt='', ja=None, lp=None, h16=0, r4=0, ro=0, tp=None,
                 p2l=((('u', 2), (73, 74, 75)), (('u', 3), (76, 77)), (('u', 4), (78, 79)), (('u', 9), (0,)), (('x', 0), (1,)), (('i', 0), (2,)), (('i', 2), (3,)), (('i', 4), (4,)), (('m', 0), (5,))),
                 p1l={'a': (6, 7), '1': (8, 9), '2': (10,), '3': (11, 12), '4': (13,), 'm': (14, 15)}):
        self.tp = tp or []; self.ro = ro; self.r4 = r4; self.h16 = h16; self.lp = lp or {}; self.ja = ja; self.N = lambda c: ' nt' if c in nt else ''; self.la = la; self.wb = wb; self.hl = hl; self.eq = eq; self.vpf = vpf; self.rm = rm; self.hp = hp; self.mpr = mpr; self.w2 = w2; self.lst = lst; self.mz = mz; self.cyc = cyc; self.ck = 0; self.fin = fin; self.mp = mp; self.nox = nox; self.nocl = nocl; self.fine = list(fine); self.cla = cla; self.arl = arl; self.wsw = wsw; self.noarm = noarm; self.PFA = PFA; self.p0 = p0; self.fx2 = fx2; self.xpf = xpf; self.xpol = xpol; self.oarm = oarm; self.fb = fb; self.bst = bst; self.fw = fw; self.flex = flex; self.KF = KF; self.TK = TK; self.qmask = qmask
        if flex:
            rest = list(range(48, 80)); rest[KF - 40:KF - 40] = range(32, 40)
            self.ORD = list(range(24, 32)) + list(range(40, 48)) + list(range(24)) + rest
            assert sum(n for n, r in flex) == NW and sum(n * r for n, r in flex) == 512 and nQ >= KF + 8
        self.SG = SG; self.pw = pw; self.p2l = p2l; self.p1l = p1l
        self.dual = dual; self.hs = hs; self.ean = ean
        self.loc = loc; self.spf = spf or []; self.mres = mres
        self.xsl = xsl
        self.slow = slow
        self.odd = odd
        self.cpon = cpon
        self.nQ1 = nQ1 or nQ
        self.fast = fast; self.boost = boost; self.fld = fld; self.xst = 0
        if boost: lv = [depth, boost[1]]
        self.kvonly = kvonly; self.ed = ed; self.mid = mid
        self.lv = lv; self.lvx = lvx; self.th = th; self.cps = cps or []; self.rs = rs; self.dyn = False; self.gs = gs
        self.hforce = hforce
        self.home = home
        self.pos = pos
        self.ring4 = ring4; self.up4 = up4; self.ho = ho
        self.sub = sub; self.qE = qE
        self.par = par; self.nQ = nQ; self.nE = nE; self.early = early
        self.pmul = 10 if not probe or len(probe) < 3 else probe[2]; probe = probe and probe[:2]; self.probe = probe; self.role = 'X'; self.kpol = kpol; self.vpol = vpol
        self.a = Asm(); self.diag = diag; self.PF = PF; self.depth = depth; self.hpf = hpf; self.hpol = hpol; self.cpf = cpf; self.rows = rows; self.hq = hq; self.fake = fake; self.CL = CL; self.PF2 = PF2; self.reord = reord; self.lightO = lightO; self.split = split; self.tlb = tlb; self.fx = fx; self.thr = thr; self.wtlb = wtlb
        self.uid = 0
    def lab(self, p='L'):
        self.uid += 1; return f'{p}_{self.uid}'

    def bits(self, dst, lane, tmp, mp):
        a = self.a; first = True
        for lb, n, ab in mp:
            if first:
                a(f'v_bfe_u32 {dst}, {lane}, {lb}, {n}')
                if ab: a(f'v_lshlrev_b32 {dst}, {ab}, {dst}')
                first = False
            else:
                a(f'v_bfe_u32 {tmp}, {lane}, {lb}, {n}')
                a(f'v_lshl_add_u32 {dst}, {tmp}, {ab}, {dst}')
    def srd(self, base, lo, size):
        a = self.a
        a(f's_mov_b64 s[{base}:{base+1}], s[{lo}:{lo+1}]')
        a(f's_mov_b32 s{base+2}, 0x{size:x}'); a(f's_mov_b32 s{base+3}, 0x20000')
    def timeout(self):
        self.a('s_sub_u32 s52, s52, 1'); self.a('s_cbranch_scc1 L_bail')
        if self.xsl and self.role != 'S': self.a(f's_sleep {self.xsl}')
    FLAG = 4096; CNTA = 16; CNTB = 144
    def wait_counter(self, va, vd, vt, off, n, pre=False):
        a = self.a; l = self.lab('L_cnt'); c = self.lab('L_cntc')
        if pre: a(f's_branch {c}')
        else: a(f'v_mov_b32 v{va}, 0')
        a.label(l)
        self.timeout()
        a(f'global_load_dword v{vd}, v{va}, {DBG} offset:{off} sc1'); a('s_waitcnt vmcnt(0)')
        a.label(c)
        a(f'v_and_b32 v{vt}, {"0xffff" if self.nocl else "0xff"}, v{vd}'); a(f'v_cmp_gt_u32 vcc, {n}, v{vt}'); a(f's_cbranch_vccnz {l}')
    def claim(self, va, vd, vr_):
        a = self.a; l = self.lab('L_cl')
        if self.nocl: a(f'v_mov_b32 v{va}, 0'); a('s_waitcnt lgkmcnt(0)'); return
        a('s_lshl_b32 s38, 1, s101'); a(f'v_mov_b32 v{va}, s100'); a(f'v_mov_b32 v{vd}, s38')
        a('s_or_b32 s38, s3, s7')
        a('s_waitcnt lgkmcnt(0)')
        a(f's_cbranch_scc1 {l}')
        a('s_mov_b64 exec, 1')
        a(f'global_atomic_or v{vr_}, v{va}, v{vd}, {DBG} sc0 sc1')
        a('s_mov_b64 exec, -1')
        a.label(l)
    def confirm(self, vr_, t):
        a = self.a; l = self.lab('L_rs'); w = self.lab('L_rw')
        if self.nocl: return
        a(f'v_mov_b32 v{t}, 0')
        a('s_cmp_lg_u32 s3, 0'); a(f's_cbranch_scc1 {l}')
        a('s_movk_i32 s38, 0x100'); a('s_cmp_lg_u32 s7, 0'); a(f's_cbranch_scc1 {w}')
        a(f'v_readfirstlane_b32 s39, v{vr_}'); a('s_bitcmp1_b32 s39, s101'); a(f's_cbranch_scc0 {w}')
        a('s_call_b64 s[96:97], L_lost')
        a.label(w)
        a(f'v_mov_b32 v{t+1}, s38'); a(f'ds_write_b32 v{t}, v{t+1} offset:{self.FLAG}'); a('s_waitcnt lgkmcnt(0)')
        a.label(l)
        a('s_barrier')
        a(f'ds_read_b32 v{t+1}, v{t} offset:{self.FLAG}'); a('s_waitcnt lgkmcnt(0)')
        a(f'v_readfirstlane_b32 s38, v{t+1}'); a('s_cmp_lg_u32 s38, 0x100'); a('s_cbranch_scc1 L_redo')
    def signal(self, va, vd, off, val):
        a = self.a; l = self.lab('L_sg')
        a('s_cmp_lg_u32 s3, 0'); a(f's_cbranch_scc1 {l}')
        a('s_mov_b64 exec, 1'); a(f'v_mov_b32 v{va}, 0'); a(f'v_mov_b32 v{vd}, {val}')
        a(f'global_atomic_add v{va}, v{vd}, {DBG} offset:{off} sc1')
        a('s_mov_b64 exec, -1')
        a.label(l)
    def rare_paths(self):
        a = self.a
        a.label('L_odd')
        a('s_waitcnt lgkmcnt(0)'); a('v_mov_b32 v1, 0')
        a('s_cmp_lg_u32 s3, 0'); a('s_cbranch_scc1 L_odd2')
        a('s_and_b32 s38, s36, 3'); a('s_lshl_b32 s38, s38, 6'); a('s_lshr_b32 s39, s36, 2'); a('s_lshl3_add_u32 s38, s39, s38')
        a('v_mov_b32 v2, s38'); a('s_lshl_b32 s39, s37, 3'); a('s_movk_i32 s41, 24')
        a.label('L_odd1')
        a(f'global_load_dword v3, v2, {DBG} sc1'); a('s_waitcnt vmcnt(0)')
        a('v_readfirstlane_b32 s38, v3'); a('s_lshr_b32 s38, s38, s39'); a('s_and_b32 s38, s38, 0xff'); a('s_bcnt1_i32_b32 s40, s38')
        a('s_cmp_ge_u32 s40, 7'); a('s_cselect_b32 s41, 0, s41'); a('s_sub_u32 s41, s41, 1'); a('s_cbranch_scc0 L_odd1')
        a('s_ff0_i32_b32 s38, s38'); a('v_mov_b32 v2, s38'); a(f'ds_write_b32 v1, v2 offset:{self.FLAG + 4}'); a('s_waitcnt lgkmcnt(0)')
        a.label('L_odd2')
        a('s_barrier')
        a(f'ds_read_b32 v2, v1 offset:{self.FLAG + 4}'); a('s_waitcnt lgkmcnt(0)')
        a('v_readfirstlane_b32 s38, v2'); a('s_mov_b32 s6, 1'); a('s_branch L_even')
        a.label('L_lost')
        a('s_waitcnt vmcnt(0)')
        self.bits('v62', 'v0', 'v63', [(0, 2, 6), (2, 1, 3)])
        a.label('L_lost1')
        a(f'global_load_dword v60, v62, {DBG} sc1'); a('s_waitcnt vmcnt(0)')
        a('v_cmp_ne_u32 vcc, -1, v60'); a('s_movk_i32 s38, 0x300'); a('s_cbranch_vccz L_lost2')
        a('s_getreg_b32 s39, hwreg(HW_REG_XCC_ID, 0, 3)'); a('s_ff1_i32_b32 s38, vcc_lo')
        a('s_bitcmp1_b32 vcc_lo, s39'); a('s_cselect_b32 s38, s39, s38')
        a('s_nop 3'); a('v_readlane_b32 s39, v60, s38'); a('v_readlane_b32 s40, v62, s38'); a('s_ff0_i32_b32 s39, s39')
        a('s_lshl_b32 s41, 1, s39'); a('v_mov_b32 v61, s41'); a('v_mov_b32 v63, s40')
        a('s_mov_b64 exec, 1'); a(f'global_atomic_or v60, v63, v61, {DBG} sc0 sc1'); a('s_mov_b64 exec, -1'); a('s_waitcnt vmcnt(0)')
        a('v_readfirstlane_b32 s40, v60'); a('s_bitcmp1_b32 s40, s39'); a('s_cbranch_scc1 L_lost1')
        a('s_lshl_b32 s38, s38, 5'); a('s_add_u32 s38, s38, s39'); a('s_bitset1_b32 s38, 9')
        a.label('L_lost2')
        a('s_setpc_b64 s[96:97]')
        a.label('L_redo')
        a('s_bitcmp1_b32 s38, 8'); a('s_cbranch_scc1 L_bail')
        a('s_waitcnt vmcnt(0) lgkmcnt(0)'); a('s_barrier')
        a('s_load_dwordx16 s[64:79], s[0:1], 0')
        a('s_load_dwordx8 s[80:87], s[0:1], 64')
        a('s_bfe_u32 s36, s38, 0x30005'); a('s_and_b32 s2, s38, 31'); a('s_mov_b32 s7, 1')
        a('s_branch L_role')
    def stamp(self, idx, sidx=None, t0=20, src='s62'):
        if self.probe and not self.diag:
            role, want = self.probe
            if role != self.role or (sidx is None and idx != want) or (sidx and not (0 <= want - idx < 9)): return
            a = self.a
            a('s_waitcnt lgkmcnt(0)'); a('s_memrealtime s[62:63]'); a('s_waitcnt lgkmcnt(0)')
            if sidx: a(f's_cmp_eq_u32 {sidx}, {want - idx}'); a('s_cselect_b32 s61, s62, s61')
            else: a('s_mov_b32 s61, s62')
            return
        if not self.diag: return
        a = self.a
        a('s_waitcnt lgkmcnt(0)'); a('s_memrealtime s[62:63]'); a('s_waitcnt lgkmcnt(0)')
        a(f'v_mov_b32 v{t0}, {src}')
        if sidx: a(f's_lshl_b32 s60, {sidx}, 2'); a('s_add_u32 s60, s60, s61')
        else: a('s_mov_b32 s60, s61')
        a(f'v_mov_b32 v{t0+1}, 0')
        a('s_mov_b64 exec, 1')
        a(f'buffer_store_dword v{t0}, v{t0+1}, {WS}, s60 offen offset:{idx*4}' + self.N('d'))
        a('s_mov_b64 exec, -1')
    def diagbase(self):
        a = self.a
        a('s_and_b32 s60, s61, 31'); a('s_lshr_b32 s61, s61, 5'); a('s_lshl3_add_u32 s61, s60, s61')
        a('s_lshl2_add_u32 s61, s61, s3'); a('s_lshl_b32 s61, s61, 8'); a(f's_add_u32 s61, s61, 0x{DOFF:x}')
    def maxtree(self, regs, t):
        a = self.a; regs = list(regs)
        a(f'v_max3_u32 v{t}, v{regs[0]}, v{regs[1]}, v{regs[2 if len(regs) > 2 else 1]}')
        regs = regs[3:]
        while regs:
            x = regs[:2]; regs = regs[2:]
            a(f'v_max3_u32 v{t}, v{t}, v{x[0]}, v{x[-1]}')
        a(f'v_cmp_eq_u32 vcc, -1, v{t}')

    def build(self):
        a = self.a
        if self.diag: a('s_memrealtime s[34:35]')
        a('s_cmp_ge_u32 s2, 256'); a('s_cbranch_scc1 L_end2')
        if self.probe: a('s_memrealtime s[62:63]'); a('s_waitcnt lgkmcnt(0)'); a('s_mov_b32 s60, s62'); a('s_mov_b32 s61, s62')
        a('s_load_dwordx16 s[64:79], s[0:1], 0')
        a('s_load_dwordx8 s[80:87], s[0:1], 64')
        if self.nocl:
            if self.fake: a(f's_mul_i32 s2, s2, {2 * self.fake + 1}'); a(f's_add_u32 s2, s2, {self.fake // 2 * 8}'); a('s_and_b32 s2, s2, 255'); self.fake = 0
            a('s_and_b32 s36, s2, 7'); a('s_lshr_b32 s38, s2, 5'); a('s_bfe_u32 s37, s2, 0x20003')
            if self.nocl > 1: a(f's_add_u32 s38, s38, {9 - self.nocl}')
            if self.diag: a('s_getreg_b32 s100, hwreg(HW_REG_HW_ID)')
        else:
            a('s_getreg_b32 s36, hwreg(HW_REG_XCC_ID, 0, 3)')
            a('s_getreg_b32 s38, hwreg(HW_REG_HW_ID, 8, 4)'); a('s_getreg_b32 s37, hwreg(HW_REG_HW_ID, 13, 2)')
        a('v_lshrrev_b32 v1, 6, v0'); a('v_and_b32 v0, 63, v0')
        a('v_readfirstlane_b32 s3, v1')
        a('s_mov_b32 s52, 400000'); a('s_mov_b64 s[6:7], 0')
        if self.fake == 1: a('s_and_b32 s38, s38, 6')
        if self.fake == 2: a('s_and_b32 s36, s36, 5')
        if self.fake == 3: a('s_and_b32 s36, s2, 7'); a('s_lshr_b32 s38, s2, 5'); a('s_mov_b32 s37, 0')
        if self.fake == 4: a('s_mov_b32 s36, 0'); a('s_mov_b32 s38, 0'); a('s_mov_b32 s37, 0')
        if self.fake == 5:
            a('s_bitcmp0_b32 s37, 0'); a('s_cselect_b32 s39, 8, 0'); a('s_cmp_eq_u32 s38, 3'); a('s_cselect_b32 s38, s39, s38')
        if not self.nocl: a('s_bitcmp0_b32 s37, 0'); a('s_cselect_b32 s39, 8, 0'); a('s_cmp_eq_u32 s38, s39'); a('s_cbranch_scc1 L_odd')
        a.label('L_even')
        a('s_and_b32 s38, s38, 7'); a('s_lshl3_add_u32 s2, s37, s38')
        if self.fake == 6: a('s_cmp_lg_u32 s38, 7'); a('s_cselect_b32 s39, 5, 0'); a('s_xor_b32 s36, s36, s39')
        if self.fake == 7: a('s_cmp_eq_u32 s2, 10'); a('s_cselect_b32 s39, 1, 0'); a('s_xor_b32 s36, s36, s39')
        if self.fake == 8: a('s_cmp_eq_u32 s2, 7'); a('s_cselect_b32 s39, 4, 0'); a('s_xor_b32 s36, s36, s39')
        a.label('L_role')
        if not self.nocl: a('s_mov_b32 s101, s2'); a('s_and_b32 s100, s36, 3'); a('s_lshl_b32 s100, s100, 6'); a('s_lshr_b32 s38, s36, 2'); a('s_lshl3_add_u32 s100, s38, s100')
        if self.cpf:
            a('s_getpc_b64 s[38:39]'); a.label('L_pc')
            a('s_lshl_b32 s37, s2, 2'); a('s_add_u32 s37, s37, s3'); a('s_lshl_b32 s37, s37, 10')
            a('s_cmp_ge_u32 s37, L_end-L_pc'); a('s_cbranch_scc1 L_nopf')
            a('v_lshl_add_u32 v2, v0, 4, s37'); a('v_min_u32 v2, L_end-L_pc-16, v2')
            a('global_load_dwordx4 v[60:63], v2, s[38:39]')
            a.label('L_nopf')
        a('s_getreg_b32 s38, hwreg(HW_REG_XCC_ID, 0, 4)'); a('s_cmp_eq_u32 s38, s36'); a(f's_cselect_b32 s5, 1, {"0x10001" if self.nocl else "0x101"}')
        a('s_lshr_b32 s38, s2, 4'); a('s_lshl1_add_u32 s36, s36, s38'); a('s_and_b32 s37, s2, 7'); a('s_bfe_u32 s38, s2, 0x10003')
        a('s_cmp_eq_u32 s37, 7'); a('s_cbranch_scc1 L_chain')
        self.role = 'S'; self.stream()
        a.label('L_chain'); self.role = 'C'
        self.chain_common()
        self.role = 'W'; self.roleW(); self.role = 'O'; self.roleOQ(); self.role = 'F'; self.roleF()
        if not self.nocl: self.rare_paths()
        a.label('L_bail')
        a('s_mov_b64 exec, 1')
        a('v_mov_b32 v0, 32'); a('v_mov_b32 v1, 1')
        a(f'global_atomic_add v0, v1, {DBG} sc1')
        a('v_mov_b32 v0, 36'); a('v_mov_b32 v1, s2')
        a(f'global_store_dword v0, v1, {DBG} sc1')
        a.label('L_end')
        if self.probe:
            a('s_cmp_eq_u32 s60, s61'); a('s_cbranch_scc1 L_end2')
            a('s_sub_u32 s61, s61, s60'); a(f's_mul_i32 s61, s61, {self.pmul}'); a('s_add_u32 s61, s61, 7000'); a('s_add_u32 s61, s61, s60')
            a.label('L_pspin')
            a('s_memrealtime s[62:63]'); a('s_waitcnt lgkmcnt(0)'); a('s_sub_u32 s62, s62, s61'); a('s_cmp_lt_i32 s62, 0'); a('s_cbranch_scc1 L_pspin')
        a.label('L_end2')
        body = a.finish()
        hdr = open('cdna_kernels/' + NAME + '.s.ref').read().split('\n')
        top = [l for l in hdr if l.startswith(';') and '@launch' not in l]
        s = '\n'.join(top) + '\n; @launch grid=(256,1,1) block=(256,1,1) lds=163840\n'
        s += f'.amdgcn_target "amdgcn-amd-amdhsa--gfx950"\n.text\n.globl {NAME}_kernel\n.p2align 8\n.type {NAME}_kernel,@function\n{NAME}_kernel:\n'
        s += body
        s += f'''s_endpgm
.section .rodata,"a"
.p2align 6
.amdhsa_kernel {NAME}_kernel
  .amdhsa_next_free_vgpr 512
  .amdhsa_next_free_sgpr 102
  .amdhsa_accum_offset 256
  .amdhsa_group_segment_fixed_size 0
  .amdhsa_kernarg_size 96
  .amdhsa_user_sgpr_count 2
  .amdhsa_user_sgpr_kernarg_segment_ptr 1
  .amdhsa_system_sgpr_workgroup_id_x 1
.end_amdhsa_kernel
'''
        return s

    CA = [0, 4096]; Q1L = 8192; MA = [10240, 10272]; CO = [10304, 10308]; MA1 = [10240, 10336]; ST = 10496; TB = 11520; WLDS = 37 * 1024
    vK, vV, vDs, vL16, vQo, vIQ, vIP = 1, 2, 3, 4, 5, 6, 7
    vM = 8; vT = 12; vBias = 15; vMC = 16; vL = 17; vQ = 24; vAcc = 32; vH = 48
    def kreg(self, s, u):
        return 64 + 96 * s + 16 * u if u < 6 else 256 + 128 * s + 16 * (u - 6)
    def vreg0(self, s, P, t):
        return 256 + 128 * s + 64 + 8 * (4 * P + t)
    def tile(self, n):
        if n < 40:
            u, t = n // 4, n % 4
            return 0, u // 2, t * 128 + (u & 1) * 512
        m = n - 40; g = m // 8; k = m % 8
        if g < 4: P, t = k // 4, k % 4
        else: t, P = k // 2, k % 2
        return 1, g, t * 128 + P * 1024
    def ldsslot(self, s, n):
        if n <= 72: return (n - 56) + 17 * s
        return 34 + (n - 73)
    ORD = list(range(24, 40)) + list(range(24)) + list(range(40, 80))
    def load(self, s, p, wait=True, to=None):
        a = self.a; n = self.ORD[p]
        kv, g, imm = self.tile(n)
        if p == 0 and not self.prologue:
            for j in range(4 if self.flex or self.fx2 else 5): a(f's_add_u32 s{40+j}, s{40+j}, 0x2000000')
            if self.fx2: a('s_mov_b32 s44, s24'); a('s_lshl_b32 s90, s25, 9'); a('s_add_u32 s90, s90, s44'); a('s_min_u32 s90, s90, s10'); a('s_mov_b32 s94, s90')
            elif not self.flex: a('s_add_u32 s90, s90, 0x2000000'); a('s_min_u32 s90, s90, s10'); a('s_mov_b32 s94, s90')
        va = f'v{self.vV if kv else self.vK}'; srd = V_SRD if kv else K_SRD
        if g == 4: srd = V4 if kv else K4
        if g == 4 and self.rm and self.rm[0] != 12:
            t = 'v16' if self.prologue else 'v0'
            if n in (32, 72):
                a(f'v_bfe_u32 {t}, v{self.vL16}, 7, 1'); a(f'v_mul_u32_u24 {t}, {(1 << self.rm[0]) - 4096}, {t}'); a(f'v_sub_u32 {t}, {va}, {t}')
            va = t
        dst = None
        if n < 40: dst = self.kreg(s, n // 4) + 4 * (n % 4)
        elif n < 56:
            m = n - 40; dst = self.vreg0(s, (m % 8) // 4, m % 4) + 4 * (m // 8)
        elif n >= 76: dst = self.kreg(1 - s, 1) + 4 * (n - 76)
        if to is not None: dst = to
        if dst is None:
            a(f's_add_u32 m0, s45, {self.ldsslot(s, n) * 1024 - imm}')
        depth = self.lv[-1] if self.dyn else self.depth
        if wait is not True and wait: depth = wait
        def allow(d):
            pos = [i for i, x in enumerate(reversed(self.vmq)) if x[0] != 'cp' and not (self.flex and x[0] in (0, 1) and self.KF <= x[1] < self.KF + 8 and (x[1] - self.KF) % 8 not in self.fw)]
            return pos[d - 1] if len(pos) >= d else None
        if wait is True and self.dyn:
            lows = [allow(d) for d in self.lv[:-1] if allow(d) is not None]
            labs = [self.lab('L_lv') for _ in lows]
            for i in reversed(range(len(lows))):
                a(f's_cmp_gt_u32 s59, {i}'); a(f's_cbranch_scc1 {labs[i]}')
            for i, k in enumerate(lows):
                a(f's_waitcnt vmcnt({k})'); a.label(labs[i])
        if wait and allow(depth) is not None:
            k = allow(depth)
            a(f's_waitcnt vmcnt({k})'); self.vmq = self.vmq[-k:]
        if dst is None:
            a(f'buffer_load_dwordx4 {va}, {srd}, s{40+g} offen offset:{imm} {self.vpol if kv else self.kpol} lds')
        else:
            a(f'buffer_load_dwordx4 {rr(dst, 4)}, {va}, {srd}, s{40+g} offen offset:{imm} {self.vpol if kv else self.kpol}')
        self.vmq.append((s, p))
    def need_vm(self, tag):
        if tag == ('cp', 'q1') and self.eq and tag not in self.vmq:
            t = [x for x in self.vmq if x[0] != 'cp' and x[1] == self.PF]
            if t:
                l = self.lab('L_eq'); self.a('s_cmp_lg_u32 s58, 0'); self.a(f's_cbranch_scc1 {l}')
                self.a(f's_waitcnt vmcnt({len(self.vmq) - 1 - self.vmq.index(t[0])})'); self.a.label(l)
            return
        if tag in self.vmq:
            k = len(self.vmq) - 1 - self.vmq.index(tag)
            if self.xst:
                l = self.lab('L_xs'); self.a('s_cmp_lg_u32 s58, 0'); self.a(f's_cbranch_scc1 {l}')
                self.a(f's_waitcnt vmcnt({k})'); self.a.label(l); self.a(f's_waitcnt vmcnt({k + self.xst})')
            else: self.a(f's_waitcnt vmcnt({k})')
            self.vmq = self.vmq[len(self.vmq) - k:] if k else []
    def ds(self, text, tag=None):
        self.a(text); self.lq.append(tag)
    def need_lds(self, tag):
        if tag in self.lq:
            i = len(self.lq) - 1 - self.lq[::-1].index(tag)
            k = len(self.lq) - 1 - i
            k = min(k, 15)
            self.a(f's_waitcnt lgkmcnt({k})'); self.lq = self.lq[len(self.lq) - k:] if k else []
    def qload(self):
        a = self.a
        a(f'buffer_load_dwordx4 {vr(self.vQ, 4)}, v{self.vQo}, {WS}, s46 offen sc1')
        a(f'buffer_load_dwordx4 {vr(self.vQ + 4, 4)}, v{self.vQo}, {WS}, s46 offen offset:256 sc1')
    def wpf(self, n):
        a = self.a
        for nn, mat, k in self.spf:
            if nn != n: continue
            a('s_lshl2_add_u32 s32, s37, s3')
            for lo, size, rs, lpr, hs, rows in {'q': [(70, 448 * 8192, 8192, 4, 512, 448)], 'o': [(72, 4096 * 896, 128, 1, 229376, 1792)],
                          'g': [(76, 448 * 3584, 3584, 2, 256, 448), (78, 448 * 3584, 3584, 2, 256, 448)], 'd': [(80, 1792 * 896, 128, 1, 114688, 896)]}[mat]:
                assert 56 * k <= rows and k * lpr <= 64
                self.srd(28, lo, size)
                a(f's_mul_i32 s38, s36, {hs}'); a(f's_mul_i32 s33, s32, {k * rs}'); a('s_add_u32 s38, s38, s33'); a(f's_add_u32 s38, s38, {(rows - 56 * k) * rs}')
                if mat == 'g': a('s_cmp_lt_u32 s36, 14'); a(f's_cselect_b32 s38, s38, 0x{OOB:x}')
                if lpr == 1: a('v_lshlrev_b32 v18, 7, v0')
                else:
                    a(f'v_lshrrev_b32 v18, {lpr // 2}, v0'); a(f'v_mul_u32_u24 v18, {rs}, v18'); a(f'v_and_b32 v19, {lpr - 1}, v0'); a('v_lshl_add_u32 v18, v19, 7, v18')
                L = k * lpr
                a(f's_mov_b32 exec_lo, 0x{(1 << min(L, 32)) - 1:x}'); a(f's_mov_b32 exec_hi, 0x{(1 << max(L - 32, 0)) - 1:x}')
                a(f'buffer_load_dword v17, v18, s[28:31], s38 offen')
                a('s_mov_b64 exec, -1')
    def zero_acc(self):
        return [f'v_mov_b64 {vr(self.vAcc + 2 * i, 2)}, 0' for i in range(8)]

    def stream(self):
        a = self.a
        self.vmq = []; self.lq = []; self.prologue = True; self.later = []
        a('s_mul_i32 s38, s38, 7'); a('s_add_u32 s37, s37, s38')
        if self.diag: a('s_mul_i32 s61, s36, 14'); a('s_add_u32 s61, s61, s37'); a('s_add_u32 s61, s61, 32'); self.diagbase()
        a('s_lshl_b32 s39, s37, 2'); a('s_add_u32 s39, s39, s3'); a('s_lshl_b32 s38, s39, 13')
        a('s_lshl_b32 s44, s36, 21')
        LB = self.rm[0] if self.rm else 12
        def place(g):
            lb, wb, rot = self.rm; sb = [b for b in range(12, 18) if b not in (lb, wb, wb + 1)]; d = f's{40 + g}'
            a(f's_add_u32 s38, s37, {14 * g}'); a(f's_lshr_b32 {d}, s38, 3'); a(f's_lshl_b32 {d}, {d}, 18'); a(f's_add_u32 {d}, {d}, s44')
            if rot: a(f's_mul_i32 s33, s36, {rot}'); a('s_add_u32 s38, s38, s33')
            if sb[2] == sb[0] + 2: a('s_and_b32 s38, s38, 7'); a(f's_lshl_b32 s38, s38, {sb[0]}'); a(f's_add_u32 {d}, {d}, s38')
            else:
                for i, b in enumerate(sb): a(f's_bfe_u32 s33, s38, 0x{0x10000 + i:x}'); a(f's_lshl_b32 s33, s33, {b}'); a(f's_add_u32 {d}, {d}, s33')
            a(f's_lshl_b32 s38, s3, {wb}'); a(f's_add_u32 {d}, {d}, s38')
        def turn(g):
            d = f's{40 + g}'
            a(f's_add_u32 {d}, s33, {14 * g}'); a(f's_sub_u32 s32, {d}, 56'); a(f's_min_u32 {d}, {d}, s32'); a(f's_lshl_b32 {d}, {d}, 15'); a(f's_add_u32 {d}, {d}, s38')
        if self.rm: assert not self.hp; place(3)
        elif self.ro:
            assert self.ro <= 3
            a(f's_mul_i32 s33, s36, {self.ro}'); a('s_add_u32 s33, s33, s37'); a('s_lshl_b32 s38, s3, 13'); a('s_add_u32 s38, s38, s44')
            for g in (3, 0, 1, 2): turn(g)
        else: a('s_add_u32 s40, s44, s38'); a(f's_add_u32 s43, s40, {3 * NW * 8192}')
        self.bits(f'v{self.vK}', 'v0', 'v18', [(0, 1, 4), (4, 2, 5), (2, 1, 10), (1, 1, 11), (3, 1, LB)])
        if not self.cla: self.claim(22, 23, 24)
        else: a('s_waitcnt lgkmcnt(0)')
        self.wpf(-1)
        self.srd(8, 66, 0x8000000)
        if self.diag: a('s_memrealtime s[98:99]')
        for p in range(self.p0): self.load(0, p, wait=False)
        if self.tlb:
            a('s_lshl_b32 s38, s3, 25'); a('s_add_u32 s38, s38, s44')
            a('s_load_dword s96, s[66:67], s38'); a('s_load_dword s97, s[68:69], s38')
            if self.tlb > 1: a('s_add_u32 s38, s38, 0x1fff00'); a('s_load_dword s96, s[66:67], s38'); a('s_load_dword s97, s[68:69], s38')
        if self.cla: self.claim(22, 23, 24); assert self.CL >= 15
        self.wpf(7)
        if self.h16:
            assert self.ja and self.mz and not self.home and not self.wsw and self.h16 == 8 and not self.mp and self.ja[0] and not self.nocl
            a('s_lshl_b32 s47, s36, 15'); a('s_lshl_b32 s38, s37, 9'); a('s_add_u32 s47, s47, s38'); a(f's_add_u32 s47, s47, 0x{POFF:x}')
            a(f's_mul_i32 s48, s37, {self.h16 - 512}'); a('s_add_u32 s48, s48, 7168')
        else:
            a(f's_lshl_b32 s47, s36, 15'); a('s_lshl_b32 s38, s37, 10'); a('s_and_b32 s48, s38, 0x2000'); a('s_add_u32 s38, s38, s48')
            a('s_add_u32 s47, s47, s38'); a(f's_add_u32 s47, s47, 0x{POFF:x}')
            a('s_lshl_b32 s48, s37, 7'); a('s_sub_u32 s48, s48, s38'); a(f's_add_u32 s48, s48, {MLO}')
        a(f'v_lshlrev_b32 v{self.vL16}, 4, v0')
        if self.rm:
            for j in range(3): place(j)
        elif not self.ro:
            for j in range(1, 3): a(f's_add_u32 s{40+j}, s40, {j * NW * 8192}')
        self.srd(88, 66, 0); self.srd(92, 68, 0)
        if self.flex:
            a(f's_add_u32 s21, s44, {4 * NW * 8192}'); a('s_lshl_b32 s20, s36, 7'); a(f's_add_u32 s20, s20, 0x{HOFF:x}')
        else:
            if self.fx2:
                assert sum(n for n, r in self.fx2) == NW and sum(n * r for n, r in self.fx2) == 512 and self.PFA
                a(f's_add_u32 s21, s44, {4 * NW * 8192 + 0x2000000}'); a('s_lshl_b32 s20, s36, 7'); a(f's_add_u32 s20, s20, 0x{HOFF:x}')
            a('s_mul_i32 s38, s39, 9'); a('s_min_u32 s51, s37, 8'); a('s_add_u32 s38, s38, s51')
            a('s_cmp_lt_u32 s37, 8'); a('s_cselect_b32 s22, s3, 0'); a('s_cmp_eq_u32 s22, 3'); a('s_cselect_b32 s22, 10, 9'); a('s_mov_b32 s23, s22')
            a('s_lshl_b32 s38, s38, 9')
            a(f's_add_u32 s44, s44, {4 * NW * 8192}'); a('s_add_u32 s44, s44, s38')
            a('s_lshl_b32 s38, s22, 9'); a('s_add_u32 s90, s44, s38'); a('s_mov_b32 s94, s90')
        self.srd(12, 68, 0x8000000); self.srd(16, 86, 0x20000000)
        if self.wsw:
            a('s_lshl_b32 s38, s3, 20'); a('s_add_u32 s38, s38, s47'); a(f'buffer_load_dword v17, off, {WS}, s38 sc1')
        self.stamp(0); self.stamp(32, src='s34'); self.stamp(33, src='s98')
        if self.nocl: self.stamp(62, src='s100')
        self.bits(f'v{self.vV}', 'v0', 'v18', [(0, 3, 4), (5, 1, 9), (4, 1, 11), (3, 1, LB)])
        a(f's_mul_i32 s45, s3, {self.WLDS}'); a(f's_add_u32 s45, s45, {self.TB}')
        a(f'v_add_u32 v{self.vDs}, s45, v{self.vL16}')
        self.bits(f'v{self.vQo}', 'v0', 'v18', [(0, 2, 4), (4, 2, 6)])
        a('v_and_b32 v18, 2, v0'); a('v_cmp_eq_u32 vcc, 2, v18')
        a(f'v_mov_b32 v{self.vIQ}, 0x44444444'); a('v_mov_b32 v18, 0xeeeeeeee'); a(f'v_cndmask_b32 v{self.vIQ}, v{self.vIQ}, v18, vcc')
        a('v_and_b32 v18, 3, v0'); a('s_mov_b32 s38, 0x55555555'); a(f'v_mul_lo_u32 v{self.vIP}, v18, s38')
        a('v_and_b32 v18, 4, v0'); a('v_cmp_eq_u32 vcc, 4, v18')
        a('v_mov_b32 v18, 0xffff'); a('v_mov_b32 v19, 0xffff0000')
        M = self.vM
        a(f'v_cndmask_b32 v{M}, v18, 0, vcc'); a(f'v_cndmask_b32 v{M+1}, 0, v18, vcc')
        a(f'v_cndmask_b32 v{M+2}, v19, 0, vcc'); a(f'v_cndmask_b32 v{M+3}, 0, v19, vcc')
        self.bits(f'v{self.vBias}', 'v0', 'v19', [(4, 1, 0), (2, 1, 1), (1, 1, 2), (3, 1, 3), (5, 1, 4)])
        a('s_lshl_b32 s46, s3, 4'); a('s_add_u32 s46, s46, s36'); a('s_lshl_b32 s46, s46, 9')
        a('s_mov_b32 s49, 0'); a(f's_mov_b32 s51, 0x{f2u(CS):x}')
        if self.mz: a(f's_mov_b32 s50, 0x{f2u({1: 32.0, 2: 4.0, 3: -1.0}[self.mz]):x}')
        a(f's_mov_b32 s53, {self.Q1L}'); a('s_lshl_b32 s54, s3, 10'); a('s_lshl_b32 s55, s3, 3')
        a('s_lshl_b32 s56, s36, 9'); a(f's_add_u32 s56, s56, 0x{QOFF + 3 * 8192:x}')
        a('v_mov_b32 v18, 0'); a('v_mov_b32 v19, 0')
        a(f'ds_write_b64 v18, v[18:19] offset:{self.CO[0]}')
        a('s_lshl_b32 s57, s3, 8'); a(f's_add_u32 s57, s57, {self.ST}'); a('s_mov_b32 s58, 0'); a(f's_lshl_b32 s4, s5, {15 if self.nocl else 23}'); a('s_and_b32 s4, s4, 0x80000000')
        if self.lv:
            mid = self.lv.index(self.depth) if self.mid is None else self.mid
            a(f's_mov_b32 s59, {mid if not self.slow else self.slow[0]}')
            if self.slow and len(self.slow) > 3: a('s_cmp_ge_u32 s36, 8'); a(f's_cselect_b32 s59, {self.slow[3]}, s59')
            if self.cps:
                a('s_lshl2_add_u32 s24, s37, s3'); a('s_lshl_b32 s24, s24, 7'); a(f's_add_u32 s24, s24, 0x{COFF:x}')
                lo = (mid if not self.slow else self.slow[0]) - 1
                a(f's_mov_b32 s20, 0x{OOB:x}'); a(f's_mov_b32 s21, {-self.th[lo] if lo >= 0 else 100}'); a('s_mov_b32 s22, 0')
            if self.odd and not self.nocl:
                a('s_or_b32 s38, s6, s7'); a(f's_cselect_b32 s59, {mid}, s59')
                if self.cps: a(f's_cselect_b32 s21, {-self.th[-1]}, s21')
        assert not self.cps
        if self.hp:
            a('s_lshr_b32 s20, s36, 1'); a('s_lshl2_add_u32 s20, s20, s3'); a('s_lshl_b32 s20, s20, 8'); a(f's_add_u32 s20, s20, 0x{HOFF:x}')
            a('s_and_b32 s38, s36, 1'); a('s_mul_i32 s21, s38, 14'); a('s_add_u32 s21, s21, s37')
            if self.ro: a('s_and_b32 s24, s40, 0x3f8000')
            else: a('s_lshl_b32 s24, s38, 21'); a('s_lshl_b32 s38, s37, 15'); a('s_add_u32 s24, s24, s38')
            a('s_lshl3_add_u32 s25, s21, s20'); a('s_mov_b32 s35, 0'); a('s_mul_i32 s21, s21, 27')
        if self.bst: a('s_mov_b32 s26, s59')
        LP = {tuple(k): v for k, v in self.p2l}
        N1 = sum(1 for v in LP.values() for x in v if x < 40); N0 = N1 + sum(len(v) for v in self.p1l.values())
        assert N0 <= 16
        for p in range(self.p0, N0):
            self.load(0, p, wait=self.pw[min(p - self.p0, len(self.pw) - 1)] if isinstance(self.pw, list) else self.pw)
            if p == self.CL: self.armS()
            self.wpf(p)
        self.prologue = False
        entry_vmq = [(0, i) for i in range(N0)]; self.vmq = list(entry_vmq)
        nQ = self.nQ
        for s in range(2):
            a.label(f'L_A{s}')
            assert [(x[0] ^ s, x[1]) for x in self.vmq] == entry_vmq, (self.vmq, entry_vmq)
            self.lq = []
            n = N0; self.dyn = bool(self.lv)
            while n < 73:
                if self.slow and not self.fb and (s, n) == tuple(self.slow[1:3]): a(f's_max_u32 s59, s59, {mid}')
                if self.bst and n == self.bst[1]: a('s_mov_b32 s59, s26')
                if s == 0 and n in self.fine:
                    a('s_mul_i32 s99, s49, 5'); self.stamp(44 + self.fine.index(n), 's99', 18)
                for i, (c0, c1) in enumerate(self.cps):
                    r = 16 + i % 2
                    if n == c1:
                        self.need_vm(('cp', i))
                        a(f'v_readfirstlane_b32 s38, v{r}'); a(f's_sub_u32 s38, s38, s{25 + i % 2}'); a('s_mov_b32 s59, 0')
                        for t in self.th: a(f's_cmp_ge_i32 s38, {t}'); a('s_addc_u32 s59, s59, 0')
                for i, (c0, c1) in enumerate(self.cps):
                    r = 16 + i % 2
                    if n == c0:
                        assert not (c0 <= nQ + 3 and c1 > nQ) and c1 < 73
                        a(f'v_mov_b32 v{r}, 1'); a(f's_mov_b32 s{25 + i % 2}, s21'); a('s_add_u32 s21, s21, s22')
                        a('s_mov_b64 exec, 1'); a(f'buffer_atomic_add v{r}, off, {WS}, s20 sc0 sc1'); a('s_mov_b64 exec, -1')
                        self.vmq.append(('cp', i))
                if 'B' in self.wb and (s, n) == (1, 20): self.dirty()
                for n0, kv, g in self.tp:
                    if n0 == n:
                        if kv == 2: a(f's_add_u32 s38, s{40 + g}, 0x2000000')
                        a(f's_buffer_load_dword s99, {V_SRD if kv == 1 else K_SRD}, {"s38" if kv == 2 else f"s{40 + g}"}')
                if self.tp and n == nQ: a('s_waitcnt lgkmcnt(0)')
                if self.eq and n == self.eq[1]:
                    assert self.eq[0] >= nQ + 4 and n <= self.PFA and not self.fx2 and not self.flex and not self.xpf and not self.vpf
                    self.need_vm(('cp', 'e1')); a('s_mov_b32 s58, 0')
                    self.maxtree(range(self.vQ, self.vQ + 8), 18)
                    if s == 0: a('s_cmp_eq_u32 s49, 0'); a('s_cbranch_scc1 L_En')
                    a(f's_cbranch_vccz L_E{s}')
                    if s == 0: a.label('L_En')
                    main = list(self.vmq); am = self.a; self.a = a2 = Asm(); dyn = self.dyn; self.dyn = False
                    a2.label(f'L_E{s}'); a2('s_mov_b32 s58, 1')
                    for m in range(n, 73):
                        if self.hp and m in dict(self.hp[0]): self.publish(dict(self.hp[0])[m])
                        self.load(s, m, wait=self.eq[2] or False)
                    a2(f's_mov_b32 s59, {self.eq[3]}')
                    self.stamp(1, 's49')
                    if self.diag: a2('s_add_u32 s7, s7, 1')
                    a2(f's_branch L_Xok{s}')
                    fastq = list(self.vmq); self.vmq = main; self.a = am; self.dyn = dyn
                    self.later.append(lambda a2=a2: a.L.extend(a2.L))
                if self.hp and n in dict(self.hp[0]): self.publish(dict(self.hp[0])[n])
                for n0, n1, el, R in (self.hp[5] if self.hp else []):
                    assert n1 < nQ or (n0 >= nQ + 4 and n1 <= self.PFA)
                    if n == n0: self.board()
                    if n == n1:
                        self.need_vm(('cp', 'bd'))
                        a(f's_movk_i32 s34, {el}'); a(f's_movk_i32 s32, {R}'); a('s_call_b64 s[96:97], L_help')
                if self.flex and n == self.KF:
                    self.need_vm(('cp', 0))
                    R = f's{22 + s}'
                    a('v_readfirstlane_b32 s38, v16'); a('s_add_u32 s38, s38, 1')
                    a(f's_mov_b32 {R}, {self.flex[0][1]}'); a(f's_mul_i32 s44, s38, {R}')
                    b = 0
                    for (n0, r0), (n1, r1) in zip(self.flex, self.flex[1:]):
                        b += n0
                        a(f's_sub_i32 s39, s38, {b}'); a('s_max_i32 s33, s39, 0'); a(f's_mul_i32 s33, s33, {r0 - r1}'); a('s_sub_u32 s44, s44, s33')
                        a('s_cmp_ge_i32 s39, 0'); a(f's_cselect_b32 {R}, {r1}, {R}')
                    a('s_lshl_b32 s44, s44, 9'); a('s_add_u32 s44, s44, s21'); a('s_add_u32 s21, s21, 0x2000000')
                    a(f's_lshl_b32 s90, {R}, 9'); a('s_add_u32 s90, s90, s44'); a('s_min_u32 s90, s90, s10'); a('s_mov_b32 s94, s90')
                    self.stamp(40, 's49', 18, 's38')
                if n == nQ:
                    self.need_vm((s, self.KF + 7 if self.flex else 39))
                    if s == 0:
                        a('s_cmp_eq_u32 s49, 0'); a('s_cbranch_scc1 L_st0'); st_in = list(self.vmq)
                    self.qk1(s, {('u', 1): [(s, n)], ('u', 6): [(s, n + 1)], ('x', 0): [(s, n + 2)], ('e', 0): [(s, n + 3)]}, True)
                    n += 4
                    if s == 0: a.label('L_st0r'); st_out = list(self.vmq)
                    for z in self.zero_acc(): a(z)
                    continue
                self.load(s, n)
                if s == 0 and (n == self.CL or any(x[0] == n for x in self.spf)):
                    l = self.lab('L_it0')
                    a('s_cmp_lg_u32 s49, 0'); a(f's_cbranch_scc1 {l}')
                    if n == self.CL: self.armS()
                    self.wpf(n)
                    a.label(l)
                CK = self.TK if self.flex else (self.PFA or self.PF)
                if s == 0 and n == CK - 8:
                    assert n >= nQ + 4 or (CK < nQ and n > self.CL)
                    l = self.lab('L_it0'); a('s_cmp_lg_u32 s49, 0'); a(f's_cbranch_scc1 {l}')
                    a('v_mov_b32 v22, 0'); a(f'global_load_dword v23, v22, {DBG} offset:{self.CNTA} sc1'); a.label(l)
                if s == 0 and n == CK:
                    self.stamp(22, 's49')
                    l = self.lab('L_it0'); a('s_cmp_lg_u32 s49, 0'); a(f's_cbranch_scc1 {l}')
                    a('s_waitcnt vmcnt(8)'); self.wait_counter(22, 23, 21, self.CNTA, NCHAIN, pre=True)
                    a('v_readfirstlane_b32 s27, v23'); a('s_add_u32 s27, s27, s5')
                    if self.la:
                        assert self.PFA and self.PFA < self.PF
                        x = self.lab('L_la'); a(f's_cmp_eq_u32 s27, {NCHAIN + 1}'); a(f's_cbranch_scc0 {x}')
                        self.armP(self.la)
                        def far(x=x, l=l): a.label(x); self.armP('sc1'); a(f's_branch {l}')
                        self.later.append(far)
                    a.label(l)
                if (self.flex and n == self.TK) or (self.fx2 and n == self.PFA):
                    a('v_mov_b32 v16, 1')
                    a('s_mov_b64 exec, 1'); a(f'buffer_atomic_add v16, off, {WS}, s20 sc0 sc1'); a('s_mov_b64 exec, -1')
                    a('s_add_u32 s20, s20, 2048')
                    self.vmq.append(('cp', 0))
                if self.vpf and n == self.vpf[0]:
                    a(f'v_lshlrev_b32 v19, 3, v{self.vL16}'); a(f's_mov_b32 m0, {self.TB + 4 * self.WLDS}')
                    a(f'buffer_load_dword v19, {V4}, s44 offen {self.xpol} lds'); self.vmq.append(('cp', 'x'))
                for n0, g in (self.vpf or [0])[1:]:
                    if n == n0:
                        a(f'v_lshlrev_b32 v19, 3, v{self.vL16}'); a(f's_mov_b32 m0, {self.TB + 4 * self.WLDS}'); a(f's_add_u32 s38, s{40 + g}, 0x2000000')
                        if g == 4: a('s_mov_b32 exec_hi, 0xff')
                        a(f'buffer_load_dword v19, {K_SRD}, s38 offen {self.xpol} lds'); self.vmq.append(('cp', 'x'))
                        if g == 4: a('s_mov_b32 exec_hi, -1')
                if self.eq and n == self.eq[0]: self.qload(); self.vmq += [('cp', 'e0'), ('cp', 'e1')]
                if n == self.PFA and self.hp: self.board()
                if n == self.PFA:
                    assert n >= nQ + 4 and n < self.PF
                    self.qload(); self.vmq += [('cp', 'qa'), ('cp', 'qb')]
                if n == self.PF:
                    assert n >= nQ + 4
                    self.qload(); self.vmq += [('cp', 'q0'), ('cp', 'q1')]
                n += 1
            self.dyn = False
            if self.fb: a(f's_mov_b32 s59, {self.fb[1]}')
            if self.PFA:
                self.need_vm(('cp', 'qb')); keep = list(self.vmq)
                if self.fx2: a('v_readfirstlane_b32 s35, v16')
                self.stamp(1, 's49')
                self.maxtree(range(self.vQ, self.vQ + 8), 18)
                a(f's_cbranch_vccz L_Xok{s}')
                if self.nox: a('s_cmp_lg_u32 s49, 0'); a(f's_cbranch_scc1 L_Xok{s}')
                if self.fb and len(self.fb) > 2: a(f's_mov_b32 s59, {self.fb[2]}')
            def ahead(what):
                for g in what:
                    if g == 'v': a(f'buffer_load_dword v19, {V4}, s44 offen {self.xpol} lds')
                    else:
                        a(f's_add_u32 s38, s{40 + g}, 0x2000000')
                        if g == 4: a('s_mov_b32 exec_hi, 0xff')
                        a(f'buffer_load_dword v19, {K_SRD}, s38 offen {self.xpol} lds')
                        if g == 4: a('s_mov_b32 exec_hi, -1')
                    self.vmq.append(('cp', 'x'))
            if self.xpf:
                assert self.PFA and not self.flex
                a(f'v_lshlrev_b32 v19, 3, v{self.vL16}'); a(f's_mov_b32 m0, {self.TB + 4 * self.WLDS}')
                ahead(self.xpf[0])
            if self.hp:
                if self.hl and s == 1: a('s_cmp_eq_u32 s49, 3'); a(f's_cselect_b32 s34, {self.hl[0]}, {self.hp[1]}')
                else: a(f's_movk_i32 s34, {self.hp[1]}')
                a('s_movk_i32 s32, 0'); a(f's_call_b64 s[96:97], L_help')
            self.need_vm(('cp', 'q1'))
            for x in (self.xpf or [])[1:]:
                self.maxtree(range(self.vQ, self.vQ + 8), 18)
                a(f's_cbranch_vccz L_Xok{s}')
                self.qload(); ahead(x); a(f's_waitcnt vmcnt({len(x)})')
            if self.PFA: self.vmq = keep
            else: self.stamp(1, 's49')
            a.label(f'L_X{s}')
            self.maxtree(range(self.vQ, self.vQ + 8), 18)
            a(f's_cbranch_vccz L_Xok{s}')
            a.label(f'L_Xpoll{s}')
            if self.fb and len(self.fb) > 3: a('s_sub_i32 s59, s59, 1'); a(f's_max_i32 s59, s59, {self.fb[0]}')
            elif self.fb: a(f's_mov_b32 s59, {self.fb[0]}')
            self.timeout()
            if self.hp and self.hp[4]:
                a(f'v_lshrrev_b32 v19, 1, v{self.vL16}')
                a(f'buffer_load_dword v16, v19, {WS}, s20 offen sc1')
            self.qload()
            a('s_waitcnt vmcnt(0)')
            if self.hp and self.hp[4]:
                self.maxtree(range(self.vQ, self.vQ + 8), 18)
                a(f's_cbranch_vccz L_Xok{s}')
                a('s_movk_i32 s32, 0'); a(f's_call_b64 s[96:97], L_help'); a(f's_branch L_Xpoll{s}')
            else: a(f's_branch L_X{s}')
            a.label(f'L_Xok{s}')
            if self.tp: a('s_waitcnt lgkmcnt(0)')
            if self.eq:
                t = [x for x in self.vmq if x not in (('cp', 'q0'), ('cp', 'q1'))]
                assert fastq[-len(t):] == t, (fastq, t)
                self.vmq = list(fastq)
            self.stamp(6, 's49')
            if self.hp and 73 in dict(self.hp[0]): self.publish(dict(self.hp[0])[73])
            if s == 0: a('s_cmp_eq_u32 s49, 0'); a('s_cbranch_scc1 L_first')
            save = list(self.vmq)
            if s == 1 and self.lst: a('s_cmp_eq_u32 s49, 3'); a('s_cbranch_scc1 L_last'); last_save = save
            self.pass2(s, LP)
            if self.diag: a('s_memrealtime s[28:29]')
            if s == 0:
                if not self.fin: a('s_cmp_eq_u32 s49, 4'); a('s_cbranch_scc1 L_fin')
                after = list(self.vmq)
            a.label(f'L_PV{s}')
            self.pv1f(s)
            if self.diag: self.stamp(11, 's49', src='s28')
            a('s_add_u32 s49, s49, 1'); self.nextP(); a('s_add_u32 s53, s53, 512')
            a('s_add_u32 s56, s56, 8192'); a('s_mov_b32 s46, s56')
            if self.hp: a('s_add_u32 s35, s35, 10')
            if self.odd and (self.odd & 1) != s and not self.fb:
                a(f's_cmp_eq_u32 s49, {self.odd}'); a(f's_cselect_b32 s59, {mid}, s59')
            if self.cps and (self.cpon & 1) != s:
                a(f's_cmp_eq_u32 s49, {self.cpon}'); a('s_cselect_b32 s20, s24, s20'); a(f's_cselect_b32 s22, 16, s22'); a('s_cselect_b32 s21, -1, s21')
                a(f's_cselect_b32 s59, {mid}, s59')
            if s == 0: first_save, first_after = save, after
        if self.lst:
            assert self.fin
            a('s_branch L_A0'); self.vmq = list(last_save); self.last()
        else: a('s_cmp_lg_u32 s49, 4'); a('s_cbranch_scc1 L_A0')
        if self.fin: self.final()
        else:
            a('s_mov_b32 s94, 0')
            for z in self.zero_acc(): a(z)
            a('s_branch L_Xpoll0')
        a.label('L_first')
        self.vmq = first_save; self.lq = []
        a('s_lshl_b32 s38, s3, 9'); a(f'v_add_u32 v18, s38, v{self.vQo}')
        a(f'ds_write_b128 v18, {vr(self.vQ, 4)} offset:{self.Q1L}')
        a(f'ds_write_b128 v18, {vr(self.vQ + 4, 4)} offset:{self.Q1L + 256}')
        for n in range(73, 80): self.load(0, n, wait=False)
        self.share()
        self.need_vm(('cp', 'q1'))
        a('s_waitcnt lgkmcnt(0)'); a('s_barrier')
        pts = [('u', 1), ('u', 4), ('u', 7), ('x', 0), ('e', 0)]; FL = {}
        for i in range(N1): FL.setdefault(pts[i * len(pts) // N1], []).append((1, i))
        self.qk1(0, FL, False)
        assert self.vmq == first_after, (self.vmq, first_after)
        a('s_branch L_PV0')
        a.label('L_fin'); self.stamp(11, 's49'); self.stamp(40, src='s7')
        if 'b' in self.wb: self.dirty()
        if '1' in self.wb:
            a('s_and_b32 s38, s36, 1'); a('s_or_b32 s38, s38, s37'); a('s_or_b32 s38, s38, s3'); a('s_cbranch_scc1 L_end')
            a('buffer_wbl2 sc1')
        a('s_branch L_end')
        a.label('L_st0')
        self.vmq = st_in; self.dyn = bool(self.lv)
        for n in range(nQ, nQ + 4): self.load(0, n)
        self.dyn = False
        assert self.vmq == st_out, (self.vmq, st_out)
        a('s_branch L_st0r')
        for f in self.later: f()
        if self.hp: self.help()
    CKR = [64, 66, 68, 70, 72, 74, 76, 78, 80, 82]
    def clk(self):
        if self.cyc and self.ck: self.a(f's_memtime s[{self.CKR[self.ck - 1]}:{self.CKR[self.ck - 1] + 1}]'); self.ck += 1
    def dirty(self):
        a = self.a
        a('s_mul_i32 s38, s36, 14'); a('s_add_u32 s38, s38, s37'); a('s_lshl2_add_u32 s38, s38, s3'); a('s_lshl_b32 s38, s38, 12'); a('s_add_u32 s38, s38, 0x2000000')
        for i in range(4): a(f'buffer_store_dwordx4 v[8:11], v{self.vL16}, {WS}, s38 offen offset:{i * 1024}')
    def publish(self, v):
        a = self.a
        a(f's_add_u32 s38, s35, {v}'); a('v_mov_b32 v18, s38')
        a('s_mov_b64 exec, 1'); a(f'buffer_store_dword v18, off, {WS}, s25' + self.N('b')); a('s_mov_b64 exec, -1')
        self.vmq.append(('cp', 'pg'))
    def board(self):
        self.a(f'v_lshrrev_b32 v19, 1, v{self.vL16}')
        self.a(f'buffer_load_dword v16, v19, {WS}, s20 offen sc1'); self.vmq.append(('cp', 'bd'))
    def help(self):
        a = self.a; lo, hi = self.hp[2:4]
        a.label('L_help')
        a('v_subrev_u32 v16, s35, v16')
        a('v_cmp_ge_i32 vcc, s34, v16')
        a('s_and_b32 s33, vcc_lo, 0xfffffff'); a('s_cbranch_scc0 L_help9')
        a('s_bcnt1_i32_b32 s38, s33'); a('s_max_u32 s38, s38, s32'); a('s_bfe_u32 s32, s21, 0x50001'); a('s_mul_i32 s38, s38, s32'); a('s_lshr_b32 s38, s38, 5')
        a('v_mbcnt_lo_u32_b32 v17, s33, 0'); a('v_cmp_eq_u32 vcc, s38, v17')
        a('s_add_u32 s21, s21, 23')
        a('s_and_b32 s38, vcc_lo, s33'); a('s_cbranch_scc0 L_help9')
        a('s_ff1_i32_b32 s32, s38'); a('s_and_b32 s38, s21, 1'); a(f's_mov_b32 m0, {self.TB + 4 * self.WLDS}')
        a('v_readlane_b32 s33, v16, s32');
        if self.hl:
            assert not self.hp[5]
            a('s_cmp_eq_u32 s49, 3'); a(f's_cselect_b32 s39, {self.hl[0] - self.hl[1]}, {self.hp[1] - lo}'); a(f's_cselect_b32 s30, {self.hl[2]}, {hi}')
            a('s_max_i32 s33, s33, s39'); a('s_add_i32 s33, s33, s38'); a('s_add_i32 s33, s33, 2'); a('s_min_i32 s33, s33, s30')
        else: a(f's_sub_i32 s39, s34, {lo}'); a('s_max_i32 s33, s33, s39'); a('s_add_i32 s33, s33, s38'); a('s_add_i32 s33, s33, 2'); a(f's_min_i32 s33, s33, {hi}')
        a('s_cmp_ge_u32 s32, 14'); a('s_cselect_b32 s38, 14, 0'); a('s_cselect_b32 s39, 0x200000, 0'); a('s_sub_u32 s32, s32, s38')
        a('s_sub_u32 s39, s39, s24'); a('s_add_u32 s39, s39, s40')
        a('s_cmp_lt_i32 s33, 0'); a('s_cselect_b32 s38, 10, 0'); a('s_cselect_b32 s30, 0x2000000, 0'); a('s_add_i32 s33, s33, s38'); a('s_sub_u32 s39, s39, s30')
        a('s_cmp_ge_i32 s33, 10'); a('s_cselect_b32 s38, 10, 0'); a('s_cselect_b32 s30, 0x2000000, 0'); a('s_sub_i32 s33, s33, s38'); a('s_add_u32 s39, s39, s30')
        a('s_cmp_ge_u32 s33, 5'); a('s_cselect_b64 s[28:29], s[12:13], s[8:9]'); a('s_cselect_b32 s38, 0, 3'); a('s_add_u32 s33, s33, s38')
        a('s_mov_b32 s30, 0x8000000'); a('s_mov_b32 s31, 0x20000')
        a('s_cmp_ge_u32 s33, 5'); a('s_cselect_b32 s38, 5, 0'); a('s_sub_u32 s33, s33, s38')
        if self.ro:
            a(f'v_lshlrev_b32 v19, 3, v{self.vL16}')
            a('s_bfe_u32 s38, s39, 0x40015'); a(f's_mul_i32 s38, s38, {self.ro}'); a('s_add_u32 s38, s38, s32'); a('s_mul_i32 s34, s33, 14'); a('s_add_u32 s38, s38, s34')
            a('s_sub_u32 s34, s38, 56'); a('s_min_u32 s38, s38, s34'); a('s_lshl_b32 s38, s38, 6'); a(f's_movk_i32 s34, {self.hp[1]}')
            a('s_cmp_lg_u32 s33, 4'); a('s_cbranch_scc1 L_help2')
            a(f's_add_u32 s39, s39, {4 * NW * 8192}')
            assert not self.hl and not self.hp[5]
        else:
            a(f's_mul_i32 s38, s33, {NW * 8192}'); a('s_add_u32 s39, s39, s38')
            a(f'v_lshlrev_b32 v19, 3, v{self.vL16}')
            a('s_lshl_b32 s38, s32, 6')
            a('s_cmp_lg_u32 s33, 4'); a('s_cbranch_scc1 L_help2')
        a('s_mul_i32 s38, s32, 36'); a('s_min_u32 s32, s32, 8'); a('s_add_u32 s38, s38, s32'); a('s_mul_i32 s32, s3, 7'); a('s_sub_u32 s38, s38, s32')
        a('s_mov_b32 exec_hi, 0xff')
        a.label('L_help2')
        a('s_lshl_b32 s38, s38, 9'); a('s_add_u32 s39, s39, s38')
        a(f'buffer_load_dword v19, s[28:31], s39 offen {self.xpol} lds')
        a('s_mov_b32 exec_hi, -1')
        if self.diag: a('s_add_u32 s7, s7, 0x100')
        a.label('L_help9')
        a('s_setpc_b64 s[96:97]')
    def last(self):
        a = self.a; Q = self.vQ; AC = self.vAcc
        a.label('L_last'); self.lq = []
        for x in self.staddr(): a(x)
        self.ds('ds_read_b96 v[20:22], v18', 'p')
        sets = [(0, 0), (0, 1), (1, 0), (1, 1), (2, 0)]
        prep = lambda i: self.aprep(*sets[i], Q + 4 * (i % 2))
        def hook(p):
            if p == ('u', 0):
                for n in (73, 74, 75): self.load(1, n, False, self.kreg(0, 0) + 4 * (n - 72))
            if p == ('u', 1):
                for n in (76, 77, 78, 79): self.load(1, n, False)
            if p[0] == 'u' and 2 <= p[1] < 6:
                for n in (52 + 2 * p[1], 53 + 2 * p[1]): self.need_vm((1, n)); self.copy(1, 0, 2, n)
            if p == ('p', 7):
                self.need_vm(('cp', 'q1')); self.need_lds('p')
                for x in prep(0)[:2]: a(x)
            if p == ('p', 8):
                for x in prep(0)[2:]: a(x)
        self.qk_part(0, hook, part=1, tb=16)
        for i, (k, P) in enumerate(sets):
            fill = self.epi_pre() if i == 4 else prep(i + 1)
            if i == 4:
                for x in fill: a(x)
                fill = []
            for t in range(4):
                b, tags = self.bop(1, 0, 2, k, P, t)
                if i < 2: self.need_vm((1, 64 + 4 * i + t)); self.copy(1, 0, 2, 64 + 4 * i + t)
                if (i, t) == (2, 0): self.need_vm((1, 72)); self.copy(1, 0, 2, 72)
                if i == 4: self.need_vm((1, 73 + 2 * t))
                for tg in tags: self.need_lds(tg)
                a(f'v_smfmac_f32_16x16x64_bf16 {vr(AC + 4 * t, 4)}, {vr(Q + 4 * (i % 2), 4)}, {rr(b, 8)}, v{self.vIP}')
                n = (len(fill) + (3 - t)) // (4 - t)
                got = fill[:n]; fill = fill[n:]
                for x in got: a(x)
                if (i, t) == (4, 2) and self.lst > 1:
                    for x in self.merge(0): a(x)
        for x in (self.merge(0) if self.lst == 1 else []) + self.merge(2): a(x)
        self.epilogue(0, 1)
        self.stamp(16, 's49')
        for n in range(72, 76): self.ds(f'ds_read_b128 {ar(4 * (n - 72), 4)}, v{self.vDs} offset:{self.ldsslot(0, n) * 1024}', ('c', n))
        for j in range(8): self.copy(0, 0, 0, 56 + j); self.copy(0, 0, 0, 64 + j)
        self.qk_part(0, lambda p: None, part=2)
        sets = [(0, 0), (0, 1), (2, 0), (1, 0), (1, 1)]
        lred = self.lred()
        def prep(i):
            k, P = sets[i]
            return (self.pack(k) if P == 0 else []) + self.aprep(k, P, Q + 4 * (i % 2))
        for x in prep(0): a(x)
        for i, (k, P) in enumerate(sets):
            fill = prep(i + 1) if i + 1 < len(sets) else []
            if i == len(sets) - 1:
                fill = lred + self.epi_pre(); lred = []
            for t in range(4):
                b, tags = self.bop(0, 0, 0, k, P, t)
                if k == 2 and t < 2: b = 256 + 8 * t
                for tg in tags: self.need_lds(tg)
                a(f'v_smfmac_f32_16x16x64_bf16 {vr(AC + 4 * t, 4)}, {vr(Q + 4 * (i % 2), 4)}, {rr(b, 8)}, v{self.vIP}')
                n = (len(fill) + (3 - t)) // (4 - t)
                got = fill[:n]; fill = fill[n:]
                if len(got) < 2 and lred: got.append(lred.pop(0))
                for x in got: a(x)
        for x in self.merge(0) + self.merge(2): a(x)
        self.epilogue(1, 1)
        self.stamp(11, 's49')
        a('s_add_u32 s49, s49, 1'); self.nextP(); a('s_add_u32 s46, s56, 8192')
        a('s_barrier')
    def final(self):
        a = self.a; Q = self.vQ; AC = self.vAcc; T = self.vT; m = self.vMC; L = self.vL
        self.lq = []; self.vmq = []
        def fb(k, P, t): return 256 + 64 + 8 * (4 * P + t) if k == 1 else self.bop(1, 0, 2, k, P, t)[0]
        for n in range(56, 72):
            a(f'ds_read_b128 {rr(256 + 64 + 8 * ((n - 56) % 8) + 4 * ((n - 56) // 8), 4)}, v{self.vDs} offset:{self.ldsslot(1, n) * 1024}')
        KA = 96; A = [136, 140, 144]; PT = 148
        for z in self.zero_acc(): a(z)
        if self.fin > 1:
            for r in range(0, 40, 2): a(f'v_mov_b64 {vr(KA + r, 2)}, 0')
            a(f'v_cmp_gt_u32 s[40:41], s23, v{self.vBias}'); a(f's_mov_b32 s42, 0x{f2u(2.0 ** 40 if self.fin == 2 else 0.0):x}')
            a('v_mov_b32 v23, 0xff800000'); a(f'v_mov_b32 v{m}, 0')
            if self.mz: a(f's_mov_b32 s43, 0x{f2u(2.0 ** -40):x}'); a(f's_mov_b32 s42, 0x{(80 << 23) if self.fin == 2 else (46 << 23) + (1 << 22) if self.fin == 4 else 0:x}')
        a.label('L_Fpoll')
        self.timeout()
        self.qload()
        a('s_waitcnt vmcnt(0) lgkmcnt(0)')
        self.maxtree(range(Q, Q + 8), 18)
        a('s_cbranch_vccnz L_Fpoll')
        self.stamp(6, 's49')
        self.ck = 1; self.clk()
        def pv(A_, k, P, t): return f'v_smfmac_f32_16x16x64_bf16 {vr(AC + 4 * t, 4)}, {vr(A_, 4)}, {rr(fb(k, P, t), 8)}, v{self.vIP}'
        if self.fin > 1:
            M = []
            for u in range(10):
                for h in range(2): M.append(f'v_smfmac_f32_16x16x64_bf16 {vr(KA + 4 * u, 4)}, {vr(Q + 4 * h, 4)}, {rr(self.kreg(1, u) + 8 * h, 8)}, v{self.vIQ}')
            M += [pv(A[0], 0, 0, t) for t in range(4)] + [pv(A[1], 0, 1, t) for t in range(4)] + [pv(A[0], 1, 0, t) for t in range(4)]
            for t in range(4): M += [pv(A[1], 1, 1, t), pv(A[2], 2, 0, t)]
            G = [[] for _ in M]
            def put(g, ops, per=1):
                for i, x in enumerate(ops): G[g + i // per].append(x)
            for u in range(10):
                ac = KA + 4 * u; t = PT + 2 * (u % 2)
                put(2 * u + 4, [f'v_add_f32 v{t+1}, v{ac+1}, v{ac+3}', f'v_add_f32 v{t}, v{ac}, v{ac+2}'], 2)
                put(2 * u + 5, [f'v_add_f32_dpp v{T + u // 4}, v{t+1}, v{t} quad_perm:[1,1,3,3] row_mask:0x{1 << (u % 4):x} bank_mask:0xf'])
            if not self.mz: put(5, [f'v_add_f32_dpp v{m}, v{PT+1}, v{PT} quad_perm:[1,1,3,3] {FULL}',
                    f'v_max_f32_dpp v{m}, v{m}, v{m} quad_perm:[2,3,0,1] {FULL}', f'v_max_f32_dpp v{m}, v{m}, v{m} row_ror:4 {FULL}',
                    f'v_max_f32_dpp v{m}, v{m}, v{m} row_ror:8 {FULL}', f'v_mul_f32 v{m}, s51, v{m}'])
            ex = lambda k: [f'v_fma_f32 v{T+k}, v{T+k}, s51, -v{m}', f'v_exp_f32 v{T+k}, v{T+k}']
            put(11, ex(0)); put(13, self.pack(0)[:2], 2); put(14, self.pack(0)[2:]); put(15, self.aprep(0, 0, A[0]), 2)
            put(17, self.aprep(0, 1, A[1])[:2], 2); put(18, self.aprep(0, 1, A[1])[2:])
            put(19, ex(1)); put(21, self.pack(1)[:2], 2); put(22, self.pack(1)[2:])
            put(23, [f'v_cndmask_b32 v{T+2}, v23, v{T+2}, s[40:41]'] + ex(2)[:1], 2); put(24, ex(2)[1:])
            put(24, self.aprep(1, 0, A[0]), 2); put(25, self.pack(2)[:1]); put(26, self.pack(2)[1:3], 2); put(27, self.pack(2)[3:4]); put(28, self.pack(2)[4:])
            put(28, self.aprep(1, 1, A[1]), 2); put(30, self.aprep(2, 0, A[2]), 2)
            lr = self.lred()
            put(26, lr[:2]); put(29, lr[2:5]); put(32, lr[5:6]); put(33, lr[6:9], 3); put(34, lr[9:], 2)
            put(32, self.epi_pre()[:2], 2); put(35, [f'v_subrev_u32 v23, s43, v{L}', 'v_cmp_lt_u32 vcc, s42, v23'] if self.mz else [f'v_cmp_lt_f32 vcc, s42, v{L}'], 2); put(35, self.epi_pre()[2:4], 2)
            put(36, ['s_bitcmp1_b32 vcc_lo, 0', 's_cbranch_scc1 L_Fslow'] + self.epi_pre()[4:], 3)
            put(37, self.merge(0), 3)
            for x, g in zip(M, G):
                a(x)
                for y in g: a(y)
            for x in self.merge(2): a(x)
            a.label('L_Fepi')
            self.clk()
            self.epilogue(1, 0, self.vH)
            self.clk()
            if self.cyc:
                for i in range(self.ck - 1): self.stamp(44 + i, src=f's{self.CKR[i]}')
            self.ck = 0
            a('s_branch L_fin')
            a.label('L_Fslow'); a('s_nop 8')
            for z in self.zero_acc(): a(z)
        self.qk_part(1, lambda p: None)
        sets = [(0, 0), (2, 0), (0, 1), (1, 0), (1, 1)]
        lred = self.lred()
        def prep(i):
            k, P = sets[i]
            return (self.pack(k) if P == 0 else []) + self.aprep(k, P, Q + 4 * (i % 2))
        for x in prep(0): a(x)
        for i, (k, P) in enumerate(sets):
            fill = prep(i + 1) if i + 1 < len(sets) else []
            if i == len(sets) - 1:
                fill = lred + self.epi_pre(); lred = []
            for t in range(4):
                a(pv(Q + 4 * (i % 2), k, P, t))
                n = (len(fill) + (3 - t)) // (4 - t)
                got = fill[:n]; fill = fill[n:]
                if len(got) < 2 and lred: got.append(lred.pop(0))
                for x in got: a(x)
        for x in self.merge(0) + self.merge(2): a(x)
        if self.fin > 1: a('s_branch L_Fepi')
        else:
            self.clk()
            self.epilogue(1, 0, self.vH)
            self.clk()
            if self.cyc:
                for i in range(self.ck - 1): self.stamp(44 + i, src=f's{self.CKR[i]}')
            self.ck = 0
            a('s_branch L_fin')
    def share(self):
        a = self.a; F = self.fx2
        if not F: return
        a('s_add_u32 s35, s35, 1'); a(f's_mov_b32 s25, {F[0][1]}'); a('s_mul_i32 s24, s35, s25')
        b = 0
        for (n0, r0), (n1, r1) in zip(F, F[1:]):
            b += n0
            a(f's_sub_i32 s39, s35, {b}'); a('s_max_i32 s33, s39, 0'); a(f's_mul_i32 s33, s33, {r0 - r1}'); a('s_sub_u32 s24, s24, s33')
            a('s_cmp_ge_i32 s39, 0'); a(f's_cselect_b32 s25, {r1}, s25')
        a('s_lshl_b32 s24, s24, 9'); a('s_add_u32 s24, s24, s21'); a('s_add_u32 s21, s21, 0x2000000')
    def armS(self):
        a = self.a
        if not self.nocl: a('s_waitcnt vmcnt(8)')
        self.confirm(24, 20)
        if not self.oarm and 'N' not in self.wb and not self.la and not self.ja: self.armP('sc1' + self.N('a'))
        self.stamp(30, None, 24)
    def nextP(self):
        if not (self.ja and self.ja[0]): self.a(f's_add_u32 s47, s47, {PIB}')
    def armP(self, pol):
        a = self.a
        a('v_lshl_add_u32 v18, v0, 19, s48'); a('v_mov_b64 v[20:21], -1'); a('v_mov_b64 v[22:23], -1')
        a('s_lshl_b32 s38, s3, 20'); a('s_add_u32 s38, s38, s47'); a(f's_add_u32 s39, s38, {PP2}')
        a(f'buffer_store_dwordx4 v[20:23], v{self.vL16}, {WS}, s39 offen {pol}')
        a('s_mov_b64 exec, 3')
        a(f'buffer_store_dwordx2 v[20:21], v18, {WS}, s38 offen ' + (pol if self.N('M') else 'sc1' + self.N('a')))
        a('s_cmp_lg_u32 s3, 0'); a('s_cselect_b64 exec, -1, 0')
        a(f'buffer_store_dwordx4 v[20:23], v{self.vL16}, {WS}, s38 offen {pol}')
        a('s_mov_b64 exec, -1')
    def qk_part(self, ds_, hook, zero=True, part=3, tb=18):
        a = self.a; T = self.vT; Q = self.vQ; AC = self.vAcc
        def post_a(u):
            ac = AC + 4 * (u % 4); t = tb + 2 * (u % 2)
            a(f'v_add_f32 v{t+1}, v{ac+1}, v{ac+3}'); a(f'v_add_f32 v{t}, v{ac}, v{ac+2}')
        def post_b(u):
            t = tb + 2 * (u % 2)
            a(f'v_add_f32_dpp v{T + u // 4}, v{t+1}, v{t} quad_perm:[1,1,3,3] row_mask:0x{1 << (u % 4):x} bank_mask:0xf')
        for u in range(10 if part & 1 else 0):
            ac = AC + 4 * (u % 4); k = self.kreg(ds_, u)
            a(f'v_smfmac_f32_16x16x64_bf16 {vr(ac, 4)}, {vr(Q, 4)}, {rr(k, 8)}, v{self.vIQ}')
            if u >= 3: post_a(u - 3)
            a(f'v_smfmac_f32_16x16x64_bf16 {vr(ac, 4)}, {vr(Q + 4, 4)}, {rr(k + 8, 8)}, v{self.vIQ}')
            if u >= 3: post_b(u - 3)
            hook(('u', u))
        zf = [f'v_mov_b32 v{AC + r}, 0' for r in list(range(8, 16)) + list(range(8))] if zero else []
        def Z(n=2):
            for _ in range(n):
                if zf: a(zf.pop(0))
        if part == 1:
            z2 = [f'v_mov_b64 {vr(AC + r, 2)}, 0' for r in (8, 10, 12, 14, 0, 2, 4, 6)]
            post_a(7); a(z2[0]); a(z2[1]); post_b(7); hook(('p', 7)); post_a(8); a(z2[2]); a(z2[3]); post_b(8); hook(('p', 8)); post_a(9); a(z2[4]); a(z2[5]); post_b(9); a(z2[6]); a(z2[7])
            return
        a(f'v_cmp_gt_u32 vcc, s{22 + ds_}, v{self.vBias}'); a('v_mov_b32 v23, 0xff800000')
        if part & 1: post_a(7); Z(1); post_b(7); Z(3); post_a(8); Z(1); post_b(8); Z(2); post_a(9); Z(1); post_b(9)
        else: Z(8)
        m = self.vMC; t = 18
        a(f'v_sub_f32 v{T+2}, v{T+2}, v{T+1}'); a(f'v_sub_f32 v{T+1}, v{T+1}, v{T}')
        a(f'v_cndmask_b32 v{T+2}, v23, v{T+2}, vcc')
        a(f'v_max3_f32 v{m}, v{T}, v{T+1}, v{T+2}'); Z()
        a(f'v_max_f32_dpp v{m}, v{m}, v{m} quad_perm:[2,3,0,1] {FULL}'); Z()
        a(f'v_max_f32_dpp v{m}, v{m}, v{m} row_ror:4 {FULL}'); Z()
        a(f'v_max_f32_dpp v{t}, v{m}, v{m} row_ror:8 {FULL}')
        a(f'v_max_f32_dpp v{m}, v{m}, v{m} row_ror:8 {FULL}'); Z()
        a(f'v_permlane16_swap_b32 v{m}, v{t}'); a(f'v_max_f32 v{t+1}, v{m}, v{t}'); a(f'v_max_f32 v{m}, v{m}, v{t}'); Z(8)
        a(f'v_permlane32_swap_b32 v{m}, v{t+1}'); a(f'v_max_f32 v{m}, v{m}, v{t+1}')
        a(f'v_mul_f32 v{m}, s51, v{m}')
        if self.mz:
            a(f'v_cmp_lt_f32 vcc, s50, abs(v{m})'); a(f'v_cndmask_b32 v{m}, 0, v{m}, vcc')
        for k in (0, 2, 1): a(f'v_fma_f32 v{T+k}, v{T+k}, s51, -v{m}')
        for k in (0, 2, 1): a(f'v_exp_f32 v{T+k}, v{T+k}')
        hook(('x', 0))
    def pack(self, k):
        T = self.vT
        o = [f'v_mov_b32_dpp v18, v{T+k} quad_perm:[0,0,0,0] {FULL}',
             f'v_mov_b32_dpp v19, v{T+k} quad_perm:[2,2,2,2] {FULL}',
             f'v_cvt_pk_bf16_f32 v{20+k}, v18, v19']
        if k == 2: o += [f'v_mov_b32_dpp v0, v22 row_shl:4 {FULL}', 'v_permlane32_swap_b32 v22, v0']
        return o
    def aprep(self, k, P, A):
        pp = 20 + k; M = self.vM
        if P == 0:
            return [f'v_and_b32 v{A}, v{pp}, v{M}', f'v_and_b32 v{A+2}, v{pp}, v{M+2}',
                    f'v_and_b32_dpp v{A+1}, v{pp}, v{M+1} row_shr:4 {FULL} bound_ctrl:0',
                    f'v_and_b32_dpp v{A+3}, v{pp}, v{M+3} row_shr:4 {FULL} bound_ctrl:0']
        return [f'v_and_b32 v{A+1}, v{pp}, v{M+1}', f'v_and_b32 v{A+3}, v{pp}, v{M+3}',
                f'v_and_b32_dpp v{A}, v{pp}, v{M} row_shl:4 {FULL} bound_ctrl:0',
                f'v_and_b32_dpp v{A+2}, v{pp}, v{M+2} row_shl:4 {FULL} bound_ctrl:0']
    def lred(self):
        L = self.vL; T = self.vT
        return [f'v_add_f32 v{L}, v{T}, v{T+1}',
                f'v_add_f32 v{L}, v{T+2}, v{L}',
                f'v_add_f32_dpp v{L}, v{L}, v{L} quad_perm:[2,3,0,1] {FULL}',
                f'v_add_f32_dpp v{L}, v{L}, v{L} row_ror:4 {FULL}',
                f'v_add_f32_dpp v{L}, v{L}, v{L} row_ror:8 {FULL}',
                f'v_mov_b32 v23, v{L}', f'v_permlane16_swap_b32 v{L}, v23', f'v_add_f32 v{L}, v{L}, v23',
                f'v_mov_b32 v23, v{L}', f'v_permlane32_swap_b32 v{L}, v23', f'v_add_f32 v{L}, v{L}, v23']
    def merge(self, t0):
        AC = self.vAcc; o = []
        for r in range(4): o.append(f'v_permlane32_swap_b32 v{AC + 4*t0 + r}, v{AC + 4*t0 + 4 + r}')
        for r in range(4):
            if t0 == 0: o.append(f'v_add_f32_dpp v{AC + r}, v{AC + 4 + r}, v{AC + r} row_ror:8 row_mask:0xf bank_mask:0x3')
            else: o.append(f'v_add_f32_dpp v{AC + r}, v{AC + 8 + r}, v{AC + 12 + r} row_ror:8 row_mask:0xf bank_mask:0xc')
        return o
    def staddr(self):
        return [f'v_lshrrev_b32 v18, 6, v{self.vL16}', 'v_lshl_add_u32 v18, v18, 4, s57']
    def qk1(self, s, LP, wait):
        a = self.a; Q = self.vQ
        def hook(p):
            for x in LP.get(p, []): self.load(*x, wait=wait)
        a(f'v_add_u32 v18, s53, v{self.vQo}')
        self.ds(f'ds_read_b128 {vr(Q, 4)}, v18', 'q'); self.ds(f'ds_read_b128 {vr(Q + 4, 4)}, v18 offset:256', 'q')
        for z in self.zero_acc(): a(z)
        self.need_lds('q')
        self.qk_part(s, hook, zero=False)
        pk = self.pack(0) + self.pack(2) + self.pack(1); lr = self.lred()
        while pk or lr:
            if lr: a(lr.pop(0))
            if pk: a(pk.pop(0))
        for x in self.staddr(): a(x)
        a('v_mov_b32 v19, s55')
        a('ds_write_b96 v18, v[20:22]')
        a('s_mov_b64 exec, 1')
        a(f'ds_write_b64 v19, {vr(self.vMC, 2)} offset:{self.MA1[s]}')
        a('s_mov_b64 exec, -1')
        hook(('e', 0))
    def cdst(self, fs, cu0, pi):
        if pi >= 2: pi += 2
        return self.kreg(fs, pi // 2) + 8 * (pi % 2)
    def copy(self, ds_, fs, cu0, n):
        if n >= 72: pi, half = (n - 72) // 2, (n - 72) % 2
        else: pi, half = 2 + (n - 56) % 8, (n - 56) // 8
        self.ds(f'ds_read_b128 {rr(self.cdst(fs, cu0, pi) + 4 * half, 4)}, v{self.vDs} offset:{self.ldsslot(ds_, n) * 1024}', ('c', n))
    def bop(self, ds_, fs, cu0, U, P, t):
        if U == 0: return self.vreg0(ds_, P, t), []
        if U == 1: return self.cdst(fs, cu0, 2 + 4 * P + t), [('c', 56 + 4 * P + t), ('c', 64 + 4 * P + t)]
        if t < 2: return self.cdst(fs, cu0, t), [('c', 72 + 2 * t), ('c', 73 + 2 * t)]
        if cu0: return self.kreg(fs, 1) + 8 * (t - 2), []
        return self.vH + 8 * (t - 2), []
    def pass2(self, s, LP):
        a = self.a; ds_ = 1 - s; Q = self.vQ; AC = self.vAcc
        cplan = {0: [72, 73, 74, 75], 2: [56, 64, 57, 65], 3: [58, 66, 59, 67], 4: [60, 68], 5: [61, 69], 6: [62, 70], 7: [63, 71]}
        def hook(p):
            for n in LP.get(p, []):
                if n == 73: self.need_lds(('c', 75))
                if n < 40: assert p[0] != 'u' or p[1] > self.ORD[n] // 4
                self.load(s if n >= 40 else ds_, n, wait=False)
            if p == ('u', 6): self.share()
            if p[0] == 'u':
                for n in cplan.get(p[1], []): self.copy(ds_, ds_, 0, n)
        self.qk_part(ds_, hook)
        sets = [(0, 0), (2, 0), (0, 1), (1, 0), (1, 1)]
        lred = self.lred()
        def prep(i):
            k, P = sets[i]
            return (self.pack(k) if P == 0 else []) + self.aprep(k, P, Q + 4 * (i % 2))
        self.need_vm(('cp', 'q1'))
        for x in prep(0): a(x)
        for i, (k, P) in enumerate(sets):
            fill = prep(i + 1) if i + 1 < len(sets) else []
            if i == len(sets) - 1:
                fill = lred + self.epi_pre(); lred = []
            for t in range(4):
                b, tags = self.bop(ds_, ds_, 0, k, P, t)
                for tg in tags: self.need_lds(tg)
                a(f'v_smfmac_f32_16x16x64_bf16 {vr(AC + 4 * t, 4)}, {vr(Q + 4 * (i % 2), 4)}, {rr(b, 8)}, v{self.vIP}')
                n = (len(fill) + (3 - t)) // (4 - t)
                got = fill[:n]; fill = fill[n:]
                if len(got) < 2 and lred: got.append(lred.pop(0))
                for x in got: a(x)
            hook(('i', i))
        for x in self.merge(0) + self.merge(2): a(x)
        hook(('m', 0))
        self.epilogue(1, s)
    def epi_pre(self):
        return [f'v_add_u32 v18, s54, v{self.vL16}', 'v_mov_b32 v19, s55', 'v_mov_b32 v20, 1', 'v_mov_b32 v21, 0', 'v_mov_b32 v22, s48']
    def pv1f(self, s):
        a = self.a; fs = 1 - s; Q = self.vQ; AC = self.vAcc
        self.xst = 2
        if self.fx2: a(f's_mov_b32 s{22 + fs}, s25'); self.stamp(40, 's49', 18, 's35')
        def hook(p):
            for n in self.p1l.get(p, []): self.load(fs, n, wait=False)
        for x in self.staddr(): a(x)
        self.ds('ds_read_b96 v[20:22], v18', 'p')
        hook('a')
        for z in self.zero_acc(): a(z)
        self.need_vm((s, 71))
        for n in [56, 64, 57, 65, 58, 66, 59, 67]: self.copy(s, fs, 2, n)
        self.need_lds('p')
        sets = [(0, 0), (0, 1), (1, 0), (1, 1), (2, 0)]
        prep = lambda i: self.aprep(*sets[i], Q + 4 * (i % 2))
        for x in prep(0): a(x)
        for i, (k, P) in enumerate(sets):
            last = (i == len(sets) - 1)
            fill = self.epi_pre() if last else prep(i + 1)
            if i == 1:
                for n in [60, 68, 61, 69, 62, 70, 63, 71]: self.copy(s, fs, 2, n)
            hook(str(i))
            for t in range(4):
                b, tags = self.bop(s, fs, 2, k, P, t)
                if last:
                    if t == 0:
                        self.need_vm((s, 73)); self.copy(s, fs, 2, 72); self.copy(s, fs, 2, 73)
                        self.need_vm((s, 75)); self.copy(s, fs, 2, 74); self.copy(s, fs, 2, 75)
                        for x in fill: a(x)
                        fill = []
                    if t == 2: self.need_vm((s, 77))
                    if t == 3: self.need_vm((s, 79))
                for tg in tags: self.need_lds(tg)
                a(f'v_smfmac_f32_16x16x64_bf16 {vr(AC + 4 * t, 4)}, {vr(Q + 4 * (i % 2), 4)}, {rr(b, 8)}, v{self.vIP}')
                n = (len(fill) + (3 - t)) // (4 - t)
                got = fill[:n]; fill = fill[n:]
                for x in got: a(x)
        self.xst = 0
        for x in self.merge(0) + self.merge(2): a(x)
        hook('m')
        self.epilogue(0, s)
        self.stamp(16, 's49')
        for i in range(8): a(f'v_mov_b64 {vr(self.vH + 2 * i, 2)}, {vr(self.kreg(fs, 1) + 2 * i, 2)}')
    def epilogue(self, p2, s, Zr=None):
        a = self.a; Q = self.vQ; AC = self.vAcc; m = self.vMC; L = self.vL
        CA = self.CA[p2]; MA = self.MA[1] if p2 else self.MA1[s]; CO = self.CO[p2]
        Zr = Zr or self.kreg(1 - s, 2)
        a(f'ds_write_b128 v18, {vr(AC, 4)} offset:{CA}')
        a('s_mov_b64 exec, 1')
        if p2: a(f'ds_write_b64 v19, {vr(self.vMC, 2)} offset:{MA}')
        a(f'ds_add_rtn_u32 v20, v21, v20 offset:{CO}')
        a('s_mov_b64 exec, -1')
        a(f'ds_read_b128 {vr(Q, 4)}, v21 offset:{MA}'); a(f'ds_read_b128 {vr(Q + 4, 4)}, v21 offset:{MA + 16}')
        for w in range(4): a(f'ds_read_b128 {vr(Zr + 4 * w, 4)}, v{self.vL16} offset:{CA + 1024 * w}')
        if p2 and self.ja and self.ja[0]: a(f's_add_u32 s38, s47, {PP2 + (1 - s) * PIB}')
        elif p2: a(f's_sub_u32 s38, s47, {PIB - PP2}')
        else: a('s_mov_b32 s38, s47')
        dual = self.home and p2 != s
        if dual: a('s_add_u32 s33, s38, 0x2000'); a(f's_cmp_eq_u32 s49, {3 + p2}'); a(f's_cselect_b32 s33, s33, 0x{OOB:x}')
        a('s_waitcnt lgkmcnt(6)')
        self.clk()
        a('v_readfirstlane_b32 s39, v20'); a('s_and_b32 s39, s39, 3'); a('s_cmp_eq_u32 s39, 3')
        if p2: a('s_cselect_b32 s58, 1, 0')
        elif self.bst: a('s_mov_b32 s26, s59'); a(f's_cselect_b32 s59, {self.bst[0]}, {"s59" if len(self.bst) < 3 else self.bst[2]}')
        l = self.lab('L_nl'); a(f's_cbranch_scc0 {l}')
        a('s_waitcnt lgkmcnt(4)')
        def st(text, pre=None):
            assert self.loc
            x = self.lab('L_ls'); y = self.lab('L_ls')
            a(f's_cbranch_scc1 {x}')
            if pre: a(pre)
            a(text + ' sc1'); a(f's_branch {y}'); a.label(x); a(text); a.label(y)
        if self.mz:
            g = self.lab('L_gen'); j = self.lab('L_join')
            a(f'v_or3_b32 v{m}, v{Q}, v{Q+2}, v{Q+4}'); a(f'v_add_f32 v{L}, v{Q+1}, v{Q+3}'); a(f'v_or_b32 v{m}, v{m}, v{Q+6}'); a(f'v_add_f32 v23, v{Q+5}, v{Q+7}')
            a(f'v_cmp_eq_u32 vcc, 0, v{m}'); a(f'v_add_f32 v{L}, v{L}, v23'); a(f's_cbranch_vccz {g}')
            if self.h16: a(f'v_rcp_f32 v20, v{L}')
            a('s_waitcnt lgkmcnt(2)')
            for hf in range(2): a(f'v_pk_add_f32 {vr(AC + 2*hf, 2)}, {vr(Zr + 2*hf, 2)}, {vr(Zr + 4 + 2*hf, 2)}')
            a('s_waitcnt lgkmcnt(0)')
            for hf in range(2): a(f'v_pk_add_f32 {vr(Zr + 2*hf, 2)}, {vr(Zr + 8 + 2*hf, 2)}, {vr(Zr + 12 + 2*hf, 2)}')
            for hf in range(2): a(f'v_pk_add_f32 {vr(AC + 2*hf, 2)}, {vr(AC + 2*hf, 2)}, {vr(Zr + 2*hf, 2)}')
            a.label(j)
            a(f's_cmp_eq_u32 s27, {NCHAIN + 1}')
            if self.h16:
                a(f'v_lshrrev_b32 v18, 1, v{self.vL16}')
                for hf in range(2): a(f'v_pk_mul_f32 {vr(AC + 2*hf, 2)}, {vr(AC + 2*hf, 2)}, v[20:21] op_sel_hi:[1,0]')
                for hf in range(2): a(f'v_cvt_pk_f16_f32 v{AC + hf}, v{AC + 2*hf}, v{AC + 2*hf + 1}')
            for r in range(2 if self.h16 else 4): a(f'v_min_u32 v{AC + r}, -2, v{AC + r}')
            row = f'buffer_store_dwordx2 {vr(AC, 2)}, v18' if self.h16 else f'buffer_store_dwordx4 {vr(AC, 4)}, v{self.vL16}'
            a(f'v_and_b32 v{L}, -2, v{L}')
            x = self.lab('L_ls')
            a(f's_cbranch_scc0 {x}')
            a(f'{row}, {WS}, s38 offen' + self.N('p'))
            a('s_mov_b64 exec, 1')
            a(f'buffer_store_dwordx2 {vr(m, 2)}, v22, {WS}, s38 offen' + self.N('m'))
            a('s_mov_b64 exec, -1')
            def rare():
                a.label(x)
                a(f'{row}, {WS}, s38 offen sc1')
                a(f'v_or_b32 v{L}, s4, v{L}')
                a('s_mov_b64 exec, 1')
                if self.h16: a('s_lshr_b32 s39, s4, 24'); a('s_add_u32 s38, s38, s39')
                a(f'buffer_store_dwordx2 {vr(m, 2)}, v22, {WS}, s38 offen sc1')
                a('s_mov_b64 exec, -1')
                a(f's_branch {l}')
                a.label(g)
                a(f'v_max3_f32 v{m}, v{Q}, v{Q+2}, v{Q+4}'); a(f'v_max_f32 v{m}, v{m}, v{Q+6}')
                for w in range(4): a(f'v_sub_f32 v{Q+2*w}, v{Q+2*w}, v{m}')
                for w in range(4): a(f'v_exp_f32 v{Q+2*w}, v{Q+2*w}')
                a(f'v_mul_f32 v{L}, v{Q}, v{Q+1}')
                for w in range(1, 4): a(f'v_fmac_f32 v{L}, v{Q+2*w}, v{Q+2*w+1}')
                a(f'v_min_u32 v{m}, -2, v{m}')
                if self.h16: a(f'v_rcp_f32 v20, v{L}')
                a('s_waitcnt lgkmcnt(0)')
                for w in range(4):
                    for hf in range(2):
                        if w == 0: a(f'v_pk_mul_f32 {vr(AC + 2*hf, 2)}, {vr(Zr + 2*hf, 2)}, {vr(Q, 2)} op_sel_hi:[1,0]')
                        else: a(f'v_pk_fma_f32 {vr(AC + 2*hf, 2)}, {vr(Zr + 4*w + 2*hf, 2)}, {vr(Q + 2*w, 2)}, {vr(AC + 2*hf, 2)} op_sel_hi:[1,0,1]')
                a(f's_branch {j}')
            self.later.append(rare)
            a.label(l)
            a('s_waitcnt lgkmcnt(0)'); self.lq = []
            return
        a(f'v_max3_f32 v{m}, v{Q}, v{Q+2}, v{Q+4}'); a(f'v_max_f32 v{m}, v{m}, v{Q+6}')
        for w in range(4): a(f'v_sub_f32 v{Q+2*w}, v{Q+2*w}, v{m}')
        for w in range(4): a(f'v_exp_f32 v{Q+2*w}, v{Q+2*w}')
        a(f'v_mul_f32 v{L}, v{Q}, v{Q+1}')
        for w in range(1, 4): a(f'v_fmac_f32 v{L}, v{Q+2*w}, v{Q+2*w+1}')
        a(f'v_min_u32 v{m}, -2, v{m}'); a(f'v_and_b32 v{L}, -2, v{L}')
        a(f's_cmp_eq_u32 s27, {NCHAIN + 1}')
        a('s_mov_b64 exec, 1')
        st(f'buffer_store_dwordx2 {vr(m, 2)}, v22, {WS}, s38 offen', f'v_or_b32 v{L}, s4, v{L}')
        if dual: a(f'buffer_store_dwordx2 {vr(m, 2)}, v22, {WS}, s33 offen sc1')
        a('s_mov_b64 exec, -1')
        a('s_waitcnt lgkmcnt(0)')
        for w in range(4):
            for hf in range(2):
                if w == 0: a(f'v_pk_mul_f32 {vr(AC + 2*hf, 2)}, {vr(Zr + 2*hf, 2)}, {vr(Q, 2)} op_sel_hi:[1,0]')
                else: a(f'v_pk_fma_f32 {vr(AC + 2*hf, 2)}, {vr(Zr + 4*w + 2*hf, 2)}, {vr(Q + 2*w, 2)}, {vr(AC + 2*hf, 2)} op_sel_hi:[1,0,1]')
        for r in range(4): a(f'v_min_u32 v{AC + r}, -2, v{AC + r}')
        st(f'buffer_store_dwordx4 {vr(AC, 4)}, v{self.vL16}, {WS}, s38 offen')
        if dual: a(f'buffer_store_dwordx4 {vr(AC, 4)}, v{self.vL16}, {WS}, s33 offen sc1')
        a.label(l)
        a('s_waitcnt lgkmcnt(0)'); self.lq = []

    RING0 = 8192
    vGO2, vTR, vOOB, vDO, vX0O, vGO, vXR, vXW, vRES = 8, 9, 10, 11, 12, 13, 14, 15, 16
    vAC, vCS, vQS, vRO, vPO, vPO2, vMLO, vOW, vDQ, vX0 = 32, 36, 38, 39, 40, 41, 42, 43, 44, 45
    def vm(self, text, tag=None):
        self.a(text); self.cq.append(tag)
    def vmwait(self, tag):
        if tag in self.cq:
            i = len(self.cq) - 1 - self.cq[::-1].index(tag)
            k = len(self.cq) - 1 - i
            assert k <= 63
            self.a(f's_waitcnt vmcnt({k})'); self.cq = self.cq[i + 1:]
    def arm(self, q=False):
        a = self.a
        if not self.nocl: self.vmwait('init')
        self.confirm(self.vCL, 28)
        for r in range(20, 24): a(f'v_mov_b32 v{r}, -1')
        a('s_lshl2_add_u32 s38, s8, s3'); a('s_mul_i32 s38, s38, 4608'); a(f's_add_u32 s38, s38, 0x{YOFF:x}')
        if 'C' in self.wb: a(f's_mov_b32 s38, 0x{OOB:x}')
        for i in range(5): self.vm(f'buffer_store_dwordx4 v[20:23], v1, {WS}, s38 offen offset:{min(i * 1024, 3584)} sc1' + self.N('c'), 'arm')
        if q:
            self.bits('v28', 'v0', 'v29', [(0, 5, 4), (5, 1, 13)])
            a('s_lshl_b32 s38, s8, 9'); a('s_lshl_b32 s39, s3, 14'); a('s_add_u32 s39, s39, s38')
            self.vm(f'buffer_store_dwordx4 v[20:23], v28, {WS}, s39 offen sc1' + self.N('c'), 'arm')
        else:
            self.pquad('s38'); a('s_lshl_b32 s39, s8, 15'); a('s_add_u32 s38, s38, s39'); a(f's_add_u32 s38, s38, 0x{POFF - 16 * PB:x}')
            if 'D' in self.wb: a(f's_mov_b32 s38, 0x{OOB:x}')
            for i in range(2 if self.h16 else 4): self.vm(f'buffer_store_dwordx4 v[20:23], v1, {WS}, s38 offen offset:{i * 1024} sc1' + self.N('c'), 'arm')
    def pquad(self, d):
        if self.h16: self.a(f's_lshl_b32 {d}, s3, 11'); return
        self.a(f's_and_b32 {d}, s3, 2'); self.a(f's_add_u32 {d}, {d}, s3'); self.a(f's_lshl_b32 {d}, {d}, 12')
    def announce(self, bar=True):
        a = self.a
        if bar: self.vmwait('arm'); a('s_barrier')
        assert 'arm' not in self.cq
        self.signal(28, 29, self.CNTA, 's9')
        self.stamp(21, None, 30)
    def chain_common(self):
        a = self.a
        a('s_lshl4_add_u32 s2, s38, s36'); a('s_mov_b32 s8, s2'); a('s_mov_b32 s9, s5'); a('s_mov_b32 s10, 0')
        if self.diag: a('s_mov_b32 s61, s2'); self.diagbase()
        a('v_lshlrev_b32 v1, 4, v0')
        self.bits('v2', 'v0', 'v6', [(0, 1, 4), (4, 2, 5)])
        self.bits('v4', 'v0', 'v6', [(1, 1, 0), (3, 1, 2), (2, 1, 3)])
        a('s_lshl_b32 s98, s3, 13'); a(f's_add_u32 s98, s98, {self.RING0}'); a('s_movk_i32 s99, 1024')
        a('s_mul_i32 s32, s3, 7168'); a(f's_add_u32 s32, s32, {self.RING0}')
        self.claim(28, 29, self.vCL)
        self.srd(16, 86, 0x20000000)
        self.stamp(0, None, 30)
        a('s_cmp_lt_u32 s2, 16'); a('s_cbranch_scc1 L_roleOQ')
        self.cq = ['init']
        if self.wtlb:
            lo = 30 if self.wtlb == 1 else 16; nw = 4 * (32 - lo)
            a(f's_cmp_lt_u32 s2, {lo}'); a('s_cbranch_scc1 L_notlb')
            a('v_lshlrev_b32 v6, 12, v0'); a(f's_sub_u32 s33, s2, {lo}'); a('s_lshl2_add_u32 s33, s33, s3'); a('s_lshl_b32 s33, s33, 18')
            for lo_, size in ((70, 448 * 8192), (76, 448 * 3584), (78, 448 * 3584), (72, 4096 * 896), (80, 1792 * 896)):
                self.srd(20, lo_, size)
                for i in range(-(-size // (nw << 18))):
                    if i: a(f's_add_u32 s39, s33, {i * nw << 18}')
                    a(f'buffer_load_dword v64, v6, {W1}, {"s39" if i else "s33"} offen nt')
            a.label('L_notlb')
        if self.hq:
            self.srd(20, 70, 448 * 8192)
            self.bits('v6', 'v0', 'v7', [(0, 5, 4), (5, 1, 13)])
            a('s_sub_u32 s33, s2, 16'); a('s_lshl_b32 s33, s33, 9'); a('s_lshl_b32 s39, s3, 14'); a('s_add_u32 s33, s33, s39')
            a(f's_add_u32 s33, s33, {self.hq[0] * 64 * 8192}')
            for i in range(8 * (self.hq[1] - self.hq[0])):
                self.vm(f'buffer_load_dwordx4 v[64:67], v6, {W1}, s33 offen {self.hpol}', 'hq'); a('s_add_u32 s33, s33, 65536')
                if i == 0: self.stamp(61, None, 30)
                if i == 8: self.stamp(63, None, 30)
                if i == 9: self.arm()
                if i == 23: self.announce()
        self.cq0 = list(self.cq)
        a('s_cmp_lt_u32 s2, 30'); a('s_cbranch_scc1 L_roleF')
    def consts(self):
        a = self.a
        a('v_and_b32 v6, 1, v0'); a('v_cmp_eq_u32 vcc, 1, v6')
        a('v_mov_b32 v3, 0x44444444'); a('v_mov_b32 v6, 0xeeeeeeee'); a('v_cndmask_b32 v3, v3, v6, vcc')
        self.bits('v9', 'v0', 'v6', [(0, 5, 3), (5, 1, 10)])
        a('v_mul_u32_u24 v5, 6144, v6'); a('s_mul_i32 s38, s3, 1792'); a('v_add3_u32 v5, v5, v9, s38')
        a(f's_mov_b32 s57, 0x{OOB:x}'); a(f's_mov_b32 s56, 0x{OOB:x}'); a('s_mov_b32 s49, -1')
    vCL = 46
    def preready(self, streams=False):
        self.vm(f'global_load_dwordx2 v[46:47], v18, {DBG} offset:{self.CNTA} sc1', 'cnt')
    def ready(self, streams=False):
        a = self.a
        self.stamp(22, None, 28)
        self.vmwait('cnt')
        self.wait_counter(18, 46, 22, self.CNTA, NCHAIN, pre=True)
        a('s_mov_b32 s56, 0')
        if self.dual: a('s_movk_i32 s57, 0x2000')
        if self.dual and self.role != 'W':
            a('v_readfirstlane_b32 s38, v47'); a('s_getreg_b32 s10, hwreg(HW_REG_XCC_ID, 2, 1)'); a('s_xor_b32 s10, s10, s38'); a('s_and_b32 s10, s10, 1'); a('s_lshl_b32 s10, s10, 13')
            if self.diag:
                a('v_mov_b32 v28, s10'); a('v_mov_b32 v29, 0')
                a(f'buffer_store_dword v28, v29, {WS}, s61 offen offset:{62 * 4}')
        self.stamp(1, None, 28)
    def near(self):
        if not self.dual: return
        a = self.a; l = self.lab('L_nr')
        assert self.hs <= 12
        a('s_mul_i32 s38, s3, 1536'); a(f's_add_u32 s11, s38, 0x{XBOFF:x}')
        a('s_mov_b32 s4, -1'); a('s_mov_b32 s5, -1'); a(f's_mov_b32 s6, {2 * self.hs}')
        a('s_waitcnt vmcnt(0)')
        a.label(l)
        a('s_waitcnt lgkmcnt(0)'); a('s_memtime s[58:59]'); a('s_waitcnt lgkmcnt(0)')
        a(f'buffer_load_dword v28, off, {WS}, s11 sc1'); a('s_waitcnt vmcnt(0)')
        a('s_memtime s[38:39]'); a('s_waitcnt lgkmcnt(0)')
        a('s_sub_u32 s38, s38, s58'); a('s_min_u32 s38, s38, s4'); a('s_mov_b32 s4, s5'); a('s_mov_b32 s5, s38')
        a('s_xor_b32 s11, s11, 0x2000'); a('s_and_b32 s38, s6, 1'); a('s_lshl_b32 s38, s38, 7'); a('s_add_u32 s11, s11, s38')
        a('s_sub_u32 s6, s6, 1'); a('s_cmp_lg_u32 s6, 0'); a(f's_cbranch_scc1 {l}')
        a('s_cmp_gt_u32 s4, s5'); a('s_cselect_b32 s10, 0x2000, 0')
        if self.hforce is not None: a(f's_xor_b32 s10, s10, {self.hforce}')
        a('s_getreg_b32 s38, hwreg(HW_REG_XCC_ID, 2, 1)'); a('s_lshr_b32 s39, s10, 13'); a('s_xor_b32 s38, s38, s39')
        a('v_mov_b32 v28, s38'); a('v_mov_b32 v29, 0')
        a('s_cmp_eq_u32 s3, 0'); a('s_cselect_b64 exec, 1, 0')
        a(f'global_store_dword v29, v28, {DBG} offset:{self.CNTA + 4} sc1'); a('s_mov_b64 exec, -1')
        if self.diag:
            self.stamp(20, None, 28)
            a('s_lshl_b32 s38, s4, 16'); a('s_add_u32 s38, s38, s5'); a('v_mov_b32 v28, s38'); a('v_mov_b32 v29, 0')
            a(f'buffer_store_dword v28, v29, {WS}, s61 offen offset:{62 * 4}')
    def lstore(self, op, data, voff, sp, ss):
        self.a(f'buffer_store_{op} {data}, {voff}, {WS}, {ss} offen sc1' + self.N('l'))
        if self.dual: self.a(f'buffer_store_{op} {data}, {voff}, {WS}, {sp} offen sc1' + self.N('l'))
    def dma_sub(self, name, srd, voff, tab, adv):
        a = self.a
        a.label(name)
        for e in range(8):
            a(f'buffer_load_dwordx4 {voff}, {srd}, s{tab + e} offen nt lds')
            if e < 7: a('s_add_u32 m0, m0, s99')
        a(f'v_add_u32 {voff}, 0x{adv:x}, {voff}')
        a('s_setpc_b64 s[96:97]')
    def dma_subB(self, name, srd, voff):
        a = self.a
        a.label(name)
        for cb in range(7):
            a(f'buffer_load_dwordx4 {voff}, {srd}, 0 offen offset:{128 * cb} nt lds')
            if cb < 6: a('s_add_u32 m0, m0, 896')
        a(f'v_add_u32 {voff}, 0x{32 * 896:x}, {voff}')
        a('s_setpc_b64 s[96:97]')
    def poff(self, p): return p['off'] if 'off' in p else p['slot'] * 32768
    def issue(self, p):
        self.a(f's_add_u32 m0, {"s32" if p["B"] else "s98"}, {self.poff(p)}'); self.a(f's_call_b64 s[96:97], {p["sub"]}')
        self.cq += [id(p)] * (7 if p['B'] else 8)
    def readout(self, p, sel=None):
        self.a(f'v_add_u32 v6, {self.RING0 + self.poff(p)}, {"v5" if p["B"] else "v9"}')
        for d, imm in p['rd']:
            if sel is None or sel(d): self.a(f'ds_read_b64_tr_b16 {rr(d, 2)}, v6 offset:{imm}')
    def consume(self, p, nxt=None, hook=None):
        self.vmwait(id(p))
        self.a('s_waitcnt lgkmcnt(0)'); self.a('s_barrier')
        if hook: hook()
        for x in (nxt if isinstance(nxt, list) else [nxt] if nxt else []):
            if 'off' not in x: assert x['slot'] == self.lastslot, (x['slot'], self.lastslot)
            self.issue(x)
        self.readout(p); self.lastslot = p.get('slot')
    def table(self, tab, rs):
        for e in range(8): self.a(f's_mov_b32 s{tab + e}, 0x{(16 * (e & 1) + 2 * ((e >> 1) & 1) + 32 * (e >> 2)) * rs:x}')
    def typeB(self, voff, rowbase_s):
        a = self.a
        a('s_and_b32 s38, s3, 1'); a('s_lshl_b32 s38, s38, 4'); a(f's_add_u32 s38, s38, {rowbase_s}'); a('s_and_b32 s39, s3, 2'); a('s_add_u32 s38, s38, s39')
        a(f'v_add_u32 v6, s38, v4'); a(f'v_mad_u32_u24 {voff}, v6, s99, v2'); a(f'v_lshlrev_b32 v6, 7, v6'); a(f'v_sub_u32 {voff}, {voff}, v6')
    def typeB_reads(self, breg, ks, half):
        return [(breg(jj, ks) + 2 * (e1 + 2 * half), 2 * e1 * 7168 + jj * 256) for jj in range(7) for e1 in range(2)]
    def x0off(self):
        a = self.a
        a(f'v_mov_b32 v10, 0x{OOB:x}')
        self.bits('v6', 'v0', 'v7', [(0, 4, 3), (4, 1, 2), (5, 1, 7)])
        a('s_mul_i32 s38, s3, 224'); a('s_lshl_b32 s39, s3, 5'); a(f's_add_u32 s39, s39, {896 - 224}')
        a('v_cmp_gt_u32 vcc, 224, v6')
        a('v_add_u32 v15, s38, v6'); a('v_add_u32 v6, s39, v6')
        a('v_cndmask_b32 v12, v10, v15, vcc'); a('v_cndmask_b32 v15, v6, v15, vcc')
        a('s_lshl_b32 s38, s3, 9'); a('v_lshl_add_u32 v14, v0, 3, s38'); a('v_cndmask_b32 v14, v10, v14, vcc')
    def gather_offs(self):
        a = self.a
        self.bits('v13', 'v0', 'v6', [(0, 4, 4), (4, 1, 12), (5, 1, 14)])
        a('s_lshl_b32 s38, s3, 8'); a('v_add_u32 v13, s38, v13'); a(f'v_lshl_add_u32 v{self.vRO}, v0, 2, s38')
        a('v_cmp_gt_u32 vcc, 48, v0'); a('v_mov_b32 v18, 0'); a('v_mov_b32 v19, 0'); a('v_cndmask_b32 v8, v10, v13, vcc')
        a('v_and_b32 v6, 8, v0'); a('v_cmp_eq_u32 vcc, 8, v6'); a('v_mov_b32 v6, 0x3c00'); a('v_mov_b32 v7, 0x3c000000')
        a('v_cndmask_b32 v6, v6, v7, vcc'); a('v_and_b32 v7, 7, v0')
        for r, key in enumerate((0, 1, 4, 5)):
            a(f'v_cmp_eq_u32 vcc, {key}, v7'); a('s_nop 1'); a(f'v_cndmask_b32 v{self.vAC + r}, 0, v6, vcc')
    def resid_poll(self, soff):
        a = self.a; l = self.lab('L_rp')
        a.label(l)
        self.timeout()
        a(f'buffer_load_dwordx2 v[16:17], v14, {WS}, {soff} offen sc1'); a('s_waitcnt vmcnt(0)')
        a('v_max_u32 v6, v16, v17'); a('v_cmp_eq_u32 vcc, -1, v6'); a(f's_cbranch_vccnz {l}')
    def repoll(self, loads, full, comp, done):
        a = self.a; p = self.lab('L_mp'); i_ = self.lab('L_mi')
        M = ['vcc' if i == 4 else f's[{88 + 2 * i}:{89 + 2 * i}]' for i in range(len(loads))]
        def masks(to):
            for m, (r, t) in zip(M, loads): a(f'v_cmp_eq_u32 {m}, -1, v{r}')
            a(f's_or_b64 s[38:39], {M[0]}, {M[1]}')
            for m in M[2:]: a(f's_or_b64 s[38:39], s[38:39], {m}')
            a(f's_cbranch_scc0 {to}')
        if done:
            r_ = self.lab('L_mr'); a(f's_cbranch_vccnz {r_}')
            a('s_cmp_eq_u32 s38, 0'); a(f's_cbranch_scc1 {full}'); a(f's_branch {done}')
            a.label(r_)
        masks(full); a(f's_branch {i_}')
        a.label(p)
        masks(comp)
        a.label(i_)
        self.timeout()
        for m, (r, t) in list(zip(M, loads))[4:] + list(zip(M, loads))[:4]: a(f's_mov_b64 exec, {m}'); a(t)
        a('s_mov_b64 exec, -1')
        a(f's_waitcnt vmcnt({len(loads) * (self.mp - 1)})')
        a(f's_branch {p}')
    def gather_sum(self, soff, G, full, res=None):
        a = self.a; l = self.lab('L_g'); d = self.lab('L_gd'); c = self.lab('L_gc')
        mp = self.mp and self.role in self.mpr
        if self.role in self.lp:
            w = self.lab('L_gw')
            a(f's_movk_i32 s38, {self.lp[self.role]}'); a(f's_bitcmp1_b32 s38, {"s53" if self.role == "O" else "s49"}'); a(f's_cbranch_scc0 {l}')
            a.label(w)
            a('s_mov_b64 exec, -1')
            self.timeout()
            a('s_mov_b32 exec_lo, 0x10001'); a('s_mov_b32 exec_hi, 0x10001')
            a(f'buffer_load_dword v20, v13, {WS}, {soff} offen sc1'); a('s_waitcnt vmcnt(0)')
            a('v_cmp_ne_u32 vcc, -1, v20'); a(f's_cbranch_vccz {w}')
            a('s_mov_b64 exec, -1')
        a.label(l)
        self.timeout()
        ld = [(G + 4 * i, f'buffer_load_dwordx4 {vr(G + 4 * i, 4)}, {"v13" if full or i < 2 else "v8"}, {WS}, {soff} offen offset:{1024 * i} sc1') for i in range(4)]
        if res: ld.append((16, f'buffer_load_dwordx2 v[16:17], v14, {WS}, {res} offen sc1'))
        for r, t in ld[4:] + ld[:4]: a(t)
        def comp(w):
            for i in range(4):
                if w: a(f's_waitcnt vmcnt({3 - i})')
                a(f'v_mfma_f32_16x16x32_f16 v[20:23], {vr(self.vAC, 4)}, {vr(G + 4 * i, 4)}, {"v[16:19]" if i == 0 else "v[20:23]"}')
            a('v_cmp_u_f32 vcc, v20, v21')
            a('v_cvt_pk_bf16_f32 v24, v20, v21')
        comp(True)
        a(f's_cbranch_vccz {d}')
        self.maxtree(list(range(G, G + 16)) + ([16, 17] if res else []), 6)
        if mp:
            a(f's_cbranch_vccz {d}')
            self.repoll(ld, l, c, None)
            a.label(c); comp(False); a(f's_cbranch_vccnz {l}')
        else: a(f's_cbranch_vccnz {l}')
        a.label(d)
    def xrow_ops(self, sp, ss):
        return ['v_lshlrev_b32 v20, 16, v24', 'v_and_b32 v21, 0xffff0000, v24',
                f'buffer_store_dwordx2 v[20:21], v14, {WS}, {ss} offen sc1' + self.N('l')] + ([f'buffer_store_dwordx2 v[20:21], v14, {WS}, {sp} offen sc1' + self.N('l')] if self.dual else [])
    def stats_ops(self, X):
        o = []
        for i in range(4):
            o += [f'v_lshlrev_b32 v26, 16, v{X+i}', f'v_and_b32 v27, 0xffff0000, v{X+i}']
            if i == 0: o += ['v_add_f32 v28, v26, v27', 'v_mul_f32 v30, v26, v26', 'v_fmac_f32 v30, v27, v27']
            else: o += ['v_add_f32 v28, v28, v26', 'v_fmac_f32 v30, v26, v26', 'v_add_f32 v28, v28, v27', 'v_fmac_f32 v30, v27, v27']
        o += [f'v_mov_b32 v26, 0x{f2u(1/448):x}', f'v_mov_b32 v27, 0x{f2u(1e-5):x}', 'v_permlane16_swap_b32 v28, v30', 'v_add_f32 v28, v28, v30']
        for c in ('quad_perm:[1,0,3,2]', 'quad_perm:[2,3,0,1]', 'row_ror:4'):
            o += [None, f'v_add_f32_dpp v28, v28, v28 {c} {FULL}']
        o += [None, f'v_add_f32_dpp v29, v28, v28 row_ror:8 {FULL}', f'v_add_f32_dpp v28, v28, v28 row_ror:8 {FULL}', None,
              'v_permlane32_swap_b32 v28, v29', 'v_add_f32 v28, v28, v29', None,
              'v_readlane_b32 s58, v28, 0', 'v_readlane_b32 s59, v28, 16', None,
              'v_mul_f32 v24, s58, v26', 'v_fmac_f32 v27, s59, v26',
              'v_fma_f32 v27, -v24, v24, v27', 'v_rsq_f32 v25, v27']
        return o
    def gemv(self, ntile, nks, breg, acc, A, fill=(), nother=0):
        a = self.a; fill = list(fill)
        for ks in range(nks):
            a(f's_waitcnt lgkmcnt({min(15, nks - 1 - ks + nother)})')
            for jj in range(ntile):
                a(f'v_smfmac_f32_16x16x64_bf16 {vr(acc + 4 * jj, 4)}, {vr(A + 4 * ks, 4)}, {rr(breg(jj, ks), 8)}, v3')
                for _ in range(2):
                    if fill:
                        x = fill.pop(0)
                        if x: a(x)
        for x in fill:
            if x: a(x)
    def zero(self, base, n):
        for i in range(0, n, 2): self.a(f'v_mov_b64 {vr(base + i, 2)}, 0')
    def rowsel(self, dst, acc, tiles_masks):
        for jj, rm in tiles_masks:
            self.a(f'v_add_f32_dpp v{dst}, v{acc + 4*jj}, v{acc + 4*jj + 1} quad_perm:[0,1,2,3] row_mask:0x{rm:x} bank_mask:0xf')
    def rowout(self, acc, sp, ss):
        a = self.a
        for jj in range(4): self.rowsel(20, acc, [(jj, 1 << jj)])
        for jj in range(3): self.rowsel(21, acc, [(4 + jj, 1 << jj)])
        a('v_cvt_pk_f16_f32 v20, v20, v21'); a('v_min_u32 v20, -2, v20')
        if self.r4:
            n = self.r4; m = {4: 0x11111111, 2: 0x55555555}[n]
            for i in range(1, n): a(f'v_mov_b32_dpp v{20 + i}, v20 quad_perm:[{i},{i},{i if n == 4 else 3},{i if n == 4 else 3}] {FULL}')
            a(f's_mov_b32 exec_lo, 0x{m:x}'); a(f's_mov_b32 exec_hi, 0x{m:x}')
            self.lstore(f'dwordx{n}', vr(20, n), f'v{self.vRO}', sp, ss)
            a('s_mov_b64 exec, -1')
        else: self.lstore('dword', 'v20', f'v{self.vRO}', sp, ss)
    def calc_ib(self):
        a = self.a
        a('s_lshl_b32 s38, s49, 2'); a(f's_lshr_b32 s50, {"0x76352410" if self.reord else "0x73625140"}, s38'); a('s_and_b32 s50, s50, 7')
    def colsum(self, ntile, nks, breg, acc):
        a = self.a
        for r in range(4): a(f'v_mov_b32 v{20 + r}, 0x3f803f80')
        self.zero(acc, 4 * ntile)
        for ks in range(nks):
            for jj in range(ntile):
                a(f'v_smfmac_f32_16x16x64_bf16 {vr(acc + 4 * jj, 4)}, v[20:23], {rr(breg(jj, ks), 8)}, v3')
    def pinit(self, ib0):
        a = self.a
        for r in range(20, 24): a(f'v_mov_b32 v{r}, -1')
        a(f's_add_u32 s38, s3, {ib0}'); a('s_lshl_b32 s38, s38, 18'); a('s_add_u32 s38, s38, s41')
        a('v_lshlrev_b32 v6, 4, v0')
        for i in range(16):
            if i and i % 4 == 0: a('s_add_u32 s38, s38, 4096')
            self.vm(f'buffer_store_dwordx4 v[20:23], v6, {WS}, s38 offen offset:{(i % 4) * 1024} sc1', 'pinit')

    def roleOQ(self):
        a = self.a
        TOG = ['v_xor_b32 v15, 0x400, v15', 'v_xor_b32 v2, 0x400, v2', 'v_xor_b32 v1, 0x400, v1', f'v_xor_b32 v{self.vOW}, 0x400, v{self.vOW}']
        def qreg(jj, ks): return 96 + (ks * 4 + jj) * 8
        def oreg(jj, ks):
            if ks == 3 and jj < 4: return 288 + 8 * jj
            i = jj * 3 + ks if ks < 3 else 21 + jj - 4
            return 320 + 8 * i
        inwin = lambda d: 288 <= d < 320
        X0 = 4
        self.dma_sub('L_dmaQ', W1, f'v{self.vDQ}', 88, 64 * 8192)
        self.dma_subB('L_dmaO', W2, f'v{self.vDO}')
        P = 76; ML = 92; ACC = 48; A = 76
        a.label('L_Osub')
        self.calc_ib()
        if self.ja and self.ja[0]:
            a('s_and_b32 s38, s50, 1'); a('s_lshl_b32 s38, s38, 20'); a(f's_add_u32 s38, s38, {PP2}'); a('s_bitcmp1_b32 s50, 2'); a('s_cselect_b32 s44, s38, 0'); a('s_add_u32 s44, s44, s41')
        else:
            a('s_and_b32 s38, s50, 3'); a('s_lshl_b32 s44, s38, 20'); a('s_add_u32 s44, s44, s41')
            a('s_cmp_eq_u32 s38, 3'); a('s_cselect_b32 s38, s55, 0'); a('s_add_u32 s44, s44, s38')
            a('s_lshr_b32 s38, s50, 2'); a('s_lshl_b32 s38, s38, 19'); a('s_add_u32 s44, s44, s38')
        if self.h16: a('s_add_u32 s46, s44, 4096')
        else: a('s_add_u32 s45, s44, 4096'); a('s_add_u32 s46, s44, 16384'); a('s_add_u32 s47, s44, 20480')
        a('s_lshl_b32 s48, s50, 15'); a('s_add_u32 s48, s48, s40'); a('s_add_u32 s51, s48, s56'); a('s_add_u32 s48, s48, s57')
        self.zero(ACC, 28)
        a('s_cmp_lt_i32 s49, 0'); a('s_cbranch_scc1 L_Ook')
        a.label('L_Oheavy')
        self.timeout()
        ld = [(P + 4 * n, f'buffer_load_dwordx4 {vr(P + 4*n, 4)}, v{self.vPO2 if n == 3 else self.vPO}, {WS}, s{44+n} offen sc1') for n in range(4)]
        if self.h16: ld = [(P + 2 * n, f'buffer_load_dwordx2 {vr(P + 2*n, 2)}, v{self.vPO2 if n == 3 else self.vPO}, {WS}, s{44 + (n & 2)} offen offset:{(n & 1) * 2048} sc1') for n in range(4)]
        ld.append((ML, f'buffer_load_dwordx2 {vr(ML, 2)}, v{self.vMLO}, {WS}, s44 offen sc1'))
        for r, t in ld[4:] + ld[:4]: a(t)
        if self.mp and 'P' in self.mpr: a('s_mov_b32 s38, 1')
        if self.h16:
            a('s_cmp_eq_u32 s55, 1'); a('s_cbranch_scc1 L_Ocomp')
            a(f'buffer_load_dwordx2 {vr(P + 12, 2)}, v{self.vMLO}, {WS}, s44 offen offset:128 sc1'); a('s_waitcnt vmcnt(0)')
            a(f'v_and_b32 v{ML}, v{ML}, v{P + 12}'); a(f'v_and_b32 v{ML + 1}, v{ML + 1}, v{P + 13}')
        a.label('L_Ocomp')
        a('s_waitcnt vmcnt(4)')
        a(f'v_max_f32_dpp v20, v{ML}, v{ML} quad_perm:[1,0,3,2] {FULL}')
        for c in ('quad_perm:[2,3,0,1]', 'row_ror:4', 'row_ror:8'): a(f'v_max_f32_dpp v20, v20, v20 {c} {FULL}')
        a(f'v_sub_f32 v20, v{ML}, v20'); a('v_exp_f32 v20, v20'); a('v_cndmask_b32 v20, 0, v20, s[42:43]')
        a(f'v_mul_f32 v21, v20, abs(v{ML+1})')
        lred = [f'v_add_f32_dpp v21, v21, v21 {c} {FULL}' for c in ('quad_perm:[1,0,3,2]', 'quad_perm:[2,3,0,1]', 'row_ror:4', 'row_ror:8')]
        if self.h16:
            for n in range(4): a(f'v_mov_b32_dpp v{P + 8 + n}, v21 row_newbcast:{n} {FULL}')
            for n in range(4):
                a(f's_waitcnt vmcnt({3 - n})')
                for r in range(4):
                    a(f'v_fma_mix_f32 v{24 + r}, v{P + 8 + n}, v{P + 2*n + r // 2}, {0 if n == 0 else f"v{24 + r}"} op_sel:[0,{r & 1},0] op_sel_hi:[0,1,0]')
                a(lred[n])
        for n in range(0 if self.h16 else 4):
            a(f's_waitcnt vmcnt({3 - n})')
            for r in range(4):
                a(f'v_{"mul" if n == 0 else "fmac"}_f32_dpp v{24 + r}, v20, v{P + 4*n + r} row_newbcast:{n} {FULL}')
            a(lred[n])
        a('v_permlane16_swap_b32 v24, v25'); a('v_permlane16_swap_b32 v26, v27'); a('v_rcp_f32 v21, v21')
        a('v_add_f32 v24, v24, v25'); a('v_add_f32 v26, v26, v27')
        a('v_permlane32_swap_b32 v24, v26'); a('v_add_f32 v24, v24, v26'); a('v_mul_f32 v24, v24, v21')
        a('v_cmp_u_f32 vcc, v24, v24')
        a('v_cvt_pk_bf16_f32 v24, v24, v24')
        a('s_cbranch_vccz L_Ook0')
        self.maxtree(list(range(P, P + (8 if self.h16 else 16))) + [ML, ML + 1], 6)
        if self.mp and 'P' in self.mpr: self.repoll(ld, 'L_Oheavy', 'L_Ocomp', 'L_Ook0')
        else: a('s_cbranch_vccnz L_Oheavy')
        a.label('L_Ook0')
        if self.split:
            a('s_cmp_lg_u32 s49, 0'); a('s_cbranch_scc1 L_Ook')
            a('s_setpc_b64 s[34:35]')
        a.label('L_Ook')
        a(f'ds_write_b16 v{self.vOW}, v24'); a('s_waitcnt lgkmcnt(0)'); a('s_barrier')
        for ks in range(4): a(f'ds_read_b128 {vr(A + 4*ks, 4)}, v2 offset:{128 * ks}')
        self.stamp(3, 's49', 28)
        self.gemv(7, 4, oreg, ACC, A, fill=TOG + ['v_mov_b32 v21, 0'])
        self.rowout(ACC, 's48', 's51')
        self.stamp(12, 's49', 28)
        a('s_add_u32 s49, s49, 1')
        a('s_setpc_b64 s[34:35]')
        G = 64; ACC = 48; A = 64; X = 92
        a.label('L_Qsub')
        self.zero(ACC, 16)
        a('s_lshl_b32 s44, s53, 13'); a('s_add_u32 s44, s44, s54')
        a('s_lshl_b32 s38, s53, 11'); a(f's_add_u32 s47, s38, 0x{XAOFF - 4 * 2048:x}'); a('s_add_u32 s47, s47, s10')
        a('s_add_u32 s45, s38, s33'); a('s_add_u32 s46, s45, s56'); a('s_add_u32 s45, s45, s57')
        a('s_lshl_b32 s48, s53, 15'); a(f's_add_u32 s48, s48, 0x{ZOFF - 4 * 32768:x}'); a('s_add_u32 s48, s48, s10')
        a('s_cmp_lt_u32 s53, 4'); a('s_cbranch_scc1 L_Qx')
        if self.ja:
            assert not self.oarm and not self.home and not self.mp
            a('v_mov_b64 v[24:25], -1'); a('v_mov_b64 v[26:27], -1'); a('v_lshlrev_b32 v6, 4, v0')
            if self.ja[0]: a('s_and_b32 s38, s53, 1'); a('s_lshl_b32 s38, s38, 20'); a('s_add_u32 s38, s38, s11'); a(f's_sub_u32 s39, s11, {PP2}')
            else: a('s_and_b32 s38, s53, 3'); a('s_lshl_b32 s38, s38, 20'); a('s_add_u32 s38, s38, s11'); a(f's_add_u32 s39, s38, {PP2}')
            a('s_cmp_eq_u32 s53, 7'); a(f's_cselect_b32 s39, 0x{OOB:x}, s39')
            a('s_cmp_eq_u32 s9, 1'); a('s_cbranch_scc1 L_Qal')
            K = 2 if self.h16 else 4
            def put(pol):
                for i in range(2 * K):
                    if self.h16 and i == 2 and len(self.ja) > 2: a('s_cmp_eq_u32 s3, 3'); a('s_cselect_b64 exec, 0xffff, -1')
                    a(f'buffer_store_dwordx4 v[24:27], v6, {WS}, s{38 + i % 2} offen offset:{i // 2 * 1024} {pol}')
            put('sc1')
            a('s_branch L_Qam')
            a.label('L_Qal')
            put(self.ja[1])
            a.label('L_Qam')
            if self.h16 and len(self.ja) > 2: a('s_mov_b64 exec, -1')
        if not self.mres: self.resid_poll('s47')
        self.gather_sum('s48', G, False, 's47' if self.mres else None)
        a.label('L_Qx')
        a('ds_write_b32 v15, v24'); a('s_waitcnt lgkmcnt(0)'); a('s_barrier')
        if self.mp and 'O' in self.mpr:
            l = self.lab('L_qw'); a('s_cmp_lt_u32 s53, 4'); a(f's_cbranch_scc1 {l}'); a('s_waitcnt vmcnt(0)'); a.label(l)
        for ks in range(7): a(f'ds_read_b128 {vr(A + 4*ks, 4)}, v2 offset:{128 * ks}')
        a(f'ds_read_b128 {vr(X, 4)}, v1')
        for x in self.xrow_ops('s45', 's46'): a(x)
        self.stamp(24, 's53', 28)
        fill = TOG + [None, 's_waitcnt lgkmcnt(0)'] + self.stats_ops(X)
        self.gemv(4, 7, qreg, ACC, A, fill=fill, nother=1)
        a(f'v_mul_f32 v21, v24, v{self.vCS}'); a('s_cmp_eq_u32 s9, 1')
        self.rowsel(20, ACC, [(jj, 1 << jj) for jj in range(4)])
        a('v_sub_f32 v20, v20, v21'); a('v_mul_f32 v20, v20, v25')
        a('v_cvt_pk_bf16_f32 v20, v20, v20'); a('v_min_u32 v20, -2, v20')
        if self.loc:
            a('s_cbranch_scc1 L_Qloc')
            a(f'buffer_store_short v20, v{self.vQS}, {WS}, s44 offen sc1'); a('s_branch L_Qst')
            a.label('L_Qloc'); a(f'buffer_store_short v20, v{self.vQS}, {WS}, s44 offen'); a.label('L_Qst')
        else: a(f'buffer_store_short v20, v{self.vQS}, {WS}, s44 offen sc1')
        self.stamp(33, 's53', 28)
        if self.oarm: a('s_lshl_b32 s38, s53, 20'); a('s_add_u32 s38, s38, s11'); a(f's_add_u32 s39, s38, {PP2}')
        a('s_add_u32 s53, s53, 1')
        if self.oarm:
            a('s_cmp_eq_u32 s53, 8'); a('s_cbranch_scc1 L_Qret')
            a('v_mov_b64 v[24:25], -1'); a('v_mov_b64 v[26:27], -1'); a('v_lshlrev_b32 v6, 4, v0')
            for i in range(8): a(f'buffer_store_dwordx4 v[24:27], v6, {WS}, s{38 + i // 4} offen offset:{i % 4 * 1024} sc1')
            a.label('L_Qret')
        a('s_setpc_b64 s[34:35]')
        a.label('L_roleOQ')
        self.stamp(61, None, 30)
        self.cq = ['init']
        a('s_lshl_b32 s38, s2, 9')
        self.srd(20, 70, 448 * 8192)
        a('s_lshl_b32 s39, s3, 7'); a('s_add_u32 s38, s38, s39')
        a(f'v_lshl_add_u32 v{self.vDQ}, v4, 13, s38'); a(f'v_add_u32 v{self.vDQ}, v{self.vDQ}, v2')
        self.table(88, 8192)
        R4 = self.ring4
        pq = [dict(sub='L_dmaQ', B=0, slot=(ks + 2 * R4) % 4, rd=[(qreg(jj, ks) + 2 * rp, rp * 2048 + jj * 256) for jj in range(4) for rp in range(4)]) for ks in range(7)]
        po = [dict(sub='L_dmaO', B=1, slot=(3, 0, 1)[i % 3], rd=self.typeB_reads(oreg, i // 2, i % 2)) for i in range(8)]
        if R4:
            for i, p in enumerate(po): p['off'] = 32768 + 28672 * (i % 4)
        self.issue(pq[0])
        self.stamp(63, None, 30)
        self.srd(28, 64, 3584)
        XL = 48
        a(f'v_mov_b32 v10, 0x{OOB:x}')
        a('v_cmp_gt_u32 vcc, 56, v0'); a('v_bfe_u32 v7, v0, 2, 2'); a('v_mul_u32_u24 v7, 896, v7'); a('v_cndmask_b32 v6, v10, v1, vcc')
        for b in range(4): self.vm(f'buffer_load_dwordx4 {vr(XL + 4 * b, 4)}, v6, {W3}, 0 offen offset:{b * 896}', 'xl')
        a('v_add_u32 v7, v7, v2')
        a('s_mov_b32 s38, 0x3f803f80'); a('s_mov_b32 s39, s38')
        for r in range(0, 28, 2): a(f'v_mov_b64 {vr(A + r, 2)}, s[38:39]')
        a('s_mov_b32 exec_lo, 0x33333333'); a('s_mov_b32 exec_hi, 0x33333333')
        for ks in range(7): self.vm(f'buffer_load_dwordx4 {vr(A + 4 * ks, 4)}, v7, {W3}, 0 offen offset:{128 * ks}', 'xa')
        a('s_mov_b64 exec, -1')
        if not self.ean: self.issue(pq[1])
        self.stamp(56, None, 30)
        self.srd(24, 72, 4096 * 896)
        a('s_lshl_b32 s39, s2, 8')
        self.typeB(f'v{self.vDO}', 's39')
        self.consts(); a('s_lshl_b32 s38, s3, 13'); a('v_add_u32 v9, s38, v9')
        if self.up4: self.issue(pq[2]); self.issue(pq[3])
        self.stamp(57, None, 30)
        self.arm(True)
        self.stamp(58, None, 30)
        if not self.up4: self.issue(pq[1 if self.ean else 2])
        self.vmwait('xl')
        self.stamp(59, None, 30)
        for b in range(4):
            for x in self.stats_ops(XL + 4 * b):
                if x: a(x)
            a(f'v_mov_b32_dpp v92, v24 quad_perm:[0,1,2,3] row_mask:0x{1 << b:x} bank_mask:0xf')
            a(f'v_mov_b32_dpp v93, v25 quad_perm:[0,1,2,3] row_mask:0x{1 << b:x} bank_mask:0xf')
        if self.ean: self.announce(); self.issue(pq[2])
        if not self.up4: self.issue(pq[3])
        self.zero(ACC, 16)
        self.bits('v94', 'v0', 'v6', [(0, 1, 1), (2, 1, 2), (3, 1, 4), (1, 1, 5), (4, 2, 13)])
        a('s_lshl_b32 s38, s3, 7'); a('s_lshl_b32 s44, s2, 9'); a('s_add_u32 s44, s38, s44')
        self.stamp(60, None, 30)
        nxt = {1: pq[4], 2: pq[5], 3: pq[6], 4: po[0]}
        if R4 == 1: nxt[5] = po[1]; nxt[6] = [po[2], po[3]]
        def q1mm(ks):
            for jj in range(4): a(f'v_smfmac_f32_16x16x64_bf16 {vr(ACC + 4 * jj, 4)}, {vr(A + 4 * ks, 4)}, {rr(qreg(jj, ks), 8)}, v3')
        hooks = {} if self.ean else {(3 if self.up4 else 2): lambda: self.announce(False)}
        for i in range(7):
            if i == 3: self.vmwait('arm')
            self.consume(pq[i], nxt.get(i), hooks.get(i))
            self.stamp(41 + i, None, 26)
            if i: q1mm(i - 1)
        a('s_waitcnt lgkmcnt(0)')
        q1mm(6)
        self.stamp(20, None, 28)
        for jj in range(4):
            a(f'v_add_f32 v{20 + jj}, v{ACC + 4*jj}, v{ACC + 4*jj + 1}'); a(f'v_add_f32 v{24 + jj}, v{ACC + 4*jj + 2}, v{ACC + 4*jj + 3}')
        for jj in range(4): a(f'v_fma_f32 v{20 + jj}, -v92, v{24 + jj}, v{20 + jj}')
        for jj in range(4): a(f'v_mul_f32 v{20 + jj}, v{20 + jj}, v93')
        for jj in range(4): a(f'v_cvt_pk_bf16_f32 v{20 + jj}, v{20 + jj}, v{20 + jj}')
        for jj in range(4): a(f'v_min_u32 v{20 + jj}, -2, v{20 + jj}')
        for jj in range(4): self.vm(f'buffer_store_short v{20 + jj}, v94, {WS}, s44 offen offset:{(jj & 1) * 8 + (jj >> 1) * 64} sc1')
        for jj in range(4): a(f'v_mov_b32_dpp v{self.vCS}, v{24 + jj} quad_perm:[0,1,2,3] row_mask:0x{1 << jj:x} bank_mask:0xf')
        self.stamp(35, None, 28)
        if R4 != 1: self.issue(po[1]); self.issue(po[2])
        if R4 == 3: self.issue(po[3])
        a('s_mov_b32 s55, 0'); a(f's_lshl_b32 s41, s2, 15'); a(f's_add_u32 s41, s41, 0x{POFF:x}')
        if self.ja: self.pquad('s11'); a('s_add_u32 s11, s11, s41'); a(f's_add_u32 s11, s11, {PP2}')
        if self.oarm: self.pquad('s11'); a('s_add_u32 s11, s11, s41'); a(f's_sub_u32 s11, s11, {3 * PIB - PP2}')
        self.x0off(); self.gather_offs()
        a('s_lshl_b32 s40, s2, 10'); a('s_and_b32 s38, s40, 0x2000'); a('s_add_u32 s40, s40, s38'); a(f's_add_u32 s40, s40, 0x{YOFF:x}')
        PO, PO2, MO, OW = self.vPO, self.vPO2, self.vMLO, self.vOW
        self.bits(f'v{PO}', 'v0', 'v6', [(0, 4, 3), (4, 2, 9)] if self.h16 else [(0, 4, 4), (4, 2, 10)])
        a(f's_lshl_b32 s38, s3, {7 if self.h16 else 8}'); a(f'v_add_u32 v{PO}, s38, v{PO}')
        a('v_cmp_gt_u32 vcc, 32, v0'); a('v_lshrrev_b32 v6, 4, v0'); a('v_bfe_u32 v7, v0, 2, 2'); a(f'v_cndmask_b32 v{PO2}, v10, v{PO}, vcc')
        a('v_add_u32 v6, v6, v7'); a('v_and_b32 v6, 3, v6')
        a('v_and_b32 v7, 3, v0'); a('v_lshl_add_u32 v6, v7, 2, v6')
        a(f'v_cmp_gt_u32 s[42:43], {NC}, v6'); a(f'v_min_u32 v6, {NC - 1}, v6'); a(f'v_mul_u32_u24 v{MO}, {self.h16 or 128}, v6'); a(f'v_add_u32 v{MO}, {7168 if self.h16 else MLO}, v{MO}')
        self.bits(f'v{OW}', 'v0', 'v6', [(4, 2, 1), (0, 3, 4), (3, 1, 8)])
        a('s_lshr_b32 s38, s3, 1'); a('s_lshl_b32 s38, s38, 7'); a('s_and_b32 s39, s3, 1'); a('s_lshl_b32 s39, s39, 3'); a('s_add_u32 s38, s38, s39')
        a(f'v_add_u32 v{OW}, s38, v{OW}')
        self.bits(f'v{self.vQS}', 'v0', 'v6', [(0, 1, 1), (2, 1, 2), (4, 1, 3), (3, 1, 4), (1, 1, 5), (5, 1, 6)])
        a('s_lshl_b32 s38, s3, 7'); a(f'v_add_u32 v{self.vQS}, s38, v{self.vQS}')
        a('s_cmp_eq_u32 s2, 0'); a(f's_cselect_b32 s33, 0x{XBOFF - 4 * 2048:x}, s57')
        a('s_mov_b32 s53, 3'); a(f's_mov_b32 s54, 0x{OOB:x}')
        for i in range(8):
            self.consume(po[i], (po[i + 3] if 1 <= i < 5 else None) if R4 else po[i + 2] if 1 <= i < 6 else None, (lambda: self.preready(True)) if i == (4 if self.split else 5) else None)
            self.stamp(48 + i, None, 28)
            if i == 1: a('s_call_b64 s[34:35], L_Osub')
            if i == 2: a('s_call_b64 s[34:35], L_Qsub'); a('s_lshl_b32 s54, s2, 9')
            if i == 5 and self.split:
                self.ready(True); a('s_call_b64 s[34:35], L_Osub'); self.cq = []
                a(f'v_cmp_gt_i32 vcc, 0, v{ML+1}'); a('s_cmp_lg_u64 vcc, 0'); a('s_addc_u32 s9, s9, 0')
                if self.h16: a('s_mov_b32 s55, s9')
        assert self.split and self.reord
        self.stamp(1, None, 28)
        a('s_call_b64 s[34:35], L_Ook')
        a.label('L_OQloop')
        a(f's_movk_i32 s38, 0x{self.qmask:x}'); a('s_bitcmp1_b32 s38, s49'); a('s_cbranch_scc0 L_OQin')
        self.readout(pq[6])
        a('s_call_b64 s[34:35], L_Qsub')
        self.readout(po[6], inwin); self.readout(po[7], inwin)
        a.label('L_OQin')
        a('s_call_b64 s[34:35], L_Osub')
        a('s_cmp_lt_u32 s49, 8'); a('s_cbranch_scc1 L_OQloop')
        if '3' in self.wb or '4' in self.wb:
            a(f's_and_b32 s38, s2, {1 if "3" in self.wb else 0}'); a('s_or_b32 s38, s38, s3'); a('s_cbranch_scc1 L_end')
            a('buffer_wbl2 sc1')
        a('s_branch L_end')

    def roleF(self):
        a = self.a
        self.dma_sub('L_dmaG', W1, 'v44', 88, 64 * 3584)
        self.dma_subB('L_dmaD', W3, 'v11')
        breg = lambda jj, ks: 256 + (jj * 7 + ks) * 8
        def dreg(jj, ks):
            i = jj * 2 + ks
            return 256 + 224 + 8 * i if i < 4 else 176 + 8 * (i - 4)
        G = 64; ACC = 48; A = 96; X = 124; CSUM = self.vCS; ACD = 128; X0 = 160
        a.label('L_Fsub')
        self.calc_ib()
        self.zero(ACC, 16); self.zero(ACD, 28)
        a('s_lshl_b32 s38, s50, 15'); a(f's_add_u32 s48, s38, 0x{YOFF:x}'); a('s_add_u32 s48, s48, s10')
        a('s_add_u32 s44, s38, s40'); a('s_add_u32 s51, s44, s56'); a('s_add_u32 s44, s44, s57')
        a('s_lshl_b32 s38, s50, 11'); a(f's_add_u32 s47, s38, 0x{XBOFF - 4 * 2048:x}'); a('s_add_u32 s47, s47, s10')
        a('s_and_b32 s39, s38, 0x2000'); a('s_add_u32 s38, s38, s39')
        a('s_add_u32 s45, s38, s41'); a('s_add_u32 s46, s45, s56'); a('s_add_u32 s45, s45, s57')
        a('s_cmp_lt_i32 s49, 0'); a('s_cbranch_scc1 L_Fx')
        a('s_bitcmp1_b32 s50, 2'); a('s_cbranch_scc1 L_Fr')
        a(f'v_lshlrev_b32 v16, 16, v{X0}'); a(f'v_and_b32 v17, 0xffff0000, v{X0}')
        for i in range(3): a(f'v_mov_b32 v{X0 + i}, v{X0 + i + 1}')
        a('s_branch L_Fg')
        a.label('L_Fr')
        self.resid_poll('s47')
        a.label('L_Fg')
        self.gather_sum('s48', G, True)
        a.label('L_Fx')
        a('ds_write_b32 v15, v24'); a('s_waitcnt lgkmcnt(0)'); a('s_barrier')
        for ks in range(7): a(f'ds_read_b128 {vr(A + 4*ks, 4)}, v2 offset:{128 * ks}')
        a(f'ds_read_b128 {vr(X, 4)}, v1')
        for x in self.xrow_ops('s45', 's46'): a(x)
        self.stamp(3, 's49', 28)
        if self.diag: self.stamp(24, 's49', 28, 's52')
        fill = [None] * 5 + ['s_waitcnt lgkmcnt(0)'] + self.stats_ops(X)
        self.gemv(4, 7, breg, ACC, A, fill=fill, nother=1)
        a(f'v_mul_f32 v22, v24, v{CSUM}'); a(f'v_mul_f32 v23, v24, v{CSUM+1}'); a('v_mul_f32 v25, v25, v25')
        for jj in (0, 2, 1, 3): self.rowsel(20 + jj // 2, ACC, [(jj, 10 if jj & 1 else 5)])
        a('v_sub_f32 v20, v20, v22'); a('v_sub_f32 v21, v21, v23')
        a('v_max_f32 v20, 0, v20'); a('v_mul_f32 v21, v21, v25'); a('v_mul_f32 v20, v20, v21')
        a('v_cvt_pk_bf16_f32 v20, v20, v20')
        a('ds_write_b16 v40, v20'); a('s_waitcnt lgkmcnt(0)'); a('s_barrier')
        for ks in range(2): a(f'ds_read_b128 {vr(A + 4*ks, 4)}, v2 offset:{2048 + 128 * ks}')
        a('v_mov_b32 v21, 0')
        self.gemv(7, 2, dreg, ACD, A)
        self.rowout(ACD, 's44', 's51')
        self.stamp(12, 's49', 28)
        a('s_add_u32 s49, s49, 1')
        a('s_cmp_eq_u32 s49, 0'); a('s_cbranch_scc1 L_Fret')
        a('s_cmp_lt_u32 s49, 8'); a('s_cbranch_scc1 L_Fsub')
        a('s_branch L_end')
        a.label('L_roleF')
        self.cq = list(self.cq0); done = 8 * (self.hq[1] - self.hq[0]) if self.hq else 0
        a('s_cmp_lt_u32 s3, 2'); a('s_cselect_b64 s[20:21], s[76:77], s[78:79]'); a(f's_mov_b32 s22, 0x{448 * 3584:x}'); a('s_mov_b32 s23, 0x20000')
        a('s_sub_u32 s2, s2, 16')
        a('v_mul_u32_u24 v6, 3584, v4')
        a('s_lshl_b32 s38, s2, 8'); a('s_and_b32 s39, s3, 1'); a('s_lshl_b32 s39, s39, 7'); a('s_add_u32 s38, s38, s39')
        a('v_add3_u32 v44, v6, v2, s38')
        self.table(88, 3584)
        pl = [dict(sub='L_dmaG', B=0, rd=[(breg(jj, ks) + 2 * rp, (jj >> 1) * 16384 + rp * 2048 + (jj & 1) * 256) for jj in range(4) for rp in range(4)]) for ks in range(7)]
        pl += [dict(sub='L_dmaD', B=1, rd=self.typeB_reads(dreg, i // 2, i % 2)) for i in range(4)]
        for i, p in enumerate(pl): p['slot'] = i % 4
        self.stamp(56, None, 30)
        for i in range(1 if self.ean else 2): self.issue(pl[i])
        self.stamp(57, None, 30)
        self.srd(28, 80, 1792 * 896); self.srd(68, 64, 3584)
        a('s_lshl_b32 s39, s2, 7')
        self.typeB('v11', 's39')
        self.consts()
        a('s_lshr_b32 s38, s3, 1'); a('s_lshl_b32 s38, s38, 13'); a('s_and_b32 s39, s3, 1'); a('s_lshl_b32 s39, s39, 9'); a('s_add_u32 s38, s38, s39'); a('v_add_u32 v9, s38, v9')
        self.x0off(); self.gather_offs()
        for b in range(4): self.vm(f'buffer_load_dword v{X0 + b}, v12, s[68:71], 0 offen offset:{b * 896}', 'x0')
        a('v_and_b32 v6, 31, v0'); a('s_lshl_b32 s38, s3, 6'); a('s_add_u32 s38, s38, 2048'); a('v_lshl_add_u32 v40, v6, 1, s38')
        a('s_lshl_b32 s40, s2, 10'); a('s_and_b32 s38, s40, 0x2000'); a('s_add_u32 s40, s40, s38'); a(f's_add_u32 s40, s40, 0x{ZOFF:x}')
        a('s_cmp_eq_u32 s2, 0'); a(f's_cselect_b32 s41, 0x{XAOFF:x}, s57')
        if done < 10: self.arm()
        elif done < 24: self.announce()
        if self.ean:
            assert not done
            self.issue(pl[1]); self.announce()
        self.stamp(58, None, 30)
        self.issue(pl[2])
        a('s_branch L_Fsub')
        a.label('L_Fret')
        self.issue(pl[3])
        self.stamp(59, None, 30)
        hooks = {2: lambda: self.announce(False)} if done < 10 and not self.ean else {}
        hooks[7] = self.preready
        for i in range(11):
            self.consume(pl[i], pl[i + 3] if 1 <= i < 8 else None, hooks.get(i))
            if self.ho and i == self.ho[2]: self.wo_pf('s2')
            self.stamp(41 + i, None, 26)
            if i == 7:
                self.stamp(20, None, 28)
                self.colsum(4, 7, breg, ACC)
                self.rowsel(CSUM, ACC, [(0, 5), (1, 10)]); self.rowsel(CSUM + 1, ACC, [(2, 5), (3, 10)])
        self.ready()
        a('s_branch L_Fsub')

    def wo_pf(self, head, add=0):
        a = self.a; p0, p1 = self.ho[:2]
        self.srd(24, 72, 4096 * 896)
        nb = (p1 - p0) * 28672; per = nb // 4
        a(f's_mul_i32 s38, {head}, 229376'); a(f's_mul_i32 s39, s3, {per}'); a('s_add_u32 s38, s38, s39'); a(f's_add_u32 s38, s38, {p0 * 28672 + add * 229376}')
        a('v_min_u32 v6, 55, v0'); a('v_lshlrev_b32 v6, 7, v6')
        for i in range(p1 - p0):
            self.vm(f'buffer_load_dword v45, v6, {W2}, s38 offen {self.hpol}', 'ho'); a('s_add_u32 s38, s38, 7168')
    def roleW(self):
        a = self.a
        self.cq = list(self.cq0); done = 8 * (self.hq[1] - self.hq[0]) if self.hq else 0
        self.consts()
        if done < 10: self.arm()
        if done < 24: self.announce()
        a('s_sub_u32 s2, s2, 30')
        if self.hpf: self.helper()
        if self.ho: self.wo_pf('s2', 14)
        if self.w2:
            a('s_lshr_b32 s38, s3, 1'); a('s_cmp_lg_u32 s2, s38'); a('s_cbranch_scc1 L_end')
            if self.diag: a('s_lshl_b32 s38, s2, 13'); a('s_sub_u32 s61, s61, s38')
        else: a('s_cmp_lg_u32 s2, 0'); a('s_cbranch_scc1 L_end')
        self.near()
        self.srd(20, 82, 3584)
        self.x0off(); self.gather_offs()
        self.preready(); self.ready()
        G = 64
        a('s_mov_b32 s49, 0'); a(f's_add_u32 s47, s10, 0x{XAOFF + 16384:x}'); a(f's_add_u32 s48, s10, 0x{ZOFF + 4 * 32768:x}'); a('s_mov_b32 s44, 0')
        a.label('L_Wtop')
        if not self.mres: self.resid_poll('s47')
        self.gather_sum('s48', G, False, 's47' if self.mres else None)
        a(f'buffer_store_dword v24, v12, {W1}, s44 offen')
        self.stamp(12, 's49', 28)
        if self.diag: self.stamp(24, 's49', 28, 's52')
        a('s_add_u32 s49, s49, 1'); a('s_add_u32 s47, s47, 2048'); a('s_add_u32 s48, s48, 32768'); a('s_add_u32 s44, s44, 896')
        a('s_cmp_lt_u32 s49, 4'); a('s_cbranch_scc1 L_Wtop')
        a('s_branch L_end')
    def helper(self):
        a = self.a
        hq, ho = self.hpf if isinstance(self.hpf, (list, tuple)) else (48, 48)
        a('s_lshl_b32 s38, s2, 2'); a('s_add_u32 s38, s38, s3')
        self.srd(20, 70, 448 * 8192); self.srd(24, 72, 4096 * 896)
        a('s_lshl_b32 s40, s38, 10'); a(f's_add_u32 s40, s40, {(448 - hq) * 8192}')
        l = self.lab('L_hq'); a(f's_mov_b32 s41, {hq}')
        if hq:
            a.label(l)
            a('s_waitcnt vmcnt(11)'); a(f'buffer_load_dwordx4 v[64:67], v1, {W1}, s40 offen {self.hpol}')
            a('s_add_u32 s40, s40, 8192'); a('s_sub_u32 s41, s41, 1'); a('s_cmp_lg_u32 s41, 0'); a(f's_cbranch_scc1 {l}')
        if ho:
            a('s_mul_i32 s40, s38, 458752'); a(f's_add_u32 s40, s40, {229376 - ho * 1024}'); a('s_add_u32 s42, s40, 229376')
            l = self.lab('L_ho'); a(f's_mov_b32 s41, {ho}')
            a.label(l)
            a('s_waitcnt vmcnt(10)'); a(f'buffer_load_dwordx4 v[64:67], v1, {W2}, s40 offen {self.hpol}')
            a(f'buffer_load_dwordx4 v[64:67], v1, {W2}, s42 offen {self.hpol}')
            a('s_add_u32 s40, s40, 1024'); a('s_add_u32 s42, s42, 1024'); a('s_sub_u32 s41, s41, 1'); a('s_cmp_lg_u32 s41, 0'); a(f's_cbranch_scc1 {l}')
        a('s_waitcnt vmcnt(0)')
        self.stamp(20, None, 28)

if __name__ == '__main__':
    kw = json.loads(sys.argv[2]) if len(sys.argv) > 2 else {}
    open(sys.argv[1], 'w').write(Gen(**kw).build())
```

```python
import sys, struct, json
from asmlib import Asm
NAME = "interleave_layers__mha_block_cached__glu_gated_reglu__decode"

QOFF = 0x0; YOFF = 0x10000; ZOFF = 0x50000; XAOFF = 0x90000; XBOFF = 0x98000; HOFF = 0x9c000; COFF = 0x9a000 - 0x2000 + 0x8000; POFF = 0x800000; DOFF = 0x400000
PB = 32768; PIB = 0x100000; PP2 = 0x80000; MLO = 16384 + 6144
OOB = 0x40000000
NC = 14; NW = 56
CS = 0.09016844005556021
def f2u(x): return struct.unpack('<I', struct.pack('<f', x))[0]

K_SRD = 's[8:11]'; V_SRD = 's[12:15]'; WS = 's[16:19]'; W1 = 's[20:23]'; W2 = 's[24:27]'; W3 = 's[28:31]'
DBG = 's[84:85]'
NCHAIN = 32
K4 = 's[88:91]'; V4 = 's[92:95]'
FULL = 'row_mask:0xf bank_mask:0xf'

def vr(b, n=1): return f'v{b}' if n == 1 else f'v[{b}:{b+n-1}]'
def ar(b, n=1): return f'a{b}' if n == 1 else f'a[{b}:{b+n-1}]'
def rr(b, n=1): return vr(b, n) if b < 256 else ar(b - 256, n)

class Gen:
    def __init__(self, diag=False, PF=65, depth=8, hpf=False, hpol='nt', cpf=False, rows=(16, 10, 7), hq=None, fake=0, CL=12, PF2=None, reord=1, lightO=0, split=True, tlb=0, fx=2, thr=None, wtlb=0, probe=None, kpol='nt', vpol='nt', par=None, nQ=48, nE=60, early=False, sub=None, qE=None, ring4=0, up4=False, ho=None, pos=None, home=0, hforce=None, lv=None, lvx=None, th=None, cps=None, rs=None, gs=14, kvonly=True, ed=False, mid=None, fast=((2, (73, 74, 75)), (3, (76, 77)), (4, (78, 79))), boost=None, fld=(2, 2), nQ1=None, cpon=None, odd=None, slow=None, xsl=0, loc=1, spf=None, mres=1, dual=1, hs=4, ean=1, SG=24, pw=12, flex=None, KF=52, TK=41, qmask=0x96, fw=(), fb=None, bst=None, fine=(), cla=0, arl=None, wsw=0, noarm=0, PFA=None, xpf=None, oarm=0, xpol='', fx2=None, p0=8, nox=0, nocl=0, mp=0, fin=0, cyc=0, mz=0, lst=0, w2=0, mpr='FW', hp=None, rm=None, vpf=None, eq=None, hl=None, wb='', la=None, nt='', ja=None, lp=None, h16=0, r4=0, ro=0, tp=None, eq0=0, tq=None, cw=0,
                 p2l=((('u', 2), (73, 74, 75)), (('u', 3), (76, 77)), (('u', 4), (78, 79)), (('u', 9), (0,)), (('x', 0), (1,)), (('i', 0), (2,)), (('i', 2), (3,)), (('i', 4), (4,)), (('m', 0), (5,))),
                 p1l={'a': (6, 7), '1': (8, 9), '2': (10,), '3': (11, 12), '4': (13,), 'm': (14, 15)}):
        self.cw = cw; self.tq = tq; self.eq0 = eq0; self.tp = tp or []; self.ro = ro; self.r4 = r4; self.h16 = h16; self.lp = lp or {}; self.ja = ja; self.N = lambda c: ' nt' if c in nt else ''; self.la = la; self.wb = wb; self.hl = hl; self.eq = eq; self.vpf = vpf; self.rm = rm; self.hp = hp; self.mpr = mpr; self.w2 = w2; self.lst = lst; self.mz = mz; self.cyc = cyc; self.ck = 0; self.fin = fin; self.mp = mp; self.nox = nox; self.nocl = nocl; self.fine = list(fine); self.cla = cla; self.arl = arl; self.wsw = wsw; self.noarm = noarm; self.PFA = PFA; self.p0 = p0; self.fx2 = fx2; self.xpf = xpf; self.xpol = xpol; self.oarm = oarm; self.fb = fb; self.bst = bst; self.fw = fw; self.flex = flex; self.KF = KF; self.TK = TK; self.qmask = qmask
        if flex:
            rest = list(range(48, 80)); rest[KF - 40:KF - 40] = range(32, 40)
            self.ORD = list(range(24, 32)) + list(range(40, 48)) + list(range(24)) + rest
            assert sum(n for n, r in flex) == NW and sum(n * r for n, r in flex) == 512 and nQ >= KF + 8
        self.SG = SG; self.pw = pw; self.p2l = p2l; self.p1l = p1l
        self.dual = dual; self.hs = hs; self.ean = ean
        self.loc = loc; self.spf = spf or []; self.mres = mres
        self.xsl = xsl
        self.slow = slow
        self.odd = odd
        self.cpon = cpon
        self.nQ1 = nQ1 or nQ
        self.fast = fast; self.boost = boost; self.fld = fld; self.xst = 0
        if boost: lv = [depth, boost[1]]
        self.kvonly = kvonly; self.ed = ed; self.mid = mid
        self.lv = lv; self.lvx = lvx; self.th = th; self.cps = cps or []; self.rs = rs; self.dyn = False; self.gs = gs
        self.hforce = hforce
        self.home = home
        self.pos = pos
        self.ring4 = ring4; self.up4 = up4; self.ho = ho
        self.sub = sub; self.qE = qE
        self.par = par; self.nQ = nQ; self.nE = nE; self.early = early
        self.pmul = 10 if not probe or len(probe) < 3 else probe[2]; probe = probe and probe[:2]; self.probe = probe; self.role = 'X'; self.kpol = kpol; self.vpol = vpol
        self.a = Asm(); self.diag = diag; self.PF = PF; self.depth = depth; self.hpf = hpf; self.hpol = hpol; self.cpf = cpf; self.rows = rows; self.hq = hq; self.fake = fake; self.CL = CL; self.PF2 = PF2; self.reord = reord; self.lightO = lightO; self.split = split; self.tlb = tlb; self.fx = fx; self.thr = thr; self.wtlb = wtlb
        self.uid = 0
    def lab(self, p='L'):
        self.uid += 1; return f'{p}_{self.uid}'

    def bits(self, dst, lane, tmp, mp):
        a = self.a; first = True
        for lb, n, ab in mp:
            if first:
                a(f'v_bfe_u32 {dst}, {lane}, {lb}, {n}')
                if ab: a(f'v_lshlrev_b32 {dst}, {ab}, {dst}')
                first = False
            else:
                a(f'v_bfe_u32 {tmp}, {lane}, {lb}, {n}')
                a(f'v_lshl_add_u32 {dst}, {tmp}, {ab}, {dst}')
    def srd(self, base, lo, size):
        a = self.a
        a(f's_mov_b64 s[{base}:{base+1}], s[{lo}:{lo+1}]')
        a(f's_mov_b32 s{base+2}, 0x{size:x}'); a(f's_mov_b32 s{base+3}, 0x20000')
    def timeout(self):
        self.a('s_sub_u32 s52, s52, 1'); self.a('s_cbranch_scc1 L_bail')
        if self.xsl and self.role != 'S': self.a(f's_sleep {self.xsl}')
    FLAG = 4096; CNTA = 16; CNTB = 144
    def wait_counter(self, va, vd, vt, off, n, pre=False):
        a = self.a; l = self.lab('L_cnt'); c = self.lab('L_cntc')
        if pre: a(f's_branch {c}')
        else: a(f'v_mov_b32 v{va}, 0')
        a.label(l)
        self.timeout()
        a(f'global_load_dword v{vd}, v{va}, {DBG} offset:{off} sc1'); a('s_waitcnt vmcnt(0)')
        a.label(c)
        a(f'v_and_b32 v{vt}, {"0xffff" if self.nocl else "0xff"}, v{vd}'); a(f'v_cmp_gt_u32 vcc, {n}, v{vt}'); a(f's_cbranch_vccnz {l}')
    def claim(self, va, vd, vr_):
        a = self.a; l = self.lab('L_cl')
        if self.nocl: a(f'v_mov_b32 v{va}, 0'); a('s_waitcnt lgkmcnt(0)'); return
        a('s_lshl_b32 s38, 1, s101'); a(f'v_mov_b32 v{va}, s100'); a(f'v_mov_b32 v{vd}, s38')
        a('s_or_b32 s38, s3, s7')
        a('s_waitcnt lgkmcnt(0)')
        a(f's_cbranch_scc1 {l}')
        a('s_mov_b64 exec, 1')
        a(f'global_atomic_or v{vr_}, v{va}, v{vd}, {DBG} sc0 sc1')
        a('s_mov_b64 exec, -1')
        a.label(l)
    def confirm(self, vr_, t):
        a = self.a; l = self.lab('L_rs'); w = self.lab('L_rw')
        if self.nocl: return
        a(f'v_mov_b32 v{t}, 0')
        a('s_cmp_lg_u32 s3, 0'); a(f's_cbranch_scc1 {l}')
        a('s_movk_i32 s38, 0x100'); a('s_cmp_lg_u32 s7, 0'); a(f's_cbranch_scc1 {w}')
        a(f'v_readfirstlane_b32 s39, v{vr_}'); a('s_bitcmp1_b32 s39, s101'); a(f's_cbranch_scc0 {w}')
        a('s_call_b64 s[96:97], L_lost')
        a.label(w)
        a(f'v_mov_b32 v{t+1}, s38'); a(f'ds_write_b32 v{t}, v{t+1} offset:{self.FLAG}')
        if self.cw and self.role == 'S': a(f'ds_write_b32 v{t}, v{t} offset:{self.FLAG + 4}')
        a('s_waitcnt lgkmcnt(0)')
        a.label(l)
        a('s_barrier')
        a(f'ds_read_b32 v{t+1}, v{t} offset:{self.FLAG}'); a('s_waitcnt lgkmcnt(0)')
        a(f'v_readfirstlane_b32 s38, v{t+1}'); a('s_cmp_lg_u32 s38, 0x100'); a('s_cbranch_scc1 L_redo')
    def signal(self, va, vd, off, val):
        a = self.a; l = self.lab('L_sg')
        a('s_cmp_lg_u32 s3, 0'); a(f's_cbranch_scc1 {l}')
        a('s_mov_b64 exec, 1'); a(f'v_mov_b32 v{va}, 0'); a(f'v_mov_b32 v{vd}, {val}')
        a(f'global_atomic_add v{va}, v{vd}, {DBG} offset:{off} sc1')
        a('s_mov_b64 exec, -1')
        a.label(l)
    def rare_paths(self):
        a = self.a
        a.label('L_odd')
        a('s_waitcnt lgkmcnt(0)'); a('v_mov_b32 v1, 0')
        a('s_cmp_lg_u32 s3, 0'); a('s_cbranch_scc1 L_odd2')
        a('s_and_b32 s38, s36, 3'); a('s_lshl_b32 s38, s38, 6'); a('s_lshr_b32 s39, s36, 2'); a('s_lshl3_add_u32 s38, s39, s38')
        a('v_mov_b32 v2, s38'); a('s_lshl_b32 s39, s37, 3'); a('s_movk_i32 s41, 24')
        a.label('L_odd1')
        a(f'global_load_dword v3, v2, {DBG} sc1'); a('s_waitcnt vmcnt(0)')
        a('v_readfirstlane_b32 s38, v3'); a('s_lshr_b32 s38, s38, s39'); a('s_and_b32 s38, s38, 0xff'); a('s_bcnt1_i32_b32 s40, s38')
        a('s_cmp_ge_u32 s40, 7'); a('s_cselect_b32 s41, 0, s41'); a('s_sub_u32 s41, s41, 1'); a('s_cbranch_scc0 L_odd1')
        a('s_ff0_i32_b32 s38, s38'); a('v_mov_b32 v2, s38'); a(f'ds_write_b32 v1, v2 offset:{self.FLAG + 4}'); a('s_waitcnt lgkmcnt(0)')
        a.label('L_odd2')
        a('s_barrier')
        a(f'ds_read_b32 v2, v1 offset:{self.FLAG + 4}'); a('s_waitcnt lgkmcnt(0)')
        a('v_readfirstlane_b32 s38, v2'); a('s_mov_b32 s6, 1'); a('s_branch L_even')
        a.label('L_lost')
        a('s_waitcnt vmcnt(0)')
        self.bits('v62', 'v0', 'v63', [(0, 2, 6), (2, 1, 3)])
        a.label('L_lost1')
        a(f'global_load_dword v60, v62, {DBG} sc1'); a('s_waitcnt vmcnt(0)')
        a('v_cmp_ne_u32 vcc, -1, v60'); a('s_movk_i32 s38, 0x300'); a('s_cbranch_vccz L_lost2')
        a('s_getreg_b32 s39, hwreg(HW_REG_XCC_ID, 0, 3)'); a('s_ff1_i32_b32 s38, vcc_lo')
        a('s_bitcmp1_b32 vcc_lo, s39'); a('s_cselect_b32 s38, s39, s38')
        a('s_nop 3'); a('v_readlane_b32 s39, v60, s38'); a('v_readlane_b32 s40, v62, s38'); a('s_ff0_i32_b32 s39, s39')
        a('s_lshl_b32 s41, 1, s39'); a('v_mov_b32 v61, s41'); a('v_mov_b32 v63, s40')
        a('s_mov_b64 exec, 1'); a(f'global_atomic_or v60, v63, v61, {DBG} sc0 sc1'); a('s_mov_b64 exec, -1'); a('s_waitcnt vmcnt(0)')
        a('v_readfirstlane_b32 s40, v60'); a('s_bitcmp1_b32 s40, s39'); a('s_cbranch_scc1 L_lost1')
        a('s_lshl_b32 s38, s38, 5'); a('s_add_u32 s38, s38, s39'); a('s_bitset1_b32 s38, 9')
        a.label('L_lost2')
        a('s_setpc_b64 s[96:97]')
        a.label('L_redo')
        a('s_bitcmp1_b32 s38, 8'); a('s_cbranch_scc1 L_bail')
        a('s_waitcnt vmcnt(0) lgkmcnt(0)'); a('s_barrier')
        a('s_load_dwordx16 s[64:79], s[0:1], 0')
        a('s_load_dwordx8 s[80:87], s[0:1], 64')
        a('s_bfe_u32 s36, s38, 0x30005'); a('s_and_b32 s2, s38, 31'); a('s_mov_b32 s7, 1')
        a('s_branch L_role')
    def stamp(self, idx, sidx=None, t0=20, src='s62'):
        if self.probe and not self.diag:
            role, want = self.probe
            if role != self.role or (sidx is None and idx != want) or (sidx and not (0 <= want - idx < 9)): return
            a = self.a
            a('s_waitcnt lgkmcnt(0)'); a('s_memrealtime s[62:63]'); a('s_waitcnt lgkmcnt(0)')
            if sidx: a(f's_cmp_eq_u32 {sidx}, {want - idx}'); a('s_cselect_b32 s61, s62, s61')
            else: a('s_mov_b32 s61, s62')
            return
        if not self.diag: return
        a = self.a
        a('s_waitcnt lgkmcnt(0)'); a('s_memrealtime s[62:63]'); a('s_waitcnt lgkmcnt(0)')
        a(f'v_mov_b32 v{t0}, {src}')
        if sidx: a(f's_lshl_b32 s60, {sidx}, 2'); a('s_add_u32 s60, s60, s61')
        else: a('s_mov_b32 s60, s61')
        a(f'v_mov_b32 v{t0+1}, 0')
        a('s_mov_b64 exec, 1')
        a(f'buffer_store_dword v{t0}, v{t0+1}, {WS}, s60 offen offset:{idx*4}' + self.N('d'))
        a('s_mov_b64 exec, -1')
    def diagbase(self):
        a = self.a
        a('s_and_b32 s60, s61, 31'); a('s_lshr_b32 s61, s61, 5'); a('s_lshl3_add_u32 s61, s60, s61')
        a('s_lshl2_add_u32 s61, s61, s3'); a('s_lshl_b32 s61, s61, 8'); a(f's_add_u32 s61, s61, 0x{DOFF:x}')
    def maxtree(self, regs, t):
        a = self.a; regs = list(regs)
        a(f'v_max3_u32 v{t}, v{regs[0]}, v{regs[1]}, v{regs[2 if len(regs) > 2 else 1]}')
        regs = regs[3:]
        while regs:
            x = regs[:2]; regs = regs[2:]
            a(f'v_max3_u32 v{t}, v{t}, v{x[0]}, v{x[-1]}')
        a(f'v_cmp_eq_u32 vcc, -1, v{t}')

    def build(self):
        a = self.a
        if self.diag: a('s_memrealtime s[34:35]')
        a('s_cmp_ge_u32 s2, 256'); a('s_cbranch_scc1 L_end2')
        if self.probe: a('s_memrealtime s[62:63]'); a('s_waitcnt lgkmcnt(0)'); a('s_mov_b32 s60, s62'); a('s_mov_b32 s61, s62')
        a('s_load_dwordx16 s[64:79], s[0:1], 0')
        a('s_load_dwordx8 s[80:87], s[0:1], 64')
        if self.nocl:
            if self.fake: a(f's_mul_i32 s2, s2, {2 * self.fake + 1}'); a(f's_add_u32 s2, s2, {self.fake // 2 * 8}'); a('s_and_b32 s2, s2, 255'); self.fake = 0
            a('s_and_b32 s36, s2, 7'); a('s_lshr_b32 s38, s2, 5'); a('s_bfe_u32 s37, s2, 0x20003')
            if self.nocl > 1: a(f's_add_u32 s38, s38, {9 - self.nocl}')
            if self.diag: a('s_getreg_b32 s100, hwreg(HW_REG_HW_ID)')
        else:
            a('s_getreg_b32 s36, hwreg(HW_REG_XCC_ID, 0, 3)')
            a('s_getreg_b32 s38, hwreg(HW_REG_HW_ID, 8, 4)'); a('s_getreg_b32 s37, hwreg(HW_REG_HW_ID, 13, 2)')
        a('v_lshrrev_b32 v1, 6, v0'); a('v_and_b32 v0, 63, v0')
        a('v_readfirstlane_b32 s3, v1')
        a('s_mov_b32 s52, 400000'); a('s_mov_b64 s[6:7], 0')
        if self.fake == 1: a('s_and_b32 s38, s38, 6')
        if self.fake == 2: a('s_and_b32 s36, s36, 5')
        if self.fake == 3: a('s_and_b32 s36, s2, 7'); a('s_lshr_b32 s38, s2, 5'); a('s_mov_b32 s37, 0')
        if self.fake == 4: a('s_mov_b32 s36, 0'); a('s_mov_b32 s38, 0'); a('s_mov_b32 s37, 0')
        if self.fake == 5:
            a('s_bitcmp0_b32 s37, 0'); a('s_cselect_b32 s39, 8, 0'); a('s_cmp_eq_u32 s38, 3'); a('s_cselect_b32 s38, s39, s38')
        if not self.nocl: a('s_bitcmp0_b32 s37, 0'); a('s_cselect_b32 s39, 8, 0'); a('s_cmp_eq_u32 s38, s39'); a('s_cbranch_scc1 L_odd')
        a.label('L_even')
        a('s_and_b32 s38, s38, 7'); a('s_lshl3_add_u32 s2, s37, s38')
        if self.fake == 6: a('s_cmp_lg_u32 s38, 7'); a('s_cselect_b32 s39, 5, 0'); a('s_xor_b32 s36, s36, s39')
        if self.fake == 7: a('s_cmp_eq_u32 s2, 10'); a('s_cselect_b32 s39, 1, 0'); a('s_xor_b32 s36, s36, s39')
        if self.fake == 8: a('s_cmp_eq_u32 s2, 7'); a('s_cselect_b32 s39, 4, 0'); a('s_xor_b32 s36, s36, s39')
        a.label('L_role')
        if not self.nocl: a('s_mov_b32 s101, s2'); a('s_and_b32 s100, s36, 3'); a('s_lshl_b32 s100, s100, 6'); a('s_lshr_b32 s38, s36, 2'); a('s_lshl3_add_u32 s100, s38, s100')
        if self.cpf:
            a('s_getpc_b64 s[38:39]'); a.label('L_pc')
            a('s_lshl_b32 s37, s2, 2'); a('s_add_u32 s37, s37, s3'); a('s_lshl_b32 s37, s37, 10')
            a('s_cmp_ge_u32 s37, L_end-L_pc'); a('s_cbranch_scc1 L_nopf')
            a('v_lshl_add_u32 v2, v0, 4, s37'); a('v_min_u32 v2, L_end-L_pc-16, v2')
            a('global_load_dwordx4 v[60:63], v2, s[38:39]')
            a.label('L_nopf')
        a('s_getreg_b32 s38, hwreg(HW_REG_XCC_ID, 0, 4)'); a('s_cmp_eq_u32 s38, s36'); a(f's_cselect_b32 s5, 1, {"0x10001" if self.nocl else "0x101"}')
        a('s_lshr_b32 s38, s2, 4'); a('s_lshl1_add_u32 s36, s36, s38'); a('s_and_b32 s37, s2, 7'); a('s_bfe_u32 s38, s2, 0x10003')
        a('s_cmp_eq_u32 s37, 7'); a('s_cbranch_scc1 L_chain')
        self.role = 'S'; self.stream()
        a.label('L_chain'); self.role = 'C'
        self.chain_common()
        self.role = 'W'; self.roleW(); self.role = 'O'; self.roleOQ(); self.role = 'F'; self.roleF()
        if not self.nocl: self.rare_paths()
        a.label('L_bail')
        a('s_mov_b64 exec, 1')
        a('v_mov_b32 v0, 32'); a('v_mov_b32 v1, 1')
        a(f'global_atomic_add v0, v1, {DBG} sc1')
        a('v_mov_b32 v0, 36'); a('v_mov_b32 v1, s2')
        a(f'global_store_dword v0, v1, {DBG} sc1')
        a.label('L_end')
        if self.probe:
            a('s_cmp_eq_u32 s60, s61'); a('s_cbranch_scc1 L_end2')
            a('s_sub_u32 s61, s61, s60'); a(f's_mul_i32 s61, s61, {self.pmul}'); a('s_add_u32 s61, s61, 7000'); a('s_add_u32 s61, s61, s60')
            a.label('L_pspin')
            a('s_memrealtime s[62:63]'); a('s_waitcnt lgkmcnt(0)'); a('s_sub_u32 s62, s62, s61'); a('s_cmp_lt_i32 s62, 0'); a('s_cbranch_scc1 L_pspin')
        a.label('L_end2')
        body = a.finish()
        hdr = open('cdna_kernels/' + NAME + '.s.ref').read().split('\n')
        top = [l for l in hdr if l.startswith(';') and '@launch' not in l]
        s = '\n'.join(top) + '\n; @launch grid=(256,1,1) block=(256,1,1) lds=163840\n'
        s += f'.amdgcn_target "amdgcn-amd-amdhsa--gfx950"\n.text\n.globl {NAME}_kernel\n.p2align 8\n.type {NAME}_kernel,@function\n{NAME}_kernel:\n'
        s += body
        s += f'''s_endpgm
.section .rodata,"a"
.p2align 6
.amdhsa_kernel {NAME}_kernel
  .amdhsa_next_free_vgpr 512
  .amdhsa_next_free_sgpr 102
  .amdhsa_accum_offset 256
  .amdhsa_group_segment_fixed_size 0
  .amdhsa_kernarg_size 96
  .amdhsa_user_sgpr_count 2
  .amdhsa_user_sgpr_kernarg_segment_ptr 1
  .amdhsa_system_sgpr_workgroup_id_x 1
.end_amdhsa_kernel
'''
        return s

    CA = [0, 4096]; Q1L = 8192; MA = [10240, 10272]; CO = [10304, 10308]; MA1 = [10240, 10336]; ST = 10496; TB = 11520; WLDS = 37 * 1024
    vK, vV, vDs, vL16, vQo, vIQ, vIP = 1, 2, 3, 4, 5, 6, 7
    vM = 8; vT = 12; vBias = 15; vMC = 16; vL = 17; vQ = 24; vAcc = 32; vH = 48
    def kreg(self, s, u):
        return 64 + 96 * s + 16 * u if u < 6 else 256 + 128 * s + 16 * (u - 6)
    def vreg0(self, s, P, t):
        return 256 + 128 * s + 64 + 8 * (4 * P + t)
    def tile(self, n):
        if n < 40:
            u, t = n // 4, n % 4
            return 0, u // 2, t * 128 + (u & 1) * 512
        m = n - 40; g = m // 8; k = m % 8
        if g < 4: P, t = k // 4, k % 4
        else: t, P = k // 2, k % 2
        return 1, g, t * 128 + P * 1024
    def ldsslot(self, s, n):
        if n <= 72: return (n - 56) + 17 * s
        return 34 + (n - 73)
    ORD = list(range(24, 40)) + list(range(24)) + list(range(40, 80))
    def load(self, s, p, wait=True, to=None):
        a = self.a; n = self.ORD[p]
        kv, g, imm = self.tile(n)
        if p == 0 and not self.prologue:
            for j in range(4 if self.flex or self.fx2 else 5): a(f's_add_u32 s{40+j}, s{40+j}, 0x2000000')
            if self.fx2: a('s_mov_b32 s44, s24'); a('s_lshl_b32 s90, s25, 9'); a('s_add_u32 s90, s90, s44'); a('s_min_u32 s90, s90, s10'); a('s_mov_b32 s94, s90')
            elif not self.flex: a('s_add_u32 s90, s90, 0x2000000'); a('s_min_u32 s90, s90, s10'); a('s_mov_b32 s94, s90')
        va = f'v{self.vV if kv else self.vK}'; srd = V_SRD if kv else K_SRD
        if g == 4: srd = V4 if kv else K4
        if g == 4 and self.rm and self.rm[0] != 12:
            t = 'v16' if self.prologue else 'v0'
            if n in (32, 72):
                a(f'v_bfe_u32 {t}, v{self.vL16}, 7, 1'); a(f'v_mul_u32_u24 {t}, {(1 << self.rm[0]) - 4096}, {t}'); a(f'v_sub_u32 {t}, {va}, {t}')
            va = t
        dst = None
        if n < 40: dst = self.kreg(s, n // 4) + 4 * (n % 4)
        elif n < 56:
            m = n - 40; dst = self.vreg0(s, (m % 8) // 4, m % 4) + 4 * (m // 8)
        elif n >= 76: dst = self.kreg(1 - s, 1) + 4 * (n - 76)
        if to is not None: dst = to
        if dst is None:
            a(f's_add_u32 m0, s45, {self.ldsslot(s, n) * 1024 - imm}')
        depth = self.lv[-1] if self.dyn else self.depth
        if wait is not True and wait: depth = wait
        def allow(d):
            pos = [i for i, x in enumerate(reversed(self.vmq)) if x[0] != 'cp' and not (self.flex and x[0] in (0, 1) and self.KF <= x[1] < self.KF + 8 and (x[1] - self.KF) % 8 not in self.fw)]
            return pos[d - 1] if len(pos) >= d else None
        if wait is True and self.dyn:
            lows = [allow(d) for d in self.lv[:-1] if allow(d) is not None]
            labs = [self.lab('L_lv') for _ in lows]
            for i in reversed(range(len(lows))):
                a(f's_cmp_gt_u32 s59, {i}'); a(f's_cbranch_scc1 {labs[i]}')
            for i, k in enumerate(lows):
                a(f's_waitcnt vmcnt({k})'); a.label(labs[i])
        if wait and allow(depth) is not None:
            k = allow(depth)
            a(f's_waitcnt vmcnt({k})'); self.vmq = self.vmq[-k:]
        if dst is None:
            a(f'buffer_load_dwordx4 {va}, {srd}, s{40+g} offen offset:{imm} {self.vpol if kv else self.kpol} lds')
        else:
            a(f'buffer_load_dwordx4 {rr(dst, 4)}, {va}, {srd}, s{40+g} offen offset:{imm} {self.vpol if kv else self.kpol}')
        self.vmq.append((s, p))
    def need_vm(self, tag):
        if tag == ('cp', 'q1') and self.eq and tag not in self.vmq:
            t = [x for x in self.vmq if x[0] != 'cp' and x[1] == self.PF]
            if t:
                l = self.lab('L_eq'); self.a('s_cmp_lg_u32 s58, 0'); self.a(f's_cbranch_scc1 {l}')
                self.a(f's_waitcnt vmcnt({len(self.vmq) - 1 - self.vmq.index(t[0])})'); self.a.label(l)
            return
        if tag in self.vmq:
            k = len(self.vmq) - 1 - self.vmq.index(tag)
            if self.xst:
                l = self.lab('L_xs'); self.a('s_cmp_lg_u32 s58, 0'); self.a(f's_cbranch_scc1 {l}')
                self.a(f's_waitcnt vmcnt({k})'); self.a.label(l); self.a(f's_waitcnt vmcnt({k + self.xst})')
            else: self.a(f's_waitcnt vmcnt({k})')
            self.vmq = self.vmq[len(self.vmq) - k:] if k else []
    def ds(self, text, tag=None):
        self.a(text); self.lq.append(tag)
    def need_lds(self, tag):
        if tag in self.lq:
            i = len(self.lq) - 1 - self.lq[::-1].index(tag)
            k = len(self.lq) - 1 - i
            k = min(k, 15)
            self.a(f's_waitcnt lgkmcnt({k})'); self.lq = self.lq[len(self.lq) - k:] if k else []
    def qload(self):
        a = self.a
        a(f'buffer_load_dwordx4 {vr(self.vQ, 4)}, v{self.vQo}, {WS}, s46 offen sc1')
        a(f'buffer_load_dwordx4 {vr(self.vQ + 4, 4)}, v{self.vQo}, {WS}, s46 offen offset:256 sc1')
    def wpf(self, n):
        a = self.a
        for nn, mat, k in self.spf:
            if nn != n: continue
            a('s_lshl2_add_u32 s32, s37, s3')
            for lo, size, rs, lpr, hs, rows in {'q': [(70, 448 * 8192, 8192, 4, 512, 448)], 'o': [(72, 4096 * 896, 128, 1, 229376, 1792)],
                          'g': [(76, 448 * 3584, 3584, 2, 256, 448), (78, 448 * 3584, 3584, 2, 256, 448)], 'd': [(80, 1792 * 896, 128, 1, 114688, 896)]}[mat]:
                assert 56 * k <= rows and k * lpr <= 64
                self.srd(28, lo, size)
                a(f's_mul_i32 s38, s36, {hs}'); a(f's_mul_i32 s33, s32, {k * rs}'); a('s_add_u32 s38, s38, s33'); a(f's_add_u32 s38, s38, {(rows - 56 * k) * rs}')
                if mat == 'g': a('s_cmp_lt_u32 s36, 14'); a(f's_cselect_b32 s38, s38, 0x{OOB:x}')
                if lpr == 1: a('v_lshlrev_b32 v18, 7, v0')
                else:
                    a(f'v_lshrrev_b32 v18, {lpr // 2}, v0'); a(f'v_mul_u32_u24 v18, {rs}, v18'); a(f'v_and_b32 v19, {lpr - 1}, v0'); a('v_lshl_add_u32 v18, v19, 7, v18')
                L = k * lpr
                a(f's_mov_b32 exec_lo, 0x{(1 << min(L, 32)) - 1:x}'); a(f's_mov_b32 exec_hi, 0x{(1 << max(L - 32, 0)) - 1:x}')
                a(f'buffer_load_dword v17, v18, s[28:31], s38 offen')
                a('s_mov_b64 exec, -1')
    def zero_acc(self):
        return [f'v_mov_b64 {vr(self.vAcc + 2 * i, 2)}, 0' for i in range(8)]

    def stream(self):
        a = self.a
        self.vmq = []; self.lq = []; self.prologue = True; self.later = []
        a('s_mul_i32 s38, s38, 7'); a('s_add_u32 s37, s37, s38')
        if self.diag: a('s_mul_i32 s61, s36, 14'); a('s_add_u32 s61, s61, s37'); a('s_add_u32 s61, s61, 32'); self.diagbase()
        a('s_lshl_b32 s39, s37, 2'); a('s_add_u32 s39, s39, s3'); a('s_lshl_b32 s38, s39, 13')
        a('s_lshl_b32 s44, s36, 21')
        LB = self.rm[0] if self.rm else 12
        def place(g):
            lb, wb, rot = self.rm; sb = [b for b in range(12, 18) if b not in (lb, wb, wb + 1)]; d = f's{40 + g}'
            a(f's_add_u32 s38, s37, {14 * g}'); a(f's_lshr_b32 {d}, s38, 3'); a(f's_lshl_b32 {d}, {d}, 18'); a(f's_add_u32 {d}, {d}, s44')
            if rot: a(f's_mul_i32 s33, s36, {rot}'); a('s_add_u32 s38, s38, s33')
            if sb[2] == sb[0] + 2: a('s_and_b32 s38, s38, 7'); a(f's_lshl_b32 s38, s38, {sb[0]}'); a(f's_add_u32 {d}, {d}, s38')
            else:
                for i, b in enumerate(sb): a(f's_bfe_u32 s33, s38, 0x{0x10000 + i:x}'); a(f's_lshl_b32 s33, s33, {b}'); a(f's_add_u32 {d}, {d}, s33')
            a(f's_lshl_b32 s38, s3, {wb}'); a(f's_add_u32 {d}, {d}, s38')
        def turn(g):
            d = f's{40 + g}'
            a(f's_add_u32 {d}, s33, {14 * g}'); a(f's_sub_u32 s32, {d}, 56'); a(f's_min_u32 {d}, {d}, s32'); a(f's_lshl_b32 {d}, {d}, 15'); a(f's_add_u32 {d}, {d}, s38')
        if self.rm: assert not self.hp; place(3)
        elif self.ro:
            assert self.ro <= 3
            a(f's_mul_i32 s33, s36, {self.ro}'); a('s_add_u32 s33, s33, s37'); a('s_lshl_b32 s38, s3, 13'); a('s_add_u32 s38, s38, s44')
            for g in (3, 0, 1, 2): turn(g)
        else: a('s_add_u32 s40, s44, s38'); a(f's_add_u32 s43, s40, {3 * NW * 8192}')
        self.bits(f'v{self.vK}', 'v0', 'v18', [(0, 1, 4), (4, 2, 5), (2, 1, 10), (1, 1, 11), (3, 1, LB)])
        if not self.cla: self.claim(22, 23, 24)
        else: a('s_waitcnt lgkmcnt(0)')
        self.wpf(-1)
        self.srd(8, 66, 0x8000000)
        if self.diag: a('s_memrealtime s[98:99]')
        for p in range(self.p0): self.load(0, p, wait=False)
        if self.tlb:
            a('s_lshl_b32 s38, s3, 25'); a('s_add_u32 s38, s38, s44')
            a('s_load_dword s96, s[66:67], s38'); a('s_load_dword s97, s[68:69], s38')
            if self.tlb > 1: a('s_add_u32 s38, s38, 0x1fff00'); a('s_load_dword s96, s[66:67], s38'); a('s_load_dword s97, s[68:69], s38')
        if self.cla: self.claim(22, 23, 24); assert self.CL >= 15
        self.wpf(7)
        if self.h16:
            assert self.ja and self.mz and not self.home and not self.wsw and self.h16 == 8 and not self.mp and self.ja[0] and not self.nocl
            a('s_lshl_b32 s47, s36, 15'); a('s_lshl_b32 s38, s37, 9'); a('s_add_u32 s47, s47, s38'); a(f's_add_u32 s47, s47, 0x{POFF:x}')
            a(f's_mul_i32 s48, s37, {self.h16 - 512}'); a('s_add_u32 s48, s48, 7168')
        else:
            a(f's_lshl_b32 s47, s36, 15'); a('s_lshl_b32 s38, s37, 10'); a('s_and_b32 s48, s38, 0x2000'); a('s_add_u32 s38, s38, s48')
            a('s_add_u32 s47, s47, s38'); a(f's_add_u32 s47, s47, 0x{POFF:x}')
            a('s_lshl_b32 s48, s37, 7'); a('s_sub_u32 s48, s48, s38'); a(f's_add_u32 s48, s48, {MLO}')
        a(f'v_lshlrev_b32 v{self.vL16}, 4, v0')
        if self.rm:
            for j in range(3): place(j)
        elif not self.ro:
            for j in range(1, 3): a(f's_add_u32 s{40+j}, s40, {j * NW * 8192}')
        self.srd(88, 66, 0); self.srd(92, 68, 0)
        if self.flex:
            a(f's_add_u32 s21, s44, {4 * NW * 8192}'); a('s_lshl_b32 s20, s36, 7'); a(f's_add_u32 s20, s20, 0x{HOFF:x}')
        else:
            if self.fx2:
                assert sum(n for n, r in self.fx2) == NW and sum(n * r for n, r in self.fx2) == 512 and self.PFA
                a(f's_add_u32 s21, s44, {4 * NW * 8192 + 0x2000000}'); a('s_lshl_b32 s20, s36, 7'); a(f's_add_u32 s20, s20, 0x{HOFF:x}')
            a('s_mul_i32 s38, s39, 9'); a('s_min_u32 s51, s37, 8'); a('s_add_u32 s38, s38, s51')
            a('s_cmp_lt_u32 s37, 8'); a('s_cselect_b32 s22, s3, 0'); a('s_cmp_eq_u32 s22, 3'); a('s_cselect_b32 s22, 10, 9'); a('s_mov_b32 s23, s22')
            a('s_lshl_b32 s38, s38, 9')
            a(f's_add_u32 s44, s44, {4 * NW * 8192}'); a('s_add_u32 s44, s44, s38')
            a('s_lshl_b32 s38, s22, 9'); a('s_add_u32 s90, s44, s38'); a('s_mov_b32 s94, s90')
        self.srd(12, 68, 0x8000000); self.srd(16, 86, 0x20000000)
        if self.wsw:
            a('s_lshl_b32 s38, s3, 20'); a('s_add_u32 s38, s38, s47'); a(f'buffer_load_dword v17, off, {WS}, s38 sc1')
        self.stamp(0); self.stamp(32, src='s34'); self.stamp(33, src='s98')
        if self.nocl: self.stamp(62, src='s100')
        self.bits(f'v{self.vV}', 'v0', 'v18', [(0, 3, 4), (5, 1, 9), (4, 1, 11), (3, 1, LB)])
        a(f's_mul_i32 s45, s3, {self.WLDS}'); a(f's_add_u32 s45, s45, {self.TB}')
        a(f'v_add_u32 v{self.vDs}, s45, v{self.vL16}')
        self.bits(f'v{self.vQo}', 'v0', 'v18', [(0, 2, 4), (4, 2, 6)])
        a('v_and_b32 v18, 2, v0'); a('v_cmp_eq_u32 vcc, 2, v18')
        a(f'v_mov_b32 v{self.vIQ}, 0x44444444'); a('v_mov_b32 v18, 0xeeeeeeee'); a(f'v_cndmask_b32 v{self.vIQ}, v{self.vIQ}, v18, vcc')
        a('v_and_b32 v18, 3, v0'); a('s_mov_b32 s38, 0x55555555'); a(f'v_mul_lo_u32 v{self.vIP}, v18, s38')
        a('v_and_b32 v18, 4, v0'); a('v_cmp_eq_u32 vcc, 4, v18')
        a('v_mov_b32 v18, 0xffff'); a('v_mov_b32 v19, 0xffff0000')
        M = self.vM
        a(f'v_cndmask_b32 v{M}, v18, 0, vcc'); a(f'v_cndmask_b32 v{M+1}, 0, v18, vcc')
        a(f'v_cndmask_b32 v{M+2}, v19, 0, vcc'); a(f'v_cndmask_b32 v{M+3}, 0, v19, vcc')
        self.bits(f'v{self.vBias}', 'v0', 'v19', [(4, 1, 0), (2, 1, 1), (1, 1, 2), (3, 1, 3), (5, 1, 4)])
        a('s_lshl_b32 s46, s3, 4'); a('s_add_u32 s46, s46, s36'); a('s_lshl_b32 s46, s46, 9')
        a('s_mov_b32 s49, 0'); a(f's_mov_b32 s51, 0x{f2u(CS):x}')
        if self.mz: a(f's_mov_b32 s50, 0x{f2u({1: 32.0, 2: 4.0, 3: -1.0}[self.mz]):x}')
        a(f's_mov_b32 s53, {self.Q1L}'); a('s_lshl_b32 s54, s3, 10'); a('s_lshl_b32 s55, s3, 3')
        a('s_lshl_b32 s56, s36, 9'); a(f's_add_u32 s56, s56, 0x{QOFF + 3 * 8192:x}')
        a('v_mov_b32 v18, 0'); a('v_mov_b32 v19, 0')
        a(f'ds_write_b64 v18, v[18:19] offset:{self.CO[0]}')
        a('s_lshl_b32 s57, s3, 8'); a(f's_add_u32 s57, s57, {self.ST}'); a('s_mov_b32 s58, 0'); a(f's_lshl_b32 s4, s5, {15 if self.nocl else 23}'); a('s_and_b32 s4, s4, 0x80000000')
        if self.lv:
            mid = self.lv.index(self.depth) if self.mid is None else self.mid
            a(f's_mov_b32 s59, {mid if not self.slow else self.slow[0]}')
            if self.slow and len(self.slow) > 3: a('s_cmp_ge_u32 s36, 8'); a(f's_cselect_b32 s59, {self.slow[3]}, s59')
            if self.cps:
                a('s_lshl2_add_u32 s24, s37, s3'); a('s_lshl_b32 s24, s24, 7'); a(f's_add_u32 s24, s24, 0x{COFF:x}')
                lo = (mid if not self.slow else self.slow[0]) - 1
                a(f's_mov_b32 s20, 0x{OOB:x}'); a(f's_mov_b32 s21, {-self.th[lo] if lo >= 0 else 100}'); a('s_mov_b32 s22, 0')
            if self.odd and not self.nocl:
                a('s_or_b32 s38, s6, s7'); a(f's_cselect_b32 s59, {mid}, s59')
                if self.cps: a(f's_cselect_b32 s21, {-self.th[-1]}, s21')
        assert not self.cps
        if self.hp:
            a('s_lshr_b32 s20, s36, 1'); a('s_lshl2_add_u32 s20, s20, s3'); a('s_lshl_b32 s20, s20, 8'); a(f's_add_u32 s20, s20, 0x{HOFF:x}')
            a('s_and_b32 s38, s36, 1'); a('s_mul_i32 s21, s38, 14'); a('s_add_u32 s21, s21, s37')
            if self.ro: a('s_and_b32 s24, s40, 0x3f8000')
            else: a('s_lshl_b32 s24, s38, 21'); a('s_lshl_b32 s38, s37, 15'); a('s_add_u32 s24, s24, s38')
            a('s_lshl3_add_u32 s25, s21, s20'); a('s_mov_b32 s35, 0'); a('s_mul_i32 s21, s21, 27')
        if self.bst: a('s_mov_b32 s26, s59')
        LP = {tuple(k): v for k, v in self.p2l}
        N1 = sum(1 for v in LP.values() for x in v if x < 40); N0 = N1 + sum(len(v) for v in self.p1l.values())
        assert N0 <= 16
        for p in range(self.p0, N0):
            self.load(0, p, wait=self.pw[min(p - self.p0, len(self.pw) - 1)] if isinstance(self.pw, list) else self.pw)
            if p == self.CL: self.armS()
            self.wpf(p)
        self.prologue = False
        entry_vmq = [(0, i) for i in range(N0)]; self.vmq = list(entry_vmq)
        nQ = self.nQ
        for s in range(2):
            a.label(f'L_A{s}')
            assert [(x[0] ^ s, x[1]) for x in self.vmq] == entry_vmq, (self.vmq, entry_vmq)
            self.lq = []
            n = N0; self.dyn = bool(self.lv)
            while n < 73:
                if self.slow and not self.fb and (s, n) == tuple(self.slow[1:3]): a(f's_max_u32 s59, s59, {mid}')
                if self.bst and n == self.bst[1]: a('s_mov_b32 s59, s26')
                if s == 0 and n in self.fine:
                    a('s_mul_i32 s99, s49, 5'); self.stamp(44 + self.fine.index(n), 's99', 18)
                for i, (c0, c1) in enumerate(self.cps):
                    r = 16 + i % 2
                    if n == c1:
                        self.need_vm(('cp', i))
                        a(f'v_readfirstlane_b32 s38, v{r}'); a(f's_sub_u32 s38, s38, s{25 + i % 2}'); a('s_mov_b32 s59, 0')
                        for t in self.th: a(f's_cmp_ge_i32 s38, {t}'); a('s_addc_u32 s59, s59, 0')
                for i, (c0, c1) in enumerate(self.cps):
                    r = 16 + i % 2
                    if n == c0:
                        assert not (c0 <= nQ + 3 and c1 > nQ) and c1 < 73
                        a(f'v_mov_b32 v{r}, 1'); a(f's_mov_b32 s{25 + i % 2}, s21'); a('s_add_u32 s21, s21, s22')
                        a('s_mov_b64 exec, 1'); a(f'buffer_atomic_add v{r}, off, {WS}, s20 sc0 sc1'); a('s_mov_b64 exec, -1')
                        self.vmq.append(('cp', i))
                if 'B' in self.wb and (s, n) == (1, 20): self.dirty()
                for n0, kv, g in self.tp:
                    if n0 == n:
                        if kv == 2: a(f's_add_u32 s38, s{40 + g}, 0x2000000')
                        a(f's_buffer_load_dword s99, {V_SRD if kv == 1 else K_SRD}, {"s38" if kv == 2 else f"s{40 + g}"}')
                if self.tp and n == nQ: a('s_waitcnt lgkmcnt(0)')
                if self.eq and n == self.eq[1]:
                    assert self.eq[0] >= nQ + 4 and n <= self.PFA and not self.fx2 and not self.flex and not self.xpf and not self.vpf
                    self.need_vm(('cp', 'e1')); a('s_mov_b32 s58, 0')
                    self.maxtree(range(self.vQ, self.vQ + 8), 18)
                    if s == 0 and not self.eq0: a('s_cmp_eq_u32 s49, 0'); a('s_cbranch_scc1 L_En')
                    a(f's_cbranch_vccz L_E{s}')
                    if s == 0: a.label('L_En')
                    main = list(self.vmq); am = self.a; self.a = a2 = Asm(); dyn = self.dyn; self.dyn = False
                    a2.label(f'L_E{s}'); a2('s_mov_b32 s58, 1')
                    for m in range(n, 73):
                        if self.hp and m in dict(self.hp[0]): self.publish(dict(self.hp[0])[m])
                        self.load(s, m, wait=self.eq[2] or False)
                    a2(f's_mov_b32 s59, {self.eq[3]}')
                    self.stamp(1, 's49')
                    if self.diag: a2('s_add_u32 s7, s7, 1')
                    a2(f's_branch L_Xok{s}')
                    fastq = list(self.vmq); self.vmq = main; self.a = am; self.dyn = dyn
                    self.later.append(lambda a2=a2: a.L.extend(a2.L))
                if self.hp and n in dict(self.hp[0]): self.publish(dict(self.hp[0])[n])
                for n0, n1, el, R in (self.hp[5] if self.hp else []):
                    assert n1 < nQ or (n0 >= nQ + 4 and n1 <= self.PFA)
                    if n == n0: self.board()
                    if n == n1:
                        self.need_vm(('cp', 'bd'))
                        a(f's_movk_i32 s34, {el}'); a(f's_movk_i32 s32, {R}'); a('s_call_b64 s[96:97], L_help')
                if self.flex and n == self.KF:
                    self.need_vm(('cp', 0))
                    R = f's{22 + s}'
                    a('v_readfirstlane_b32 s38, v16'); a('s_add_u32 s38, s38, 1')
                    a(f's_mov_b32 {R}, {self.flex[0][1]}'); a(f's_mul_i32 s44, s38, {R}')
                    b = 0
                    for (n0, r0), (n1, r1) in zip(self.flex, self.flex[1:]):
                        b += n0
                        a(f's_sub_i32 s39, s38, {b}'); a('s_max_i32 s33, s39, 0'); a(f's_mul_i32 s33, s33, {r0 - r1}'); a('s_sub_u32 s44, s44, s33')
                        a('s_cmp_ge_i32 s39, 0'); a(f's_cselect_b32 {R}, {r1}, {R}')
                    a('s_lshl_b32 s44, s44, 9'); a('s_add_u32 s44, s44, s21'); a('s_add_u32 s21, s21, 0x2000000')
                    a(f's_lshl_b32 s90, {R}, 9'); a('s_add_u32 s90, s90, s44'); a('s_min_u32 s90, s90, s10'); a('s_mov_b32 s94, s90')
                    self.stamp(40, 's49', 18, 's38')
                if n == nQ:
                    self.need_vm((s, self.KF + 7 if self.flex else 39))
                    if s == 0:
                        a('s_cmp_eq_u32 s49, 0'); a('s_cbranch_scc1 L_st0'); st_in = list(self.vmq)
                    self.qk1(s, {('u', 1): [(s, n)], ('u', 6): [(s, n + 1)], ('x', 0): [(s, n + 2)], ('e', 0): [(s, n + 3)]}, True)
                    n += 4
                    if s == 0: a.label('L_st0r'); st_out = list(self.vmq)
                    for z in self.zero_acc(): a(z)
                    continue
                self.load(s, n)
                if s == 0 and (n == self.CL or any(x[0] == n for x in self.spf)):
                    l = self.lab('L_it0')
                    a('s_cmp_lg_u32 s49, 0'); a(f's_cbranch_scc1 {l}')
                    if n == self.CL: self.armS()
                    self.wpf(n)
                    a.label(l)
                if self.tq and s == 0 and n in self.tq[:2]:
                    assert self.tq[1] < nQ and self.bst
                    l = self.lab('L_it0'); a('s_cmp_lg_u32 s49, 0'); a(f's_cbranch_scc1 {l}')
                    if n == self.tq[0]: a('v_mov_b32 v22, 0'); a(f'global_load_dword v23, v22, {DBG} offset:{self.CNTA} sc1')
                    else:
                        a(f's_waitcnt vmcnt({self.tq[1] - self.tq[0]})'); a('v_readfirstlane_b32 s38, v23'); a('s_and_b32 s38, s38, 0xff')
                        a(f's_cmp_ge_u32 s38, {self.tq[2]}'); a(f's_cselect_b32 s59, {self.tq[3]}, s59'); a('s_mov_b32 s26, s59')
                        if self.diag: a('s_add_u32 s7, s7, s59')
                    a.label(l)
                CK = self.TK if self.flex else (self.PFA or self.PF)
                CD = 8
                if self.eq0: CK = self.eq[0]; CD = min(8, CK - nQ - 4); assert not self.la
                if s == 0 and self.cw and n in (self.cw - 8, self.cw):
                    assert self.CL < self.cw - 8 and self.cw < CK and not self.nocl and not self.la and not (nQ <= self.cw - 8 < nQ + 4)
                    l = self.lab('L_it0'); a('s_or_b32 s38, s49, s3'); a(f's_cbranch_scc1 {l}')
                    if n < self.cw: a('v_mov_b32 v22, 0'); a(f'global_load_dword v23, v22, {DBG} offset:{self.CNTA} sc1')
                    else:
                        a('s_waitcnt vmcnt(8)'); self.wait_counter(22, 23, 21, self.CNTA, NCHAIN, pre=True)
                        a(f'ds_write_b32 v22, v23 offset:{self.FLAG + 4}')
                    a.label(l)
                if s == 0 and self.cw and n == CK:
                    self.stamp(22, 's49')
                    l = self.lab('L_it0'); w = self.lab('L_cw'); a('s_cmp_lg_u32 s49, 0'); a(f's_cbranch_scc1 {l}')
                    a('v_mov_b32 v22, 0')
                    a.label(w); self.timeout()
                    a(f'ds_read_b32 v23, v22 offset:{self.FLAG + 4}'); a('s_waitcnt lgkmcnt(0)')
                    a('v_readfirstlane_b32 s27, v23'); a('s_cmp_eq_u32 s27, 0'); a(f's_cbranch_scc1 {w}')
                    a('s_add_u32 s27, s27, s5'); a.label(l)
                if self.cw: CK = -99
                if s == 0 and n == CK - CD:
                    assert n >= nQ + 4 or (CK < nQ and n > self.CL)
                    l = self.lab('L_it0'); a('s_cmp_lg_u32 s49, 0'); a(f's_cbranch_scc1 {l}')
                    a('v_mov_b32 v22, 0'); a(f'global_load_dword v23, v22, {DBG} offset:{self.CNTA} sc1'); a.label(l)
                if s == 0 and n == CK:
                    self.stamp(22, 's49')
                    l = self.lab('L_it0'); a('s_cmp_lg_u32 s49, 0'); a(f's_cbranch_scc1 {l}')
                    a(f's_waitcnt vmcnt({CD})'); self.wait_counter(22, 23, 21, self.CNTA, NCHAIN, pre=True)
                    a('v_readfirstlane_b32 s27, v23'); a('s_add_u32 s27, s27, s5')
                    if self.la:
                        assert self.PFA and self.PFA < self.PF
                        x = self.lab('L_la'); a(f's_cmp_eq_u32 s27, {NCHAIN + 1}'); a(f's_cbranch_scc0 {x}')
                        self.armP(self.la)
                        def far(x=x, l=l): a.label(x); self.armP('sc1'); a(f's_branch {l}')
                        self.later.append(far)
                    a.label(l)
                if (self.flex and n == self.TK) or (self.fx2 and n == self.PFA):
                    a('v_mov_b32 v16, 1')
                    a('s_mov_b64 exec, 1'); a(f'buffer_atomic_add v16, off, {WS}, s20 sc0 sc1'); a('s_mov_b64 exec, -1')
                    a('s_add_u32 s20, s20, 2048')
                    self.vmq.append(('cp', 0))
                if self.vpf and n == self.vpf[0]:
                    a(f'v_lshlrev_b32 v19, 3, v{self.vL16}'); a(f's_mov_b32 m0, {self.TB + 4 * self.WLDS}')
                    a(f'buffer_load_dword v19, {V4}, s44 offen {self.xpol} lds'); self.vmq.append(('cp', 'x'))
                for n0, g in (self.vpf or [0])[1:]:
                    if n == n0:
                        a(f'v_lshlrev_b32 v19, 3, v{self.vL16}'); a(f's_mov_b32 m0, {self.TB + 4 * self.WLDS}'); a(f's_add_u32 s38, s{40 + g}, 0x2000000')
                        if g == 4: a('s_mov_b32 exec_hi, 0xff')
                        a(f'buffer_load_dword v19, {K_SRD}, s38 offen {self.xpol} lds'); self.vmq.append(('cp', 'x'))
                        if g == 4: a('s_mov_b32 exec_hi, -1')
                if self.eq and n == self.eq[0]: self.qload(); self.vmq += [('cp', 'e0'), ('cp', 'e1')]
                if n == self.PFA and self.hp: self.board()
                if n == self.PFA:
                    assert n >= nQ + 4 and n < self.PF
                    self.qload(); self.vmq += [('cp', 'qa'), ('cp', 'qb')]
                if n == self.PF:
                    assert n >= nQ + 4
                    self.qload(); self.vmq += [('cp', 'q0'), ('cp', 'q1')]
                n += 1
            self.dyn = False
            if self.fb: a(f's_mov_b32 s59, {self.fb[1]}')
            if self.PFA:
                self.need_vm(('cp', 'qb')); keep = list(self.vmq)
                if self.fx2: a('v_readfirstlane_b32 s35, v16')
                self.stamp(1, 's49')
                self.maxtree(range(self.vQ, self.vQ + 8), 18)
                a(f's_cbranch_vccz L_Xok{s}')
                if self.nox: a('s_cmp_lg_u32 s49, 0'); a(f's_cbranch_scc1 L_Xok{s}')
                if self.fb and len(self.fb) > 2: a(f's_mov_b32 s59, {self.fb[2]}')
            def ahead(what):
                for g in what:
                    if g == 'v': a(f'buffer_load_dword v19, {V4}, s44 offen {self.xpol} lds')
                    else:
                        a(f's_add_u32 s38, s{40 + g}, 0x2000000')
                        if g == 4: a('s_mov_b32 exec_hi, 0xff')
                        a(f'buffer_load_dword v19, {K_SRD}, s38 offen {self.xpol} lds')
                        if g == 4: a('s_mov_b32 exec_hi, -1')
                    self.vmq.append(('cp', 'x'))
            if self.xpf:
                assert self.PFA and not self.flex
                a(f'v_lshlrev_b32 v19, 3, v{self.vL16}'); a(f's_mov_b32 m0, {self.TB + 4 * self.WLDS}')
                ahead(self.xpf[0])
            if self.hp:
                if self.hl and s == 1: a('s_cmp_eq_u32 s49, 3'); a(f's_cselect_b32 s34, {self.hl[0]}, {self.hp[1]}')
                else: a(f's_movk_i32 s34, {self.hp[1]}')
                a('s_movk_i32 s32, 0'); a(f's_call_b64 s[96:97], L_help')
            self.need_vm(('cp', 'q1'))
            for x in (self.xpf or [])[1:]:
                self.maxtree(range(self.vQ, self.vQ + 8), 18)
                a(f's_cbranch_vccz L_Xok{s}')
                self.qload(); ahead(x); a(f's_waitcnt vmcnt({len(x)})')
            if self.PFA: self.vmq = keep
            else: self.stamp(1, 's49')
            a.label(f'L_X{s}')
            self.maxtree(range(self.vQ, self.vQ + 8), 18)
            a(f's_cbranch_vccz L_Xok{s}')
            a.label(f'L_Xpoll{s}')
            if self.fb and len(self.fb) > 3: a('s_sub_i32 s59, s59, 1'); a(f's_max_i32 s59, s59, {self.fb[0]}')
            elif self.fb: a(f's_mov_b32 s59, {self.fb[0]}')
            self.timeout()
            if self.hp and self.hp[4]:
                a(f'v_lshrrev_b32 v19, 1, v{self.vL16}')
                a(f'buffer_load_dword v16, v19, {WS}, s20 offen sc1')
            self.qload()
            a('s_waitcnt vmcnt(0)')
            if self.hp and self.hp[4]:
                self.maxtree(range(self.vQ, self.vQ + 8), 18)
                a(f's_cbranch_vccz L_Xok{s}')
                a('s_movk_i32 s32, 0'); a(f's_call_b64 s[96:97], L_help'); a(f's_branch L_Xpoll{s}')
            else: a(f's_branch L_X{s}')
            a.label(f'L_Xok{s}')
            if self.tp: a('s_waitcnt lgkmcnt(0)')
            if self.eq:
                t = [x for x in self.vmq if x not in (('cp', 'q0'), ('cp', 'q1'))]
                assert fastq[-len(t):] == t, (fastq, t)
                self.vmq = list(fastq)
            self.stamp(6, 's49')
            if self.hp and 73 in dict(self.hp[0]): self.publish(dict(self.hp[0])[73])
            if s == 0: a('s_cmp_eq_u32 s49, 0'); a('s_cbranch_scc1 L_first')
            save = list(self.vmq)
            if s == 1 and self.lst: a('s_cmp_eq_u32 s49, 3'); a('s_cbranch_scc1 L_last'); last_save = save
            self.pass2(s, LP)
            if self.diag: a('s_memrealtime s[28:29]')
            if s == 0:
                if not self.fin: a('s_cmp_eq_u32 s49, 4'); a('s_cbranch_scc1 L_fin')
                after = list(self.vmq)
            a.label(f'L_PV{s}')
            self.pv1f(s)
            if self.diag: self.stamp(11, 's49', src='s28')
            a('s_add_u32 s49, s49, 1'); self.nextP(); a('s_add_u32 s53, s53, 512')
            a('s_add_u32 s56, s56, 8192'); a('s_mov_b32 s46, s56')
            if self.hp: a('s_add_u32 s35, s35, 10')
            if self.odd and (self.odd & 1) != s and not self.fb:
                a(f's_cmp_eq_u32 s49, {self.odd}'); a(f's_cselect_b32 s59, {mid}, s59')
            if self.cps and (self.cpon & 1) != s:
                a(f's_cmp_eq_u32 s49, {self.cpon}'); a('s_cselect_b32 s20, s24, s20'); a(f's_cselect_b32 s22, 16, s22'); a('s_cselect_b32 s21, -1, s21')
                a(f's_cselect_b32 s59, {mid}, s59')
            if s == 0: first_save, first_after = save, after
        if self.lst:
            assert self.fin
            a('s_branch L_A0'); self.vmq = list(last_save); self.last()
        else: a('s_cmp_lg_u32 s49, 4'); a('s_cbranch_scc1 L_A0')
        if self.fin: self.final()
        else:
            a('s_mov_b32 s94, 0')
            for z in self.zero_acc(): a(z)
            a('s_branch L_Xpoll0')
        a.label('L_first')
        self.vmq = first_save; self.lq = []
        a('s_lshl_b32 s38, s3, 9'); a(f'v_add_u32 v18, s38, v{self.vQo}')
        a(f'ds_write_b128 v18, {vr(self.vQ, 4)} offset:{self.Q1L}')
        a(f'ds_write_b128 v18, {vr(self.vQ + 4, 4)} offset:{self.Q1L + 256}')
        for n in range(73, 80): self.load(0, n, wait=False)
        self.share()
        self.need_vm(('cp', 'q1'))
        if self.eq0: a('s_mov_b32 s58, 0')
        a('s_waitcnt lgkmcnt(0)'); a('s_barrier')
        pts = [('u', 1), ('u', 4), ('u', 7), ('x', 0), ('e', 0)]; FL = {}
        for i in range(N1): FL.setdefault(pts[i * len(pts) // N1], []).append((1, i))
        self.qk1(0, FL, False)
        assert self.vmq == first_after, (self.vmq, first_after)
        a('s_branch L_PV0')
        a.label('L_fin'); self.stamp(11, 's49'); self.stamp(40, src='s7')
        if 'b' in self.wb: self.dirty()
        if '1' in self.wb:
            a('s_and_b32 s38, s36, 1'); a('s_or_b32 s38, s38, s37'); a('s_or_b32 s38, s38, s3'); a('s_cbranch_scc1 L_end')
            a('buffer_wbl2 sc1')
        a('s_branch L_end')
        a.label('L_st0')
        self.vmq = st_in; self.dyn = bool(self.lv)
        for n in range(nQ, nQ + 4): self.load(0, n)
        self.dyn = False
        assert self.vmq == st_out, (self.vmq, st_out)
        a('s_branch L_st0r')
        for f in self.later: f()
        if self.hp: self.help()
    CKR = [64, 66, 68, 70, 72, 74, 76, 78, 80, 82]
    def clk(self):
        if self.cyc and self.ck: self.a(f's_memtime s[{self.CKR[self.ck - 1]}:{self.CKR[self.ck - 1] + 1}]'); self.ck += 1
    def dirty(self):
        a = self.a
        a('s_mul_i32 s38, s36, 14'); a('s_add_u32 s38, s38, s37'); a('s_lshl2_add_u32 s38, s38, s3'); a('s_lshl_b32 s38, s38, 12'); a('s_add_u32 s38, s38, 0x2000000')
        for i in range(4): a(f'buffer_store_dwordx4 v[8:11], v{self.vL16}, {WS}, s38 offen offset:{i * 1024}')
    def publish(self, v):
        a = self.a
        a(f's_add_u32 s38, s35, {v}'); a('v_mov_b32 v18, s38')
        a('s_mov_b64 exec, 1'); a(f'buffer_store_dword v18, off, {WS}, s25' + self.N('b')); a('s_mov_b64 exec, -1')
        self.vmq.append(('cp', 'pg'))
    def board(self):
        self.a(f'v_lshrrev_b32 v19, 1, v{self.vL16}')
        self.a(f'buffer_load_dword v16, v19, {WS}, s20 offen sc1'); self.vmq.append(('cp', 'bd'))
    def help(self):
        a = self.a; lo, hi = self.hp[2:4]
        a.label('L_help')
        a('v_subrev_u32 v16, s35, v16')
        a('v_cmp_ge_i32 vcc, s34, v16')
        a('s_and_b32 s33, vcc_lo, 0xfffffff'); a('s_cbranch_scc0 L_help9')
        a('s_bcnt1_i32_b32 s38, s33'); a('s_max_u32 s38, s38, s32'); a('s_bfe_u32 s32, s21, 0x50001'); a('s_mul_i32 s38, s38, s32'); a('s_lshr_b32 s38, s38, 5')
        a('v_mbcnt_lo_u32_b32 v17, s33, 0'); a('v_cmp_eq_u32 vcc, s38, v17')
        a('s_add_u32 s21, s21, 23')
        a('s_and_b32 s38, vcc_lo, s33'); a('s_cbranch_scc0 L_help9')
        a('s_ff1_i32_b32 s32, s38'); a('s_and_b32 s38, s21, 1'); a(f's_mov_b32 m0, {self.TB + 4 * self.WLDS}')
        a('v_readlane_b32 s33, v16, s32');
        if self.hl:
            assert not self.hp[5]
            a('s_cmp_eq_u32 s49, 3'); a(f's_cselect_b32 s39, {self.hl[0] - self.hl[1]}, {self.hp[1] - lo}'); a(f's_cselect_b32 s30, {self.hl[2]}, {hi}')
            a('s_max_i32 s33, s33, s39'); a('s_add_i32 s33, s33, s38'); a('s_add_i32 s33, s33, 2'); a('s_min_i32 s33, s33, s30')
        else: a(f's_sub_i32 s39, s34, {lo}'); a('s_max_i32 s33, s33, s39'); a('s_add_i32 s33, s33, s38'); a('s_add_i32 s33, s33, 2'); a(f's_min_i32 s33, s33, {hi}')
        a('s_cmp_ge_u32 s32, 14'); a('s_cselect_b32 s38, 14, 0'); a('s_cselect_b32 s39, 0x200000, 0'); a('s_sub_u32 s32, s32, s38')
        a('s_sub_u32 s39, s39, s24'); a('s_add_u32 s39, s39, s40')
        a('s_cmp_lt_i32 s33, 0'); a('s_cselect_b32 s38, 10, 0'); a('s_cselect_b32 s30, 0x2000000, 0'); a('s_add_i32 s33, s33, s38'); a('s_sub_u32 s39, s39, s30')
        a('s_cmp_ge_i32 s33, 10'); a('s_cselect_b32 s38, 10, 0'); a('s_cselect_b32 s30, 0x2000000, 0'); a('s_sub_i32 s33, s33, s38'); a('s_add_u32 s39, s39, s30')
        a('s_cmp_ge_u32 s33, 5'); a('s_cselect_b64 s[28:29], s[12:13], s[8:9]'); a('s_cselect_b32 s38, 0, 3'); a('s_add_u32 s33, s33, s38')
        a('s_mov_b32 s30, 0x8000000'); a('s_mov_b32 s31, 0x20000')
        a('s_cmp_ge_u32 s33, 5'); a('s_cselect_b32 s38, 5, 0'); a('s_sub_u32 s33, s33, s38')
        if self.ro:
            a(f'v_lshlrev_b32 v19, 3, v{self.vL16}')
            a('s_bfe_u32 s38, s39, 0x40015'); a(f's_mul_i32 s38, s38, {self.ro}'); a('s_add_u32 s38, s38, s32'); a('s_mul_i32 s34, s33, 14'); a('s_add_u32 s38, s38, s34')
            a('s_sub_u32 s34, s38, 56'); a('s_min_u32 s38, s38, s34'); a('s_lshl_b32 s38, s38, 6'); a(f's_movk_i32 s34, {self.hp[1]}')
            a('s_cmp_lg_u32 s33, 4'); a('s_cbranch_scc1 L_help2')
            a(f's_add_u32 s39, s39, {4 * NW * 8192}')
            assert not self.hl and not self.hp[5]
        else:
            a(f's_mul_i32 s38, s33, {NW * 8192}'); a('s_add_u32 s39, s39, s38')
            a(f'v_lshlrev_b32 v19, 3, v{self.vL16}')
            a('s_lshl_b32 s38, s32, 6')
            a('s_cmp_lg_u32 s33, 4'); a('s_cbranch_scc1 L_help2')
        a('s_mul_i32 s38, s32, 36'); a('s_min_u32 s32, s32, 8'); a('s_add_u32 s38, s38, s32'); a('s_mul_i32 s32, s3, 7'); a('s_sub_u32 s38, s38, s32')
        a('s_mov_b32 exec_hi, 0xff')
        a.label('L_help2')
        a('s_lshl_b32 s38, s38, 9'); a('s_add_u32 s39, s39, s38')
        a(f'buffer_load_dword v19, s[28:31], s39 offen {self.xpol} lds')
        a('s_mov_b32 exec_hi, -1')
        if self.diag: a('s_add_u32 s7, s7, 0x100')
        a.label('L_help9')
        a('s_setpc_b64 s[96:97]')
    def last(self):
        a = self.a; Q = self.vQ; AC = self.vAcc
        a.label('L_last'); self.lq = []
        for x in self.staddr(): a(x)
        self.ds('ds_read_b96 v[20:22], v18', 'p')
        sets = [(0, 0), (0, 1), (1, 0), (1, 1), (2, 0)]
        prep = lambda i: self.aprep(*sets[i], Q + 4 * (i % 2))
        def hook(p):
            if p == ('u', 0):
                for n in (73, 74, 75): self.load(1, n, False, self.kreg(0, 0) + 4 * (n - 72))
            if p == ('u', 1):
                for n in (76, 77, 78, 79): self.load(1, n, False)
            if p[0] == 'u' and 2 <= p[1] < 6:
                for n in (52 + 2 * p[1], 53 + 2 * p[1]): self.need_vm((1, n)); self.copy(1, 0, 2, n)
            if p == ('p', 7):
                self.need_vm(('cp', 'q1')); self.need_lds('p')
                for x in prep(0)[:2]: a(x)
            if p == ('p', 8):
                for x in prep(0)[2:]: a(x)
        self.qk_part(0, hook, part=1, tb=16)
        for i, (k, P) in enumerate(sets):
            fill = self.epi_pre() if i == 4 else prep(i + 1)
            if i == 4:
                for x in fill: a(x)
                fill = []
            for t in range(4):
                b, tags = self.bop(1, 0, 2, k, P, t)
                if i < 2: self.need_vm((1, 64 + 4 * i + t)); self.copy(1, 0, 2, 64 + 4 * i + t)
                if (i, t) == (2, 0): self.need_vm((1, 72)); self.copy(1, 0, 2, 72)
                if i == 4: self.need_vm((1, 73 + 2 * t))
                for tg in tags: self.need_lds(tg)
                a(f'v_smfmac_f32_16x16x64_bf16 {vr(AC + 4 * t, 4)}, {vr(Q + 4 * (i % 2), 4)}, {rr(b, 8)}, v{self.vIP}')
                n = (len(fill) + (3 - t)) // (4 - t)
                got = fill[:n]; fill = fill[n:]
                for x in got: a(x)
                if (i, t) == (4, 2) and self.lst > 1:
                    for x in self.merge(0): a(x)
        for x in (self.merge(0) if self.lst == 1 else []) + self.merge(2): a(x)
        self.epilogue(0, 1)
        self.stamp(16, 's49')
        for n in range(72, 76): self.ds(f'ds_read_b128 {ar(4 * (n - 72), 4)}, v{self.vDs} offset:{self.ldsslot(0, n) * 1024}', ('c', n))
        for j in range(8): self.copy(0, 0, 0, 56 + j); self.copy(0, 0, 0, 64 + j)
        self.qk_part(0, lambda p: None, part=2)
        sets = [(0, 0), (0, 1), (2, 0), (1, 0), (1, 1)]
        lred = self.lred()
        def prep(i):
            k, P = sets[i]
            return (self.pack(k) if P == 0 else []) + self.aprep(k, P, Q + 4 * (i % 2))
        for x in prep(0): a(x)
        for i, (k, P) in enumerate(sets):
            fill = prep(i + 1) if i + 1 < len(sets) else []
            if i == len(sets) - 1:
                fill = lred + self.epi_pre(); lred = []
            for t in range(4):
                b, tags = self.bop(0, 0, 0, k, P, t)
                if k == 2 and t < 2: b = 256 + 8 * t
                for tg in tags: self.need_lds(tg)
                a(f'v_smfmac_f32_16x16x64_bf16 {vr(AC + 4 * t, 4)}, {vr(Q + 4 * (i % 2), 4)}, {rr(b, 8)}, v{self.vIP}')
                n = (len(fill) + (3 - t)) // (4 - t)
                got = fill[:n]; fill = fill[n:]
                if len(got) < 2 and lred: got.append(lred.pop(0))
                for x in got: a(x)
        for x in self.merge(0) + self.merge(2): a(x)
        self.epilogue(1, 1)
        self.stamp(11, 's49')
        a('s_add_u32 s49, s49, 1'); self.nextP(); a('s_add_u32 s46, s56, 8192')
        a('s_barrier')
    def final(self):
        a = self.a; Q = self.vQ; AC = self.vAcc; T = self.vT; m = self.vMC; L = self.vL
        self.lq = []; self.vmq = []
        def fb(k, P, t): return 256 + 64 + 8 * (4 * P + t) if k == 1 else self.bop(1, 0, 2, k, P, t)[0]
        for n in range(56, 72):
            a(f'ds_read_b128 {rr(256 + 64 + 8 * ((n - 56) % 8) + 4 * ((n - 56) // 8), 4)}, v{self.vDs} offset:{self.ldsslot(1, n) * 1024}')
        KA = 96; A = [136, 140, 144]; PT = 148
        for z in self.zero_acc(): a(z)
        if self.fin > 1:
            for r in range(0, 40, 2): a(f'v_mov_b64 {vr(KA + r, 2)}, 0')
            a(f'v_cmp_gt_u32 s[40:41], s23, v{self.vBias}'); a(f's_mov_b32 s42, 0x{f2u(2.0 ** 40 if self.fin == 2 else 0.0):x}')
            a('v_mov_b32 v23, 0xff800000'); a(f'v_mov_b32 v{m}, 0')
            if self.mz: a(f's_mov_b32 s43, 0x{f2u(2.0 ** -40):x}'); a(f's_mov_b32 s42, 0x{(80 << 23) if self.fin == 2 else (46 << 23) + (1 << 22) if self.fin == 4 else 0:x}')
        a.label('L_Fpoll')
        self.timeout()
        self.qload()
        a('s_waitcnt vmcnt(0) lgkmcnt(0)')
        self.maxtree(range(Q, Q + 8), 18)
        a('s_cbranch_vccnz L_Fpoll')
        self.stamp(6, 's49')
        self.ck = 1; self.clk()
        def pv(A_, k, P, t): return f'v_smfmac_f32_16x16x64_bf16 {vr(AC + 4 * t, 4)}, {vr(A_, 4)}, {rr(fb(k, P, t), 8)}, v{self.vIP}'
        if self.fin > 1:
            M = []
            for u in range(10):
                for h in range(2): M.append(f'v_smfmac_f32_16x16x64_bf16 {vr(KA + 4 * u, 4)}, {vr(Q + 4 * h, 4)}, {rr(self.kreg(1, u) + 8 * h, 8)}, v{self.vIQ}')
            M += [pv(A[0], 0, 0, t) for t in range(4)] + [pv(A[1], 0, 1, t) for t in range(4)] + [pv(A[0], 1, 0, t) for t in range(4)]
            for t in range(4): M += [pv(A[1], 1, 1, t), pv(A[2], 2, 0, t)]
            G = [[] for _ in M]
            def put(g, ops, per=1):
                for i, x in enumerate(ops): G[g + i // per].append(x)
            for u in range(10):
                ac = KA + 4 * u; t = PT + 2 * (u % 2)
                put(2 * u + 4, [f'v_add_f32 v{t+1}, v{ac+1}, v{ac+3}', f'v_add_f32 v{t}, v{ac}, v{ac+2}'], 2)
                put(2 * u + 5, [f'v_add_f32_dpp v{T + u // 4}, v{t+1}, v{t} quad_perm:[1,1,3,3] row_mask:0x{1 << (u % 4):x} bank_mask:0xf'])
            if not self.mz: put(5, [f'v_add_f32_dpp v{m}, v{PT+1}, v{PT} quad_perm:[1,1,3,3] {FULL}',
                    f'v_max_f32_dpp v{m}, v{m}, v{m} quad_perm:[2,3,0,1] {FULL}', f'v_max_f32_dpp v{m}, v{m}, v{m} row_ror:4 {FULL}',
                    f'v_max_f32_dpp v{m}, v{m}, v{m} row_ror:8 {FULL}', f'v_mul_f32 v{m}, s51, v{m}'])
            ex = lambda k: [f'v_fma_f32 v{T+k}, v{T+k}, s51, -v{m}', f'v_exp_f32 v{T+k}, v{T+k}']
            put(11, ex(0)); put(13, self.pack(0)[:2], 2); put(14, self.pack(0)[2:]); put(15, self.aprep(0, 0, A[0]), 2)
            put(17, self.aprep(0, 1, A[1])[:2], 2); put(18, self.aprep(0, 1, A[1])[2:])
            put(19, ex(1)); put(21, self.pack(1)[:2], 2); put(22, self.pack(1)[2:])
            put(23, [f'v_cndmask_b32 v{T+2}, v23, v{T+2}, s[40:41]'] + ex(2)[:1], 2); put(24, ex(2)[1:])
            put(24, self.aprep(1, 0, A[0]), 2); put(25, self.pack(2)[:1]); put(26, self.pack(2)[1:3], 2); put(27, self.pack(2)[3:4]); put(28, self.pack(2)[4:])
            put(28, self.aprep(1, 1, A[1]), 2); put(30, self.aprep(2, 0, A[2]), 2)
            lr = self.lred()
            put(26, lr[:2]); put(29, lr[2:5]); put(32, lr[5:6]); put(33, lr[6:9], 3); put(34, lr[9:], 2)
            put(32, self.epi_pre()[:2], 2); put(35, [f'v_subrev_u32 v23, s43, v{L}', 'v_cmp_lt_u32 vcc, s42, v23'] if self.mz else [f'v_cmp_lt_f32 vcc, s42, v{L}'], 2); put(35, self.epi_pre()[2:4], 2)
            put(36, ['s_bitcmp1_b32 vcc_lo, 0', 's_cbranch_scc1 L_Fslow'] + self.epi_pre()[4:], 3)
            put(37, self.merge(0), 3)
            for x, g in zip(M, G):
                a(x)
                for y in g: a(y)
            for x in self.merge(2): a(x)
            a.label('L_Fepi')
            self.clk()
            self.epilogue(1, 0, self.vH)
            self.clk()
            if self.cyc:
                for i in range(self.ck - 1): self.stamp(44 + i, src=f's{self.CKR[i]}')
            self.ck = 0
            a('s_branch L_fin')
            a.label('L_Fslow'); a('s_nop 8')
            for z in self.zero_acc(): a(z)
        self.qk_part(1, lambda p: None)
        sets = [(0, 0), (2, 0), (0, 1), (1, 0), (1, 1)]
        lred = self.lred()
        def prep(i):
            k, P = sets[i]
            return (self.pack(k) if P == 0 else []) + self.aprep(k, P, Q + 4 * (i % 2))
        for x in prep(0): a(x)
        for i, (k, P) in enumerate(sets):
            fill = prep(i + 1) if i + 1 < len(sets) else []
            if i == len(sets) - 1:
                fill = lred + self.epi_pre(); lred = []
            for t in range(4):
                a(pv(Q + 4 * (i % 2), k, P, t))
                n = (len(fill) + (3 - t)) // (4 - t)
                got = fill[:n]; fill = fill[n:]
                if len(got) < 2 and lred: got.append(lred.pop(0))
                for x in got: a(x)
        for x in self.merge(0) + self.merge(2): a(x)
        if self.fin > 1: a('s_branch L_Fepi')
        else:
            self.clk()
            self.epilogue(1, 0, self.vH)
            self.clk()
            if self.cyc:
                for i in range(self.ck - 1): self.stamp(44 + i, src=f's{self.CKR[i]}')
            self.ck = 0
            a('s_branch L_fin')
    def share(self):
        a = self.a; F = self.fx2
        if not F: return
        a('s_add_u32 s35, s35, 1'); a(f's_mov_b32 s25, {F[0][1]}'); a('s_mul_i32 s24, s35, s25')
        b = 0
        for (n0, r0), (n1, r1) in zip(F, F[1:]):
            b += n0
            a(f's_sub_i32 s39, s35, {b}'); a('s_max_i32 s33, s39, 0'); a(f's_mul_i32 s33, s33, {r0 - r1}'); a('s_sub_u32 s24, s24, s33')
            a('s_cmp_ge_i32 s39, 0'); a(f's_cselect_b32 s25, {r1}, s25')
        a('s_lshl_b32 s24, s24, 9'); a('s_add_u32 s24, s24, s21'); a('s_add_u32 s21, s21, 0x2000000')
    def armS(self):
        a = self.a
        if not self.nocl: a('s_waitcnt vmcnt(8)')
        self.confirm(24, 20)
        if not self.oarm and 'N' not in self.wb and not self.la and not self.ja: self.armP('sc1' + self.N('a'))
        self.stamp(30, None, 24)
    def nextP(self):
        if not (self.ja and self.ja[0]): self.a(f's_add_u32 s47, s47, {PIB}')
    def armP(self, pol):
        a = self.a
        a('v_lshl_add_u32 v18, v0, 19, s48'); a('v_mov_b64 v[20:21], -1'); a('v_mov_b64 v[22:23], -1')
        a('s_lshl_b32 s38, s3, 20'); a('s_add_u32 s38, s38, s47'); a(f's_add_u32 s39, s38, {PP2}')
        a(f'buffer_store_dwordx4 v[20:23], v{self.vL16}, {WS}, s39 offen {pol}')
        a('s_mov_b64 exec, 3')
        a(f'buffer_store_dwordx2 v[20:21], v18, {WS}, s38 offen ' + (pol if self.N('M') else 'sc1' + self.N('a')))
        a('s_cmp_lg_u32 s3, 0'); a('s_cselect_b64 exec, -1, 0')
        a(f'buffer_store_dwordx4 v[20:23], v{self.vL16}, {WS}, s38 offen {pol}')
        a('s_mov_b64 exec, -1')
    def qk_part(self, ds_, hook, zero=True, part=3, tb=18):
        a = self.a; T = self.vT; Q = self.vQ; AC = self.vAcc
        def post_a(u):
            ac = AC + 4 * (u % 4); t = tb + 2 * (u % 2)
            a(f'v_add_f32 v{t+1}, v{ac+1}, v{ac+3}'); a(f'v_add_f32 v{t}, v{ac}, v{ac+2}')
        def post_b(u):
            t = tb + 2 * (u % 2)
            a(f'v_add_f32_dpp v{T + u // 4}, v{t+1}, v{t} quad_perm:[1,1,3,3] row_mask:0x{1 << (u % 4):x} bank_mask:0xf')
        for u in range(10 if part & 1 else 0):
            ac = AC + 4 * (u % 4); k = self.kreg(ds_, u)
            a(f'v_smfmac_f32_16x16x64_bf16 {vr(ac, 4)}, {vr(Q, 4)}, {rr(k, 8)}, v{self.vIQ}')
            if u >= 3: post_a(u - 3)
            a(f'v_smfmac_f32_16x16x64_bf16 {vr(ac, 4)}, {vr(Q + 4, 4)}, {rr(k + 8, 8)}, v{self.vIQ}')
            if u >= 3: post_b(u - 3)
            hook(('u', u))
        zf = [f'v_mov_b32 v{AC + r}, 0' for r in list(range(8, 16)) + list(range(8))] if zero else []
        def Z(n=2):
            for _ in range(n):
                if zf: a(zf.pop(0))
        if part == 1:
            z2 = [f'v_mov_b64 {vr(AC + r, 2)}, 0' for r in (8, 10, 12, 14, 0, 2, 4, 6)]
            post_a(7); a(z2[0]); a(z2[1]); post_b(7); hook(('p', 7)); post_a(8); a(z2[2]); a(z2[3]); post_b(8); hook(('p', 8)); post_a(9); a(z2[4]); a(z2[5]); post_b(9); a(z2[6]); a(z2[7])
            return
        a(f'v_cmp_gt_u32 vcc, s{22 + ds_}, v{self.vBias}'); a('v_mov_b32 v23, 0xff800000')
        if part & 1: post_a(7); Z(1); post_b(7); Z(3); post_a(8); Z(1); post_b(8); Z(2); post_a(9); Z(1); post_b(9)
        else: Z(8)
        m = self.vMC; t = 18
        a(f'v_sub_f32 v{T+2}, v{T+2}, v{T+1}'); a(f'v_sub_f32 v{T+1}, v{T+1}, v{T}')
        a(f'v_cndmask_b32 v{T+2}, v23, v{T+2}, vcc')
        a(f'v_max3_f32 v{m}, v{T}, v{T+1}, v{T+2}'); Z()
        a(f'v_max_f32_dpp v{m}, v{m}, v{m} quad_perm:[2,3,0,1] {FULL}'); Z()
        a(f'v_max_f32_dpp v{m}, v{m}, v{m} row_ror:4 {FULL}'); Z()
        a(f'v_max_f32_dpp v{t}, v{m}, v{m} row_ror:8 {FULL}')
        a(f'v_max_f32_dpp v{m}, v{m}, v{m} row_ror:8 {FULL}'); Z()
        a(f'v_permlane16_swap_b32 v{m}, v{t}'); a(f'v_max_f32 v{t+1}, v{m}, v{t}'); a(f'v_max_f32 v{m}, v{m}, v{t}'); Z(8)
        a(f'v_permlane32_swap_b32 v{m}, v{t+1}'); a(f'v_max_f32 v{m}, v{m}, v{t+1}')
        a(f'v_mul_f32 v{m}, s51, v{m}')
        if self.mz:
            a(f'v_cmp_lt_f32 vcc, s50, abs(v{m})'); a(f'v_cndmask_b32 v{m}, 0, v{m}, vcc')
        for k in (0, 2, 1): a(f'v_fma_f32 v{T+k}, v{T+k}, s51, -v{m}')
        for k in (0, 2, 1): a(f'v_exp_f32 v{T+k}, v{T+k}')
        hook(('x', 0))
    def pack(self, k):
        T = self.vT
        o = [f'v_mov_b32_dpp v18, v{T+k} quad_perm:[0,0,0,0] {FULL}',
             f'v_mov_b32_dpp v19, v{T+k} quad_perm:[2,2,2,2] {FULL}',
             f'v_cvt_pk_bf16_f32 v{20+k}, v18, v19']
        if k == 2: o += [f'v_mov_b32_dpp v0, v22 row_shl:4 {FULL}', 'v_permlane32_swap_b32 v22, v0']
        return o
    def aprep(self, k, P, A):
        pp = 20 + k; M = self.vM
        if P == 0:
            return [f'v_and_b32 v{A}, v{pp}, v{M}', f'v_and_b32 v{A+2}, v{pp}, v{M+2}',
                    f'v_and_b32_dpp v{A+1}, v{pp}, v{M+1} row_shr:4 {FULL} bound_ctrl:0',
                    f'v_and_b32_dpp v{A+3}, v{pp}, v{M+3} row_shr:4 {FULL} bound_ctrl:0']
        return [f'v_and_b32 v{A+1}, v{pp}, v{M+1}', f'v_and_b32 v{A+3}, v{pp}, v{M+3}',
                f'v_and_b32_dpp v{A}, v{pp}, v{M} row_shl:4 {FULL} bound_ctrl:0',
                f'v_and_b32_dpp v{A+2}, v{pp}, v{M+2} row_shl:4 {FULL} bound_ctrl:0']
    def lred(self):
        L = self.vL; T = self.vT
        return [f'v_add_f32 v{L}, v{T}, v{T+1}',
                f'v_add_f32 v{L}, v{T+2}, v{L}',
                f'v_add_f32_dpp v{L}, v{L}, v{L} quad_perm:[2,3,0,1] {FULL}',
                f'v_add_f32_dpp v{L}, v{L}, v{L} row_ror:4 {FULL}',
                f'v_add_f32_dpp v{L}, v{L}, v{L} row_ror:8 {FULL}',
                f'v_mov_b32 v23, v{L}', f'v_permlane16_swap_b32 v{L}, v23', f'v_add_f32 v{L}, v{L}, v23',
                f'v_mov_b32 v23, v{L}', f'v_permlane32_swap_b32 v{L}, v23', f'v_add_f32 v{L}, v{L}, v23']
    def merge(self, t0):
        AC = self.vAcc; o = []
        for r in range(4): o.append(f'v_permlane32_swap_b32 v{AC + 4*t0 + r}, v{AC + 4*t0 + 4 + r}')
        for r in range(4):
            if t0 == 0: o.append(f'v_add_f32_dpp v{AC + r}, v{AC + 4 + r}, v{AC + r} row_ror:8 row_mask:0xf bank_mask:0x3')
            else: o.append(f'v_add_f32_dpp v{AC + r}, v{AC + 8 + r}, v{AC + 12 + r} row_ror:8 row_mask:0xf bank_mask:0xc')
        return o
    def staddr(self):
        return [f'v_lshrrev_b32 v18, 6, v{self.vL16}', 'v_lshl_add_u32 v18, v18, 4, s57']
    def qk1(self, s, LP, wait):
        a = self.a; Q = self.vQ
        def hook(p):
            for x in LP.get(p, []): self.load(*x, wait=wait)
        a(f'v_add_u32 v18, s53, v{self.vQo}')
        self.ds(f'ds_read_b128 {vr(Q, 4)}, v18', 'q'); self.ds(f'ds_read_b128 {vr(Q + 4, 4)}, v18 offset:256', 'q')
        for z in self.zero_acc(): a(z)
        self.need_lds('q')
        self.qk_part(s, hook, zero=False)
        pk = self.pack(0) + self.pack(2) + self.pack(1); lr = self.lred()
        while pk or lr:
            if lr: a(lr.pop(0))
            if pk: a(pk.pop(0))
        for x in self.staddr(): a(x)
        a('v_mov_b32 v19, s55')
        a('ds_write_b96 v18, v[20:22]')
        a('s_mov_b64 exec, 1')
        a(f'ds_write_b64 v19, {vr(self.vMC, 2)} offset:{self.MA1[s]}')
        a('s_mov_b64 exec, -1')
        hook(('e', 0))
    def cdst(self, fs, cu0, pi):
        if pi >= 2: pi += 2
        return self.kreg(fs, pi // 2) + 8 * (pi % 2)
    def copy(self, ds_, fs, cu0, n):
        if n >= 72: pi, half = (n - 72) // 2, (n - 72) % 2
        else: pi, half = 2 + (n - 56) % 8, (n - 56) // 8
        self.ds(f'ds_read_b128 {rr(self.cdst(fs, cu0, pi) + 4 * half, 4)}, v{self.vDs} offset:{self.ldsslot(ds_, n) * 1024}', ('c', n))
    def bop(self, ds_, fs, cu0, U, P, t):
        if U == 0: return self.vreg0(ds_, P, t), []
        if U == 1: return self.cdst(fs, cu0, 2 + 4 * P + t), [('c', 56 + 4 * P + t), ('c', 64 + 4 * P + t)]
        if t < 2: return self.cdst(fs, cu0, t), [('c', 72 + 2 * t), ('c', 73 + 2 * t)]
        if cu0: return self.kreg(fs, 1) + 8 * (t - 2), []
        return self.vH + 8 * (t - 2), []
    def pass2(self, s, LP):
        a = self.a; ds_ = 1 - s; Q = self.vQ; AC = self.vAcc
        cplan = {0: [72, 73, 74, 75], 2: [56, 64, 57, 65], 3: [58, 66, 59, 67], 4: [60, 68], 5: [61, 69], 6: [62, 70], 7: [63, 71]}
        def hook(p):
            for n in LP.get(p, []):
                if n == 73: self.need_lds(('c', 75))
                if n < 40: assert p[0] != 'u' or p[1] > self.ORD[n] // 4
                self.load(s if n >= 40 else ds_, n, wait=False)
            if p == ('u', 6): self.share()
            if p[0] == 'u':
                for n in cplan.get(p[1], []): self.copy(ds_, ds_, 0, n)
        self.qk_part(ds_, hook)
        sets = [(0, 0), (2, 0), (0, 1), (1, 0), (1, 1)]
        lred = self.lred()
        def prep(i):
            k, P = sets[i]
            return (self.pack(k) if P == 0 else []) + self.aprep(k, P, Q + 4 * (i % 2))
        self.need_vm(('cp', 'q1'))
        for x in prep(0): a(x)
        for i, (k, P) in enumerate(sets):
            fill = prep(i + 1) if i + 1 < len(sets) else []
            if i == len(sets) - 1:
                fill = lred + self.epi_pre(); lred = []
            for t in range(4):
                b, tags = self.bop(ds_, ds_, 0, k, P, t)
                for tg in tags: self.need_lds(tg)
                a(f'v_smfmac_f32_16x16x64_bf16 {vr(AC + 4 * t, 4)}, {vr(Q + 4 * (i % 2), 4)}, {rr(b, 8)}, v{self.vIP}')
                n = (len(fill) + (3 - t)) // (4 - t)
                got = fill[:n]; fill = fill[n:]
                if len(got) < 2 and lred: got.append(lred.pop(0))
                for x in got: a(x)
            hook(('i', i))
        for x in self.merge(0) + self.merge(2): a(x)
        hook(('m', 0))
        self.epilogue(1, s)
    def epi_pre(self):
        return [f'v_add_u32 v18, s54, v{self.vL16}', 'v_mov_b32 v19, s55', 'v_mov_b32 v20, 1', 'v_mov_b32 v21, 0', 'v_mov_b32 v22, s48']
    def pv1f(self, s):
        a = self.a; fs = 1 - s; Q = self.vQ; AC = self.vAcc
        self.xst = 2
        if self.fx2: a(f's_mov_b32 s{22 + fs}, s25'); self.stamp(40, 's49', 18, 's35')
        def hook(p):
            for n in self.p1l.get(p, []): self.load(fs, n, wait=False)
        for x in self.staddr(): a(x)
        self.ds('ds_read_b96 v[20:22], v18', 'p')
        hook('a')
        for z in self.zero_acc(): a(z)
        self.need_vm((s, 71))
        for n in [56, 64, 57, 65, 58, 66, 59, 67]: self.copy(s, fs, 2, n)
        self.need_lds('p')
        sets = [(0, 0), (0, 1), (1, 0), (1, 1), (2, 0)]
        prep = lambda i: self.aprep(*sets[i], Q + 4 * (i % 2))
        for x in prep(0): a(x)
        for i, (k, P) in enumerate(sets):
            last = (i == len(sets) - 1)
            fill = self.epi_pre() if last else prep(i + 1)
            if i == 1:
                for n in [60, 68, 61, 69, 62, 70, 63, 71]: self.copy(s, fs, 2, n)
            hook(str(i))
            for t in range(4):
                b, tags = self.bop(s, fs, 2, k, P, t)
                if last:
                    if t == 0:
                        self.need_vm((s, 73)); self.copy(s, fs, 2, 72); self.copy(s, fs, 2, 73)
                        self.need_vm((s, 75)); self.copy(s, fs, 2, 74); self.copy(s, fs, 2, 75)
                        for x in fill: a(x)
                        fill = []
                    if t == 2: self.need_vm((s, 77))
                    if t == 3: self.need_vm((s, 79))
                for tg in tags: self.need_lds(tg)
                a(f'v_smfmac_f32_16x16x64_bf16 {vr(AC + 4 * t, 4)}, {vr(Q + 4 * (i % 2), 4)}, {rr(b, 8)}, v{self.vIP}')
                n = (len(fill) + (3 - t)) // (4 - t)
                got = fill[:n]; fill = fill[n:]
                for x in got: a(x)
        self.xst = 0
        for x in self.merge(0) + self.merge(2): a(x)
        hook('m')
        self.epilogue(0, s)
        self.stamp(16, 's49')
        for i in range(8): a(f'v_mov_b64 {vr(self.vH + 2 * i, 2)}, {vr(self.kreg(fs, 1) + 2 * i, 2)}')
    def epilogue(self, p2, s, Zr=None):
        a = self.a; Q = self.vQ; AC = self.vAcc; m = self.vMC; L = self.vL
        CA = self.CA[p2]; MA = self.MA[1] if p2 else self.MA1[s]; CO = self.CO[p2]
        Zr = Zr or self.kreg(1 - s, 2)
        a(f'ds_write_b128 v18, {vr(AC, 4)} offset:{CA}')
        a('s_mov_b64 exec, 1')
        if p2: a(f'ds_write_b64 v19, {vr(self.vMC, 2)} offset:{MA}')
        a(f'ds_add_rtn_u32 v20, v21, v20 offset:{CO}')
        a('s_mov_b64 exec, -1')
        a(f'ds_read_b128 {vr(Q, 4)}, v21 offset:{MA}'); a(f'ds_read_b128 {vr(Q + 4, 4)}, v21 offset:{MA + 16}')
        for w in range(4): a(f'ds_read_b128 {vr(Zr + 4 * w, 4)}, v{self.vL16} offset:{CA + 1024 * w}')
        if p2 and self.ja and self.ja[0]: a(f's_add_u32 s38, s47, {PP2 + (1 - s) * PIB}')
        elif p2: a(f's_sub_u32 s38, s47, {PIB - PP2}')
        else: a('s_mov_b32 s38, s47')
        dual = self.home and p2 != s
        if dual: a('s_add_u32 s33, s38, 0x2000'); a(f's_cmp_eq_u32 s49, {3 + p2}'); a(f's_cselect_b32 s33, s33, 0x{OOB:x}')
        a('s_waitcnt lgkmcnt(6)')
        self.clk()
        a('v_readfirstlane_b32 s39, v20'); a('s_and_b32 s39, s39, 3'); a('s_cmp_eq_u32 s39, 3')
        if p2: a('s_cselect_b32 s58, 1, 0')
        elif self.bst: a('s_mov_b32 s26, s59'); a(f's_cselect_b32 s59, {self.bst[0]}, {"s59" if len(self.bst) < 3 else self.bst[2]}')
        l = self.lab('L_nl'); a(f's_cbranch_scc0 {l}')
        a('s_waitcnt lgkmcnt(4)')
        def st(text, pre=None):
            assert self.loc
            x = self.lab('L_ls'); y = self.lab('L_ls')
            a(f's_cbranch_scc1 {x}')
            if pre: a(pre)
            a(text + ' sc1'); a(f's_branch {y}'); a.label(x); a(text); a.label(y)
        if self.mz:
            g = self.lab('L_gen'); j = self.lab('L_join')
            a(f'v_or3_b32 v{m}, v{Q}, v{Q+2}, v{Q+4}'); a(f'v_add_f32 v{L}, v{Q+1}, v{Q+3}'); a(f'v_or_b32 v{m}, v{m}, v{Q+6}'); a(f'v_add_f32 v23, v{Q+5}, v{Q+7}')
            a(f'v_cmp_eq_u32 vcc, 0, v{m}'); a(f'v_add_f32 v{L}, v{L}, v23'); a(f's_cbranch_vccz {g}')
            if self.h16: a(f'v_rcp_f32 v20, v{L}')
            a('s_waitcnt lgkmcnt(2)')
            for hf in range(2): a(f'v_pk_add_f32 {vr(AC + 2*hf, 2)}, {vr(Zr + 2*hf, 2)}, {vr(Zr + 4 + 2*hf, 2)}')
            a('s_waitcnt lgkmcnt(0)')
            for hf in range(2): a(f'v_pk_add_f32 {vr(Zr + 2*hf, 2)}, {vr(Zr + 8 + 2*hf, 2)}, {vr(Zr + 12 + 2*hf, 2)}')
            for hf in range(2): a(f'v_pk_add_f32 {vr(AC + 2*hf, 2)}, {vr(AC + 2*hf, 2)}, {vr(Zr + 2*hf, 2)}')
            a.label(j)
            a(f's_cmp_eq_u32 s27, {NCHAIN + 1}')
            if self.h16:
                a(f'v_lshrrev_b32 v18, 1, v{self.vL16}')
                for hf in range(2): a(f'v_pk_mul_f32 {vr(AC + 2*hf, 2)}, {vr(AC + 2*hf, 2)}, v[20:21] op_sel_hi:[1,0]')
                for hf in range(2): a(f'v_cvt_pk_f16_f32 v{AC + hf}, v{AC + 2*hf}, v{AC + 2*hf + 1}')
            for r in range(2 if self.h16 else 4): a(f'v_min_u32 v{AC + r}, -2, v{AC + r}')
            row = f'buffer_store_dwordx2 {vr(AC, 2)}, v18' if self.h16 else f'buffer_store_dwordx4 {vr(AC, 4)}, v{self.vL16}'
            a(f'v_and_b32 v{L}, -2, v{L}')
            x = self.lab('L_ls')
            a(f's_cbranch_scc0 {x}')
            a(f'{row}, {WS}, s38 offen' + self.N('p'))
            a('s_mov_b64 exec, 1')
            a(f'buffer_store_dwordx2 {vr(m, 2)}, v22, {WS}, s38 offen' + self.N('m'))
            a('s_mov_b64 exec, -1')
            def rare():
                a.label(x)
                a(f'{row}, {WS}, s38 offen sc1')
                a(f'v_or_b32 v{L}, s4, v{L}')
                a('s_mov_b64 exec, 1')
                if self.h16: a('s_lshr_b32 s39, s4, 24'); a('s_add_u32 s38, s38, s39')
                a(f'buffer_store_dwordx2 {vr(m, 2)}, v22, {WS}, s38 offen sc1')
                a('s_mov_b64 exec, -1')
                a(f's_branch {l}')
                a.label(g)
                a(f'v_max3_f32 v{m}, v{Q}, v{Q+2}, v{Q+4}'); a(f'v_max_f32 v{m}, v{m}, v{Q+6}')
                for w in range(4): a(f'v_sub_f32 v{Q+2*w}, v{Q+2*w}, v{m}')
                for w in range(4): a(f'v_exp_f32 v{Q+2*w}, v{Q+2*w}')
                a(f'v_mul_f32 v{L}, v{Q}, v{Q+1}')
                for w in range(1, 4): a(f'v_fmac_f32 v{L}, v{Q+2*w}, v{Q+2*w+1}')
                a(f'v_min_u32 v{m}, -2, v{m}')
                if self.h16: a(f'v_rcp_f32 v20, v{L}')
                a('s_waitcnt lgkmcnt(0)')
                for w in range(4):
                    for hf in range(2):
                        if w == 0: a(f'v_pk_mul_f32 {vr(AC + 2*hf, 2)}, {vr(Zr + 2*hf, 2)}, {vr(Q, 2)} op_sel_hi:[1,0]')
                        else: a(f'v_pk_fma_f32 {vr(AC + 2*hf, 2)}, {vr(Zr + 4*w + 2*hf, 2)}, {vr(Q + 2*w, 2)}, {vr(AC + 2*hf, 2)} op_sel_hi:[1,0,1]')
                a(f's_branch {j}')
            self.later.append(rare)
            a.label(l)
            a('s_waitcnt lgkmcnt(0)'); self.lq = []
            return
        a(f'v_max3_f32 v{m}, v{Q}, v{Q+2}, v{Q+4}'); a(f'v_max_f32 v{m}, v{m}, v{Q+6}')
        for w in range(4): a(f'v_sub_f32 v{Q+2*w}, v{Q+2*w}, v{m}')
        for w in range(4): a(f'v_exp_f32 v{Q+2*w}, v{Q+2*w}')
        a(f'v_mul_f32 v{L}, v{Q}, v{Q+1}')
        for w in range(1, 4): a(f'v_fmac_f32 v{L}, v{Q+2*w}, v{Q+2*w+1}')
        a(f'v_min_u32 v{m}, -2, v{m}'); a(f'v_and_b32 v{L}, -2, v{L}')
        a(f's_cmp_eq_u32 s27, {NCHAIN + 1}')
        a('s_mov_b64 exec, 1')
        st(f'buffer_store_dwordx2 {vr(m, 2)}, v22, {WS}, s38 offen', f'v_or_b32 v{L}, s4, v{L}')
        if dual: a(f'buffer_store_dwordx2 {vr(m, 2)}, v22, {WS}, s33 offen sc1')
        a('s_mov_b64 exec, -1')
        a('s_waitcnt lgkmcnt(0)')
        for w in range(4):
            for hf in range(2):
                if w == 0: a(f'v_pk_mul_f32 {vr(AC + 2*hf, 2)}, {vr(Zr + 2*hf, 2)}, {vr(Q, 2)} op_sel_hi:[1,0]')
                else: a(f'v_pk_fma_f32 {vr(AC + 2*hf, 2)}, {vr(Zr + 4*w + 2*hf, 2)}, {vr(Q + 2*w, 2)}, {vr(AC + 2*hf, 2)} op_sel_hi:[1,0,1]')
        for r in range(4): a(f'v_min_u32 v{AC + r}, -2, v{AC + r}')
        st(f'buffer_store_dwordx4 {vr(AC, 4)}, v{self.vL16}, {WS}, s38 offen')
        if dual: a(f'buffer_store_dwordx4 {vr(AC, 4)}, v{self.vL16}, {WS}, s33 offen sc1')
        a.label(l)
        a('s_waitcnt lgkmcnt(0)'); self.lq = []

    RING0 = 8192
    vGO2, vTR, vOOB, vDO, vX0O, vGO, vXR, vXW, vRES = 8, 9, 10, 11, 12, 13, 14, 15, 16
    vAC, vCS, vQS, vRO, vPO, vPO2, vMLO, vOW, vDQ, vX0 = 32, 36, 38, 39, 40, 41, 42, 43, 44, 45
    def vm(self, text, tag=None):
        self.a(text); self.cq.append(tag)
    def vmwait(self, tag):
        if tag in self.cq:
            i = len(self.cq) - 1 - self.cq[::-1].index(tag)
            k = len(self.cq) - 1 - i
            assert k <= 63
            self.a(f's_waitcnt vmcnt({k})'); self.cq = self.cq[i + 1:]
    def arm(self, q=False):
        a = self.a
        if not self.nocl: self.vmwait('init')
        self.confirm(self.vCL, 28)
        for r in range(20, 24): a(f'v_mov_b32 v{r}, -1')
        a('s_lshl2_add_u32 s38, s8, s3'); a('s_mul_i32 s38, s38, 4608'); a(f's_add_u32 s38, s38, 0x{YOFF:x}')
        if 'C' in self.wb: a(f's_mov_b32 s38, 0x{OOB:x}')
        for i in range(5): self.vm(f'buffer_store_dwordx4 v[20:23], v1, {WS}, s38 offen offset:{min(i * 1024, 3584)} sc1' + self.N('c'), 'arm')
        if q:
            self.bits('v28', 'v0', 'v29', [(0, 5, 4), (5, 1, 13)])
            a('s_lshl_b32 s38, s8, 9'); a('s_lshl_b32 s39, s3, 14'); a('s_add_u32 s39, s39, s38')
            self.vm(f'buffer_store_dwordx4 v[20:23], v28, {WS}, s39 offen sc1' + self.N('c'), 'arm')
        else:
            self.pquad('s38'); a('s_lshl_b32 s39, s8, 15'); a('s_add_u32 s38, s38, s39'); a(f's_add_u32 s38, s38, 0x{POFF - 16 * PB:x}')
            if 'D' in self.wb: a(f's_mov_b32 s38, 0x{OOB:x}')
            for i in range(2 if self.h16 else 4): self.vm(f'buffer_store_dwordx4 v[20:23], v1, {WS}, s38 offen offset:{i * 1024} sc1' + self.N('c'), 'arm')
    def pquad(self, d):
        if self.h16: self.a(f's_lshl_b32 {d}, s3, 11'); return
        self.a(f's_and_b32 {d}, s3, 2'); self.a(f's_add_u32 {d}, {d}, s3'); self.a(f's_lshl_b32 {d}, {d}, 12')
    def announce(self, bar=True):
        a = self.a
        if bar: self.vmwait('arm'); a('s_barrier')
        assert 'arm' not in self.cq
        self.signal(28, 29, self.CNTA, 's9')
        self.stamp(21, None, 30)
    def chain_common(self):
        a = self.a
        a('s_lshl4_add_u32 s2, s38, s36'); a('s_mov_b32 s8, s2'); a('s_mov_b32 s9, s5'); a('s_mov_b32 s10, 0')
        if self.diag: a('s_mov_b32 s61, s2'); self.diagbase()
        a('v_lshlrev_b32 v1, 4, v0')
        self.bits('v2', 'v0', 'v6', [(0, 1, 4), (4, 2, 5)])
        self.bits('v4', 'v0', 'v6', [(1, 1, 0), (3, 1, 2), (2, 1, 3)])
        a('s_lshl_b32 s98, s3, 13'); a(f's_add_u32 s98, s98, {self.RING0}'); a('s_movk_i32 s99, 1024')
        a('s_mul_i32 s32, s3, 7168'); a(f's_add_u32 s32, s32, {self.RING0}')
        self.claim(28, 29, self.vCL)
        self.srd(16, 86, 0x20000000)
        self.stamp(0, None, 30)
        a('s_cmp_lt_u32 s2, 16'); a('s_cbranch_scc1 L_roleOQ')
        self.cq = ['init']
        if self.wtlb:
            lo = 30 if self.wtlb == 1 else 16; nw = 4 * (32 - lo)
            a(f's_cmp_lt_u32 s2, {lo}'); a('s_cbranch_scc1 L_notlb')
            a('v_lshlrev_b32 v6, 12, v0'); a(f's_sub_u32 s33, s2, {lo}'); a('s_lshl2_add_u32 s33, s33, s3'); a('s_lshl_b32 s33, s33, 18')
            for lo_, size in ((70, 448 * 8192), (76, 448 * 3584), (78, 448 * 3584), (72, 4096 * 896), (80, 1792 * 896)):
                self.srd(20, lo_, size)
                for i in range(-(-size // (nw << 18))):
                    if i: a(f's_add_u32 s39, s33, {i * nw << 18}')
                    a(f'buffer_load_dword v64, v6, {W1}, {"s39" if i else "s33"} offen nt')
            a.label('L_notlb')
        if self.hq:
            self.srd(20, 70, 448 * 8192)
            self.bits('v6', 'v0', 'v7', [(0, 5, 4), (5, 1, 13)])
            a('s_sub_u32 s33, s2, 16'); a('s_lshl_b32 s33, s33, 9'); a('s_lshl_b32 s39, s3, 14'); a('s_add_u32 s33, s33, s39')
            a(f's_add_u32 s33, s33, {self.hq[0] * 64 * 8192}')
            for i in range(8 * (self.hq[1] - self.hq[0])):
                self.vm(f'buffer_load_dwordx4 v[64:67], v6, {W1}, s33 offen {self.hpol}', 'hq'); a('s_add_u32 s33, s33, 65536')
                if i == 0: self.stamp(61, None, 30)
                if i == 8: self.stamp(63, None, 30)
                if i == 9: self.arm()
                if i == 23: self.announce()
        self.cq0 = list(self.cq)
        a('s_cmp_lt_u32 s2, 30'); a('s_cbranch_scc1 L_roleF')
    def consts(self):
        a = self.a
        a('v_and_b32 v6, 1, v0'); a('v_cmp_eq_u32 vcc, 1, v6')
        a('v_mov_b32 v3, 0x44444444'); a('v_mov_b32 v6, 0xeeeeeeee'); a('v_cndmask_b32 v3, v3, v6, vcc')
        self.bits('v9', 'v0', 'v6', [(0, 5, 3), (5, 1, 10)])
        a('v_mul_u32_u24 v5, 6144, v6'); a('s_mul_i32 s38, s3, 1792'); a('v_add3_u32 v5, v5, v9, s38')
        a(f's_mov_b32 s57, 0x{OOB:x}'); a(f's_mov_b32 s56, 0x{OOB:x}'); a('s_mov_b32 s49, -1')
    vCL = 46
    def preready(self, streams=False):
        self.vm(f'global_load_dwordx2 v[46:47], v18, {DBG} offset:{self.CNTA} sc1', 'cnt')
    def ready(self, streams=False):
        a = self.a
        self.stamp(22, None, 28)
        self.vmwait('cnt')
        self.wait_counter(18, 46, 22, self.CNTA, NCHAIN, pre=True)
        a('s_mov_b32 s56, 0')
        if self.dual: a('s_movk_i32 s57, 0x2000')
        if self.dual and self.role != 'W':
            a('v_readfirstlane_b32 s38, v47'); a('s_getreg_b32 s10, hwreg(HW_REG_XCC_ID, 2, 1)'); a('s_xor_b32 s10, s10, s38'); a('s_and_b32 s10, s10, 1'); a('s_lshl_b32 s10, s10, 13')
            if self.diag:
                a('v_mov_b32 v28, s10'); a('v_mov_b32 v29, 0')
                a(f'buffer_store_dword v28, v29, {WS}, s61 offen offset:{62 * 4}')
        self.stamp(1, None, 28)
    def near(self):
        if not self.dual: return
        a = self.a; l = self.lab('L_nr')
        assert self.hs <= 12
        a('s_mul_i32 s38, s3, 1536'); a(f's_add_u32 s11, s38, 0x{XBOFF:x}')
        a('s_mov_b32 s4, -1'); a('s_mov_b32 s5, -1'); a(f's_mov_b32 s6, {2 * self.hs}')
        a('s_waitcnt vmcnt(0)')
        a.label(l)
        a('s_waitcnt lgkmcnt(0)'); a('s_memtime s[58:59]'); a('s_waitcnt lgkmcnt(0)')
        a(f'buffer_load_dword v28, off, {WS}, s11 sc1'); a('s_waitcnt vmcnt(0)')
        a('s_memtime s[38:39]'); a('s_waitcnt lgkmcnt(0)')
        a('s_sub_u32 s38, s38, s58'); a('s_min_u32 s38, s38, s4'); a('s_mov_b32 s4, s5'); a('s_mov_b32 s5, s38')
        a('s_xor_b32 s11, s11, 0x2000'); a('s_and_b32 s38, s6, 1'); a('s_lshl_b32 s38, s38, 7'); a('s_add_u32 s11, s11, s38')
        a('s_sub_u32 s6, s6, 1'); a('s_cmp_lg_u32 s6, 0'); a(f's_cbranch_scc1 {l}')
        a('s_cmp_gt_u32 s4, s5'); a('s_cselect_b32 s10, 0x2000, 0')
        if self.hforce is not None: a(f's_xor_b32 s10, s10, {self.hforce}')
        a('s_getreg_b32 s38, hwreg(HW_REG_XCC_ID, 2, 1)'); a('s_lshr_b32 s39, s10, 13'); a('s_xor_b32 s38, s38, s39')
        a('v_mov_b32 v28, s38'); a('v_mov_b32 v29, 0')
        a('s_cmp_eq_u32 s3, 0'); a('s_cselect_b64 exec, 1, 0')
        a(f'global_store_dword v29, v28, {DBG} offset:{self.CNTA + 4} sc1'); a('s_mov_b64 exec, -1')
        if self.diag:
            self.stamp(20, None, 28)
            a('s_lshl_b32 s38, s4, 16'); a('s_add_u32 s38, s38, s5'); a('v_mov_b32 v28, s38'); a('v_mov_b32 v29, 0')
            a(f'buffer_store_dword v28, v29, {WS}, s61 offen offset:{62 * 4}')
    def lstore(self, op, data, voff, sp, ss):
        self.a(f'buffer_store_{op} {data}, {voff}, {WS}, {ss} offen sc1' + self.N('l'))
        if self.dual: self.a(f'buffer_store_{op} {data}, {voff}, {WS}, {sp} offen sc1' + self.N('l'))
    def dma_sub(self, name, srd, voff, tab, adv):
        a = self.a
        a.label(name)
        for e in range(8):
            a(f'buffer_load_dwordx4 {voff}, {srd}, s{tab + e} offen nt lds')
            if e < 7: a('s_add_u32 m0, m0, s99')
        a(f'v_add_u32 {voff}, 0x{adv:x}, {voff}')
        a('s_setpc_b64 s[96:97]')
    def dma_subB(self, name, srd, voff):
        a = self.a
        a.label(name)
        for cb in range(7):
            a(f'buffer_load_dwordx4 {voff}, {srd}, 0 offen offset:{128 * cb} nt lds')
            if cb < 6: a('s_add_u32 m0, m0, 896')
        a(f'v_add_u32 {voff}, 0x{32 * 896:x}, {voff}')
        a('s_setpc_b64 s[96:97]')
    def poff(self, p): return p['off'] if 'off' in p else p['slot'] * 32768
    def issue(self, p):
        self.a(f's_add_u32 m0, {"s32" if p["B"] else "s98"}, {self.poff(p)}'); self.a(f's_call_b64 s[96:97], {p["sub"]}')
        self.cq += [id(p)] * (7 if p['B'] else 8)
    def readout(self, p, sel=None):
        self.a(f'v_add_u32 v6, {self.RING0 + self.poff(p)}, {"v5" if p["B"] else "v9"}')
        for d, imm in p['rd']:
            if sel is None or sel(d): self.a(f'ds_read_b64_tr_b16 {rr(d, 2)}, v6 offset:{imm}')
    def consume(self, p, nxt=None, hook=None):
        self.vmwait(id(p))
        self.a('s_waitcnt lgkmcnt(0)'); self.a('s_barrier')
        if hook: hook()
        for x in (nxt if isinstance(nxt, list) else [nxt] if nxt else []):
            if 'off' not in x: assert x['slot'] == self.lastslot, (x['slot'], self.lastslot)
            self.issue(x)
        self.readout(p); self.lastslot = p.get('slot')
    def table(self, tab, rs):
        for e in range(8): self.a(f's_mov_b32 s{tab + e}, 0x{(16 * (e & 1) + 2 * ((e >> 1) & 1) + 32 * (e >> 2)) * rs:x}')
    def typeB(self, voff, rowbase_s):
        a = self.a
        a('s_and_b32 s38, s3, 1'); a('s_lshl_b32 s38, s38, 4'); a(f's_add_u32 s38, s38, {rowbase_s}'); a('s_and_b32 s39, s3, 2'); a('s_add_u32 s38, s38, s39')
        a(f'v_add_u32 v6, s38, v4'); a(f'v_mad_u32_u24 {voff}, v6, s99, v2'); a(f'v_lshlrev_b32 v6, 7, v6'); a(f'v_sub_u32 {voff}, {voff}, v6')
    def typeB_reads(self, breg, ks, half):
        return [(breg(jj, ks) + 2 * (e1 + 2 * half), 2 * e1 * 7168 + jj * 256) for jj in range(7) for e1 in range(2)]
    def x0off(self):
        a = self.a
        a(f'v_mov_b32 v10, 0x{OOB:x}')
        self.bits('v6', 'v0', 'v7', [(0, 4, 3), (4, 1, 2), (5, 1, 7)])
        a('s_mul_i32 s38, s3, 224'); a('s_lshl_b32 s39, s3, 5'); a(f's_add_u32 s39, s39, {896 - 224}')
        a('v_cmp_gt_u32 vcc, 224, v6')
        a('v_add_u32 v15, s38, v6'); a('v_add_u32 v6, s39, v6')
        a('v_cndmask_b32 v12, v10, v15, vcc'); a('v_cndmask_b32 v15, v6, v15, vcc')
        a('s_lshl_b32 s38, s3, 9'); a('v_lshl_add_u32 v14, v0, 3, s38'); a('v_cndmask_b32 v14, v10, v14, vcc')
    def gather_offs(self):
        a = self.a
        self.bits('v13', 'v0', 'v6', [(0, 4, 4), (4, 1, 12), (5, 1, 14)])
        a('s_lshl_b32 s38, s3, 8'); a('v_add_u32 v13, s38, v13'); a(f'v_lshl_add_u32 v{self.vRO}, v0, 2, s38')
        a('v_cmp_gt_u32 vcc, 48, v0'); a('v_mov_b32 v18, 0'); a('v_mov_b32 v19, 0'); a('v_cndmask_b32 v8, v10, v13, vcc')
        a('v_and_b32 v6, 8, v0'); a('v_cmp_eq_u32 vcc, 8, v6'); a('v_mov_b32 v6, 0x3c00'); a('v_mov_b32 v7, 0x3c000000')
        a('v_cndmask_b32 v6, v6, v7, vcc'); a('v_and_b32 v7, 7, v0')
        for r, key in enumerate((0, 1, 4, 5)):
            a(f'v_cmp_eq_u32 vcc, {key}, v7'); a('s_nop 1'); a(f'v_cndmask_b32 v{self.vAC + r}, 0, v6, vcc')
    def resid_poll(self, soff):
        a = self.a; l = self.lab('L_rp')
        a.label(l)
        self.timeout()
        a(f'buffer_load_dwordx2 v[16:17], v14, {WS}, {soff} offen sc1'); a('s_waitcnt vmcnt(0)')
        a('v_max_u32 v6, v16, v17'); a('v_cmp_eq_u32 vcc, -1, v6'); a(f's_cbranch_vccnz {l}')
    def repoll(self, loads, full, comp, done):
        a = self.a; p = self.lab('L_mp'); i_ = self.lab('L_mi')
        M = ['vcc' if i == 4 else f's[{88 + 2 * i}:{89 + 2 * i}]' for i in range(len(loads))]
        def masks(to):
            for m, (r, t) in zip(M, loads): a(f'v_cmp_eq_u32 {m}, -1, v{r}')
            a(f's_or_b64 s[38:39], {M[0]}, {M[1]}')
            for m in M[2:]: a(f's_or_b64 s[38:39], s[38:39], {m}')
            a(f's_cbranch_scc0 {to}')
        if done:
            r_ = self.lab('L_mr'); a(f's_cbranch_vccnz {r_}')
            a('s_cmp_eq_u32 s38, 0'); a(f's_cbranch_scc1 {full}'); a(f's_branch {done}')
            a.label(r_)
        masks(full); a(f's_branch {i_}')
        a.label(p)
        masks(comp)
        a.label(i_)
        self.timeout()
        for m, (r, t) in list(zip(M, loads))[4:] + list(zip(M, loads))[:4]: a(f's_mov_b64 exec, {m}'); a(t)
        a('s_mov_b64 exec, -1')
        a(f's_waitcnt vmcnt({len(loads) * (self.mp - 1)})')
        a(f's_branch {p}')
    def gather_sum(self, soff, G, full, res=None):
        a = self.a; l = self.lab('L_g'); d = self.lab('L_gd'); c = self.lab('L_gc')
        mp = self.mp and self.role in self.mpr
        if self.role in self.lp:
            w = self.lab('L_gw')
            a(f's_movk_i32 s38, {self.lp[self.role]}'); a(f's_bitcmp1_b32 s38, {"s53" if self.role == "O" else "s49"}'); a(f's_cbranch_scc0 {l}')
            a.label(w)
            a('s_mov_b64 exec, -1')
            self.timeout()
            a('s_mov_b32 exec_lo, 0x10001'); a('s_mov_b32 exec_hi, 0x10001')
            a(f'buffer_load_dword v20, v13, {WS}, {soff} offen sc1'); a('s_waitcnt vmcnt(0)')
            a('v_cmp_ne_u32 vcc, -1, v20'); a(f's_cbranch_vccz {w}')
            a('s_mov_b64 exec, -1')
        a.label(l)
        self.timeout()
        ld = [(G + 4 * i, f'buffer_load_dwordx4 {vr(G + 4 * i, 4)}, {"v13" if full or i < 2 else "v8"}, {WS}, {soff} offen offset:{1024 * i} sc1') for i in range(4)]
        if res: ld.append((16, f'buffer_load_dwordx2 v[16:17], v14, {WS}, {res} offen sc1'))
        for r, t in ld[4:] + ld[:4]: a(t)
        def comp(w):
            for i in range(4):
                if w: a(f's_waitcnt vmcnt({3 - i})')
                a(f'v_mfma_f32_16x16x32_f16 v[20:23], {vr(self.vAC, 4)}, {vr(G + 4 * i, 4)}, {"v[16:19]" if i == 0 else "v[20:23]"}')
            a('v_cmp_u_f32 vcc, v20, v21')
            a('v_cvt_pk_bf16_f32 v24, v20, v21')
        comp(True)
        a(f's_cbranch_vccz {d}')
        self.maxtree(list(range(G, G + 16)) + ([16, 17] if res else []), 6)
        if mp:
            a(f's_cbranch_vccz {d}')
            self.repoll(ld, l, c, None)
            a.label(c); comp(False); a(f's_cbranch_vccnz {l}')
        else: a(f's_cbranch_vccnz {l}')
        a.label(d)
    def xrow_ops(self, sp, ss):
        return ['v_lshlrev_b32 v20, 16, v24', 'v_and_b32 v21, 0xffff0000, v24',
                f'buffer_store_dwordx2 v[20:21], v14, {WS}, {ss} offen sc1' + self.N('l')] + ([f'buffer_store_dwordx2 v[20:21], v14, {WS}, {sp} offen sc1' + self.N('l')] if self.dual else [])
    def stats_ops(self, X):
        o = []
        for i in range(4):
            o += [f'v_lshlrev_b32 v26, 16, v{X+i}', f'v_and_b32 v27, 0xffff0000, v{X+i}']
            if i == 0: o += ['v_add_f32 v28, v26, v27', 'v_mul_f32 v30, v26, v26', 'v_fmac_f32 v30, v27, v27']
            else: o += ['v_add_f32 v28, v28, v26', 'v_fmac_f32 v30, v26, v26', 'v_add_f32 v28, v28, v27', 'v_fmac_f32 v30, v27, v27']
        o += [f'v_mov_b32 v26, 0x{f2u(1/448):x}', f'v_mov_b32 v27, 0x{f2u(1e-5):x}', 'v_permlane16_swap_b32 v28, v30', 'v_add_f32 v28, v28, v30']
        for c in ('quad_perm:[1,0,3,2]', 'quad_perm:[2,3,0,1]', 'row_ror:4'):
            o += [None, f'v_add_f32_dpp v28, v28, v28 {c} {FULL}']
        o += [None, f'v_add_f32_dpp v29, v28, v28 row_ror:8 {FULL}', f'v_add_f32_dpp v28, v28, v28 row_ror:8 {FULL}', None,
              'v_permlane32_swap_b32 v28, v29', 'v_add_f32 v28, v28, v29', None,
              'v_readlane_b32 s58, v28, 0', 'v_readlane_b32 s59, v28, 16', None,
              'v_mul_f32 v24, s58, v26', 'v_fmac_f32 v27, s59, v26',
              'v_fma_f32 v27, -v24, v24, v27', 'v_rsq_f32 v25, v27']
        return o
    def gemv(self, ntile, nks, breg, acc, A, fill=(), nother=0):
        a = self.a; fill = list(fill)
        for ks in range(nks):
            a(f's_waitcnt lgkmcnt({min(15, nks - 1 - ks + nother)})')
            for jj in range(ntile):
                a(f'v_smfmac_f32_16x16x64_bf16 {vr(acc + 4 * jj, 4)}, {vr(A + 4 * ks, 4)}, {rr(breg(jj, ks), 8)}, v3')
                for _ in range(2):
                    if fill:
                        x = fill.pop(0)
                        if x: a(x)
        for x in fill:
            if x: a(x)
    def zero(self, base, n):
        for i in range(0, n, 2): self.a(f'v_mov_b64 {vr(base + i, 2)}, 0')
    def rowsel(self, dst, acc, tiles_masks):
        for jj, rm in tiles_masks:
            self.a(f'v_add_f32_dpp v{dst}, v{acc + 4*jj}, v{acc + 4*jj + 1} quad_perm:[0,1,2,3] row_mask:0x{rm:x} bank_mask:0xf')
    def rowout(self, acc, sp, ss):
        a = self.a
        for jj in range(4): self.rowsel(20, acc, [(jj, 1 << jj)])
        for jj in range(3): self.rowsel(21, acc, [(4 + jj, 1 << jj)])
        a('v_cvt_pk_f16_f32 v20, v20, v21'); a('v_min_u32 v20, -2, v20')
        if self.r4:
            n = self.r4; m = {4: 0x11111111, 2: 0x55555555}[n]
            for i in range(1, n): a(f'v_mov_b32_dpp v{20 + i}, v20 quad_perm:[{i},{i},{i if n == 4 else 3},{i if n == 4 else 3}] {FULL}')
            a(f's_mov_b32 exec_lo, 0x{m:x}'); a(f's_mov_b32 exec_hi, 0x{m:x}')
            self.lstore(f'dwordx{n}', vr(20, n), f'v{self.vRO}', sp, ss)
            a('s_mov_b64 exec, -1')
        else: self.lstore('dword', 'v20', f'v{self.vRO}', sp, ss)
    def calc_ib(self):
        a = self.a
        a('s_lshl_b32 s38, s49, 2'); a(f's_lshr_b32 s50, {"0x76352410" if self.reord else "0x73625140"}, s38'); a('s_and_b32 s50, s50, 7')
    def colsum(self, ntile, nks, breg, acc):
        a = self.a
        for r in range(4): a(f'v_mov_b32 v{20 + r}, 0x3f803f80')
        self.zero(acc, 4 * ntile)
        for ks in range(nks):
            for jj in range(ntile):
                a(f'v_smfmac_f32_16x16x64_bf16 {vr(acc + 4 * jj, 4)}, v[20:23], {rr(breg(jj, ks), 8)}, v3')
    def pinit(self, ib0):
        a = self.a
        for r in range(20, 24): a(f'v_mov_b32 v{r}, -1')
        a(f's_add_u32 s38, s3, {ib0}'); a('s_lshl_b32 s38, s38, 18'); a('s_add_u32 s38, s38, s41')
        a('v_lshlrev_b32 v6, 4, v0')
        for i in range(16):
            if i and i % 4 == 0: a('s_add_u32 s38, s38, 4096')
            self.vm(f'buffer_store_dwordx4 v[20:23], v6, {WS}, s38 offen offset:{(i % 4) * 1024} sc1', 'pinit')

    def roleOQ(self):
        a = self.a
        TOG = ['v_xor_b32 v15, 0x400, v15', 'v_xor_b32 v2, 0x400, v2', 'v_xor_b32 v1, 0x400, v1', f'v_xor_b32 v{self.vOW}, 0x400, v{self.vOW}']
        def qreg(jj, ks): return 96 + (ks * 4 + jj) * 8
        def oreg(jj, ks):
            if ks == 3 and jj < 4: return 288 + 8 * jj
            i = jj * 3 + ks if ks < 3 else 21 + jj - 4
            return 320 + 8 * i
        inwin = lambda d: 288 <= d < 320
        X0 = 4
        self.dma_sub('L_dmaQ', W1, f'v{self.vDQ}', 88, 64 * 8192)
        self.dma_subB('L_dmaO', W2, f'v{self.vDO}')
        P = 76; ML = 92; ACC = 48; A = 76
        a.label('L_Osub')
        self.calc_ib()
        if self.ja and self.ja[0]:
            a('s_and_b32 s38, s50, 1'); a('s_lshl_b32 s38, s38, 20'); a(f's_add_u32 s38, s38, {PP2}'); a('s_bitcmp1_b32 s50, 2'); a('s_cselect_b32 s44, s38, 0'); a('s_add_u32 s44, s44, s41')
        else:
            a('s_and_b32 s38, s50, 3'); a('s_lshl_b32 s44, s38, 20'); a('s_add_u32 s44, s44, s41')
            a('s_cmp_eq_u32 s38, 3'); a('s_cselect_b32 s38, s55, 0'); a('s_add_u32 s44, s44, s38')
            a('s_lshr_b32 s38, s50, 2'); a('s_lshl_b32 s38, s38, 19'); a('s_add_u32 s44, s44, s38')
        if self.h16: a('s_add_u32 s46, s44, 4096')
        else: a('s_add_u32 s45, s44, 4096'); a('s_add_u32 s46, s44, 16384'); a('s_add_u32 s47, s44, 20480')
        a('s_lshl_b32 s48, s50, 15'); a('s_add_u32 s48, s48, s40'); a('s_add_u32 s51, s48, s56'); a('s_add_u32 s48, s48, s57')
        self.zero(ACC, 28)
        a('s_cmp_lt_i32 s49, 0'); a('s_cbranch_scc1 L_Ook')
        a.label('L_Oheavy')
        self.timeout()
        ld = [(P + 4 * n, f'buffer_load_dwordx4 {vr(P + 4*n, 4)}, v{self.vPO2 if n == 3 else self.vPO}, {WS}, s{44+n} offen sc1') for n in range(4)]
        if self.h16: ld = [(P + 2 * n, f'buffer_load_dwordx2 {vr(P + 2*n, 2)}, v{self.vPO2 if n == 3 else self.vPO}, {WS}, s{44 + (n & 2)} offen offset:{(n & 1) * 2048} sc1') for n in range(4)]
        ld.append((ML, f'buffer_load_dwordx2 {vr(ML, 2)}, v{self.vMLO}, {WS}, s44 offen sc1'))
        for r, t in ld[4:] + ld[:4]: a(t)
        if self.mp and 'P' in self.mpr: a('s_mov_b32 s38, 1')
        if self.h16:
            a('s_cmp_eq_u32 s55, 1'); a('s_cbranch_scc1 L_Ocomp')
            a(f'buffer_load_dwordx2 {vr(P + 12, 2)}, v{self.vMLO}, {WS}, s44 offen offset:128 sc1'); a('s_waitcnt vmcnt(0)')
            a(f'v_and_b32 v{ML}, v{ML}, v{P + 12}'); a(f'v_and_b32 v{ML + 1}, v{ML + 1}, v{P + 13}')
        a.label('L_Ocomp')
        a('s_waitcnt vmcnt(4)')
        a(f'v_max_f32_dpp v20, v{ML}, v{ML} quad_perm:[1,0,3,2] {FULL}')
        for c in ('quad_perm:[2,3,0,1]', 'row_ror:4', 'row_ror:8'): a(f'v_max_f32_dpp v20, v20, v20 {c} {FULL}')
        a(f'v_sub_f32 v20, v{ML}, v20'); a('v_exp_f32 v20, v20'); a('v_cndmask_b32 v20, 0, v20, s[42:43]')
        a(f'v_mul_f32 v21, v20, abs(v{ML+1})')
        lred = [f'v_add_f32_dpp v21, v21, v21 {c} {FULL}' for c in ('quad_perm:[1,0,3,2]', 'quad_perm:[2,3,0,1]', 'row_ror:4', 'row_ror:8')]
        if self.h16:
            for n in range(4): a(f'v_mov_b32_dpp v{P + 8 + n}, v21 row_newbcast:{n} {FULL}')
            for n in range(4):
                a(f's_waitcnt vmcnt({3 - n})')
                for r in range(4):
                    a(f'v_fma_mix_f32 v{24 + r}, v{P + 8 + n}, v{P + 2*n + r // 2}, {0 if n == 0 else f"v{24 + r}"} op_sel:[0,{r & 1},0] op_sel_hi:[0,1,0]')
                a(lred[n])
        for n in range(0 if self.h16 else 4):
            a(f's_waitcnt vmcnt({3 - n})')
            for r in range(4):
                a(f'v_{"mul" if n == 0 else "fmac"}_f32_dpp v{24 + r}, v20, v{P + 4*n + r} row_newbcast:{n} {FULL}')
            a(lred[n])
        a('v_permlane16_swap_b32 v24, v25'); a('v_permlane16_swap_b32 v26, v27'); a('v_rcp_f32 v21, v21')
        a('v_add_f32 v24, v24, v25'); a('v_add_f32 v26, v26, v27')
        a('v_permlane32_swap_b32 v24, v26'); a('v_add_f32 v24, v24, v26'); a('v_mul_f32 v24, v24, v21')
        a('v_cmp_u_f32 vcc, v24, v24')
        a('v_cvt_pk_bf16_f32 v24, v24, v24')
        a('s_cbranch_vccz L_Ook0')
        self.maxtree(list(range(P, P + (8 if self.h16 else 16))) + [ML, ML + 1], 6)
        if self.mp and 'P' in self.mpr: self.repoll(ld, 'L_Oheavy', 'L_Ocomp', 'L_Ook0')
        else: a('s_cbranch_vccnz L_Oheavy')
        a.label('L_Ook0')
        if self.split:
            a('s_cmp_lg_u32 s49, 0'); a('s_cbranch_scc1 L_Ook')
            a('s_setpc_b64 s[34:35]')
        a.label('L_Ook')
        a(f'ds_write_b16 v{self.vOW}, v24'); a('s_waitcnt lgkmcnt(0)'); a('s_barrier')
        for ks in range(4): a(f'ds_read_b128 {vr(A + 4*ks, 4)}, v2 offset:{128 * ks}')
        self.stamp(3, 's49', 28)
        self.gemv(7, 4, oreg, ACC, A, fill=TOG + ['v_mov_b32 v21, 0'])
        self.rowout(ACC, 's48', 's51')
        self.stamp(12, 's49', 28)
        a('s_add_u32 s49, s49, 1')
        a('s_setpc_b64 s[34:35]')
        G = 64; ACC = 48; A = 64; X = 92
        a.label('L_Qsub')
        self.zero(ACC, 16)
        a('s_lshl_b32 s44, s53, 13'); a('s_add_u32 s44, s44, s54')
        a('s_lshl_b32 s38, s53, 11'); a(f's_add_u32 s47, s38, 0x{XAOFF - 4 * 2048:x}'); a('s_add_u32 s47, s47, s10')
        a('s_add_u32 s45, s38, s33'); a('s_add_u32 s46, s45, s56'); a('s_add_u32 s45, s45, s57')
        a('s_lshl_b32 s48, s53, 15'); a(f's_add_u32 s48, s48, 0x{ZOFF - 4 * 32768:x}'); a('s_add_u32 s48, s48, s10')
        a('s_cmp_lt_u32 s53, 4'); a('s_cbranch_scc1 L_Qx')
        if self.ja:
            assert not self.oarm and not self.home and not self.mp
            a('v_mov_b64 v[24:25], -1'); a('v_mov_b64 v[26:27], -1'); a('v_lshlrev_b32 v6, 4, v0')
            if self.ja[0]: a('s_and_b32 s38, s53, 1'); a('s_lshl_b32 s38, s38, 20'); a('s_add_u32 s38, s38, s11'); a(f's_sub_u32 s39, s11, {PP2}')
            else: a('s_and_b32 s38, s53, 3'); a('s_lshl_b32 s38, s38, 20'); a('s_add_u32 s38, s38, s11'); a(f's_add_u32 s39, s38, {PP2}')
            a('s_cmp_eq_u32 s53, 7'); a(f's_cselect_b32 s39, 0x{OOB:x}, s39')
            a('s_cmp_eq_u32 s9, 1'); a('s_cbranch_scc1 L_Qal')
            K = 2 if self.h16 else 4
            def put(pol):
                for i in range(2 * K):
                    if self.h16 and i == 2 and len(self.ja) > 2: a('s_cmp_eq_u32 s3, 3'); a('s_cselect_b64 exec, 0xffff, -1')
                    a(f'buffer_store_dwordx4 v[24:27], v6, {WS}, s{38 + i % 2} offen offset:{i // 2 * 1024} {pol}')
            put('sc1')
            a('s_branch L_Qam')
            a.label('L_Qal')
            put(self.ja[1])
            a.label('L_Qam')
            if self.h16 and len(self.ja) > 2: a('s_mov_b64 exec, -1')
        if not self.mres: self.resid_poll('s47')
        self.gather_sum('s48', G, False, 's47' if self.mres else None)
        a.label('L_Qx')
        a('ds_write_b32 v15, v24'); a('s_waitcnt lgkmcnt(0)'); a('s_barrier')
        if self.mp and 'O' in self.mpr:
            l = self.lab('L_qw'); a('s_cmp_lt_u32 s53, 4'); a(f's_cbranch_scc1 {l}'); a('s_waitcnt vmcnt(0)'); a.label(l)
        for ks in range(7): a(f'ds_read_b128 {vr(A + 4*ks, 4)}, v2 offset:{128 * ks}')
        a(f'ds_read_b128 {vr(X, 4)}, v1')
        for x in self.xrow_ops('s45', 's46'): a(x)
        self.stamp(24, 's53', 28)
        fill = TOG + [None, 's_waitcnt lgkmcnt(0)'] + self.stats_ops(X)
        self.gemv(4, 7, qreg, ACC, A, fill=fill, nother=1)
        a(f'v_mul_f32 v21, v24, v{self.vCS}'); a('s_cmp_eq_u32 s9, 1')
        self.rowsel(20, ACC, [(jj, 1 << jj) for jj in range(4)])
        a('v_sub_f32 v20, v20, v21'); a('v_mul_f32 v20, v20, v25')
        a('v_cvt_pk_bf16_f32 v20, v20, v20'); a('v_min_u32 v20, -2, v20')
        if self.loc:
            a('s_cbranch_scc1 L_Qloc')
            a(f'buffer_store_short v20, v{self.vQS}, {WS}, s44 offen sc1'); a('s_branch L_Qst')
            a.label('L_Qloc'); a(f'buffer_store_short v20, v{self.vQS}, {WS}, s44 offen'); a.label('L_Qst')
        else: a(f'buffer_store_short v20, v{self.vQS}, {WS}, s44 offen sc1')
        self.stamp(33, 's53', 28)
        if self.oarm: a('s_lshl_b32 s38, s53, 20'); a('s_add_u32 s38, s38, s11'); a(f's_add_u32 s39, s38, {PP2}')
        a('s_add_u32 s53, s53, 1')
        if self.oarm:
            a('s_cmp_eq_u32 s53, 8'); a('s_cbranch_scc1 L_Qret')
            a('v_mov_b64 v[24:25], -1'); a('v_mov_b64 v[26:27], -1'); a('v_lshlrev_b32 v6, 4, v0')
            for i in range(8): a(f'buffer_store_dwordx4 v[24:27], v6, {WS}, s{38 + i // 4} offen offset:{i % 4 * 1024} sc1')
            a.label('L_Qret')
        a('s_setpc_b64 s[34:35]')
        a.label('L_roleOQ')
        self.stamp(61, None, 30)
        self.cq = ['init']
        a('s_lshl_b32 s38, s2, 9')
        self.srd(20, 70, 448 * 8192)
        a('s_lshl_b32 s39, s3, 7'); a('s_add_u32 s38, s38, s39')
        a(f'v_lshl_add_u32 v{self.vDQ}, v4, 13, s38'); a(f'v_add_u32 v{self.vDQ}, v{self.vDQ}, v2')
        self.table(88, 8192)
        R4 = self.ring4
        pq = [dict(sub='L_dmaQ', B=0, slot=(ks + 2 * R4) % 4, rd=[(qreg(jj, ks) + 2 * rp, rp * 2048 + jj * 256) for jj in range(4) for rp in range(4)]) for ks in range(7)]
        po = [dict(sub='L_dmaO', B=1, slot=(3, 0, 1)[i % 3], rd=self.typeB_reads(oreg, i // 2, i % 2)) for i in range(8)]
        if R4:
            for i, p in enumerate(po): p['off'] = 32768 + 28672 * (i % 4)
        self.issue(pq[0])
        self.stamp(63, None, 30)
        self.srd(28, 64, 3584)
        XL = 48
        a(f'v_mov_b32 v10, 0x{OOB:x}')
        a('v_cmp_gt_u32 vcc, 56, v0'); a('v_bfe_u32 v7, v0, 2, 2'); a('v_mul_u32_u24 v7, 896, v7'); a('v_cndmask_b32 v6, v10, v1, vcc')
        for b in range(4): self.vm(f'buffer_load_dwordx4 {vr(XL + 4 * b, 4)}, v6, {W3}, 0 offen offset:{b * 896}', 'xl')
        a('v_add_u32 v7, v7, v2')
        a('s_mov_b32 s38, 0x3f803f80'); a('s_mov_b32 s39, s38')
        for r in range(0, 28, 2): a(f'v_mov_b64 {vr(A + r, 2)}, s[38:39]')
        a('s_mov_b32 exec_lo, 0x33333333'); a('s_mov_b32 exec_hi, 0x33333333')
        for ks in range(7): self.vm(f'buffer_load_dwordx4 {vr(A + 4 * ks, 4)}, v7, {W3}, 0 offen offset:{128 * ks}', 'xa')
        a('s_mov_b64 exec, -1')
        if not self.ean: self.issue(pq[1])
        self.stamp(56, None, 30)
        self.srd(24, 72, 4096 * 896)
        a('s_lshl_b32 s39, s2, 8')
        self.typeB(f'v{self.vDO}', 's39')
        self.consts(); a('s_lshl_b32 s38, s3, 13'); a('v_add_u32 v9, s38, v9')
        if self.up4: self.issue(pq[2]); self.issue(pq[3])
        self.stamp(57, None, 30)
        self.arm(True)
        self.stamp(58, None, 30)
        if not self.up4: self.issue(pq[1 if self.ean else 2])
        self.vmwait('xl')
        self.stamp(59, None, 30)
        for b in range(4):
            for x in self.stats_ops(XL + 4 * b):
                if x: a(x)
            a(f'v_mov_b32_dpp v92, v24 quad_perm:[0,1,2,3] row_mask:0x{1 << b:x} bank_mask:0xf')
            a(f'v_mov_b32_dpp v93, v25 quad_perm:[0,1,2,3] row_mask:0x{1 << b:x} bank_mask:0xf')
        if self.ean: self.announce(); self.issue(pq[2])
        if not self.up4: self.issue(pq[3])
        self.zero(ACC, 16)
        self.bits('v94', 'v0', 'v6', [(0, 1, 1), (2, 1, 2), (3, 1, 4), (1, 1, 5), (4, 2, 13)])
        a('s_lshl_b32 s38, s3, 7'); a('s_lshl_b32 s44, s2, 9'); a('s_add_u32 s44, s38, s44')
        self.stamp(60, None, 30)
        nxt = {1: pq[4], 2: pq[5], 3: pq[6], 4: po[0]}
        if R4 == 1: nxt[5] = po[1]; nxt[6] = [po[2], po[3]]
        def q1mm(ks):
            for jj in range(4): a(f'v_smfmac_f32_16x16x64_bf16 {vr(ACC + 4 * jj, 4)}, {vr(A + 4 * ks, 4)}, {rr(qreg(jj, ks), 8)}, v3')
        hooks = {} if self.ean else {(3 if self.up4 else 2): lambda: self.announce(False)}
        for i in range(7):
            if i == 3: self.vmwait('arm')
            self.consume(pq[i], nxt.get(i), hooks.get(i))
            self.stamp(41 + i, None, 26)
            if i: q1mm(i - 1)
        a('s_waitcnt lgkmcnt(0)')
        q1mm(6)
        self.stamp(20, None, 28)
        for jj in range(4):
            a(f'v_add_f32 v{20 + jj}, v{ACC + 4*jj}, v{ACC + 4*jj + 1}'); a(f'v_add_f32 v{24 + jj}, v{ACC + 4*jj + 2}, v{ACC + 4*jj + 3}')
        for jj in range(4): a(f'v_fma_f32 v{20 + jj}, -v92, v{24 + jj}, v{20 + jj}')
        for jj in range(4): a(f'v_mul_f32 v{20 + jj}, v{20 + jj}, v93')
        for jj in range(4): a(f'v_cvt_pk_bf16_f32 v{20 + jj}, v{20 + jj}, v{20 + jj}')
        for jj in range(4): a(f'v_min_u32 v{20 + jj}, -2, v{20 + jj}')
        for jj in range(4): self.vm(f'buffer_store_short v{20 + jj}, v94, {WS}, s44 offen offset:{(jj & 1) * 8 + (jj >> 1) * 64} sc1')
        for jj in range(4): a(f'v_mov_b32_dpp v{self.vCS}, v{24 + jj} quad_perm:[0,1,2,3] row_mask:0x{1 << jj:x} bank_mask:0xf')
        self.stamp(35, None, 28)
        if R4 != 1: self.issue(po[1]); self.issue(po[2])
        if R4 == 3: self.issue(po[3])
        a('s_mov_b32 s55, 0'); a(f's_lshl_b32 s41, s2, 15'); a(f's_add_u32 s41, s41, 0x{POFF:x}')
        if self.ja: self.pquad('s11'); a('s_add_u32 s11, s11, s41'); a(f's_add_u32 s11, s11, {PP2}')
        if self.oarm: self.pquad('s11'); a('s_add_u32 s11, s11, s41'); a(f's_sub_u32 s11, s11, {3 * PIB - PP2}')
        self.x0off(); self.gather_offs()
        a('s_lshl_b32 s40, s2, 10'); a('s_and_b32 s38, s40, 0x2000'); a('s_add_u32 s40, s40, s38'); a(f's_add_u32 s40, s40, 0x{YOFF:x}')
        PO, PO2, MO, OW = self.vPO, self.vPO2, self.vMLO, self.vOW
        self.bits(f'v{PO}', 'v0', 'v6', [(0, 4, 3), (4, 2, 9)] if self.h16 else [(0, 4, 4), (4, 2, 10)])
        a(f's_lshl_b32 s38, s3, {7 if self.h16 else 8}'); a(f'v_add_u32 v{PO}, s38, v{PO}')
        a('v_cmp_gt_u32 vcc, 32, v0'); a('v_lshrrev_b32 v6, 4, v0'); a('v_bfe_u32 v7, v0, 2, 2'); a(f'v_cndmask_b32 v{PO2}, v10, v{PO}, vcc')
        a('v_add_u32 v6, v6, v7'); a('v_and_b32 v6, 3, v6')
        a('v_and_b32 v7, 3, v0'); a('v_lshl_add_u32 v6, v7, 2, v6')
        a(f'v_cmp_gt_u32 s[42:43], {NC}, v6'); a(f'v_min_u32 v6, {NC - 1}, v6'); a(f'v_mul_u32_u24 v{MO}, {self.h16 or 128}, v6'); a(f'v_add_u32 v{MO}, {7168 if self.h16 else MLO}, v{MO}')
        self.bits(f'v{OW}', 'v0', 'v6', [(4, 2, 1), (0, 3, 4), (3, 1, 8)])
        a('s_lshr_b32 s38, s3, 1'); a('s_lshl_b32 s38, s38, 7'); a('s_and_b32 s39, s3, 1'); a('s_lshl_b32 s39, s39, 3'); a('s_add_u32 s38, s38, s39')
        a(f'v_add_u32 v{OW}, s38, v{OW}')
        self.bits(f'v{self.vQS}', 'v0', 'v6', [(0, 1, 1), (2, 1, 2), (4, 1, 3), (3, 1, 4), (1, 1, 5), (5, 1, 6)])
        a('s_lshl_b32 s38, s3, 7'); a(f'v_add_u32 v{self.vQS}, s38, v{self.vQS}')
        a('s_cmp_eq_u32 s2, 0'); a(f's_cselect_b32 s33, 0x{XBOFF - 4 * 2048:x}, s57')
        a('s_mov_b32 s53, 3'); a(f's_mov_b32 s54, 0x{OOB:x}')
        for i in range(8):
            self.consume(po[i], (po[i + 3] if 1 <= i < 5 else None) if R4 else po[i + 2] if 1 <= i < 6 else None, (lambda: self.preready(True)) if i == (4 if self.split else 5) else None)
            self.stamp(48 + i, None, 28)
            if i == 1: a('s_call_b64 s[34:35], L_Osub')
            if i == 2: a('s_call_b64 s[34:35], L_Qsub'); a('s_lshl_b32 s54, s2, 9')
            if i == 5 and self.split:
                self.ready(True); a('s_call_b64 s[34:35], L_Osub'); self.cq = []
                a(f'v_cmp_gt_i32 vcc, 0, v{ML+1}'); a('s_cmp_lg_u64 vcc, 0'); a('s_addc_u32 s9, s9, 0')
                if self.h16: a('s_mov_b32 s55, s9')
        assert self.split and self.reord
        self.stamp(1, None, 28)
        a('s_call_b64 s[34:35], L_Ook')
        a.label('L_OQloop')
        a(f's_movk_i32 s38, 0x{self.qmask:x}'); a('s_bitcmp1_b32 s38, s49'); a('s_cbranch_scc0 L_OQin')
        self.readout(pq[6])
        a('s_call_b64 s[34:35], L_Qsub')
        self.readout(po[6], inwin); self.readout(po[7], inwin)
        a.label('L_OQin')
        a('s_call_b64 s[34:35], L_Osub')
        a('s_cmp_lt_u32 s49, 8'); a('s_cbranch_scc1 L_OQloop')
        if '3' in self.wb or '4' in self.wb:
            a(f's_and_b32 s38, s2, {1 if "3" in self.wb else 0}'); a('s_or_b32 s38, s38, s3'); a('s_cbranch_scc1 L_end')
            a('buffer_wbl2 sc1')
        a('s_branch L_end')

    def roleF(self):
        a = self.a
        self.dma_sub('L_dmaG', W1, 'v44', 88, 64 * 3584)
        self.dma_subB('L_dmaD', W3, 'v11')
        breg = lambda jj, ks: 256 + (jj * 7 + ks) * 8
        def dreg(jj, ks):
            i = jj * 2 + ks
            return 256 + 224 + 8 * i if i < 4 else 176 + 8 * (i - 4)
        G = 64; ACC = 48; A = 96; X = 124; CSUM = self.vCS; ACD = 128; X0 = 160
        a.label('L_Fsub')
        self.calc_ib()
        self.zero(ACC, 16); self.zero(ACD, 28)
        a('s_lshl_b32 s38, s50, 15'); a(f's_add_u32 s48, s38, 0x{YOFF:x}'); a('s_add_u32 s48, s48, s10')
        a('s_add_u32 s44, s38, s40'); a('s_add_u32 s51, s44, s56'); a('s_add_u32 s44, s44, s57')
        a('s_lshl_b32 s38, s50, 11'); a(f's_add_u32 s47, s38, 0x{XBOFF - 4 * 2048:x}'); a('s_add_u32 s47, s47, s10')
        a('s_and_b32 s39, s38, 0x2000'); a('s_add_u32 s38, s38, s39')
        a('s_add_u32 s45, s38, s41'); a('s_add_u32 s46, s45, s56'); a('s_add_u32 s45, s45, s57')
        a('s_cmp_lt_i32 s49, 0'); a('s_cbranch_scc1 L_Fx')
        a('s_bitcmp1_b32 s50, 2'); a('s_cbranch_scc1 L_Fr')
        a(f'v_lshlrev_b32 v16, 16, v{X0}'); a(f'v_and_b32 v17, 0xffff0000, v{X0}')
        for i in range(3): a(f'v_mov_b32 v{X0 + i}, v{X0 + i + 1}')
        a('s_branch L_Fg')
        a.label('L_Fr')
        self.resid_poll('s47')
        a.label('L_Fg')
        self.gather_sum('s48', G, True)
        a.label('L_Fx')
        a('ds_write_b32 v15, v24'); a('s_waitcnt lgkmcnt(0)'); a('s_barrier')
        for ks in range(7): a(f'ds_read_b128 {vr(A + 4*ks, 4)}, v2 offset:{128 * ks}')
        a(f'ds_read_b128 {vr(X, 4)}, v1')
        for x in self.xrow_ops('s45', 's46'): a(x)
        self.stamp(3, 's49', 28)
        if self.diag: self.stamp(24, 's49', 28, 's52')
        fill = [None] * 5 + ['s_waitcnt lgkmcnt(0)'] + self.stats_ops(X)
        self.gemv(4, 7, breg, ACC, A, fill=fill, nother=1)
        a(f'v_mul_f32 v22, v24, v{CSUM}'); a(f'v_mul_f32 v23, v24, v{CSUM+1}'); a('v_mul_f32 v25, v25, v25')
        for jj in (0, 2, 1, 3): self.rowsel(20 + jj // 2, ACC, [(jj, 10 if jj & 1 else 5)])
        a('v_sub_f32 v20, v20, v22'); a('v_sub_f32 v21, v21, v23')
        a('v_max_f32 v20, 0, v20'); a('v_mul_f32 v21, v21, v25'); a('v_mul_f32 v20, v20, v21')
        a('v_cvt_pk_bf16_f32 v20, v20, v20')
        a('ds_write_b16 v40, v20'); a('s_waitcnt lgkmcnt(0)'); a('s_barrier')
        for ks in range(2): a(f'ds_read_b128 {vr(A + 4*ks, 4)}, v2 offset:{2048 + 128 * ks}')
        a('v_mov_b32 v21, 0')
        self.gemv(7, 2, dreg, ACD, A)
        self.rowout(ACD, 's44', 's51')
        self.stamp(12, 's49', 28)
        a('s_add_u32 s49, s49, 1')
        a('s_cmp_eq_u32 s49, 0'); a('s_cbranch_scc1 L_Fret')
        a('s_cmp_lt_u32 s49, 8'); a('s_cbranch_scc1 L_Fsub')
        a('s_branch L_end')
        a.label('L_roleF')
        self.cq = list(self.cq0); done = 8 * (self.hq[1] - self.hq[0]) if self.hq else 0
        a('s_cmp_lt_u32 s3, 2'); a('s_cselect_b64 s[20:21], s[76:77], s[78:79]'); a(f's_mov_b32 s22, 0x{448 * 3584:x}'); a('s_mov_b32 s23, 0x20000')
        a('s_sub_u32 s2, s2, 16')
        a('v_mul_u32_u24 v6, 3584, v4')
        a('s_lshl_b32 s38, s2, 8'); a('s_and_b32 s39, s3, 1'); a('s_lshl_b32 s39, s39, 7'); a('s_add_u32 s38, s38, s39')
        a('v_add3_u32 v44, v6, v2, s38')
        self.table(88, 3584)
        pl = [dict(sub='L_dmaG', B=0, rd=[(breg(jj, ks) + 2 * rp, (jj >> 1) * 16384 + rp * 2048 + (jj & 1) * 256) for jj in range(4) for rp in range(4)]) for ks in range(7)]
        pl += [dict(sub='L_dmaD', B=1, rd=self.typeB_reads(dreg, i // 2, i % 2)) for i in range(4)]
        for i, p in enumerate(pl): p['slot'] = i % 4
        self.stamp(56, None, 30)
        for i in range(1 if self.ean else 2): self.issue(pl[i])
        self.stamp(57, None, 30)
        self.srd(28, 80, 1792 * 896); self.srd(68, 64, 3584)
        a('s_lshl_b32 s39, s2, 7')
        self.typeB('v11', 's39')
        self.consts()
        a('s_lshr_b32 s38, s3, 1'); a('s_lshl_b32 s38, s38, 13'); a('s_and_b32 s39, s3, 1'); a('s_lshl_b32 s39, s39, 9'); a('s_add_u32 s38, s38, s39'); a('v_add_u32 v9, s38, v9')
        self.x0off(); self.gather_offs()
        for b in range(4): self.vm(f'buffer_load_dword v{X0 + b}, v12, s[68:71], 0 offen offset:{b * 896}', 'x0')
        a('v_and_b32 v6, 31, v0'); a('s_lshl_b32 s38, s3, 6'); a('s_add_u32 s38, s38, 2048'); a('v_lshl_add_u32 v40, v6, 1, s38')
        a('s_lshl_b32 s40, s2, 10'); a('s_and_b32 s38, s40, 0x2000'); a('s_add_u32 s40, s40, s38'); a(f's_add_u32 s40, s40, 0x{ZOFF:x}')
        a('s_cmp_eq_u32 s2, 0'); a(f's_cselect_b32 s41, 0x{XAOFF:x}, s57')
        if done < 10: self.arm()
        elif done < 24: self.announce()
        if self.ean:
            assert not done
            self.issue(pl[1]); self.announce()
        self.stamp(58, None, 30)
        self.issue(pl[2])
        a('s_branch L_Fsub')
        a.label('L_Fret')
        self.issue(pl[3])
        self.stamp(59, None, 30)
        hooks = {2: lambda: self.announce(False)} if done < 10 and not self.ean else {}
        hooks[7] = self.preready
        for i in range(11):
            self.consume(pl[i], pl[i + 3] if 1 <= i < 8 else None, hooks.get(i))
            if self.ho and i == self.ho[2]: self.wo_pf('s2')
            self.stamp(41 + i, None, 26)
            if i == 7:
                self.stamp(20, None, 28)
                self.colsum(4, 7, breg, ACC)
                self.rowsel(CSUM, ACC, [(0, 5), (1, 10)]); self.rowsel(CSUM + 1, ACC, [(2, 5), (3, 10)])
        self.ready()
        a('s_branch L_Fsub')

    def wo_pf(self, head, add=0):
        a = self.a; p0, p1 = self.ho[:2]
        self.srd(24, 72, 4096 * 896)
        nb = (p1 - p0) * 28672; per = nb // 4
        a(f's_mul_i32 s38, {head}, 229376'); a(f's_mul_i32 s39, s3, {per}'); a('s_add_u32 s38, s38, s39'); a(f's_add_u32 s38, s38, {p0 * 28672 + add * 229376}')
        a('v_min_u32 v6, 55, v0'); a('v_lshlrev_b32 v6, 7, v6')
        for i in range(p1 - p0):
            self.vm(f'buffer_load_dword v45, v6, {W2}, s38 offen {self.hpol}', 'ho'); a('s_add_u32 s38, s38, 7168')
    def roleW(self):
        a = self.a
        self.cq = list(self.cq0); done = 8 * (self.hq[1] - self.hq[0]) if self.hq else 0
        self.consts()
        if done < 10: self.arm()
        if done < 24: self.announce()
        a('s_sub_u32 s2, s2, 30')
        if self.hpf: self.helper()
        if self.ho: self.wo_pf('s2', 14)
        if self.w2:
            a('s_lshr_b32 s38, s3, 1'); a('s_cmp_lg_u32 s2, s38'); a('s_cbranch_scc1 L_end')
            if self.diag: a('s_lshl_b32 s38, s2, 13'); a('s_sub_u32 s61, s61, s38')
        else: a('s_cmp_lg_u32 s2, 0'); a('s_cbranch_scc1 L_end')
        self.near()
        self.srd(20, 82, 3584)
        self.x0off(); self.gather_offs()
        self.preready(); self.ready()
        G = 64
        a('s_mov_b32 s49, 0'); a(f's_add_u32 s47, s10, 0x{XAOFF + 16384:x}'); a(f's_add_u32 s48, s10, 0x{ZOFF + 4 * 32768:x}'); a('s_mov_b32 s44, 0')
        a.label('L_Wtop')
        if not self.mres: self.resid_poll('s47')
        self.gather_sum('s48', G, False, 's47' if self.mres else None)
        a(f'buffer_store_dword v24, v12, {W1}, s44 offen')
        self.stamp(12, 's49', 28)
        if self.diag: self.stamp(24, 's49', 28, 's52')
        a('s_add_u32 s49, s49, 1'); a('s_add_u32 s47, s47, 2048'); a('s_add_u32 s48, s48, 32768'); a('s_add_u32 s44, s44, 896')
        a('s_cmp_lt_u32 s49, 4'); a('s_cbranch_scc1 L_Wtop')
        a('s_branch L_end')
    def helper(self):
        a = self.a
        hq, ho = self.hpf if isinstance(self.hpf, (list, tuple)) else (48, 48)
        a('s_lshl_b32 s38, s2, 2'); a('s_add_u32 s38, s38, s3')
        self.srd(20, 70, 448 * 8192); self.srd(24, 72, 4096 * 896)
        a('s_lshl_b32 s40, s38, 10'); a(f's_add_u32 s40, s40, {(448 - hq) * 8192}')
        l = self.lab('L_hq'); a(f's_mov_b32 s41, {hq}')
        if hq:
            a.label(l)
            a('s_waitcnt vmcnt(11)'); a(f'buffer_load_dwordx4 v[64:67], v1, {W1}, s40 offen {self.hpol}')
            a('s_add_u32 s40, s40, 8192'); a('s_sub_u32 s41, s41, 1'); a('s_cmp_lg_u32 s41, 0'); a(f's_cbranch_scc1 {l}')
        if ho:
            a('s_mul_i32 s40, s38, 458752'); a(f's_add_u32 s40, s40, {229376 - ho * 1024}'); a('s_add_u32 s42, s40, 229376')
            l = self.lab('L_ho'); a(f's_mov_b32 s41, {ho}')
            a.label(l)
            a('s_waitcnt vmcnt(10)'); a(f'buffer_load_dwordx4 v[64:67], v1, {W2}, s40 offen {self.hpol}')
            a(f'buffer_load_dwordx4 v[64:67], v1, {W2}, s42 offen {self.hpol}')
            a('s_add_u32 s40, s40, 1024'); a('s_add_u32 s42, s42, 1024'); a('s_sub_u32 s41, s41, 1'); a('s_cmp_lg_u32 s41, 0'); a(f's_cbranch_scc1 {l}')
        a('s_waitcnt vmcnt(0)')
        self.stamp(20, None, 28)

if __name__ == '__main__':
    kw = json.loads(sys.argv[2]) if len(sys.argv) > 2 else {}
    open(sys.argv[1], 'w').write(Gen(**kw).build())
```
